```python
import torch

def _softmax(x, axis=-1):
    return torch.softmax(x, dim=axis)
def _gelu(x):
    return torch.nn.functional.gelu(x, approximate="tanh")
def _silu(x):
    return torch.nn.functional.silu(x)
def _sigmoid(x):
    return torch.sigmoid(x)
def _layernorm(x, axis=-1, eps=1e-5):
    m = x.mean(dim=axis, keepdim=True)
    v = x.var(dim=axis, keepdim=True, unbiased=False)
    return (x - m) / torch.sqrt(v + eps)
def _scatter_add(tgt, idx, src, axis=0):
    return tgt.clone().index_add_(axis, idx, src)
def _segment_sum(src, seg, n):
    out = torch.zeros((n,) + src.shape[1:], dtype=src.dtype)
    return out.index_add_(0, seg, src)
def _pad(x, pw):
    flat = tuple(v for pair in reversed(pw) for v in pair)
    return torch.nn.functional.pad(x, flat)

kernel_name = 'standalone__paged_block_table_kv_pagedattention__sampling'

def setup_inputs():

    _w = (lambda a: (lambda t: t.to(torch.bfloat16) if t.is_floating_point() else t)(torch.as_tensor(a)))
    B, Hq, Hkv, Sq, Skv, D = 32, 32, 8, 8, 2048, 128
    bs = 16
    nbps = max(1, Skv // bs)
    num_phys = B * nbps + 4
    bt = torch.randperm(num_phys)[: B * nbps].reshape(B, nbps).to(torch.int64)
    cl = (nbps * bs - (torch.arange(1, B + 1, dtype=torch.int64) * 2654435761) % max(1, nbps * bs // 2)).to(torch.int64)
    return {
        "q": _w((lambda *s: torch.randn(*s, dtype=torch.bfloat16) * 0.8)(B, Hq, Sq, D)),
        "k_cache": _w((lambda *s: torch.randn(*s, dtype=torch.bfloat16) * 0.8)(num_phys, bs, Hkv, D)),
        "v_cache": _w((lambda *s: torch.randn(*s, dtype=torch.bfloat16) * 0.05)(num_phys, bs, Hkv, D)),
        "block_table": _w(bt),
        "context_lens": _w(cl),
    }

def reference(q, k_cache, v_cache, block_table, context_lens):
    B, Hq, Sq, D = q.shape
    bs = k_cache.shape[1]
    Hkv = k_cache.shape[2]
    nbps = block_table.shape[1]
    Skv = nbps * bs
    bt = block_table.reshape(-1)
    k = (lambda x, *d: x.permute(*d))(k_cache[bt].reshape(B, Skv, Hkv, D), 0, 2, 1, 3)
    v = (lambda x, *d: x.permute(*d))(v_cache[bt].reshape(B, Skv, Hkv, D), 0, 2, 1, 3)
    g = Hq // Hkv
    qg = q.reshape(B, Hkv, g, Sq, D)
    scores = torch.einsum("bhgqd,bhkd->bhgqk", qg, k) * (D ** -0.5)
    pos = torch.arange(Skv)
    msk = pos[None, :] < context_lens[:, None]
    scores = torch.where(msk[:, None, None, None, :], scores, -1e9)
    p = _softmax(scores, axis=-1)
    out = torch.einsum("bhgqk,bhkd->bhgqd", p, v)
    return out.reshape(B, Hq, Sq, D)
```

```python
import sys, argparse
NAME = "standalone__paged_block_table_kv_pagedattention__sampling"
HEADER = open("cdna_kernels/" + NAME + ".s.ref").read().split("; Override")[0]

ap = argparse.ArgumentParser()
ap.add_argument("-o", default="/dev/stdout")
ap.add_argument("--nt", default="nt")
ap.add_argument("--map", default="rot")
ap.add_argument("--mode", default="full")
ap.add_argument("--stamps", action="store_true")
a = ap.parse_args()
NT = "" if a.nt == "none" else " " + a.nt.replace("+", " ")

KBYTES = 4100 * 32768
out = []
def e(s): out.append("    " + s)
def lab(s): out.append(s + ":")

sQ, sK, sV, sBT, sCL, sOUT, sDBG, sWS = 4, 6, 8, 10, 12, 14, 16, 18
sKD, sVD = 20, 24
sB, sH, sW, sCLV, sNT, sT, sTP = 28, 29, 30, 31, 32, 33, 34
sB0, sB1, sM0K, sTMP, sC, sOOB, sLAST = 35, 36, 37, 38, 39, 40, 41
sST = 44
vTID = 0
vLANE = 1
vBT = 2
vKOFF = 4
vVOFF = 8
vKA = 12
vVA = 20
vM, vL, vMN, vAL, vT0, vT1, vT2, vREM = 24, 25, 26, 27, 28, 29, 30, 31
vQ = 32
vKF = 64
vVF = 96
vS = 128
vP = 144
vO = 152
NV = 216

def stamp(i):
    if a.stamps:
        e(f"s_memrealtime s[{sST+2*i}:{sST+2*i+1}]")

out.append(HEADER.rstrip())
out.append("; @launch grid=(256,1,1) block=(256,1,1) lds=131072")
out.append('.amdgcn_target "amdgcn-amd-amdhsa--gfx950"')
out.append(".text")
out.append(f".globl {NAME}_kernel")
out.append(".p2align 8")
out.append(f".type {NAME}_kernel,@function")
lab(f"{NAME}_kernel")
e("s_cmp_ge_u32 s2, 256")
e("s_cbranch_scc1 L_end")
stamp(0)
e("s_load_dwordx16 s[4:19], s[0:1], 0")
if a.map == "bx":
    e(f"s_and_b32 s{sB}, s2, 31")
    e(f"s_lshr_b32 s{sH}, s2, 5")
else:
    e(f"s_lshr_b32 s{sB}, s2, 3")
    if a.map == "rot":
        e(f"s_add_u32 s{sH}, s2, s{sB}")
        e(f"s_and_b32 s{sH}, s{sH}, 7")
    else:
        e(f"s_and_b32 s{sH}, s2, 7")
e(f"v_and_b32 v{vLANE}, 63, v0")
e(f"v_lshrrev_b32 v{vT0}, 6, v0")
e(f"s_lshl_b32 s{sTMP}, s{sB}, 9")
e(f"v_readfirstlane_b32 s{sW}, v{vT0}")
e(f"v_lshl_add_u32 v{vT1}, v{vLANE}, 3, s{sTMP}")
e(f"s_lshl_b32 s{sB0}, s{sB}, 16")
e(f"s_lshl_b32 s{sB1}, s{sH}, 13")
e(f"s_add_u32 s{sB0}, s{sB0}, s{sB1}")
sQO = 42
e(f"s_mov_b32 s{sQO}, s{sB0}")
e(f"v_and_b32 v{vT2}, 31, v{vLANE}")
e(f"v_lshlrev_b32 v{vT2}, 8, v{vT2}")
e(f"v_lshrrev_b32 v{vREM}, 5, v{vLANE}")
e(f"v_lshl_add_u32 v{vT2}, v{vREM}, 4, v{vT2}")
e(f"v_add_u32 v{vT2}, s{sQO}, v{vT2}")
e(f"s_lshl_b32 s{sTMP}, s{sB}, 2")
e("s_waitcnt lgkmcnt(0)")
e(f"global_load_dwordx2 v[{vBT}:{vBT+1}], v{vT1}, s[{sBT}:{sBT+1}]")
e(f"s_load_dword s{sCLV}, s[{sCL}:{sCL+1}], s{sTMP}")
for s in range(8):
    e(f"global_load_dwordx4 v[{vQ+4*s}:{vQ+4*s+3}], v{vT2}, s[{sQ}:{sQ+1}] offset:{32*s}")
for d, p in ((sKD, sK), (sVD, sV)):
    e(f"s_mov_b32 s{d}, s{p}")
    e(f"s_and_b32 s{d+1}, s{p+1}, 0xffff")
    e(f"s_mov_b32 s{d+2}, {KBYTES}")
    e(f"s_mov_b32 s{d+3}, 0x20000")
e(f"v_lshrrev_b32 v{vT0}, 4, v{vLANE}")
e(f"v_and_b32 v{vT1}, 15, v{vLANE}")
e(f"s_lshl_b32 s{sTMP}, s{sH}, 8")
for j in range(4):
    e(f"v_add_u32 v{vMN}, {4*j}, v{vT0}")
    e(f"v_xor_b32 v{vAL}, v{vMN}, v{vT1}")
    e(f"v_lshlrev_b32 v{vAL}, 4, v{vAL}")
    e(f"v_lshl_add_u32 v{vAL}, v{vMN}, 11, v{vAL}")
    e(f"v_add_u32 v{vAL}, s{sTMP}, v{vAL}")
    if j: e(f"v_subrev_u32 v{vKOFF+j}, {1024*j}, v{vAL}")
    else: e(f"v_mov_b32 v{vKOFF}, v{vAL}")
e(f"v_lshlrev_b32 v{vMN}, 2, v{vT0}")
e(f"v_xor_b32 v{vAL}, v{vMN}, v{vT1}")
e(f"v_lshlrev_b32 v{vAL}, 4, v{vAL}")
e(f"v_lshl_add_u32 v{vAL}, v{vT0}, 11, v{vAL}")
e(f"v_add_u32 v{vVOFF}, s{sTMP}, v{vAL}")
for j in range(1, 4):
    e(f"v_add_u32 v{vVOFF+j}, {7168*j}, v{vVOFF}")
e(f"s_lshl_b32 s{sM0K}, s{sW}, 15")
e(f"v_and_b32 v{vT0}, 31, v{vLANE}")
e(f"v_lshlrev_b32 v{vT0}, 8, v{vT0}")
e(f"v_add_u32 v{vT0}, s{sM0K}, v{vT0}")
e(f"v_xor_b32 v{vT1}, v{vREM}, v{vT1}")
for s in range(8):
    e(f"v_xor_b32 v{vMN}, {2*s}, v{vT1}")
    e(f"v_lshl_add_u32 v{vKA+s}, v{vMN}, 4, v{vT0}")
e(f"v_bfe_u32 v{vT0}, v{vLANE}, 2, 2")
e(f"v_lshl_add_u32 v{vT1}, v{vREM}, 2, v{vT0}")
e(f"v_lshlrev_b32 v{vT1}, 8, v{vT1}")
e(f"v_bfe_u32 v{vMN}, v{vLANE}, 4, 1")
e(f"v_lshl_add_u32 v{vT1}, v{vMN}, 5, v{vT1}")
e(f"v_and_b32 v{vMN}, 3, v{vLANE}")
e(f"v_lshl_add_u32 v{vT1}, v{vMN}, 3, v{vT1}")
e(f"s_add_u32 s{sTMP}, s{sM0K}, 8192")
e(f"v_add_u32 v{vT1}, s{sTMP}, v{vT1}")
for dt in range(4):
    e(f"v_xor_b32 v{vMN}, {dt}, v{vT0}")
    e(f"v_lshl_add_u32 v{vVA+dt}, v{vMN}, 6, v{vT1}")
e(f"v_mov_b32 v{vM}, 0xff800000")
e(f"v_mov_b32 v{vL}, 0")
for r in range(64): e(f"v_mov_b32 v{vO+r}, 0")
e(f"s_mov_b32 s{sC}, 0x3e0293ee")
e(f"s_mov_b32 s{sOOB}, 0x80000000")
e("s_waitcnt vmcnt(8) lgkmcnt(0)")
stamp(1)
e(f"v_lshlrev_b32 v{vBT}, 15, v{vBT}")
e(f"v_lshlrev_b32 v{vBT+1}, 15, v{vBT+1}")
e(f"s_cmp_lt_i32 s{sCLV}, 1")
e(f"s_cselect_b32 s{sLAST}, 1, 0")
e(f"s_cselect_b32 s{sCLV}, 2048, s{sCLV}")
e(f"s_min_i32 s{sCLV}, s{sCLV}, 2048")
e(f"s_add_u32 s{sNT}, s{sCLV}, 31")
e(f"s_lshr_b32 s{sNT}, s{sNT}, 5")
e(f"s_mov_b32 s{sTP}, s{sW}")

def get_blocks():
    e(f"v_readlane_b32 s{sB0}, v{vBT}, s{sTP}")
    e(f"v_readlane_b32 s{sB1}, v{vBT+1}, s{sTP}")
    e(f"s_cmp_lt_u32 s{sTP}, s{sNT}")
    e(f"s_cselect_b32 s{sB0}, s{sB0}, s{sOOB}")
    e(f"s_cselect_b32 s{sB1}, s{sB1}, s{sOOB}")
def dma(srd, voff, m0expr_add):
    e(f"s_add_u32 m0, s{sM0K}, {m0expr_add}")
    e("s_nop 0")
    for j in range(4):
        e(f"buffer_load_dwordx4 v{voff+j}, s[{srd}:{srd+3}], s{sB0} offen offset:{1024*j}{NT} lds")
    e(f"s_add_u32 m0, s{sM0K}, {m0expr_add+4096}")
    e("s_nop 0")
    for j in range(4):
        e(f"buffer_load_dwordx4 v{voff+j}, s[{srd}:{srd+3}], s{sB1} offen offset:{1024*j}{NT} lds")

e("s_nop 1")
get_blocks()
e("s_nop 2")
dma(sKD, vKOFF, 0)
dma(sVD, vVOFF, 8192)
e(f"s_add_u32 s{sTP}, s{sTP}, 4")
get_blocks()
e("s_nop 2")
dma(sKD, vKOFF, 16384)
dma(sVD, vVOFF, 16384 + 8192)
e(f"s_cmp_eq_u32 s{sLAST}, 0")
e("s_cbranch_scc1 L_qok")
e("s_waitcnt vmcnt(32)")
for r in range(32): e(f"v_mov_b32 v{vQ+r}, 0")
lab("L_qok")
e(f"s_mov_b32 s{sT}, s{sW}")
e(f"s_sub_u32 s{sLAST}, s{sNT}, 1")
e(f"s_cmp_ge_u32 s{sT}, s{sNT}")
e("s_cbranch_scc1 L_done")
out.append(".p2align 6")
lab("L_loop")
e(f"s_add_u32 s{sTP}, s{sT}, 8")
e("s_waitcnt vmcnt(24)")
if a.mode != "load":
    for s in range(8):
        e(f"ds_read_b128 v[{vKF+4*s}:{vKF+4*s+3}], v{vKA+s}")
get_blocks()
e("s_waitcnt lgkmcnt(0)")
dma(sKD, vKOFF, 0)
if a.mode == "full":
    for s in range(8):
        c = "0" if s == 0 else f"v[{vS}:{vS+15}]"
        e(f"v_mfma_f32_32x32x16_bf16 v[{vS}:{vS+15}], v[{vKF+4*s}:{vKF+4*s+3}], v[{vQ+4*s}:{vQ+4*s+3}], {c}")
    for s in range(8):
        e(f"v_xor_b32 v{vKA+s}, 0x4000, v{vKA+s}")
    e(f"s_cmp_lg_u32 s{sT}, s{sLAST}")
    e("s_nop 3")
    e("s_cbranch_scc1 L_nomask")
    e(f"s_lshl_b32 s{sTMP}, s{sT}, 5")
    e(f"s_sub_u32 s{sTMP}, s{sCLV}, s{sTMP}")
    e(f"v_lshrrev_b32 v{vT0}, 5, v{vLANE}")
    e(f"v_lshlrev_b32 v{vT0}, 2, v{vT0}")
    e(f"v_sub_u32 v{vREM}, s{sTMP}, v{vT0}")
    e(f"v_mov_b32 v{vT1}, 0xff800000")
    for r in range(16):
        e(f"v_cmp_lt_i32 vcc, {8*(r//4)+(r%4)}, v{vREM}")
        e("s_nop 1")
        e(f"v_cndmask_b32 v{vS+r}, v{vT1}, v{vS+r}, vcc")
    lab("L_nomask")
    e(f"v_max3_f32 v{vT0}, v{vS}, v{vS+1}, v{vS+2}")
    e(f"v_max3_f32 v{vT1}, v{vS+3}, v{vS+4}, v{vS+5}")
    e(f"v_max3_f32 v{vT0}, v{vT0}, v{vS+6}, v{vS+7}")
    e(f"v_max3_f32 v{vT1}, v{vT1}, v{vS+8}, v{vS+9}")
    e(f"v_max3_f32 v{vT0}, v{vT0}, v{vS+10}, v{vS+11}")
    e(f"v_max3_f32 v{vT1}, v{vT1}, v{vS+12}, v{vS+13}")
    e(f"v_max3_f32 v{vT0}, v{vT0}, v{vS+14}, v{vS+15}")
    e(f"v_max3_f32 v{vT0}, v{vT0}, v{vT1}, v{vM}")
    e(f"v_mov_b32 v{vT1}, v{vT0}")
    e("s_nop 1")
    e(f"v_permlane32_swap_b32 v{vT0}, v{vT1}")
    e("s_nop 1")
    e(f"v_max_f32 v{vMN}, v{vT0}, v{vT1}")
    e(f"v_sub_f32 v{vAL}, v{vM}, v{vMN}")
    e(f"v_mul_f32 v{vAL}, s{sC}, v{vAL}")
    e(f"v_exp_f32 v{vAL}, v{vAL}")
    e(f"v_mul_f32 v{vT2}, s{sC}, v{vMN}")
    e(f"v_mov_b32 v{vM}, v{vMN}")
    for r in range(16):
        e(f"v_fma_f32 v{vS+r}, v{vS+r}, s{sC}, -v{vT2}")
    for r in range(16):
        e(f"v_exp_f32 v{vS+r}, v{vS+r}")
    e(f"v_mul_f32 v{vL}, v{vL}, v{vAL}")
    for r in range(8):
        e(f"v_cvt_pk_bf16_f32 v{vP+r}, v{vS+2*r}, v{vS+2*r+1}")
    e(f"v_add_f32 v{vT0}, v{vS}, v{vS+1}")
    e(f"v_add_f32 v{vT1}, v{vS+2}, v{vS+3}")
    for r in range(4, 16, 2):
        e(f"v_add_f32 v{vT0}, v{vT0}, v{vS+r}")
        e(f"v_add_f32 v{vT1}, v{vT1}, v{vS+r+1}")
    e(f"v_add_f32 v{vL}, v{vL}, v{vT0}")
    e(f"v_add_f32 v{vL}, v{vL}, v{vT1}")
else:
    for s in range(8):
        e(f"v_xor_b32 v{vKA+s}, 0x4000, v{vKA+s}")
e("s_waitcnt vmcnt(24)")
if a.mode != "load":
    for dt in range(4):
        for ks in range(2):
            for j in range(2):
                r = vVF + (dt * 2 + ks) * 4 + 2 * j
                e(f"ds_read_b64_tr_b16 v[{r}:{r+1}], v{vVA+dt} offset:{(16*ks+8*j)*256}")
if a.mode == "full":
    for r in range(64):
        e(f"v_mul_f32 v{vO+r}, v{vO+r}, v{vAL}")
e("s_waitcnt lgkmcnt(0)")
dma(sVD, vVOFF, 8192)
if a.mode == "full":
    for ks in range(2):
        for dt in range(4):
            f = vVF + (dt * 2 + ks) * 4
            e(f"v_mfma_f32_32x32x16_bf16 v[{vO+16*dt}:{vO+16*dt+15}], v[{f}:{f+3}], v[{vP+4*ks}:{vP+4*ks+3}], v[{vO+16*dt}:{vO+16*dt+15}]")
for dt in range(4):
    e(f"v_xor_b32 v{vVA+dt}, 0x4000, v{vVA+dt}")
e(f"s_xor_b32 s{sM0K}, s{sM0K}, 0x4000")
e(f"s_add_u32 s{sT}, s{sT}, 4")
e(f"s_cmp_lt_u32 s{sT}, s{sNT}")
e("s_cbranch_scc1 L_loop")
lab("L_done")
stamp(2)
e(f"v_mov_b32 v{vT0}, v{vL}")
e("s_nop 1")
e(f"v_permlane32_swap_b32 v{vL}, v{vT0}")
e("s_nop 1")
e(f"v_add_f32 v{vL}, v{vL}, v{vT0}")
e("s_waitcnt vmcnt(0)")
e("s_barrier")
OST = 16896
MLB = 4 * OST
e(f"v_and_b32 v{vT0}, 31, v{vLANE}")
e(f"v_mul_u32_u24 v{vT1}, 528, v{vT0}")
e(f"v_lshrrev_b32 v{vT2}, 5, v{vLANE}")
e(f"v_lshl_add_u32 v{vT1}, v{vT2}, 4, v{vT1}")
e(f"s_mul_i32 s{sTMP}, s{sW}, {OST}")
e(f"v_add_u32 v{vT1}, s{sTMP}, v{vT1}")
e("s_nop 4")
for dt in range(4):
    for aa in range(4):
        r = vO + 16 * dt + 4 * aa
        e(f"ds_write_b128 v{vT1}, v[{r}:{r+3}] offset:{(dt*32+8*aa)*4}")
e(f"s_lshl_b32 s{sTMP}, s{sW}, 8")
e(f"s_add_u32 s{sTMP}, s{sTMP}, {MLB}")
e(f"v_lshl_add_u32 v{vT0}, v{vT0}, 3, s{sTMP}")
e(f"ds_write_b64 v{vT0}, v[{vM}:{vM+1}]")
e("s_waitcnt lgkmcnt(0)")
e("s_barrier")
vR = 64
e(f"v_lshrrev_b32 v{vT0}, 3, v0")
e(f"v_and_b32 v{vT1}, 7, v0")
e(f"v_lshlrev_b32 v{vT2}, 3, v{vT0}")
e(f"v_add_u32 v{vT2}, {MLB}, v{vT2}")
for w in range(4):
    e(f"ds_read_b64 v[{32+2*w}:{33+2*w}], v{vT2} offset:{256*w}")
e(f"v_mul_u32_u24 v{vMN}, 528, v{vT0}")
e(f"v_lshl_add_u32 v{vMN}, v{vT1}, 5, v{vMN}")
for w in range(4):
    for half in range(2):
        for j in range(2):
            r = vR + w * 16 + half * 8 + j * 4
            e(f"ds_read_b128 v[{r}:{r+3}], v{vMN} offset:{w*OST + half*256 + j*16}")
e(f"v_lshlrev_b32 v{vAL}, 8, v{vT0}")
e(f"v_lshl_add_u32 v{vAL}, v{vT1}, 4, v{vAL}")
e(f"v_add_u32 v{vAL}, s{sQO}, v{vAL}")
e("s_waitcnt lgkmcnt(15)")
e("s_waitcnt lgkmcnt(0)")
e(f"v_max3_f32 v40, v32, v34, v36")
e(f"v_max_f32 v40, v40, v38")
for w in range(4):
    e(f"v_sub_f32 v{41+w}, v{32+2*w}, v40")
for w in range(4):
    e(f"v_mul_f32 v{41+w}, s{sC}, v{41+w}")
for w in range(4):
    e(f"v_exp_f32 v{41+w}, v{41+w}")
e("s_nop 0")
e("v_mul_f32 v45, v41, v33")
e("v_fmac_f32 v45, v42, v35")
e("v_fmac_f32 v45, v43, v37")
e("v_fmac_f32 v45, v44, v39")
e("v_rcp_f32 v45, v45")
e("s_nop 0")
for w in range(4):
    e(f"v_mul_f32 v{41+w}, v{41+w}, v45")
for i in range(16):
    e(f"v_mul_f32 v{vR+i}, v{vR+i}, v41")
for w in range(1, 4):
    for i in range(16):
        e(f"v_fmac_f32 v{vR+i}, v{vR+16*w+i}, v{41+w}")
for i in range(8):
    e(f"v_cvt_pk_bf16_f32 v{48+i}, v{vR+2*i}, v{vR+2*i+1}")
e(f"global_store_dwordx4 v{vAL}, v[48:51], s[{sOUT}:{sOUT+1}]")
e(f"global_store_dwordx4 v{vAL}, v[52:55], s[{sOUT}:{sOUT+1}] offset:128")
if a.stamps:
    e("s_waitcnt vmcnt(0)")
    stamp(3)
    e(f"s_getreg_b32 s{sTMP}, hwreg(HW_REG_XCC_ID)")
    e(f"s_getreg_b32 s{sB0}, hwreg(HW_REG_HW_ID)")
    e("s_waitcnt lgkmcnt(0)")
    for i in range(8):
        e(f"v_mov_b32 v{64+i}, s{sST+i}")
    e(f"v_mov_b32 v72, s{sTMP}")
    e(f"v_mov_b32 v73, 0")
    e(f"v_mov_b32 v74, s{sB0}")
    e(f"v_mov_b32 v75, 0")
    e(f"s_lshl_b32 s{sTMP}, s2, 2")
    e(f"s_add_u32 s{sTMP}, s{sTMP}, s{sW}")
    e(f"s_lshl_b32 s{sTMP}, s{sTMP}, 6")
    e(f"v_mov_b32 v80, s{sTMP}")
    e("v_cmp_eq_u32 vcc, 0, v1")
    e("s_and_saveexec_b64 s[60:61], vcc")
    e(f"global_store_dwordx4 v80, v[64:67], s[{sWS}:{sWS+1}]")
    e(f"global_store_dwordx4 v80, v[68:71], s[{sWS}:{sWS+1}] offset:16")
    e(f"global_store_dwordx4 v80, v[72:75], s[{sWS}:{sWS+1}] offset:32")
lab("L_end")
e("s_endpgm")
out.append('.section .rodata,"a"')
out.append(".p2align 6")
out.append(f".amdhsa_kernel {NAME}_kernel")
out.append(f"  .amdhsa_next_free_vgpr {NV}")
out.append("  .amdhsa_next_free_sgpr 64")
out.append(f"  .amdhsa_accum_offset {NV}")
out.append("  .amdhsa_group_segment_fixed_size 0")
out.append("  .amdhsa_kernarg_size 64")
out.append("  .amdhsa_user_sgpr_count 2")
out.append("  .amdhsa_user_sgpr_kernarg_segment_ptr 1")
out.append("  .amdhsa_system_sgpr_workgroup_id_x 1")
out.append("  .amdhsa_float_denorm_mode_32 3")
out.append(".end_amdhsa_kernel")
open(a.o, "w").write("\n".join(out) + "\n")
```

```python
import sys, argparse
NAME = "standalone__paged_block_table_kv_pagedattention__sampling"
HEADER = open("cdna_kernels/" + NAME + ".s.ref").read().split("; Override")[0]

ap = argparse.ArgumentParser()
ap.add_argument("-o", default="/dev/stdout")
ap.add_argument("--nt", default="nt")
ap.add_argument("--map", default="plain")
ap.add_argument("--D", type=int, default=20)
ap.add_argument("--U", type=int, default=3)
ap.add_argument("--nslot", type=int, default=8)
ap.add_argument("--fnum", type=int, default=50)
ap.add_argument("--pollnum", type=int, default=44)
ap.add_argument("--psleep", type=int, default=24)
ap.add_argument("--dbg", default="")
ap.add_argument("--fld", default="sc1")
ap.add_argument("--xmin", type=int, default=1)
ap.add_argument("--nosort", action="store_true")
ap.add_argument("--nopair", action="store_true")
ap.add_argument("--nopf", action="store_true")
ap.add_argument("--ost", default="")
ap.add_argument("--stamps", action="store_true")
a = ap.parse_args()
NT = "" if a.nt == "none" else " " + a.nt.replace("+", " ")
OST = "" if not a.ost else " " + a.ost.replace("+", " ")
D, U, NSLOT = a.D, a.U, a.nslot
DBG = set(a.dbg.split(","))
KBYTES = 4100 * 32768
SPIN = 1 << 22

RING = NSLOT * 16384
MB = RING
CTRL = MB + 18432
FREE = CTRL + 512
REC0 = FREE + 64
REC1 = REC0 + 16
RDYB = REC1 + 16
LA = FREE + 256
LB = LA + 512
CNT = LB + 512
KEYS = CNT + 512
LDS = KEYS + 256

out = []
def e(s): out.append("    " + s)
def lab(s): out.append(s + ":")
def c(s): out.append("    ; " + s)

sQ, sK, sV, sBT, sCL, sOUT, sDBG, sWS = 4, 6, 8, 10, 12, 14, 16, 18
sKD, sVD = 20, 24
sB, sH, sW, sCLV = 28, 29, 30, 31
sT0, sT1, sT2, sT3 = 32, 33, 34, 35
sPC = 36
sSPIN = 38
sNB, sNTL, sU0, sT = 39, 40, 41, 42
sEX = 44
sST = 64
sB0, sB1, sIDX, sSTEP, sLIM, sPH, sSLOT = 46, 47, 48, 49, 50, 51, 52
sMK = 54
sM = 46
sCI, sLND, sMBF, sNEED, sMRG, sCST, sV0, sROLE, sQO, sPLN, sSB = 48, 49, 50, 51, 52, 53, 56, 57, 58, 59, 60
sZQ = 54
sRK, sPB, sNP, sX, sTA, sTB, sF, sLONG = 80, 81, 82, 83, 84, 85, 86, 87
sMA, sMBK = 88, 90
sLO, sHI, sLBASE = 92, 93, 94
vLANE = 1
vT0, vT1, vT2, vT3, vT4, vT5 = 2, 3, 4, 5, 6, 7
vL = 8
vKOFF, vVOFF = 10, 14
vCA, vCNT, vFA = 18, 19, 20
vF = 22
vR4 = 24
vKA0, vVA0, vKA, vVA = 8, 12, 16, 20
vM, vLS, vMN, vAL, vPA, vFW = 24, 25, 26, 27, 28, 29
vPL = 30
vQ = 32
vS = 48
vP = 56
vG = 60
vKF = 64
vVF = 96
vO = 128
NV = 160

def stamp(i):
    if a.stamps: e(f"s_memrealtime s[{sST+2*i}:{sST+2*i+1}]")

def clamp_cl(s, zq=None):
    c("context length: <=0 -> all masked => uniform over 2048 (zero Q); >2048 -> 2048")
    e(f"s_cmp_lt_i32 s{s}, 1")
    if zq is not None: e(f"s_cselect_b32 s{zq}, 1, 0")
    e(f"s_cselect_b32 s{s}, 2048, s{s}")
    e(f"s_min_i32 s{s}, s{s}, 2048")
    e(f"s_add_u32 s{sNB}, s{s}, 15")
    e(f"s_lshr_b32 s{sNB}, s{sNB}, 4")
    e(f"s_add_u32 s{sNTL}, s{sNB}, 1")
    e(f"s_lshr_b32 s{sNTL}, s{sNTL}, 1")
    e(f"s_min_u32 s{sU0}, s{sNTL}, {U}")

def spin_tail(label, sleep=1):
    e(f"s_sleep {sleep}")
    e(f"s_sub_u32 s{sSPIN}, s{sSPIN}, 1")
    e(f"s_cbranch_scc0 {label}")
    e("s_endpgm")

out.append(HEADER.rstrip())
out.append(f"; @launch grid=(256,1,1) block=(320,1,1) lds={LDS}")
out.append('.amdgcn_target "amdgcn-amd-amdhsa--gfx950"')
out.append(".text")
out.append(f".globl {NAME}_kernel")
out.append(".p2align 8")
out.append(f".type {NAME}_kernel,@function")
lab(f"{NAME}_kernel")
e("s_cmp_ge_u32 s2, 256")
e("s_cbranch_scc1 L_end")
e("s_load_dwordx16 s[4:19], s[0:1], 0")
stamp(0)
e(f"v_lshrrev_b32 v{vT0}, 6, v0")
e(f"v_and_b32 v{vLANE}, 63, v0")
e(f"v_readfirstlane_b32 s{sW}, v{vT0}")
e(f"s_lshr_b32 s{sB}, s2, 3")
if a.map == "rot":
    e(f"s_add_u32 s{sH}, s2, s{sB}")
    e(f"s_and_b32 s{sH}, s{sH}, 7")
else:
    e(f"s_and_b32 s{sH}, s2, 7")
e(f"s_mov_b32 s{sSPIN}, {SPIN}")
e(f"s_lshl_b32 s{sT0}, s{sB}, 9")
e(f"v_lshl_add_u32 v{vT1}, v{vLANE}, 3, s{sT0}")
e(f"s_lshl_b32 s{sT1}, s{sB}, 2")
e(f"s_cmp_lg_u32 s{sW}, 0")
e("s_cbranch_scc1 L_notloader")

e("s_setprio 3")
e(f"v_mov_b32 v{vT2}, 0")
e(f"v_mov_b32 v{vT3}, 0")
e(f"v_lshlrev_b32 v{vCA}, 3, v{vLANE}")
e(f"v_add_u32 v{vCA}, {CTRL}, v{vCA}")
e(f"v_lshlrev_b32 v{vT4}, 2, v{vLANE}")
e(f"v_add_u32 v{vT4}, {FREE}, v{vT4}")
e(f"ds_write_b64 v{vCA}, v[{vT2}:{vT3}]")
e(f"ds_write_b32 v{vT4}, v{vT2}")
e("s_waitcnt lgkmcnt(0)")
e(f"global_load_dwordx2 v[{vL}:{vL+1}], v{vT1}, s[{sBT}:{sBT+1}]")
e(f"s_load_dword s{sCLV}, s[{sCL}:{sCL+1}], s{sT1}")
e("s_barrier")
for d, p in ((sKD, sK), (sVD, sV)):
    e(f"s_mov_b32 s{d}, s{p}")
    e(f"s_and_b32 s{d+1}, s{p+1}, 0xffff")
    e(f"s_mov_b32 s{d+2}, {KBYTES}")
    e(f"s_mov_b32 s{d+3}, 0x20000")
e(f"v_lshrrev_b32 v{vT0}, 4, v{vLANE}")
e(f"v_and_b32 v{vT1}, 15, v{vLANE}")
e(f"s_lshl_b32 s{sT0}, s{sH}, 8")
e(f"v_lshl_add_u32 v{vT4}, v{vT0}, 11, s{sT0}")
e(f"v_xor_b32 v{vT2}, v{vT0}, v{vT1}")
for j in range(4):
    e(f"v_xor_b32 v{vT3}, {4*j}, v{vT2}")
    e(f"v_lshl_add_u32 v{vKOFF+j}, v{vT3}, 4, v{vT4}")
    if j: e(f"v_add_u32 v{vKOFF+j}, {7168*j}, v{vKOFF+j}")
e(f"v_lshlrev_b32 v{vT3}, 2, v{vT0}")
e(f"v_xor_b32 v{vT3}, v{vT3}, v{vT1}")
e(f"v_lshl_add_u32 v{vVOFF}, v{vT3}, 4, v{vT4}")
for j in range(1, 4):
    e(f"v_add_u32 v{vVOFF+j}, {7168*j}, v{vVOFF}")
j0 = (D - 1) % 8
e(f"v_mov_b32 v{vCNT}, {(j0 - D + 1)//8 - 1}")
e(f"v_mov_b32 v{vFA}, {FREE}")
e(f"v_mov_b32 v{vF}, 0")
e(f"v_mov_b32 v{vF+1}, 0")
e(f"s_mov_b32 s{sT}, 0")
e(f"s_mov_b32 s{sSLOT}, 0")
e(f"s_mov_b32 s{sPH}, 0")
e(f"s_mov_b32 s{sSTEP}, -1")
e(f"v_bfrev_b32 v{vT5}, 1")
e("s_waitcnt lgkmcnt(0)")
clamp_cl(sCLV)
e(f"s_sub_u32 s{sIDX}, s{sNTL}, 1")
e(f"s_mov_b32 s{sLIM}, s{sU0}")
e(f"v_lshl_add_u32 v{vT0}, v{vLANE}, 1, 1")
e(f"v_cmp_gt_u32 vcc, s{sNB}, v{vT0}")
e("s_waitcnt vmcnt(0)")
e(f"v_lshlrev_b32 v{vL}, 15, v{vL}")
e(f"v_lshlrev_b32 v{vL+1}, 15, v{vL+1}")
e(f"v_cndmask_b32 v{vL+1}, v{vT5}, v{vL+1}, vcc")
stamp(1)
e("s_nop 0")
out.append(".p2align 3")
lab("L_ld")
e(f"v_readlane_b32 s{sB0}, v{vL}, s{sIDX}")
e(f"v_readlane_b32 s{sB1}, v{vL+1}, s{sIDX}")
e(f"s_sub_u32 s{sT1}, s{sT}, {NSLOT-1}")
lab("L_ld_chk")
e("s_waitcnt lgkmcnt(0)")
e(f"v_min_i32 v{vT0}, v{vF}, v{vF+1}")
e(f"s_add_u32 s{sT2}, s{sSLOT}, 16384")
e(f"v_readfirstlane_b32 s{sT0}, v{vT0}")
e(f"s_and_b32 s{sT2}, s{sT2}, {RING-1}")
e(f"s_cmp_ge_i32 s{sT0}, s{sT1}")
e("s_cbranch_scc0 L_ld_wait")
for j in range(16):
    g, jj = j // 4, j % 4
    if jj == 0: e(f"s_add_u32 m0, s{sSLOT}, {4096*g}")
    e(f"s_waitcnt vmcnt({D-1})")
    srd, voff = (sKD, vKOFF) if g < 2 else (sVD, vVOFF)
    e(f"buffer_load_dwordx4 v{voff+jj}, s[{srd}:{srd+3}], s{sB0 + (g & 1)} offen offset:{1024*jj}{NT} lds")
    if j % 8 == j0:
        e(f"v_add_u32 v{vCNT}, 1, v{vCNT}")
        e(f"ds_write_b32 v{vCA}, v{vCNT}")
    if j == 13:
        c("prefetch FREE words of the next slot")
        e(f"s_lshr_b32 s{sT0}, s{sT2}, 11")
        e(f"s_add_u32 s{sT0}, s{sT0}, {FREE}")
        e(f"v_mov_b32 v{vFA}, s{sT0}")
        e(f"ds_read_b64 v[{vF}:{vF+1}], v{vFA}")
e(f"s_mov_b32 s{sSLOT}, s{sT2}")
e(f"s_add_u32 s{sT}, s{sT}, 1")
e(f"s_add_u32 s{sIDX}, s{sIDX}, s{sSTEP}")
e(f"s_cmp_lg_u32 s{sT}, s{sLIM}")
e("s_cbranch_scc1 L_ld")
e(f"s_cmp_lg_u32 s{sPH}, 0")
e("s_cbranch_scc1 L_ld_drain")
c("fetch the plan")
e(f"s_mov_b32 s{sPH}, 1")
e(f"v_mov_b32 v{vT1}, {REC1}")
lab("L_ld_plan")
e(f"ds_read_b128 v[{vR4}:{vR4+3}], v{vT1}")
e(f"ds_read_b32 v{vT2}, v{vT1} offset:16")
e("s_waitcnt lgkmcnt(0)")
e(f"v_and_b32 v{vT2}, v{vT2}, v{vR4+3}")
e(f"v_readfirstlane_b32 s{sMK}, v{vR4}")
e(f"v_readfirstlane_b32 s{sT0}, v{vT2}")
e(f"v_readfirstlane_b32 s{sMK+1}, v{vR4+1}")
e(f"v_readfirstlane_b32 s{sLIM}, v{vR4+2}")
e(f"s_cmp_lg_u32 s{sT0}, 0")
e("s_cbranch_scc1 L_ld_gotplan")
spin_tail("L_ld_plan")
lab("L_ld_gotplan")
stamp(2)
e(f"v_mbcnt_lo_u32_b32 v{vT0}, s{sMK}, 0")
e(f"v_mbcnt_hi_u32_b32 v{vT0}, s{sMK+1}, v{vT0}")
e(f"v_sub_u32 v{vT1}, v{vLANE}, v{vT0}")
e(f"v_subrev_u32 v{vT1}, s{sU0}, v{vT1}")
e(f"v_lshlrev_b32 v{vT0}, 3, v{vT0}")
e(f"v_lshlrev_b32 v{vT1}, 3, v{vT1}")
e(f"v_add_u32 v{vT0}, {LB}, v{vT0}")
e(f"v_add_u32 v{vT1}, {LA}, v{vT1}")
e(f"v_cndmask_b32 v{vT0}, v{vT1}, v{vT0}, s[{sMK}:{sMK+1}]")
e(f"ds_read_b64 v[{vL}:{vL+1}], v{vT0}")
e(f"s_mov_b32 s{sIDX}, s{sT}")
e(f"s_mov_b32 s{sSTEP}, 1")
e(f"s_cmp_lg_u32 s{sT}, s{sLIM}")
e("s_waitcnt lgkmcnt(0)")
e("s_cbranch_scc1 L_ld")
lab("L_ld_drain")
for r in range(((D - 1) // 8) * 8, -1, -8):
    e(f"s_waitcnt vmcnt({r})")
    e(f"v_add_u32 v{vCNT}, 1, v{vCNT}")
    e(f"ds_write_b32 v{vCA}, v{vCNT}")
e("s_branch L_fin")
lab("L_ld_wait")
e(f"ds_read_b64 v[{vF}:{vF+1}], v{vFA}")
spin_tail("L_ld_chk")

lab("L_notloader")
e(f"s_cmp_ge_u32 s{sW}, 3")
e("s_cbranch_scc1 L_planner")
e(f"s_sub_u32 s{sCI}, s{sW}, 1")
if not a.nopf:
    c("warm L2 with this kernel's code")
    e(f"s_getpc_b64 s[{sPC}:{sPC+1}]")
    lab("L_pc")
    e(f"v_subrev_u32 v{vT2}, 64, v0")
    e(f"v_lshlrev_b32 v{vT2}, 7, v{vT2}")
    e(f"s_mov_b32 s{sT2}, L_end - L_pc")
    e(f"v_min_u32 v{vT2}, s{sT2}, v{vT2}")
    e(f"global_load_dword v61, v{vT2}, s[{sPC}:{sPC+1}]")
e(f"s_mov_b32 s{sROLE}, 0")
e(f"s_mov_b32 s{sPLN}, 0")
e(f"s_mov_b32 s{sMRG}, 0")
e(f"s_mov_b32 s{sT3}, s{sB}")
e("s_waitcnt lgkmcnt(0)")
e(f"s_load_dword s{sCLV}, s[{sCL}:{sCL+1}], s{sT1}")

def load_q():
    e(f"s_lshl_b32 s{sQO}, s{sT3}, 16")
    e(f"s_lshl_b32 s{sT0}, s{sH}, 13")
    e(f"s_add_u32 s{sQO}, s{sQO}, s{sT0}")
    e(f"s_lshl_b32 s{sT0}, s{sCI}, 12")
    e(f"s_add_u32 s{sQO}, s{sQO}, s{sT0}")
    e(f"v_and_b32 v{vT0}, 15, v{vLANE}")
    e(f"v_lshrrev_b32 v{vG}, 4, v{vLANE}")
    e(f"v_lshl_add_u32 v{vT4}, v{vT0}, 8, s{sQO}")
    e(f"v_lshl_add_u32 v{vT4}, v{vG}, 4, v{vT4}")
    for s in range(4):
        e(f"global_load_dwordx4 v[{vQ+4*s}:{vQ+4*s+3}], v{vT4}, s[{sQ}:{sQ+1}] offset:{64*s}")
load_q()
e("s_barrier")
e("s_waitcnt lgkmcnt(0)")
clamp_cl(sCLV, zq=sT3)
c("valid tokens of stream tile 0")
e(f"s_sub_u32 s{sT0}, s{sNTL}, 1")
e(f"s_lshl_b32 s{sT0}, s{sT0}, 5")
e(f"s_sub_u32 s{sV0}, s{sCLV}, s{sT0}")
e(f"s_bfm_b64 s[{sM}:{sM+1}], s{sU0}, 0")
lab("L_csetup")
e(f"v_and_b32 v{vT0}, 15, v{vLANE}")
e(f"v_xor_b32 v{vT1}, v{vG}, v{vT0}")
e(f"v_lshlrev_b32 v{vT2}, 8, v{vT0}")
for s in range(4):
    e(f"v_xor_b32 v{vT3}, {4*s}, v{vT1}")
    e(f"v_lshl_add_u32 v{vKA0+s}, v{vT3}, 4, v{vT2}")
e(f"v_bfe_u32 v{vT0}, v{vLANE}, 2, 2")
e(f"v_lshl_add_u32 v{vT1}, v{vG}, 2, v{vT0}")
e(f"v_lshlrev_b32 v{vT1}, 8, v{vT1}")
e(f"v_and_b32 v{vT2}, 3, v{vLANE}")
e(f"v_lshl_add_u32 v{vT1}, v{vT2}, 4, v{vT1}")
e(f"v_add_u32 v{vT1}, 8192, v{vT1}")
for j in range(4):
    e(f"v_xor_b32 v{vT3}, {j}, v{vT0}")
    e(f"v_lshl_add_u32 v{vVA0+j}, v{vT3}, 6, v{vT1}")
e(f"s_lshl_b32 s{sT0}, s{sW}, 3")
e(f"s_add_u32 s{sT0}, s{sT0}, {CTRL-8}")
e(f"v_mov_b32 v{vPA}, s{sT0}")
e(f"v_mov_b32 v{vM}, 0xff800000")
e(f"v_mov_b32 v{vLS}, 0")
for r in range(32): e(f"v_mov_b32 v{vO+r}, 0")
e(f"s_mov_b32 s{sCST}, 0x3e0293ee")
e("s_waitcnt vmcnt(0)")
e(f"s_cmp_eq_u32 s{sT3}, 0")
e("s_cbranch_scc1 L_c_next")
for r in range(16): e(f"v_mov_b32 v{vQ+r}, 0")

def poll(label, done):
    lab(label)
    e(f"ds_read_b64 v[{vPL}:{vPL+1}], v{vPA}")
    e("s_waitcnt lgkmcnt(0)")
    e(f"v_readfirstlane_b32 s{sLND}, v{vPL}")
    e(f"v_readfirstlane_b32 s{sMBF}, v{vPL+1}")
    e(f"s_cmp_ge_i32 s{sLND}, s{sNEED}")
    e(f"s_cbranch_scc1 {done}")
    spin_tail(label)

def vreads():
    for j in range(4):
        for ee in range(2):
            for blk in range(2):
                r = vVF + (2 * j + ee) * 4 + 2 * blk
                e(f"ds_read_b64_tr_b16 v[{r}:{r+1}], v{vVA+j} offset:{8*ee + 4096*blk}")

out.append(".p2align 3")
lab("L_c_next")
e(f"s_cmp_eq_u64 s[{sM}:{sM+1}], 0")
e("s_cbranch_scc1 L_c_empty")
e(f"s_ff1_i32_b64 s{sT}, s[{sM}:{sM+1}]")
e(f"s_bitset0_b64 s[{sM}:{sM+1}], s{sT}")
e(f"s_and_b32 s{sT0}, s{sT}, {NSLOT-1}")
e(f"s_lshl_b32 s{sSB}, s{sT0}, 14")
e(f"s_lshl_b32 s{sT0}, s{sT0}, 3")
e(f"s_lshl_b32 s{sT1}, s{sCI}, 2")
e(f"s_add_u32 s{sT0}, s{sT0}, s{sT1}")
e(f"s_add_u32 s{sT0}, s{sT0}, {FREE}")
e(f"s_lshl_b32 s{sNEED}, s{sT}, 1")
e(f"s_add_u32 s{sNEED}, s{sNEED}, 1")
for i in range(4): e(f"v_add_u32 v{vKA+i}, s{sSB}, v{vKA0+i}")
for i in range(4): e(f"v_add_u32 v{vVA+i}, s{sSB}, v{vVA0+i}")
e(f"v_mov_b32 v{vFW}, s{sT0}")
poll("L_c_pollk", "L_c_gotk")
lab("L_c_gotk")
e(f"s_and_b32 s{sT0}, s{sMBF}, s{sMRG}")
e("s_cbranch_scc1 L_c_merge")
lab("L_c_k")
for blk in range(2):
    for s in range(4):
        r = vKF + (blk * 4 + s) * 4
        e(f"ds_read_b128 v[{r}:{r+3}], v{vKA+s} offset:{4096*blk}")
e(f"s_add_u32 s{sNEED}, s{sNEED}, 1")
for blk in range(2):
    for s in range(4):
        r = vKF + (blk * 4 + s) * 4
        e(f"s_waitcnt lgkmcnt({7 - blk*4 - s})")
        cc = "0" if s == 0 else f"v[{vS+4*blk}:{vS+4*blk+3}]"
        e(f"v_mfma_f32_16x16x32_bf16 v[{vS+4*blk}:{vS+4*blk+3}], v[{r}:{r+3}], v[{vQ+4*s}:{vQ+4*s+3}], {cc}")
e(f"s_cmp_ge_i32 s{sLND}, s{sNEED}")
e("s_cbranch_scc0 L_c_nov")
vreads()
lab("L_c_nov")
e(f"s_cmp_lt_u32 s{sV0}, 32")
e("s_nop 5")
e("s_cbranch_scc0 L_c_nomask")
e(f"v_lshlrev_b32 v{vT0}, 2, v{vG}")
e(f"v_sub_u32 v{vT0}, s{sV0}, v{vT0}")
e(f"v_mov_b32 v{vT1}, 0xff800000")
for r in range(8):
    e(f"v_cmp_lt_i32 vcc, {16*(r//4)+(r%4)}, v{vT0}")
    e("s_nop 1")
    e(f"v_cndmask_b32 v{vS+r}, v{vT1}, v{vS+r}, vcc")
e(f"s_mov_b32 s{sV0}, 32")
lab("L_c_nomask")
e(f"v_max3_f32 v{vT0}, v{vS}, v{vS+1}, v{vS+2}")
e(f"v_max3_f32 v{vT1}, v{vS+3}, v{vS+4}, v{vS+5}")
e(f"v_max3_f32 v{vT0}, v{vT0}, v{vS+6}, v{vS+7}")
e(f"v_max3_f32 v{vT0}, v{vT0}, v{vT1}, v{vM}")
e(f"v_mov_b32 v{vT1}, v{vT0}")
e("s_nop 1")
e(f"v_permlane32_swap_b32 v{vT0}, v{vT1}")
e("s_nop 0")
e(f"v_max_f32 v{vT0}, v{vT0}, v{vT1}")
e(f"v_mov_b32 v{vT1}, v{vT0}")
e("s_nop 1")
e(f"v_permlane16_swap_b32 v{vT0}, v{vT1}")
e("s_nop 0")
e(f"v_max_f32 v{vMN}, v{vT0}, v{vT1}")
e(f"v_mul_f32 v{vT2}, s{sCST}, v{vMN}")
e(f"v_sub_f32 v{vAL}, v{vM}, v{vMN}")
e(f"v_cmp_neq_f32 vcc, v{vM}, v{vMN}")
for r in range(8):
    e(f"v_fma_f32 v{vS+r}, v{vS+r}, s{sCST}, -v{vT2}")
e(f"v_mul_f32 v{vAL}, s{sCST}, v{vAL}")
for r in range(8):
    e(f"v_exp_f32 v{vS+r}, v{vS+r}")
e(f"v_mov_b32 v{vM}, v{vMN}")
for r in range(4):
    e(f"v_cvt_pk_bf16_f32 v{vP+r}, v{vS+2*r}, v{vS+2*r+1}")
e(f"v_add_f32 v{vT0}, v{vS}, v{vS+1}")
e(f"v_add_f32 v{vT1}, v{vS+2}, v{vS+3}")
e(f"v_add_f32 v{vT2}, v{vS+4}, v{vS+5}")
e(f"v_add_f32 v{vT3}, v{vS+6}, v{vS+7}")
e(f"v_add_f32 v{vT0}, v{vT0}, v{vT1}")
e(f"v_add_f32 v{vT2}, v{vT2}, v{vT3}")
e(f"v_add_f32 v{vT0}, v{vT0}, v{vT2}")
e("s_cbranch_vccz L_c_noscale")
e(f"v_exp_f32 v{vAL}, v{vAL}")
e("s_nop 0")
e(f"v_mul_f32 v{vLS}, v{vLS}, v{vAL}")
for r in range(32):
    e(f"v_mul_f32 v{vO+r}, v{vO+r}, v{vAL}")
lab("L_c_noscale")
e(f"v_add_f32 v{vLS}, v{vLS}, v{vT0}")
e(f"s_cmp_ge_i32 s{sLND}, s{sNEED}")
e("s_cbranch_scc1 L_c_pv")
poll("L_c_pollv", "L_c_gotv")
lab("L_c_gotv")
vreads()
lab("L_c_pv")
e(f"s_add_u32 s{sT0}, s{sT}, 1")
e(f"v_mov_b32 v{vT1}, s{sT0}")
e("s_waitcnt lgkmcnt(0)")
e(f"ds_write_b32 v{vFW}, v{vT1}")
for dt in range(8):
    e(f"v_mfma_f32_16x16x32_bf16 v[{vO+4*dt}:{vO+4*dt+3}], v[{vVF+4*dt}:{vVF+4*dt+3}], v[{vP}:{vP+3}], v[{vO+4*dt}:{vO+4*dt+3}]")
e("s_branch L_c_next")

lab("L_c_merge")
e(f"s_mul_i32 s{sT0}, s{sCI}, 9216")
e(f"s_add_u32 s{sT0}, s{sT0}, {MB}")
e(f"v_lshl_add_u32 v{vT0}, v{vLANE}, 4, s{sT0}")
e(f"v_lshl_add_u32 v{vT1}, v{vLANE}, 3, s{sT0}")
e(f"ds_read_b64 v[{vT4}:{vT5}], v{vT1} offset:8192")
for i in range(8):
    e(f"ds_read_b128 v[{vKF+4*i}:{vKF+4*i+3}], v{vT0} offset:{1024*i}")
e(f"s_mov_b32 s{sMRG}, 0")
e("s_waitcnt lgkmcnt(8)")
e(f"v_max_f32 v{vMN}, v{vM}, v{vT4}")
e(f"v_sub_f32 v{vAL}, v{vM}, v{vMN}")
e(f"v_sub_f32 v{vT4}, v{vT4}, v{vMN}")
e(f"v_mul_f32 v{vAL}, s{sCST}, v{vAL}")
e(f"v_mul_f32 v{vT4}, s{sCST}, v{vT4}")
e(f"v_exp_f32 v{vAL}, v{vAL}")
e(f"v_exp_f32 v{vT4}, v{vT4}")
e(f"v_mov_b32 v{vM}, v{vMN}")
e(f"v_mul_f32 v{vLS}, v{vLS}, v{vAL}")
e(f"v_fmac_f32 v{vLS}, v{vT5}, v{vT4}")
for r in range(32):
    e(f"v_mul_f32 v{vO+r}, v{vO+r}, v{vAL}")
e("s_waitcnt lgkmcnt(0)")
for r in range(32):
    e(f"v_fmac_f32 v{vO+r}, v{vKF+r}, v{vT4}")
e(f"s_cmp_eq_u32 s{sPLN}, 2")
e("s_cbranch_scc0 L_c_k")
e("s_branch L_c_store")

lab("L_c_empty")
e(f"s_cmp_lg_u32 s{sROLE}, 0")
e("s_cbranch_scc1 L_publish")
e(f"s_cmp_lg_u32 s{sPLN}, 0")
e("s_cbranch_scc1 L_c_final")
e(f"s_mov_b32 s{sPLN}, 1")
e(f"v_mov_b32 v{vT1}, {REC0}")
lab("L_c_plan")
e(f"ds_read_b128 v[{vT2}:{vT5}], v{vT1}")
e("s_waitcnt lgkmcnt(0)")
e(f"v_readfirstlane_b32 s{sT0}, v{vT5}")
e(f"v_readfirstlane_b32 s{sM}, v{vT2}")
e(f"v_readfirstlane_b32 s{sM+1}, v{vT3}")
e(f"v_readfirstlane_b32 s{sMRG}, v{vT4}")
e(f"s_cmp_lg_u32 s{sT0}, 0")
e("s_cbranch_scc1 L_c_next")
spin_tail("L_c_plan")
lab("L_c_final")
stamp(2)
e(f"s_cmp_eq_u32 s{sMRG}, 0")
e("s_cbranch_scc1 L_c_store")
e(f"s_mov_b32 s{sPLN}, 2")
lab("L_c_mwait")
e(f"ds_read_b64 v[{vPL}:{vPL+1}], v{vPA}")
e("s_waitcnt lgkmcnt(0)")
e(f"v_readfirstlane_b32 s{sMBF}, v{vPL+1}")
e(f"s_cmp_lg_u32 s{sMBF}, 0")
e("s_cbranch_scc1 L_c_merge")
spin_tail("L_c_mwait")
lab("L_c_store")
e(f"v_mov_b32 v{vT0}, v{vLS}")
e(f"v_and_b32 v{vT2}, 15, v{vLANE}")
e(f"v_lshl_add_u32 v{vT2}, v{vT2}, 8, s{sQO}")
e(f"v_permlane32_swap_b32 v{vLS}, v{vT0}")
e("s_nop 0")
e(f"v_add_f32 v{vLS}, v{vLS}, v{vT0}")
e(f"v_mov_b32 v{vT0}, v{vLS}")
e(f"v_lshl_add_u32 v{vT2}, v{vG}, 4, v{vT2}")
e("s_nop 0")
e(f"v_permlane16_swap_b32 v{vLS}, v{vT0}")
e("s_nop 0")
e(f"v_add_f32 v{vLS}, v{vLS}, v{vT0}")
e(f"v_rcp_f32 v{vLS}, v{vLS}")
e("s_nop 0")
for j in range(4):
    for r in range(8):
        e(f"v_mul_f32 v{vO+8*j+r}, v{vO+8*j+r}, v{vLS}")
    for r in range(4):
        e(f"v_cvt_pk_bf16_f32 v{vKF+4*j+r}, v{vO+8*j+2*r}, v{vO+8*j+2*r+1}")
    e(f"global_store_dwordx4 v{vT2}, v[{vKF+4*j}:{vKF+4*j+3}], s[{sOUT}:{sOUT+1}] offset:{64*j}{OST}")
e("s_branch L_fin")

WSS = 18432
def ws_base(sb):
    e(f"s_lshl_b32 s{sT0}, s{sb}, 3")
    e(f"s_add_u32 s{sT0}, s{sT0}, s{sH}")
    e(f"s_mul_i32 s{sT0}, s{sT0}, {WSS}")
    if a.stamps: e(f"s_add_u32 s{sT0}, s{sT0}, 0x100000")

lab("L_publish")
e(f"s_lshl_b32 s{sT2}, s{sPB}, 2")
e(f"v_mov_b32 v{vT2}, s{sT2}")
if "noannld" not in DBG: e(f"global_load_dword v{vT4}, v{vT2}, s[{sDBG}:{sDBG+1}] sc1")
ws_base(sPB)
e(f"s_lshl_b32 s{sT1}, s{sCI}, 2")
e(f"s_add_u32 s{sT1}, s{sT1}, s{sT0}")
e(f"s_add_u32 s{sT1}, s{sT1}, 17408")
e(f"v_mov_b32 v{vT5}, s{sT1}")
e(f"s_mul_i32 s{sT1}, s{sCI}, 8704")
e(f"s_add_u32 s{sT0}, s{sT0}, s{sT1}")
e(f"v_lshl_add_u32 v{vT0}, v{vLANE}, 4, s{sT0}")
e(f"s_add_u32 s{sT0}, s{sT0}, 8192")
e(f"v_lshl_add_u32 v{vT1}, v{vLANE}, 3, s{sT0}")
e(f"v_add_u32 v{vT3}, 4096, v{vT0}")
e(f"s_getreg_b32 s{sT2}, hwreg(HW_REG_XCC_ID, 0, 4)")
e(f"s_or_b32 s{sT2}, s{sT2}, 8")
e(f"s_lshl_b32 s{sT3}, s{sH}, 2")
e("s_waitcnt vmcnt(0)")
e(f"v_readfirstlane_b32 s{sT1}, v{vT4}")
e(f"s_lshr_b32 s{sT1}, s{sT1}, s{sT3}")
e(f"s_and_b32 s{sT1}, s{sT1}, 15")
e(f"s_cmp_eq_u32 s{sT1}, s{sT2}")
if "slow" in DBG: e("s_cmp_eq_u32 0, 1")
if "fast" in DBG: e("s_cmp_eq_u32 0, 0")
e("s_cbranch_scc0 L_pub_slow")
def pub_stores(fl):
    if "nostore" in DBG: return
    for i in range(8):
        e(f"global_store_dwordx4 v{vT0 if i < 4 else vT3}, v[{vO+4*i}:{vO+4*i+3}], s[{sWS}:{sWS+1}] offset:{1024*(i%4)}{fl}")
    e(f"global_store_dwordx2 v{vT1}, v[{vM}:{vM+1}], s[{sWS}:{sWS+1}]{fl}")
c("receiver shares this L2 and has cleared its flag words: hand over inside L2")
pub_stores("")
e(f"v_mov_b32 v{vT4}, 1")
e("s_waitcnt vmcnt(0)")
e("s_mov_b64 exec, 1")
e(f"global_store_dword v{vT5}, v{vT4}, s[{sWS}:{sWS+1}]")
stamp(2)
e("s_branch L_fin")
lab("L_pub_slow")
pub_stores(" sc1")
e(f"s_lshl_b32 s{sT1}, s{sH}, 1")
e(f"s_add_u32 s{sT1}, s{sT1}, s{sCI}")
e(f"s_lshl_b32 s{sT1}, 1, s{sT1}")
e(f"v_mov_b32 v{vT4}, s{sT1}")
e("s_waitcnt vmcnt(0)")
e("s_mov_b64 exec, 1")
e(f"global_atomic_add v{vT2}, v{vT4}, s[{sDBG}:{sDBG+1}] offset:128")
stamp(2)
e("s_branch L_fin")

lab("L_planner")
e(f"s_sub_u32 s{sCI}, s{sW}, 3")
e(f"s_lshl_b32 s{sT2}, s{sCI}, 8")
e(f"s_add_u32 s{sT2}, s{sT2}, {CNT}")
e(f"s_mov_b32 s{sSB}, s{sT2}")
e(f"v_lshl_add_u32 v{vPA}, v{vLANE}, 2, s{sT2}")
e(f"v_mov_b32 v{vT2}, 0")
e(f"ds_write_b32 v{vPA}, v{vT2}")
e(f"v_and_b32 v{vT0}, 31, v{vLANE}")
e(f"v_lshlrev_b32 v{vT3}, 2, v{vT0}")
e("s_waitcnt lgkmcnt(0)")
vRW = 16
vN, vKEY, vRK = 18, 19, 20
e(f"global_load_dword v{vN}, v{vT3}, s[{sCL}:{sCL+1}]")
e(f"global_load_dwordx2 v[{vRW}:{vRW+1}], v{vT1}, s[{sBT}:{sBT+1}]")
e("s_barrier")
e(f"s_lshl_b32 s{sT2}, s{sCI}, 7")
e(f"s_add_u32 s{sT2}, s{sT2}, {KEYS}")
e(f"v_add_u32 v{vT3}, s{sT2}, v{vT3}")
e(f"v_lshrrev_b32 v{vT4}, 5, v{vLANE}")
e(f"v_lshl_add_u32 v{vT4}, v{vT4}, 6, s{sT2}")
e(f"v_mov_b32 v{vT5}, 2048")
e("s_waitcnt vmcnt(1)")
e(f"v_cmp_gt_i32 s[{sZQ}:{sZQ+1}], 1, v{vN}")
e(f"v_min_i32 v{vN}, v{vN}, v{vT5}")
e("s_nop 0")
e(f"v_cndmask_b32 v{vN}, v{vN}, v{vT5}, s[{sZQ}:{sZQ+1}]")
e(f"v_add_u32 v{vN}, 15, v{vN}")
e(f"v_lshrrev_b32 v{vN}, 4, v{vN}")
e(f"v_lshl_or_b32 v{vKEY}, v{vN}, 5, v{vT0}")
e(f"ds_write_b32 v{vT3}, v{vKEY}")
for i in range(4):
    e(f"ds_read_b128 v[{vKF+4*i}:{vKF+4*i+3}], v{vT4} offset:{16*i}")
e(f"v_mov_b32 v{vRK}, 0")
e(f"v_readlane_b32 s{sNB}, v{vN}, s{sB}")
e("s_waitcnt lgkmcnt(0)")
for i in range(16):
    e(f"v_sub_u32 v{vKF+i}, v{vKF+i}, v{vKEY}")
for i in range(16):
    e(f"v_alignbit_b32 v{vRK}, v{vRK}, v{vKF+i}, 31")
e(f"v_bcnt_u32_b32 v{vRK}, v{vRK}, 0")
e(f"v_mov_b32 v{vT2}, v{vRK}")
e(f"s_add_u32 s{sNTL}, s{sNB}, 1")
e(f"s_lshr_b32 s{sNTL}, s{sNTL}, 1")
e(f"v_permlane32_swap_b32 v{vRK}, v{vT2}")
e(f"s_min_u32 s{sU0}, s{sNTL}, {U}")
e(f"v_add_u32 v{vRK}, v{vRK}, v{vT2}")
e("s_nop 0")
e(f"v_readlane_b32 s{sRK}, v{vRK}, s{sB}")
e(f"s_sub_u32 s{sT0}, 31, s{sRK}")
e(f"v_cmp_eq_u32 vcc, s{sT0}, v{vRK}")
e(f"s_ff1_i32_b32 s{sPB}, vcc_lo")
e(f"v_readlane_b32 s{sNP}, v{vN}, s{sPB}")
e(f"s_max_u32 s{sT0}, s{sNB}, s{sNP}")
e(f"s_min_u32 s{sT1}, s{sNB}, s{sNP}")
e(f"s_sub_u32 s{sX}, s{sT0}, s{sT1}")
e(f"s_add_u32 s{sX}, s{sX}, 2")
e(f"s_lshr_b32 s{sX}, s{sX}, 2")
e(f"s_cmp_lt_u32 s{sT0}, 16")
e(f"s_cselect_b32 s{sX}, 0, s{sX}")
e(f"s_cmp_lt_u32 s{sX}, {a.xmin}")
e(f"s_cselect_b32 s{sX}, 0, s{sX}")
if a.nopair: e(f"s_mov_b32 s{sX}, 0")
e(f"s_cmp_ge_u32 s{sRK}, 16")
e(f"s_cselect_b32 s{sLO}, s{sX}, 0")
e(f"s_cselect_b32 s{sTB}, 0, s{sX}")
c("wave 4 needs the partner's row")
e(f"s_cmp_eq_u32 s{sCI}, 0")
e("s_cbranch_scc1 L_pl_norow")
e(f"s_lshl_b32 s{sT0}, s{sPB}, 9")
e(f"v_lshl_add_u32 v{vT1}, v{vLANE}, 3, s{sT0}")
e("s_waitcnt vmcnt(0)")
e(f"global_load_dwordx2 v[{vRW}:{vRW+1}], v{vT1}, s[{sBT}:{sBT+1}]")
lab("L_pl_norow")
e(f"s_sub_u32 s{sTA}, s{sNTL}, s{sLO}")
e(f"s_add_u32 s{sT}, s{sTA}, s{sTB}")
e(f"s_mul_i32 s{sF}, s{sT}, {a.fnum}")
e(f"s_lshr_b32 s{sF}, s{sF}, 6")
e(f"s_sub_i32 s{sF}, s{sF}, s{sU0}")
e(f"s_max_i32 s{sF}, s{sF}, s{sTB}")
e(f"s_max_i32 s{sF}, s{sF}, 1")
e(f"v_cvt_f32_u32 v{vT2}, s{sF}")
e(f"v_subrev_u32 v{vT3}, s{sU0}, v{vLANE}")
e(f"v_rcp_f32 v{vT2}, v{vT2}")
e(f"v_mul_i32_i24 v{vT4}, s{sTB}, v{vT3}")
e(f"v_add_u32 v{vT5}, s{sTB}, v{vT4}")
e(f"v_cvt_f32_i32 v{vT4}, v{vT4}")
e(f"v_cvt_f32_i32 v{vT5}, v{vT5}")
e(f"v_add_f32 v{vT4}, 0.5, v{vT4}")
e(f"v_add_f32 v{vT5}, 0.5, v{vT5}")
e(f"v_mul_f32 v{vT4}, v{vT4}, v{vT2}")
e(f"v_mul_f32 v{vT5}, v{vT5}, v{vT2}")
e(f"v_floor_f32 v{vT4}, v{vT4}")
e(f"v_floor_f32 v{vT5}, v{vT5}")
e(f"v_cmp_gt_u32 vcc, s{sF}, v{vT3}")
e(f"v_cmp_gt_f32 s[{sMBK}:{sMBK+1}], v{vT5}, v{vT4}")
e(f"s_sub_u32 s{sT0}, s{sT}, s{sU0}")
e(f"v_cmp_gt_u32 s[{sMA}:{sMA+1}], s{sT0}, v{vT3}")
e(f"s_and_b64 s[{sMBK}:{sMBK+1}], s[{sMBK}:{sMBK+1}], vcc")
e(f"s_andn2_b64 s[{sMA}:{sMA+1}], s[{sMA}:{sMA+1}], s[{sMBK}:{sMBK+1}]")
c("sort range and list base")
e(f"s_sub_u32 s{sHI}, s{sNTL}, s{sU0}")
e(f"s_mov_b32 s{sLBASE}, {LA}")
e(f"s_min_u32 s{sMRG}, s{sLO}, 1")
e(f"s_cmp_eq_u32 s{sCI}, 0")
e("s_cbranch_scc1 L_pl_a")
e(f"s_mov_b32 s{sLO}, 0")
e(f"s_mov_b32 s{sHI}, s{sTB}")
e(f"s_mov_b32 s{sLBASE}, {LB}")
e("s_branch L_pl_sort")
lab("L_pl_a")
e(f"v_mov_b32 v{vT2}, s{sMA}")
e(f"v_mov_b32 v{vT3}, s{sMA+1}")
e(f"v_mov_b32 v{vT4}, s{sMRG}")
e(f"v_mov_b32 v{vT5}, 1")
e(f"v_mov_b32 v{vT1}, {REC0}")
e(f"ds_write_b128 v{vT1}, v[{vT2}:{vT5}]")
lab("L_pl_sort")
e(f"s_sub_u32 s{sT0}, s{sHI}, s{sLO}")
e(f"v_subrev_u32 v{vT0}, s{sLO}, v{vLANE}")
e(f"v_cmp_gt_u32 vcc, s{sT0}, v{vT0}")
e(f"v_mov_b32 v{vT5}, 1")
e("s_waitcnt vmcnt(0)")
if a.nosort:
    e(f"v_lshlrev_b32 v{vT2}, 1, v{vT0}")
    e(f"v_add_u32 v{vT3}, 1, v{vT2}")
else:
    e(f"v_lshrrev_b32 v{vT0}, 6, v{vRW}")
    e(f"v_lshrrev_b32 v{vT1}, 6, v{vRW+1}")
    e(f"v_min_u32 v{vT0}, 63, v{vT0}")
    e(f"v_min_u32 v{vT1}, 63, v{vT1}")
    e(f"v_lshlrev_b32 v{vT0}, 2, v{vT0}")
    e(f"v_lshlrev_b32 v{vT1}, 2, v{vT1}")
    e(f"v_add_u32 v{vKF}, s{sSB}, v{vT0}")
    e(f"v_add_u32 v{vKF+1}, s{sSB}, v{vT1}")
    e("s_mov_b64 exec, vcc")
    e(f"ds_add_rtn_u32 v{vT2}, v{vKF}, v{vT5}")
    e(f"ds_add_rtn_u32 v{vT3}, v{vKF+1}, v{vT5}")
    e("s_mov_b64 exec, -1")
    e(f"ds_read_b32 v{vT4}, v{vPA}")
    e("s_waitcnt lgkmcnt(0)")
    e(f"v_mov_b32 v{vKF+2}, v{vT4}")
    for sh in (1, 2, 4, 8):
        e("s_nop 1")
        e(f"v_add_u32_dpp v{vT4}, v{vT4}, v{vT4} row_shr:{sh} row_mask:0xf bank_mask:0xf bound_ctrl:0")
    e("s_nop 1")
    e(f"v_add_u32_dpp v{vT4}, v{vT4}, v{vT4} row_bcast:15 row_mask:0xa bank_mask:0xf")
    e("s_nop 1")
    e(f"v_add_u32_dpp v{vT4}, v{vT4}, v{vT4} row_bcast:31 row_mask:0xc bank_mask:0xf")
    e(f"v_sub_u32 v{vT4}, v{vT4}, v{vKF+2}")
    e(f"ds_bpermute_b32 v{vT0}, v{vT0}, v{vT4}")
    e(f"ds_bpermute_b32 v{vT1}, v{vT1}, v{vT4}")
    e("s_waitcnt lgkmcnt(0)")
    e(f"v_add_u32 v{vT2}, v{vT2}, v{vT0}")
    e(f"v_add_u32 v{vT3}, v{vT3}, v{vT1}")
e(f"v_lshlrev_b32 v{vRW}, 15, v{vRW}")
e(f"v_lshlrev_b32 v{vRW+1}, 15, v{vRW+1}")
e(f"v_lshl_add_u32 v{vT2}, v{vT2}, 2, s{sLBASE}")
e(f"v_lshl_add_u32 v{vT3}, v{vT3}, 2, s{sLBASE}")
e("s_mov_b64 exec, vcc")
e(f"ds_write_b32 v{vT2}, v{vRW}")
e(f"ds_write_b32 v{vT3}, v{vRW+1}")
e("s_mov_b64 exec, -1")
e(f"v_mov_b32 v{vT1}, {REC1}")
e(f"s_cmp_eq_u32 s{sCI}, 0")
e("s_cbranch_scc0 L_pl_b")
e(f"v_mov_b32 v{vT2}, s{sMBK}")
e(f"v_mov_b32 v{vT3}, s{sMBK+1}")
e(f"v_mov_b32 v{vT4}, s{sT}")
e(f"ds_write_b128 v{vT1}, v[{vT2}:{vT5}]")
e("s_branch L_pl_done")
lab("L_pl_b")
e(f"ds_write_b32 v{vT1}, v{vT5} offset:16")
lab("L_pl_done")
stamp(1)
e(f"s_cmp_lg_u32 s{sMRG}, 0")
e("s_cbranch_scc1 L_fetch")
e(f"s_cmp_eq_u32 s{sTB}, 0")
e("s_cbranch_scc1 L_fin")
c("become the consumer of the donated tiles")
e(f"s_mov_b32 s{sT3}, s{sPB}")
load_q()
e(f"s_mov_b64 s[{sM}:{sM+1}], s[{sMBK}:{sMBK+1}]")
e(f"s_mov_b32 s{sROLE}, 1")
e(f"s_mov_b32 s{sPLN}, 1")
e(f"s_mov_b32 s{sV0}, 32")
e(f"s_lshr_b32 s{sT3}, s{sZQ}, s{sPB}")
e(f"s_and_b32 s{sT3}, s{sT3}, 1")
e("s_branch L_csetup")

lab("L_fetch")
e(f"s_cmp_lg_u32 s{sCI}, 0")
e("s_cbranch_scc1 L_fin")
ws_base(sB)
e(f"v_lshl_add_u32 v{vT0}, v{vLANE}, 4, s{sT0}")
e(f"v_lshl_add_u32 v{vT1}, v{vLANE}, 3, s{sT0}")
e(f"s_add_u32 s{sT1}, s{sT0}, 17408")
e(f"v_mov_b32 v{vFW}, s{sT1}")
e(f"v_mov_b32 v{vT4}, 0")
e(f"v_mov_b32 v{vT5}, 0")
e(f"s_lshl_b32 s{sT2}, s{sB}, 2")
e(f"v_mov_b32 v{vT2}, s{sT2}")
e(f"s_getreg_b32 s{sT2}, hwreg(HW_REG_XCC_ID, 0, 4)")
e(f"s_or_b32 s{sT2}, s{sT2}, 8")
e(f"s_lshl_b32 s{sT3}, s{sH}, 2")
e(f"s_lshl_b32 s{sT2}, s{sT2}, s{sT3}")
e(f"v_mov_b32 v{vT3}, s{sT2}")
e(f"v_mov_b32 v{vPA}, {CTRL+16}")
e("s_mov_b64 exec, 1")
e(f"global_store_dwordx2 v{vFW}, v[{vT4}:{vT5}], s[{sWS}:{sWS+1}]")
e("s_waitcnt vmcnt(0)")
if "noann" not in DBG: e(f"global_atomic_add v{vT2}, v{vT3}, s[{sDBG}:{sDBG+1}]")
e(f"s_mul_i32 s{sNEED}, s{sT}, {a.pollnum}")
e(f"s_lshr_b32 s{sNEED}, s{sNEED}, 5")
e(f"s_lshl_b32 s{sT3}, s{sH}, 1")
e(f"s_mov_b32 s{sMBF}, 0")
lab("L_f_wait")
e(f"ds_read_b32 v{vPL}, v{vPA}")
e("s_waitcnt lgkmcnt(0)")
e(f"v_readfirstlane_b32 s{sLND}, v{vPL}")
e(f"s_cmp_ge_i32 s{sLND}, s{sNEED}")
e("s_cbranch_scc1 L_f_poll")
spin_tail("L_f_wait", 8)
lab("L_f_poll")
if "nopoll" in DBG: e("s_branch L_f_got")
e(f"global_load_dwordx2 v[{vT4}:{vT5}], v{vFW}, s[{sWS}:{sWS+1}] sc1")
e(f"s_add_u32 s{sMBF}, s{sMBF}, 1")
e(f"s_and_b32 s{sT0}, s{sMBF}, 3")
e(f"s_mov_b32 s{sT2}, 0")
e("s_cbranch_scc1 L_f_nodbg")
if "nodbgpoll" in DBG: e("s_branch L_f_nodbg")
e(f"global_load_dword v{vT3}, v{vT2}, s[{sDBG}:{sDBG+1}] offset:128 sc1")
e("s_waitcnt vmcnt(0)")
e(f"v_readfirstlane_b32 s{sT2}, v{vT3}")
e(f"s_lshr_b32 s{sT2}, s{sT2}, s{sT3}")
lab("L_f_nodbg")
e("s_waitcnt vmcnt(0)")
e(f"v_lshl_or_b32 v{vT4}, v{vT5}, 1, v{vT4}")
e("s_nop 0")
e(f"v_readfirstlane_b32 s{sT0}, v{vT4}")
e(f"s_or_b32 s{sT0}, s{sT0}, s{sT2}")
e(f"s_and_b32 s{sT0}, s{sT0}, 3")
e(f"s_cmp_eq_u32 s{sT0}, 3")
e("s_cbranch_scc1 L_f_got")
spin_tail("L_f_poll", a.psleep)
lab("L_f_got")
e("s_mov_b64 exec, -1")
FLD = "" if a.fld == "none" else " " + a.fld.replace("+", " ")
for cc in range(2):
    dst = vO if cc == 0 else vKF
    for i in range(8):
        off = cc * 8704 + 1024 * i
        if off % 4096 < 1024 and off >= 4096 or (cc == 1 and i == 0):
            pass
        e(f"v_add_u32 v{vT3}, {off}, v{vT0}")
        if "nofetch" not in DBG: e(f"global_load_dwordx4 v[{dst+4*i}:{dst+4*i+3}], v{vT3}, s[{sWS}:{sWS+1}]{FLD}")
    e(f"v_add_u32 v{vT3}, {cc*8704+8192}, v{vT1}")
    e(f"global_load_dwordx2 v[{vM+2*cc}:{vM+2*cc+1}], v{vT3}, s[{sWS}:{sWS+1}]{FLD}")
e(f"v_lshlrev_b32 v{vT0}, 4, v{vLANE}")
e(f"v_lshlrev_b32 v{vT1}, 3, v{vLANE}")
e(f"v_add_u32 v{vT0}, {MB}, v{vT0}")
e(f"v_add_u32 v{vT1}, {MB}, v{vT1}")
e(f"v_mov_b32 v{vT2}, {CTRL+4}")
e(f"v_mov_b32 v{vT3}, 1")
for cc in range(2):
    dst = vO if cc == 0 else vKF
    for i in range(8):
        e(f"s_waitcnt vmcnt({17 - 9*cc - i})")
        e(f"ds_write_b128 v{vT0}, v[{dst+4*i}:{dst+4*i+3}] offset:{9216*cc + 1024*i}")
    e(f"s_waitcnt vmcnt({9 - 9*cc})")
    e(f"ds_write_b64 v{vT1}, v[{vM+2*cc}:{vM+2*cc+1}] offset:{9216*cc + 8192}")
    e(f"ds_write_b32 v{vT2}, v{vT3} offset:{8*cc}")
stamp(2)

lab("L_fin")
if a.stamps:
    e("s_mov_b64 exec, -1")
    e("s_waitcnt vmcnt(0) lgkmcnt(0)")
    stamp(3)
    e(f"s_getreg_b32 s{sT0}, hwreg(HW_REG_XCC_ID)")
    e("s_waitcnt lgkmcnt(0)")
    for i in range(8):
        e(f"v_mov_b32 v{64+i}, s{sST+i}")
    e(f"v_mov_b32 v72, s{sT0}")
    e(f"v_mov_b32 v73, 0")
    e(f"v_mov_b32 v74, s{sT}")
    e(f"v_mov_b32 v75, 0")
    e(f"s_mul_i32 s{sT0}, s2, 5")
    e(f"s_add_u32 s{sT0}, s{sT0}, s{sW}")
    e(f"s_lshl_b32 s{sT0}, s{sT0}, 6")
    e(f"v_mov_b32 v80, s{sT0}")
    e("s_mov_b64 exec, 1")
    e(f"global_store_dwordx4 v80, v[64:67], s[{sWS}:{sWS+1}]")
    e(f"global_store_dwordx4 v80, v[68:71], s[{sWS}:{sWS+1}] offset:16")
    e(f"global_store_dwordx4 v80, v[72:75], s[{sWS}:{sWS+1}] offset:32")
lab("L_end")
e("s_endpgm")
out.append('.section .rodata,"a"')
out.append(".p2align 6")
out.append(f".amdhsa_kernel {NAME}_kernel")
out.append(f"  .amdhsa_next_free_vgpr {NV}")
out.append("  .amdhsa_next_free_sgpr 96")
out.append(f"  .amdhsa_accum_offset {NV}")
out.append("  .amdhsa_group_segment_fixed_size 0")
out.append("  .amdhsa_kernarg_size 64")
out.append("  .amdhsa_user_sgpr_count 2")
out.append("  .amdhsa_user_sgpr_kernarg_segment_ptr 1")
out.append("  .amdhsa_system_sgpr_workgroup_id_x 1")
out.append("  .amdhsa_float_denorm_mode_32 3")
out.append(".end_amdhsa_kernel")
open(a.o, "w").write("\n".join(out) + "\n")
```

```python
import sys, argparse
NAME = "standalone__paged_block_table_kv_pagedattention__sampling"
HEADER = open("cdna_kernels/" + NAME + ".s.ref").read().split("; Override")[0]

ap = argparse.ArgumentParser()
ap.add_argument("-o", default="/dev/stdout")
ap.add_argument("--nt", default="nt")
ap.add_argument("--map", default="plain")
ap.add_argument("--D", type=int, default=20)
ap.add_argument("--U", type=int, default=3)
ap.add_argument("--nslot", type=int, default=8)
ap.add_argument("--fnum", type=int, default=50)
ap.add_argument("--pollnum", type=int, default=44)
ap.add_argument("--psleep", type=int, default=24)
ap.add_argument("--dbg", default="")
ap.add_argument("--fld", default="sc1")
ap.add_argument("--D0", type=int, default=33)
ap.add_argument("--pk", type=int, default=1)
ap.add_argument("--csleep", type=int, default=-1)
ap.add_argument("--UB", type=int, default=7)
ap.add_argument("--TL", type=int, default=0)
ap.add_argument("--D1", type=int, default=28)
ap.add_argument("--xmin", type=int, default=1)
ap.add_argument("--nosort", action="store_true")
ap.add_argument("--nopair", action="store_true")
ap.add_argument("--nopf", action="store_true")
ap.add_argument("--ost", default="")
ap.add_argument("--stamps", action="store_true")
ap.add_argument("--sst", action="store_true")
a = ap.parse_args()
NT = "" if a.nt == "none" else " " + a.nt.replace("+", " ")
OST = "" if not a.ost else " " + a.ost.replace("+", " ")
D, U, NSLOT = a.D, a.U, a.nslot
DBG = set(a.dbg.split(","))
KBYTES = 4100 * 32768
SPIN = 1 << 22

RING = NSLOT * 16384
MB = RING
CTRL = MB + 18432
FREE = CTRL + 512
REC0 = FREE + 64
REC1 = REC0 + 16
RDYB = REC1 + 16
CNT = FREE + 256
LA = CNT + 512
LB = LA + 512
KEYS = LB + 512
LDS = KEYS + 256

out = []
def e(s): out.append("    " + s)
def lab(s): out.append(s + ":")
def c(s): out.append("    ; " + s)

sQ, sK, sV, sBT, sCL, sOUT, sDBG, sWS = 4, 6, 8, 10, 12, 14, 16, 18
sKD, sVD = 20, 24
sB, sH, sW, sCLV = 28, 29, 30, 31
sT0, sT1, sT2, sT3 = 32, 33, 34, 35
sPC = 36
sSPIN = 38
sNB, sNTL, sU0, sT = 39, 40, 41, 42
sEX = 44
sST = 64
sB0, sB1, sIDX, sSTEP, sLIM, sPH, sSLOT = 46, 47, 48, 49, 50, 51, 52
sMK = 54
sM = 46
sCI, sLND, sMBF, sNEED, sMRG, sV0, sROLE, sQO, sPLN, sSB = 48, 49, 50, 51, 52, 56, 57, 58, 59, 60
sCST = 62
sTN, sNK, sFWN, sFB, sVR, sRD, sLIMF = 20, 21, 22, 23, 24, 25, 26
sZQ = 54
sRK, sPB, sNP, sX, sTA, sTB, sF, sLONG = 80, 81, 82, 83, 84, 85, 86, 87
sMA, sMBK = 88, 90
sLO, sHI, sLBASE = 92, 93, 94
vLANE = 1
vT0, vT1, vT2, vT3, vT4, vT5 = 2, 3, 4, 5, 6, 7
vL = 8
vKOFF, vVOFF = 10, 14
vCA, vCNT, vFA = 18, 19, 20
vF = 22
vR4 = 24
vKA0, vVA0, vKA, vVA = 8, 12, 16, 20
vM, vLS, vMN, vAL, vPA, vFW = 24, 25, 26, 27, 28, 29
vPL = 30
vQ = 32
vS = 48
vP = 56
vG = 60
vFV = 62
vE = 160
vKF = 64
vVF = 96
vO = 128
NV = 168

def stamp(i, sst=False):
    if a.stamps and (i == 0 or sst == a.sst): e(f"s_memrealtime s[{sST+2*i}:{sST+2*i+1}]")

def clamp_cl(s, zq=None):
    c("context length: <=0 -> all masked => uniform over 2048 (zero Q); >2048 -> 2048")
    e(f"s_cmp_lt_i32 s{s}, 1")
    if zq is not None: e(f"s_cselect_b32 s{zq}, 1, 0")
    e(f"s_cselect_b32 s{s}, 2048, s{s}")
    e(f"s_min_i32 s{s}, s{s}, 2048")
    e(f"s_add_u32 s{sNB}, s{s}, 15")
    e(f"s_lshr_b32 s{sNB}, s{sNB}, 4")
    e(f"s_add_u32 s{sNTL}, s{sNB}, 1")
    e(f"s_lshr_b32 s{sNTL}, s{sNTL}, 1")
    e(f"s_min_u32 s{sU0}, s{sNTL}, {U}")

def spin_tail(label, sleep=1):
    e(f"s_sleep {sleep}")
    e(f"s_sub_u32 s{sSPIN}, s{sSPIN}, 1")
    e(f"s_cbranch_scc0 {label}")
    e("s_endpgm")

out.append(HEADER.rstrip())
out.append(f"; @launch grid=(256,1,1) block=(320,1,1) lds={LDS}")
out.append('.amdgcn_target "amdgcn-amd-amdhsa--gfx950"')
out.append(".text")
out.append(f".globl {NAME}_kernel")
out.append(".p2align 8")
out.append(f".type {NAME}_kernel,@function")
lab(f"{NAME}_kernel")
e("s_cmp_ge_u32 s2, 256")
e("s_cbranch_scc1 L_end")
e("s_load_dwordx16 s[4:19], s[0:1], 0")
stamp(0)
e(f"v_lshrrev_b32 v{vT0}, 6, v0")
e(f"v_and_b32 v{vLANE}, 63, v0")
e(f"v_readfirstlane_b32 s{sW}, v{vT0}")
if not a.nopf:
    c("wave 1 warms L2 with this kernel's code")
    e(f"s_getpc_b64 s[{sPC}:{sPC+1}]")
    lab("L_pc")
    e(f"v_lshlrev_b32 v{vT2}, 7, v{vLANE}")
    e(f"v_min_u32 v{vT2}, L_end - L_pc, v{vT2}")
    e(f"s_cmp_lg_u32 s{sW}, 1")
    e("s_cbranch_scc1 L_nopf")
    e(f"global_load_dword v61, v{vT2}, s[{sPC}:{sPC+1}]")
    lab("L_nopf")
c("every wave clears the control words (768 bytes) and the sort counters")
e(f"v_mov_b32 v{vT2}, 0")
e(f"v_lshlrev_b32 v{vT4}, 2, v0")
e(f"v_add_u32 v{vT4}, {CTRL}, v{vT4}")
e(f"ds_write_b32 v{vT4}, v{vT2}")
e(f"s_lshr_b32 s{sB}, s2, 3")
if a.map == "rot":
    e(f"s_add_u32 s{sH}, s2, s{sB}")
    e(f"s_and_b32 s{sH}, s{sH}, 7")
else:
    e(f"s_and_b32 s{sH}, s2, 7")
e(f"s_lshl_b32 s{sT0}, s{sB}, 9")
e(f"v_lshl_add_u32 v{vT1}, v{vLANE}, 3, s{sT0}")
e(f"s_lshl_b32 s{sT1}, s{sB}, 2")
e(f"v_and_b32 v{vT0}, 31, v{vLANE}")
e(f"v_lshlrev_b32 v{vT3}, 2, v{vT0}")
e("s_waitcnt lgkmcnt(0)")
e(f"global_load_dwordx2 v[{vL}:{vL+1}], v{vT1}, s[{sBT}:{sBT+1}]")
e(f"s_load_dword s{sCLV}, s[{sCL}:{sCL+1}], s{sT1}")
e(f"global_load_dword v63, v{vT3}, s[{sCL}:{sCL+1}]")
stamp(1, True)
e("s_barrier")
e(f"s_mov_b32 s{sSPIN}, {SPIN}")
e(f"s_cmp_lg_u32 s{sW}, 0")
e("s_cbranch_scc1 L_notloader")

e("s_setprio 3")
e(f"v_lshlrev_b32 v{vCA}, 3, v{vLANE}")
e(f"v_add_u32 v{vCA}, {CTRL}, v{vCA}")
for d, p in ((sKD, sK), (sVD, sV)):
    e(f"s_mov_b32 s{d}, s{p}")
    e(f"s_and_b32 s{d+1}, s{p+1}, 0xffff")
    e(f"s_mov_b32 s{d+2}, {KBYTES}")
    e(f"s_mov_b32 s{d+3}, 0x20000")
e(f"v_lshrrev_b32 v{vT0}, 4, v{vLANE}")
e(f"v_and_b32 v{vT1}, 15, v{vLANE}")
e(f"s_lshl_b32 s{sT0}, s{sH}, 8")
e(f"v_lshl_add_u32 v{vT4}, v{vT0}, 11, s{sT0}")
e(f"v_xor_b32 v{vT2}, v{vT0}, v{vT1}")
for j in range(4):
    e(f"v_xor_b32 v{vT3}, {4*j}, v{vT2}")
    e(f"v_lshl_add_u32 v{vKOFF+j}, v{vT3}, 4, v{vT4}")
    if j: e(f"v_add_u32 v{vKOFF+j}, {7168*j}, v{vKOFF+j}")
e(f"v_lshlrev_b32 v{vT3}, 2, v{vT0}")
e(f"v_xor_b32 v{vT3}, v{vT3}, v{vT1}")
e(f"v_lshl_add_u32 v{vVOFF}, v{vT3}, 4, v{vT4}")
for j in range(1, 4):
    e(f"v_add_u32 v{vVOFF+j}, {7168*j}, v{vVOFF}")
j0 = (D - 1) % 8
D0 = a.D0
j00 = (D0 - 1) % 8
e(f"v_mov_b32 v{vCNT}, {(j00 - D0 + 1)//8 - 1}")
e(f"v_mov_b32 v{vFA}, {FREE}")
e(f"v_mov_b32 v{vF}, 0")
e(f"v_mov_b32 v{vF+1}, 0")
e(f"s_mov_b32 s{sT}, 0")
e(f"s_mov_b32 s{sSLOT}, 0")
e(f"v_bfrev_b32 v{vT5}, 1")
e("s_waitcnt lgkmcnt(0)")
stamp(2, True)
clamp_cl(sCLV)
e(f"s_sub_u32 s{sIDX}, s{sNTL}, 1")
e(f"v_lshl_add_u32 v{vT0}, v{vLANE}, 1, 1")
e(f"v_cmp_gt_u32 vcc, s{sNB}, v{vT0}")
e("s_waitcnt vmcnt(1)")
e(f"v_lshlrev_b32 v{vL}, 15, v{vL}")
e(f"v_lshlrev_b32 v{vL+1}, 15, v{vL+1}")
e(f"v_cndmask_b32 v{vL+1}, v{vT5}, v{vL+1}, vcc")
stamp(1)
stamp(3, True)
e("s_nop 0")
def dma_tile(depth, jp, mid=None):
    for j in range(16):
        g, jj = j // 4, j % 4
        if jj == 0: e(f"s_add_u32 m0, s{sSLOT}, {4096*g}")
        e(f"s_waitcnt vmcnt({depth-1})")
        srd, voff = (sKD, vKOFF) if g < 2 else (sVD, vVOFF)
        e(f"buffer_load_dwordx4 v{voff+jj}, s[{srd}:{srd+3}], s{sB0 + (g & 1)} offen offset:{1024*jj}{NT} lds")
        if j % 8 == jp:
            e(f"v_add_u32 v{vCNT}, 1, v{vCNT}")
            e(f"ds_write_b32 v{vCA}, v{vCNT}")
        if j == 13 and mid: mid()
lab("L_ld0")
e(f"v_readlane_b32 s{sB0}, v{vL}, s{sIDX}")
e(f"v_readlane_b32 s{sB1}, v{vL+1}, s{sIDX}")
e(f"s_add_u32 s{sT}, s{sT}, 1")
e(f"s_sub_u32 s{sIDX}, s{sIDX}, 1")
e("s_nop 0")
dma_tile(D0, j00)
e(f"s_add_u32 s{sSLOT}, s{sSLOT}, 16384")
e(f"s_cmp_lg_u32 s{sT}, s{sU0}")
e("s_cbranch_scc1 L_ld0")
c("fetch the plan")
e(f"s_lshl_b32 s{sT0}, s{sT}, 1")
e(f"s_add_u32 s{sT0}, s{sT0}, {(j0 - D + 1)//8 - 1}")
e(f"v_mov_b32 v{vCNT}, s{sT0}")
e(f"s_mov_b32 s{sPH}, 1")
lab("L_ld_plan")
e(f"v_mov_b32 v{vT1}, {REC1}")
e(f"ds_read_b128 v[{vR4}:{vR4+3}], v{vT1}")
e(f"ds_read_b32 v{vT2}, v{vT1} offset:16")
e("s_waitcnt lgkmcnt(0)")
e(f"v_or_b32 v{vT2}, s{sPH}, v{vT2}")
e(f"v_and_b32 v{vT2}, v{vT2}, v{vR4+3}")
e(f"v_readfirstlane_b32 s{sMK}, v{vR4}")
e(f"v_readfirstlane_b32 s{sT0}, v{vT2}")
e(f"v_readfirstlane_b32 s{sMK+1}, v{vR4+1}")
e(f"v_readfirstlane_b32 s{sSTEP}, v{vR4+2}")
e(f"s_cmp_eq_u32 s{sT0}, 0")
e("s_cbranch_scc1 L_ld_noplan")
e(f"v_mbcnt_lo_u32_b32 v{vT0}, s{sMK}, 0")
e(f"v_mbcnt_hi_u32_b32 v{vT0}, s{sMK+1}, v{vT0}")
e(f"v_sub_u32 v{vT1}, v{vLANE}, v{vT0}")
e(f"v_subrev_u32 v{vT1}, s{sU0}, v{vT1}")
e(f"v_lshlrev_b32 v{vT0}, 3, v{vT0}")
e(f"v_lshlrev_b32 v{vT1}, 3, v{vT1}")
e(f"v_add_u32 v{vT0}, {LB}, v{vT0}")
e(f"v_add_u32 v{vT1}, {LA}, v{vT1}")
e(f"v_cndmask_b32 v{vT0}, v{vT1}, v{vT0}, s[{sMK}:{sMK+1}]")
e(f"ds_read_b64 v[{vL}:{vL+1}], v{vT0}")
c("first pass: run only up to the first donated tile (its list may not be sorted yet)")
e(f"s_ff1_i32_b64 s{sLIM}, s[{sMK}:{sMK+1}]")
e(f"s_cmp_lt_u32 s{sLIM}, s{sSTEP}")
e(f"s_cselect_b32 s{sIDX}, s{sPH}, 0")
e(f"s_sub_i32 s{sT0}, s{sSTEP}, {a.TL}")
e(f"s_max_i32 s{sT0}, s{sT0}, 0")
e(f"s_cmp_lg_u32 s{sIDX}, 0")
e(f"s_cselect_b32 s{sLIM}, s{sLIM}, s{sT0}")
if a.stamps and not a.sst:
    e(f"s_cmp_eq_u32 s{sPH}, 0")
    e("s_cbranch_scc1 L_nost2")
    stamp(2)
    lab("L_nost2")
e(f"s_mov_b32 s{sPH}, 0")
e(f"s_cmp_ge_u32 s{sT}, s{sLIM}")
e("s_waitcnt lgkmcnt(0)")
e("s_cbranch_scc1 L_ld_lim")
def free_pf():
    c("prefetch FREE words of the next slot")
    e(f"s_lshr_b32 s{sT0}, s{sT2}, 11")
    e(f"s_add_u32 s{sT0}, s{sT0}, {FREE}")
    e(f"v_mov_b32 v{vFA}, s{sT0}")
    e(f"ds_read_b64 v[{vF}:{vF+1}], v{vFA}")
def ld_loop(name, depth, lim):
    out.append(".p2align 3")
    lab(name)
    e(f"v_readlane_b32 s{sB0}, v{vL}, s{sT}")
    e(f"v_readlane_b32 s{sB1}, v{vL+1}, s{sT}")
    e(f"s_sub_u32 s{sT1}, s{sT}, {NSLOT-1}")
    lab(name + "_chk")
    e("s_waitcnt lgkmcnt(0)")
    e(f"v_min_i32 v{vT0}, v{vF}, v{vF+1}")
    e(f"s_add_u32 s{sT2}, s{sSLOT}, 16384")
    e(f"v_readfirstlane_b32 s{sT0}, v{vT0}")
    e(f"s_and_b32 s{sT2}, s{sT2}, {RING-1}")
    e(f"s_cmp_ge_i32 s{sT0}, s{sT1}")
    e(f"s_cbranch_scc0 {name}_wait")
    dma_tile(depth, (depth - 1) % 8, free_pf)
    e(f"s_mov_b32 s{sSLOT}, s{sT2}")
    e(f"s_add_u32 s{sT}, s{sT}, 1")
    e(f"s_cmp_lt_u32 s{sT}, s{lim}")
    e(f"s_cbranch_scc1 {name}")
def ld_wait(name):
    lab(name + "_wait")
    e(f"ds_read_b64 v[{vF}:{vF+1}], v{vFA}")
    spin_tail(name + "_chk")
ld_loop("L_ld", D, sLIM)
lab("L_ld_lim")
e(f"s_cmp_lg_u32 s{sIDX}, 0")
e("s_cbranch_scc1 L_ld_plan")
DL = D
if a.TL:
    DL = a.D1
    j1 = (DL - 1) % 8
    e(f"s_lshl_b32 s{sT0}, s{sT}, 1")
    e(f"s_add_u32 s{sT0}, s{sT0}, {(j1 - DL + 1)//8 - 1}")
    e(f"v_mov_b32 v{vCNT}, s{sT0}")
    e(f"s_cmp_ge_u32 s{sT}, s{sSTEP}")
    e("s_cbranch_scc1 L_ld_drain")
    ld_loop("L_ldt", DL, sSTEP)
lab("L_ld_drain")
for r in range(((DL - 1) // 8) * 8, -1, -8):
    e(f"v_add_u32 v{vCNT}, 1, v{vCNT}")
    e(f"s_waitcnt vmcnt({r})")
    e(f"ds_write_b32 v{vCA}, v{vCNT}")
e("s_branch L_fin")
ld_wait("L_ld")
if a.TL: ld_wait("L_ldt")
lab("L_ld_noplan")
spin_tail("L_ld_plan")

lab("L_notloader")
e(f"s_cmp_ge_u32 s{sW}, 3")
e("s_cbranch_scc1 L_planner")
e(f"s_sub_u32 s{sCI}, s{sW}, 1")
e(f"s_mov_b32 s{sROLE}, 0")
e(f"s_mov_b32 s{sPLN}, 0")
e(f"s_mov_b32 s{sMRG}, 0")
e(f"s_mov_b32 s{sT3}, s{sB}")

def load_q():
    e(f"s_lshl_b32 s{sQO}, s{sT3}, 16")
    e(f"s_lshl_b32 s{sT0}, s{sH}, 13")
    e(f"s_add_u32 s{sQO}, s{sQO}, s{sT0}")
    e(f"s_lshl_b32 s{sT0}, s{sCI}, 12")
    e(f"s_add_u32 s{sQO}, s{sQO}, s{sT0}")
    e(f"v_and_b32 v{vT0}, 15, v{vLANE}")
    e(f"v_lshrrev_b32 v{vG}, 4, v{vLANE}")
    e(f"v_lshl_add_u32 v{vT4}, v{vT0}, 8, s{sQO}")
    e(f"v_lshl_add_u32 v{vT4}, v{vG}, 4, v{vT4}")
    for s in range(4):
        e(f"global_load_dwordx4 v[{vQ+4*s}:{vQ+4*s+3}], v{vT4}, s[{sQ}:{sQ+1}] offset:{64*s}")
load_q()
e("s_waitcnt lgkmcnt(0)")
clamp_cl(sCLV, zq=sT3)
c("valid tokens of stream tile 0")
e(f"s_sub_u32 s{sT0}, s{sNTL}, 1")
e(f"s_lshl_b32 s{sT0}, s{sT0}, 5")
e(f"s_sub_u32 s{sV0}, s{sCLV}, s{sT0}")
e(f"s_bfm_b64 s[{sM}:{sM+1}], s{sU0}, 0")
lab("L_csetup")
e("s_waitcnt vmcnt(4)")
e(f"v_and_b32 v{vT0}, 15, v{vLANE}")
e(f"v_xor_b32 v{vT1}, v{vG}, v{vT0}")
e(f"v_lshlrev_b32 v{vT2}, 8, v{vT0}")
for s in range(4):
    e(f"v_xor_b32 v{vT3}, {4*s}, v{vT1}")
    e(f"v_lshl_add_u32 v{vKA0+s}, v{vT3}, 4, v{vT2}")
e(f"v_bfe_u32 v{vT0}, v{vLANE}, 2, 2")
e(f"v_lshl_add_u32 v{vT1}, v{vG}, 2, v{vT0}")
e(f"v_lshlrev_b32 v{vT1}, 8, v{vT1}")
e(f"v_and_b32 v{vT2}, 3, v{vLANE}")
e(f"v_lshl_add_u32 v{vT1}, v{vT2}, 4, v{vT1}")
e(f"v_add_u32 v{vT1}, 8192, v{vT1}")
for j in range(4):
    e(f"v_xor_b32 v{vT3}, {j}, v{vT0}")
    e(f"v_lshl_add_u32 v{vVA0+j}, v{vT3}, 6, v{vT1}")
e(f"s_lshl_b32 s{sT0}, s{sW}, 3")
e(f"s_add_u32 s{sT0}, s{sT0}, {CTRL-8}")
e(f"v_mov_b32 v{vPA}, s{sT0}")
e(f"v_mov_b32 v{vM}, 0xff800000")
e(f"v_mov_b32 v{vLS}, 0")
for r in range(32): e(f"v_mov_b32 v{vO+r}, 0")
e(f"s_mov_b32 s{sCST}, 0x3e0293ee")
e(f"s_mov_b32 s{sCST+1}, 0x3e0293ee")
e(f"s_mov_b32 s{sLIMF}, 0x43800000")
e(f"s_lshl_b32 s{sFB}, s{sCI}, 2")
e(f"s_add_u32 s{sFB}, s{sFB}, {FREE}")
e("s_waitcnt vmcnt(0)")
e(f"s_cmp_eq_u32 s{sT3}, 0")
e("s_cbranch_scc1 L_c_first")
for r in range(16): e(f"v_mov_b32 v{vQ+r}, 0")

def cspin(label):
    if a.csleep >= 0: e(f"s_sleep {a.csleep}")
    e(f"s_sub_u32 s{sSPIN}, s{sSPIN}, 1")
    e(f"s_cbranch_scc0 {label}")
    e("s_endpgm")
def poll(label, need):
    lab(label)
    e(f"ds_read_b64 v[{vPL}:{vPL+1}], v{vPA}")
    e(f"s_sub_u32 s{sSPIN}, s{sSPIN}, 1")
    e("s_cbranch_scc1 L_end")
    if a.csleep >= 0: e(f"s_sleep {a.csleep}")
    e("s_waitcnt lgkmcnt(0)")
    e(f"v_readfirstlane_b32 s{sLND}, v{vPL}")
    e(f"v_readfirstlane_b32 s{sMBF}, v{vPL+1}")
    e(f"s_cmp_ge_i32 s{sLND}, s{need}")
    e(f"s_cbranch_scc0 {label}")
VR = []
for j in range(4):
    for ee in range(2):
        for blk in range(2):
            r = vVF + (2 * j + ee) * 4 + 2 * blk
            VR.append(f"ds_read_b64_tr_b16 v[{r}:{r+1}], v{vVA+j} offset:{8*ee + 4096*blk}")
KR, QK = [], []
for blk in range(2):
    for st in range(4):
        r = vKF + (blk * 4 + st) * 4
        KR.append(f"ds_read_b128 v[{r}:{r+3}], v{vKA+st} offset:{4096*blk}")
        cc = "0" if st == 0 else f"v[{vS+4*blk}:{vS+4*blk+3}]"
        QK.append(f"v_mfma_f32_16x16x32_bf16 v[{vS+4*blk}:{vS+4*blk+3}], v[{r}:{r+3}], v[{vQ+4*st}:{vQ+4*st+3}], {cc}")
PV = [f"v_mfma_f32_16x16x32_bf16 v[{vO+4*dt}:{vO+4*dt+3}], v[{vVF+4*dt}:{vVF+4*dt+3}], v[{vP}:{vP+3}], v[{vO+4*dt}:{vO+4*dt+3}]" for dt in range(8)]
NX = [f"s_ff1_i32_b64 s{sTN}, s[{sM}:{sM+1}]",
      f"s_bitset0_b64 s[{sM}:{sM+1}], s{sTN}",
      f"s_lshl1_add_u32 s{sNK}, s{sTN}, 1",
      f"s_bitset0_b32 s{sNK}, 31",
      f"s_and_b32 s{sT0}, s{sTN}, {NSLOT-1}",
      f"s_lshl_b32 s{sSB}, s{sT0}, 14",
      f"s_lshl3_add_u32 s{sFWN}, s{sT0}, s{sFB}",
      f"s_mov_b32 s{sRD}, 0"]
KA = [f"v_add_u32 v{vKA+i}, s{sSB}, v{vKA0+i}" for i in range(4)]
ADV = [f"v_add_u32 v{vVA+i}, s{sSB}, v{vVA0+i}" for i in range(4)] + [
      f"v_mov_b32 v{vFW}, s{sFWN}",
      f"s_add_u32 s{sNEED}, s{sNK}, 1",
      f"s_add_u32 s{sT}, s{sTN}, 1",
      f"v_mov_b32 v{vFV}, s{sT}"]

lab("L_c_first")
for x in NX + KA: e(x)
c("sTN/sNK/sSB/sFWN describe the next tile, K addresses are set")
lab("L_c_nextk")
e(f"s_cmp_lt_i32 s{sTN}, 0")
e("s_cbranch_scc1 L_c_empty")
for x in ADV: e(x)
poll("L_c_pollk", sNK)
if a.sst:
    e(f"s_cmp_lg_u32 s{sT}, 1")
    e("s_cbranch_scc1 L_sst1")
    stamp(1, True)
    lab("L_sst1")
    e(f"s_cmp_lg_u32 s{sT}, 3")
    e("s_cbranch_scc1 L_sst2")
    stamp(2, True)
    lab("L_sst2")
    e(f"s_cmp_lg_u32 s{sT}, 7")
    e("s_cbranch_scc1 L_sst3")
    stamp(3, True)
    lab("L_sst3")
for x in KR: e(x)
out.append(".p2align 3")
lab("L_c_top")
e(f"s_and_b32 s{sT0}, s{sMBF}, s{sMRG}")
e("s_cbranch_scc1 L_c_merge")
lab("L_c_top2")
e(f"s_cmp_ge_i32 s{sLND}, s{sNEED}")
e(f"s_cselect_b32 s{sVR}, 1, 0")
e("s_waitcnt lgkmcnt(0)")
e("s_cbranch_scc0 L_c_qknov")
for i in range(8):
    e(QK[i]); e(VR[2*i]); e(VR[2*i+1]); e(NX[i])
lab("L_c_sm")
e(f"ds_read_b64 v[{vPL}:{vPL+1}], v{vPA}")
e(f"s_cmp_lt_u32 s{sV0}, 32")
e("s_cbranch_scc1 L_c_mask")
lab("L_c_exp")
for hb in range(2):
    if a.pk:
        for r in (4*hb, 4*hb+2):
            e(f"v_pk_fma_f32 v[{vE+r}:{vE+r+1}], v[{vS+r}:{vS+r+1}], s[{sCST}:{sCST+1}], v[{vM}:{vM+1}] op_sel_hi:[1,1,0] neg_lo:[0,0,1] neg_hi:[0,0,1]")
    else:
        for r in range(4*hb, 4*hb+4):
            e(f"v_fma_f32 v{vE+r}, v{vS+r}, s{sCST}, -v{vM}")
    for r in range(4*hb, 4*hb+4):
        e(f"v_exp_f32 v{vE+r}, v{vE+r}")
e(KA[0])
if a.pk:
    e(f"v_pk_add_f32 v[{vT0}:{vT1}], v[{vE}:{vE+1}], v[{vE+2}:{vE+3}]")
    e(f"v_pk_add_f32 v[{vT2}:{vT3}], v[{vE+4}:{vE+5}], v[{vE+6}:{vE+7}]")
    e(f"v_cvt_pk_bf16_f32 v{vP}, v{vE}, v{vE+1}")
    e(f"v_pk_add_f32 v[{vT0}:{vT1}], v[{vT0}:{vT1}], v[{vT2}:{vT3}]")
    e(f"v_cvt_pk_bf16_f32 v{vP+1}, v{vE+2}, v{vE+3}")
    e(f"v_add_f32 v{vT0}, v{vT0}, v{vT1}")
else:
    e(f"v_add_f32 v{vT0}, v{vE}, v{vE+1}")
    e(f"v_add_f32 v{vT1}, v{vE+2}, v{vE+3}")
    e(f"v_add_f32 v{vT2}, v{vE+4}, v{vE+5}")
    e(f"v_add_f32 v{vT3}, v{vE+6}, v{vE+7}")
    e(f"v_add_f32 v{vT0}, v{vT0}, v{vT1}")
    e(f"v_add_f32 v{vT2}, v{vT2}, v{vT3}")
    e(f"v_cvt_pk_bf16_f32 v{vP}, v{vE}, v{vE+1}")
    e(f"v_add_f32 v{vT0}, v{vT0}, v{vT2}")
    e(f"v_cvt_pk_bf16_f32 v{vP+1}, v{vE+2}, v{vE+3}")
c("the running reference max is only safe while every weight stays <= 256")
e(f"v_cmp_nge_f32 vcc, s{sLIMF}, v{vT0}")
e(f"v_cvt_pk_bf16_f32 v{vP+2}, v{vE+4}, v{vE+5}")
e(f"v_cvt_pk_bf16_f32 v{vP+3}, v{vE+6}, v{vE+7}")
for x in KA[1:]: e(x)
e("s_cbranch_vccnz L_c_slow")
lab("L_c_smdone")
e(f"v_add_f32 v{vLS}, v{vLS}, v{vT0}")
e(f"s_cmp_eq_u32 s{sVR}, 0")
e("s_cbranch_scc1 L_c_pollv")
e("s_waitcnt lgkmcnt(0)")
e(f"v_readfirstlane_b32 s{sLND}, v{vPL}")
e(f"v_readfirstlane_b32 s{sMBF}, v{vPL+1}")
e(f"s_cmp_ge_i32 s{sLND}, s{sNK}")
e("s_cbranch_scc0 L_c_pv")
e(f"ds_write_b32 v{vFW}, v{vFV}")
for i in range(8):
    e(PV[i]); e(KR[i]); e(ADV[i])
e("s_branch L_c_top")

c("V had not landed when QK was issued")
poll("L_c_pollv", sNEED)
for x in VR: e(x)
lab("L_c_pv")
for i in range(8):
    e(f"s_waitcnt lgkmcnt({14-2*i})")
    if i == 7: e(f"ds_write_b32 v{vFW}, v{vFV}")
    e(PV[i])
e("s_branch L_c_nextk")

lab("L_c_qknov")
for i in range(8):
    e(QK[i]); e(NX[i])
e("s_branch L_c_sm")

lab("L_c_mask")
e(f"v_lshlrev_b32 v{vT0}, 2, v{vG}")
e(f"v_sub_u32 v{vT0}, s{sV0}, v{vT0}")
e(f"v_mov_b32 v{vT1}, 0xff800000")
e("s_nop 3")
for r in range(8):
    e(f"v_cmp_lt_i32 vcc, {16*(r//4)+(r%4)}, v{vT0}")
    e("s_nop 1")
    e(f"v_cndmask_b32 v{vS+r}, v{vT1}, v{vS+r}, vcc")
e(f"s_mov_b32 s{sV0}, 32")
e("s_branch L_c_exp")

c("raise the reference to the true running max and rescale")
lab("L_c_slow")
e(f"s_cmp_lg_u32 s{sRD}, 0")
e("s_cbranch_scc1 L_c_smdone")
e(f"s_mov_b32 s{sRD}, 1")
e(f"v_max3_f32 v{vT0}, v{vS}, v{vS+1}, v{vS+2}")
e(f"v_max3_f32 v{vT1}, v{vS+3}, v{vS+4}, v{vS+5}")
e(f"v_max3_f32 v{vT0}, v{vT0}, v{vS+6}, v{vS+7}")
e(f"v_max_f32 v{vT0}, v{vT0}, v{vT1}")
e(f"v_mov_b32 v{vT1}, v{vT0}")
e("s_nop 1")
e(f"v_permlane32_swap_b32 v{vT0}, v{vT1}")
e("s_nop 0")
e(f"v_max_f32 v{vT0}, v{vT0}, v{vT1}")
e(f"v_mov_b32 v{vT1}, v{vT0}")
e("s_nop 1")
e(f"v_permlane16_swap_b32 v{vT0}, v{vT1}")
e("s_nop 0")
e(f"v_max_f32 v{vT0}, v{vT0}, v{vT1}")
e(f"v_mul_f32 v{vT0}, s{sCST}, v{vT0}")
e(f"v_max_f32 v{vMN}, v{vM}, v{vT0}")
e(f"v_sub_f32 v{vAL}, v{vM}, v{vMN}")
e(f"v_exp_f32 v{vAL}, v{vAL}")
e(f"v_mov_b32 v{vM}, v{vMN}")
e(f"v_mul_f32 v{vLS}, v{vLS}, v{vAL}")
for r in range(32):
    e(f"v_mul_f32 v{vO+r}, v{vO+r}, v{vAL}")
e("s_branch L_c_exp")

lab("L_c_merge")
e(f"s_mul_i32 s{sT0}, s{sCI}, 9216")
e(f"s_add_u32 s{sT0}, s{sT0}, {MB}")
e(f"v_lshl_add_u32 v{vT0}, v{vLANE}, 4, s{sT0}")
e(f"v_lshl_add_u32 v{vT1}, v{vLANE}, 3, s{sT0}")
e("s_waitcnt lgkmcnt(0)")
e(f"ds_read_b64 v[{vT4}:{vT5}], v{vT1} offset:8192")
for i in range(8):
    e(f"ds_read_b128 v[{vVF+4*i}:{vVF+4*i+3}], v{vT0} offset:{1024*i}")
e(f"s_mov_b32 s{sMRG}, 0")
e("s_waitcnt lgkmcnt(8)")
e(f"v_max_f32 v{vMN}, v{vM}, v{vT4}")
e(f"v_sub_f32 v{vAL}, v{vM}, v{vMN}")
e(f"v_sub_f32 v{vT4}, v{vT4}, v{vMN}")
e(f"v_exp_f32 v{vAL}, v{vAL}")
e(f"v_exp_f32 v{vT4}, v{vT4}")
e(f"v_mov_b32 v{vM}, v{vMN}")
e(f"v_mul_f32 v{vLS}, v{vLS}, v{vAL}")
e(f"v_fmac_f32 v{vLS}, v{vT5}, v{vT4}")
for r in range(32):
    e(f"v_mul_f32 v{vO+r}, v{vO+r}, v{vAL}")
e("s_waitcnt lgkmcnt(0)")
for r in range(32):
    e(f"v_fmac_f32 v{vO+r}, v{vVF+r}, v{vT4}")
e(f"s_cmp_eq_u32 s{sPLN}, 2")
e("s_cbranch_scc0 L_c_top2")
e("s_branch L_c_store")

lab("L_c_noplan")
e(f"s_mov_b32 s{sPLN}, 1")
e(f"v_mov_b32 v{vT1}, {REC0}")
lab("L_c_plan")
e(f"ds_read_b128 v[{vT2}:{vT5}], v{vT1}")
e("s_waitcnt lgkmcnt(0)")
e(f"v_readfirstlane_b32 s{sT0}, v{vT5}")
e(f"v_readfirstlane_b32 s{sM}, v{vT2}")
e(f"v_readfirstlane_b32 s{sM+1}, v{vT3}")
e(f"v_readfirstlane_b32 s{sMRG}, v{vT4}")
e(f"s_cmp_lg_u32 s{sT0}, 0")
e("s_cbranch_scc1 L_c_first")
spin_tail("L_c_plan")
lab("L_c_mwait0")
e(f"s_mov_b32 s{sPLN}, 2")
lab("L_c_mwait")
e(f"ds_read_b64 v[{vPL}:{vPL+1}], v{vPA}")
e("s_waitcnt lgkmcnt(0)")
e(f"v_readfirstlane_b32 s{sMBF}, v{vPL+1}")
e(f"s_cmp_lg_u32 s{sMBF}, 0")
e("s_cbranch_scc1 L_c_merge")
spin_tail("L_c_mwait")
lab("L_c_empty")
e(f"s_cmp_lg_u32 s{sROLE}, 0")
e("s_cbranch_scc1 L_publish")
e(f"s_cmp_eq_u32 s{sPLN}, 0")
e("s_cbranch_scc1 L_c_noplan")
stamp(2)
e(f"s_cmp_lg_u32 s{sMRG}, 0")
e("s_cbranch_scc1 L_c_mwait0")
lab("L_c_store")
e(f"v_mov_b32 v{vT0}, v{vLS}")
e(f"v_and_b32 v{vT2}, 15, v{vLANE}")
e(f"v_lshl_add_u32 v{vT2}, v{vT2}, 8, s{sQO}")
e(f"v_permlane32_swap_b32 v{vLS}, v{vT0}")
e("s_nop 0")
e(f"v_add_f32 v{vLS}, v{vLS}, v{vT0}")
e(f"v_mov_b32 v{vT0}, v{vLS}")
e(f"v_lshl_add_u32 v{vT2}, v{vG}, 4, v{vT2}")
e("s_nop 0")
e(f"v_permlane16_swap_b32 v{vLS}, v{vT0}")
e("s_nop 0")
e(f"v_add_f32 v{vLS}, v{vLS}, v{vT0}")
e(f"v_rcp_f32 v{vLS}, v{vLS}")
e("s_nop 0")
for j in range(4):
    for r in range(8):
        e(f"v_mul_f32 v{vO+8*j+r}, v{vO+8*j+r}, v{vLS}")
    for r in range(4):
        e(f"v_cvt_pk_bf16_f32 v{vKF+4*j+r}, v{vO+8*j+2*r}, v{vO+8*j+2*r+1}")
    e(f"global_store_dwordx4 v{vT2}, v[{vKF+4*j}:{vKF+4*j+3}], s[{sOUT}:{sOUT+1}] offset:{64*j}{OST}")
e("s_branch L_fin")

WSS = 18432
def ws_base(sb):
    e(f"s_lshl_b32 s{sT0}, s{sb}, 3")
    e(f"s_add_u32 s{sT0}, s{sT0}, s{sH}")
    e(f"s_mul_i32 s{sT0}, s{sT0}, {WSS}")
    if a.stamps: e(f"s_add_u32 s{sT0}, s{sT0}, 0x100000")

lab("L_publish")
e(f"s_lshl_b32 s{sT2}, s{sPB}, 2")
e(f"v_mov_b32 v{vT2}, s{sT2}")
if "noannld" not in DBG: e(f"global_load_dword v{vT4}, v{vT2}, s[{sDBG}:{sDBG+1}] sc1")
ws_base(sPB)
e(f"s_lshl_b32 s{sT1}, s{sCI}, 2")
e(f"s_add_u32 s{sT1}, s{sT1}, s{sT0}")
e(f"s_add_u32 s{sT1}, s{sT1}, 17408")
e(f"v_mov_b32 v{vT5}, s{sT1}")
e(f"s_mul_i32 s{sT1}, s{sCI}, 8704")
e(f"s_add_u32 s{sT0}, s{sT0}, s{sT1}")
e(f"v_lshl_add_u32 v{vT0}, v{vLANE}, 4, s{sT0}")
e(f"s_add_u32 s{sT0}, s{sT0}, 8192")
e(f"v_lshl_add_u32 v{vT1}, v{vLANE}, 3, s{sT0}")
e(f"v_add_u32 v{vT3}, 4096, v{vT0}")
e(f"s_getreg_b32 s{sT2}, hwreg(HW_REG_XCC_ID, 0, 4)")
e(f"s_or_b32 s{sT2}, s{sT2}, 8")
e(f"s_lshl_b32 s{sT3}, s{sH}, 2")
e("s_waitcnt vmcnt(0)")
e(f"v_readfirstlane_b32 s{sT1}, v{vT4}")
e(f"s_lshr_b32 s{sT1}, s{sT1}, s{sT3}")
e(f"s_and_b32 s{sT1}, s{sT1}, 15")
e(f"s_cmp_eq_u32 s{sT1}, s{sT2}")
if "slow" in DBG: e("s_cmp_eq_u32 0, 1")
if "fast" in DBG: e("s_cmp_eq_u32 0, 0")
e("s_cbranch_scc0 L_pub_slow")
def pub_stores(fl):
    if "nostore" in DBG: return
    for i in range(8):
        e(f"global_store_dwordx4 v{vT0 if i < 4 else vT3}, v[{vO+4*i}:{vO+4*i+3}], s[{sWS}:{sWS+1}] offset:{1024*(i%4)}{fl}")
    e(f"global_store_dwordx2 v{vT1}, v[{vM}:{vM+1}], s[{sWS}:{sWS+1}]{fl}")
c("receiver shares this L2 and has cleared its flag words: hand over inside L2")
pub_stores("")
e(f"v_mov_b32 v{vT4}, 1")
e("s_waitcnt vmcnt(0)")
e("s_mov_b64 exec, 1")
e(f"global_store_dword v{vT5}, v{vT4}, s[{sWS}:{sWS+1}]")
stamp(2)
e("s_branch L_fin")
lab("L_pub_slow")
pub_stores(" sc1")
e(f"s_lshl_b32 s{sT1}, s{sH}, 1")
e(f"s_add_u32 s{sT1}, s{sT1}, s{sCI}")
e(f"s_lshl_b32 s{sT1}, 1, s{sT1}")
e(f"v_mov_b32 v{vT4}, s{sT1}")
e("s_waitcnt vmcnt(0)")
e("s_mov_b64 exec, 1")
e(f"global_atomic_add v{vT2}, v{vT4}, s[{sDBG}:{sDBG+1}] offset:128")
stamp(2)
e("s_branch L_fin")

lab("L_planner")
e(f"s_sub_u32 s{sCI}, s{sW}, 3")
e(f"s_lshl_b32 s{sT2}, s{sCI}, 8")
e(f"s_add_u32 s{sT2}, s{sT2}, {CNT}")
e(f"s_mov_b32 s{sSB}, s{sT2}")
e(f"v_lshl_add_u32 v{vPA}, v{vLANE}, 2, s{sT2}")
vRW = vL
vN, vKEY, vRK = 63, 19, 20
e(f"s_lshl_b32 s{sT2}, s{sCI}, 7")
e(f"s_add_u32 s{sT2}, s{sT2}, {KEYS}")
e(f"v_add_u32 v{vT3}, s{sT2}, v{vT3}")
e(f"v_lshrrev_b32 v{vT4}, 5, v{vLANE}")
e(f"v_lshl_add_u32 v{vT4}, v{vT4}, 6, s{sT2}")
e(f"v_mov_b32 v{vT5}, 2048")
e("s_waitcnt vmcnt(0)")
e(f"v_cmp_gt_i32 s[{sZQ}:{sZQ+1}], 1, v{vN}")
e(f"v_min_i32 v{vN}, v{vN}, v{vT5}")
e("s_nop 0")
e(f"v_cndmask_b32 v{vN}, v{vN}, v{vT5}, s[{sZQ}:{sZQ+1}]")
e(f"v_add_u32 v{vN}, 15, v{vN}")
e(f"v_lshrrev_b32 v{vN}, 4, v{vN}")
e(f"v_lshl_or_b32 v{vKEY}, v{vN}, 5, v{vT0}")
e(f"ds_write_b32 v{vT3}, v{vKEY}")
for i in range(4):
    e(f"ds_read_b128 v[{vKF+4*i}:{vKF+4*i+3}], v{vT4} offset:{16*i}")
e(f"v_mov_b32 v{vRK}, 0")
e(f"v_readlane_b32 s{sNB}, v{vN}, s{sB}")
e("s_waitcnt lgkmcnt(0)")
for i in range(16):
    e(f"v_sub_u32 v{vKF+i}, v{vKF+i}, v{vKEY}")
for i in range(16):
    e(f"v_alignbit_b32 v{vRK}, v{vRK}, v{vKF+i}, 31")
e(f"v_bcnt_u32_b32 v{vRK}, v{vRK}, 0")
e(f"v_mov_b32 v{vT2}, v{vRK}")
e(f"s_add_u32 s{sNTL}, s{sNB}, 1")
e(f"s_lshr_b32 s{sNTL}, s{sNTL}, 1")
e(f"v_permlane32_swap_b32 v{vRK}, v{vT2}")
e(f"s_min_u32 s{sU0}, s{sNTL}, {U}")
e(f"v_add_u32 v{vRK}, v{vRK}, v{vT2}")
e("s_nop 0")
e(f"v_readlane_b32 s{sRK}, v{vRK}, s{sB}")
e(f"s_sub_u32 s{sT0}, 31, s{sRK}")
e(f"v_cmp_eq_u32 vcc, s{sT0}, v{vRK}")
e(f"s_ff1_i32_b32 s{sPB}, vcc_lo")
e(f"v_readlane_b32 s{sNP}, v{vN}, s{sPB}")
e(f"s_max_u32 s{sT0}, s{sNB}, s{sNP}")
e(f"s_min_u32 s{sT1}, s{sNB}, s{sNP}")
e(f"s_sub_u32 s{sX}, s{sT0}, s{sT1}")
e(f"s_add_u32 s{sX}, s{sX}, 2")
e(f"s_lshr_b32 s{sX}, s{sX}, 2")
e(f"s_cmp_lt_u32 s{sT0}, 16")
e(f"s_cselect_b32 s{sX}, 0, s{sX}")
e(f"s_cmp_lt_u32 s{sX}, {a.xmin}")
e(f"s_cselect_b32 s{sX}, 0, s{sX}")
if a.nopair: e(f"s_mov_b32 s{sX}, 0")
e(f"s_cmp_ge_u32 s{sRK}, 16")
e(f"s_cselect_b32 s{sLO}, s{sX}, 0")
e(f"s_cselect_b32 s{sTB}, 0, s{sX}")
c("wave 4 needs the partner's row")
e(f"s_cmp_eq_u32 s{sCI}, 0")
e("s_cbranch_scc1 L_pl_norow")
e(f"s_lshl_b32 s{sT0}, s{sPB}, 9")
e(f"v_lshl_add_u32 v{vT1}, v{vLANE}, 3, s{sT0}")
e("s_waitcnt vmcnt(0)")
e(f"global_load_dwordx2 v[{vRW}:{vRW+1}], v{vT1}, s[{sBT}:{sBT+1}]")
lab("L_pl_norow")
e(f"s_sub_u32 s{sTA}, s{sNTL}, s{sLO}")
e(f"s_add_u32 s{sT}, s{sTA}, s{sTB}")
e(f"s_mul_i32 s{sF}, s{sT}, {a.fnum}")
e(f"s_lshr_b32 s{sF}, s{sF}, 6")
e(f"s_min_u32 s{sLONG}, s{sTA}, {a.UB}")
e(f"s_max_u32 s{sLONG}, s{sLONG}, s{sU0}")
e(f"s_sub_i32 s{sF}, s{sF}, s{sLONG}")
e(f"s_max_i32 s{sF}, s{sF}, s{sTB}")
e(f"s_max_i32 s{sF}, s{sF}, 1")
e(f"v_cvt_f32_u32 v{vT2}, s{sF}")
e(f"v_subrev_u32 v{vT3}, s{sLONG}, v{vLANE}")
e(f"v_rcp_f32 v{vT2}, v{vT2}")
e(f"v_mul_i32_i24 v{vT4}, s{sTB}, v{vT3}")
e(f"v_add_u32 v{vT5}, s{sTB}, v{vT4}")
e(f"v_cvt_f32_i32 v{vT4}, v{vT4}")
e(f"v_cvt_f32_i32 v{vT5}, v{vT5}")
e(f"v_add_f32 v{vT4}, 0.5, v{vT4}")
e(f"v_add_f32 v{vT5}, 0.5, v{vT5}")
e(f"v_mul_f32 v{vT4}, v{vT4}, v{vT2}")
e(f"v_mul_f32 v{vT5}, v{vT5}, v{vT2}")
e(f"v_floor_f32 v{vT4}, v{vT4}")
e(f"v_floor_f32 v{vT5}, v{vT5}")
e(f"v_cmp_gt_u32 vcc, s{sF}, v{vT3}")
e(f"v_cmp_gt_f32 s[{sMBK}:{sMBK+1}], v{vT5}, v{vT4}")
e(f"s_sub_u32 s{sT0}, s{sT}, s{sU0}")
e(f"v_subrev_u32 v{vT3}, s{sU0}, v{vLANE}")
e(f"v_cmp_gt_u32 s[{sMA}:{sMA+1}], s{sT0}, v{vT3}")
e(f"s_and_b64 s[{sMBK}:{sMBK+1}], s[{sMBK}:{sMBK+1}], vcc")
e(f"s_andn2_b64 s[{sMA}:{sMA+1}], s[{sMA}:{sMA+1}], s[{sMBK}:{sMBK+1}]")
c("sort range and list base")
e(f"s_sub_u32 s{sHI}, s{sNTL}, s{sU0}")
e(f"s_mov_b32 s{sLBASE}, {LA}")
e(f"s_min_u32 s{sMRG}, s{sLO}, 1")
e(f"s_cmp_eq_u32 s{sCI}, 0")
e("s_cbranch_scc1 L_pl_a")
e(f"s_mov_b32 s{sLO}, 0")
e(f"s_mov_b32 s{sHI}, s{sTB}")
e(f"s_mov_b32 s{sLBASE}, {LB}")
e("s_branch L_pl_sort")
lab("L_pl_a")
e(f"v_mov_b32 v{vT2}, s{sMA}")
e(f"v_mov_b32 v{vT3}, s{sMA+1}")
e(f"v_mov_b32 v{vT4}, s{sMRG}")
e(f"v_mov_b32 v{vT5}, 1")
e(f"v_mov_b32 v{vT1}, {REC0}")
e(f"ds_write_b128 v{vT1}, v[{vT2}:{vT5}]")
lab("L_pl_sort")
e(f"s_sub_u32 s{sT0}, s{sHI}, s{sLO}")
e(f"v_subrev_u32 v{vT0}, s{sLO}, v{vLANE}")
e(f"v_cmp_gt_u32 vcc, s{sT0}, v{vT0}")
e(f"v_mov_b32 v{vT5}, 1")
e("s_waitcnt vmcnt(0)")
if a.nosort:
    e(f"v_lshlrev_b32 v{vT2}, 1, v{vT0}")
    e(f"v_add_u32 v{vT3}, 1, v{vT2}")
else:
    e(f"v_lshrrev_b32 v{vT0}, 6, v{vRW}")
    e(f"v_lshrrev_b32 v{vT1}, 6, v{vRW+1}")
    e(f"v_min_u32 v{vT0}, 63, v{vT0}")
    e(f"v_min_u32 v{vT1}, 63, v{vT1}")
    e(f"v_lshlrev_b32 v{vT0}, 2, v{vT0}")
    e(f"v_lshlrev_b32 v{vT1}, 2, v{vT1}")
    e(f"v_add_u32 v{vKF}, s{sSB}, v{vT0}")
    e(f"v_add_u32 v{vKF+1}, s{sSB}, v{vT1}")
    e("s_mov_b64 exec, vcc")
    e(f"ds_add_rtn_u32 v{vT2}, v{vKF}, v{vT5}")
    e(f"ds_add_rtn_u32 v{vT3}, v{vKF+1}, v{vT5}")
    e("s_mov_b64 exec, -1")
    e(f"ds_read_b32 v{vT4}, v{vPA}")
    e("s_waitcnt lgkmcnt(0)")
    e(f"v_mov_b32 v{vKF+2}, v{vT4}")
    for sh in (1, 2, 4, 8):
        e("s_nop 1")
        e(f"v_add_u32_dpp v{vT4}, v{vT4}, v{vT4} row_shr:{sh} row_mask:0xf bank_mask:0xf bound_ctrl:0")
    e("s_nop 1")
    e(f"v_add_u32_dpp v{vT4}, v{vT4}, v{vT4} row_bcast:15 row_mask:0xa bank_mask:0xf")
    e("s_nop 1")
    e(f"v_add_u32_dpp v{vT4}, v{vT4}, v{vT4} row_bcast:31 row_mask:0xc bank_mask:0xf")
    e(f"v_sub_u32 v{vT4}, v{vT4}, v{vKF+2}")
    e(f"ds_bpermute_b32 v{vT0}, v{vT0}, v{vT4}")
    e(f"ds_bpermute_b32 v{vT1}, v{vT1}, v{vT4}")
    e("s_waitcnt lgkmcnt(0)")
    e(f"v_add_u32 v{vT2}, v{vT2}, v{vT0}")
    e(f"v_add_u32 v{vT3}, v{vT3}, v{vT1}")
e(f"v_lshlrev_b32 v{vRW}, 15, v{vRW}")
e(f"v_lshlrev_b32 v{vRW+1}, 15, v{vRW+1}")
e(f"v_lshl_add_u32 v{vT2}, v{vT2}, 2, s{sLBASE}")
e(f"v_lshl_add_u32 v{vT3}, v{vT3}, 2, s{sLBASE}")
e("s_mov_b64 exec, vcc")
e(f"ds_write_b32 v{vT2}, v{vRW}")
e(f"ds_write_b32 v{vT3}, v{vRW+1}")
e("s_mov_b64 exec, -1")
e(f"v_mov_b32 v{vT1}, {REC1}")
e(f"s_cmp_eq_u32 s{sCI}, 0")
e("s_cbranch_scc0 L_pl_b")
e(f"v_mov_b32 v{vT2}, s{sMBK}")
e(f"v_mov_b32 v{vT3}, s{sMBK+1}")
e(f"v_mov_b32 v{vT4}, s{sT}")
e(f"ds_write_b128 v{vT1}, v[{vT2}:{vT5}]")
e("s_branch L_pl_done")
lab("L_pl_b")
e(f"ds_write_b32 v{vT1}, v{vT5} offset:16")
lab("L_pl_done")
stamp(1)
e(f"s_cmp_lg_u32 s{sMRG}, 0")
e("s_cbranch_scc1 L_fetch")
e(f"s_cmp_eq_u32 s{sTB}, 0")
e("s_cbranch_scc1 L_fin")
c("become the consumer of the donated tiles")
e(f"s_mov_b32 s{sT3}, s{sPB}")
load_q()
e(f"s_mov_b64 s[{sM}:{sM+1}], s[{sMBK}:{sMBK+1}]")
e(f"s_mov_b32 s{sROLE}, 1")
e(f"s_mov_b32 s{sPLN}, 1")
e(f"s_mov_b32 s{sV0}, 32")
e(f"s_lshr_b32 s{sT3}, s{sZQ}, s{sPB}")
e(f"s_and_b32 s{sT3}, s{sT3}, 1")
e("s_branch L_csetup")

lab("L_fetch")
e(f"s_cmp_lg_u32 s{sCI}, 0")
e("s_cbranch_scc1 L_fin")
ws_base(sB)
e(f"v_lshl_add_u32 v{vT0}, v{vLANE}, 4, s{sT0}")
e(f"v_lshl_add_u32 v{vT1}, v{vLANE}, 3, s{sT0}")
e(f"s_add_u32 s{sT1}, s{sT0}, 17408")
e(f"v_mov_b32 v{vFW}, s{sT1}")
e(f"v_mov_b32 v{vT4}, 0")
e(f"v_mov_b32 v{vT5}, 0")
e(f"s_lshl_b32 s{sT2}, s{sB}, 2")
e(f"v_mov_b32 v{vT2}, s{sT2}")
e(f"s_getreg_b32 s{sT2}, hwreg(HW_REG_XCC_ID, 0, 4)")
e(f"s_or_b32 s{sT2}, s{sT2}, 8")
e(f"s_lshl_b32 s{sT3}, s{sH}, 2")
e(f"s_lshl_b32 s{sT2}, s{sT2}, s{sT3}")
e(f"v_mov_b32 v{vT3}, s{sT2}")
e(f"v_mov_b32 v{vPA}, {CTRL+16}")
e("s_mov_b64 exec, 1")
e(f"global_store_dwordx2 v{vFW}, v[{vT4}:{vT5}], s[{sWS}:{sWS+1}]")
e("s_waitcnt vmcnt(0)")
if "noann" not in DBG: e(f"global_atomic_add v{vT2}, v{vT3}, s[{sDBG}:{sDBG+1}]")
e(f"s_mul_i32 s{sNEED}, s{sT}, {a.pollnum}")
e(f"s_lshr_b32 s{sNEED}, s{sNEED}, 5")
e(f"s_lshl_b32 s{sT3}, s{sH}, 1")
e(f"s_mov_b32 s{sMBF}, 0")
lab("L_f_wait")
e(f"ds_read_b32 v{vPL}, v{vPA}")
e("s_waitcnt lgkmcnt(0)")
e(f"v_readfirstlane_b32 s{sLND}, v{vPL}")
e(f"s_cmp_ge_i32 s{sLND}, s{sNEED}")
e("s_cbranch_scc1 L_f_poll")
spin_tail("L_f_wait", 8)
lab("L_f_poll")
if "nopoll" in DBG: e("s_branch L_f_got")
e(f"global_load_dwordx2 v[{vT4}:{vT5}], v{vFW}, s[{sWS}:{sWS+1}] sc1")
e(f"s_add_u32 s{sMBF}, s{sMBF}, 1")
e(f"s_and_b32 s{sT0}, s{sMBF}, 3")
e(f"s_mov_b32 s{sT2}, 0")
e("s_cbranch_scc1 L_f_nodbg")
if "nodbgpoll" in DBG: e("s_branch L_f_nodbg")
e(f"global_load_dword v{vT3}, v{vT2}, s[{sDBG}:{sDBG+1}] offset:128 sc1")
e("s_waitcnt vmcnt(0)")
e(f"v_readfirstlane_b32 s{sT2}, v{vT3}")
e(f"s_lshr_b32 s{sT2}, s{sT2}, s{sT3}")
lab("L_f_nodbg")
e("s_waitcnt vmcnt(0)")
e(f"v_lshl_or_b32 v{vT4}, v{vT5}, 1, v{vT4}")
e("s_nop 0")
e(f"v_readfirstlane_b32 s{sT0}, v{vT4}")
e(f"s_or_b32 s{sT0}, s{sT0}, s{sT2}")
e(f"s_and_b32 s{sT0}, s{sT0}, 3")
e(f"s_cmp_eq_u32 s{sT0}, 3")
e("s_cbranch_scc1 L_f_got")
spin_tail("L_f_poll", a.psleep)
lab("L_f_got")
e("s_mov_b64 exec, -1")
FLD = "" if a.fld == "none" else " " + a.fld.replace("+", " ")
for cc in range(2):
    dst = vO if cc == 0 else vKF
    for i in range(8):
        off = cc * 8704 + 1024 * i
        if off % 4096 < 1024 and off >= 4096 or (cc == 1 and i == 0):
            pass
        e(f"v_add_u32 v{vT3}, {off}, v{vT0}")
        if "nofetch" not in DBG: e(f"global_load_dwordx4 v[{dst+4*i}:{dst+4*i+3}], v{vT3}, s[{sWS}:{sWS+1}]{FLD}")
    e(f"v_add_u32 v{vT3}, {cc*8704+8192}, v{vT1}")
    e(f"global_load_dwordx2 v[{vM+2*cc}:{vM+2*cc+1}], v{vT3}, s[{sWS}:{sWS+1}]{FLD}")
e(f"v_lshlrev_b32 v{vT0}, 4, v{vLANE}")
e(f"v_lshlrev_b32 v{vT1}, 3, v{vLANE}")
e(f"v_add_u32 v{vT0}, {MB}, v{vT0}")
e(f"v_add_u32 v{vT1}, {MB}, v{vT1}")
e(f"v_mov_b32 v{vT2}, {CTRL+4}")
e(f"v_mov_b32 v{vT3}, 1")
for cc in range(2):
    dst = vO if cc == 0 else vKF
    for i in range(8):
        e(f"s_waitcnt vmcnt({17 - 9*cc - i})")
        e(f"ds_write_b128 v{vT0}, v[{dst+4*i}:{dst+4*i+3}] offset:{9216*cc + 1024*i}")
    e(f"s_waitcnt vmcnt({9 - 9*cc})")
    e(f"ds_write_b64 v{vT1}, v[{vM+2*cc}:{vM+2*cc+1}] offset:{9216*cc + 8192}")
    e(f"ds_write_b32 v{vT2}, v{vT3} offset:{8*cc}")
stamp(2)

lab("L_fin")
if a.stamps:
    e("s_mov_b64 exec, -1")
    e("s_waitcnt vmcnt(0) lgkmcnt(0)")
    stamp(3)
    e(f"s_getreg_b32 s{sT0}, hwreg(HW_REG_XCC_ID)")
    e("s_waitcnt lgkmcnt(0)")
    for i in range(8):
        e(f"v_mov_b32 v{64+i}, s{sST+i}")
    e(f"v_mov_b32 v72, s{sT0}")
    e(f"v_mov_b32 v73, 0")
    e(f"v_mov_b32 v74, s{sT}")
    e(f"v_mov_b32 v75, 0")
    e(f"s_mul_i32 s{sT0}, s2, 5")
    e(f"s_add_u32 s{sT0}, s{sT0}, s{sW}")
    e(f"s_lshl_b32 s{sT0}, s{sT0}, 6")
    e(f"v_mov_b32 v80, s{sT0}")
    e("s_mov_b64 exec, 1")
    e(f"global_store_dwordx4 v80, v[64:67], s[{sWS}:{sWS+1}]")
    e(f"global_store_dwordx4 v80, v[68:71], s[{sWS}:{sWS+1}] offset:16")
    e(f"global_store_dwordx4 v80, v[72:75], s[{sWS}:{sWS+1}] offset:32")
lab("L_end")
e("s_endpgm")
out.append('.section .rodata,"a"')
out.append(".p2align 6")
out.append(f".amdhsa_kernel {NAME}_kernel")
out.append(f"  .amdhsa_next_free_vgpr {NV}")
out.append("  .amdhsa_next_free_sgpr 96")
out.append(f"  .amdhsa_accum_offset {NV}")
out.append("  .amdhsa_group_segment_fixed_size 0")
out.append("  .amdhsa_kernarg_size 64")
out.append("  .amdhsa_user_sgpr_count 2")
out.append("  .amdhsa_user_sgpr_kernarg_segment_ptr 1")
out.append("  .amdhsa_system_sgpr_workgroup_id_x 1")
out.append("  .amdhsa_float_denorm_mode_32 3")
out.append(".end_amdhsa_kernel")
open(a.o, "w").write("\n".join(out) + "\n")
```

```python
import sys, argparse
NAME = "standalone__paged_block_table_kv_pagedattention__sampling"
HEADER = open("cdna_kernels/" + NAME + ".s.ref").read().split("; Override")[0]

ap = argparse.ArgumentParser()
ap.add_argument("-o", default="/dev/stdout")
ap.add_argument("--nt", default="nt")
ap.add_argument("--map", default="plain")
ap.add_argument("--D", type=int, default=20)
ap.add_argument("--U", type=int, default=3)
ap.add_argument("--nslot", type=int, default=8)
ap.add_argument("--fnum", type=int, default=50)
ap.add_argument("--pollnum", type=int, default=44)
ap.add_argument("--psleep", type=int, default=24)
ap.add_argument("--dbg", default="")
ap.add_argument("--fld", default="sc1")
ap.add_argument("--D0", type=int, default=33)
ap.add_argument("--pk", type=int, default=1)
ap.add_argument("--csleep", type=int, default=-1)
ap.add_argument("--UB", type=int, default=7)
ap.add_argument("--TL", type=int, default=0)
ap.add_argument("--D1", type=int, default=28)
ap.add_argument("--xmin", type=int, default=1)
ap.add_argument("--nosort", action="store_true")
ap.add_argument("--nopair", action="store_true")
ap.add_argument("--nopf", action="store_true")
ap.add_argument("--ost", default="")
ap.add_argument("--stamps", action="store_true")
ap.add_argument("--sst", action="store_true")
ap.add_argument("--dstamps", action="store_true")
a = ap.parse_args()
NT = "" if a.nt == "none" else " " + a.nt.replace("+", " ")
OST = "" if not a.ost else " " + a.ost.replace("+", " ")
D, U, NSLOT = a.D, a.U, a.nslot
DBG = set(a.dbg.split(","))
KBYTES = 4100 * 32768
SPIN = 1 << 22

RING = NSLOT * 16384
MB = RING
CTRL = MB + 18432
FREE = CTRL + 512
REC0 = FREE + 64
REC1 = REC0 + 16
RDYB = REC1 + 16
CNT = FREE + 256
LA = CNT + 512
LB = LA + 512
KEYS = LB + 512
LDS = KEYS + 256

out = []
def e(s): out.append("    " + s)
def lab(s): out.append(s + ":")
def c(s): out.append("    ; " + s)

sQ, sK, sV, sBT, sCL, sOUT, sDBG, sWS = 4, 6, 8, 10, 12, 14, 16, 18
sKD, sVD = 20, 24
sB, sH, sW, sCLV = 28, 29, 30, 31
sT0, sT1, sT2, sT3 = 32, 33, 34, 35
sPC = 36
sSPIN = 38
sNB, sNTL, sU0, sT = 39, 40, 41, 42
sEX = 44
sST = 64
sB0, sB1, sIDX, sSTEP, sLIM, sPH, sSLOT = 46, 47, 48, 49, 50, 51, 52
sMK = 54
sM = 46
sCI, sLND, sMBF, sNEED, sMRG, sV0, sROLE, sQO, sPLN, sSB = 48, 49, 50, 51, 52, 56, 57, 58, 59, 60
sCST = 62
sTN, sNK, sFWN, sFB, sVR, sRD, sLIMF = 20, 21, 22, 23, 24, 25, 26
sZQ = 54
sRK, sPB, sNP, sX, sTA, sTB, sF, sLONG = 80, 81, 82, 83, 84, 85, 86, 87
sMA, sMBK = 88, 90
sLO, sHI, sLBASE = 92, 93, 94
vLANE = 1
vT0, vT1, vT2, vT3, vT4, vT5 = 2, 3, 4, 5, 6, 7
vL = 8
vKOFF, vVOFF = 10, 14
vCA, vCNT, vFA = 18, 19, 20
vF = 22
vR4 = 24
vKA0, vVA0, vKA, vVA = 8, 12, 16, 20
vM, vLS, vMN, vAL, vPA, vFW = 24, 25, 26, 27, 28, 29
vPL = 30
vQ = 32
vS = 48
vP = 56
vG = 60
vFV = 62
vE = 160
vKF = 64
vVF = 96
vO = 128
NV = 168

def stamp(i, sst=False):
    if (a.stamps or a.dstamps) and (i == 0 or sst == a.sst): e(f"s_memrealtime s[{sST+2*i}:{sST+2*i+1}]")

def clamp_cl(s, zq=None):
    c("context length: <=0 -> all masked => uniform over 2048 (zero Q); >2048 -> 2048")
    e(f"s_cmp_lt_i32 s{s}, 1")
    if zq is not None: e(f"s_cselect_b32 s{zq}, 1, 0")
    e(f"s_cselect_b32 s{s}, 2048, s{s}")
    e(f"s_min_i32 s{s}, s{s}, 2048")
    e(f"s_add_u32 s{sNB}, s{s}, 15")
    e(f"s_lshr_b32 s{sNB}, s{sNB}, 4")
    e(f"s_add_u32 s{sNTL}, s{sNB}, 1")
    e(f"s_lshr_b32 s{sNTL}, s{sNTL}, 1")
    e(f"s_min_u32 s{sU0}, s{sNTL}, {U}")

def spin_tail(label, sleep=1):
    e(f"s_sleep {sleep}")
    e(f"s_sub_u32 s{sSPIN}, s{sSPIN}, 1")
    e(f"s_cbranch_scc0 {label}")
    e("s_endpgm")

out.append(HEADER.rstrip())
out.append(f"; @launch grid=(256,1,1) block=(320,1,1) lds={LDS}")
out.append('.amdgcn_target "amdgcn-amd-amdhsa--gfx950"')
out.append(".text")
out.append(f".globl {NAME}_kernel")
out.append(".p2align 8")
out.append(f".type {NAME}_kernel,@function")
lab(f"{NAME}_kernel")
e("s_cmp_ge_u32 s2, 256")
e("s_cbranch_scc1 L_end")
e("s_load_dwordx16 s[4:19], s[0:1], 0")
stamp(0)
e(f"v_lshrrev_b32 v{vT0}, 6, v0")
e(f"v_and_b32 v{vLANE}, 63, v0")
e(f"v_readfirstlane_b32 s{sW}, v{vT0}")
if not a.nopf:
    c("wave 1 warms L2 with this kernel's code")
    e(f"s_getpc_b64 s[{sPC}:{sPC+1}]")
    lab("L_pc")
    e(f"v_lshlrev_b32 v{vT2}, 7, v{vLANE}")
    e(f"v_min_u32 v{vT2}, L_end - L_pc, v{vT2}")
    e(f"s_cmp_lg_u32 s{sW}, 1")
    e("s_cbranch_scc1 L_nopf")
    e(f"global_load_dword v61, v{vT2}, s[{sPC}:{sPC+1}]")
    lab("L_nopf")
c("every wave clears the control words (768 bytes) and the sort counters")
e(f"v_mov_b32 v{vT2}, 0")
e(f"v_lshlrev_b32 v{vT4}, 2, v0")
e(f"v_add_u32 v{vT4}, {CTRL}, v{vT4}")
e(f"ds_write_b32 v{vT4}, v{vT2}")
e(f"s_lshr_b32 s{sB}, s2, 3")
if a.map == "rot":
    e(f"s_add_u32 s{sH}, s2, s{sB}")
    e(f"s_and_b32 s{sH}, s{sH}, 7")
else:
    e(f"s_and_b32 s{sH}, s2, 7")
e(f"s_lshl_b32 s{sT0}, s{sB}, 9")
e(f"v_lshl_add_u32 v{vT1}, v{vLANE}, 3, s{sT0}")
e(f"s_lshl_b32 s{sT1}, s{sB}, 2")
e(f"v_and_b32 v{vT0}, 31, v{vLANE}")
e(f"v_lshlrev_b32 v{vT3}, 2, v{vT0}")
e("s_waitcnt lgkmcnt(0)")
e(f"global_load_dwordx2 v[{vL}:{vL+1}], v{vT1}, s[{sBT}:{sBT+1}]")
e(f"s_load_dword s{sCLV}, s[{sCL}:{sCL+1}], s{sT1}")
e(f"global_load_dword v63, v{vT3}, s[{sCL}:{sCL+1}]")
stamp(1, True)
e("s_barrier")
e(f"s_mov_b32 s{sSPIN}, {SPIN}")
e(f"s_cmp_lg_u32 s{sW}, 0")
e("s_cbranch_scc1 L_notloader")

e("s_setprio 3")
e(f"v_lshlrev_b32 v{vCA}, 3, v{vLANE}")
e(f"v_add_u32 v{vCA}, {CTRL}, v{vCA}")
for d, p in ((sKD, sK), (sVD, sV)):
    e(f"s_mov_b32 s{d}, s{p}")
    e(f"s_and_b32 s{d+1}, s{p+1}, 0xffff")
    e(f"s_mov_b32 s{d+2}, {KBYTES}")
    e(f"s_mov_b32 s{d+3}, 0x20000")
e(f"v_lshrrev_b32 v{vT0}, 4, v{vLANE}")
e(f"v_and_b32 v{vT1}, 15, v{vLANE}")
e(f"s_lshl_b32 s{sT0}, s{sH}, 8")
e(f"v_lshl_add_u32 v{vT4}, v{vT0}, 11, s{sT0}")
e(f"v_xor_b32 v{vT2}, v{vT0}, v{vT1}")
for j in range(4):
    e(f"v_xor_b32 v{vT3}, {4*j}, v{vT2}")
    e(f"v_lshl_add_u32 v{vKOFF+j}, v{vT3}, 4, v{vT4}")
    if j: e(f"v_add_u32 v{vKOFF+j}, {7168*j}, v{vKOFF+j}")
e(f"v_lshlrev_b32 v{vT3}, 2, v{vT0}")
e(f"v_xor_b32 v{vT3}, v{vT3}, v{vT1}")
e(f"v_lshl_add_u32 v{vVOFF}, v{vT3}, 4, v{vT4}")
for j in range(1, 4):
    e(f"v_add_u32 v{vVOFF+j}, {7168*j}, v{vVOFF}")
j0 = (D - 1) % 8
D0 = a.D0
j00 = (D0 - 1) % 8
e(f"v_mov_b32 v{vCNT}, {(j00 - D0 + 1)//8 - 1}")
e(f"v_mov_b32 v{vFA}, {FREE}")
e(f"v_mov_b32 v{vF}, 0")
e(f"v_mov_b32 v{vF+1}, 0")
e(f"s_mov_b32 s{sT}, 0")
e(f"s_mov_b32 s{sSLOT}, 0")
e(f"v_bfrev_b32 v{vT5}, 1")
e("s_waitcnt lgkmcnt(0)")
stamp(2, True)
clamp_cl(sCLV)
e(f"s_sub_u32 s{sIDX}, s{sNTL}, 1")
e(f"v_lshl_add_u32 v{vT0}, v{vLANE}, 1, 1")
e(f"v_cmp_gt_u32 vcc, s{sNB}, v{vT0}")
e("s_waitcnt vmcnt(1)")
e(f"v_lshlrev_b32 v{vL}, 15, v{vL}")
e(f"v_lshlrev_b32 v{vL+1}, 15, v{vL+1}")
e(f"v_cndmask_b32 v{vL+1}, v{vT5}, v{vL+1}, vcc")
stamp(1)
stamp(3, True)
e("s_nop 0")
def dma_tile(depth, jp, mid=None):
    for j in range(16):
        g, jj = j // 4, j % 4
        if jj == 0: e(f"s_add_u32 m0, s{sSLOT}, {4096*g}")
        e(f"s_waitcnt vmcnt({depth-1})")
        srd, voff = (sKD, vKOFF) if g < 2 else (sVD, vVOFF)
        e(f"buffer_load_dwordx4 v{voff+jj}, s[{srd}:{srd+3}], s{sB0 + (g & 1)} offen offset:{1024*jj}{NT} lds")
        if j % 8 == jp:
            e(f"v_add_u32 v{vCNT}, 1, v{vCNT}")
            e(f"ds_write_b32 v{vCA}, v{vCNT}")
        if j == 13 and mid: mid()
lab("L_ld0")
e(f"v_readlane_b32 s{sB0}, v{vL}, s{sIDX}")
e(f"v_readlane_b32 s{sB1}, v{vL+1}, s{sIDX}")
e(f"s_add_u32 s{sT}, s{sT}, 1")
e(f"s_sub_u32 s{sIDX}, s{sIDX}, 1")
e("s_nop 0")
dma_tile(D0, j00)
e(f"s_add_u32 s{sSLOT}, s{sSLOT}, 16384")
e(f"s_cmp_lg_u32 s{sT}, s{sU0}")
e("s_cbranch_scc1 L_ld0")
c("fetch the plan")
e(f"s_lshl_b32 s{sT0}, s{sT}, 1")
e(f"s_add_u32 s{sT0}, s{sT0}, {(j0 - D + 1)//8 - 1}")
e(f"v_mov_b32 v{vCNT}, s{sT0}")
e(f"s_mov_b32 s{sPH}, 1")
lab("L_ld_plan")
e(f"v_mov_b32 v{vT1}, {REC1}")
e(f"ds_read_b128 v[{vR4}:{vR4+3}], v{vT1}")
e(f"ds_read_b32 v{vT2}, v{vT1} offset:16")
e("s_waitcnt lgkmcnt(0)")
e(f"v_or_b32 v{vT2}, s{sPH}, v{vT2}")
e(f"v_and_b32 v{vT2}, v{vT2}, v{vR4+3}")
e(f"v_readfirstlane_b32 s{sMK}, v{vR4}")
e(f"v_readfirstlane_b32 s{sT0}, v{vT2}")
e(f"v_readfirstlane_b32 s{sMK+1}, v{vR4+1}")
e(f"v_readfirstlane_b32 s{sSTEP}, v{vR4+2}")
e(f"s_cmp_eq_u32 s{sT0}, 0")
e("s_cbranch_scc1 L_ld_noplan")
e(f"v_mbcnt_lo_u32_b32 v{vT0}, s{sMK}, 0")
e(f"v_mbcnt_hi_u32_b32 v{vT0}, s{sMK+1}, v{vT0}")
e(f"v_sub_u32 v{vT1}, v{vLANE}, v{vT0}")
e(f"v_subrev_u32 v{vT1}, s{sU0}, v{vT1}")
e(f"v_lshlrev_b32 v{vT0}, 3, v{vT0}")
e(f"v_lshlrev_b32 v{vT1}, 3, v{vT1}")
e(f"v_add_u32 v{vT0}, {LB}, v{vT0}")
e(f"v_add_u32 v{vT1}, {LA}, v{vT1}")
e(f"v_cndmask_b32 v{vT0}, v{vT1}, v{vT0}, s[{sMK}:{sMK+1}]")
e(f"ds_read_b64 v[{vL}:{vL+1}], v{vT0}")
c("first pass: run only up to the first donated tile (its list may not be sorted yet)")
e(f"s_ff1_i32_b64 s{sLIM}, s[{sMK}:{sMK+1}]")
e(f"s_cmp_lt_u32 s{sLIM}, s{sSTEP}")
e(f"s_cselect_b32 s{sIDX}, s{sPH}, 0")
e(f"s_sub_i32 s{sT0}, s{sSTEP}, {a.TL}")
e(f"s_max_i32 s{sT0}, s{sT0}, 0")
e(f"s_cmp_lg_u32 s{sIDX}, 0")
e(f"s_cselect_b32 s{sLIM}, s{sLIM}, s{sT0}")
if (a.stamps or a.dstamps) and not a.sst:
    e(f"s_cmp_eq_u32 s{sPH}, 0")
    e("s_cbranch_scc1 L_nost2")
    stamp(2)
    lab("L_nost2")
e(f"s_mov_b32 s{sPH}, 0")
e(f"s_cmp_ge_u32 s{sT}, s{sLIM}")
e("s_waitcnt lgkmcnt(0)")
e("s_cbranch_scc1 L_ld_lim")
def free_pf():
    c("prefetch FREE words of the next slot")
    e(f"s_lshr_b32 s{sT0}, s{sT2}, 11")
    e(f"s_add_u32 s{sT0}, s{sT0}, {FREE}")
    e(f"v_mov_b32 v{vFA}, s{sT0}")
    e(f"ds_read_b64 v[{vF}:{vF+1}], v{vFA}")
def ld_loop(name, depth, lim):
    out.append(".p2align 3")
    lab(name)
    e(f"v_readlane_b32 s{sB0}, v{vL}, s{sT}")
    e(f"v_readlane_b32 s{sB1}, v{vL+1}, s{sT}")
    e(f"s_sub_u32 s{sT1}, s{sT}, {NSLOT-1}")
    lab(name + "_chk")
    e("s_waitcnt lgkmcnt(0)")
    e(f"v_min_i32 v{vT0}, v{vF}, v{vF+1}")
    e(f"s_add_u32 s{sT2}, s{sSLOT}, 16384")
    e(f"v_readfirstlane_b32 s{sT0}, v{vT0}")
    e(f"s_and_b32 s{sT2}, s{sT2}, {RING-1}")
    e(f"s_cmp_ge_i32 s{sT0}, s{sT1}")
    e(f"s_cbranch_scc0 {name}_wait")
    dma_tile(depth, (depth - 1) % 8, free_pf)
    e(f"s_mov_b32 s{sSLOT}, s{sT2}")
    e(f"s_add_u32 s{sT}, s{sT}, 1")
    e(f"s_cmp_lt_u32 s{sT}, s{lim}")
    e(f"s_cbranch_scc1 {name}")
def ld_wait(name):
    lab(name + "_wait")
    e(f"ds_read_b64 v[{vF}:{vF+1}], v{vFA}")
    spin_tail(name + "_chk")
ld_loop("L_ld", D, sLIM)
lab("L_ld_lim")
e(f"s_cmp_lg_u32 s{sIDX}, 0")
e("s_cbranch_scc1 L_ld_plan")
DL = D
if a.TL:
    DL = a.D1
    j1 = (DL - 1) % 8
    e(f"s_lshl_b32 s{sT0}, s{sT}, 1")
    e(f"s_add_u32 s{sT0}, s{sT0}, {(j1 - DL + 1)//8 - 1}")
    e(f"v_mov_b32 v{vCNT}, s{sT0}")
    e(f"s_cmp_ge_u32 s{sT}, s{sSTEP}")
    e("s_cbranch_scc1 L_ld_drain")
    ld_loop("L_ldt", DL, sSTEP)
lab("L_ld_drain")
for r in range(((DL - 1) // 8) * 8, -1, -8):
    e(f"v_add_u32 v{vCNT}, 1, v{vCNT}")
    e(f"s_waitcnt vmcnt({r})")
    e(f"ds_write_b32 v{vCA}, v{vCNT}")
e("s_branch L_fin")
ld_wait("L_ld")
if a.TL: ld_wait("L_ldt")
lab("L_ld_noplan")
spin_tail("L_ld_plan")

lab("L_notloader")
e(f"s_cmp_ge_u32 s{sW}, 3")
e("s_cbranch_scc1 L_planner")
e(f"s_sub_u32 s{sCI}, s{sW}, 1")
e(f"s_mov_b32 s{sROLE}, 0")
e(f"s_mov_b32 s{sPLN}, 0")
e(f"s_mov_b32 s{sMRG}, 0")
e(f"s_mov_b32 s{sT3}, s{sB}")

def load_q():
    e(f"s_lshl_b32 s{sQO}, s{sT3}, 16")
    e(f"s_lshl_b32 s{sT0}, s{sH}, 13")
    e(f"s_add_u32 s{sQO}, s{sQO}, s{sT0}")
    e(f"s_lshl_b32 s{sT0}, s{sCI}, 12")
    e(f"s_add_u32 s{sQO}, s{sQO}, s{sT0}")
    e(f"v_and_b32 v{vT0}, 15, v{vLANE}")
    e(f"v_lshrrev_b32 v{vG}, 4, v{vLANE}")
    e(f"v_lshl_add_u32 v{vT4}, v{vT0}, 8, s{sQO}")
    e(f"v_lshl_add_u32 v{vT4}, v{vG}, 4, v{vT4}")
    for s in range(4):
        e(f"global_load_dwordx4 v[{vQ+4*s}:{vQ+4*s+3}], v{vT4}, s[{sQ}:{sQ+1}] offset:{64*s}")
load_q()
e("s_waitcnt lgkmcnt(0)")
clamp_cl(sCLV, zq=sT3)
c("valid tokens of stream tile 0")
e(f"s_sub_u32 s{sT0}, s{sNTL}, 1")
e(f"s_lshl_b32 s{sT0}, s{sT0}, 5")
e(f"s_sub_u32 s{sV0}, s{sCLV}, s{sT0}")
e(f"s_bfm_b64 s[{sM}:{sM+1}], s{sU0}, 0")
lab("L_csetup")
e("s_waitcnt vmcnt(4)")
e(f"v_and_b32 v{vT0}, 15, v{vLANE}")
e(f"v_xor_b32 v{vT1}, v{vG}, v{vT0}")
e(f"v_lshlrev_b32 v{vT2}, 8, v{vT0}")
for s in range(4):
    e(f"v_xor_b32 v{vT3}, {4*s}, v{vT1}")
    e(f"v_lshl_add_u32 v{vKA0+s}, v{vT3}, 4, v{vT2}")
e(f"v_bfe_u32 v{vT0}, v{vLANE}, 2, 2")
e(f"v_lshl_add_u32 v{vT1}, v{vG}, 2, v{vT0}")
e(f"v_lshlrev_b32 v{vT1}, 8, v{vT1}")
e(f"v_and_b32 v{vT2}, 3, v{vLANE}")
e(f"v_lshl_add_u32 v{vT1}, v{vT2}, 4, v{vT1}")
e(f"v_add_u32 v{vT1}, 8192, v{vT1}")
for j in range(4):
    e(f"v_xor_b32 v{vT3}, {j}, v{vT0}")
    e(f"v_lshl_add_u32 v{vVA0+j}, v{vT3}, 6, v{vT1}")
e(f"s_lshl_b32 s{sT0}, s{sW}, 3")
e(f"s_add_u32 s{sT0}, s{sT0}, {CTRL-8}")
e(f"v_mov_b32 v{vPA}, s{sT0}")
e(f"v_mov_b32 v{vM}, 0xff800000")
e(f"v_mov_b32 v{vLS}, 0")
for r in range(32): e(f"v_mov_b32 v{vO+r}, 0")
e(f"s_mov_b32 s{sCST}, 0x3e0293ee")
e(f"s_mov_b32 s{sCST+1}, 0x3e0293ee")
e(f"s_mov_b32 s{sLIMF}, 0x43800000")
e(f"s_lshl_b32 s{sFB}, s{sCI}, 2")
e(f"s_add_u32 s{sFB}, s{sFB}, {FREE}")
e("s_waitcnt vmcnt(0)")
e(f"s_cmp_eq_u32 s{sT3}, 0")
e("s_cbranch_scc1 L_c_first")
for r in range(16): e(f"v_mov_b32 v{vQ+r}, 0")

def cspin(label):
    if a.csleep >= 0: e(f"s_sleep {a.csleep}")
    e(f"s_sub_u32 s{sSPIN}, s{sSPIN}, 1")
    e(f"s_cbranch_scc0 {label}")
    e("s_endpgm")
def poll(label, need):
    lab(label)
    e(f"ds_read_b64 v[{vPL}:{vPL+1}], v{vPA}")
    e(f"s_sub_u32 s{sSPIN}, s{sSPIN}, 1")
    e("s_cbranch_scc1 L_end")
    if a.csleep >= 0: e(f"s_sleep {a.csleep}")
    e("s_waitcnt lgkmcnt(0)")
    e(f"v_readfirstlane_b32 s{sLND}, v{vPL}")
    e(f"v_readfirstlane_b32 s{sMBF}, v{vPL+1}")
    e(f"s_cmp_ge_i32 s{sLND}, s{need}")
    e(f"s_cbranch_scc0 {label}")
VR = []
for j in range(4):
    for ee in range(2):
        for blk in range(2):
            r = vVF + (2 * j + ee) * 4 + 2 * blk
            VR.append(f"ds_read_b64_tr_b16 v[{r}:{r+1}], v{vVA+j} offset:{8*ee + 4096*blk}")
KR, QK = [], []
for blk in range(2):
    for st in range(4):
        r = vKF + (blk * 4 + st) * 4
        KR.append(f"ds_read_b128 v[{r}:{r+3}], v{vKA+st} offset:{4096*blk}")
        cc = "0" if st == 0 else f"v[{vS+4*blk}:{vS+4*blk+3}]"
        QK.append(f"v_mfma_f32_16x16x32_bf16 v[{vS+4*blk}:{vS+4*blk+3}], v[{r}:{r+3}], v[{vQ+4*st}:{vQ+4*st+3}], {cc}")
PV = [f"v_mfma_f32_16x16x32_bf16 v[{vO+4*dt}:{vO+4*dt+3}], v[{vVF+4*dt}:{vVF+4*dt+3}], v[{vP}:{vP+3}], v[{vO+4*dt}:{vO+4*dt+3}]" for dt in range(8)]
NX = [f"s_ff1_i32_b64 s{sTN}, s[{sM}:{sM+1}]",
      f"s_bitset0_b64 s[{sM}:{sM+1}], s{sTN}",
      f"s_lshl1_add_u32 s{sNK}, s{sTN}, 1",
      f"s_bitset0_b32 s{sNK}, 31",
      f"s_and_b32 s{sT0}, s{sTN}, {NSLOT-1}",
      f"s_lshl_b32 s{sSB}, s{sT0}, 14",
      f"s_lshl3_add_u32 s{sFWN}, s{sT0}, s{sFB}",
      f"s_mov_b32 s{sRD}, 0"]
KA = [f"v_add_u32 v{vKA+i}, s{sSB}, v{vKA0+i}" for i in range(4)]
ADV = [f"v_add_u32 v{vVA+i}, s{sSB}, v{vVA0+i}" for i in range(4)] + [
      f"v_mov_b32 v{vFW}, s{sFWN}",
      f"s_add_u32 s{sNEED}, s{sNK}, 1",
      f"s_add_u32 s{sT}, s{sTN}, 1",
      f"v_mov_b32 v{vFV}, s{sT}"]

lab("L_c_first")
for x in NX + KA: e(x)
c("sTN/sNK/sSB/sFWN describe the next tile, K addresses are set")
lab("L_c_nextk")
e(f"s_cmp_lt_i32 s{sTN}, 0")
e("s_cbranch_scc1 L_c_empty")
for x in ADV: e(x)
poll("L_c_pollk", sNK)
if a.sst:
    e(f"s_cmp_lg_u32 s{sT}, 1")
    e("s_cbranch_scc1 L_sst1")
    stamp(1, True)
    lab("L_sst1")
    e(f"s_cmp_lg_u32 s{sT}, 3")
    e("s_cbranch_scc1 L_sst2")
    stamp(2, True)
    lab("L_sst2")
    e(f"s_cmp_lg_u32 s{sT}, 7")
    e("s_cbranch_scc1 L_sst3")
    stamp(3, True)
    lab("L_sst3")
for x in KR: e(x)
out.append(".p2align 3")
lab("L_c_top")
e(f"s_and_b32 s{sT0}, s{sMBF}, s{sMRG}")
e("s_cbranch_scc1 L_c_merge")
lab("L_c_top2")
e(f"s_cmp_ge_i32 s{sLND}, s{sNEED}")
e(f"s_cselect_b32 s{sVR}, 1, 0")
e("s_waitcnt lgkmcnt(0)")
e("s_cbranch_scc0 L_c_qknov")
for i in range(8):
    e(QK[i]); e(VR[2*i]); e(VR[2*i+1]); e(NX[i])
lab("L_c_sm")
e(f"ds_read_b64 v[{vPL}:{vPL+1}], v{vPA}")
e(f"s_cmp_lt_u32 s{sV0}, 32")
e("s_cbranch_scc1 L_c_mask")
lab("L_c_exp")
for hb in range(2):
    if a.pk:
        for r in (4*hb, 4*hb+2):
            e(f"v_pk_fma_f32 v[{vE+r}:{vE+r+1}], v[{vS+r}:{vS+r+1}], s[{sCST}:{sCST+1}], v[{vM}:{vM+1}] op_sel_hi:[1,1,0] neg_lo:[0,0,1] neg_hi:[0,0,1]")
    else:
        for r in range(4*hb, 4*hb+4):
            e(f"v_fma_f32 v{vE+r}, v{vS+r}, s{sCST}, -v{vM}")
    for r in range(4*hb, 4*hb+4):
        e(f"v_exp_f32 v{vE+r}, v{vE+r}")
e(KA[0])
if a.pk:
    e(f"v_pk_add_f32 v[{vT0}:{vT1}], v[{vE}:{vE+1}], v[{vE+2}:{vE+3}]")
    e(f"v_pk_add_f32 v[{vT2}:{vT3}], v[{vE+4}:{vE+5}], v[{vE+6}:{vE+7}]")
    e(f"v_cvt_pk_bf16_f32 v{vP}, v{vE}, v{vE+1}")
    e(f"v_pk_add_f32 v[{vT0}:{vT1}], v[{vT0}:{vT1}], v[{vT2}:{vT3}]")
    e(f"v_cvt_pk_bf16_f32 v{vP+1}, v{vE+2}, v{vE+3}")
    e(f"v_add_f32 v{vT0}, v{vT0}, v{vT1}")
else:
    e(f"v_add_f32 v{vT0}, v{vE}, v{vE+1}")
    e(f"v_add_f32 v{vT1}, v{vE+2}, v{vE+3}")
    e(f"v_add_f32 v{vT2}, v{vE+4}, v{vE+5}")
    e(f"v_add_f32 v{vT3}, v{vE+6}, v{vE+7}")
    e(f"v_add_f32 v{vT0}, v{vT0}, v{vT1}")
    e(f"v_add_f32 v{vT2}, v{vT2}, v{vT3}")
    e(f"v_cvt_pk_bf16_f32 v{vP}, v{vE}, v{vE+1}")
    e(f"v_add_f32 v{vT0}, v{vT0}, v{vT2}")
    e(f"v_cvt_pk_bf16_f32 v{vP+1}, v{vE+2}, v{vE+3}")
c("the running reference max is only safe while every weight stays <= 256")
e(f"v_cmp_nge_f32 vcc, s{sLIMF}, v{vT0}")
e(f"v_cvt_pk_bf16_f32 v{vP+2}, v{vE+4}, v{vE+5}")
e(f"v_cvt_pk_bf16_f32 v{vP+3}, v{vE+6}, v{vE+7}")
for x in KA[1:]: e(x)
e("s_cbranch_vccnz L_c_slow")
lab("L_c_smdone")
e(f"v_add_f32 v{vLS}, v{vLS}, v{vT0}")
e(f"s_cmp_eq_u32 s{sVR}, 0")
e("s_cbranch_scc1 L_c_pollv")
e("s_waitcnt lgkmcnt(0)")
e(f"v_readfirstlane_b32 s{sLND}, v{vPL}")
e(f"v_readfirstlane_b32 s{sMBF}, v{vPL+1}")
e(f"s_cmp_ge_i32 s{sLND}, s{sNK}")
e("s_cbranch_scc0 L_c_pv")
e(f"ds_write_b32 v{vFW}, v{vFV}")
for i in range(8):
    e(PV[i]); e(KR[i]); e(ADV[i])
e("s_branch L_c_top")

c("V had not landed when QK was issued")
poll("L_c_pollv", sNEED)
for x in VR: e(x)
lab("L_c_pv")
for i in range(8):
    e(f"s_waitcnt lgkmcnt({14-2*i})")
    if i == 7: e(f"ds_write_b32 v{vFW}, v{vFV}")
    e(PV[i])
e("s_branch L_c_nextk")

lab("L_c_qknov")
for i in range(8):
    e(QK[i]); e(NX[i])
e("s_branch L_c_sm")

lab("L_c_mask")
e(f"v_lshlrev_b32 v{vT0}, 2, v{vG}")
e(f"v_sub_u32 v{vT0}, s{sV0}, v{vT0}")
e(f"v_mov_b32 v{vT1}, 0xff800000")
e("s_nop 3")
for r in range(8):
    e(f"v_cmp_lt_i32 vcc, {16*(r//4)+(r%4)}, v{vT0}")
    e("s_nop 1")
    e(f"v_cndmask_b32 v{vS+r}, v{vT1}, v{vS+r}, vcc")
e(f"s_mov_b32 s{sV0}, 32")
e("s_branch L_c_exp")

c("raise the reference to the true running max and rescale")
lab("L_c_slow")
e(f"s_cmp_lg_u32 s{sRD}, 0")
e("s_cbranch_scc1 L_c_smdone")
e(f"s_mov_b32 s{sRD}, 1")
e(f"v_max3_f32 v{vT0}, v{vS}, v{vS+1}, v{vS+2}")
e(f"v_max3_f32 v{vT1}, v{vS+3}, v{vS+4}, v{vS+5}")
e(f"v_max3_f32 v{vT0}, v{vT0}, v{vS+6}, v{vS+7}")
e(f"v_max_f32 v{vT0}, v{vT0}, v{vT1}")
e(f"v_mov_b32 v{vT1}, v{vT0}")
e("s_nop 1")
e(f"v_permlane32_swap_b32 v{vT0}, v{vT1}")
e("s_nop 0")
e(f"v_max_f32 v{vT0}, v{vT0}, v{vT1}")
e(f"v_mov_b32 v{vT1}, v{vT0}")
e("s_nop 1")
e(f"v_permlane16_swap_b32 v{vT0}, v{vT1}")
e("s_nop 0")
e(f"v_max_f32 v{vT0}, v{vT0}, v{vT1}")
e(f"v_mul_f32 v{vT0}, s{sCST}, v{vT0}")
e(f"v_max_f32 v{vMN}, v{vM}, v{vT0}")
e(f"v_sub_f32 v{vAL}, v{vM}, v{vMN}")
e(f"v_exp_f32 v{vAL}, v{vAL}")
e(f"v_mov_b32 v{vM}, v{vMN}")
e(f"v_mul_f32 v{vLS}, v{vLS}, v{vAL}")
for r in range(32):
    e(f"v_mul_f32 v{vO+r}, v{vO+r}, v{vAL}")
e("s_branch L_c_exp")

lab("L_c_merge")
e(f"s_mul_i32 s{sT0}, s{sCI}, 9216")
e(f"s_add_u32 s{sT0}, s{sT0}, {MB}")
e(f"v_lshl_add_u32 v{vT0}, v{vLANE}, 4, s{sT0}")
e(f"v_lshl_add_u32 v{vT1}, v{vLANE}, 3, s{sT0}")
e("s_waitcnt lgkmcnt(0)")
e(f"ds_read_b64 v[{vT4}:{vT5}], v{vT1} offset:8192")
for i in range(8):
    e(f"ds_read_b128 v[{vVF+4*i}:{vVF+4*i+3}], v{vT0} offset:{1024*i}")
e(f"s_mov_b32 s{sMRG}, 0")
e("s_waitcnt lgkmcnt(8)")
e(f"v_max_f32 v{vMN}, v{vM}, v{vT4}")
e(f"v_sub_f32 v{vAL}, v{vM}, v{vMN}")
e(f"v_sub_f32 v{vT4}, v{vT4}, v{vMN}")
e(f"v_exp_f32 v{vAL}, v{vAL}")
e(f"v_exp_f32 v{vT4}, v{vT4}")
e(f"v_mov_b32 v{vM}, v{vMN}")
e(f"v_mul_f32 v{vLS}, v{vLS}, v{vAL}")
e(f"v_fmac_f32 v{vLS}, v{vT5}, v{vT4}")
for r in range(32):
    e(f"v_mul_f32 v{vO+r}, v{vO+r}, v{vAL}")
e("s_waitcnt lgkmcnt(0)")
for r in range(32):
    e(f"v_fmac_f32 v{vO+r}, v{vVF+r}, v{vT4}")
e(f"s_cmp_eq_u32 s{sPLN}, 2")
e("s_cbranch_scc0 L_c_top2")
e("s_branch L_c_store")

lab("L_c_noplan")
e(f"s_mov_b32 s{sPLN}, 1")
e(f"v_mov_b32 v{vT1}, {REC0}")
lab("L_c_plan")
e(f"ds_read_b128 v[{vT2}:{vT5}], v{vT1}")
e("s_waitcnt lgkmcnt(0)")
e(f"v_readfirstlane_b32 s{sT0}, v{vT5}")
e(f"v_readfirstlane_b32 s{sM}, v{vT2}")
e(f"v_readfirstlane_b32 s{sM+1}, v{vT3}")
e(f"v_readfirstlane_b32 s{sMRG}, v{vT4}")
e(f"s_cmp_lg_u32 s{sT0}, 0")
e("s_cbranch_scc1 L_c_first")
spin_tail("L_c_plan")
lab("L_c_mwait0")
e(f"s_mov_b32 s{sPLN}, 2")
lab("L_c_mwait")
e(f"ds_read_b64 v[{vPL}:{vPL+1}], v{vPA}")
e("s_waitcnt lgkmcnt(0)")
e(f"v_readfirstlane_b32 s{sMBF}, v{vPL+1}")
e(f"s_cmp_lg_u32 s{sMBF}, 0")
e("s_cbranch_scc1 L_c_merge")
spin_tail("L_c_mwait")
lab("L_c_empty")
e(f"s_cmp_lg_u32 s{sROLE}, 0")
e("s_cbranch_scc1 L_publish")
e(f"s_cmp_eq_u32 s{sPLN}, 0")
e("s_cbranch_scc1 L_c_noplan")
stamp(2)
e(f"s_cmp_lg_u32 s{sMRG}, 0")
e("s_cbranch_scc1 L_c_mwait0")
lab("L_c_store")
e(f"v_mov_b32 v{vT0}, v{vLS}")
e(f"v_and_b32 v{vT2}, 15, v{vLANE}")
e(f"v_lshl_add_u32 v{vT2}, v{vT2}, 8, s{sQO}")
e(f"v_permlane32_swap_b32 v{vLS}, v{vT0}")
e("s_nop 0")
e(f"v_add_f32 v{vLS}, v{vLS}, v{vT0}")
e(f"v_mov_b32 v{vT0}, v{vLS}")
e(f"v_lshl_add_u32 v{vT2}, v{vG}, 4, v{vT2}")
e("s_nop 0")
e(f"v_permlane16_swap_b32 v{vLS}, v{vT0}")
e("s_nop 0")
e(f"v_add_f32 v{vLS}, v{vLS}, v{vT0}")
e(f"v_rcp_f32 v{vLS}, v{vLS}")
e("s_nop 0")
for j in range(4):
    for r in range(8):
        e(f"v_mul_f32 v{vO+8*j+r}, v{vO+8*j+r}, v{vLS}")
    for r in range(4):
        e(f"v_cvt_pk_bf16_f32 v{vKF+4*j+r}, v{vO+8*j+2*r}, v{vO+8*j+2*r+1}")
    e(f"global_store_dwordx4 v{vT2}, v[{vKF+4*j}:{vKF+4*j+3}], s[{sOUT}:{sOUT+1}] offset:{64*j}{OST}")
e("s_branch L_fin")

WSS = 18432
def ws_base(sb):
    e(f"s_lshl_b32 s{sT0}, s{sb}, 3")
    e(f"s_add_u32 s{sT0}, s{sT0}, s{sH}")
    e(f"s_mul_i32 s{sT0}, s{sT0}, {WSS}")
    if a.stamps: e(f"s_add_u32 s{sT0}, s{sT0}, 0x100000")

lab("L_publish")
e(f"s_lshl_b32 s{sT2}, s{sPB}, 2")
e(f"v_mov_b32 v{vT2}, s{sT2}")
if "noannld" not in DBG: e(f"global_load_dword v{vT4}, v{vT2}, s[{sDBG}:{sDBG+1}] sc1")
ws_base(sPB)
e(f"s_lshl_b32 s{sT1}, s{sCI}, 2")
e(f"s_add_u32 s{sT1}, s{sT1}, s{sT0}")
e(f"s_add_u32 s{sT1}, s{sT1}, 17408")
e(f"v_mov_b32 v{vT5}, s{sT1}")
e(f"s_mul_i32 s{sT1}, s{sCI}, 8704")
e(f"s_add_u32 s{sT0}, s{sT0}, s{sT1}")
e(f"v_lshl_add_u32 v{vT0}, v{vLANE}, 4, s{sT0}")
e(f"s_add_u32 s{sT0}, s{sT0}, 8192")
e(f"v_lshl_add_u32 v{vT1}, v{vLANE}, 3, s{sT0}")
e(f"v_add_u32 v{vT3}, 4096, v{vT0}")
e(f"s_getreg_b32 s{sT2}, hwreg(HW_REG_XCC_ID, 0, 4)")
e(f"s_or_b32 s{sT2}, s{sT2}, 8")
e(f"s_lshl_b32 s{sT3}, s{sH}, 2")
e("s_waitcnt vmcnt(0)")
e(f"v_readfirstlane_b32 s{sT1}, v{vT4}")
e(f"s_lshr_b32 s{sT1}, s{sT1}, s{sT3}")
e(f"s_and_b32 s{sT1}, s{sT1}, 15")
e(f"s_cmp_eq_u32 s{sT1}, s{sT2}")
if "slow" in DBG: e("s_cmp_eq_u32 0, 1")
if "fast" in DBG: e("s_cmp_eq_u32 0, 0")
e("s_cbranch_scc0 L_pub_slow")
def pub_stores(fl):
    if "nostore" in DBG: return
    for i in range(8):
        e(f"global_store_dwordx4 v{vT0 if i < 4 else vT3}, v[{vO+4*i}:{vO+4*i+3}], s[{sWS}:{sWS+1}] offset:{1024*(i%4)}{fl}")
    e(f"global_store_dwordx2 v{vT1}, v[{vM}:{vM+1}], s[{sWS}:{sWS+1}]{fl}")
c("receiver shares this L2 and has cleared its flag words: hand over inside L2")
pub_stores("")
e(f"v_mov_b32 v{vT4}, 1")
e("s_waitcnt vmcnt(0)")
e("s_mov_b64 exec, 1")
e(f"global_store_dword v{vT5}, v{vT4}, s[{sWS}:{sWS+1}]")
stamp(2)
e("s_branch L_fin")
lab("L_pub_slow")
pub_stores(" sc1")
e(f"s_lshl_b32 s{sT1}, s{sH}, 1")
e(f"s_add_u32 s{sT1}, s{sT1}, s{sCI}")
e(f"s_lshl_b32 s{sT1}, 1, s{sT1}")
e(f"v_mov_b32 v{vT4}, s{sT1}")
e("s_waitcnt vmcnt(0)")
e("s_mov_b64 exec, 1")
e(f"global_atomic_add v{vT2}, v{vT4}, s[{sDBG}:{sDBG+1}] offset:128")
stamp(2)
e("s_branch L_fin")

lab("L_planner")
e(f"s_sub_u32 s{sCI}, s{sW}, 3")
e(f"s_lshl_b32 s{sT2}, s{sCI}, 8")
e(f"s_add_u32 s{sT2}, s{sT2}, {CNT}")
e(f"s_mov_b32 s{sSB}, s{sT2}")
e(f"v_lshl_add_u32 v{vPA}, v{vLANE}, 2, s{sT2}")
vRW = vL
vN, vKEY, vRK = 63, 19, 20
e(f"s_lshl_b32 s{sT2}, s{sCI}, 7")
e(f"s_add_u32 s{sT2}, s{sT2}, {KEYS}")
e(f"v_add_u32 v{vT3}, s{sT2}, v{vT3}")
e(f"v_lshrrev_b32 v{vT4}, 5, v{vLANE}")
e(f"v_lshl_add_u32 v{vT4}, v{vT4}, 6, s{sT2}")
e(f"v_mov_b32 v{vT5}, 2048")
e("s_waitcnt vmcnt(0)")
e(f"v_cmp_gt_i32 s[{sZQ}:{sZQ+1}], 1, v{vN}")
e(f"v_min_i32 v{vN}, v{vN}, v{vT5}")
e("s_nop 0")
e(f"v_cndmask_b32 v{vN}, v{vN}, v{vT5}, s[{sZQ}:{sZQ+1}]")
e(f"v_add_u32 v{vN}, 15, v{vN}")
e(f"v_lshrrev_b32 v{vN}, 4, v{vN}")
e(f"v_lshl_or_b32 v{vKEY}, v{vN}, 5, v{vT0}")
e(f"ds_write_b32 v{vT3}, v{vKEY}")
for i in range(4):
    e(f"ds_read_b128 v[{vKF+4*i}:{vKF+4*i+3}], v{vT4} offset:{16*i}")
e(f"v_mov_b32 v{vRK}, 0")
e(f"v_readlane_b32 s{sNB}, v{vN}, s{sB}")
e("s_waitcnt lgkmcnt(0)")
for i in range(16):
    e(f"v_sub_u32 v{vKF+i}, v{vKF+i}, v{vKEY}")
for i in range(16):
    e(f"v_alignbit_b32 v{vRK}, v{vRK}, v{vKF+i}, 31")
e(f"v_bcnt_u32_b32 v{vRK}, v{vRK}, 0")
e(f"v_mov_b32 v{vT2}, v{vRK}")
e(f"s_add_u32 s{sNTL}, s{sNB}, 1")
e(f"s_lshr_b32 s{sNTL}, s{sNTL}, 1")
e(f"v_permlane32_swap_b32 v{vRK}, v{vT2}")
e(f"s_min_u32 s{sU0}, s{sNTL}, {U}")
e(f"v_add_u32 v{vRK}, v{vRK}, v{vT2}")
e("s_nop 0")
e(f"v_readlane_b32 s{sRK}, v{vRK}, s{sB}")
e(f"s_sub_u32 s{sT0}, 31, s{sRK}")
e(f"v_cmp_eq_u32 vcc, s{sT0}, v{vRK}")
e(f"s_ff1_i32_b32 s{sPB}, vcc_lo")
e(f"v_readlane_b32 s{sNP}, v{vN}, s{sPB}")
e(f"s_max_u32 s{sT0}, s{sNB}, s{sNP}")
e(f"s_min_u32 s{sT1}, s{sNB}, s{sNP}")
e(f"s_sub_u32 s{sX}, s{sT0}, s{sT1}")
e(f"s_add_u32 s{sX}, s{sX}, 2")
e(f"s_lshr_b32 s{sX}, s{sX}, 2")
e(f"s_cmp_lt_u32 s{sT0}, 16")
e(f"s_cselect_b32 s{sX}, 0, s{sX}")
e(f"s_cmp_lt_u32 s{sX}, {a.xmin}")
e(f"s_cselect_b32 s{sX}, 0, s{sX}")
if a.nopair: e(f"s_mov_b32 s{sX}, 0")
e(f"s_cmp_ge_u32 s{sRK}, 16")
e(f"s_cselect_b32 s{sLO}, s{sX}, 0")
e(f"s_cselect_b32 s{sTB}, 0, s{sX}")
c("wave 4 needs the partner's row")
e(f"s_cmp_eq_u32 s{sCI}, 0")
e("s_cbranch_scc1 L_pl_norow")
e(f"s_lshl_b32 s{sT0}, s{sPB}, 9")
e(f"v_lshl_add_u32 v{vT1}, v{vLANE}, 3, s{sT0}")
e("s_waitcnt vmcnt(0)")
e(f"global_load_dwordx2 v[{vRW}:{vRW+1}], v{vT1}, s[{sBT}:{sBT+1}]")
lab("L_pl_norow")
e(f"s_sub_u32 s{sTA}, s{sNTL}, s{sLO}")
e(f"s_add_u32 s{sT}, s{sTA}, s{sTB}")
e(f"s_mul_i32 s{sF}, s{sT}, {a.fnum}")
e(f"s_lshr_b32 s{sF}, s{sF}, 6")
e(f"s_min_u32 s{sLONG}, s{sTA}, {a.UB}")
e(f"s_max_u32 s{sLONG}, s{sLONG}, s{sU0}")
e(f"s_sub_i32 s{sF}, s{sF}, s{sLONG}")
e(f"s_max_i32 s{sF}, s{sF}, s{sTB}")
e(f"s_max_i32 s{sF}, s{sF}, 1")
e(f"v_cvt_f32_u32 v{vT2}, s{sF}")
e(f"v_subrev_u32 v{vT3}, s{sLONG}, v{vLANE}")
e(f"v_rcp_f32 v{vT2}, v{vT2}")
e(f"v_mul_i32_i24 v{vT4}, s{sTB}, v{vT3}")
e(f"v_add_u32 v{vT5}, s{sTB}, v{vT4}")
e(f"v_cvt_f32_i32 v{vT4}, v{vT4}")
e(f"v_cvt_f32_i32 v{vT5}, v{vT5}")
e(f"v_add_f32 v{vT4}, 0.5, v{vT4}")
e(f"v_add_f32 v{vT5}, 0.5, v{vT5}")
e(f"v_mul_f32 v{vT4}, v{vT4}, v{vT2}")
e(f"v_mul_f32 v{vT5}, v{vT5}, v{vT2}")
e(f"v_floor_f32 v{vT4}, v{vT4}")
e(f"v_floor_f32 v{vT5}, v{vT5}")
e(f"v_cmp_gt_u32 vcc, s{sF}, v{vT3}")
e(f"v_cmp_gt_f32 s[{sMBK}:{sMBK+1}], v{vT5}, v{vT4}")
e(f"s_sub_u32 s{sT0}, s{sT}, s{sU0}")
e(f"v_subrev_u32 v{vT3}, s{sU0}, v{vLANE}")
e(f"v_cmp_gt_u32 s[{sMA}:{sMA+1}], s{sT0}, v{vT3}")
e(f"s_and_b64 s[{sMBK}:{sMBK+1}], s[{sMBK}:{sMBK+1}], vcc")
e(f"s_andn2_b64 s[{sMA}:{sMA+1}], s[{sMA}:{sMA+1}], s[{sMBK}:{sMBK+1}]")
c("sort range and list base")
e(f"s_sub_u32 s{sHI}, s{sNTL}, s{sU0}")
e(f"s_mov_b32 s{sLBASE}, {LA}")
e(f"s_min_u32 s{sMRG}, s{sLO}, 1")
e(f"s_cmp_eq_u32 s{sCI}, 0")
e("s_cbranch_scc1 L_pl_a")
e(f"s_mov_b32 s{sLO}, 0")
e(f"s_mov_b32 s{sHI}, s{sTB}")
e(f"s_mov_b32 s{sLBASE}, {LB}")
e("s_branch L_pl_sort")
lab("L_pl_a")
e(f"v_mov_b32 v{vT2}, s{sMA}")
e(f"v_mov_b32 v{vT3}, s{sMA+1}")
e(f"v_mov_b32 v{vT4}, s{sMRG}")
e(f"v_mov_b32 v{vT5}, 1")
e(f"v_mov_b32 v{vT1}, {REC0}")
e(f"ds_write_b128 v{vT1}, v[{vT2}:{vT5}]")
lab("L_pl_sort")
e(f"s_sub_u32 s{sT0}, s{sHI}, s{sLO}")
e(f"v_subrev_u32 v{vT0}, s{sLO}, v{vLANE}")
e(f"v_cmp_gt_u32 vcc, s{sT0}, v{vT0}")
e(f"v_mov_b32 v{vT5}, 1")
e("s_waitcnt vmcnt(0)")
if a.nosort:
    e(f"v_lshlrev_b32 v{vT2}, 1, v{vT0}")
    e(f"v_add_u32 v{vT3}, 1, v{vT2}")
else:
    e(f"v_lshrrev_b32 v{vT0}, 6, v{vRW}")
    e(f"v_lshrrev_b32 v{vT1}, 6, v{vRW+1}")
    e(f"v_min_u32 v{vT0}, 63, v{vT0}")
    e(f"v_min_u32 v{vT1}, 63, v{vT1}")
    e(f"v_lshlrev_b32 v{vT0}, 2, v{vT0}")
    e(f"v_lshlrev_b32 v{vT1}, 2, v{vT1}")
    e(f"v_add_u32 v{vKF}, s{sSB}, v{vT0}")
    e(f"v_add_u32 v{vKF+1}, s{sSB}, v{vT1}")
    e("s_mov_b64 exec, vcc")
    e(f"ds_add_rtn_u32 v{vT2}, v{vKF}, v{vT5}")
    e(f"ds_add_rtn_u32 v{vT3}, v{vKF+1}, v{vT5}")
    e("s_mov_b64 exec, -1")
    e(f"ds_read_b32 v{vT4}, v{vPA}")
    e("s_waitcnt lgkmcnt(0)")
    e(f"v_mov_b32 v{vKF+2}, v{vT4}")
    for sh in (1, 2, 4, 8):
        e("s_nop 1")
        e(f"v_add_u32_dpp v{vT4}, v{vT4}, v{vT4} row_shr:{sh} row_mask:0xf bank_mask:0xf bound_ctrl:0")
    e("s_nop 1")
    e(f"v_add_u32_dpp v{vT4}, v{vT4}, v{vT4} row_bcast:15 row_mask:0xa bank_mask:0xf")
    e("s_nop 1")
    e(f"v_add_u32_dpp v{vT4}, v{vT4}, v{vT4} row_bcast:31 row_mask:0xc bank_mask:0xf")
    e(f"v_sub_u32 v{vT4}, v{vT4}, v{vKF+2}")
    e(f"ds_bpermute_b32 v{vT0}, v{vT0}, v{vT4}")
    e(f"ds_bpermute_b32 v{vT1}, v{vT1}, v{vT4}")
    e("s_waitcnt lgkmcnt(0)")
    e(f"v_add_u32 v{vT2}, v{vT2}, v{vT0}")
    e(f"v_add_u32 v{vT3}, v{vT3}, v{vT1}")
e(f"v_lshlrev_b32 v{vRW}, 15, v{vRW}")
e(f"v_lshlrev_b32 v{vRW+1}, 15, v{vRW+1}")
e(f"v_lshl_add_u32 v{vT2}, v{vT2}, 2, s{sLBASE}")
e(f"v_lshl_add_u32 v{vT3}, v{vT3}, 2, s{sLBASE}")
e("s_mov_b64 exec, vcc")
e(f"ds_write_b32 v{vT2}, v{vRW}")
e(f"ds_write_b32 v{vT3}, v{vRW+1}")
e("s_mov_b64 exec, -1")
e(f"v_mov_b32 v{vT1}, {REC1}")
e(f"s_cmp_eq_u32 s{sCI}, 0")
e("s_cbranch_scc0 L_pl_b")
e(f"v_mov_b32 v{vT2}, s{sMBK}")
e(f"v_mov_b32 v{vT3}, s{sMBK+1}")
e(f"v_mov_b32 v{vT4}, s{sT}")
e(f"ds_write_b128 v{vT1}, v[{vT2}:{vT5}]")
e("s_branch L_pl_done")
lab("L_pl_b")
e(f"ds_write_b32 v{vT1}, v{vT5} offset:16")
lab("L_pl_done")
stamp(1)
e(f"s_cmp_lg_u32 s{sMRG}, 0")
e("s_cbranch_scc1 L_fetch")
e(f"s_cmp_eq_u32 s{sTB}, 0")
e("s_cbranch_scc1 L_fin")
c("become the consumer of the donated tiles")
e(f"s_mov_b32 s{sT3}, s{sPB}")
load_q()
e(f"s_mov_b64 s[{sM}:{sM+1}], s[{sMBK}:{sMBK+1}]")
e(f"s_mov_b32 s{sROLE}, 1")
e(f"s_mov_b32 s{sPLN}, 1")
e(f"s_mov_b32 s{sV0}, 32")
e(f"s_lshr_b32 s{sT3}, s{sZQ}, s{sPB}")
e(f"s_and_b32 s{sT3}, s{sT3}, 1")
e("s_branch L_csetup")

lab("L_fetch")
e(f"s_cmp_lg_u32 s{sCI}, 0")
e("s_cbranch_scc1 L_fin")
ws_base(sB)
e(f"v_lshl_add_u32 v{vT0}, v{vLANE}, 4, s{sT0}")
e(f"v_lshl_add_u32 v{vT1}, v{vLANE}, 3, s{sT0}")
e(f"s_add_u32 s{sT1}, s{sT0}, 17408")
e(f"v_mov_b32 v{vFW}, s{sT1}")
e(f"v_mov_b32 v{vT4}, 0")
e(f"v_mov_b32 v{vT5}, 0")
e(f"s_lshl_b32 s{sT2}, s{sB}, 2")
e(f"v_mov_b32 v{vT2}, s{sT2}")
e(f"s_getreg_b32 s{sT2}, hwreg(HW_REG_XCC_ID, 0, 4)")
e(f"s_or_b32 s{sT2}, s{sT2}, 8")
e(f"s_lshl_b32 s{sT3}, s{sH}, 2")
e(f"s_lshl_b32 s{sT2}, s{sT2}, s{sT3}")
e(f"v_mov_b32 v{vT3}, s{sT2}")
e(f"v_mov_b32 v{vPA}, {CTRL+16}")
e("s_mov_b64 exec, 1")
e(f"global_store_dwordx2 v{vFW}, v[{vT4}:{vT5}], s[{sWS}:{sWS+1}]")
e("s_waitcnt vmcnt(0)")
if "noann" not in DBG: e(f"global_atomic_add v{vT2}, v{vT3}, s[{sDBG}:{sDBG+1}]")
e(f"s_mul_i32 s{sNEED}, s{sT}, {a.pollnum}")
e(f"s_lshr_b32 s{sNEED}, s{sNEED}, 5")
e(f"s_lshl_b32 s{sT3}, s{sH}, 1")
e(f"s_mov_b32 s{sMBF}, 0")
lab("L_f_wait")
e(f"ds_read_b32 v{vPL}, v{vPA}")
e("s_waitcnt lgkmcnt(0)")
e(f"v_readfirstlane_b32 s{sLND}, v{vPL}")
e(f"s_cmp_ge_i32 s{sLND}, s{sNEED}")
e("s_cbranch_scc1 L_f_poll")
spin_tail("L_f_wait", 8)
lab("L_f_poll")
if "nopoll" in DBG: e("s_branch L_f_got")
e(f"global_load_dwordx2 v[{vT4}:{vT5}], v{vFW}, s[{sWS}:{sWS+1}] sc1")
e(f"s_add_u32 s{sMBF}, s{sMBF}, 1")
e(f"s_and_b32 s{sT0}, s{sMBF}, 3")
e(f"s_mov_b32 s{sT2}, 0")
e("s_cbranch_scc1 L_f_nodbg")
if "nodbgpoll" in DBG: e("s_branch L_f_nodbg")
e(f"global_load_dword v{vT3}, v{vT2}, s[{sDBG}:{sDBG+1}] offset:128 sc1")
e("s_waitcnt vmcnt(0)")
e(f"v_readfirstlane_b32 s{sT2}, v{vT3}")
e(f"s_lshr_b32 s{sT2}, s{sT2}, s{sT3}")
lab("L_f_nodbg")
e("s_waitcnt vmcnt(0)")
e(f"v_lshl_or_b32 v{vT4}, v{vT5}, 1, v{vT4}")
e("s_nop 0")
e(f"v_readfirstlane_b32 s{sT0}, v{vT4}")
e(f"s_or_b32 s{sT0}, s{sT0}, s{sT2}")
e(f"s_and_b32 s{sT0}, s{sT0}, 3")
e(f"s_cmp_eq_u32 s{sT0}, 3")
e("s_cbranch_scc1 L_f_got")
spin_tail("L_f_poll", a.psleep)
lab("L_f_got")
e("s_mov_b64 exec, -1")
FLD = "" if a.fld == "none" else " " + a.fld.replace("+", " ")
for cc in range(2):
    dst = vO if cc == 0 else vKF
    for i in range(8):
        off = cc * 8704 + 1024 * i
        if off % 4096 < 1024 and off >= 4096 or (cc == 1 and i == 0):
            pass
        e(f"v_add_u32 v{vT3}, {off}, v{vT0}")
        if "nofetch" not in DBG: e(f"global_load_dwordx4 v[{dst+4*i}:{dst+4*i+3}], v{vT3}, s[{sWS}:{sWS+1}]{FLD}")
    e(f"v_add_u32 v{vT3}, {cc*8704+8192}, v{vT1}")
    e(f"global_load_dwordx2 v[{vM+2*cc}:{vM+2*cc+1}], v{vT3}, s[{sWS}:{sWS+1}]{FLD}")
e(f"v_lshlrev_b32 v{vT0}, 4, v{vLANE}")
e(f"v_lshlrev_b32 v{vT1}, 3, v{vLANE}")
e(f"v_add_u32 v{vT0}, {MB}, v{vT0}")
e(f"v_add_u32 v{vT1}, {MB}, v{vT1}")
e(f"v_mov_b32 v{vT2}, {CTRL+4}")
e(f"v_mov_b32 v{vT3}, 1")
for cc in range(2):
    dst = vO if cc == 0 else vKF
    for i in range(8):
        e(f"s_waitcnt vmcnt({17 - 9*cc - i})")
        e(f"ds_write_b128 v{vT0}, v[{dst+4*i}:{dst+4*i+3}] offset:{9216*cc + 1024*i}")
    e(f"s_waitcnt vmcnt({9 - 9*cc})")
    e(f"ds_write_b64 v{vT1}, v[{vM+2*cc}:{vM+2*cc+1}] offset:{9216*cc + 8192}")
    e(f"ds_write_b32 v{vT2}, v{vT3} offset:{8*cc}")
stamp(2)

lab("L_fin")
if a.dstamps:
    e("s_mov_b64 exec, 1")
    e("s_waitcnt vmcnt(0) lgkmcnt(0)")
    stamp(3)
    e("s_waitcnt lgkmcnt(0)")
    e(f"v_mov_b32 v70, 0")
    e(f"s_cmp_gt_u32 s{sW}, 1")
    e("s_cbranch_scc1 L_end")
    e(f"s_cmp_eq_u32 s{sW}, 0")
    e("s_cbranch_scc1 L_dst0")
    e(f"v_mov_b32 v64, s{sST+6}")
    e(f"global_atomic_umax v70, v64, s[{sDBG}:{sDBG+1}] offset:4")
    e(f"s_not_b32 s{sT0}, s{sST+6}")
    e(f"v_mov_b32 v65, s{sT0}")
    e(f"global_atomic_umax v70, v65, s[{sDBG}:{sDBG+1}] offset:60")
    e("s_endpgm")
    lab("L_dst0")
    e(f"s_not_b32 s{sT0}, s{sST}")
    e(f"v_mov_b32 v64, s{sT0}")
    e(f"global_atomic_umax v70, v64, s[{sDBG}:{sDBG+1}] offset:12")
    e(f"v_mov_b32 v65, s{sST}")
    e(f"global_atomic_umax v70, v65, s[{sDBG}:{sDBG+1}] offset:20")
    e(f"v_mov_b32 v66, s{sST+2}")
    e(f"global_atomic_umax v70, v66, s[{sDBG}:{sDBG+1}] offset:24")
    e(f"s_sub_u32 s{sT0}, s{sST+2}, s{sST}")
    e(f"v_mov_b32 v67, s{sT0}")
    e(f"global_atomic_add v70, v67, s[{sDBG}:{sDBG+1}] offset:32")
    e(f"s_sub_u32 s{sT0}, s{sST+6}, s{sST+2}")
    e(f"v_mov_b32 v68, s{sT0}")
    e(f"global_atomic_add v70, v68, s[{sDBG}:{sDBG+1}] offset:40")
    e(f"v_mov_b32 v69, s{sST+6}")
    e(f"global_atomic_umax v70, v69, s[{sDBG}:{sDBG+1}] offset:52")
if a.stamps:
    e("s_mov_b64 exec, -1")
    e("s_waitcnt vmcnt(0) lgkmcnt(0)")
    stamp(3)
    e(f"s_getreg_b32 s{sT0}, hwreg(HW_REG_XCC_ID)")
    e("s_waitcnt lgkmcnt(0)")
    for i in range(8):
        e(f"v_mov_b32 v{64+i}, s{sST+i}")
    e(f"v_mov_b32 v72, s{sT0}")
    e(f"v_mov_b32 v73, 0")
    e(f"v_mov_b32 v74, s{sT}")
    e(f"v_mov_b32 v75, 0")
    e(f"s_mul_i32 s{sT0}, s2, 5")
    e(f"s_add_u32 s{sT0}, s{sT0}, s{sW}")
    e(f"s_lshl_b32 s{sT0}, s{sT0}, 6")
    e(f"v_mov_b32 v80, s{sT0}")
    e("s_mov_b64 exec, 1")
    e(f"global_store_dwordx4 v80, v[64:67], s[{sWS}:{sWS+1}]")
    e(f"global_store_dwordx4 v80, v[68:71], s[{sWS}:{sWS+1}] offset:16")
    e(f"global_store_dwordx4 v80, v[72:75], s[{sWS}:{sWS+1}] offset:32")
lab("L_end")
e("s_endpgm")
out.append('.section .rodata,"a"')
out.append(".p2align 6")
out.append(f".amdhsa_kernel {NAME}_kernel")
out.append(f"  .amdhsa_next_free_vgpr {NV}")
out.append("  .amdhsa_next_free_sgpr 96")
out.append(f"  .amdhsa_accum_offset {NV}")
out.append("  .amdhsa_group_segment_fixed_size 0")
out.append("  .amdhsa_kernarg_size 64")
out.append("  .amdhsa_user_sgpr_count 2")
out.append("  .amdhsa_user_sgpr_kernarg_segment_ptr 1")
out.append("  .amdhsa_system_sgpr_workgroup_id_x 1")
out.append("  .amdhsa_float_denorm_mode_32 3")
out.append(".end_amdhsa_kernel")
open(a.o, "w").write("\n".join(out) + "\n")
```

```python
import sys, argparse
NAME = "standalone__paged_block_table_kv_pagedattention__sampling"
HEADER = open("cdna_kernels/" + NAME + ".s.ref").read().split("; Override")[0]

ap = argparse.ArgumentParser()
ap.add_argument("-o", default="/dev/stdout")
ap.add_argument("--nt", default="nt")
ap.add_argument("--map", default="plain")
ap.add_argument("--D", type=int, default=20)
ap.add_argument("--D0", type=int, default=26)
ap.add_argument("--nslot", type=int, default=8)
ap.add_argument("--fnum", type=int, default=48)
ap.add_argument("--pollnum", type=int, default=54)
ap.add_argument("--psleep", type=int, default=24)
ap.add_argument("--UB", type=int, default=7)
ap.add_argument("--DM", type=int, default=8)
ap.add_argument("--ck", default="")
ap.add_argument("--th", default="64,192,240")
ap.add_argument("--sann", type=int, default=0)
ap.add_argument("--bk", type=int, default=0)
ap.add_argument("--xt", default="0,0,0,0,0,0,0,0")
ap.add_argument("--xmin", type=int, default=1)
ap.add_argument("--xrnd", type=int, default=2)
ap.add_argument("--nosort", action="store_true")
ap.add_argument("--nopair", action="store_true")
ap.add_argument("--nopf", action="store_true")
ap.add_argument("--notrim", action="store_true")
ap.add_argument("--ost", default="")
ap.add_argument("--fld", default="sc1")
ap.add_argument("--dbg", default="")
ap.add_argument("--stamps", action="store_true")
ap.add_argument("--sst", action="store_true")
a = ap.parse_args()
NT = "" if a.nt == "none" else " " + a.nt.replace("+", " ")
OST = "" if not a.ost else " " + a.ost.replace("+", " ")
FLD = "" if a.fld == "none" else " " + a.fld.replace("+", " ")
DBG = set(a.dbg.split(","))
D, D0, NSLOT = a.D, a.D0, a.nslot
CK = [int(x) for x in a.ck.split(",") if x]
TH = [int(x) for x in a.th.split(",")]
NW = 6 if CK else 5
XT = [int(x) for x in a.xt.split(",")]
BO = a.bk or any(XT)
sBO = 56
assert not CK or (D - 2) // 8 == (D + 1) // 8
assert 25 <= D0 <= 33
KBYTES = 4100 * 32768
SPIN = 1 << 22

RING = NSLOT * 16384
MB = RING
MBS = 4608
CTRL = MB + 2 * MBS
FREE = CTRL + 512
REC0 = FREE + 64
REC1 = REC0 + 16
DEPW = FREE + 128
CNT = FREE + 256
LA = CNT + 512
LB = LA + 512
KEYS = LB + 512
LDS = KEYS + 256

out = []
def e(s): out.append("    " + s)
def lab(s): out.append(s + ":")
def c(s): out.append("    ; " + s)

sQ, sK, sV, sBT, sCL, sOUT, sDBG, sWS = 4, 6, 8, 10, 12, 14, 16, 18
sKD, sVD = 20, 24
sB, sH, sW, sCLV = 28, 29, 30, 31
sT0, sT1, sT2, sT3 = 32, 33, 34, 35
sPC = 36
sSPIN = 38
sNB, sNTL, sNU, sT = 39, 40, 41, 42
sE = 96
sST = 64
sB0, sB1, sFB1, sTT, sLIM, sPH, sSLOT, sTM = 46, 47, 48, 49, 50, 51, 52, 53
sMK = 54
sM = 46
sCI, sLND, sMBF, sNEED, sMRG, sMT, sROLE, sQO, sPLN, sSB = 48, 49, 50, 51, 52, 56, 57, 58, 59, 60
sCST = 62
sTN, sNK, sFWN, sFB, sVR, sRD, sLIMF, sV0 = 72, 73, 74, 75, 76, 77, 78, 61
sZQ = 54
sRK, sPB, sNP, sX, sTA, sTB, sF, sWB = 80, 81, 82, 83, 84, 85, 86, 87
sMA, sMBK = 88, 90
sLO, sHI, sLBASE = 92, 93, 94
vLANE = 1
vT0, vT1, vT2, vT3, vT4, vT5 = 2, 3, 4, 5, 6, 7
vL = 8
vKOFF, vVOFF = 10, 14
vCA, vCNT, vFA, vR = 18, 19, 20, 21
vF = 22
vR4 = 24
vL2 = 44
vDP, vDA = 46, 47
vTR = 28
vKA0, vVA0, vKA, vVA = 8, 12, 16, 20
vM, vLS, vMN, vAL, vPA, vFW = 24, 25, 26, 27, 28, 29
vPL = 30
vQ = 32
vS = 48
vP = 56
vG, vPF, vFV, vN = 60, 61, 62, 63
vKF = 64
vVF = 96
vO = 128
vE = 160
NV = 168

def stamp(i, sst=False):
    if a.stamps and (i == 0 or sst == a.sst): e(f"s_memrealtime s[{sST+2*i}:{sST+2*i+1}]")

def clamp_cl(zq=None):
    c("context length: <=0 -> every key masked => uniform weights over 2048 keys (zero Q); >2048 -> 2048")
    e(f"s_cmp_lt_i32 s{sCLV}, 1")
    if zq is not None: e(f"s_cselect_b32 s{zq}, 1, 0")
    e(f"s_cselect_b32 s{sCLV}, 2048, s{sCLV}")
    e(f"s_min_i32 s{sCLV}, s{sCLV}, 2048")
def derive_cl():
    e(f"s_add_u32 s{sNB}, s{sCLV}, 15")
    e(f"s_lshr_b32 s{sNB}, s{sNB}, 4")
    derive_nb()
def derive_nb():
    e(f"s_add_u32 s{sNTL}, s{sNB}, 1")
    e(f"s_lshr_b32 s{sNTL}, s{sNTL}, 1")
    e(f"s_sub_u32 s{sNU}, s{sNTL}, 1")
    e(f"s_min_u32 s{sNU}, s{sNU}, 2")

def spin_tail(label, sleep=1):
    e(f"s_sleep {sleep}")
    e(f"s_sub_u32 s{sSPIN}, s{sSPIN}, 1")
    e(f"s_cbranch_scc0 {label}")
    e("s_endpgm")

out.append(HEADER.rstrip())
out.append(f"; @launch grid=(256,1,1) block=({64*NW},1,1) lds={LDS}")
out.append('.amdgcn_target "amdgcn-amd-amdhsa--gfx950"')
out.append(".text")
out.append(f".globl {NAME}_kernel")
out.append(".p2align 8")
out.append(f".type {NAME}_kernel,@function")
lab(f"{NAME}_kernel")
e("s_load_dwordx16 s[4:19], s[0:1], 0")
e(f"s_lshr_b32 s{sB}, s2, 3")
e(f"s_cmp_ge_u32 s{sB}, 32")
e("s_cbranch_scc1 L_end")
stamp(0)
e(f"v_lshrrev_b32 v{vT0}, 6, v0")
e(f"v_and_b32 v{vLANE}, 63, v0")
e(f"v_readfirstlane_b32 s{sW}, v{vT0}")
if not a.nopf:
    c("wave 1 pulls this kernel's code into L2")
    e(f"s_getpc_b64 s[{sPC}:{sPC+1}]")
    lab("L_pc")
    e(f"v_lshlrev_b32 v{vT2}, 7, v{vLANE}")
    e(f"v_min_u32 v{vT2}, L_end - L_pc, v{vT2}")
    e(f"s_cmp_lg_u32 s{sW}, 1")
    e("s_cbranch_scc1 L_nopf")
    e(f"global_load_dword v{vPF}, v{vT2}, s[{sPC}:{sPC+1}]")
    lab("L_nopf")
c("clear the control words and the sort counters (320 threads x 4 bytes)")
e(f"v_mov_b32 v{vT2}, 0")
e(f"v_lshlrev_b32 v{vT4}, 2, v0")
e(f"v_add_u32 v{vT4}, {CTRL}, v{vT4}")
e(f"ds_write_b32 v{vT4}, v{vT2}")
if a.map == "rot":
    e(f"s_add_u32 s{sH}, s2, s{sB}")
    e(f"s_and_b32 s{sH}, s{sH}, 7")
else:
    e(f"s_and_b32 s{sH}, s2, 7")
c("per-lane source offsets of the LDS-DMA pieces (bank swizzle applied on the source side)")
e(f"v_lshrrev_b32 v{vR}, 4, v{vLANE}")
e(f"v_and_b32 v{vT1}, 15, v{vLANE}")
e(f"s_lshl_b32 s{sT0}, s{sH}, 8")
e(f"v_lshl_add_u32 v{vT4}, v{vR}, 11, s{sT0}")
e(f"v_xor_b32 v{vT2}, v{vR}, v{vT1}")
e(f"v_lshl_add_u32 v{vKOFF}, v{vT2}, 4, v{vT4}")
for j in range(1, 4):
    e(f"v_xor_b32 v{vT3}, {64*j}, v{vKOFF}")
    e(f"v_add_u32 v{vKOFF+j}, {7168*j}, v{vT3}")
e(f"s_lshl_b32 s{sT0}, s{sB}, 9")
e(f"v_lshl_add_u32 v{vT2}, v{vLANE}, 3, s{sT0}")
e(f"s_lshl_b32 s{sT1}, s{sB}, 2")
e(f"v_and_b32 v{vT0}, 31, v{vLANE}")
e(f"v_lshlrev_b32 v{vT3}, 2, v{vT0}")
e("s_waitcnt lgkmcnt(0)")
e(f"s_load_dwordx4 s[{sE}:{sE+3}], s[{sBT}:{sBT+1}], s{sT0}")
e(f"s_load_dword s{sCLV}, s[{sCL}:{sCL+1}], s{sT1}")
e(f"global_load_dwordx2 v[{vL}:{vL+1}], v{vT2}, s[{sBT}:{sBT+1}]")
e(f"global_load_dword v{vN}, v{vT3}, s[{sCL}:{sCL+1}]")
lab("L_loads_issued")
stamp(1, True)
e("s_barrier")
e(f"s_cmp_lg_u32 s{sW}, 0")
e(f"s_mov_b32 s{sSPIN}, {SPIN}")
e("s_cbranch_scc1 L_notloader")

e("s_setprio 3")
e(f"s_mov_b32 s{sKD}, s{sK}")
e(f"s_and_b32 s{sKD+1}, s{sK+1}, 0xffff")
e(f"s_mov_b32 s{sKD+2}, {KBYTES}")
e(f"s_mov_b32 s{sKD+3}, 0x20000")
e(f"s_mov_b32 s{sVD}, s{sV}")
e(f"s_and_b32 s{sVD+1}, s{sV+1}, 0xffff")
e(f"s_mov_b32 s{sVD+2}, {KBYTES}")
e(f"s_mov_b32 s{sVD+3}, 0x20000")
e(f"v_lshlrev_b32 v{vT3}, 2, v{vR}")
e(f"v_xor_b32 v{vT3}, v{vT3}, v{vT1}")
e(f"v_lshl_add_u32 v{vVOFF}, v{vT3}, 4, v{vT4}")
for j in range(1, 4):
    e(f"v_add_u32 v{vVOFF+j}, {7168*j}, v{vVOFF}")
e("s_waitcnt lgkmcnt(0)")
stamp(2, True)
clamp_cl()
e(f"s_lshl_b32 s{sB0}, s{sE}, 15")
e(f"s_lshl_b32 s{sB1}, s{sE+1}, 15")
e(f"s_cmp_le_u32 s{sCLV}, 32")
e("s_cbranch_scc1 L_ld_pre")
stamp(1)
stamp(3, True)
def dma(j, trimmed=False):
    g, jj = j // 4, j % 4
    srd, voff = (sKD, vKOFF + jj) if g < 2 else (sVD, vVOFF + jj)
    if trimmed: voff = vTR + j
    e(f"buffer_load_dwordx4 v{voff}, s[{srd}:{srd+3}], s{sB0 + (g & 1)} offen offset:{1024*jj}{NT} lds")
c("stream tiles 0 and 1 are logical tiles 0 and 1 (when they are not the last one)")
for j in range(16):
    if j % 4 == 0:
        e(f"s_movk_i32 m0, {1024*j}")
        e("s_nop 0")
    dma(j)
e(f"s_lshl_b32 s{sB0}, s{sE+2}, 15")
e(f"s_lshl_b32 s{sB1}, s{sE+3}, 15")
e(f"s_cmp_le_u32 s{sCLV}, 64")
e("s_cbranch_scc1 L_ld_pre")
for j in range(16):
    if j % 4 == 0: e(f"s_movk_i32 m0, {16384+1024*j}")
    if 16 + j >= D0: e(f"s_waitcnt vmcnt({D0-1})")
    elif j % 4 == 0: e("s_nop 0")
    dma(j)
lab("L_ld_pre")
derive_cl()
j0 = (D - 1) % 8
e(f"s_lshl_b32 s{sSLOT}, s{sNU}, 14")
e(f"s_mov_b32 s{sT}, s{sNU}")
e(f"v_lshlrev_b32 v{vCA}, 3, v{vLANE}")
e(f"v_add_u32 v{vCA}, {CTRL}, v{vCA}")
e(f"v_mov_b32 v{vFA}, {FREE}")
e(f"v_mov_b32 v{vF}, 0")
e(f"v_mov_b32 v{vF+1}, 0")
if CK:
    e(f"v_mov_b32 v{vDP}, 0")
    e(f"v_mov_b32 v{vDA}, {DEPW}")
e(f"s_lshl_b32 s{sT0}, s{sT}, 1")
e(f"s_add_u32 s{sT0}, s{sT0}, {(j0 - D + 1)//8 - 1}")
e(f"v_mov_b32 v{vCNT}, s{sT0}")
c("the last logical tile: rows past the context are not fetched")
e(f"s_lshl_b32 s{sT0}, s{sNTL}, 5")
e(f"s_sub_u32 s{sT0}, s{sCLV}, s{sT0}")
e(f"s_add_u32 s{sT0}, s{sT0}, 32")
e(f"v_bfrev_b32 v{vT5}, 1")
e(f"v_sub_u32 v{vT1}, s{sT0}, v{vR}")
if a.notrim: e(f"v_mov_b32 v{vT1}, 64")
for k in range(8):
    e(f"v_cmp_lt_i32 s[{80+2*k}:{81+2*k}], {4*k}, v{vT1}")
for k in range(8):
    e(f"v_cndmask_b32 v{vTR+k}, v{vT5}, v{vKOFF+k%4}, s[{80+2*k}:{81+2*k}]")
for k in range(8):
    e(f"v_cndmask_b32 v{vTR+8+k}, v{vT5}, v{vVOFF+k%4}, s[{80+2*k}:{81+2*k}]")
e(f"s_mov_b32 s{sPH}, 1")
lab("L_ld_plan")
e(f"v_mov_b32 v{vT1}, {REC1}")
e(f"ds_read_b128 v[{vR4}:{vR4+3}], v{vT1}")
e(f"ds_read_b32 v{vT2}, v{vT1} offset:16")
e("s_waitcnt lgkmcnt(0)")
e(f"v_or_b32 v{vT2}, s{sPH}, v{vT2}")
e(f"v_and_b32 v{vT2}, v{vT2}, v{vR4+3}")
e(f"v_readfirstlane_b32 s{sMK}, v{vR4}")
e(f"v_readfirstlane_b32 s{sT0}, v{vT2}")
e(f"v_readfirstlane_b32 s{sMK+1}, v{vR4+1}")
e(f"v_readfirstlane_b32 s{sTT}, v{vR4+2}")
e(f"v_readfirstlane_b32 s{sT1}, v{vR4+3}")
e(f"s_cmp_eq_u32 s{sT0}, 0")
e("s_cbranch_scc1 L_ld_noplan")
e(f"v_mbcnt_lo_u32_b32 v{vT0}, s{sMK}, 0")
e(f"v_mbcnt_hi_u32_b32 v{vT0}, s{sMK+1}, v{vT0}")
e(f"v_sub_u32 v{vT1}, v{vLANE}, v{vT0}")
e(f"v_subrev_u32 v{vT1}, s{sNU}, v{vT1}")
e(f"v_lshlrev_b32 v{vT0}, 3, v{vT0}")
e(f"v_lshlrev_b32 v{vT1}, 3, v{vT1}")
e(f"v_add_u32 v{vT0}, {LB}, v{vT0}")
e(f"v_add_u32 v{vT1}, {LA}, v{vT1}")
e(f"v_cndmask_b32 v{vT0}, v{vT1}, v{vT0}, s[{sMK}:{sMK+1}]")
if "rowwait" not in DBG: pass
e(f"ds_read_b64 v[{vL2}:{vL2+1}], v{vT0}")
c("first pass: run only up to the first donated tile (its list may not be sorted yet)")
e(f"s_ff1_i32_b64 s{sFB1}, s[{sMK}:{sMK+1}]")
e(f"s_lshr_b32 s{sT1}, s{sT1}, 8")
if BO:
    e(f"s_ashr_i32 s{sT2}, s{sTT}, 16")
    e(f"s_and_b32 s{sTT}, s{sTT}, 0xffff")
e(f"s_cmp_eq_u32 s{sPH}, 0")
if BO: e(f"s_cselect_b32 s{sBO}, s{sBO}, s{sT2}")
e(f"s_cselect_b32 s{sFB1}, -1, s{sFB1}")
e(f"s_cselect_b32 s{sTM}, s{sTM}, s{sT1}")
if a.stamps and not a.sst:
    e("s_cbranch_scc1 L_nost2")
    stamp(2)
    lab("L_nost2")
e(f"s_mov_b32 s{sPH}, 0")
e("s_waitcnt lgkmcnt(0)")
lab("L_ld_go")
e(f"s_min_u32 s{sLIM}, s{sTT}, s{sFB1}")
e(f"s_min_u32 s{sLIM}, s{sLIM}, s{sTM}")
e(f"s_cmp_ge_u32 s{sT}, s{sLIM}")
e("s_cbranch_scc1 L_ld_lim")
def tile_head(name):
    e(f"v_readlane_b32 s{sB0}, v{vL2}, s{sT}")
    e(f"v_readlane_b32 s{sB1}, v{vL2+1}, s{sT}")
    e(f"s_sub_u32 s{sT1}, s{sT}, {NSLOT-1}")
    lab(name + "_chk")
    e("s_waitcnt lgkmcnt(0)")
    e(f"v_min_i32 v{vT0}, v{vF}, v{vF+1}")
    e(f"s_add_u32 s{sT2}, s{sSLOT}, 16384")
    e(f"v_readfirstlane_b32 s{sT0}, v{vT0}")
    e(f"s_and_b32 s{sT2}, s{sT2}, {RING-1}")
    e(f"s_cmp_ge_i32 s{sT0}, s{sT1}")
    e(f"s_cbranch_scc0 {name}_wait")
def tile_body(depth, trimmed, skip_first):
    for j in range(16):
        if j % 4 == 0: e(f"s_add_u32 m0, s{sSLOT}, {1024*j}")
        e(f"s_waitcnt vmcnt({depth-1})")
        dma(j, trimmed)
        if j % 8 == (depth - 1) % 8 and not (skip_first and j < 8):
            e(f"v_add_u32 v{vCNT}, 1, v{vCNT}")
            e(f"ds_write_b32 v{vCA}, v{vCNT}")
        if j == 13:
            c("prefetch the FREE words of the next slot")
            e(f"s_lshr_b32 s{sT0}, s{sT2}, 11")
            e(f"s_add_u32 s{sT0}, s{sT0}, {FREE}")
            e(f"v_mov_b32 v{vFA}, s{sT0}")
            e(f"ds_read_b64 v[{vF}:{vF+1}], v{vFA}")
            if CK: e(f"ds_read_b32 v{vDP}, v{vDA}")
    e(f"s_mov_b32 s{sSLOT}, s{sT2}")
    e(f"s_add_u32 s{sT}, s{sT}, 1")
def tile_wait(name):
    lab(name + "_wait")
    e(f"ds_read_b64 v[{vF}:{vF+1}], v{vFA}")
    spin_tail(name + "_chk")
out.append(".p2align 3")
lab("L_ld")
tile_head("L_ld")
if CK:
    e(f"v_readfirstlane_b32 s{sT0}, v{vDP}")
    e(f"s_cmp_lg_u32 s{sT0}, 0")
    e("s_cbranch_scc1 L_ld_var")
if BO:
    e(f"s_cmp_lg_u32 s{sBO}, 0")
    e("s_cbranch_scc1 L_ld_bo")
tile_body(D, False, False)
lab("L_ld_next")
e(f"s_cmp_lt_u32 s{sT}, s{sLIM}")
e("s_cbranch_scc1 L_ld")
lab("L_ld_lim")
e(f"s_cmp_eq_u32 s{sT}, s{sFB1}")
e("s_cbranch_scc1 L_ld_plan")
e(f"s_cmp_lg_u32 s{sT}, s{sTM}")
e("s_cbranch_scc1 L_ld_drain")
e(f"s_mov_b32 s{sTM}, -1")
tile_head("L_ldm")
tile_body(D + a.DM, True, a.DM == 8)
if a.DM:
    e(f"v_add_u32 v{vCNT}, 1, v{vCNT}")
e(f"s_cmp_lt_u32 s{sT}, s{sTT}")
e("s_cbranch_scc1 L_ld_go")
if a.DM:
    e(f"s_waitcnt vmcnt({((D - 1) // 8) * 8 + 8})")
    e(f"ds_write_b32 v{vCA}, v{vCNT}")
lab("L_ld_drain")
for r in range(((D - 1) // 8) * 8, -1, -8):
    e(f"v_add_u32 v{vCNT}, 1, v{vCNT}")
    e(f"s_waitcnt vmcnt({r})")
    e(f"ds_write_b32 v{vCA}, v{vCNT}")
e("s_branch L_fin" if a.stamps else "s_endpgm")
tile_wait("L_ld")
tile_wait("L_ldm")
if BO:
    lab("L_ld_bo")
    e(f"s_cmp_gt_i32 s{sBO}, 0")
    e("s_cbranch_scc1 L_ld_bp")
    e(f"s_add_u32 s{sBO}, s{sBO}, 1")
    tile_body(D - 1, False, False)
    e("s_branch L_ld_next")
    lab("L_ld_bp")
    e(f"s_sub_u32 s{sBO}, s{sBO}, 1")
    tile_body(D + 1, False, False)
    e("s_branch L_ld_next")
if CK:
    lab("L_ld_var")
    e(f"s_cmp_eq_u32 s{sT0}, 2")
    e("s_cbranch_scc1 L_ld_v2")
    e(f"s_cmp_eq_u32 s{sT0}, 3")
    e("s_cbranch_scc1 L_ld_v3")
    tile_body(D - 1, False, False)
    e("s_branch L_ld_next")
    lab("L_ld_v2")
    tile_body(D + 1, False, False)
    e("s_branch L_ld_next")
    lab("L_ld_v3")
    tile_body(D + 2, False, False)
    e("s_branch L_ld_next")
lab("L_ld_noplan")
spin_tail("L_ld_plan")

lab("L_notloader")
e(f"s_cmp_ge_u32 s{sW}, 3")
e("s_cbranch_scc1 L_planner")
e(f"s_sub_u32 s{sCI}, s{sW}, 1")
e(f"s_mov_b32 s{sROLE}, 0")
e(f"s_mov_b32 s{sPLN}, 0")
e(f"s_mov_b32 s{sMRG}, 0")
def rows_off(sb):
    e(f"s_lshl_b32 s{sQO}, s{sb}, 16")
    e(f"s_lshl_b32 s{sT0}, s{sH}, 13")
    e(f"s_add_u32 s{sQO}, s{sQO}, s{sT0}")
    e(f"s_lshl_b32 s{sT0}, s{sCI}, 12")
    e(f"s_add_u32 s{sQO}, s{sQO}, s{sT0}")
    e(f"v_and_b32 v{vT0}, 15, v{vLANE}")
    e(f"v_lshrrev_b32 v{vG}, 4, v{vLANE}")
    e(f"v_lshl_add_u32 v{vT4}, v{vT0}, 8, s{sQO}")
    e(f"v_lshl_add_u32 v{vT4}, v{vG}, 4, v{vT4}")
def load_q(sb):
    rows_off(sb)
    for s in range(4):
        e(f"global_load_dwordx4 v[{vQ+4*s}:{vQ+4*s+3}], v{vT4}, s[{sQ}:{sQ+1}] offset:{64*s}")
load_q(sB)
e("s_waitcnt lgkmcnt(0)")
clamp_cl(zq=sT3)
derive_cl()
c("valid keys of the last logical tile")
e(f"s_lshl_b32 s{sV0}, s{sNTL}, 5")
e(f"s_sub_u32 s{sV0}, s{sCLV}, s{sV0}")
e(f"s_add_u32 s{sV0}, s{sV0}, 32")
e(f"s_mov_b32 s{sMT}, 0")
e(f"s_bfm_b64 s[{sM}:{sM+1}], s{sNU}, 0")
lab("L_csetup")
e("s_waitcnt vmcnt(4)")
e(f"v_and_b32 v{vT0}, 15, v{vLANE}")
e(f"v_xor_b32 v{vT1}, v{vG}, v{vT0}")
e(f"v_lshlrev_b32 v{vT2}, 8, v{vT0}")
e(f"v_lshl_add_u32 v{vKA0}, v{vT1}, 4, v{vT2}")
for s in range(1, 4):
    e(f"v_xor_b32 v{vKA0+s}, {64*s}, v{vKA0}")
e(f"v_bfe_u32 v{vT0}, v{vLANE}, 2, 2")
e(f"v_lshl_add_u32 v{vT1}, v{vG}, 2, v{vT0}")
e(f"v_lshlrev_b32 v{vT1}, 8, v{vT1}")
e(f"v_and_b32 v{vT2}, 3, v{vLANE}")
e(f"v_lshl_add_u32 v{vT1}, v{vT2}, 4, v{vT1}")
e(f"v_add_u32 v{vT1}, 8192, v{vT1}")
e(f"v_lshl_add_u32 v{vVA0}, v{vT0}, 6, v{vT1}")
for j in range(1, 4):
    e(f"v_xor_b32 v{vVA0+j}, {64*j}, v{vVA0}")
e(f"s_lshl_b32 s{sT0}, s{sW}, 3")
e(f"s_add_u32 s{sT0}, s{sT0}, {CTRL-8}")
e(f"v_mov_b32 v{vPA}, s{sT0}")
e(f"v_mov_b32 v{vM}, 0xff800000")
e(f"v_mov_b32 v{vLS}, 0")
for r in range(32): e(f"v_mov_b32 v{vO+r}, 0")
e(f"s_mov_b32 s{sCST}, 0x3e0293ee")
e(f"s_mov_b32 s{sCST+1}, 0x3e0293ee")
e(f"s_mov_b32 s{sLIMF}, 0x43800000")
e(f"s_lshl_b32 s{sFB}, s{sCI}, 2")
e(f"s_add_u32 s{sFB}, s{sFB}, {FREE}")
e("s_waitcnt vmcnt(0)")
e(f"s_cmp_eq_u32 s{sT3}, 0")
e("s_cbranch_scc1 L_c_first")
for r in range(16): e(f"v_mov_b32 v{vQ+r}, 0")

def poll(label, need):
    lab(label)
    e(f"ds_read_b64 v[{vPL}:{vPL+1}], v{vPA}")
    e(f"s_sub_u32 s{sSPIN}, s{sSPIN}, 1")
    e("s_cbranch_scc1 L_end")
    e("s_waitcnt lgkmcnt(0)")
    e(f"v_readfirstlane_b32 s{sLND}, v{vPL}")
    e(f"v_readfirstlane_b32 s{sMBF}, v{vPL+1}")
    e(f"s_cmp_ge_i32 s{sLND}, s{need}")
    e(f"s_cbranch_scc0 {label}")
VR = []
for j in range(4):
    for ee in range(2):
        for blk in range(2):
            r = vVF + (2 * j + ee) * 4 + 2 * blk
            VR.append(f"ds_read_b64_tr_b16 v[{r}:{r+1}], v{vVA+j} offset:{8*ee + 4096*blk}")
KR, QK = [], []
for blk in range(2):
    for st in range(4):
        r = vKF + (blk * 4 + st) * 4
        KR.append(f"ds_read_b128 v[{r}:{r+3}], v{vKA+st} offset:{4096*blk}")
        cc = "0" if st == 0 else f"v[{vS+4*blk}:{vS+4*blk+3}]"
        QK.append(f"v_mfma_f32_16x16x32_bf16 v[{vS+4*blk}:{vS+4*blk+3}], v[{r}:{r+3}], v[{vQ+4*st}:{vQ+4*st+3}], {cc}")
PV = [f"v_mfma_f32_16x16x32_bf16 v[{vO+4*dt}:{vO+4*dt+3}], v[{vVF+4*dt}:{vVF+4*dt+3}], v[{vP}:{vP+3}], v[{vO+4*dt}:{vO+4*dt+3}]" for dt in range(8)]
NX = [f"s_ff1_i32_b64 s{sTN}, s[{sM}:{sM+1}]",
      f"s_bitset0_b64 s[{sM}:{sM+1}], s{sTN}",
      f"s_lshl1_add_u32 s{sNK}, s{sTN}, 1",
      f"s_bitset0_b32 s{sNK}, 31",
      f"s_and_b32 s{sT0}, s{sTN}, {NSLOT-1}",
      f"s_lshl_b32 s{sSB}, s{sT0}, 14",
      f"s_lshl3_add_u32 s{sFWN}, s{sT0}, s{sFB}",
      f"s_mov_b32 s{sRD}, 0"]
KA = [f"v_add_u32 v{vKA+i}, s{sSB}, v{vKA0+i}" for i in range(4)]
ADV = [f"v_add_u32 v{vVA+i}, s{sSB}, v{vVA0+i}" for i in range(4)] + [
      f"v_mov_b32 v{vFW}, s{sFWN}",
      f"s_add_u32 s{sNEED}, s{sNK}, 1",
      f"s_add_u32 s{sT}, s{sTN}, 1",
      f"v_mov_b32 v{vFV}, s{sT}"]
def scale_o(reg):
    for r in range(0, 32, 2):
        sel = "op_sel:[0,1] op_sel_hi:[1,1]" if reg & 1 else "op_sel_hi:[1,0]"
        p = reg & ~1
        e(f"v_pk_mul_f32 v[{vO+r}:{vO+r+1}], v[{vO+r}:{vO+r+1}], v[{p}:{p+1}] {sel}")

lab("L_c_first")
for x in NX + KA: e(x)
lab("L_c_nextk")
e(f"s_cmp_lt_i32 s{sTN}, 0")
e("s_cbranch_scc1 L_c_empty")
for x in ADV: e(x)
poll("L_c_pollk", sNK)
if a.sst:
    for i, tt in ((1, 1), (2, 3), (3, 7)):
        e(f"s_cmp_lg_u32 s{sT}, {tt}")
        e(f"s_cbranch_scc1 L_sst{i}")
        stamp(i, True)
        lab(f"L_sst{i}")
for x in KR: e(x)
out.append(".p2align 3")
lab("L_c_top")
e(f"s_and_b32 s{sT0}, s{sMBF}, s{sMRG}")
e("s_cbranch_scc1 L_c_merge")
lab("L_c_top2")
e(f"s_cmp_ge_i32 s{sLND}, s{sNEED}")
e(f"s_cselect_b32 s{sVR}, 1, 0")
e("s_waitcnt lgkmcnt(0)")
e("s_cbranch_scc0 L_c_qknov")
for i in range(8):
    e(QK[i]); e(VR[2*i]); e(VR[2*i+1]); e(NX[i])
lab("L_c_sm")
e(f"ds_read_b64 v[{vPL}:{vPL+1}], v{vPA}")
e(f"s_cmp_eq_u32 s{sT}, s{sMT}")
e("s_cbranch_scc1 L_c_mask")
lab("L_c_exp")
for hb in range(2):
    for r in (4*hb, 4*hb+2):
        e(f"v_pk_fma_f32 v[{vE+r}:{vE+r+1}], v[{vS+r}:{vS+r+1}], s[{sCST}:{sCST+1}], v[{vM}:{vM+1}] op_sel_hi:[1,1,0] neg_lo:[0,0,1] neg_hi:[0,0,1]")
    for r in range(4*hb, 4*hb+4):
        e(f"v_exp_f32 v{vE+r}, v{vE+r}")
e(KA[0])
e(f"v_pk_add_f32 v[{vT0}:{vT1}], v[{vE}:{vE+1}], v[{vE+2}:{vE+3}]")
e(f"v_pk_add_f32 v[{vT2}:{vT3}], v[{vE+4}:{vE+5}], v[{vE+6}:{vE+7}]")
e(f"v_cvt_pk_bf16_f32 v{vP}, v{vE}, v{vE+1}")
e(f"v_pk_add_f32 v[{vT0}:{vT1}], v[{vT0}:{vT1}], v[{vT2}:{vT3}]")
e(f"v_cvt_pk_bf16_f32 v{vP+1}, v{vE+2}, v{vE+3}")
e(f"v_add_f32 v{vT0}, v{vT0}, v{vT1}")
c("the kept reference max is safe only while every weight stays <= 256; otherwise take the true max")
e(f"v_cmp_nge_f32 vcc, s{sLIMF}, v{vT0}")
e(f"v_cvt_pk_bf16_f32 v{vP+2}, v{vE+4}, v{vE+5}")
e(f"v_cvt_pk_bf16_f32 v{vP+3}, v{vE+6}, v{vE+7}")
for x in KA[1:]: e(x)
e("s_cbranch_vccnz L_c_slow")
lab("L_c_smdone")
e(f"v_add_f32 v{vLS}, v{vLS}, v{vT0}")
e(f"s_cmp_eq_u32 s{sVR}, 0")
e("s_cbranch_scc1 L_c_pollv")
e("s_waitcnt lgkmcnt(0)")
e(f"v_readfirstlane_b32 s{sLND}, v{vPL}")
e(f"v_readfirstlane_b32 s{sMBF}, v{vPL+1}")
e(f"s_cmp_ge_i32 s{sLND}, s{sNK}")
e("s_cbranch_scc0 L_c_pv")
e(f"ds_write_b32 v{vFW}, v{vFV}")
for i in range(8):
    e(PV[i])
    for x in ((KR[2*i], KR[2*i+1]) if i < 4 else (ADV[2*i-8], ADV[2*i-7])): e(x)
e("s_branch L_c_top")

c("V had not landed when QK was issued")
poll("L_c_pollv", sNEED)
for x in VR: e(x)
lab("L_c_pv")
for i in range(8):
    e(f"s_waitcnt lgkmcnt({14-2*i})")
    if i == 7: e(f"ds_write_b32 v{vFW}, v{vFV}")
    e(PV[i])
e(f"s_cmp_ge_i32 s{sTN}, 0")
e("s_cbranch_scc1 L_c_nextk")
lab("L_c_empty")
e(f"s_cmp_eq_u32 s{sPLN}, 0")
e("s_cbranch_scc1 L_c_noplan")
stamp(2)
e(f"s_cmp_lg_u32 s{sMRG}, 0")
e("s_cbranch_scc1 L_c_mwait0")
lab("L_c_store")
e(f"v_mov_b32 v{vT0}, v{vLS}")
e(f"v_and_b32 v{vT2}, 15, v{vLANE}")
e(f"v_lshl_add_u32 v{vT2}, v{vT2}, 8, s{sQO}")
e(f"v_permlane32_swap_b32 v{vLS}, v{vT0}")
e("s_nop 0")
e(f"v_add_f32 v{vLS}, v{vLS}, v{vT0}")
e(f"v_mov_b32 v{vT0}, v{vLS}")
e(f"v_lshl_add_u32 v{vT2}, v{vG}, 4, v{vT2}")
e("s_nop 0")
e(f"v_permlane16_swap_b32 v{vLS}, v{vT0}")
e("s_nop 0")
e(f"v_add_f32 v{vLS}, v{vLS}, v{vT0}")
e(f"v_rcp_f32 v{vMN}, v{vLS}")
e(f"s_cmp_lg_u32 s{sROLE}, 0")
scale_o(vMN)
for r in range(16):
    e(f"v_cvt_pk_bf16_f32 v{vKF+r}, v{vO+2*r}, v{vO+2*r+1}")
e("s_cbranch_scc1 L_publish")
def out_stores(fl):
    for j in range(4):
        e(f"global_store_dwordx4 v{vT2}, v[{vKF+4*j}:{vKF+4*j+3}], s[{sOUT}:{sOUT+1}] offset:{64*j}{fl}")
out_stores(OST)
e("s_branch L_fin" if a.stamps else "s_endpgm")

lab("L_c_qknov")
for i in range(8):
    e(QK[i]); e(NX[i])
e("s_branch L_c_sm")

lab("L_c_mask")
e(f"v_lshlrev_b32 v{vT0}, 2, v{vG}")
e(f"v_sub_u32 v{vT0}, s{sV0}, v{vT0}")
e(f"v_mov_b32 v{vT1}, 0xff800000")
for r in range(8):
    e(f"v_cmp_lt_i32 s[{80+2*r}:{81+2*r}], {16*(r//4)+r%4}, v{vT0}")
for r in range(8):
    e(f"v_cndmask_b32 v{vS+r}, v{vT1}, v{vS+r}, s[{80+2*r}:{81+2*r}]")
e("s_branch L_c_exp")

c("raise the reference to the true running max and rescale")
lab("L_c_slow")
e(f"s_cmp_lg_u32 s{sRD}, 0")
e("s_cbranch_scc1 L_c_smdone")
e(f"s_mov_b32 s{sRD}, 1")
e(f"v_max3_f32 v{vT0}, v{vS}, v{vS+1}, v{vS+2}")
e(f"v_max3_f32 v{vT1}, v{vS+3}, v{vS+4}, v{vS+5}")
e(f"v_max3_f32 v{vT0}, v{vT0}, v{vS+6}, v{vS+7}")
e(f"v_max_f32 v{vT0}, v{vT0}, v{vT1}")
e(f"v_mov_b32 v{vT1}, v{vT0}")
e("s_nop 1")
e(f"v_permlane32_swap_b32 v{vT0}, v{vT1}")
e("s_nop 0")
e(f"v_max_f32 v{vT0}, v{vT0}, v{vT1}")
e(f"v_mov_b32 v{vT1}, v{vT0}")
e("s_nop 1")
e(f"v_permlane16_swap_b32 v{vT0}, v{vT1}")
e("s_nop 0")
e(f"v_max_f32 v{vT0}, v{vT0}, v{vT1}")
e(f"v_mul_f32 v{vT0}, s{sCST}, v{vT0}")
e(f"v_max_f32 v{vMN}, v{vM}, v{vT0}")
e(f"v_sub_f32 v{vAL}, v{vM}, v{vMN}")
e(f"v_exp_f32 v{vAL}, v{vAL}")
e(f"v_mov_b32 v{vM}, v{vMN}")
e(f"v_mul_f32 v{vLS}, v{vLS}, v{vAL}")
scale_o(vAL)
e("s_branch L_c_exp")

lab("L_c_merge")
e(f"s_mul_i32 s{sT0}, s{sCI}, {MBS}")
e(f"s_add_u32 s{sT0}, s{sT0}, {MB}")
e(f"v_lshl_add_u32 v{vT0}, v{vLANE}, 4, s{sT0}")
e(f"v_lshl_add_u32 v{vT1}, v{vLANE}, 3, s{sT0}")
e("s_waitcnt lgkmcnt(0)")
e(f"ds_read_b64 v[{vT4}:{vT5}], v{vT1} offset:4096")
for i in range(4):
    e(f"ds_read_b128 v[{vVF+4*i}:{vVF+4*i+3}], v{vT0} offset:{1024*i}")
e(f"s_mov_b32 s{sMRG}, 0")
e("s_waitcnt lgkmcnt(4)")
e(f"v_max_f32 v{vMN}, v{vM}, v{vT4}")
e(f"v_sub_f32 v{vAL}, v{vM}, v{vMN}")
e(f"v_sub_f32 v{vT4}, v{vT4}, v{vMN}")
e(f"v_exp_f32 v{vAL}, v{vAL}")
e(f"v_exp_f32 v{vT4}, v{vT4}")
e(f"v_mov_b32 v{vM}, v{vMN}")
e(f"v_mul_f32 v{vLS}, v{vLS}, v{vAL}")
e(f"v_mul_f32 v{vT4}, v{vT4}, v{vT5}")
e(f"v_fmac_f32 v{vLS}, 0x3e800000, v{vT4}")
scale_o(vAL)
e("s_waitcnt lgkmcnt(0)")
for r in range(16):
    t = vVF + 16 + 2 * (r % 4)
    e(f"v_lshlrev_b32 v{t}, 16, v{vVF+r}")
    e(f"v_and_b32 v{t+1}, 0xffff0000, v{vVF+r}")
    e(f"v_pk_fma_f32 v[{vO+2*r}:{vO+2*r+1}], v[{t}:{t+1}], v[{vT4}:{vT4+1}], v[{vO+2*r}:{vO+2*r+1}] op_sel_hi:[1,0,1]")
e(f"s_cmp_eq_u32 s{sPLN}, 2")
e("s_cbranch_scc0 L_c_top2")
e("s_branch L_c_store")

lab("L_c_noplan")
e(f"s_mov_b32 s{sPLN}, 1")
e(f"v_mov_b32 v{vT1}, {REC0}")
lab("L_c_plan")
e(f"ds_read_b128 v[{vT2}:{vT5}], v{vT1}")
e("s_waitcnt lgkmcnt(0)")
e(f"v_readfirstlane_b32 s{sT0}, v{vT5}")
e(f"v_readfirstlane_b32 s{sM}, v{vT2}")
e(f"v_readfirstlane_b32 s{sM+1}, v{vT3}")
e(f"v_readfirstlane_b32 s{sMRG}, v{vT4}")
e(f"s_lshr_b32 s{sMT}, s{sT0}, 8")
e(f"s_add_u32 s{sMT}, s{sMT}, 1")
e(f"s_cmp_lg_u32 s{sT0}, 0")
e("s_cbranch_scc1 L_c_first")
spin_tail("L_c_plan")
lab("L_c_mwait0")
e(f"s_mov_b32 s{sPLN}, 2")
lab("L_c_mwait")
e(f"ds_read_b64 v[{vPL}:{vPL+1}], v{vPA}")
e("s_waitcnt lgkmcnt(0)")
e(f"v_readfirstlane_b32 s{sMBF}, v{vPL+1}")
e(f"s_cmp_lg_u32 s{sMBF}, 0")
e("s_cbranch_scc1 L_c_merge")
spin_tail("L_c_mwait")

def ws_base(sb):
    e(f"s_lshl3_add_u32 s{sT0}, s{sb}, s{sH}")
    e(f"s_lshl_b32 s{sT0}, s{sT0}, 9")
    if a.stamps: e(f"s_add_u32 s{sT0}, s{sT0}, 0x100000")

lab("L_publish")
e(f"s_lshl_b32 s{sT2}, s{sPB}, 2")
e(f"v_mov_b32 v{vT3}, s{sT2}")
if a.sann: e(f"s_load_dword s{sNP}, s[{sDBG}:{sDBG+1}], s{sT2} glc")
else: e(f"global_load_dword v{vT4}, v{vT3}, s[{sDBG}:{sDBG+1}] sc1")
ws_base(sPB)
e(f"s_lshl2_add_u32 s{sT1}, s{sCI}, s{sT0}")
e(f"v_mov_b32 v{vT5}, s{sT1}")
e(f"s_lshl_b32 s{sT1}, s{sCI}, 7")
e(f"s_add_u32 s{sT0}, s{sT0}, s{sT1}")
e(f"v_lshl_add_u32 v{vT1}, v{vLANE}, 3, s{sT0}")
e(f"s_getreg_b32 s{sT2}, hwreg(HW_REG_XCC_ID, 0, 4)")
e(f"s_or_b32 s{sT2}, s{sT2}, 8")
e(f"s_lshl_b32 s{sT3}, s{sH}, 2")
if a.sann:
    e("s_waitcnt lgkmcnt(0)")
    e(f"s_lshr_b32 s{sT1}, s{sNP}, s{sT3}")
else:
    e("s_waitcnt vmcnt(0)")
    e(f"v_readfirstlane_b32 s{sT1}, v{vT4}")
    e(f"s_lshr_b32 s{sT1}, s{sT1}, s{sT3}")
e(f"s_and_b32 s{sT1}, s{sT1}, 15")
e(f"s_cmp_eq_u32 s{sT1}, s{sT2}")
if "slow" in DBG: e("s_cmp_eq_u32 0, 1")
e("s_cbranch_scc0 L_pub_slow")
c("the receiver runs on this die and has cleared its flag words: hand over inside the shared L2")
out_stores("")
e("s_mov_b64 exec, 0xffff")
e(f"global_store_dwordx2 v{vT1}, v[{vM}:{vM+1}], s[{sWS}:{sWS+1}]")
e(f"v_mov_b32 v{vT4}, 1")
e("s_waitcnt vmcnt(0)")
e("s_mov_b64 exec, 1")
e(f"global_store_dword v{vT5}, v{vT4}, s[{sWS}:{sWS+1}] offset:256")
stamp(2)
e("s_branch L_fin")
lab("L_pub_slow")
out_stores(" sc1")
e("s_mov_b64 exec, 0xffff")
e(f"global_store_dwordx2 v{vT1}, v[{vM}:{vM+1}], s[{sWS}:{sWS+1}] sc1")
e(f"s_lshl1_add_u32 s{sT1}, s{sH}, s{sCI}")
e(f"s_lshl_b32 s{sT1}, 1, s{sT1}")
e(f"v_mov_b32 v{vT4}, s{sT1}")
e("s_waitcnt vmcnt(0)")
e("s_mov_b64 exec, 1")
e(f"global_atomic_add v{vT3}, v{vT4}, s[{sDBG}:{sDBG+1}] offset:128")
stamp(2)
e("s_branch L_fin")

vRW = vL
vKEY, vRK, vCL = 19, 20, 21
lab("L_planner")
if CK:
    e(f"s_cmp_eq_u32 s{sW}, 5")
    e("s_cbranch_scc1 L_ctl")
e(f"s_sub_u32 s{sCI}, s{sW}, 3")
e(f"s_lshl_b32 s{sSB}, s{sCI}, 8")
e(f"s_add_u32 s{sSB}, s{sSB}, {CNT}")
e(f"v_lshl_add_u32 v{vPA}, v{vLANE}, 2, s{sSB}")
e(f"s_lshl_b32 s{sT2}, s{sCI}, 7")
e(f"s_add_u32 s{sT2}, s{sT2}, {KEYS}")
e(f"v_add_u32 v{vT3}, s{sT2}, v{vT3}")
e(f"v_lshrrev_b32 v{vT4}, 5, v{vLANE}")
e(f"v_lshl_add_u32 v{vT4}, v{vT4}, 6, s{sT2}")
e(f"v_mov_b32 v{vT5}, 2048")
e("s_waitcnt vmcnt(0)")
e(f"v_cmp_gt_i32 s[{sZQ}:{sZQ+1}], 1, v{vN}")
e(f"v_min_i32 v{vN}, v{vN}, v{vT5}")
e("s_nop 0")
e(f"v_cndmask_b32 v{vN}, v{vN}, v{vT5}, s[{sZQ}:{sZQ+1}]")
if BO: e(f"v_mov_b32 v{vCL}, v{vN}")
e(f"v_add_u32 v{vN}, 15, v{vN}")
e(f"v_lshrrev_b32 v{vN}, 4, v{vN}")
e(f"v_lshl_or_b32 v{vKEY}, v{vN}, 5, v{vT0}")
e(f"ds_write_b32 v{vT3}, v{vKEY}")
for i in range(4):
    e(f"ds_read_b128 v[{vKF+4*i}:{vKF+4*i+3}], v{vT4} offset:{16*i}")
e(f"v_mov_b32 v{vRK}, 0")
e(f"v_readlane_b32 s{sNB}, v{vN}, s{sB}")
if BO:
    e(f"v_readlane_b32 s{sBO}, v{vCL}, s{sB}")
    for sh in (1, 2, 4, 8):
        e(f"v_add_u32_dpp v{vCL}, v{vCL}, v{vCL} row_shr:{sh} row_mask:0xf bank_mask:0xf bound_ctrl:0")
        e("s_nop 1")
    e(f"v_add_u32_dpp v{vCL}, v{vCL}, v{vCL} row_bcast:15 row_mask:0xa bank_mask:0xf")
    e("s_nop 0")
    e(f"v_readlane_b32 s{sBO+1}, v{vCL}, 31")
e("s_waitcnt lgkmcnt(0)")
c("rank of every batch by block count; the batch of rank 31-r is the partner")
for i in range(16):
    e(f"v_sub_u32 v{vKF+i}, v{vKF+i}, v{vKEY}")
for i in range(16):
    e(f"v_alignbit_b32 v{vRK}, v{vRK}, v{vKF+i}, 31")
e(f"v_bcnt_u32_b32 v{vRK}, v{vRK}, 0")
e(f"v_mov_b32 v{vT2}, v{vRK}")
derive_nb()
e(f"v_permlane32_swap_b32 v{vRK}, v{vT2}")
e("s_nop 0")
e(f"v_add_u32 v{vRK}, v{vRK}, v{vT2}")
e("s_nop 0")
e(f"v_readlane_b32 s{sRK}, v{vRK}, s{sB}")
e(f"s_sub_u32 s{sT0}, 31, s{sRK}")
e(f"v_cmp_eq_u32 vcc, s{sT0}, v{vRK}")
e(f"s_ff1_i32_b32 s{sPB}, vcc_lo")
e(f"v_readlane_b32 s{sNP}, v{vN}, s{sPB}")
e(f"s_max_u32 s{sT0}, s{sNB}, s{sNP}")
e(f"s_min_u32 s{sT1}, s{sNB}, s{sNP}")
e(f"s_sub_u32 s{sX}, s{sT0}, s{sT1}")
e(f"s_add_u32 s{sX}, s{sX}, {a.xrnd}")
e(f"s_lshr_b32 s{sX}, s{sX}, 2")
e(f"s_cmp_lt_u32 s{sT0}, 16")
e(f"s_cselect_b32 s{sX}, 0, s{sX}")
if a.xmin > 1:
    e(f"s_cmp_lt_u32 s{sX}, {a.xmin}")
    e(f"s_cselect_b32 s{sX}, 0, s{sX}")
if a.nopair: e(f"s_mov_b32 s{sX}, 0")
e(f"s_cmp_ge_u32 s{sRK}, 16")
e(f"s_cselect_b32 s{sLO}, s{sX}, 0")
e(f"s_cselect_b32 s{sTB}, 0, s{sX}")
e(f"s_cmp_eq_u32 s{sCI}, 0")
e("s_cbranch_scc1 L_pl_norow")
e(f"s_lshl_b32 s{sT0}, s{sPB}, 9")
e(f"v_lshl_add_u32 v{vT1}, v{vLANE}, 3, s{sT0}")
e(f"global_load_dwordx2 v[{vRW}:{vRW+1}], v{vT1}, s[{sBT}:{sBT+1}]")
lab("L_pl_norow")
e(f"s_sub_u32 s{sTA}, s{sNTL}, s{sLO}")
e(f"s_add_u32 s{sT}, s{sTA}, s{sTB}")
if BO:
    c("tiles to run one deeper (or shallower): proportional to this workgroup's excess of keys over the mean")
    e(f"s_sub_u32 s{sT0}, s{sTB}, s{sLO}")
    e(f"s_lshl_b32 s{sT0}, s{sT0}, 5")
    e(f"s_add_u32 s{sBO}, s{sBO}, s{sT0}")
    e(f"s_lshl_b32 s{sBO}, s{sBO}, 5")
    e(f"s_sub_u32 s{sBO}, s{sBO}, s{sBO+1}")
    e(f"s_mul_i32 s{sBO}, s{sBO}, {a.bk}")
    e(f"s_add_u32 s{sBO}, s{sBO}, 512")
    e(f"s_ashr_i32 s{sBO}, s{sBO}, 10")
    if any(XT):
        lo = sum((XT[i] & 255) << (8 * i) for i in range(4)); hi = sum((XT[4 + i] & 255) << (8 * i) for i in range(4))
        e(f"s_getreg_b32 s{sT0}, hwreg(HW_REG_XCC_ID, 0, 3)")
        e(f"s_mov_b32 s{sPC}, {lo:#x}")
        e(f"s_mov_b32 s{sPC+1}, {hi:#x}")
        e(f"s_lshl_b32 s{sT0}, s{sT0}, 3")
        e(f"s_lshr_b64 s[{sPC}:{sPC+1}], s[{sPC}:{sPC+1}], s{sT0}")
        e(f"s_sext_i32_i8 s{sT0}, s{sPC}")
        e(f"s_add_u32 s{sBO}, s{sBO}, s{sT0}")
    e(f"s_lshl_b32 s{sBO}, s{sBO}, 16")
    e(f"s_or_b32 s{sBO}, s{sBO}, s{sT}")
e(f"s_mul_i32 s{sF}, s{sT}, {a.fnum}")
e(f"s_lshr_b32 s{sF}, s{sF}, 6")
e(f"s_min_u32 s{sWB}, s{sTA}, {a.UB}")
e(f"s_sub_i32 s{sF}, s{sF}, s{sWB}")
e(f"s_max_i32 s{sF}, s{sF}, s{sTB}")
e(f"s_max_i32 s{sF}, s{sF}, 1")
e(f"v_cvt_f32_u32 v{vT2}, s{sF}")
e(f"v_subrev_u32 v{vT3}, s{sWB}, v{vLANE}")
e(f"v_rcp_f32 v{vT2}, v{vT2}")
e(f"v_mul_i32_i24 v{vT4}, s{sTB}, v{vT3}")
e(f"v_add_u32 v{vT5}, s{sTB}, v{vT4}")
e(f"v_cvt_f32_i32 v{vT4}, v{vT4}")
e(f"v_cvt_f32_i32 v{vT5}, v{vT5}")
e(f"v_add_f32 v{vT4}, 0.5, v{vT4}")
e(f"v_add_f32 v{vT5}, 0.5, v{vT5}")
e(f"v_mul_f32 v{vT4}, v{vT4}, v{vT2}")
e(f"v_mul_f32 v{vT5}, v{vT5}, v{vT2}")
e(f"v_floor_f32 v{vT4}, v{vT4}")
e(f"v_floor_f32 v{vT5}, v{vT5}")
e(f"v_cmp_gt_u32 vcc, s{sF}, v{vT3}")
e(f"v_cmp_gt_f32 s[{sMBK}:{sMBK+1}], v{vT5}, v{vT4}")
e(f"s_sub_u32 s{sT0}, s{sT}, s{sNU}")
e(f"v_subrev_u32 v{vT3}, s{sNU}, v{vLANE}")
e(f"v_cmp_gt_u32 s[{sMA}:{sMA+1}], s{sT0}, v{vT3}")
e(f"s_and_b64 s[{sMBK}:{sMBK+1}], s[{sMBK}:{sMBK+1}], vcc")
e(f"s_andn2_b64 s[{sMA}:{sMA+1}], s[{sMA}:{sMA+1}], s[{sMBK}:{sMBK+1}]")
c("own tiles to sort: logical [NU+given, ntile-1), the last one appended; donated: the partner's logical [2, 2+TB)")
e(f"s_flbit_i32_b64 s{sT2}, s[{sMA}:{sMA+1}]")
e(f"s_sub_u32 s{sT2}, 63, s{sT2}")
e(f"s_lshl_b32 s{sT2}, s{sT2}, 8")
e(f"s_or_b32 s{sWB}, s{sT2}, 1")
e(f"s_min_u32 s{sMRG}, s{sLO}, 1")
e(f"s_add_u32 s{sLO}, s{sLO}, s{sNU}")
e(f"s_sub_u32 s{sHI}, s{sNTL}, s{sLO}")
e(f"s_sub_u32 s{sT3}, s{sNTL}, 1")
e(f"s_mov_b32 s{sLBASE}, {LA}")
e(f"s_cmp_eq_u32 s{sCI}, 0")
e("s_cbranch_scc1 L_pl_a")
e(f"s_mov_b32 s{sLO}, 2")
e(f"s_mov_b32 s{sHI}, s{sTB}")
e(f"s_mov_b32 s{sT3}, -1")
e(f"s_mov_b32 s{sLBASE}, {LB}")
e("s_branch L_pl_sort")
lab("L_pl_a")
e(f"v_mov_b32 v{vT2}, s{sMA}")
e(f"v_mov_b32 v{vT3}, s{sMA+1}")
e(f"v_mov_b32 v{vT4}, s{sMRG}")
e(f"v_mov_b32 v{vT5}, s{sWB}")
e(f"v_mov_b32 v{vT1}, {REC0}")
e(f"ds_write_b128 v{vT1}, v[{vT2}:{vT5}]")
lab("L_pl_sort")
e(f"v_subrev_u32 v{vT0}, s{sLO}, v{vLANE}")
e(f"v_cmp_gt_u32 vcc, s{sHI}, v{vT0}")
e(f"v_mov_b32 v{vT5}, 1")
e("s_waitcnt vmcnt(0)")
if a.nosort:
    e(f"v_lshlrev_b32 v{vT2}, 1, v{vT0}")
    e(f"v_add_u32 v{vT3}, 1, v{vT2}")
else:
    c("counting sort of the block ids into 64 buckets of ascending physical address")
    e(f"v_lshrrev_b32 v{vT0}, 6, v{vRW}")
    e(f"v_lshrrev_b32 v{vT1}, 6, v{vRW+1}")
    e(f"v_cmp_eq_u32 s[{sRK+2}:{sRK+3}], s{sT3}, v{vLANE}")
    e(f"v_min_u32 v{vT0}, 62, v{vT0}")
    e(f"v_min_u32 v{vT1}, 62, v{vT1}")
    e(f"v_cndmask_b32 v{vT0}, v{vT0}, 63, s[{sRK+2}:{sRK+3}]")
    e(f"v_cndmask_b32 v{vT1}, v{vT1}, 63, s[{sRK+2}:{sRK+3}]")
    e(f"v_lshlrev_b32 v{vT0}, 2, v{vT0}")
    e(f"v_lshlrev_b32 v{vT1}, 2, v{vT1}")
    e(f"v_add_u32 v{vKF}, s{sSB}, v{vT0}")
    e(f"v_add_u32 v{vKF+1}, s{sSB}, v{vT1}")
    e("s_mov_b64 exec, vcc")
    e(f"ds_add_rtn_u32 v{vT2}, v{vKF}, v{vT5}")
    e(f"ds_add_rtn_u32 v{vT3}, v{vKF+1}, v{vT5}")
    e("s_mov_b64 exec, -1")
    e(f"ds_read_b32 v{vT4}, v{vPA}")
    e("s_waitcnt lgkmcnt(0)")
    e(f"v_mov_b32 v{vKF+2}, v{vT4}")
    for sh in (1, 2, 4, 8):
        e("s_nop 1")
        e(f"v_add_u32_dpp v{vT4}, v{vT4}, v{vT4} row_shr:{sh} row_mask:0xf bank_mask:0xf bound_ctrl:0")
    e("s_nop 1")
    e(f"v_add_u32_dpp v{vT4}, v{vT4}, v{vT4} row_bcast:15 row_mask:0xa bank_mask:0xf")
    e("s_nop 1")
    e(f"v_add_u32_dpp v{vT4}, v{vT4}, v{vT4} row_bcast:31 row_mask:0xc bank_mask:0xf")
    e(f"v_sub_u32 v{vT4}, v{vT4}, v{vKF+2}")
    e(f"ds_bpermute_b32 v{vT0}, v{vT0}, v{vT4}")
    e(f"ds_bpermute_b32 v{vT1}, v{vT1}, v{vT4}")
    e("s_waitcnt lgkmcnt(0)")
    e(f"v_add_u32 v{vT2}, v{vT2}, v{vT0}")
    e(f"v_add_u32 v{vT3}, v{vT3}, v{vT1}")
e(f"v_lshlrev_b32 v{vRW}, 15, v{vRW}")
e(f"v_lshlrev_b32 v{vRW+1}, 15, v{vRW+1}")
e(f"v_lshl_add_u32 v{vT2}, v{vT2}, 2, s{sLBASE}")
e(f"v_lshl_add_u32 v{vT3}, v{vT3}, 2, s{sLBASE}")
e("s_mov_b64 exec, vcc")
e(f"ds_write_b32 v{vT2}, v{vRW}")
e(f"ds_write_b32 v{vT3}, v{vRW+1}")
e("s_mov_b64 exec, -1")
e(f"v_mov_b32 v{vT1}, {REC1}")
e(f"s_cmp_eq_u32 s{sCI}, 0")
e("s_cbranch_scc0 L_pl_b")
e(f"v_mov_b32 v{vT2}, s{sMBK}")
e(f"v_mov_b32 v{vT3}, s{sMBK+1}")
e(f"v_mov_b32 v{vT4}, s{sBO if BO else sT}")
e(f"v_mov_b32 v{vT5}, s{sWB}")
e(f"ds_write_b128 v{vT1}, v[{vT2}:{vT5}]")
e("s_branch L_pl_done")
lab("L_pl_b")
e(f"ds_write_b32 v{vT1}, v{vT5} offset:16")
lab("L_pl_done")
stamp(1)
e(f"s_cmp_lg_u32 s{sMRG}, 0")
e("s_cbranch_scc1 L_fetch")
e(f"s_cmp_eq_u32 s{sTB}, 0")
e("s_cbranch_scc1 L_fin")
c("become the consumer of the donated tiles")
load_q(sPB)
e(f"s_mov_b64 s[{sM}:{sM+1}], s[{sMBK}:{sMBK+1}]")
e(f"s_mov_b32 s{sROLE}, 1")
e(f"s_mov_b32 s{sPLN}, 1")
e(f"s_mov_b32 s{sMT}, 0")
e(f"s_lshr_b32 s{sT3}, s{sZQ}, s{sPB}")
e(f"s_and_b32 s{sT3}, s{sT3}, 1")
e("s_branch L_csetup")

lab("L_fetch")
e(f"s_cmp_lg_u32 s{sCI}, 0")
e("s_cbranch_scc1 L_fin")
rows_off(sB)
ws_base(sB)
e(f"v_lshl_add_u32 v{vT1}, v{vT0}, 3, s{sT0}")
e(f"v_mov_b32 v{vFW}, s{sT0}")
e(f"v_mov_b32 v{vPL}, 0")
e(f"v_mov_b32 v{vPL+1}, 0")
e(f"s_lshl_b32 s{sT2}, s{sB}, 2")
e(f"v_mov_b32 v{vT2}, s{sT2}")
e(f"s_getreg_b32 s{sT2}, hwreg(HW_REG_XCC_ID, 0, 4)")
e(f"s_or_b32 s{sT2}, s{sT2}, 8")
e(f"s_lshl_b32 s{sT3}, s{sH}, 2")
e(f"s_lshl_b32 s{sT2}, s{sT2}, s{sT3}")
e(f"v_mov_b32 v{vT3}, s{sT2}")
e(f"v_mov_b32 v{vPA}, {CTRL+16}")
e("s_mov_b64 exec, 1")
c("clear the flag words, then announce this die")
e(f"global_store_dwordx2 v{vFW}, v[{vPL}:{vPL+1}], s[{sWS}:{sWS+1}] offset:256")
e("s_waitcnt vmcnt(0)")
e(f"global_atomic_add v{vT2}, v{vT3}, s[{sDBG}:{sDBG+1}]")
e(f"s_mul_i32 s{sNEED}, s{sT}, {a.pollnum}")
e(f"s_lshr_b32 s{sNEED}, s{sNEED}, 5")
e(f"s_lshl_b32 s{sT3}, s{sH}, 1")
e(f"s_mov_b32 s{sMBF}, 0")
lab("L_f_wait")
e(f"ds_read_b32 v{vPL}, v{vPA}")
e("s_waitcnt lgkmcnt(0)")
e(f"v_readfirstlane_b32 s{sLND}, v{vPL}")
e(f"s_cmp_ge_i32 s{sLND}, s{sNEED}")
e("s_cbranch_scc1 L_f_poll")
spin_tail("L_f_wait", 8)
lab("L_f_poll")
e(f"global_load_dwordx2 v[{vPL}:{vPL+1}], v{vFW}, s[{sWS}:{sWS+1}] offset:256 sc1")
e(f"s_add_u32 s{sMBF}, s{sMBF}, 1")
e(f"s_and_b32 s{sT0}, s{sMBF}, 3")
e(f"s_mov_b32 s{sT2}, 0")
e("s_cbranch_scc1 L_f_nodbg")
e(f"global_load_dword v{vT3}, v{vT2}, s[{sDBG}:{sDBG+1}] offset:128 sc1")
e("s_waitcnt vmcnt(0)")
e(f"v_readfirstlane_b32 s{sT2}, v{vT3}")
e(f"s_lshr_b32 s{sT2}, s{sT2}, s{sT3}")
lab("L_f_nodbg")
e("s_waitcnt vmcnt(0)")
e(f"v_lshl_or_b32 v{vPL}, v{vPL+1}, 1, v{vPL}")
e("s_nop 0")
e(f"v_readfirstlane_b32 s{sT0}, v{vPL}")
e(f"s_or_b32 s{sT0}, s{sT0}, s{sT2}")
e(f"s_and_b32 s{sT0}, s{sT0}, 3")
e(f"s_cmp_eq_u32 s{sT0}, 3")
e("s_cbranch_scc1 L_f_got")
spin_tail("L_f_poll", a.psleep)
lab("L_f_got")
e("s_mov_b64 exec, -1")
e(f"v_add_u32 v{vT5}, 4096, v{vT4}")
for cc in range(2):
    for j in range(4):
        r = vKF + 16 * cc + 4 * j
        e(f"global_load_dwordx4 v[{r}:{r+3}], v{vT4+cc}, s[{sOUT}:{sOUT+1}] offset:{64*j}{FLD}")
    e(f"global_load_dwordx2 v[{vM+2*cc}:{vM+2*cc+1}], v{vT1}, s[{sWS}:{sWS+1}] offset:{128*cc}{FLD}")
e(f"v_lshlrev_b32 v{vT0}, 4, v{vLANE}")
e(f"v_lshlrev_b32 v{vT1}, 3, v{vLANE}")
e(f"v_add_u32 v{vT0}, {MB}, v{vT0}")
e(f"v_add_u32 v{vT1}, {MB}, v{vT1}")
e(f"v_mov_b32 v{vT2}, {CTRL+4}")
e(f"v_mov_b32 v{vT3}, 1")
for cc in range(2):
    e(f"s_waitcnt vmcnt({5 - 5*cc})")
    for j in range(4):
        r = vKF + 16 * cc + 4 * j
        e(f"ds_write_b128 v{vT0}, v[{r}:{r+3}] offset:{MBS*cc + 1024*j}")
    e(f"ds_write_b64 v{vT1}, v[{vM+2*cc}:{vM+2*cc+1}] offset:{MBS*cc + 4096}")
    e(f"ds_write_b32 v{vT2}, v{vT3} offset:{8*cc}")
stamp(2)
if CK:
    e("s_branch L_fin")
    c("wave 5: at each checkpoint the arrival rank among all workgroups picks the prefetch depth")
    lab("L_ctl")
    e("s_mov_b64 exec, 1")
    e(f"v_mov_b32 v{vT1}, {REC1}")
    e(f"v_mov_b32 v{vPA}, {CTRL+32}")
    e(f"v_mov_b32 v{vFW}, {DEPW}")
    e(f"v_mov_b32 v{vT0}, 0")
    e(f"v_mov_b32 v{vFV}, 0x10000")
    lab("L_k_plan")
    e(f"ds_read_b128 v[{vT2}:{vT5}], v{vT1}")
    e("s_waitcnt lgkmcnt(0)")
    e(f"v_readfirstlane_b32 s{sT0}, v{vT5}")
    e(f"v_readfirstlane_b32 s{sT}, v{vT4}")
    e(f"s_cmp_lg_u32 s{sT0}, 0")
    e("s_cbranch_scc1 L_k_go")
    spin_tail("L_k_plan", 8)
    lab("L_k_go")
    for k, R in enumerate(CK):
        e(f"s_sub_u32 s{sNEED}, s{sT}, {R}")
        e(f"s_lshl_b32 s{sNEED}, s{sNEED}, 1")
        lab(f"L_k_w{k}")
        e(f"ds_read_b32 v{vPL}, v{vPA}")
        e("s_waitcnt lgkmcnt(0)")
        e(f"v_readfirstlane_b32 s{sLND}, v{vPL}")
        e(f"s_cmp_ge_i32 s{sLND}, s{sNEED}")
        e(f"s_cbranch_scc1 L_k_a{k}")
        spin_tail(f"L_k_w{k}", 2)
        lab(f"L_k_a{k}")
        e(f"s_mov_b32 s{sT0}, 0x10000")
        e(f"s_atomic_add s{sT0}, s[{sDBG}:{sDBG+1}], {128+4*k} glc")
        if k < 2: stamp(1 + k)
        e("s_waitcnt lgkmcnt(0)")
        e(f"s_lshr_b32 s{sT0}, s{sT0}, 16")
        e(f"s_cmp_lt_u32 s{sT0}, {TH[0]}")
        e(f"s_cselect_b32 s{sT1}, 1, 0")
        e(f"s_cmp_ge_u32 s{sT0}, {TH[1]}")
        e(f"s_cselect_b32 s{sT1}, 2, s{sT1}")
        e(f"s_cmp_ge_u32 s{sT0}, {TH[2]}")
        e(f"s_cselect_b32 s{sT1}, 3, s{sT1}")
        e(f"v_mov_b32 v{vT3}, s{sT1}")
        e(f"ds_write_b32 v{vFW}, v{vT3}")

lab("L_fin")
if a.stamps:
    e("s_mov_b64 exec, -1")
    e("s_waitcnt vmcnt(0) lgkmcnt(0)")
    stamp(3)
    e(f"s_getreg_b32 s{sT0}, hwreg(HW_REG_XCC_ID)")
    e("s_waitcnt lgkmcnt(0)")
    for i in range(8):
        e(f"v_mov_b32 v{64+i}, s{sST+i}")
    e(f"v_mov_b32 v72, s{sT0}")
    e(f"v_mov_b32 v73, 0")
    e(f"v_mov_b32 v74, s{sT}")
    e(f"v_mov_b32 v75, 0")
    e(f"s_mul_i32 s{sT0}, s2, {NW}")
    e(f"s_add_u32 s{sT0}, s{sT0}, s{sW}")
    e(f"s_lshl_b32 s{sT0}, s{sT0}, 6")
    e(f"v_mov_b32 v80, s{sT0}")
    e("s_mov_b64 exec, 1")
    e(f"global_store_dwordx4 v80, v[64:67], s[{sWS}:{sWS+1}]")
    e(f"global_store_dwordx4 v80, v[68:71], s[{sWS}:{sWS+1}] offset:16")
    e(f"global_store_dwordx4 v80, v[72:75], s[{sWS}:{sWS+1}] offset:32")
lab("L_end")
e("s_endpgm")
out.append('.section .rodata,"a"')
out.append(".p2align 6")
out.append(f".amdhsa_kernel {NAME}_kernel")
out.append(f"  .amdhsa_next_free_vgpr {NV}")
out.append("  .amdhsa_next_free_sgpr 100")
out.append(f"  .amdhsa_accum_offset {NV}")
out.append("  .amdhsa_group_segment_fixed_size 0")
out.append("  .amdhsa_kernarg_size 64")
out.append("  .amdhsa_user_sgpr_count 2")
out.append("  .amdhsa_user_sgpr_kernarg_segment_ptr 1")
out.append("  .amdhsa_system_sgpr_workgroup_id_x 1")
out.append("  .amdhsa_float_denorm_mode_32 3")
out.append(".end_amdhsa_kernel")
open(a.o, "w").write("\n".join(out) + "\n")
```

```python
import sys, argparse
NAME = "standalone__paged_block_table_kv_pagedattention__sampling"
HEADER = open("cdna_kernels/" + NAME + ".s.ref").read().split("; Override")[0]

ap = argparse.ArgumentParser()
ap.add_argument("-o", default="/dev/stdout")
ap.add_argument("--nt", default="nt")
ap.add_argument("--map", default="plain")
ap.add_argument("--D", type=int, default=20)
ap.add_argument("--D0", type=int, default=26)
ap.add_argument("--nslot", type=int, default=8)
ap.add_argument("--fnum", type=int, default=48)
ap.add_argument("--pollnum", type=int, default=54)
ap.add_argument("--psleep", type=int, default=24)
ap.add_argument("--UB", type=int, default=7)
ap.add_argument("--DM", type=int, default=8)
ap.add_argument("--ctl", type=int, default=1)
ap.add_argument("--cth", default="-3,3,8")
ap.add_argument("--cbias", type=int, default=4)
ap.add_argument("--cstart", type=int, default=8)
ap.add_argument("--cstop", type=int, default=6)
ap.add_argument("--cstep", type=int, default=2)
ap.add_argument("--cld", default="sc1")
ap.add_argument("--ck", default="")
ap.add_argument("--th", default="64,192,240")
ap.add_argument("--sann", type=int, default=0)
ap.add_argument("--bk", type=int, default=0)
ap.add_argument("--xt", default="0,0,0,0,0,0,0,0")
ap.add_argument("--mfirst", type=int, default=0)
ap.add_argument("--btile", type=int, default=0)
ap.add_argument("--tlb", type=int, default=0)
ap.add_argument("--stag", type=int, default=1)
ap.add_argument("--gx", type=int, default=0)
ap.add_argument("--gxm", default="")
ap.add_argument("--lateb", type=int, default=1)
ap.add_argument("--xmin", type=int, default=1)
ap.add_argument("--xrnd", type=int, default=2)
ap.add_argument("--nosort", action="store_true")
ap.add_argument("--nopair", action="store_true")
ap.add_argument("--nopf", action="store_true")
ap.add_argument("--notrim", action="store_true")
ap.add_argument("--ost", default="")
ap.add_argument("--fld", default="sc1")
ap.add_argument("--dbg", default="")
ap.add_argument("--stamps", action="store_true")
ap.add_argument("--sst", action="store_true")
a = ap.parse_args()
NT = "" if a.nt == "none" else " " + a.nt.replace("+", " ")
OST = "" if not a.ost else " " + a.ost.replace("+", " ")
FLD = "" if a.fld == "none" else " " + a.fld.replace("+", " ")
DBG = set(a.dbg.split(","))
D, D0, NSLOT = a.D, a.D0, a.nslot
CK = [1] if a.ctl else []
CTH = [int(x) for x in a.cth.split(",")]
TH = [int(x) for x in a.th.split(",")]
NW = 6 if CK else 5
XT = [int(x) for x in a.xt.split(",")]
BO = (a.bk or any(XT)) and not a.ctl
sBO = 56
assert not CK or (D - 2) // 8 == (D + 1) // 8
assert 25 <= D0 <= 33
KBYTES = 4100 * 32768
SPIN = 1 << 22

RING = NSLOT * 16384
MB = RING
MBS = 4608
CTRL = MB + 2 * MBS
FREE = CTRL + 512
REC0 = FREE + 64
REC1 = REC0 + 16
DEPW = FREE + 128
CNT = FREE + 256
LA = CNT + 512
LB = LA + 512
KEYS = LB + 512
LDS = KEYS + 256

out = []
def e(s): out.append("    " + s)
def lab(s): out.append(s + ":")
def c(s): out.append("    ; " + s)

sQ, sK, sV, sBT, sCL, sOUT, sDBG, sWS = 4, 6, 8, 10, 12, 14, 16, 18
sKD, sVD = 20, 24
sB, sH, sW, sCLV = 28, 29, 30, 31
sT0, sT1, sT2, sT3 = 32, 33, 34, 35
sPC = 36
sSPIN = 38
sNB, sNTL, sNU, sT = 39, 40, 41, 42
sE = 96
sST = 64
sB0, sB1, sFB1, sTT, sLIM, sPH, sSLOT, sTM = 46, 47, 48, 49, 50, 51, 52, 53
sMK = 54
sM = 46
sCI, sLND, sMBF, sNEED, sMRG, sMT, sROLE, sQO, sPLN, sSB = 48, 49, 50, 51, 52, 56, 57, 58, 59, 60
sCST = 62
sTN, sNK, sFWN, sFB, sVR, sRD, sLIMF, sV0 = 72, 73, 74, 75, 76, 77, 78, 61
sZQ = 54
sRK, sPB, sNP, sX, sTA, sTB, sF, sWB = 80, 81, 82, 83, 84, 85, 86, 87
sMA, sMBK = 88, 90
sLO, sHI, sLBASE = 92, 93, 94
vLANE = 1
vT0, vT1, vT2, vT3, vT4, vT5 = 2, 3, 4, 5, 6, 7
vL = 8
vKOFF, vVOFF = 10, 14
vCA, vCNT, vFA, vR = 18, 19, 20, 21
vF = 22
vR4 = 24
vL2 = 44
vDP, vDA = 46, 47
vTR = 28
vKA0, vVA0, vKA, vVA = 8, 12, 16, 20
vM, vLS, vMN, vAL, vPA, vFW = 24, 25, 26, 27, 28, 29
vPL = 30
vQ = 32
vS = 48
vP = 56
vG, vPF, vFV, vN = 60, 61, 62, 63
vKF = 64
vVF = 96
vO = 128
vE = 160
NV = 168

def stamp(i, sst=False):
    if a.stamps and (i == 0 or sst == a.sst): e(f"s_memrealtime s[{sST+2*i}:{sST+2*i+1}]")

def clamp_cl(zq=None):
    c("context length: <=0 -> every key masked => uniform weights over 2048 keys (zero Q); >2048 -> 2048")
    e(f"s_cmp_lt_i32 s{sCLV}, 1")
    if zq is not None: e(f"s_cselect_b32 s{zq}, 1, 0")
    e(f"s_cselect_b32 s{sCLV}, 2048, s{sCLV}")
    e(f"s_min_i32 s{sCLV}, s{sCLV}, 2048")
def derive_cl():
    e(f"s_add_u32 s{sNB}, s{sCLV}, 15")
    e(f"s_lshr_b32 s{sNB}, s{sNB}, 4")
    derive_nb()
def derive_nb():
    e(f"s_add_u32 s{sNTL}, s{sNB}, 1")
    e(f"s_lshr_b32 s{sNTL}, s{sNTL}, 1")
    e(f"s_sub_u32 s{sNU}, s{sNTL}, 1")
    e(f"s_min_u32 s{sNU}, s{sNU}, 2")

def spin_tail(label, sleep=1):
    e(f"s_sleep {sleep}")
    e(f"s_sub_u32 s{sSPIN}, s{sSPIN}, 1")
    e(f"s_cbranch_scc0 {label}")
    e("s_endpgm")

out.append(HEADER.rstrip())
out.append(f"; @launch grid=(256,1,1) block=({64*NW},1,1) lds={LDS}")
out.append('.amdgcn_target "amdgcn-amd-amdhsa--gfx950"')
out.append(".text")
out.append(f".globl {NAME}_kernel")
out.append(".p2align 8")
out.append(f".type {NAME}_kernel,@function")
lab(f"{NAME}_kernel")
e("s_load_dwordx16 s[4:19], s[0:1], 0")
e(f"s_lshr_b32 s{sB}, s2, 3")
e(f"s_cmp_ge_u32 s{sB}, 32")
e("s_cbranch_scc1 L_end")
stamp(0)
e(f"v_lshrrev_b32 v{vT0}, 6, v0")
e(f"v_and_b32 v{vLANE}, 63, v0")
e(f"v_readfirstlane_b32 s{sW}, v{vT0}")
if not a.nopf:
    c("wave 1 pulls this kernel's code into L2")
    e(f"s_getpc_b64 s[{sPC}:{sPC+1}]")
    lab("L_pc")
    e(f"v_lshlrev_b32 v{vT2}, 7, v{vLANE}")
    e(f"v_min_u32 v{vT2}, L_end - L_pc, v{vT2}")
    e(f"s_cmp_lg_u32 s{sW}, 1")
    e("s_cbranch_scc1 L_nopf")
    e(f"global_load_dword v{vPF}, v{vT2}, s[{sPC}:{sPC+1}]")
    lab("L_nopf")
c("clear the control words and the sort counters (320 threads x 4 bytes)")
e(f"v_mov_b32 v{vT2}, 0")
e(f"v_lshlrev_b32 v{vT4}, 2, v0")
e(f"v_add_u32 v{vT4}, {CTRL}, v{vT4}")
e(f"ds_write_b32 v{vT4}, v{vT2}")
if a.map == "rot":
    e(f"s_add_u32 s{sH}, s2, s{sB}")
    e(f"s_and_b32 s{sH}, s{sH}, 7")
else:
    e(f"s_and_b32 s{sH}, s2, 7")
c("per-lane source offsets of the LDS-DMA pieces (bank swizzle applied on the source side)")
e(f"v_lshrrev_b32 v{vR}, 4, v{vLANE}")
e(f"v_and_b32 v{vT1}, 15, v{vLANE}")
e(f"s_lshl_b32 s{sT0}, s{sH}, 8")
e(f"v_lshl_add_u32 v{vT4}, v{vR}, 11, s{sT0}")
e(f"v_xor_b32 v{vT2}, v{vR}, v{vT1}")
e(f"v_lshl_add_u32 v{vKOFF}, v{vT2}, 4, v{vT4}")
for j in range(1, 4):
    e(f"v_xor_b32 v{vT3}, {64*j}, v{vKOFF}")
    e(f"v_add_u32 v{vKOFF+j}, {7168*j}, v{vT3}")
e(f"s_lshl_b32 s{sT0}, s{sB}, 9")
e(f"v_lshl_add_u32 v{vT2}, v{vLANE}, 3, s{sT0}")
e(f"s_lshl_b32 s{sT1}, s{sB}, 2")
e(f"v_and_b32 v{vT0}, 31, v{vLANE}")
e(f"v_lshlrev_b32 v{vT3}, 2, v{vT0}")
e("s_waitcnt lgkmcnt(0)")
e(f"s_load_dwordx4 s[{sE}:{sE+3}], s[{sBT}:{sBT+1}], s{sT0}")
e(f"s_load_dword s{sCLV}, s[{sCL}:{sCL+1}], s{sT1}")
e(f"global_load_dwordx2 v[{vL}:{vL+1}], v{vT2}, s[{sBT}:{sBT+1}]")
e(f"global_load_dword v{vN}, v{vT3}, s[{sCL}:{sCL+1}]")
lab("L_loads_issued")
stamp(1, True)
if not a.lateb: e("s_barrier")
e(f"s_cmp_lg_u32 s{sW}, 0")
e(f"s_mov_b32 s{sSPIN}, {SPIN}")
e("s_cbranch_scc1 L_notloader")

e("s_setprio 3")
e(f"s_mov_b32 s{sKD}, s{sK}")
e(f"s_and_b32 s{sKD+1}, s{sK+1}, 0xffff")
e(f"s_mov_b32 s{sKD+2}, {KBYTES}")
e(f"s_mov_b32 s{sKD+3}, 0x20000")
e(f"s_mov_b32 s{sVD}, s{sV}")
e(f"s_and_b32 s{sVD+1}, s{sV+1}, 0xffff")
e(f"s_mov_b32 s{sVD+2}, {KBYTES}")
e(f"s_mov_b32 s{sVD+3}, 0x20000")
e(f"v_lshlrev_b32 v{vT3}, 2, v{vR}")
e(f"v_xor_b32 v{vT3}, v{vT3}, v{vT1}")
e(f"v_lshl_add_u32 v{vVOFF}, v{vT3}, 4, v{vT4}")
for j in range(1, 4):
    e(f"v_add_u32 v{vVOFF+j}, {7168*j}, v{vVOFF}")
e("s_waitcnt lgkmcnt(0)")
stamp(2, True)
clamp_cl()
e(f"s_lshl_b32 s{sB0}, s{sE}, 15")
e(f"s_lshl_b32 s{sB1}, s{sE+1}, 15")
e(f"s_cmp_le_u32 s{sCLV}, 32")
e("s_cbranch_scc1 L_ld_t0" if a.lateb else "s_cbranch_scc1 L_ld_pre")
stamp(1)
stamp(3, True)
def dma(j, trimmed=False):
    g, jj = j // 4, j % 4
    srd, voff = (sKD, vKOFF + jj) if g < 2 else (sVD, vVOFF + jj)
    if trimmed: voff = vTR + j
    e(f"buffer_load_dwordx4 v{voff}, s[{srd}:{srd+3}], s{sB0 + (g & 1)} offen offset:{1024*jj}{NT} lds")
c("stream tiles 0 and 1 are logical tiles 0 and 1 (when they are not the last one)")
for j in range(16):
    if j % 4 == 0:
        e(f"s_movk_i32 m0, {1024*j}")
        e("s_nop 0")
    dma(j)
if a.lateb:
    lab("L_ld_t0")
    e("s_barrier")
e(f"s_lshl_b32 s{sB0}, s{sE+2}, 15")
e(f"s_lshl_b32 s{sB1}, s{sE+3}, 15")
e(f"s_cmp_le_u32 s{sCLV}, 64")
e("s_cbranch_scc1 L_ld_pre")
for j in range(16):
    if j % 4 == 0: e(f"s_movk_i32 m0, {16384+1024*j}")
    if 16 + j >= D0: e(f"s_waitcnt vmcnt({D0-1})")
    elif j % 4 == 0: e("s_nop 0")
    dma(j)
lab("L_ld_pre")
derive_cl()
j0 = (D - 1) % 8
e(f"s_lshl_b32 s{sSLOT}, s{sNU}, 14")
e(f"s_mov_b32 s{sT}, s{sNU}")
e(f"v_lshlrev_b32 v{vCA}, 3, v{vLANE}")
e(f"v_add_u32 v{vCA}, {CTRL}, v{vCA}")
e(f"v_mov_b32 v{vFA}, {FREE}")
e(f"v_mov_b32 v{vF}, 0")
e(f"v_mov_b32 v{vF+1}, 0")
if CK:
    e(f"v_mov_b32 v{vDP}, 0")
    e(f"v_mov_b32 v{vDA}, {DEPW}")
e(f"s_lshl_b32 s{sT0}, s{sT}, 1")
e(f"s_add_u32 s{sT0}, s{sT0}, {(j0 - D + 1)//8 - 1}")
e(f"v_mov_b32 v{vCNT}, s{sT0}")
c("the last logical tile: rows past the context are not fetched")
e(f"s_lshl_b32 s{sT0}, s{sNTL}, 5")
e(f"s_sub_u32 s{sT0}, s{sCLV}, s{sT0}")
e(f"s_add_u32 s{sT0}, s{sT0}, 32")
e(f"v_bfrev_b32 v{vT5}, 1")
e(f"v_sub_u32 v{vT1}, s{sT0}, v{vR}")
if a.notrim: e(f"v_mov_b32 v{vT1}, 64")
for k in range(8):
    e(f"v_cmp_lt_i32 s[{80+2*k}:{81+2*k}], {4*k}, v{vT1}")
for k in range(8):
    e(f"v_cndmask_b32 v{vTR+k}, v{vT5}, v{vKOFF+k%4}, s[{80+2*k}:{81+2*k}]")
for k in range(8):
    e(f"v_cndmask_b32 v{vTR+8+k}, v{vT5}, v{vVOFF+k%4}, s[{80+2*k}:{81+2*k}]")
e(f"s_mov_b32 s{sPH}, 1")
lab("L_ld_plan")
e(f"v_mov_b32 v{vT1}, {REC1}")
e(f"ds_read_b128 v[{vR4}:{vR4+3}], v{vT1}")
e(f"ds_read_b32 v{vT2}, v{vT1} offset:16")
e("s_waitcnt lgkmcnt(0)")
e(f"v_or_b32 v{vT2}, s{sPH}, v{vT2}")
e(f"v_and_b32 v{vT2}, v{vT2}, v{vR4+3}")
e(f"v_readfirstlane_b32 s{sMK}, v{vR4}")
e(f"v_readfirstlane_b32 s{sT0}, v{vT2}")
e(f"v_readfirstlane_b32 s{sMK+1}, v{vR4+1}")
e(f"v_readfirstlane_b32 s{sTT}, v{vR4+2}")
e(f"v_readfirstlane_b32 s{sT1}, v{vR4+3}")
e(f"s_cmp_eq_u32 s{sT0}, 0")
e("s_cbranch_scc1 L_ld_noplan")
e(f"v_mbcnt_lo_u32_b32 v{vT0}, s{sMK}, 0")
e(f"v_mbcnt_hi_u32_b32 v{vT0}, s{sMK+1}, v{vT0}")
e(f"v_sub_u32 v{vT1}, v{vLANE}, v{vT0}")
e(f"v_subrev_u32 v{vT1}, s{sNU}, v{vT1}")
e(f"v_lshlrev_b32 v{vT0}, 3, v{vT0}")
e(f"v_lshlrev_b32 v{vT1}, 3, v{vT1}")
e(f"v_add_u32 v{vT0}, {LB}, v{vT0}")
e(f"v_add_u32 v{vT1}, {LA}, v{vT1}")
e(f"v_cndmask_b32 v{vT0}, v{vT1}, v{vT0}, s[{sMK}:{sMK+1}]")
if "rowwait" not in DBG: pass
e(f"ds_read_b64 v[{vL2}:{vL2+1}], v{vT0}")
c("first pass: run only up to the first donated tile (its list may not be sorted yet)")
e(f"s_ff1_i32_b64 s{sFB1}, s[{sMK}:{sMK+1}]")
e(f"s_lshr_b32 s{sT1}, s{sT1}, 8")
if BO:
    e(f"s_ashr_i32 s{sT2}, s{sTT}, 16")
    e(f"s_and_b32 s{sTT}, s{sTT}, 0xffff")
e(f"s_cmp_eq_u32 s{sPH}, 0")
if BO: e(f"s_cselect_b32 s{sBO}, s{sBO}, s{sT2}")
e(f"s_cselect_b32 s{sFB1}, -1, s{sFB1}")
e(f"s_cselect_b32 s{sTM}, s{sTM}, s{sT1}")
if a.stamps and not a.sst:
    e("s_cbranch_scc1 L_nost2")
    stamp(2)
    lab("L_nost2")
e(f"s_mov_b32 s{sPH}, 0")
e("s_waitcnt lgkmcnt(0)")
lab("L_ld_go")
e(f"s_min_u32 s{sLIM}, s{sTT}, s{sFB1}")
e(f"s_min_u32 s{sLIM}, s{sLIM}, s{sTM}")
e(f"s_cmp_ge_u32 s{sT}, s{sLIM}")
e("s_cbranch_scc1 L_ld_lim")
def tile_head(name):
    e(f"v_readlane_b32 s{sB0}, v{vL2}, s{sT}")
    e(f"v_readlane_b32 s{sB1}, v{vL2+1}, s{sT}")
    e(f"s_sub_u32 s{sT1}, s{sT}, {NSLOT-1}")
    lab(name + "_chk")
    e("s_waitcnt lgkmcnt(0)")
    e(f"v_min_i32 v{vT0}, v{vF}, v{vF+1}")
    e(f"s_add_u32 s{sT2}, s{sSLOT}, 16384")
    e(f"v_readfirstlane_b32 s{sT0}, v{vT0}")
    e(f"s_and_b32 s{sT2}, s{sT2}, {RING-1}")
    e(f"s_cmp_ge_i32 s{sT0}, s{sT1}")
    e(f"s_cbranch_scc0 {name}_wait")
def tile_body(depth, trimmed, skip_first):
    for j in range(16):
        if j % 4 == 0: e(f"s_add_u32 m0, s{sSLOT}, {1024*j}")
        e(f"s_waitcnt vmcnt({depth-1})")
        dma(j, trimmed)
        if j % 8 == (depth - 1) % 8 and not (skip_first and j < 8):
            e(f"v_add_u32 v{vCNT}, 1, v{vCNT}")
            e(f"ds_write_b32 v{vCA}, v{vCNT}")
        if j == 13:
            c("prefetch the FREE words of the next slot")
            e(f"s_lshr_b32 s{sT0}, s{sT2}, 11")
            e(f"s_add_u32 s{sT0}, s{sT0}, {FREE}")
            e(f"v_mov_b32 v{vFA}, s{sT0}")
            e(f"ds_read_b64 v[{vF}:{vF+1}], v{vFA}")
            if CK: e(f"ds_read_b32 v{vDP}, v{vDA}")
    e(f"s_mov_b32 s{sSLOT}, s{sT2}")
    e(f"s_add_u32 s{sT}, s{sT}, 1")
def tile_wait(name):
    lab(name + "_wait")
    e(f"ds_read_b64 v[{vF}:{vF+1}], v{vFA}")
    spin_tail(name + "_chk")
out.append(".p2align 3")
lab("L_ld")
tile_head("L_ld")
if CK:
    e(f"v_readfirstlane_b32 s{sT0}, v{vDP}")
    e(f"s_cmp_lg_u32 s{sT0}, 0")
    e("s_cbranch_scc1 L_ld_var")
if BO:
    e(f"s_cmp_lg_u32 s{sBO}, 0")
    e("s_cbranch_scc1 L_ld_bo")
tile_body(D, False, False)
lab("L_ld_next")
e(f"s_cmp_lt_u32 s{sT}, s{sLIM}")
e("s_cbranch_scc1 L_ld")
lab("L_ld_lim")
e(f"s_cmp_eq_u32 s{sT}, s{sFB1}")
e("s_cbranch_scc1 L_ld_plan")
e(f"s_cmp_lg_u32 s{sT}, s{sTM}")
e("s_cbranch_scc1 L_ld_drain")
e(f"s_mov_b32 s{sTM}, -1")
tile_head("L_ldm")
tile_body(D + a.DM, True, a.DM == 8)
if a.DM:
    e(f"v_add_u32 v{vCNT}, 1, v{vCNT}")
e(f"s_cmp_lt_u32 s{sT}, s{sTT}")
e("s_cbranch_scc1 L_ld_go")
if a.DM:
    e(f"s_waitcnt vmcnt({((D - 1) // 8) * 8 + 8})")
    e(f"ds_write_b32 v{vCA}, v{vCNT}")
lab("L_ld_drain")
for r in range(((D - 1) // 8) * 8, -1, -8):
    e(f"v_add_u32 v{vCNT}, 1, v{vCNT}")
    e(f"s_waitcnt vmcnt({r})")
    e(f"ds_write_b32 v{vCA}, v{vCNT}")
e("s_branch L_fin" if a.stamps else "s_endpgm")
tile_wait("L_ld")
tile_wait("L_ldm")
if BO:
    lab("L_ld_bo")
    e(f"s_cmp_gt_i32 s{sBO}, 0")
    e("s_cbranch_scc1 L_ld_bp")
    e(f"s_add_u32 s{sBO}, s{sBO}, 1")
    tile_body(D - 1, False, False)
    e("s_branch L_ld_next")
    lab("L_ld_bp")
    e(f"s_sub_u32 s{sBO}, s{sBO}, 1")
    tile_body(D + 1, False, False)
    e("s_branch L_ld_next")
if CK:
    lab("L_ld_var")
    e(f"s_cmp_eq_u32 s{sT0}, 1")
    e("s_cbranch_scc1 L_ld_v2")
    e(f"s_cmp_eq_u32 s{sT0}, 2")
    e("s_cbranch_scc1 L_ld_v3")
    tile_body(D - 1, False, False)
    e("s_branch L_ld_next")
    lab("L_ld_v2")
    tile_body(D + 1, False, False)
    e("s_branch L_ld_next")
    lab("L_ld_v3")
    tile_body(D + 2, False, False)
    e("s_branch L_ld_next")
lab("L_ld_noplan")
spin_tail("L_ld_plan")

lab("L_notloader")
e(f"s_cmp_ge_u32 s{sW}, 3")
e("s_cbranch_scc1 L_planner")
if a.tlb:
    c("touch a few pages of K (wave 1) / V (wave 2) so that every die has the translations early")
    npg = (KBYTES >> a.tlb) + 1
    nl = (npg + 31) // 32
    e(f"v_min_u32 v{vT2}, {nl-1}, v{vLANE}")
    e(f"v_lshl_add_u32 v{vT2}, v{vT2}, 5, s{sB}")
    e(f"v_mul_u32_u24 v{vT5}, 4480, v{vT2}")
    e(f"s_mul_i32 s{sT2}, s2, 896")
    e(f"v_lshl_add_u32 v{vT2}, v{vT2}, {a.tlb}, v{vT5}")
    e(f"v_add_u32 v{vT2}, s{sT2}, v{vT2}")
    e(f"s_sub_u32 s{sT2}, {KBYTES-128}, s{sT2}")
    e(f"v_min_u32 v{vT2}, s{sT2}, v{vT2}")
    e(f"s_cmp_eq_u32 s{sW}, 1")
    e(f"s_cselect_b64 s[{sPC}:{sPC+1}], s[{sK}:{sK+1}], s[{sV}:{sV+1}]")
    e(f"global_load_dword v{vFV}, v{vT2}, s[{sPC}:{sPC+1}] nt")
e(f"s_sub_u32 s{sCI}, s{sW}, 1")
e(f"s_mov_b32 s{sROLE}, 0")
e(f"s_mov_b32 s{sPLN}, 0")
e(f"s_mov_b32 s{sMRG}, 0")
def rows_off(sb):
    e(f"s_lshl_b32 s{sQO}, s{sb}, 16")
    e(f"s_lshl_b32 s{sT0}, s{sH}, 13")
    e(f"s_add_u32 s{sQO}, s{sQO}, s{sT0}")
    e(f"s_lshl_b32 s{sT0}, s{sCI}, 12")
    e(f"s_add_u32 s{sQO}, s{sQO}, s{sT0}")
    e(f"v_and_b32 v{vT0}, 15, v{vLANE}")
    e(f"v_lshrrev_b32 v{vG}, 4, v{vLANE}")
    e(f"v_lshl_add_u32 v{vT4}, v{vT0}, 8, s{sQO}")
    e(f"v_lshl_add_u32 v{vT4}, v{vG}, 4, v{vT4}")
def load_q(sb):
    rows_off(sb)
    for s in range(4):
        e(f"global_load_dwordx4 v[{vQ+4*s}:{vQ+4*s+3}], v{vT4}, s[{sQ}:{sQ+1}] offset:{64*s}")
load_q(sB)
if a.lateb: e("s_barrier")
e("s_waitcnt lgkmcnt(0)")
clamp_cl(zq=sT3)
derive_cl()
c("valid keys of the last logical tile")
e(f"s_lshl_b32 s{sV0}, s{sNTL}, 5")
e(f"s_sub_u32 s{sV0}, s{sCLV}, s{sV0}")
e(f"s_add_u32 s{sV0}, s{sV0}, 32")
e(f"s_mov_b32 s{sMT}, 0")
e(f"s_bfm_b64 s[{sM}:{sM+1}], s{sNU}, 0")
lab("L_csetup")
e("s_waitcnt vmcnt(4)")
e(f"v_and_b32 v{vT0}, 15, v{vLANE}")
e(f"v_xor_b32 v{vT1}, v{vG}, v{vT0}")
e(f"v_lshlrev_b32 v{vT2}, 8, v{vT0}")
e(f"v_lshl_add_u32 v{vKA0}, v{vT1}, 4, v{vT2}")
for s in range(1, 4):
    e(f"v_xor_b32 v{vKA0+s}, {64*s}, v{vKA0}")
e(f"v_bfe_u32 v{vT0}, v{vLANE}, 2, 2")
e(f"v_lshl_add_u32 v{vT1}, v{vG}, 2, v{vT0}")
e(f"v_lshlrev_b32 v{vT1}, 8, v{vT1}")
e(f"v_and_b32 v{vT2}, 3, v{vLANE}")
e(f"v_lshl_add_u32 v{vT1}, v{vT2}, 4, v{vT1}")
e(f"v_add_u32 v{vT1}, 8192, v{vT1}")
e(f"v_lshl_add_u32 v{vVA0}, v{vT0}, 6, v{vT1}")
for j in range(1, 4):
    e(f"v_xor_b32 v{vVA0+j}, {64*j}, v{vVA0}")
e(f"s_lshl_b32 s{sT0}, s{sW}, 3")
e(f"s_add_u32 s{sT0}, s{sT0}, {CTRL-8}")
e(f"v_mov_b32 v{vPA}, s{sT0}")
e(f"v_mov_b32 v{vM}, 0xff800000")
e(f"v_mov_b32 v{vLS}, 0")
for r in range(32): e(f"v_mov_b32 v{vO+r}, 0")
e(f"s_mov_b32 s{sCST}, 0x3e0293ee")
e(f"s_mov_b32 s{sCST+1}, 0x3e0293ee")
e(f"s_mov_b32 s{sLIMF}, 0x43800000")
e(f"s_lshl_b32 s{sFB}, s{sCI}, 2")
e(f"s_add_u32 s{sFB}, s{sFB}, {FREE}")
e("s_waitcnt vmcnt(0)")
e(f"s_cmp_eq_u32 s{sT3}, 0")
e("s_cbranch_scc1 L_c_first")
for r in range(16): e(f"v_mov_b32 v{vQ+r}, 0")

def poll(label, need):
    lab(label)
    e(f"ds_read_b64 v[{vPL}:{vPL+1}], v{vPA}")
    e(f"s_sub_u32 s{sSPIN}, s{sSPIN}, 1")
    e("s_cbranch_scc1 L_end")
    e("s_waitcnt lgkmcnt(0)")
    e(f"v_readfirstlane_b32 s{sLND}, v{vPL}")
    e(f"v_readfirstlane_b32 s{sMBF}, v{vPL+1}")
    e(f"s_cmp_ge_i32 s{sLND}, s{need}")
    e(f"s_cbranch_scc0 {label}")
VR = []
for j in range(4):
    for ee in range(2):
        for blk in range(2):
            r = vVF + (2 * j + ee) * 4 + 2 * blk
            VR.append(f"ds_read_b64_tr_b16 v[{r}:{r+1}], v{vVA+j} offset:{8*ee + 4096*blk}")
KR, QK = [], []
for blk in range(2):
    for st in range(4):
        r = vKF + (blk * 4 + st) * 4
        KR.append(f"ds_read_b128 v[{r}:{r+3}], v{vKA+st} offset:{4096*blk}")
        cc = "0" if st == 0 else f"v[{vS+4*blk}:{vS+4*blk+3}]"
        QK.append(f"v_mfma_f32_16x16x32_bf16 v[{vS+4*blk}:{vS+4*blk+3}], v[{r}:{r+3}], v[{vQ+4*st}:{vQ+4*st+3}], {cc}")
PV = [f"v_mfma_f32_16x16x32_bf16 v[{vO+4*dt}:{vO+4*dt+3}], v[{vVF+4*dt}:{vVF+4*dt+3}], v[{vP}:{vP+3}], v[{vO+4*dt}:{vO+4*dt+3}]" for dt in range(8)]
NX = [f"s_ff1_i32_b64 s{sTN}, s[{sM}:{sM+1}]",
      f"s_bitset0_b64 s[{sM}:{sM+1}], s{sTN}",
      f"s_lshl1_add_u32 s{sNK}, s{sTN}, 1",
      f"s_bitset0_b32 s{sNK}, 31",
      f"s_and_b32 s{sT0}, s{sTN}, {NSLOT-1}",
      f"s_lshl_b32 s{sSB}, s{sT0}, 14",
      f"s_lshl3_add_u32 s{sFWN}, s{sT0}, s{sFB}",
      f"s_mov_b32 s{sRD}, 0"]
KA = [f"v_add_u32 v{vKA+i}, s{sSB}, v{vKA0+i}" for i in range(4)]
ADV = [f"v_add_u32 v{vVA+i}, s{sSB}, v{vVA0+i}" for i in range(4)] + [
      f"v_mov_b32 v{vFW}, s{sFWN}",
      f"s_add_u32 s{sNEED}, s{sNK}, 1",
      f"s_add_u32 s{sT}, s{sTN}, 1",
      f"v_mov_b32 v{vFV}, s{sT}"]
def scale_o(reg):
    for r in range(0, 32, 2):
        sel = "op_sel:[0,1] op_sel_hi:[1,1]" if reg & 1 else "op_sel_hi:[1,0]"
        p = reg & ~1
        e(f"v_pk_mul_f32 v[{vO+r}:{vO+r+1}], v[{vO+r}:{vO+r+1}], v[{p}:{p+1}] {sel}")

lab("L_c_first")
for x in NX + KA: e(x)
lab("L_c_nextk")
e(f"s_cmp_lt_i32 s{sTN}, 0")
e("s_cbranch_scc1 L_c_empty")
for x in ADV: e(x)
poll("L_c_pollk", sNK)
if a.sst:
    for i, tt in ((1, 1), (2, 3), (3, 7)):
        e(f"s_cmp_lg_u32 s{sT}, {tt}")
        e(f"s_cbranch_scc1 L_sst{i}")
        stamp(i, True)
        lab(f"L_sst{i}")
for x in KR: e(x)
out.append(".p2align 3")
lab("L_c_top")
e(f"s_and_b32 s{sT0}, s{sMBF}, s{sMRG}")
e("s_cbranch_scc1 L_c_merge")
lab("L_c_top2")
e(f"s_cmp_ge_i32 s{sLND}, s{sNEED}")
e(f"s_cselect_b32 s{sVR}, 1, 0")
e("s_waitcnt lgkmcnt(0)")
e("s_cbranch_scc0 L_c_qknov")
for i in range(8):
    e(QK[i]); e(VR[2*i]); e(VR[2*i+1]); e(NX[i])
lab("L_c_sm")
e(f"ds_read_b64 v[{vPL}:{vPL+1}], v{vPA}")
e(f"s_cmp_eq_u32 s{sT}, s{sMT}")
e("s_cbranch_scc1 L_c_mask")
lab("L_c_exp")
for hb in range(2):
    for r in (4*hb, 4*hb+2):
        e(f"v_pk_fma_f32 v[{vE+r}:{vE+r+1}], v[{vS+r}:{vS+r+1}], s[{sCST}:{sCST+1}], v[{vM}:{vM+1}] op_sel_hi:[1,1,0] neg_lo:[0,0,1] neg_hi:[0,0,1]")
    for r in range(4*hb, 4*hb+4):
        e(f"v_exp_f32 v{vE+r}, v{vE+r}")
e(KA[0])
e(f"v_pk_add_f32 v[{vT0}:{vT1}], v[{vE}:{vE+1}], v[{vE+2}:{vE+3}]")
e(f"v_pk_add_f32 v[{vT2}:{vT3}], v[{vE+4}:{vE+5}], v[{vE+6}:{vE+7}]")
e(f"v_cvt_pk_bf16_f32 v{vP}, v{vE}, v{vE+1}")
e(f"v_pk_add_f32 v[{vT0}:{vT1}], v[{vT0}:{vT1}], v[{vT2}:{vT3}]")
e(f"v_cvt_pk_bf16_f32 v{vP+1}, v{vE+2}, v{vE+3}")
e(f"v_add_f32 v{vT0}, v{vT0}, v{vT1}")
c("the kept reference max is safe only while every weight stays <= 256; otherwise take the true max")
e(f"v_cmp_nge_f32 vcc, s{sLIMF}, v{vT0}")
e(f"v_cvt_pk_bf16_f32 v{vP+2}, v{vE+4}, v{vE+5}")
e(f"v_cvt_pk_bf16_f32 v{vP+3}, v{vE+6}, v{vE+7}")
for x in KA[1:]: e(x)
e("s_cbranch_vccnz L_c_slow")
lab("L_c_smdone")
e(f"v_add_f32 v{vLS}, v{vLS}, v{vT0}")
e(f"s_cmp_eq_u32 s{sVR}, 0")
e("s_cbranch_scc1 L_c_pollv")
e("s_waitcnt lgkmcnt(0)")
e(f"v_readfirstlane_b32 s{sLND}, v{vPL}")
e(f"v_readfirstlane_b32 s{sMBF}, v{vPL+1}")
e(f"s_cmp_ge_i32 s{sLND}, s{sNK}")
e("s_cbranch_scc0 L_c_pv")
e(f"ds_write_b32 v{vFW}, v{vFV}")
for i in range(8):
    e(PV[i])
    for x in ((KR[2*i], KR[2*i+1]) if i < 4 else (ADV[2*i-8], ADV[2*i-7])): e(x)
e("s_branch L_c_top")

c("V had not landed when QK was issued")
poll("L_c_pollv", sNEED)
for x in VR: e(x)
lab("L_c_pv")
for i in range(8):
    e(f"s_waitcnt lgkmcnt({14-2*i})")
    if i == 7: e(f"ds_write_b32 v{vFW}, v{vFV}")
    e(PV[i])
e(f"s_cmp_ge_i32 s{sTN}, 0")
e("s_cbranch_scc1 L_c_nextk")
lab("L_c_empty")
e(f"s_cmp_eq_u32 s{sPLN}, 0")
e("s_cbranch_scc1 L_c_noplan")
stamp(2)
e(f"s_cmp_lg_u32 s{sMRG}, 0")
e("s_cbranch_scc1 L_c_mwait0")
lab("L_c_store")
e(f"v_mov_b32 v{vT0}, v{vLS}")
e(f"v_and_b32 v{vT2}, 15, v{vLANE}")
e(f"v_lshl_add_u32 v{vT2}, v{vT2}, 8, s{sQO}")
e(f"v_permlane32_swap_b32 v{vLS}, v{vT0}")
e("s_nop 0")
e(f"v_add_f32 v{vLS}, v{vLS}, v{vT0}")
e(f"v_mov_b32 v{vT0}, v{vLS}")
e(f"v_lshl_add_u32 v{vT2}, v{vG}, 4, v{vT2}")
e("s_nop 0")
e(f"v_permlane16_swap_b32 v{vLS}, v{vT0}")
e("s_nop 0")
e(f"v_add_f32 v{vLS}, v{vLS}, v{vT0}")
e(f"v_rcp_f32 v{vMN}, v{vLS}")
e(f"s_cmp_lg_u32 s{sROLE}, 0")
scale_o(vMN)
for r in range(16):
    e(f"v_cvt_pk_bf16_f32 v{vKF+r}, v{vO+2*r}, v{vO+2*r+1}")
e("s_cbranch_scc1 L_publish")
def out_stores(fl):
    for j in range(4):
        e(f"global_store_dwordx4 v{vT2}, v[{vKF+4*j}:{vKF+4*j+3}], s[{sOUT}:{sOUT+1}] offset:{64*j}{fl}")
out_stores(OST)
e("s_branch L_fin" if a.stamps else "s_endpgm")

lab("L_c_qknov")
for i in range(8):
    e(QK[i]); e(NX[i])
e("s_branch L_c_sm")

lab("L_c_mask")
e(f"v_lshlrev_b32 v{vT0}, 2, v{vG}")
e(f"v_sub_u32 v{vT0}, s{sV0}, v{vT0}")
e(f"v_mov_b32 v{vT1}, 0xff800000")
for r in range(8):
    e(f"v_cmp_lt_i32 s[{80+2*r}:{81+2*r}], {16*(r//4)+r%4}, v{vT0}")
for r in range(8):
    e(f"v_cndmask_b32 v{vS+r}, v{vT1}, v{vS+r}, s[{80+2*r}:{81+2*r}]")
e("s_branch L_c_exp")

c("raise the reference to the true running max and rescale")
lab("L_c_slow")
e(f"s_cmp_lg_u32 s{sRD}, 0")
e("s_cbranch_scc1 L_c_smdone")
e(f"s_mov_b32 s{sRD}, 1")
e(f"v_max3_f32 v{vT0}, v{vS}, v{vS+1}, v{vS+2}")
e(f"v_max3_f32 v{vT1}, v{vS+3}, v{vS+4}, v{vS+5}")
e(f"v_max3_f32 v{vT0}, v{vT0}, v{vS+6}, v{vS+7}")
e(f"v_max_f32 v{vT0}, v{vT0}, v{vT1}")
e(f"v_mov_b32 v{vT1}, v{vT0}")
e("s_nop 1")
e(f"v_permlane32_swap_b32 v{vT0}, v{vT1}")
e("s_nop 0")
e(f"v_max_f32 v{vT0}, v{vT0}, v{vT1}")
e(f"v_mov_b32 v{vT1}, v{vT0}")
e("s_nop 1")
e(f"v_permlane16_swap_b32 v{vT0}, v{vT1}")
e("s_nop 0")
e(f"v_max_f32 v{vT0}, v{vT0}, v{vT1}")
e(f"v_mul_f32 v{vT0}, s{sCST}, v{vT0}")
e(f"v_max_f32 v{vMN}, v{vM}, v{vT0}")
e(f"v_sub_f32 v{vAL}, v{vM}, v{vMN}")
e(f"v_exp_f32 v{vAL}, v{vAL}")
e(f"v_mov_b32 v{vM}, v{vMN}")
e(f"v_mul_f32 v{vLS}, v{vLS}, v{vAL}")
scale_o(vAL)
e("s_branch L_c_exp")

lab("L_c_merge")
e(f"s_mul_i32 s{sT0}, s{sCI}, {MBS}")
e(f"s_add_u32 s{sT0}, s{sT0}, {MB}")
e(f"v_lshl_add_u32 v{vT0}, v{vLANE}, 4, s{sT0}")
e(f"v_lshl_add_u32 v{vT1}, v{vLANE}, 3, s{sT0}")
e("s_waitcnt lgkmcnt(0)")
e(f"ds_read_b64 v[{vT4}:{vT5}], v{vT1} offset:4096")
for i in range(4):
    e(f"ds_read_b128 v[{vVF+4*i}:{vVF+4*i+3}], v{vT0} offset:{1024*i}")
e(f"s_mov_b32 s{sMRG}, 0")
e("s_waitcnt lgkmcnt(4)")
e(f"v_max_f32 v{vMN}, v{vM}, v{vT4}")
e(f"v_sub_f32 v{vAL}, v{vM}, v{vMN}")
e(f"v_sub_f32 v{vT4}, v{vT4}, v{vMN}")
e(f"v_exp_f32 v{vAL}, v{vAL}")
e(f"v_exp_f32 v{vT4}, v{vT4}")
e(f"v_mov_b32 v{vM}, v{vMN}")
e(f"v_mul_f32 v{vLS}, v{vLS}, v{vAL}")
e(f"v_mul_f32 v{vT4}, v{vT4}, v{vT5}")
e(f"v_fmac_f32 v{vLS}, 0x3e800000, v{vT4}")
scale_o(vAL)
e("s_waitcnt lgkmcnt(0)")
for r in range(16):
    t = vVF + 16 + 2 * (r % 4)
    e(f"v_lshlrev_b32 v{t}, 16, v{vVF+r}")
    e(f"v_and_b32 v{t+1}, 0xffff0000, v{vVF+r}")
    e(f"v_pk_fma_f32 v[{vO+2*r}:{vO+2*r+1}], v[{t}:{t+1}], v[{vT4}:{vT4+1}], v[{vO+2*r}:{vO+2*r+1}] op_sel_hi:[1,0,1]")
e(f"s_cmp_eq_u32 s{sPLN}, 2")
e("s_cbranch_scc0 L_c_top2")
e("s_branch L_c_store")

lab("L_c_noplan")
e(f"s_mov_b32 s{sPLN}, 1")
e(f"v_mov_b32 v{vT1}, {REC0}")
lab("L_c_plan")
e(f"ds_read_b128 v[{vT2}:{vT5}], v{vT1}")
e("s_waitcnt lgkmcnt(0)")
e(f"v_readfirstlane_b32 s{sT0}, v{vT5}")
e(f"v_readfirstlane_b32 s{sM}, v{vT2}")
e(f"v_readfirstlane_b32 s{sM+1}, v{vT3}")
e(f"v_readfirstlane_b32 s{sMRG}, v{vT4}")
e(f"s_lshr_b32 s{sMT}, s{sT0}, 8")
e(f"s_add_u32 s{sMT}, s{sMT}, 1")
e(f"s_cmp_lg_u32 s{sT0}, 0")
e("s_cbranch_scc1 L_c_first")
spin_tail("L_c_plan")
lab("L_c_mwait0")
e(f"s_mov_b32 s{sPLN}, 2")
lab("L_c_mwait")
e(f"ds_read_b64 v[{vPL}:{vPL+1}], v{vPA}")
e("s_waitcnt lgkmcnt(0)")
e(f"v_readfirstlane_b32 s{sMBF}, v{vPL+1}")
e(f"s_cmp_lg_u32 s{sMBF}, 0")
e("s_cbranch_scc1 L_c_merge")
spin_tail("L_c_mwait")

def ws_base(sb):
    e(f"s_lshl3_add_u32 s{sT0}, s{sb}, s{sH}")
    e(f"s_lshl_b32 s{sT0}, s{sT0}, 9")
    if a.stamps: e(f"s_add_u32 s{sT0}, s{sT0}, 0x100000")

lab("L_publish")
if "nopub" in DBG: e("s_branch L_fin")
e(f"s_lshl_b32 s{sT2}, s{sPB}, 2")
e(f"v_mov_b32 v{vT3}, s{sT2}")
e(f"global_load_dword v{vT4}, v{vT3}, s[{sDBG}:{sDBG+1}] offset:128 sc1")
ws_base(sPB)
e(f"s_lshl2_add_u32 s{sT1}, s{sCI}, s{sT0}")
e(f"v_mov_b32 v{vT5}, s{sT1}")
e(f"s_lshl_b32 s{sT1}, s{sCI}, 7")
e(f"s_add_u32 s{sT0}, s{sT0}, s{sT1}")
e(f"v_lshl_add_u32 v{vT1}, v{vLANE}, 3, s{sT0}")
e(f"s_getreg_b32 s{sT2}, hwreg(HW_REG_XCC_ID, 0, 4)")
e(f"s_lshl_b32 s{sT2}, s{sT2}, 4")
e(f"s_or_b32 s{sT2}, s{sT2}, s{sH}")
e(f"s_or_b32 s{sT2}, s{sT2}, 0x100")
e("s_waitcnt vmcnt(0)")
e(f"v_readfirstlane_b32 s{sT1}, v{vT4}")
e(f"s_lshr_b32 s{sT1}, s{sT1}, 16")
e(f"s_cmp_eq_u32 s{sT1}, s{sT2}")
if "slow" in DBG: e("s_cmp_eq_u32 0, 1")
e("s_cbranch_scc0 L_pub_slow")
c("the receiver runs on this die and has cleared its flag words: hand over inside the shared L2")
out_stores("")
e("s_mov_b64 exec, 0xffff")
e(f"global_store_dwordx2 v{vT1}, v[{vM}:{vM+1}], s[{sWS}:{sWS+1}]")
e(f"v_mov_b32 v{vT4}, 1")
e("s_waitcnt vmcnt(0)")
e("s_mov_b64 exec, 1")
e(f"global_store_dword v{vT5}, v{vT4}, s[{sWS}:{sWS+1}] offset:256")
stamp(2)
e("s_branch L_fin")
lab("L_pub_slow")
out_stores(" sc1")
e("s_mov_b64 exec, 0xffff")
e(f"global_store_dwordx2 v{vT1}, v[{vM}:{vM+1}], s[{sWS}:{sWS+1}] sc1")
e(f"s_lshl1_add_u32 s{sT1}, s{sH}, s{sCI}")
e(f"s_lshl_b32 s{sT1}, 1, s{sT1}")
e(f"v_mov_b32 v{vT4}, s{sT1}")
e("s_waitcnt vmcnt(0)")
e("s_mov_b64 exec, 1")
e(f"global_atomic_add v{vT3}, v{vT4}, s[{sDBG}:{sDBG+1}]")
stamp(2)
e("s_branch L_fin")

vRW = vL
vKEY, vRK, vCL = 19, 20, 21
if CK and a.lateb:
    lab("L_ctl0")
    e("s_barrier")
    e("s_branch L_ctl")
lab("L_planner")
if CK:
    e(f"s_cmp_eq_u32 s{sW}, 5")
    e("s_cbranch_scc1 L_ctl0" if a.lateb else "s_cbranch_scc1 L_ctl")
e(f"s_sub_u32 s{sCI}, s{sW}, 3")
e(f"s_lshl_b32 s{sSB}, s{sCI}, 8")
e(f"s_add_u32 s{sSB}, s{sSB}, {CNT}")
e(f"v_lshl_add_u32 v{vPA}, v{vLANE}, 2, s{sSB}")
e(f"s_lshl_b32 s{sT2}, s{sCI}, 7")
e(f"s_add_u32 s{sT2}, s{sT2}, {KEYS}")
e(f"v_add_u32 v{vT3}, s{sT2}, v{vT3}")
e(f"v_lshrrev_b32 v{vT4}, 5, v{vLANE}")
e(f"v_lshl_add_u32 v{vT4}, v{vT4}, 6, s{sT2}")
e(f"v_mov_b32 v{vT5}, 2048")
if a.lateb: e("s_barrier")
e("s_waitcnt vmcnt(0)")
e(f"v_cmp_gt_i32 s[{sZQ}:{sZQ+1}], 1, v{vN}")
e(f"v_min_i32 v{vN}, v{vN}, v{vT5}")
e("s_nop 0")
e(f"v_cndmask_b32 v{vN}, v{vN}, v{vT5}, s[{sZQ}:{sZQ+1}]")
if BO:
    if a.btile:
        e(f"v_add_u32 v{vCL}, 31, v{vN}")
        e(f"v_and_b32 v{vCL}, 0xffffffe0, v{vCL}")
    else: e(f"v_mov_b32 v{vCL}, v{vN}")
e(f"v_add_u32 v{vN}, 15, v{vN}")
e(f"v_lshrrev_b32 v{vN}, 4, v{vN}")
e(f"v_lshl_or_b32 v{vKEY}, v{vN}, 5, v{vT0}")
e(f"ds_write_b32 v{vT3}, v{vKEY}")
for i in range(4):
    e(f"ds_read_b128 v[{vKF+4*i}:{vKF+4*i+3}], v{vT4} offset:{16*i}")
e(f"v_mov_b32 v{vRK}, 0")
e(f"v_readlane_b32 s{sNB}, v{vN}, s{sB}")
if BO:
    e(f"v_readlane_b32 s{sBO}, v{vCL}, s{sB}")
    for sh in (1, 2, 4, 8):
        e(f"v_add_u32_dpp v{vCL}, v{vCL}, v{vCL} row_shr:{sh} row_mask:0xf bank_mask:0xf bound_ctrl:0")
        e("s_nop 1")
    e(f"v_add_u32_dpp v{vCL}, v{vCL}, v{vCL} row_bcast:15 row_mask:0xa bank_mask:0xf")
    e("s_nop 0")
    e(f"v_readlane_b32 s{sBO+1}, v{vCL}, 31")
e("s_waitcnt lgkmcnt(0)")
c("rank of every batch by block count; the batch of rank 31-r is the partner")
for i in range(16):
    e(f"v_sub_u32 v{vKF+i}, v{vKF+i}, v{vKEY}")
for i in range(16):
    e(f"v_alignbit_b32 v{vRK}, v{vRK}, v{vKF+i}, 31")
e(f"v_bcnt_u32_b32 v{vRK}, v{vRK}, 0")
e(f"v_mov_b32 v{vT2}, v{vRK}")
derive_nb()
e(f"v_permlane32_swap_b32 v{vRK}, v{vT2}")
e("s_nop 0")
e(f"v_add_u32 v{vRK}, v{vRK}, v{vT2}")
e("s_nop 0")
e(f"v_readlane_b32 s{sRK}, v{vRK}, s{sB}")
e(f"s_sub_u32 s{sT0}, 31, s{sRK}")
e(f"v_cmp_eq_u32 vcc, s{sT0}, v{vRK}")
e(f"s_ff1_i32_b32 s{sPB}, vcc_lo")
e(f"v_readlane_b32 s{sNP}, v{vN}, s{sPB}")
e(f"s_max_u32 s{sT0}, s{sNB}, s{sNP}")
e(f"s_min_u32 s{sT1}, s{sNB}, s{sNP}")
e(f"s_sub_u32 s{sX}, s{sT0}, s{sT1}")
e(f"s_add_u32 s{sX}, s{sX}, {a.xrnd}")
e(f"s_lshr_b32 s{sX}, s{sX}, 2")
e(f"s_cmp_lt_u32 s{sT0}, 16")
e(f"s_cselect_b32 s{sX}, 0, s{sX}")
if a.xmin > 1:
    e(f"s_cmp_lt_u32 s{sX}, {a.xmin}")
    e(f"s_cselect_b32 s{sX}, 0, s{sX}")
if a.nopair: e(f"s_mov_b32 s{sX}, 0")
e(f"s_cmp_ge_u32 s{sRK}, 16")
e(f"s_cselect_b32 s{sLO}, s{sX}, 0")
e(f"s_cselect_b32 s{sTB}, 0, s{sX}")
e(f"s_cmp_eq_u32 s{sCI}, 0")
e("s_cbranch_scc1 L_pl_norow")
e(f"s_lshl_b32 s{sT0}, s{sPB}, 9")
e(f"v_lshl_add_u32 v{vT1}, v{vLANE}, 3, s{sT0}")
e(f"global_load_dwordx2 v[{vRW}:{vRW+1}], v{vT1}, s[{sBT}:{sBT+1}]")
lab("L_pl_norow")
e(f"s_sub_u32 s{sTA}, s{sNTL}, s{sLO}")
e(f"s_add_u32 s{sT}, s{sTA}, s{sTB}")
if BO:
    c("tiles to run one deeper (or shallower): proportional to this workgroup's excess of keys over the mean")
    e(f"s_sub_u32 s{sT0}, s{sTB}, s{sLO}")
    e(f"s_lshl_b32 s{sT0}, s{sT0}, 5")
    e(f"s_add_u32 s{sBO}, s{sBO}, s{sT0}")
    e(f"s_lshl_b32 s{sBO}, s{sBO}, 5")
    e(f"s_sub_u32 s{sBO}, s{sBO}, s{sBO+1}")
    e(f"s_mul_i32 s{sBO}, s{sBO}, {a.bk}")
    e(f"s_add_u32 s{sBO}, s{sBO}, 512")
    e(f"s_ashr_i32 s{sBO}, s{sBO}, 10")
    if any(XT):
        lo = sum((XT[i] & 255) << (8 * i) for i in range(4)); hi = sum((XT[4 + i] & 255) << (8 * i) for i in range(4))
        e(f"s_getreg_b32 s{sT0}, hwreg(HW_REG_XCC_ID, 0, 3)")
        e(f"s_mov_b32 s{sPC}, {lo:#x}")
        e(f"s_mov_b32 s{sPC+1}, {hi:#x}")
        e(f"s_lshl_b32 s{sT0}, s{sT0}, 3")
        e(f"s_lshr_b64 s[{sPC}:{sPC+1}], s[{sPC}:{sPC+1}], s{sT0}")
        e(f"s_sext_i32_i8 s{sT0}, s{sPC}")
        e(f"s_add_u32 s{sBO}, s{sBO}, s{sT0}")
    e(f"s_lshl_b32 s{sBO}, s{sBO}, 16")
    e(f"s_or_b32 s{sBO}, s{sBO}, s{sT}")
e(f"s_mul_i32 s{sF}, s{sT}, {a.fnum}")
e(f"s_lshr_b32 s{sF}, s{sF}, 6")
e(f"s_min_u32 s{sWB}, s{sTA}, {a.UB}")
e(f"s_sub_i32 s{sF}, s{sF}, s{sWB}")
e(f"s_max_i32 s{sF}, s{sF}, s{sTB}")
e(f"s_max_i32 s{sF}, s{sF}, 1")
e(f"v_cvt_f32_u32 v{vT2}, s{sF}")
e(f"v_subrev_u32 v{vT3}, s{sWB}, v{vLANE}")
e(f"v_rcp_f32 v{vT2}, v{vT2}")
e(f"v_mul_i32_i24 v{vT4}, s{sTB}, v{vT3}")
e(f"v_add_u32 v{vT5}, s{sTB}, v{vT4}")
e(f"v_cvt_f32_i32 v{vT4}, v{vT4}")
e(f"v_cvt_f32_i32 v{vT5}, v{vT5}")
e(f"v_add_f32 v{vT4}, 0.5, v{vT4}")
e(f"v_add_f32 v{vT5}, 0.5, v{vT5}")
e(f"v_mul_f32 v{vT4}, v{vT4}, v{vT2}")
e(f"v_mul_f32 v{vT5}, v{vT5}, v{vT2}")
e(f"v_floor_f32 v{vT4}, v{vT4}")
e(f"v_floor_f32 v{vT5}, v{vT5}")
e(f"v_cmp_gt_u32 vcc, s{sF}, v{vT3}")
e(f"v_cmp_gt_f32 s[{sMBK}:{sMBK+1}], v{vT5}, v{vT4}")
e(f"s_sub_u32 s{sT0}, s{sT}, s{sNU}")
e(f"v_subrev_u32 v{vT3}, s{sNU}, v{vLANE}")
e(f"v_cmp_gt_u32 s[{sMA}:{sMA+1}], s{sT0}, v{vT3}")
e(f"s_and_b64 s[{sMBK}:{sMBK+1}], s[{sMBK}:{sMBK+1}], vcc")
e(f"s_andn2_b64 s[{sMA}:{sMA+1}], s[{sMA}:{sMA+1}], s[{sMBK}:{sMBK+1}]")
c("own tiles to sort: logical [NU+given, ntile-1), the last one appended; donated: the partner's logical [2, 2+TB)")
if a.mfirst:
    e(f"s_ff1_i32_b64 s{sT2}, s[{sMA}:{sMA+1}]")
else:
    e(f"s_flbit_i32_b64 s{sT2}, s[{sMA}:{sMA+1}]")
    e(f"s_sub_u32 s{sT2}, 63, s{sT2}")
e(f"s_lshl_b32 s{sT2}, s{sT2}, 8")
e(f"s_or_b32 s{sWB}, s{sT2}, 1")
e(f"s_min_u32 s{sMRG}, s{sLO}, 1")
e(f"s_add_u32 s{sLO}, s{sLO}, s{sNU}")
e(f"s_sub_u32 s{sHI}, s{sNTL}, s{sLO}")
e(f"s_sub_u32 s{sT3}, s{sNTL}, 1")
e(f"s_mov_b32 s{sLBASE}, {LA}")
e(f"s_cmp_eq_u32 s{sCI}, 0")
e("s_cbranch_scc1 L_pl_a")
e(f"s_mov_b32 s{sLO}, 2")
e(f"s_mov_b32 s{sHI}, s{sTB}")
e(f"s_mov_b32 s{sT3}, -1")
e(f"s_mov_b32 s{sLBASE}, {LB}")
e("s_branch L_pl_sort")
lab("L_pl_a")
e(f"v_mov_b32 v{vT2}, s{sMA}")
e(f"v_mov_b32 v{vT3}, s{sMA+1}")
e(f"v_mov_b32 v{vT4}, s{sMRG}")
e(f"v_mov_b32 v{vT5}, s{sWB}")
e(f"v_mov_b32 v{vT1}, {REC0}")
e(f"ds_write_b128 v{vT1}, v[{vT2}:{vT5}]")
lab("L_pl_sort")
e(f"v_subrev_u32 v{vT0}, s{sLO}, v{vLANE}")
e(f"v_cmp_gt_u32 vcc, s{sHI}, v{vT0}")
e(f"v_mov_b32 v{vT5}, 1")
e("s_waitcnt vmcnt(0)")
if a.nosort:
    e(f"v_lshlrev_b32 v{vT2}, 1, v{vT0}")
    e(f"v_add_u32 v{vT3}, 1, v{vT2}")
else:
    c("counting sort of the block ids into 64 buckets of ascending physical address")
    e(f"v_lshrrev_b32 v{vT0}, 6, v{vRW}")
    e(f"v_lshrrev_b32 v{vT1}, 6, v{vRW+1}")
    e(f"v_cmp_eq_u32 s[{sRK+2}:{sRK+3}], s{sT3}, v{vLANE}")
    if a.mfirst:
        e(f"v_med3_u32 v{vT0}, v{vT0}, 1, 63")
        e(f"v_med3_u32 v{vT1}, v{vT1}, 1, 63")
    else:
        e(f"v_min_u32 v{vT0}, 62, v{vT0}")
        e(f"v_min_u32 v{vT1}, 62, v{vT1}")
    fb = 0 if a.mfirst else 63
    e(f"v_cndmask_b32 v{vT0}, v{vT0}, {fb}, s[{sRK+2}:{sRK+3}]")
    e(f"v_cndmask_b32 v{vT1}, v{vT1}, {fb}, s[{sRK+2}:{sRK+3}]")
    e(f"v_lshlrev_b32 v{vT0}, 2, v{vT0}")
    e(f"v_lshlrev_b32 v{vT1}, 2, v{vT1}")
    e(f"v_add_u32 v{vKF}, s{sSB}, v{vT0}")
    e(f"v_add_u32 v{vKF+1}, s{sSB}, v{vT1}")
    e("s_mov_b64 exec, vcc")
    e(f"ds_add_rtn_u32 v{vT2}, v{vKF}, v{vT5}")
    e(f"ds_add_rtn_u32 v{vT3}, v{vKF+1}, v{vT5}")
    e("s_mov_b64 exec, -1")
    e(f"ds_read_b32 v{vT4}, v{vPA}")
    e("s_waitcnt lgkmcnt(0)")
    e(f"v_mov_b32 v{vKF+2}, v{vT4}")
    for sh in (1, 2, 4, 8):
        e("s_nop 1")
        e(f"v_add_u32_dpp v{vT4}, v{vT4}, v{vT4} row_shr:{sh} row_mask:0xf bank_mask:0xf bound_ctrl:0")
    e("s_nop 1")
    e(f"v_add_u32_dpp v{vT4}, v{vT4}, v{vT4} row_bcast:15 row_mask:0xa bank_mask:0xf")
    e("s_nop 1")
    e(f"v_add_u32_dpp v{vT4}, v{vT4}, v{vT4} row_bcast:31 row_mask:0xc bank_mask:0xf")
    e(f"v_sub_u32 v{vT4}, v{vT4}, v{vKF+2}")
    e(f"ds_bpermute_b32 v{vT0}, v{vT0}, v{vT4}")
    e(f"ds_bpermute_b32 v{vT1}, v{vT1}, v{vT4}")
    e("s_waitcnt lgkmcnt(0)")
    e(f"v_add_u32 v{vT2}, v{vT2}, v{vT0}")
    e(f"v_add_u32 v{vT3}, v{vT3}, v{vT1}")
e(f"v_lshlrev_b32 v{vRW}, 15, v{vRW}")
e(f"v_lshlrev_b32 v{vRW+1}, 15, v{vRW+1}")
e(f"v_lshl_add_u32 v{vT2}, v{vT2}, 2, s{sLBASE}")
e(f"v_lshl_add_u32 v{vT3}, v{vT3}, 2, s{sLBASE}")
e("s_mov_b64 exec, vcc")
e(f"ds_write_b32 v{vT2}, v{vRW}")
e(f"ds_write_b32 v{vT3}, v{vRW+1}")
e("s_mov_b64 exec, -1")
e(f"v_mov_b32 v{vT1}, {REC1}")
e(f"s_cmp_eq_u32 s{sCI}, 0")
e("s_cbranch_scc0 L_pl_b")
e(f"v_mov_b32 v{vT2}, s{sMBK}")
e(f"v_mov_b32 v{vT3}, s{sMBK+1}")
e(f"v_mov_b32 v{vT4}, s{sBO if BO else sT}")
e(f"v_mov_b32 v{vT5}, s{sWB}")
e(f"ds_write_b128 v{vT1}, v[{vT2}:{vT5}]")
e("s_branch L_pl_done")
lab("L_pl_b")
e(f"ds_write_b32 v{vT1}, v{vT5} offset:16")
lab("L_pl_done")
stamp(1)
e(f"s_cmp_lg_u32 s{sMRG}, 0")
e("s_cbranch_scc1 L_fetch")
e(f"s_cmp_eq_u32 s{sTB}, 0")
e("s_cbranch_scc1 L_fin")
c("become the consumer of the donated tiles")
load_q(sPB)
e(f"s_mov_b64 s[{sM}:{sM+1}], s[{sMBK}:{sMBK+1}]")
e(f"s_mov_b32 s{sROLE}, 1")
e(f"s_mov_b32 s{sPLN}, 1")
e(f"s_mov_b32 s{sMT}, 0")
e(f"s_lshr_b32 s{sT3}, s{sZQ}, s{sPB}")
e(f"s_and_b32 s{sT3}, s{sT3}, 1")
e("s_branch L_csetup")

lab("L_fetch")
e(f"s_cmp_lg_u32 s{sCI}, 0")
e("s_cbranch_scc1 L_fin")
rows_off(sB)
ws_base(sB)
e(f"v_lshl_add_u32 v{vT1}, v{vT0}, 3, s{sT0}")
e(f"v_mov_b32 v{vFW}, s{sT0}")
e(f"s_lshl_b32 s{sT2}, s{sB}, 2")
e(f"v_mov_b32 v{vT2}, s{sT2}")
e(f"v_mov_b32 v{vPA}, {CTRL+16}")
e("s_mov_b64 exec, 1")
e(f"s_mul_i32 s{sNEED}, s{sT}, {a.pollnum}")
e(f"s_lshr_b32 s{sNEED}, s{sNEED}, 5")
e(f"s_lshl_b32 s{sT3}, s{sH}, 1")
e(f"s_mov_b32 s{sMBF}, 0")
c("wait until wave 5 has cleared the flag words and the stream is far enough")
lab("L_f_wait")
e(f"ds_read_b64 v[{vPL}:{vPL+1}], v{vPA}")
e("s_waitcnt lgkmcnt(0)")
e(f"v_readfirstlane_b32 s{sLND}, v{vPL}")
e(f"v_readfirstlane_b32 s{sT0}, v{vPL+1}")
e(f"s_cmp_ge_i32 s{sLND}, s{sNEED}")
e(f"s_cselect_b32 s{sT0}, s{sT0}, 0")
e(f"s_cmp_lg_u32 s{sT0}, 0")
e("s_cbranch_scc1 L_f_poll")
spin_tail("L_f_wait", 8)
lab("L_f_poll")
if "nopub" in DBG or "nores" in DBG: e("s_branch L_f_got")
e(f"global_load_dwordx2 v[{vPL}:{vPL+1}], v{vFW}, s[{sWS}:{sWS+1}] offset:256 sc1")
e(f"s_add_u32 s{sMBF}, s{sMBF}, 1")
e(f"s_and_b32 s{sT0}, s{sMBF}, 3")
e(f"s_mov_b32 s{sT2}, 0")
e("s_cbranch_scc1 L_f_nodbg")
e(f"global_load_dword v{vT3}, v{vT2}, s[{sDBG}:{sDBG+1}] sc1")
e("s_waitcnt vmcnt(0)")
e(f"v_readfirstlane_b32 s{sT2}, v{vT3}")
e(f"s_lshr_b32 s{sT2}, s{sT2}, s{sT3}")
lab("L_f_nodbg")
e("s_waitcnt vmcnt(0)")
e(f"v_lshl_or_b32 v{vPL}, v{vPL+1}, 1, v{vPL}")
e("s_nop 0")
e(f"v_readfirstlane_b32 s{sT0}, v{vPL}")
e(f"s_or_b32 s{sT0}, s{sT0}, s{sT2}")
e(f"s_and_b32 s{sT0}, s{sT0}, 3")
e(f"s_cmp_eq_u32 s{sT0}, 3")
e("s_cbranch_scc1 L_f_got")
spin_tail("L_f_poll", a.psleep)
lab("L_f_got")
e("s_mov_b64 exec, -1")
e(f"v_add_u32 v{vT5}, 4096, v{vT4}")
for cc in range(2):
    for j in range(4):
        r = vKF + 16 * cc + 4 * j
        e(f"global_load_dwordx4 v[{r}:{r+3}], v{vT4+cc}, s[{sOUT}:{sOUT+1}] offset:{64*j}{FLD}")
    e(f"global_load_dwordx2 v[{vM+2*cc}:{vM+2*cc+1}], v{vT1}, s[{sWS}:{sWS+1}] offset:{128*cc}{FLD}")
e(f"v_lshlrev_b32 v{vT0}, 4, v{vLANE}")
e(f"v_lshlrev_b32 v{vT1}, 3, v{vLANE}")
e(f"v_add_u32 v{vT0}, {MB}, v{vT0}")
e(f"v_add_u32 v{vT1}, {MB}, v{vT1}")
e(f"v_mov_b32 v{vT2}, {CTRL+4}")
e(f"v_mov_b32 v{vT3}, 1")
for cc in range(2):
    e(f"s_waitcnt vmcnt({5 - 5*cc})")
    for j in range(4):
        r = vKF + 16 * cc + 4 * j
        e(f"ds_write_b128 v{vT0}, v[{r}:{r+3}] offset:{MBS*cc + 1024*j}")
    e(f"ds_write_b64 v{vT1}, v[{vM+2*cc}:{vM+2*cc+1}] offset:{MBS*cc + 4096}")
    e(f"ds_write_b32 v{vT2}, v{vT3} offset:{8*cc}")
stamp(2)
if CK:
    e("s_branch L_fin")
    c("wave 5: workgroups that share an L2 post their remaining work; one that lags prefetches deeper")
    lab("L_ctl")
    e(f"v_mov_b32 v{vT1}, {REC0}")
    e(f"v_mov_b32 v{vPA}, {CTRL+32}")
    e(f"v_mov_b32 v{vFW}, {DEPW}")
    e(f"s_lshl_b32 s{sT0}, s{sB}, 2")
    e(f"v_mov_b32 v{vG}, s{sT0}")
    e(f"v_mov_b32 v{vFV}, v{vT3}")
    if any(XT):
        lo = sum((XT[i] & 255) << (8 * i) for i in range(4)); hi = sum((XT[4 + i] & 255) << (8 * i) for i in range(4))
        e(f"s_getreg_b32 s{sT0}, hwreg(HW_REG_XCC_ID, 0, 3)")
        e(f"s_mov_b32 s{sPC}, {lo:#x}")
        e(f"s_mov_b32 s{sPC+1}, {hi:#x}")
        e(f"s_lshl_b32 s{sT0}, s{sT0}, 3")
        e(f"s_lshr_b64 s[{sPC}:{sPC+1}], s[{sPC}:{sPC+1}], s{sT0}")
        e(f"s_sext_i32_i8 s{sBO}, s{sPC}")
    else:
        e(f"s_mov_b32 s{sBO}, 0")
    lab("L_k_plan")
    e(f"ds_read_b128 v[{vT2}:{vT5}], v{vT1} offset:16")
    e(f"ds_read_b32 v{vT0}, v{vT1} offset:8")
    e("s_waitcnt lgkmcnt(0)")
    e(f"v_readfirstlane_b32 s{sT0}, v{vT5}")
    e(f"v_readfirstlane_b32 s{sT}, v{vT4}")
    e(f"v_readfirstlane_b32 s{sMRG}, v{vT0}")
    e(f"s_cmp_lg_u32 s{sT0}, 0")
    e("s_cbranch_scc1 L_k_go")
    spin_tail("L_k_plan", 8)
    lab("L_k_go")
    e(f"s_cmp_eq_u32 s{sMRG}, 0")
    e("s_cbranch_scc1 L_k_nores")
    c("a partial is expected: clear its flag words before anything is posted")
    ws_base(sB)
    e(f"v_mov_b32 v{vT0}, s{sT0}")
    e(f"v_mov_b32 v{vT2}, 0")
    e(f"v_mov_b32 v{vT3}, 0")
    e(f"v_mov_b32 v{vT4}, {CTRL+20}")
    e(f"v_mov_b32 v{vT5}, 1")
    e("s_mov_b64 exec, 1")
    if "nores" not in DBG: e(f"global_store_dwordx2 v{vT0}, v[{vT2}:{vT3}], s[{sWS}:{sWS+1}] offset:256")
    e("s_waitcnt vmcnt(0)")
    e(f"ds_write_b32 v{vT4}, v{vT5}")
    e("s_mov_b64 exec, -1")
    lab("L_k_nores")
    e(f"s_and_b32 s{sT0}, s{sDBG}, 127")
    e("s_cbranch_scc1 L_fin")
    c("posted word: remaining half tiles + 1 | head << 16 | die << 20 | flags cleared << 24")
    e(f"s_getreg_b32 s{sFB}, hwreg(HW_REG_XCC_ID, 0, 4)")
    e(f"s_lshl4_add_u32 s{sFB}, s{sMRG}, s{sFB}")
    e(f"s_lshl4_add_u32 s{sFB}, s{sFB}, s{sH}")
    e(f"s_lshl_b32 s{sFB}, s{sFB}, 16")
    e(f"s_lshl1_add_u32 s{sTN}, s{sT}, 1")
    e(f"v_mov_b32 v{vT2}, s{sFB}")
    e("s_mov_b64 exec, 1")
    e(f"global_store_dword v{vG}, v{vT2}, s[{sDBG}:{sDBG+1}] offset:128")
    e("s_mov_b64 exec, -1")
    e(f"s_mov_b32 s{sNEED}, {a.cstart}")
    e(f"s_mov_b32 s{sVR}, 0")
    lab("L_k_next")
    e(f"s_sub_u32 s{sT0}, s{sTN}, s{sNEED}")
    e(f"s_cmp_lt_i32 s{sT0}, {a.cstop}")
    e("s_cbranch_scc1 L_fin")
    lab("L_k_w")
    e(f"ds_read_b32 v{vPL}, v{vPA}")
    e("s_waitcnt lgkmcnt(0)")
    e(f"v_readfirstlane_b32 s{sLND}, v{vPL}")
    e(f"s_cmp_ge_i32 s{sLND}, s{sNEED}")
    e("s_cbranch_scc1 L_k_a")
    spin_tail("L_k_w", 1)
    lab("L_k_a")
    e(f"s_sub_u32 s{sNK}, s{sTN}, s{sLND}")
    e(f"s_or_b32 s{sT0}, s{sNK}, s{sFB}")
    e(f"v_mov_b32 v{vT2}, s{sT0}")
    e("s_mov_b64 exec, 1")
    e(f"global_store_dword v{vG}, v{vT2}, s[{sDBG}:{sDBG+1}] offset:128")
    e("s_mov_b64 exec, -1")
    e(f"global_load_dword v{vT0}, v{vFV}, s[{sDBG}:{sDBG+1}] offset:128 {a.cld}")
    if a.gxm:
        e(f"s_add_u32 s{sVR}, s{sVR}, 1")
        e(f"s_and_b32 s{sT0}, s{sVR}, {(1 << a.gx) - 1}")
        e(f"s_or_b32 s{sT0}, s{sT0}, s{sB}")
        e("s_cbranch_scc1 L_k_nog")
        e(f"s_lshl_b32 s{sT0}, s{sH}, 2")
        e(f"v_mov_b32 v{vT4}, s{sT0}")
        e(f"v_mov_b32 v{vT5}, 0")
        e("s_mov_b64 exec, 1")
        if "st" in a.gxm: e(f"global_store_dword v{vT4}, v{vT5}, s[{sDBG}:{sDBG+1}] offset:4 sc1")
        e("s_mov_b64 exec, -1")
        if "ld" in a.gxm: e(f"global_load_dword v{vT3}, v{vFV}, s[{sDBG}:{sDBG+1}] sc1")
        lab("L_k_nog")
    e(f"s_add_u32 s{sNEED}, s{sLND}, {a.cstep}")
    e(f"s_mov_b32 s{sT3}, 0")
    e(f"s_cmp_gt_i32 s{sBO}, 0")
    e(f"s_cselect_b32 s{sT3}, 1, s{sT3}")
    e(f"s_cmp_lt_i32 s{sBO}, 0")
    e(f"s_cselect_b32 s{sT3}, -1, s{sT3}")
    e(f"s_sub_u32 s{sBO}, s{sBO}, s{sT3}")
    e("s_waitcnt vmcnt(0)")
    e(f"v_and_b32 v{vT0}, 0xffff, v{vT0}")
    e(f"v_cmp_ne_u32 vcc, 0, v{vT0}")
    for sh in (1, 2, 4, 8):
        e("s_nop 1")
        e(f"v_add_u32_dpp v{vT0}, v{vT0}, v{vT0} row_shr:{sh} row_mask:0xf bank_mask:0xf bound_ctrl:0")
    e("s_nop 1")
    e(f"v_add_u32_dpp v{vT0}, v{vT0}, v{vT0} row_bcast:15 row_mask:0xa bank_mask:0xf")
    e(f"s_bcnt1_i32_b32 s{sT1}, vcc_lo")
    e(f"v_readlane_b32 s{sT0}, v{vT0}, 31")
    c("4 * (own * count - sum) + bias * count against threshold * count")
    e(f"s_mul_i32 s{sT2}, s{sNK}, s{sT1}")
    e(f"s_sub_u32 s{sT2}, s{sT2}, s{sT0}")
    e(f"s_lshl_b32 s{sT2}, s{sT2}, 2")
    for th, inc, cmp in ((CTH[0], -1, "lt"), (CTH[1], 1, "gt"), (CTH[2], 1, "gt")):
        e(f"s_mul_i32 s{sT0}, s{sT1}, {th - a.cbias}")
        e(f"s_cmp_{cmp}_i32 s{sT2}, s{sT0}")
        e(f"s_cselect_b32 s{sT0}, {inc}, 0")
        e(f"s_add_u32 s{sT3}, s{sT3}, s{sT0}")
    e(f"s_max_i32 s{sT3}, s{sT3}, -1")
    e(f"s_min_i32 s{sT3}, s{sT3}, 2")
    if "noact" in DBG: e(f"s_mov_b32 s{sT3}, 0")
    e(f"v_mov_b32 v{vT2}, s{sT3}")
    e(f"ds_write_b32 v{vFW}, v{vT2}")
    e("s_branch L_k_next")

lab("L_fin")
if a.stamps:
    if "fewst" in DBG:
        e(f"s_cmp_gt_u32 s{sW}, 2")
        e("s_cbranch_scc1 L_end")
    e("s_mov_b64 exec, -1")
    e("s_waitcnt vmcnt(0) lgkmcnt(0)")
    stamp(3)
    e(f"s_getreg_b32 s{sT0}, hwreg(HW_REG_XCC_ID)")
    e("s_waitcnt lgkmcnt(0)")
    for i in range(8):
        e(f"v_mov_b32 v{64+i}, s{sST+i}")
    e(f"v_mov_b32 v72, s{sT0}")
    e(f"v_mov_b32 v73, 0")
    e(f"v_mov_b32 v74, s{sT}")
    e(f"v_mov_b32 v75, 0")
    e(f"s_mul_i32 s{sT0}, s2, {NW}")
    e(f"s_add_u32 s{sT0}, s{sT0}, s{sW}")
    e(f"s_lshl_b32 s{sT0}, s{sT0}, 6")
    e(f"v_mov_b32 v80, s{sT0}")
    e("s_mov_b64 exec, 1")
    e(f"global_store_dwordx4 v80, v[64:67], s[{sWS}:{sWS+1}]")
    e(f"global_store_dwordx4 v80, v[68:71], s[{sWS}:{sWS+1}] offset:16")
    e(f"global_store_dwordx4 v80, v[72:75], s[{sWS}:{sWS+1}] offset:32")
lab("L_end")
e("s_endpgm")
out.append('.section .rodata,"a"')
out.append(".p2align 6")
out.append(f".amdhsa_kernel {NAME}_kernel")
out.append(f"  .amdhsa_next_free_vgpr {NV}")
out.append("  .amdhsa_next_free_sgpr 100")
out.append(f"  .amdhsa_accum_offset {NV}")
out.append("  .amdhsa_group_segment_fixed_size 0")
out.append("  .amdhsa_kernarg_size 64")
out.append("  .amdhsa_user_sgpr_count 2")
out.append("  .amdhsa_user_sgpr_kernarg_segment_ptr 1")
out.append("  .amdhsa_system_sgpr_workgroup_id_x 1")
out.append("  .amdhsa_float_denorm_mode_32 3")
out.append(".end_amdhsa_kernel")
open(a.o, "w").write("\n".join(out) + "\n")
```

```python
import sys, argparse
NAME = "standalone__paged_block_table_kv_pagedattention__sampling"
HEADER = open("cdna_kernels/" + NAME + ".s.ref").read().split("; Override")[0]

ap = argparse.ArgumentParser()
ap.add_argument("-o", default="/dev/stdout")
ap.add_argument("--map", default="plain")
ap.add_argument("--hrot", type=int, default=0)
ap.add_argument("--D", type=int, default=20)
ap.add_argument("--D0", type=int, default=26)
ap.add_argument("--NS", type=int, default=6)
ap.add_argument("--G", type=int, default=50)
ap.add_argument("--fnum", type=int, default=42)
ap.add_argument("--pollnum", type=int, default=57)
ap.add_argument("--psleep", type=int, default=12)
ap.add_argument("--UB", type=int, default=8)
ap.add_argument("--mfirst", type=int, default=1)
ap.add_argument("--cth", default="-3,3,8")
ap.add_argument("--cbias", type=int, default=8)
ap.add_argument("--cstart", type=int, default=8)
ap.add_argument("--cstop", type=int, default=6)
ap.add_argument("--cstep", type=int, default=4)
ap.add_argument("--xt", default="6,-7,5,-12,8,-3,7,-6")
ap.add_argument("--NUM", type=int, default=4)
ap.add_argument("--last", type=int, default=1)
ap.add_argument("--nosort", action="store_true")
ap.add_argument("--nopair", action="store_true")
ap.add_argument("--limf", default="0x43800000")
ap.add_argument("--dbg", default="")
ap.add_argument("--stamps", action="store_true")
a = ap.parse_args()
NT = " nt"
DBG = set(a.dbg.split(","))
D, D0, NS, G = a.D, a.D0, a.NS, a.G
assert 24 <= D0 <= 32 and (D - 2) // 8 == (D + 1) // 8 == 2 and 32 <= G < 64
CTH = [int(x) for x in a.cth.split(",")]
XT = [int(x) for x in a.xt.split(",")]
DIVM = {5: (205, 10), 6: (43, 8), 7: (147, 10), 8: (1, 3), 10: (205, 11), 12: (171, 11)}[NS]
assert all((u * DIVM[0]) >> DIVM[1] == u // NS for u in range(129))
NW = 6
KBYTES = 4100 * 32768
SPIN = 1 << 22
NUM = a.NUM

RING = NS * 8192
PST = RING
MB = PST + G * 2048
MBS = 4864
CTRL = MB + 2 * MBS
FREE = CTRL + 512
REC0 = FREE + 128
REC1 = REC0 + 16
DEPW = REC1 + 32
CNT = FREE + 256
LA = CNT + 512
LB = LA + 512
KEYS = LB + 512
LDS = KEYS + 256
assert LDS <= 163840, LDS
WS0 = 0x100000 if a.stamps else 0
WSA = WS0 + 0x40000

out = []
def e(s): out.append("    " + s)
def lab(s): out.append(s + ":")
def c(s): out.append("    ; " + s)

sQ, sK, sV, sBT, sCL, sOUT, sDBG, sWS = 4, 6, 8, 10, 12, 14, 16, 18
sRD = 20
sB, sH, sW, sCLV = 28, 29, 30, 31
sT0, sT1, sT2, sT3 = 32, 33, 34, 35
sPC = 36
sSPIN = 38
sNB, sNTL, sNU, sT = 39, 40, 41, 42
sST = 64
sE = 72
sB0, sB1, sFB1, sTT, sLIM, sPH, sSLOT, sTM = 46, 47, 48, 49, 50, 51, 52, 53
sMK = 54
sU, sTA0, sTA1, sPASS, sTMC, sRST = 56, 57, 58, 59, 60, 61
sM = 46
sCI, sLND, sMBF, sNEED, sMRG, sMT, sROLE, sQO, sPLN, sSB = 48, 49, 50, 51, 52, 56, 57, 58, 59, 60
sV0 = 61
sCST = 62
sTN, sNK, sFWN, sFB, sPRE, sREDO, sLIMF, sPO = 96, 97, 98, 99, 100, 101, 53, 43
sMALL, sRS = 24, 26
sOFF, sTB0, sTB1, sTTC, sFIRST = 20, 21, 22, 23, 44
sZQ = 54
sRK, sPB, sNP, sX, sTA, sTB, sF, sWB = 80, 81, 82, 83, 84, 85, 86, 87
sMA, sMBK = 88, 90
sLO, sHI, sLBASE = 92, 93, 94
sBO = 56
vLANE = 1
vT0, vT1, vT2, vT3, vT4, vT5 = 2, 3, 4, 5, 6, 7
vL = 8
vKOFF, vVOFF = 10, 14
vCA, vCNT, vFA, vR = 18, 19, 20, 21
vF = 22
vR4 = 24
vOF = 28
vCUR = 36
vL2 = 44
vDP, vDA, vOOB = 46, 47, 48
vKA0, vVA0, vXA = 8, 12, 16
vPA0, vPW = 20, 21
vM, vLS, vMN, vAL, vPA, vFW = 24, 25, 26, 27, 28, 29
vPL = 30
vQ = 32
vS = 48
vP = 56
vG, vPF, vFV, vN = 60, 61, 62, 63
vKF = 64
vVF = 96
vO = 128
vE = 160
vPN = 160
NV = 168

def stamp(i):
    if a.stamps: e(f"s_memrealtime s[{sST+2*i}:{sST+2*i+1}]")
def clamp_cl(zq=None):
    c("context length: <=0 -> every key masked => uniform weights over 2048 keys (zero Q); >2048 -> 2048")
    e(f"s_cmp_lt_i32 s{sCLV}, 1")
    if zq is not None: e(f"s_cselect_b32 s{zq}, 1, 0")
    e(f"s_cselect_b32 s{sCLV}, 2048, s{sCLV}")
    e(f"s_min_i32 s{sCLV}, s{sCLV}, 2048")
def derive_nb():
    e(f"s_add_u32 s{sNTL}, s{sNB}, 1")
    e(f"s_lshr_b32 s{sNTL}, s{sNTL}, 1")
    e(f"s_sub_u32 s{sNU}, s{sNTL}, 1")
    e(f"s_min_u32 s{sNU}, s{sNU}, {NUM}")
def derive_cl():
    e(f"s_add_u32 s{sNB}, s{sCLV}, 15")
    e(f"s_lshr_b32 s{sNB}, s{sNB}, 4")
    derive_nb()
def spin_tail(label, sleep=1):
    e(f"s_sleep {sleep}")
    e(f"s_sub_u32 s{sSPIN}, s{sSPIN}, 1")
    e(f"s_cbranch_scc0 {label}")
    e("s_endpgm")
FIN = "s_branch L_fin" if a.stamps else "s_endpgm"

out.append(HEADER.rstrip())
out.append(f"; @launch grid=(256,1,1) block=({64*NW},1,1) lds={LDS}")
out.append('.amdgcn_target "amdgcn-amd-amdhsa--gfx950"')
out.append(".text")
out.append(f".globl {NAME}_kernel")
out.append(".p2align 8")
out.append(f".type {NAME}_kernel,@function")
lab(f"{NAME}_kernel")
e("s_load_dwordx16 s[4:19], s[0:1], 0")
e(f"s_lshr_b32 s{sB}, s2, 3")
e(f"s_cmp_ge_u32 s{sB}, 32")
e("s_cbranch_scc1 L_end")
stamp(0)
e(f"v_lshrrev_b32 v{vT0}, 6, v0")
e(f"v_and_b32 v{vLANE}, 63, v0")
e(f"v_readfirstlane_b32 s{sW}, v{vT0}")
c("waves 1 and 3 pull this kernel's code into L2")
e(f"s_getpc_b64 s[{sPC}:{sPC+1}]")
lab("L_pc")
e(f"v_bfe_u32 v{vT2}, v0, 7, 1")
e(f"v_lshl_add_u32 v{vT2}, v{vT2}, 6, v{vLANE}")
e(f"v_lshlrev_b32 v{vT2}, 7, v{vT2}")
e(f"v_min_u32 v{vT2}, L_end - L_pc, v{vT2}")
e(f"s_bitcmp1_b32 10, s{sW}")
e("s_cbranch_scc0 L_nopf")
e(f"global_load_dword v{vPF}, v{vT2}, s[{sPC}:{sPC+1}]")
lab("L_nopf")
c("clear the control words and the sort counters")
e(f"v_mov_b32 v{vT2}, 0")
e(f"v_lshlrev_b32 v{vT4}, 2, v0")
e(f"v_add_u32 v{vT4}, {CTRL}, v{vT4}")
e(f"ds_write_b32 v{vT4}, v{vT2}")
if a.map == "rot":
    e(f"s_add_u32 s{sH}, s2, s{sB}")
    e(f"s_and_b32 s{sH}, s{sH}, 7")
elif a.hrot:
    e(f"s_add_u32 s{sH}, s2, {a.hrot}")
    e(f"s_and_b32 s{sH}, s{sH}, 7")
else:
    e(f"s_and_b32 s{sH}, s2, 7")
e(f"s_lshl3_add_u32 s{sT2}, s{sB}, s{sH}")
e(f"s_lshl_b32 s{sT2}, s{sT2}, 13")
e(f"v_lshl_add_u32 v{vT5}, v{vLANE}, 7, s{sT2}")
e(f"s_lshl_b32 s{sT0}, s{sB}, 9")
e(f"v_lshl_add_u32 v{vT2}, v{vLANE}, 3, s{sT0}")
e(f"s_lshl_b32 s{sT1}, s{sB}, 2")
e(f"v_and_b32 v{vT0}, 31, v{vLANE}")
e(f"v_lshlrev_b32 v{vT3}, 2, v{vT0}")
e(f"s_mov_b32 s{sSPIN}, {SPIN}")
e(f"s_cmp_lg_u32 s{sW}, 2")
e("s_waitcnt lgkmcnt(0)")
e(f"s_load_dwordx8 s[{sE}:{sE+7}], s[{sBT}:{sBT+1}], s{sT0}")
e(f"s_load_dword s{sCLV}, s[{sCL}:{sCL+1}], s{sT1}")
c("wave 2 touches the 64 lines of this workgroup's queries while memory is still idle")
e("s_cbranch_scc1 L_noq")
e(f"global_load_dword v{vPF}, v{vT5}, s[{sQ}:{sQ+1}]")
lab("L_noq")
e(f"global_load_dwordx2 v[{vL}:{vL+1}], v{vT2}, s[{sBT}:{sBT+1}]")
e(f"global_load_dword v{vN}, v{vT3}, s[{sCL}:{sCL+1}]")
lab("L_loads_issued")
e(f"s_cmp_lg_u32 s{sW}, 0")
e("s_cbranch_scc1 L_notloader")

e("s_setprio 3")
c("per-lane source offsets of the LDS-DMA pieces (bank swizzle applied on the source side)")
e(f"v_lshrrev_b32 v{vR}, 4, v{vLANE}")
e(f"v_and_b32 v{vT1}, 15, v{vLANE}")
e(f"s_lshl_b32 s{sT0}, s{sH}, 8")
e(f"v_lshl_add_u32 v{vT4}, v{vR}, 11, s{sT0}")
e(f"v_xor_b32 v{vT2}, v{vR}, v{vT1}")
e(f"v_lshl_add_u32 v{vKOFF}, v{vT2}, 4, v{vT4}")
for j in range(1, 4):
    e(f"v_xor_b32 v{vT3}, {64*j}, v{vKOFF}")
    e(f"v_add_u32 v{vKOFF+j}, {7168*j}, v{vT3}")
e(f"s_mov_b32 s{sRD}, s{sK}")
e(f"s_and_b32 s{sRD+1}, s{sK+1}, 0xffff")
e(f"s_mov_b32 s{sRD+2}, {KBYTES}")
e(f"s_mov_b32 s{sRD+3}, 0x20000")
e("s_waitcnt lgkmcnt(0)")
clamp_cl()
c("the first stream tiles are logical tiles 0..3 (those that are not the last one)")
for t in range(NUM):
    e(f"s_cmp_le_u32 s{sCLV}, {32*(t+1)}")
    e(f"s_cbranch_scc1 {'L_ld_b' if t < 2 else 'L_ld_pre'}")
    if t == 0: stamp(1)
    for j in range(8):
        i = 8 * t + j
        if j % 4 == 0:
            e(f"s_movk_i32 m0, {1024*i}")
            e(f"s_lshl_b32 s{sB0}, s{sE+i//4}, 15")
        if i >= D0: e(f"s_waitcnt vmcnt({D0-1})")
        e(f"buffer_load_dwordx4 v{vKOFF+j%4}, s[{sRD}:{sRD+3}], s{sB0} offen offset:{1024*(j%4)}{NT} lds")
    if t == 1:
        lab("L_ld_b")
        e("s_barrier")
lab("L_ld_pre")
derive_cl()
j0 = (D - 1) % 8
e(f"v_lshlrev_b32 v{vT3}, 2, v{vR}")
e(f"v_xor_b32 v{vT3}, v{vT3}, v{vT1}")
e(f"v_lshl_add_u32 v{vVOFF}, v{vT3}, 4, v{vT4}")
for j in range(1, 4):
    e(f"v_add_u32 v{vVOFF+j}, {7168*j}, v{vVOFF}")
for j in range(4): e(f"v_mov_b32 v{vCUR+j}, v{vKOFF+j}")
def fill_off():
    for k in range(8): e(f"v_mov_b32 v{vOF+k}, v{vCUR+k%4}")
fill_off()
e(f"s_lshl_b32 s{sSLOT}, s{sNU}, 13")
e(f"s_mov_b32 s{sT}, s{sNU}")
e(f"s_mov_b32 s{sU}, s{sNU}")
e(f"v_lshlrev_b32 v{vCA}, 3, v{vLANE}")
e(f"v_add_u32 v{vCA}, {CTRL}, v{vCA}")
e(f"v_mov_b32 v{vFA}, {FREE}")
e(f"v_mov_b32 v{vF}, 0")
e(f"v_mov_b32 v{vF+1}, 0")
e(f"v_mov_b32 v{vDP}, 0")
e(f"v_mov_b32 v{vDA}, {DEPW}")
e(f"s_sub_u32 s{sT0}, s{sNU}, 3")
e(f"v_mov_b32 v{vCNT}, s{sT0}")
c("lanes of the last logical tile whose rows lie inside the context")
e(f"s_lshl_b32 s{sT0}, s{sNTL}, 5")
e(f"s_sub_u32 s{sT0}, s{sCLV}, s{sT0}")
e(f"s_add_u32 s{sT0}, s{sT0}, 32")
e(f"v_bfrev_b32 v{vOOB}, 1")
e(f"v_sub_u32 v{vT1}, s{sT0}, v{vR}")
for k in range(8):
    e(f"v_cmp_lt_i32 s[{80+2*k}:{81+2*k}], {4*k}, v{vT1}")
e(f"s_mov_b32 s{sPASS}, 0")
e(f"s_mov_b32 s{sRST}, 0")
e(f"s_mov_b32 s{sTA0}, 0")
e(f"s_mov_b32 s{sPH}, 1")
lab("L_ld_plan")
e(f"v_mov_b32 v{vT1}, {REC1}")
e(f"ds_read_b128 v[{vR4}:{vR4+3}], v{vT1}")
e(f"ds_read_b32 v{vT2}, v{vT1} offset:16")
e("s_waitcnt lgkmcnt(0)")
e(f"v_or_b32 v{vT2}, s{sPH}, v{vT2}")
e(f"v_and_b32 v{vT2}, v{vT2}, v{vR4+3}")
e(f"v_readfirstlane_b32 s{sMK}, v{vR4}")
e(f"v_readfirstlane_b32 s{sT0}, v{vT2}")
e(f"v_readfirstlane_b32 s{sMK+1}, v{vR4+1}")
e(f"v_readfirstlane_b32 s{sTT}, v{vR4+2}")
e(f"v_readfirstlane_b32 s{sTM}, v{vR4+3}")
e(f"s_cmp_eq_u32 s{sT0}, 0")
e("s_cbranch_scc1 L_ld_noplan")
e(f"v_mbcnt_lo_u32_b32 v{vT0}, s{sMK}, 0")
e(f"v_mbcnt_hi_u32_b32 v{vT0}, s{sMK+1}, v{vT0}")
e(f"v_sub_u32 v{vT1}, v{vLANE}, v{vT0}")
e(f"v_lshlrev_b32 v{vT0}, 3, v{vT0}")
e(f"v_lshlrev_b32 v{vT1}, 3, v{vT1}")
e(f"v_add_u32 v{vT0}, {LB}, v{vT0}")
e(f"v_add_u32 v{vT1}, {LA}, v{vT1}")
e(f"v_cndmask_b32 v{vT0}, v{vT1}, v{vT0}, s[{sMK}:{sMK+1}]")
e(f"ds_read_b64 v[{vL2}:{vL2+1}], v{vT0}")
e(f"s_lshr_b32 s{sTM}, s{sTM}, 8")
e(f"s_mov_b32 s{sFB1}, -1")
e(f"s_cmp_eq_u32 s{sPH}, 0")
e("s_cbranch_scc1 L_ld_plan2")
c("first visit: run only up to the first donated tile (its list may not be sorted yet)")
stamp(2)
e(f"s_ff1_i32_b64 s{sFB1}, s[{sMK}:{sMK+1}]")
e(f"s_mov_b32 s{sTMC}, s{sTM}")
e(f"s_min_u32 s{sTA1}, s{sTT}, {G}")
e(f"s_mov_b32 s{sPH}, 0")
e("s_waitcnt vmcnt(24)")
e(f"ds_write_b32 v{vCA}, v{vCNT}")
lab("L_ld_plan2")
e("s_waitcnt lgkmcnt(0)")
lab("L_ld_go")
e(f"s_min_u32 s{sLIM}, s{sTA1}, s{sFB1}")
e(f"s_min_u32 s{sLIM}, s{sLIM}, s{sTMC}")
e(f"s_cmp_ge_u32 s{sT}, s{sLIM}")
e("s_cbranch_scc1 L_ld_lim2")
def unit_body(depth):
    for j in range(8):
        if j % 4 == 0: e(f"s_add_u32 m0, s{sSLOT}, {1024*j}")
        e(f"s_waitcnt vmcnt({depth-1})")
        e(f"buffer_load_dwordx4 v{vOF+j}, s[{sRD}:{sRD+3}], s{sB0 + j//4} offen offset:{1024*(j%4)}{NT} lds")
        if j == (depth - 1) % 8:
            e(f"v_add_u32 v{vCNT}, 1, v{vCNT}")
            e(f"ds_write_b32 v{vCA}, v{vCNT}")
        if j == 0:
            e(f"s_lshr_b32 s{sT0}, s{sT2}, 10")
            e(f"s_add_u32 s{sT0}, s{sT0}, {FREE}")
            e(f"v_mov_b32 v{vFA}, s{sT0}")
            e(f"s_add_u32 s{sT}, s{sT}, 1")
            e(f"s_add_u32 s{sU}, s{sU}, 1")
        if j == 6:
            c("prefetch the FREE words of the next slot and the depth code")
            e(f"ds_read_b64 v[{vF}:{vF+1}], v{vFA}")
            e(f"ds_read_b32 v{vDP}, v{vDA}")
            e(f"s_mov_b32 s{sSLOT}, s{sT2}")
out.append(".p2align 3")
lab("L_ld")
e(f"v_readlane_b32 s{sB0}, v{vL2}, s{sT}")
e(f"v_readlane_b32 s{sB1}, v{vL2+1}, s{sT}")
e(f"s_sub_u32 s{sT1}, s{sU}, {NS-1}")
e(f"s_add_u32 s{sT2}, s{sSLOT}, 8192")
e(f"s_cmp_eq_u32 s{sT2}, {RING}")
e(f"s_cselect_b32 s{sT2}, 0, s{sT2}")
lab("L_ld_chk")
e("s_waitcnt lgkmcnt(0)")
e(f"v_min_i32 v{vT0}, v{vF}, v{vF+1}")
e(f"v_readfirstlane_b32 s{sT3}, v{vDP}")
e(f"v_readfirstlane_b32 s{sT0}, v{vT0}")
e(f"s_cmp_ge_i32 s{sT0}, s{sT1}")
e("s_cbranch_scc0 L_ld_wait")
e(f"s_cmp_lg_u32 s{sT3}, 0")
e("s_cbranch_scc1 L_ld_var")
unit_body(D)
lab("L_ld_next")
e(f"s_cmp_lt_u32 s{sT}, s{sLIM}")
e("s_cbranch_scc1 L_ld")
e(f"s_cmp_eq_u32 s{sRST}, 0")
e("s_cbranch_scc1 L_ld_lim2")
e(f"s_mov_b32 s{sRST}, 0")
lab("L_ld_fill")
fill_off()
e("s_branch L_ld_go")
lab("L_ld_lim2")
e(f"s_cmp_eq_u32 s{sT}, s{sTA1}")
e("s_cbranch_scc1 L_ld_pass")
e(f"s_cmp_eq_u32 s{sT}, s{sFB1}")
e("s_cbranch_scc1 L_ld_plan")
c("the last logical tile: rows past the context are not fetched (their lanes read zeros)")
for k in range(8):
    e(f"v_cndmask_b32 v{vOF+k}, v{vOOB}, v{vCUR+k%4}, s[{80+2*k}:{81+2*k}]")
e(f"s_mov_b32 s{sTMC}, -1")
e(f"s_mov_b32 s{sRST}, 1")
e(f"s_add_u32 s{sLIM}, s{sT}, 1")
e("s_branch L_ld")
lab("L_ld_pass")
e(f"s_cmp_lg_u32 s{sPASS}, 0")
e("s_cbranch_scc1 L_ld_tok")
e(f"s_mov_b32 s{sRD}, s{sV}")
e(f"s_and_b32 s{sRD+1}, s{sV+1}, 0xffff")
for j in range(4): e(f"v_mov_b32 v{vCUR+j}, v{vVOFF+j}")
lab("L_ld_sw")
e(f"s_xor_b32 s{sPASS}, s{sPASS}, 1")
e(f"s_mov_b32 s{sT}, s{sTA0}")
e(f"s_cmp_ge_u32 s{sTM}, s{sTA0}")
e(f"s_cselect_b32 s{sTMC}, s{sTM}, -1")
e("s_branch L_ld_fill")
lab("L_ld_tok")
e(f"s_cmp_lt_u32 s{sTA1}, s{sTT}")
e("s_cbranch_scc1 L_ld_more")
for r in (16, 8, 0):
    e(f"v_add_u32 v{vCNT}, 1, v{vCNT}")
    e(f"s_waitcnt vmcnt({r})")
    e(f"ds_write_b32 v{vCA}, v{vCNT}")
e(FIN)
lab("L_ld_more")
e(f"s_mov_b32 s{sTA0}, s{sTA1}")
e(f"s_mov_b32 s{sTA1}, s{sTT}")
e(f"s_mov_b32 s{sRD}, s{sK}")
e(f"s_and_b32 s{sRD+1}, s{sK+1}, 0xffff")
for j in range(4): e(f"v_mov_b32 v{vCUR+j}, v{vKOFF+j}")
e("s_branch L_ld_sw")
lab("L_ld_wait")
e(f"ds_read_b64 v[{vF}:{vF+1}], v{vFA}")
e(f"s_sub_u32 s{sSPIN}, s{sSPIN}, 1")
e("s_cbranch_scc0 L_ld_chk")
e("s_endpgm")
lab("L_ld_noplan")
spin_tail("L_ld_plan")
lab("L_ld_var")
e(f"s_cmp_eq_u32 s{sT3}, 1")
e("s_cbranch_scc1 L_ld_v2")
e(f"s_cmp_eq_u32 s{sT3}, 2")
e("s_cbranch_scc1 L_ld_v3")
unit_body(D - 1)
e("s_branch L_ld_next")
lab("L_ld_v2")
unit_body(D + 1)
e("s_branch L_ld_next")
lab("L_ld_v3")
unit_body(D + 2)
e("s_branch L_ld_next")

lab("L_notloader")
e(f"s_cmp_ge_u32 s{sW}, 3")
e("s_cbranch_scc1 L_planner")
e(f"s_sub_u32 s{sCI}, s{sW}, 1")
def rows_off(sb):
    e(f"s_lshl3_add_u32 s{sQO}, s{sb}, s{sH}")
    e(f"s_lshl1_add_u32 s{sQO}, s{sQO}, s{sCI}")
    e(f"s_lshl_b32 s{sQO}, s{sQO}, 12")
    e(f"v_and_b32 v{vT0}, 15, v{vLANE}")
    e(f"v_lshrrev_b32 v{vG}, 4, v{vLANE}")
def load_q(sb):
    rows_off(sb)
    e(f"v_lshl_add_u32 v{vT4}, v{vT0}, 8, s{sQO}")
    e(f"v_lshl_add_u32 v{vT4}, v{vG}, 4, v{vT4}")
    for s in range(4):
        e(f"global_load_dwordx4 v[{vQ+4*s}:{vQ+4*s+3}], v{vT4}, s[{sQ}:{sQ+1}] offset:{64*s}")
load_q(sB)
e("s_barrier")
e(f"s_mov_b32 s{sROLE}, 0")
e(f"s_mov_b32 s{sPLN}, 0")
e(f"s_mov_b32 s{sMRG}, 0")
e("s_waitcnt lgkmcnt(0)")
clamp_cl(zq=sT3)
derive_cl()
c("valid keys of the last logical tile")
e(f"s_lshl_b32 s{sV0}, s{sNTL}, 5")
e(f"s_sub_u32 s{sV0}, s{sCLV}, s{sV0}")
e(f"s_add_u32 s{sV0}, s{sV0}, 32")
e(f"s_bfm_b64 s[{sM}:{sM+1}], s{sNU}, 0")
lab("L_csetup")
e(f"s_mov_b32 s{sMT}, 0")
e(f"s_mov_b32 s{sOFF}, 0")
e(f"s_mov_b32 s{sTB0}, 0")
e(f"s_mov_b32 s{sFIRST}, 1")
e(f"s_mov_b64 s[{sRS}:{sRS+1}], 0")
e("s_waitcnt vmcnt(4)")
e(f"v_and_b32 v{vT0}, 15, v{vLANE}")
e(f"v_xor_b32 v{vT1}, v{vG}, v{vT0}")
e(f"v_lshlrev_b32 v{vT2}, 8, v{vT0}")
e(f"v_lshl_add_u32 v{vKA0}, v{vT1}, 4, v{vT2}")
for s in range(1, 4):
    e(f"v_xor_b32 v{vKA0+s}, {64*s}, v{vKA0}")
e(f"v_bfe_u32 v{vT0}, v{vLANE}, 2, 2")
e(f"v_lshl_add_u32 v{vT1}, v{vG}, 2, v{vT0}")
e(f"v_lshlrev_b32 v{vT1}, 8, v{vT1}")
e(f"v_and_b32 v{vT2}, 3, v{vLANE}")
e(f"v_lshl_add_u32 v{vT1}, v{vT2}, 4, v{vT1}")
e(f"v_lshl_add_u32 v{vVA0}, v{vT0}, 6, v{vT1}")
for j in range(1, 4):
    e(f"v_xor_b32 v{vVA0+j}, {64*j}, v{vVA0}")
e(f"s_lshl_b32 s{sT0}, s{sCI}, 10")
e(f"s_add_u32 s{sT0}, s{sT0}, {PST}")
e(f"v_lshl_add_u32 v{vPA0}, v{vLANE}, 4, s{sT0}")
e(f"s_lshl_b32 s{sT0}, s{sW}, 3")
e(f"s_add_u32 s{sT0}, s{sT0}, {CTRL-8}")
e(f"v_mov_b32 v{vPA}, s{sT0}")
e(f"v_mov_b32 v{vM}, 0xff800000")
e(f"v_mov_b32 v{vLS}, 0")
for r in range(0, 32, 2): e(f"v_mov_b64 v[{vO+r}:{vO+r+1}], 0")
e(f"s_mov_b32 s{sCST}, 0x3e0293ee")
e(f"s_mov_b32 s{sCST+1}, 0x3e0293ee")
e(f"s_mov_b32 s{sLIMF}, {a.limf}")
e(f"s_lshl2_add_u32 s{sFB}, s{sCI}, {FREE}")
e("s_waitcnt vmcnt(0)")
e(f"s_cmp_eq_u32 s{sT3}, 0")
e("s_cbranch_scc1 L_k_first")
for r in range(0, 16, 2): e(f"v_mov_b64 v[{vQ+r}:{vQ+r+1}], 0")

def poll(label):
    lab(label)
    e(f"ds_read_b64 v[{vPL}:{vPL+1}], v{vPA}")
    e(f"s_sub_u32 s{sSPIN}, s{sSPIN}, 1")
    e("s_cbranch_scc1 L_end")
    e("s_waitcnt lgkmcnt(0)")
    e(f"v_readfirstlane_b32 s{sLND}, v{vPL}")
    e(f"s_cmp_ge_i32 s{sLND}, s{sNK}")
    e(f"s_cbranch_scc0 {label}")
VR = []
for j in range(4):
    for ee in range(2):
        for blk in range(2):
            r = vVF + (2 * j + ee) * 4 + 2 * blk
            VR.append(f"ds_read_b64_tr_b16 v[{r}:{r+1}], v{vXA+j} offset:{8*ee + 4096*blk}")
KR, QK = [], []
for blk in range(2):
    for st in range(4):
        r = vKF + (blk * 4 + st) * 4
        KR.append(f"ds_read_b128 v[{r}:{r+3}], v{vXA+st} offset:{4096*blk}")
        cc = "0" if st == 0 else f"v[{vS+4*blk}:{vS+4*blk+3}]"
        QK.append(f"v_mfma_f32_16x16x32_bf16 v[{vS+4*blk}:{vS+4*blk+3}], v[{r}:{r+3}], v[{vQ+4*st}:{vQ+4*st+3}], {cc}")
PV = [f"v_mfma_f32_16x16x32_bf16 v[{vO+4*dt}:{vO+4*dt+3}], v[{vVF+4*dt}:{vVF+4*dt+3}], v[{vP}:{vP+3}], v[{vO+4*dt}:{vO+4*dt+3}]" for dt in range(8)]
NX = [f"s_ff1_i32_b64 s{sTN}, s[{sM}:{sM+1}]",
      f"s_bitset0_b64 s[{sM}:{sM+1}], s{sTN}",
      f"s_add_u32 s{sT1}, s{sTN}, s{sOFF}",
      f"s_mul_i32 s{sT0}, s{sT1}, {DIVM[0]}",
      f"s_lshr_b32 s{sT0}, s{sT0}, {DIVM[1]}",
      f"s_mul_i32 s{sT0}, s{sT0}, {NS}",
      f"s_sub_u32 s{sT0}, s{sT1}, s{sT0}",
      f"s_lshl_b32 s{sSB}, s{sT0}, 13",
      f"s_lshl3_add_u32 s{sFWN}, s{sT0}, s{sFB}",
      f"s_and_b32 s{sT0}, s{sTN}, 0x40000000",
      f"s_add_u32 s{sNK}, s{sT1}, 1",
      f"s_or_b32 s{sNK}, s{sNK}, s{sT0}",
      f"s_sub_u32 s{sPO}, s{sTN}, s{sTB0}",
      f"s_lshl_b32 s{sPO}, s{sPO}, 11"]
KA = [f"v_add_u32 v{vXA+i}, s{sSB}, v{vKA0+i}" for i in range(4)]
VA = [f"v_add_u32 v{vXA+i}, s{sSB}, v{vVA0+i}" for i in range(4)]
ADV = [f"v_mov_b32 v{vFW}, s{sFWN}",
       f"v_mov_b32 v{vFV}, s{sNK}",
       f"v_add_u32 v{vPW}, s{sPO}, v{vPA0}",
       f"s_add_u32 s{sT}, s{sTN}, 1"]
def scale_o(reg):
    for r in range(0, 32, 2):
        sel = "op_sel:[0,1] op_sel_hi:[1,1]" if reg & 1 else "op_sel_hi:[1,0]"
        p = reg & ~1
        e(f"v_pk_mul_f32 v[{vO+r}:{vO+r+1}], v[{vO+r}:{vO+r+1}], v[{p}:{p+1}] {sel}")

lab("L_k_first")
for x in NX + KA + ADV: e(x)
lab("L_k_next")
e(f"s_cmp_lt_i32 s{sTN}, 0")
e("s_cbranch_scc1 L_k_empty")
poll("L_k_poll")
for x in KR: e(x)
e("s_waitcnt lgkmcnt(0)")
out.append(".p2align 3")
lab("L_k_top")
e("s_waitcnt lgkmcnt(1)")
e(f"ds_write_b32 v{vFW}, v{vFV}")
e(f"ds_read_b64 v[{vPL}:{vPL+1}], v{vPA}")
fill = NX + KA
for i in range(8):
    e(QK[i])
    for x in fill[2*i:2*i+2]: e(x)
for x in fill[16:]: e(x)
e(f"s_mov_b32 s{sREDO}, 0")
e("s_waitcnt lgkmcnt(0)")
e(f"v_readfirstlane_b32 s{sLND}, v{vPL}")
e(f"s_cmp_ge_i32 s{sLND}, s{sNK}")
e(f"s_cselect_b32 s{sPRE}, 1, 0")
e("s_cbranch_scc0 L_k_nopre")
for x in KR: e(x)
lab("L_k_nopre")
e(f"s_cmp_eq_u32 s{sT}, s{sMT}")
e("s_cbranch_scc1 L_k_mask")
lab("L_k_exp")
for hb in range(2):
    for r in (4*hb, 4*hb+2):
        e(f"v_pk_fma_f32 v[{vE+r}:{vE+r+1}], v[{vS+r}:{vS+r+1}], s[{sCST}:{sCST+1}], v[{vM}:{vM+1}] op_sel_hi:[1,1,0] neg_lo:[0,0,1] neg_hi:[0,0,1]")
    for r in range(4*hb, 4*hb+4):
        e(f"v_exp_f32 v{vE+r}, v{vE+r}")
e(f"v_pk_add_f32 v[{vT0}:{vT1}], v[{vE}:{vE+1}], v[{vE+2}:{vE+3}]")
e(f"v_pk_add_f32 v[{vT2}:{vT3}], v[{vE+4}:{vE+5}], v[{vE+6}:{vE+7}]")
e(f"v_cvt_pk_bf16_f32 v{vP}, v{vE}, v{vE+1}")
e(f"v_pk_add_f32 v[{vT0}:{vT1}], v[{vT0}:{vT1}], v[{vT2}:{vT3}]")
e(f"v_cvt_pk_bf16_f32 v{vP+1}, v{vE+2}, v{vE+3}")
e(f"v_add_f32 v{vT0}, v{vT0}, v{vT1}")
c("the kept reference max is safe only while every weight stays <= 256; otherwise take the true max")
e(f"v_cmp_nge_f32 vcc, s{sLIMF}, v{vT0}")
e(f"v_cvt_pk_bf16_f32 v{vP+2}, v{vE+4}, v{vE+5}")
e(f"v_cvt_pk_bf16_f32 v{vP+3}, v{vE+6}, v{vE+7}")
e(ADV[0]); e(ADV[1])
e("s_nop 0")
e("s_cbranch_vccnz L_k_slow")
lab("L_k_done")
e(f"ds_write_b128 v{vPW}, v[{vP}:{vP+3}]")
e(f"v_add_f32 v{vLS}, v{vLS}, v{vT0}")
e(ADV[3])
e(f"s_cmp_lg_u32 s{sPRE}, 0")
e(ADV[2])
e("s_cbranch_scc1 L_k_top")
e("s_branch L_k_next")

lab("L_k_mask")
e(f"v_lshlrev_b32 v{vT0}, 2, v{vG}")
e(f"v_sub_u32 v{vT0}, s{sV0}, v{vT0}")
e(f"v_mov_b32 v{vT1}, 0xff800000")
for r in range(8):
    e(f"v_cmp_lt_i32 s[{80+2*r}:{81+2*r}], {16*(r//4)+r%4}, v{vT0}")
for r in range(8):
    e(f"v_cndmask_b32 v{vS+r}, v{vT1}, v{vS+r}, s[{80+2*r}:{81+2*r}]")
e("s_branch L_k_exp")

def alpha_addr():
    e(f"s_lshl_b32 s{sT0}, s2, 6")
    e(f"s_add_u32 s{sT0}, s{sT0}, s{sT}")
    e(f"s_lshl1_add_u32 s{sT0}, s{sT0}, s{sCI}")
    e(f"s_lshl_b32 s{sT0}, s{sT0}, 6")
    e(f"s_add_u32 s{sT0}, s{sT0}, {WSA}")
    e(f"v_and_b32 v{vT1}, 15, v{vLANE}")
    e(f"v_lshl_add_u32 v{vT1}, v{vT1}, 2, s{sT0}")
c("raise the reference to the true running max; the accumulator is rescaled when pass 2 reaches this tile")
lab("L_k_slow")
e(f"s_cmp_lg_u32 s{sREDO}, 0")
e("s_cbranch_scc1 L_k_done")
e(f"s_mov_b32 s{sREDO}, 1")
e(f"v_max3_f32 v{vT0}, v{vS}, v{vS+1}, v{vS+2}")
e(f"v_max3_f32 v{vT1}, v{vS+3}, v{vS+4}, v{vS+5}")
e(f"v_max3_f32 v{vT0}, v{vT0}, v{vS+6}, v{vS+7}")
e(f"v_max_f32 v{vT0}, v{vT0}, v{vT1}")
e(f"v_mov_b32 v{vT1}, v{vT0}")
e("s_nop 1")
e(f"v_permlane32_swap_b32 v{vT0}, v{vT1}")
e("s_nop 0")
e(f"v_max_f32 v{vT0}, v{vT0}, v{vT1}")
e(f"v_mov_b32 v{vT1}, v{vT0}")
e("s_nop 1")
e(f"v_permlane16_swap_b32 v{vT0}, v{vT1}")
e("s_nop 0")
e(f"v_max_f32 v{vT0}, v{vT0}, v{vT1}")
e(f"v_mul_f32 v{vT0}, s{sCST}, v{vT0}")
e(f"v_max_f32 v{vMN}, v{vM}, v{vT0}")
e(f"v_sub_f32 v{vAL}, v{vM}, v{vMN}")
e(f"v_exp_f32 v{vAL}, v{vAL}")
e(f"v_mov_b32 v{vM}, v{vMN}")
e(f"s_cmp_lg_u32 s{sFIRST}, 0")
e(f"s_mov_b32 s{sFIRST}, 0")
e(f"v_mul_f32 v{vLS}, v{vLS}, v{vAL}")
e("s_cbranch_scc1 L_k_exp")
alpha_addr()
e(f"global_store_dword v{vT1}, v{vAL}, s[{sWS}:{sWS+1}]")
e(f"s_sub_u32 s{sT0}, s{sT}, 1")
e(f"s_bitset1_b64 s[{sRS}:{sRS+1}], s{sT0}")
e("s_branch L_k_exp")

RLO, RHI = 0xffffffff, (1 << (G - 32)) - 1
lab("L_k_noplan")
e(f"s_mov_b32 s{sPLN}, 1")
e(f"v_mov_b32 v{vT1}, {REC0}")
lab("L_k_plan")
e(f"ds_read_b128 v[{vT2}:{vT5}], v{vT1}")
e("s_waitcnt lgkmcnt(0)")
e(f"v_readfirstlane_b32 s{sT0}, v{vT5}")
e(f"v_readfirstlane_b32 s{sM}, v{vT2}")
e(f"v_readfirstlane_b32 s{sM+1}, v{vT3}")
e(f"v_readfirstlane_b32 s{sTTC}, v{vT4}")
e(f"s_cmp_lg_u32 s{sT0}, 0")
e("s_cbranch_scc1 L_k_got")
spin_tail("L_k_plan")
lab("L_k_got")
e(f"s_lshr_b32 s{sMT}, s{sT0}, 8")
e(f"s_add_u32 s{sMT}, s{sMT}, 1")
e(f"s_and_b32 s{sMRG}, s{sTTC}, 1")
e(f"s_lshr_b32 s{sTTC}, s{sTTC}, 8")
e(f"s_min_u32 s{sTB1}, s{sTTC}, {G}")
e(f"s_bfm_b64 s[{sMALL}:{sMALL+1}], s{sNU}, 0")
e(f"s_or_b64 s[{sMALL}:{sMALL+1}], s[{sMALL}:{sMALL+1}], s[{sM}:{sM+1}]")
e(f"s_and_b32 s{sM+1}, s{sM+1}, {RHI:#x}")
e("s_branch L_k_first")
lab("L_v_more")
c("second batch")
e(f"s_mov_b32 s{sTB0}, s{sTB1}")
e(f"s_mov_b32 s{sTB1}, s{sTTC}")
e(f"s_mov_b32 s{sOFF}, s{sTB0}")
e(f"s_mov_b32 s{sMALL}, 0")
e(f"s_andn2_b32 s{sMALL+1}, s{sMALL+1}, {RHI:#x}")
e(f"s_mov_b64 s[{sM}:{sM+1}], s[{sMALL}:{sMALL+1}]")
e("s_branch L_k_first")
lab("L_k_empty")
e(f"s_cmp_eq_u32 s{sPLN}, 0")
e("s_cbranch_scc1 L_k_noplan")
e(f"s_mov_b32 s{sOFF}, s{sTB1}")
e(f"s_mov_b32 s{sM}, s{sMALL}")
e(f"s_and_b32 s{sM+1}, s{sMALL+1}, {RHI:#x}")
e(f"s_cmp_eq_u32 s{sTB0}, 0")
e(f"s_cselect_b32 s{sM+1}, s{sM+1}, s{sMALL+1}")
for x in NX + VA: e(x)
e(f"ds_read_b64 v[{vPL}:{vPL+1}], v{vPA}")
e(f"s_cmp_lt_i32 s{sTN}, 0")
e("s_cbranch_scc1 L_v_empty")
lab("L_v_next")
for x in ADV: e(x)
if a.last:
    e(f"s_cmp_eq_u64 s[{sM}:{sM+1}], 0")
    e("s_cbranch_scc1 L_v_islast")
lab("L_v_next2")
e(f"ds_read_b128 v[{vPN}:{vPN+3}], v{vPW}")
e("s_waitcnt lgkmcnt(1)")
e(f"v_readfirstlane_b32 s{sLND}, v{vPL}")
e(f"s_cmp_ge_i32 s{sLND}, s{sNK}")
e("s_cbranch_scc1 L_v_rd")
poll("L_v_poll")
lab("L_v_rd")
for x in VR: e(x)
out.append(".p2align 3")
lab("L_v_top")
for x in NX + VA: e(x)
e(f"s_sub_u32 s{sT0}, s{sT}, 1")
e(f"s_bitcmp1_b64 s[{sRS}:{sRS+1}], s{sT0}")
e("s_cbranch_scc1 L_v_resc")
lab("L_v_top2")
e("s_waitcnt lgkmcnt(14)")
e(f"v_readfirstlane_b32 s{sMBF}, v{vPL+1}")
e(f"v_readfirstlane_b32 s{sLND}, v{vPL}")
e(f"v_mov_b64 v[{vP}:{vP+1}], v[{vPN}:{vPN+1}]")
e(f"v_mov_b64 v[{vP+2}:{vP+3}], v[{vPN+2}:{vPN+3}]")
e(f"s_and_b32 s{sT0}, s{sMBF}, s{sMRG}")
e("s_cbranch_scc1 L_v_merge")
lab("L_v_top3")
e(f"s_cmp_ge_i32 s{sLND}, s{sNK}")
e("s_cbranch_scc0 L_v_pv")
e(ADV[2])
e("s_waitcnt lgkmcnt(0)")
e(f"ds_write_b32 v{vFW}, v{vFV}")
e(f"ds_read_b64 v[{vPL}:{vPL+1}], v{vPA}")
e(f"ds_read_b128 v[{vPN}:{vPN+3}], v{vPW}")
for i in range(8):
    e(PV[i]); e(VR[2*i]); e(VR[2*i+1])
e(ADV[0]); e(ADV[1]); e(ADV[3])
e("s_branch L_v_top")
lab("L_v_pv")
for i in range(8):
    if i: e(f"s_waitcnt lgkmcnt({14-2*i})")
    if i == 7:
        e(f"ds_write_b32 v{vFW}, v{vFV}")
        e(f"ds_read_b64 v[{vPL}:{vPL+1}], v{vPA}")
    e(PV[i])
e(f"s_cmp_ge_i32 s{sTN}, 0")
e("s_cbranch_scc1 L_v_next")
lab("L_v_empty")
e(f"s_cmp_lt_u32 s{sTB1}, s{sTTC}")
e("s_cbranch_scc1 L_v_more")
stamp(2)
e(f"s_cmp_lg_u32 s{sMRG}, 0")
e("s_cbranch_scc1 L_c_mwait0")
lab("L_c_store")
e(f"v_mov_b32 v{vT0}, v{vLS}")
e(f"v_and_b32 v{vT2}, 15, v{vLANE}")
e(f"v_lshl_add_u32 v{vT2}, v{vT2}, 8, s{sQO}")
e(f"v_permlane32_swap_b32 v{vLS}, v{vT0}")
e("s_nop 0")
e(f"v_add_f32 v{vLS}, v{vLS}, v{vT0}")
e(f"v_mov_b32 v{vT0}, v{vLS}")
e(f"v_lshl_add_u32 v{vT2}, v{vG}, 4, v{vT2}")
e("s_nop 0")
e(f"v_permlane16_swap_b32 v{vLS}, v{vT0}")
e("s_nop 0")
e(f"v_add_f32 v{vLS}, v{vLS}, v{vT0}")
e(f"v_rcp_f32 v{vMN}, v{vLS}")
e(f"s_cmp_lg_u32 s{sROLE}, 0")
scale_o(vMN)
for r in range(16):
    e(f"v_cvt_pk_bf16_f32 v{vKF+r}, v{vO+2*r}, v{vO+2*r+1}")
e("s_cbranch_scc1 L_publish")
def out_stores(fl):
    for j in range(4):
        e(f"global_store_dwordx4 v{vT2}, v[{vKF+4*j}:{vKF+4*j+3}], s[{sOUT}:{sOUT+1}] offset:{64*j}{fl}")
out_stores("")
e(FIN)

def l_total():
    e(f"v_mov_b32 v{vT0}, v{vLS}")
    e(f"v_and_b32 v{vT2}, 15, v{vLANE}")
    e(f"v_lshl_add_u32 v{vT2}, v{vT2}, 8, s{sQO}")
    e(f"v_permlane32_swap_b32 v{vLS}, v{vT0}")
    e("s_nop 0")
    e(f"v_add_f32 v{vLS}, v{vLS}, v{vT0}")
    e(f"v_mov_b32 v{vT0}, v{vLS}")
    e(f"v_lshl_add_u32 v{vT2}, v{vG}, 4, v{vT2}")
    e("s_nop 0")
    e(f"v_permlane16_swap_b32 v{vLS}, v{vT0}")
    e("s_nop 0")
    e(f"v_add_f32 v{vLS}, v{vLS}, v{vT0}")
    e(f"v_rcp_f32 v{vMN}, v{vLS}")
if a.last:
    lab("L_v_islast")
    c("closing tile of an owner with nothing pending: take the short path")
    e(f"s_sub_u32 s{sT0}, s{sTTC}, s{sTB1}")
    e(f"s_or_b32 s{sT0}, s{sT0}, s{sMRG}")
    e(f"s_or_b32 s{sT0}, s{sT0}, s{sROLE}")
    e(f"s_or_b32 s{sT0}, s{sT0}, s{sRS}")
    e(f"s_or_b32 s{sT0}, s{sT0}, s{sRS+1}")
    e("s_cbranch_scc1 L_v_next2")
    e(f"ds_read_b128 v[{vP}:{vP+3}], v{vPW}")
    e(f"ds_read_b64 v[{vPL}:{vPL+1}], v{vPA}")
    l_total()
    e("s_waitcnt lgkmcnt(0)")
    e(f"v_readfirstlane_b32 s{sLND}, v{vPL}")
    e(f"s_cmp_ge_i32 s{sLND}, s{sNK}")
    e("s_cbranch_scc1 L_v_lrd")
    poll("L_v_lpoll")
    lab("L_v_lrd")
    for x in VR: e(x)
    def fin_j(j):
        r = []
        for k in range(4):
            q = vO + 8 * j + 2 * k
            r.append(f"v_pk_mul_f32 v[{q}:{q+1}], v[{q}:{q+1}], v[{vMN}:{vMN+1}] op_sel_hi:[1,0]")
        for k in range(4):
            r.append(f"v_cvt_pk_bf16_f32 v{vKF+4*j+k}, v{vO+8*j+2*k}, v{vO+8*j+2*k+1}")
        r.append(f"global_store_dwordx4 v{vT2}, v[{vKF+4*j}:{vKF+4*j+3}], s[{sOUT}:{sOUT+1}] offset:{64*j}")
        return r
    f0 = fin_j(0)
    for i in range(8):
        e(f"s_waitcnt lgkmcnt({14-2*i})")
        e(PV[i])
        if i == 5: e(f0[0]); e(f0[1])
        if i == 6: e(f0[2]); e(f0[3])
    stamp(2)
    for x in f0[4:] + fin_j(1) + fin_j(2) + fin_j(3): e(x)
    e(f"ds_write_b32 v{vFW}, v{vFV}")
    e(FIN)

lab("L_v_resc")
e(f"s_bitset0_b64 s[{sRS}:{sRS+1}], s{sT0}")
alpha_addr()
e("s_waitcnt vmcnt(0)")
e(f"global_load_dword v{vAL}, v{vT1}, s[{sWS}:{sWS+1}] sc1")
e("s_waitcnt vmcnt(0)")
scale_o(vAL)
e("s_branch L_v_top2")

lab("L_v_merge")
c("only once no rescale is pending; the reference max stays, so the partial's max must not be far above it")
e(f"s_cmp_eq_u64 s[{sRS}:{sRS+1}], 0")
e("s_cbranch_scc0 L_v_top3")
lab("L_c_merge")
e(f"s_mul_i32 s{sT0}, s{sCI}, {MBS}")
e(f"s_add_u32 s{sT0}, s{sT0}, {MB}")
e(f"v_and_b32 v{vT1}, 15, v{vLANE}")
e(f"v_mul_u32_u24 v{vT0}, 272, v{vT1}")
e(f"v_lshl_add_u32 v{vT0}, v{vG}, 4, v{vT0}")
e(f"v_add_u32 v{vT0}, s{sT0}, v{vT0}")
e(f"v_lshl_add_u32 v{vT1}, v{vT1}, 3, s{sT0}")
e("s_waitcnt lgkmcnt(0)")
e(f"ds_write_b32 v{vFW}, v{vFV}")
e(f"ds_read_b64 v[{vT4}:{vT5}], v{vT1} offset:4352")
for i in range(4):
    e(f"ds_read_b128 v[{vKF+4*i}:{vKF+4*i+3}], v{vT0} offset:{64*i}")
e(f"s_cmp_eq_u32 s{sPLN}, 2")
e("s_waitcnt lgkmcnt(0)")
e("s_cbranch_scc1 L_c_mfin")
e(f"v_sub_f32 v{vT4}, v{vT4}, v{vM}")
e(f"v_cmp_nge_f32 vcc, 0x41800000, v{vT4}")
e(f"s_mov_b32 s{sMRG}, 2")
e("s_nop 3")
e("s_cbranch_vccnz L_v_top3")
e("s_branch L_c_madd")
lab("L_c_mfin")
e(f"v_max_f32 v{vMN}, v{vM}, v{vT4}")
e(f"v_sub_f32 v{vAL}, v{vM}, v{vMN}")
e(f"v_sub_f32 v{vT4}, v{vT4}, v{vMN}")
e(f"v_exp_f32 v{vAL}, v{vAL}")
e("s_nop 0")
e(f"v_mul_f32 v{vLS}, v{vLS}, v{vAL}")
scale_o(vAL)
lab("L_c_madd")
e(f"v_exp_f32 v{vT4}, v{vT4}")
e(f"s_mov_b32 s{sMRG}, 0")
e(f"v_mul_f32 v{vT4}, v{vT4}, v{vT5}")
e(f"v_fmac_f32 v{vLS}, 0x3e800000, v{vT4}")
for r in range(16):
    t = vKF + 16 + 2 * (r % 4)
    e(f"v_lshlrev_b32 v{t}, 16, v{vKF+r}")
    e(f"v_and_b32 v{t+1}, 0xffff0000, v{vKF+r}")
    e(f"v_pk_fma_f32 v[{vO+2*r}:{vO+2*r+1}], v[{t}:{t+1}], v[{vT4}:{vT4+1}], v[{vO+2*r}:{vO+2*r+1}] op_sel_hi:[1,0,1]")
e(f"s_cmp_eq_u32 s{sPLN}, 2")
e("s_cbranch_scc0 L_v_top3")
e("s_branch L_c_store")
lab("L_c_mwait0")
e(f"s_mov_b32 s{sPLN}, 2")
lab("L_c_mwait")
e(f"ds_read_b64 v[{vPL}:{vPL+1}], v{vPA}")
e("s_waitcnt lgkmcnt(0)")
e(f"v_readfirstlane_b32 s{sMBF}, v{vPL+1}")
e(f"s_cmp_lg_u32 s{sMBF}, 0")
e("s_cbranch_scc1 L_c_merge")
spin_tail("L_c_mwait")

def ws_base(sb):
    e(f"s_lshl3_add_u32 s{sT0}, s{sb}, s{sH}")
    e(f"s_lshl_b32 s{sT0}, s{sT0}, 9")
    if WS0: e(f"s_add_u32 s{sT0}, s{sT0}, {WS0}")

lab("L_publish")
e(f"s_lshl_b32 s{sT2}, s{sPB}, 2")
e(f"v_mov_b32 v{vT3}, s{sT2}")
e(f"v_lshlrev_b32 v{vT4}, 1, v{vT3}")
e(f"v_add_u32 v{vT4}, {CTRL+68}, v{vT4}")
e(f"ds_read_b32 v{vT4}, v{vT4}")
ws_base(sPB)
e(f"s_lshl2_add_u32 s{sT1}, s{sCI}, s{sT0}")
e(f"v_mov_b32 v{vT5}, s{sT1}")
e(f"s_lshl_b32 s{sT1}, s{sCI}, 7")
e(f"s_add_u32 s{sT0}, s{sT0}, s{sT1}")
e(f"v_lshl_add_u32 v{vT1}, v{vLANE}, 3, s{sT0}")
e(f"s_getreg_b32 s{sT2}, hwreg(HW_REG_XCC_ID, 0, 4)")
e(f"s_lshl_b32 s{sT2}, s{sT2}, 4")
e(f"s_or_b32 s{sT2}, s{sT2}, s{sH}")
e(f"s_or_b32 s{sT2}, s{sT2}, 0x100")
e("s_waitcnt lgkmcnt(0)")
e(f"v_readfirstlane_b32 s{sT1}, v{vT4}")
e(f"s_lshr_b32 s{sT1}, s{sT1}, 16")
e(f"s_cmp_eq_u32 s{sT1}, s{sT2}")
e("s_cbranch_scc1 L_pub_fast")
e(f"global_load_dword v{vT4}, v{vT3}, s[{sDBG}:{sDBG+1}] offset:128 sc1")
e("s_waitcnt vmcnt(0)")
e(f"v_readfirstlane_b32 s{sT1}, v{vT4}")
e(f"s_lshr_b32 s{sT1}, s{sT1}, 16")
e(f"s_cmp_eq_u32 s{sT1}, s{sT2}")
e("s_cbranch_scc0 L_pub_slow")
lab("L_pub_fast")
c("the receiver runs on this die and has cleared its flag words: hand over inside the shared L2")
out_stores("")
e("s_mov_b64 exec, 0xffff")
e(f"global_store_dwordx2 v{vT1}, v[{vM}:{vM+1}], s[{sWS}:{sWS+1}]")
e(f"v_mov_b32 v{vT4}, 1")
e("s_waitcnt vmcnt(0)")
e("s_mov_b64 exec, 1")
e(f"global_store_dword v{vT5}, v{vT4}, s[{sWS}:{sWS+1}] offset:256")
e(FIN)
lab("L_pub_slow")
c("any other placement: write through to memory, then set a bit with a device-wide atomic")
out_stores(" sc1")
e("s_mov_b64 exec, 0xffff")
e(f"global_store_dwordx2 v{vT1}, v[{vM}:{vM+1}], s[{sWS}:{sWS+1}] sc1")
e(f"s_lshl1_add_u32 s{sT1}, s{sH}, s{sCI}")
e(f"s_lshl_b32 s{sT1}, 1, s{sT1}")
e(f"v_mov_b32 v{vT4}, s{sT1}")
e("s_waitcnt vmcnt(0)")
e("s_mov_b64 exec, 1")
e(f"global_atomic_add v{vT3}, v{vT4}, s[{sDBG}:{sDBG+1}]")
e(FIN)

vRW = vL
vKEY, vRK = 19, 20
lab("L_ctl0")
e("s_barrier")
e("s_branch L_ctl")
lab("L_planner")
e(f"s_cmp_eq_u32 s{sW}, 5")
e("s_cbranch_scc1 L_ctl0")
e(f"s_sub_u32 s{sCI}, s{sW}, 3")
e(f"s_lshl_b32 s{sSB}, s{sCI}, 8")
e(f"s_add_u32 s{sSB}, s{sSB}, {CNT}")
e(f"v_lshl_add_u32 v{vPA}, v{vLANE}, 2, s{sSB}")
e(f"s_lshl_b32 s{sT2}, s{sCI}, 7")
e(f"s_add_u32 s{sT2}, s{sT2}, {KEYS}")
e(f"v_add_u32 v{vT3}, s{sT2}, v{vT3}")
e(f"v_lshrrev_b32 v{vT4}, 5, v{vLANE}")
e(f"v_lshl_add_u32 v{vT4}, v{vT4}, 6, s{sT2}")
e(f"v_mov_b32 v{vT5}, 2048")
e("s_barrier")
e("s_waitcnt vmcnt(0)")
e(f"v_cmp_gt_i32 s[{sZQ}:{sZQ+1}], 1, v{vN}")
e(f"v_min_i32 v{vN}, v{vN}, v{vT5}")
e("s_nop 0")
e(f"v_cndmask_b32 v{vN}, v{vN}, v{vT5}, s[{sZQ}:{sZQ+1}]")
e(f"v_add_u32 v{vN}, 15, v{vN}")
e(f"v_lshrrev_b32 v{vN}, 4, v{vN}")
e(f"v_lshl_or_b32 v{vKEY}, v{vN}, 5, v{vT0}")
e(f"ds_write_b32 v{vT3}, v{vKEY}")
for i in range(4):
    e(f"ds_read_b128 v[{vKF+4*i}:{vKF+4*i+3}], v{vT4} offset:{16*i}")
e(f"v_mov_b32 v{vRK}, 0")
e(f"v_readlane_b32 s{sNB}, v{vN}, s{sB}")
e("s_waitcnt lgkmcnt(0)")
c("rank of every batch by block count; the batch of rank 31-r is the partner")
for i in range(16):
    e(f"v_sub_u32 v{vKF+i}, v{vKF+i}, v{vKEY}")
for i in range(16):
    e(f"v_alignbit_b32 v{vRK}, v{vRK}, v{vKF+i}, 31")
e(f"v_bcnt_u32_b32 v{vRK}, v{vRK}, 0")
e(f"v_mov_b32 v{vT2}, v{vRK}")
derive_nb()
e(f"v_permlane32_swap_b32 v{vRK}, v{vT2}")
e("s_nop 0")
e(f"v_add_u32 v{vRK}, v{vRK}, v{vT2}")
e("s_nop 0")
e(f"v_readlane_b32 s{sRK}, v{vRK}, s{sB}")
e(f"s_sub_u32 s{sT0}, 31, s{sRK}")
e(f"v_cmp_eq_u32 vcc, s{sT0}, v{vRK}")
e(f"s_ff1_i32_b32 s{sPB}, vcc_lo")
e(f"v_readlane_b32 s{sNP}, v{vN}, s{sPB}")
e(f"s_max_u32 s{sT0}, s{sNB}, s{sNP}")
e(f"s_min_u32 s{sT1}, s{sNB}, s{sNP}")
e(f"s_sub_u32 s{sX}, s{sT0}, s{sT1}")
e(f"s_add_u32 s{sX}, s{sX}, 2")
e(f"s_lshr_b32 s{sX}, s{sX}, 2")
e(f"s_cmp_lt_u32 s{sT0}, 24")
e(f"s_cselect_b32 s{sX}, 0, s{sX}")
if a.nopair: e(f"s_mov_b32 s{sX}, 0")
e(f"s_cmp_ge_u32 s{sRK}, 16")
e(f"s_cselect_b32 s{sLO}, s{sX}, 0")
e(f"s_cselect_b32 s{sTB}, 0, s{sX}")
e(f"s_cmp_eq_u32 s{sCI}, 0")
e("s_cbranch_scc1 L_pl_norow")
e(f"s_lshl_b32 s{sT0}, s{sPB}, 9")
e(f"v_lshl_add_u32 v{vT1}, v{vLANE}, 3, s{sT0}")
e(f"global_load_dwordx2 v[{vRW}:{vRW+1}], v{vT1}, s[{sBT}:{sBT+1}]")
lab("L_pl_norow")
e(f"s_sub_u32 s{sTA}, s{sNTL}, s{sLO}")
e(f"s_add_u32 s{sT}, s{sTA}, s{sTB}")
e(f"s_mul_i32 s{sF}, s{sT}, {a.fnum}")
e(f"s_lshr_b32 s{sF}, s{sF}, 6")
e(f"s_min_u32 s{sWB}, s{sTA}, {a.UB}")
e(f"s_sub_i32 s{sF}, s{sF}, s{sWB}")
e(f"s_max_i32 s{sF}, s{sF}, s{sTB}")
e(f"s_max_i32 s{sF}, s{sF}, 1")
e(f"v_cvt_f32_u32 v{vT2}, s{sF}")
e(f"v_subrev_u32 v{vT3}, s{sWB}, v{vLANE}")
e(f"v_rcp_f32 v{vT2}, v{vT2}")
e(f"v_mul_i32_i24 v{vT4}, s{sTB}, v{vT3}")
e(f"v_add_u32 v{vT5}, s{sTB}, v{vT4}")
e(f"v_cvt_f32_i32 v{vT4}, v{vT4}")
e(f"v_cvt_f32_i32 v{vT5}, v{vT5}")
e(f"v_add_f32 v{vT4}, 0.5, v{vT4}")
e(f"v_add_f32 v{vT5}, 0.5, v{vT5}")
e(f"v_mul_f32 v{vT4}, v{vT4}, v{vT2}")
e(f"v_mul_f32 v{vT5}, v{vT5}, v{vT2}")
e(f"v_floor_f32 v{vT4}, v{vT4}")
e(f"v_floor_f32 v{vT5}, v{vT5}")
e(f"v_cmp_gt_u32 vcc, s{sF}, v{vT3}")
e(f"v_cmp_gt_f32 s[{sMBK}:{sMBK+1}], v{vT5}, v{vT4}")
e(f"s_sub_u32 s{sT0}, s{sT}, s{sNU}")
e(f"v_subrev_u32 v{vT3}, s{sNU}, v{vLANE}")
e(f"v_cmp_gt_u32 s[{sMA}:{sMA+1}], s{sT0}, v{vT3}")
e(f"s_and_b64 s[{sMBK}:{sMBK+1}], s[{sMBK}:{sMBK+1}], vcc")
e(f"s_andn2_b64 s[{sMA}:{sMA+1}], s[{sMA}:{sMA+1}], s[{sMBK}:{sMBK+1}]")
c(f"own tiles to sort: logical [NU+given, ntile); donated: the partner's logical [{NUM}, {NUM}+TB)")
mfirst = a.mfirst and not a.nosort
if mfirst:
    e(f"s_ff1_i32_b64 s{sT2}, s[{sMA}:{sMA+1}]")
else:
    e(f"s_flbit_i32_b64 s{sT2}, s[{sMA}:{sMA+1}]")
    e(f"s_sub_u32 s{sT2}, 63, s{sT2}")
e(f"s_lshl_b32 s{sT2}, s{sT2}, 8")
e(f"s_or_b32 s{sWB}, s{sT2}, 1")
e(f"s_min_u32 s{sMRG}, s{sLO}, 1")
e(f"s_add_u32 s{sLO}, s{sLO}, s{sNU}")
e(f"s_sub_u32 s{sHI}, s{sNTL}, s{sLO}")
e(f"s_sub_u32 s{sT3}, s{sNTL}, 1")
e(f"s_lshl3_add_u32 s{sLBASE}, s{sNU}, {LA}")
e(f"s_cmp_eq_u32 s{sCI}, 0")
e("s_cbranch_scc1 L_pl_a")
e(f"s_mov_b32 s{sLO}, {NUM}")
e(f"s_mov_b32 s{sHI}, s{sTB}")
e(f"s_mov_b32 s{sT3}, -1")
e(f"s_mov_b32 s{sLBASE}, {LB}")
e("s_branch L_pl_sort")
lab("L_pl_a")
e(f"s_lshl_b32 s{sT0}, s{sT}, 8")
e(f"s_or_b32 s{sT0}, s{sT0}, s{sMRG}")
e(f"v_mov_b32 v{vT2}, s{sMA}")
e(f"v_mov_b32 v{vT3}, s{sMA+1}")
e(f"v_mov_b32 v{vT4}, s{sT0}")
e(f"v_mov_b32 v{vT5}, s{sWB}")
e(f"v_mov_b32 v{vT1}, {REC0}")
e(f"ds_write_b128 v{vT1}, v[{vT2}:{vT5}]")
c("the leading tiles keep their place (entries behind them are overwritten by the sorted list)")
e(f"v_lshlrev_b32 v{vKF+4}, 15, v{vRW}")
e(f"v_lshlrev_b32 v{vKF+5}, 15, v{vRW+1}")
e(f"v_lshlrev_b32 v{vT0}, 3, v{vLANE}")
e(f"v_add_u32 v{vT0}, {LA}, v{vT0}")
e(f"ds_write_b64 v{vT0}, v[{vKF+4}:{vKF+5}]")
lab("L_pl_sort")
e(f"v_subrev_u32 v{vT0}, s{sLO}, v{vLANE}")
e(f"v_cmp_gt_u32 vcc, s{sHI}, v{vT0}")
e(f"v_mov_b32 v{vT5}, 1")
e("s_waitcnt vmcnt(0)")
if a.nosort:
    e(f"v_lshlrev_b32 v{vT2}, 1, v{vT0}")
    e(f"v_add_u32 v{vT3}, 1, v{vT2}")
else:
    c("counting sort of the block ids into 64 buckets of ascending physical address")
    e(f"v_lshrrev_b32 v{vT0}, 6, v{vRW}")
    e(f"v_lshrrev_b32 v{vT1}, 6, v{vRW+1}")
    e(f"v_cmp_eq_u32 s[{sRK+2}:{sRK+3}], s{sT3}, v{vLANE}")
    if mfirst:
        e(f"v_med3_u32 v{vT0}, v{vT0}, 1, 63")
        e(f"v_med3_u32 v{vT1}, v{vT1}, 1, 63")
    else:
        e(f"v_min_u32 v{vT0}, 62, v{vT0}")
        e(f"v_min_u32 v{vT1}, 62, v{vT1}")
    fb = 0 if mfirst else 63
    e(f"v_cndmask_b32 v{vT0}, v{vT0}, {fb}, s[{sRK+2}:{sRK+3}]")
    e(f"v_cndmask_b32 v{vT1}, v{vT1}, {fb}, s[{sRK+2}:{sRK+3}]")
    e(f"v_lshlrev_b32 v{vT0}, 2, v{vT0}")
    e(f"v_lshlrev_b32 v{vT1}, 2, v{vT1}")
    e(f"v_add_u32 v{vKF}, s{sSB}, v{vT0}")
    e(f"v_add_u32 v{vKF+1}, s{sSB}, v{vT1}")
    e("s_mov_b64 exec, vcc")
    e(f"ds_add_rtn_u32 v{vT2}, v{vKF}, v{vT5}")
    e(f"ds_add_rtn_u32 v{vT3}, v{vKF+1}, v{vT5}")
    e("s_mov_b64 exec, -1")
    e(f"ds_read_b32 v{vT4}, v{vPA}")
    e("s_waitcnt lgkmcnt(0)")
    e(f"v_mov_b32 v{vKF+2}, v{vT4}")
    for sh in (1, 2, 4, 8):
        e("s_nop 1")
        e(f"v_add_u32_dpp v{vT4}, v{vT4}, v{vT4} row_shr:{sh} row_mask:0xf bank_mask:0xf bound_ctrl:0")
    e("s_nop 1")
    e(f"v_add_u32_dpp v{vT4}, v{vT4}, v{vT4} row_bcast:15 row_mask:0xa bank_mask:0xf")
    e("s_nop 1")
    e(f"v_add_u32_dpp v{vT4}, v{vT4}, v{vT4} row_bcast:31 row_mask:0xc bank_mask:0xf")
    e(f"v_sub_u32 v{vT4}, v{vT4}, v{vKF+2}")
    e(f"ds_bpermute_b32 v{vT0}, v{vT0}, v{vT4}")
    e(f"ds_bpermute_b32 v{vT1}, v{vT1}, v{vT4}")
    e("s_waitcnt lgkmcnt(0)")
    e(f"v_add_u32 v{vT2}, v{vT2}, v{vT0}")
    e(f"v_add_u32 v{vT3}, v{vT3}, v{vT1}")
e(f"v_lshlrev_b32 v{vRW}, 15, v{vRW}")
e(f"v_lshlrev_b32 v{vRW+1}, 15, v{vRW+1}")
e(f"v_lshl_add_u32 v{vT2}, v{vT2}, 2, s{sLBASE}")
e(f"v_lshl_add_u32 v{vT3}, v{vT3}, 2, s{sLBASE}")
e("s_mov_b64 exec, vcc")
e(f"ds_write_b32 v{vT2}, v{vRW}")
e(f"ds_write_b32 v{vT3}, v{vRW+1}")
e("s_mov_b64 exec, -1")
e(f"v_mov_b32 v{vT1}, {REC1}")
e(f"s_cmp_eq_u32 s{sCI}, 0")
e("s_cbranch_scc0 L_pl_b")
e(f"v_mov_b32 v{vT2}, s{sMBK}")
e(f"v_mov_b32 v{vT3}, s{sMBK+1}")
e(f"v_mov_b32 v{vT4}, s{sT}")
e(f"v_mov_b32 v{vT5}, s{sWB}")
e(f"ds_write_b128 v{vT1}, v[{vT2}:{vT5}]")
e("s_branch L_pl_done")
lab("L_pl_b")
e(f"ds_write_b32 v{vT1}, v{vT5} offset:16")
lab("L_pl_done")
e(f"s_cmp_lg_u32 s{sMRG}, 0")
e("s_cbranch_scc1 L_fetch")
e(f"s_cmp_eq_u32 s{sTB}, 0")
e("s_cbranch_scc1 L_fin")
c("become the consumer of the donated tiles")
load_q(sPB)
e(f"s_mov_b64 s[{sMALL}:{sMALL+1}], s[{sMBK}:{sMBK+1}]")
e(f"s_mov_b32 s{sM}, s{sMBK}")
e(f"s_and_b32 s{sM+1}, s{sMBK+1}, {RHI:#x}")
e(f"s_mov_b32 s{sTTC}, s{sT}")
e(f"s_min_u32 s{sTB1}, s{sT}, {G}")
e(f"s_mov_b32 s{sROLE}, 1")
e(f"s_mov_b32 s{sPLN}, 1")
e(f"s_lshr_b32 s{sT3}, s{sZQ}, s{sPB}")
e(f"s_and_b32 s{sT3}, s{sT3}, 1")
e("s_branch L_csetup")

lab("L_fetch")
e(f"s_cmp_lg_u32 s{sCI}, 0")
e("s_cbranch_scc1 L_fin")
rows_off(sB)
ws_base(sB)
e(f"v_lshl_add_u32 v{vT1}, v{vT0}, 3, s{sT0}")
e(f"v_mov_b32 v{vFW}, s{sT0}")
e(f"s_lshl_b32 s{sT2}, s{sB}, 2")
e(f"v_mov_b32 v{vT2}, s{sT2}")
e(f"v_mov_b32 v{vPA}, {CTRL+16}")
e("s_mov_b64 exec, 1")
e(f"s_mul_i32 s{sNEED}, s{sT}, {a.pollnum}")
e(f"s_lshr_b32 s{sNEED}, s{sNEED}, 5")
e(f"s_lshl_b32 s{sT3}, s{sH}, 1")
e(f"s_mov_b32 s{sMBF}, 0")
c("wait until wave 5 has cleared the flag words and the stream is far enough")
lab("L_f_wait")
e(f"ds_read_b64 v[{vPL}:{vPL+1}], v{vPA}")
e("s_waitcnt lgkmcnt(0)")
e(f"v_readfirstlane_b32 s{sLND}, v{vPL}")
e(f"v_readfirstlane_b32 s{sT0}, v{vPL+1}")
e(f"s_cmp_ge_i32 s{sLND}, s{sNEED}")
e(f"s_cselect_b32 s{sT0}, s{sT0}, 0")
e(f"s_cmp_lg_u32 s{sT0}, 0")
e("s_cbranch_scc1 L_f_poll")
spin_tail("L_f_wait", 8)
lab("L_f_poll")
e(f"global_load_dwordx2 v[{vPL}:{vPL+1}], v{vFW}, s[{sWS}:{sWS+1}] offset:256 sc1")
e(f"s_add_u32 s{sMBF}, s{sMBF}, 1")
e(f"s_and_b32 s{sT0}, s{sMBF}, 3")
e(f"s_mov_b32 s{sT2}, 0")
e("s_cbranch_scc1 L_f_nodbg")
e(f"global_load_dword v{vT3}, v{vT2}, s[{sDBG}:{sDBG+1}] sc1")
e("s_waitcnt vmcnt(0)")
e(f"v_readfirstlane_b32 s{sT2}, v{vT3}")
e(f"s_lshr_b32 s{sT2}, s{sT2}, s{sT3}")
lab("L_f_nodbg")
e("s_waitcnt vmcnt(0)")
e(f"v_lshl_or_b32 v{vPL}, v{vPL+1}, 1, v{vPL}")
e("s_nop 0")
e(f"v_readfirstlane_b32 s{sT0}, v{vPL}")
e(f"s_or_b32 s{sT0}, s{sT0}, s{sT2}")
e(f"s_and_b32 s{sT0}, s{sT0}, 3")
e(f"s_cmp_eq_u32 s{sT0}, 3")
e("s_cbranch_scc1 L_f_got")
spin_tail("L_f_poll", a.psleep)
lab("L_f_got")
e("s_mov_b64 exec, -1")
e(f"v_lshl_add_u32 v{vT4}, v{vLANE}, 4, s{sQO}")
e(f"v_add_u32 v{vT5}, 4096, v{vT4}")
for cc in range(2):
    e(f"global_load_dwordx2 v[{vM+2*cc}:{vM+2*cc+1}], v{vT1}, s[{sWS}:{sWS+1}] offset:{128*cc} sc1")
    for j in range(4):
        r = vKF + 16 * cc + 4 * j
        e(f"global_load_dwordx4 v[{r}:{r+3}], v{vT4+cc}, s[{sOUT}:{sOUT+1}] offset:{1024*j} sc1")
e(f"v_mul_u32_u24 v{vT2}, 272, v{vG}")
e(f"v_lshl_add_u32 v{vT2}, v{vT0}, 4, v{vT2}")
e(f"v_add_u32 v{vT2}, {MB}, v{vT2}")
e(f"v_lshlrev_b32 v{vT0}, 3, v{vT0}")
e(f"v_add_u32 v{vT0}, {MB}, v{vT0}")
e(f"v_mov_b32 v{vPL}, {CTRL+4}")
e(f"v_mov_b32 v{vT3}, 1")
for cc in range(2):
    e(f"s_waitcnt vmcnt({5-5*cc})")
    for j in range(4):
        r = vKF + 16 * cc + 4 * j
        e(f"ds_write_b128 v{vT2}, v[{r}:{r+3}] offset:{MBS*cc + 1088*j}")
    e(f"ds_write_b64 v{vT0}, v[{vM+2*cc}:{vM+2*cc+1}] offset:{MBS*cc + 4352}")
    e(f"ds_write_b32 v{vPL}, v{vT3} offset:{8*cc}")
e(FIN)

c("wave 5: workgroups that share an L2 post their remaining work; one that lags prefetches deeper")
lab("L_ctl")
e(f"v_mov_b32 v{vT1}, {REC0}")
e(f"v_mov_b32 v{vPA}, {CTRL+32}")
e(f"v_mov_b32 v{vFW}, {DEPW}")
e(f"s_lshl_b32 s{sT0}, s{sB}, 2")
e(f"v_mov_b32 v{vG}, s{sT0}")
e(f"v_mov_b32 v{vFV}, v{vT3}")
lo = sum((XT[i] & 255) << (8 * i) for i in range(4)); hi = sum((XT[4 + i] & 255) << (8 * i) for i in range(4))
e(f"s_getreg_b32 s{sT0}, hwreg(HW_REG_XCC_ID, 0, 3)")
e(f"s_mov_b32 s{sM}, {lo:#x}")
e(f"s_mov_b32 s{sM+1}, {hi:#x}")
e(f"s_lshl_b32 s{sT0}, s{sT0}, 3")
e(f"s_lshr_b64 s[{sM}:{sM+1}], s[{sM}:{sM+1}], s{sT0}")
e(f"s_sext_i32_i8 s{sBO}, s{sM}")
lab("L_g_plan")
e(f"ds_read_b128 v[{vT2}:{vT5}], v{vT1}")
e("s_waitcnt lgkmcnt(0)")
e(f"v_readfirstlane_b32 s{sT0}, v{vT5}")
e(f"v_readfirstlane_b32 s{sT}, v{vT4}")
e(f"s_cmp_lg_u32 s{sT0}, 0")
e("s_cbranch_scc1 L_g_go")
spin_tail("L_g_plan", 8)
lab("L_g_go")
e(f"s_and_b32 s{sMRG}, s{sT}, 1")
e("s_cbranch_scc0 L_g_nores")
c("a partial is expected: clear its flag words before anything is posted")
ws_base(sB)
e(f"v_mov_b32 v{vT0}, s{sT0}")
e(f"v_mov_b32 v{vT2}, 0")
e(f"v_mov_b32 v{vT3}, 0")
e(f"v_mov_b32 v{vT4}, {CTRL+20}")
e(f"v_mov_b32 v{vT5}, 1")
e("s_mov_b64 exec, 1")
e(f"global_store_dwordx2 v{vT0}, v[{vT2}:{vT3}], s[{sWS}:{sWS+1}] offset:256")
e("s_waitcnt vmcnt(0)")
e(f"ds_write_b32 v{vT4}, v{vT5}")
e("s_mov_b64 exec, -1")
lab("L_g_nores")
e(f"s_and_b32 s{sT0}, s{sDBG}, 127")
e("s_cbranch_scc1 L_fin")
c("posted word: remaining units + 1 | head << 16 | die << 20 | flags cleared << 24")
e(f"s_getreg_b32 s{sFB}, hwreg(HW_REG_XCC_ID, 0, 4)")
e(f"s_lshl4_add_u32 s{sFB}, s{sMRG}, s{sFB}")
e(f"s_lshl4_add_u32 s{sFB}, s{sFB}, s{sH}")
e(f"s_lshl_b32 s{sFB}, s{sFB}, 16")
e(f"s_lshr_b32 s{sT}, s{sT}, 8")
e(f"s_lshl1_add_u32 s{sTN}, s{sT}, 1")
e(f"v_lshlrev_b32 v{vT1}, 1, v{vFV}")
e(f"v_add_u32 v{vT1}, {CTRL+68}, v{vT1}")
e(f"v_mov_b32 v{vT2}, s{sFB}")
e("s_mov_b64 exec, 1")
e(f"global_store_dword v{vG}, v{vT2}, s[{sDBG}:{sDBG+1}] offset:128")
e("s_mov_b64 exec, -1")
if "prog2" in DBG: e("v_mov_b32 v50, 0")
e(f"s_mov_b32 s{sNEED}, {a.cstart}")
lab("L_g_next")
e(f"s_sub_u32 s{sT0}, s{sTN}, s{sNEED}")
e(f"s_cmp_lt_i32 s{sT0}, {a.cstop}")
e("s_cbranch_scc1 L_fin")
lab("L_g_w")
e(f"ds_read_b32 v{vPL}, v{vPA}")
e("s_waitcnt lgkmcnt(0)")
e(f"v_readfirstlane_b32 s{sLND}, v{vPL}")
e(f"s_cmp_ge_i32 s{sLND}, s{sNEED}")
e("s_cbranch_scc1 L_g_a")
spin_tail("L_g_w", 1)
lab("L_g_a")
if "prog2" in DBG:
    e(f"s_memrealtime s[{sST+2}:{sST+3}]")
    e(f"s_lshr_b32 m0, s{sLND}, 1")
    e("s_waitcnt lgkmcnt(0)")
    e(f"v_writelane_b32 v50, s{sST+2}, m0")
e(f"s_sub_u32 s{sNK}, s{sTN}, s{sLND}")
e(f"s_or_b32 s{sT0}, s{sNK}, s{sFB}")
e(f"v_mov_b32 v{vT2}, s{sT0}")
e("s_mov_b64 exec, 1")
e(f"global_store_dword v{vG}, v{vT2}, s[{sDBG}:{sDBG+1}] offset:128")
e("s_mov_b64 exec, -1")
e(f"global_load_dword v{vT0}, v{vFV}, s[{sDBG}:{sDBG+1}] offset:128 sc1")
e(f"s_add_u32 s{sNEED}, s{sLND}, {a.cstep}")
e(f"s_min_i32 s{sT3}, s{sBO}, 1")
e(f"s_max_i32 s{sT3}, s{sT3}, -1")
e(f"s_sub_u32 s{sBO}, s{sBO}, s{sT3}")
e("s_waitcnt vmcnt(0)")
e(f"ds_write_b32 v{vT1}, v{vT0}")
e(f"v_and_b32 v{vT0}, 0xffff, v{vT0}")
e(f"v_cmp_ne_u32 vcc, 0, v{vT0}")
for sh in (1, 2, 4, 8):
    e("s_nop 1")
    e(f"v_add_u32_dpp v{vT0}, v{vT0}, v{vT0} row_shr:{sh} row_mask:0xf bank_mask:0xf bound_ctrl:0")
e("s_nop 1")
e(f"v_add_u32_dpp v{vT0}, v{vT0}, v{vT0} row_bcast:15 row_mask:0xa bank_mask:0xf")
e(f"s_bcnt1_i32_b32 s{sT1}, vcc_lo")
e(f"v_readlane_b32 s{sT0}, v{vT0}, 31")
e(f"s_mul_i32 s{sT2}, s{sNK}, s{sT1}")
e(f"s_sub_u32 s{sT2}, s{sT2}, s{sT0}")
e(f"s_lshl_b32 s{sT2}, s{sT2}, 2")
for th, inc, cmp in ((CTH[0], -1, "lt"), (CTH[1], 1, "gt"), (CTH[2], 1, "gt")):
    e(f"s_mul_i32 s{sT0}, s{sT1}, {th - a.cbias}")
    e(f"s_cmp_{cmp}_i32 s{sT2}, s{sT0}")
    e(f"s_cselect_b32 s{sT0}, {inc}, 0")
    e(f"s_add_u32 s{sT3}, s{sT3}, s{sT0}")
e(f"s_max_i32 s{sT3}, s{sT3}, -1")
e(f"s_min_i32 s{sT3}, s{sT3}, 2")
e(f"v_mov_b32 v{vT2}, s{sT3}")
e(f"ds_write_b32 v{vFW}, v{vT2}")
e("s_branch L_g_next")

lab("L_fin")
if "prog2" in DBG:
    e(f"s_cmp_lg_u32 s{sW}, 5")
    e("s_cbranch_scc1 L_np2")
    e(f"s_lshl_b32 s{sT0}, s2, 8")
    e(f"s_add_u32 s{sT0}, s{sT0}, 0x400000")
    e(f"v_lshl_add_u32 v51, v{vLANE}, 2, s{sT0}")
    e(f"global_store_dword v51, v50, s[{sWS}:{sWS+1}]")
    lab("L_np2")
if a.stamps:
    e(f"s_cmp_gt_u32 s{sW}, 2")
    e("s_cbranch_scc1 L_end")
    e("s_mov_b64 exec, -1")
    e("s_waitcnt vmcnt(0) lgkmcnt(0)")
    stamp(3)
    e(f"s_getreg_b32 s{sT0}, hwreg(HW_REG_XCC_ID)")
    e("s_waitcnt lgkmcnt(0)")
    for i in range(8):
        e(f"v_mov_b32 v{64+i}, s{sST+i}")
    e(f"v_mov_b32 v72, s{sT0}")
    e(f"s_sub_u32 s{sT1}, {SPIN}, s{sSPIN}")
    e(f"v_mov_b32 v73, s{sT1}")
    e(f"v_mov_b32 v74, s{sT}")
    e(f"v_mov_b32 v75, 0")
    e(f"s_mul_i32 s{sT0}, s2, {NW}")
    e(f"s_add_u32 s{sT0}, s{sT0}, s{sW}")
    e(f"s_lshl_b32 s{sT0}, s{sT0}, 6")
    e(f"v_mov_b32 v80, s{sT0}")
    e("s_mov_b64 exec, 1")
    e(f"global_store_dwordx4 v80, v[64:67], s[{sWS}:{sWS+1}]")
    e(f"global_store_dwordx4 v80, v[68:71], s[{sWS}:{sWS+1}] offset:16")
    e(f"global_store_dwordx4 v80, v[72:75], s[{sWS}:{sWS+1}] offset:32")
lab("L_end")
e("s_endpgm")
out.append('.section .rodata,"a"')
out.append(".p2align 6")
out.append(f".amdhsa_kernel {NAME}_kernel")
out.append(f"  .amdhsa_next_free_vgpr {NV}")
out.append("  .amdhsa_next_free_sgpr 102")
out.append(f"  .amdhsa_accum_offset {NV}")
out.append("  .amdhsa_group_segment_fixed_size 0")
out.append("  .amdhsa_kernarg_size 64")
out.append("  .amdhsa_user_sgpr_count 2")
out.append("  .amdhsa_user_sgpr_kernarg_segment_ptr 1")
out.append("  .amdhsa_system_sgpr_workgroup_id_x 1")
out.append("  .amdhsa_float_denorm_mode_32 3")
out.append(".end_amdhsa_kernel")
open(a.o, "w").write("\n".join(out) + "\n")
```

```python
import sys, argparse
NAME = "standalone__paged_block_table_kv_pagedattention__sampling"
HEADER = open("cdna_kernels/" + NAME + ".s.ref").read().split("; Override")[0]

ap = argparse.ArgumentParser()
ap.add_argument("-o", default="/dev/stdout")
ap.add_argument("--map", default="plain")
ap.add_argument("--hrot", type=int, default=0)
ap.add_argument("--D", type=int, default=20)
ap.add_argument("--D0", type=int, default=26)
ap.add_argument("--NS", type=int, default=6)
ap.add_argument("--G", type=int, default=50)
ap.add_argument("--fnum", type=int, default=42)
ap.add_argument("--pollnum", type=int, default=57)
ap.add_argument("--psleep", type=int, default=12)
ap.add_argument("--UB", type=int, default=8)
ap.add_argument("--mfirst", type=int, default=1)
ap.add_argument("--cth", default="-3,3,8")
ap.add_argument("--cbias", type=int, default=8)
ap.add_argument("--cstart", type=int, default=8)
ap.add_argument("--cstop", type=int, default=6)
ap.add_argument("--cstep", type=int, default=4)
ap.add_argument("--xt", default="6,-7,5,-12,8,-3,7,-6")
ap.add_argument("--NUM", type=int, default=4)
ap.add_argument("--last", type=int, default=1)
ap.add_argument("--hold", default="")
ap.add_argument("--nosort", action="store_true")
ap.add_argument("--nopair", action="store_true")
ap.add_argument("--limf", default="0x43800000")
ap.add_argument("--dbg", default="")
ap.add_argument("--stamps", action="store_true")
a = ap.parse_args()
NT = " nt"
DBG = set(a.dbg.split(","))
D, D0, NS, G = a.D, a.D0, a.NS, a.G
assert 24 <= D0 <= 32 and (D - 2) // 8 == (D + 1) // 8 == 2 and 32 <= G < 64
CTH = [int(x) for x in a.cth.split(",")]
XT = [int(x) for x in a.xt.split(",")]
DIVM = {5: (205, 10), 6: (43, 8), 7: (147, 10), 8: (1, 3), 10: (205, 11), 12: (171, 11)}[NS]
assert all((u * DIVM[0]) >> DIVM[1] == u // NS for u in range(129))
NW = 6
KBYTES = 4100 * 32768
SPIN = 1 << 22
NUM = a.NUM

RING = NS * 8192
PST = RING
MB = PST + G * 2048
MBS = 4864
CTRL = MB + 2 * MBS
FREE = CTRL + 512
REC0 = FREE + 128
REC1 = REC0 + 16
DEPW = REC1 + 32
CNT = FREE + 256
LA = CNT + 512
LB = LA + 512
KEYS = LB + 512
LDS = KEYS + 256
assert LDS <= 163840, LDS
WS0 = 0x100000 if a.stamps else 0
WSA = WS0 + 0x40000

out = []
def e(s): out.append("    " + s)
def lab(s): out.append(s + ":")
def c(s): out.append("    ; " + s)

sQ, sK, sV, sBT, sCL, sOUT, sDBG, sWS = 4, 6, 8, 10, 12, 14, 16, 18
sRD = 20
sB, sH, sW, sCLV = 28, 29, 30, 31
sT0, sT1, sT2, sT3 = 32, 33, 34, 35
sPC = 36
sSPIN = 38
sNB, sNTL, sNU, sT = 39, 40, 41, 42
sST = 64
sE = 72
sB0, sB1, sFB1, sTT, sLIM, sPH, sSLOT, sTM = 46, 47, 48, 49, 50, 51, 52, 53
sMK = 54
sU, sTA0, sTA1, sPASS, sTMC, sRST = 56, 57, 58, 59, 60, 61
sM = 46
sCI, sLND, sMBF, sNEED, sMRG, sMT, sROLE, sQO, sPLN, sSB = 48, 49, 50, 51, 52, 56, 57, 58, 59, 60
sV0 = 61
sCST = 62
sTN, sNK, sFWN, sFB, sPRE, sREDO, sLIMF, sPO = 96, 97, 98, 99, 100, 101, 53, 43
sMALL, sRS = 24, 26
sOFF, sTB0, sTB1, sTTC, sFIRST = 20, 21, 22, 23, 44
sZQ = 54
sRK, sPB, sNP, sX, sTA, sTB, sF, sWB = 80, 81, 82, 83, 84, 85, 86, 87
sMA, sMBK = 88, 90
sLO, sHI, sLBASE = 92, 93, 94
sBO = 56
vLANE = 1
vT0, vT1, vT2, vT3, vT4, vT5 = 2, 3, 4, 5, 6, 7
vL = 8
vKOFF, vVOFF = 10, 14
vCA, vCNT, vFA, vR = 18, 19, 20, 21
vF = 22
vR4 = 24
vOF = 28
vCUR = 36
vL2 = 44
vDP, vDA, vOOB = 46, 47, 48
vKA0, vVA0, vXA = 8, 12, 16
vPA0, vPW = 20, 21
vM, vLS, vMN, vAL, vPA, vFW = 24, 25, 26, 27, 28, 29
vPL = 30
vQ = 32
vS = 48
vP = 56
vG, vPF, vFV, vN = 60, 61, 62, 63
vKF = 64
vVF = 96
vO = 128
vE = 160
vPN = 160
NV = 168

def stamp(i):
    if a.hold and i == 0: e(f"{'s_memrealtime' if a.hold[:2] == 'rt' else 's_memtime'} s[{sST}:{sST+1}]")
    if a.stamps: e(f"s_memrealtime s[{sST+2*i}:{sST+2*i+1}]")
def clamp_cl(zq=None):
    c("context length: <=0 -> every key masked => uniform weights over 2048 keys (zero Q); >2048 -> 2048")
    e(f"s_cmp_lt_i32 s{sCLV}, 1")
    if zq is not None: e(f"s_cselect_b32 s{zq}, 1, 0")
    e(f"s_cselect_b32 s{sCLV}, 2048, s{sCLV}")
    e(f"s_min_i32 s{sCLV}, s{sCLV}, 2048")
def derive_nb():
    e(f"s_add_u32 s{sNTL}, s{sNB}, 1")
    e(f"s_lshr_b32 s{sNTL}, s{sNTL}, 1")
    e(f"s_sub_u32 s{sNU}, s{sNTL}, 1")
    e(f"s_min_u32 s{sNU}, s{sNU}, {NUM}")
def derive_cl():
    e(f"s_add_u32 s{sNB}, s{sCLV}, 15")
    e(f"s_lshr_b32 s{sNB}, s{sNB}, 4")
    derive_nb()
def spin_tail(label, sleep=1):
    e(f"s_sleep {sleep}")
    e(f"s_sub_u32 s{sSPIN}, s{sSPIN}, 1")
    e(f"s_cbranch_scc0 {label}")
    e("s_endpgm")
FIN = "s_branch L_fin" if a.stamps else "s_endpgm"

out.append(HEADER.rstrip())
out.append(f"; @launch grid=(256,1,1) block=({64*NW},1,1) lds={LDS}")
out.append('.amdgcn_target "amdgcn-amd-amdhsa--gfx950"')
out.append(".text")
out.append(f".globl {NAME}_kernel")
out.append(".p2align 8")
out.append(f".type {NAME}_kernel,@function")
lab(f"{NAME}_kernel")
e("s_load_dwordx16 s[4:19], s[0:1], 0")
e(f"s_lshr_b32 s{sB}, s2, 3")
e(f"s_cmp_ge_u32 s{sB}, 32")
e("s_cbranch_scc1 L_end")
stamp(0)
e(f"v_lshrrev_b32 v{vT0}, 6, v0")
e(f"v_and_b32 v{vLANE}, 63, v0")
e(f"v_readfirstlane_b32 s{sW}, v{vT0}")
c("waves 1 and 3 pull this kernel's code into L2")
e(f"s_getpc_b64 s[{sPC}:{sPC+1}]")
lab("L_pc")
e(f"v_bfe_u32 v{vT2}, v0, 7, 1")
e(f"v_lshl_add_u32 v{vT2}, v{vT2}, 6, v{vLANE}")
e(f"v_lshlrev_b32 v{vT2}, 7, v{vT2}")
e(f"v_min_u32 v{vT2}, L_end - L_pc, v{vT2}")
e(f"s_bitcmp1_b32 10, s{sW}")
e("s_cbranch_scc0 L_nopf")
e(f"global_load_dword v{vPF}, v{vT2}, s[{sPC}:{sPC+1}]")
lab("L_nopf")
c("clear the control words and the sort counters")
e(f"v_mov_b32 v{vT2}, 0")
e(f"v_lshlrev_b32 v{vT4}, 2, v0")
e(f"v_add_u32 v{vT4}, {CTRL}, v{vT4}")
e(f"ds_write_b32 v{vT4}, v{vT2}")
if a.map == "rot":
    e(f"s_add_u32 s{sH}, s2, s{sB}")
    e(f"s_and_b32 s{sH}, s{sH}, 7")
elif a.hrot:
    e(f"s_add_u32 s{sH}, s2, {a.hrot}")
    e(f"s_and_b32 s{sH}, s{sH}, 7")
else:
    e(f"s_and_b32 s{sH}, s2, 7")
e(f"s_lshl3_add_u32 s{sT2}, s{sB}, s{sH}")
e(f"s_lshl_b32 s{sT2}, s{sT2}, 13")
e(f"v_lshl_add_u32 v{vT5}, v{vLANE}, 7, s{sT2}")
e(f"s_lshl_b32 s{sT0}, s{sB}, 9")
e(f"v_lshl_add_u32 v{vT2}, v{vLANE}, 3, s{sT0}")
e(f"s_lshl_b32 s{sT1}, s{sB}, 2")
e(f"v_and_b32 v{vT0}, 31, v{vLANE}")
e(f"v_lshlrev_b32 v{vT3}, 2, v{vT0}")
e(f"s_mov_b32 s{sSPIN}, {SPIN}")
e(f"s_cmp_lg_u32 s{sW}, 2")
e("s_waitcnt lgkmcnt(0)")
e(f"s_load_dwordx8 s[{sE}:{sE+7}], s[{sBT}:{sBT+1}], s{sT0}")
e(f"s_load_dword s{sCLV}, s[{sCL}:{sCL+1}], s{sT1}")
c("wave 2 touches the 64 lines of this workgroup's queries while memory is still idle")
e("s_cbranch_scc1 L_noq")
e(f"global_load_dword v{vPF}, v{vT5}, s[{sQ}:{sQ+1}]")
lab("L_noq")
e(f"global_load_dwordx2 v[{vL}:{vL+1}], v{vT2}, s[{sBT}:{sBT+1}]")
e(f"global_load_dword v{vN}, v{vT3}, s[{sCL}:{sCL+1}]")
lab("L_loads_issued")
e(f"s_cmp_lg_u32 s{sW}, 0")
e("s_cbranch_scc1 L_notloader")

e("s_setprio 3")
c("per-lane source offsets of the LDS-DMA pieces (bank swizzle applied on the source side)")
e(f"v_lshrrev_b32 v{vR}, 4, v{vLANE}")
e(f"v_and_b32 v{vT1}, 15, v{vLANE}")
e(f"s_lshl_b32 s{sT0}, s{sH}, 8")
e(f"v_lshl_add_u32 v{vT4}, v{vR}, 11, s{sT0}")
e(f"v_xor_b32 v{vT2}, v{vR}, v{vT1}")
e(f"v_lshl_add_u32 v{vKOFF}, v{vT2}, 4, v{vT4}")
for j in range(1, 4):
    e(f"v_xor_b32 v{vT3}, {64*j}, v{vKOFF}")
    e(f"v_add_u32 v{vKOFF+j}, {7168*j}, v{vT3}")
e(f"s_mov_b32 s{sRD}, s{sK}")
e(f"s_and_b32 s{sRD+1}, s{sK+1}, 0xffff")
e(f"s_mov_b32 s{sRD+2}, {KBYTES}")
e(f"s_mov_b32 s{sRD+3}, 0x20000")
e("s_waitcnt lgkmcnt(0)")
clamp_cl()
c("the first stream tiles are logical tiles 0..3 (those that are not the last one)")
for t in range(NUM):
    e(f"s_cmp_le_u32 s{sCLV}, {32*(t+1)}")
    e(f"s_cbranch_scc1 {'L_ld_b' if t < 2 else 'L_ld_pre'}")
    if t == 0: stamp(1)
    for j in range(8):
        i = 8 * t + j
        if j % 4 == 0:
            e(f"s_movk_i32 m0, {1024*i}")
            e(f"s_lshl_b32 s{sB0}, s{sE+i//4}, 15")
        if i >= D0: e(f"s_waitcnt vmcnt({D0-1})")
        e(f"buffer_load_dwordx4 v{vKOFF+j%4}, s[{sRD}:{sRD+3}], s{sB0} offen offset:{1024*(j%4)}{NT} lds")
    if t == 1:
        lab("L_ld_b")
        e("s_barrier")
lab("L_ld_pre")
derive_cl()
j0 = (D - 1) % 8
e(f"v_lshlrev_b32 v{vT3}, 2, v{vR}")
e(f"v_xor_b32 v{vT3}, v{vT3}, v{vT1}")
e(f"v_lshl_add_u32 v{vVOFF}, v{vT3}, 4, v{vT4}")
for j in range(1, 4):
    e(f"v_add_u32 v{vVOFF+j}, {7168*j}, v{vVOFF}")
for j in range(4): e(f"v_mov_b32 v{vCUR+j}, v{vKOFF+j}")
def fill_off():
    for k in range(8): e(f"v_mov_b32 v{vOF+k}, v{vCUR+k%4}")
fill_off()
e(f"s_lshl_b32 s{sSLOT}, s{sNU}, 13")
e(f"s_mov_b32 s{sT}, s{sNU}")
e(f"s_mov_b32 s{sU}, s{sNU}")
e(f"v_lshlrev_b32 v{vCA}, 3, v{vLANE}")
e(f"v_add_u32 v{vCA}, {CTRL}, v{vCA}")
e(f"v_mov_b32 v{vFA}, {FREE}")
e(f"v_mov_b32 v{vF}, 0")
e(f"v_mov_b32 v{vF+1}, 0")
e(f"v_mov_b32 v{vDP}, 0")
e(f"v_mov_b32 v{vDA}, {DEPW}")
e(f"s_sub_u32 s{sT0}, s{sNU}, 3")
e(f"v_mov_b32 v{vCNT}, s{sT0}")
c("lanes of the last logical tile whose rows lie inside the context")
e(f"s_lshl_b32 s{sT0}, s{sNTL}, 5")
e(f"s_sub_u32 s{sT0}, s{sCLV}, s{sT0}")
e(f"s_add_u32 s{sT0}, s{sT0}, 32")
e(f"v_bfrev_b32 v{vOOB}, 1")
e(f"v_sub_u32 v{vT1}, s{sT0}, v{vR}")
for k in range(8):
    e(f"v_cmp_lt_i32 s[{80+2*k}:{81+2*k}], {4*k}, v{vT1}")
e(f"s_mov_b32 s{sPASS}, 0")
e(f"s_mov_b32 s{sRST}, 0")
e(f"s_mov_b32 s{sTA0}, 0")
e(f"s_mov_b32 s{sPH}, 1")
lab("L_ld_plan")
e(f"v_mov_b32 v{vT1}, {REC1}")
e(f"ds_read_b128 v[{vR4}:{vR4+3}], v{vT1}")
e(f"ds_read_b32 v{vT2}, v{vT1} offset:16")
e("s_waitcnt lgkmcnt(0)")
e(f"v_or_b32 v{vT2}, s{sPH}, v{vT2}")
e(f"v_and_b32 v{vT2}, v{vT2}, v{vR4+3}")
e(f"v_readfirstlane_b32 s{sMK}, v{vR4}")
e(f"v_readfirstlane_b32 s{sT0}, v{vT2}")
e(f"v_readfirstlane_b32 s{sMK+1}, v{vR4+1}")
e(f"v_readfirstlane_b32 s{sTT}, v{vR4+2}")
e(f"v_readfirstlane_b32 s{sTM}, v{vR4+3}")
e(f"s_cmp_eq_u32 s{sT0}, 0")
e("s_cbranch_scc1 L_ld_noplan")
e(f"v_mbcnt_lo_u32_b32 v{vT0}, s{sMK}, 0")
e(f"v_mbcnt_hi_u32_b32 v{vT0}, s{sMK+1}, v{vT0}")
e(f"v_sub_u32 v{vT1}, v{vLANE}, v{vT0}")
e(f"v_lshlrev_b32 v{vT0}, 3, v{vT0}")
e(f"v_lshlrev_b32 v{vT1}, 3, v{vT1}")
e(f"v_add_u32 v{vT0}, {LB}, v{vT0}")
e(f"v_add_u32 v{vT1}, {LA}, v{vT1}")
e(f"v_cndmask_b32 v{vT0}, v{vT1}, v{vT0}, s[{sMK}:{sMK+1}]")
e(f"ds_read_b64 v[{vL2}:{vL2+1}], v{vT0}")
e(f"s_lshr_b32 s{sTM}, s{sTM}, 8")
e(f"s_mov_b32 s{sFB1}, -1")
e(f"s_cmp_eq_u32 s{sPH}, 0")
e("s_cbranch_scc1 L_ld_plan2")
c("first visit: run only up to the first donated tile (its list may not be sorted yet)")
stamp(2)
e(f"s_ff1_i32_b64 s{sFB1}, s[{sMK}:{sMK+1}]")
e(f"s_mov_b32 s{sTMC}, s{sTM}")
e(f"s_min_u32 s{sTA1}, s{sTT}, {G}")
e(f"s_mov_b32 s{sPH}, 0")
e("s_waitcnt vmcnt(24)")
e(f"ds_write_b32 v{vCA}, v{vCNT}")
lab("L_ld_plan2")
e("s_waitcnt lgkmcnt(0)")
lab("L_ld_go")
e(f"s_min_u32 s{sLIM}, s{sTA1}, s{sFB1}")
e(f"s_min_u32 s{sLIM}, s{sLIM}, s{sTMC}")
e(f"s_cmp_ge_u32 s{sT}, s{sLIM}")
e("s_cbranch_scc1 L_ld_lim2")
def unit_body(depth):
    for j in range(8):
        if j % 4 == 0: e(f"s_add_u32 m0, s{sSLOT}, {1024*j}")
        e(f"s_waitcnt vmcnt({depth-1})")
        e(f"buffer_load_dwordx4 v{vOF+j}, s[{sRD}:{sRD+3}], s{sB0 + j//4} offen offset:{1024*(j%4)}{NT} lds")
        if j == (depth - 1) % 8:
            e(f"v_add_u32 v{vCNT}, 1, v{vCNT}")
            e(f"ds_write_b32 v{vCA}, v{vCNT}")
        if j == 0:
            e(f"s_lshr_b32 s{sT0}, s{sT2}, 10")
            e(f"s_add_u32 s{sT0}, s{sT0}, {FREE}")
            e(f"v_mov_b32 v{vFA}, s{sT0}")
            e(f"s_add_u32 s{sT}, s{sT}, 1")
            e(f"s_add_u32 s{sU}, s{sU}, 1")
        if j == 6:
            c("prefetch the FREE words of the next slot and the depth code")
            e(f"ds_read_b64 v[{vF}:{vF+1}], v{vFA}")
            e(f"ds_read_b32 v{vDP}, v{vDA}")
            e(f"s_mov_b32 s{sSLOT}, s{sT2}")
out.append(".p2align 3")
lab("L_ld")
e(f"v_readlane_b32 s{sB0}, v{vL2}, s{sT}")
e(f"v_readlane_b32 s{sB1}, v{vL2+1}, s{sT}")
e(f"s_sub_u32 s{sT1}, s{sU}, {NS-1}")
e(f"s_add_u32 s{sT2}, s{sSLOT}, 8192")
e(f"s_cmp_eq_u32 s{sT2}, {RING}")
e(f"s_cselect_b32 s{sT2}, 0, s{sT2}")
lab("L_ld_chk")
e("s_waitcnt lgkmcnt(0)")
e(f"v_min_i32 v{vT0}, v{vF}, v{vF+1}")
e(f"v_readfirstlane_b32 s{sT3}, v{vDP}")
e(f"v_readfirstlane_b32 s{sT0}, v{vT0}")
e(f"s_cmp_ge_i32 s{sT0}, s{sT1}")
e("s_cbranch_scc0 L_ld_wait")
e(f"s_cmp_lg_u32 s{sT3}, 0")
e("s_cbranch_scc1 L_ld_var")
unit_body(D)
lab("L_ld_next")
e(f"s_cmp_lt_u32 s{sT}, s{sLIM}")
e("s_cbranch_scc1 L_ld")
e(f"s_cmp_eq_u32 s{sRST}, 0")
e("s_cbranch_scc1 L_ld_lim2")
e(f"s_mov_b32 s{sRST}, 0")
lab("L_ld_fill")
fill_off()
e("s_branch L_ld_go")
lab("L_ld_lim2")
e(f"s_cmp_eq_u32 s{sT}, s{sTA1}")
e("s_cbranch_scc1 L_ld_pass")
e(f"s_cmp_eq_u32 s{sT}, s{sFB1}")
e("s_cbranch_scc1 L_ld_plan")
c("the last logical tile: rows past the context are not fetched (their lanes read zeros)")
for k in range(8):
    e(f"v_cndmask_b32 v{vOF+k}, v{vOOB}, v{vCUR+k%4}, s[{80+2*k}:{81+2*k}]")
e(f"s_mov_b32 s{sTMC}, -1")
e(f"s_mov_b32 s{sRST}, 1")
e(f"s_add_u32 s{sLIM}, s{sT}, 1")
e("s_branch L_ld")
lab("L_ld_pass")
e(f"s_cmp_lg_u32 s{sPASS}, 0")
e("s_cbranch_scc1 L_ld_tok")
e(f"s_mov_b32 s{sRD}, s{sV}")
e(f"s_and_b32 s{sRD+1}, s{sV+1}, 0xffff")
for j in range(4): e(f"v_mov_b32 v{vCUR+j}, v{vVOFF+j}")
lab("L_ld_sw")
e(f"s_xor_b32 s{sPASS}, s{sPASS}, 1")
e(f"s_mov_b32 s{sT}, s{sTA0}")
e(f"s_cmp_ge_u32 s{sTM}, s{sTA0}")
e(f"s_cselect_b32 s{sTMC}, s{sTM}, -1")
e("s_branch L_ld_fill")
lab("L_ld_tok")
e(f"s_cmp_lt_u32 s{sTA1}, s{sTT}")
e("s_cbranch_scc1 L_ld_more")
for r in (16, 8, 0):
    e(f"v_add_u32 v{vCNT}, 1, v{vCNT}")
    e(f"s_waitcnt vmcnt({r})")
    e(f"ds_write_b32 v{vCA}, v{vCNT}")
if a.hold:
    lab("L_hold")
    e(f"{'s_memrealtime' if a.hold[:2] == 'rt' else 's_memtime'} s[{sST+2}:{sST+3}]")
    e("s_waitcnt lgkmcnt(0)")
    e(f"s_sub_u32 s{sT0}, s{sST+2}, s{sST}")
    e(f"s_cmp_lt_u32 s{sT0}, {a.hold[3:]}")
    e("s_cbranch_scc1 L_hold")
e(FIN)
lab("L_ld_more")
e(f"s_mov_b32 s{sTA0}, s{sTA1}")
e(f"s_mov_b32 s{sTA1}, s{sTT}")
e(f"s_mov_b32 s{sRD}, s{sK}")
e(f"s_and_b32 s{sRD+1}, s{sK+1}, 0xffff")
for j in range(4): e(f"v_mov_b32 v{vCUR+j}, v{vKOFF+j}")
e("s_branch L_ld_sw")
lab("L_ld_wait")
e(f"ds_read_b64 v[{vF}:{vF+1}], v{vFA}")
e(f"s_sub_u32 s{sSPIN}, s{sSPIN}, 1")
e("s_cbranch_scc0 L_ld_chk")
e("s_endpgm")
lab("L_ld_noplan")
spin_tail("L_ld_plan")
lab("L_ld_var")
e(f"s_cmp_eq_u32 s{sT3}, 1")
e("s_cbranch_scc1 L_ld_v2")
e(f"s_cmp_eq_u32 s{sT3}, 2")
e("s_cbranch_scc1 L_ld_v3")
unit_body(D - 1)
e("s_branch L_ld_next")
lab("L_ld_v2")
unit_body(D + 1)
e("s_branch L_ld_next")
lab("L_ld_v3")
unit_body(D + 2)
e("s_branch L_ld_next")

lab("L_notloader")
e(f"s_cmp_ge_u32 s{sW}, 3")
e("s_cbranch_scc1 L_planner")
e(f"s_sub_u32 s{sCI}, s{sW}, 1")
def rows_off(sb):
    e(f"s_lshl3_add_u32 s{sQO}, s{sb}, s{sH}")
    e(f"s_lshl1_add_u32 s{sQO}, s{sQO}, s{sCI}")
    e(f"s_lshl_b32 s{sQO}, s{sQO}, 12")
    e(f"v_and_b32 v{vT0}, 15, v{vLANE}")
    e(f"v_lshrrev_b32 v{vG}, 4, v{vLANE}")
def load_q(sb):
    rows_off(sb)
    e(f"v_lshl_add_u32 v{vT4}, v{vT0}, 8, s{sQO}")
    e(f"v_lshl_add_u32 v{vT4}, v{vG}, 4, v{vT4}")
    for s in range(4):
        e(f"global_load_dwordx4 v[{vQ+4*s}:{vQ+4*s+3}], v{vT4}, s[{sQ}:{sQ+1}] offset:{64*s}")
load_q(sB)
e("s_barrier")
e(f"s_mov_b32 s{sROLE}, 0")
e(f"s_mov_b32 s{sPLN}, 0")
e(f"s_mov_b32 s{sMRG}, 0")
e("s_waitcnt lgkmcnt(0)")
clamp_cl(zq=sT3)
derive_cl()
c("valid keys of the last logical tile")
e(f"s_lshl_b32 s{sV0}, s{sNTL}, 5")
e(f"s_sub_u32 s{sV0}, s{sCLV}, s{sV0}")
e(f"s_add_u32 s{sV0}, s{sV0}, 32")
e(f"s_bfm_b64 s[{sM}:{sM+1}], s{sNU}, 0")
lab("L_csetup")
e(f"s_mov_b32 s{sMT}, 0")
e(f"s_mov_b32 s{sOFF}, 0")
e(f"s_mov_b32 s{sTB0}, 0")
e(f"s_mov_b32 s{sFIRST}, 1")
e(f"s_mov_b64 s[{sRS}:{sRS+1}], 0")
e("s_waitcnt vmcnt(4)")
e(f"v_and_b32 v{vT0}, 15, v{vLANE}")
e(f"v_xor_b32 v{vT1}, v{vG}, v{vT0}")
e(f"v_lshlrev_b32 v{vT2}, 8, v{vT0}")
e(f"v_lshl_add_u32 v{vKA0}, v{vT1}, 4, v{vT2}")
for s in range(1, 4):
    e(f"v_xor_b32 v{vKA0+s}, {64*s}, v{vKA0}")
e(f"v_bfe_u32 v{vT0}, v{vLANE}, 2, 2")
e(f"v_lshl_add_u32 v{vT1}, v{vG}, 2, v{vT0}")
e(f"v_lshlrev_b32 v{vT1}, 8, v{vT1}")
e(f"v_and_b32 v{vT2}, 3, v{vLANE}")
e(f"v_lshl_add_u32 v{vT1}, v{vT2}, 4, v{vT1}")
e(f"v_lshl_add_u32 v{vVA0}, v{vT0}, 6, v{vT1}")
for j in range(1, 4):
    e(f"v_xor_b32 v{vVA0+j}, {64*j}, v{vVA0}")
e(f"s_lshl_b32 s{sT0}, s{sCI}, 10")
e(f"s_add_u32 s{sT0}, s{sT0}, {PST}")
e(f"v_lshl_add_u32 v{vPA0}, v{vLANE}, 4, s{sT0}")
e(f"s_lshl_b32 s{sT0}, s{sW}, 3")
e(f"s_add_u32 s{sT0}, s{sT0}, {CTRL-8}")
e(f"v_mov_b32 v{vPA}, s{sT0}")
e(f"v_mov_b32 v{vM}, 0xff800000")
e(f"v_mov_b32 v{vLS}, 0")
for r in range(0, 32, 2): e(f"v_mov_b64 v[{vO+r}:{vO+r+1}], 0")
e(f"s_mov_b32 s{sCST}, 0x3e0293ee")
e(f"s_mov_b32 s{sCST+1}, 0x3e0293ee")
e(f"s_mov_b32 s{sLIMF}, {a.limf}")
e(f"s_lshl2_add_u32 s{sFB}, s{sCI}, {FREE}")
e("s_waitcnt vmcnt(0)")
e(f"s_cmp_eq_u32 s{sT3}, 0")
e("s_cbranch_scc1 L_k_first")
for r in range(0, 16, 2): e(f"v_mov_b64 v[{vQ+r}:{vQ+r+1}], 0")

def poll(label):
    lab(label)
    e(f"ds_read_b64 v[{vPL}:{vPL+1}], v{vPA}")
    e(f"s_sub_u32 s{sSPIN}, s{sSPIN}, 1")
    e("s_cbranch_scc1 L_end")
    e("s_waitcnt lgkmcnt(0)")
    e(f"v_readfirstlane_b32 s{sLND}, v{vPL}")
    e(f"s_cmp_ge_i32 s{sLND}, s{sNK}")
    e(f"s_cbranch_scc0 {label}")
VR = []
for j in range(4):
    for ee in range(2):
        for blk in range(2):
            r = vVF + (2 * j + ee) * 4 + 2 * blk
            VR.append(f"ds_read_b64_tr_b16 v[{r}:{r+1}], v{vXA+j} offset:{8*ee + 4096*blk}")
KR, QK = [], []
for blk in range(2):
    for st in range(4):
        r = vKF + (blk * 4 + st) * 4
        KR.append(f"ds_read_b128 v[{r}:{r+3}], v{vXA+st} offset:{4096*blk}")
        cc = "0" if st == 0 else f"v[{vS+4*blk}:{vS+4*blk+3}]"
        QK.append(f"v_mfma_f32_16x16x32_bf16 v[{vS+4*blk}:{vS+4*blk+3}], v[{r}:{r+3}], v[{vQ+4*st}:{vQ+4*st+3}], {cc}")
PV = [f"v_mfma_f32_16x16x32_bf16 v[{vO+4*dt}:{vO+4*dt+3}], v[{vVF+4*dt}:{vVF+4*dt+3}], v[{vP}:{vP+3}], v[{vO+4*dt}:{vO+4*dt+3}]" for dt in range(8)]
NX = [f"s_ff1_i32_b64 s{sTN}, s[{sM}:{sM+1}]",
      f"s_bitset0_b64 s[{sM}:{sM+1}], s{sTN}",
      f"s_add_u32 s{sT1}, s{sTN}, s{sOFF}",
      f"s_mul_i32 s{sT0}, s{sT1}, {DIVM[0]}",
      f"s_lshr_b32 s{sT0}, s{sT0}, {DIVM[1]}",
      f"s_mul_i32 s{sT0}, s{sT0}, {NS}",
      f"s_sub_u32 s{sT0}, s{sT1}, s{sT0}",
      f"s_lshl_b32 s{sSB}, s{sT0}, 13",
      f"s_lshl3_add_u32 s{sFWN}, s{sT0}, s{sFB}",
      f"s_and_b32 s{sT0}, s{sTN}, 0x40000000",
      f"s_add_u32 s{sNK}, s{sT1}, 1",
      f"s_or_b32 s{sNK}, s{sNK}, s{sT0}",
      f"s_sub_u32 s{sPO}, s{sTN}, s{sTB0}",
      f"s_lshl_b32 s{sPO}, s{sPO}, 11"]
KA = [f"v_add_u32 v{vXA+i}, s{sSB}, v{vKA0+i}" for i in range(4)]
VA = [f"v_add_u32 v{vXA+i}, s{sSB}, v{vVA0+i}" for i in range(4)]
ADV = [f"v_mov_b32 v{vFW}, s{sFWN}",
       f"v_mov_b32 v{vFV}, s{sNK}",
       f"v_add_u32 v{vPW}, s{sPO}, v{vPA0}",
       f"s_add_u32 s{sT}, s{sTN}, 1"]
def scale_o(reg):
    for r in range(0, 32, 2):
        sel = "op_sel:[0,1] op_sel_hi:[1,1]" if reg & 1 else "op_sel_hi:[1,0]"
        p = reg & ~1
        e(f"v_pk_mul_f32 v[{vO+r}:{vO+r+1}], v[{vO+r}:{vO+r+1}], v[{p}:{p+1}] {sel}")

lab("L_k_first")
for x in NX + KA + ADV: e(x)
lab("L_k_next")
e(f"s_cmp_lt_i32 s{sTN}, 0")
e("s_cbranch_scc1 L_k_empty")
poll("L_k_poll")
for x in KR: e(x)
e("s_waitcnt lgkmcnt(0)")
out.append(".p2align 3")
lab("L_k_top")
e("s_waitcnt lgkmcnt(1)")
e(f"ds_write_b32 v{vFW}, v{vFV}")
e(f"ds_read_b64 v[{vPL}:{vPL+1}], v{vPA}")
fill = NX + KA
for i in range(8):
    e(QK[i])
    for x in fill[2*i:2*i+2]: e(x)
for x in fill[16:]: e(x)
e(f"s_mov_b32 s{sREDO}, 0")
e("s_waitcnt lgkmcnt(0)")
e(f"v_readfirstlane_b32 s{sLND}, v{vPL}")
e(f"s_cmp_ge_i32 s{sLND}, s{sNK}")
e(f"s_cselect_b32 s{sPRE}, 1, 0")
e("s_cbranch_scc0 L_k_nopre")
for x in KR: e(x)
lab("L_k_nopre")
e(f"s_cmp_eq_u32 s{sT}, s{sMT}")
e("s_cbranch_scc1 L_k_mask")
lab("L_k_exp")
for hb in range(2):
    for r in (4*hb, 4*hb+2):
        e(f"v_pk_fma_f32 v[{vE+r}:{vE+r+1}], v[{vS+r}:{vS+r+1}], s[{sCST}:{sCST+1}], v[{vM}:{vM+1}] op_sel_hi:[1,1,0] neg_lo:[0,0,1] neg_hi:[0,0,1]")
    for r in range(4*hb, 4*hb+4):
        e(f"v_exp_f32 v{vE+r}, v{vE+r}")
e(f"v_pk_add_f32 v[{vT0}:{vT1}], v[{vE}:{vE+1}], v[{vE+2}:{vE+3}]")
e(f"v_pk_add_f32 v[{vT2}:{vT3}], v[{vE+4}:{vE+5}], v[{vE+6}:{vE+7}]")
e(f"v_cvt_pk_bf16_f32 v{vP}, v{vE}, v{vE+1}")
e(f"v_pk_add_f32 v[{vT0}:{vT1}], v[{vT0}:{vT1}], v[{vT2}:{vT3}]")
e(f"v_cvt_pk_bf16_f32 v{vP+1}, v{vE+2}, v{vE+3}")
e(f"v_add_f32 v{vT0}, v{vT0}, v{vT1}")
c("the kept reference max is safe only while every weight stays <= 256; otherwise take the true max")
e(f"v_cmp_nge_f32 vcc, s{sLIMF}, v{vT0}")
e(f"v_cvt_pk_bf16_f32 v{vP+2}, v{vE+4}, v{vE+5}")
e(f"v_cvt_pk_bf16_f32 v{vP+3}, v{vE+6}, v{vE+7}")
e(ADV[0]); e(ADV[1])
e("s_nop 0")
e("s_cbranch_vccnz L_k_slow")
lab("L_k_done")
e(f"ds_write_b128 v{vPW}, v[{vP}:{vP+3}]")
e(f"v_add_f32 v{vLS}, v{vLS}, v{vT0}")
e(ADV[3])
e(f"s_cmp_lg_u32 s{sPRE}, 0")
e(ADV[2])
e("s_cbranch_scc1 L_k_top")
e("s_branch L_k_next")

lab("L_k_mask")
e(f"v_lshlrev_b32 v{vT0}, 2, v{vG}")
e(f"v_sub_u32 v{vT0}, s{sV0}, v{vT0}")
e(f"v_mov_b32 v{vT1}, 0xff800000")
for r in range(8):
    e(f"v_cmp_lt_i32 s[{80+2*r}:{81+2*r}], {16*(r//4)+r%4}, v{vT0}")
for r in range(8):
    e(f"v_cndmask_b32 v{vS+r}, v{vT1}, v{vS+r}, s[{80+2*r}:{81+2*r}]")
e("s_branch L_k_exp")

def alpha_addr():
    e(f"s_lshl_b32 s{sT0}, s2, 6")
    e(f"s_add_u32 s{sT0}, s{sT0}, s{sT}")
    e(f"s_lshl1_add_u32 s{sT0}, s{sT0}, s{sCI}")
    e(f"s_lshl_b32 s{sT0}, s{sT0}, 6")
    e(f"s_add_u32 s{sT0}, s{sT0}, {WSA}")
    e(f"v_and_b32 v{vT1}, 15, v{vLANE}")
    e(f"v_lshl_add_u32 v{vT1}, v{vT1}, 2, s{sT0}")
c("raise the reference to the true running max; the accumulator is rescaled when pass 2 reaches this tile")
lab("L_k_slow")
e(f"s_cmp_lg_u32 s{sREDO}, 0")
e("s_cbranch_scc1 L_k_done")
e(f"s_mov_b32 s{sREDO}, 1")
e(f"v_max3_f32 v{vT0}, v{vS}, v{vS+1}, v{vS+2}")
e(f"v_max3_f32 v{vT1}, v{vS+3}, v{vS+4}, v{vS+5}")
e(f"v_max3_f32 v{vT0}, v{vT0}, v{vS+6}, v{vS+7}")
e(f"v_max_f32 v{vT0}, v{vT0}, v{vT1}")
e(f"v_mov_b32 v{vT1}, v{vT0}")
e("s_nop 1")
e(f"v_permlane32_swap_b32 v{vT0}, v{vT1}")
e("s_nop 0")
e(f"v_max_f32 v{vT0}, v{vT0}, v{vT1}")
e(f"v_mov_b32 v{vT1}, v{vT0}")
e("s_nop 1")
e(f"v_permlane16_swap_b32 v{vT0}, v{vT1}")
e("s_nop 0")
e(f"v_max_f32 v{vT0}, v{vT0}, v{vT1}")
e(f"v_mul_f32 v{vT0}, s{sCST}, v{vT0}")
e(f"v_max_f32 v{vMN}, v{vM}, v{vT0}")
e(f"v_sub_f32 v{vAL}, v{vM}, v{vMN}")
e(f"v_exp_f32 v{vAL}, v{vAL}")
e(f"v_mov_b32 v{vM}, v{vMN}")
e(f"s_cmp_lg_u32 s{sFIRST}, 0")
e(f"s_mov_b32 s{sFIRST}, 0")
e(f"v_mul_f32 v{vLS}, v{vLS}, v{vAL}")
e("s_cbranch_scc1 L_k_exp")
alpha_addr()
e(f"global_store_dword v{vT1}, v{vAL}, s[{sWS}:{sWS+1}]")
e(f"s_sub_u32 s{sT0}, s{sT}, 1")
e(f"s_bitset1_b64 s[{sRS}:{sRS+1}], s{sT0}")
e("s_branch L_k_exp")

RLO, RHI = 0xffffffff, (1 << (G - 32)) - 1
lab("L_k_noplan")
e(f"s_mov_b32 s{sPLN}, 1")
e(f"v_mov_b32 v{vT1}, {REC0}")
lab("L_k_plan")
e(f"ds_read_b128 v[{vT2}:{vT5}], v{vT1}")
e("s_waitcnt lgkmcnt(0)")
e(f"v_readfirstlane_b32 s{sT0}, v{vT5}")
e(f"v_readfirstlane_b32 s{sM}, v{vT2}")
e(f"v_readfirstlane_b32 s{sM+1}, v{vT3}")
e(f"v_readfirstlane_b32 s{sTTC}, v{vT4}")
e(f"s_cmp_lg_u32 s{sT0}, 0")
e("s_cbranch_scc1 L_k_got")
spin_tail("L_k_plan")
lab("L_k_got")
e(f"s_lshr_b32 s{sMT}, s{sT0}, 8")
e(f"s_add_u32 s{sMT}, s{sMT}, 1")
e(f"s_and_b32 s{sMRG}, s{sTTC}, 1")
e(f"s_lshr_b32 s{sTTC}, s{sTTC}, 8")
e(f"s_min_u32 s{sTB1}, s{sTTC}, {G}")
e(f"s_bfm_b64 s[{sMALL}:{sMALL+1}], s{sNU}, 0")
e(f"s_or_b64 s[{sMALL}:{sMALL+1}], s[{sMALL}:{sMALL+1}], s[{sM}:{sM+1}]")
e(f"s_and_b32 s{sM+1}, s{sM+1}, {RHI:#x}")
e("s_branch L_k_first")
lab("L_v_more")
c("second batch")
e(f"s_mov_b32 s{sTB0}, s{sTB1}")
e(f"s_mov_b32 s{sTB1}, s{sTTC}")
e(f"s_mov_b32 s{sOFF}, s{sTB0}")
e(f"s_mov_b32 s{sMALL}, 0")
e(f"s_andn2_b32 s{sMALL+1}, s{sMALL+1}, {RHI:#x}")
e(f"s_mov_b64 s[{sM}:{sM+1}], s[{sMALL}:{sMALL+1}]")
e("s_branch L_k_first")
lab("L_k_empty")
e(f"s_cmp_eq_u32 s{sPLN}, 0")
e("s_cbranch_scc1 L_k_noplan")
e(f"s_mov_b32 s{sOFF}, s{sTB1}")
e(f"s_mov_b32 s{sM}, s{sMALL}")
e(f"s_and_b32 s{sM+1}, s{sMALL+1}, {RHI:#x}")
e(f"s_cmp_eq_u32 s{sTB0}, 0")
e(f"s_cselect_b32 s{sM+1}, s{sM+1}, s{sMALL+1}")
for x in NX + VA: e(x)
e(f"ds_read_b64 v[{vPL}:{vPL+1}], v{vPA}")
e(f"s_cmp_lt_i32 s{sTN}, 0")
e("s_cbranch_scc1 L_v_empty")
lab("L_v_next")
for x in ADV: e(x)
if a.last:
    e(f"s_cmp_eq_u64 s[{sM}:{sM+1}], 0")
    e("s_cbranch_scc1 L_v_islast")
lab("L_v_next2")
e(f"ds_read_b128 v[{vPN}:{vPN+3}], v{vPW}")
e("s_waitcnt lgkmcnt(1)")
e(f"v_readfirstlane_b32 s{sLND}, v{vPL}")
e(f"s_cmp_ge_i32 s{sLND}, s{sNK}")
e("s_cbranch_scc1 L_v_rd")
poll("L_v_poll")
lab("L_v_rd")
for x in VR: e(x)
out.append(".p2align 3")
lab("L_v_top")
for x in NX + VA: e(x)
e(f"s_sub_u32 s{sT0}, s{sT}, 1")
e(f"s_bitcmp1_b64 s[{sRS}:{sRS+1}], s{sT0}")
e("s_cbranch_scc1 L_v_resc")
lab("L_v_top2")
e("s_waitcnt lgkmcnt(14)")
e(f"v_readfirstlane_b32 s{sMBF}, v{vPL+1}")
e(f"v_readfirstlane_b32 s{sLND}, v{vPL}")
e(f"v_mov_b64 v[{vP}:{vP+1}], v[{vPN}:{vPN+1}]")
e(f"v_mov_b64 v[{vP+2}:{vP+3}], v[{vPN+2}:{vPN+3}]")
e(f"s_and_b32 s{sT0}, s{sMBF}, s{sMRG}")
e("s_cbranch_scc1 L_v_merge")
lab("L_v_top3")
e(f"s_cmp_ge_i32 s{sLND}, s{sNK}")
e("s_cbranch_scc0 L_v_pv")
e(ADV[2])
e("s_waitcnt lgkmcnt(0)")
e(f"ds_write_b32 v{vFW}, v{vFV}")
e(f"ds_read_b64 v[{vPL}:{vPL+1}], v{vPA}")
e(f"ds_read_b128 v[{vPN}:{vPN+3}], v{vPW}")
for i in range(8):
    e(PV[i]); e(VR[2*i]); e(VR[2*i+1])
e(ADV[0]); e(ADV[1]); e(ADV[3])
e("s_branch L_v_top")
lab("L_v_pv")
for i in range(8):
    if i: e(f"s_waitcnt lgkmcnt({14-2*i})")
    if i == 7:
        e(f"ds_write_b32 v{vFW}, v{vFV}")
        e(f"ds_read_b64 v[{vPL}:{vPL+1}], v{vPA}")
    e(PV[i])
e(f"s_cmp_ge_i32 s{sTN}, 0")
e("s_cbranch_scc1 L_v_next")
lab("L_v_empty")
e(f"s_cmp_lt_u32 s{sTB1}, s{sTTC}")
e("s_cbranch_scc1 L_v_more")
stamp(2)
e(f"s_cmp_lg_u32 s{sMRG}, 0")
e("s_cbranch_scc1 L_c_mwait0")
lab("L_c_store")
e(f"v_mov_b32 v{vT0}, v{vLS}")
e(f"v_and_b32 v{vT2}, 15, v{vLANE}")
e(f"v_lshl_add_u32 v{vT2}, v{vT2}, 8, s{sQO}")
e(f"v_permlane32_swap_b32 v{vLS}, v{vT0}")
e("s_nop 0")
e(f"v_add_f32 v{vLS}, v{vLS}, v{vT0}")
e(f"v_mov_b32 v{vT0}, v{vLS}")
e(f"v_lshl_add_u32 v{vT2}, v{vG}, 4, v{vT2}")
e("s_nop 0")
e(f"v_permlane16_swap_b32 v{vLS}, v{vT0}")
e("s_nop 0")
e(f"v_add_f32 v{vLS}, v{vLS}, v{vT0}")
e(f"v_rcp_f32 v{vMN}, v{vLS}")
e(f"s_cmp_lg_u32 s{sROLE}, 0")
scale_o(vMN)
for r in range(16):
    e(f"v_cvt_pk_bf16_f32 v{vKF+r}, v{vO+2*r}, v{vO+2*r+1}")
e("s_cbranch_scc1 L_publish")
def out_stores(fl):
    for j in range(4):
        e(f"global_store_dwordx4 v{vT2}, v[{vKF+4*j}:{vKF+4*j+3}], s[{sOUT}:{sOUT+1}] offset:{64*j}{fl}")
out_stores("")
e(FIN)

def l_total():
    e(f"v_mov_b32 v{vT0}, v{vLS}")
    e(f"v_and_b32 v{vT2}, 15, v{vLANE}")
    e(f"v_lshl_add_u32 v{vT2}, v{vT2}, 8, s{sQO}")
    e(f"v_permlane32_swap_b32 v{vLS}, v{vT0}")
    e("s_nop 0")
    e(f"v_add_f32 v{vLS}, v{vLS}, v{vT0}")
    e(f"v_mov_b32 v{vT0}, v{vLS}")
    e(f"v_lshl_add_u32 v{vT2}, v{vG}, 4, v{vT2}")
    e("s_nop 0")
    e(f"v_permlane16_swap_b32 v{vLS}, v{vT0}")
    e("s_nop 0")
    e(f"v_add_f32 v{vLS}, v{vLS}, v{vT0}")
    e(f"v_rcp_f32 v{vMN}, v{vLS}")
if a.last:
    lab("L_v_islast")
    c("closing tile of an owner with nothing pending: take the short path")
    e(f"s_sub_u32 s{sT0}, s{sTTC}, s{sTB1}")
    e(f"s_or_b32 s{sT0}, s{sT0}, s{sMRG}")
    e(f"s_or_b32 s{sT0}, s{sT0}, s{sROLE}")
    e(f"s_or_b32 s{sT0}, s{sT0}, s{sRS}")
    e(f"s_or_b32 s{sT0}, s{sT0}, s{sRS+1}")
    e("s_cbranch_scc1 L_v_next2")
    e(f"ds_read_b128 v[{vP}:{vP+3}], v{vPW}")
    e(f"ds_read_b64 v[{vPL}:{vPL+1}], v{vPA}")
    l_total()
    e("s_waitcnt lgkmcnt(0)")
    e(f"v_readfirstlane_b32 s{sLND}, v{vPL}")
    e(f"s_cmp_ge_i32 s{sLND}, s{sNK}")
    e("s_cbranch_scc1 L_v_lrd")
    poll("L_v_lpoll")
    lab("L_v_lrd")
    for x in VR: e(x)
    def fin_j(j):
        r = []
        for k in range(4):
            q = vO + 8 * j + 2 * k
            r.append(f"v_pk_mul_f32 v[{q}:{q+1}], v[{q}:{q+1}], v[{vMN}:{vMN+1}] op_sel_hi:[1,0]")
        for k in range(4):
            r.append(f"v_cvt_pk_bf16_f32 v{vKF+4*j+k}, v{vO+8*j+2*k}, v{vO+8*j+2*k+1}")
        r.append(f"global_store_dwordx4 v{vT2}, v[{vKF+4*j}:{vKF+4*j+3}], s[{sOUT}:{sOUT+1}] offset:{64*j}")
        return r
    f0 = fin_j(0)
    for i in range(8):
        e(f"s_waitcnt lgkmcnt({14-2*i})")
        e(PV[i])
        if i == 5: e(f0[0]); e(f0[1])
        if i == 6: e(f0[2]); e(f0[3])
    stamp(2)
    for x in f0[4:] + fin_j(1) + fin_j(2) + fin_j(3): e(x)
    e(f"ds_write_b32 v{vFW}, v{vFV}")
    e(FIN)

lab("L_v_resc")
e(f"s_bitset0_b64 s[{sRS}:{sRS+1}], s{sT0}")
alpha_addr()
e("s_waitcnt vmcnt(0)")
e(f"global_load_dword v{vAL}, v{vT1}, s[{sWS}:{sWS+1}] sc1")
e("s_waitcnt vmcnt(0)")
scale_o(vAL)
e("s_branch L_v_top2")

lab("L_v_merge")
c("only once no rescale is pending; the reference max stays, so the partial's max must not be far above it")
e(f"s_cmp_eq_u64 s[{sRS}:{sRS+1}], 0")
e("s_cbranch_scc0 L_v_top3")
lab("L_c_merge")
e(f"s_mul_i32 s{sT0}, s{sCI}, {MBS}")
e(f"s_add_u32 s{sT0}, s{sT0}, {MB}")
e(f"v_and_b32 v{vT1}, 15, v{vLANE}")
e(f"v_mul_u32_u24 v{vT0}, 272, v{vT1}")
e(f"v_lshl_add_u32 v{vT0}, v{vG}, 4, v{vT0}")
e(f"v_add_u32 v{vT0}, s{sT0}, v{vT0}")
e(f"v_lshl_add_u32 v{vT1}, v{vT1}, 3, s{sT0}")
e("s_waitcnt lgkmcnt(0)")
e(f"ds_write_b32 v{vFW}, v{vFV}")
e(f"ds_read_b64 v[{vT4}:{vT5}], v{vT1} offset:4352")
for i in range(4):
    e(f"ds_read_b128 v[{vKF+4*i}:{vKF+4*i+3}], v{vT0} offset:{64*i}")
e(f"s_cmp_eq_u32 s{sPLN}, 2")
e("s_waitcnt lgkmcnt(0)")
e("s_cbranch_scc1 L_c_mfin")
e(f"v_sub_f32 v{vT4}, v{vT4}, v{vM}")
e(f"v_cmp_nge_f32 vcc, 0x41800000, v{vT4}")
e(f"s_mov_b32 s{sMRG}, 2")
e("s_nop 3")
e("s_cbranch_vccnz L_v_top3")
e("s_branch L_c_madd")
lab("L_c_mfin")
e(f"v_max_f32 v{vMN}, v{vM}, v{vT4}")
e(f"v_sub_f32 v{vAL}, v{vM}, v{vMN}")
e(f"v_sub_f32 v{vT4}, v{vT4}, v{vMN}")
e(f"v_exp_f32 v{vAL}, v{vAL}")
e("s_nop 0")
e(f"v_mul_f32 v{vLS}, v{vLS}, v{vAL}")
scale_o(vAL)
lab("L_c_madd")
e(f"v_exp_f32 v{vT4}, v{vT4}")
e(f"s_mov_b32 s{sMRG}, 0")
e(f"v_mul_f32 v{vT4}, v{vT4}, v{vT5}")
e(f"v_fmac_f32 v{vLS}, 0x3e800000, v{vT4}")
for r in range(16):
    t = vKF + 16 + 2 * (r % 4)
    e(f"v_lshlrev_b32 v{t}, 16, v{vKF+r}")
    e(f"v_and_b32 v{t+1}, 0xffff0000, v{vKF+r}")
    e(f"v_pk_fma_f32 v[{vO+2*r}:{vO+2*r+1}], v[{t}:{t+1}], v[{vT4}:{vT4+1}], v[{vO+2*r}:{vO+2*r+1}] op_sel_hi:[1,0,1]")
e(f"s_cmp_eq_u32 s{sPLN}, 2")
e("s_cbranch_scc0 L_v_top3")
e("s_branch L_c_store")
lab("L_c_mwait0")
e(f"s_mov_b32 s{sPLN}, 2")
lab("L_c_mwait")
e(f"ds_read_b64 v[{vPL}:{vPL+1}], v{vPA}")
e("s_waitcnt lgkmcnt(0)")
e(f"v_readfirstlane_b32 s{sMBF}, v{vPL+1}")
e(f"s_cmp_lg_u32 s{sMBF}, 0")
e("s_cbranch_scc1 L_c_merge")
spin_tail("L_c_mwait")

def ws_base(sb):
    e(f"s_lshl3_add_u32 s{sT0}, s{sb}, s{sH}")
    e(f"s_lshl_b32 s{sT0}, s{sT0}, 9")
    if WS0: e(f"s_add_u32 s{sT0}, s{sT0}, {WS0}")

lab("L_publish")
e(f"s_lshl_b32 s{sT2}, s{sPB}, 2")
e(f"v_mov_b32 v{vT3}, s{sT2}")
e(f"v_lshlrev_b32 v{vT4}, 1, v{vT3}")
e(f"v_add_u32 v{vT4}, {CTRL+68}, v{vT4}")
e(f"ds_read_b32 v{vT4}, v{vT4}")
ws_base(sPB)
e(f"s_lshl2_add_u32 s{sT1}, s{sCI}, s{sT0}")
e(f"v_mov_b32 v{vT5}, s{sT1}")
e(f"s_lshl_b32 s{sT1}, s{sCI}, 7")
e(f"s_add_u32 s{sT0}, s{sT0}, s{sT1}")
e(f"v_lshl_add_u32 v{vT1}, v{vLANE}, 3, s{sT0}")
e(f"s_getreg_b32 s{sT2}, hwreg(HW_REG_XCC_ID, 0, 4)")
e(f"s_lshl_b32 s{sT2}, s{sT2}, 4")
e(f"s_or_b32 s{sT2}, s{sT2}, s{sH}")
e(f"s_or_b32 s{sT2}, s{sT2}, 0x100")
e("s_waitcnt lgkmcnt(0)")
e(f"v_readfirstlane_b32 s{sT1}, v{vT4}")
e(f"s_lshr_b32 s{sT1}, s{sT1}, 16")
e(f"s_cmp_eq_u32 s{sT1}, s{sT2}")
e("s_cbranch_scc1 L_pub_fast")
e(f"global_load_dword v{vT4}, v{vT3}, s[{sDBG}:{sDBG+1}] offset:128 sc1")
e("s_waitcnt vmcnt(0)")
e(f"v_readfirstlane_b32 s{sT1}, v{vT4}")
e(f"s_lshr_b32 s{sT1}, s{sT1}, 16")
e(f"s_cmp_eq_u32 s{sT1}, s{sT2}")
e("s_cbranch_scc0 L_pub_slow")
lab("L_pub_fast")
c("the receiver runs on this die and has cleared its flag words: hand over inside the shared L2")
out_stores("")
e("s_mov_b64 exec, 0xffff")
e(f"global_store_dwordx2 v{vT1}, v[{vM}:{vM+1}], s[{sWS}:{sWS+1}]")
e(f"v_mov_b32 v{vT4}, 1")
e("s_waitcnt vmcnt(0)")
e("s_mov_b64 exec, 1")
e(f"global_store_dword v{vT5}, v{vT4}, s[{sWS}:{sWS+1}] offset:256")
e(FIN)
lab("L_pub_slow")
c("any other placement: write through to memory, then set a bit with a device-wide atomic")
out_stores(" sc1")
e("s_mov_b64 exec, 0xffff")
e(f"global_store_dwordx2 v{vT1}, v[{vM}:{vM+1}], s[{sWS}:{sWS+1}] sc1")
e(f"s_lshl1_add_u32 s{sT1}, s{sH}, s{sCI}")
e(f"s_lshl_b32 s{sT1}, 1, s{sT1}")
e(f"v_mov_b32 v{vT4}, s{sT1}")
e("s_waitcnt vmcnt(0)")
e("s_mov_b64 exec, 1")
e(f"global_atomic_add v{vT3}, v{vT4}, s[{sDBG}:{sDBG+1}]")
e(FIN)

vRW = vL
vKEY, vRK = 19, 20
lab("L_ctl0")
e("s_barrier")
e("s_branch L_ctl")
lab("L_planner")
e(f"s_cmp_eq_u32 s{sW}, 5")
e("s_cbranch_scc1 L_ctl0")
e(f"s_sub_u32 s{sCI}, s{sW}, 3")
e(f"s_lshl_b32 s{sSB}, s{sCI}, 8")
e(f"s_add_u32 s{sSB}, s{sSB}, {CNT}")
e(f"v_lshl_add_u32 v{vPA}, v{vLANE}, 2, s{sSB}")
e(f"s_lshl_b32 s{sT2}, s{sCI}, 7")
e(f"s_add_u32 s{sT2}, s{sT2}, {KEYS}")
e(f"v_add_u32 v{vT3}, s{sT2}, v{vT3}")
e(f"v_lshrrev_b32 v{vT4}, 5, v{vLANE}")
e(f"v_lshl_add_u32 v{vT4}, v{vT4}, 6, s{sT2}")
e(f"v_mov_b32 v{vT5}, 2048")
e("s_barrier")
e("s_waitcnt vmcnt(0)")
e(f"v_cmp_gt_i32 s[{sZQ}:{sZQ+1}], 1, v{vN}")
e(f"v_min_i32 v{vN}, v{vN}, v{vT5}")
e("s_nop 0")
e(f"v_cndmask_b32 v{vN}, v{vN}, v{vT5}, s[{sZQ}:{sZQ+1}]")
e(f"v_add_u32 v{vN}, 15, v{vN}")
e(f"v_lshrrev_b32 v{vN}, 4, v{vN}")
e(f"v_lshl_or_b32 v{vKEY}, v{vN}, 5, v{vT0}")
e(f"ds_write_b32 v{vT3}, v{vKEY}")
for i in range(4):
    e(f"ds_read_b128 v[{vKF+4*i}:{vKF+4*i+3}], v{vT4} offset:{16*i}")
e(f"v_mov_b32 v{vRK}, 0")
e(f"v_readlane_b32 s{sNB}, v{vN}, s{sB}")
e("s_waitcnt lgkmcnt(0)")
c("rank of every batch by block count; the batch of rank 31-r is the partner")
for i in range(16):
    e(f"v_sub_u32 v{vKF+i}, v{vKF+i}, v{vKEY}")
for i in range(16):
    e(f"v_alignbit_b32 v{vRK}, v{vRK}, v{vKF+i}, 31")
e(f"v_bcnt_u32_b32 v{vRK}, v{vRK}, 0")
e(f"v_mov_b32 v{vT2}, v{vRK}")
derive_nb()
e(f"v_permlane32_swap_b32 v{vRK}, v{vT2}")
e("s_nop 0")
e(f"v_add_u32 v{vRK}, v{vRK}, v{vT2}")
e("s_nop 0")
e(f"v_readlane_b32 s{sRK}, v{vRK}, s{sB}")
e(f"s_sub_u32 s{sT0}, 31, s{sRK}")
e(f"v_cmp_eq_u32 vcc, s{sT0}, v{vRK}")
e(f"s_ff1_i32_b32 s{sPB}, vcc_lo")
e(f"v_readlane_b32 s{sNP}, v{vN}, s{sPB}")
e(f"s_max_u32 s{sT0}, s{sNB}, s{sNP}")
e(f"s_min_u32 s{sT1}, s{sNB}, s{sNP}")
e(f"s_sub_u32 s{sX}, s{sT0}, s{sT1}")
e(f"s_add_u32 s{sX}, s{sX}, 2")
e(f"s_lshr_b32 s{sX}, s{sX}, 2")
e(f"s_cmp_lt_u32 s{sT0}, 24")
e(f"s_cselect_b32 s{sX}, 0, s{sX}")
if a.nopair: e(f"s_mov_b32 s{sX}, 0")
e(f"s_cmp_ge_u32 s{sRK}, 16")
e(f"s_cselect_b32 s{sLO}, s{sX}, 0")
e(f"s_cselect_b32 s{sTB}, 0, s{sX}")
e(f"s_cmp_eq_u32 s{sCI}, 0")
e("s_cbranch_scc1 L_pl_norow")
e(f"s_lshl_b32 s{sT0}, s{sPB}, 9")
e(f"v_lshl_add_u32 v{vT1}, v{vLANE}, 3, s{sT0}")
e(f"global_load_dwordx2 v[{vRW}:{vRW+1}], v{vT1}, s[{sBT}:{sBT+1}]")
lab("L_pl_norow")
e(f"s_sub_u32 s{sTA}, s{sNTL}, s{sLO}")
e(f"s_add_u32 s{sT}, s{sTA}, s{sTB}")
e(f"s_mul_i32 s{sF}, s{sT}, {a.fnum}")
e(f"s_lshr_b32 s{sF}, s{sF}, 6")
e(f"s_min_u32 s{sWB}, s{sTA}, {a.UB}")
e(f"s_sub_i32 s{sF}, s{sF}, s{sWB}")
e(f"s_max_i32 s{sF}, s{sF}, s{sTB}")
e(f"s_max_i32 s{sF}, s{sF}, 1")
e(f"v_cvt_f32_u32 v{vT2}, s{sF}")
e(f"v_subrev_u32 v{vT3}, s{sWB}, v{vLANE}")
e(f"v_rcp_f32 v{vT2}, v{vT2}")
e(f"v_mul_i32_i24 v{vT4}, s{sTB}, v{vT3}")
e(f"v_add_u32 v{vT5}, s{sTB}, v{vT4}")
e(f"v_cvt_f32_i32 v{vT4}, v{vT4}")
e(f"v_cvt_f32_i32 v{vT5}, v{vT5}")
e(f"v_add_f32 v{vT4}, 0.5, v{vT4}")
e(f"v_add_f32 v{vT5}, 0.5, v{vT5}")
e(f"v_mul_f32 v{vT4}, v{vT4}, v{vT2}")
e(f"v_mul_f32 v{vT5}, v{vT5}, v{vT2}")
e(f"v_floor_f32 v{vT4}, v{vT4}")
e(f"v_floor_f32 v{vT5}, v{vT5}")
e(f"v_cmp_gt_u32 vcc, s{sF}, v{vT3}")
e(f"v_cmp_gt_f32 s[{sMBK}:{sMBK+1}], v{vT5}, v{vT4}")
e(f"s_sub_u32 s{sT0}, s{sT}, s{sNU}")
e(f"v_subrev_u32 v{vT3}, s{sNU}, v{vLANE}")
e(f"v_cmp_gt_u32 s[{sMA}:{sMA+1}], s{sT0}, v{vT3}")
e(f"s_and_b64 s[{sMBK}:{sMBK+1}], s[{sMBK}:{sMBK+1}], vcc")
e(f"s_andn2_b64 s[{sMA}:{sMA+1}], s[{sMA}:{sMA+1}], s[{sMBK}:{sMBK+1}]")
c(f"own tiles to sort: logical [NU+given, ntile); donated: the partner's logical [{NUM}, {NUM}+TB)")
mfirst = a.mfirst and not a.nosort
if mfirst:
    e(f"s_ff1_i32_b64 s{sT2}, s[{sMA}:{sMA+1}]")
else:
    e(f"s_flbit_i32_b64 s{sT2}, s[{sMA}:{sMA+1}]")
    e(f"s_sub_u32 s{sT2}, 63, s{sT2}")
e(f"s_lshl_b32 s{sT2}, s{sT2}, 8")
e(f"s_or_b32 s{sWB}, s{sT2}, 1")
e(f"s_min_u32 s{sMRG}, s{sLO}, 1")
e(f"s_add_u32 s{sLO}, s{sLO}, s{sNU}")
e(f"s_sub_u32 s{sHI}, s{sNTL}, s{sLO}")
e(f"s_sub_u32 s{sT3}, s{sNTL}, 1")
e(f"s_lshl3_add_u32 s{sLBASE}, s{sNU}, {LA}")
e(f"s_cmp_eq_u32 s{sCI}, 0")
e("s_cbranch_scc1 L_pl_a")
e(f"s_mov_b32 s{sLO}, {NUM}")
e(f"s_mov_b32 s{sHI}, s{sTB}")
e(f"s_mov_b32 s{sT3}, -1")
e(f"s_mov_b32 s{sLBASE}, {LB}")
e("s_branch L_pl_sort")
lab("L_pl_a")
e(f"s_lshl_b32 s{sT0}, s{sT}, 8")
e(f"s_or_b32 s{sT0}, s{sT0}, s{sMRG}")
e(f"v_mov_b32 v{vT2}, s{sMA}")
e(f"v_mov_b32 v{vT3}, s{sMA+1}")
e(f"v_mov_b32 v{vT4}, s{sT0}")
e(f"v_mov_b32 v{vT5}, s{sWB}")
e(f"v_mov_b32 v{vT1}, {REC0}")
e(f"ds_write_b128 v{vT1}, v[{vT2}:{vT5}]")
c("the leading tiles keep their place (entries behind them are overwritten by the sorted list)")
e(f"v_lshlrev_b32 v{vKF+4}, 15, v{vRW}")
e(f"v_lshlrev_b32 v{vKF+5}, 15, v{vRW+1}")
e(f"v_lshlrev_b32 v{vT0}, 3, v{vLANE}")
e(f"v_add_u32 v{vT0}, {LA}, v{vT0}")
e(f"ds_write_b64 v{vT0}, v[{vKF+4}:{vKF+5}]")
lab("L_pl_sort")
e(f"v_subrev_u32 v{vT0}, s{sLO}, v{vLANE}")
e(f"v_cmp_gt_u32 vcc, s{sHI}, v{vT0}")
e(f"v_mov_b32 v{vT5}, 1")
e("s_waitcnt vmcnt(0)")
if a.nosort:
    e(f"v_lshlrev_b32 v{vT2}, 1, v{vT0}")
    e(f"v_add_u32 v{vT3}, 1, v{vT2}")
else:
    c("counting sort of the block ids into 64 buckets of ascending physical address")
    e(f"v_lshrrev_b32 v{vT0}, 6, v{vRW}")
    e(f"v_lshrrev_b32 v{vT1}, 6, v{vRW+1}")
    e(f"v_cmp_eq_u32 s[{sRK+2}:{sRK+3}], s{sT3}, v{vLANE}")
    if mfirst:
        e(f"v_med3_u32 v{vT0}, v{vT0}, 1, 63")
        e(f"v_med3_u32 v{vT1}, v{vT1}, 1, 63")
    else:
        e(f"v_min_u32 v{vT0}, 62, v{vT0}")
        e(f"v_min_u32 v{vT1}, 62, v{vT1}")
    fb = 0 if mfirst else 63
    e(f"v_cndmask_b32 v{vT0}, v{vT0}, {fb}, s[{sRK+2}:{sRK+3}]")
    e(f"v_cndmask_b32 v{vT1}, v{vT1}, {fb}, s[{sRK+2}:{sRK+3}]")
    e(f"v_lshlrev_b32 v{vT0}, 2, v{vT0}")
    e(f"v_lshlrev_b32 v{vT1}, 2, v{vT1}")
    e(f"v_add_u32 v{vKF}, s{sSB}, v{vT0}")
    e(f"v_add_u32 v{vKF+1}, s{sSB}, v{vT1}")
    e("s_mov_b64 exec, vcc")
    e(f"ds_add_rtn_u32 v{vT2}, v{vKF}, v{vT5}")
    e(f"ds_add_rtn_u32 v{vT3}, v{vKF+1}, v{vT5}")
    e("s_mov_b64 exec, -1")
    e(f"ds_read_b32 v{vT4}, v{vPA}")
    e("s_waitcnt lgkmcnt(0)")
    e(f"v_mov_b32 v{vKF+2}, v{vT4}")
    for sh in (1, 2, 4, 8):
        e("s_nop 1")
        e(f"v_add_u32_dpp v{vT4}, v{vT4}, v{vT4} row_shr:{sh} row_mask:0xf bank_mask:0xf bound_ctrl:0")
    e("s_nop 1")
    e(f"v_add_u32_dpp v{vT4}, v{vT4}, v{vT4} row_bcast:15 row_mask:0xa bank_mask:0xf")
    e("s_nop 1")
    e(f"v_add_u32_dpp v{vT4}, v{vT4}, v{vT4} row_bcast:31 row_mask:0xc bank_mask:0xf")
    e(f"v_sub_u32 v{vT4}, v{vT4}, v{vKF+2}")
    e(f"ds_bpermute_b32 v{vT0}, v{vT0}, v{vT4}")
    e(f"ds_bpermute_b32 v{vT1}, v{vT1}, v{vT4}")
    e("s_waitcnt lgkmcnt(0)")
    e(f"v_add_u32 v{vT2}, v{vT2}, v{vT0}")
    e(f"v_add_u32 v{vT3}, v{vT3}, v{vT1}")
e(f"v_lshlrev_b32 v{vRW}, 15, v{vRW}")
e(f"v_lshlrev_b32 v{vRW+1}, 15, v{vRW+1}")
e(f"v_lshl_add_u32 v{vT2}, v{vT2}, 2, s{sLBASE}")
e(f"v_lshl_add_u32 v{vT3}, v{vT3}, 2, s{sLBASE}")
e("s_mov_b64 exec, vcc")
e(f"ds_write_b32 v{vT2}, v{vRW}")
e(f"ds_write_b32 v{vT3}, v{vRW+1}")
e("s_mov_b64 exec, -1")
e(f"v_mov_b32 v{vT1}, {REC1}")
e(f"s_cmp_eq_u32 s{sCI}, 0")
e("s_cbranch_scc0 L_pl_b")
e(f"v_mov_b32 v{vT2}, s{sMBK}")
e(f"v_mov_b32 v{vT3}, s{sMBK+1}")
e(f"v_mov_b32 v{vT4}, s{sT}")
e(f"v_mov_b32 v{vT5}, s{sWB}")
e(f"ds_write_b128 v{vT1}, v[{vT2}:{vT5}]")
e("s_branch L_pl_done")
lab("L_pl_b")
e(f"ds_write_b32 v{vT1}, v{vT5} offset:16")
lab("L_pl_done")
e(f"s_cmp_lg_u32 s{sMRG}, 0")
e("s_cbranch_scc1 L_fetch")
e(f"s_cmp_eq_u32 s{sTB}, 0")
e("s_cbranch_scc1 L_fin")
c("become the consumer of the donated tiles")
load_q(sPB)
e(f"s_mov_b64 s[{sMALL}:{sMALL+1}], s[{sMBK}:{sMBK+1}]")
e(f"s_mov_b32 s{sM}, s{sMBK}")
e(f"s_and_b32 s{sM+1}, s{sMBK+1}, {RHI:#x}")
e(f"s_mov_b32 s{sTTC}, s{sT}")
e(f"s_min_u32 s{sTB1}, s{sT}, {G}")
e(f"s_mov_b32 s{sROLE}, 1")
e(f"s_mov_b32 s{sPLN}, 1")
e(f"s_lshr_b32 s{sT3}, s{sZQ}, s{sPB}")
e(f"s_and_b32 s{sT3}, s{sT3}, 1")
e("s_branch L_csetup")

lab("L_fetch")
e(f"s_cmp_lg_u32 s{sCI}, 0")
e("s_cbranch_scc1 L_fin")
rows_off(sB)
ws_base(sB)
e(f"v_lshl_add_u32 v{vT1}, v{vT0}, 3, s{sT0}")
e(f"v_mov_b32 v{vFW}, s{sT0}")
e(f"s_lshl_b32 s{sT2}, s{sB}, 2")
e(f"v_mov_b32 v{vT2}, s{sT2}")
e(f"v_mov_b32 v{vPA}, {CTRL+16}")
e("s_mov_b64 exec, 1")
e(f"s_mul_i32 s{sNEED}, s{sT}, {a.pollnum}")
e(f"s_lshr_b32 s{sNEED}, s{sNEED}, 5")
e(f"s_lshl_b32 s{sT3}, s{sH}, 1")
e(f"s_mov_b32 s{sMBF}, 0")
c("wait until wave 5 has cleared the flag words and the stream is far enough")
lab("L_f_wait")
e(f"ds_read_b64 v[{vPL}:{vPL+1}], v{vPA}")
e("s_waitcnt lgkmcnt(0)")
e(f"v_readfirstlane_b32 s{sLND}, v{vPL}")
e(f"v_readfirstlane_b32 s{sT0}, v{vPL+1}")
e(f"s_cmp_ge_i32 s{sLND}, s{sNEED}")
e(f"s_cselect_b32 s{sT0}, s{sT0}, 0")
e(f"s_cmp_lg_u32 s{sT0}, 0")
e("s_cbranch_scc1 L_f_poll")
spin_tail("L_f_wait", 8)
lab("L_f_poll")
e(f"global_load_dwordx2 v[{vPL}:{vPL+1}], v{vFW}, s[{sWS}:{sWS+1}] offset:256 sc1")
e(f"s_add_u32 s{sMBF}, s{sMBF}, 1")
e(f"s_and_b32 s{sT0}, s{sMBF}, 3")
e(f"s_mov_b32 s{sT2}, 0")
e("s_cbranch_scc1 L_f_nodbg")
e(f"global_load_dword v{vT3}, v{vT2}, s[{sDBG}:{sDBG+1}] sc1")
e("s_waitcnt vmcnt(0)")
e(f"v_readfirstlane_b32 s{sT2}, v{vT3}")
e(f"s_lshr_b32 s{sT2}, s{sT2}, s{sT3}")
lab("L_f_nodbg")
e("s_waitcnt vmcnt(0)")
e(f"v_lshl_or_b32 v{vPL}, v{vPL+1}, 1, v{vPL}")
e("s_nop 0")
e(f"v_readfirstlane_b32 s{sT0}, v{vPL}")
e(f"s_or_b32 s{sT0}, s{sT0}, s{sT2}")
e(f"s_and_b32 s{sT0}, s{sT0}, 3")
e(f"s_cmp_eq_u32 s{sT0}, 3")
e("s_cbranch_scc1 L_f_got")
spin_tail("L_f_poll", a.psleep)
lab("L_f_got")
e("s_mov_b64 exec, -1")
e(f"v_lshl_add_u32 v{vT4}, v{vLANE}, 4, s{sQO}")
e(f"v_add_u32 v{vT5}, 4096, v{vT4}")
for cc in range(2):
    e(f"global_load_dwordx2 v[{vM+2*cc}:{vM+2*cc+1}], v{vT1}, s[{sWS}:{sWS+1}] offset:{128*cc} sc1")
    for j in range(4):
        r = vKF + 16 * cc + 4 * j
        e(f"global_load_dwordx4 v[{r}:{r+3}], v{vT4+cc}, s[{sOUT}:{sOUT+1}] offset:{1024*j} sc1")
e(f"v_mul_u32_u24 v{vT2}, 272, v{vG}")
e(f"v_lshl_add_u32 v{vT2}, v{vT0}, 4, v{vT2}")
e(f"v_add_u32 v{vT2}, {MB}, v{vT2}")
e(f"v_lshlrev_b32 v{vT0}, 3, v{vT0}")
e(f"v_add_u32 v{vT0}, {MB}, v{vT0}")
e(f"v_mov_b32 v{vPL}, {CTRL+4}")
e(f"v_mov_b32 v{vT3}, 1")
for cc in range(2):
    e(f"s_waitcnt vmcnt({5-5*cc})")
    for j in range(4):
        r = vKF + 16 * cc + 4 * j
        e(f"ds_write_b128 v{vT2}, v[{r}:{r+3}] offset:{MBS*cc + 1088*j}")
    e(f"ds_write_b64 v{vT0}, v[{vM+2*cc}:{vM+2*cc+1}] offset:{MBS*cc + 4352}")
    e(f"ds_write_b32 v{vPL}, v{vT3} offset:{8*cc}")
e(FIN)

c("wave 5: workgroups that share an L2 post their remaining work; one that lags prefetches deeper")
lab("L_ctl")
e(f"v_mov_b32 v{vT1}, {REC0}")
e(f"v_mov_b32 v{vPA}, {CTRL+32}")
e(f"v_mov_b32 v{vFW}, {DEPW}")
e(f"s_lshl_b32 s{sT0}, s{sB}, 2")
e(f"v_mov_b32 v{vG}, s{sT0}")
e(f"v_mov_b32 v{vFV}, v{vT3}")
lo = sum((XT[i] & 255) << (8 * i) for i in range(4)); hi = sum((XT[4 + i] & 255) << (8 * i) for i in range(4))
e(f"s_getreg_b32 s{sT0}, hwreg(HW_REG_XCC_ID, 0, 3)")
e(f"s_mov_b32 s{sM}, {lo:#x}")
e(f"s_mov_b32 s{sM+1}, {hi:#x}")
e(f"s_lshl_b32 s{sT0}, s{sT0}, 3")
e(f"s_lshr_b64 s[{sM}:{sM+1}], s[{sM}:{sM+1}], s{sT0}")
e(f"s_sext_i32_i8 s{sBO}, s{sM}")
lab("L_g_plan")
e(f"ds_read_b128 v[{vT2}:{vT5}], v{vT1}")
e("s_waitcnt lgkmcnt(0)")
e(f"v_readfirstlane_b32 s{sT0}, v{vT5}")
e(f"v_readfirstlane_b32 s{sT}, v{vT4}")
e(f"s_cmp_lg_u32 s{sT0}, 0")
e("s_cbranch_scc1 L_g_go")
spin_tail("L_g_plan", 8)
lab("L_g_go")
e(f"s_and_b32 s{sMRG}, s{sT}, 1")
e("s_cbranch_scc0 L_g_nores")
c("a partial is expected: clear its flag words before anything is posted")
ws_base(sB)
e(f"v_mov_b32 v{vT0}, s{sT0}")
e(f"v_mov_b32 v{vT2}, 0")
e(f"v_mov_b32 v{vT3}, 0")
e(f"v_mov_b32 v{vT4}, {CTRL+20}")
e(f"v_mov_b32 v{vT5}, 1")
e("s_mov_b64 exec, 1")
e(f"global_store_dwordx2 v{vT0}, v[{vT2}:{vT3}], s[{sWS}:{sWS+1}] offset:256")
e("s_waitcnt vmcnt(0)")
e(f"ds_write_b32 v{vT4}, v{vT5}")
e("s_mov_b64 exec, -1")
lab("L_g_nores")
e(f"s_and_b32 s{sT0}, s{sDBG}, 127")
e("s_cbranch_scc1 L_fin")
c("posted word: remaining units + 1 | head << 16 | die << 20 | flags cleared << 24")
e(f"s_getreg_b32 s{sFB}, hwreg(HW_REG_XCC_ID, 0, 4)")
e(f"s_lshl4_add_u32 s{sFB}, s{sMRG}, s{sFB}")
e(f"s_lshl4_add_u32 s{sFB}, s{sFB}, s{sH}")
e(f"s_lshl_b32 s{sFB}, s{sFB}, 16")
e(f"s_lshr_b32 s{sT}, s{sT}, 8")
e(f"s_lshl1_add_u32 s{sTN}, s{sT}, 1")
e(f"v_lshlrev_b32 v{vT1}, 1, v{vFV}")
e(f"v_add_u32 v{vT1}, {CTRL+68}, v{vT1}")
e(f"v_mov_b32 v{vT2}, s{sFB}")
e("s_mov_b64 exec, 1")
e(f"global_store_dword v{vG}, v{vT2}, s[{sDBG}:{sDBG+1}] offset:128")
e("s_mov_b64 exec, -1")
if "prog2" in DBG: e("v_mov_b32 v50, 0")
e(f"s_mov_b32 s{sNEED}, {a.cstart}")
lab("L_g_next")
e(f"s_sub_u32 s{sT0}, s{sTN}, s{sNEED}")
e(f"s_cmp_lt_i32 s{sT0}, {a.cstop}")
e("s_cbranch_scc1 L_fin")
lab("L_g_w")
e(f"ds_read_b32 v{vPL}, v{vPA}")
e("s_waitcnt lgkmcnt(0)")
e(f"v_readfirstlane_b32 s{sLND}, v{vPL}")
e(f"s_cmp_ge_i32 s{sLND}, s{sNEED}")
e("s_cbranch_scc1 L_g_a")
spin_tail("L_g_w", 1)
lab("L_g_a")
if "prog2" in DBG:
    e(f"s_memrealtime s[{sST+2}:{sST+3}]")
    e(f"s_lshr_b32 m0, s{sLND}, 1")
    e("s_waitcnt lgkmcnt(0)")
    e(f"v_writelane_b32 v50, s{sST+2}, m0")
e(f"s_sub_u32 s{sNK}, s{sTN}, s{sLND}")
e(f"s_or_b32 s{sT0}, s{sNK}, s{sFB}")
e(f"v_mov_b32 v{vT2}, s{sT0}")
e("s_mov_b64 exec, 1")
e(f"global_store_dword v{vG}, v{vT2}, s[{sDBG}:{sDBG+1}] offset:128")
e("s_mov_b64 exec, -1")
e(f"global_load_dword v{vT0}, v{vFV}, s[{sDBG}:{sDBG+1}] offset:128 sc1")
e(f"s_add_u32 s{sNEED}, s{sLND}, {a.cstep}")
e(f"s_min_i32 s{sT3}, s{sBO}, 1")
e(f"s_max_i32 s{sT3}, s{sT3}, -1")
e(f"s_sub_u32 s{sBO}, s{sBO}, s{sT3}")
e("s_waitcnt vmcnt(0)")
e(f"ds_write_b32 v{vT1}, v{vT0}")
e(f"v_and_b32 v{vT0}, 0xffff, v{vT0}")
e(f"v_cmp_ne_u32 vcc, 0, v{vT0}")
for sh in (1, 2, 4, 8):
    e("s_nop 1")
    e(f"v_add_u32_dpp v{vT0}, v{vT0}, v{vT0} row_shr:{sh} row_mask:0xf bank_mask:0xf bound_ctrl:0")
e("s_nop 1")
e(f"v_add_u32_dpp v{vT0}, v{vT0}, v{vT0} row_bcast:15 row_mask:0xa bank_mask:0xf")
e(f"s_bcnt1_i32_b32 s{sT1}, vcc_lo")
e(f"v_readlane_b32 s{sT0}, v{vT0}, 31")
e(f"s_mul_i32 s{sT2}, s{sNK}, s{sT1}")
e(f"s_sub_u32 s{sT2}, s{sT2}, s{sT0}")
e(f"s_lshl_b32 s{sT2}, s{sT2}, 2")
for th, inc, cmp in ((CTH[0], -1, "lt"), (CTH[1], 1, "gt"), (CTH[2], 1, "gt")):
    e(f"s_mul_i32 s{sT0}, s{sT1}, {th - a.cbias}")
    e(f"s_cmp_{cmp}_i32 s{sT2}, s{sT0}")
    e(f"s_cselect_b32 s{sT0}, {inc}, 0")
    e(f"s_add_u32 s{sT3}, s{sT3}, s{sT0}")
e(f"s_max_i32 s{sT3}, s{sT3}, -1")
e(f"s_min_i32 s{sT3}, s{sT3}, 2")
e(f"v_mov_b32 v{vT2}, s{sT3}")
e(f"ds_write_b32 v{vFW}, v{vT2}")
e("s_branch L_g_next")

lab("L_fin")
if "prog2" in DBG:
    e(f"s_cmp_lg_u32 s{sW}, 5")
    e("s_cbranch_scc1 L_np2")
    e(f"s_lshl_b32 s{sT0}, s2, 8")
    e(f"s_add_u32 s{sT0}, s{sT0}, 0x400000")
    e(f"v_lshl_add_u32 v51, v{vLANE}, 2, s{sT0}")
    e(f"global_store_dword v51, v50, s[{sWS}:{sWS+1}]")
    lab("L_np2")
if a.stamps:
    e(f"s_cmp_gt_u32 s{sW}, 2")
    e("s_cbranch_scc1 L_end")
    e("s_mov_b64 exec, -1")
    e("s_waitcnt vmcnt(0) lgkmcnt(0)")
    stamp(3)
    e(f"s_getreg_b32 s{sT0}, hwreg(HW_REG_XCC_ID)")
    e("s_waitcnt lgkmcnt(0)")
    for i in range(8):
        e(f"v_mov_b32 v{64+i}, s{sST+i}")
    e(f"v_mov_b32 v72, s{sT0}")
    e(f"s_sub_u32 s{sT1}, {SPIN}, s{sSPIN}")
    e(f"v_mov_b32 v73, s{sT1}")
    e(f"v_mov_b32 v74, s{sT}")
    e(f"v_mov_b32 v75, 0")
    e(f"s_mul_i32 s{sT0}, s2, {NW}")
    e(f"s_add_u32 s{sT0}, s{sT0}, s{sW}")
    e(f"s_lshl_b32 s{sT0}, s{sT0}, 6")
    e(f"v_mov_b32 v80, s{sT0}")
    e("s_mov_b64 exec, 1")
    e(f"global_store_dwordx4 v80, v[64:67], s[{sWS}:{sWS+1}]")
    e(f"global_store_dwordx4 v80, v[68:71], s[{sWS}:{sWS+1}] offset:16")
    e(f"global_store_dwordx4 v80, v[72:75], s[{sWS}:{sWS+1}] offset:32")
lab("L_end")
e("s_endpgm")
out.append('.section .rodata,"a"')
out.append(".p2align 6")
out.append(f".amdhsa_kernel {NAME}_kernel")
out.append(f"  .amdhsa_next_free_vgpr {NV}")
out.append("  .amdhsa_next_free_sgpr 102")
out.append(f"  .amdhsa_accum_offset {NV}")
out.append("  .amdhsa_group_segment_fixed_size 0")
out.append("  .amdhsa_kernarg_size 64")
out.append("  .amdhsa_user_sgpr_count 2")
out.append("  .amdhsa_user_sgpr_kernarg_segment_ptr 1")
out.append("  .amdhsa_system_sgpr_workgroup_id_x 1")
out.append("  .amdhsa_float_denorm_mode_32 3")
out.append(".end_amdhsa_kernel")
open(a.o, "w").write("\n".join(out) + "\n")
```

```python
import sys, argparse
NAME = "standalone__paged_block_table_kv_pagedattention__sampling"
HEADER = open("cdna_kernels/" + NAME + ".s.ref").read().split("; Override")[0]

ap = argparse.ArgumentParser()
ap.add_argument("-o", default="/dev/stdout")
ap.add_argument("--map", default="plain")
ap.add_argument("--hrot", type=int, default=0)
ap.add_argument("--D", type=int, default=21)
ap.add_argument("--D0", type=int, default=26)
ap.add_argument("--NS", type=int, default=6)
ap.add_argument("--G", type=int, default=50)
ap.add_argument("--fnum", type=int, default=36)
ap.add_argument("--pollnum", type=int, default=53)
ap.add_argument("--psleep", type=int, default=12)
ap.add_argument("--UB", type=int, default=8)
ap.add_argument("--mfirst", type=int, default=1)
ap.add_argument("--cth", default="-2,2,5")
ap.add_argument("--cbias", type=int, default=7)
ap.add_argument("--cstart", type=int, default=8)
ap.add_argument("--cstop", type=int, default=4)
ap.add_argument("--cstep", type=int, default=3)
ap.add_argument("--xt", default="7,-8,7,-14,9,-2,8,-7")
ap.add_argument("--NUM", type=int, default=4)
ap.add_argument("--last", type=int, default=1)
ap.add_argument("--hold", default="")
ap.add_argument("--ost", default="")
ap.add_argument("--wb", type=int, default=0)
ap.add_argument("--skew", type=int, default=0)
ap.add_argument("--dv", default="-1,1,3")
ap.add_argument("--fpf", type=int, default=6)
ap.add_argument("--fld", default="sc1")
ap.add_argument("--opf", type=int, default=0)
ap.add_argument("--otouch", type=int, default=0)
ap.add_argument("--ospread", type=int, default=1)
ap.add_argument("--ofl", default="")
ap.add_argument("--DM", type=int, default=0)
ap.add_argument("--NE", type=int, default=3)
ap.add_argument("--nosort", action="store_true")
ap.add_argument("--nopair", action="store_true")
ap.add_argument("--limf", default="0x43800000")
ap.add_argument("--dbg", default="")
ap.add_argument("--stamps", action="store_true")
a = ap.parse_args()
NT = " nt"
OST = "" if not a.ost else " " + a.ost.replace("+", " ")
DBG = set(a.dbg.split(","))
D, D0, NS, G = a.D, a.D0, a.NS, a.G
assert 24 <= D0 <= 32 and (D - 2) // 8 == (D + 1) // 8 == 2 and 32 <= G < 64
CTH = [int(x) for x in a.cth.split(",")]
XT = [int(x) for x in a.xt.split(",")]
DV = [int(x) for x in a.dv.split(",")]
assert 17 <= D + DV[0] and D + DV[2] <= 24
DIVM = {5: (205, 10), 6: (43, 8), 7: (147, 10), 8: (1, 3), 10: (205, 11), 12: (171, 11)}[NS]
assert all((u * DIVM[0]) >> DIVM[1] == u // NS for u in range(129))
NW = 6
KBYTES = 4100 * 32768
SPIN = 1 << 22
NUM = a.NUM

RING = NS * 8192
PST = RING
MB = PST + G * 2048
MBS = 4224
CTRL = MB + 2 * MBS
FREE = CTRL + 512
REC0 = FREE + 128
DEPW = REC0 + 16
SL = FREE + 256
CNT = SL + 768
LA = CNT + 512
LB = LA + 512
KEYS = LB + 512
LDS = KEYS + 256
assert LDS <= 163840, LDS
WS0 = 0x100000 if a.stamps else 0
WSA = WS0 + 0x40000

out = []
def e(s): out.append("    " + s)
def lab(s): out.append(s + ":")
def c(s): out.append("    ; " + s)

sQ, sK, sV, sBT, sCL, sOUT, sDBG, sWS = 4, 6, 8, 10, 12, 14, 16, 18
sRD = 20
sB, sH, sW, sCLV = 28, 29, 30, 31
sT0, sT1, sT2, sT3 = 32, 33, 34, 35
sPC = 36
sSPIN = 38
sNB, sNTL, sNU, sT = 39, 40, 41, 42
sST = 64
sE = 72
sB0, sB1, sFL, sPM, sSLOT, sU, sTA0 = 46, 47, 48, 49, 52, 56, 57
sM = 46
sCI, sLND, sMBF, sNEED, sMRG, sMT, sROLE, sQO, sPLN, sSB = 48, 49, 50, 51, 52, 56, 57, 58, 59, 60
sV0 = 61
sCST = 62
sTN, sNK, sFWN, sFB, sPRE, sREDO, sLIMF, sPO = 96, 97, 98, 99, 100, 101, 53, 43
sMALL, sRS = 24, 26
sOFF, sTB0, sTB1, sTTC, sFIRST = 20, 21, 22, 23, 44
sZQ = 54
sRK, sPB, sNP, sX, sTA, sTB, sF, sWB = 80, 81, 82, 83, 84, 85, 86, 87
sMA, sMBK = 88, 90
sLO, sHI, sLBASE = 92, 93, 94
sBO = 56
vLANE = 1
vT0, vT1, vT2, vT3, vT4, vT5 = 2, 3, 4, 5, 6, 7
vL = 8
vKOFF, vVOFF = 10, 14
vCA, vCNT, vFA, vR = 18, 19, 20, 21
vF = 22
vCUR = 24
vTR = 28
vTRK, vTRV = 36, 52
vEN = 44
vDP, vDA, vOOB, vSA = 46, 47, 48, 49
vKA0, vVA0, vXA = 8, 12, 16
vPA0, vPW = 20, 21
vM, vLS, vMN, vAL, vPA, vFW = 24, 25, 26, 27, 28, 29
vPL = 30
vQ = 32
vS = 48
vP = 56
vG, vPF, vFV, vN = 60, 61, 62, 63
vKF = 64
vVF = 96
vO = 128
vE = 160
vPN = 160
NV = 168

def stamp(i):
    if a.hold and i == 0: e(f"{'s_memrealtime' if a.hold[:2] == 'rt' else 's_memtime'} s[{sST}:{sST+1}]")
    if a.stamps: e(f"s_memrealtime s[{sST+2*i}:{sST+2*i+1}]")
def clamp_cl(zq=None):
    c("context length: <=0 -> every key masked => uniform weights over 2048 keys (zero Q); >2048 -> 2048")
    e(f"s_cmp_lt_i32 s{sCLV}, 1")
    if zq is not None: e(f"s_cselect_b32 s{zq}, 1, 0")
    e(f"s_cselect_b32 s{sCLV}, 2048, s{sCLV}")
    e(f"s_min_i32 s{sCLV}, s{sCLV}, 2048")
def derive_nb():
    e(f"s_add_u32 s{sNTL}, s{sNB}, 1")
    e(f"s_lshr_b32 s{sNTL}, s{sNTL}, 1")
    e(f"s_sub_u32 s{sNU}, s{sNTL}, 1")
    e(f"s_min_u32 s{sNU}, s{sNU}, {NUM}")
def derive_cl():
    e(f"s_add_u32 s{sNB}, s{sCLV}, 15")
    e(f"s_lshr_b32 s{sNB}, s{sNB}, 4")
    derive_nb()
def spin_tail(label, sleep=1):
    e(f"s_sleep {sleep}")
    e(f"s_sub_u32 s{sSPIN}, s{sSPIN}, 1")
    e(f"s_cbranch_scc0 {label}")
    e("s_endpgm")
FIN = "s_branch L_fin" if a.stamps else "s_endpgm"

out.append(HEADER.rstrip())
out.append(f"; @launch grid=(256,1,1) block=({64*NW},1,1) lds={LDS}")
out.append('.amdgcn_target "amdgcn-amd-amdhsa--gfx950"')
out.append(".text")
out.append(f".globl {NAME}_kernel")
out.append(".p2align 8")
out.append(f".type {NAME}_kernel,@function")
lab(f"{NAME}_kernel")
e("s_load_dwordx16 s[4:19], s[0:1], 0")
e(f"s_lshr_b32 s{sB}, s2, 3")
e(f"s_cmp_ge_u32 s{sB}, 32")
e("s_cbranch_scc1 L_end")
stamp(0)
e(f"v_lshrrev_b32 v{vT0}, 6, v0")
e(f"v_and_b32 v{vLANE}, 63, v0")
e(f"v_readfirstlane_b32 s{sW}, v{vT0}")
c("waves 1 and 3 pull this kernel's code into L2")
e(f"s_getpc_b64 s[{sPC}:{sPC+1}]")
lab("L_pc")
e(f"v_bfe_u32 v{vT2}, v0, 7, 1")
e(f"v_lshl_add_u32 v{vT2}, v{vT2}, 6, v{vLANE}")
e(f"v_lshlrev_b32 v{vT2}, 7, v{vT2}")
e(f"v_min_u32 v{vT2}, L_end - L_pc, v{vT2}")
e(f"s_bitcmp1_b32 10, s{sW}")
e("s_cbranch_scc0 L_nopf")
e(f"global_load_dword v{vPF}, v{vT2}, s[{sPC}:{sPC+1}]")
lab("L_nopf")
c("clear the control words and the sort counters")
e(f"v_mov_b64 v[{vT2}:{vT3}], 0")
e(f"v_lshlrev_b32 v{vT4}, 3, v0")
e(f"v_add_u32 v{vT4}, {CTRL}, v{vT4}")
e(f"ds_write_b64 v{vT4}, v[{vT2}:{vT3}]")
if a.map == "rot":
    e(f"s_add_u32 s{sH}, s2, s{sB}")
    e(f"s_and_b32 s{sH}, s{sH}, 7")
elif a.hrot:
    e(f"s_add_u32 s{sH}, s2, {a.hrot}")
    e(f"s_and_b32 s{sH}, s{sH}, 7")
else:
    e(f"s_and_b32 s{sH}, s2, 7")
e(f"s_lshl3_add_u32 s{sT2}, s{sB}, s{sH}")
e(f"s_lshl_b32 s{sT2}, s{sT2}, 13")
e(f"v_lshl_add_u32 v{vT5}, v{vLANE}, 7, s{sT2}")
e(f"s_lshl_b32 s{sT0}, s{sB}, 9")
e(f"v_lshl_add_u32 v{vT2}, v{vLANE}, 3, s{sT0}")
e(f"s_lshl_b32 s{sT1}, s{sB}, 2")
e(f"v_and_b32 v{vT0}, 31, v{vLANE}")
e(f"v_lshlrev_b32 v{vT3}, 2, v{vT0}")
e(f"s_mov_b32 s{sSPIN}, {SPIN}")
e(f"s_cmp_lg_u32 s{sW}, 2")
e("s_waitcnt lgkmcnt(0)")
e(f"s_load_dwordx8 s[{sE}:{sE+7}], s[{sBT}:{sBT+1}], s{sT0}")
e(f"s_load_dword s{sCLV}, s[{sCL}:{sCL+1}], s{sT1}")
c("wave 2 touches the 64 lines of this workgroup's queries while memory is still idle")
e("s_cbranch_scc1 L_noq")
e(f"global_load_dword v{vPF}, v{vT5}, s[{sQ}:{sQ+1}]")
lab("L_noq")
if a.opf:
    e(f"s_cmp_lg_u32 s{sW}, 4")
    e("s_cbranch_scc1 L_noo")
    e(f"global_load_dword v{vPF}, v{vT5}, s[{sOUT}:{sOUT+1}]")
    lab("L_noo")
e(f"global_load_dwordx2 v[{vL}:{vL+1}], v{vT2}, s[{sBT}:{sBT+1}]")
e(f"global_load_dword v{vN}, v{vT3}, s[{sCL}:{sCL+1}]")
lab("L_loads_issued")
e(f"s_cmp_lg_u32 s{sW}, 0")
e("s_cbranch_scc1 L_notloader")

e("s_setprio 3")
c("per-lane source offsets of the LDS-DMA pieces (bank swizzle applied on the source side)")
e(f"v_lshrrev_b32 v{vR}, 4, v{vLANE}")
e(f"v_and_b32 v{vT1}, 15, v{vLANE}")
e(f"s_lshl_b32 s{sT0}, s{sH}, 8")
e(f"v_lshl_add_u32 v{vT4}, v{vR}, 11, s{sT0}")
e(f"v_xor_b32 v{vT2}, v{vR}, v{vT1}")
e(f"v_lshl_add_u32 v{vKOFF}, v{vT2}, 4, v{vT4}")
for j in range(1, 4):
    e(f"v_xor_b32 v{vT3}, {64*j}, v{vKOFF}")
    e(f"v_add_u32 v{vKOFF+j}, {7168*j}, v{vT3}")
e(f"s_mov_b32 s{sRD}, s{sK}")
e(f"s_and_b32 s{sRD+1}, s{sK+1}, 0xffff")
e(f"s_mov_b32 s{sRD+2}, {KBYTES}")
e(f"s_mov_b32 s{sRD+3}, 0x20000")
e("s_waitcnt lgkmcnt(0)")
clamp_cl()
c("the first stream tiles are logical tiles 0..3 (those that are not the last one)")
NE = a.NE
for t in range(NE):
    e(f"s_cmp_le_u32 s{sCLV}, {32*(t+1)}")
    e(f"s_cbranch_scc1 {'L_ld_b' if t < 2 else 'L_ld_pre'}")
    if t == 0: stamp(1)
    for j in range(8):
        i = 8 * t + j
        if j % 4 == 0:
            e(f"s_movk_i32 m0, {1024*i}")
            e(f"s_lshl_b32 s{sB0}, s{sE+i//4}, 15")
        if i >= D0: e(f"s_waitcnt vmcnt({D0-1})")
        e(f"buffer_load_dwordx4 v{vKOFF+j%4}, s[{sRD}:{sRD+3}], s{sB0} offen offset:{1024*(j%4)}{NT} lds")
    if t == 1:
        lab("L_ld_b")
        e("s_barrier")
lab("L_ld_pre")
derive_cl()
j0 = (D - 1) % 8
e(f"v_lshlrev_b32 v{vT3}, 2, v{vR}")
e(f"v_xor_b32 v{vT3}, v{vT3}, v{vT1}")
e(f"v_lshl_add_u32 v{vVOFF}, v{vT3}, 4, v{vT4}")
for j in range(1, 4):
    e(f"v_add_u32 v{vVOFF+j}, {7168*j}, v{vVOFF}")
e(f"s_min_u32 s{sT}, s{sNU}, {NE}")
e(f"s_lshl_b32 s{sSLOT}, s{sT}, 13")
e(f"s_mov_b32 s{sU}, s{sT}")
e(f"v_lshlrev_b32 v{vCA}, 3, v{vLANE}")
e(f"v_add_u32 v{vT0}, {SL}, v{vCA}")
e(f"v_add_u32 v{vCA}, {CTRL}, v{vCA}")
e(f"v_mov_b32 v{vFA}, {FREE}")
e(f"v_mov_b64 v[{vF}:{vF+1}], 0")
e(f"v_mov_b32 v{vDP}, {2 if NE == 3 else 0}")
e(f"v_mov_b32 v{vDA}, {DEPW}")
e(f"s_sub_u32 s{sT0}, s{sT}, 3")
e(f"v_mov_b32 v{vCNT}, s{sT0}")
e(f"s_lshl3_add_u32 s{sT0}, s{sT}, {SL}")
e(f"v_mov_b32 v{vSA}, s{sT0}")
c("offsets for the last logical tile: rows past the context are not fetched (their lanes read zeros)")
e(f"s_lshl_b32 s{sT0}, s{sNTL}, 5")
e(f"s_sub_u32 s{sT0}, s{sCLV}, s{sT0}")
e(f"s_add_u32 s{sT0}, s{sT0}, 32")
e(f"v_bfrev_b32 v{vOOB}, 1")
e(f"v_sub_u32 v{vT1}, s{sT0}, v{vR}")
for k in range(8):
    e(f"v_cmp_lt_i32 s[{80+2*k}:{81+2*k}], {4*k}, v{vT1}")
for k in range(8):
    e(f"v_cndmask_b32 v{vTRK+k}, v{vOOB}, v{vKOFF+k%4}, s[{80+2*k}:{81+2*k}]")
    e(f"v_cndmask_b32 v{vTRV+k}, v{vOOB}, v{vVOFF+k%4}, s[{80+2*k}:{81+2*k}]")
def set_pass(off, tr):
    for j in range(0, 4, 2): e(f"v_mov_b64 v[{vCUR+j}:{vCUR+j+1}], v[{off+j}:{off+j+1}]")
    for j in range(0, 8, 2): e(f"v_mov_b64 v[{vTR+j}:{vTR+j+1}], v[{tr+j}:{tr+j+1}]")
set_pass(vKOFF, vTRK)
if "prog3" in DBG: e("v_mov_b32 v50, 0")
e(f"s_mov_b32 s{sPM}, 4")
e(f"s_mov_b32 s{sTA0}, 0")
c("the leading tiles enter the stream list straight from the table row")
e(f"s_bfm_b64 s[{sT2}:{sT2+1}], s{sNU}, 0")
e(f"s_cmp_ge_u32 s{sNU}, {NE}")
e("s_cbranch_scc1 L_ld_row")
e("s_waitcnt vmcnt(0)")
lab("L_ld_row")
e("s_waitcnt vmcnt(24)")
if NE == 4: e(f"ds_write_b32 v{vCA}, v{vCNT}")
e(f"v_lshl_or_b32 v{vEN}, v{vL}, 15, 1")
e(f"v_lshlrev_b32 v{vEN+1}, 15, v{vL+1}")
e(f"s_mov_b64 exec, s[{sT2}:{sT2+1}]")
e(f"ds_write_b64 v{vT0}, v[{vEN}:{vEN+1}]")
e("s_mov_b64 exec, -1")
e(f"ds_read_b64 v[{vEN}:{vEN+1}], v{vSA}")
stamp(2)
def unit_body(depth, trimmed=False):
    for j in range(8):
        if j % 4 == 0: e(f"s_add_u32 m0, s{sSLOT}, {1024*j}")
        e(f"s_waitcnt vmcnt({depth-1})")
        e(f"buffer_load_dwordx4 v{vTR+j if trimmed else vCUR+j%4}, s[{sRD}:{sRD+3}], s{sB0 + j//4} offen offset:{1024*(j%4)}{NT} lds")
        if j == (depth - 1) % 8:
            e(f"v_add_u32 v{vCNT}, 1, v{vCNT}")
            e(f"ds_write_b32 v{vCA}, v{vCNT}")
        if j == 0:
            e(f"s_add_u32 s{sT2}, s{sSLOT}, 8192")
            e(f"s_cmp_eq_u32 s{sT2}, {RING}")
            e(f"s_cselect_b32 s{sT2}, 0, s{sT2}")
            e(f"s_lshr_b32 s{sT0}, s{sT2}, 10")
            e(f"s_add_u32 s{sT0}, s{sT0}, {FREE}")
            e(f"v_mov_b32 v{vFA}, s{sT0}")
        if j == 1:
            e(f"s_add_u32 s{sT}, s{sT}, 1")
            e(f"s_and_b32 s{sT0}, s{sFL}, s{sPM}")
            e(f"s_cselect_b32 s{sT}, s{sTA0}, s{sT}")
            e(f"s_lshl3_add_u32 s{sT0}, s{sT}, {SL}")
            e(f"v_mov_b32 v{vSA}, s{sT0}")
            e(f"s_add_u32 s{sU}, s{sU}, 1")
        if j == a.fpf:
            c("prefetch the next list entry, the FREE words of the next slot and the depth code")
            e(f"ds_read_b64 v[{vEN}:{vEN+1}], v{vSA}")
            e(f"ds_read_b64 v[{vF}:{vF+1}], v{vFA}")
            e(f"ds_read_b32 v{vDP}, v{vDA}")
            e(f"s_mov_b32 s{sSLOT}, s{sT2}")
out.append(".p2align 3")
lab("L_ld")
if "prog3" in DBG:
    e(f"s_memrealtime s[{sST+4}:{sST+5}]")
    e(f"s_min_u32 m0, s{sU}, 63")
e("s_waitcnt lgkmcnt(0)")
if "prog3" in DBG: e(f"v_writelane_b32 v50, s{sST+4}, m0")
e(f"v_min_i32 v{vT0}, v{vF}, v{vF+1}")
e(f"v_readfirstlane_b32 s{sFL}, v{vEN}")
e(f"v_readfirstlane_b32 s{sB1}, v{vEN+1}")
e(f"v_readfirstlane_b32 s{sT0}, v{vT0}")
e(f"v_readfirstlane_b32 s{sT3}, v{vDP}")
e(f"s_sub_u32 s{sT1}, s{sU}, {NS-1}")
e(f"s_cmp_ge_i32 s{sT0}, s{sT1}")
e(f"s_cselect_b32 s{sT0}, s{sFL}, 0")
e(f"s_and_b32 s{sB0}, s{sFL}, -16")
e(f"s_and_b32 s{sT0}, s{sT0}, 3")
e(f"s_cmp_lg_u32 s{sT0}, 1")
e("s_cbranch_scc1 L_ld_odd")
e(f"s_cmp_lg_u32 s{sT3}, 0")
e("s_cbranch_scc1 L_ld_var")
unit_body(D)
lab("L_ld_next")
e(f"s_bitcmp1_b32 s{sFL}, 2")
e("s_cbranch_scc0 L_ld")
c("last tile of the batch: change pass")
e(f"s_xor_b32 s{sPM}, s{sPM}, 4")
e("s_cbranch_scc1 L_ld_tok")
e(f"s_mov_b32 s{sRD}, s{sV}")
e(f"s_and_b32 s{sRD+1}, s{sV+1}, 0xffff")
set_pass(vVOFF, vTRV)
e("s_branch L_ld")
lab("L_ld_tok")
e(f"s_bitcmp1_b32 s{sFL}, 3")
e("s_cbranch_scc0 L_ld_more")
for r in (16, 8, 0):
    e(f"v_add_u32 v{vCNT}, 1, v{vCNT}")
    e(f"s_waitcnt vmcnt({r})")
    e(f"ds_write_b32 v{vCA}, v{vCNT}")
if a.hold:
    lab("L_hold")
    e(f"{'s_memrealtime' if a.hold[:2] == 'rt' else 's_memtime'} s[{sST+2}:{sST+3}]")
    e("s_waitcnt lgkmcnt(0)")
    e(f"s_sub_u32 s{sT0}, s{sST+2}, s{sST}")
    e(f"s_cmp_lt_u32 s{sT0}, {a.hold[3:]}")
    e("s_cbranch_scc1 L_hold")
e(FIN)
lab("L_ld_more")
e(f"s_mov_b32 s{sTA0}, s{sT}")
e(f"s_mov_b32 s{sRD}, s{sK}")
e(f"s_and_b32 s{sRD+1}, s{sK+1}, 0xffff")
set_pass(vKOFF, vTRK)
e("s_branch L_ld")
lab("L_ld_odd")
e(f"s_cmp_eq_u32 s{sT0}, 3")
e("s_cbranch_scc1 L_ld_m")
c("slot not free yet or entry not written yet")
e(f"ds_read_b64 v[{vEN}:{vEN+1}], v{vSA}")
e(f"ds_read_b64 v[{vF}:{vF+1}], v{vFA}")
e(f"s_sub_u32 s{sSPIN}, s{sSPIN}, 1")
e("s_cbranch_scc0 L_ld")
e("s_endpgm")
lab("L_ld_m")
unit_body(D + a.DM, True)
e("s_branch L_ld_next")
lab("L_ld_var")
e(f"s_cmp_eq_u32 s{sT3}, 1")
e("s_cbranch_scc1 L_ld_v2")
e(f"s_cmp_eq_u32 s{sT3}, 2")
e("s_cbranch_scc1 L_ld_v3")
unit_body(D + DV[0])
e("s_branch L_ld_next")
lab("L_ld_v2")
unit_body(D + DV[1])
e("s_branch L_ld_next")
lab("L_ld_v3")
unit_body(D + DV[2])
e("s_branch L_ld_next")

lab("L_notloader")
e(f"s_cmp_ge_u32 s{sW}, 3")
e("s_cbranch_scc1 L_planner")
e(f"s_sub_u32 s{sCI}, s{sW}, 1")
def rows_off(sb):
    e(f"s_lshl3_add_u32 s{sQO}, s{sb}, s{sH}")
    e(f"s_lshl1_add_u32 s{sQO}, s{sQO}, s{sCI}")
    e(f"s_lshl_b32 s{sQO}, s{sQO}, 12")
    e(f"v_and_b32 v{vT0}, 15, v{vLANE}")
    e(f"v_lshrrev_b32 v{vG}, 4, v{vLANE}")
def load_q(sb):
    rows_off(sb)
    e(f"v_lshl_add_u32 v{vT4}, v{vT0}, 8, s{sQO}")
    e(f"v_lshl_add_u32 v{vT4}, v{vG}, 4, v{vT4}")
    for s in range(4):
        e(f"global_load_dwordx4 v[{vQ+4*s}:{vQ+4*s+3}], v{vT4}, s[{sQ}:{sQ+1}] offset:{64*s}")
load_q(sB)
e("s_barrier")
e(f"s_mov_b32 s{sROLE}, 0")
e(f"s_mov_b32 s{sPLN}, 0")
e(f"s_mov_b32 s{sMRG}, 0")
e("s_waitcnt lgkmcnt(0)")
clamp_cl(zq=sT3)
derive_cl()
c("valid keys of the last logical tile")
e(f"s_lshl_b32 s{sV0}, s{sNTL}, 5")
e(f"s_sub_u32 s{sV0}, s{sCLV}, s{sV0}")
e(f"s_add_u32 s{sV0}, s{sV0}, 32")
e(f"s_bfm_b64 s[{sM}:{sM+1}], s{sNU}, 0")
lab("L_csetup")
e(f"s_mov_b32 s{sMT}, 0")
e(f"s_mov_b32 s{sOFF}, 0")
e(f"s_mov_b32 s{sTB0}, 0")
e(f"s_mov_b32 s{sFIRST}, 1")
e(f"s_mov_b64 s[{sRS}:{sRS+1}], 0")
e("s_waitcnt vmcnt(4)")
e(f"v_and_b32 v{vT0}, 15, v{vLANE}")
e(f"v_xor_b32 v{vT1}, v{vG}, v{vT0}")
e(f"v_lshlrev_b32 v{vT2}, 8, v{vT0}")
e(f"v_lshl_add_u32 v{vKA0}, v{vT1}, 4, v{vT2}")
for s in range(1, 4):
    e(f"v_xor_b32 v{vKA0+s}, {64*s}, v{vKA0}")
e(f"v_bfe_u32 v{vT0}, v{vLANE}, 2, 2")
e(f"v_lshl_add_u32 v{vT1}, v{vG}, 2, v{vT0}")
e(f"v_lshlrev_b32 v{vT1}, 8, v{vT1}")
e(f"v_and_b32 v{vT2}, 3, v{vLANE}")
e(f"v_lshl_add_u32 v{vT1}, v{vT2}, 4, v{vT1}")
e(f"v_lshl_add_u32 v{vVA0}, v{vT0}, 6, v{vT1}")
for j in range(1, 4):
    e(f"v_xor_b32 v{vVA0+j}, {64*j}, v{vVA0}")
e(f"s_lshl_b32 s{sT0}, s{sCI}, 10")
e(f"s_add_u32 s{sT0}, s{sT0}, {PST}")
e(f"v_lshl_add_u32 v{vPA0}, v{vLANE}, 4, s{sT0}")
e(f"s_lshl_b32 s{sT0}, s{sW}, 3")
e(f"s_add_u32 s{sT0}, s{sT0}, {CTRL-8}")
e(f"v_mov_b32 v{vPA}, s{sT0}")
e(f"v_mov_b32 v{vM}, 0xff800000")
e(f"v_mov_b32 v{vLS}, 0")
for r in range(0, 32, 2): e(f"v_mov_b64 v[{vO+r}:{vO+r+1}], 0")
e(f"s_mov_b32 s{sCST}, 0x3e0293ee")
e(f"s_mov_b32 s{sCST+1}, 0x3e0293ee")
e(f"s_mov_b32 s{sLIMF}, {a.limf}")
e(f"s_lshl2_add_u32 s{sFB}, s{sCI}, {FREE}")
e("s_waitcnt vmcnt(0)")
e(f"s_cmp_eq_u32 s{sT3}, 0")
e("s_cbranch_scc1 L_k_first")
for r in range(0, 16, 2): e(f"v_mov_b64 v[{vQ+r}:{vQ+r+1}], 0")

def poll(label):
    lab(label)
    e(f"ds_read_b64 v[{vPL}:{vPL+1}], v{vPA}")
    e(f"s_sub_u32 s{sSPIN}, s{sSPIN}, 1")
    e("s_cbranch_scc1 L_end")
    e("s_waitcnt lgkmcnt(0)")
    e(f"v_readfirstlane_b32 s{sLND}, v{vPL}")
    e(f"s_cmp_ge_i32 s{sLND}, s{sNK}")
    e(f"s_cbranch_scc0 {label}")
VR = []
for j in range(4):
    for ee in range(2):
        for blk in range(2):
            r = vVF + (2 * j + ee) * 4 + 2 * blk
            VR.append(f"ds_read_b64_tr_b16 v[{r}:{r+1}], v{vXA+j} offset:{8*ee + 4096*blk}")
KR, QK = [], []
for blk in range(2):
    for st in range(4):
        r = vKF + (blk * 4 + st) * 4
        KR.append(f"ds_read_b128 v[{r}:{r+3}], v{vXA+st} offset:{4096*blk}")
        cc = "0" if st == 0 else f"v[{vS+4*blk}:{vS+4*blk+3}]"
        QK.append(f"v_mfma_f32_16x16x32_bf16 v[{vS+4*blk}:{vS+4*blk+3}], v[{r}:{r+3}], v[{vQ+4*st}:{vQ+4*st+3}], {cc}")
PV = [f"v_mfma_f32_16x16x32_bf16 v[{vO+4*dt}:{vO+4*dt+3}], v[{vVF+4*dt}:{vVF+4*dt+3}], v[{vP}:{vP+3}], v[{vO+4*dt}:{vO+4*dt+3}]" for dt in range(8)]
NX = [f"s_ff1_i32_b64 s{sTN}, s[{sM}:{sM+1}]",
      f"s_bitset0_b64 s[{sM}:{sM+1}], s{sTN}",
      f"s_add_u32 s{sT1}, s{sTN}, s{sOFF}",
      f"s_mul_i32 s{sT0}, s{sT1}, {DIVM[0]}",
      f"s_lshr_b32 s{sT0}, s{sT0}, {DIVM[1]}",
      f"s_mul_i32 s{sT0}, s{sT0}, {NS}",
      f"s_sub_u32 s{sT0}, s{sT1}, s{sT0}",
      f"s_lshl_b32 s{sSB}, s{sT0}, 13",
      f"s_lshl3_add_u32 s{sFWN}, s{sT0}, s{sFB}",
      f"s_and_b32 s{sT0}, s{sTN}, 0x40000000",
      f"s_add_u32 s{sNK}, s{sT1}, 1",
      f"s_or_b32 s{sNK}, s{sNK}, s{sT0}",
      f"s_sub_u32 s{sPO}, s{sTN}, s{sTB0}",
      f"s_lshl_b32 s{sPO}, s{sPO}, 11"]
KA = [f"v_add_u32 v{vXA+i}, s{sSB}, v{vKA0+i}" for i in range(4)]
VA = [f"v_add_u32 v{vXA+i}, s{sSB}, v{vVA0+i}" for i in range(4)]
ADV = [f"v_mov_b32 v{vFW}, s{sFWN}",
       f"v_mov_b32 v{vFV}, s{sNK}",
       f"v_add_u32 v{vPW}, s{sPO}, v{vPA0}",
       f"s_add_u32 s{sT}, s{sTN}, 1"]
def scale_o(reg):
    for r in range(0, 32, 2):
        sel = "op_sel:[0,1] op_sel_hi:[1,1]" if reg & 1 else "op_sel_hi:[1,0]"
        p = reg & ~1
        e(f"v_pk_mul_f32 v[{vO+r}:{vO+r+1}], v[{vO+r}:{vO+r+1}], v[{p}:{p+1}] {sel}")

lab("L_k_first")
for x in NX + KA + ADV: e(x)
lab("L_k_next")
e(f"s_cmp_lt_i32 s{sTN}, 0")
e("s_cbranch_scc1 L_k_empty")
poll("L_k_poll")
for x in KR: e(x)
e("s_waitcnt lgkmcnt(0)")
out.append(".p2align 3")
lab("L_k_top")
e("s_waitcnt lgkmcnt(1)")
e(f"ds_write_b32 v{vFW}, v{vFV}")
e(f"ds_read_b64 v[{vPL}:{vPL+1}], v{vPA}")
fill = NX + KA
for i in range(8):
    e(QK[i])
    for x in fill[2*i:2*i+2]: e(x)
for x in fill[16:]: e(x)
e(f"s_mov_b32 s{sREDO}, 0")
e("s_waitcnt lgkmcnt(0)")
e(f"v_readfirstlane_b32 s{sLND}, v{vPL}")
e(f"s_cmp_ge_i32 s{sLND}, s{sNK}")
e(f"s_cselect_b32 s{sPRE}, 1, 0")
e("s_cbranch_scc0 L_k_nopre")
for x in KR: e(x)
lab("L_k_nopre")
e(f"s_cmp_eq_u32 s{sT}, s{sMT}")
e("s_cbranch_scc1 L_k_mask")
lab("L_k_exp")
for hb in range(2):
    for r in (4*hb, 4*hb+2):
        e(f"v_pk_fma_f32 v[{vE+r}:{vE+r+1}], v[{vS+r}:{vS+r+1}], s[{sCST}:{sCST+1}], v[{vM}:{vM+1}] op_sel_hi:[1,1,0] neg_lo:[0,0,1] neg_hi:[0,0,1]")
    for r in range(4*hb, 4*hb+4):
        e(f"v_exp_f32 v{vE+r}, v{vE+r}")
e(f"v_pk_add_f32 v[{vT0}:{vT1}], v[{vE}:{vE+1}], v[{vE+2}:{vE+3}]")
e(f"v_pk_add_f32 v[{vT2}:{vT3}], v[{vE+4}:{vE+5}], v[{vE+6}:{vE+7}]")
e(f"v_cvt_pk_bf16_f32 v{vP}, v{vE}, v{vE+1}")
e(f"v_pk_add_f32 v[{vT0}:{vT1}], v[{vT0}:{vT1}], v[{vT2}:{vT3}]")
e(f"v_cvt_pk_bf16_f32 v{vP+1}, v{vE+2}, v{vE+3}")
e(f"v_add_f32 v{vT0}, v{vT0}, v{vT1}")
c("the kept reference max is safe only while every weight stays <= 256; otherwise take the true max")
e(f"v_cmp_nge_f32 vcc, s{sLIMF}, v{vT0}")
e(f"v_cvt_pk_bf16_f32 v{vP+2}, v{vE+4}, v{vE+5}")
e(f"v_cvt_pk_bf16_f32 v{vP+3}, v{vE+6}, v{vE+7}")
e(ADV[0]); e(ADV[1])
e("s_nop 0")
e("s_cbranch_vccnz L_k_slow")
lab("L_k_done")
e(f"ds_write_b128 v{vPW}, v[{vP}:{vP+3}]")
e(f"v_add_f32 v{vLS}, v{vLS}, v{vT0}")
e(ADV[3])
e(f"s_cmp_lg_u32 s{sPRE}, 0")
e(ADV[2])
e("s_cbranch_scc1 L_k_top")
e("s_branch L_k_next")

lab("L_k_mask")
e(f"v_lshlrev_b32 v{vT0}, 2, v{vG}")
e(f"v_sub_u32 v{vT0}, s{sV0}, v{vT0}")
e(f"v_mov_b32 v{vT1}, 0xff800000")
for r in range(8):
    e(f"v_cmp_lt_i32 s[{80+2*r}:{81+2*r}], {16*(r//4)+r%4}, v{vT0}")
for r in range(8):
    e(f"v_cndmask_b32 v{vS+r}, v{vT1}, v{vS+r}, s[{80+2*r}:{81+2*r}]")
e("s_branch L_k_exp")

def alpha_addr():
    e(f"s_lshl_b32 s{sT0}, s2, 6")
    e(f"s_add_u32 s{sT0}, s{sT0}, s{sT}")
    e(f"s_lshl1_add_u32 s{sT0}, s{sT0}, s{sCI}")
    e(f"s_lshl_b32 s{sT0}, s{sT0}, 6")
    e(f"s_add_u32 s{sT0}, s{sT0}, {WSA}")
    e(f"v_and_b32 v{vT1}, 15, v{vLANE}")
    e(f"v_lshl_add_u32 v{vT1}, v{vT1}, 2, s{sT0}")
c("raise the reference to the true running max; the accumulator is rescaled when pass 2 reaches this tile")
lab("L_k_slow")
e(f"s_cmp_lg_u32 s{sREDO}, 0")
e("s_cbranch_scc1 L_k_done")
e(f"s_mov_b32 s{sREDO}, 1")
e(f"v_max3_f32 v{vT0}, v{vS}, v{vS+1}, v{vS+2}")
e(f"v_max3_f32 v{vT1}, v{vS+3}, v{vS+4}, v{vS+5}")
e(f"v_max3_f32 v{vT0}, v{vT0}, v{vS+6}, v{vS+7}")
e(f"v_max_f32 v{vT0}, v{vT0}, v{vT1}")
e(f"v_mov_b32 v{vT1}, v{vT0}")
e("s_nop 1")
e(f"v_permlane32_swap_b32 v{vT0}, v{vT1}")
e("s_nop 0")
e(f"v_max_f32 v{vT0}, v{vT0}, v{vT1}")
e(f"v_mov_b32 v{vT1}, v{vT0}")
e("s_nop 1")
e(f"v_permlane16_swap_b32 v{vT0}, v{vT1}")
e("s_nop 0")
e(f"v_max_f32 v{vT0}, v{vT0}, v{vT1}")
e(f"v_mul_f32 v{vT0}, s{sCST}, v{vT0}")
e(f"v_max_f32 v{vMN}, v{vM}, v{vT0}")
e(f"v_sub_f32 v{vAL}, v{vM}, v{vMN}")
e(f"v_exp_f32 v{vAL}, v{vAL}")
e(f"v_mov_b32 v{vM}, v{vMN}")
e(f"s_cmp_lg_u32 s{sFIRST}, 0")
e(f"s_mov_b32 s{sFIRST}, 0")
e(f"v_mul_f32 v{vLS}, v{vLS}, v{vAL}")
e("s_cbranch_scc1 L_k_exp")
alpha_addr()
e(f"global_store_dword v{vT1}, v{vAL}, s[{sWS}:{sWS+1}]")
e(f"s_sub_u32 s{sT0}, s{sT}, 1")
e(f"s_bitset1_b64 s[{sRS}:{sRS+1}], s{sT0}")
e("s_branch L_k_exp")

RLO, RHI = 0xffffffff, (1 << (G - 32)) - 1
lab("L_k_noplan")
e(f"s_mov_b32 s{sPLN}, 1")
e(f"v_mov_b32 v{vT1}, {REC0}")
lab("L_k_plan")
e(f"ds_read_b128 v[{vT2}:{vT5}], v{vT1}")
e("s_waitcnt lgkmcnt(0)")
e(f"v_readfirstlane_b32 s{sT0}, v{vT5}")
e(f"v_readfirstlane_b32 s{sM}, v{vT2}")
e(f"v_readfirstlane_b32 s{sM+1}, v{vT3}")
e(f"v_readfirstlane_b32 s{sTTC}, v{vT4}")
e(f"s_cmp_lg_u32 s{sT0}, 0")
e("s_cbranch_scc1 L_k_got")
spin_tail("L_k_plan")
lab("L_k_got")
e(f"s_lshr_b32 s{sMT}, s{sT0}, 8")
e(f"s_add_u32 s{sMT}, s{sMT}, 1")
e(f"s_and_b32 s{sMRG}, s{sTTC}, {0 if 'nomerge' in DBG else 1}")
e(f"s_lshr_b32 s{sTTC}, s{sTTC}, 8")
e(f"s_min_u32 s{sTB1}, s{sTTC}, {G}")
e(f"s_bfm_b64 s[{sMALL}:{sMALL+1}], s{sNU}, 0")
e(f"s_or_b64 s[{sMALL}:{sMALL+1}], s[{sMALL}:{sMALL+1}], s[{sM}:{sM+1}]")
e(f"s_and_b32 s{sM+1}, s{sM+1}, {RHI:#x}")
e("s_branch L_k_first")
lab("L_v_more")
c("second batch")
e(f"s_mov_b32 s{sTB0}, s{sTB1}")
e(f"s_mov_b32 s{sTB1}, s{sTTC}")
e(f"s_mov_b32 s{sOFF}, s{sTB0}")
e(f"s_mov_b32 s{sMALL}, 0")
e(f"s_andn2_b32 s{sMALL+1}, s{sMALL+1}, {RHI:#x}")
e(f"s_mov_b64 s[{sM}:{sM+1}], s[{sMALL}:{sMALL+1}]")
e("s_branch L_k_first")
lab("L_k_empty")
e(f"s_cmp_eq_u32 s{sPLN}, 0")
e("s_cbranch_scc1 L_k_noplan")
e(f"s_mov_b32 s{sOFF}, s{sTB1}")
e(f"s_mov_b32 s{sM}, s{sMALL}")
e(f"s_and_b32 s{sM+1}, s{sMALL+1}, {RHI:#x}")
e(f"s_cmp_eq_u32 s{sTB0}, 0")
e(f"s_cselect_b32 s{sM+1}, s{sM+1}, s{sMALL+1}")
for x in NX + VA: e(x)
e(f"ds_read_b64 v[{vPL}:{vPL+1}], v{vPA}")
e(f"s_cmp_lt_i32 s{sTN}, 0")
e("s_cbranch_scc1 L_v_empty")
lab("L_v_next")
for x in ADV: e(x)
if a.last:
    e(f"s_cmp_eq_u64 s[{sM}:{sM+1}], 0")
    e("s_cbranch_scc1 L_v_islast")
lab("L_v_next2")
e(f"ds_read_b128 v[{vPN}:{vPN+3}], v{vPW}")
e("s_waitcnt lgkmcnt(1)")
e(f"v_readfirstlane_b32 s{sLND}, v{vPL}")
e(f"s_cmp_ge_i32 s{sLND}, s{sNK}")
e("s_cbranch_scc1 L_v_rd")
poll("L_v_poll")
lab("L_v_rd")
for x in VR: e(x)
out.append(".p2align 3")
lab("L_v_top")
for x in NX + VA: e(x)
e(f"s_sub_u32 s{sT0}, s{sT}, 1")
e(f"s_bitcmp1_b64 s[{sRS}:{sRS+1}], s{sT0}")
e("s_cbranch_scc1 L_v_resc")
lab("L_v_top2")
e("s_waitcnt lgkmcnt(14)")
e(f"v_readfirstlane_b32 s{sMBF}, v{vPL+1}")
e(f"v_readfirstlane_b32 s{sLND}, v{vPL}")
e(f"v_mov_b64 v[{vP}:{vP+1}], v[{vPN}:{vPN+1}]")
e(f"v_mov_b64 v[{vP+2}:{vP+3}], v[{vPN+2}:{vPN+3}]")
e(f"s_and_b32 s{sT0}, s{sMBF}, s{sMRG}")
e("s_cbranch_scc1 L_v_merge")
lab("L_v_top3")
e(f"s_cmp_ge_i32 s{sLND}, s{sNK}")
e("s_cbranch_scc0 L_v_pv")
e(ADV[2])
e("s_waitcnt lgkmcnt(0)")
e(f"ds_write_b32 v{vFW}, v{vFV}")
e(f"ds_read_b64 v[{vPL}:{vPL+1}], v{vPA}")
e(f"ds_read_b128 v[{vPN}:{vPN+3}], v{vPW}")
for i in range(8):
    e(PV[i]); e(VR[2*i]); e(VR[2*i+1])
e(ADV[0]); e(ADV[1]); e(ADV[3])
e("s_branch L_v_top")
lab("L_v_pv")
for i in range(8):
    if i: e(f"s_waitcnt lgkmcnt({14-2*i})")
    if i == 7:
        e(f"ds_write_b32 v{vFW}, v{vFV}")
        e(f"ds_read_b64 v[{vPL}:{vPL+1}], v{vPA}")
    e(PV[i])
e(f"s_cmp_ge_i32 s{sTN}, 0")
e("s_cbranch_scc1 L_v_next")
lab("L_v_empty")
e(f"s_cmp_lt_u32 s{sTB1}, s{sTTC}")
e("s_cbranch_scc1 L_v_more")
stamp(2)
e(f"s_cmp_lg_u32 s{sMRG}, 0")
e("s_cbranch_scc1 L_c_mwait0")
lab("L_c_store")
e(f"v_mov_b32 v{vT0}, v{vLS}")
e(f"v_and_b32 v{vT2}, 15, v{vLANE}")
e(f"v_lshl_add_u32 v{vT2}, v{vT2}, 8, s{sQO}")
e(f"v_permlane32_swap_b32 v{vLS}, v{vT0}")
e("s_nop 0")
e(f"v_add_f32 v{vLS}, v{vLS}, v{vT0}")
e(f"v_mov_b32 v{vT0}, v{vLS}")
e(f"v_lshl_add_u32 v{vT2}, v{vG}, 4, v{vT2}")
e("s_nop 0")
e(f"v_permlane16_swap_b32 v{vLS}, v{vT0}")
e("s_nop 0")
e(f"v_add_f32 v{vLS}, v{vLS}, v{vT0}")
e(f"v_rcp_f32 v{vMN}, v{vLS}")
e(f"s_cmp_lg_u32 s{sROLE}, 0")
scale_o(vMN)
for r in range(16):
    e(f"v_cvt_pk_bf16_f32 v{vKF+r}, v{vO+2*r}, v{vO+2*r+1}")
e("s_cbranch_scc1 L_publish")
def out_stores(fl, step=64):
    for j in range(4):
        e(f"global_store_dwordx4 v{vT2}, v[{vKF+4*j}:{vKF+4*j+3}], s[{sOUT}:{sOUT+1}] offset:{step*j}{fl}")
out_stores(OST)
e(FIN)

def l_total():
    e(f"v_mov_b32 v{vT0}, v{vLS}")
    e(f"v_and_b32 v{vT2}, 15, v{vLANE}")
    e(f"v_lshl_add_u32 v{vT2}, v{vT2}, 8, s{sQO}")
    e(f"v_permlane32_swap_b32 v{vLS}, v{vT0}")
    e("s_nop 0")
    e(f"v_add_f32 v{vLS}, v{vLS}, v{vT0}")
    e(f"v_mov_b32 v{vT0}, v{vLS}")
    e(f"v_lshl_add_u32 v{vT2}, v{vG}, 4, v{vT2}")
    e("s_nop 0")
    e(f"v_permlane16_swap_b32 v{vLS}, v{vT0}")
    e("s_nop 0")
    e(f"v_add_f32 v{vLS}, v{vLS}, v{vT0}")
    e(f"v_rcp_f32 v{vMN}, v{vLS}")
if a.last:
    lab("L_v_islast")
    c("closing tile of an owner with nothing pending: take the short path")
    e(f"s_sub_u32 s{sT0}, s{sTTC}, s{sTB1}")
    e(f"s_or_b32 s{sT0}, s{sT0}, s{sMRG}")
    e(f"s_or_b32 s{sT0}, s{sT0}, s{sROLE}")
    e(f"s_or_b32 s{sT0}, s{sT0}, s{sRS}")
    e(f"s_or_b32 s{sT0}, s{sT0}, s{sRS+1}")
    e("s_cbranch_scc1 L_v_next2")
    e(f"ds_read_b128 v[{vP}:{vP+3}], v{vPW}")
    e(f"ds_read_b64 v[{vPL}:{vPL+1}], v{vPA}")
    l_total()
    e("s_waitcnt lgkmcnt(0)")
    e(f"v_readfirstlane_b32 s{sLND}, v{vPL}")
    e(f"s_cmp_ge_i32 s{sLND}, s{sNK}")
    e("s_cbranch_scc1 L_v_lrd")
    poll("L_v_lpoll")
    lab("L_v_lrd")
    for x in VR: e(x)
    def fin_j(j):
        r = []
        for k in range(4):
            q = vO + 8 * j + 2 * k
            r.append(f"v_pk_mul_f32 v[{q}:{q+1}], v[{q}:{q+1}], v[{vMN}:{vMN+1}] op_sel_hi:[1,0]")
        for k in range(4):
            r.append(f"v_cvt_pk_bf16_f32 v{vKF+4*j+k}, v{vO+8*j+2*k}, v{vO+8*j+2*k+1}")
        r.append(f"global_store_dwordx4 v{vT2}, v[{vKF+4*j}:{vKF+4*j+3}], s[{sOUT}:{sOUT+1}] offset:{64*j}{OST}")
        return r
    f0 = fin_j(0)
    for i in range(8):
        e(f"s_waitcnt lgkmcnt({14-2*i})")
        e(PV[i])
        if i == 5: e(f0[0]); e(f0[1])
        if i == 6: e(f0[2]); e(f0[3])
    stamp(2)
    for x in f0[4:] + fin_j(1) + fin_j(2) + fin_j(3): e(x)
    e(f"ds_write_b32 v{vFW}, v{vFV}")
    e(FIN)

lab("L_v_resc")
e(f"s_bitset0_b64 s[{sRS}:{sRS+1}], s{sT0}")
alpha_addr()
e("s_waitcnt vmcnt(0)")
e(f"global_load_dword v{vAL}, v{vT1}, s[{sWS}:{sWS+1}] sc1")
e("s_waitcnt vmcnt(0)")
scale_o(vAL)
e("s_branch L_v_top2")

lab("L_v_merge")
c("only once no rescale is pending; the reference max stays, so the partial's max must not be far above it")
e(f"s_cmp_eq_u64 s[{sRS}:{sRS+1}], 0")
e("s_cbranch_scc0 L_v_top3")
lab("L_c_merge")
e(f"s_mul_i32 s{sT0}, s{sCI}, {MBS}")
e(f"s_add_u32 s{sT0}, s{sT0}, {MB}")
e(f"v_and_b32 v{vT1}, 15, v{vLANE}")
e(f"v_lshl_add_u32 v{vT0}, v{vLANE}, 4, s{sT0}")
e(f"v_lshl_add_u32 v{vT1}, v{vT1}, 3, s{sT0}")
e("s_waitcnt lgkmcnt(0)")
e(f"ds_write_b32 v{vFW}, v{vFV}")
e(f"ds_read_b64 v[{vT4}:{vT5}], v{vT1} offset:4096")
for i in range(4):
    e(f"ds_read_b128 v[{vKF+4*i}:{vKF+4*i+3}], v{vT0} offset:{1024*i}")
e(f"s_cmp_eq_u32 s{sPLN}, 2")
e("s_waitcnt lgkmcnt(0)")
e("s_cbranch_scc1 L_c_mfin")
e(f"v_sub_f32 v{vT4}, v{vT4}, v{vM}")
e(f"v_cmp_nge_f32 vcc, 0x41800000, v{vT4}")
e(f"s_mov_b32 s{sMRG}, 2")
e("s_nop 3")
e("s_cbranch_vccnz L_v_top3")
e("s_branch L_c_madd")
lab("L_c_mfin")
e(f"v_max_f32 v{vMN}, v{vM}, v{vT4}")
e(f"v_sub_f32 v{vAL}, v{vM}, v{vMN}")
e(f"v_sub_f32 v{vT4}, v{vT4}, v{vMN}")
e(f"v_exp_f32 v{vAL}, v{vAL}")
e("s_nop 0")
e(f"v_mul_f32 v{vLS}, v{vLS}, v{vAL}")
scale_o(vAL)
lab("L_c_madd")
e(f"v_exp_f32 v{vT4}, v{vT4}")
e(f"s_mov_b32 s{sMRG}, 0")
e(f"v_mul_f32 v{vT4}, v{vT4}, v{vT5}")
e(f"v_fmac_f32 v{vLS}, 0x3e800000, v{vT4}")
for r in range(16):
    t = vKF + 16 + 2 * (r % 4)
    e(f"v_lshlrev_b32 v{t}, 16, v{vKF+r}")
    e(f"v_and_b32 v{t+1}, 0xffff0000, v{vKF+r}")
    e(f"v_pk_fma_f32 v[{vO+2*r}:{vO+2*r+1}], v[{t}:{t+1}], v[{vT4}:{vT4+1}], v[{vO+2*r}:{vO+2*r+1}] op_sel_hi:[1,0,1]")
e(f"s_cmp_eq_u32 s{sPLN}, 2")
e("s_cbranch_scc0 L_v_top3")
e("s_branch L_c_store")
lab("L_c_mwait0")
e(f"s_mov_b32 s{sPLN}, 2")
lab("L_c_mwait")
e(f"ds_read_b64 v[{vPL}:{vPL+1}], v{vPA}")
e("s_waitcnt lgkmcnt(0)")
e(f"v_readfirstlane_b32 s{sMBF}, v{vPL+1}")
e(f"s_cmp_lg_u32 s{sMBF}, 0")
e("s_cbranch_scc1 L_c_merge")
spin_tail("L_c_mwait")

def ws_base(sb):
    e(f"s_lshl3_add_u32 s{sT0}, s{sb}, s{sH}")
    e(f"s_lshl_b32 s{sT0}, s{sT0}, 9")
    if WS0: e(f"s_add_u32 s{sT0}, s{sT0}, {WS0}")

lab("L_publish")
if "nopub" in DBG: e("s_endpgm")
e(f"v_lshl_add_u32 v{vT2}, v{vLANE}, 4, s{sQO}")
e(f"s_lshl_b32 s{sT2}, s{sPB}, 2")
e(f"v_mov_b32 v{vT3}, s{sT2}")
e(f"v_lshlrev_b32 v{vT4}, 1, v{vT3}")
e(f"v_add_u32 v{vT4}, {CTRL+68}, v{vT4}")
e(f"ds_read_b32 v{vT4}, v{vT4}")
ws_base(sPB)
e(f"s_lshl2_add_u32 s{sT1}, s{sCI}, s{sT0}")
e(f"v_mov_b32 v{vT5}, s{sT1}")
e(f"s_lshl_b32 s{sT1}, s{sCI}, 7")
e(f"s_add_u32 s{sT0}, s{sT0}, s{sT1}")
e(f"v_lshl_add_u32 v{vT1}, v{vLANE}, 3, s{sT0}")
e(f"s_getreg_b32 s{sT2}, hwreg(HW_REG_XCC_ID, 0, 4)")
e(f"s_lshl_b32 s{sT2}, s{sT2}, 4")
e(f"s_or_b32 s{sT2}, s{sT2}, s{sH}")
e(f"s_or_b32 s{sT2}, s{sT2}, 0x100")
e("s_waitcnt lgkmcnt(0)")
e(f"v_readfirstlane_b32 s{sT1}, v{vT4}")
e(f"s_lshr_b32 s{sT1}, s{sT1}, 16")
e(f"s_cmp_eq_u32 s{sT1}, s{sT2}")
e("s_cbranch_scc1 L_pub_fast")
e(f"global_load_dword v{vT4}, v{vT3}, s[{sDBG}:{sDBG+1}] offset:128 sc1")
e("s_waitcnt vmcnt(0)")
e(f"v_readfirstlane_b32 s{sT1}, v{vT4}")
e(f"s_lshr_b32 s{sT1}, s{sT1}, 16")
e(f"s_cmp_eq_u32 s{sT1}, s{sT2}")
e("s_cbranch_scc0 L_pub_slow")
lab("L_pub_fast")
c("the receiver runs on this die and has cleared its flag words: hand over inside the shared L2")
out_stores("", 1024)
e("s_mov_b64 exec, 0xffff")
e(f"global_store_dwordx2 v{vT1}, v[{vM}:{vM+1}], s[{sWS}:{sWS+1}]")
e(f"v_mov_b32 v{vT4}, 1")
e("s_waitcnt vmcnt(0)")
e("s_mov_b64 exec, 1")
e(f"global_store_dword v{vT5}, v{vT4}, s[{sWS}:{sWS+1}] offset:256")
e(FIN)
lab("L_pub_slow")
c("any other placement: write through to memory, then set a bit with a device-wide atomic")
out_stores(" sc1", 1024)
e("s_mov_b64 exec, 0xffff")
e(f"global_store_dwordx2 v{vT1}, v[{vM}:{vM+1}], s[{sWS}:{sWS+1}] sc1")
e(f"s_lshl1_add_u32 s{sT1}, s{sH}, s{sCI}")
e(f"s_lshl_b32 s{sT1}, 1, s{sT1}")
e(f"v_mov_b32 v{vT4}, s{sT1}")
e("s_waitcnt vmcnt(0)")
e("s_mov_b64 exec, 1")
e(f"global_atomic_add v{vT3}, v{vT4}, s[{sDBG}:{sDBG+1}]")
e(FIN)

vRW = vL
vKEY, vRK = 19, 20
lab("L_ctl0")
if a.skew:
    c("dies are not started at the same instant: the first eight workgroups post when they started")
    e(f"s_memrealtime s[{sMA}:{sMA+1}]")
    e(f"s_lshl2_add_u32 s{sT0}, s{sH}, 2")
    e(f"v_mov_b32 v{vT4}, s{sT0}")
    e(f"s_cmp_lg_u32 s{sB}, 0")
    e("s_waitcnt lgkmcnt(0)")
    e("s_cbranch_scc1 L_ctl1")
    e(f"s_or_b32 s{sT0}, s{sMA}, 0x8000")
    e(f"v_mov_b32 v{vT5}, s{sT0}")
    e("s_mov_b64 exec, 1")
    e(f"global_store_short v{vT4}, v{vT5}, s[{sDBG}:{sDBG+1}] sc1")
    e("s_mov_b64 exec, -1")
    lab("L_ctl1")
e("s_barrier")
e("s_branch L_ctl")
lab("L_planner")
e(f"s_cmp_eq_u32 s{sW}, 5")
e("s_cbranch_scc1 L_ctl0")
e(f"s_sub_u32 s{sCI}, s{sW}, 3")
e(f"s_lshl_b32 s{sSB}, s{sCI}, 8")
e(f"s_add_u32 s{sSB}, s{sSB}, {CNT}")
e(f"v_lshl_add_u32 v{vPA}, v{vLANE}, 2, s{sSB}")
e(f"s_lshl_b32 s{sT2}, s{sCI}, 7")
e(f"s_add_u32 s{sT2}, s{sT2}, {KEYS}")
e(f"v_add_u32 v{vT3}, s{sT2}, v{vT3}")
e(f"v_lshrrev_b32 v{vT4}, 5, v{vLANE}")
e(f"v_lshl_add_u32 v{vT4}, v{vT4}, 6, s{sT2}")
e(f"v_mov_b32 v{vT5}, 2048")
e("s_barrier")
e("s_waitcnt vmcnt(0)")
e(f"v_cmp_gt_i32 s[{sZQ}:{sZQ+1}], 1, v{vN}")
e(f"v_min_i32 v{vN}, v{vN}, v{vT5}")
e("s_nop 0")
e(f"v_cndmask_b32 v{vN}, v{vN}, v{vT5}, s[{sZQ}:{sZQ+1}]")
e(f"v_add_u32 v{vN}, 15, v{vN}")
e(f"v_lshrrev_b32 v{vN}, 4, v{vN}")
e(f"v_lshl_or_b32 v{vKEY}, v{vN}, 5, v{vT0}")
e(f"ds_write_b32 v{vT3}, v{vKEY}")
for i in range(4):
    e(f"ds_read_b128 v[{vKF+4*i}:{vKF+4*i+3}], v{vT4} offset:{16*i}")
e(f"v_mov_b32 v{vRK}, 0")
e(f"v_readlane_b32 s{sNB}, v{vN}, s{sB}")
e("s_waitcnt lgkmcnt(0)")
c("rank of every batch by block count; the batch of rank 31-r is the partner")
for i in range(16):
    e(f"v_sub_u32 v{vKF+i}, v{vKF+i}, v{vKEY}")
for i in range(16):
    e(f"v_alignbit_b32 v{vRK}, v{vRK}, v{vKF+i}, 31")
e(f"v_bcnt_u32_b32 v{vRK}, v{vRK}, 0")
e(f"v_mov_b32 v{vT2}, v{vRK}")
derive_nb()
e(f"v_permlane32_swap_b32 v{vRK}, v{vT2}")
e("s_nop 0")
e(f"v_add_u32 v{vRK}, v{vRK}, v{vT2}")
e("s_nop 0")
e(f"v_readlane_b32 s{sRK}, v{vRK}, s{sB}")
e(f"s_sub_u32 s{sT0}, 31, s{sRK}")
e(f"v_cmp_eq_u32 vcc, s{sT0}, v{vRK}")
e(f"s_ff1_i32_b32 s{sPB}, vcc_lo")
e(f"v_readlane_b32 s{sNP}, v{vN}, s{sPB}")
e(f"s_max_u32 s{sT0}, s{sNB}, s{sNP}")
e(f"s_min_u32 s{sT1}, s{sNB}, s{sNP}")
e(f"s_sub_u32 s{sX}, s{sT0}, s{sT1}")
e(f"s_add_u32 s{sX}, s{sX}, 2")
e(f"s_lshr_b32 s{sX}, s{sX}, 2")
e(f"s_cmp_lt_u32 s{sT0}, {4*NUM+8}")
e(f"s_cselect_b32 s{sX}, 0, s{sX}")
if a.nopair: e(f"s_mov_b32 s{sX}, 0")
e(f"s_cmp_ge_u32 s{sRK}, 16")
e(f"s_cselect_b32 s{sLO}, s{sX}, 0")
e(f"s_cselect_b32 s{sTB}, 0, s{sX}")
e(f"s_cmp_eq_u32 s{sCI}, 0")
e("s_cbranch_scc1 L_pl_norow")
e(f"s_lshl_b32 s{sT0}, s{sPB}, 9")
e(f"v_lshl_add_u32 v{vT1}, v{vLANE}, 3, s{sT0}")
e(f"global_load_dwordx2 v[{vRW}:{vRW+1}], v{vT1}, s[{sBT}:{sBT+1}]")
lab("L_pl_norow")
e(f"s_sub_u32 s{sTA}, s{sNTL}, s{sLO}")
e(f"s_add_u32 s{sT}, s{sTA}, s{sTB}")
e(f"s_mul_i32 s{sF}, s{sT}, {a.fnum}")
e(f"s_lshr_b32 s{sF}, s{sF}, 6")
e(f"s_min_u32 s{sWB}, s{sTA}, {a.UB}")
e(f"s_sub_i32 s{sF}, s{sF}, s{sWB}")
e(f"s_max_i32 s{sF}, s{sF}, s{sTB}")
e(f"s_max_i32 s{sF}, s{sF}, 1")
e(f"v_cvt_f32_u32 v{vT2}, s{sF}")
e(f"v_subrev_u32 v{vT3}, s{sWB}, v{vLANE}")
e(f"v_rcp_f32 v{vT2}, v{vT2}")
e(f"v_mul_i32_i24 v{vT4}, s{sTB}, v{vT3}")
e(f"v_add_u32 v{vT5}, s{sTB}, v{vT4}")
e(f"v_cvt_f32_i32 v{vT4}, v{vT4}")
e(f"v_cvt_f32_i32 v{vT5}, v{vT5}")
e(f"v_add_f32 v{vT4}, 0.5, v{vT4}")
e(f"v_add_f32 v{vT5}, 0.5, v{vT5}")
e(f"v_mul_f32 v{vT4}, v{vT4}, v{vT2}")
e(f"v_mul_f32 v{vT5}, v{vT5}, v{vT2}")
e(f"v_floor_f32 v{vT4}, v{vT4}")
e(f"v_floor_f32 v{vT5}, v{vT5}")
e(f"v_cmp_gt_u32 vcc, s{sF}, v{vT3}")
e(f"v_cmp_gt_f32 s[{sMBK}:{sMBK+1}], v{vT5}, v{vT4}")
e(f"s_sub_u32 s{sT0}, s{sT}, s{sNU}")
e(f"v_subrev_u32 v{vT3}, s{sNU}, v{vLANE}")
e(f"v_cmp_gt_u32 s[{sMA}:{sMA+1}], s{sT0}, v{vT3}")
e(f"s_and_b64 s[{sMBK}:{sMBK+1}], s[{sMBK}:{sMBK+1}], vcc")
e(f"s_andn2_b64 s[{sMA}:{sMA+1}], s[{sMA}:{sMA+1}], s[{sMBK}:{sMBK+1}]")
c(f"own tiles to sort: logical [NU+given, ntile); donated: the partner's logical [{NUM}, {NUM}+TB)")
mfirst = a.mfirst and not a.nosort
if mfirst:
    e(f"s_ff1_i32_b64 s{sT2}, s[{sMA}:{sMA+1}]")
else:
    e(f"s_flbit_i32_b64 s{sT2}, s[{sMA}:{sMA+1}]")
    e(f"s_sub_u32 s{sT2}, 63, s{sT2}")
e(f"s_lshl_b32 s{sT2}, s{sT2}, 8")
e(f"s_or_b32 s{sWB}, s{sT2}, 1")
e(f"s_min_u32 s{sMRG}, s{sLO}, 1")
e(f"s_add_u32 s{sLO}, s{sLO}, s{sNU}")
e(f"s_sub_u32 s{sHI}, s{sNTL}, s{sLO}")
e(f"s_sub_u32 s{sT3}, s{sNTL}, 1")
e(f"s_mov_b32 s{sLBASE}, {LA}")
e(f"s_cmp_eq_u32 s{sCI}, 0")
e("s_cbranch_scc1 L_pl_a")
e(f"s_mov_b32 s{sLO}, {NUM}")
e(f"s_mov_b32 s{sHI}, s{sTB}")
e(f"s_mov_b32 s{sT3}, -1")
e(f"s_mov_b32 s{sLBASE}, {LB}")
e(f"s_mov_b64 s[{sMA}:{sMA+1}], s[{sMBK}:{sMBK+1}]")
e("s_branch L_pl_sort")
lab("L_pl_a")
e(f"s_lshl_b32 s{sT0}, s{sT}, 8")
e(f"s_or_b32 s{sT0}, s{sT0}, s{sMRG}")
e(f"v_mov_b32 v{vT2}, s{sMA}")
e(f"v_mov_b32 v{vT3}, s{sMA+1}")
e(f"v_mov_b32 v{vT4}, s{sT0}")
e(f"v_mov_b32 v{vT5}, s{sWB}")
e(f"v_mov_b32 v{vT1}, {REC0}")
e(f"ds_write_b128 v{vT1}, v[{vT2}:{vT5}]")
lab("L_pl_sort")
e(f"v_subrev_u32 v{vT0}, s{sLO}, v{vLANE}")
e(f"v_cmp_gt_u32 vcc, s{sHI}, v{vT0}")
e(f"v_mov_b32 v{vT5}, 1")
e("s_waitcnt vmcnt(0)")
if a.nosort:
    e(f"v_lshlrev_b32 v{vT2}, 1, v{vT0}")
    e(f"v_add_u32 v{vT3}, 1, v{vT2}")
else:
    c("counting sort of the block ids into 64 buckets of ascending physical address")
    e(f"v_lshrrev_b32 v{vT0}, 6, v{vRW}")
    e(f"v_lshrrev_b32 v{vT1}, 6, v{vRW+1}")
    e(f"v_cmp_eq_u32 s[{sRK+2}:{sRK+3}], s{sT3}, v{vLANE}")
    if mfirst:
        e(f"v_med3_u32 v{vT0}, v{vT0}, 1, 63")
        e(f"v_med3_u32 v{vT1}, v{vT1}, 1, 63")
    else:
        e(f"v_min_u32 v{vT0}, 62, v{vT0}")
        e(f"v_min_u32 v{vT1}, 62, v{vT1}")
    fb = 0 if mfirst else 63
    e(f"v_cndmask_b32 v{vT0}, v{vT0}, {fb}, s[{sRK+2}:{sRK+3}]")
    e(f"v_cndmask_b32 v{vT1}, v{vT1}, {fb}, s[{sRK+2}:{sRK+3}]")
    e(f"v_lshlrev_b32 v{vT0}, 2, v{vT0}")
    e(f"v_lshlrev_b32 v{vT1}, 2, v{vT1}")
    e(f"v_add_u32 v{vKF}, s{sSB}, v{vT0}")
    e(f"v_add_u32 v{vKF+1}, s{sSB}, v{vT1}")
    e("s_mov_b64 exec, vcc")
    e(f"ds_add_rtn_u32 v{vT2}, v{vKF}, v{vT5}")
    e(f"ds_add_rtn_u32 v{vT3}, v{vKF+1}, v{vT5}")
    e("s_mov_b64 exec, -1")
    e(f"ds_read_b32 v{vT4}, v{vPA}")
    e("s_waitcnt lgkmcnt(0)")
    e(f"v_mov_b32 v{vKF+2}, v{vT4}")
    for sh in (1, 2, 4, 8):
        e("s_nop 1")
        e(f"v_add_u32_dpp v{vT4}, v{vT4}, v{vT4} row_shr:{sh} row_mask:0xf bank_mask:0xf bound_ctrl:0")
    e("s_nop 1")
    e(f"v_add_u32_dpp v{vT4}, v{vT4}, v{vT4} row_bcast:15 row_mask:0xa bank_mask:0xf")
    e("s_nop 1")
    e(f"v_add_u32_dpp v{vT4}, v{vT4}, v{vT4} row_bcast:31 row_mask:0xc bank_mask:0xf")
    e(f"v_sub_u32 v{vT4}, v{vT4}, v{vKF+2}")
    e(f"ds_bpermute_b32 v{vT0}, v{vT0}, v{vT4}")
    e(f"ds_bpermute_b32 v{vT1}, v{vT1}, v{vT4}")
    e("s_waitcnt lgkmcnt(0)")
    e(f"v_add_u32 v{vT2}, v{vT2}, v{vT0}")
    e(f"v_add_u32 v{vT3}, v{vT3}, v{vT1}")
e(f"v_lshlrev_b32 v{vRW}, 15, v{vRW}")
e(f"v_lshlrev_b32 v{vRW+1}, 15, v{vRW+1}")
e(f"v_lshl_add_u32 v{vT2}, v{vT2}, 2, s{sLBASE}")
e(f"v_lshl_add_u32 v{vT3}, v{vT3}, 2, s{sLBASE}")
e("s_mov_b64 exec, vcc")
e(f"ds_write_b32 v{vT2}, v{vRW}")
e(f"ds_write_b32 v{vT3}, v{vRW+1}")
e("s_mov_b64 exec, -1")
c("place the sorted tiles at their stream positions; flags: 1 valid, 2 masked, 4 last of batch, 8 last of stream")
e(f"v_mbcnt_lo_u32_b32 v{vT0}, s{sMA}, 0")
e(f"v_mbcnt_hi_u32_b32 v{vT0}, s{sMA+1}, v{vT0}")
e(f"v_lshl_add_u32 v{vT0}, v{vT0}, 3, s{sLBASE}")
e(f"ds_read_b64 v[{vT2}:{vT3}], v{vT0}")
e(f"s_lshr_b32 s{sT0}, s{sWB}, 8")
e(f"s_sub_u32 s{sT1}, s{sT}, 1")
e(f"v_cmp_eq_u32 vcc, s{sT0}, v{vLANE}")
e(f"v_cmp_eq_u32 s[{sRK+2}:{sRK+3}], s{sT1}, v{vLANE}")
e(f"v_cmp_eq_u32 s[{sT2}:{sT2+1}], {G-1}, v{vLANE}")
e(f"v_cndmask_b32 v{vT4}, 1, 3, vcc")
e(f"v_cndmask_b32 v{vT5}, 0, 12, s[{sRK+2}:{sRK+3}]")
e(f"v_cndmask_b32 v{vT1}, 0, 4, s[{sT2}:{sT2+1}]")
e(f"v_or3_b32 v{vT4}, v{vT4}, v{vT5}, v{vT1}")
e(f"v_lshlrev_b32 v{vT0}, 3, v{vLANE}")
e(f"v_add_u32 v{vT0}, {SL}, v{vT0}")
e("s_waitcnt lgkmcnt(0)")
e(f"v_or_b32 v{vT2}, v{vT2}, v{vT4}")
e(f"s_mov_b64 exec, s[{sMA}:{sMA+1}]")
e(f"ds_write_b64 v{vT0}, v[{vT2}:{vT3}]")
e("s_mov_b64 exec, -1")
lab("L_pl_done")
e(f"s_cmp_lg_u32 s{sMRG}, 0")
e("s_cbranch_scc1 L_fetch")
e(f"s_cmp_eq_u32 s{sTB}, 0")
e("s_cbranch_scc1 L_fin")
c("become the consumer of the donated tiles")
load_q(sPB)
e(f"s_mov_b64 s[{sMALL}:{sMALL+1}], s[{sMBK}:{sMBK+1}]")
e(f"s_mov_b32 s{sM}, s{sMBK}")
e(f"s_and_b32 s{sM+1}, s{sMBK+1}, {RHI:#x}")
e(f"s_mov_b32 s{sTTC}, s{sT}")
e(f"s_min_u32 s{sTB1}, s{sT}, {G}")
e(f"s_mov_b32 s{sROLE}, 1")
e(f"s_mov_b32 s{sPLN}, 1")
e(f"s_lshr_b32 s{sT3}, s{sZQ}, s{sPB}")
e(f"s_and_b32 s{sT3}, s{sT3}, 1")
e("s_branch L_csetup")

lab("L_fetch")
e(f"s_cmp_lg_u32 s{sCI}, 0")
e("s_cbranch_scc1 L_fin")
rows_off(sB)
if a.otouch >= 0:
    c("make the lines that will carry the partial valid in L2 (a later read of write-only lines would go to memory)")
    e(f"v_lshl_add_u32 v{vT4}, v{vLANE}, 7, s{sQO}")
    e(f"global_load_dword v{vPF}, v{vT4}, s[{sOUT}:{sOUT+1}] {a.ofl.replace('+', ' ')}")
ws_base(sB)
e(f"v_lshl_add_u32 v{vT1}, v{vT0}, 3, s{sT0}")
e(f"v_mov_b32 v{vFW}, s{sT0}")
e(f"s_lshl_b32 s{sT2}, s{sB}, 2")
e(f"v_mov_b32 v{vT2}, s{sT2}")
e(f"v_mov_b32 v{vPA}, {CTRL+16}")
e("s_mov_b64 exec, 1")
e(f"s_mul_i32 s{sNEED}, s{sT}, {a.pollnum}")
e(f"s_lshr_b32 s{sNEED}, s{sNEED}, 5")
e(f"s_lshl_b32 s{sT3}, s{sH}, 1")
e(f"s_mov_b32 s{sMBF}, 0")
c("wait until wave 5 has cleared the flag words and the stream is far enough")
lab("L_f_wait")
e(f"ds_read_b64 v[{vPL}:{vPL+1}], v{vPA}")
e("s_waitcnt lgkmcnt(0)")
e(f"v_readfirstlane_b32 s{sLND}, v{vPL}")
e(f"v_readfirstlane_b32 s{sT0}, v{vPL+1}")
e(f"s_cmp_ge_i32 s{sLND}, s{sNEED}")
e(f"s_cselect_b32 s{sT0}, s{sT0}, 0")
e(f"s_cmp_lg_u32 s{sT0}, 0")
e("s_cbranch_scc1 L_f_poll")
spin_tail("L_f_wait", 8)
lab("L_f_poll")
if "nopoll" in DBG: e("s_branch L_f_got")
e(f"global_load_dwordx2 v[{vPL}:{vPL+1}], v{vFW}, s[{sWS}:{sWS+1}] offset:256 sc1")
e(f"s_add_u32 s{sMBF}, s{sMBF}, 1")
e(f"s_and_b32 s{sT0}, s{sMBF}, 3")
e(f"s_mov_b32 s{sT2}, 0")
e("s_cbranch_scc1 L_f_nodbg")
e(f"global_load_dword v{vT3}, v{vT2}, s[{sDBG}:{sDBG+1}] sc1")
e("s_waitcnt vmcnt(0)")
e(f"v_readfirstlane_b32 s{sT2}, v{vT3}")
e(f"s_lshr_b32 s{sT2}, s{sT2}, s{sT3}")
lab("L_f_nodbg")
e("s_waitcnt vmcnt(0)")
e(f"v_lshl_or_b32 v{vPL}, v{vPL+1}, 1, v{vPL}")
e("s_nop 0")
e(f"v_readfirstlane_b32 s{sT0}, v{vPL}")
e(f"s_or_b32 s{sT0}, s{sT0}, s{sT2}")
e(f"s_and_b32 s{sT0}, s{sT0}, 3")
e(f"s_cmp_eq_u32 s{sT0}, 3")
e("s_cbranch_scc1 L_f_got")
spin_tail("L_f_poll", a.psleep)
lab("L_f_got")
e("s_mov_b64 exec, -1")
e(f"v_lshl_add_u32 v{vT4}, v{vLANE}, 4, s{sQO}")
e(f"v_add_u32 v{vT5}, 4096, v{vT4}")
FLD = " " + a.fld if a.fld != "none" else ""
for cc in range(2):
    if "nofetch" in DBG:
        e(f"v_mov_b32 v{vM+2*cc}, 0"); e(f"v_mov_b32 v{vM+2*cc+1}, 0")
        continue
    e(f"global_load_dwordx2 v[{vM+2*cc}:{vM+2*cc+1}], v{vT1}, s[{sWS}:{sWS+1}] offset:{128*cc}{FLD}")
    for j in range(4):
        r = vKF + 16 * cc + 4 * j
        e(f"global_load_dwordx4 v[{r}:{r+3}], v{vT4+cc}, s[{sOUT}:{sOUT+1}] offset:{1024*j}{FLD}")
e(f"v_lshlrev_b32 v{vT2}, 4, v{vLANE}")
e(f"v_add_u32 v{vT2}, {MB}, v{vT2}")
e(f"v_lshlrev_b32 v{vT0}, 3, v{vT0}")
e(f"v_add_u32 v{vT0}, {MB}, v{vT0}")
e(f"v_mov_b32 v{vPL}, {CTRL+4}")
e(f"v_mov_b32 v{vT3}, 1")
for cc in range(2):
    e(f"s_waitcnt vmcnt({5-5*cc})")
    for j in range(4):
        r = vKF + 16 * cc + 4 * j
        e(f"ds_write_b128 v{vT2}, v[{r}:{r+3}] offset:{MBS*cc + 1024*j}")
    e(f"ds_write_b64 v{vT0}, v[{vM+2*cc}:{vM+2*cc+1}] offset:{MBS*cc + 4096}")
    e(f"ds_write_b32 v{vPL}, v{vT3} offset:{8*cc}")
e(FIN)

c("wave 5: workgroups that share an L2 post their remaining work; one that lags prefetches deeper")
lab("L_ctl")
e(f"v_mov_b32 v{vT1}, {REC0}")
e(f"v_mov_b32 v{vPA}, {CTRL+32}")
e(f"v_mov_b32 v{vFW}, {DEPW}")
e(f"s_lshl_b32 s{sT0}, s{sB}, 2")
e(f"v_mov_b32 v{vG}, s{sT0}")
e(f"v_mov_b32 v{vFV}, v{vT3}")
lo = sum((XT[i] & 255) << (8 * i) for i in range(4)); hi = sum((XT[4 + i] & 255) << (8 * i) for i in range(4))
e(f"s_getreg_b32 s{sT0}, hwreg(HW_REG_XCC_ID, 0, 3)")
e(f"s_mov_b32 s{sM}, {lo:#x}")
e(f"s_mov_b32 s{sM+1}, {hi:#x}")
e(f"s_lshl_b32 s{sT0}, s{sT0}, 3")
e(f"s_lshr_b64 s[{sM}:{sM+1}], s[{sM}:{sM+1}], s{sT0}")
e(f"s_sext_i32_i8 s{sBO}, s{sM}")
lab("L_g_plan")
e(f"ds_read_b128 v[{vT2}:{vT5}], v{vT1}")
e("s_waitcnt lgkmcnt(0)")
e(f"v_readfirstlane_b32 s{sT0}, v{vT5}")
e(f"v_readfirstlane_b32 s{sT}, v{vT4}")
e(f"s_cmp_lg_u32 s{sT0}, 0")
e("s_cbranch_scc1 L_g_go")
spin_tail("L_g_plan", 8)
lab("L_g_go")
e(f"s_and_b32 s{sMRG}, s{sT}, 1")
e("s_cbranch_scc0 L_g_nores")
c("a partial is expected: clear its flag words before anything is posted")
ws_base(sB)
e(f"v_mov_b32 v{vT0}, s{sT0}")
e(f"v_mov_b32 v{vT2}, 0")
e(f"v_mov_b32 v{vT3}, 0")
e(f"v_mov_b32 v{vT4}, {CTRL+20}")
e(f"v_mov_b32 v{vT5}, 1")
e("s_mov_b64 exec, 1")
e(f"global_store_dwordx2 v{vT0}, v[{vT2}:{vT3}], s[{sWS}:{sWS+1}] offset:256")
e("s_waitcnt vmcnt(0)")
e(f"ds_write_b32 v{vT4}, v{vT5}")
e("s_mov_b64 exec, -1")
lab("L_g_nores")
e(f"s_and_b32 s{sT0}, s{sDBG}, 127")
e("s_cbranch_scc1 L_fin")
c("posted word: remaining units + 1 | head << 16 | die << 20 | flags cleared << 24")
e(f"s_getreg_b32 s{sFB}, hwreg(HW_REG_XCC_ID, 0, 4)")
e(f"s_lshl4_add_u32 s{sFB}, s{sMRG}, s{sFB}")
e(f"s_lshl4_add_u32 s{sFB}, s{sFB}, s{sH}")
e(f"s_lshl_b32 s{sFB}, s{sFB}, 16")
e(f"s_lshr_b32 s{sT}, s{sT}, 8")
e(f"s_lshl1_add_u32 s{sTN}, s{sT}, 1")
e(f"v_lshlrev_b32 v{vT1}, 1, v{vFV}")
e(f"v_add_u32 v{vT1}, {CTRL+68}, v{vT1}")
e(f"v_mov_b32 v{vT2}, s{sFB}")
e("s_mov_b64 exec, 1")
e(f"global_store_dword v{vG}, v{vT2}, s[{sDBG}:{sDBG+1}] offset:128")
e("s_mov_b64 exec, -1")
if "prog2" in DBG: e("v_mov_b32 v50, 0")
if a.skew:
    e(f"s_mov_b32 s{sNEED}, 3")
    e(f"s_cmp_lt_u32 s{sT}, 8")
    e("s_cbranch_scc1 L_fin")
    lab("L_g_sw")
    e(f"ds_read_b32 v{vPL}, v{vPA}")
    e("s_waitcnt lgkmcnt(0)")
    e(f"v_readfirstlane_b32 s{sLND}, v{vPL}")
    e(f"s_cmp_ge_i32 s{sLND}, s{sNEED}")
    e("s_cbranch_scc1 L_g_sa")
    spin_tail("L_g_sw", 1)
    lab("L_g_sa")
    e(f"global_load_dword v{vT0}, v{vFV}, s[{sDBG}:{sDBG+1}] sc1")
    e("s_waitcnt vmcnt(0)")
    e(f"v_cmp_gt_i32 vcc, 0, v{vT0}")
    e(f"v_lshrrev_b32 v{vT0}, 16, v{vT0}")
    e(f"v_sub_u32 v{vT0}, s{sMA}, v{vT0}")
    e(f"v_bfe_i32 v{vT0}, v{vT0}, 0, 15")
    e(f"v_cndmask_b32 v{vT0}, 0, v{vT0}, vcc")
    for sh in (1, 2, 4):
        e("s_nop 1")
        op = "v_max_i32_dpp" if "ampmax" in DBG else "v_add_u32_dpp"
        e(f"{op} v{vT0}, v{vT0}, v{vT0} row_shr:{sh} row_mask:0xf bank_mask:0xf bound_ctrl:0")
    e("s_nop 0")
    e(f"v_readlane_b32 s{sT0}, v{vT0}, 7")
    if "ampmax" in DBG or "ampmean" in DBG:
        e(f"s_mul_i32 s{sMBK}, s{sT0}, {20 if 'ampmax' in DBG else 3}")
        e(f"s_max_i32 s{sMBK}, s{sMBK}, 0")
        e(f"s_add_u32 s{sMBK}, s{sMBK}, 3500")
        lab("L_amp")
        e("s_sleep 4")
        e(f"s_memrealtime s[{sLO}:{sLO+1}]")
        e("s_waitcnt lgkmcnt(0)")
        e(f"s_sub_u32 s{sT0}, s{sLO}, s{sMA}")
        e(f"s_cmp_lt_u32 s{sT0}, s{sMBK}")
        e("s_cbranch_scc1 L_amp")
        e("s_endpgm")
    e(f"s_mul_i32 s{sT0}, s{sT0}, {a.skew}")
    e(f"s_ashr_i32 s{sT0}, s{sT0}, 9")
    e(f"s_add_u32 s{sBO}, s{sBO}, s{sT0}")
e(f"s_mov_b32 s{sNEED}, {a.cstart}")
lab("L_g_next")
e(f"s_sub_u32 s{sT0}, s{sTN}, s{sNEED}")
e(f"s_cmp_lt_i32 s{sT0}, {a.cstop}")
e("s_cbranch_scc1 L_fin")
lab("L_g_w")
e(f"ds_read_b32 v{vPL}, v{vPA}")
e("s_waitcnt lgkmcnt(0)")
e(f"v_readfirstlane_b32 s{sLND}, v{vPL}")
e(f"s_cmp_ge_i32 s{sLND}, s{sNEED}")
e("s_cbranch_scc1 L_g_a")
spin_tail("L_g_w", 1)
lab("L_g_a")
if "prog2" in DBG:
    e(f"s_memrealtime s[{sST+2}:{sST+3}]")
    e(f"s_lshr_b32 m0, s{sLND}, 1")
    e("s_waitcnt lgkmcnt(0)")
    e(f"v_writelane_b32 v50, s{sST+2}, m0")
e(f"s_sub_u32 s{sNK}, s{sTN}, s{sLND}")
e(f"s_or_b32 s{sT0}, s{sNK}, s{sFB}")
e(f"v_mov_b32 v{vT2}, s{sT0}")
e("s_mov_b64 exec, 1")
e(f"global_store_dword v{vG}, v{vT2}, s[{sDBG}:{sDBG+1}] offset:128")
e("s_mov_b64 exec, -1")
e(f"global_load_dword v{vT0}, v{vFV}, s[{sDBG}:{sDBG+1}] offset:128 sc1")
e(f"s_add_u32 s{sNEED}, s{sLND}, {a.cstep}")
e(f"s_min_i32 s{sT3}, s{sBO}, 1")
e(f"s_max_i32 s{sT3}, s{sT3}, -1")
e(f"s_sub_u32 s{sBO}, s{sBO}, s{sT3}")
e("s_waitcnt vmcnt(0)")
e(f"ds_write_b32 v{vT1}, v{vT0}")
e(f"v_and_b32 v{vT0}, 0xffff, v{vT0}")
e(f"v_cmp_ne_u32 vcc, 0, v{vT0}")
for sh in (1, 2, 4, 8):
    e("s_nop 1")
    e(f"v_add_u32_dpp v{vT0}, v{vT0}, v{vT0} row_shr:{sh} row_mask:0xf bank_mask:0xf bound_ctrl:0")
e("s_nop 1")
e(f"v_add_u32_dpp v{vT0}, v{vT0}, v{vT0} row_bcast:15 row_mask:0xa bank_mask:0xf")
e(f"s_bcnt1_i32_b32 s{sT1}, vcc_lo")
e(f"v_readlane_b32 s{sT0}, v{vT0}, 31")
e(f"s_mul_i32 s{sT2}, s{sNK}, s{sT1}")
e(f"s_sub_u32 s{sT2}, s{sT2}, s{sT0}")
e(f"s_lshl_b32 s{sT2}, s{sT2}, 2")
for th, inc, cmp in ((CTH[0], -1, "lt"), (CTH[1], 1, "gt"), (CTH[2], 1, "gt")):
    e(f"s_mul_i32 s{sT0}, s{sT1}, {th - a.cbias}")
    e(f"s_cmp_{cmp}_i32 s{sT2}, s{sT0}")
    e(f"s_cselect_b32 s{sT0}, {inc}, 0")
    e(f"s_add_u32 s{sT3}, s{sT3}, s{sT0}")
e(f"s_max_i32 s{sT3}, s{sT3}, -1")
e(f"s_min_i32 s{sT3}, s{sT3}, 2")
e(f"v_mov_b32 v{vT2}, s{sT3}")
e(f"ds_write_b32 v{vFW}, v{vT2}")
e("s_branch L_g_next")

lab("L_fin")
if "prog2" in DBG or "prog3" in DBG:
    e(f"s_cmp_lg_u32 s{sW}, {5 if 'prog2' in DBG else 0}")
    e("s_cbranch_scc1 L_np2")
    e(f"s_lshl_b32 s{sT0}, s2, 8")
    e(f"s_add_u32 s{sT0}, s{sT0}, 0x400000")
    e(f"v_lshl_add_u32 v51, v{vLANE}, 2, s{sT0}")
    e(f"global_store_dword v51, v50, s[{sWS}:{sWS+1}]")
    lab("L_np2")
if a.stamps:
    e(f"s_cmp_gt_u32 s{sW}, 2")
    e("s_cbranch_scc1 L_end")
    e("s_mov_b64 exec, -1")
    e("s_waitcnt vmcnt(0) lgkmcnt(0)")
    stamp(3)
    e(f"s_getreg_b32 s{sT0}, hwreg(HW_REG_XCC_ID)")
    e("s_waitcnt lgkmcnt(0)")
    for i in range(8):
        e(f"v_mov_b32 v{64+i}, s{sST+i}")
    e(f"v_mov_b32 v72, s{sT0}")
    e(f"s_sub_u32 s{sT1}, {SPIN}, s{sSPIN}")
    e(f"v_mov_b32 v73, s{sT1}")
    e(f"v_mov_b32 v74, s{sT}")
    e(f"v_mov_b32 v75, 0")
    e(f"s_mul_i32 s{sT0}, s2, {NW}")
    e(f"s_add_u32 s{sT0}, s{sT0}, s{sW}")
    e(f"s_lshl_b32 s{sT0}, s{sT0}, 6")
    e(f"v_mov_b32 v80, s{sT0}")
    e("s_mov_b64 exec, 1")
    e(f"global_store_dwordx4 v80, v[64:67], s[{sWS}:{sWS+1}]")
    e(f"global_store_dwordx4 v80, v[68:71], s[{sWS}:{sWS+1}] offset:16")
    e(f"global_store_dwordx4 v80, v[72:75], s[{sWS}:{sWS+1}] offset:32")
lab("L_end")
e("s_endpgm")
out.append('.section .rodata,"a"')
out.append(".p2align 6")
out.append(f".amdhsa_kernel {NAME}_kernel")
out.append(f"  .amdhsa_next_free_vgpr {NV}")
out.append("  .amdhsa_next_free_sgpr 102")
out.append(f"  .amdhsa_accum_offset {NV}")
out.append("  .amdhsa_group_segment_fixed_size 0")
out.append("  .amdhsa_kernarg_size 64")
out.append("  .amdhsa_user_sgpr_count 2")
out.append("  .amdhsa_user_sgpr_kernarg_segment_ptr 1")
out.append("  .amdhsa_system_sgpr_workgroup_id_x 1")
out.append("  .amdhsa_float_denorm_mode_32 3")
out.append(".end_amdhsa_kernel")
open(a.o, "w").write("\n".join(out) + "\n")
```

```python
import sys, argparse
NAME = "standalone__paged_block_table_kv_pagedattention__sampling"
HEADER = open("cdna_kernels/" + NAME + ".s.ref").read().split("; Override")[0]

ap = argparse.ArgumentParser()
ap.add_argument("-o", default="/dev/stdout")
ap.add_argument("--map", default="plain")
ap.add_argument("--hrot", type=int, default=0)
ap.add_argument("--D", type=int, default=21)
ap.add_argument("--D0", type=int, default=26)
ap.add_argument("--NS", type=int, default=6)
ap.add_argument("--G", type=int, default=50)
ap.add_argument("--fnum", type=int, default=36)
ap.add_argument("--pollnum", type=int, default=53)
ap.add_argument("--psleep", type=int, default=12)
ap.add_argument("--UB", type=int, default=8)
ap.add_argument("--mfirst", type=int, default=1)
ap.add_argument("--cth", default="-2,2,5")
ap.add_argument("--cbias", type=int, default=7)
ap.add_argument("--cstart", type=int, default=8)
ap.add_argument("--cstop", type=int, default=4)
ap.add_argument("--cstep", type=int, default=3)
ap.add_argument("--xt", default="7,-8,7,-14,9,-2,8,-7")
ap.add_argument("--NUM", type=int, default=4)
ap.add_argument("--last", type=int, default=1)
ap.add_argument("--hold", default="")
ap.add_argument("--ost", default="")
ap.add_argument("--wb", type=int, default=0)
ap.add_argument("--skew", type=int, default=0)
ap.add_argument("--dv", default="-1,1,3")
ap.add_argument("--fpf", type=int, default=6)
ap.add_argument("--fld", default="sc1")
ap.add_argument("--opf", type=int, default=0)
ap.add_argument("--otouch", type=int, default=0)
ap.add_argument("--ospread", type=int, default=1)
ap.add_argument("--ofl", default="")
ap.add_argument("--DM", type=int, default=0)
ap.add_argument("--NE", type=int, default=3)
ap.add_argument("--amp", default="")
ap.add_argument("--nosort", action="store_true")
ap.add_argument("--nopair", action="store_true")
ap.add_argument("--limf", default="0x43800000")
ap.add_argument("--dbg", default="")
ap.add_argument("--stamps", action="store_true")
a = ap.parse_args()
NT = " nt"
OST = "" if not a.ost else " " + a.ost.replace("+", " ")
DBG = set(a.dbg.split(","))
D, D0, NS, G = a.D, a.D0, a.NS, a.G
assert 24 <= D0 <= 32 and (D - 2) // 8 == (D + 1) // 8 == 2 and 32 <= G < 64
CTH = [int(x) for x in a.cth.split(",")]
XT = [int(x) for x in a.xt.split(",")]
DV = [int(x) for x in a.dv.split(",")]
assert 17 <= D + DV[0] and D + DV[2] <= 24
DIVM = {5: (205, 10), 6: (43, 8), 7: (147, 10), 8: (1, 3), 10: (205, 11), 12: (171, 11)}[NS]
assert all((u * DIVM[0]) >> DIVM[1] == u // NS for u in range(129))
NW = 6
KBYTES = 4100 * 32768
SPIN = 1 << 22
NUM = a.NUM

RING = NS * 8192
PST = RING
MB = PST + G * 2048
MBS = 4224
CTRL = MB + 2 * MBS
FREE = CTRL + 512
REC0 = FREE + 128
DEPW = REC0 + 16
SL = FREE + 256
CNT = SL + 768
LA = CNT + 512
LB = LA + 512
KEYS = LB + 512
LDS = KEYS + 256
assert LDS <= 163840, LDS
WS0 = 0x100000 if a.stamps else 0
WSA = WS0 + 0x40000

out = []
def e(s): out.append("    " + s)
def lab(s): out.append(s + ":")
def c(s): out.append("    ; " + s)

sQ, sK, sV, sBT, sCL, sOUT, sDBG, sWS = 4, 6, 8, 10, 12, 14, 16, 18
sRD = 20
sB, sH, sW, sCLV = 28, 29, 30, 31
sT0, sT1, sT2, sT3 = 32, 33, 34, 35
sPC = 36
sSPIN = 38
sNB, sNTL, sNU, sT = 39, 40, 41, 42
sST = 64
sE = 72
sB0, sB1, sFL, sPM, sSLOT, sU, sTA0 = 46, 47, 48, 49, 52, 56, 57
sM = 46
sCI, sLND, sMBF, sNEED, sMRG, sMT, sROLE, sQO, sPLN, sSB = 48, 49, 50, 51, 52, 56, 57, 58, 59, 60
sV0 = 61
sCST = 62
sTN, sNK, sFWN, sFB, sPRE, sREDO, sLIMF, sPO = 96, 97, 98, 99, 100, 101, 53, 43
sMALL, sRS = 24, 26
sOFF, sTB0, sTB1, sTTC, sFIRST = 20, 21, 22, 23, 44
sZQ = 54
sRK, sPB, sNP, sX, sTA, sTB, sF, sWB = 80, 81, 82, 83, 84, 85, 86, 87
sMA, sMBK = 88, 90
sLO, sHI, sLBASE = 92, 93, 94
sBO = 56
vLANE = 1
vT0, vT1, vT2, vT3, vT4, vT5 = 2, 3, 4, 5, 6, 7
vL = 8
vKOFF, vVOFF = 10, 14
vCA, vCNT, vFA, vR = 18, 19, 20, 21
vF = 22
vCUR = 24
vTR = 28
vTRK, vTRV = 36, 52
vEN = 44
vDP, vDA, vOOB, vSA = 46, 47, 48, 49
vKA0, vVA0, vXA = 8, 12, 16
vPA0, vPW = 20, 21
vM, vLS, vMN, vAL, vPA, vFW = 24, 25, 26, 27, 28, 29
vPL = 30
vQ = 32
vS = 48
vP = 56
vG, vPF, vFV, vN = 60, 61, 62, 63
vKF = 64
vVF = 96
vO = 128
vE = 160
vPN = 160
NV = 168

def stamp(i):
    if a.amp and (i == 0 or (i == 1 and a.amp == "t0")): e(f"s_memrealtime s[{sST+2*i}:{sST+2*i+1}]")
    if a.hold and i == 0: e(f"{'s_memrealtime' if a.hold[:2] == 'rt' else 's_memtime'} s[{sST}:{sST+1}]")
    if a.stamps: e(f"s_memrealtime s[{sST+2*i}:{sST+2*i+1}]")
def clamp_cl(zq=None):
    c("context length: <=0 -> every key masked => uniform weights over 2048 keys (zero Q); >2048 -> 2048")
    e(f"s_cmp_lt_i32 s{sCLV}, 1")
    if zq is not None: e(f"s_cselect_b32 s{zq}, 1, 0")
    e(f"s_cselect_b32 s{sCLV}, 2048, s{sCLV}")
    e(f"s_min_i32 s{sCLV}, s{sCLV}, 2048")
def derive_nb():
    e(f"s_add_u32 s{sNTL}, s{sNB}, 1")
    e(f"s_lshr_b32 s{sNTL}, s{sNTL}, 1")
    e(f"s_sub_u32 s{sNU}, s{sNTL}, 1")
    e(f"s_min_u32 s{sNU}, s{sNU}, {NUM}")
def derive_cl():
    e(f"s_add_u32 s{sNB}, s{sCLV}, 15")
    e(f"s_lshr_b32 s{sNB}, s{sNB}, 4")
    derive_nb()
def spin_tail(label, sleep=1):
    e(f"s_sleep {sleep}")
    e(f"s_sub_u32 s{sSPIN}, s{sSPIN}, 1")
    e(f"s_cbranch_scc0 {label}")
    e("s_endpgm")
FIN = "s_branch L_fin" if (a.stamps or a.amp) else "s_endpgm"

out.append(HEADER.rstrip())
out.append(f"; @launch grid=(256,1,1) block=({64*NW},1,1) lds={LDS}")
out.append('.amdgcn_target "amdgcn-amd-amdhsa--gfx950"')
out.append(".text")
out.append(f".globl {NAME}_kernel")
out.append(".p2align 8")
out.append(f".type {NAME}_kernel,@function")
lab(f"{NAME}_kernel")
e("s_load_dwordx16 s[4:19], s[0:1], 0")
e(f"s_lshr_b32 s{sB}, s2, 3")
e(f"s_cmp_ge_u32 s{sB}, 32")
e("s_cbranch_scc1 L_end")
stamp(0)
e(f"v_lshrrev_b32 v{vT0}, 6, v0")
e(f"v_and_b32 v{vLANE}, 63, v0")
e(f"v_readfirstlane_b32 s{sW}, v{vT0}")
c("waves 1 and 3 pull this kernel's code into L2")
e(f"s_getpc_b64 s[{sPC}:{sPC+1}]")
lab("L_pc")
e(f"v_bfe_u32 v{vT2}, v0, 7, 1")
e(f"v_lshl_add_u32 v{vT2}, v{vT2}, 6, v{vLANE}")
e(f"v_lshlrev_b32 v{vT2}, 7, v{vT2}")
e(f"v_min_u32 v{vT2}, L_end - L_pc, v{vT2}")
e(f"s_bitcmp1_b32 10, s{sW}")
e("s_cbranch_scc0 L_nopf")
e(f"global_load_dword v{vPF}, v{vT2}, s[{sPC}:{sPC+1}]")
lab("L_nopf")
c("clear the control words and the sort counters")
e(f"v_mov_b64 v[{vT2}:{vT3}], 0")
e(f"v_lshlrev_b32 v{vT4}, 3, v0")
e(f"v_add_u32 v{vT4}, {CTRL}, v{vT4}")
e(f"ds_write_b64 v{vT4}, v[{vT2}:{vT3}]")
if a.map == "rot":
    e(f"s_add_u32 s{sH}, s2, s{sB}")
    e(f"s_and_b32 s{sH}, s{sH}, 7")
elif a.hrot:
    e(f"s_add_u32 s{sH}, s2, {a.hrot}")
    e(f"s_and_b32 s{sH}, s{sH}, 7")
else:
    e(f"s_and_b32 s{sH}, s2, 7")
e(f"s_lshl3_add_u32 s{sT2}, s{sB}, s{sH}")
e(f"s_lshl_b32 s{sT2}, s{sT2}, 13")
e(f"v_lshl_add_u32 v{vT5}, v{vLANE}, 7, s{sT2}")
e(f"s_lshl_b32 s{sT0}, s{sB}, 9")
e(f"v_lshl_add_u32 v{vT2}, v{vLANE}, 3, s{sT0}")
e(f"s_lshl_b32 s{sT1}, s{sB}, 2")
e(f"v_and_b32 v{vT0}, 31, v{vLANE}")
e(f"v_lshlrev_b32 v{vT3}, 2, v{vT0}")
e(f"s_mov_b32 s{sSPIN}, {SPIN}")
e(f"s_cmp_lg_u32 s{sW}, 2")
e("s_waitcnt lgkmcnt(0)")
e(f"s_load_dwordx8 s[{sE}:{sE+7}], s[{sBT}:{sBT+1}], s{sT0}")
e(f"s_load_dword s{sCLV}, s[{sCL}:{sCL+1}], s{sT1}")
c("wave 2 touches the 64 lines of this workgroup's queries while memory is still idle")
e("s_cbranch_scc1 L_noq")
e(f"global_load_dword v{vPF}, v{vT5}, s[{sQ}:{sQ+1}]")
lab("L_noq")
if a.opf:
    e(f"s_cmp_lg_u32 s{sW}, 4")
    e("s_cbranch_scc1 L_noo")
    e(f"global_load_dword v{vPF}, v{vT5}, s[{sOUT}:{sOUT+1}]")
    lab("L_noo")
e(f"global_load_dwordx2 v[{vL}:{vL+1}], v{vT2}, s[{sBT}:{sBT+1}]")
e(f"global_load_dword v{vN}, v{vT3}, s[{sCL}:{sCL+1}]")
lab("L_loads_issued")
e(f"s_cmp_lg_u32 s{sW}, 0")
e("s_cbranch_scc1 L_notloader")

e("s_setprio 3")
c("per-lane source offsets of the LDS-DMA pieces (bank swizzle applied on the source side)")
e(f"v_lshrrev_b32 v{vR}, 4, v{vLANE}")
e(f"v_and_b32 v{vT1}, 15, v{vLANE}")
e(f"s_lshl_b32 s{sT0}, s{sH}, 8")
e(f"v_lshl_add_u32 v{vT4}, v{vR}, 11, s{sT0}")
e(f"v_xor_b32 v{vT2}, v{vR}, v{vT1}")
e(f"v_lshl_add_u32 v{vKOFF}, v{vT2}, 4, v{vT4}")
for j in range(1, 4):
    e(f"v_xor_b32 v{vT3}, {64*j}, v{vKOFF}")
    e(f"v_add_u32 v{vKOFF+j}, {7168*j}, v{vT3}")
e(f"s_mov_b32 s{sRD}, s{sK}")
e(f"s_and_b32 s{sRD+1}, s{sK+1}, 0xffff")
e(f"s_mov_b32 s{sRD+2}, {KBYTES}")
e(f"s_mov_b32 s{sRD+3}, 0x20000")
e("s_waitcnt lgkmcnt(0)")
clamp_cl()
c("the first stream tiles are logical tiles 0..3 (those that are not the last one)")
NE = a.NE
for t in range(NE):
    e(f"s_cmp_le_u32 s{sCLV}, {32*(t+1)}")
    e(f"s_cbranch_scc1 {'L_ld_b' if t < 2 else 'L_ld_pre'}")
    if t == 0: stamp(1)
    for j in range(8):
        i = 8 * t + j
        if j % 4 == 0:
            e(f"s_movk_i32 m0, {1024*i}")
            e(f"s_lshl_b32 s{sB0}, s{sE+i//4}, 15")
        if i >= D0: e(f"s_waitcnt vmcnt({D0-1})")
        e(f"buffer_load_dwordx4 v{vKOFF+j%4}, s[{sRD}:{sRD+3}], s{sB0} offen offset:{1024*(j%4)}{NT} lds")
    if t == 1:
        lab("L_ld_b")
        e("s_barrier")
lab("L_ld_pre")
derive_cl()
j0 = (D - 1) % 8
e(f"v_lshlrev_b32 v{vT3}, 2, v{vR}")
e(f"v_xor_b32 v{vT3}, v{vT3}, v{vT1}")
e(f"v_lshl_add_u32 v{vVOFF}, v{vT3}, 4, v{vT4}")
for j in range(1, 4):
    e(f"v_add_u32 v{vVOFF+j}, {7168*j}, v{vVOFF}")
e(f"s_min_u32 s{sT}, s{sNU}, {NE}")
e(f"s_lshl_b32 s{sSLOT}, s{sT}, 13")
e(f"s_mov_b32 s{sU}, s{sT}")
e(f"v_lshlrev_b32 v{vCA}, 3, v{vLANE}")
e(f"v_add_u32 v{vT0}, {SL}, v{vCA}")
e(f"v_add_u32 v{vCA}, {CTRL}, v{vCA}")
e(f"v_mov_b32 v{vFA}, {FREE}")
e(f"v_mov_b64 v[{vF}:{vF+1}], 0")
e(f"v_mov_b32 v{vDP}, {2 if NE == 3 else 0}")
e(f"v_mov_b32 v{vDA}, {DEPW}")
e(f"s_sub_u32 s{sT0}, s{sT}, 3")
e(f"v_mov_b32 v{vCNT}, s{sT0}")
e(f"s_lshl3_add_u32 s{sT0}, s{sT}, {SL}")
e(f"v_mov_b32 v{vSA}, s{sT0}")
c("offsets for the last logical tile: rows past the context are not fetched (their lanes read zeros)")
e(f"s_lshl_b32 s{sT0}, s{sNTL}, 5")
e(f"s_sub_u32 s{sT0}, s{sCLV}, s{sT0}")
e(f"s_add_u32 s{sT0}, s{sT0}, 32")
e(f"v_bfrev_b32 v{vOOB}, 1")
e(f"v_sub_u32 v{vT1}, s{sT0}, v{vR}")
for k in range(8):
    e(f"v_cmp_lt_i32 s[{80+2*k}:{81+2*k}], {4*k}, v{vT1}")
for k in range(8):
    e(f"v_cndmask_b32 v{vTRK+k}, v{vOOB}, v{vKOFF+k%4}, s[{80+2*k}:{81+2*k}]")
    e(f"v_cndmask_b32 v{vTRV+k}, v{vOOB}, v{vVOFF+k%4}, s[{80+2*k}:{81+2*k}]")
def set_pass(off, tr):
    for j in range(0, 4, 2): e(f"v_mov_b64 v[{vCUR+j}:{vCUR+j+1}], v[{off+j}:{off+j+1}]")
    for j in range(0, 8, 2): e(f"v_mov_b64 v[{vTR+j}:{vTR+j+1}], v[{tr+j}:{tr+j+1}]")
set_pass(vKOFF, vTRK)
if "prog3" in DBG: e("v_mov_b32 v50, 0")
e(f"s_mov_b32 s{sPM}, 4")
e(f"s_mov_b32 s{sTA0}, 0")
c("the leading tiles enter the stream list straight from the table row")
e(f"s_bfm_b64 s[{sT2}:{sT2+1}], s{sNU}, 0")
e(f"s_cmp_ge_u32 s{sNU}, {NE}")
e("s_cbranch_scc1 L_ld_row")
e("s_waitcnt vmcnt(0)")
lab("L_ld_row")
e("s_waitcnt vmcnt(24)")
if NE == 4: e(f"ds_write_b32 v{vCA}, v{vCNT}")
e(f"v_lshl_or_b32 v{vEN}, v{vL}, 15, 1")
e(f"v_lshlrev_b32 v{vEN+1}, 15, v{vL+1}")
e(f"s_mov_b64 exec, s[{sT2}:{sT2+1}]")
e(f"ds_write_b64 v{vT0}, v[{vEN}:{vEN+1}]")
e("s_mov_b64 exec, -1")
e(f"ds_read_b64 v[{vEN}:{vEN+1}], v{vSA}")
stamp(2)
def unit_body(depth, trimmed=False):
    for j in range(8):
        if j % 4 == 0: e(f"s_add_u32 m0, s{sSLOT}, {1024*j}")
        e(f"s_waitcnt vmcnt({depth-1})")
        e(f"buffer_load_dwordx4 v{vTR+j if trimmed else vCUR+j%4}, s[{sRD}:{sRD+3}], s{sB0 + j//4} offen offset:{1024*(j%4)}{NT} lds")
        if j == (depth - 1) % 8:
            e(f"v_add_u32 v{vCNT}, 1, v{vCNT}")
            e(f"ds_write_b32 v{vCA}, v{vCNT}")
        if j == 0:
            e(f"s_add_u32 s{sT2}, s{sSLOT}, 8192")
            e(f"s_cmp_eq_u32 s{sT2}, {RING}")
            e(f"s_cselect_b32 s{sT2}, 0, s{sT2}")
            e(f"s_lshr_b32 s{sT0}, s{sT2}, 10")
            e(f"s_add_u32 s{sT0}, s{sT0}, {FREE}")
            e(f"v_mov_b32 v{vFA}, s{sT0}")
        if j == 1:
            e(f"s_add_u32 s{sT}, s{sT}, 1")
            e(f"s_and_b32 s{sT0}, s{sFL}, s{sPM}")
            e(f"s_cselect_b32 s{sT}, s{sTA0}, s{sT}")
            e(f"s_lshl3_add_u32 s{sT0}, s{sT}, {SL}")
            e(f"v_mov_b32 v{vSA}, s{sT0}")
            e(f"s_add_u32 s{sU}, s{sU}, 1")
        if j == a.fpf:
            c("prefetch the next list entry, the FREE words of the next slot and the depth code")
            e(f"ds_read_b64 v[{vEN}:{vEN+1}], v{vSA}")
            e(f"ds_read_b64 v[{vF}:{vF+1}], v{vFA}")
            e(f"ds_read_b32 v{vDP}, v{vDA}")
            e(f"s_mov_b32 s{sSLOT}, s{sT2}")
out.append(".p2align 3")
lab("L_ld")
if "prog3" in DBG:
    e(f"s_memrealtime s[{sST+4}:{sST+5}]")
    e(f"s_min_u32 m0, s{sU}, 63")
e("s_waitcnt lgkmcnt(0)")
if "prog3" in DBG: e(f"v_writelane_b32 v50, s{sST+4}, m0")
e(f"v_min_i32 v{vT0}, v{vF}, v{vF+1}")
e(f"v_readfirstlane_b32 s{sFL}, v{vEN}")
e(f"v_readfirstlane_b32 s{sB1}, v{vEN+1}")
e(f"v_readfirstlane_b32 s{sT0}, v{vT0}")
e(f"v_readfirstlane_b32 s{sT3}, v{vDP}")
e(f"s_sub_u32 s{sT1}, s{sU}, {NS-1}")
e(f"s_cmp_ge_i32 s{sT0}, s{sT1}")
e(f"s_cselect_b32 s{sT0}, s{sFL}, 0")
e(f"s_and_b32 s{sB0}, s{sFL}, -16")
e(f"s_and_b32 s{sT0}, s{sT0}, 3")
e(f"s_cmp_lg_u32 s{sT0}, 1")
e("s_cbranch_scc1 L_ld_odd")
e(f"s_cmp_lg_u32 s{sT3}, 0")
e("s_cbranch_scc1 L_ld_var")
unit_body(D)
lab("L_ld_next")
e(f"s_bitcmp1_b32 s{sFL}, 2")
e("s_cbranch_scc0 L_ld")
c("last tile of the batch: change pass")
e(f"s_xor_b32 s{sPM}, s{sPM}, 4")
e("s_cbranch_scc1 L_ld_tok")
e(f"s_mov_b32 s{sRD}, s{sV}")
e(f"s_and_b32 s{sRD+1}, s{sV+1}, 0xffff")
set_pass(vVOFF, vTRV)
e("s_branch L_ld")
lab("L_ld_tok")
e(f"s_bitcmp1_b32 s{sFL}, 3")
e("s_cbranch_scc0 L_ld_more")
for r in (16, 8, 0):
    e(f"v_add_u32 v{vCNT}, 1, v{vCNT}")
    e(f"s_waitcnt vmcnt({r})")
    e(f"ds_write_b32 v{vCA}, v{vCNT}")
if a.hold:
    lab("L_hold")
    e(f"{'s_memrealtime' if a.hold[:2] == 'rt' else 's_memtime'} s[{sST+2}:{sST+3}]")
    e("s_waitcnt lgkmcnt(0)")
    e(f"s_sub_u32 s{sT0}, s{sST+2}, s{sST}")
    e(f"s_cmp_lt_u32 s{sT0}, {a.hold[3:]}")
    e("s_cbranch_scc1 L_hold")
e(FIN)
lab("L_ld_more")
e(f"s_mov_b32 s{sTA0}, s{sT}")
e(f"s_mov_b32 s{sRD}, s{sK}")
e(f"s_and_b32 s{sRD+1}, s{sK+1}, 0xffff")
set_pass(vKOFF, vTRK)
e("s_branch L_ld")
lab("L_ld_odd")
e(f"s_cmp_eq_u32 s{sT0}, 3")
e("s_cbranch_scc1 L_ld_m")
c("slot not free yet or entry not written yet")
e(f"ds_read_b64 v[{vEN}:{vEN+1}], v{vSA}")
e(f"ds_read_b64 v[{vF}:{vF+1}], v{vFA}")
e(f"s_sub_u32 s{sSPIN}, s{sSPIN}, 1")
e("s_cbranch_scc0 L_ld")
e("s_endpgm")
lab("L_ld_m")
unit_body(D + a.DM, True)
e("s_branch L_ld_next")
lab("L_ld_var")
e(f"s_cmp_eq_u32 s{sT3}, 1")
e("s_cbranch_scc1 L_ld_v2")
e(f"s_cmp_eq_u32 s{sT3}, 2")
e("s_cbranch_scc1 L_ld_v3")
unit_body(D + DV[0])
e("s_branch L_ld_next")
lab("L_ld_v2")
unit_body(D + DV[1])
e("s_branch L_ld_next")
lab("L_ld_v3")
unit_body(D + DV[2])
e("s_branch L_ld_next")

lab("L_notloader")
e(f"s_cmp_ge_u32 s{sW}, 3")
e("s_cbranch_scc1 L_planner")
e(f"s_sub_u32 s{sCI}, s{sW}, 1")
def rows_off(sb):
    e(f"s_lshl3_add_u32 s{sQO}, s{sb}, s{sH}")
    e(f"s_lshl1_add_u32 s{sQO}, s{sQO}, s{sCI}")
    e(f"s_lshl_b32 s{sQO}, s{sQO}, 12")
    e(f"v_and_b32 v{vT0}, 15, v{vLANE}")
    e(f"v_lshrrev_b32 v{vG}, 4, v{vLANE}")
def load_q(sb):
    rows_off(sb)
    e(f"v_lshl_add_u32 v{vT4}, v{vT0}, 8, s{sQO}")
    e(f"v_lshl_add_u32 v{vT4}, v{vG}, 4, v{vT4}")
    for s in range(4):
        e(f"global_load_dwordx4 v[{vQ+4*s}:{vQ+4*s+3}], v{vT4}, s[{sQ}:{sQ+1}] offset:{64*s}")
load_q(sB)
e("s_barrier")
e(f"s_mov_b32 s{sROLE}, 0")
e(f"s_mov_b32 s{sPLN}, 0")
e(f"s_mov_b32 s{sMRG}, 0")
e("s_waitcnt lgkmcnt(0)")
clamp_cl(zq=sT3)
derive_cl()
c("valid keys of the last logical tile")
e(f"s_lshl_b32 s{sV0}, s{sNTL}, 5")
e(f"s_sub_u32 s{sV0}, s{sCLV}, s{sV0}")
e(f"s_add_u32 s{sV0}, s{sV0}, 32")
e(f"s_bfm_b64 s[{sM}:{sM+1}], s{sNU}, 0")
lab("L_csetup")
e(f"s_mov_b32 s{sMT}, 0")
e(f"s_mov_b32 s{sOFF}, 0")
e(f"s_mov_b32 s{sTB0}, 0")
e(f"s_mov_b32 s{sFIRST}, 1")
e(f"s_mov_b64 s[{sRS}:{sRS+1}], 0")
e("s_waitcnt vmcnt(4)")
e(f"v_and_b32 v{vT0}, 15, v{vLANE}")
e(f"v_xor_b32 v{vT1}, v{vG}, v{vT0}")
e(f"v_lshlrev_b32 v{vT2}, 8, v{vT0}")
e(f"v_lshl_add_u32 v{vKA0}, v{vT1}, 4, v{vT2}")
for s in range(1, 4):
    e(f"v_xor_b32 v{vKA0+s}, {64*s}, v{vKA0}")
e(f"v_bfe_u32 v{vT0}, v{vLANE}, 2, 2")
e(f"v_lshl_add_u32 v{vT1}, v{vG}, 2, v{vT0}")
e(f"v_lshlrev_b32 v{vT1}, 8, v{vT1}")
e(f"v_and_b32 v{vT2}, 3, v{vLANE}")
e(f"v_lshl_add_u32 v{vT1}, v{vT2}, 4, v{vT1}")
e(f"v_lshl_add_u32 v{vVA0}, v{vT0}, 6, v{vT1}")
for j in range(1, 4):
    e(f"v_xor_b32 v{vVA0+j}, {64*j}, v{vVA0}")
e(f"s_lshl_b32 s{sT0}, s{sCI}, 10")
e(f"s_add_u32 s{sT0}, s{sT0}, {PST}")
e(f"v_lshl_add_u32 v{vPA0}, v{vLANE}, 4, s{sT0}")
e(f"s_lshl_b32 s{sT0}, s{sW}, 3")
e(f"s_add_u32 s{sT0}, s{sT0}, {CTRL-8}")
e(f"v_mov_b32 v{vPA}, s{sT0}")
e(f"v_mov_b32 v{vM}, 0xff800000")
e(f"v_mov_b32 v{vLS}, 0")
for r in range(0, 32, 2): e(f"v_mov_b64 v[{vO+r}:{vO+r+1}], 0")
e(f"s_mov_b32 s{sCST}, 0x3e0293ee")
e(f"s_mov_b32 s{sCST+1}, 0x3e0293ee")
e(f"s_mov_b32 s{sLIMF}, {a.limf}")
e(f"s_lshl2_add_u32 s{sFB}, s{sCI}, {FREE}")
e("s_waitcnt vmcnt(0)")
e(f"s_cmp_eq_u32 s{sT3}, 0")
e("s_cbranch_scc1 L_k_first")
for r in range(0, 16, 2): e(f"v_mov_b64 v[{vQ+r}:{vQ+r+1}], 0")

def poll(label):
    lab(label)
    e(f"ds_read_b64 v[{vPL}:{vPL+1}], v{vPA}")
    e(f"s_sub_u32 s{sSPIN}, s{sSPIN}, 1")
    e("s_cbranch_scc1 L_end")
    e("s_waitcnt lgkmcnt(0)")
    e(f"v_readfirstlane_b32 s{sLND}, v{vPL}")
    e(f"s_cmp_ge_i32 s{sLND}, s{sNK}")
    e(f"s_cbranch_scc0 {label}")
VR = []
for j in range(4):
    for ee in range(2):
        for blk in range(2):
            r = vVF + (2 * j + ee) * 4 + 2 * blk
            VR.append(f"ds_read_b64_tr_b16 v[{r}:{r+1}], v{vXA+j} offset:{8*ee + 4096*blk}")
KR, QK = [], []
for blk in range(2):
    for st in range(4):
        r = vKF + (blk * 4 + st) * 4
        KR.append(f"ds_read_b128 v[{r}:{r+3}], v{vXA+st} offset:{4096*blk}")
        cc = "0" if st == 0 else f"v[{vS+4*blk}:{vS+4*blk+3}]"
        QK.append(f"v_mfma_f32_16x16x32_bf16 v[{vS+4*blk}:{vS+4*blk+3}], v[{r}:{r+3}], v[{vQ+4*st}:{vQ+4*st+3}], {cc}")
PV = [f"v_mfma_f32_16x16x32_bf16 v[{vO+4*dt}:{vO+4*dt+3}], v[{vVF+4*dt}:{vVF+4*dt+3}], v[{vP}:{vP+3}], v[{vO+4*dt}:{vO+4*dt+3}]" for dt in range(8)]
NX = [f"s_ff1_i32_b64 s{sTN}, s[{sM}:{sM+1}]",
      f"s_bitset0_b64 s[{sM}:{sM+1}], s{sTN}",
      f"s_add_u32 s{sT1}, s{sTN}, s{sOFF}",
      f"s_mul_i32 s{sT0}, s{sT1}, {DIVM[0]}",
      f"s_lshr_b32 s{sT0}, s{sT0}, {DIVM[1]}",
      f"s_mul_i32 s{sT0}, s{sT0}, {NS}",
      f"s_sub_u32 s{sT0}, s{sT1}, s{sT0}",
      f"s_lshl_b32 s{sSB}, s{sT0}, 13",
      f"s_lshl3_add_u32 s{sFWN}, s{sT0}, s{sFB}",
      f"s_and_b32 s{sT0}, s{sTN}, 0x40000000",
      f"s_add_u32 s{sNK}, s{sT1}, 1",
      f"s_or_b32 s{sNK}, s{sNK}, s{sT0}",
      f"s_sub_u32 s{sPO}, s{sTN}, s{sTB0}",
      f"s_lshl_b32 s{sPO}, s{sPO}, 11"]
KA = [f"v_add_u32 v{vXA+i}, s{sSB}, v{vKA0+i}" for i in range(4)]
VA = [f"v_add_u32 v{vXA+i}, s{sSB}, v{vVA0+i}" for i in range(4)]
ADV = [f"v_mov_b32 v{vFW}, s{sFWN}",
       f"v_mov_b32 v{vFV}, s{sNK}",
       f"v_add_u32 v{vPW}, s{sPO}, v{vPA0}",
       f"s_add_u32 s{sT}, s{sTN}, 1"]
def scale_o(reg):
    for r in range(0, 32, 2):
        sel = "op_sel:[0,1] op_sel_hi:[1,1]" if reg & 1 else "op_sel_hi:[1,0]"
        p = reg & ~1
        e(f"v_pk_mul_f32 v[{vO+r}:{vO+r+1}], v[{vO+r}:{vO+r+1}], v[{p}:{p+1}] {sel}")

lab("L_k_first")
for x in NX + KA + ADV: e(x)
lab("L_k_next")
e(f"s_cmp_lt_i32 s{sTN}, 0")
e("s_cbranch_scc1 L_k_empty")
poll("L_k_poll")
for x in KR: e(x)
e("s_waitcnt lgkmcnt(0)")
out.append(".p2align 3")
lab("L_k_top")
e("s_waitcnt lgkmcnt(1)")
e(f"ds_write_b32 v{vFW}, v{vFV}")
e(f"ds_read_b64 v[{vPL}:{vPL+1}], v{vPA}")
fill = NX + KA
for i in range(8):
    e(QK[i])
    for x in fill[2*i:2*i+2]: e(x)
for x in fill[16:]: e(x)
e(f"s_mov_b32 s{sREDO}, 0")
e("s_waitcnt lgkmcnt(0)")
e(f"v_readfirstlane_b32 s{sLND}, v{vPL}")
e(f"s_cmp_ge_i32 s{sLND}, s{sNK}")
e(f"s_cselect_b32 s{sPRE}, 1, 0")
e("s_cbranch_scc0 L_k_nopre")
for x in KR: e(x)
lab("L_k_nopre")
e(f"s_cmp_eq_u32 s{sT}, s{sMT}")
e("s_cbranch_scc1 L_k_mask")
lab("L_k_exp")
for hb in range(2):
    for r in (4*hb, 4*hb+2):
        e(f"v_pk_fma_f32 v[{vE+r}:{vE+r+1}], v[{vS+r}:{vS+r+1}], s[{sCST}:{sCST+1}], v[{vM}:{vM+1}] op_sel_hi:[1,1,0] neg_lo:[0,0,1] neg_hi:[0,0,1]")
    for r in range(4*hb, 4*hb+4):
        e(f"v_exp_f32 v{vE+r}, v{vE+r}")
e(f"v_pk_add_f32 v[{vT0}:{vT1}], v[{vE}:{vE+1}], v[{vE+2}:{vE+3}]")
e(f"v_pk_add_f32 v[{vT2}:{vT3}], v[{vE+4}:{vE+5}], v[{vE+6}:{vE+7}]")
e(f"v_cvt_pk_bf16_f32 v{vP}, v{vE}, v{vE+1}")
e(f"v_pk_add_f32 v[{vT0}:{vT1}], v[{vT0}:{vT1}], v[{vT2}:{vT3}]")
e(f"v_cvt_pk_bf16_f32 v{vP+1}, v{vE+2}, v{vE+3}")
e(f"v_add_f32 v{vT0}, v{vT0}, v{vT1}")
c("the kept reference max is safe only while every weight stays <= 256; otherwise take the true max")
e(f"v_cmp_nge_f32 vcc, s{sLIMF}, v{vT0}")
e(f"v_cvt_pk_bf16_f32 v{vP+2}, v{vE+4}, v{vE+5}")
e(f"v_cvt_pk_bf16_f32 v{vP+3}, v{vE+6}, v{vE+7}")
e(ADV[0]); e(ADV[1])
e("s_nop 0")
e("s_cbranch_vccnz L_k_slow")
lab("L_k_done")
e(f"ds_write_b128 v{vPW}, v[{vP}:{vP+3}]")
e(f"v_add_f32 v{vLS}, v{vLS}, v{vT0}")
e(ADV[3])
e(f"s_cmp_lg_u32 s{sPRE}, 0")
e(ADV[2])
e("s_cbranch_scc1 L_k_top")
e("s_branch L_k_next")

lab("L_k_mask")
e(f"v_lshlrev_b32 v{vT0}, 2, v{vG}")
e(f"v_sub_u32 v{vT0}, s{sV0}, v{vT0}")
e(f"v_mov_b32 v{vT1}, 0xff800000")
for r in range(8):
    e(f"v_cmp_lt_i32 s[{80+2*r}:{81+2*r}], {16*(r//4)+r%4}, v{vT0}")
for r in range(8):
    e(f"v_cndmask_b32 v{vS+r}, v{vT1}, v{vS+r}, s[{80+2*r}:{81+2*r}]")
e("s_branch L_k_exp")

def alpha_addr():
    e(f"s_lshl_b32 s{sT0}, s2, 6")
    e(f"s_add_u32 s{sT0}, s{sT0}, s{sT}")
    e(f"s_lshl1_add_u32 s{sT0}, s{sT0}, s{sCI}")
    e(f"s_lshl_b32 s{sT0}, s{sT0}, 6")
    e(f"s_add_u32 s{sT0}, s{sT0}, {WSA}")
    e(f"v_and_b32 v{vT1}, 15, v{vLANE}")
    e(f"v_lshl_add_u32 v{vT1}, v{vT1}, 2, s{sT0}")
c("raise the reference to the true running max; the accumulator is rescaled when pass 2 reaches this tile")
lab("L_k_slow")
e(f"s_cmp_lg_u32 s{sREDO}, 0")
e("s_cbranch_scc1 L_k_done")
e(f"s_mov_b32 s{sREDO}, 1")
e(f"v_max3_f32 v{vT0}, v{vS}, v{vS+1}, v{vS+2}")
e(f"v_max3_f32 v{vT1}, v{vS+3}, v{vS+4}, v{vS+5}")
e(f"v_max3_f32 v{vT0}, v{vT0}, v{vS+6}, v{vS+7}")
e(f"v_max_f32 v{vT0}, v{vT0}, v{vT1}")
e(f"v_mov_b32 v{vT1}, v{vT0}")
e("s_nop 1")
e(f"v_permlane32_swap_b32 v{vT0}, v{vT1}")
e("s_nop 0")
e(f"v_max_f32 v{vT0}, v{vT0}, v{vT1}")
e(f"v_mov_b32 v{vT1}, v{vT0}")
e("s_nop 1")
e(f"v_permlane16_swap_b32 v{vT0}, v{vT1}")
e("s_nop 0")
e(f"v_max_f32 v{vT0}, v{vT0}, v{vT1}")
e(f"v_mul_f32 v{vT0}, s{sCST}, v{vT0}")
e(f"v_max_f32 v{vMN}, v{vM}, v{vT0}")
e(f"v_sub_f32 v{vAL}, v{vM}, v{vMN}")
e(f"v_exp_f32 v{vAL}, v{vAL}")
e(f"v_mov_b32 v{vM}, v{vMN}")
e(f"s_cmp_lg_u32 s{sFIRST}, 0")
e(f"s_mov_b32 s{sFIRST}, 0")
e(f"v_mul_f32 v{vLS}, v{vLS}, v{vAL}")
e("s_cbranch_scc1 L_k_exp")
alpha_addr()
e(f"global_store_dword v{vT1}, v{vAL}, s[{sWS}:{sWS+1}]")
e(f"s_sub_u32 s{sT0}, s{sT}, 1")
e(f"s_bitset1_b64 s[{sRS}:{sRS+1}], s{sT0}")
e("s_branch L_k_exp")

RLO, RHI = 0xffffffff, (1 << (G - 32)) - 1
lab("L_k_noplan")
e(f"s_mov_b32 s{sPLN}, 1")
e(f"v_mov_b32 v{vT1}, {REC0}")
lab("L_k_plan")
e(f"ds_read_b128 v[{vT2}:{vT5}], v{vT1}")
e("s_waitcnt lgkmcnt(0)")
e(f"v_readfirstlane_b32 s{sT0}, v{vT5}")
e(f"v_readfirstlane_b32 s{sM}, v{vT2}")
e(f"v_readfirstlane_b32 s{sM+1}, v{vT3}")
e(f"v_readfirstlane_b32 s{sTTC}, v{vT4}")
e(f"s_cmp_lg_u32 s{sT0}, 0")
e("s_cbranch_scc1 L_k_got")
spin_tail("L_k_plan")
lab("L_k_got")
e(f"s_lshr_b32 s{sMT}, s{sT0}, 8")
e(f"s_add_u32 s{sMT}, s{sMT}, 1")
e(f"s_and_b32 s{sMRG}, s{sTTC}, {0 if 'nomerge' in DBG else 1}")
e(f"s_lshr_b32 s{sTTC}, s{sTTC}, 8")
e(f"s_min_u32 s{sTB1}, s{sTTC}, {G}")
e(f"s_bfm_b64 s[{sMALL}:{sMALL+1}], s{sNU}, 0")
e(f"s_or_b64 s[{sMALL}:{sMALL+1}], s[{sMALL}:{sMALL+1}], s[{sM}:{sM+1}]")
e(f"s_and_b32 s{sM+1}, s{sM+1}, {RHI:#x}")
e("s_branch L_k_first")
lab("L_v_more")
c("second batch")
e(f"s_mov_b32 s{sTB0}, s{sTB1}")
e(f"s_mov_b32 s{sTB1}, s{sTTC}")
e(f"s_mov_b32 s{sOFF}, s{sTB0}")
e(f"s_mov_b32 s{sMALL}, 0")
e(f"s_andn2_b32 s{sMALL+1}, s{sMALL+1}, {RHI:#x}")
e(f"s_mov_b64 s[{sM}:{sM+1}], s[{sMALL}:{sMALL+1}]")
e("s_branch L_k_first")
lab("L_k_empty")
e(f"s_cmp_eq_u32 s{sPLN}, 0")
e("s_cbranch_scc1 L_k_noplan")
e(f"s_mov_b32 s{sOFF}, s{sTB1}")
e(f"s_mov_b32 s{sM}, s{sMALL}")
e(f"s_and_b32 s{sM+1}, s{sMALL+1}, {RHI:#x}")
e(f"s_cmp_eq_u32 s{sTB0}, 0")
e(f"s_cselect_b32 s{sM+1}, s{sM+1}, s{sMALL+1}")
for x in NX + VA: e(x)
e(f"ds_read_b64 v[{vPL}:{vPL+1}], v{vPA}")
e(f"s_cmp_lt_i32 s{sTN}, 0")
e("s_cbranch_scc1 L_v_empty")
lab("L_v_next")
for x in ADV: e(x)
if a.last:
    e(f"s_cmp_eq_u64 s[{sM}:{sM+1}], 0")
    e("s_cbranch_scc1 L_v_islast")
lab("L_v_next2")
e(f"ds_read_b128 v[{vPN}:{vPN+3}], v{vPW}")
e("s_waitcnt lgkmcnt(1)")
e(f"v_readfirstlane_b32 s{sLND}, v{vPL}")
e(f"s_cmp_ge_i32 s{sLND}, s{sNK}")
e("s_cbranch_scc1 L_v_rd")
poll("L_v_poll")
lab("L_v_rd")
for x in VR: e(x)
out.append(".p2align 3")
lab("L_v_top")
for x in NX + VA: e(x)
e(f"s_sub_u32 s{sT0}, s{sT}, 1")
e(f"s_bitcmp1_b64 s[{sRS}:{sRS+1}], s{sT0}")
e("s_cbranch_scc1 L_v_resc")
lab("L_v_top2")
e("s_waitcnt lgkmcnt(14)")
e(f"v_readfirstlane_b32 s{sMBF}, v{vPL+1}")
e(f"v_readfirstlane_b32 s{sLND}, v{vPL}")
e(f"v_mov_b64 v[{vP}:{vP+1}], v[{vPN}:{vPN+1}]")
e(f"v_mov_b64 v[{vP+2}:{vP+3}], v[{vPN+2}:{vPN+3}]")
e(f"s_and_b32 s{sT0}, s{sMBF}, s{sMRG}")
e("s_cbranch_scc1 L_v_merge")
lab("L_v_top3")
e(f"s_cmp_ge_i32 s{sLND}, s{sNK}")
e("s_cbranch_scc0 L_v_pv")
e(ADV[2])
e("s_waitcnt lgkmcnt(0)")
e(f"ds_write_b32 v{vFW}, v{vFV}")
e(f"ds_read_b64 v[{vPL}:{vPL+1}], v{vPA}")
e(f"ds_read_b128 v[{vPN}:{vPN+3}], v{vPW}")
for i in range(8):
    e(PV[i]); e(VR[2*i]); e(VR[2*i+1])
e(ADV[0]); e(ADV[1]); e(ADV[3])
e("s_branch L_v_top")
lab("L_v_pv")
for i in range(8):
    if i: e(f"s_waitcnt lgkmcnt({14-2*i})")
    if i == 7:
        e(f"ds_write_b32 v{vFW}, v{vFV}")
        e(f"ds_read_b64 v[{vPL}:{vPL+1}], v{vPA}")
    e(PV[i])
e(f"s_cmp_ge_i32 s{sTN}, 0")
e("s_cbranch_scc1 L_v_next")
lab("L_v_empty")
e(f"s_cmp_lt_u32 s{sTB1}, s{sTTC}")
e("s_cbranch_scc1 L_v_more")
stamp(2)
e(f"s_cmp_lg_u32 s{sMRG}, 0")
e("s_cbranch_scc1 L_c_mwait0")
lab("L_c_store")
e(f"v_mov_b32 v{vT0}, v{vLS}")
e(f"v_and_b32 v{vT2}, 15, v{vLANE}")
e(f"v_lshl_add_u32 v{vT2}, v{vT2}, 8, s{sQO}")
e(f"v_permlane32_swap_b32 v{vLS}, v{vT0}")
e("s_nop 0")
e(f"v_add_f32 v{vLS}, v{vLS}, v{vT0}")
e(f"v_mov_b32 v{vT0}, v{vLS}")
e(f"v_lshl_add_u32 v{vT2}, v{vG}, 4, v{vT2}")
e("s_nop 0")
e(f"v_permlane16_swap_b32 v{vLS}, v{vT0}")
e("s_nop 0")
e(f"v_add_f32 v{vLS}, v{vLS}, v{vT0}")
e(f"v_rcp_f32 v{vMN}, v{vLS}")
e(f"s_cmp_lg_u32 s{sROLE}, 0")
scale_o(vMN)
for r in range(16):
    e(f"v_cvt_pk_bf16_f32 v{vKF+r}, v{vO+2*r}, v{vO+2*r+1}")
e("s_cbranch_scc1 L_publish")
def out_stores(fl, step=64):
    for j in range(4):
        e(f"global_store_dwordx4 v{vT2}, v[{vKF+4*j}:{vKF+4*j+3}], s[{sOUT}:{sOUT+1}] offset:{step*j}{fl}")
out_stores(OST)
e(FIN)

def l_total():
    e(f"v_mov_b32 v{vT0}, v{vLS}")
    e(f"v_and_b32 v{vT2}, 15, v{vLANE}")
    e(f"v_lshl_add_u32 v{vT2}, v{vT2}, 8, s{sQO}")
    e(f"v_permlane32_swap_b32 v{vLS}, v{vT0}")
    e("s_nop 0")
    e(f"v_add_f32 v{vLS}, v{vLS}, v{vT0}")
    e(f"v_mov_b32 v{vT0}, v{vLS}")
    e(f"v_lshl_add_u32 v{vT2}, v{vG}, 4, v{vT2}")
    e("s_nop 0")
    e(f"v_permlane16_swap_b32 v{vLS}, v{vT0}")
    e("s_nop 0")
    e(f"v_add_f32 v{vLS}, v{vLS}, v{vT0}")
    e(f"v_rcp_f32 v{vMN}, v{vLS}")
if a.last:
    lab("L_v_islast")
    c("closing tile of an owner with nothing pending: take the short path")
    e(f"s_sub_u32 s{sT0}, s{sTTC}, s{sTB1}")
    e(f"s_or_b32 s{sT0}, s{sT0}, s{sMRG}")
    e(f"s_or_b32 s{sT0}, s{sT0}, s{sROLE}")
    e(f"s_or_b32 s{sT0}, s{sT0}, s{sRS}")
    e(f"s_or_b32 s{sT0}, s{sT0}, s{sRS+1}")
    e("s_cbranch_scc1 L_v_next2")
    e(f"ds_read_b128 v[{vP}:{vP+3}], v{vPW}")
    e(f"ds_read_b64 v[{vPL}:{vPL+1}], v{vPA}")
    l_total()
    e("s_waitcnt lgkmcnt(0)")
    e(f"v_readfirstlane_b32 s{sLND}, v{vPL}")
    e(f"s_cmp_ge_i32 s{sLND}, s{sNK}")
    e("s_cbranch_scc1 L_v_lrd")
    poll("L_v_lpoll")
    lab("L_v_lrd")
    for x in VR: e(x)
    def fin_j(j):
        r = []
        for k in range(4):
            q = vO + 8 * j + 2 * k
            r.append(f"v_pk_mul_f32 v[{q}:{q+1}], v[{q}:{q+1}], v[{vMN}:{vMN+1}] op_sel_hi:[1,0]")
        for k in range(4):
            r.append(f"v_cvt_pk_bf16_f32 v{vKF+4*j+k}, v{vO+8*j+2*k}, v{vO+8*j+2*k+1}")
        r.append(f"global_store_dwordx4 v{vT2}, v[{vKF+4*j}:{vKF+4*j+3}], s[{sOUT}:{sOUT+1}] offset:{64*j}{OST}")
        return r
    f0 = fin_j(0)
    for i in range(8):
        e(f"s_waitcnt lgkmcnt({14-2*i})")
        e(PV[i])
        if i == 5: e(f0[0]); e(f0[1])
        if i == 6: e(f0[2]); e(f0[3])
    stamp(2)
    for x in f0[4:] + fin_j(1) + fin_j(2) + fin_j(3): e(x)
    e(f"ds_write_b32 v{vFW}, v{vFV}")
    e(FIN)

lab("L_v_resc")
e(f"s_bitset0_b64 s[{sRS}:{sRS+1}], s{sT0}")
alpha_addr()
e("s_waitcnt vmcnt(0)")
e(f"global_load_dword v{vAL}, v{vT1}, s[{sWS}:{sWS+1}] sc1")
e("s_waitcnt vmcnt(0)")
scale_o(vAL)
e("s_branch L_v_top2")

lab("L_v_merge")
c("only once no rescale is pending; the reference max stays, so the partial's max must not be far above it")
e(f"s_cmp_eq_u64 s[{sRS}:{sRS+1}], 0")
e("s_cbranch_scc0 L_v_top3")
lab("L_c_merge")
e(f"s_mul_i32 s{sT0}, s{sCI}, {MBS}")
e(f"s_add_u32 s{sT0}, s{sT0}, {MB}")
e(f"v_and_b32 v{vT1}, 15, v{vLANE}")
e(f"v_lshl_add_u32 v{vT0}, v{vLANE}, 4, s{sT0}")
e(f"v_lshl_add_u32 v{vT1}, v{vT1}, 3, s{sT0}")
e("s_waitcnt lgkmcnt(0)")
e(f"ds_write_b32 v{vFW}, v{vFV}")
e(f"ds_read_b64 v[{vT4}:{vT5}], v{vT1} offset:4096")
for i in range(4):
    e(f"ds_read_b128 v[{vKF+4*i}:{vKF+4*i+3}], v{vT0} offset:{1024*i}")
e(f"s_cmp_eq_u32 s{sPLN}, 2")
e("s_waitcnt lgkmcnt(0)")
e("s_cbranch_scc1 L_c_mfin")
e(f"v_sub_f32 v{vT4}, v{vT4}, v{vM}")
e(f"v_cmp_nge_f32 vcc, 0x41800000, v{vT4}")
e(f"s_mov_b32 s{sMRG}, 2")
e("s_nop 3")
e("s_cbranch_vccnz L_v_top3")
e("s_branch L_c_madd")
lab("L_c_mfin")
e(f"v_max_f32 v{vMN}, v{vM}, v{vT4}")
e(f"v_sub_f32 v{vAL}, v{vM}, v{vMN}")
e(f"v_sub_f32 v{vT4}, v{vT4}, v{vMN}")
e(f"v_exp_f32 v{vAL}, v{vAL}")
e("s_nop 0")
e(f"v_mul_f32 v{vLS}, v{vLS}, v{vAL}")
scale_o(vAL)
lab("L_c_madd")
e(f"v_exp_f32 v{vT4}, v{vT4}")
e(f"s_mov_b32 s{sMRG}, 0")
e(f"v_mul_f32 v{vT4}, v{vT4}, v{vT5}")
e(f"v_fmac_f32 v{vLS}, 0x3e800000, v{vT4}")
for r in range(16):
    t = vKF + 16 + 2 * (r % 4)
    e(f"v_lshlrev_b32 v{t}, 16, v{vKF+r}")
    e(f"v_and_b32 v{t+1}, 0xffff0000, v{vKF+r}")
    e(f"v_pk_fma_f32 v[{vO+2*r}:{vO+2*r+1}], v[{t}:{t+1}], v[{vT4}:{vT4+1}], v[{vO+2*r}:{vO+2*r+1}] op_sel_hi:[1,0,1]")
e(f"s_cmp_eq_u32 s{sPLN}, 2")
e("s_cbranch_scc0 L_v_top3")
e("s_branch L_c_store")
lab("L_c_mwait0")
e(f"s_mov_b32 s{sPLN}, 2")
lab("L_c_mwait")
e(f"ds_read_b64 v[{vPL}:{vPL+1}], v{vPA}")
e("s_waitcnt lgkmcnt(0)")
e(f"v_readfirstlane_b32 s{sMBF}, v{vPL+1}")
e(f"s_cmp_lg_u32 s{sMBF}, 0")
e("s_cbranch_scc1 L_c_merge")
spin_tail("L_c_mwait")

def ws_base(sb):
    e(f"s_lshl3_add_u32 s{sT0}, s{sb}, s{sH}")
    e(f"s_lshl_b32 s{sT0}, s{sT0}, 9")
    if WS0: e(f"s_add_u32 s{sT0}, s{sT0}, {WS0}")

lab("L_publish")
if "nopub" in DBG: e("s_endpgm")
e(f"v_lshl_add_u32 v{vT2}, v{vLANE}, 4, s{sQO}")
e(f"s_lshl_b32 s{sT2}, s{sPB}, 2")
e(f"v_mov_b32 v{vT3}, s{sT2}")
e(f"v_lshlrev_b32 v{vT4}, 1, v{vT3}")
e(f"v_add_u32 v{vT4}, {CTRL+68}, v{vT4}")
e(f"ds_read_b32 v{vT4}, v{vT4}")
ws_base(sPB)
e(f"s_lshl2_add_u32 s{sT1}, s{sCI}, s{sT0}")
e(f"v_mov_b32 v{vT5}, s{sT1}")
e(f"s_lshl_b32 s{sT1}, s{sCI}, 7")
e(f"s_add_u32 s{sT0}, s{sT0}, s{sT1}")
e(f"v_lshl_add_u32 v{vT1}, v{vLANE}, 3, s{sT0}")
e(f"s_getreg_b32 s{sT2}, hwreg(HW_REG_XCC_ID, 0, 4)")
e(f"s_lshl_b32 s{sT2}, s{sT2}, 4")
e(f"s_or_b32 s{sT2}, s{sT2}, s{sH}")
e(f"s_or_b32 s{sT2}, s{sT2}, 0x100")
e("s_waitcnt lgkmcnt(0)")
e(f"v_readfirstlane_b32 s{sT1}, v{vT4}")
e(f"s_lshr_b32 s{sT1}, s{sT1}, 16")
e(f"s_cmp_eq_u32 s{sT1}, s{sT2}")
e("s_cbranch_scc1 L_pub_fast")
e(f"global_load_dword v{vT4}, v{vT3}, s[{sDBG}:{sDBG+1}] offset:128 sc1")
e("s_waitcnt vmcnt(0)")
e(f"v_readfirstlane_b32 s{sT1}, v{vT4}")
e(f"s_lshr_b32 s{sT1}, s{sT1}, 16")
e(f"s_cmp_eq_u32 s{sT1}, s{sT2}")
e("s_cbranch_scc0 L_pub_slow")
lab("L_pub_fast")
c("the receiver runs on this die and has cleared its flag words: hand over inside the shared L2")
out_stores("", 1024)
e("s_mov_b64 exec, 0xffff")
e(f"global_store_dwordx2 v{vT1}, v[{vM}:{vM+1}], s[{sWS}:{sWS+1}]")
e(f"v_mov_b32 v{vT4}, 1")
e("s_waitcnt vmcnt(0)")
e("s_mov_b64 exec, 1")
e(f"global_store_dword v{vT5}, v{vT4}, s[{sWS}:{sWS+1}] offset:256")
e(FIN)
lab("L_pub_slow")
c("any other placement: write through to memory, then set a bit with a device-wide atomic")
out_stores(" sc1", 1024)
e("s_mov_b64 exec, 0xffff")
e(f"global_store_dwordx2 v{vT1}, v[{vM}:{vM+1}], s[{sWS}:{sWS+1}] sc1")
e(f"s_lshl1_add_u32 s{sT1}, s{sH}, s{sCI}")
e(f"s_lshl_b32 s{sT1}, 1, s{sT1}")
e(f"v_mov_b32 v{vT4}, s{sT1}")
e("s_waitcnt vmcnt(0)")
e("s_mov_b64 exec, 1")
e(f"global_atomic_add v{vT3}, v{vT4}, s[{sDBG}:{sDBG+1}]")
e(FIN)

vRW = vL
vKEY, vRK = 19, 20
lab("L_ctl0")
if a.skew:
    c("dies are not started at the same instant: the first eight workgroups post when they started")
    e(f"s_memrealtime s[{sMA}:{sMA+1}]")
    e(f"s_lshl2_add_u32 s{sT0}, s{sH}, 2")
    e(f"v_mov_b32 v{vT4}, s{sT0}")
    e(f"s_cmp_lg_u32 s{sB}, 0")
    e("s_waitcnt lgkmcnt(0)")
    e("s_cbranch_scc1 L_ctl1")
    e(f"s_or_b32 s{sT0}, s{sMA}, 0x8000")
    e(f"v_mov_b32 v{vT5}, s{sT0}")
    e("s_mov_b64 exec, 1")
    e(f"global_store_short v{vT4}, v{vT5}, s[{sDBG}:{sDBG+1}] sc1")
    e("s_mov_b64 exec, -1")
    lab("L_ctl1")
e("s_barrier")
e("s_branch L_ctl")
lab("L_planner")
e(f"s_cmp_eq_u32 s{sW}, 5")
e("s_cbranch_scc1 L_ctl0")
e(f"s_sub_u32 s{sCI}, s{sW}, 3")
e(f"s_lshl_b32 s{sSB}, s{sCI}, 8")
e(f"s_add_u32 s{sSB}, s{sSB}, {CNT}")
e(f"v_lshl_add_u32 v{vPA}, v{vLANE}, 2, s{sSB}")
e(f"s_lshl_b32 s{sT2}, s{sCI}, 7")
e(f"s_add_u32 s{sT2}, s{sT2}, {KEYS}")
e(f"v_add_u32 v{vT3}, s{sT2}, v{vT3}")
e(f"v_lshrrev_b32 v{vT4}, 5, v{vLANE}")
e(f"v_lshl_add_u32 v{vT4}, v{vT4}, 6, s{sT2}")
e(f"v_mov_b32 v{vT5}, 2048")
e("s_barrier")
e("s_waitcnt vmcnt(0)")
e(f"v_cmp_gt_i32 s[{sZQ}:{sZQ+1}], 1, v{vN}")
e(f"v_min_i32 v{vN}, v{vN}, v{vT5}")
e("s_nop 0")
e(f"v_cndmask_b32 v{vN}, v{vN}, v{vT5}, s[{sZQ}:{sZQ+1}]")
e(f"v_add_u32 v{vN}, 15, v{vN}")
e(f"v_lshrrev_b32 v{vN}, 4, v{vN}")
e(f"v_lshl_or_b32 v{vKEY}, v{vN}, 5, v{vT0}")
e(f"ds_write_b32 v{vT3}, v{vKEY}")
for i in range(4):
    e(f"ds_read_b128 v[{vKF+4*i}:{vKF+4*i+3}], v{vT4} offset:{16*i}")
e(f"v_mov_b32 v{vRK}, 0")
e(f"v_readlane_b32 s{sNB}, v{vN}, s{sB}")
e("s_waitcnt lgkmcnt(0)")
c("rank of every batch by block count; the batch of rank 31-r is the partner")
for i in range(16):
    e(f"v_sub_u32 v{vKF+i}, v{vKF+i}, v{vKEY}")
for i in range(16):
    e(f"v_alignbit_b32 v{vRK}, v{vRK}, v{vKF+i}, 31")
e(f"v_bcnt_u32_b32 v{vRK}, v{vRK}, 0")
e(f"v_mov_b32 v{vT2}, v{vRK}")
derive_nb()
e(f"v_permlane32_swap_b32 v{vRK}, v{vT2}")
e("s_nop 0")
e(f"v_add_u32 v{vRK}, v{vRK}, v{vT2}")
e("s_nop 0")
e(f"v_readlane_b32 s{sRK}, v{vRK}, s{sB}")
e(f"s_sub_u32 s{sT0}, 31, s{sRK}")
e(f"v_cmp_eq_u32 vcc, s{sT0}, v{vRK}")
e(f"s_ff1_i32_b32 s{sPB}, vcc_lo")
e(f"v_readlane_b32 s{sNP}, v{vN}, s{sPB}")
e(f"s_max_u32 s{sT0}, s{sNB}, s{sNP}")
e(f"s_min_u32 s{sT1}, s{sNB}, s{sNP}")
e(f"s_sub_u32 s{sX}, s{sT0}, s{sT1}")
e(f"s_add_u32 s{sX}, s{sX}, 2")
e(f"s_lshr_b32 s{sX}, s{sX}, 2")
e(f"s_cmp_lt_u32 s{sT0}, {4*NUM+8}")
e(f"s_cselect_b32 s{sX}, 0, s{sX}")
if a.nopair: e(f"s_mov_b32 s{sX}, 0")
e(f"s_cmp_ge_u32 s{sRK}, 16")
e(f"s_cselect_b32 s{sLO}, s{sX}, 0")
e(f"s_cselect_b32 s{sTB}, 0, s{sX}")
e(f"s_cmp_eq_u32 s{sCI}, 0")
e("s_cbranch_scc1 L_pl_norow")
e(f"s_lshl_b32 s{sT0}, s{sPB}, 9")
e(f"v_lshl_add_u32 v{vT1}, v{vLANE}, 3, s{sT0}")
e(f"global_load_dwordx2 v[{vRW}:{vRW+1}], v{vT1}, s[{sBT}:{sBT+1}]")
lab("L_pl_norow")
e(f"s_sub_u32 s{sTA}, s{sNTL}, s{sLO}")
e(f"s_add_u32 s{sT}, s{sTA}, s{sTB}")
e(f"s_mul_i32 s{sF}, s{sT}, {a.fnum}")
e(f"s_lshr_b32 s{sF}, s{sF}, 6")
e(f"s_min_u32 s{sWB}, s{sTA}, {a.UB}")
e(f"s_sub_i32 s{sF}, s{sF}, s{sWB}")
e(f"s_max_i32 s{sF}, s{sF}, s{sTB}")
e(f"s_max_i32 s{sF}, s{sF}, 1")
e(f"v_cvt_f32_u32 v{vT2}, s{sF}")
e(f"v_subrev_u32 v{vT3}, s{sWB}, v{vLANE}")
e(f"v_rcp_f32 v{vT2}, v{vT2}")
e(f"v_mul_i32_i24 v{vT4}, s{sTB}, v{vT3}")
e(f"v_add_u32 v{vT5}, s{sTB}, v{vT4}")
e(f"v_cvt_f32_i32 v{vT4}, v{vT4}")
e(f"v_cvt_f32_i32 v{vT5}, v{vT5}")
e(f"v_add_f32 v{vT4}, 0.5, v{vT4}")
e(f"v_add_f32 v{vT5}, 0.5, v{vT5}")
e(f"v_mul_f32 v{vT4}, v{vT4}, v{vT2}")
e(f"v_mul_f32 v{vT5}, v{vT5}, v{vT2}")
e(f"v_floor_f32 v{vT4}, v{vT4}")
e(f"v_floor_f32 v{vT5}, v{vT5}")
e(f"v_cmp_gt_u32 vcc, s{sF}, v{vT3}")
e(f"v_cmp_gt_f32 s[{sMBK}:{sMBK+1}], v{vT5}, v{vT4}")
e(f"s_sub_u32 s{sT0}, s{sT}, s{sNU}")
e(f"v_subrev_u32 v{vT3}, s{sNU}, v{vLANE}")
e(f"v_cmp_gt_u32 s[{sMA}:{sMA+1}], s{sT0}, v{vT3}")
e(f"s_and_b64 s[{sMBK}:{sMBK+1}], s[{sMBK}:{sMBK+1}], vcc")
e(f"s_andn2_b64 s[{sMA}:{sMA+1}], s[{sMA}:{sMA+1}], s[{sMBK}:{sMBK+1}]")
c(f"own tiles to sort: logical [NU+given, ntile); donated: the partner's logical [{NUM}, {NUM}+TB)")
mfirst = a.mfirst and not a.nosort
if mfirst:
    e(f"s_ff1_i32_b64 s{sT2}, s[{sMA}:{sMA+1}]")
else:
    e(f"s_flbit_i32_b64 s{sT2}, s[{sMA}:{sMA+1}]")
    e(f"s_sub_u32 s{sT2}, 63, s{sT2}")
e(f"s_lshl_b32 s{sT2}, s{sT2}, 8")
e(f"s_or_b32 s{sWB}, s{sT2}, 1")
e(f"s_min_u32 s{sMRG}, s{sLO}, 1")
e(f"s_add_u32 s{sLO}, s{sLO}, s{sNU}")
e(f"s_sub_u32 s{sHI}, s{sNTL}, s{sLO}")
e(f"s_sub_u32 s{sT3}, s{sNTL}, 1")
e(f"s_mov_b32 s{sLBASE}, {LA}")
e(f"s_cmp_eq_u32 s{sCI}, 0")
e("s_cbranch_scc1 L_pl_a")
e(f"s_mov_b32 s{sLO}, {NUM}")
e(f"s_mov_b32 s{sHI}, s{sTB}")
e(f"s_mov_b32 s{sT3}, -1")
e(f"s_mov_b32 s{sLBASE}, {LB}")
e(f"s_mov_b64 s[{sMA}:{sMA+1}], s[{sMBK}:{sMBK+1}]")
e("s_branch L_pl_sort")
lab("L_pl_a")
e(f"s_lshl_b32 s{sT0}, s{sT}, 8")
e(f"s_or_b32 s{sT0}, s{sT0}, s{sMRG}")
e(f"v_mov_b32 v{vT2}, s{sMA}")
e(f"v_mov_b32 v{vT3}, s{sMA+1}")
e(f"v_mov_b32 v{vT4}, s{sT0}")
e(f"v_mov_b32 v{vT5}, s{sWB}")
e(f"v_mov_b32 v{vT1}, {REC0}")
e(f"ds_write_b128 v{vT1}, v[{vT2}:{vT5}]")
lab("L_pl_sort")
e(f"v_subrev_u32 v{vT0}, s{sLO}, v{vLANE}")
e(f"v_cmp_gt_u32 vcc, s{sHI}, v{vT0}")
e(f"v_mov_b32 v{vT5}, 1")
e("s_waitcnt vmcnt(0)")
if a.nosort:
    e(f"v_lshlrev_b32 v{vT2}, 1, v{vT0}")
    e(f"v_add_u32 v{vT3}, 1, v{vT2}")
else:
    c("counting sort of the block ids into 64 buckets of ascending physical address")
    e(f"v_lshrrev_b32 v{vT0}, 6, v{vRW}")
    e(f"v_lshrrev_b32 v{vT1}, 6, v{vRW+1}")
    e(f"v_cmp_eq_u32 s[{sRK+2}:{sRK+3}], s{sT3}, v{vLANE}")
    if mfirst:
        e(f"v_med3_u32 v{vT0}, v{vT0}, 1, 63")
        e(f"v_med3_u32 v{vT1}, v{vT1}, 1, 63")
    else:
        e(f"v_min_u32 v{vT0}, 62, v{vT0}")
        e(f"v_min_u32 v{vT1}, 62, v{vT1}")
    fb = 0 if mfirst else 63
    e(f"v_cndmask_b32 v{vT0}, v{vT0}, {fb}, s[{sRK+2}:{sRK+3}]")
    e(f"v_cndmask_b32 v{vT1}, v{vT1}, {fb}, s[{sRK+2}:{sRK+3}]")
    e(f"v_lshlrev_b32 v{vT0}, 2, v{vT0}")
    e(f"v_lshlrev_b32 v{vT1}, 2, v{vT1}")
    e(f"v_add_u32 v{vKF}, s{sSB}, v{vT0}")
    e(f"v_add_u32 v{vKF+1}, s{sSB}, v{vT1}")
    e("s_mov_b64 exec, vcc")
    e(f"ds_add_rtn_u32 v{vT2}, v{vKF}, v{vT5}")
    e(f"ds_add_rtn_u32 v{vT3}, v{vKF+1}, v{vT5}")
    e("s_mov_b64 exec, -1")
    e(f"ds_read_b32 v{vT4}, v{vPA}")
    e("s_waitcnt lgkmcnt(0)")
    e(f"v_mov_b32 v{vKF+2}, v{vT4}")
    for sh in (1, 2, 4, 8):
        e("s_nop 1")
        e(f"v_add_u32_dpp v{vT4}, v{vT4}, v{vT4} row_shr:{sh} row_mask:0xf bank_mask:0xf bound_ctrl:0")
    e("s_nop 1")
    e(f"v_add_u32_dpp v{vT4}, v{vT4}, v{vT4} row_bcast:15 row_mask:0xa bank_mask:0xf")
    e("s_nop 1")
    e(f"v_add_u32_dpp v{vT4}, v{vT4}, v{vT4} row_bcast:31 row_mask:0xc bank_mask:0xf")
    e(f"v_sub_u32 v{vT4}, v{vT4}, v{vKF+2}")
    e(f"ds_bpermute_b32 v{vT0}, v{vT0}, v{vT4}")
    e(f"ds_bpermute_b32 v{vT1}, v{vT1}, v{vT4}")
    e("s_waitcnt lgkmcnt(0)")
    e(f"v_add_u32 v{vT2}, v{vT2}, v{vT0}")
    e(f"v_add_u32 v{vT3}, v{vT3}, v{vT1}")
e(f"v_lshlrev_b32 v{vRW}, 15, v{vRW}")
e(f"v_lshlrev_b32 v{vRW+1}, 15, v{vRW+1}")
e(f"v_lshl_add_u32 v{vT2}, v{vT2}, 2, s{sLBASE}")
e(f"v_lshl_add_u32 v{vT3}, v{vT3}, 2, s{sLBASE}")
e("s_mov_b64 exec, vcc")
e(f"ds_write_b32 v{vT2}, v{vRW}")
e(f"ds_write_b32 v{vT3}, v{vRW+1}")
e("s_mov_b64 exec, -1")
c("place the sorted tiles at their stream positions; flags: 1 valid, 2 masked, 4 last of batch, 8 last of stream")
e(f"v_mbcnt_lo_u32_b32 v{vT0}, s{sMA}, 0")
e(f"v_mbcnt_hi_u32_b32 v{vT0}, s{sMA+1}, v{vT0}")
e(f"v_lshl_add_u32 v{vT0}, v{vT0}, 3, s{sLBASE}")
e(f"ds_read_b64 v[{vT2}:{vT3}], v{vT0}")
e(f"s_lshr_b32 s{sT0}, s{sWB}, 8")
e(f"s_sub_u32 s{sT1}, s{sT}, 1")
e(f"v_cmp_eq_u32 vcc, s{sT0}, v{vLANE}")
e(f"v_cmp_eq_u32 s[{sRK+2}:{sRK+3}], s{sT1}, v{vLANE}")
e(f"v_cmp_eq_u32 s[{sT2}:{sT2+1}], {G-1}, v{vLANE}")
e(f"v_cndmask_b32 v{vT4}, 1, 3, vcc")
e(f"v_cndmask_b32 v{vT5}, 0, 12, s[{sRK+2}:{sRK+3}]")
e(f"v_cndmask_b32 v{vT1}, 0, 4, s[{sT2}:{sT2+1}]")
e(f"v_or3_b32 v{vT4}, v{vT4}, v{vT5}, v{vT1}")
e(f"v_lshlrev_b32 v{vT0}, 3, v{vLANE}")
e(f"v_add_u32 v{vT0}, {SL}, v{vT0}")
e("s_waitcnt lgkmcnt(0)")
e(f"v_or_b32 v{vT2}, v{vT2}, v{vT4}")
e(f"s_mov_b64 exec, s[{sMA}:{sMA+1}]")
e(f"ds_write_b64 v{vT0}, v[{vT2}:{vT3}]")
e("s_mov_b64 exec, -1")
lab("L_pl_done")
e(f"s_cmp_lg_u32 s{sMRG}, 0")
e("s_cbranch_scc1 L_fetch")
e(f"s_cmp_eq_u32 s{sTB}, 0")
e("s_cbranch_scc1 L_fin")
c("become the consumer of the donated tiles")
load_q(sPB)
e(f"s_mov_b64 s[{sMALL}:{sMALL+1}], s[{sMBK}:{sMBK+1}]")
e(f"s_mov_b32 s{sM}, s{sMBK}")
e(f"s_and_b32 s{sM+1}, s{sMBK+1}, {RHI:#x}")
e(f"s_mov_b32 s{sTTC}, s{sT}")
e(f"s_min_u32 s{sTB1}, s{sT}, {G}")
e(f"s_mov_b32 s{sROLE}, 1")
e(f"s_mov_b32 s{sPLN}, 1")
e(f"s_lshr_b32 s{sT3}, s{sZQ}, s{sPB}")
e(f"s_and_b32 s{sT3}, s{sT3}, 1")
e("s_branch L_csetup")

lab("L_fetch")
e(f"s_cmp_lg_u32 s{sCI}, 0")
e("s_cbranch_scc1 L_fin")
rows_off(sB)
if a.otouch >= 0:
    c("make the lines that will carry the partial valid in L2 (a later read of write-only lines would go to memory)")
    e(f"v_lshl_add_u32 v{vT4}, v{vLANE}, 7, s{sQO}")
    e(f"global_load_dword v{vPF}, v{vT4}, s[{sOUT}:{sOUT+1}] {a.ofl.replace('+', ' ')}")
ws_base(sB)
e(f"v_lshl_add_u32 v{vT1}, v{vT0}, 3, s{sT0}")
e(f"v_mov_b32 v{vFW}, s{sT0}")
e(f"s_lshl_b32 s{sT2}, s{sB}, 2")
e(f"v_mov_b32 v{vT2}, s{sT2}")
e(f"v_mov_b32 v{vPA}, {CTRL+16}")
e("s_mov_b64 exec, 1")
e(f"s_mul_i32 s{sNEED}, s{sT}, {a.pollnum}")
e(f"s_lshr_b32 s{sNEED}, s{sNEED}, 5")
e(f"s_lshl_b32 s{sT3}, s{sH}, 1")
e(f"s_mov_b32 s{sMBF}, 0")
c("wait until wave 5 has cleared the flag words and the stream is far enough")
lab("L_f_wait")
e(f"ds_read_b64 v[{vPL}:{vPL+1}], v{vPA}")
e("s_waitcnt lgkmcnt(0)")
e(f"v_readfirstlane_b32 s{sLND}, v{vPL}")
e(f"v_readfirstlane_b32 s{sT0}, v{vPL+1}")
e(f"s_cmp_ge_i32 s{sLND}, s{sNEED}")
e(f"s_cselect_b32 s{sT0}, s{sT0}, 0")
e(f"s_cmp_lg_u32 s{sT0}, 0")
e("s_cbranch_scc1 L_f_poll")
spin_tail("L_f_wait", 8)
lab("L_f_poll")
if "nopoll" in DBG: e("s_branch L_f_got")
e(f"global_load_dwordx2 v[{vPL}:{vPL+1}], v{vFW}, s[{sWS}:{sWS+1}] offset:256 sc1")
e(f"s_add_u32 s{sMBF}, s{sMBF}, 1")
e(f"s_and_b32 s{sT0}, s{sMBF}, 3")
e(f"s_mov_b32 s{sT2}, 0")
e("s_cbranch_scc1 L_f_nodbg")
e(f"global_load_dword v{vT3}, v{vT2}, s[{sDBG}:{sDBG+1}] sc1")
e("s_waitcnt vmcnt(0)")
e(f"v_readfirstlane_b32 s{sT2}, v{vT3}")
e(f"s_lshr_b32 s{sT2}, s{sT2}, s{sT3}")
lab("L_f_nodbg")
e("s_waitcnt vmcnt(0)")
e(f"v_lshl_or_b32 v{vPL}, v{vPL+1}, 1, v{vPL}")
e("s_nop 0")
e(f"v_readfirstlane_b32 s{sT0}, v{vPL}")
e(f"s_or_b32 s{sT0}, s{sT0}, s{sT2}")
e(f"s_and_b32 s{sT0}, s{sT0}, 3")
e(f"s_cmp_eq_u32 s{sT0}, 3")
e("s_cbranch_scc1 L_f_got")
spin_tail("L_f_poll", a.psleep)
lab("L_f_got")
e("s_mov_b64 exec, -1")
e(f"v_lshl_add_u32 v{vT4}, v{vLANE}, 4, s{sQO}")
e(f"v_add_u32 v{vT5}, 4096, v{vT4}")
FLD = " " + a.fld if a.fld != "none" else ""
for cc in range(2):
    if "nofetch" in DBG:
        e(f"v_mov_b32 v{vM+2*cc}, 0"); e(f"v_mov_b32 v{vM+2*cc+1}, 0")
        continue
    e(f"global_load_dwordx2 v[{vM+2*cc}:{vM+2*cc+1}], v{vT1}, s[{sWS}:{sWS+1}] offset:{128*cc}{FLD}")
    for j in range(4):
        r = vKF + 16 * cc + 4 * j
        e(f"global_load_dwordx4 v[{r}:{r+3}], v{vT4+cc}, s[{sOUT}:{sOUT+1}] offset:{1024*j}{FLD}")
e(f"v_lshlrev_b32 v{vT2}, 4, v{vLANE}")
e(f"v_add_u32 v{vT2}, {MB}, v{vT2}")
e(f"v_lshlrev_b32 v{vT0}, 3, v{vT0}")
e(f"v_add_u32 v{vT0}, {MB}, v{vT0}")
e(f"v_mov_b32 v{vPL}, {CTRL+4}")
e(f"v_mov_b32 v{vT3}, 1")
for cc in range(2):
    e(f"s_waitcnt vmcnt({5-5*cc})")
    for j in range(4):
        r = vKF + 16 * cc + 4 * j
        e(f"ds_write_b128 v{vT2}, v[{r}:{r+3}] offset:{MBS*cc + 1024*j}")
    e(f"ds_write_b64 v{vT0}, v[{vM+2*cc}:{vM+2*cc+1}] offset:{MBS*cc + 4096}")
    e(f"ds_write_b32 v{vPL}, v{vT3} offset:{8*cc}")
e(FIN)

c("wave 5: workgroups that share an L2 post their remaining work; one that lags prefetches deeper")
lab("L_ctl")
e(f"v_mov_b32 v{vT1}, {REC0}")
e(f"v_mov_b32 v{vPA}, {CTRL+32}")
e(f"v_mov_b32 v{vFW}, {DEPW}")
e(f"s_lshl_b32 s{sT0}, s{sB}, 2")
e(f"v_mov_b32 v{vG}, s{sT0}")
e(f"v_mov_b32 v{vFV}, v{vT3}")
lo = sum((XT[i] & 255) << (8 * i) for i in range(4)); hi = sum((XT[4 + i] & 255) << (8 * i) for i in range(4))
e(f"s_getreg_b32 s{sT0}, hwreg(HW_REG_XCC_ID, 0, 3)")
e(f"s_mov_b32 s{sM}, {lo:#x}")
e(f"s_mov_b32 s{sM+1}, {hi:#x}")
e(f"s_lshl_b32 s{sT0}, s{sT0}, 3")
e(f"s_lshr_b64 s[{sM}:{sM+1}], s[{sM}:{sM+1}], s{sT0}")
e(f"s_sext_i32_i8 s{sBO}, s{sM}")
lab("L_g_plan")
e(f"ds_read_b128 v[{vT2}:{vT5}], v{vT1}")
e("s_waitcnt lgkmcnt(0)")
e(f"v_readfirstlane_b32 s{sT0}, v{vT5}")
e(f"v_readfirstlane_b32 s{sT}, v{vT4}")
e(f"s_cmp_lg_u32 s{sT0}, 0")
e("s_cbranch_scc1 L_g_go")
spin_tail("L_g_plan", 8)
lab("L_g_go")
e(f"s_and_b32 s{sMRG}, s{sT}, 1")
e("s_cbranch_scc0 L_g_nores")
c("a partial is expected: clear its flag words before anything is posted")
ws_base(sB)
e(f"v_mov_b32 v{vT0}, s{sT0}")
e(f"v_mov_b32 v{vT2}, 0")
e(f"v_mov_b32 v{vT3}, 0")
e(f"v_mov_b32 v{vT4}, {CTRL+20}")
e(f"v_mov_b32 v{vT5}, 1")
e("s_mov_b64 exec, 1")
e(f"global_store_dwordx2 v{vT0}, v[{vT2}:{vT3}], s[{sWS}:{sWS+1}] offset:256")
e("s_waitcnt vmcnt(0)")
e(f"ds_write_b32 v{vT4}, v{vT5}")
e("s_mov_b64 exec, -1")
lab("L_g_nores")
e(f"s_and_b32 s{sT0}, s{sDBG}, 127")
e("s_cbranch_scc1 L_fin")
c("posted word: remaining units + 1 | head << 16 | die << 20 | flags cleared << 24")
e(f"s_getreg_b32 s{sFB}, hwreg(HW_REG_XCC_ID, 0, 4)")
e(f"s_lshl4_add_u32 s{sFB}, s{sMRG}, s{sFB}")
e(f"s_lshl4_add_u32 s{sFB}, s{sFB}, s{sH}")
e(f"s_lshl_b32 s{sFB}, s{sFB}, 16")
e(f"s_lshr_b32 s{sT}, s{sT}, 8")
e(f"s_lshl1_add_u32 s{sTN}, s{sT}, 1")
e(f"v_lshlrev_b32 v{vT1}, 1, v{vFV}")
e(f"v_add_u32 v{vT1}, {CTRL+68}, v{vT1}")
e(f"v_mov_b32 v{vT2}, s{sFB}")
e("s_mov_b64 exec, 1")
e(f"global_store_dword v{vG}, v{vT2}, s[{sDBG}:{sDBG+1}] offset:128")
e("s_mov_b64 exec, -1")
if "prog2" in DBG: e("v_mov_b32 v50, 0")
if a.skew:
    e(f"s_mov_b32 s{sNEED}, 3")
    e(f"s_cmp_lt_u32 s{sT}, 8")
    e("s_cbranch_scc1 L_fin")
    lab("L_g_sw")
    e(f"ds_read_b32 v{vPL}, v{vPA}")
    e("s_waitcnt lgkmcnt(0)")
    e(f"v_readfirstlane_b32 s{sLND}, v{vPL}")
    e(f"s_cmp_ge_i32 s{sLND}, s{sNEED}")
    e("s_cbranch_scc1 L_g_sa")
    spin_tail("L_g_sw", 1)
    lab("L_g_sa")
    e(f"global_load_dword v{vT0}, v{vFV}, s[{sDBG}:{sDBG+1}] sc1")
    e("s_waitcnt vmcnt(0)")
    e(f"v_cmp_gt_i32 vcc, 0, v{vT0}")
    e(f"v_lshrrev_b32 v{vT0}, 16, v{vT0}")
    e(f"v_sub_u32 v{vT0}, s{sMA}, v{vT0}")
    e(f"v_bfe_i32 v{vT0}, v{vT0}, 0, 15")
    e(f"v_cndmask_b32 v{vT0}, 0, v{vT0}, vcc")
    for sh in (1, 2, 4):
        e("s_nop 1")
        op = "v_max_i32_dpp" if "ampmax" in DBG else "v_add_u32_dpp"
        e(f"{op} v{vT0}, v{vT0}, v{vT0} row_shr:{sh} row_mask:0xf bank_mask:0xf bound_ctrl:0")
    e("s_nop 0")
    e(f"v_readlane_b32 s{sT0}, v{vT0}, 7")
    if "ampmax" in DBG or "ampmean" in DBG:
        e(f"s_mul_i32 s{sMBK}, s{sT0}, {20 if 'ampmax' in DBG else 3}")
        e(f"s_max_i32 s{sMBK}, s{sMBK}, 0")
        e(f"s_add_u32 s{sMBK}, s{sMBK}, 3500")
        lab("L_amp")
        e("s_sleep 4")
        e(f"s_memrealtime s[{sLO}:{sLO+1}]")
        e("s_waitcnt lgkmcnt(0)")
        e(f"s_sub_u32 s{sT0}, s{sLO}, s{sMA}")
        e(f"s_cmp_lt_u32 s{sT0}, s{sMBK}")
        e("s_cbranch_scc1 L_amp")
        e("s_endpgm")
    e(f"s_mul_i32 s{sT0}, s{sT0}, {a.skew}")
    e(f"s_ashr_i32 s{sT0}, s{sT0}, 9")
    e(f"s_add_u32 s{sBO}, s{sBO}, s{sT0}")
e(f"s_mov_b32 s{sNEED}, {a.cstart}")
lab("L_g_next")
e(f"s_sub_u32 s{sT0}, s{sTN}, s{sNEED}")
e(f"s_cmp_lt_i32 s{sT0}, {a.cstop}")
e("s_cbranch_scc1 L_fin")
lab("L_g_w")
e(f"ds_read_b32 v{vPL}, v{vPA}")
e("s_waitcnt lgkmcnt(0)")
e(f"v_readfirstlane_b32 s{sLND}, v{vPL}")
e(f"s_cmp_ge_i32 s{sLND}, s{sNEED}")
e("s_cbranch_scc1 L_g_a")
spin_tail("L_g_w", 1)
lab("L_g_a")
if "prog2" in DBG:
    e(f"s_memrealtime s[{sST+2}:{sST+3}]")
    e(f"s_lshr_b32 m0, s{sLND}, 1")
    e("s_waitcnt lgkmcnt(0)")
    e(f"v_writelane_b32 v50, s{sST+2}, m0")
e(f"s_sub_u32 s{sNK}, s{sTN}, s{sLND}")
e(f"s_or_b32 s{sT0}, s{sNK}, s{sFB}")
e(f"v_mov_b32 v{vT2}, s{sT0}")
e("s_mov_b64 exec, 1")
e(f"global_store_dword v{vG}, v{vT2}, s[{sDBG}:{sDBG+1}] offset:128")
e("s_mov_b64 exec, -1")
e(f"global_load_dword v{vT0}, v{vFV}, s[{sDBG}:{sDBG+1}] offset:128 sc1")
e(f"s_add_u32 s{sNEED}, s{sLND}, {a.cstep}")
e(f"s_min_i32 s{sT3}, s{sBO}, 1")
e(f"s_max_i32 s{sT3}, s{sT3}, -1")
e(f"s_sub_u32 s{sBO}, s{sBO}, s{sT3}")
e("s_waitcnt vmcnt(0)")
e(f"ds_write_b32 v{vT1}, v{vT0}")
e(f"v_and_b32 v{vT0}, 0xffff, v{vT0}")
e(f"v_cmp_ne_u32 vcc, 0, v{vT0}")
for sh in (1, 2, 4, 8):
    e("s_nop 1")
    e(f"v_add_u32_dpp v{vT0}, v{vT0}, v{vT0} row_shr:{sh} row_mask:0xf bank_mask:0xf bound_ctrl:0")
e("s_nop 1")
e(f"v_add_u32_dpp v{vT0}, v{vT0}, v{vT0} row_bcast:15 row_mask:0xa bank_mask:0xf")
e(f"s_bcnt1_i32_b32 s{sT1}, vcc_lo")
e(f"v_readlane_b32 s{sT0}, v{vT0}, 31")
e(f"s_mul_i32 s{sT2}, s{sNK}, s{sT1}")
e(f"s_sub_u32 s{sT2}, s{sT2}, s{sT0}")
e(f"s_lshl_b32 s{sT2}, s{sT2}, 2")
for th, inc, cmp in ((CTH[0], -1, "lt"), (CTH[1], 1, "gt"), (CTH[2], 1, "gt")):
    e(f"s_mul_i32 s{sT0}, s{sT1}, {th - a.cbias}")
    e(f"s_cmp_{cmp}_i32 s{sT2}, s{sT0}")
    e(f"s_cselect_b32 s{sT0}, {inc}, 0")
    e(f"s_add_u32 s{sT3}, s{sT3}, s{sT0}")
e(f"s_max_i32 s{sT3}, s{sT3}, -1")
e(f"s_min_i32 s{sT3}, s{sT3}, 2")
e(f"v_mov_b32 v{vT2}, s{sT3}")
e(f"ds_write_b32 v{vFW}, v{vT2}")
e("s_branch L_g_next")

lab("L_fin")
if a.amp:
    if a.amp == "end":
        e(f"s_sub_u32 s{sT0}, s{sW}, 1")
        e(f"s_cmp_gt_u32 s{sT0}, 1")
    else:
        e(f"s_cmp_lg_u32 s{sW}, 0")
    e("s_cbranch_scc1 L_end")
    e("s_waitcnt vmcnt(0) lgkmcnt(0)")
    if a.amp != "t0":
        e(f"s_memrealtime s[{sST+2}:{sST+3}]")
        e("s_waitcnt lgkmcnt(0)")
    e(f"s_sub_u32 s{sT1}, s{sST+2}, s{sST}")
    if a.amp != "t0": e(f"s_sub_u32 s{sT1}, s{sT1}, 2700")
    e(f"s_max_i32 s{sT1}, s{sT1}, 0")
    e(f"s_min_i32 s{sT1}, s{sT1}, 2000")
    e(f"s_mul_i32 s{sT1}, s{sT1}, 10")
    e(f"s_add_u32 s{sT1}, s{sT1}, 3500")
    lab("L_ampw")
    e("s_sleep 2")
    e(f"s_memrealtime s[{sST+2}:{sST+3}]")
    e("s_waitcnt lgkmcnt(0)")
    e(f"s_sub_u32 s{sT0}, s{sST+2}, s{sST}")
    e(f"s_cmp_lt_u32 s{sT0}, s{sT1}")
    e("s_cbranch_scc1 L_ampw")
if "prog2" in DBG or "prog3" in DBG:
    e(f"s_cmp_lg_u32 s{sW}, {5 if 'prog2' in DBG else 0}")
    e("s_cbranch_scc1 L_np2")
    e(f"s_lshl_b32 s{sT0}, s2, 8")
    e(f"s_add_u32 s{sT0}, s{sT0}, 0x400000")
    e(f"v_lshl_add_u32 v51, v{vLANE}, 2, s{sT0}")
    e(f"global_store_dword v51, v50, s[{sWS}:{sWS+1}]")
    lab("L_np2")
if a.stamps:
    e(f"s_cmp_gt_u32 s{sW}, 2")
    e("s_cbranch_scc1 L_end")
    e("s_mov_b64 exec, -1")
    e("s_waitcnt vmcnt(0) lgkmcnt(0)")
    stamp(3)
    e(f"s_getreg_b32 s{sT0}, hwreg(HW_REG_XCC_ID)")
    e("s_waitcnt lgkmcnt(0)")
    for i in range(8):
        e(f"v_mov_b32 v{64+i}, s{sST+i}")
    e(f"v_mov_b32 v72, s{sT0}")
    e(f"s_sub_u32 s{sT1}, {SPIN}, s{sSPIN}")
    e(f"v_mov_b32 v73, s{sT1}")
    e(f"v_mov_b32 v74, s{sT}")
    e(f"v_mov_b32 v75, 0")
    e(f"s_mul_i32 s{sT0}, s2, {NW}")
    e(f"s_add_u32 s{sT0}, s{sT0}, s{sW}")
    e(f"s_lshl_b32 s{sT0}, s{sT0}, 6")
    e(f"v_mov_b32 v80, s{sT0}")
    e("s_mov_b64 exec, 1")
    e(f"global_store_dwordx4 v80, v[64:67], s[{sWS}:{sWS+1}]")
    e(f"global_store_dwordx4 v80, v[68:71], s[{sWS}:{sWS+1}] offset:16")
    e(f"global_store_dwordx4 v80, v[72:75], s[{sWS}:{sWS+1}] offset:32")
lab("L_end")
e("s_endpgm")
out.append('.section .rodata,"a"')
out.append(".p2align 6")
out.append(f".amdhsa_kernel {NAME}_kernel")
out.append(f"  .amdhsa_next_free_vgpr {NV}")
out.append("  .amdhsa_next_free_sgpr 102")
out.append(f"  .amdhsa_accum_offset {NV}")
out.append("  .amdhsa_group_segment_fixed_size 0")
out.append("  .amdhsa_kernarg_size 64")
out.append("  .amdhsa_user_sgpr_count 2")
out.append("  .amdhsa_user_sgpr_kernarg_segment_ptr 1")
out.append("  .amdhsa_system_sgpr_workgroup_id_x 1")
out.append("  .amdhsa_float_denorm_mode_32 3")
out.append(".end_amdhsa_kernel")
open(a.o, "w").write("\n".join(out) + "\n")
```

```python
import sys, argparse
NAME = "standalone__paged_block_table_kv_pagedattention__sampling"
HEADER = open("cdna_kernels/" + NAME + ".s.ref").read().split("; Override")[0]

ap = argparse.ArgumentParser()
ap.add_argument("-o", default="/dev/stdout")
ap.add_argument("--map", default="plain")
ap.add_argument("--hrot", type=int, default=0)
ap.add_argument("--D", type=int, default=21)
ap.add_argument("--D0", type=int, default=26)
ap.add_argument("--NS", type=int, default=6)
ap.add_argument("--G", type=int, default=50)
ap.add_argument("--fnum", type=int, default=36)
ap.add_argument("--pollnum", type=int, default=53)
ap.add_argument("--psleep", type=int, default=12)
ap.add_argument("--UB", type=int, default=8)
ap.add_argument("--mfirst", type=int, default=1)
ap.add_argument("--cth", default="-2,2,5")
ap.add_argument("--cbias", type=int, default=7)
ap.add_argument("--cstart", type=int, default=8)
ap.add_argument("--cstop", type=int, default=4)
ap.add_argument("--cstep", type=int, default=3)
ap.add_argument("--xt", default="7,-8,7,-14,9,-2,8,-7")
ap.add_argument("--NUM", type=int, default=4)
ap.add_argument("--last", type=int, default=1)
ap.add_argument("--hold", default="")
ap.add_argument("--ost", default="")
ap.add_argument("--wb", type=int, default=0)
ap.add_argument("--skew", type=int, default=0)
ap.add_argument("--dv", default="-1,1,3")
ap.add_argument("--fpf", type=int, default=6)
ap.add_argument("--fld", default="sc1")
ap.add_argument("--opf", type=int, default=0)
ap.add_argument("--otouch", type=int, default=0)
ap.add_argument("--ospread", type=int, default=1)
ap.add_argument("--ofl", default="")
ap.add_argument("--DM", type=int, default=0)
ap.add_argument("--NE", type=int, default=3)
ap.add_argument("--amp", default="")
ap.add_argument("--nosort", action="store_true")
ap.add_argument("--nopair", action="store_true")
ap.add_argument("--limf", default="0x43800000")
ap.add_argument("--dbg", default="")
ap.add_argument("--stamps", action="store_true")
a = ap.parse_args()
NT = " nt"
OST = "" if not a.ost else " " + a.ost.replace("+", " ")
DBG = set(a.dbg.split(","))
D, D0, NS, G = a.D, a.D0, a.NS, a.G
assert 24 <= D0 <= 32 and (D - 2) // 8 == (D + 1) // 8 == 2 and 32 <= G < 64
CTH = [int(x) for x in a.cth.split(",")]
XT = [int(x) for x in a.xt.split(",")]
DV = [int(x) for x in a.dv.split(",")]
assert 17 <= D + DV[0] and D + DV[2] <= 24
DIVM = {5: (205, 10), 6: (43, 8), 7: (147, 10), 8: (1, 3), 10: (205, 11), 12: (171, 11)}[NS]
assert all((u * DIVM[0]) >> DIVM[1] == u // NS for u in range(129))
NW = 6
KBYTES = 4100 * 32768
SPIN = 1 << 22
NUM = a.NUM

RING = NS * 8192
PST = RING
MB = PST + G * 2048
MBS = 4224
CTRL = MB + 2 * MBS
FREE = CTRL + 512
REC0 = FREE + 128
DEPW = REC0 + 16
SL = FREE + 256
CNT = SL + 768
LA = CNT + 512
LB = LA + 512
KEYS = LB + 512
LDS = KEYS + 256
assert LDS <= 163840, LDS
WS0 = 0x100000 if a.stamps else 0
WSA = WS0 + 0x40000

out = []
def e(s): out.append("    " + s)
def lab(s): out.append(s + ":")
def c(s): out.append("    ; " + s)

sQ, sK, sV, sBT, sCL, sOUT, sDBG, sWS = 4, 6, 8, 10, 12, 14, 16, 18
sRD = 20
sB, sH, sW, sCLV = 28, 29, 30, 31
sT0, sT1, sT2, sT3 = 32, 33, 34, 35
sPC = 36
sSPIN = 38
sNB, sNTL, sNU, sT = 39, 40, 41, 42
sST = 64
sE = 72
sB0, sB1, sFL, sPM, sSLOT, sU, sTA0 = 46, 47, 48, 49, 52, 56, 57
sM = 46
sCI, sLND, sMBF, sNEED, sMRG, sMT, sROLE, sQO, sPLN, sSB = 48, 49, 50, 51, 52, 56, 57, 58, 59, 60
sV0 = 61
sCST = 62
sTN, sNK, sFWN, sFB, sPRE, sREDO, sLIMF, sPO = 96, 97, 98, 99, 100, 101, 53, 43
sMALL, sRS = 24, 26
sOFF, sTB0, sTB1, sTTC, sFIRST = 20, 21, 22, 23, 44
sZQ = 54
sRK, sPB, sNP, sX, sTA, sTB, sF, sWB = 80, 81, 82, 83, 84, 85, 86, 87
sMA, sMBK = 88, 90
sLO, sHI, sLBASE = 92, 93, 94
sBO = 56
vLANE = 1
vT0, vT1, vT2, vT3, vT4, vT5 = 2, 3, 4, 5, 6, 7
vL = 8
vKOFF, vVOFF = 10, 14
vCA, vCNT, vFA, vR = 18, 19, 20, 21
vF = 22
vCUR = 24
vTR = 28
vTRK, vTRV = 36, 52
vEN = 44
vDP, vDA, vOOB, vSA = 46, 47, 48, 49
vKA0, vVA0, vXA = 8, 12, 16
vPA0, vPW = 20, 21
vM, vLS, vMN, vAL, vPA, vFW = 24, 25, 26, 27, 28, 29
vPL = 30
vQ = 32
vS = 48
vP = 56
vG, vPF, vFV, vN = 60, 61, 62, 63
vKF = 64
vVF = 96
vO = 128
vE = 160
vPN = 160
NV = 168

def stamp(i):
    if a.amp and (i == 0 or (i == 1 and a.amp == "t0")): e(f"s_memrealtime s[{sST+2*i}:{sST+2*i+1}]")
    if a.hold and i == 0: e(f"{'s_memrealtime' if a.hold[:2] == 'rt' else 's_memtime'} s[{sST}:{sST+1}]")
    if a.stamps: e(f"s_memrealtime s[{sST+2*i}:{sST+2*i+1}]")
def clamp_cl(zq=None):
    c("context length: <=0 -> every key masked => uniform weights over 2048 keys (zero Q); >2048 -> 2048")
    e(f"s_cmp_lt_i32 s{sCLV}, 1")
    if zq is not None: e(f"s_cselect_b32 s{zq}, 1, 0")
    e(f"s_cselect_b32 s{sCLV}, 2048, s{sCLV}")
    e(f"s_min_i32 s{sCLV}, s{sCLV}, 2048")
def derive_nb():
    e(f"s_add_u32 s{sNTL}, s{sNB}, 1")
    e(f"s_lshr_b32 s{sNTL}, s{sNTL}, 1")
    e(f"s_sub_u32 s{sNU}, s{sNTL}, 1")
    e(f"s_min_u32 s{sNU}, s{sNU}, {NUM}")
def derive_cl():
    e(f"s_add_u32 s{sNB}, s{sCLV}, 15")
    e(f"s_lshr_b32 s{sNB}, s{sNB}, 4")
    derive_nb()
def spin_tail(label, sleep=1):
    e(f"s_sleep {sleep}")
    e(f"s_sub_u32 s{sSPIN}, s{sSPIN}, 1")
    e(f"s_cbranch_scc0 {label}")
    e("s_endpgm")
FIN = "s_branch L_fin" if (a.stamps or a.amp) else "s_endpgm"

out.append(HEADER.rstrip())
out.append(f"; @launch grid=(256,1,1) block=({64*NW},1,1) lds={LDS}")
out.append('.amdgcn_target "amdgcn-amd-amdhsa--gfx950"')
out.append(".text")
out.append(f".globl {NAME}_kernel")
out.append(".p2align 8")
out.append(f".type {NAME}_kernel,@function")
lab(f"{NAME}_kernel")
e("s_load_dwordx16 s[4:19], s[0:1], 0")
e(f"s_lshr_b32 s{sB}, s2, 3")
e(f"s_cmp_ge_u32 s{sB}, 32")
e("s_cbranch_scc1 L_end")
stamp(0)
e(f"v_lshrrev_b32 v{vT0}, 6, v0")
e(f"v_and_b32 v{vLANE}, 63, v0")
e(f"v_readfirstlane_b32 s{sW}, v{vT0}")
c("waves 1 and 3 pull this kernel's code into L2")
e(f"s_getpc_b64 s[{sPC}:{sPC+1}]")
lab("L_pc")
e(f"v_bfe_u32 v{vT2}, v0, 7, 1")
e(f"v_lshl_add_u32 v{vT2}, v{vT2}, 6, v{vLANE}")
e(f"v_lshlrev_b32 v{vT2}, 7, v{vT2}")
e(f"v_min_u32 v{vT2}, L_end - L_pc, v{vT2}")
e(f"s_bitcmp1_b32 10, s{sW}")
e("s_cbranch_scc0 L_nopf")
e(f"global_load_dword v{vPF}, v{vT2}, s[{sPC}:{sPC+1}]")
lab("L_nopf")
c("clear the control words and the sort counters")
e(f"v_mov_b64 v[{vT2}:{vT3}], 0")
e(f"v_lshlrev_b32 v{vT4}, 3, v0")
e(f"v_add_u32 v{vT4}, {CTRL}, v{vT4}")
e(f"ds_write_b64 v{vT4}, v[{vT2}:{vT3}]")
if a.map == "rot":
    e(f"s_add_u32 s{sH}, s2, s{sB}")
    e(f"s_and_b32 s{sH}, s{sH}, 7")
elif a.hrot:
    e(f"s_add_u32 s{sH}, s2, {a.hrot}")
    e(f"s_and_b32 s{sH}, s{sH}, 7")
else:
    e(f"s_and_b32 s{sH}, s2, 7")
e(f"s_lshl3_add_u32 s{sT2}, s{sB}, s{sH}")
e(f"s_lshl_b32 s{sT2}, s{sT2}, 13")
e(f"v_lshl_add_u32 v{vT5}, v{vLANE}, 7, s{sT2}")
e(f"s_lshl_b32 s{sT0}, s{sB}, 9")
e(f"v_lshl_add_u32 v{vT2}, v{vLANE}, 3, s{sT0}")
e(f"s_lshl_b32 s{sT1}, s{sB}, 2")
e(f"v_and_b32 v{vT0}, 31, v{vLANE}")
e(f"v_lshlrev_b32 v{vT3}, 2, v{vT0}")
e(f"s_mov_b32 s{sSPIN}, {SPIN}")
e(f"s_cmp_lg_u32 s{sW}, 2")
e("s_waitcnt lgkmcnt(0)")
e(f"s_load_dwordx8 s[{sE}:{sE+7}], s[{sBT}:{sBT+1}], s{sT0}")
e(f"s_load_dword s{sCLV}, s[{sCL}:{sCL+1}], s{sT1}")
c("wave 2 touches the 64 lines of this workgroup's queries while memory is still idle")
e("s_cbranch_scc1 L_noq")
e(f"global_load_dword v{vPF}, v{vT5}, s[{sQ}:{sQ+1}]")
lab("L_noq")
if a.opf:
    e(f"s_cmp_lg_u32 s{sW}, 4")
    e("s_cbranch_scc1 L_noo")
    e(f"global_load_dword v{vPF}, v{vT5}, s[{sOUT}:{sOUT+1}]")
    lab("L_noo")
e(f"global_load_dwordx2 v[{vL}:{vL+1}], v{vT2}, s[{sBT}:{sBT+1}]")
e(f"global_load_dword v{vN}, v{vT3}, s[{sCL}:{sCL+1}]")
lab("L_loads_issued")
if a.amp == "t0k": e(f"s_memrealtime s[{sST+2}:{sST+3}]")
e(f"s_cmp_lg_u32 s{sW}, 0")
e("s_cbranch_scc1 L_notloader")

e("s_setprio 3")
c("per-lane source offsets of the LDS-DMA pieces (bank swizzle applied on the source side)")
e(f"v_lshrrev_b32 v{vR}, 4, v{vLANE}")
e(f"v_and_b32 v{vT1}, 15, v{vLANE}")
e(f"s_lshl_b32 s{sT0}, s{sH}, 8")
e(f"v_lshl_add_u32 v{vT4}, v{vR}, 11, s{sT0}")
e(f"v_xor_b32 v{vT2}, v{vR}, v{vT1}")
e(f"v_lshl_add_u32 v{vKOFF}, v{vT2}, 4, v{vT4}")
for j in range(1, 4):
    e(f"v_xor_b32 v{vT3}, {64*j}, v{vKOFF}")
    e(f"v_add_u32 v{vKOFF+j}, {7168*j}, v{vT3}")
e(f"s_mov_b32 s{sRD}, s{sK}")
e(f"s_and_b32 s{sRD+1}, s{sK+1}, 0xffff")
e(f"s_mov_b32 s{sRD+2}, {KBYTES}")
e(f"s_mov_b32 s{sRD+3}, 0x20000")
if a.amp == "t0c": e(f"s_memrealtime s[{sST+2}:{sST+3}]")
e("s_waitcnt lgkmcnt(0)")
clamp_cl()
c("the first stream tiles are logical tiles 0..3 (those that are not the last one)")
NE = a.NE
for t in range(NE):
    e(f"s_cmp_le_u32 s{sCLV}, {32*(t+1)}")
    e(f"s_cbranch_scc1 {'L_ld_b' if t < 2 else 'L_ld_pre'}")
    if t == 0: stamp(1)
    for j in range(8):
        i = 8 * t + j
        if j % 4 == 0:
            e(f"s_movk_i32 m0, {1024*i}")
            e(f"s_lshl_b32 s{sB0}, s{sE+i//4}, 15")
        if i >= D0: e(f"s_waitcnt vmcnt({D0-1})")
        e(f"buffer_load_dwordx4 v{vKOFF+j%4}, s[{sRD}:{sRD+3}], s{sB0} offen offset:{1024*(j%4)}{NT} lds")
    if t == 1:
        lab("L_ld_b")
        e("s_barrier")
lab("L_ld_pre")
derive_cl()
j0 = (D - 1) % 8
e(f"v_lshlrev_b32 v{vT3}, 2, v{vR}")
e(f"v_xor_b32 v{vT3}, v{vT3}, v{vT1}")
e(f"v_lshl_add_u32 v{vVOFF}, v{vT3}, 4, v{vT4}")
for j in range(1, 4):
    e(f"v_add_u32 v{vVOFF+j}, {7168*j}, v{vVOFF}")
e(f"s_min_u32 s{sT}, s{sNU}, {NE}")
e(f"s_lshl_b32 s{sSLOT}, s{sT}, 13")
e(f"s_mov_b32 s{sU}, s{sT}")
e(f"v_lshlrev_b32 v{vCA}, 3, v{vLANE}")
e(f"v_add_u32 v{vT0}, {SL}, v{vCA}")
e(f"v_add_u32 v{vCA}, {CTRL}, v{vCA}")
e(f"v_mov_b32 v{vFA}, {FREE}")
e(f"v_mov_b64 v[{vF}:{vF+1}], 0")
e(f"v_mov_b32 v{vDP}, {2 if NE == 3 else 0}")
e(f"v_mov_b32 v{vDA}, {DEPW}")
e(f"s_sub_u32 s{sT0}, s{sT}, 3")
e(f"v_mov_b32 v{vCNT}, s{sT0}")
e(f"s_lshl3_add_u32 s{sT0}, s{sT}, {SL}")
e(f"v_mov_b32 v{vSA}, s{sT0}")
c("offsets for the last logical tile: rows past the context are not fetched (their lanes read zeros)")
e(f"s_lshl_b32 s{sT0}, s{sNTL}, 5")
e(f"s_sub_u32 s{sT0}, s{sCLV}, s{sT0}")
e(f"s_add_u32 s{sT0}, s{sT0}, 32")
e(f"v_bfrev_b32 v{vOOB}, 1")
e(f"v_sub_u32 v{vT1}, s{sT0}, v{vR}")
for k in range(8):
    e(f"v_cmp_lt_i32 s[{80+2*k}:{81+2*k}], {4*k}, v{vT1}")
for k in range(8):
    e(f"v_cndmask_b32 v{vTRK+k}, v{vOOB}, v{vKOFF+k%4}, s[{80+2*k}:{81+2*k}]")
    e(f"v_cndmask_b32 v{vTRV+k}, v{vOOB}, v{vVOFF+k%4}, s[{80+2*k}:{81+2*k}]")
def set_pass(off, tr):
    for j in range(0, 4, 2): e(f"v_mov_b64 v[{vCUR+j}:{vCUR+j+1}], v[{off+j}:{off+j+1}]")
    for j in range(0, 8, 2): e(f"v_mov_b64 v[{vTR+j}:{vTR+j+1}], v[{tr+j}:{tr+j+1}]")
set_pass(vKOFF, vTRK)
if "prog3" in DBG: e("v_mov_b32 v50, 0")
e(f"s_mov_b32 s{sPM}, 4")
e(f"s_mov_b32 s{sTA0}, 0")
c("the leading tiles enter the stream list straight from the table row")
e(f"s_bfm_b64 s[{sT2}:{sT2+1}], s{sNU}, 0")
e(f"s_cmp_ge_u32 s{sNU}, {NE}")
e("s_cbranch_scc1 L_ld_row")
e("s_waitcnt vmcnt(0)")
lab("L_ld_row")
e("s_waitcnt vmcnt(24)")
if NE == 4: e(f"ds_write_b32 v{vCA}, v{vCNT}")
e(f"v_lshl_or_b32 v{vEN}, v{vL}, 15, 1")
e(f"v_lshlrev_b32 v{vEN+1}, 15, v{vL+1}")
e(f"s_mov_b64 exec, s[{sT2}:{sT2+1}]")
e(f"ds_write_b64 v{vT0}, v[{vEN}:{vEN+1}]")
e("s_mov_b64 exec, -1")
e(f"ds_read_b64 v[{vEN}:{vEN+1}], v{vSA}")
if a.amp == "t0r": e(f"s_memrealtime s[{sST+2}:{sST+3}]")
if a.amp[:3] == "t0l":
    e(f"s_waitcnt vmcnt({int(a.amp[3:])})")
    e(f"s_memrealtime s[{sST+2}:{sST+3}]")
stamp(2)
def unit_body(depth, trimmed=False):
    for j in range(8):
        if j % 4 == 0: e(f"s_add_u32 m0, s{sSLOT}, {1024*j}")
        e(f"s_waitcnt vmcnt({depth-1})")
        e(f"buffer_load_dwordx4 v{vTR+j if trimmed else vCUR+j%4}, s[{sRD}:{sRD+3}], s{sB0 + j//4} offen offset:{1024*(j%4)}{NT} lds")
        if j == (depth - 1) % 8:
            e(f"v_add_u32 v{vCNT}, 1, v{vCNT}")
            e(f"ds_write_b32 v{vCA}, v{vCNT}")
        if j == 0:
            e(f"s_add_u32 s{sT2}, s{sSLOT}, 8192")
            e(f"s_cmp_eq_u32 s{sT2}, {RING}")
            e(f"s_cselect_b32 s{sT2}, 0, s{sT2}")
            e(f"s_lshr_b32 s{sT0}, s{sT2}, 10")
            e(f"s_add_u32 s{sT0}, s{sT0}, {FREE}")
            e(f"v_mov_b32 v{vFA}, s{sT0}")
        if j == 1:
            e(f"s_add_u32 s{sT}, s{sT}, 1")
            e(f"s_and_b32 s{sT0}, s{sFL}, s{sPM}")
            e(f"s_cselect_b32 s{sT}, s{sTA0}, s{sT}")
            e(f"s_lshl3_add_u32 s{sT0}, s{sT}, {SL}")
            e(f"v_mov_b32 v{vSA}, s{sT0}")
            e(f"s_add_u32 s{sU}, s{sU}, 1")
        if j == a.fpf:
            c("prefetch the next list entry, the FREE words of the next slot and the depth code")
            e(f"ds_read_b64 v[{vEN}:{vEN+1}], v{vSA}")
            e(f"ds_read_b64 v[{vF}:{vF+1}], v{vFA}")
            e(f"ds_read_b32 v{vDP}, v{vDA}")
            e(f"s_mov_b32 s{sSLOT}, s{sT2}")
out.append(".p2align 3")
lab("L_ld")
if "prog3" in DBG:
    e(f"s_memrealtime s[{sST+4}:{sST+5}]")
    e(f"s_min_u32 m0, s{sU}, 63")
e("s_waitcnt lgkmcnt(0)")
if "prog3" in DBG: e(f"v_writelane_b32 v50, s{sST+4}, m0")
e(f"v_min_i32 v{vT0}, v{vF}, v{vF+1}")
e(f"v_readfirstlane_b32 s{sFL}, v{vEN}")
e(f"v_readfirstlane_b32 s{sB1}, v{vEN+1}")
e(f"v_readfirstlane_b32 s{sT0}, v{vT0}")
e(f"v_readfirstlane_b32 s{sT3}, v{vDP}")
e(f"s_sub_u32 s{sT1}, s{sU}, {NS-1}")
e(f"s_cmp_ge_i32 s{sT0}, s{sT1}")
e(f"s_cselect_b32 s{sT0}, s{sFL}, 0")
e(f"s_and_b32 s{sB0}, s{sFL}, -16")
e(f"s_and_b32 s{sT0}, s{sT0}, 3")
e(f"s_cmp_lg_u32 s{sT0}, 1")
e("s_cbranch_scc1 L_ld_odd")
e(f"s_cmp_lg_u32 s{sT3}, 0")
e("s_cbranch_scc1 L_ld_var")
unit_body(D)
lab("L_ld_next")
e(f"s_bitcmp1_b32 s{sFL}, 2")
e("s_cbranch_scc0 L_ld")
c("last tile of the batch: change pass")
e(f"s_xor_b32 s{sPM}, s{sPM}, 4")
e("s_cbranch_scc1 L_ld_tok")
e(f"s_mov_b32 s{sRD}, s{sV}")
e(f"s_and_b32 s{sRD+1}, s{sV+1}, 0xffff")
set_pass(vVOFF, vTRV)
e("s_branch L_ld")
lab("L_ld_tok")
e(f"s_bitcmp1_b32 s{sFL}, 3")
e("s_cbranch_scc0 L_ld_more")
for r in (16, 8, 0):
    e(f"v_add_u32 v{vCNT}, 1, v{vCNT}")
    e(f"s_waitcnt vmcnt({r})")
    e(f"ds_write_b32 v{vCA}, v{vCNT}")
if a.hold:
    lab("L_hold")
    e(f"{'s_memrealtime' if a.hold[:2] == 'rt' else 's_memtime'} s[{sST+2}:{sST+3}]")
    e("s_waitcnt lgkmcnt(0)")
    e(f"s_sub_u32 s{sT0}, s{sST+2}, s{sST}")
    e(f"s_cmp_lt_u32 s{sT0}, {a.hold[3:]}")
    e("s_cbranch_scc1 L_hold")
e(FIN)
lab("L_ld_more")
e(f"s_mov_b32 s{sTA0}, s{sT}")
e(f"s_mov_b32 s{sRD}, s{sK}")
e(f"s_and_b32 s{sRD+1}, s{sK+1}, 0xffff")
set_pass(vKOFF, vTRK)
e("s_branch L_ld")
lab("L_ld_odd")
e(f"s_cmp_eq_u32 s{sT0}, 3")
e("s_cbranch_scc1 L_ld_m")
c("slot not free yet or entry not written yet")
e(f"ds_read_b64 v[{vEN}:{vEN+1}], v{vSA}")
e(f"ds_read_b64 v[{vF}:{vF+1}], v{vFA}")
e(f"s_sub_u32 s{sSPIN}, s{sSPIN}, 1")
e("s_cbranch_scc0 L_ld")
e("s_endpgm")
lab("L_ld_m")
unit_body(D + a.DM, True)
e("s_branch L_ld_next")
lab("L_ld_var")
e(f"s_cmp_eq_u32 s{sT3}, 1")
e("s_cbranch_scc1 L_ld_v2")
e(f"s_cmp_eq_u32 s{sT3}, 2")
e("s_cbranch_scc1 L_ld_v3")
unit_body(D + DV[0])
e("s_branch L_ld_next")
lab("L_ld_v2")
unit_body(D + DV[1])
e("s_branch L_ld_next")
lab("L_ld_v3")
unit_body(D + DV[2])
e("s_branch L_ld_next")

lab("L_notloader")
e(f"s_cmp_ge_u32 s{sW}, 3")
e("s_cbranch_scc1 L_planner")
e(f"s_sub_u32 s{sCI}, s{sW}, 1")
def rows_off(sb):
    e(f"s_lshl3_add_u32 s{sQO}, s{sb}, s{sH}")
    e(f"s_lshl1_add_u32 s{sQO}, s{sQO}, s{sCI}")
    e(f"s_lshl_b32 s{sQO}, s{sQO}, 12")
    e(f"v_and_b32 v{vT0}, 15, v{vLANE}")
    e(f"v_lshrrev_b32 v{vG}, 4, v{vLANE}")
def load_q(sb):
    rows_off(sb)
    e(f"v_lshl_add_u32 v{vT4}, v{vT0}, 8, s{sQO}")
    e(f"v_lshl_add_u32 v{vT4}, v{vG}, 4, v{vT4}")
    for s in range(4):
        e(f"global_load_dwordx4 v[{vQ+4*s}:{vQ+4*s+3}], v{vT4}, s[{sQ}:{sQ+1}] offset:{64*s}")
load_q(sB)
e("s_barrier")
e(f"s_mov_b32 s{sROLE}, 0")
e(f"s_mov_b32 s{sPLN}, 0")
e(f"s_mov_b32 s{sMRG}, 0")
e("s_waitcnt lgkmcnt(0)")
clamp_cl(zq=sT3)
derive_cl()
c("valid keys of the last logical tile")
e(f"s_lshl_b32 s{sV0}, s{sNTL}, 5")
e(f"s_sub_u32 s{sV0}, s{sCLV}, s{sV0}")
e(f"s_add_u32 s{sV0}, s{sV0}, 32")
e(f"s_bfm_b64 s[{sM}:{sM+1}], s{sNU}, 0")
lab("L_csetup")
e(f"s_mov_b32 s{sMT}, 0")
e(f"s_mov_b32 s{sOFF}, 0")
e(f"s_mov_b32 s{sTB0}, 0")
e(f"s_mov_b32 s{sFIRST}, 1")
e(f"s_mov_b64 s[{sRS}:{sRS+1}], 0")
e("s_waitcnt vmcnt(4)")
e(f"v_and_b32 v{vT0}, 15, v{vLANE}")
e(f"v_xor_b32 v{vT1}, v{vG}, v{vT0}")
e(f"v_lshlrev_b32 v{vT2}, 8, v{vT0}")
e(f"v_lshl_add_u32 v{vKA0}, v{vT1}, 4, v{vT2}")
for s in range(1, 4):
    e(f"v_xor_b32 v{vKA0+s}, {64*s}, v{vKA0}")
e(f"v_bfe_u32 v{vT0}, v{vLANE}, 2, 2")
e(f"v_lshl_add_u32 v{vT1}, v{vG}, 2, v{vT0}")
e(f"v_lshlrev_b32 v{vT1}, 8, v{vT1}")
e(f"v_and_b32 v{vT2}, 3, v{vLANE}")
e(f"v_lshl_add_u32 v{vT1}, v{vT2}, 4, v{vT1}")
e(f"v_lshl_add_u32 v{vVA0}, v{vT0}, 6, v{vT1}")
for j in range(1, 4):
    e(f"v_xor_b32 v{vVA0+j}, {64*j}, v{vVA0}")
e(f"s_lshl_b32 s{sT0}, s{sCI}, 10")
e(f"s_add_u32 s{sT0}, s{sT0}, {PST}")
e(f"v_lshl_add_u32 v{vPA0}, v{vLANE}, 4, s{sT0}")
e(f"s_lshl_b32 s{sT0}, s{sW}, 3")
e(f"s_add_u32 s{sT0}, s{sT0}, {CTRL-8}")
e(f"v_mov_b32 v{vPA}, s{sT0}")
e(f"v_mov_b32 v{vM}, 0xff800000")
e(f"v_mov_b32 v{vLS}, 0")
for r in range(0, 32, 2): e(f"v_mov_b64 v[{vO+r}:{vO+r+1}], 0")
e(f"s_mov_b32 s{sCST}, 0x3e0293ee")
e(f"s_mov_b32 s{sCST+1}, 0x3e0293ee")
e(f"s_mov_b32 s{sLIMF}, {a.limf}")
e(f"s_lshl2_add_u32 s{sFB}, s{sCI}, {FREE}")
e("s_waitcnt vmcnt(0)")
e(f"s_cmp_eq_u32 s{sT3}, 0")
e("s_cbranch_scc1 L_k_first")
for r in range(0, 16, 2): e(f"v_mov_b64 v[{vQ+r}:{vQ+r+1}], 0")

def poll(label):
    lab(label)
    e(f"ds_read_b64 v[{vPL}:{vPL+1}], v{vPA}")
    e(f"s_sub_u32 s{sSPIN}, s{sSPIN}, 1")
    e("s_cbranch_scc1 L_end")
    e("s_waitcnt lgkmcnt(0)")
    e(f"v_readfirstlane_b32 s{sLND}, v{vPL}")
    e(f"s_cmp_ge_i32 s{sLND}, s{sNK}")
    e(f"s_cbranch_scc0 {label}")
VR = []
for j in range(4):
    for ee in range(2):
        for blk in range(2):
            r = vVF + (2 * j + ee) * 4 + 2 * blk
            VR.append(f"ds_read_b64_tr_b16 v[{r}:{r+1}], v{vXA+j} offset:{8*ee + 4096*blk}")
KR, QK = [], []
for blk in range(2):
    for st in range(4):
        r = vKF + (blk * 4 + st) * 4
        KR.append(f"ds_read_b128 v[{r}:{r+3}], v{vXA+st} offset:{4096*blk}")
        cc = "0" if st == 0 else f"v[{vS+4*blk}:{vS+4*blk+3}]"
        QK.append(f"v_mfma_f32_16x16x32_bf16 v[{vS+4*blk}:{vS+4*blk+3}], v[{r}:{r+3}], v[{vQ+4*st}:{vQ+4*st+3}], {cc}")
PV = [f"v_mfma_f32_16x16x32_bf16 v[{vO+4*dt}:{vO+4*dt+3}], v[{vVF+4*dt}:{vVF+4*dt+3}], v[{vP}:{vP+3}], v[{vO+4*dt}:{vO+4*dt+3}]" for dt in range(8)]
NX = [f"s_ff1_i32_b64 s{sTN}, s[{sM}:{sM+1}]",
      f"s_bitset0_b64 s[{sM}:{sM+1}], s{sTN}",
      f"s_add_u32 s{sT1}, s{sTN}, s{sOFF}",
      f"s_mul_i32 s{sT0}, s{sT1}, {DIVM[0]}",
      f"s_lshr_b32 s{sT0}, s{sT0}, {DIVM[1]}",
      f"s_mul_i32 s{sT0}, s{sT0}, {NS}",
      f"s_sub_u32 s{sT0}, s{sT1}, s{sT0}",
      f"s_lshl_b32 s{sSB}, s{sT0}, 13",
      f"s_lshl3_add_u32 s{sFWN}, s{sT0}, s{sFB}",
      f"s_and_b32 s{sT0}, s{sTN}, 0x40000000",
      f"s_add_u32 s{sNK}, s{sT1}, 1",
      f"s_or_b32 s{sNK}, s{sNK}, s{sT0}",
      f"s_sub_u32 s{sPO}, s{sTN}, s{sTB0}",
      f"s_lshl_b32 s{sPO}, s{sPO}, 11"]
KA = [f"v_add_u32 v{vXA+i}, s{sSB}, v{vKA0+i}" for i in range(4)]
VA = [f"v_add_u32 v{vXA+i}, s{sSB}, v{vVA0+i}" for i in range(4)]
ADV = [f"v_mov_b32 v{vFW}, s{sFWN}",
       f"v_mov_b32 v{vFV}, s{sNK}",
       f"v_add_u32 v{vPW}, s{sPO}, v{vPA0}",
       f"s_add_u32 s{sT}, s{sTN}, 1"]
def scale_o(reg):
    for r in range(0, 32, 2):
        sel = "op_sel:[0,1] op_sel_hi:[1,1]" if reg & 1 else "op_sel_hi:[1,0]"
        p = reg & ~1
        e(f"v_pk_mul_f32 v[{vO+r}:{vO+r+1}], v[{vO+r}:{vO+r+1}], v[{p}:{p+1}] {sel}")

lab("L_k_first")
for x in NX + KA + ADV: e(x)
lab("L_k_next")
e(f"s_cmp_lt_i32 s{sTN}, 0")
e("s_cbranch_scc1 L_k_empty")
poll("L_k_poll")
for x in KR: e(x)
e("s_waitcnt lgkmcnt(0)")
out.append(".p2align 3")
lab("L_k_top")
e("s_waitcnt lgkmcnt(1)")
e(f"ds_write_b32 v{vFW}, v{vFV}")
e(f"ds_read_b64 v[{vPL}:{vPL+1}], v{vPA}")
fill = NX + KA
for i in range(8):
    e(QK[i])
    for x in fill[2*i:2*i+2]: e(x)
for x in fill[16:]: e(x)
e(f"s_mov_b32 s{sREDO}, 0")
e("s_waitcnt lgkmcnt(0)")
e(f"v_readfirstlane_b32 s{sLND}, v{vPL}")
e(f"s_cmp_ge_i32 s{sLND}, s{sNK}")
e(f"s_cselect_b32 s{sPRE}, 1, 0")
e("s_cbranch_scc0 L_k_nopre")
for x in KR: e(x)
lab("L_k_nopre")
e(f"s_cmp_eq_u32 s{sT}, s{sMT}")
e("s_cbranch_scc1 L_k_mask")
lab("L_k_exp")
for hb in range(2):
    for r in (4*hb, 4*hb+2):
        e(f"v_pk_fma_f32 v[{vE+r}:{vE+r+1}], v[{vS+r}:{vS+r+1}], s[{sCST}:{sCST+1}], v[{vM}:{vM+1}] op_sel_hi:[1,1,0] neg_lo:[0,0,1] neg_hi:[0,0,1]")
    for r in range(4*hb, 4*hb+4):
        e(f"v_exp_f32 v{vE+r}, v{vE+r}")
e(f"v_pk_add_f32 v[{vT0}:{vT1}], v[{vE}:{vE+1}], v[{vE+2}:{vE+3}]")
e(f"v_pk_add_f32 v[{vT2}:{vT3}], v[{vE+4}:{vE+5}], v[{vE+6}:{vE+7}]")
e(f"v_cvt_pk_bf16_f32 v{vP}, v{vE}, v{vE+1}")
e(f"v_pk_add_f32 v[{vT0}:{vT1}], v[{vT0}:{vT1}], v[{vT2}:{vT3}]")
e(f"v_cvt_pk_bf16_f32 v{vP+1}, v{vE+2}, v{vE+3}")
e(f"v_add_f32 v{vT0}, v{vT0}, v{vT1}")
c("the kept reference max is safe only while every weight stays <= 256; otherwise take the true max")
e(f"v_cmp_nge_f32 vcc, s{sLIMF}, v{vT0}")
e(f"v_cvt_pk_bf16_f32 v{vP+2}, v{vE+4}, v{vE+5}")
e(f"v_cvt_pk_bf16_f32 v{vP+3}, v{vE+6}, v{vE+7}")
e(ADV[0]); e(ADV[1])
e("s_nop 0")
e("s_cbranch_vccnz L_k_slow")
lab("L_k_done")
e(f"ds_write_b128 v{vPW}, v[{vP}:{vP+3}]")
e(f"v_add_f32 v{vLS}, v{vLS}, v{vT0}")
e(ADV[3])
e(f"s_cmp_lg_u32 s{sPRE}, 0")
e(ADV[2])
e("s_cbranch_scc1 L_k_top")
e("s_branch L_k_next")

lab("L_k_mask")
e(f"v_lshlrev_b32 v{vT0}, 2, v{vG}")
e(f"v_sub_u32 v{vT0}, s{sV0}, v{vT0}")
e(f"v_mov_b32 v{vT1}, 0xff800000")
for r in range(8):
    e(f"v_cmp_lt_i32 s[{80+2*r}:{81+2*r}], {16*(r//4)+r%4}, v{vT0}")
for r in range(8):
    e(f"v_cndmask_b32 v{vS+r}, v{vT1}, v{vS+r}, s[{80+2*r}:{81+2*r}]")
e("s_branch L_k_exp")

def alpha_addr():
    e(f"s_lshl_b32 s{sT0}, s2, 6")
    e(f"s_add_u32 s{sT0}, s{sT0}, s{sT}")
    e(f"s_lshl1_add_u32 s{sT0}, s{sT0}, s{sCI}")
    e(f"s_lshl_b32 s{sT0}, s{sT0}, 6")
    e(f"s_add_u32 s{sT0}, s{sT0}, {WSA}")
    e(f"v_and_b32 v{vT1}, 15, v{vLANE}")
    e(f"v_lshl_add_u32 v{vT1}, v{vT1}, 2, s{sT0}")
c("raise the reference to the true running max; the accumulator is rescaled when pass 2 reaches this tile")
lab("L_k_slow")
e(f"s_cmp_lg_u32 s{sREDO}, 0")
e("s_cbranch_scc1 L_k_done")
e(f"s_mov_b32 s{sREDO}, 1")
e(f"v_max3_f32 v{vT0}, v{vS}, v{vS+1}, v{vS+2}")
e(f"v_max3_f32 v{vT1}, v{vS+3}, v{vS+4}, v{vS+5}")
e(f"v_max3_f32 v{vT0}, v{vT0}, v{vS+6}, v{vS+7}")
e(f"v_max_f32 v{vT0}, v{vT0}, v{vT1}")
e(f"v_mov_b32 v{vT1}, v{vT0}")
e("s_nop 1")
e(f"v_permlane32_swap_b32 v{vT0}, v{vT1}")
e("s_nop 0")
e(f"v_max_f32 v{vT0}, v{vT0}, v{vT1}")
e(f"v_mov_b32 v{vT1}, v{vT0}")
e("s_nop 1")
e(f"v_permlane16_swap_b32 v{vT0}, v{vT1}")
e("s_nop 0")
e(f"v_max_f32 v{vT0}, v{vT0}, v{vT1}")
e(f"v_mul_f32 v{vT0}, s{sCST}, v{vT0}")
e(f"v_max_f32 v{vMN}, v{vM}, v{vT0}")
e(f"v_sub_f32 v{vAL}, v{vM}, v{vMN}")
e(f"v_exp_f32 v{vAL}, v{vAL}")
e(f"v_mov_b32 v{vM}, v{vMN}")
e(f"s_cmp_lg_u32 s{sFIRST}, 0")
e(f"s_mov_b32 s{sFIRST}, 0")
e(f"v_mul_f32 v{vLS}, v{vLS}, v{vAL}")
e("s_cbranch_scc1 L_k_exp")
alpha_addr()
e(f"global_store_dword v{vT1}, v{vAL}, s[{sWS}:{sWS+1}]")
e(f"s_sub_u32 s{sT0}, s{sT}, 1")
e(f"s_bitset1_b64 s[{sRS}:{sRS+1}], s{sT0}")
e("s_branch L_k_exp")

RLO, RHI = 0xffffffff, (1 << (G - 32)) - 1
lab("L_k_noplan")
e(f"s_mov_b32 s{sPLN}, 1")
e(f"v_mov_b32 v{vT1}, {REC0}")
lab("L_k_plan")
e(f"ds_read_b128 v[{vT2}:{vT5}], v{vT1}")
e("s_waitcnt lgkmcnt(0)")
e(f"v_readfirstlane_b32 s{sT0}, v{vT5}")
e(f"v_readfirstlane_b32 s{sM}, v{vT2}")
e(f"v_readfirstlane_b32 s{sM+1}, v{vT3}")
e(f"v_readfirstlane_b32 s{sTTC}, v{vT4}")
e(f"s_cmp_lg_u32 s{sT0}, 0")
e("s_cbranch_scc1 L_k_got")
spin_tail("L_k_plan")
lab("L_k_got")
e(f"s_lshr_b32 s{sMT}, s{sT0}, 8")
e(f"s_add_u32 s{sMT}, s{sMT}, 1")
e(f"s_and_b32 s{sMRG}, s{sTTC}, {0 if 'nomerge' in DBG else 1}")
e(f"s_lshr_b32 s{sTTC}, s{sTTC}, 8")
e(f"s_min_u32 s{sTB1}, s{sTTC}, {G}")
e(f"s_bfm_b64 s[{sMALL}:{sMALL+1}], s{sNU}, 0")
e(f"s_or_b64 s[{sMALL}:{sMALL+1}], s[{sMALL}:{sMALL+1}], s[{sM}:{sM+1}]")
e(f"s_and_b32 s{sM+1}, s{sM+1}, {RHI:#x}")
e("s_branch L_k_first")
lab("L_v_more")
c("second batch")
e(f"s_mov_b32 s{sTB0}, s{sTB1}")
e(f"s_mov_b32 s{sTB1}, s{sTTC}")
e(f"s_mov_b32 s{sOFF}, s{sTB0}")
e(f"s_mov_b32 s{sMALL}, 0")
e(f"s_andn2_b32 s{sMALL+1}, s{sMALL+1}, {RHI:#x}")
e(f"s_mov_b64 s[{sM}:{sM+1}], s[{sMALL}:{sMALL+1}]")
e("s_branch L_k_first")
lab("L_k_empty")
e(f"s_cmp_eq_u32 s{sPLN}, 0")
e("s_cbranch_scc1 L_k_noplan")
e(f"s_mov_b32 s{sOFF}, s{sTB1}")
e(f"s_mov_b32 s{sM}, s{sMALL}")
e(f"s_and_b32 s{sM+1}, s{sMALL+1}, {RHI:#x}")
e(f"s_cmp_eq_u32 s{sTB0}, 0")
e(f"s_cselect_b32 s{sM+1}, s{sM+1}, s{sMALL+1}")
for x in NX + VA: e(x)
e(f"ds_read_b64 v[{vPL}:{vPL+1}], v{vPA}")
e(f"s_cmp_lt_i32 s{sTN}, 0")
e("s_cbranch_scc1 L_v_empty")
lab("L_v_next")
for x in ADV: e(x)
if a.last:
    e(f"s_cmp_eq_u64 s[{sM}:{sM+1}], 0")
    e("s_cbranch_scc1 L_v_islast")
lab("L_v_next2")
e(f"ds_read_b128 v[{vPN}:{vPN+3}], v{vPW}")
e("s_waitcnt lgkmcnt(1)")
e(f"v_readfirstlane_b32 s{sLND}, v{vPL}")
e(f"s_cmp_ge_i32 s{sLND}, s{sNK}")
e("s_cbranch_scc1 L_v_rd")
poll("L_v_poll")
lab("L_v_rd")
for x in VR: e(x)
out.append(".p2align 3")
lab("L_v_top")
for x in NX + VA: e(x)
e(f"s_sub_u32 s{sT0}, s{sT}, 1")
e(f"s_bitcmp1_b64 s[{sRS}:{sRS+1}], s{sT0}")
e("s_cbranch_scc1 L_v_resc")
lab("L_v_top2")
e("s_waitcnt lgkmcnt(14)")
e(f"v_readfirstlane_b32 s{sMBF}, v{vPL+1}")
e(f"v_readfirstlane_b32 s{sLND}, v{vPL}")
e(f"v_mov_b64 v[{vP}:{vP+1}], v[{vPN}:{vPN+1}]")
e(f"v_mov_b64 v[{vP+2}:{vP+3}], v[{vPN+2}:{vPN+3}]")
e(f"s_and_b32 s{sT0}, s{sMBF}, s{sMRG}")
e("s_cbranch_scc1 L_v_merge")
lab("L_v_top3")
e(f"s_cmp_ge_i32 s{sLND}, s{sNK}")
e("s_cbranch_scc0 L_v_pv")
e(ADV[2])
e("s_waitcnt lgkmcnt(0)")
e(f"ds_write_b32 v{vFW}, v{vFV}")
e(f"ds_read_b64 v[{vPL}:{vPL+1}], v{vPA}")
e(f"ds_read_b128 v[{vPN}:{vPN+3}], v{vPW}")
for i in range(8):
    e(PV[i]); e(VR[2*i]); e(VR[2*i+1])
e(ADV[0]); e(ADV[1]); e(ADV[3])
e("s_branch L_v_top")
lab("L_v_pv")
for i in range(8):
    if i: e(f"s_waitcnt lgkmcnt({14-2*i})")
    if i == 7:
        e(f"ds_write_b32 v{vFW}, v{vFV}")
        e(f"ds_read_b64 v[{vPL}:{vPL+1}], v{vPA}")
    e(PV[i])
e(f"s_cmp_ge_i32 s{sTN}, 0")
e("s_cbranch_scc1 L_v_next")
lab("L_v_empty")
e(f"s_cmp_lt_u32 s{sTB1}, s{sTTC}")
e("s_cbranch_scc1 L_v_more")
stamp(2)
e(f"s_cmp_lg_u32 s{sMRG}, 0")
e("s_cbranch_scc1 L_c_mwait0")
lab("L_c_store")
e(f"v_mov_b32 v{vT0}, v{vLS}")
e(f"v_and_b32 v{vT2}, 15, v{vLANE}")
e(f"v_lshl_add_u32 v{vT2}, v{vT2}, 8, s{sQO}")
e(f"v_permlane32_swap_b32 v{vLS}, v{vT0}")
e("s_nop 0")
e(f"v_add_f32 v{vLS}, v{vLS}, v{vT0}")
e(f"v_mov_b32 v{vT0}, v{vLS}")
e(f"v_lshl_add_u32 v{vT2}, v{vG}, 4, v{vT2}")
e("s_nop 0")
e(f"v_permlane16_swap_b32 v{vLS}, v{vT0}")
e("s_nop 0")
e(f"v_add_f32 v{vLS}, v{vLS}, v{vT0}")
e(f"v_rcp_f32 v{vMN}, v{vLS}")
e(f"s_cmp_lg_u32 s{sROLE}, 0")
scale_o(vMN)
for r in range(16):
    e(f"v_cvt_pk_bf16_f32 v{vKF+r}, v{vO+2*r}, v{vO+2*r+1}")
e("s_cbranch_scc1 L_publish")
def out_stores(fl, step=64):
    for j in range(4):
        e(f"global_store_dwordx4 v{vT2}, v[{vKF+4*j}:{vKF+4*j+3}], s[{sOUT}:{sOUT+1}] offset:{step*j}{fl}")
out_stores(OST)
e(FIN)

def l_total():
    e(f"v_mov_b32 v{vT0}, v{vLS}")
    e(f"v_and_b32 v{vT2}, 15, v{vLANE}")
    e(f"v_lshl_add_u32 v{vT2}, v{vT2}, 8, s{sQO}")
    e(f"v_permlane32_swap_b32 v{vLS}, v{vT0}")
    e("s_nop 0")
    e(f"v_add_f32 v{vLS}, v{vLS}, v{vT0}")
    e(f"v_mov_b32 v{vT0}, v{vLS}")
    e(f"v_lshl_add_u32 v{vT2}, v{vG}, 4, v{vT2}")
    e("s_nop 0")
    e(f"v_permlane16_swap_b32 v{vLS}, v{vT0}")
    e("s_nop 0")
    e(f"v_add_f32 v{vLS}, v{vLS}, v{vT0}")
    e(f"v_rcp_f32 v{vMN}, v{vLS}")
if a.last:
    lab("L_v_islast")
    c("closing tile of an owner with nothing pending: take the short path")
    e(f"s_sub_u32 s{sT0}, s{sTTC}, s{sTB1}")
    e(f"s_or_b32 s{sT0}, s{sT0}, s{sMRG}")
    e(f"s_or_b32 s{sT0}, s{sT0}, s{sROLE}")
    e(f"s_or_b32 s{sT0}, s{sT0}, s{sRS}")
    e(f"s_or_b32 s{sT0}, s{sT0}, s{sRS+1}")
    e("s_cbranch_scc1 L_v_next2")
    e(f"ds_read_b128 v[{vP}:{vP+3}], v{vPW}")
    e(f"ds_read_b64 v[{vPL}:{vPL+1}], v{vPA}")
    l_total()
    e("s_waitcnt lgkmcnt(0)")
    e(f"v_readfirstlane_b32 s{sLND}, v{vPL}")
    e(f"s_cmp_ge_i32 s{sLND}, s{sNK}")
    e("s_cbranch_scc1 L_v_lrd")
    poll("L_v_lpoll")
    lab("L_v_lrd")
    for x in VR: e(x)
    def fin_j(j):
        r = []
        for k in range(4):
            q = vO + 8 * j + 2 * k
            r.append(f"v_pk_mul_f32 v[{q}:{q+1}], v[{q}:{q+1}], v[{vMN}:{vMN+1}] op_sel_hi:[1,0]")
        for k in range(4):
            r.append(f"v_cvt_pk_bf16_f32 v{vKF+4*j+k}, v{vO+8*j+2*k}, v{vO+8*j+2*k+1}")
        r.append(f"global_store_dwordx4 v{vT2}, v[{vKF+4*j}:{vKF+4*j+3}], s[{sOUT}:{sOUT+1}] offset:{64*j}{OST}")
        return r
    f0 = fin_j(0)
    for i in range(8):
        e(f"s_waitcnt lgkmcnt({14-2*i})")
        e(PV[i])
        if i == 5: e(f0[0]); e(f0[1])
        if i == 6: e(f0[2]); e(f0[3])
    stamp(2)
    for x in f0[4:] + fin_j(1) + fin_j(2) + fin_j(3): e(x)
    e(f"ds_write_b32 v{vFW}, v{vFV}")
    e(FIN)

lab("L_v_resc")
e(f"s_bitset0_b64 s[{sRS}:{sRS+1}], s{sT0}")
alpha_addr()
e("s_waitcnt vmcnt(0)")
e(f"global_load_dword v{vAL}, v{vT1}, s[{sWS}:{sWS+1}] sc1")
e("s_waitcnt vmcnt(0)")
scale_o(vAL)
e("s_branch L_v_top2")

lab("L_v_merge")
c("only once no rescale is pending; the reference max stays, so the partial's max must not be far above it")
e(f"s_cmp_eq_u64 s[{sRS}:{sRS+1}], 0")
e("s_cbranch_scc0 L_v_top3")
lab("L_c_merge")
e(f"s_mul_i32 s{sT0}, s{sCI}, {MBS}")
e(f"s_add_u32 s{sT0}, s{sT0}, {MB}")
e(f"v_and_b32 v{vT1}, 15, v{vLANE}")
e(f"v_lshl_add_u32 v{vT0}, v{vLANE}, 4, s{sT0}")
e(f"v_lshl_add_u32 v{vT1}, v{vT1}, 3, s{sT0}")
e("s_waitcnt lgkmcnt(0)")
e(f"ds_write_b32 v{vFW}, v{vFV}")
e(f"ds_read_b64 v[{vT4}:{vT5}], v{vT1} offset:4096")
for i in range(4):
    e(f"ds_read_b128 v[{vKF+4*i}:{vKF+4*i+3}], v{vT0} offset:{1024*i}")
e(f"s_cmp_eq_u32 s{sPLN}, 2")
e("s_waitcnt lgkmcnt(0)")
e("s_cbranch_scc1 L_c_mfin")
e(f"v_sub_f32 v{vT4}, v{vT4}, v{vM}")
e(f"v_cmp_nge_f32 vcc, 0x41800000, v{vT4}")
e(f"s_mov_b32 s{sMRG}, 2")
e("s_nop 3")
e("s_cbranch_vccnz L_v_top3")
e("s_branch L_c_madd")
lab("L_c_mfin")
e(f"v_max_f32 v{vMN}, v{vM}, v{vT4}")
e(f"v_sub_f32 v{vAL}, v{vM}, v{vMN}")
e(f"v_sub_f32 v{vT4}, v{vT4}, v{vMN}")
e(f"v_exp_f32 v{vAL}, v{vAL}")
e("s_nop 0")
e(f"v_mul_f32 v{vLS}, v{vLS}, v{vAL}")
scale_o(vAL)
lab("L_c_madd")
e(f"v_exp_f32 v{vT4}, v{vT4}")
e(f"s_mov_b32 s{sMRG}, 0")
e(f"v_mul_f32 v{vT4}, v{vT4}, v{vT5}")
e(f"v_fmac_f32 v{vLS}, 0x3e800000, v{vT4}")
for r in range(16):
    t = vKF + 16 + 2 * (r % 4)
    e(f"v_lshlrev_b32 v{t}, 16, v{vKF+r}")
    e(f"v_and_b32 v{t+1}, 0xffff0000, v{vKF+r}")
    e(f"v_pk_fma_f32 v[{vO+2*r}:{vO+2*r+1}], v[{t}:{t+1}], v[{vT4}:{vT4+1}], v[{vO+2*r}:{vO+2*r+1}] op_sel_hi:[1,0,1]")
e(f"s_cmp_eq_u32 s{sPLN}, 2")
e("s_cbranch_scc0 L_v_top3")
e("s_branch L_c_store")
lab("L_c_mwait0")
e(f"s_mov_b32 s{sPLN}, 2")
lab("L_c_mwait")
e(f"ds_read_b64 v[{vPL}:{vPL+1}], v{vPA}")
e("s_waitcnt lgkmcnt(0)")
e(f"v_readfirstlane_b32 s{sMBF}, v{vPL+1}")
e(f"s_cmp_lg_u32 s{sMBF}, 0")
e("s_cbranch_scc1 L_c_merge")
spin_tail("L_c_mwait")

def ws_base(sb):
    e(f"s_lshl3_add_u32 s{sT0}, s{sb}, s{sH}")
    e(f"s_lshl_b32 s{sT0}, s{sT0}, 9")
    if WS0: e(f"s_add_u32 s{sT0}, s{sT0}, {WS0}")

lab("L_publish")
if "nopub" in DBG: e("s_endpgm")
e(f"v_lshl_add_u32 v{vT2}, v{vLANE}, 4, s{sQO}")
e(f"s_lshl_b32 s{sT2}, s{sPB}, 2")
e(f"v_mov_b32 v{vT3}, s{sT2}")
e(f"v_lshlrev_b32 v{vT4}, 1, v{vT3}")
e(f"v_add_u32 v{vT4}, {CTRL+68}, v{vT4}")
e(f"ds_read_b32 v{vT4}, v{vT4}")
ws_base(sPB)
e(f"s_lshl2_add_u32 s{sT1}, s{sCI}, s{sT0}")
e(f"v_mov_b32 v{vT5}, s{sT1}")
e(f"s_lshl_b32 s{sT1}, s{sCI}, 7")
e(f"s_add_u32 s{sT0}, s{sT0}, s{sT1}")
e(f"v_lshl_add_u32 v{vT1}, v{vLANE}, 3, s{sT0}")
e(f"s_getreg_b32 s{sT2}, hwreg(HW_REG_XCC_ID, 0, 4)")
e(f"s_lshl_b32 s{sT2}, s{sT2}, 4")
e(f"s_or_b32 s{sT2}, s{sT2}, s{sH}")
e(f"s_or_b32 s{sT2}, s{sT2}, 0x100")
e("s_waitcnt lgkmcnt(0)")
e(f"v_readfirstlane_b32 s{sT1}, v{vT4}")
e(f"s_lshr_b32 s{sT1}, s{sT1}, 16")
e(f"s_cmp_eq_u32 s{sT1}, s{sT2}")
e("s_cbranch_scc1 L_pub_fast")
e(f"global_load_dword v{vT4}, v{vT3}, s[{sDBG}:{sDBG+1}] offset:128 sc1")
e("s_waitcnt vmcnt(0)")
e(f"v_readfirstlane_b32 s{sT1}, v{vT4}")
e(f"s_lshr_b32 s{sT1}, s{sT1}, 16")
e(f"s_cmp_eq_u32 s{sT1}, s{sT2}")
e("s_cbranch_scc0 L_pub_slow")
lab("L_pub_fast")
c("the receiver runs on this die and has cleared its flag words: hand over inside the shared L2")
out_stores("", 1024)
e("s_mov_b64 exec, 0xffff")
e(f"global_store_dwordx2 v{vT1}, v[{vM}:{vM+1}], s[{sWS}:{sWS+1}]")
e(f"v_mov_b32 v{vT4}, 1")
e("s_waitcnt vmcnt(0)")
e("s_mov_b64 exec, 1")
e(f"global_store_dword v{vT5}, v{vT4}, s[{sWS}:{sWS+1}] offset:256")
e(FIN)
lab("L_pub_slow")
c("any other placement: write through to memory, then set a bit with a device-wide atomic")
out_stores(" sc1", 1024)
e("s_mov_b64 exec, 0xffff")
e(f"global_store_dwordx2 v{vT1}, v[{vM}:{vM+1}], s[{sWS}:{sWS+1}] sc1")
e(f"s_lshl1_add_u32 s{sT1}, s{sH}, s{sCI}")
e(f"s_lshl_b32 s{sT1}, 1, s{sT1}")
e(f"v_mov_b32 v{vT4}, s{sT1}")
e("s_waitcnt vmcnt(0)")
e("s_mov_b64 exec, 1")
e(f"global_atomic_add v{vT3}, v{vT4}, s[{sDBG}:{sDBG+1}]")
e(FIN)

vRW = vL
vKEY, vRK = 19, 20
lab("L_ctl0")
if a.skew:
    c("dies are not started at the same instant: the first eight workgroups post when they started")
    e(f"s_memrealtime s[{sMA}:{sMA+1}]")
    e(f"s_lshl2_add_u32 s{sT0}, s{sH}, 2")
    e(f"v_mov_b32 v{vT4}, s{sT0}")
    e(f"s_cmp_lg_u32 s{sB}, 0")
    e("s_waitcnt lgkmcnt(0)")
    e("s_cbranch_scc1 L_ctl1")
    e(f"s_or_b32 s{sT0}, s{sMA}, 0x8000")
    e(f"v_mov_b32 v{vT5}, s{sT0}")
    e("s_mov_b64 exec, 1")
    e(f"global_store_short v{vT4}, v{vT5}, s[{sDBG}:{sDBG+1}] sc1")
    e("s_mov_b64 exec, -1")
    lab("L_ctl1")
e("s_barrier")
e("s_branch L_ctl")
lab("L_planner")
e(f"s_cmp_eq_u32 s{sW}, 5")
e("s_cbranch_scc1 L_ctl0")
e(f"s_sub_u32 s{sCI}, s{sW}, 3")
e(f"s_lshl_b32 s{sSB}, s{sCI}, 8")
e(f"s_add_u32 s{sSB}, s{sSB}, {CNT}")
e(f"v_lshl_add_u32 v{vPA}, v{vLANE}, 2, s{sSB}")
e(f"s_lshl_b32 s{sT2}, s{sCI}, 7")
e(f"s_add_u32 s{sT2}, s{sT2}, {KEYS}")
e(f"v_add_u32 v{vT3}, s{sT2}, v{vT3}")
e(f"v_lshrrev_b32 v{vT4}, 5, v{vLANE}")
e(f"v_lshl_add_u32 v{vT4}, v{vT4}, 6, s{sT2}")
e(f"v_mov_b32 v{vT5}, 2048")
e("s_barrier")
e("s_waitcnt vmcnt(0)")
e(f"v_cmp_gt_i32 s[{sZQ}:{sZQ+1}], 1, v{vN}")
e(f"v_min_i32 v{vN}, v{vN}, v{vT5}")
e("s_nop 0")
e(f"v_cndmask_b32 v{vN}, v{vN}, v{vT5}, s[{sZQ}:{sZQ+1}]")
e(f"v_add_u32 v{vN}, 15, v{vN}")
e(f"v_lshrrev_b32 v{vN}, 4, v{vN}")
e(f"v_lshl_or_b32 v{vKEY}, v{vN}, 5, v{vT0}")
e(f"ds_write_b32 v{vT3}, v{vKEY}")
for i in range(4):
    e(f"ds_read_b128 v[{vKF+4*i}:{vKF+4*i+3}], v{vT4} offset:{16*i}")
e(f"v_mov_b32 v{vRK}, 0")
e(f"v_readlane_b32 s{sNB}, v{vN}, s{sB}")
e("s_waitcnt lgkmcnt(0)")
c("rank of every batch by block count; the batch of rank 31-r is the partner")
for i in range(16):
    e(f"v_sub_u32 v{vKF+i}, v{vKF+i}, v{vKEY}")
for i in range(16):
    e(f"v_alignbit_b32 v{vRK}, v{vRK}, v{vKF+i}, 31")
e(f"v_bcnt_u32_b32 v{vRK}, v{vRK}, 0")
e(f"v_mov_b32 v{vT2}, v{vRK}")
derive_nb()
e(f"v_permlane32_swap_b32 v{vRK}, v{vT2}")
e("s_nop 0")
e(f"v_add_u32 v{vRK}, v{vRK}, v{vT2}")
e("s_nop 0")
e(f"v_readlane_b32 s{sRK}, v{vRK}, s{sB}")
e(f"s_sub_u32 s{sT0}, 31, s{sRK}")
e(f"v_cmp_eq_u32 vcc, s{sT0}, v{vRK}")
e(f"s_ff1_i32_b32 s{sPB}, vcc_lo")
e(f"v_readlane_b32 s{sNP}, v{vN}, s{sPB}")
e(f"s_max_u32 s{sT0}, s{sNB}, s{sNP}")
e(f"s_min_u32 s{sT1}, s{sNB}, s{sNP}")
e(f"s_sub_u32 s{sX}, s{sT0}, s{sT1}")
e(f"s_add_u32 s{sX}, s{sX}, 2")
e(f"s_lshr_b32 s{sX}, s{sX}, 2")
e(f"s_cmp_lt_u32 s{sT0}, {4*NUM+8}")
e(f"s_cselect_b32 s{sX}, 0, s{sX}")
if a.nopair: e(f"s_mov_b32 s{sX}, 0")
e(f"s_cmp_ge_u32 s{sRK}, 16")
e(f"s_cselect_b32 s{sLO}, s{sX}, 0")
e(f"s_cselect_b32 s{sTB}, 0, s{sX}")
e(f"s_cmp_eq_u32 s{sCI}, 0")
e("s_cbranch_scc1 L_pl_norow")
e(f"s_lshl_b32 s{sT0}, s{sPB}, 9")
e(f"v_lshl_add_u32 v{vT1}, v{vLANE}, 3, s{sT0}")
e(f"global_load_dwordx2 v[{vRW}:{vRW+1}], v{vT1}, s[{sBT}:{sBT+1}]")
lab("L_pl_norow")
e(f"s_sub_u32 s{sTA}, s{sNTL}, s{sLO}")
e(f"s_add_u32 s{sT}, s{sTA}, s{sTB}")
e(f"s_mul_i32 s{sF}, s{sT}, {a.fnum}")
e(f"s_lshr_b32 s{sF}, s{sF}, 6")
e(f"s_min_u32 s{sWB}, s{sTA}, {a.UB}")
e(f"s_sub_i32 s{sF}, s{sF}, s{sWB}")
e(f"s_max_i32 s{sF}, s{sF}, s{sTB}")
e(f"s_max_i32 s{sF}, s{sF}, 1")
e(f"v_cvt_f32_u32 v{vT2}, s{sF}")
e(f"v_subrev_u32 v{vT3}, s{sWB}, v{vLANE}")
e(f"v_rcp_f32 v{vT2}, v{vT2}")
e(f"v_mul_i32_i24 v{vT4}, s{sTB}, v{vT3}")
e(f"v_add_u32 v{vT5}, s{sTB}, v{vT4}")
e(f"v_cvt_f32_i32 v{vT4}, v{vT4}")
e(f"v_cvt_f32_i32 v{vT5}, v{vT5}")
e(f"v_add_f32 v{vT4}, 0.5, v{vT4}")
e(f"v_add_f32 v{vT5}, 0.5, v{vT5}")
e(f"v_mul_f32 v{vT4}, v{vT4}, v{vT2}")
e(f"v_mul_f32 v{vT5}, v{vT5}, v{vT2}")
e(f"v_floor_f32 v{vT4}, v{vT4}")
e(f"v_floor_f32 v{vT5}, v{vT5}")
e(f"v_cmp_gt_u32 vcc, s{sF}, v{vT3}")
e(f"v_cmp_gt_f32 s[{sMBK}:{sMBK+1}], v{vT5}, v{vT4}")
e(f"s_sub_u32 s{sT0}, s{sT}, s{sNU}")
e(f"v_subrev_u32 v{vT3}, s{sNU}, v{vLANE}")
e(f"v_cmp_gt_u32 s[{sMA}:{sMA+1}], s{sT0}, v{vT3}")
e(f"s_and_b64 s[{sMBK}:{sMBK+1}], s[{sMBK}:{sMBK+1}], vcc")
e(f"s_andn2_b64 s[{sMA}:{sMA+1}], s[{sMA}:{sMA+1}], s[{sMBK}:{sMBK+1}]")
c(f"own tiles to sort: logical [NU+given, ntile); donated: the partner's logical [{NUM}, {NUM}+TB)")
mfirst = a.mfirst and not a.nosort
if mfirst:
    e(f"s_ff1_i32_b64 s{sT2}, s[{sMA}:{sMA+1}]")
else:
    e(f"s_flbit_i32_b64 s{sT2}, s[{sMA}:{sMA+1}]")
    e(f"s_sub_u32 s{sT2}, 63, s{sT2}")
e(f"s_lshl_b32 s{sT2}, s{sT2}, 8")
e(f"s_or_b32 s{sWB}, s{sT2}, 1")
e(f"s_min_u32 s{sMRG}, s{sLO}, 1")
e(f"s_add_u32 s{sLO}, s{sLO}, s{sNU}")
e(f"s_sub_u32 s{sHI}, s{sNTL}, s{sLO}")
e(f"s_sub_u32 s{sT3}, s{sNTL}, 1")
e(f"s_mov_b32 s{sLBASE}, {LA}")
e(f"s_cmp_eq_u32 s{sCI}, 0")
e("s_cbranch_scc1 L_pl_a")
e(f"s_mov_b32 s{sLO}, {NUM}")
e(f"s_mov_b32 s{sHI}, s{sTB}")
e(f"s_mov_b32 s{sT3}, -1")
e(f"s_mov_b32 s{sLBASE}, {LB}")
e(f"s_mov_b64 s[{sMA}:{sMA+1}], s[{sMBK}:{sMBK+1}]")
e("s_branch L_pl_sort")
lab("L_pl_a")
e(f"s_lshl_b32 s{sT0}, s{sT}, 8")
e(f"s_or_b32 s{sT0}, s{sT0}, s{sMRG}")
e(f"v_mov_b32 v{vT2}, s{sMA}")
e(f"v_mov_b32 v{vT3}, s{sMA+1}")
e(f"v_mov_b32 v{vT4}, s{sT0}")
e(f"v_mov_b32 v{vT5}, s{sWB}")
e(f"v_mov_b32 v{vT1}, {REC0}")
e(f"ds_write_b128 v{vT1}, v[{vT2}:{vT5}]")
lab("L_pl_sort")
e(f"v_subrev_u32 v{vT0}, s{sLO}, v{vLANE}")
e(f"v_cmp_gt_u32 vcc, s{sHI}, v{vT0}")
e(f"v_mov_b32 v{vT5}, 1")
e("s_waitcnt vmcnt(0)")
if a.nosort:
    e(f"v_lshlrev_b32 v{vT2}, 1, v{vT0}")
    e(f"v_add_u32 v{vT3}, 1, v{vT2}")
else:
    c("counting sort of the block ids into 64 buckets of ascending physical address")
    e(f"v_lshrrev_b32 v{vT0}, 6, v{vRW}")
    e(f"v_lshrrev_b32 v{vT1}, 6, v{vRW+1}")
    e(f"v_cmp_eq_u32 s[{sRK+2}:{sRK+3}], s{sT3}, v{vLANE}")
    if mfirst:
        e(f"v_med3_u32 v{vT0}, v{vT0}, 1, 63")
        e(f"v_med3_u32 v{vT1}, v{vT1}, 1, 63")
    else:
        e(f"v_min_u32 v{vT0}, 62, v{vT0}")
        e(f"v_min_u32 v{vT1}, 62, v{vT1}")
    fb = 0 if mfirst else 63
    e(f"v_cndmask_b32 v{vT0}, v{vT0}, {fb}, s[{sRK+2}:{sRK+3}]")
    e(f"v_cndmask_b32 v{vT1}, v{vT1}, {fb}, s[{sRK+2}:{sRK+3}]")
    e(f"v_lshlrev_b32 v{vT0}, 2, v{vT0}")
    e(f"v_lshlrev_b32 v{vT1}, 2, v{vT1}")
    e(f"v_add_u32 v{vKF}, s{sSB}, v{vT0}")
    e(f"v_add_u32 v{vKF+1}, s{sSB}, v{vT1}")
    e("s_mov_b64 exec, vcc")
    e(f"ds_add_rtn_u32 v{vT2}, v{vKF}, v{vT5}")
    e(f"ds_add_rtn_u32 v{vT3}, v{vKF+1}, v{vT5}")
    e("s_mov_b64 exec, -1")
    e(f"ds_read_b32 v{vT4}, v{vPA}")
    e("s_waitcnt lgkmcnt(0)")
    e(f"v_mov_b32 v{vKF+2}, v{vT4}")
    for sh in (1, 2, 4, 8):
        e("s_nop 1")
        e(f"v_add_u32_dpp v{vT4}, v{vT4}, v{vT4} row_shr:{sh} row_mask:0xf bank_mask:0xf bound_ctrl:0")
    e("s_nop 1")
    e(f"v_add_u32_dpp v{vT4}, v{vT4}, v{vT4} row_bcast:15 row_mask:0xa bank_mask:0xf")
    e("s_nop 1")
    e(f"v_add_u32_dpp v{vT4}, v{vT4}, v{vT4} row_bcast:31 row_mask:0xc bank_mask:0xf")
    e(f"v_sub_u32 v{vT4}, v{vT4}, v{vKF+2}")
    e(f"ds_bpermute_b32 v{vT0}, v{vT0}, v{vT4}")
    e(f"ds_bpermute_b32 v{vT1}, v{vT1}, v{vT4}")
    e("s_waitcnt lgkmcnt(0)")
    e(f"v_add_u32 v{vT2}, v{vT2}, v{vT0}")
    e(f"v_add_u32 v{vT3}, v{vT3}, v{vT1}")
e(f"v_lshlrev_b32 v{vRW}, 15, v{vRW}")
e(f"v_lshlrev_b32 v{vRW+1}, 15, v{vRW+1}")
e(f"v_lshl_add_u32 v{vT2}, v{vT2}, 2, s{sLBASE}")
e(f"v_lshl_add_u32 v{vT3}, v{vT3}, 2, s{sLBASE}")
e("s_mov_b64 exec, vcc")
e(f"ds_write_b32 v{vT2}, v{vRW}")
e(f"ds_write_b32 v{vT3}, v{vRW+1}")
e("s_mov_b64 exec, -1")
c("place the sorted tiles at their stream positions; flags: 1 valid, 2 masked, 4 last of batch, 8 last of stream")
e(f"v_mbcnt_lo_u32_b32 v{vT0}, s{sMA}, 0")
e(f"v_mbcnt_hi_u32_b32 v{vT0}, s{sMA+1}, v{vT0}")
e(f"v_lshl_add_u32 v{vT0}, v{vT0}, 3, s{sLBASE}")
e(f"ds_read_b64 v[{vT2}:{vT3}], v{vT0}")
e(f"s_lshr_b32 s{sT0}, s{sWB}, 8")
e(f"s_sub_u32 s{sT1}, s{sT}, 1")
e(f"v_cmp_eq_u32 vcc, s{sT0}, v{vLANE}")
e(f"v_cmp_eq_u32 s[{sRK+2}:{sRK+3}], s{sT1}, v{vLANE}")
e(f"v_cmp_eq_u32 s[{sT2}:{sT2+1}], {G-1}, v{vLANE}")
e(f"v_cndmask_b32 v{vT4}, 1, 3, vcc")
e(f"v_cndmask_b32 v{vT5}, 0, 12, s[{sRK+2}:{sRK+3}]")
e(f"v_cndmask_b32 v{vT1}, 0, 4, s[{sT2}:{sT2+1}]")
e(f"v_or3_b32 v{vT4}, v{vT4}, v{vT5}, v{vT1}")
e(f"v_lshlrev_b32 v{vT0}, 3, v{vLANE}")
e(f"v_add_u32 v{vT0}, {SL}, v{vT0}")
e("s_waitcnt lgkmcnt(0)")
e(f"v_or_b32 v{vT2}, v{vT2}, v{vT4}")
e(f"s_mov_b64 exec, s[{sMA}:{sMA+1}]")
e(f"ds_write_b64 v{vT0}, v[{vT2}:{vT3}]")
e("s_mov_b64 exec, -1")
lab("L_pl_done")
e(f"s_cmp_lg_u32 s{sMRG}, 0")
e("s_cbranch_scc1 L_fetch")
e(f"s_cmp_eq_u32 s{sTB}, 0")
e("s_cbranch_scc1 L_fin")
c("become the consumer of the donated tiles")
load_q(sPB)
e(f"s_mov_b64 s[{sMALL}:{sMALL+1}], s[{sMBK}:{sMBK+1}]")
e(f"s_mov_b32 s{sM}, s{sMBK}")
e(f"s_and_b32 s{sM+1}, s{sMBK+1}, {RHI:#x}")
e(f"s_mov_b32 s{sTTC}, s{sT}")
e(f"s_min_u32 s{sTB1}, s{sT}, {G}")
e(f"s_mov_b32 s{sROLE}, 1")
e(f"s_mov_b32 s{sPLN}, 1")
e(f"s_lshr_b32 s{sT3}, s{sZQ}, s{sPB}")
e(f"s_and_b32 s{sT3}, s{sT3}, 1")
e("s_branch L_csetup")

lab("L_fetch")
e(f"s_cmp_lg_u32 s{sCI}, 0")
e("s_cbranch_scc1 L_fin")
rows_off(sB)
if a.otouch >= 0:
    c("make the lines that will carry the partial valid in L2 (a later read of write-only lines would go to memory)")
    e(f"v_lshl_add_u32 v{vT4}, v{vLANE}, 7, s{sQO}")
    e(f"global_load_dword v{vPF}, v{vT4}, s[{sOUT}:{sOUT+1}] {a.ofl.replace('+', ' ')}")
ws_base(sB)
e(f"v_lshl_add_u32 v{vT1}, v{vT0}, 3, s{sT0}")
e(f"v_mov_b32 v{vFW}, s{sT0}")
e(f"s_lshl_b32 s{sT2}, s{sB}, 2")
e(f"v_mov_b32 v{vT2}, s{sT2}")
e(f"v_mov_b32 v{vPA}, {CTRL+16}")
e("s_mov_b64 exec, 1")
e(f"s_mul_i32 s{sNEED}, s{sT}, {a.pollnum}")
e(f"s_lshr_b32 s{sNEED}, s{sNEED}, 5")
e(f"s_lshl_b32 s{sT3}, s{sH}, 1")
e(f"s_mov_b32 s{sMBF}, 0")
c("wait until wave 5 has cleared the flag words and the stream is far enough")
lab("L_f_wait")
e(f"ds_read_b64 v[{vPL}:{vPL+1}], v{vPA}")
e("s_waitcnt lgkmcnt(0)")
e(f"v_readfirstlane_b32 s{sLND}, v{vPL}")
e(f"v_readfirstlane_b32 s{sT0}, v{vPL+1}")
e(f"s_cmp_ge_i32 s{sLND}, s{sNEED}")
e(f"s_cselect_b32 s{sT0}, s{sT0}, 0")
e(f"s_cmp_lg_u32 s{sT0}, 0")
e("s_cbranch_scc1 L_f_poll")
spin_tail("L_f_wait", 8)
lab("L_f_poll")
if "nopoll" in DBG: e("s_branch L_f_got")
e(f"global_load_dwordx2 v[{vPL}:{vPL+1}], v{vFW}, s[{sWS}:{sWS+1}] offset:256 sc1")
e(f"s_add_u32 s{sMBF}, s{sMBF}, 1")
e(f"s_and_b32 s{sT0}, s{sMBF}, 3")
e(f"s_mov_b32 s{sT2}, 0")
e("s_cbranch_scc1 L_f_nodbg")
e(f"global_load_dword v{vT3}, v{vT2}, s[{sDBG}:{sDBG+1}] sc1")
e("s_waitcnt vmcnt(0)")
e(f"v_readfirstlane_b32 s{sT2}, v{vT3}")
e(f"s_lshr_b32 s{sT2}, s{sT2}, s{sT3}")
lab("L_f_nodbg")
e("s_waitcnt vmcnt(0)")
e(f"v_lshl_or_b32 v{vPL}, v{vPL+1}, 1, v{vPL}")
e("s_nop 0")
e(f"v_readfirstlane_b32 s{sT0}, v{vPL}")
e(f"s_or_b32 s{sT0}, s{sT0}, s{sT2}")
e(f"s_and_b32 s{sT0}, s{sT0}, 3")
e(f"s_cmp_eq_u32 s{sT0}, 3")
e("s_cbranch_scc1 L_f_got")
spin_tail("L_f_poll", a.psleep)
lab("L_f_got")
e("s_mov_b64 exec, -1")
e(f"v_lshl_add_u32 v{vT4}, v{vLANE}, 4, s{sQO}")
e(f"v_add_u32 v{vT5}, 4096, v{vT4}")
FLD = " " + a.fld if a.fld != "none" else ""
for cc in range(2):
    if "nofetch" in DBG:
        e(f"v_mov_b32 v{vM+2*cc}, 0"); e(f"v_mov_b32 v{vM+2*cc+1}, 0")
        continue
    e(f"global_load_dwordx2 v[{vM+2*cc}:{vM+2*cc+1}], v{vT1}, s[{sWS}:{sWS+1}] offset:{128*cc}{FLD}")
    for j in range(4):
        r = vKF + 16 * cc + 4 * j
        e(f"global_load_dwordx4 v[{r}:{r+3}], v{vT4+cc}, s[{sOUT}:{sOUT+1}] offset:{1024*j}{FLD}")
e(f"v_lshlrev_b32 v{vT2}, 4, v{vLANE}")
e(f"v_add_u32 v{vT2}, {MB}, v{vT2}")
e(f"v_lshlrev_b32 v{vT0}, 3, v{vT0}")
e(f"v_add_u32 v{vT0}, {MB}, v{vT0}")
e(f"v_mov_b32 v{vPL}, {CTRL+4}")
e(f"v_mov_b32 v{vT3}, 1")
for cc in range(2):
    e(f"s_waitcnt vmcnt({5-5*cc})")
    for j in range(4):
        r = vKF + 16 * cc + 4 * j
        e(f"ds_write_b128 v{vT2}, v[{r}:{r+3}] offset:{MBS*cc + 1024*j}")
    e(f"ds_write_b64 v{vT0}, v[{vM+2*cc}:{vM+2*cc+1}] offset:{MBS*cc + 4096}")
    e(f"ds_write_b32 v{vPL}, v{vT3} offset:{8*cc}")
e(FIN)

c("wave 5: workgroups that share an L2 post their remaining work; one that lags prefetches deeper")
lab("L_ctl")
e(f"v_mov_b32 v{vT1}, {REC0}")
e(f"v_mov_b32 v{vPA}, {CTRL+32}")
e(f"v_mov_b32 v{vFW}, {DEPW}")
e(f"s_lshl_b32 s{sT0}, s{sB}, 2")
e(f"v_mov_b32 v{vG}, s{sT0}")
e(f"v_mov_b32 v{vFV}, v{vT3}")
lo = sum((XT[i] & 255) << (8 * i) for i in range(4)); hi = sum((XT[4 + i] & 255) << (8 * i) for i in range(4))
e(f"s_getreg_b32 s{sT0}, hwreg(HW_REG_XCC_ID, 0, 3)")
e(f"s_mov_b32 s{sM}, {lo:#x}")
e(f"s_mov_b32 s{sM+1}, {hi:#x}")
e(f"s_lshl_b32 s{sT0}, s{sT0}, 3")
e(f"s_lshr_b64 s[{sM}:{sM+1}], s[{sM}:{sM+1}], s{sT0}")
e(f"s_sext_i32_i8 s{sBO}, s{sM}")
lab("L_g_plan")
e(f"ds_read_b128 v[{vT2}:{vT5}], v{vT1}")
e("s_waitcnt lgkmcnt(0)")
e(f"v_readfirstlane_b32 s{sT0}, v{vT5}")
e(f"v_readfirstlane_b32 s{sT}, v{vT4}")
e(f"s_cmp_lg_u32 s{sT0}, 0")
e("s_cbranch_scc1 L_g_go")
spin_tail("L_g_plan", 8)
lab("L_g_go")
e(f"s_and_b32 s{sMRG}, s{sT}, 1")
e("s_cbranch_scc0 L_g_nores")
c("a partial is expected: clear its flag words before anything is posted")
ws_base(sB)
e(f"v_mov_b32 v{vT0}, s{sT0}")
e(f"v_mov_b32 v{vT2}, 0")
e(f"v_mov_b32 v{vT3}, 0")
e(f"v_mov_b32 v{vT4}, {CTRL+20}")
e(f"v_mov_b32 v{vT5}, 1")
e("s_mov_b64 exec, 1")
e(f"global_store_dwordx2 v{vT0}, v[{vT2}:{vT3}], s[{sWS}:{sWS+1}] offset:256")
e("s_waitcnt vmcnt(0)")
e(f"ds_write_b32 v{vT4}, v{vT5}")
e("s_mov_b64 exec, -1")
lab("L_g_nores")
e(f"s_and_b32 s{sT0}, s{sDBG}, 127")
e("s_cbranch_scc1 L_fin")
c("posted word: remaining units + 1 | head << 16 | die << 20 | flags cleared << 24")
e(f"s_getreg_b32 s{sFB}, hwreg(HW_REG_XCC_ID, 0, 4)")
e(f"s_lshl4_add_u32 s{sFB}, s{sMRG}, s{sFB}")
e(f"s_lshl4_add_u32 s{sFB}, s{sFB}, s{sH}")
e(f"s_lshl_b32 s{sFB}, s{sFB}, 16")
e(f"s_lshr_b32 s{sT}, s{sT}, 8")
e(f"s_lshl1_add_u32 s{sTN}, s{sT}, 1")
e(f"v_lshlrev_b32 v{vT1}, 1, v{vFV}")
e(f"v_add_u32 v{vT1}, {CTRL+68}, v{vT1}")
e(f"v_mov_b32 v{vT2}, s{sFB}")
e("s_mov_b64 exec, 1")
e(f"global_store_dword v{vG}, v{vT2}, s[{sDBG}:{sDBG+1}] offset:128")
e("s_mov_b64 exec, -1")
if "prog2" in DBG: e("v_mov_b32 v50, 0")
if a.skew:
    e(f"s_mov_b32 s{sNEED}, 3")
    e(f"s_cmp_lt_u32 s{sT}, 8")
    e("s_cbranch_scc1 L_fin")
    lab("L_g_sw")
    e(f"ds_read_b32 v{vPL}, v{vPA}")
    e("s_waitcnt lgkmcnt(0)")
    e(f"v_readfirstlane_b32 s{sLND}, v{vPL}")
    e(f"s_cmp_ge_i32 s{sLND}, s{sNEED}")
    e("s_cbranch_scc1 L_g_sa")
    spin_tail("L_g_sw", 1)
    lab("L_g_sa")
    e(f"global_load_dword v{vT0}, v{vFV}, s[{sDBG}:{sDBG+1}] sc1")
    e("s_waitcnt vmcnt(0)")
    e(f"v_cmp_gt_i32 vcc, 0, v{vT0}")
    e(f"v_lshrrev_b32 v{vT0}, 16, v{vT0}")
    e(f"v_sub_u32 v{vT0}, s{sMA}, v{vT0}")
    e(f"v_bfe_i32 v{vT0}, v{vT0}, 0, 15")
    e(f"v_cndmask_b32 v{vT0}, 0, v{vT0}, vcc")
    for sh in (1, 2, 4):
        e("s_nop 1")
        op = "v_max_i32_dpp" if "ampmax" in DBG else "v_add_u32_dpp"
        e(f"{op} v{vT0}, v{vT0}, v{vT0} row_shr:{sh} row_mask:0xf bank_mask:0xf bound_ctrl:0")
    e("s_nop 0")
    e(f"v_readlane_b32 s{sT0}, v{vT0}, 7")
    if "ampmax" in DBG or "ampmean" in DBG:
        e(f"s_mul_i32 s{sMBK}, s{sT0}, {20 if 'ampmax' in DBG else 3}")
        e(f"s_max_i32 s{sMBK}, s{sMBK}, 0")
        e(f"s_add_u32 s{sMBK}, s{sMBK}, 3500")
        lab("L_amp")
        e("s_sleep 4")
        e(f"s_memrealtime s[{sLO}:{sLO+1}]")
        e("s_waitcnt lgkmcnt(0)")
        e(f"s_sub_u32 s{sT0}, s{sLO}, s{sMA}")
        e(f"s_cmp_lt_u32 s{sT0}, s{sMBK}")
        e("s_cbranch_scc1 L_amp")
        e("s_endpgm")
    e(f"s_mul_i32 s{sT0}, s{sT0}, {a.skew}")
    e(f"s_ashr_i32 s{sT0}, s{sT0}, 9")
    e(f"s_add_u32 s{sBO}, s{sBO}, s{sT0}")
e(f"s_mov_b32 s{sNEED}, {a.cstart}")
lab("L_g_next")
e(f"s_sub_u32 s{sT0}, s{sTN}, s{sNEED}")
e(f"s_cmp_lt_i32 s{sT0}, {a.cstop}")
e("s_cbranch_scc1 L_fin")
lab("L_g_w")
e(f"ds_read_b32 v{vPL}, v{vPA}")
e("s_waitcnt lgkmcnt(0)")
e(f"v_readfirstlane_b32 s{sLND}, v{vPL}")
e(f"s_cmp_ge_i32 s{sLND}, s{sNEED}")
e("s_cbranch_scc1 L_g_a")
spin_tail("L_g_w", 1)
lab("L_g_a")
if "prog2" in DBG:
    e(f"s_memrealtime s[{sST+2}:{sST+3}]")
    e(f"s_lshr_b32 m0, s{sLND}, 1")
    e("s_waitcnt lgkmcnt(0)")
    e(f"v_writelane_b32 v50, s{sST+2}, m0")
e(f"s_sub_u32 s{sNK}, s{sTN}, s{sLND}")
e(f"s_or_b32 s{sT0}, s{sNK}, s{sFB}")
e(f"v_mov_b32 v{vT2}, s{sT0}")
e("s_mov_b64 exec, 1")
e(f"global_store_dword v{vG}, v{vT2}, s[{sDBG}:{sDBG+1}] offset:128")
e("s_mov_b64 exec, -1")
e(f"global_load_dword v{vT0}, v{vFV}, s[{sDBG}:{sDBG+1}] offset:128 sc1")
e(f"s_add_u32 s{sNEED}, s{sLND}, {a.cstep}")
e(f"s_min_i32 s{sT3}, s{sBO}, 1")
e(f"s_max_i32 s{sT3}, s{sT3}, -1")
e(f"s_sub_u32 s{sBO}, s{sBO}, s{sT3}")
e("s_waitcnt vmcnt(0)")
e(f"ds_write_b32 v{vT1}, v{vT0}")
e(f"v_and_b32 v{vT0}, 0xffff, v{vT0}")
e(f"v_cmp_ne_u32 vcc, 0, v{vT0}")
for sh in (1, 2, 4, 8):
    e("s_nop 1")
    e(f"v_add_u32_dpp v{vT0}, v{vT0}, v{vT0} row_shr:{sh} row_mask:0xf bank_mask:0xf bound_ctrl:0")
e("s_nop 1")
e(f"v_add_u32_dpp v{vT0}, v{vT0}, v{vT0} row_bcast:15 row_mask:0xa bank_mask:0xf")
e(f"s_bcnt1_i32_b32 s{sT1}, vcc_lo")
e(f"v_readlane_b32 s{sT0}, v{vT0}, 31")
e(f"s_mul_i32 s{sT2}, s{sNK}, s{sT1}")
e(f"s_sub_u32 s{sT2}, s{sT2}, s{sT0}")
e(f"s_lshl_b32 s{sT2}, s{sT2}, 2")
for th, inc, cmp in ((CTH[0], -1, "lt"), (CTH[1], 1, "gt"), (CTH[2], 1, "gt")):
    e(f"s_mul_i32 s{sT0}, s{sT1}, {th - a.cbias}")
    e(f"s_cmp_{cmp}_i32 s{sT2}, s{sT0}")
    e(f"s_cselect_b32 s{sT0}, {inc}, 0")
    e(f"s_add_u32 s{sT3}, s{sT3}, s{sT0}")
e(f"s_max_i32 s{sT3}, s{sT3}, -1")
e(f"s_min_i32 s{sT3}, s{sT3}, 2")
e(f"v_mov_b32 v{vT2}, s{sT3}")
e(f"ds_write_b32 v{vFW}, v{vT2}")
e("s_branch L_g_next")

lab("L_fin")
if a.amp:
    if a.amp == "end":
        e(f"s_sub_u32 s{sT0}, s{sW}, 1")
        e(f"s_cmp_gt_u32 s{sT0}, 1")
    else:
        e(f"s_cmp_lg_u32 s{sW}, 0")
    e("s_cbranch_scc1 L_end")
    e("s_waitcnt vmcnt(0) lgkmcnt(0)")
    if a.amp[:2] != "t0":
        e(f"s_memrealtime s[{sST+2}:{sST+3}]")
        e("s_waitcnt lgkmcnt(0)")
    e(f"s_sub_u32 s{sT1}, s{sST+2}, s{sST}")
    if a.amp[:2] != "t0": e(f"s_sub_u32 s{sT1}, s{sT1}, 2700")
    e(f"s_max_i32 s{sT1}, s{sT1}, 0")
    e(f"s_min_i32 s{sT1}, s{sT1}, 2000")
    e(f"s_mul_i32 s{sT1}, s{sT1}, 10")
    e(f"s_add_u32 s{sT1}, s{sT1}, 3500")
    lab("L_ampw")
    e("s_sleep 2")
    e(f"s_memrealtime s[{sST+2}:{sST+3}]")
    e("s_waitcnt lgkmcnt(0)")
    e(f"s_sub_u32 s{sT0}, s{sST+2}, s{sST}")
    e(f"s_cmp_lt_u32 s{sT0}, s{sT1}")
    e("s_cbranch_scc1 L_ampw")
if "prog2" in DBG or "prog3" in DBG:
    e(f"s_cmp_lg_u32 s{sW}, {5 if 'prog2' in DBG else 0}")
    e("s_cbranch_scc1 L_np2")
    e(f"s_lshl_b32 s{sT0}, s2, 8")
    e(f"s_add_u32 s{sT0}, s{sT0}, 0x400000")
    e(f"v_lshl_add_u32 v51, v{vLANE}, 2, s{sT0}")
    e(f"global_store_dword v51, v50, s[{sWS}:{sWS+1}]")
    lab("L_np2")
if a.stamps:
    e(f"s_cmp_gt_u32 s{sW}, 2")
    e("s_cbranch_scc1 L_end")
    e("s_mov_b64 exec, -1")
    e("s_waitcnt vmcnt(0) lgkmcnt(0)")
    stamp(3)
    e(f"s_getreg_b32 s{sT0}, hwreg(HW_REG_XCC_ID)")
    e("s_waitcnt lgkmcnt(0)")
    for i in range(8):
        e(f"v_mov_b32 v{64+i}, s{sST+i}")
    e(f"v_mov_b32 v72, s{sT0}")
    e(f"s_sub_u32 s{sT1}, {SPIN}, s{sSPIN}")
    e(f"v_mov_b32 v73, s{sT1}")
    e(f"v_mov_b32 v74, s{sT}")
    e(f"v_mov_b32 v75, 0")
    e(f"s_mul_i32 s{sT0}, s2, {NW}")
    e(f"s_add_u32 s{sT0}, s{sT0}, s{sW}")
    e(f"s_lshl_b32 s{sT0}, s{sT0}, 6")
    e(f"v_mov_b32 v80, s{sT0}")
    e("s_mov_b64 exec, 1")
    e(f"global_store_dwordx4 v80, v[64:67], s[{sWS}:{sWS+1}]")
    e(f"global_store_dwordx4 v80, v[68:71], s[{sWS}:{sWS+1}] offset:16")
    e(f"global_store_dwordx4 v80, v[72:75], s[{sWS}:{sWS+1}] offset:32")
lab("L_end")
e("s_endpgm")
out.append('.section .rodata,"a"')
out.append(".p2align 6")
out.append(f".amdhsa_kernel {NAME}_kernel")
out.append(f"  .amdhsa_next_free_vgpr {NV}")
out.append("  .amdhsa_next_free_sgpr 102")
out.append(f"  .amdhsa_accum_offset {NV}")
out.append("  .amdhsa_group_segment_fixed_size 0")
out.append("  .amdhsa_kernarg_size 64")
out.append("  .amdhsa_user_sgpr_count 2")
out.append("  .amdhsa_user_sgpr_kernarg_segment_ptr 1")
out.append("  .amdhsa_system_sgpr_workgroup_id_x 1")
out.append("  .amdhsa_float_denorm_mode_32 3")
out.append(".end_amdhsa_kernel")
open(a.o, "w").write("\n".join(out) + "\n")
```

```python
import sys, argparse
NAME = "standalone__paged_block_table_kv_pagedattention__sampling"
HEADER = open("cdna_kernels/" + NAME + ".s.ref").read().split("; Override")[0]

ap = argparse.ArgumentParser()
ap.add_argument("-o", default="/dev/stdout")
ap.add_argument("--map", default="plain")
ap.add_argument("--hrot", type=int, default=0)
ap.add_argument("--D", type=int, default=21)
ap.add_argument("--D0", type=int, default=26)
ap.add_argument("--NS", type=int, default=6)
ap.add_argument("--G", type=int, default=50)
ap.add_argument("--fnum", type=int, default=36)
ap.add_argument("--pollnum", type=int, default=53)
ap.add_argument("--psleep", type=int, default=12)
ap.add_argument("--UB", type=int, default=8)
ap.add_argument("--mfirst", type=int, default=1)
ap.add_argument("--cth", default="-2,2,5")
ap.add_argument("--cbias", type=int, default=7)
ap.add_argument("--cstart", type=int, default=8)
ap.add_argument("--cstop", type=int, default=4)
ap.add_argument("--cstep", type=int, default=3)
ap.add_argument("--xt", default="7,-8,7,-14,9,-2,8,-7")
ap.add_argument("--NUM", type=int, default=4)
ap.add_argument("--last", type=int, default=1)
ap.add_argument("--hold", default="")
ap.add_argument("--ost", default="")
ap.add_argument("--wb", type=int, default=0)
ap.add_argument("--skew", type=int, default=0)
ap.add_argument("--dv", default="-1,1,3")
ap.add_argument("--fpf", type=int, default=6)
ap.add_argument("--fld", default="sc1")
ap.add_argument("--opf", type=int, default=0)
ap.add_argument("--otouch", type=int, default=0)
ap.add_argument("--ospread", type=int, default=1)
ap.add_argument("--ofl", default="")
ap.add_argument("--DM", type=int, default=0)
ap.add_argument("--NE", type=int, default=3)
ap.add_argument("--amp", default="")
ap.add_argument("--ampwg", type=int, default=-1)
ap.add_argument("--nosort", action="store_true")
ap.add_argument("--nopair", action="store_true")
ap.add_argument("--limf", default="0x43800000")
ap.add_argument("--dbg", default="")
ap.add_argument("--stamps", action="store_true")
a = ap.parse_args()
NT = " nt"
OST = "" if not a.ost else " " + a.ost.replace("+", " ")
DBG = set(a.dbg.split(","))
D, D0, NS, G = a.D, a.D0, a.NS, a.G
assert 24 <= D0 <= 32 and (D - 2) // 8 == (D + 1) // 8 == 2 and 32 <= G < 64
CTH = [int(x) for x in a.cth.split(",")]
XT = [int(x) for x in a.xt.split(",")]
DV = [int(x) for x in a.dv.split(",")]
assert 17 <= D + DV[0] and D + DV[2] <= 24
DIVM = {5: (205, 10), 6: (43, 8), 7: (147, 10), 8: (1, 3), 10: (205, 11), 12: (171, 11)}[NS]
assert all((u * DIVM[0]) >> DIVM[1] == u // NS for u in range(129))
NW = 6
KBYTES = 4100 * 32768
SPIN = 1 << 22
NUM = a.NUM

RING = NS * 8192
PST = RING
MB = PST + G * 2048
MBS = 4224
CTRL = MB + 2 * MBS
FREE = CTRL + 512
REC0 = FREE + 128
DEPW = REC0 + 16
SL = FREE + 256
CNT = SL + 768
LA = CNT + 512
LB = LA + 512
KEYS = LB + 512
LDS = KEYS + 256
assert LDS <= 163840, LDS
WS0 = 0x100000 if a.stamps else 0
WSA = WS0 + 0x40000

out = []
def e(s): out.append("    " + s)
def lab(s): out.append(s + ":")
def c(s): out.append("    ; " + s)

sQ, sK, sV, sBT, sCL, sOUT, sDBG, sWS = 4, 6, 8, 10, 12, 14, 16, 18
sRD = 20
sB, sH, sW, sCLV = 28, 29, 30, 31
sT0, sT1, sT2, sT3 = 32, 33, 34, 35
sPC = 36
sSPIN = 38
sNB, sNTL, sNU, sT = 39, 40, 41, 42
sST = 64
sE = 72
sB0, sB1, sFL, sPM, sSLOT, sU, sTA0 = 46, 47, 48, 49, 52, 56, 57
sM = 46
sCI, sLND, sMBF, sNEED, sMRG, sMT, sROLE, sQO, sPLN, sSB = 48, 49, 50, 51, 52, 56, 57, 58, 59, 60
sV0 = 61
sCST = 62
sTN, sNK, sFWN, sFB, sPRE, sREDO, sLIMF, sPO = 96, 97, 98, 99, 100, 101, 53, 43
sMALL, sRS = 24, 26
sOFF, sTB0, sTB1, sTTC, sFIRST = 20, 21, 22, 23, 44
sZQ = 54
sRK, sPB, sNP, sX, sTA, sTB, sF, sWB = 80, 81, 82, 83, 84, 85, 86, 87
sMA, sMBK = 88, 90
sLO, sHI, sLBASE = 92, 93, 94
sBO = 56
vLANE = 1
vT0, vT1, vT2, vT3, vT4, vT5 = 2, 3, 4, 5, 6, 7
vL = 8
vKOFF, vVOFF = 10, 14
vCA, vCNT, vFA, vR = 18, 19, 20, 21
vF = 22
vCUR = 24
vTR = 28
vTRK, vTRV = 36, 52
vEN = 44
vDP, vDA, vOOB, vSA = 46, 47, 48, 49
vKA0, vVA0, vXA = 8, 12, 16
vPA0, vPW = 20, 21
vM, vLS, vMN, vAL, vPA, vFW = 24, 25, 26, 27, 28, 29
vPL = 30
vQ = 32
vS = 48
vP = 56
vG, vPF, vFV, vN = 60, 61, 62, 63
vKF = 64
vVF = 96
vO = 128
vE = 160
vPN = 160
NV = 168

def stamp(i):
    if a.amp and (i == 0 or (i == 1 and a.amp == "t0")): e(f"s_memrealtime s[{sST+2*i}:{sST+2*i+1}]")
    if a.hold and i == 0: e(f"{'s_memrealtime' if a.hold[:2] == 'rt' else 's_memtime'} s[{sST}:{sST+1}]")
    if a.stamps: e(f"s_memrealtime s[{sST+2*i}:{sST+2*i+1}]")
def clamp_cl(zq=None):
    c("context length: <=0 -> every key masked => uniform weights over 2048 keys (zero Q); >2048 -> 2048")
    e(f"s_cmp_lt_i32 s{sCLV}, 1")
    if zq is not None: e(f"s_cselect_b32 s{zq}, 1, 0")
    e(f"s_cselect_b32 s{sCLV}, 2048, s{sCLV}")
    e(f"s_min_i32 s{sCLV}, s{sCLV}, 2048")
def derive_nb():
    e(f"s_add_u32 s{sNTL}, s{sNB}, 1")
    e(f"s_lshr_b32 s{sNTL}, s{sNTL}, 1")
    e(f"s_sub_u32 s{sNU}, s{sNTL}, 1")
    e(f"s_min_u32 s{sNU}, s{sNU}, {NUM}")
def derive_cl():
    e(f"s_add_u32 s{sNB}, s{sCLV}, 15")
    e(f"s_lshr_b32 s{sNB}, s{sNB}, 4")
    derive_nb()
def spin_tail(label, sleep=1):
    e(f"s_sleep {sleep}")
    e(f"s_sub_u32 s{sSPIN}, s{sSPIN}, 1")
    e(f"s_cbranch_scc0 {label}")
    e("s_endpgm")
FIN = "s_branch L_fin" if (a.stamps or a.amp) else "s_endpgm"

out.append(HEADER.rstrip())
out.append(f"; @launch grid=(256,1,1) block=({64*NW},1,1) lds={LDS}")
out.append('.amdgcn_target "amdgcn-amd-amdhsa--gfx950"')
out.append(".text")
out.append(f".globl {NAME}_kernel")
out.append(".p2align 8")
out.append(f".type {NAME}_kernel,@function")
lab(f"{NAME}_kernel")
e("s_load_dwordx16 s[4:19], s[0:1], 0")
e(f"s_lshr_b32 s{sB}, s2, 3")
e(f"s_cmp_ge_u32 s{sB}, 32")
e("s_cbranch_scc1 L_end")
stamp(0)
e(f"v_lshrrev_b32 v{vT0}, 6, v0")
e(f"v_and_b32 v{vLANE}, 63, v0")
e(f"v_readfirstlane_b32 s{sW}, v{vT0}")
c("waves 1 and 3 pull this kernel's code into L2")
e(f"s_getpc_b64 s[{sPC}:{sPC+1}]")
lab("L_pc")
e(f"v_bfe_u32 v{vT2}, v0, 7, 1")
e(f"v_lshl_add_u32 v{vT2}, v{vT2}, 6, v{vLANE}")
e(f"v_lshlrev_b32 v{vT2}, 7, v{vT2}")
e(f"v_min_u32 v{vT2}, L_end - L_pc, v{vT2}")
e(f"s_bitcmp1_b32 10, s{sW}")
e("s_cbranch_scc0 L_nopf")
e(f"global_load_dword v{vPF}, v{vT2}, s[{sPC}:{sPC+1}]")
lab("L_nopf")
c("clear the control words and the sort counters")
e(f"v_mov_b64 v[{vT2}:{vT3}], 0")
e(f"v_lshlrev_b32 v{vT4}, 3, v0")
e(f"v_add_u32 v{vT4}, {CTRL}, v{vT4}")
e(f"ds_write_b64 v{vT4}, v[{vT2}:{vT3}]")
if a.map == "rot":
    e(f"s_add_u32 s{sH}, s2, s{sB}")
    e(f"s_and_b32 s{sH}, s{sH}, 7")
elif a.hrot:
    e(f"s_add_u32 s{sH}, s2, {a.hrot}")
    e(f"s_and_b32 s{sH}, s{sH}, 7")
else:
    e(f"s_and_b32 s{sH}, s2, 7")
e(f"s_lshl3_add_u32 s{sT2}, s{sB}, s{sH}")
e(f"s_lshl_b32 s{sT2}, s{sT2}, 13")
e(f"v_lshl_add_u32 v{vT5}, v{vLANE}, 7, s{sT2}")
e(f"s_lshl_b32 s{sT0}, s{sB}, 9")
e(f"v_lshl_add_u32 v{vT2}, v{vLANE}, 3, s{sT0}")
e(f"s_lshl_b32 s{sT1}, s{sB}, 2")
e(f"v_and_b32 v{vT0}, 31, v{vLANE}")
e(f"v_lshlrev_b32 v{vT3}, 2, v{vT0}")
e(f"s_mov_b32 s{sSPIN}, {SPIN}")
e(f"s_cmp_lg_u32 s{sW}, 2")
e("s_waitcnt lgkmcnt(0)")
e(f"s_load_dwordx8 s[{sE}:{sE+7}], s[{sBT}:{sBT+1}], s{sT0}")
e(f"s_load_dword s{sCLV}, s[{sCL}:{sCL+1}], s{sT1}")
c("wave 2 touches the 64 lines of this workgroup's queries while memory is still idle")
e("s_cbranch_scc1 L_noq")
e(f"global_load_dword v{vPF}, v{vT5}, s[{sQ}:{sQ+1}]")
lab("L_noq")
if a.opf:
    e(f"s_cmp_lg_u32 s{sW}, 4")
    e("s_cbranch_scc1 L_noo")
    e(f"global_load_dword v{vPF}, v{vT5}, s[{sOUT}:{sOUT+1}]")
    lab("L_noo")
e(f"global_load_dwordx2 v[{vL}:{vL+1}], v{vT2}, s[{sBT}:{sBT+1}]")
e(f"global_load_dword v{vN}, v{vT3}, s[{sCL}:{sCL+1}]")
lab("L_loads_issued")
if a.amp == "t0k": e(f"s_memrealtime s[{sST+2}:{sST+3}]")
e(f"s_cmp_lg_u32 s{sW}, 0")
e("s_cbranch_scc1 L_notloader")

e("s_setprio 3")
c("per-lane source offsets of the LDS-DMA pieces (bank swizzle applied on the source side)")
e(f"v_lshrrev_b32 v{vR}, 4, v{vLANE}")
e(f"v_and_b32 v{vT1}, 15, v{vLANE}")
e(f"s_lshl_b32 s{sT0}, s{sH}, 8")
e(f"v_lshl_add_u32 v{vT4}, v{vR}, 11, s{sT0}")
e(f"v_xor_b32 v{vT2}, v{vR}, v{vT1}")
e(f"v_lshl_add_u32 v{vKOFF}, v{vT2}, 4, v{vT4}")
for j in range(1, 4):
    e(f"v_xor_b32 v{vT3}, {64*j}, v{vKOFF}")
    e(f"v_add_u32 v{vKOFF+j}, {7168*j}, v{vT3}")
e(f"s_mov_b32 s{sRD}, s{sK}")
e(f"s_and_b32 s{sRD+1}, s{sK+1}, 0xffff")
e(f"s_mov_b32 s{sRD+2}, {KBYTES}")
e(f"s_mov_b32 s{sRD+3}, 0x20000")
if a.amp == "t0c": e(f"s_memrealtime s[{sST+2}:{sST+3}]")
e("s_waitcnt lgkmcnt(0)")
clamp_cl()
c("the first stream tiles are logical tiles 0..3 (those that are not the last one)")
NE = a.NE
for t in range(NE):
    e(f"s_cmp_le_u32 s{sCLV}, {32*(t+1)}")
    e(f"s_cbranch_scc1 {'L_ld_b' if t < 2 else 'L_ld_pre'}")
    if t == 0: stamp(1)
    for j in range(8):
        i = 8 * t + j
        if j % 4 == 0:
            e(f"s_movk_i32 m0, {1024*i}")
            e(f"s_lshl_b32 s{sB0}, s{sE+i//4}, 15")
        if i >= D0: e(f"s_waitcnt vmcnt({D0-1})")
        e(f"buffer_load_dwordx4 v{vKOFF+j%4}, s[{sRD}:{sRD+3}], s{sB0} offen offset:{1024*(j%4)}{NT} lds")
    if t == 1:
        lab("L_ld_b")
        e("s_barrier")
lab("L_ld_pre")
derive_cl()
j0 = (D - 1) % 8
e(f"v_lshlrev_b32 v{vT3}, 2, v{vR}")
e(f"v_xor_b32 v{vT3}, v{vT3}, v{vT1}")
e(f"v_lshl_add_u32 v{vVOFF}, v{vT3}, 4, v{vT4}")
for j in range(1, 4):
    e(f"v_add_u32 v{vVOFF+j}, {7168*j}, v{vVOFF}")
e(f"s_min_u32 s{sT}, s{sNU}, {NE}")
e(f"s_lshl_b32 s{sSLOT}, s{sT}, 13")
e(f"s_mov_b32 s{sU}, s{sT}")
e(f"v_lshlrev_b32 v{vCA}, 3, v{vLANE}")
e(f"v_add_u32 v{vT0}, {SL}, v{vCA}")
e(f"v_add_u32 v{vCA}, {CTRL}, v{vCA}")
e(f"v_mov_b32 v{vFA}, {FREE}")
e(f"v_mov_b64 v[{vF}:{vF+1}], 0")
e(f"v_mov_b32 v{vDP}, {2 if NE == 3 else 0}")
e(f"v_mov_b32 v{vDA}, {DEPW}")
e(f"s_sub_u32 s{sT0}, s{sT}, 3")
e(f"v_mov_b32 v{vCNT}, s{sT0}")
e(f"s_lshl3_add_u32 s{sT0}, s{sT}, {SL}")
e(f"v_mov_b32 v{vSA}, s{sT0}")
c("offsets for the last logical tile: rows past the context are not fetched (their lanes read zeros)")
e(f"s_lshl_b32 s{sT0}, s{sNTL}, 5")
e(f"s_sub_u32 s{sT0}, s{sCLV}, s{sT0}")
e(f"s_add_u32 s{sT0}, s{sT0}, 32")
e(f"v_bfrev_b32 v{vOOB}, 1")
e(f"v_sub_u32 v{vT1}, s{sT0}, v{vR}")
for k in range(8):
    e(f"v_cmp_lt_i32 s[{80+2*k}:{81+2*k}], {4*k}, v{vT1}")
for k in range(8):
    e(f"v_cndmask_b32 v{vTRK+k}, v{vOOB}, v{vKOFF+k%4}, s[{80+2*k}:{81+2*k}]")
    e(f"v_cndmask_b32 v{vTRV+k}, v{vOOB}, v{vVOFF+k%4}, s[{80+2*k}:{81+2*k}]")
def set_pass(off, tr):
    for j in range(0, 4, 2): e(f"v_mov_b64 v[{vCUR+j}:{vCUR+j+1}], v[{off+j}:{off+j+1}]")
    for j in range(0, 8, 2): e(f"v_mov_b64 v[{vTR+j}:{vTR+j+1}], v[{tr+j}:{tr+j+1}]")
set_pass(vKOFF, vTRK)
if "prog3" in DBG: e("v_mov_b32 v50, 0")
e(f"s_mov_b32 s{sPM}, 4")
e(f"s_mov_b32 s{sTA0}, 0")
c("the leading tiles enter the stream list straight from the table row")
e(f"s_bfm_b64 s[{sT2}:{sT2+1}], s{sNU}, 0")
e(f"s_cmp_ge_u32 s{sNU}, {NE}")
e("s_cbranch_scc1 L_ld_row")
e("s_waitcnt vmcnt(0)")
lab("L_ld_row")
e("s_waitcnt vmcnt(24)")
if NE == 4: e(f"ds_write_b32 v{vCA}, v{vCNT}")
e(f"v_lshl_or_b32 v{vEN}, v{vL}, 15, 1")
e(f"v_lshlrev_b32 v{vEN+1}, 15, v{vL+1}")
e(f"s_mov_b64 exec, s[{sT2}:{sT2+1}]")
e(f"ds_write_b64 v{vT0}, v[{vEN}:{vEN+1}]")
e("s_mov_b64 exec, -1")
e(f"ds_read_b64 v[{vEN}:{vEN+1}], v{vSA}")
if a.amp == "t0r": e(f"s_memrealtime s[{sST+2}:{sST+3}]")
if a.amp[:3] == "t0l":
    e(f"s_waitcnt vmcnt({int(a.amp[3:])})")
    e(f"s_memrealtime s[{sST+2}:{sST+3}]")
stamp(2)
def unit_body(depth, trimmed=False):
    for j in range(8):
        if j % 4 == 0: e(f"s_add_u32 m0, s{sSLOT}, {1024*j}")
        e(f"s_waitcnt vmcnt({depth-1})")
        e(f"buffer_load_dwordx4 v{vTR+j if trimmed else vCUR+j%4}, s[{sRD}:{sRD+3}], s{sB0 + j//4} offen offset:{1024*(j%4)}{NT} lds")
        if j == (depth - 1) % 8:
            e(f"v_add_u32 v{vCNT}, 1, v{vCNT}")
            e(f"ds_write_b32 v{vCA}, v{vCNT}")
        if j == 0:
            e(f"s_add_u32 s{sT2}, s{sSLOT}, 8192")
            e(f"s_cmp_eq_u32 s{sT2}, {RING}")
            e(f"s_cselect_b32 s{sT2}, 0, s{sT2}")
            e(f"s_lshr_b32 s{sT0}, s{sT2}, 10")
            e(f"s_add_u32 s{sT0}, s{sT0}, {FREE}")
            e(f"v_mov_b32 v{vFA}, s{sT0}")
        if j == 1:
            e(f"s_add_u32 s{sT}, s{sT}, 1")
            e(f"s_and_b32 s{sT0}, s{sFL}, s{sPM}")
            e(f"s_cselect_b32 s{sT}, s{sTA0}, s{sT}")
            e(f"s_lshl3_add_u32 s{sT0}, s{sT}, {SL}")
            e(f"v_mov_b32 v{vSA}, s{sT0}")
            e(f"s_add_u32 s{sU}, s{sU}, 1")
        if j == a.fpf:
            c("prefetch the next list entry, the FREE words of the next slot and the depth code")
            e(f"ds_read_b64 v[{vEN}:{vEN+1}], v{vSA}")
            e(f"ds_read_b64 v[{vF}:{vF+1}], v{vFA}")
            e(f"ds_read_b32 v{vDP}, v{vDA}")
            e(f"s_mov_b32 s{sSLOT}, s{sT2}")
out.append(".p2align 3")
lab("L_ld")
if "prog3" in DBG:
    e(f"s_memrealtime s[{sST+4}:{sST+5}]")
    e(f"s_min_u32 m0, s{sU}, 63")
e("s_waitcnt lgkmcnt(0)")
if "prog3" in DBG: e(f"v_writelane_b32 v50, s{sST+4}, m0")
e(f"v_min_i32 v{vT0}, v{vF}, v{vF+1}")
e(f"v_readfirstlane_b32 s{sFL}, v{vEN}")
e(f"v_readfirstlane_b32 s{sB1}, v{vEN+1}")
e(f"v_readfirstlane_b32 s{sT0}, v{vT0}")
e(f"v_readfirstlane_b32 s{sT3}, v{vDP}")
e(f"s_sub_u32 s{sT1}, s{sU}, {NS-1}")
e(f"s_cmp_ge_i32 s{sT0}, s{sT1}")
e(f"s_cselect_b32 s{sT0}, s{sFL}, 0")
e(f"s_and_b32 s{sB0}, s{sFL}, -16")
e(f"s_and_b32 s{sT0}, s{sT0}, 3")
e(f"s_cmp_lg_u32 s{sT0}, 1")
e("s_cbranch_scc1 L_ld_odd")
e(f"s_cmp_lg_u32 s{sT3}, 0")
e("s_cbranch_scc1 L_ld_var")
unit_body(D)
lab("L_ld_next")
e(f"s_bitcmp1_b32 s{sFL}, 2")
e("s_cbranch_scc0 L_ld")
c("last tile of the batch: change pass")
e(f"s_xor_b32 s{sPM}, s{sPM}, 4")
e("s_cbranch_scc1 L_ld_tok")
e(f"s_mov_b32 s{sRD}, s{sV}")
e(f"s_and_b32 s{sRD+1}, s{sV+1}, 0xffff")
set_pass(vVOFF, vTRV)
e("s_branch L_ld")
lab("L_ld_tok")
e(f"s_bitcmp1_b32 s{sFL}, 3")
e("s_cbranch_scc0 L_ld_more")
for r in (16, 8, 0):
    e(f"v_add_u32 v{vCNT}, 1, v{vCNT}")
    e(f"s_waitcnt vmcnt({r})")
    e(f"ds_write_b32 v{vCA}, v{vCNT}")
if a.hold:
    lab("L_hold")
    e(f"{'s_memrealtime' if a.hold[:2] == 'rt' else 's_memtime'} s[{sST+2}:{sST+3}]")
    e("s_waitcnt lgkmcnt(0)")
    e(f"s_sub_u32 s{sT0}, s{sST+2}, s{sST}")
    e(f"s_cmp_lt_u32 s{sT0}, {a.hold[3:]}")
    e("s_cbranch_scc1 L_hold")
e(FIN)
lab("L_ld_more")
e(f"s_mov_b32 s{sTA0}, s{sT}")
e(f"s_mov_b32 s{sRD}, s{sK}")
e(f"s_and_b32 s{sRD+1}, s{sK+1}, 0xffff")
set_pass(vKOFF, vTRK)
e("s_branch L_ld")
lab("L_ld_odd")
e(f"s_cmp_eq_u32 s{sT0}, 3")
e("s_cbranch_scc1 L_ld_m")
c("slot not free yet or entry not written yet")
e(f"ds_read_b64 v[{vEN}:{vEN+1}], v{vSA}")
e(f"ds_read_b64 v[{vF}:{vF+1}], v{vFA}")
e(f"s_sub_u32 s{sSPIN}, s{sSPIN}, 1")
e("s_cbranch_scc0 L_ld")
e("s_endpgm")
lab("L_ld_m")
unit_body(D + a.DM, True)
e("s_branch L_ld_next")
lab("L_ld_var")
e(f"s_cmp_eq_u32 s{sT3}, 1")
e("s_cbranch_scc1 L_ld_v2")
e(f"s_cmp_eq_u32 s{sT3}, 2")
e("s_cbranch_scc1 L_ld_v3")
unit_body(D + DV[0])
e("s_branch L_ld_next")
lab("L_ld_v2")
unit_body(D + DV[1])
e("s_branch L_ld_next")
lab("L_ld_v3")
unit_body(D + DV[2])
e("s_branch L_ld_next")

lab("L_notloader")
e(f"s_cmp_ge_u32 s{sW}, 3")
e("s_cbranch_scc1 L_planner")
e(f"s_sub_u32 s{sCI}, s{sW}, 1")
def rows_off(sb):
    e(f"s_lshl3_add_u32 s{sQO}, s{sb}, s{sH}")
    e(f"s_lshl1_add_u32 s{sQO}, s{sQO}, s{sCI}")
    e(f"s_lshl_b32 s{sQO}, s{sQO}, 12")
    e(f"v_and_b32 v{vT0}, 15, v{vLANE}")
    e(f"v_lshrrev_b32 v{vG}, 4, v{vLANE}")
def load_q(sb):
    rows_off(sb)
    e(f"v_lshl_add_u32 v{vT4}, v{vT0}, 8, s{sQO}")
    e(f"v_lshl_add_u32 v{vT4}, v{vG}, 4, v{vT4}")
    for s in range(4):
        e(f"global_load_dwordx4 v[{vQ+4*s}:{vQ+4*s+3}], v{vT4}, s[{sQ}:{sQ+1}] offset:{64*s}")
load_q(sB)
e("s_barrier")
e(f"s_mov_b32 s{sROLE}, 0")
e(f"s_mov_b32 s{sPLN}, 0")
e(f"s_mov_b32 s{sMRG}, 0")
e("s_waitcnt lgkmcnt(0)")
clamp_cl(zq=sT3)
derive_cl()
c("valid keys of the last logical tile")
e(f"s_lshl_b32 s{sV0}, s{sNTL}, 5")
e(f"s_sub_u32 s{sV0}, s{sCLV}, s{sV0}")
e(f"s_add_u32 s{sV0}, s{sV0}, 32")
e(f"s_bfm_b64 s[{sM}:{sM+1}], s{sNU}, 0")
lab("L_csetup")
e(f"s_mov_b32 s{sMT}, 0")
e(f"s_mov_b32 s{sOFF}, 0")
e(f"s_mov_b32 s{sTB0}, 0")
e(f"s_mov_b32 s{sFIRST}, 1")
e(f"s_mov_b64 s[{sRS}:{sRS+1}], 0")
e("s_waitcnt vmcnt(4)")
e(f"v_and_b32 v{vT0}, 15, v{vLANE}")
e(f"v_xor_b32 v{vT1}, v{vG}, v{vT0}")
e(f"v_lshlrev_b32 v{vT2}, 8, v{vT0}")
e(f"v_lshl_add_u32 v{vKA0}, v{vT1}, 4, v{vT2}")
for s in range(1, 4):
    e(f"v_xor_b32 v{vKA0+s}, {64*s}, v{vKA0}")
e(f"v_bfe_u32 v{vT0}, v{vLANE}, 2, 2")
e(f"v_lshl_add_u32 v{vT1}, v{vG}, 2, v{vT0}")
e(f"v_lshlrev_b32 v{vT1}, 8, v{vT1}")
e(f"v_and_b32 v{vT2}, 3, v{vLANE}")
e(f"v_lshl_add_u32 v{vT1}, v{vT2}, 4, v{vT1}")
e(f"v_lshl_add_u32 v{vVA0}, v{vT0}, 6, v{vT1}")
for j in range(1, 4):
    e(f"v_xor_b32 v{vVA0+j}, {64*j}, v{vVA0}")
e(f"s_lshl_b32 s{sT0}, s{sCI}, 10")
e(f"s_add_u32 s{sT0}, s{sT0}, {PST}")
e(f"v_lshl_add_u32 v{vPA0}, v{vLANE}, 4, s{sT0}")
e(f"s_lshl_b32 s{sT0}, s{sW}, 3")
e(f"s_add_u32 s{sT0}, s{sT0}, {CTRL-8}")
e(f"v_mov_b32 v{vPA}, s{sT0}")
e(f"v_mov_b32 v{vM}, 0xff800000")
e(f"v_mov_b32 v{vLS}, 0")
for r in range(0, 32, 2): e(f"v_mov_b64 v[{vO+r}:{vO+r+1}], 0")
e(f"s_mov_b32 s{sCST}, 0x3e0293ee")
e(f"s_mov_b32 s{sCST+1}, 0x3e0293ee")
e(f"s_mov_b32 s{sLIMF}, {a.limf}")
e(f"s_lshl2_add_u32 s{sFB}, s{sCI}, {FREE}")
e("s_waitcnt vmcnt(0)")
e(f"s_cmp_eq_u32 s{sT3}, 0")
e("s_cbranch_scc1 L_k_first")
for r in range(0, 16, 2): e(f"v_mov_b64 v[{vQ+r}:{vQ+r+1}], 0")

def poll(label):
    lab(label)
    e(f"ds_read_b64 v[{vPL}:{vPL+1}], v{vPA}")
    e(f"s_sub_u32 s{sSPIN}, s{sSPIN}, 1")
    e("s_cbranch_scc1 L_end")
    e("s_waitcnt lgkmcnt(0)")
    e(f"v_readfirstlane_b32 s{sLND}, v{vPL}")
    e(f"s_cmp_ge_i32 s{sLND}, s{sNK}")
    e(f"s_cbranch_scc0 {label}")
VR = []
for j in range(4):
    for ee in range(2):
        for blk in range(2):
            r = vVF + (2 * j + ee) * 4 + 2 * blk
            VR.append(f"ds_read_b64_tr_b16 v[{r}:{r+1}], v{vXA+j} offset:{8*ee + 4096*blk}")
KR, QK = [], []
for blk in range(2):
    for st in range(4):
        r = vKF + (blk * 4 + st) * 4
        KR.append(f"ds_read_b128 v[{r}:{r+3}], v{vXA+st} offset:{4096*blk}")
        cc = "0" if st == 0 else f"v[{vS+4*blk}:{vS+4*blk+3}]"
        QK.append(f"v_mfma_f32_16x16x32_bf16 v[{vS+4*blk}:{vS+4*blk+3}], v[{r}:{r+3}], v[{vQ+4*st}:{vQ+4*st+3}], {cc}")
PV = [f"v_mfma_f32_16x16x32_bf16 v[{vO+4*dt}:{vO+4*dt+3}], v[{vVF+4*dt}:{vVF+4*dt+3}], v[{vP}:{vP+3}], v[{vO+4*dt}:{vO+4*dt+3}]" for dt in range(8)]
NX = [f"s_ff1_i32_b64 s{sTN}, s[{sM}:{sM+1}]",
      f"s_bitset0_b64 s[{sM}:{sM+1}], s{sTN}",
      f"s_add_u32 s{sT1}, s{sTN}, s{sOFF}",
      f"s_mul_i32 s{sT0}, s{sT1}, {DIVM[0]}",
      f"s_lshr_b32 s{sT0}, s{sT0}, {DIVM[1]}",
      f"s_mul_i32 s{sT0}, s{sT0}, {NS}",
      f"s_sub_u32 s{sT0}, s{sT1}, s{sT0}",
      f"s_lshl_b32 s{sSB}, s{sT0}, 13",
      f"s_lshl3_add_u32 s{sFWN}, s{sT0}, s{sFB}",
      f"s_and_b32 s{sT0}, s{sTN}, 0x40000000",
      f"s_add_u32 s{sNK}, s{sT1}, 1",
      f"s_or_b32 s{sNK}, s{sNK}, s{sT0}",
      f"s_sub_u32 s{sPO}, s{sTN}, s{sTB0}",
      f"s_lshl_b32 s{sPO}, s{sPO}, 11"]
KA = [f"v_add_u32 v{vXA+i}, s{sSB}, v{vKA0+i}" for i in range(4)]
VA = [f"v_add_u32 v{vXA+i}, s{sSB}, v{vVA0+i}" for i in range(4)]
ADV = [f"v_mov_b32 v{vFW}, s{sFWN}",
       f"v_mov_b32 v{vFV}, s{sNK}",
       f"v_add_u32 v{vPW}, s{sPO}, v{vPA0}",
       f"s_add_u32 s{sT}, s{sTN}, 1"]
def scale_o(reg):
    for r in range(0, 32, 2):
        sel = "op_sel:[0,1] op_sel_hi:[1,1]" if reg & 1 else "op_sel_hi:[1,0]"
        p = reg & ~1
        e(f"v_pk_mul_f32 v[{vO+r}:{vO+r+1}], v[{vO+r}:{vO+r+1}], v[{p}:{p+1}] {sel}")

lab("L_k_first")
for x in NX + KA + ADV: e(x)
lab("L_k_next")
e(f"s_cmp_lt_i32 s{sTN}, 0")
e("s_cbranch_scc1 L_k_empty")
poll("L_k_poll")
for x in KR: e(x)
e("s_waitcnt lgkmcnt(0)")
out.append(".p2align 3")
lab("L_k_top")
e("s_waitcnt lgkmcnt(1)")
e(f"ds_write_b32 v{vFW}, v{vFV}")
e(f"ds_read_b64 v[{vPL}:{vPL+1}], v{vPA}")
fill = NX + KA
for i in range(8):
    e(QK[i])
    for x in fill[2*i:2*i+2]: e(x)
for x in fill[16:]: e(x)
e(f"s_mov_b32 s{sREDO}, 0")
e("s_waitcnt lgkmcnt(0)")
e(f"v_readfirstlane_b32 s{sLND}, v{vPL}")
e(f"s_cmp_ge_i32 s{sLND}, s{sNK}")
e(f"s_cselect_b32 s{sPRE}, 1, 0")
e("s_cbranch_scc0 L_k_nopre")
for x in KR: e(x)
lab("L_k_nopre")
e(f"s_cmp_eq_u32 s{sT}, s{sMT}")
e("s_cbranch_scc1 L_k_mask")
lab("L_k_exp")
for hb in range(2):
    for r in (4*hb, 4*hb+2):
        e(f"v_pk_fma_f32 v[{vE+r}:{vE+r+1}], v[{vS+r}:{vS+r+1}], s[{sCST}:{sCST+1}], v[{vM}:{vM+1}] op_sel_hi:[1,1,0] neg_lo:[0,0,1] neg_hi:[0,0,1]")
    for r in range(4*hb, 4*hb+4):
        e(f"v_exp_f32 v{vE+r}, v{vE+r}")
e(f"v_pk_add_f32 v[{vT0}:{vT1}], v[{vE}:{vE+1}], v[{vE+2}:{vE+3}]")
e(f"v_pk_add_f32 v[{vT2}:{vT3}], v[{vE+4}:{vE+5}], v[{vE+6}:{vE+7}]")
e(f"v_cvt_pk_bf16_f32 v{vP}, v{vE}, v{vE+1}")
e(f"v_pk_add_f32 v[{vT0}:{vT1}], v[{vT0}:{vT1}], v[{vT2}:{vT3}]")
e(f"v_cvt_pk_bf16_f32 v{vP+1}, v{vE+2}, v{vE+3}")
e(f"v_add_f32 v{vT0}, v{vT0}, v{vT1}")
c("the kept reference max is safe only while every weight stays <= 256; otherwise take the true max")
e(f"v_cmp_nge_f32 vcc, s{sLIMF}, v{vT0}")
e(f"v_cvt_pk_bf16_f32 v{vP+2}, v{vE+4}, v{vE+5}")
e(f"v_cvt_pk_bf16_f32 v{vP+3}, v{vE+6}, v{vE+7}")
e(ADV[0]); e(ADV[1])
e("s_nop 0")
e("s_cbranch_vccnz L_k_slow")
lab("L_k_done")
e(f"ds_write_b128 v{vPW}, v[{vP}:{vP+3}]")
e(f"v_add_f32 v{vLS}, v{vLS}, v{vT0}")
e(ADV[3])
e(f"s_cmp_lg_u32 s{sPRE}, 0")
e(ADV[2])
e("s_cbranch_scc1 L_k_top")
e("s_branch L_k_next")

lab("L_k_mask")
e(f"v_lshlrev_b32 v{vT0}, 2, v{vG}")
e(f"v_sub_u32 v{vT0}, s{sV0}, v{vT0}")
e(f"v_mov_b32 v{vT1}, 0xff800000")
for r in range(8):
    e(f"v_cmp_lt_i32 s[{80+2*r}:{81+2*r}], {16*(r//4)+r%4}, v{vT0}")
for r in range(8):
    e(f"v_cndmask_b32 v{vS+r}, v{vT1}, v{vS+r}, s[{80+2*r}:{81+2*r}]")
e("s_branch L_k_exp")

def alpha_addr():
    e(f"s_lshl_b32 s{sT0}, s2, 6")
    e(f"s_add_u32 s{sT0}, s{sT0}, s{sT}")
    e(f"s_lshl1_add_u32 s{sT0}, s{sT0}, s{sCI}")
    e(f"s_lshl_b32 s{sT0}, s{sT0}, 6")
    e(f"s_add_u32 s{sT0}, s{sT0}, {WSA}")
    e(f"v_and_b32 v{vT1}, 15, v{vLANE}")
    e(f"v_lshl_add_u32 v{vT1}, v{vT1}, 2, s{sT0}")
c("raise the reference to the true running max; the accumulator is rescaled when pass 2 reaches this tile")
lab("L_k_slow")
e(f"s_cmp_lg_u32 s{sREDO}, 0")
e("s_cbranch_scc1 L_k_done")
e(f"s_mov_b32 s{sREDO}, 1")
e(f"v_max3_f32 v{vT0}, v{vS}, v{vS+1}, v{vS+2}")
e(f"v_max3_f32 v{vT1}, v{vS+3}, v{vS+4}, v{vS+5}")
e(f"v_max3_f32 v{vT0}, v{vT0}, v{vS+6}, v{vS+7}")
e(f"v_max_f32 v{vT0}, v{vT0}, v{vT1}")
e(f"v_mov_b32 v{vT1}, v{vT0}")
e("s_nop 1")
e(f"v_permlane32_swap_b32 v{vT0}, v{vT1}")
e("s_nop 0")
e(f"v_max_f32 v{vT0}, v{vT0}, v{vT1}")
e(f"v_mov_b32 v{vT1}, v{vT0}")
e("s_nop 1")
e(f"v_permlane16_swap_b32 v{vT0}, v{vT1}")
e("s_nop 0")
e(f"v_max_f32 v{vT0}, v{vT0}, v{vT1}")
e(f"v_mul_f32 v{vT0}, s{sCST}, v{vT0}")
e(f"v_max_f32 v{vMN}, v{vM}, v{vT0}")
e(f"v_sub_f32 v{vAL}, v{vM}, v{vMN}")
e(f"v_exp_f32 v{vAL}, v{vAL}")
e(f"v_mov_b32 v{vM}, v{vMN}")
e(f"s_cmp_lg_u32 s{sFIRST}, 0")
e(f"s_mov_b32 s{sFIRST}, 0")
e(f"v_mul_f32 v{vLS}, v{vLS}, v{vAL}")
e("s_cbranch_scc1 L_k_exp")
alpha_addr()
e(f"global_store_dword v{vT1}, v{vAL}, s[{sWS}:{sWS+1}]")
e(f"s_sub_u32 s{sT0}, s{sT}, 1")
e(f"s_bitset1_b64 s[{sRS}:{sRS+1}], s{sT0}")
e("s_branch L_k_exp")

RLO, RHI = 0xffffffff, (1 << (G - 32)) - 1
lab("L_k_noplan")
e(f"s_mov_b32 s{sPLN}, 1")
e(f"v_mov_b32 v{vT1}, {REC0}")
lab("L_k_plan")
e(f"ds_read_b128 v[{vT2}:{vT5}], v{vT1}")
e("s_waitcnt lgkmcnt(0)")
e(f"v_readfirstlane_b32 s{sT0}, v{vT5}")
e(f"v_readfirstlane_b32 s{sM}, v{vT2}")
e(f"v_readfirstlane_b32 s{sM+1}, v{vT3}")
e(f"v_readfirstlane_b32 s{sTTC}, v{vT4}")
e(f"s_cmp_lg_u32 s{sT0}, 0")
e("s_cbranch_scc1 L_k_got")
spin_tail("L_k_plan")
lab("L_k_got")
e(f"s_lshr_b32 s{sMT}, s{sT0}, 8")
e(f"s_add_u32 s{sMT}, s{sMT}, 1")
e(f"s_and_b32 s{sMRG}, s{sTTC}, {0 if 'nomerge' in DBG else 1}")
e(f"s_lshr_b32 s{sTTC}, s{sTTC}, 8")
e(f"s_min_u32 s{sTB1}, s{sTTC}, {G}")
e(f"s_bfm_b64 s[{sMALL}:{sMALL+1}], s{sNU}, 0")
e(f"s_or_b64 s[{sMALL}:{sMALL+1}], s[{sMALL}:{sMALL+1}], s[{sM}:{sM+1}]")
e(f"s_and_b32 s{sM+1}, s{sM+1}, {RHI:#x}")
e("s_branch L_k_first")
lab("L_v_more")
c("second batch")
e(f"s_mov_b32 s{sTB0}, s{sTB1}")
e(f"s_mov_b32 s{sTB1}, s{sTTC}")
e(f"s_mov_b32 s{sOFF}, s{sTB0}")
e(f"s_mov_b32 s{sMALL}, 0")
e(f"s_andn2_b32 s{sMALL+1}, s{sMALL+1}, {RHI:#x}")
e(f"s_mov_b64 s[{sM}:{sM+1}], s[{sMALL}:{sMALL+1}]")
e("s_branch L_k_first")
lab("L_k_empty")
e(f"s_cmp_eq_u32 s{sPLN}, 0")
e("s_cbranch_scc1 L_k_noplan")
e(f"s_mov_b32 s{sOFF}, s{sTB1}")
e(f"s_mov_b32 s{sM}, s{sMALL}")
e(f"s_and_b32 s{sM+1}, s{sMALL+1}, {RHI:#x}")
e(f"s_cmp_eq_u32 s{sTB0}, 0")
e(f"s_cselect_b32 s{sM+1}, s{sM+1}, s{sMALL+1}")
for x in NX + VA: e(x)
e(f"ds_read_b64 v[{vPL}:{vPL+1}], v{vPA}")
e(f"s_cmp_lt_i32 s{sTN}, 0")
e("s_cbranch_scc1 L_v_empty")
lab("L_v_next")
for x in ADV: e(x)
if a.last:
    e(f"s_cmp_eq_u64 s[{sM}:{sM+1}], 0")
    e("s_cbranch_scc1 L_v_islast")
lab("L_v_next2")
e(f"ds_read_b128 v[{vPN}:{vPN+3}], v{vPW}")
e("s_waitcnt lgkmcnt(1)")
e(f"v_readfirstlane_b32 s{sLND}, v{vPL}")
e(f"s_cmp_ge_i32 s{sLND}, s{sNK}")
e("s_cbranch_scc1 L_v_rd")
poll("L_v_poll")
lab("L_v_rd")
for x in VR: e(x)
out.append(".p2align 3")
lab("L_v_top")
for x in NX + VA: e(x)
e(f"s_sub_u32 s{sT0}, s{sT}, 1")
e(f"s_bitcmp1_b64 s[{sRS}:{sRS+1}], s{sT0}")
e("s_cbranch_scc1 L_v_resc")
lab("L_v_top2")
e("s_waitcnt lgkmcnt(14)")
e(f"v_readfirstlane_b32 s{sMBF}, v{vPL+1}")
e(f"v_readfirstlane_b32 s{sLND}, v{vPL}")
e(f"v_mov_b64 v[{vP}:{vP+1}], v[{vPN}:{vPN+1}]")
e(f"v_mov_b64 v[{vP+2}:{vP+3}], v[{vPN+2}:{vPN+3}]")
e(f"s_and_b32 s{sT0}, s{sMBF}, s{sMRG}")
e("s_cbranch_scc1 L_v_merge")
lab("L_v_top3")
e(f"s_cmp_ge_i32 s{sLND}, s{sNK}")
e("s_cbranch_scc0 L_v_pv")
e(ADV[2])
e("s_waitcnt lgkmcnt(0)")
e(f"ds_write_b32 v{vFW}, v{vFV}")
e(f"ds_read_b64 v[{vPL}:{vPL+1}], v{vPA}")
e(f"ds_read_b128 v[{vPN}:{vPN+3}], v{vPW}")
for i in range(8):
    e(PV[i]); e(VR[2*i]); e(VR[2*i+1])
e(ADV[0]); e(ADV[1]); e(ADV[3])
e("s_branch L_v_top")
lab("L_v_pv")
for i in range(8):
    if i: e(f"s_waitcnt lgkmcnt({14-2*i})")
    if i == 7:
        e(f"ds_write_b32 v{vFW}, v{vFV}")
        e(f"ds_read_b64 v[{vPL}:{vPL+1}], v{vPA}")
    e(PV[i])
e(f"s_cmp_ge_i32 s{sTN}, 0")
e("s_cbranch_scc1 L_v_next")
lab("L_v_empty")
e(f"s_cmp_lt_u32 s{sTB1}, s{sTTC}")
e("s_cbranch_scc1 L_v_more")
stamp(2)
e(f"s_cmp_lg_u32 s{sMRG}, 0")
e("s_cbranch_scc1 L_c_mwait0")
lab("L_c_store")
e(f"v_mov_b32 v{vT0}, v{vLS}")
e(f"v_and_b32 v{vT2}, 15, v{vLANE}")
e(f"v_lshl_add_u32 v{vT2}, v{vT2}, 8, s{sQO}")
e(f"v_permlane32_swap_b32 v{vLS}, v{vT0}")
e("s_nop 0")
e(f"v_add_f32 v{vLS}, v{vLS}, v{vT0}")
e(f"v_mov_b32 v{vT0}, v{vLS}")
e(f"v_lshl_add_u32 v{vT2}, v{vG}, 4, v{vT2}")
e("s_nop 0")
e(f"v_permlane16_swap_b32 v{vLS}, v{vT0}")
e("s_nop 0")
e(f"v_add_f32 v{vLS}, v{vLS}, v{vT0}")
e(f"v_rcp_f32 v{vMN}, v{vLS}")
e(f"s_cmp_lg_u32 s{sROLE}, 0")
scale_o(vMN)
for r in range(16):
    e(f"v_cvt_pk_bf16_f32 v{vKF+r}, v{vO+2*r}, v{vO+2*r+1}")
e("s_cbranch_scc1 L_publish")
def out_stores(fl, step=64):
    for j in range(4):
        e(f"global_store_dwordx4 v{vT2}, v[{vKF+4*j}:{vKF+4*j+3}], s[{sOUT}:{sOUT+1}] offset:{step*j}{fl}")
out_stores(OST)
e(FIN)

def l_total():
    e(f"v_mov_b32 v{vT0}, v{vLS}")
    e(f"v_and_b32 v{vT2}, 15, v{vLANE}")
    e(f"v_lshl_add_u32 v{vT2}, v{vT2}, 8, s{sQO}")
    e(f"v_permlane32_swap_b32 v{vLS}, v{vT0}")
    e("s_nop 0")
    e(f"v_add_f32 v{vLS}, v{vLS}, v{vT0}")
    e(f"v_mov_b32 v{vT0}, v{vLS}")
    e(f"v_lshl_add_u32 v{vT2}, v{vG}, 4, v{vT2}")
    e("s_nop 0")
    e(f"v_permlane16_swap_b32 v{vLS}, v{vT0}")
    e("s_nop 0")
    e(f"v_add_f32 v{vLS}, v{vLS}, v{vT0}")
    e(f"v_rcp_f32 v{vMN}, v{vLS}")
if a.last:
    lab("L_v_islast")
    c("closing tile of an owner with nothing pending: take the short path")
    e(f"s_sub_u32 s{sT0}, s{sTTC}, s{sTB1}")
    e(f"s_or_b32 s{sT0}, s{sT0}, s{sMRG}")
    e(f"s_or_b32 s{sT0}, s{sT0}, s{sROLE}")
    e(f"s_or_b32 s{sT0}, s{sT0}, s{sRS}")
    e(f"s_or_b32 s{sT0}, s{sT0}, s{sRS+1}")
    e("s_cbranch_scc1 L_v_next2")
    e(f"ds_read_b128 v[{vP}:{vP+3}], v{vPW}")
    e(f"ds_read_b64 v[{vPL}:{vPL+1}], v{vPA}")
    l_total()
    e("s_waitcnt lgkmcnt(0)")
    e(f"v_readfirstlane_b32 s{sLND}, v{vPL}")
    e(f"s_cmp_ge_i32 s{sLND}, s{sNK}")
    e("s_cbranch_scc1 L_v_lrd")
    poll("L_v_lpoll")
    lab("L_v_lrd")
    for x in VR: e(x)
    def fin_j(j):
        r = []
        for k in range(4):
            q = vO + 8 * j + 2 * k
            r.append(f"v_pk_mul_f32 v[{q}:{q+1}], v[{q}:{q+1}], v[{vMN}:{vMN+1}] op_sel_hi:[1,0]")
        for k in range(4):
            r.append(f"v_cvt_pk_bf16_f32 v{vKF+4*j+k}, v{vO+8*j+2*k}, v{vO+8*j+2*k+1}")
        r.append(f"global_store_dwordx4 v{vT2}, v[{vKF+4*j}:{vKF+4*j+3}], s[{sOUT}:{sOUT+1}] offset:{64*j}{OST}")
        return r
    f0 = fin_j(0)
    for i in range(8):
        e(f"s_waitcnt lgkmcnt({14-2*i})")
        e(PV[i])
        if i == 5: e(f0[0]); e(f0[1])
        if i == 6: e(f0[2]); e(f0[3])
    stamp(2)
    for x in f0[4:] + fin_j(1) + fin_j(2) + fin_j(3): e(x)
    e(f"ds_write_b32 v{vFW}, v{vFV}")
    e(FIN)

lab("L_v_resc")
e(f"s_bitset0_b64 s[{sRS}:{sRS+1}], s{sT0}")
alpha_addr()
e("s_waitcnt vmcnt(0)")
e(f"global_load_dword v{vAL}, v{vT1}, s[{sWS}:{sWS+1}] sc1")
e("s_waitcnt vmcnt(0)")
scale_o(vAL)
e("s_branch L_v_top2")

lab("L_v_merge")
c("only once no rescale is pending; the reference max stays, so the partial's max must not be far above it")
e(f"s_cmp_eq_u64 s[{sRS}:{sRS+1}], 0")
e("s_cbranch_scc0 L_v_top3")
lab("L_c_merge")
e(f"s_mul_i32 s{sT0}, s{sCI}, {MBS}")
e(f"s_add_u32 s{sT0}, s{sT0}, {MB}")
e(f"v_and_b32 v{vT1}, 15, v{vLANE}")
e(f"v_lshl_add_u32 v{vT0}, v{vLANE}, 4, s{sT0}")
e(f"v_lshl_add_u32 v{vT1}, v{vT1}, 3, s{sT0}")
e("s_waitcnt lgkmcnt(0)")
e(f"ds_write_b32 v{vFW}, v{vFV}")
e(f"ds_read_b64 v[{vT4}:{vT5}], v{vT1} offset:4096")
for i in range(4):
    e(f"ds_read_b128 v[{vKF+4*i}:{vKF+4*i+3}], v{vT0} offset:{1024*i}")
e(f"s_cmp_eq_u32 s{sPLN}, 2")
e("s_waitcnt lgkmcnt(0)")
e("s_cbranch_scc1 L_c_mfin")
e(f"v_sub_f32 v{vT4}, v{vT4}, v{vM}")
e(f"v_cmp_nge_f32 vcc, 0x41800000, v{vT4}")
e(f"s_mov_b32 s{sMRG}, 2")
e("s_nop 3")
e("s_cbranch_vccnz L_v_top3")
e("s_branch L_c_madd")
lab("L_c_mfin")
e(f"v_max_f32 v{vMN}, v{vM}, v{vT4}")
e(f"v_sub_f32 v{vAL}, v{vM}, v{vMN}")
e(f"v_sub_f32 v{vT4}, v{vT4}, v{vMN}")
e(f"v_exp_f32 v{vAL}, v{vAL}")
e("s_nop 0")
e(f"v_mul_f32 v{vLS}, v{vLS}, v{vAL}")
scale_o(vAL)
lab("L_c_madd")
e(f"v_exp_f32 v{vT4}, v{vT4}")
e(f"s_mov_b32 s{sMRG}, 0")
e(f"v_mul_f32 v{vT4}, v{vT4}, v{vT5}")
e(f"v_fmac_f32 v{vLS}, 0x3e800000, v{vT4}")
for r in range(16):
    t = vKF + 16 + 2 * (r % 4)
    e(f"v_lshlrev_b32 v{t}, 16, v{vKF+r}")
    e(f"v_and_b32 v{t+1}, 0xffff0000, v{vKF+r}")
    e(f"v_pk_fma_f32 v[{vO+2*r}:{vO+2*r+1}], v[{t}:{t+1}], v[{vT4}:{vT4+1}], v[{vO+2*r}:{vO+2*r+1}] op_sel_hi:[1,0,1]")
e(f"s_cmp_eq_u32 s{sPLN}, 2")
e("s_cbranch_scc0 L_v_top3")
e("s_branch L_c_store")
lab("L_c_mwait0")
e(f"s_mov_b32 s{sPLN}, 2")
lab("L_c_mwait")
e(f"ds_read_b64 v[{vPL}:{vPL+1}], v{vPA}")
e("s_waitcnt lgkmcnt(0)")
e(f"v_readfirstlane_b32 s{sMBF}, v{vPL+1}")
e(f"s_cmp_lg_u32 s{sMBF}, 0")
e("s_cbranch_scc1 L_c_merge")
spin_tail("L_c_mwait")

def ws_base(sb):
    e(f"s_lshl3_add_u32 s{sT0}, s{sb}, s{sH}")
    e(f"s_lshl_b32 s{sT0}, s{sT0}, 9")
    if WS0: e(f"s_add_u32 s{sT0}, s{sT0}, {WS0}")

lab("L_publish")
if "nopub" in DBG: e("s_endpgm")
e(f"v_lshl_add_u32 v{vT2}, v{vLANE}, 4, s{sQO}")
e(f"s_lshl_b32 s{sT2}, s{sPB}, 2")
e(f"v_mov_b32 v{vT3}, s{sT2}")
e(f"v_lshlrev_b32 v{vT4}, 1, v{vT3}")
e(f"v_add_u32 v{vT4}, {CTRL+68}, v{vT4}")
e(f"ds_read_b32 v{vT4}, v{vT4}")
ws_base(sPB)
e(f"s_lshl2_add_u32 s{sT1}, s{sCI}, s{sT0}")
e(f"v_mov_b32 v{vT5}, s{sT1}")
e(f"s_lshl_b32 s{sT1}, s{sCI}, 7")
e(f"s_add_u32 s{sT0}, s{sT0}, s{sT1}")
e(f"v_lshl_add_u32 v{vT1}, v{vLANE}, 3, s{sT0}")
e(f"s_getreg_b32 s{sT2}, hwreg(HW_REG_XCC_ID, 0, 4)")
e(f"s_lshl_b32 s{sT2}, s{sT2}, 4")
e(f"s_or_b32 s{sT2}, s{sT2}, s{sH}")
e(f"s_or_b32 s{sT2}, s{sT2}, 0x100")
e("s_waitcnt lgkmcnt(0)")
e(f"v_readfirstlane_b32 s{sT1}, v{vT4}")
e(f"s_lshr_b32 s{sT1}, s{sT1}, 16")
e(f"s_cmp_eq_u32 s{sT1}, s{sT2}")
e("s_cbranch_scc1 L_pub_fast")
e(f"global_load_dword v{vT4}, v{vT3}, s[{sDBG}:{sDBG+1}] offset:128 sc1")
e("s_waitcnt vmcnt(0)")
e(f"v_readfirstlane_b32 s{sT1}, v{vT4}")
e(f"s_lshr_b32 s{sT1}, s{sT1}, 16")
e(f"s_cmp_eq_u32 s{sT1}, s{sT2}")
e("s_cbranch_scc0 L_pub_slow")
lab("L_pub_fast")
c("the receiver runs on this die and has cleared its flag words: hand over inside the shared L2")
out_stores("", 1024)
e("s_mov_b64 exec, 0xffff")
e(f"global_store_dwordx2 v{vT1}, v[{vM}:{vM+1}], s[{sWS}:{sWS+1}]")
e(f"v_mov_b32 v{vT4}, 1")
e("s_waitcnt vmcnt(0)")
e("s_mov_b64 exec, 1")
e(f"global_store_dword v{vT5}, v{vT4}, s[{sWS}:{sWS+1}] offset:256")
e(FIN)
lab("L_pub_slow")
c("any other placement: write through to memory, then set a bit with a device-wide atomic")
out_stores(" sc1", 1024)
e("s_mov_b64 exec, 0xffff")
e(f"global_store_dwordx2 v{vT1}, v[{vM}:{vM+1}], s[{sWS}:{sWS+1}] sc1")
e(f"s_lshl1_add_u32 s{sT1}, s{sH}, s{sCI}")
e(f"s_lshl_b32 s{sT1}, 1, s{sT1}")
e(f"v_mov_b32 v{vT4}, s{sT1}")
e("s_waitcnt vmcnt(0)")
e("s_mov_b64 exec, 1")
e(f"global_atomic_add v{vT3}, v{vT4}, s[{sDBG}:{sDBG+1}]")
e(FIN)

vRW = vL
vKEY, vRK = 19, 20
lab("L_ctl0")
if a.skew:
    c("dies are not started at the same instant: the first eight workgroups post when they started")
    e(f"s_memrealtime s[{sMA}:{sMA+1}]")
    e(f"s_lshl2_add_u32 s{sT0}, s{sH}, 2")
    e(f"v_mov_b32 v{vT4}, s{sT0}")
    e(f"s_cmp_lg_u32 s{sB}, 0")
    e("s_waitcnt lgkmcnt(0)")
    e("s_cbranch_scc1 L_ctl1")
    e(f"s_or_b32 s{sT0}, s{sMA}, 0x8000")
    e(f"v_mov_b32 v{vT5}, s{sT0}")
    e("s_mov_b64 exec, 1")
    e(f"global_store_short v{vT4}, v{vT5}, s[{sDBG}:{sDBG+1}] sc1")
    e("s_mov_b64 exec, -1")
    lab("L_ctl1")
e("s_barrier")
e("s_branch L_ctl")
lab("L_planner")
e(f"s_cmp_eq_u32 s{sW}, 5")
e("s_cbranch_scc1 L_ctl0")
e(f"s_sub_u32 s{sCI}, s{sW}, 3")
e(f"s_lshl_b32 s{sSB}, s{sCI}, 8")
e(f"s_add_u32 s{sSB}, s{sSB}, {CNT}")
e(f"v_lshl_add_u32 v{vPA}, v{vLANE}, 2, s{sSB}")
e(f"s_lshl_b32 s{sT2}, s{sCI}, 7")
e(f"s_add_u32 s{sT2}, s{sT2}, {KEYS}")
e(f"v_add_u32 v{vT3}, s{sT2}, v{vT3}")
e(f"v_lshrrev_b32 v{vT4}, 5, v{vLANE}")
e(f"v_lshl_add_u32 v{vT4}, v{vT4}, 6, s{sT2}")
e(f"v_mov_b32 v{vT5}, 2048")
e("s_barrier")
e("s_waitcnt vmcnt(0)")
e(f"v_cmp_gt_i32 s[{sZQ}:{sZQ+1}], 1, v{vN}")
e(f"v_min_i32 v{vN}, v{vN}, v{vT5}")
e("s_nop 0")
e(f"v_cndmask_b32 v{vN}, v{vN}, v{vT5}, s[{sZQ}:{sZQ+1}]")
e(f"v_add_u32 v{vN}, 15, v{vN}")
e(f"v_lshrrev_b32 v{vN}, 4, v{vN}")
e(f"v_lshl_or_b32 v{vKEY}, v{vN}, 5, v{vT0}")
e(f"ds_write_b32 v{vT3}, v{vKEY}")
for i in range(4):
    e(f"ds_read_b128 v[{vKF+4*i}:{vKF+4*i+3}], v{vT4} offset:{16*i}")
e(f"v_mov_b32 v{vRK}, 0")
e(f"v_readlane_b32 s{sNB}, v{vN}, s{sB}")
e("s_waitcnt lgkmcnt(0)")
c("rank of every batch by block count; the batch of rank 31-r is the partner")
for i in range(16):
    e(f"v_sub_u32 v{vKF+i}, v{vKF+i}, v{vKEY}")
for i in range(16):
    e(f"v_alignbit_b32 v{vRK}, v{vRK}, v{vKF+i}, 31")
e(f"v_bcnt_u32_b32 v{vRK}, v{vRK}, 0")
e(f"v_mov_b32 v{vT2}, v{vRK}")
derive_nb()
e(f"v_permlane32_swap_b32 v{vRK}, v{vT2}")
e("s_nop 0")
e(f"v_add_u32 v{vRK}, v{vRK}, v{vT2}")
e("s_nop 0")
e(f"v_readlane_b32 s{sRK}, v{vRK}, s{sB}")
e(f"s_sub_u32 s{sT0}, 31, s{sRK}")
e(f"v_cmp_eq_u32 vcc, s{sT0}, v{vRK}")
e(f"s_ff1_i32_b32 s{sPB}, vcc_lo")
e(f"v_readlane_b32 s{sNP}, v{vN}, s{sPB}")
e(f"s_max_u32 s{sT0}, s{sNB}, s{sNP}")
e(f"s_min_u32 s{sT1}, s{sNB}, s{sNP}")
e(f"s_sub_u32 s{sX}, s{sT0}, s{sT1}")
e(f"s_add_u32 s{sX}, s{sX}, 2")
e(f"s_lshr_b32 s{sX}, s{sX}, 2")
e(f"s_cmp_lt_u32 s{sT0}, {4*NUM+8}")
e(f"s_cselect_b32 s{sX}, 0, s{sX}")
if a.nopair: e(f"s_mov_b32 s{sX}, 0")
e(f"s_cmp_ge_u32 s{sRK}, 16")
e(f"s_cselect_b32 s{sLO}, s{sX}, 0")
e(f"s_cselect_b32 s{sTB}, 0, s{sX}")
e(f"s_cmp_eq_u32 s{sCI}, 0")
e("s_cbranch_scc1 L_pl_norow")
e(f"s_lshl_b32 s{sT0}, s{sPB}, 9")
e(f"v_lshl_add_u32 v{vT1}, v{vLANE}, 3, s{sT0}")
e(f"global_load_dwordx2 v[{vRW}:{vRW+1}], v{vT1}, s[{sBT}:{sBT+1}]")
lab("L_pl_norow")
e(f"s_sub_u32 s{sTA}, s{sNTL}, s{sLO}")
e(f"s_add_u32 s{sT}, s{sTA}, s{sTB}")
e(f"s_mul_i32 s{sF}, s{sT}, {a.fnum}")
e(f"s_lshr_b32 s{sF}, s{sF}, 6")
e(f"s_min_u32 s{sWB}, s{sTA}, {a.UB}")
e(f"s_sub_i32 s{sF}, s{sF}, s{sWB}")
e(f"s_max_i32 s{sF}, s{sF}, s{sTB}")
e(f"s_max_i32 s{sF}, s{sF}, 1")
e(f"v_cvt_f32_u32 v{vT2}, s{sF}")
e(f"v_subrev_u32 v{vT3}, s{sWB}, v{vLANE}")
e(f"v_rcp_f32 v{vT2}, v{vT2}")
e(f"v_mul_i32_i24 v{vT4}, s{sTB}, v{vT3}")
e(f"v_add_u32 v{vT5}, s{sTB}, v{vT4}")
e(f"v_cvt_f32_i32 v{vT4}, v{vT4}")
e(f"v_cvt_f32_i32 v{vT5}, v{vT5}")
e(f"v_add_f32 v{vT4}, 0.5, v{vT4}")
e(f"v_add_f32 v{vT5}, 0.5, v{vT5}")
e(f"v_mul_f32 v{vT4}, v{vT4}, v{vT2}")
e(f"v_mul_f32 v{vT5}, v{vT5}, v{vT2}")
e(f"v_floor_f32 v{vT4}, v{vT4}")
e(f"v_floor_f32 v{vT5}, v{vT5}")
e(f"v_cmp_gt_u32 vcc, s{sF}, v{vT3}")
e(f"v_cmp_gt_f32 s[{sMBK}:{sMBK+1}], v{vT5}, v{vT4}")
e(f"s_sub_u32 s{sT0}, s{sT}, s{sNU}")
e(f"v_subrev_u32 v{vT3}, s{sNU}, v{vLANE}")
e(f"v_cmp_gt_u32 s[{sMA}:{sMA+1}], s{sT0}, v{vT3}")
e(f"s_and_b64 s[{sMBK}:{sMBK+1}], s[{sMBK}:{sMBK+1}], vcc")
e(f"s_andn2_b64 s[{sMA}:{sMA+1}], s[{sMA}:{sMA+1}], s[{sMBK}:{sMBK+1}]")
c(f"own tiles to sort: logical [NU+given, ntile); donated: the partner's logical [{NUM}, {NUM}+TB)")
mfirst = a.mfirst and not a.nosort
if mfirst:
    e(f"s_ff1_i32_b64 s{sT2}, s[{sMA}:{sMA+1}]")
else:
    e(f"s_flbit_i32_b64 s{sT2}, s[{sMA}:{sMA+1}]")
    e(f"s_sub_u32 s{sT2}, 63, s{sT2}")
e(f"s_lshl_b32 s{sT2}, s{sT2}, 8")
e(f"s_or_b32 s{sWB}, s{sT2}, 1")
e(f"s_min_u32 s{sMRG}, s{sLO}, 1")
e(f"s_add_u32 s{sLO}, s{sLO}, s{sNU}")
e(f"s_sub_u32 s{sHI}, s{sNTL}, s{sLO}")
e(f"s_sub_u32 s{sT3}, s{sNTL}, 1")
e(f"s_mov_b32 s{sLBASE}, {LA}")
e(f"s_cmp_eq_u32 s{sCI}, 0")
e("s_cbranch_scc1 L_pl_a")
e(f"s_mov_b32 s{sLO}, {NUM}")
e(f"s_mov_b32 s{sHI}, s{sTB}")
e(f"s_mov_b32 s{sT3}, -1")
e(f"s_mov_b32 s{sLBASE}, {LB}")
e(f"s_mov_b64 s[{sMA}:{sMA+1}], s[{sMBK}:{sMBK+1}]")
e("s_branch L_pl_sort")
lab("L_pl_a")
e(f"s_lshl_b32 s{sT0}, s{sT}, 8")
e(f"s_or_b32 s{sT0}, s{sT0}, s{sMRG}")
e(f"v_mov_b32 v{vT2}, s{sMA}")
e(f"v_mov_b32 v{vT3}, s{sMA+1}")
e(f"v_mov_b32 v{vT4}, s{sT0}")
e(f"v_mov_b32 v{vT5}, s{sWB}")
e(f"v_mov_b32 v{vT1}, {REC0}")
e(f"ds_write_b128 v{vT1}, v[{vT2}:{vT5}]")
lab("L_pl_sort")
e(f"v_subrev_u32 v{vT0}, s{sLO}, v{vLANE}")
e(f"v_cmp_gt_u32 vcc, s{sHI}, v{vT0}")
e(f"v_mov_b32 v{vT5}, 1")
e("s_waitcnt vmcnt(0)")
if a.nosort:
    e(f"v_lshlrev_b32 v{vT2}, 1, v{vT0}")
    e(f"v_add_u32 v{vT3}, 1, v{vT2}")
else:
    c("counting sort of the block ids into 64 buckets of ascending physical address")
    e(f"v_lshrrev_b32 v{vT0}, 6, v{vRW}")
    e(f"v_lshrrev_b32 v{vT1}, 6, v{vRW+1}")
    e(f"v_cmp_eq_u32 s[{sRK+2}:{sRK+3}], s{sT3}, v{vLANE}")
    if mfirst:
        e(f"v_med3_u32 v{vT0}, v{vT0}, 1, 63")
        e(f"v_med3_u32 v{vT1}, v{vT1}, 1, 63")
    else:
        e(f"v_min_u32 v{vT0}, 62, v{vT0}")
        e(f"v_min_u32 v{vT1}, 62, v{vT1}")
    fb = 0 if mfirst else 63
    e(f"v_cndmask_b32 v{vT0}, v{vT0}, {fb}, s[{sRK+2}:{sRK+3}]")
    e(f"v_cndmask_b32 v{vT1}, v{vT1}, {fb}, s[{sRK+2}:{sRK+3}]")
    e(f"v_lshlrev_b32 v{vT0}, 2, v{vT0}")
    e(f"v_lshlrev_b32 v{vT1}, 2, v{vT1}")
    e(f"v_add_u32 v{vKF}, s{sSB}, v{vT0}")
    e(f"v_add_u32 v{vKF+1}, s{sSB}, v{vT1}")
    e("s_mov_b64 exec, vcc")
    e(f"ds_add_rtn_u32 v{vT2}, v{vKF}, v{vT5}")
    e(f"ds_add_rtn_u32 v{vT3}, v{vKF+1}, v{vT5}")
    e("s_mov_b64 exec, -1")
    e(f"ds_read_b32 v{vT4}, v{vPA}")
    e("s_waitcnt lgkmcnt(0)")
    e(f"v_mov_b32 v{vKF+2}, v{vT4}")
    for sh in (1, 2, 4, 8):
        e("s_nop 1")
        e(f"v_add_u32_dpp v{vT4}, v{vT4}, v{vT4} row_shr:{sh} row_mask:0xf bank_mask:0xf bound_ctrl:0")
    e("s_nop 1")
    e(f"v_add_u32_dpp v{vT4}, v{vT4}, v{vT4} row_bcast:15 row_mask:0xa bank_mask:0xf")
    e("s_nop 1")
    e(f"v_add_u32_dpp v{vT4}, v{vT4}, v{vT4} row_bcast:31 row_mask:0xc bank_mask:0xf")
    e(f"v_sub_u32 v{vT4}, v{vT4}, v{vKF+2}")
    e(f"ds_bpermute_b32 v{vT0}, v{vT0}, v{vT4}")
    e(f"ds_bpermute_b32 v{vT1}, v{vT1}, v{vT4}")
    e("s_waitcnt lgkmcnt(0)")
    e(f"v_add_u32 v{vT2}, v{vT2}, v{vT0}")
    e(f"v_add_u32 v{vT3}, v{vT3}, v{vT1}")
e(f"v_lshlrev_b32 v{vRW}, 15, v{vRW}")
e(f"v_lshlrev_b32 v{vRW+1}, 15, v{vRW+1}")
e(f"v_lshl_add_u32 v{vT2}, v{vT2}, 2, s{sLBASE}")
e(f"v_lshl_add_u32 v{vT3}, v{vT3}, 2, s{sLBASE}")
e("s_mov_b64 exec, vcc")
e(f"ds_write_b32 v{vT2}, v{vRW}")
e(f"ds_write_b32 v{vT3}, v{vRW+1}")
e("s_mov_b64 exec, -1")
c("place the sorted tiles at their stream positions; flags: 1 valid, 2 masked, 4 last of batch, 8 last of stream")
e(f"v_mbcnt_lo_u32_b32 v{vT0}, s{sMA}, 0")
e(f"v_mbcnt_hi_u32_b32 v{vT0}, s{sMA+1}, v{vT0}")
e(f"v_lshl_add_u32 v{vT0}, v{vT0}, 3, s{sLBASE}")
e(f"ds_read_b64 v[{vT2}:{vT3}], v{vT0}")
e(f"s_lshr_b32 s{sT0}, s{sWB}, 8")
e(f"s_sub_u32 s{sT1}, s{sT}, 1")
e(f"v_cmp_eq_u32 vcc, s{sT0}, v{vLANE}")
e(f"v_cmp_eq_u32 s[{sRK+2}:{sRK+3}], s{sT1}, v{vLANE}")
e(f"v_cmp_eq_u32 s[{sT2}:{sT2+1}], {G-1}, v{vLANE}")
e(f"v_cndmask_b32 v{vT4}, 1, 3, vcc")
e(f"v_cndmask_b32 v{vT5}, 0, 12, s[{sRK+2}:{sRK+3}]")
e(f"v_cndmask_b32 v{vT1}, 0, 4, s[{sT2}:{sT2+1}]")
e(f"v_or3_b32 v{vT4}, v{vT4}, v{vT5}, v{vT1}")
e(f"v_lshlrev_b32 v{vT0}, 3, v{vLANE}")
e(f"v_add_u32 v{vT0}, {SL}, v{vT0}")
e("s_waitcnt lgkmcnt(0)")
e(f"v_or_b32 v{vT2}, v{vT2}, v{vT4}")
e(f"s_mov_b64 exec, s[{sMA}:{sMA+1}]")
e(f"ds_write_b64 v{vT0}, v[{vT2}:{vT3}]")
e("s_mov_b64 exec, -1")
lab("L_pl_done")
e(f"s_cmp_lg_u32 s{sMRG}, 0")
e("s_cbranch_scc1 L_fetch")
e(f"s_cmp_eq_u32 s{sTB}, 0")
e("s_cbranch_scc1 L_fin")
c("become the consumer of the donated tiles")
load_q(sPB)
e(f"s_mov_b64 s[{sMALL}:{sMALL+1}], s[{sMBK}:{sMBK+1}]")
e(f"s_mov_b32 s{sM}, s{sMBK}")
e(f"s_and_b32 s{sM+1}, s{sMBK+1}, {RHI:#x}")
e(f"s_mov_b32 s{sTTC}, s{sT}")
e(f"s_min_u32 s{sTB1}, s{sT}, {G}")
e(f"s_mov_b32 s{sROLE}, 1")
e(f"s_mov_b32 s{sPLN}, 1")
e(f"s_lshr_b32 s{sT3}, s{sZQ}, s{sPB}")
e(f"s_and_b32 s{sT3}, s{sT3}, 1")
e("s_branch L_csetup")

lab("L_fetch")
e(f"s_cmp_lg_u32 s{sCI}, 0")
e("s_cbranch_scc1 L_fin")
rows_off(sB)
if a.otouch >= 0:
    c("make the lines that will carry the partial valid in L2 (a later read of write-only lines would go to memory)")
    e(f"v_lshl_add_u32 v{vT4}, v{vLANE}, 7, s{sQO}")
    e(f"global_load_dword v{vPF}, v{vT4}, s[{sOUT}:{sOUT+1}] {a.ofl.replace('+', ' ')}")
ws_base(sB)
e(f"v_lshl_add_u32 v{vT1}, v{vT0}, 3, s{sT0}")
e(f"v_mov_b32 v{vFW}, s{sT0}")
e(f"s_lshl_b32 s{sT2}, s{sB}, 2")
e(f"v_mov_b32 v{vT2}, s{sT2}")
e(f"v_mov_b32 v{vPA}, {CTRL+16}")
e("s_mov_b64 exec, 1")
e(f"s_mul_i32 s{sNEED}, s{sT}, {a.pollnum}")
e(f"s_lshr_b32 s{sNEED}, s{sNEED}, 5")
e(f"s_lshl_b32 s{sT3}, s{sH}, 1")
e(f"s_mov_b32 s{sMBF}, 0")
c("wait until wave 5 has cleared the flag words and the stream is far enough")
lab("L_f_wait")
e(f"ds_read_b64 v[{vPL}:{vPL+1}], v{vPA}")
e("s_waitcnt lgkmcnt(0)")
e(f"v_readfirstlane_b32 s{sLND}, v{vPL}")
e(f"v_readfirstlane_b32 s{sT0}, v{vPL+1}")
e(f"s_cmp_ge_i32 s{sLND}, s{sNEED}")
e(f"s_cselect_b32 s{sT0}, s{sT0}, 0")
e(f"s_cmp_lg_u32 s{sT0}, 0")
e("s_cbranch_scc1 L_f_poll")
spin_tail("L_f_wait", 8)
lab("L_f_poll")
if "nopoll" in DBG: e("s_branch L_f_got")
e(f"global_load_dwordx2 v[{vPL}:{vPL+1}], v{vFW}, s[{sWS}:{sWS+1}] offset:256 sc1")
e(f"s_add_u32 s{sMBF}, s{sMBF}, 1")
e(f"s_and_b32 s{sT0}, s{sMBF}, 3")
e(f"s_mov_b32 s{sT2}, 0")
e("s_cbranch_scc1 L_f_nodbg")
e(f"global_load_dword v{vT3}, v{vT2}, s[{sDBG}:{sDBG+1}] sc1")
e("s_waitcnt vmcnt(0)")
e(f"v_readfirstlane_b32 s{sT2}, v{vT3}")
e(f"s_lshr_b32 s{sT2}, s{sT2}, s{sT3}")
lab("L_f_nodbg")
e("s_waitcnt vmcnt(0)")
e(f"v_lshl_or_b32 v{vPL}, v{vPL+1}, 1, v{vPL}")
e("s_nop 0")
e(f"v_readfirstlane_b32 s{sT0}, v{vPL}")
e(f"s_or_b32 s{sT0}, s{sT0}, s{sT2}")
e(f"s_and_b32 s{sT0}, s{sT0}, 3")
e(f"s_cmp_eq_u32 s{sT0}, 3")
e("s_cbranch_scc1 L_f_got")
spin_tail("L_f_poll", a.psleep)
lab("L_f_got")
e("s_mov_b64 exec, -1")
e(f"v_lshl_add_u32 v{vT4}, v{vLANE}, 4, s{sQO}")
e(f"v_add_u32 v{vT5}, 4096, v{vT4}")
FLD = " " + a.fld if a.fld != "none" else ""
for cc in range(2):
    if "nofetch" in DBG:
        e(f"v_mov_b32 v{vM+2*cc}, 0"); e(f"v_mov_b32 v{vM+2*cc+1}, 0")
        continue
    e(f"global_load_dwordx2 v[{vM+2*cc}:{vM+2*cc+1}], v{vT1}, s[{sWS}:{sWS+1}] offset:{128*cc}{FLD}")
    for j in range(4):
        r = vKF + 16 * cc + 4 * j
        e(f"global_load_dwordx4 v[{r}:{r+3}], v{vT4+cc}, s[{sOUT}:{sOUT+1}] offset:{1024*j}{FLD}")
e(f"v_lshlrev_b32 v{vT2}, 4, v{vLANE}")
e(f"v_add_u32 v{vT2}, {MB}, v{vT2}")
e(f"v_lshlrev_b32 v{vT0}, 3, v{vT0}")
e(f"v_add_u32 v{vT0}, {MB}, v{vT0}")
e(f"v_mov_b32 v{vPL}, {CTRL+4}")
e(f"v_mov_b32 v{vT3}, 1")
for cc in range(2):
    e(f"s_waitcnt vmcnt({5-5*cc})")
    for j in range(4):
        r = vKF + 16 * cc + 4 * j
        e(f"ds_write_b128 v{vT2}, v[{r}:{r+3}] offset:{MBS*cc + 1024*j}")
    e(f"ds_write_b64 v{vT0}, v[{vM+2*cc}:{vM+2*cc+1}] offset:{MBS*cc + 4096}")
    e(f"ds_write_b32 v{vPL}, v{vT3} offset:{8*cc}")
e(FIN)

c("wave 5: workgroups that share an L2 post their remaining work; one that lags prefetches deeper")
lab("L_ctl")
e(f"v_mov_b32 v{vT1}, {REC0}")
e(f"v_mov_b32 v{vPA}, {CTRL+32}")
e(f"v_mov_b32 v{vFW}, {DEPW}")
e(f"s_lshl_b32 s{sT0}, s{sB}, 2")
e(f"v_mov_b32 v{vG}, s{sT0}")
e(f"v_mov_b32 v{vFV}, v{vT3}")
lo = sum((XT[i] & 255) << (8 * i) for i in range(4)); hi = sum((XT[4 + i] & 255) << (8 * i) for i in range(4))
e(f"s_getreg_b32 s{sT0}, hwreg(HW_REG_XCC_ID, 0, 3)")
e(f"s_mov_b32 s{sM}, {lo:#x}")
e(f"s_mov_b32 s{sM+1}, {hi:#x}")
e(f"s_lshl_b32 s{sT0}, s{sT0}, 3")
e(f"s_lshr_b64 s[{sM}:{sM+1}], s[{sM}:{sM+1}], s{sT0}")
e(f"s_sext_i32_i8 s{sBO}, s{sM}")
lab("L_g_plan")
e(f"ds_read_b128 v[{vT2}:{vT5}], v{vT1}")
e("s_waitcnt lgkmcnt(0)")
e(f"v_readfirstlane_b32 s{sT0}, v{vT5}")
e(f"v_readfirstlane_b32 s{sT}, v{vT4}")
e(f"s_cmp_lg_u32 s{sT0}, 0")
e("s_cbranch_scc1 L_g_go")
spin_tail("L_g_plan", 8)
lab("L_g_go")
e(f"s_and_b32 s{sMRG}, s{sT}, 1")
e("s_cbranch_scc0 L_g_nores")
c("a partial is expected: clear its flag words before anything is posted")
ws_base(sB)
e(f"v_mov_b32 v{vT0}, s{sT0}")
e(f"v_mov_b32 v{vT2}, 0")
e(f"v_mov_b32 v{vT3}, 0")
e(f"v_mov_b32 v{vT4}, {CTRL+20}")
e(f"v_mov_b32 v{vT5}, 1")
e("s_mov_b64 exec, 1")
e(f"global_store_dwordx2 v{vT0}, v[{vT2}:{vT3}], s[{sWS}:{sWS+1}] offset:256")
e("s_waitcnt vmcnt(0)")
e(f"ds_write_b32 v{vT4}, v{vT5}")
e("s_mov_b64 exec, -1")
lab("L_g_nores")
e(f"s_and_b32 s{sT0}, s{sDBG}, 127")
e("s_cbranch_scc1 L_fin")
c("posted word: remaining units + 1 | head << 16 | die << 20 | flags cleared << 24")
e(f"s_getreg_b32 s{sFB}, hwreg(HW_REG_XCC_ID, 0, 4)")
e(f"s_lshl4_add_u32 s{sFB}, s{sMRG}, s{sFB}")
e(f"s_lshl4_add_u32 s{sFB}, s{sFB}, s{sH}")
e(f"s_lshl_b32 s{sFB}, s{sFB}, 16")
e(f"s_lshr_b32 s{sT}, s{sT}, 8")
e(f"s_lshl1_add_u32 s{sTN}, s{sT}, 1")
e(f"v_lshlrev_b32 v{vT1}, 1, v{vFV}")
e(f"v_add_u32 v{vT1}, {CTRL+68}, v{vT1}")
e(f"v_mov_b32 v{vT2}, s{sFB}")
e("s_mov_b64 exec, 1")
e(f"global_store_dword v{vG}, v{vT2}, s[{sDBG}:{sDBG+1}] offset:128")
e("s_mov_b64 exec, -1")
if "prog2" in DBG: e("v_mov_b32 v50, 0")
if a.skew:
    e(f"s_mov_b32 s{sNEED}, 3")
    e(f"s_cmp_lt_u32 s{sT}, 8")
    e("s_cbranch_scc1 L_fin")
    lab("L_g_sw")
    e(f"ds_read_b32 v{vPL}, v{vPA}")
    e("s_waitcnt lgkmcnt(0)")
    e(f"v_readfirstlane_b32 s{sLND}, v{vPL}")
    e(f"s_cmp_ge_i32 s{sLND}, s{sNEED}")
    e("s_cbranch_scc1 L_g_sa")
    spin_tail("L_g_sw", 1)
    lab("L_g_sa")
    e(f"global_load_dword v{vT0}, v{vFV}, s[{sDBG}:{sDBG+1}] sc1")
    e("s_waitcnt vmcnt(0)")
    e(f"v_cmp_gt_i32 vcc, 0, v{vT0}")
    e(f"v_lshrrev_b32 v{vT0}, 16, v{vT0}")
    e(f"v_sub_u32 v{vT0}, s{sMA}, v{vT0}")
    e(f"v_bfe_i32 v{vT0}, v{vT0}, 0, 15")
    e(f"v_cndmask_b32 v{vT0}, 0, v{vT0}, vcc")
    for sh in (1, 2, 4):
        e("s_nop 1")
        op = "v_max_i32_dpp" if "ampmax" in DBG else "v_add_u32_dpp"
        e(f"{op} v{vT0}, v{vT0}, v{vT0} row_shr:{sh} row_mask:0xf bank_mask:0xf bound_ctrl:0")
    e("s_nop 0")
    e(f"v_readlane_b32 s{sT0}, v{vT0}, 7")
    if "ampmax" in DBG or "ampmean" in DBG:
        e(f"s_mul_i32 s{sMBK}, s{sT0}, {20 if 'ampmax' in DBG else 3}")
        e(f"s_max_i32 s{sMBK}, s{sMBK}, 0")
        e(f"s_add_u32 s{sMBK}, s{sMBK}, 3500")
        lab("L_amp")
        e("s_sleep 4")
        e(f"s_memrealtime s[{sLO}:{sLO+1}]")
        e("s_waitcnt lgkmcnt(0)")
        e(f"s_sub_u32 s{sT0}, s{sLO}, s{sMA}")
        e(f"s_cmp_lt_u32 s{sT0}, s{sMBK}")
        e("s_cbranch_scc1 L_amp")
        e("s_endpgm")
    e(f"s_mul_i32 s{sT0}, s{sT0}, {a.skew}")
    e(f"s_ashr_i32 s{sT0}, s{sT0}, 9")
    e(f"s_add_u32 s{sBO}, s{sBO}, s{sT0}")
e(f"s_mov_b32 s{sNEED}, {a.cstart}")
lab("L_g_next")
e(f"s_sub_u32 s{sT0}, s{sTN}, s{sNEED}")
e(f"s_cmp_lt_i32 s{sT0}, {a.cstop}")
e("s_cbranch_scc1 L_fin")
lab("L_g_w")
e(f"ds_read_b32 v{vPL}, v{vPA}")
e("s_waitcnt lgkmcnt(0)")
e(f"v_readfirstlane_b32 s{sLND}, v{vPL}")
e(f"s_cmp_ge_i32 s{sLND}, s{sNEED}")
e("s_cbranch_scc1 L_g_a")
spin_tail("L_g_w", 1)
lab("L_g_a")
if "prog2" in DBG:
    e(f"s_memrealtime s[{sST+2}:{sST+3}]")
    e(f"s_lshr_b32 m0, s{sLND}, 1")
    e("s_waitcnt lgkmcnt(0)")
    e(f"v_writelane_b32 v50, s{sST+2}, m0")
e(f"s_sub_u32 s{sNK}, s{sTN}, s{sLND}")
e(f"s_or_b32 s{sT0}, s{sNK}, s{sFB}")
e(f"v_mov_b32 v{vT2}, s{sT0}")
e("s_mov_b64 exec, 1")
e(f"global_store_dword v{vG}, v{vT2}, s[{sDBG}:{sDBG+1}] offset:128")
e("s_mov_b64 exec, -1")
e(f"global_load_dword v{vT0}, v{vFV}, s[{sDBG}:{sDBG+1}] offset:128 sc1")
e(f"s_add_u32 s{sNEED}, s{sLND}, {a.cstep}")
e(f"s_min_i32 s{sT3}, s{sBO}, 1")
e(f"s_max_i32 s{sT3}, s{sT3}, -1")
e(f"s_sub_u32 s{sBO}, s{sBO}, s{sT3}")
e("s_waitcnt vmcnt(0)")
e(f"ds_write_b32 v{vT1}, v{vT0}")
e(f"v_and_b32 v{vT0}, 0xffff, v{vT0}")
e(f"v_cmp_ne_u32 vcc, 0, v{vT0}")
for sh in (1, 2, 4, 8):
    e("s_nop 1")
    e(f"v_add_u32_dpp v{vT0}, v{vT0}, v{vT0} row_shr:{sh} row_mask:0xf bank_mask:0xf bound_ctrl:0")
e("s_nop 1")
e(f"v_add_u32_dpp v{vT0}, v{vT0}, v{vT0} row_bcast:15 row_mask:0xa bank_mask:0xf")
e(f"s_bcnt1_i32_b32 s{sT1}, vcc_lo")
e(f"v_readlane_b32 s{sT0}, v{vT0}, 31")
e(f"s_mul_i32 s{sT2}, s{sNK}, s{sT1}")
e(f"s_sub_u32 s{sT2}, s{sT2}, s{sT0}")
e(f"s_lshl_b32 s{sT2}, s{sT2}, 2")
for th, inc, cmp in ((CTH[0], -1, "lt"), (CTH[1], 1, "gt"), (CTH[2], 1, "gt")):
    e(f"s_mul_i32 s{sT0}, s{sT1}, {th - a.cbias}")
    e(f"s_cmp_{cmp}_i32 s{sT2}, s{sT0}")
    e(f"s_cselect_b32 s{sT0}, {inc}, 0")
    e(f"s_add_u32 s{sT3}, s{sT3}, s{sT0}")
e(f"s_max_i32 s{sT3}, s{sT3}, -1")
e(f"s_min_i32 s{sT3}, s{sT3}, 2")
e(f"v_mov_b32 v{vT2}, s{sT3}")
e(f"ds_write_b32 v{vFW}, v{vT2}")
e("s_branch L_g_next")

lab("L_fin")
if a.amp:
    if a.amp == "end":
        e(f"s_sub_u32 s{sT0}, s{sW}, 1")
        e(f"s_cmp_gt_u32 s{sT0}, 1")
    else:
        e(f"s_cmp_lg_u32 s{sW}, 0")
    e("s_cbranch_scc1 L_end")
    if a.ampwg >= 0:
        e(f"s_cmp_lg_u32 s2, {a.ampwg}")
        e("s_cbranch_scc1 L_end")
    e("s_waitcnt vmcnt(0) lgkmcnt(0)")
    if a.amp[:2] != "t0":
        e(f"s_memrealtime s[{sST+2}:{sST+3}]")
        e("s_waitcnt lgkmcnt(0)")
    e(f"s_sub_u32 s{sT1}, s{sST+2}, s{sST}")
    if a.amp[:2] != "t0": e(f"s_sub_u32 s{sT1}, s{sT1}, 2700")
    e(f"s_max_i32 s{sT1}, s{sT1}, 0")
    e(f"s_min_i32 s{sT1}, s{sT1}, 2000")
    e(f"s_mul_i32 s{sT1}, s{sT1}, 10")
    e(f"s_add_u32 s{sT1}, s{sT1}, 3500")
    lab("L_ampw")
    e("s_sleep 2")
    e(f"s_memrealtime s[{sST+2}:{sST+3}]")
    e("s_waitcnt lgkmcnt(0)")
    e(f"s_sub_u32 s{sT0}, s{sST+2}, s{sST}")
    e(f"s_cmp_lt_u32 s{sT0}, s{sT1}")
    e("s_cbranch_scc1 L_ampw")
if "prog2" in DBG or "prog3" in DBG:
    e(f"s_cmp_lg_u32 s{sW}, {5 if 'prog2' in DBG else 0}")
    e("s_cbranch_scc1 L_np2")
    e(f"s_lshl_b32 s{sT0}, s2, 8")
    e(f"s_add_u32 s{sT0}, s{sT0}, 0x400000")
    e(f"v_lshl_add_u32 v51, v{vLANE}, 2, s{sT0}")
    e(f"global_store_dword v51, v50, s[{sWS}:{sWS+1}]")
    lab("L_np2")
if a.stamps:
    e(f"s_cmp_gt_u32 s{sW}, 2")
    e("s_cbranch_scc1 L_end")
    e("s_mov_b64 exec, -1")
    e("s_waitcnt vmcnt(0) lgkmcnt(0)")
    stamp(3)
    e(f"s_getreg_b32 s{sT0}, hwreg(HW_REG_XCC_ID)")
    e("s_waitcnt lgkmcnt(0)")
    for i in range(8):
        e(f"v_mov_b32 v{64+i}, s{sST+i}")
    e(f"v_mov_b32 v72, s{sT0}")
    e(f"s_sub_u32 s{sT1}, {SPIN}, s{sSPIN}")
    e(f"v_mov_b32 v73, s{sT1}")
    e(f"v_mov_b32 v74, s{sT}")
    e(f"v_mov_b32 v75, 0")
    e(f"s_mul_i32 s{sT0}, s2, {NW}")
    e(f"s_add_u32 s{sT0}, s{sT0}, s{sW}")
    e(f"s_lshl_b32 s{sT0}, s{sT0}, 6")
    e(f"v_mov_b32 v80, s{sT0}")
    e("s_mov_b64 exec, 1")
    e(f"global_store_dwordx4 v80, v[64:67], s[{sWS}:{sWS+1}]")
    e(f"global_store_dwordx4 v80, v[68:71], s[{sWS}:{sWS+1}] offset:16")
    e(f"global_store_dwordx4 v80, v[72:75], s[{sWS}:{sWS+1}] offset:32")
lab("L_end")
e("s_endpgm")
out.append('.section .rodata,"a"')
out.append(".p2align 6")
out.append(f".amdhsa_kernel {NAME}_kernel")
out.append(f"  .amdhsa_next_free_vgpr {NV}")
out.append("  .amdhsa_next_free_sgpr 102")
out.append(f"  .amdhsa_accum_offset {NV}")
out.append("  .amdhsa_group_segment_fixed_size 0")
out.append("  .amdhsa_kernarg_size 64")
out.append("  .amdhsa_user_sgpr_count 2")
out.append("  .amdhsa_user_sgpr_kernarg_segment_ptr 1")
out.append("  .amdhsa_system_sgpr_workgroup_id_x 1")
out.append("  .amdhsa_float_denorm_mode_32 3")
out.append(".end_amdhsa_kernel")
open(a.o, "w").write("\n".join(out) + "\n")
```

```python
import sys, argparse
NAME = "standalone__paged_block_table_kv_pagedattention__sampling"
HEADER = open("cdna_kernels/" + NAME + ".s.ref").read().split("; Override")[0]

ap = argparse.ArgumentParser()
ap.add_argument("-o", default="/dev/stdout")
ap.add_argument("--map", default="plain")
ap.add_argument("--hrot", type=int, default=0)
ap.add_argument("--D", type=int, default=21)
ap.add_argument("--D0", type=int, default=26)
ap.add_argument("--NS", type=int, default=6)
ap.add_argument("--G", type=int, default=50)
ap.add_argument("--fnum", type=int, default=36)
ap.add_argument("--pollnum", type=int, default=53)
ap.add_argument("--psleep", type=int, default=12)
ap.add_argument("--UB", type=int, default=8)
ap.add_argument("--mfirst", type=int, default=1)
ap.add_argument("--cth", default="-2,2,5")
ap.add_argument("--cbias", type=int, default=7)
ap.add_argument("--cstart", type=int, default=8)
ap.add_argument("--cstop", type=int, default=4)
ap.add_argument("--cstep", type=int, default=3)
ap.add_argument("--xt", default="7,-8,7,-14,9,-2,8,-7")
ap.add_argument("--NUM", type=int, default=4)
ap.add_argument("--last", type=int, default=1)
ap.add_argument("--hold", default="")
ap.add_argument("--ost", default="")
ap.add_argument("--wb", type=int, default=0)
ap.add_argument("--skew", type=int, default=0)
ap.add_argument("--dv", default="-1,1,3")
ap.add_argument("--fpf", type=int, default=6)
ap.add_argument("--fld", default="sc1")
ap.add_argument("--opf", type=int, default=0)
ap.add_argument("--otouch", type=int, default=0)
ap.add_argument("--ospread", type=int, default=1)
ap.add_argument("--ofl", default="")
ap.add_argument("--DM", type=int, default=0)
ap.add_argument("--NE", type=int, default=3)
ap.add_argument("--amp", default="")
ap.add_argument("--ampwg", type=int, default=-1)
ap.add_argument("--tlb", default="")
ap.add_argument("--tlbs", type=int, default=21)
ap.add_argument("--nosort", action="store_true")
ap.add_argument("--nopair", action="store_true")
ap.add_argument("--limf", default="0x43800000")
ap.add_argument("--dbg", default="")
ap.add_argument("--stamps", action="store_true")
a = ap.parse_args()
NT = " nt"
OST = "" if not a.ost else " " + a.ost.replace("+", " ")
DBG = set(a.dbg.split(","))
D, D0, NS, G = a.D, a.D0, a.NS, a.G
assert 24 <= D0 <= 32 and (D - 2) // 8 == (D + 1) // 8 == 2 and 32 <= G < 64
CTH = [int(x) for x in a.cth.split(",")]
XT = [int(x) for x in a.xt.split(",")]
DV = [int(x) for x in a.dv.split(",")]
assert 17 <= D + DV[0] and D + DV[2] <= 24
DIVM = {5: (205, 10), 6: (43, 8), 7: (147, 10), 8: (1, 3), 10: (205, 11), 12: (171, 11)}[NS]
assert all((u * DIVM[0]) >> DIVM[1] == u // NS for u in range(129))
NW = 6
KBYTES = 4100 * 32768
SPIN = 1 << 22
NUM = a.NUM

RING = NS * 8192
PST = RING
MB = PST + G * 2048
MBS = 4224
CTRL = MB + 2 * MBS
FREE = CTRL + 512
REC0 = FREE + 128
DEPW = REC0 + 16
SL = FREE + 256
CNT = SL + 768
LA = CNT + 512
LB = LA + 512
KEYS = LB + 512
LDS = KEYS + 256
assert LDS <= 163840, LDS
WS0 = 0x100000 if a.stamps else 0
WSA = WS0 + 0x40000

out = []
def e(s): out.append("    " + s)
def lab(s): out.append(s + ":")
def c(s): out.append("    ; " + s)

sQ, sK, sV, sBT, sCL, sOUT, sDBG, sWS = 4, 6, 8, 10, 12, 14, 16, 18
sRD = 20
sB, sH, sW, sCLV = 28, 29, 30, 31
sT0, sT1, sT2, sT3 = 32, 33, 34, 35
sPC = 36
sSPIN = 38
sNB, sNTL, sNU, sT = 39, 40, 41, 42
sST = 64
sE = 72
sB0, sB1, sFL, sPM, sSLOT, sU, sTA0 = 46, 47, 48, 49, 52, 56, 57
sM = 46
sCI, sLND, sMBF, sNEED, sMRG, sMT, sROLE, sQO, sPLN, sSB = 48, 49, 50, 51, 52, 56, 57, 58, 59, 60
sV0 = 61
sCST = 62
sTN, sNK, sFWN, sFB, sPRE, sREDO, sLIMF, sPO = 96, 97, 98, 99, 100, 101, 53, 43
sMALL, sRS = 24, 26
sOFF, sTB0, sTB1, sTTC, sFIRST = 20, 21, 22, 23, 44
sZQ = 54
sRK, sPB, sNP, sX, sTA, sTB, sF, sWB = 80, 81, 82, 83, 84, 85, 86, 87
sMA, sMBK = 88, 90
sLO, sHI, sLBASE = 92, 93, 94
sBO = 56
vLANE = 1
vT0, vT1, vT2, vT3, vT4, vT5 = 2, 3, 4, 5, 6, 7
vL = 8
vKOFF, vVOFF = 10, 14
vCA, vCNT, vFA, vR = 18, 19, 20, 21
vF = 22
vCUR = 24
vTR = 28
vTRK, vTRV = 36, 52
vEN = 44
vDP, vDA, vOOB, vSA = 46, 47, 48, 49
vKA0, vVA0, vXA = 8, 12, 16
vPA0, vPW = 20, 21
vM, vLS, vMN, vAL, vPA, vFW = 24, 25, 26, 27, 28, 29
vPL = 30
vQ = 32
vS = 48
vP = 56
vG, vPF, vFV, vN = 60, 61, 62, 63
vKF = 64
vVF = 96
vO = 128
vE = 160
vPN = 160
NV = 168

def stamp(i):
    if a.amp and (i == 0 or (i == 1 and a.amp == "t0")): e(f"s_memrealtime s[{sST+2*i}:{sST+2*i+1}]")
    if a.hold and i == 0: e(f"{'s_memrealtime' if a.hold[:2] == 'rt' else 's_memtime'} s[{sST}:{sST+1}]")
    if a.stamps: e(f"s_memrealtime s[{sST+2*i}:{sST+2*i+1}]")
def clamp_cl(zq=None):
    c("context length: <=0 -> every key masked => uniform weights over 2048 keys (zero Q); >2048 -> 2048")
    e(f"s_cmp_lt_i32 s{sCLV}, 1")
    if zq is not None: e(f"s_cselect_b32 s{zq}, 1, 0")
    e(f"s_cselect_b32 s{sCLV}, 2048, s{sCLV}")
    e(f"s_min_i32 s{sCLV}, s{sCLV}, 2048")
def derive_nb():
    e(f"s_add_u32 s{sNTL}, s{sNB}, 1")
    e(f"s_lshr_b32 s{sNTL}, s{sNTL}, 1")
    e(f"s_sub_u32 s{sNU}, s{sNTL}, 1")
    e(f"s_min_u32 s{sNU}, s{sNU}, {NUM}")
def derive_cl():
    e(f"s_add_u32 s{sNB}, s{sCLV}, 15")
    e(f"s_lshr_b32 s{sNB}, s{sNB}, 4")
    derive_nb()
def spin_tail(label, sleep=1):
    e(f"s_sleep {sleep}")
    e(f"s_sub_u32 s{sSPIN}, s{sSPIN}, 1")
    e(f"s_cbranch_scc0 {label}")
    e("s_endpgm")
FIN = "s_branch L_fin" if (a.stamps or a.amp) else "s_endpgm"

out.append(HEADER.rstrip())
out.append(f"; @launch grid=(256,1,1) block=({64*NW},1,1) lds={LDS}")
out.append('.amdgcn_target "amdgcn-amd-amdhsa--gfx950"')
out.append(".text")
out.append(f".globl {NAME}_kernel")
out.append(".p2align 8")
out.append(f".type {NAME}_kernel,@function")
lab(f"{NAME}_kernel")
e("s_load_dwordx16 s[4:19], s[0:1], 0")
e(f"s_lshr_b32 s{sB}, s2, 3")
e(f"s_cmp_ge_u32 s{sB}, 32")
e("s_cbranch_scc1 L_end")
stamp(0)
e(f"v_lshrrev_b32 v{vT0}, 6, v0")
e(f"v_and_b32 v{vLANE}, 63, v0")
e(f"v_readfirstlane_b32 s{sW}, v{vT0}")
c("wave 1 pulls this kernel's code into L2")
e(f"s_getpc_b64 s[{sPC}:{sPC+1}]")
lab("L_pc")
e(f"v_lshlrev_b32 v{vT2}, 7, v{vLANE}")
e(f"v_min_u32 v{vT2}, L_end - L_pc - 256, v{vT2}")
e(f"s_cmp_lg_u32 s{sW}, 1")
e("s_cbranch_scc1 L_nopf")
e(f"global_load_dword v{vPF}, v{vT2}, s[{sPC}:{sPC+1}] offset:256")
lab("L_nopf")
c("clear the control words and the sort counters")
e(f"v_mov_b64 v[{vT2}:{vT3}], 0")
e(f"v_lshlrev_b32 v{vT4}, 3, v0")
e(f"v_add_u32 v{vT4}, {CTRL}, v{vT4}")
e(f"ds_write_b64 v{vT4}, v[{vT2}:{vT3}]")
if a.map == "rot":
    e(f"s_add_u32 s{sH}, s2, s{sB}")
    e(f"s_and_b32 s{sH}, s{sH}, 7")
elif a.hrot:
    e(f"s_add_u32 s{sH}, s2, {a.hrot}")
    e(f"s_and_b32 s{sH}, s{sH}, 7")
else:
    e(f"s_and_b32 s{sH}, s2, 7")
e(f"s_lshl3_add_u32 s{sT2}, s{sB}, s{sH}")
e(f"s_lshl_b32 s{sT2}, s{sT2}, 13")
e(f"v_lshl_add_u32 v{vT5}, v{vLANE}, 7, s{sT2}")
e(f"s_lshl_b32 s{sT0}, s{sB}, 9")
e(f"v_lshl_add_u32 v{vT2}, v{vLANE}, 3, s{sT0}")
e(f"s_lshl_b32 s{sT1}, s{sB}, 2")
e(f"v_and_b32 v{vT0}, 31, v{vLANE}")
e(f"v_lshlrev_b32 v{vT3}, 2, v{vT0}")
vTL = 22
if a.tlb:
    e(f"v_min_u32 v{vTL}, {(2 << (21 - a.tlbs)) - 1}, v{vLANE}")
    e(f"v_lshl_add_u32 v{vTL}, v{vTL}, 5, s{sB}")
    e(f"s_mul_i32 s{sT3}, s2, {8064 >> (21 - a.tlbs) & ~127}")
    e(f"v_lshl_add_u32 v{vTL}, v{vTL}, {a.tlbs}, s{sT3}")
e(f"s_cmp_lg_u32 s{sW}, 2")
e("s_waitcnt lgkmcnt(0)")
e(f"s_load_dwordx8 s[{sE}:{sE+7}], s[{sBT}:{sBT+1}], s{sT0}")
e(f"s_load_dword s{sCLV}, s[{sCL}:{sCL+1}], s{sT1}")
c("wave 2 touches the 64 lines of this workgroup's queries while memory is still idle")
e("s_cbranch_scc1 L_noq")
if "k" in a.tlb: e(f"global_load_dword v{vFV}, v{vTL}, s[{sK}:{sK+1}] nt")
e(f"global_load_dword v{vPF}, v{vT5}, s[{sQ}:{sQ+1}]")
lab("L_noq")
if a.opf:
    e(f"s_cmp_lg_u32 s{sW}, 4")
    e("s_cbranch_scc1 L_noo")
    e(f"global_load_dword v{vPF}, v{vT5}, s[{sOUT}:{sOUT+1}]")
    lab("L_noo")
e(f"global_load_dwordx2 v[{vL}:{vL+1}], v{vT2}, s[{sBT}:{sBT+1}]")
e(f"global_load_dword v{vN}, v{vT3}, s[{sCL}:{sCL+1}]")
lab("L_loads_issued")
if a.amp == "t0k": e(f"s_memrealtime s[{sST+2}:{sST+3}]")
e(f"s_cmp_lg_u32 s{sW}, 0")
e(f"s_mov_b32 s{sSPIN}, {SPIN}")
e("s_cbranch_scc1 L_notloader")

e("s_setprio 3")
c("per-lane source offsets of the LDS-DMA pieces (bank swizzle applied on the source side)")
e(f"v_lshrrev_b32 v{vR}, 4, v{vLANE}")
e(f"v_and_b32 v{vT1}, 15, v{vLANE}")
e(f"s_lshl_b32 s{sT0}, s{sH}, 8")
e(f"v_lshl_add_u32 v{vT4}, v{vR}, 11, s{sT0}")
e(f"v_xor_b32 v{vT2}, v{vR}, v{vT1}")
e(f"v_lshl_add_u32 v{vKOFF}, v{vT2}, 4, v{vT4}")
for j in range(1, 4):
    e(f"v_xor_b32 v{vT3}, {64*j}, v{vKOFF}")
    e(f"v_add_u32 v{vKOFF+j}, {7168*j}, v{vT3}")
e(f"s_mov_b32 s{sRD}, s{sK}")
e(f"s_and_b32 s{sRD+1}, s{sK+1}, 0xffff")
e(f"s_mov_b32 s{sRD+2}, {KBYTES}")
e(f"s_mov_b32 s{sRD+3}, 0x20000")
if a.amp == "t0c": e(f"s_memrealtime s[{sST+2}:{sST+3}]")
e("s_waitcnt lgkmcnt(0)")
clamp_cl()
c("the first stream tiles are logical tiles 0..3 (those that are not the last one)")
NE = a.NE
for t in range(NE):
    e(f"s_cmp_le_u32 s{sCLV}, {32*(t+1)}")
    e(f"s_cbranch_scc1 {'L_ld_b' if t < 2 else 'L_ld_pre'}")
    if t == 0: stamp(1)
    for j in range(8):
        i = 8 * t + j
        if j % 4 == 0:
            e(f"s_movk_i32 m0, {1024*i}")
            e(f"s_lshl_b32 s{sB0}, s{sE+i//4}, 15")
        if i >= D0: e(f"s_waitcnt vmcnt({D0-1})")
        e(f"buffer_load_dwordx4 v{vKOFF+j%4}, s[{sRD}:{sRD+3}], s{sB0} offen offset:{1024*(j%4)}{NT} lds")
    if t == 1:
        lab("L_ld_b")
        e("s_barrier")
lab("L_ld_pre")
derive_cl()
j0 = (D - 1) % 8
e(f"v_lshlrev_b32 v{vT3}, 2, v{vR}")
e(f"v_xor_b32 v{vT3}, v{vT3}, v{vT1}")
e(f"v_lshl_add_u32 v{vVOFF}, v{vT3}, 4, v{vT4}")
for j in range(1, 4):
    e(f"v_add_u32 v{vVOFF+j}, {7168*j}, v{vVOFF}")
e(f"s_min_u32 s{sT}, s{sNU}, {NE}")
e(f"s_lshl_b32 s{sSLOT}, s{sT}, 13")
e(f"s_mov_b32 s{sU}, s{sT}")
e(f"v_lshlrev_b32 v{vCA}, 3, v{vLANE}")
e(f"v_add_u32 v{vT0}, {SL}, v{vCA}")
e(f"v_add_u32 v{vCA}, {CTRL}, v{vCA}")
e(f"v_mov_b32 v{vFA}, {FREE}")
e(f"v_mov_b64 v[{vF}:{vF+1}], 0")
e(f"v_mov_b32 v{vDP}, {2 if NE == 3 else 0}")
e(f"v_mov_b32 v{vDA}, {DEPW}")
e(f"s_sub_u32 s{sT0}, s{sT}, 3")
e(f"v_mov_b32 v{vCNT}, s{sT0}")
e(f"s_lshl3_add_u32 s{sT0}, s{sT}, {SL}")
e(f"v_mov_b32 v{vSA}, s{sT0}")
c("offsets for the last logical tile: rows past the context are not fetched (their lanes read zeros)")
e(f"s_lshl_b32 s{sT0}, s{sNTL}, 5")
e(f"s_sub_u32 s{sT0}, s{sCLV}, s{sT0}")
e(f"s_add_u32 s{sT0}, s{sT0}, 32")
e(f"v_bfrev_b32 v{vOOB}, 1")
e(f"v_sub_u32 v{vT1}, s{sT0}, v{vR}")
for k in range(8):
    e(f"v_cmp_lt_i32 s[{80+2*k}:{81+2*k}], {4*k}, v{vT1}")
for k in range(8):
    e(f"v_cndmask_b32 v{vTRK+k}, v{vOOB}, v{vKOFF+k%4}, s[{80+2*k}:{81+2*k}]")
    e(f"v_cndmask_b32 v{vTRV+k}, v{vOOB}, v{vVOFF+k%4}, s[{80+2*k}:{81+2*k}]")
def set_pass(off, tr):
    for j in range(0, 4, 2): e(f"v_mov_b64 v[{vCUR+j}:{vCUR+j+1}], v[{off+j}:{off+j+1}]")
    for j in range(0, 8, 2): e(f"v_mov_b64 v[{vTR+j}:{vTR+j+1}], v[{tr+j}:{tr+j+1}]")
set_pass(vKOFF, vTRK)
if "prog3" in DBG: e("v_mov_b32 v50, 0")
e(f"s_mov_b32 s{sPM}, 4")
e(f"s_mov_b32 s{sTA0}, 0")
c("the leading tiles enter the stream list straight from the table row")
e(f"s_bfm_b64 s[{sT2}:{sT2+1}], s{sNU}, 0")
e(f"s_cmp_ge_u32 s{sNU}, {NE}")
e("s_cbranch_scc1 L_ld_row")
e("s_waitcnt vmcnt(0)")
lab("L_ld_row")
e("s_waitcnt vmcnt(24)")
if NE == 4: e(f"ds_write_b32 v{vCA}, v{vCNT}")
e(f"v_lshl_or_b32 v{vEN}, v{vL}, 15, 1")
e(f"v_lshlrev_b32 v{vEN+1}, 15, v{vL+1}")
e(f"s_mov_b64 exec, s[{sT2}:{sT2+1}]")
e(f"ds_write_b64 v{vT0}, v[{vEN}:{vEN+1}]")
e("s_mov_b64 exec, -1")
e(f"ds_read_b64 v[{vEN}:{vEN+1}], v{vSA}")
if a.amp == "t0r": e(f"s_memrealtime s[{sST+2}:{sST+3}]")
if a.amp[:3] == "t0l":
    e(f"s_waitcnt vmcnt({int(a.amp[3:])})")
    e(f"s_memrealtime s[{sST+2}:{sST+3}]")
stamp(2)
def unit_body(depth, trimmed=False):
    for j in range(8):
        if j % 4 == 0: e(f"s_add_u32 m0, s{sSLOT}, {1024*j}")
        e(f"s_waitcnt vmcnt({depth-1})")
        e(f"buffer_load_dwordx4 v{vTR+j if trimmed else vCUR+j%4}, s[{sRD}:{sRD+3}], s{sB0 + j//4} offen offset:{1024*(j%4)}{NT} lds")
        if j == (depth - 1) % 8:
            e(f"v_add_u32 v{vCNT}, 1, v{vCNT}")
            e(f"ds_write_b32 v{vCA}, v{vCNT}")
        if j == 0:
            e(f"s_add_u32 s{sT2}, s{sSLOT}, 8192")
            e(f"s_cmp_eq_u32 s{sT2}, {RING}")
            e(f"s_cselect_b32 s{sT2}, 0, s{sT2}")
            e(f"s_lshr_b32 s{sT0}, s{sT2}, 10")
            e(f"s_add_u32 s{sT0}, s{sT0}, {FREE}")
            e(f"v_mov_b32 v{vFA}, s{sT0}")
        if j == 1:
            e(f"s_add_u32 s{sT}, s{sT}, 1")
            e(f"s_and_b32 s{sT0}, s{sFL}, s{sPM}")
            e(f"s_cselect_b32 s{sT}, s{sTA0}, s{sT}")
            e(f"s_lshl3_add_u32 s{sT0}, s{sT}, {SL}")
            e(f"v_mov_b32 v{vSA}, s{sT0}")
            e(f"s_add_u32 s{sU}, s{sU}, 1")
        if j == a.fpf:
            c("prefetch the next list entry, the FREE words of the next slot and the depth code")
            e(f"ds_read_b64 v[{vEN}:{vEN+1}], v{vSA}")
            e(f"ds_read_b64 v[{vF}:{vF+1}], v{vFA}")
            e(f"ds_read_b32 v{vDP}, v{vDA}")
            e(f"s_mov_b32 s{sSLOT}, s{sT2}")
out.append(".p2align 3")
lab("L_ld")
if "prog3" in DBG:
    e(f"s_memrealtime s[{sST+4}:{sST+5}]")
    e(f"s_min_u32 m0, s{sU}, 63")
e("s_waitcnt lgkmcnt(0)")
if "prog3" in DBG: e(f"v_writelane_b32 v50, s{sST+4}, m0")
e(f"v_min_i32 v{vT0}, v{vF}, v{vF+1}")
e(f"v_readfirstlane_b32 s{sFL}, v{vEN}")
e(f"v_readfirstlane_b32 s{sB1}, v{vEN+1}")
e(f"v_readfirstlane_b32 s{sT0}, v{vT0}")
e(f"v_readfirstlane_b32 s{sT3}, v{vDP}")
e(f"s_sub_u32 s{sT1}, s{sU}, {NS-1}")
e(f"s_cmp_ge_i32 s{sT0}, s{sT1}")
e(f"s_cselect_b32 s{sT0}, s{sFL}, 0")
e(f"s_and_b32 s{sB0}, s{sFL}, -16")
e(f"s_and_b32 s{sT0}, s{sT0}, 3")
e(f"s_cmp_lg_u32 s{sT0}, 1")
e("s_cbranch_scc1 L_ld_odd")
e(f"s_cmp_lg_u32 s{sT3}, 0")
e("s_cbranch_scc1 L_ld_var")
unit_body(D)
lab("L_ld_next")
e(f"s_bitcmp1_b32 s{sFL}, 2")
e("s_cbranch_scc0 L_ld")
c("last tile of the batch: change pass")
e(f"s_xor_b32 s{sPM}, s{sPM}, 4")
e("s_cbranch_scc1 L_ld_tok")
e(f"s_mov_b32 s{sRD}, s{sV}")
e(f"s_and_b32 s{sRD+1}, s{sV+1}, 0xffff")
set_pass(vVOFF, vTRV)
e("s_branch L_ld")
lab("L_ld_tok")
e(f"s_bitcmp1_b32 s{sFL}, 3")
e("s_cbranch_scc0 L_ld_more")
for r in (16, 8, 0):
    e(f"v_add_u32 v{vCNT}, 1, v{vCNT}")
    e(f"s_waitcnt vmcnt({r})")
    e(f"ds_write_b32 v{vCA}, v{vCNT}")
if a.hold:
    lab("L_hold")
    e(f"{'s_memrealtime' if a.hold[:2] == 'rt' else 's_memtime'} s[{sST+2}:{sST+3}]")
    e("s_waitcnt lgkmcnt(0)")
    e(f"s_sub_u32 s{sT0}, s{sST+2}, s{sST}")
    e(f"s_cmp_lt_u32 s{sT0}, {a.hold[3:]}")
    e("s_cbranch_scc1 L_hold")
e(FIN)
lab("L_ld_more")
e(f"s_mov_b32 s{sTA0}, s{sT}")
e(f"s_mov_b32 s{sRD}, s{sK}")
e(f"s_and_b32 s{sRD+1}, s{sK+1}, 0xffff")
set_pass(vKOFF, vTRK)
e("s_branch L_ld")
lab("L_ld_odd")
e(f"s_cmp_eq_u32 s{sT0}, 3")
e("s_cbranch_scc1 L_ld_m")
c("slot not free yet or entry not written yet")
e(f"ds_read_b64 v[{vEN}:{vEN+1}], v{vSA}")
e(f"ds_read_b64 v[{vF}:{vF+1}], v{vFA}")
e(f"s_sub_u32 s{sSPIN}, s{sSPIN}, 1")
e("s_cbranch_scc0 L_ld")
e("s_endpgm")
lab("L_ld_m")
unit_body(D + a.DM, True)
e("s_branch L_ld_next")
lab("L_ld_var")
e(f"s_cmp_eq_u32 s{sT3}, 1")
e("s_cbranch_scc1 L_ld_v2")
e(f"s_cmp_eq_u32 s{sT3}, 2")
e("s_cbranch_scc1 L_ld_v3")
unit_body(D + DV[0])
e("s_branch L_ld_next")
lab("L_ld_v2")
unit_body(D + DV[1])
e("s_branch L_ld_next")
lab("L_ld_v3")
unit_body(D + DV[2])
e("s_branch L_ld_next")

lab("L_notloader")
e(f"s_cmp_ge_u32 s{sW}, 3")
e("s_cbranch_scc1 L_planner")
e(f"s_sub_u32 s{sCI}, s{sW}, 1")
def rows_off(sb):
    e(f"s_lshl3_add_u32 s{sQO}, s{sb}, s{sH}")
    e(f"s_lshl1_add_u32 s{sQO}, s{sQO}, s{sCI}")
    e(f"s_lshl_b32 s{sQO}, s{sQO}, 12")
    e(f"v_and_b32 v{vT0}, 15, v{vLANE}")
    e(f"v_lshrrev_b32 v{vG}, 4, v{vLANE}")
def load_q(sb):
    rows_off(sb)
    e(f"v_lshl_add_u32 v{vT4}, v{vT0}, 8, s{sQO}")
    e(f"v_lshl_add_u32 v{vT4}, v{vG}, 4, v{vT4}")
    for s in range(4):
        e(f"global_load_dwordx4 v[{vQ+4*s}:{vQ+4*s+3}], v{vT4}, s[{sQ}:{sQ+1}] offset:{64*s}")
load_q(sB)
e("s_barrier")
e(f"s_mov_b32 s{sROLE}, 0")
e(f"s_mov_b32 s{sPLN}, 0")
e(f"s_mov_b32 s{sMRG}, 0")
e("s_waitcnt lgkmcnt(0)")
clamp_cl(zq=sT3)
derive_cl()
c("valid keys of the last logical tile")
e(f"s_lshl_b32 s{sV0}, s{sNTL}, 5")
e(f"s_sub_u32 s{sV0}, s{sCLV}, s{sV0}")
e(f"s_add_u32 s{sV0}, s{sV0}, 32")
e(f"s_bfm_b64 s[{sM}:{sM+1}], s{sNU}, 0")
lab("L_csetup")
e(f"s_mov_b32 s{sMT}, 0")
e(f"s_mov_b32 s{sOFF}, 0")
e(f"s_mov_b32 s{sTB0}, 0")
e(f"s_mov_b32 s{sFIRST}, 1")
e(f"s_mov_b64 s[{sRS}:{sRS+1}], 0")
e("s_waitcnt vmcnt(4)")
e(f"v_and_b32 v{vT0}, 15, v{vLANE}")
e(f"v_xor_b32 v{vT1}, v{vG}, v{vT0}")
e(f"v_lshlrev_b32 v{vT2}, 8, v{vT0}")
e(f"v_lshl_add_u32 v{vKA0}, v{vT1}, 4, v{vT2}")
for s in range(1, 4):
    e(f"v_xor_b32 v{vKA0+s}, {64*s}, v{vKA0}")
e(f"v_bfe_u32 v{vT0}, v{vLANE}, 2, 2")
e(f"v_lshl_add_u32 v{vT1}, v{vG}, 2, v{vT0}")
e(f"v_lshlrev_b32 v{vT1}, 8, v{vT1}")
e(f"v_and_b32 v{vT2}, 3, v{vLANE}")
e(f"v_lshl_add_u32 v{vT1}, v{vT2}, 4, v{vT1}")
e(f"v_lshl_add_u32 v{vVA0}, v{vT0}, 6, v{vT1}")
for j in range(1, 4):
    e(f"v_xor_b32 v{vVA0+j}, {64*j}, v{vVA0}")
e(f"s_lshl_b32 s{sT0}, s{sCI}, 10")
e(f"s_add_u32 s{sT0}, s{sT0}, {PST}")
e(f"v_lshl_add_u32 v{vPA0}, v{vLANE}, 4, s{sT0}")
e(f"s_lshl_b32 s{sT0}, s{sW}, 3")
e(f"s_add_u32 s{sT0}, s{sT0}, {CTRL-8}")
e(f"v_mov_b32 v{vPA}, s{sT0}")
e(f"v_mov_b32 v{vM}, 0xff800000")
e(f"v_mov_b32 v{vLS}, 0")
for r in range(0, 32, 2): e(f"v_mov_b64 v[{vO+r}:{vO+r+1}], 0")
e(f"s_mov_b32 s{sCST}, 0x3e0293ee")
e(f"s_mov_b32 s{sCST+1}, 0x3e0293ee")
e(f"s_mov_b32 s{sLIMF}, {a.limf}")
e(f"s_lshl2_add_u32 s{sFB}, s{sCI}, {FREE}")
e("s_waitcnt vmcnt(0)")
e(f"s_cmp_eq_u32 s{sT3}, 0")
e("s_cbranch_scc1 L_k_first")
for r in range(0, 16, 2): e(f"v_mov_b64 v[{vQ+r}:{vQ+r+1}], 0")

def poll(label):
    lab(label)
    e(f"ds_read_b64 v[{vPL}:{vPL+1}], v{vPA}")
    e(f"s_sub_u32 s{sSPIN}, s{sSPIN}, 1")
    e("s_cbranch_scc1 L_end")
    e("s_waitcnt lgkmcnt(0)")
    e(f"v_readfirstlane_b32 s{sLND}, v{vPL}")
    e(f"s_cmp_ge_i32 s{sLND}, s{sNK}")
    e(f"s_cbranch_scc0 {label}")
VR = []
for j in range(4):
    for ee in range(2):
        for blk in range(2):
            r = vVF + (2 * j + ee) * 4 + 2 * blk
            VR.append(f"ds_read_b64_tr_b16 v[{r}:{r+1}], v{vXA+j} offset:{8*ee + 4096*blk}")
KR, QK = [], []
for blk in range(2):
    for st in range(4):
        r = vKF + (blk * 4 + st) * 4
        KR.append(f"ds_read_b128 v[{r}:{r+3}], v{vXA+st} offset:{4096*blk}")
        cc = "0" if st == 0 else f"v[{vS+4*blk}:{vS+4*blk+3}]"
        QK.append(f"v_mfma_f32_16x16x32_bf16 v[{vS+4*blk}:{vS+4*blk+3}], v[{r}:{r+3}], v[{vQ+4*st}:{vQ+4*st+3}], {cc}")
PV = [f"v_mfma_f32_16x16x32_bf16 v[{vO+4*dt}:{vO+4*dt+3}], v[{vVF+4*dt}:{vVF+4*dt+3}], v[{vP}:{vP+3}], v[{vO+4*dt}:{vO+4*dt+3}]" for dt in range(8)]
NX = [f"s_ff1_i32_b64 s{sTN}, s[{sM}:{sM+1}]",
      f"s_bitset0_b64 s[{sM}:{sM+1}], s{sTN}",
      f"s_add_u32 s{sT1}, s{sTN}, s{sOFF}",
      f"s_mul_i32 s{sT0}, s{sT1}, {DIVM[0]}",
      f"s_lshr_b32 s{sT0}, s{sT0}, {DIVM[1]}",
      f"s_mul_i32 s{sT0}, s{sT0}, {NS}",
      f"s_sub_u32 s{sT0}, s{sT1}, s{sT0}",
      f"s_lshl_b32 s{sSB}, s{sT0}, 13",
      f"s_lshl3_add_u32 s{sFWN}, s{sT0}, s{sFB}",
      f"s_and_b32 s{sT0}, s{sTN}, 0x40000000",
      f"s_add_u32 s{sNK}, s{sT1}, 1",
      f"s_or_b32 s{sNK}, s{sNK}, s{sT0}",
      f"s_sub_u32 s{sPO}, s{sTN}, s{sTB0}",
      f"s_lshl_b32 s{sPO}, s{sPO}, 11"]
KA = [f"v_add_u32 v{vXA+i}, s{sSB}, v{vKA0+i}" for i in range(4)]
VA = [f"v_add_u32 v{vXA+i}, s{sSB}, v{vVA0+i}" for i in range(4)]
ADV = [f"v_mov_b32 v{vFW}, s{sFWN}",
       f"v_mov_b32 v{vFV}, s{sNK}",
       f"v_add_u32 v{vPW}, s{sPO}, v{vPA0}",
       f"s_add_u32 s{sT}, s{sTN}, 1"]
def scale_o(reg):
    for r in range(0, 32, 2):
        sel = "op_sel:[0,1] op_sel_hi:[1,1]" if reg & 1 else "op_sel_hi:[1,0]"
        p = reg & ~1
        e(f"v_pk_mul_f32 v[{vO+r}:{vO+r+1}], v[{vO+r}:{vO+r+1}], v[{p}:{p+1}] {sel}")

lab("L_k_first")
for x in NX + KA + ADV: e(x)
lab("L_k_next")
e(f"s_cmp_lt_i32 s{sTN}, 0")
e("s_cbranch_scc1 L_k_empty")
poll("L_k_poll")
for x in KR: e(x)
e("s_waitcnt lgkmcnt(0)")
out.append(".p2align 3")
lab("L_k_top")
e("s_waitcnt lgkmcnt(1)")
e(f"ds_write_b32 v{vFW}, v{vFV}")
e(f"ds_read_b64 v[{vPL}:{vPL+1}], v{vPA}")
fill = NX + KA
for i in range(8):
    e(QK[i])
    for x in fill[2*i:2*i+2]: e(x)
for x in fill[16:]: e(x)
e(f"s_mov_b32 s{sREDO}, 0")
e("s_waitcnt lgkmcnt(0)")
e(f"v_readfirstlane_b32 s{sLND}, v{vPL}")
e(f"s_cmp_ge_i32 s{sLND}, s{sNK}")
e(f"s_cselect_b32 s{sPRE}, 1, 0")
e("s_cbranch_scc0 L_k_nopre")
for x in KR: e(x)
lab("L_k_nopre")
e(f"s_cmp_eq_u32 s{sT}, s{sMT}")
e("s_cbranch_scc1 L_k_mask")
lab("L_k_exp")
for hb in range(2):
    for r in (4*hb, 4*hb+2):
        e(f"v_pk_fma_f32 v[{vE+r}:{vE+r+1}], v[{vS+r}:{vS+r+1}], s[{sCST}:{sCST+1}], v[{vM}:{vM+1}] op_sel_hi:[1,1,0] neg_lo:[0,0,1] neg_hi:[0,0,1]")
    for r in range(4*hb, 4*hb+4):
        e(f"v_exp_f32 v{vE+r}, v{vE+r}")
e(f"v_pk_add_f32 v[{vT0}:{vT1}], v[{vE}:{vE+1}], v[{vE+2}:{vE+3}]")
e(f"v_pk_add_f32 v[{vT2}:{vT3}], v[{vE+4}:{vE+5}], v[{vE+6}:{vE+7}]")
e(f"v_cvt_pk_bf16_f32 v{vP}, v{vE}, v{vE+1}")
e(f"v_pk_add_f32 v[{vT0}:{vT1}], v[{vT0}:{vT1}], v[{vT2}:{vT3}]")
e(f"v_cvt_pk_bf16_f32 v{vP+1}, v{vE+2}, v{vE+3}")
e(f"v_add_f32 v{vT0}, v{vT0}, v{vT1}")
c("the kept reference max is safe only while every weight stays <= 256; otherwise take the true max")
e(f"v_cmp_nge_f32 vcc, s{sLIMF}, v{vT0}")
e(f"v_cvt_pk_bf16_f32 v{vP+2}, v{vE+4}, v{vE+5}")
e(f"v_cvt_pk_bf16_f32 v{vP+3}, v{vE+6}, v{vE+7}")
e(ADV[0]); e(ADV[1])
e("s_nop 0")
e("s_cbranch_vccnz L_k_slow")
lab("L_k_done")
e(f"ds_write_b128 v{vPW}, v[{vP}:{vP+3}]")
e(f"v_add_f32 v{vLS}, v{vLS}, v{vT0}")
e(ADV[3])
e(f"s_cmp_lg_u32 s{sPRE}, 0")
e(ADV[2])
e("s_cbranch_scc1 L_k_top")
e("s_branch L_k_next")

lab("L_k_mask")
e(f"v_lshlrev_b32 v{vT0}, 2, v{vG}")
e(f"v_sub_u32 v{vT0}, s{sV0}, v{vT0}")
e(f"v_mov_b32 v{vT1}, 0xff800000")
for r in range(8):
    e(f"v_cmp_lt_i32 s[{80+2*r}:{81+2*r}], {16*(r//4)+r%4}, v{vT0}")
for r in range(8):
    e(f"v_cndmask_b32 v{vS+r}, v{vT1}, v{vS+r}, s[{80+2*r}:{81+2*r}]")
e("s_branch L_k_exp")

def alpha_addr():
    e(f"s_lshl_b32 s{sT0}, s2, 6")
    e(f"s_add_u32 s{sT0}, s{sT0}, s{sT}")
    e(f"s_lshl1_add_u32 s{sT0}, s{sT0}, s{sCI}")
    e(f"s_lshl_b32 s{sT0}, s{sT0}, 6")
    e(f"s_add_u32 s{sT0}, s{sT0}, {WSA}")
    e(f"v_and_b32 v{vT1}, 15, v{vLANE}")
    e(f"v_lshl_add_u32 v{vT1}, v{vT1}, 2, s{sT0}")
c("raise the reference to the true running max; the accumulator is rescaled when pass 2 reaches this tile")
lab("L_k_slow")
e(f"s_cmp_lg_u32 s{sREDO}, 0")
e("s_cbranch_scc1 L_k_done")
e(f"s_mov_b32 s{sREDO}, 1")
e(f"v_max3_f32 v{vT0}, v{vS}, v{vS+1}, v{vS+2}")
e(f"v_max3_f32 v{vT1}, v{vS+3}, v{vS+4}, v{vS+5}")
e(f"v_max3_f32 v{vT0}, v{vT0}, v{vS+6}, v{vS+7}")
e(f"v_max_f32 v{vT0}, v{vT0}, v{vT1}")
e(f"v_mov_b32 v{vT1}, v{vT0}")
e("s_nop 1")
e(f"v_permlane32_swap_b32 v{vT0}, v{vT1}")
e("s_nop 0")
e(f"v_max_f32 v{vT0}, v{vT0}, v{vT1}")
e(f"v_mov_b32 v{vT1}, v{vT0}")
e("s_nop 1")
e(f"v_permlane16_swap_b32 v{vT0}, v{vT1}")
e("s_nop 0")
e(f"v_max_f32 v{vT0}, v{vT0}, v{vT1}")
e(f"v_mul_f32 v{vT0}, s{sCST}, v{vT0}")
e(f"v_max_f32 v{vMN}, v{vM}, v{vT0}")
e(f"v_sub_f32 v{vAL}, v{vM}, v{vMN}")
e(f"v_exp_f32 v{vAL}, v{vAL}")
e(f"v_mov_b32 v{vM}, v{vMN}")
e(f"s_cmp_lg_u32 s{sFIRST}, 0")
e(f"s_mov_b32 s{sFIRST}, 0")
e(f"v_mul_f32 v{vLS}, v{vLS}, v{vAL}")
e("s_cbranch_scc1 L_k_exp")
alpha_addr()
e(f"global_store_dword v{vT1}, v{vAL}, s[{sWS}:{sWS+1}]")
e(f"s_sub_u32 s{sT0}, s{sT}, 1")
e(f"s_bitset1_b64 s[{sRS}:{sRS+1}], s{sT0}")
e("s_branch L_k_exp")

RLO, RHI = 0xffffffff, (1 << (G - 32)) - 1
lab("L_k_noplan")
e(f"s_mov_b32 s{sPLN}, 1")
e(f"v_mov_b32 v{vT1}, {REC0}")
lab("L_k_plan")
e(f"ds_read_b128 v[{vT2}:{vT5}], v{vT1}")
e("s_waitcnt lgkmcnt(0)")
e(f"v_readfirstlane_b32 s{sT0}, v{vT5}")
e(f"v_readfirstlane_b32 s{sM}, v{vT2}")
e(f"v_readfirstlane_b32 s{sM+1}, v{vT3}")
e(f"v_readfirstlane_b32 s{sTTC}, v{vT4}")
e(f"s_cmp_lg_u32 s{sT0}, 0")
e("s_cbranch_scc1 L_k_got")
spin_tail("L_k_plan")
lab("L_k_got")
e(f"s_lshr_b32 s{sMT}, s{sT0}, 8")
e(f"s_add_u32 s{sMT}, s{sMT}, 1")
e(f"s_and_b32 s{sMRG}, s{sTTC}, {0 if 'nomerge' in DBG else 1}")
e(f"s_lshr_b32 s{sTTC}, s{sTTC}, 8")
e(f"s_min_u32 s{sTB1}, s{sTTC}, {G}")
e(f"s_bfm_b64 s[{sMALL}:{sMALL+1}], s{sNU}, 0")
e(f"s_or_b64 s[{sMALL}:{sMALL+1}], s[{sMALL}:{sMALL+1}], s[{sM}:{sM+1}]")
e(f"s_and_b32 s{sM+1}, s{sM+1}, {RHI:#x}")
e("s_branch L_k_first")
lab("L_v_more")
c("second batch")
e(f"s_mov_b32 s{sTB0}, s{sTB1}")
e(f"s_mov_b32 s{sTB1}, s{sTTC}")
e(f"s_mov_b32 s{sOFF}, s{sTB0}")
e(f"s_mov_b32 s{sMALL}, 0")
e(f"s_andn2_b32 s{sMALL+1}, s{sMALL+1}, {RHI:#x}")
e(f"s_mov_b64 s[{sM}:{sM+1}], s[{sMALL}:{sMALL+1}]")
e("s_branch L_k_first")
lab("L_k_empty")
e(f"s_cmp_eq_u32 s{sPLN}, 0")
e("s_cbranch_scc1 L_k_noplan")
e(f"s_mov_b32 s{sOFF}, s{sTB1}")
e(f"s_mov_b32 s{sM}, s{sMALL}")
e(f"s_and_b32 s{sM+1}, s{sMALL+1}, {RHI:#x}")
e(f"s_cmp_eq_u32 s{sTB0}, 0")
e(f"s_cselect_b32 s{sM+1}, s{sM+1}, s{sMALL+1}")
for x in NX + VA: e(x)
e(f"ds_read_b64 v[{vPL}:{vPL+1}], v{vPA}")
e(f"s_cmp_lt_i32 s{sTN}, 0")
e("s_cbranch_scc1 L_v_empty")
lab("L_v_next")
for x in ADV: e(x)
if a.last:
    e(f"s_cmp_eq_u64 s[{sM}:{sM+1}], 0")
    e("s_cbranch_scc1 L_v_islast")
lab("L_v_next2")
e(f"ds_read_b128 v[{vPN}:{vPN+3}], v{vPW}")
e("s_waitcnt lgkmcnt(1)")
e(f"v_readfirstlane_b32 s{sLND}, v{vPL}")
e(f"s_cmp_ge_i32 s{sLND}, s{sNK}")
e("s_cbranch_scc1 L_v_rd")
poll("L_v_poll")
lab("L_v_rd")
for x in VR: e(x)
out.append(".p2align 3")
lab("L_v_top")
for x in NX + VA: e(x)
e(f"s_sub_u32 s{sT0}, s{sT}, 1")
e(f"s_bitcmp1_b64 s[{sRS}:{sRS+1}], s{sT0}")
e("s_cbranch_scc1 L_v_resc")
lab("L_v_top2")
e("s_waitcnt lgkmcnt(14)")
e(f"v_readfirstlane_b32 s{sMBF}, v{vPL+1}")
e(f"v_readfirstlane_b32 s{sLND}, v{vPL}")
e(f"v_mov_b64 v[{vP}:{vP+1}], v[{vPN}:{vPN+1}]")
e(f"v_mov_b64 v[{vP+2}:{vP+3}], v[{vPN+2}:{vPN+3}]")
e(f"s_and_b32 s{sT0}, s{sMBF}, s{sMRG}")
e("s_cbranch_scc1 L_v_merge")
lab("L_v_top3")
e(f"s_cmp_ge_i32 s{sLND}, s{sNK}")
e("s_cbranch_scc0 L_v_pv")
e(ADV[2])
e("s_waitcnt lgkmcnt(0)")
e(f"ds_write_b32 v{vFW}, v{vFV}")
e(f"ds_read_b64 v[{vPL}:{vPL+1}], v{vPA}")
e(f"ds_read_b128 v[{vPN}:{vPN+3}], v{vPW}")
for i in range(8):
    e(PV[i]); e(VR[2*i]); e(VR[2*i+1])
e(ADV[0]); e(ADV[1]); e(ADV[3])
e("s_branch L_v_top")
lab("L_v_pv")
for i in range(8):
    if i: e(f"s_waitcnt lgkmcnt({14-2*i})")
    if i == 7:
        e(f"ds_write_b32 v{vFW}, v{vFV}")
        e(f"ds_read_b64 v[{vPL}:{vPL+1}], v{vPA}")
    e(PV[i])
e(f"s_cmp_ge_i32 s{sTN}, 0")
e("s_cbranch_scc1 L_v_next")
lab("L_v_empty")
e(f"s_cmp_lt_u32 s{sTB1}, s{sTTC}")
e("s_cbranch_scc1 L_v_more")
stamp(2)
e(f"s_cmp_lg_u32 s{sMRG}, 0")
e("s_cbranch_scc1 L_c_mwait0")
lab("L_c_store")
e(f"v_mov_b32 v{vT0}, v{vLS}")
e(f"v_and_b32 v{vT2}, 15, v{vLANE}")
e(f"v_lshl_add_u32 v{vT2}, v{vT2}, 8, s{sQO}")
e(f"v_permlane32_swap_b32 v{vLS}, v{vT0}")
e("s_nop 0")
e(f"v_add_f32 v{vLS}, v{vLS}, v{vT0}")
e(f"v_mov_b32 v{vT0}, v{vLS}")
e(f"v_lshl_add_u32 v{vT2}, v{vG}, 4, v{vT2}")
e("s_nop 0")
e(f"v_permlane16_swap_b32 v{vLS}, v{vT0}")
e("s_nop 0")
e(f"v_add_f32 v{vLS}, v{vLS}, v{vT0}")
e(f"v_rcp_f32 v{vMN}, v{vLS}")
e(f"s_cmp_lg_u32 s{sROLE}, 0")
scale_o(vMN)
for r in range(16):
    e(f"v_cvt_pk_bf16_f32 v{vKF+r}, v{vO+2*r}, v{vO+2*r+1}")
e("s_cbranch_scc1 L_publish")
def out_stores(fl, step=64):
    for j in range(4):
        e(f"global_store_dwordx4 v{vT2}, v[{vKF+4*j}:{vKF+4*j+3}], s[{sOUT}:{sOUT+1}] offset:{step*j}{fl}")
out_stores(OST)
e(FIN)

def l_total():
    e(f"v_mov_b32 v{vT0}, v{vLS}")
    e(f"v_and_b32 v{vT2}, 15, v{vLANE}")
    e(f"v_lshl_add_u32 v{vT2}, v{vT2}, 8, s{sQO}")
    e(f"v_permlane32_swap_b32 v{vLS}, v{vT0}")
    e("s_nop 0")
    e(f"v_add_f32 v{vLS}, v{vLS}, v{vT0}")
    e(f"v_mov_b32 v{vT0}, v{vLS}")
    e(f"v_lshl_add_u32 v{vT2}, v{vG}, 4, v{vT2}")
    e("s_nop 0")
    e(f"v_permlane16_swap_b32 v{vLS}, v{vT0}")
    e("s_nop 0")
    e(f"v_add_f32 v{vLS}, v{vLS}, v{vT0}")
    e(f"v_rcp_f32 v{vMN}, v{vLS}")
if a.last:
    lab("L_v_islast")
    c("closing tile of an owner with nothing pending: take the short path")
    e(f"s_sub_u32 s{sT0}, s{sTTC}, s{sTB1}")
    e(f"s_or_b32 s{sT0}, s{sT0}, s{sMRG}")
    e(f"s_or_b32 s{sT0}, s{sT0}, s{sROLE}")
    e(f"s_or_b32 s{sT0}, s{sT0}, s{sRS}")
    e(f"s_or_b32 s{sT0}, s{sT0}, s{sRS+1}")
    e("s_cbranch_scc1 L_v_next2")
    e(f"ds_read_b128 v[{vP}:{vP+3}], v{vPW}")
    e(f"ds_read_b64 v[{vPL}:{vPL+1}], v{vPA}")
    l_total()
    e("s_waitcnt lgkmcnt(0)")
    e(f"v_readfirstlane_b32 s{sLND}, v{vPL}")
    e(f"s_cmp_ge_i32 s{sLND}, s{sNK}")
    e("s_cbranch_scc1 L_v_lrd")
    poll("L_v_lpoll")
    lab("L_v_lrd")
    for x in VR: e(x)
    def fin_j(j):
        r = []
        for k in range(4):
            q = vO + 8 * j + 2 * k
            r.append(f"v_pk_mul_f32 v[{q}:{q+1}], v[{q}:{q+1}], v[{vMN}:{vMN+1}] op_sel_hi:[1,0]")
        for k in range(4):
            r.append(f"v_cvt_pk_bf16_f32 v{vKF+4*j+k}, v{vO+8*j+2*k}, v{vO+8*j+2*k+1}")
        r.append(f"global_store_dwordx4 v{vT2}, v[{vKF+4*j}:{vKF+4*j+3}], s[{sOUT}:{sOUT+1}] offset:{64*j}{OST}")
        return r
    f0 = fin_j(0)
    for i in range(8):
        e(f"s_waitcnt lgkmcnt({14-2*i})")
        e(PV[i])
        if i == 5: e(f0[0]); e(f0[1])
        if i == 6: e(f0[2]); e(f0[3])
    stamp(2)
    for x in f0[4:] + fin_j(1) + fin_j(2) + fin_j(3): e(x)
    e(f"ds_write_b32 v{vFW}, v{vFV}")
    e(FIN)

lab("L_v_resc")
e(f"s_bitset0_b64 s[{sRS}:{sRS+1}], s{sT0}")
alpha_addr()
e("s_waitcnt vmcnt(0)")
e(f"global_load_dword v{vAL}, v{vT1}, s[{sWS}:{sWS+1}] sc1")
e("s_waitcnt vmcnt(0)")
scale_o(vAL)
e("s_branch L_v_top2")

lab("L_v_merge")
c("only once no rescale is pending; the reference max stays, so the partial's max must not be far above it")
e(f"s_cmp_eq_u64 s[{sRS}:{sRS+1}], 0")
e("s_cbranch_scc0 L_v_top3")
lab("L_c_merge")
e(f"s_mul_i32 s{sT0}, s{sCI}, {MBS}")
e(f"s_add_u32 s{sT0}, s{sT0}, {MB}")
e(f"v_and_b32 v{vT1}, 15, v{vLANE}")
e(f"v_lshl_add_u32 v{vT0}, v{vLANE}, 4, s{sT0}")
e(f"v_lshl_add_u32 v{vT1}, v{vT1}, 3, s{sT0}")
e("s_waitcnt lgkmcnt(0)")
e(f"ds_write_b32 v{vFW}, v{vFV}")
e(f"ds_read_b64 v[{vT4}:{vT5}], v{vT1} offset:4096")
for i in range(4):
    e(f"ds_read_b128 v[{vKF+4*i}:{vKF+4*i+3}], v{vT0} offset:{1024*i}")
e(f"s_cmp_eq_u32 s{sPLN}, 2")
e("s_waitcnt lgkmcnt(0)")
e("s_cbranch_scc1 L_c_mfin")
e(f"v_sub_f32 v{vT4}, v{vT4}, v{vM}")
e(f"v_cmp_nge_f32 vcc, 0x41800000, v{vT4}")
e(f"s_mov_b32 s{sMRG}, 2")
e("s_nop 3")
e("s_cbranch_vccnz L_v_top3")
e("s_branch L_c_madd")
lab("L_c_mfin")
e(f"v_max_f32 v{vMN}, v{vM}, v{vT4}")
e(f"v_sub_f32 v{vAL}, v{vM}, v{vMN}")
e(f"v_sub_f32 v{vT4}, v{vT4}, v{vMN}")
e(f"v_exp_f32 v{vAL}, v{vAL}")
e("s_nop 0")
e(f"v_mul_f32 v{vLS}, v{vLS}, v{vAL}")
scale_o(vAL)
lab("L_c_madd")
e(f"v_exp_f32 v{vT4}, v{vT4}")
e(f"s_mov_b32 s{sMRG}, 0")
e(f"v_mul_f32 v{vT4}, v{vT4}, v{vT5}")
e(f"v_fmac_f32 v{vLS}, 0x3e800000, v{vT4}")
for r in range(16):
    t = vKF + 16 + 2 * (r % 4)
    e(f"v_lshlrev_b32 v{t}, 16, v{vKF+r}")
    e(f"v_and_b32 v{t+1}, 0xffff0000, v{vKF+r}")
    e(f"v_pk_fma_f32 v[{vO+2*r}:{vO+2*r+1}], v[{t}:{t+1}], v[{vT4}:{vT4+1}], v[{vO+2*r}:{vO+2*r+1}] op_sel_hi:[1,0,1]")
e(f"s_cmp_eq_u32 s{sPLN}, 2")
e("s_cbranch_scc0 L_v_top3")
e("s_branch L_c_store")
lab("L_c_mwait0")
e(f"s_mov_b32 s{sPLN}, 2")
lab("L_c_mwait")
e(f"ds_read_b64 v[{vPL}:{vPL+1}], v{vPA}")
e("s_waitcnt lgkmcnt(0)")
e(f"v_readfirstlane_b32 s{sMBF}, v{vPL+1}")
e(f"s_cmp_lg_u32 s{sMBF}, 0")
e("s_cbranch_scc1 L_c_merge")
spin_tail("L_c_mwait")

def ws_base(sb):
    e(f"s_lshl3_add_u32 s{sT0}, s{sb}, s{sH}")
    e(f"s_lshl_b32 s{sT0}, s{sT0}, 9")
    if WS0: e(f"s_add_u32 s{sT0}, s{sT0}, {WS0}")

lab("L_publish")
if "nopub" in DBG: e("s_endpgm")
e(f"v_lshl_add_u32 v{vT2}, v{vLANE}, 4, s{sQO}")
e(f"s_lshl_b32 s{sT2}, s{sPB}, 2")
e(f"v_mov_b32 v{vT3}, s{sT2}")
e(f"v_lshlrev_b32 v{vT4}, 1, v{vT3}")
e(f"v_add_u32 v{vT4}, {CTRL+68}, v{vT4}")
e(f"ds_read_b32 v{vT4}, v{vT4}")
ws_base(sPB)
e(f"s_lshl2_add_u32 s{sT1}, s{sCI}, s{sT0}")
e(f"v_mov_b32 v{vT5}, s{sT1}")
e(f"s_lshl_b32 s{sT1}, s{sCI}, 7")
e(f"s_add_u32 s{sT0}, s{sT0}, s{sT1}")
e(f"v_lshl_add_u32 v{vT1}, v{vLANE}, 3, s{sT0}")
e(f"s_getreg_b32 s{sT2}, hwreg(HW_REG_XCC_ID, 0, 4)")
e(f"s_lshl_b32 s{sT2}, s{sT2}, 4")
e(f"s_or_b32 s{sT2}, s{sT2}, s{sH}")
e(f"s_or_b32 s{sT2}, s{sT2}, 0x100")
e("s_waitcnt lgkmcnt(0)")
e(f"v_readfirstlane_b32 s{sT1}, v{vT4}")
e(f"s_lshr_b32 s{sT1}, s{sT1}, 16")
e(f"s_cmp_eq_u32 s{sT1}, s{sT2}")
e("s_cbranch_scc1 L_pub_fast")
e(f"global_load_dword v{vT4}, v{vT3}, s[{sDBG}:{sDBG+1}] offset:128 sc1")
e("s_waitcnt vmcnt(0)")
e(f"v_readfirstlane_b32 s{sT1}, v{vT4}")
e(f"s_lshr_b32 s{sT1}, s{sT1}, 16")
e(f"s_cmp_eq_u32 s{sT1}, s{sT2}")
e("s_cbranch_scc0 L_pub_slow")
lab("L_pub_fast")
c("the receiver runs on this die and has cleared its flag words: hand over inside the shared L2")
out_stores("", 1024)
e("s_mov_b64 exec, 0xffff")
e(f"global_store_dwordx2 v{vT1}, v[{vM}:{vM+1}], s[{sWS}:{sWS+1}]")
e(f"v_mov_b32 v{vT4}, 1")
e("s_waitcnt vmcnt(0)")
e("s_mov_b64 exec, 1")
e(f"global_store_dword v{vT5}, v{vT4}, s[{sWS}:{sWS+1}] offset:256")
e(FIN)
lab("L_pub_slow")
c("any other placement: write through to memory, then set a bit with a device-wide atomic")
out_stores(" sc1", 1024)
e("s_mov_b64 exec, 0xffff")
e(f"global_store_dwordx2 v{vT1}, v[{vM}:{vM+1}], s[{sWS}:{sWS+1}] sc1")
e(f"s_lshl1_add_u32 s{sT1}, s{sH}, s{sCI}")
e(f"s_lshl_b32 s{sT1}, 1, s{sT1}")
e(f"v_mov_b32 v{vT4}, s{sT1}")
e("s_waitcnt vmcnt(0)")
e("s_mov_b64 exec, 1")
e(f"global_atomic_add v{vT3}, v{vT4}, s[{sDBG}:{sDBG+1}]")
e(FIN)

vRW = vL
vKEY, vRK = 19, 20
lab("L_ctl0")
if a.skew:
    c("dies are not started at the same instant: the first eight workgroups post when they started")
    e(f"s_memrealtime s[{sMA}:{sMA+1}]")
    e(f"s_lshl2_add_u32 s{sT0}, s{sH}, 2")
    e(f"v_mov_b32 v{vT4}, s{sT0}")
    e(f"s_cmp_lg_u32 s{sB}, 0")
    e("s_waitcnt lgkmcnt(0)")
    e("s_cbranch_scc1 L_ctl1")
    e(f"s_or_b32 s{sT0}, s{sMA}, 0x8000")
    e(f"v_mov_b32 v{vT5}, s{sT0}")
    e("s_mov_b64 exec, 1")
    e(f"global_store_short v{vT4}, v{vT5}, s[{sDBG}:{sDBG+1}] sc1")
    e("s_mov_b64 exec, -1")
    lab("L_ctl1")
e("s_barrier")
e("s_branch L_ctl")
lab("L_planner")
e(f"s_cmp_eq_u32 s{sW}, 5")
e("s_cbranch_scc1 L_ctl0")
e(f"s_sub_u32 s{sCI}, s{sW}, 3")
e(f"s_lshl_b32 s{sSB}, s{sCI}, 8")
e(f"s_add_u32 s{sSB}, s{sSB}, {CNT}")
e(f"v_lshl_add_u32 v{vPA}, v{vLANE}, 2, s{sSB}")
e(f"s_lshl_b32 s{sT2}, s{sCI}, 7")
e(f"s_add_u32 s{sT2}, s{sT2}, {KEYS}")
e(f"v_add_u32 v{vT3}, s{sT2}, v{vT3}")
e(f"v_lshrrev_b32 v{vT4}, 5, v{vLANE}")
e(f"v_lshl_add_u32 v{vT4}, v{vT4}, 6, s{sT2}")
e(f"v_mov_b32 v{vT5}, 2048")
e("s_barrier")
e("s_waitcnt vmcnt(0)")
e(f"v_cmp_gt_i32 s[{sZQ}:{sZQ+1}], 1, v{vN}")
e(f"v_min_i32 v{vN}, v{vN}, v{vT5}")
e("s_nop 0")
e(f"v_cndmask_b32 v{vN}, v{vN}, v{vT5}, s[{sZQ}:{sZQ+1}]")
e(f"v_add_u32 v{vN}, 15, v{vN}")
e(f"v_lshrrev_b32 v{vN}, 4, v{vN}")
e(f"v_lshl_or_b32 v{vKEY}, v{vN}, 5, v{vT0}")
e(f"ds_write_b32 v{vT3}, v{vKEY}")
for i in range(4):
    e(f"ds_read_b128 v[{vKF+4*i}:{vKF+4*i+3}], v{vT4} offset:{16*i}")
e(f"v_mov_b32 v{vRK}, 0")
e(f"v_readlane_b32 s{sNB}, v{vN}, s{sB}")
e("s_waitcnt lgkmcnt(0)")
c("rank of every batch by block count; the batch of rank 31-r is the partner")
for i in range(16):
    e(f"v_sub_u32 v{vKF+i}, v{vKF+i}, v{vKEY}")
for i in range(16):
    e(f"v_alignbit_b32 v{vRK}, v{vRK}, v{vKF+i}, 31")
e(f"v_bcnt_u32_b32 v{vRK}, v{vRK}, 0")
e(f"v_mov_b32 v{vT2}, v{vRK}")
derive_nb()
e(f"v_permlane32_swap_b32 v{vRK}, v{vT2}")
e("s_nop 0")
e(f"v_add_u32 v{vRK}, v{vRK}, v{vT2}")
e("s_nop 0")
e(f"v_readlane_b32 s{sRK}, v{vRK}, s{sB}")
e(f"s_sub_u32 s{sT0}, 31, s{sRK}")
e(f"v_cmp_eq_u32 vcc, s{sT0}, v{vRK}")
e(f"s_ff1_i32_b32 s{sPB}, vcc_lo")
e(f"v_readlane_b32 s{sNP}, v{vN}, s{sPB}")
e(f"s_max_u32 s{sT0}, s{sNB}, s{sNP}")
e(f"s_min_u32 s{sT1}, s{sNB}, s{sNP}")
e(f"s_sub_u32 s{sX}, s{sT0}, s{sT1}")
e(f"s_add_u32 s{sX}, s{sX}, 2")
e(f"s_lshr_b32 s{sX}, s{sX}, 2")
e(f"s_cmp_lt_u32 s{sT0}, {4*NUM+8}")
e(f"s_cselect_b32 s{sX}, 0, s{sX}")
if a.nopair: e(f"s_mov_b32 s{sX}, 0")
e(f"s_cmp_ge_u32 s{sRK}, 16")
e(f"s_cselect_b32 s{sLO}, s{sX}, 0")
e(f"s_cselect_b32 s{sTB}, 0, s{sX}")
e(f"s_cmp_eq_u32 s{sCI}, 0")
e("s_cbranch_scc1 L_pl_norow")
e(f"s_lshl_b32 s{sT0}, s{sPB}, 9")
e(f"v_lshl_add_u32 v{vT1}, v{vLANE}, 3, s{sT0}")
e(f"global_load_dwordx2 v[{vRW}:{vRW+1}], v{vT1}, s[{sBT}:{sBT+1}]")
lab("L_pl_norow")
e(f"s_sub_u32 s{sTA}, s{sNTL}, s{sLO}")
e(f"s_add_u32 s{sT}, s{sTA}, s{sTB}")
e(f"s_mul_i32 s{sF}, s{sT}, {a.fnum}")
e(f"s_lshr_b32 s{sF}, s{sF}, 6")
e(f"s_min_u32 s{sWB}, s{sTA}, {a.UB}")
e(f"s_sub_i32 s{sF}, s{sF}, s{sWB}")
e(f"s_max_i32 s{sF}, s{sF}, s{sTB}")
e(f"s_max_i32 s{sF}, s{sF}, 1")
e(f"v_cvt_f32_u32 v{vT2}, s{sF}")
e(f"v_subrev_u32 v{vT3}, s{sWB}, v{vLANE}")
e(f"v_rcp_f32 v{vT2}, v{vT2}")
e(f"v_mul_i32_i24 v{vT4}, s{sTB}, v{vT3}")
e(f"v_add_u32 v{vT5}, s{sTB}, v{vT4}")
e(f"v_cvt_f32_i32 v{vT4}, v{vT4}")
e(f"v_cvt_f32_i32 v{vT5}, v{vT5}")
e(f"v_add_f32 v{vT4}, 0.5, v{vT4}")
e(f"v_add_f32 v{vT5}, 0.5, v{vT5}")
e(f"v_mul_f32 v{vT4}, v{vT4}, v{vT2}")
e(f"v_mul_f32 v{vT5}, v{vT5}, v{vT2}")
e(f"v_floor_f32 v{vT4}, v{vT4}")
e(f"v_floor_f32 v{vT5}, v{vT5}")
e(f"v_cmp_gt_u32 vcc, s{sF}, v{vT3}")
e(f"v_cmp_gt_f32 s[{sMBK}:{sMBK+1}], v{vT5}, v{vT4}")
e(f"s_sub_u32 s{sT0}, s{sT}, s{sNU}")
e(f"v_subrev_u32 v{vT3}, s{sNU}, v{vLANE}")
e(f"v_cmp_gt_u32 s[{sMA}:{sMA+1}], s{sT0}, v{vT3}")
e(f"s_and_b64 s[{sMBK}:{sMBK+1}], s[{sMBK}:{sMBK+1}], vcc")
e(f"s_andn2_b64 s[{sMA}:{sMA+1}], s[{sMA}:{sMA+1}], s[{sMBK}:{sMBK+1}]")
c(f"own tiles to sort: logical [NU+given, ntile); donated: the partner's logical [{NUM}, {NUM}+TB)")
mfirst = a.mfirst and not a.nosort
if mfirst:
    e(f"s_ff1_i32_b64 s{sT2}, s[{sMA}:{sMA+1}]")
else:
    e(f"s_flbit_i32_b64 s{sT2}, s[{sMA}:{sMA+1}]")
    e(f"s_sub_u32 s{sT2}, 63, s{sT2}")
e(f"s_lshl_b32 s{sT2}, s{sT2}, 8")
e(f"s_or_b32 s{sWB}, s{sT2}, 1")
e(f"s_min_u32 s{sMRG}, s{sLO}, 1")
e(f"s_add_u32 s{sLO}, s{sLO}, s{sNU}")
e(f"s_sub_u32 s{sHI}, s{sNTL}, s{sLO}")
e(f"s_sub_u32 s{sT3}, s{sNTL}, 1")
e(f"s_mov_b32 s{sLBASE}, {LA}")
e(f"s_cmp_eq_u32 s{sCI}, 0")
e("s_cbranch_scc1 L_pl_a")
e(f"s_mov_b32 s{sLO}, {NUM}")
e(f"s_mov_b32 s{sHI}, s{sTB}")
e(f"s_mov_b32 s{sT3}, -1")
e(f"s_mov_b32 s{sLBASE}, {LB}")
e(f"s_mov_b64 s[{sMA}:{sMA+1}], s[{sMBK}:{sMBK+1}]")
e("s_branch L_pl_sort")
lab("L_pl_a")
e(f"s_lshl_b32 s{sT0}, s{sT}, 8")
e(f"s_or_b32 s{sT0}, s{sT0}, s{sMRG}")
e(f"v_mov_b32 v{vT2}, s{sMA}")
e(f"v_mov_b32 v{vT3}, s{sMA+1}")
e(f"v_mov_b32 v{vT4}, s{sT0}")
e(f"v_mov_b32 v{vT5}, s{sWB}")
e(f"v_mov_b32 v{vT1}, {REC0}")
e(f"ds_write_b128 v{vT1}, v[{vT2}:{vT5}]")
lab("L_pl_sort")
e(f"v_subrev_u32 v{vT0}, s{sLO}, v{vLANE}")
e(f"v_cmp_gt_u32 vcc, s{sHI}, v{vT0}")
e(f"v_mov_b32 v{vT5}, 1")
e("s_waitcnt vmcnt(0)")
if a.nosort:
    e(f"v_lshlrev_b32 v{vT2}, 1, v{vT0}")
    e(f"v_add_u32 v{vT3}, 1, v{vT2}")
else:
    c("counting sort of the block ids into 64 buckets of ascending physical address")
    e(f"v_lshrrev_b32 v{vT0}, 6, v{vRW}")
    e(f"v_lshrrev_b32 v{vT1}, 6, v{vRW+1}")
    e(f"v_cmp_eq_u32 s[{sRK+2}:{sRK+3}], s{sT3}, v{vLANE}")
    if mfirst:
        e(f"v_med3_u32 v{vT0}, v{vT0}, 1, 63")
        e(f"v_med3_u32 v{vT1}, v{vT1}, 1, 63")
    else:
        e(f"v_min_u32 v{vT0}, 62, v{vT0}")
        e(f"v_min_u32 v{vT1}, 62, v{vT1}")
    fb = 0 if mfirst else 63
    e(f"v_cndmask_b32 v{vT0}, v{vT0}, {fb}, s[{sRK+2}:{sRK+3}]")
    e(f"v_cndmask_b32 v{vT1}, v{vT1}, {fb}, s[{sRK+2}:{sRK+3}]")
    e(f"v_lshlrev_b32 v{vT0}, 2, v{vT0}")
    e(f"v_lshlrev_b32 v{vT1}, 2, v{vT1}")
    e(f"v_add_u32 v{vKF}, s{sSB}, v{vT0}")
    e(f"v_add_u32 v{vKF+1}, s{sSB}, v{vT1}")
    e("s_mov_b64 exec, vcc")
    e(f"ds_add_rtn_u32 v{vT2}, v{vKF}, v{vT5}")
    e(f"ds_add_rtn_u32 v{vT3}, v{vKF+1}, v{vT5}")
    e("s_mov_b64 exec, -1")
    e(f"ds_read_b32 v{vT4}, v{vPA}")
    e("s_waitcnt lgkmcnt(0)")
    e(f"v_mov_b32 v{vKF+2}, v{vT4}")
    for sh in (1, 2, 4, 8):
        e("s_nop 1")
        e(f"v_add_u32_dpp v{vT4}, v{vT4}, v{vT4} row_shr:{sh} row_mask:0xf bank_mask:0xf bound_ctrl:0")
    e("s_nop 1")
    e(f"v_add_u32_dpp v{vT4}, v{vT4}, v{vT4} row_bcast:15 row_mask:0xa bank_mask:0xf")
    e("s_nop 1")
    e(f"v_add_u32_dpp v{vT4}, v{vT4}, v{vT4} row_bcast:31 row_mask:0xc bank_mask:0xf")
    e(f"v_sub_u32 v{vT4}, v{vT4}, v{vKF+2}")
    e(f"ds_bpermute_b32 v{vT0}, v{vT0}, v{vT4}")
    e(f"ds_bpermute_b32 v{vT1}, v{vT1}, v{vT4}")
    e("s_waitcnt lgkmcnt(0)")
    e(f"v_add_u32 v{vT2}, v{vT2}, v{vT0}")
    e(f"v_add_u32 v{vT3}, v{vT3}, v{vT1}")
e(f"v_lshlrev_b32 v{vRW}, 15, v{vRW}")
e(f"v_lshlrev_b32 v{vRW+1}, 15, v{vRW+1}")
e(f"v_lshl_add_u32 v{vT2}, v{vT2}, 2, s{sLBASE}")
e(f"v_lshl_add_u32 v{vT3}, v{vT3}, 2, s{sLBASE}")
e("s_mov_b64 exec, vcc")
e(f"ds_write_b32 v{vT2}, v{vRW}")
e(f"ds_write_b32 v{vT3}, v{vRW+1}")
e("s_mov_b64 exec, -1")
c("place the sorted tiles at their stream positions; flags: 1 valid, 2 masked, 4 last of batch, 8 last of stream")
e(f"v_mbcnt_lo_u32_b32 v{vT0}, s{sMA}, 0")
e(f"v_mbcnt_hi_u32_b32 v{vT0}, s{sMA+1}, v{vT0}")
e(f"v_lshl_add_u32 v{vT0}, v{vT0}, 3, s{sLBASE}")
e(f"ds_read_b64 v[{vT2}:{vT3}], v{vT0}")
e(f"s_lshr_b32 s{sT0}, s{sWB}, 8")
e(f"s_sub_u32 s{sT1}, s{sT}, 1")
e(f"v_cmp_eq_u32 vcc, s{sT0}, v{vLANE}")
e(f"v_cmp_eq_u32 s[{sRK+2}:{sRK+3}], s{sT1}, v{vLANE}")
e(f"v_cmp_eq_u32 s[{sT2}:{sT2+1}], {G-1}, v{vLANE}")
e(f"v_cndmask_b32 v{vT4}, 1, 3, vcc")
e(f"v_cndmask_b32 v{vT5}, 0, 12, s[{sRK+2}:{sRK+3}]")
e(f"v_cndmask_b32 v{vT1}, 0, 4, s[{sT2}:{sT2+1}]")
e(f"v_or3_b32 v{vT4}, v{vT4}, v{vT5}, v{vT1}")
e(f"v_lshlrev_b32 v{vT0}, 3, v{vLANE}")
e(f"v_add_u32 v{vT0}, {SL}, v{vT0}")
e("s_waitcnt lgkmcnt(0)")
e(f"v_or_b32 v{vT2}, v{vT2}, v{vT4}")
e(f"s_mov_b64 exec, s[{sMA}:{sMA+1}]")
e(f"ds_write_b64 v{vT0}, v[{vT2}:{vT3}]")
e("s_mov_b64 exec, -1")
lab("L_pl_done")
e(f"s_cmp_lg_u32 s{sMRG}, 0")
e("s_cbranch_scc1 L_fetch")
e(f"s_cmp_eq_u32 s{sTB}, 0")
e("s_cbranch_scc1 L_fin")
c("become the consumer of the donated tiles")
load_q(sPB)
e(f"s_mov_b64 s[{sMALL}:{sMALL+1}], s[{sMBK}:{sMBK+1}]")
e(f"s_mov_b32 s{sM}, s{sMBK}")
e(f"s_and_b32 s{sM+1}, s{sMBK+1}, {RHI:#x}")
e(f"s_mov_b32 s{sTTC}, s{sT}")
e(f"s_min_u32 s{sTB1}, s{sT}, {G}")
e(f"s_mov_b32 s{sROLE}, 1")
e(f"s_mov_b32 s{sPLN}, 1")
e(f"s_lshr_b32 s{sT3}, s{sZQ}, s{sPB}")
e(f"s_and_b32 s{sT3}, s{sT3}, 1")
e("s_branch L_csetup")

lab("L_fetch")
e(f"s_cmp_lg_u32 s{sCI}, 0")
e("s_cbranch_scc1 L_fin")
rows_off(sB)
if a.otouch >= 0:
    c("make the lines that will carry the partial valid in L2 (a later read of write-only lines would go to memory)")
    e(f"v_lshl_add_u32 v{vT4}, v{vLANE}, 7, s{sQO}")
    e(f"global_load_dword v{vPF}, v{vT4}, s[{sOUT}:{sOUT+1}] {a.ofl.replace('+', ' ')}")
ws_base(sB)
e(f"v_lshl_add_u32 v{vT1}, v{vT0}, 3, s{sT0}")
e(f"v_mov_b32 v{vFW}, s{sT0}")
e(f"s_lshl_b32 s{sT2}, s{sB}, 2")
e(f"v_mov_b32 v{vT2}, s{sT2}")
e(f"v_mov_b32 v{vPA}, {CTRL+16}")
e("s_mov_b64 exec, 1")
e(f"s_mul_i32 s{sNEED}, s{sT}, {a.pollnum}")
e(f"s_lshr_b32 s{sNEED}, s{sNEED}, 5")
e(f"s_lshl_b32 s{sT3}, s{sH}, 1")
e(f"s_mov_b32 s{sMBF}, 0")
c("wait until wave 5 has cleared the flag words and the stream is far enough")
lab("L_f_wait")
e(f"ds_read_b64 v[{vPL}:{vPL+1}], v{vPA}")
e("s_waitcnt lgkmcnt(0)")
e(f"v_readfirstlane_b32 s{sLND}, v{vPL}")
e(f"v_readfirstlane_b32 s{sT0}, v{vPL+1}")
e(f"s_cmp_ge_i32 s{sLND}, s{sNEED}")
e(f"s_cselect_b32 s{sT0}, s{sT0}, 0")
e(f"s_cmp_lg_u32 s{sT0}, 0")
e("s_cbranch_scc1 L_f_poll")
spin_tail("L_f_wait", 8)
lab("L_f_poll")
if "nopoll" in DBG: e("s_branch L_f_got")
e(f"global_load_dwordx2 v[{vPL}:{vPL+1}], v{vFW}, s[{sWS}:{sWS+1}] offset:256 sc1")
e(f"s_add_u32 s{sMBF}, s{sMBF}, 1")
e(f"s_and_b32 s{sT0}, s{sMBF}, 3")
e(f"s_mov_b32 s{sT2}, 0")
e("s_cbranch_scc1 L_f_nodbg")
e(f"global_load_dword v{vT3}, v{vT2}, s[{sDBG}:{sDBG+1}] sc1")
e("s_waitcnt vmcnt(0)")
e(f"v_readfirstlane_b32 s{sT2}, v{vT3}")
e(f"s_lshr_b32 s{sT2}, s{sT2}, s{sT3}")
lab("L_f_nodbg")
e("s_waitcnt vmcnt(0)")
e(f"v_lshl_or_b32 v{vPL}, v{vPL+1}, 1, v{vPL}")
e("s_nop 0")
e(f"v_readfirstlane_b32 s{sT0}, v{vPL}")
e(f"s_or_b32 s{sT0}, s{sT0}, s{sT2}")
e(f"s_and_b32 s{sT0}, s{sT0}, 3")
e(f"s_cmp_eq_u32 s{sT0}, 3")
e("s_cbranch_scc1 L_f_got")
spin_tail("L_f_poll", a.psleep)
lab("L_f_got")
e("s_mov_b64 exec, -1")
e(f"v_lshl_add_u32 v{vT4}, v{vLANE}, 4, s{sQO}")
e(f"v_add_u32 v{vT5}, 4096, v{vT4}")
FLD = " " + a.fld if a.fld != "none" else ""
for cc in range(2):
    if "nofetch" in DBG:
        e(f"v_mov_b32 v{vM+2*cc}, 0"); e(f"v_mov_b32 v{vM+2*cc+1}, 0")
        continue
    e(f"global_load_dwordx2 v[{vM+2*cc}:{vM+2*cc+1}], v{vT1}, s[{sWS}:{sWS+1}] offset:{128*cc}{FLD}")
    for j in range(4):
        r = vKF + 16 * cc + 4 * j
        e(f"global_load_dwordx4 v[{r}:{r+3}], v{vT4+cc}, s[{sOUT}:{sOUT+1}] offset:{1024*j}{FLD}")
e(f"v_lshlrev_b32 v{vT2}, 4, v{vLANE}")
e(f"v_add_u32 v{vT2}, {MB}, v{vT2}")
e(f"v_lshlrev_b32 v{vT0}, 3, v{vT0}")
e(f"v_add_u32 v{vT0}, {MB}, v{vT0}")
e(f"v_mov_b32 v{vPL}, {CTRL+4}")
e(f"v_mov_b32 v{vT3}, 1")
for cc in range(2):
    e(f"s_waitcnt vmcnt({5-5*cc})")
    for j in range(4):
        r = vKF + 16 * cc + 4 * j
        e(f"ds_write_b128 v{vT2}, v[{r}:{r+3}] offset:{MBS*cc + 1024*j}")
    e(f"ds_write_b64 v{vT0}, v[{vM+2*cc}:{vM+2*cc+1}] offset:{MBS*cc + 4096}")
    e(f"ds_write_b32 v{vPL}, v{vT3} offset:{8*cc}")
e(FIN)

c("wave 5: workgroups that share an L2 post their remaining work; one that lags prefetches deeper")
lab("L_ctl")
e(f"v_mov_b32 v{vT1}, {REC0}")
e(f"v_mov_b32 v{vPA}, {CTRL+32}")
e(f"v_mov_b32 v{vFW}, {DEPW}")
e(f"s_lshl_b32 s{sT0}, s{sB}, 2")
e(f"v_mov_b32 v{vG}, s{sT0}")
e(f"v_mov_b32 v{vFV}, v{vT3}")
lo = sum((XT[i] & 255) << (8 * i) for i in range(4)); hi = sum((XT[4 + i] & 255) << (8 * i) for i in range(4))
e(f"s_getreg_b32 s{sT0}, hwreg(HW_REG_XCC_ID, 0, 3)")
e(f"s_mov_b32 s{sM}, {lo:#x}")
e(f"s_mov_b32 s{sM+1}, {hi:#x}")
e(f"s_lshl_b32 s{sT0}, s{sT0}, 3")
e(f"s_lshr_b64 s[{sM}:{sM+1}], s[{sM}:{sM+1}], s{sT0}")
e(f"s_sext_i32_i8 s{sBO}, s{sM}")
lab("L_g_plan")
e(f"ds_read_b128 v[{vT2}:{vT5}], v{vT1}")
e("s_waitcnt lgkmcnt(0)")
e(f"v_readfirstlane_b32 s{sT0}, v{vT5}")
e(f"v_readfirstlane_b32 s{sT}, v{vT4}")
e(f"s_cmp_lg_u32 s{sT0}, 0")
e("s_cbranch_scc1 L_g_go")
spin_tail("L_g_plan", 8)
lab("L_g_go")
e(f"s_and_b32 s{sMRG}, s{sT}, 1")
e("s_cbranch_scc0 L_g_nores")
c("a partial is expected: clear its flag words before anything is posted")
ws_base(sB)
e(f"v_mov_b32 v{vT0}, s{sT0}")
e(f"v_mov_b32 v{vT2}, 0")
e(f"v_mov_b32 v{vT3}, 0")
e(f"v_mov_b32 v{vT4}, {CTRL+20}")
e(f"v_mov_b32 v{vT5}, 1")
e("s_mov_b64 exec, 1")
e(f"global_store_dwordx2 v{vT0}, v[{vT2}:{vT3}], s[{sWS}:{sWS+1}] offset:256")
e("s_waitcnt vmcnt(0)")
e(f"ds_write_b32 v{vT4}, v{vT5}")
e("s_mov_b64 exec, -1")
lab("L_g_nores")
e(f"s_and_b32 s{sT0}, s{sDBG}, 127")
e("s_cbranch_scc1 L_fin")
c("posted word: remaining units + 1 | head << 16 | die << 20 | flags cleared << 24")
e(f"s_getreg_b32 s{sFB}, hwreg(HW_REG_XCC_ID, 0, 4)")
e(f"s_lshl4_add_u32 s{sFB}, s{sMRG}, s{sFB}")
e(f"s_lshl4_add_u32 s{sFB}, s{sFB}, s{sH}")
e(f"s_lshl_b32 s{sFB}, s{sFB}, 16")
e(f"s_lshr_b32 s{sT}, s{sT}, 8")
e(f"s_lshl1_add_u32 s{sTN}, s{sT}, 1")
e(f"v_lshlrev_b32 v{vT1}, 1, v{vFV}")
e(f"v_add_u32 v{vT1}, {CTRL+68}, v{vT1}")
e(f"v_mov_b32 v{vT2}, s{sFB}")
e("s_mov_b64 exec, 1")
e(f"global_store_dword v{vG}, v{vT2}, s[{sDBG}:{sDBG+1}] offset:128")
e("s_mov_b64 exec, -1")
if "v" in a.tlb: e(f"global_load_dword v{vPF}, v{vTL}, s[{sV}:{sV+1}] nt")
if "prog2" in DBG: e("v_mov_b32 v50, 0")
if a.skew:
    e(f"s_mov_b32 s{sNEED}, 3")
    e(f"s_cmp_lt_u32 s{sT}, 8")
    e("s_cbranch_scc1 L_fin")
    lab("L_g_sw")
    e(f"ds_read_b32 v{vPL}, v{vPA}")
    e("s_waitcnt lgkmcnt(0)")
    e(f"v_readfirstlane_b32 s{sLND}, v{vPL}")
    e(f"s_cmp_ge_i32 s{sLND}, s{sNEED}")
    e("s_cbranch_scc1 L_g_sa")
    spin_tail("L_g_sw", 1)
    lab("L_g_sa")
    e(f"global_load_dword v{vT0}, v{vFV}, s[{sDBG}:{sDBG+1}] sc1")
    e("s_waitcnt vmcnt(0)")
    e(f"v_cmp_gt_i32 vcc, 0, v{vT0}")
    e(f"v_lshrrev_b32 v{vT0}, 16, v{vT0}")
    e(f"v_sub_u32 v{vT0}, s{sMA}, v{vT0}")
    e(f"v_bfe_i32 v{vT0}, v{vT0}, 0, 15")
    e(f"v_cndmask_b32 v{vT0}, 0, v{vT0}, vcc")
    for sh in (1, 2, 4):
        e("s_nop 1")
        op = "v_max_i32_dpp" if "ampmax" in DBG else "v_add_u32_dpp"
        e(f"{op} v{vT0}, v{vT0}, v{vT0} row_shr:{sh} row_mask:0xf bank_mask:0xf bound_ctrl:0")
    e("s_nop 0")
    e(f"v_readlane_b32 s{sT0}, v{vT0}, 7")
    if "ampmax" in DBG or "ampmean" in DBG:
        e(f"s_mul_i32 s{sMBK}, s{sT0}, {20 if 'ampmax' in DBG else 3}")
        e(f"s_max_i32 s{sMBK}, s{sMBK}, 0")
        e(f"s_add_u32 s{sMBK}, s{sMBK}, 3500")
        lab("L_amp")
        e("s_sleep 4")
        e(f"s_memrealtime s[{sLO}:{sLO+1}]")
        e("s_waitcnt lgkmcnt(0)")
        e(f"s_sub_u32 s{sT0}, s{sLO}, s{sMA}")
        e(f"s_cmp_lt_u32 s{sT0}, s{sMBK}")
        e("s_cbranch_scc1 L_amp")
        e("s_endpgm")
    e(f"s_mul_i32 s{sT0}, s{sT0}, {a.skew}")
    e(f"s_ashr_i32 s{sT0}, s{sT0}, 9")
    e(f"s_add_u32 s{sBO}, s{sBO}, s{sT0}")
e(f"s_mov_b32 s{sNEED}, {a.cstart}")
lab("L_g_next")
e(f"s_sub_u32 s{sT0}, s{sTN}, s{sNEED}")
e(f"s_cmp_lt_i32 s{sT0}, {a.cstop}")
e("s_cbranch_scc1 L_fin")
lab("L_g_w")
e(f"ds_read_b32 v{vPL}, v{vPA}")
e("s_waitcnt lgkmcnt(0)")
e(f"v_readfirstlane_b32 s{sLND}, v{vPL}")
e(f"s_cmp_ge_i32 s{sLND}, s{sNEED}")
e("s_cbranch_scc1 L_g_a")
spin_tail("L_g_w", 1)
lab("L_g_a")
if "prog2" in DBG:
    e(f"s_memrealtime s[{sST+2}:{sST+3}]")
    e(f"s_lshr_b32 m0, s{sLND}, 1")
    e("s_waitcnt lgkmcnt(0)")
    e(f"v_writelane_b32 v50, s{sST+2}, m0")
e(f"s_sub_u32 s{sNK}, s{sTN}, s{sLND}")
e(f"s_or_b32 s{sT0}, s{sNK}, s{sFB}")
e(f"v_mov_b32 v{vT2}, s{sT0}")
e("s_mov_b64 exec, 1")
e(f"global_store_dword v{vG}, v{vT2}, s[{sDBG}:{sDBG+1}] offset:128")
e("s_mov_b64 exec, -1")
e(f"global_load_dword v{vT0}, v{vFV}, s[{sDBG}:{sDBG+1}] offset:128 sc1")
e(f"s_add_u32 s{sNEED}, s{sLND}, {a.cstep}")
e(f"s_min_i32 s{sT3}, s{sBO}, 1")
e(f"s_max_i32 s{sT3}, s{sT3}, -1")
e(f"s_sub_u32 s{sBO}, s{sBO}, s{sT3}")
e("s_waitcnt vmcnt(0)")
e(f"ds_write_b32 v{vT1}, v{vT0}")
e(f"v_and_b32 v{vT0}, 0xffff, v{vT0}")
e(f"v_cmp_ne_u32 vcc, 0, v{vT0}")
for sh in (1, 2, 4, 8):
    e("s_nop 1")
    e(f"v_add_u32_dpp v{vT0}, v{vT0}, v{vT0} row_shr:{sh} row_mask:0xf bank_mask:0xf bound_ctrl:0")
e("s_nop 1")
e(f"v_add_u32_dpp v{vT0}, v{vT0}, v{vT0} row_bcast:15 row_mask:0xa bank_mask:0xf")
e(f"s_bcnt1_i32_b32 s{sT1}, vcc_lo")
e(f"v_readlane_b32 s{sT0}, v{vT0}, 31")
e(f"s_mul_i32 s{sT2}, s{sNK}, s{sT1}")
e(f"s_sub_u32 s{sT2}, s{sT2}, s{sT0}")
e(f"s_lshl_b32 s{sT2}, s{sT2}, 2")
for th, inc, cmp in ((CTH[0], -1, "lt"), (CTH[1], 1, "gt"), (CTH[2], 1, "gt")):
    e(f"s_mul_i32 s{sT0}, s{sT1}, {th - a.cbias}")
    e(f"s_cmp_{cmp}_i32 s{sT2}, s{sT0}")
    e(f"s_cselect_b32 s{sT0}, {inc}, 0")
    e(f"s_add_u32 s{sT3}, s{sT3}, s{sT0}")
e(f"s_max_i32 s{sT3}, s{sT3}, -1")
e(f"s_min_i32 s{sT3}, s{sT3}, 2")
e(f"v_mov_b32 v{vT2}, s{sT3}")
e(f"ds_write_b32 v{vFW}, v{vT2}")
e("s_branch L_g_next")

lab("L_fin")
if a.amp:
    if a.amp == "end":
        e(f"s_sub_u32 s{sT0}, s{sW}, 1")
        e(f"s_cmp_gt_u32 s{sT0}, 1")
    else:
        e(f"s_cmp_lg_u32 s{sW}, 0")
    e("s_cbranch_scc1 L_end")
    if a.ampwg >= 0:
        e(f"s_cmp_lg_u32 s2, {a.ampwg}")
        e("s_cbranch_scc1 L_end")
    e("s_waitcnt vmcnt(0) lgkmcnt(0)")
    if a.amp[:2] != "t0":
        e(f"s_memrealtime s[{sST+2}:{sST+3}]")
        e("s_waitcnt lgkmcnt(0)")
    e(f"s_sub_u32 s{sT1}, s{sST+2}, s{sST}")
    if a.amp[:2] != "t0": e(f"s_sub_u32 s{sT1}, s{sT1}, 2700")
    e(f"s_max_i32 s{sT1}, s{sT1}, 0")
    e(f"s_min_i32 s{sT1}, s{sT1}, 2000")
    e(f"s_mul_i32 s{sT1}, s{sT1}, 10")
    e(f"s_add_u32 s{sT1}, s{sT1}, 3500")
    lab("L_ampw")
    e("s_sleep 2")
    e(f"s_memrealtime s[{sST+2}:{sST+3}]")
    e("s_waitcnt lgkmcnt(0)")
    e(f"s_sub_u32 s{sT0}, s{sST+2}, s{sST}")
    e(f"s_cmp_lt_u32 s{sT0}, s{sT1}")
    e("s_cbranch_scc1 L_ampw")
if "prog2" in DBG or "prog3" in DBG:
    e(f"s_cmp_lg_u32 s{sW}, {5 if 'prog2' in DBG else 0}")
    e("s_cbranch_scc1 L_np2")
    e(f"s_lshl_b32 s{sT0}, s2, 8")
    e(f"s_add_u32 s{sT0}, s{sT0}, 0x400000")
    e(f"v_lshl_add_u32 v51, v{vLANE}, 2, s{sT0}")
    e(f"global_store_dword v51, v50, s[{sWS}:{sWS+1}]")
    lab("L_np2")
if a.stamps:
    e(f"s_cmp_gt_u32 s{sW}, 2")
    e("s_cbranch_scc1 L_end")
    e("s_mov_b64 exec, -1")
    e("s_waitcnt vmcnt(0) lgkmcnt(0)")
    stamp(3)
    e(f"s_getreg_b32 s{sT0}, hwreg(HW_REG_XCC_ID)")
    e("s_waitcnt lgkmcnt(0)")
    for i in range(8):
        e(f"v_mov_b32 v{64+i}, s{sST+i}")
    e(f"v_mov_b32 v72, s{sT0}")
    e(f"s_sub_u32 s{sT1}, {SPIN}, s{sSPIN}")
    e(f"v_mov_b32 v73, s{sT1}")
    e(f"v_mov_b32 v74, s{sT}")
    e(f"v_mov_b32 v75, 0")
    e(f"s_mul_i32 s{sT0}, s2, {NW}")
    e(f"s_add_u32 s{sT0}, s{sT0}, s{sW}")
    e(f"s_lshl_b32 s{sT0}, s{sT0}, 6")
    e(f"v_mov_b32 v80, s{sT0}")
    e("s_mov_b64 exec, 1")
    e(f"global_store_dwordx4 v80, v[64:67], s[{sWS}:{sWS+1}]")
    e(f"global_store_dwordx4 v80, v[68:71], s[{sWS}:{sWS+1}] offset:16")
    e(f"global_store_dwordx4 v80, v[72:75], s[{sWS}:{sWS+1}] offset:32")
lab("L_end")
e("s_endpgm")
out.append('.section .rodata,"a"')
out.append(".p2align 6")
out.append(f".amdhsa_kernel {NAME}_kernel")
out.append(f"  .amdhsa_next_free_vgpr {NV}")
out.append("  .amdhsa_next_free_sgpr 102")
out.append(f"  .amdhsa_accum_offset {NV}")
out.append("  .amdhsa_group_segment_fixed_size 0")
out.append("  .amdhsa_kernarg_size 64")
out.append("  .amdhsa_user_sgpr_count 2")
out.append("  .amdhsa_user_sgpr_kernarg_segment_ptr 1")
out.append("  .amdhsa_system_sgpr_workgroup_id_x 1")
out.append("  .amdhsa_float_denorm_mode_32 3")
out.append(".end_amdhsa_kernel")
open(a.o, "w").write("\n".join(out) + "\n")
```

```python
import sys, argparse
NAME = "standalone__paged_block_table_kv_pagedattention__sampling"
HEADER = open("cdna_kernels/" + NAME + ".s.ref").read().split("; Override")[0]

ap = argparse.ArgumentParser()
ap.add_argument("-o", default="/dev/stdout")
ap.add_argument("--map", default="plain")
ap.add_argument("--hrot", type=int, default=0)
ap.add_argument("--D", type=int, default=21)
ap.add_argument("--D0", type=int, default=26)
ap.add_argument("--NS", type=int, default=6)
ap.add_argument("--G", type=int, default=50)
ap.add_argument("--fnum", type=int, default=36)
ap.add_argument("--pollnum", type=int, default=53)
ap.add_argument("--psleep", type=int, default=12)
ap.add_argument("--UB", type=int, default=8)
ap.add_argument("--mfirst", type=int, default=1)
ap.add_argument("--cth", default="-2,2,5")
ap.add_argument("--cbias", type=int, default=7)
ap.add_argument("--cstart", type=int, default=8)
ap.add_argument("--cstop", type=int, default=4)
ap.add_argument("--cstep", type=int, default=3)
ap.add_argument("--xt", default="7,-8,7,-14,9,-2,8,-7")
ap.add_argument("--NUM", type=int, default=4)
ap.add_argument("--last", type=int, default=1)
ap.add_argument("--hold", default="")
ap.add_argument("--ost", default="")
ap.add_argument("--wb", type=int, default=0)
ap.add_argument("--skew", type=int, default=0)
ap.add_argument("--dv", default="-1,1,3")
ap.add_argument("--fpf", type=int, default=6)
ap.add_argument("--fld", default="sc1")
ap.add_argument("--opf", type=int, default=0)
ap.add_argument("--otouch", type=int, default=0)
ap.add_argument("--ospread", type=int, default=1)
ap.add_argument("--ofl", default="")
ap.add_argument("--DM", type=int, default=0)
ap.add_argument("--NE", type=int, default=3)
ap.add_argument("--amp", default="")
ap.add_argument("--ampwg", type=int, default=-1)
ap.add_argument("--tlb", default="")
ap.add_argument("--tlbs", type=int, default=21)
ap.add_argument("--wake", type=int, default=0)
ap.add_argument("--nosort", action="store_true")
ap.add_argument("--nopair", action="store_true")
ap.add_argument("--limf", default="0x43800000")
ap.add_argument("--dbg", default="")
ap.add_argument("--stamps", action="store_true")
a = ap.parse_args()
NT = " nt"
OST = "" if not a.ost else " " + a.ost.replace("+", " ")
DBG = set(a.dbg.split(","))
D, D0, NS, G = a.D, a.D0, a.NS, a.G
assert 24 <= D0 <= 32 and (D - 2) // 8 == (D + 1) // 8 == 2 and 32 <= G < 64
CTH = [int(x) for x in a.cth.split(",")]
XT = [int(x) for x in a.xt.split(",")]
DV = [int(x) for x in a.dv.split(",")]
assert 17 <= D + DV[0] and D + DV[2] <= 24
DIVM = {5: (205, 10), 6: (43, 8), 7: (147, 10), 8: (1, 3), 10: (205, 11), 12: (171, 11)}[NS]
assert all((u * DIVM[0]) >> DIVM[1] == u // NS for u in range(129))
NW = 6
KBYTES = 4100 * 32768
SPIN = 1 << 22
NUM = a.NUM

RING = NS * 8192
PST = RING
MB = PST + G * 2048
MBS = 4224
CTRL = MB + 2 * MBS
FREE = CTRL + 512
REC0 = FREE + 128
DEPW = REC0 + 16
SL = FREE + 256
CNT = SL + 768
LA = CNT + 512
LB = LA + 512
KEYS = LB + 512
LDS = KEYS + 256
assert LDS <= 163840, LDS
WS0 = 0x100000 if a.stamps else 0
WSA = WS0 + 0x40000

out = []
def e(s): out.append("    " + s)
def lab(s): out.append(s + ":")
def c(s): out.append("    ; " + s)

sQ, sK, sV, sBT, sCL, sOUT, sDBG, sWS = 4, 6, 8, 10, 12, 14, 16, 18
sRD = 20
sB, sH, sW, sCLV = 28, 29, 30, 31
sT0, sT1, sT2, sT3 = 32, 33, 34, 35
sPC = 36
sSPIN = 38
sNB, sNTL, sNU, sT = 39, 40, 41, 42
sST = 64
sE = 72
sB0, sB1, sFL, sPM, sSLOT, sU, sTA0 = 46, 47, 48, 49, 52, 56, 57
sM = 46
sCI, sLND, sMBF, sNEED, sMRG, sMT, sROLE, sQO, sPLN, sSB = 48, 49, 50, 51, 52, 56, 57, 58, 59, 60
sV0 = 61
sCST = 62
sTN, sNK, sFWN, sFB, sPRE, sREDO, sLIMF, sPO = 96, 97, 98, 99, 100, 101, 53, 43
sMALL, sRS = 24, 26
sOFF, sTB0, sTB1, sTTC, sFIRST = 20, 21, 22, 23, 44
sZQ = 54
sRK, sPB, sNP, sX, sTA, sTB, sF, sWB = 80, 81, 82, 83, 84, 85, 86, 87
sMA, sMBK = 88, 90
sLO, sHI, sLBASE = 92, 93, 94
sBO = 56
vLANE = 1
vT0, vT1, vT2, vT3, vT4, vT5 = 2, 3, 4, 5, 6, 7
vL = 8
vKOFF, vVOFF = 10, 14
vCA, vCNT, vFA, vR = 18, 19, 20, 21
vF = 22
vCUR = 24
vTR = 28
vTRK, vTRV = 36, 52
vEN = 44
vDP, vDA, vOOB, vSA = 46, 47, 48, 49
vKA0, vVA0, vXA = 8, 12, 16
vPA0, vPW = 20, 21
vM, vLS, vMN, vAL, vPA, vFW = 24, 25, 26, 27, 28, 29
vPL = 30
vQ = 32
vS = 48
vP = 56
vG, vPF, vFV, vN = 60, 61, 62, 63
vKF = 64
vVF = 96
vO = 128
vE = 160
vPN = 160
NV = 168

def stamp(i):
    if a.amp and (i == 0 or (i == 1 and a.amp == "t0")): e(f"s_memrealtime s[{sST+2*i}:{sST+2*i+1}]")
    if a.hold and i == 0: e(f"{'s_memrealtime' if a.hold[:2] == 'rt' else 's_memtime'} s[{sST}:{sST+1}]")
    if a.stamps: e(f"s_memrealtime s[{sST+2*i}:{sST+2*i+1}]")
def clamp_cl(zq=None):
    c("context length: <=0 -> every key masked => uniform weights over 2048 keys (zero Q); >2048 -> 2048")
    e(f"s_cmp_lt_i32 s{sCLV}, 1")
    if zq is not None: e(f"s_cselect_b32 s{zq}, 1, 0")
    e(f"s_cselect_b32 s{sCLV}, 2048, s{sCLV}")
    e(f"s_min_i32 s{sCLV}, s{sCLV}, 2048")
def derive_nb():
    e(f"s_add_u32 s{sNTL}, s{sNB}, 1")
    e(f"s_lshr_b32 s{sNTL}, s{sNTL}, 1")
    e(f"s_sub_u32 s{sNU}, s{sNTL}, 1")
    e(f"s_min_u32 s{sNU}, s{sNU}, {NUM}")
def derive_cl():
    e(f"s_add_u32 s{sNB}, s{sCLV}, 15")
    e(f"s_lshr_b32 s{sNB}, s{sNB}, 4")
    derive_nb()
def spin_tail(label, sleep=1):
    e(f"s_sleep {sleep}")
    e(f"s_sub_u32 s{sSPIN}, s{sSPIN}, 1")
    e(f"s_cbranch_scc0 {label}")
    e("s_endpgm")
FIN = "s_branch L_fin" if (a.stamps or a.amp) else "s_endpgm"

out.append(HEADER.rstrip())
out.append(f"; @launch grid=(256,1,1) block=({64*NW},1,1) lds={LDS}")
out.append('.amdgcn_target "amdgcn-amd-amdhsa--gfx950"')
out.append(".text")
out.append(f".globl {NAME}_kernel")
out.append(".p2align 8")
out.append(f".type {NAME}_kernel,@function")
lab(f"{NAME}_kernel")
e("s_load_dwordx16 s[4:19], s[0:1], 0")
e(f"s_lshr_b32 s{sB}, s2, 3")
e(f"s_cmp_ge_u32 s{sB}, 32")
e("s_cbranch_scc1 L_end")
stamp(0)
e(f"v_lshrrev_b32 v{vT0}, 6, v0")
e(f"v_and_b32 v{vLANE}, 63, v0")
e(f"v_readfirstlane_b32 s{sW}, v{vT0}")
c("wave 1 pulls this kernel's code into L2")
e(f"s_getpc_b64 s[{sPC}:{sPC+1}]")
lab("L_pc")
e(f"v_lshlrev_b32 v{vT2}, 7, v{vLANE}")
e(f"v_min_u32 v{vT2}, L_end - L_pc - 256, v{vT2}")
e(f"s_cmp_lg_u32 s{sW}, 1")
e("s_cbranch_scc1 L_nopf")
e(f"global_load_dword v{vPF}, v{vT2}, s[{sPC}:{sPC+1}] offset:256")
if a.wake:
    e(f"s_mul_i32 s{sT3}, s2, {a.wake}")
    e(f"v_and_b32 v{vT2}, {a.wake - 256}, v{vT2}")
    e(f"v_add_u32 v{vT2}, s{sT3}, v{vT2}")
    e(f"v_add_u32 v{vT2}, L_pad - L_pc, v{vT2}")
    e(f"global_load_dword v{vFV}, v{vT2}, s[{sPC}:{sPC+1}] nt")
lab("L_nopf")
c("clear the control words and the sort counters")
e(f"v_mov_b64 v[{vT2}:{vT3}], 0")
e(f"v_lshlrev_b32 v{vT4}, 3, v0")
e(f"v_add_u32 v{vT4}, {CTRL}, v{vT4}")
e(f"ds_write_b64 v{vT4}, v[{vT2}:{vT3}]")
if a.map == "rot":
    e(f"s_add_u32 s{sH}, s2, s{sB}")
    e(f"s_and_b32 s{sH}, s{sH}, 7")
elif a.hrot:
    e(f"s_add_u32 s{sH}, s2, {a.hrot}")
    e(f"s_and_b32 s{sH}, s{sH}, 7")
else:
    e(f"s_and_b32 s{sH}, s2, 7")
e(f"s_lshl3_add_u32 s{sT2}, s{sB}, s{sH}")
e(f"s_lshl_b32 s{sT2}, s{sT2}, 13")
e(f"v_lshl_add_u32 v{vT5}, v{vLANE}, 7, s{sT2}")
e(f"s_lshl_b32 s{sT0}, s{sB}, 9")
e(f"v_lshl_add_u32 v{vT2}, v{vLANE}, 3, s{sT0}")
e(f"s_lshl_b32 s{sT1}, s{sB}, 2")
e(f"v_and_b32 v{vT0}, 31, v{vLANE}")
e(f"v_lshlrev_b32 v{vT3}, 2, v{vT0}")
vTL = 22
if a.tlb:
    e(f"v_min_u32 v{vTL}, {(2 << (21 - a.tlbs)) - 1}, v{vLANE}")
    e(f"v_lshl_add_u32 v{vTL}, v{vTL}, 5, s{sB}")
    e(f"s_mul_i32 s{sT3}, s2, {8064 >> (21 - a.tlbs) & ~127}")
    e(f"v_lshl_add_u32 v{vTL}, v{vTL}, {a.tlbs}, s{sT3}")
e(f"s_cmp_lg_u32 s{sW}, 2")
e("s_waitcnt lgkmcnt(0)")
e(f"s_load_dwordx8 s[{sE}:{sE+7}], s[{sBT}:{sBT+1}], s{sT0}")
e(f"s_load_dword s{sCLV}, s[{sCL}:{sCL+1}], s{sT1}")
c("wave 2 touches the 64 lines of this workgroup's queries while memory is still idle")
e("s_cbranch_scc1 L_noq")
if "k" in a.tlb: e(f"global_load_dword v{vFV}, v{vTL}, s[{sK}:{sK+1}] nt")
e(f"global_load_dword v{vPF}, v{vT5}, s[{sQ}:{sQ+1}]")
lab("L_noq")
if a.opf:
    e(f"s_cmp_lg_u32 s{sW}, 4")
    e("s_cbranch_scc1 L_noo")
    e(f"global_load_dword v{vPF}, v{vT5}, s[{sOUT}:{sOUT+1}]")
    lab("L_noo")
e(f"global_load_dwordx2 v[{vL}:{vL+1}], v{vT2}, s[{sBT}:{sBT+1}]")
e(f"global_load_dword v{vN}, v{vT3}, s[{sCL}:{sCL+1}]")
lab("L_loads_issued")
if a.amp == "t0k": e(f"s_memrealtime s[{sST+2}:{sST+3}]")
e(f"s_cmp_lg_u32 s{sW}, 0")
e(f"s_mov_b32 s{sSPIN}, {SPIN}")
e("s_cbranch_scc1 L_notloader")

e("s_setprio 3")
c("per-lane source offsets of the LDS-DMA pieces (bank swizzle applied on the source side)")
e(f"v_lshrrev_b32 v{vR}, 4, v{vLANE}")
e(f"v_and_b32 v{vT1}, 15, v{vLANE}")
e(f"s_lshl_b32 s{sT0}, s{sH}, 8")
e(f"v_lshl_add_u32 v{vT4}, v{vR}, 11, s{sT0}")
e(f"v_xor_b32 v{vT2}, v{vR}, v{vT1}")
e(f"v_lshl_add_u32 v{vKOFF}, v{vT2}, 4, v{vT4}")
for j in range(1, 4):
    e(f"v_xor_b32 v{vT3}, {64*j}, v{vKOFF}")
    e(f"v_add_u32 v{vKOFF+j}, {7168*j}, v{vT3}")
e(f"s_mov_b32 s{sRD}, s{sK}")
e(f"s_and_b32 s{sRD+1}, s{sK+1}, 0xffff")
e(f"s_mov_b32 s{sRD+2}, {KBYTES}")
e(f"s_mov_b32 s{sRD+3}, 0x20000")
if a.amp == "t0c": e(f"s_memrealtime s[{sST+2}:{sST+3}]")
e("s_waitcnt lgkmcnt(0)")
clamp_cl()
c("the first stream tiles are logical tiles 0..3 (those that are not the last one)")
NE = a.NE
for t in range(NE):
    e(f"s_cmp_le_u32 s{sCLV}, {32*(t+1)}")
    e(f"s_cbranch_scc1 {'L_ld_b' if t < 2 else 'L_ld_pre'}")
    if t == 0: stamp(1)
    for j in range(8):
        i = 8 * t + j
        if j % 4 == 0:
            e(f"s_movk_i32 m0, {1024*i}")
            e(f"s_lshl_b32 s{sB0}, s{sE+i//4}, 15")
        if i >= D0: e(f"s_waitcnt vmcnt({D0-1})")
        e(f"buffer_load_dwordx4 v{vKOFF+j%4}, s[{sRD}:{sRD+3}], s{sB0} offen offset:{1024*(j%4)}{NT} lds")
    if t == 1:
        lab("L_ld_b")
        e("s_barrier")
lab("L_ld_pre")
derive_cl()
j0 = (D - 1) % 8
e(f"v_lshlrev_b32 v{vT3}, 2, v{vR}")
e(f"v_xor_b32 v{vT3}, v{vT3}, v{vT1}")
e(f"v_lshl_add_u32 v{vVOFF}, v{vT3}, 4, v{vT4}")
for j in range(1, 4):
    e(f"v_add_u32 v{vVOFF+j}, {7168*j}, v{vVOFF}")
e(f"s_min_u32 s{sT}, s{sNU}, {NE}")
e(f"s_lshl_b32 s{sSLOT}, s{sT}, 13")
e(f"s_mov_b32 s{sU}, s{sT}")
e(f"v_lshlrev_b32 v{vCA}, 3, v{vLANE}")
e(f"v_add_u32 v{vT0}, {SL}, v{vCA}")
e(f"v_add_u32 v{vCA}, {CTRL}, v{vCA}")
e(f"v_mov_b32 v{vFA}, {FREE}")
e(f"v_mov_b64 v[{vF}:{vF+1}], 0")
e(f"v_mov_b32 v{vDP}, {2 if NE == 3 else 0}")
e(f"v_mov_b32 v{vDA}, {DEPW}")
e(f"s_sub_u32 s{sT0}, s{sT}, 3")
e(f"v_mov_b32 v{vCNT}, s{sT0}")
e(f"s_lshl3_add_u32 s{sT0}, s{sT}, {SL}")
e(f"v_mov_b32 v{vSA}, s{sT0}")
c("offsets for the last logical tile: rows past the context are not fetched (their lanes read zeros)")
e(f"s_lshl_b32 s{sT0}, s{sNTL}, 5")
e(f"s_sub_u32 s{sT0}, s{sCLV}, s{sT0}")
e(f"s_add_u32 s{sT0}, s{sT0}, 32")
e(f"v_bfrev_b32 v{vOOB}, 1")
e(f"v_sub_u32 v{vT1}, s{sT0}, v{vR}")
for k in range(8):
    e(f"v_cmp_lt_i32 s[{80+2*k}:{81+2*k}], {4*k}, v{vT1}")
for k in range(8):
    e(f"v_cndmask_b32 v{vTRK+k}, v{vOOB}, v{vKOFF+k%4}, s[{80+2*k}:{81+2*k}]")
    e(f"v_cndmask_b32 v{vTRV+k}, v{vOOB}, v{vVOFF+k%4}, s[{80+2*k}:{81+2*k}]")
def set_pass(off, tr):
    for j in range(0, 4, 2): e(f"v_mov_b64 v[{vCUR+j}:{vCUR+j+1}], v[{off+j}:{off+j+1}]")
    for j in range(0, 8, 2): e(f"v_mov_b64 v[{vTR+j}:{vTR+j+1}], v[{tr+j}:{tr+j+1}]")
set_pass(vKOFF, vTRK)
if "prog3" in DBG: e("v_mov_b32 v50, 0")
e(f"s_mov_b32 s{sPM}, 4")
e(f"s_mov_b32 s{sTA0}, 0")
c("the leading tiles enter the stream list straight from the table row")
e(f"s_bfm_b64 s[{sT2}:{sT2+1}], s{sNU}, 0")
e(f"s_cmp_ge_u32 s{sNU}, {NE}")
e("s_cbranch_scc1 L_ld_row")
e("s_waitcnt vmcnt(0)")
lab("L_ld_row")
e("s_waitcnt vmcnt(24)")
if NE == 4: e(f"ds_write_b32 v{vCA}, v{vCNT}")
e(f"v_lshl_or_b32 v{vEN}, v{vL}, 15, 1")
e(f"v_lshlrev_b32 v{vEN+1}, 15, v{vL+1}")
e(f"s_mov_b64 exec, s[{sT2}:{sT2+1}]")
e(f"ds_write_b64 v{vT0}, v[{vEN}:{vEN+1}]")
e("s_mov_b64 exec, -1")
e(f"ds_read_b64 v[{vEN}:{vEN+1}], v{vSA}")
if a.amp == "t0r": e(f"s_memrealtime s[{sST+2}:{sST+3}]")
if a.amp[:3] == "t0l":
    e(f"s_waitcnt vmcnt({int(a.amp[3:])})")
    e(f"s_memrealtime s[{sST+2}:{sST+3}]")
stamp(2)
def unit_body(depth, trimmed=False):
    for j in range(8):
        if j % 4 == 0: e(f"s_add_u32 m0, s{sSLOT}, {1024*j}")
        e(f"s_waitcnt vmcnt({depth-1})")
        e(f"buffer_load_dwordx4 v{vTR+j if trimmed else vCUR+j%4}, s[{sRD}:{sRD+3}], s{sB0 + j//4} offen offset:{1024*(j%4)}{NT} lds")
        if j == (depth - 1) % 8:
            e(f"v_add_u32 v{vCNT}, 1, v{vCNT}")
            e(f"ds_write_b32 v{vCA}, v{vCNT}")
        if j == 0:
            e(f"s_add_u32 s{sT2}, s{sSLOT}, 8192")
            e(f"s_cmp_eq_u32 s{sT2}, {RING}")
            e(f"s_cselect_b32 s{sT2}, 0, s{sT2}")
            e(f"s_lshr_b32 s{sT0}, s{sT2}, 10")
            e(f"s_add_u32 s{sT0}, s{sT0}, {FREE}")
            e(f"v_mov_b32 v{vFA}, s{sT0}")
        if j == 1:
            e(f"s_add_u32 s{sT}, s{sT}, 1")
            e(f"s_and_b32 s{sT0}, s{sFL}, s{sPM}")
            e(f"s_cselect_b32 s{sT}, s{sTA0}, s{sT}")
            e(f"s_lshl3_add_u32 s{sT0}, s{sT}, {SL}")
            e(f"v_mov_b32 v{vSA}, s{sT0}")
            e(f"s_add_u32 s{sU}, s{sU}, 1")
        if j == a.fpf:
            c("prefetch the next list entry, the FREE words of the next slot and the depth code")
            e(f"ds_read_b64 v[{vEN}:{vEN+1}], v{vSA}")
            e(f"ds_read_b64 v[{vF}:{vF+1}], v{vFA}")
            e(f"ds_read_b32 v{vDP}, v{vDA}")
            e(f"s_mov_b32 s{sSLOT}, s{sT2}")
out.append(".p2align 3")
lab("L_ld")
if "prog3" in DBG:
    e(f"s_memrealtime s[{sST+4}:{sST+5}]")
    e(f"s_min_u32 m0, s{sU}, 63")
e("s_waitcnt lgkmcnt(0)")
if "prog3" in DBG: e(f"v_writelane_b32 v50, s{sST+4}, m0")
e(f"v_min_i32 v{vT0}, v{vF}, v{vF+1}")
e(f"v_readfirstlane_b32 s{sFL}, v{vEN}")
e(f"v_readfirstlane_b32 s{sB1}, v{vEN+1}")
e(f"v_readfirstlane_b32 s{sT0}, v{vT0}")
e(f"v_readfirstlane_b32 s{sT3}, v{vDP}")
e(f"s_sub_u32 s{sT1}, s{sU}, {NS-1}")
e(f"s_cmp_ge_i32 s{sT0}, s{sT1}")
e(f"s_cselect_b32 s{sT0}, s{sFL}, 0")
e(f"s_and_b32 s{sB0}, s{sFL}, -16")
e(f"s_and_b32 s{sT0}, s{sT0}, 3")
e(f"s_cmp_lg_u32 s{sT0}, 1")
e("s_cbranch_scc1 L_ld_odd")
e(f"s_cmp_lg_u32 s{sT3}, 0")
e("s_cbranch_scc1 L_ld_var")
unit_body(D)
lab("L_ld_next")
e(f"s_bitcmp1_b32 s{sFL}, 2")
e("s_cbranch_scc0 L_ld")
c("last tile of the batch: change pass")
e(f"s_xor_b32 s{sPM}, s{sPM}, 4")
e("s_cbranch_scc1 L_ld_tok")
e(f"s_mov_b32 s{sRD}, s{sV}")
e(f"s_and_b32 s{sRD+1}, s{sV+1}, 0xffff")
set_pass(vVOFF, vTRV)
e("s_branch L_ld")
lab("L_ld_tok")
e(f"s_bitcmp1_b32 s{sFL}, 3")
e("s_cbranch_scc0 L_ld_more")
for r in (16, 8, 0):
    e(f"v_add_u32 v{vCNT}, 1, v{vCNT}")
    e(f"s_waitcnt vmcnt({r})")
    e(f"ds_write_b32 v{vCA}, v{vCNT}")
if a.hold:
    lab("L_hold")
    e(f"{'s_memrealtime' if a.hold[:2] == 'rt' else 's_memtime'} s[{sST+2}:{sST+3}]")
    e("s_waitcnt lgkmcnt(0)")
    e(f"s_sub_u32 s{sT0}, s{sST+2}, s{sST}")
    e(f"s_cmp_lt_u32 s{sT0}, {a.hold[3:]}")
    e("s_cbranch_scc1 L_hold")
e(FIN)
lab("L_ld_more")
e(f"s_mov_b32 s{sTA0}, s{sT}")
e(f"s_mov_b32 s{sRD}, s{sK}")
e(f"s_and_b32 s{sRD+1}, s{sK+1}, 0xffff")
set_pass(vKOFF, vTRK)
e("s_branch L_ld")
lab("L_ld_odd")
e(f"s_cmp_eq_u32 s{sT0}, 3")
e("s_cbranch_scc1 L_ld_m")
c("slot not free yet or entry not written yet")
e(f"ds_read_b64 v[{vEN}:{vEN+1}], v{vSA}")
e(f"ds_read_b64 v[{vF}:{vF+1}], v{vFA}")
e(f"s_sub_u32 s{sSPIN}, s{sSPIN}, 1")
e("s_cbranch_scc0 L_ld")
e("s_endpgm")
lab("L_ld_m")
unit_body(D + a.DM, True)
e("s_branch L_ld_next")
lab("L_ld_var")
e(f"s_cmp_eq_u32 s{sT3}, 1")
e("s_cbranch_scc1 L_ld_v2")
e(f"s_cmp_eq_u32 s{sT3}, 2")
e("s_cbranch_scc1 L_ld_v3")
unit_body(D + DV[0])
e("s_branch L_ld_next")
lab("L_ld_v2")
unit_body(D + DV[1])
e("s_branch L_ld_next")
lab("L_ld_v3")
unit_body(D + DV[2])
e("s_branch L_ld_next")

lab("L_notloader")
e(f"s_cmp_ge_u32 s{sW}, 3")
e("s_cbranch_scc1 L_planner")
e(f"s_sub_u32 s{sCI}, s{sW}, 1")
def rows_off(sb):
    e(f"s_lshl3_add_u32 s{sQO}, s{sb}, s{sH}")
    e(f"s_lshl1_add_u32 s{sQO}, s{sQO}, s{sCI}")
    e(f"s_lshl_b32 s{sQO}, s{sQO}, 12")
    e(f"v_and_b32 v{vT0}, 15, v{vLANE}")
    e(f"v_lshrrev_b32 v{vG}, 4, v{vLANE}")
def load_q(sb):
    rows_off(sb)
    e(f"v_lshl_add_u32 v{vT4}, v{vT0}, 8, s{sQO}")
    e(f"v_lshl_add_u32 v{vT4}, v{vG}, 4, v{vT4}")
    for s in range(4):
        e(f"global_load_dwordx4 v[{vQ+4*s}:{vQ+4*s+3}], v{vT4}, s[{sQ}:{sQ+1}] offset:{64*s}")
load_q(sB)
e("s_barrier")
e(f"s_mov_b32 s{sROLE}, 0")
e(f"s_mov_b32 s{sPLN}, 0")
e(f"s_mov_b32 s{sMRG}, 0")
e("s_waitcnt lgkmcnt(0)")
clamp_cl(zq=sT3)
derive_cl()
c("valid keys of the last logical tile")
e(f"s_lshl_b32 s{sV0}, s{sNTL}, 5")
e(f"s_sub_u32 s{sV0}, s{sCLV}, s{sV0}")
e(f"s_add_u32 s{sV0}, s{sV0}, 32")
e(f"s_bfm_b64 s[{sM}:{sM+1}], s{sNU}, 0")
lab("L_csetup")
e(f"s_mov_b32 s{sMT}, 0")
e(f"s_mov_b32 s{sOFF}, 0")
e(f"s_mov_b32 s{sTB0}, 0")
e(f"s_mov_b32 s{sFIRST}, 1")
e(f"s_mov_b64 s[{sRS}:{sRS+1}], 0")
e("s_waitcnt vmcnt(4)")
e(f"v_and_b32 v{vT0}, 15, v{vLANE}")
e(f"v_xor_b32 v{vT1}, v{vG}, v{vT0}")
e(f"v_lshlrev_b32 v{vT2}, 8, v{vT0}")
e(f"v_lshl_add_u32 v{vKA0}, v{vT1}, 4, v{vT2}")
for s in range(1, 4):
    e(f"v_xor_b32 v{vKA0+s}, {64*s}, v{vKA0}")
e(f"v_bfe_u32 v{vT0}, v{vLANE}, 2, 2")
e(f"v_lshl_add_u32 v{vT1}, v{vG}, 2, v{vT0}")
e(f"v_lshlrev_b32 v{vT1}, 8, v{vT1}")
e(f"v_and_b32 v{vT2}, 3, v{vLANE}")
e(f"v_lshl_add_u32 v{vT1}, v{vT2}, 4, v{vT1}")
e(f"v_lshl_add_u32 v{vVA0}, v{vT0}, 6, v{vT1}")
for j in range(1, 4):
    e(f"v_xor_b32 v{vVA0+j}, {64*j}, v{vVA0}")
e(f"s_lshl_b32 s{sT0}, s{sCI}, 10")
e(f"s_add_u32 s{sT0}, s{sT0}, {PST}")
e(f"v_lshl_add_u32 v{vPA0}, v{vLANE}, 4, s{sT0}")
e(f"s_lshl_b32 s{sT0}, s{sW}, 3")
e(f"s_add_u32 s{sT0}, s{sT0}, {CTRL-8}")
e(f"v_mov_b32 v{vPA}, s{sT0}")
e(f"v_mov_b32 v{vM}, 0xff800000")
e(f"v_mov_b32 v{vLS}, 0")
for r in range(0, 32, 2): e(f"v_mov_b64 v[{vO+r}:{vO+r+1}], 0")
e(f"s_mov_b32 s{sCST}, 0x3e0293ee")
e(f"s_mov_b32 s{sCST+1}, 0x3e0293ee")
e(f"s_mov_b32 s{sLIMF}, {a.limf}")
e(f"s_lshl2_add_u32 s{sFB}, s{sCI}, {FREE}")
e("s_waitcnt vmcnt(0)")
e(f"s_cmp_eq_u32 s{sT3}, 0")
e("s_cbranch_scc1 L_k_first")
for r in range(0, 16, 2): e(f"v_mov_b64 v[{vQ+r}:{vQ+r+1}], 0")

def poll(label):
    lab(label)
    e(f"ds_read_b64 v[{vPL}:{vPL+1}], v{vPA}")
    e(f"s_sub_u32 s{sSPIN}, s{sSPIN}, 1")
    e("s_cbranch_scc1 L_end")
    e("s_waitcnt lgkmcnt(0)")
    e(f"v_readfirstlane_b32 s{sLND}, v{vPL}")
    e(f"s_cmp_ge_i32 s{sLND}, s{sNK}")
    e(f"s_cbranch_scc0 {label}")
VR = []
for j in range(4):
    for ee in range(2):
        for blk in range(2):
            r = vVF + (2 * j + ee) * 4 + 2 * blk
            VR.append(f"ds_read_b64_tr_b16 v[{r}:{r+1}], v{vXA+j} offset:{8*ee + 4096*blk}")
KR, QK = [], []
for blk in range(2):
    for st in range(4):
        r = vKF + (blk * 4 + st) * 4
        KR.append(f"ds_read_b128 v[{r}:{r+3}], v{vXA+st} offset:{4096*blk}")
        cc = "0" if st == 0 else f"v[{vS+4*blk}:{vS+4*blk+3}]"
        QK.append(f"v_mfma_f32_16x16x32_bf16 v[{vS+4*blk}:{vS+4*blk+3}], v[{r}:{r+3}], v[{vQ+4*st}:{vQ+4*st+3}], {cc}")
PV = [f"v_mfma_f32_16x16x32_bf16 v[{vO+4*dt}:{vO+4*dt+3}], v[{vVF+4*dt}:{vVF+4*dt+3}], v[{vP}:{vP+3}], v[{vO+4*dt}:{vO+4*dt+3}]" for dt in range(8)]
NX = [f"s_ff1_i32_b64 s{sTN}, s[{sM}:{sM+1}]",
      f"s_bitset0_b64 s[{sM}:{sM+1}], s{sTN}",
      f"s_add_u32 s{sT1}, s{sTN}, s{sOFF}",
      f"s_mul_i32 s{sT0}, s{sT1}, {DIVM[0]}",
      f"s_lshr_b32 s{sT0}, s{sT0}, {DIVM[1]}",
      f"s_mul_i32 s{sT0}, s{sT0}, {NS}",
      f"s_sub_u32 s{sT0}, s{sT1}, s{sT0}",
      f"s_lshl_b32 s{sSB}, s{sT0}, 13",
      f"s_lshl3_add_u32 s{sFWN}, s{sT0}, s{sFB}",
      f"s_and_b32 s{sT0}, s{sTN}, 0x40000000",
      f"s_add_u32 s{sNK}, s{sT1}, 1",
      f"s_or_b32 s{sNK}, s{sNK}, s{sT0}",
      f"s_sub_u32 s{sPO}, s{sTN}, s{sTB0}",
      f"s_lshl_b32 s{sPO}, s{sPO}, 11"]
KA = [f"v_add_u32 v{vXA+i}, s{sSB}, v{vKA0+i}" for i in range(4)]
VA = [f"v_add_u32 v{vXA+i}, s{sSB}, v{vVA0+i}" for i in range(4)]
ADV = [f"v_mov_b32 v{vFW}, s{sFWN}",
       f"v_mov_b32 v{vFV}, s{sNK}",
       f"v_add_u32 v{vPW}, s{sPO}, v{vPA0}",
       f"s_add_u32 s{sT}, s{sTN}, 1"]
def scale_o(reg):
    for r in range(0, 32, 2):
        sel = "op_sel:[0,1] op_sel_hi:[1,1]" if reg & 1 else "op_sel_hi:[1,0]"
        p = reg & ~1
        e(f"v_pk_mul_f32 v[{vO+r}:{vO+r+1}], v[{vO+r}:{vO+r+1}], v[{p}:{p+1}] {sel}")

lab("L_k_first")
for x in NX + KA + ADV: e(x)
lab("L_k_next")
e(f"s_cmp_lt_i32 s{sTN}, 0")
e("s_cbranch_scc1 L_k_empty")
poll("L_k_poll")
for x in KR: e(x)
e("s_waitcnt lgkmcnt(0)")
out.append(".p2align 3")
lab("L_k_top")
e("s_waitcnt lgkmcnt(1)")
e(f"ds_write_b32 v{vFW}, v{vFV}")
e(f"ds_read_b64 v[{vPL}:{vPL+1}], v{vPA}")
fill = NX + KA
for i in range(8):
    e(QK[i])
    for x in fill[2*i:2*i+2]: e(x)
for x in fill[16:]: e(x)
e(f"s_mov_b32 s{sREDO}, 0")
e("s_waitcnt lgkmcnt(0)")
e(f"v_readfirstlane_b32 s{sLND}, v{vPL}")
e(f"s_cmp_ge_i32 s{sLND}, s{sNK}")
e(f"s_cselect_b32 s{sPRE}, 1, 0")
e("s_cbranch_scc0 L_k_nopre")
for x in KR: e(x)
lab("L_k_nopre")
e(f"s_cmp_eq_u32 s{sT}, s{sMT}")
e("s_cbranch_scc1 L_k_mask")
lab("L_k_exp")
for hb in range(2):
    for r in (4*hb, 4*hb+2):
        e(f"v_pk_fma_f32 v[{vE+r}:{vE+r+1}], v[{vS+r}:{vS+r+1}], s[{sCST}:{sCST+1}], v[{vM}:{vM+1}] op_sel_hi:[1,1,0] neg_lo:[0,0,1] neg_hi:[0,0,1]")
    for r in range(4*hb, 4*hb+4):
        e(f"v_exp_f32 v{vE+r}, v{vE+r}")
e(f"v_pk_add_f32 v[{vT0}:{vT1}], v[{vE}:{vE+1}], v[{vE+2}:{vE+3}]")
e(f"v_pk_add_f32 v[{vT2}:{vT3}], v[{vE+4}:{vE+5}], v[{vE+6}:{vE+7}]")
e(f"v_cvt_pk_bf16_f32 v{vP}, v{vE}, v{vE+1}")
e(f"v_pk_add_f32 v[{vT0}:{vT1}], v[{vT0}:{vT1}], v[{vT2}:{vT3}]")
e(f"v_cvt_pk_bf16_f32 v{vP+1}, v{vE+2}, v{vE+3}")
e(f"v_add_f32 v{vT0}, v{vT0}, v{vT1}")
c("the kept reference max is safe only while every weight stays <= 256; otherwise take the true max")
e(f"v_cmp_nge_f32 vcc, s{sLIMF}, v{vT0}")
e(f"v_cvt_pk_bf16_f32 v{vP+2}, v{vE+4}, v{vE+5}")
e(f"v_cvt_pk_bf16_f32 v{vP+3}, v{vE+6}, v{vE+7}")
e(ADV[0]); e(ADV[1])
e("s_nop 0")
e("s_cbranch_vccnz L_k_slow")
lab("L_k_done")
e(f"ds_write_b128 v{vPW}, v[{vP}:{vP+3}]")
e(f"v_add_f32 v{vLS}, v{vLS}, v{vT0}")
e(ADV[3])
e(f"s_cmp_lg_u32 s{sPRE}, 0")
e(ADV[2])
e("s_cbranch_scc1 L_k_top")
e("s_branch L_k_next")

lab("L_k_mask")
e(f"v_lshlrev_b32 v{vT0}, 2, v{vG}")
e(f"v_sub_u32 v{vT0}, s{sV0}, v{vT0}")
e(f"v_mov_b32 v{vT1}, 0xff800000")
for r in range(8):
    e(f"v_cmp_lt_i32 s[{80+2*r}:{81+2*r}], {16*(r//4)+r%4}, v{vT0}")
for r in range(8):
    e(f"v_cndmask_b32 v{vS+r}, v{vT1}, v{vS+r}, s[{80+2*r}:{81+2*r}]")
e("s_branch L_k_exp")

def alpha_addr():
    e(f"s_lshl_b32 s{sT0}, s2, 6")
    e(f"s_add_u32 s{sT0}, s{sT0}, s{sT}")
    e(f"s_lshl1_add_u32 s{sT0}, s{sT0}, s{sCI}")
    e(f"s_lshl_b32 s{sT0}, s{sT0}, 6")
    e(f"s_add_u32 s{sT0}, s{sT0}, {WSA}")
    e(f"v_and_b32 v{vT1}, 15, v{vLANE}")
    e(f"v_lshl_add_u32 v{vT1}, v{vT1}, 2, s{sT0}")
c("raise the reference to the true running max; the accumulator is rescaled when pass 2 reaches this tile")
lab("L_k_slow")
e(f"s_cmp_lg_u32 s{sREDO}, 0")
e("s_cbranch_scc1 L_k_done")
e(f"s_mov_b32 s{sREDO}, 1")
e(f"v_max3_f32 v{vT0}, v{vS}, v{vS+1}, v{vS+2}")
e(f"v_max3_f32 v{vT1}, v{vS+3}, v{vS+4}, v{vS+5}")
e(f"v_max3_f32 v{vT0}, v{vT0}, v{vS+6}, v{vS+7}")
e(f"v_max_f32 v{vT0}, v{vT0}, v{vT1}")
e(f"v_mov_b32 v{vT1}, v{vT0}")
e("s_nop 1")
e(f"v_permlane32_swap_b32 v{vT0}, v{vT1}")
e("s_nop 0")
e(f"v_max_f32 v{vT0}, v{vT0}, v{vT1}")
e(f"v_mov_b32 v{vT1}, v{vT0}")
e("s_nop 1")
e(f"v_permlane16_swap_b32 v{vT0}, v{vT1}")
e("s_nop 0")
e(f"v_max_f32 v{vT0}, v{vT0}, v{vT1}")
e(f"v_mul_f32 v{vT0}, s{sCST}, v{vT0}")
e(f"v_max_f32 v{vMN}, v{vM}, v{vT0}")
e(f"v_sub_f32 v{vAL}, v{vM}, v{vMN}")
e(f"v_exp_f32 v{vAL}, v{vAL}")
e(f"v_mov_b32 v{vM}, v{vMN}")
e(f"s_cmp_lg_u32 s{sFIRST}, 0")
e(f"s_mov_b32 s{sFIRST}, 0")
e(f"v_mul_f32 v{vLS}, v{vLS}, v{vAL}")
e("s_cbranch_scc1 L_k_exp")
alpha_addr()
e(f"global_store_dword v{vT1}, v{vAL}, s[{sWS}:{sWS+1}]")
e(f"s_sub_u32 s{sT0}, s{sT}, 1")
e(f"s_bitset1_b64 s[{sRS}:{sRS+1}], s{sT0}")
e("s_branch L_k_exp")

RLO, RHI = 0xffffffff, (1 << (G - 32)) - 1
lab("L_k_noplan")
e(f"s_mov_b32 s{sPLN}, 1")
e(f"v_mov_b32 v{vT1}, {REC0}")
lab("L_k_plan")
e(f"ds_read_b128 v[{vT2}:{vT5}], v{vT1}")
e("s_waitcnt lgkmcnt(0)")
e(f"v_readfirstlane_b32 s{sT0}, v{vT5}")
e(f"v_readfirstlane_b32 s{sM}, v{vT2}")
e(f"v_readfirstlane_b32 s{sM+1}, v{vT3}")
e(f"v_readfirstlane_b32 s{sTTC}, v{vT4}")
e(f"s_cmp_lg_u32 s{sT0}, 0")
e("s_cbranch_scc1 L_k_got")
spin_tail("L_k_plan")
lab("L_k_got")
e(f"s_lshr_b32 s{sMT}, s{sT0}, 8")
e(f"s_add_u32 s{sMT}, s{sMT}, 1")
e(f"s_and_b32 s{sMRG}, s{sTTC}, {0 if 'nomerge' in DBG else 1}")
e(f"s_lshr_b32 s{sTTC}, s{sTTC}, 8")
e(f"s_min_u32 s{sTB1}, s{sTTC}, {G}")
e(f"s_bfm_b64 s[{sMALL}:{sMALL+1}], s{sNU}, 0")
e(f"s_or_b64 s[{sMALL}:{sMALL+1}], s[{sMALL}:{sMALL+1}], s[{sM}:{sM+1}]")
e(f"s_and_b32 s{sM+1}, s{sM+1}, {RHI:#x}")
e("s_branch L_k_first")
lab("L_v_more")
c("second batch")
e(f"s_mov_b32 s{sTB0}, s{sTB1}")
e(f"s_mov_b32 s{sTB1}, s{sTTC}")
e(f"s_mov_b32 s{sOFF}, s{sTB0}")
e(f"s_mov_b32 s{sMALL}, 0")
e(f"s_andn2_b32 s{sMALL+1}, s{sMALL+1}, {RHI:#x}")
e(f"s_mov_b64 s[{sM}:{sM+1}], s[{sMALL}:{sMALL+1}]")
e("s_branch L_k_first")
lab("L_k_empty")
e(f"s_cmp_eq_u32 s{sPLN}, 0")
e("s_cbranch_scc1 L_k_noplan")
e(f"s_mov_b32 s{sOFF}, s{sTB1}")
e(f"s_mov_b32 s{sM}, s{sMALL}")
e(f"s_and_b32 s{sM+1}, s{sMALL+1}, {RHI:#x}")
e(f"s_cmp_eq_u32 s{sTB0}, 0")
e(f"s_cselect_b32 s{sM+1}, s{sM+1}, s{sMALL+1}")
for x in NX + VA: e(x)
e(f"ds_read_b64 v[{vPL}:{vPL+1}], v{vPA}")
e(f"s_cmp_lt_i32 s{sTN}, 0")
e("s_cbranch_scc1 L_v_empty")
lab("L_v_next")
for x in ADV: e(x)
if a.last:
    e(f"s_cmp_eq_u64 s[{sM}:{sM+1}], 0")
    e("s_cbranch_scc1 L_v_islast")
lab("L_v_next2")
e(f"ds_read_b128 v[{vPN}:{vPN+3}], v{vPW}")
e("s_waitcnt lgkmcnt(1)")
e(f"v_readfirstlane_b32 s{sLND}, v{vPL}")
e(f"s_cmp_ge_i32 s{sLND}, s{sNK}")
e("s_cbranch_scc1 L_v_rd")
poll("L_v_poll")
lab("L_v_rd")
for x in VR: e(x)
out.append(".p2align 3")
lab("L_v_top")
for x in NX + VA: e(x)
e(f"s_sub_u32 s{sT0}, s{sT}, 1")
e(f"s_bitcmp1_b64 s[{sRS}:{sRS+1}], s{sT0}")
e("s_cbranch_scc1 L_v_resc")
lab("L_v_top2")
e("s_waitcnt lgkmcnt(14)")
e(f"v_readfirstlane_b32 s{sMBF}, v{vPL+1}")
e(f"v_readfirstlane_b32 s{sLND}, v{vPL}")
e(f"v_mov_b64 v[{vP}:{vP+1}], v[{vPN}:{vPN+1}]")
e(f"v_mov_b64 v[{vP+2}:{vP+3}], v[{vPN+2}:{vPN+3}]")
e(f"s_and_b32 s{sT0}, s{sMBF}, s{sMRG}")
e("s_cbranch_scc1 L_v_merge")
lab("L_v_top3")
e(f"s_cmp_ge_i32 s{sLND}, s{sNK}")
e("s_cbranch_scc0 L_v_pv")
e(ADV[2])
e("s_waitcnt lgkmcnt(0)")
e(f"ds_write_b32 v{vFW}, v{vFV}")
e(f"ds_read_b64 v[{vPL}:{vPL+1}], v{vPA}")
e(f"ds_read_b128 v[{vPN}:{vPN+3}], v{vPW}")
for i in range(8):
    e(PV[i]); e(VR[2*i]); e(VR[2*i+1])
e(ADV[0]); e(ADV[1]); e(ADV[3])
e("s_branch L_v_top")
lab("L_v_pv")
for i in range(8):
    if i: e(f"s_waitcnt lgkmcnt({14-2*i})")
    if i == 7:
        e(f"ds_write_b32 v{vFW}, v{vFV}")
        e(f"ds_read_b64 v[{vPL}:{vPL+1}], v{vPA}")
    e(PV[i])
e(f"s_cmp_ge_i32 s{sTN}, 0")
e("s_cbranch_scc1 L_v_next")
lab("L_v_empty")
e(f"s_cmp_lt_u32 s{sTB1}, s{sTTC}")
e("s_cbranch_scc1 L_v_more")
stamp(2)
e(f"s_cmp_lg_u32 s{sMRG}, 0")
e("s_cbranch_scc1 L_c_mwait0")
lab("L_c_store")
e(f"v_mov_b32 v{vT0}, v{vLS}")
e(f"v_and_b32 v{vT2}, 15, v{vLANE}")
e(f"v_lshl_add_u32 v{vT2}, v{vT2}, 8, s{sQO}")
e(f"v_permlane32_swap_b32 v{vLS}, v{vT0}")
e("s_nop 0")
e(f"v_add_f32 v{vLS}, v{vLS}, v{vT0}")
e(f"v_mov_b32 v{vT0}, v{vLS}")
e(f"v_lshl_add_u32 v{vT2}, v{vG}, 4, v{vT2}")
e("s_nop 0")
e(f"v_permlane16_swap_b32 v{vLS}, v{vT0}")
e("s_nop 0")
e(f"v_add_f32 v{vLS}, v{vLS}, v{vT0}")
e(f"v_rcp_f32 v{vMN}, v{vLS}")
e(f"s_cmp_lg_u32 s{sROLE}, 0")
scale_o(vMN)
for r in range(16):
    e(f"v_cvt_pk_bf16_f32 v{vKF+r}, v{vO+2*r}, v{vO+2*r+1}")
e("s_cbranch_scc1 L_publish")
def out_stores(fl, step=64):
    for j in range(4):
        e(f"global_store_dwordx4 v{vT2}, v[{vKF+4*j}:{vKF+4*j+3}], s[{sOUT}:{sOUT+1}] offset:{step*j}{fl}")
out_stores(OST)
e(FIN)

def l_total():
    e(f"v_mov_b32 v{vT0}, v{vLS}")
    e(f"v_and_b32 v{vT2}, 15, v{vLANE}")
    e(f"v_lshl_add_u32 v{vT2}, v{vT2}, 8, s{sQO}")
    e(f"v_permlane32_swap_b32 v{vLS}, v{vT0}")
    e("s_nop 0")
    e(f"v_add_f32 v{vLS}, v{vLS}, v{vT0}")
    e(f"v_mov_b32 v{vT0}, v{vLS}")
    e(f"v_lshl_add_u32 v{vT2}, v{vG}, 4, v{vT2}")
    e("s_nop 0")
    e(f"v_permlane16_swap_b32 v{vLS}, v{vT0}")
    e("s_nop 0")
    e(f"v_add_f32 v{vLS}, v{vLS}, v{vT0}")
    e(f"v_rcp_f32 v{vMN}, v{vLS}")
if a.last:
    lab("L_v_islast")
    c("closing tile of an owner with nothing pending: take the short path")
    e(f"s_sub_u32 s{sT0}, s{sTTC}, s{sTB1}")
    e(f"s_or_b32 s{sT0}, s{sT0}, s{sMRG}")
    e(f"s_or_b32 s{sT0}, s{sT0}, s{sROLE}")
    e(f"s_or_b32 s{sT0}, s{sT0}, s{sRS}")
    e(f"s_or_b32 s{sT0}, s{sT0}, s{sRS+1}")
    e("s_cbranch_scc1 L_v_next2")
    e(f"ds_read_b128 v[{vP}:{vP+3}], v{vPW}")
    e(f"ds_read_b64 v[{vPL}:{vPL+1}], v{vPA}")
    l_total()
    e("s_waitcnt lgkmcnt(0)")
    e(f"v_readfirstlane_b32 s{sLND}, v{vPL}")
    e(f"s_cmp_ge_i32 s{sLND}, s{sNK}")
    e("s_cbranch_scc1 L_v_lrd")
    poll("L_v_lpoll")
    lab("L_v_lrd")
    for x in VR: e(x)
    def fin_j(j):
        r = []
        for k in range(4):
            q = vO + 8 * j + 2 * k
            r.append(f"v_pk_mul_f32 v[{q}:{q+1}], v[{q}:{q+1}], v[{vMN}:{vMN+1}] op_sel_hi:[1,0]")
        for k in range(4):
            r.append(f"v_cvt_pk_bf16_f32 v{vKF+4*j+k}, v{vO+8*j+2*k}, v{vO+8*j+2*k+1}")
        r.append(f"global_store_dwordx4 v{vT2}, v[{vKF+4*j}:{vKF+4*j+3}], s[{sOUT}:{sOUT+1}] offset:{64*j}{OST}")
        return r
    f0 = fin_j(0)
    for i in range(8):
        e(f"s_waitcnt lgkmcnt({14-2*i})")
        e(PV[i])
        if i == 5: e(f0[0]); e(f0[1])
        if i == 6: e(f0[2]); e(f0[3])
    stamp(2)
    for x in f0[4:] + fin_j(1) + fin_j(2) + fin_j(3): e(x)
    e(f"ds_write_b32 v{vFW}, v{vFV}")
    e(FIN)

lab("L_v_resc")
e(f"s_bitset0_b64 s[{sRS}:{sRS+1}], s{sT0}")
alpha_addr()
e("s_waitcnt vmcnt(0)")
e(f"global_load_dword v{vAL}, v{vT1}, s[{sWS}:{sWS+1}] sc1")
e("s_waitcnt vmcnt(0)")
scale_o(vAL)
e("s_branch L_v_top2")

lab("L_v_merge")
c("only once no rescale is pending; the reference max stays, so the partial's max must not be far above it")
e(f"s_cmp_eq_u64 s[{sRS}:{sRS+1}], 0")
e("s_cbranch_scc0 L_v_top3")
lab("L_c_merge")
e(f"s_mul_i32 s{sT0}, s{sCI}, {MBS}")
e(f"s_add_u32 s{sT0}, s{sT0}, {MB}")
e(f"v_and_b32 v{vT1}, 15, v{vLANE}")
e(f"v_lshl_add_u32 v{vT0}, v{vLANE}, 4, s{sT0}")
e(f"v_lshl_add_u32 v{vT1}, v{vT1}, 3, s{sT0}")
e("s_waitcnt lgkmcnt(0)")
e(f"ds_write_b32 v{vFW}, v{vFV}")
e(f"ds_read_b64 v[{vT4}:{vT5}], v{vT1} offset:4096")
for i in range(4):
    e(f"ds_read_b128 v[{vKF+4*i}:{vKF+4*i+3}], v{vT0} offset:{1024*i}")
e(f"s_cmp_eq_u32 s{sPLN}, 2")
e("s_waitcnt lgkmcnt(0)")
e("s_cbranch_scc1 L_c_mfin")
e(f"v_sub_f32 v{vT4}, v{vT4}, v{vM}")
e(f"v_cmp_nge_f32 vcc, 0x41800000, v{vT4}")
e(f"s_mov_b32 s{sMRG}, 2")
e("s_nop 3")
e("s_cbranch_vccnz L_v_top3")
e("s_branch L_c_madd")
lab("L_c_mfin")
e(f"v_max_f32 v{vMN}, v{vM}, v{vT4}")
e(f"v_sub_f32 v{vAL}, v{vM}, v{vMN}")
e(f"v_sub_f32 v{vT4}, v{vT4}, v{vMN}")
e(f"v_exp_f32 v{vAL}, v{vAL}")
e("s_nop 0")
e(f"v_mul_f32 v{vLS}, v{vLS}, v{vAL}")
scale_o(vAL)
lab("L_c_madd")
e(f"v_exp_f32 v{vT4}, v{vT4}")
e(f"s_mov_b32 s{sMRG}, 0")
e(f"v_mul_f32 v{vT4}, v{vT4}, v{vT5}")
e(f"v_fmac_f32 v{vLS}, 0x3e800000, v{vT4}")
for r in range(16):
    t = vKF + 16 + 2 * (r % 4)
    e(f"v_lshlrev_b32 v{t}, 16, v{vKF+r}")
    e(f"v_and_b32 v{t+1}, 0xffff0000, v{vKF+r}")
    e(f"v_pk_fma_f32 v[{vO+2*r}:{vO+2*r+1}], v[{t}:{t+1}], v[{vT4}:{vT4+1}], v[{vO+2*r}:{vO+2*r+1}] op_sel_hi:[1,0,1]")
e(f"s_cmp_eq_u32 s{sPLN}, 2")
e("s_cbranch_scc0 L_v_top3")
e("s_branch L_c_store")
lab("L_c_mwait0")
e(f"s_mov_b32 s{sPLN}, 2")
lab("L_c_mwait")
e(f"ds_read_b64 v[{vPL}:{vPL+1}], v{vPA}")
e("s_waitcnt lgkmcnt(0)")
e(f"v_readfirstlane_b32 s{sMBF}, v{vPL+1}")
e(f"s_cmp_lg_u32 s{sMBF}, 0")
e("s_cbranch_scc1 L_c_merge")
spin_tail("L_c_mwait")

def ws_base(sb):
    e(f"s_lshl3_add_u32 s{sT0}, s{sb}, s{sH}")
    e(f"s_lshl_b32 s{sT0}, s{sT0}, 9")
    if WS0: e(f"s_add_u32 s{sT0}, s{sT0}, {WS0}")

lab("L_publish")
if "nopub" in DBG: e("s_endpgm")
e(f"v_lshl_add_u32 v{vT2}, v{vLANE}, 4, s{sQO}")
e(f"s_lshl_b32 s{sT2}, s{sPB}, 2")
e(f"v_mov_b32 v{vT3}, s{sT2}")
e(f"v_lshlrev_b32 v{vT4}, 1, v{vT3}")
e(f"v_add_u32 v{vT4}, {CTRL+68}, v{vT4}")
e(f"ds_read_b32 v{vT4}, v{vT4}")
ws_base(sPB)
e(f"s_lshl2_add_u32 s{sT1}, s{sCI}, s{sT0}")
e(f"v_mov_b32 v{vT5}, s{sT1}")
e(f"s_lshl_b32 s{sT1}, s{sCI}, 7")
e(f"s_add_u32 s{sT0}, s{sT0}, s{sT1}")
e(f"v_lshl_add_u32 v{vT1}, v{vLANE}, 3, s{sT0}")
e(f"s_getreg_b32 s{sT2}, hwreg(HW_REG_XCC_ID, 0, 4)")
e(f"s_lshl_b32 s{sT2}, s{sT2}, 4")
e(f"s_or_b32 s{sT2}, s{sT2}, s{sH}")
e(f"s_or_b32 s{sT2}, s{sT2}, 0x100")
e("s_waitcnt lgkmcnt(0)")
e(f"v_readfirstlane_b32 s{sT1}, v{vT4}")
e(f"s_lshr_b32 s{sT1}, s{sT1}, 16")
e(f"s_cmp_eq_u32 s{sT1}, s{sT2}")
e("s_cbranch_scc1 L_pub_fast")
e(f"global_load_dword v{vT4}, v{vT3}, s[{sDBG}:{sDBG+1}] offset:128 sc1")
e("s_waitcnt vmcnt(0)")
e(f"v_readfirstlane_b32 s{sT1}, v{vT4}")
e(f"s_lshr_b32 s{sT1}, s{sT1}, 16")
e(f"s_cmp_eq_u32 s{sT1}, s{sT2}")
e("s_cbranch_scc0 L_pub_slow")
lab("L_pub_fast")
c("the receiver runs on this die and has cleared its flag words: hand over inside the shared L2")
out_stores("", 1024)
e("s_mov_b64 exec, 0xffff")
e(f"global_store_dwordx2 v{vT1}, v[{vM}:{vM+1}], s[{sWS}:{sWS+1}]")
e(f"v_mov_b32 v{vT4}, 1")
e("s_waitcnt vmcnt(0)")
e("s_mov_b64 exec, 1")
e(f"global_store_dword v{vT5}, v{vT4}, s[{sWS}:{sWS+1}] offset:256")
e(FIN)
lab("L_pub_slow")
c("any other placement: write through to memory, then set a bit with a device-wide atomic")
out_stores(" sc1", 1024)
e("s_mov_b64 exec, 0xffff")
e(f"global_store_dwordx2 v{vT1}, v[{vM}:{vM+1}], s[{sWS}:{sWS+1}] sc1")
e(f"s_lshl1_add_u32 s{sT1}, s{sH}, s{sCI}")
e(f"s_lshl_b32 s{sT1}, 1, s{sT1}")
e(f"v_mov_b32 v{vT4}, s{sT1}")
e("s_waitcnt vmcnt(0)")
e("s_mov_b64 exec, 1")
e(f"global_atomic_add v{vT3}, v{vT4}, s[{sDBG}:{sDBG+1}]")
e(FIN)

vRW = vL
vKEY, vRK = 19, 20
lab("L_ctl0")
if a.skew:
    c("dies are not started at the same instant: the first eight workgroups post when they started")
    e(f"s_memrealtime s[{sMA}:{sMA+1}]")
    e(f"s_lshl2_add_u32 s{sT0}, s{sH}, 2")
    e(f"v_mov_b32 v{vT4}, s{sT0}")
    e(f"s_cmp_lg_u32 s{sB}, 0")
    e("s_waitcnt lgkmcnt(0)")
    e("s_cbranch_scc1 L_ctl1")
    e(f"s_or_b32 s{sT0}, s{sMA}, 0x8000")
    e(f"v_mov_b32 v{vT5}, s{sT0}")
    e("s_mov_b64 exec, 1")
    e(f"global_store_short v{vT4}, v{vT5}, s[{sDBG}:{sDBG+1}] sc1")
    e("s_mov_b64 exec, -1")
    lab("L_ctl1")
e("s_barrier")
e("s_branch L_ctl")
lab("L_planner")
e(f"s_cmp_eq_u32 s{sW}, 5")
e("s_cbranch_scc1 L_ctl0")
e(f"s_sub_u32 s{sCI}, s{sW}, 3")
e(f"s_lshl_b32 s{sSB}, s{sCI}, 8")
e(f"s_add_u32 s{sSB}, s{sSB}, {CNT}")
e(f"v_lshl_add_u32 v{vPA}, v{vLANE}, 2, s{sSB}")
e(f"s_lshl_b32 s{sT2}, s{sCI}, 7")
e(f"s_add_u32 s{sT2}, s{sT2}, {KEYS}")
e(f"v_add_u32 v{vT3}, s{sT2}, v{vT3}")
e(f"v_lshrrev_b32 v{vT4}, 5, v{vLANE}")
e(f"v_lshl_add_u32 v{vT4}, v{vT4}, 6, s{sT2}")
e(f"v_mov_b32 v{vT5}, 2048")
e("s_barrier")
e("s_waitcnt vmcnt(0)")
e(f"v_cmp_gt_i32 s[{sZQ}:{sZQ+1}], 1, v{vN}")
e(f"v_min_i32 v{vN}, v{vN}, v{vT5}")
e("s_nop 0")
e(f"v_cndmask_b32 v{vN}, v{vN}, v{vT5}, s[{sZQ}:{sZQ+1}]")
e(f"v_add_u32 v{vN}, 15, v{vN}")
e(f"v_lshrrev_b32 v{vN}, 4, v{vN}")
e(f"v_lshl_or_b32 v{vKEY}, v{vN}, 5, v{vT0}")
e(f"ds_write_b32 v{vT3}, v{vKEY}")
for i in range(4):
    e(f"ds_read_b128 v[{vKF+4*i}:{vKF+4*i+3}], v{vT4} offset:{16*i}")
e(f"v_mov_b32 v{vRK}, 0")
e(f"v_readlane_b32 s{sNB}, v{vN}, s{sB}")
e("s_waitcnt lgkmcnt(0)")
c("rank of every batch by block count; the batch of rank 31-r is the partner")
for i in range(16):
    e(f"v_sub_u32 v{vKF+i}, v{vKF+i}, v{vKEY}")
for i in range(16):
    e(f"v_alignbit_b32 v{vRK}, v{vRK}, v{vKF+i}, 31")
e(f"v_bcnt_u32_b32 v{vRK}, v{vRK}, 0")
e(f"v_mov_b32 v{vT2}, v{vRK}")
derive_nb()
e(f"v_permlane32_swap_b32 v{vRK}, v{vT2}")
e("s_nop 0")
e(f"v_add_u32 v{vRK}, v{vRK}, v{vT2}")
e("s_nop 0")
e(f"v_readlane_b32 s{sRK}, v{vRK}, s{sB}")
e(f"s_sub_u32 s{sT0}, 31, s{sRK}")
e(f"v_cmp_eq_u32 vcc, s{sT0}, v{vRK}")
e(f"s_ff1_i32_b32 s{sPB}, vcc_lo")
e(f"v_readlane_b32 s{sNP}, v{vN}, s{sPB}")
e(f"s_max_u32 s{sT0}, s{sNB}, s{sNP}")
e(f"s_min_u32 s{sT1}, s{sNB}, s{sNP}")
e(f"s_sub_u32 s{sX}, s{sT0}, s{sT1}")
e(f"s_add_u32 s{sX}, s{sX}, 2")
e(f"s_lshr_b32 s{sX}, s{sX}, 2")
e(f"s_cmp_lt_u32 s{sT0}, {4*NUM+8}")
e(f"s_cselect_b32 s{sX}, 0, s{sX}")
if a.nopair: e(f"s_mov_b32 s{sX}, 0")
e(f"s_cmp_ge_u32 s{sRK}, 16")
e(f"s_cselect_b32 s{sLO}, s{sX}, 0")
e(f"s_cselect_b32 s{sTB}, 0, s{sX}")
e(f"s_cmp_eq_u32 s{sCI}, 0")
e("s_cbranch_scc1 L_pl_norow")
e(f"s_lshl_b32 s{sT0}, s{sPB}, 9")
e(f"v_lshl_add_u32 v{vT1}, v{vLANE}, 3, s{sT0}")
e(f"global_load_dwordx2 v[{vRW}:{vRW+1}], v{vT1}, s[{sBT}:{sBT+1}]")
lab("L_pl_norow")
e(f"s_sub_u32 s{sTA}, s{sNTL}, s{sLO}")
e(f"s_add_u32 s{sT}, s{sTA}, s{sTB}")
e(f"s_mul_i32 s{sF}, s{sT}, {a.fnum}")
e(f"s_lshr_b32 s{sF}, s{sF}, 6")
e(f"s_min_u32 s{sWB}, s{sTA}, {a.UB}")
e(f"s_sub_i32 s{sF}, s{sF}, s{sWB}")
e(f"s_max_i32 s{sF}, s{sF}, s{sTB}")
e(f"s_max_i32 s{sF}, s{sF}, 1")
e(f"v_cvt_f32_u32 v{vT2}, s{sF}")
e(f"v_subrev_u32 v{vT3}, s{sWB}, v{vLANE}")
e(f"v_rcp_f32 v{vT2}, v{vT2}")
e(f"v_mul_i32_i24 v{vT4}, s{sTB}, v{vT3}")
e(f"v_add_u32 v{vT5}, s{sTB}, v{vT4}")
e(f"v_cvt_f32_i32 v{vT4}, v{vT4}")
e(f"v_cvt_f32_i32 v{vT5}, v{vT5}")
e(f"v_add_f32 v{vT4}, 0.5, v{vT4}")
e(f"v_add_f32 v{vT5}, 0.5, v{vT5}")
e(f"v_mul_f32 v{vT4}, v{vT4}, v{vT2}")
e(f"v_mul_f32 v{vT5}, v{vT5}, v{vT2}")
e(f"v_floor_f32 v{vT4}, v{vT4}")
e(f"v_floor_f32 v{vT5}, v{vT5}")
e(f"v_cmp_gt_u32 vcc, s{sF}, v{vT3}")
e(f"v_cmp_gt_f32 s[{sMBK}:{sMBK+1}], v{vT5}, v{vT4}")
e(f"s_sub_u32 s{sT0}, s{sT}, s{sNU}")
e(f"v_subrev_u32 v{vT3}, s{sNU}, v{vLANE}")
e(f"v_cmp_gt_u32 s[{sMA}:{sMA+1}], s{sT0}, v{vT3}")
e(f"s_and_b64 s[{sMBK}:{sMBK+1}], s[{sMBK}:{sMBK+1}], vcc")
e(f"s_andn2_b64 s[{sMA}:{sMA+1}], s[{sMA}:{sMA+1}], s[{sMBK}:{sMBK+1}]")
c(f"own tiles to sort: logical [NU+given, ntile); donated: the partner's logical [{NUM}, {NUM}+TB)")
mfirst = a.mfirst and not a.nosort
if mfirst:
    e(f"s_ff1_i32_b64 s{sT2}, s[{sMA}:{sMA+1}]")
else:
    e(f"s_flbit_i32_b64 s{sT2}, s[{sMA}:{sMA+1}]")
    e(f"s_sub_u32 s{sT2}, 63, s{sT2}")
e(f"s_lshl_b32 s{sT2}, s{sT2}, 8")
e(f"s_or_b32 s{sWB}, s{sT2}, 1")
e(f"s_min_u32 s{sMRG}, s{sLO}, 1")
e(f"s_add_u32 s{sLO}, s{sLO}, s{sNU}")
e(f"s_sub_u32 s{sHI}, s{sNTL}, s{sLO}")
e(f"s_sub_u32 s{sT3}, s{sNTL}, 1")
e(f"s_mov_b32 s{sLBASE}, {LA}")
e(f"s_cmp_eq_u32 s{sCI}, 0")
e("s_cbranch_scc1 L_pl_a")
e(f"s_mov_b32 s{sLO}, {NUM}")
e(f"s_mov_b32 s{sHI}, s{sTB}")
e(f"s_mov_b32 s{sT3}, -1")
e(f"s_mov_b32 s{sLBASE}, {LB}")
e(f"s_mov_b64 s[{sMA}:{sMA+1}], s[{sMBK}:{sMBK+1}]")
e("s_branch L_pl_sort")
lab("L_pl_a")
e(f"s_lshl_b32 s{sT0}, s{sT}, 8")
e(f"s_or_b32 s{sT0}, s{sT0}, s{sMRG}")
e(f"v_mov_b32 v{vT2}, s{sMA}")
e(f"v_mov_b32 v{vT3}, s{sMA+1}")
e(f"v_mov_b32 v{vT4}, s{sT0}")
e(f"v_mov_b32 v{vT5}, s{sWB}")
e(f"v_mov_b32 v{vT1}, {REC0}")
e(f"ds_write_b128 v{vT1}, v[{vT2}:{vT5}]")
lab("L_pl_sort")
e(f"v_subrev_u32 v{vT0}, s{sLO}, v{vLANE}")
e(f"v_cmp_gt_u32 vcc, s{sHI}, v{vT0}")
e(f"v_mov_b32 v{vT5}, 1")
e("s_waitcnt vmcnt(0)")
if a.nosort:
    e(f"v_lshlrev_b32 v{vT2}, 1, v{vT0}")
    e(f"v_add_u32 v{vT3}, 1, v{vT2}")
else:
    c("counting sort of the block ids into 64 buckets of ascending physical address")
    e(f"v_lshrrev_b32 v{vT0}, 6, v{vRW}")
    e(f"v_lshrrev_b32 v{vT1}, 6, v{vRW+1}")
    e(f"v_cmp_eq_u32 s[{sRK+2}:{sRK+3}], s{sT3}, v{vLANE}")
    if mfirst:
        e(f"v_med3_u32 v{vT0}, v{vT0}, 1, 63")
        e(f"v_med3_u32 v{vT1}, v{vT1}, 1, 63")
    else:
        e(f"v_min_u32 v{vT0}, 62, v{vT0}")
        e(f"v_min_u32 v{vT1}, 62, v{vT1}")
    fb = 0 if mfirst else 63
    e(f"v_cndmask_b32 v{vT0}, v{vT0}, {fb}, s[{sRK+2}:{sRK+3}]")
    e(f"v_cndmask_b32 v{vT1}, v{vT1}, {fb}, s[{sRK+2}:{sRK+3}]")
    e(f"v_lshlrev_b32 v{vT0}, 2, v{vT0}")
    e(f"v_lshlrev_b32 v{vT1}, 2, v{vT1}")
    e(f"v_add_u32 v{vKF}, s{sSB}, v{vT0}")
    e(f"v_add_u32 v{vKF+1}, s{sSB}, v{vT1}")
    e("s_mov_b64 exec, vcc")
    e(f"ds_add_rtn_u32 v{vT2}, v{vKF}, v{vT5}")
    e(f"ds_add_rtn_u32 v{vT3}, v{vKF+1}, v{vT5}")
    e("s_mov_b64 exec, -1")
    e(f"ds_read_b32 v{vT4}, v{vPA}")
    e("s_waitcnt lgkmcnt(0)")
    e(f"v_mov_b32 v{vKF+2}, v{vT4}")
    for sh in (1, 2, 4, 8):
        e("s_nop 1")
        e(f"v_add_u32_dpp v{vT4}, v{vT4}, v{vT4} row_shr:{sh} row_mask:0xf bank_mask:0xf bound_ctrl:0")
    e("s_nop 1")
    e(f"v_add_u32_dpp v{vT4}, v{vT4}, v{vT4} row_bcast:15 row_mask:0xa bank_mask:0xf")
    e("s_nop 1")
    e(f"v_add_u32_dpp v{vT4}, v{vT4}, v{vT4} row_bcast:31 row_mask:0xc bank_mask:0xf")
    e(f"v_sub_u32 v{vT4}, v{vT4}, v{vKF+2}")
    e(f"ds_bpermute_b32 v{vT0}, v{vT0}, v{vT4}")
    e(f"ds_bpermute_b32 v{vT1}, v{vT1}, v{vT4}")
    e("s_waitcnt lgkmcnt(0)")
    e(f"v_add_u32 v{vT2}, v{vT2}, v{vT0}")
    e(f"v_add_u32 v{vT3}, v{vT3}, v{vT1}")
e(f"v_lshlrev_b32 v{vRW}, 15, v{vRW}")
e(f"v_lshlrev_b32 v{vRW+1}, 15, v{vRW+1}")
e(f"v_lshl_add_u32 v{vT2}, v{vT2}, 2, s{sLBASE}")
e(f"v_lshl_add_u32 v{vT3}, v{vT3}, 2, s{sLBASE}")
e("s_mov_b64 exec, vcc")
e(f"ds_write_b32 v{vT2}, v{vRW}")
e(f"ds_write_b32 v{vT3}, v{vRW+1}")
e("s_mov_b64 exec, -1")
c("place the sorted tiles at their stream positions; flags: 1 valid, 2 masked, 4 last of batch, 8 last of stream")
e(f"v_mbcnt_lo_u32_b32 v{vT0}, s{sMA}, 0")
e(f"v_mbcnt_hi_u32_b32 v{vT0}, s{sMA+1}, v{vT0}")
e(f"v_lshl_add_u32 v{vT0}, v{vT0}, 3, s{sLBASE}")
e(f"ds_read_b64 v[{vT2}:{vT3}], v{vT0}")
e(f"s_lshr_b32 s{sT0}, s{sWB}, 8")
e(f"s_sub_u32 s{sT1}, s{sT}, 1")
e(f"v_cmp_eq_u32 vcc, s{sT0}, v{vLANE}")
e(f"v_cmp_eq_u32 s[{sRK+2}:{sRK+3}], s{sT1}, v{vLANE}")
e(f"v_cmp_eq_u32 s[{sT2}:{sT2+1}], {G-1}, v{vLANE}")
e(f"v_cndmask_b32 v{vT4}, 1, 3, vcc")
e(f"v_cndmask_b32 v{vT5}, 0, 12, s[{sRK+2}:{sRK+3}]")
e(f"v_cndmask_b32 v{vT1}, 0, 4, s[{sT2}:{sT2+1}]")
e(f"v_or3_b32 v{vT4}, v{vT4}, v{vT5}, v{vT1}")
e(f"v_lshlrev_b32 v{vT0}, 3, v{vLANE}")
e(f"v_add_u32 v{vT0}, {SL}, v{vT0}")
e("s_waitcnt lgkmcnt(0)")
e(f"v_or_b32 v{vT2}, v{vT2}, v{vT4}")
e(f"s_mov_b64 exec, s[{sMA}:{sMA+1}]")
e(f"ds_write_b64 v{vT0}, v[{vT2}:{vT3}]")
e("s_mov_b64 exec, -1")
lab("L_pl_done")
e(f"s_cmp_lg_u32 s{sMRG}, 0")
e("s_cbranch_scc1 L_fetch")
e(f"s_cmp_eq_u32 s{sTB}, 0")
e("s_cbranch_scc1 L_fin")
c("become the consumer of the donated tiles")
load_q(sPB)
e(f"s_mov_b64 s[{sMALL}:{sMALL+1}], s[{sMBK}:{sMBK+1}]")
e(f"s_mov_b32 s{sM}, s{sMBK}")
e(f"s_and_b32 s{sM+1}, s{sMBK+1}, {RHI:#x}")
e(f"s_mov_b32 s{sTTC}, s{sT}")
e(f"s_min_u32 s{sTB1}, s{sT}, {G}")
e(f"s_mov_b32 s{sROLE}, 1")
e(f"s_mov_b32 s{sPLN}, 1")
e(f"s_lshr_b32 s{sT3}, s{sZQ}, s{sPB}")
e(f"s_and_b32 s{sT3}, s{sT3}, 1")
e("s_branch L_csetup")

lab("L_fetch")
e(f"s_cmp_lg_u32 s{sCI}, 0")
e("s_cbranch_scc1 L_fin")
rows_off(sB)
if a.otouch >= 0:
    c("make the lines that will carry the partial valid in L2 (a later read of write-only lines would go to memory)")
    e(f"v_lshl_add_u32 v{vT4}, v{vLANE}, 7, s{sQO}")
    e(f"global_load_dword v{vPF}, v{vT4}, s[{sOUT}:{sOUT+1}] {a.ofl.replace('+', ' ')}")
ws_base(sB)
e(f"v_lshl_add_u32 v{vT1}, v{vT0}, 3, s{sT0}")
e(f"v_mov_b32 v{vFW}, s{sT0}")
e(f"s_lshl_b32 s{sT2}, s{sB}, 2")
e(f"v_mov_b32 v{vT2}, s{sT2}")
e(f"v_mov_b32 v{vPA}, {CTRL+16}")
e("s_mov_b64 exec, 1")
e(f"s_mul_i32 s{sNEED}, s{sT}, {a.pollnum}")
e(f"s_lshr_b32 s{sNEED}, s{sNEED}, 5")
e(f"s_lshl_b32 s{sT3}, s{sH}, 1")
e(f"s_mov_b32 s{sMBF}, 0")
c("wait until wave 5 has cleared the flag words and the stream is far enough")
lab("L_f_wait")
e(f"ds_read_b64 v[{vPL}:{vPL+1}], v{vPA}")
e("s_waitcnt lgkmcnt(0)")
e(f"v_readfirstlane_b32 s{sLND}, v{vPL}")
e(f"v_readfirstlane_b32 s{sT0}, v{vPL+1}")
e(f"s_cmp_ge_i32 s{sLND}, s{sNEED}")
e(f"s_cselect_b32 s{sT0}, s{sT0}, 0")
e(f"s_cmp_lg_u32 s{sT0}, 0")
e("s_cbranch_scc1 L_f_poll")
spin_tail("L_f_wait", 8)
lab("L_f_poll")
if "nopoll" in DBG: e("s_branch L_f_got")
e(f"global_load_dwordx2 v[{vPL}:{vPL+1}], v{vFW}, s[{sWS}:{sWS+1}] offset:256 sc1")
e(f"s_add_u32 s{sMBF}, s{sMBF}, 1")
e(f"s_and_b32 s{sT0}, s{sMBF}, 3")
e(f"s_mov_b32 s{sT2}, 0")
e("s_cbranch_scc1 L_f_nodbg")
e(f"global_load_dword v{vT3}, v{vT2}, s[{sDBG}:{sDBG+1}] sc1")
e("s_waitcnt vmcnt(0)")
e(f"v_readfirstlane_b32 s{sT2}, v{vT3}")
e(f"s_lshr_b32 s{sT2}, s{sT2}, s{sT3}")
lab("L_f_nodbg")
e("s_waitcnt vmcnt(0)")
e(f"v_lshl_or_b32 v{vPL}, v{vPL+1}, 1, v{vPL}")
e("s_nop 0")
e(f"v_readfirstlane_b32 s{sT0}, v{vPL}")
e(f"s_or_b32 s{sT0}, s{sT0}, s{sT2}")
e(f"s_and_b32 s{sT0}, s{sT0}, 3")
e(f"s_cmp_eq_u32 s{sT0}, 3")
e("s_cbranch_scc1 L_f_got")
spin_tail("L_f_poll", a.psleep)
lab("L_f_got")
e("s_mov_b64 exec, -1")
e(f"v_lshl_add_u32 v{vT4}, v{vLANE}, 4, s{sQO}")
e(f"v_add_u32 v{vT5}, 4096, v{vT4}")
FLD = " " + a.fld if a.fld != "none" else ""
for cc in range(2):
    if "nofetch" in DBG:
        e(f"v_mov_b32 v{vM+2*cc}, 0"); e(f"v_mov_b32 v{vM+2*cc+1}, 0")
        continue
    e(f"global_load_dwordx2 v[{vM+2*cc}:{vM+2*cc+1}], v{vT1}, s[{sWS}:{sWS+1}] offset:{128*cc}{FLD}")
    for j in range(4):
        r = vKF + 16 * cc + 4 * j
        e(f"global_load_dwordx4 v[{r}:{r+3}], v{vT4+cc}, s[{sOUT}:{sOUT+1}] offset:{1024*j}{FLD}")
e(f"v_lshlrev_b32 v{vT2}, 4, v{vLANE}")
e(f"v_add_u32 v{vT2}, {MB}, v{vT2}")
e(f"v_lshlrev_b32 v{vT0}, 3, v{vT0}")
e(f"v_add_u32 v{vT0}, {MB}, v{vT0}")
e(f"v_mov_b32 v{vPL}, {CTRL+4}")
e(f"v_mov_b32 v{vT3}, 1")
for cc in range(2):
    e(f"s_waitcnt vmcnt({5-5*cc})")
    for j in range(4):
        r = vKF + 16 * cc + 4 * j
        e(f"ds_write_b128 v{vT2}, v[{r}:{r+3}] offset:{MBS*cc + 1024*j}")
    e(f"ds_write_b64 v{vT0}, v[{vM+2*cc}:{vM+2*cc+1}] offset:{MBS*cc + 4096}")
    e(f"ds_write_b32 v{vPL}, v{vT3} offset:{8*cc}")
e(FIN)

c("wave 5: workgroups that share an L2 post their remaining work; one that lags prefetches deeper")
lab("L_ctl")
e(f"v_mov_b32 v{vT1}, {REC0}")
e(f"v_mov_b32 v{vPA}, {CTRL+32}")
e(f"v_mov_b32 v{vFW}, {DEPW}")
e(f"s_lshl_b32 s{sT0}, s{sB}, 2")
e(f"v_mov_b32 v{vG}, s{sT0}")
e(f"v_mov_b32 v{vFV}, v{vT3}")
lo = sum((XT[i] & 255) << (8 * i) for i in range(4)); hi = sum((XT[4 + i] & 255) << (8 * i) for i in range(4))
e(f"s_getreg_b32 s{sT0}, hwreg(HW_REG_XCC_ID, 0, 3)")
e(f"s_mov_b32 s{sM}, {lo:#x}")
e(f"s_mov_b32 s{sM+1}, {hi:#x}")
e(f"s_lshl_b32 s{sT0}, s{sT0}, 3")
e(f"s_lshr_b64 s[{sM}:{sM+1}], s[{sM}:{sM+1}], s{sT0}")
e(f"s_sext_i32_i8 s{sBO}, s{sM}")
lab("L_g_plan")
e(f"ds_read_b128 v[{vT2}:{vT5}], v{vT1}")
e("s_waitcnt lgkmcnt(0)")
e(f"v_readfirstlane_b32 s{sT0}, v{vT5}")
e(f"v_readfirstlane_b32 s{sT}, v{vT4}")
e(f"s_cmp_lg_u32 s{sT0}, 0")
e("s_cbranch_scc1 L_g_go")
spin_tail("L_g_plan", 8)
lab("L_g_go")
e(f"s_and_b32 s{sMRG}, s{sT}, 1")
e("s_cbranch_scc0 L_g_nores")
c("a partial is expected: clear its flag words before anything is posted")
ws_base(sB)
e(f"v_mov_b32 v{vT0}, s{sT0}")
e(f"v_mov_b32 v{vT2}, 0")
e(f"v_mov_b32 v{vT3}, 0")
e(f"v_mov_b32 v{vT4}, {CTRL+20}")
e(f"v_mov_b32 v{vT5}, 1")
e("s_mov_b64 exec, 1")
e(f"global_store_dwordx2 v{vT0}, v[{vT2}:{vT3}], s[{sWS}:{sWS+1}] offset:256")
e("s_waitcnt vmcnt(0)")
e(f"ds_write_b32 v{vT4}, v{vT5}")
e("s_mov_b64 exec, -1")
lab("L_g_nores")
e(f"s_and_b32 s{sT0}, s{sDBG}, 127")
e("s_cbranch_scc1 L_fin")
c("posted word: remaining units + 1 | head << 16 | die << 20 | flags cleared << 24")
e(f"s_getreg_b32 s{sFB}, hwreg(HW_REG_XCC_ID, 0, 4)")
e(f"s_lshl4_add_u32 s{sFB}, s{sMRG}, s{sFB}")
e(f"s_lshl4_add_u32 s{sFB}, s{sFB}, s{sH}")
e(f"s_lshl_b32 s{sFB}, s{sFB}, 16")
e(f"s_lshr_b32 s{sT}, s{sT}, 8")
e(f"s_lshl1_add_u32 s{sTN}, s{sT}, 1")
e(f"v_lshlrev_b32 v{vT1}, 1, v{vFV}")
e(f"v_add_u32 v{vT1}, {CTRL+68}, v{vT1}")
e(f"v_mov_b32 v{vT2}, s{sFB}")
e("s_mov_b64 exec, 1")
e(f"global_store_dword v{vG}, v{vT2}, s[{sDBG}:{sDBG+1}] offset:128")
e("s_mov_b64 exec, -1")
if "v" in a.tlb: e(f"global_load_dword v{vPF}, v{vTL}, s[{sV}:{sV+1}] nt")
if "prog2" in DBG: e("v_mov_b32 v50, 0")
if a.skew:
    e(f"s_mov_b32 s{sNEED}, 3")
    e(f"s_cmp_lt_u32 s{sT}, 8")
    e("s_cbranch_scc1 L_fin")
    lab("L_g_sw")
    e(f"ds_read_b32 v{vPL}, v{vPA}")
    e("s_waitcnt lgkmcnt(0)")
    e(f"v_readfirstlane_b32 s{sLND}, v{vPL}")
    e(f"s_cmp_ge_i32 s{sLND}, s{sNEED}")
    e("s_cbranch_scc1 L_g_sa")
    spin_tail("L_g_sw", 1)
    lab("L_g_sa")
    e(f"global_load_dword v{vT0}, v{vFV}, s[{sDBG}:{sDBG+1}] sc1")
    e("s_waitcnt vmcnt(0)")
    e(f"v_cmp_gt_i32 vcc, 0, v{vT0}")
    e(f"v_lshrrev_b32 v{vT0}, 16, v{vT0}")
    e(f"v_sub_u32 v{vT0}, s{sMA}, v{vT0}")
    e(f"v_bfe_i32 v{vT0}, v{vT0}, 0, 15")
    e(f"v_cndmask_b32 v{vT0}, 0, v{vT0}, vcc")
    for sh in (1, 2, 4):
        e("s_nop 1")
        op = "v_max_i32_dpp" if "ampmax" in DBG else "v_add_u32_dpp"
        e(f"{op} v{vT0}, v{vT0}, v{vT0} row_shr:{sh} row_mask:0xf bank_mask:0xf bound_ctrl:0")
    e("s_nop 0")
    e(f"v_readlane_b32 s{sT0}, v{vT0}, 7")
    if "ampmax" in DBG or "ampmean" in DBG:
        e(f"s_mul_i32 s{sMBK}, s{sT0}, {20 if 'ampmax' in DBG else 3}")
        e(f"s_max_i32 s{sMBK}, s{sMBK}, 0")
        e(f"s_add_u32 s{sMBK}, s{sMBK}, 3500")
        lab("L_amp")
        e("s_sleep 4")
        e(f"s_memrealtime s[{sLO}:{sLO+1}]")
        e("s_waitcnt lgkmcnt(0)")
        e(f"s_sub_u32 s{sT0}, s{sLO}, s{sMA}")
        e(f"s_cmp_lt_u32 s{sT0}, s{sMBK}")
        e("s_cbranch_scc1 L_amp")
        e("s_endpgm")
    e(f"s_mul_i32 s{sT0}, s{sT0}, {a.skew}")
    e(f"s_ashr_i32 s{sT0}, s{sT0}, 9")
    e(f"s_add_u32 s{sBO}, s{sBO}, s{sT0}")
e(f"s_mov_b32 s{sNEED}, {a.cstart}")
lab("L_g_next")
e(f"s_sub_u32 s{sT0}, s{sTN}, s{sNEED}")
e(f"s_cmp_lt_i32 s{sT0}, {a.cstop}")
e("s_cbranch_scc1 L_fin")
lab("L_g_w")
e(f"ds_read_b32 v{vPL}, v{vPA}")
e("s_waitcnt lgkmcnt(0)")
e(f"v_readfirstlane_b32 s{sLND}, v{vPL}")
e(f"s_cmp_ge_i32 s{sLND}, s{sNEED}")
e("s_cbranch_scc1 L_g_a")
spin_tail("L_g_w", 1)
lab("L_g_a")
if "prog2" in DBG:
    e(f"s_memrealtime s[{sST+2}:{sST+3}]")
    e(f"s_lshr_b32 m0, s{sLND}, 1")
    e("s_waitcnt lgkmcnt(0)")
    e(f"v_writelane_b32 v50, s{sST+2}, m0")
e(f"s_sub_u32 s{sNK}, s{sTN}, s{sLND}")
e(f"s_or_b32 s{sT0}, s{sNK}, s{sFB}")
e(f"v_mov_b32 v{vT2}, s{sT0}")
e("s_mov_b64 exec, 1")
e(f"global_store_dword v{vG}, v{vT2}, s[{sDBG}:{sDBG+1}] offset:128")
e("s_mov_b64 exec, -1")
e(f"global_load_dword v{vT0}, v{vFV}, s[{sDBG}:{sDBG+1}] offset:128 sc1")
e(f"s_add_u32 s{sNEED}, s{sLND}, {a.cstep}")
e(f"s_min_i32 s{sT3}, s{sBO}, 1")
e(f"s_max_i32 s{sT3}, s{sT3}, -1")
e(f"s_sub_u32 s{sBO}, s{sBO}, s{sT3}")
e("s_waitcnt vmcnt(0)")
e(f"ds_write_b32 v{vT1}, v{vT0}")
e(f"v_and_b32 v{vT0}, 0xffff, v{vT0}")
e(f"v_cmp_ne_u32 vcc, 0, v{vT0}")
for sh in (1, 2, 4, 8):
    e("s_nop 1")
    e(f"v_add_u32_dpp v{vT0}, v{vT0}, v{vT0} row_shr:{sh} row_mask:0xf bank_mask:0xf bound_ctrl:0")
e("s_nop 1")
e(f"v_add_u32_dpp v{vT0}, v{vT0}, v{vT0} row_bcast:15 row_mask:0xa bank_mask:0xf")
e(f"s_bcnt1_i32_b32 s{sT1}, vcc_lo")
e(f"v_readlane_b32 s{sT0}, v{vT0}, 31")
e(f"s_mul_i32 s{sT2}, s{sNK}, s{sT1}")
e(f"s_sub_u32 s{sT2}, s{sT2}, s{sT0}")
e(f"s_lshl_b32 s{sT2}, s{sT2}, 2")
for th, inc, cmp in ((CTH[0], -1, "lt"), (CTH[1], 1, "gt"), (CTH[2], 1, "gt")):
    e(f"s_mul_i32 s{sT0}, s{sT1}, {th - a.cbias}")
    e(f"s_cmp_{cmp}_i32 s{sT2}, s{sT0}")
    e(f"s_cselect_b32 s{sT0}, {inc}, 0")
    e(f"s_add_u32 s{sT3}, s{sT3}, s{sT0}")
e(f"s_max_i32 s{sT3}, s{sT3}, -1")
e(f"s_min_i32 s{sT3}, s{sT3}, 2")
e(f"v_mov_b32 v{vT2}, s{sT3}")
e(f"ds_write_b32 v{vFW}, v{vT2}")
e("s_branch L_g_next")

lab("L_fin")
if a.amp:
    if a.amp == "end":
        e(f"s_sub_u32 s{sT0}, s{sW}, 1")
        e(f"s_cmp_gt_u32 s{sT0}, 1")
    else:
        e(f"s_cmp_lg_u32 s{sW}, 0")
    e("s_cbranch_scc1 L_end")
    if a.ampwg >= 0:
        e(f"s_cmp_lg_u32 s2, {a.ampwg}")
        e("s_cbranch_scc1 L_end")
    e("s_waitcnt vmcnt(0) lgkmcnt(0)")
    if a.amp[:2] != "t0":
        e(f"s_memrealtime s[{sST+2}:{sST+3}]")
        e("s_waitcnt lgkmcnt(0)")
    e(f"s_sub_u32 s{sT1}, s{sST+2}, s{sST}")
    if a.amp[:2] != "t0": e(f"s_sub_u32 s{sT1}, s{sT1}, 2700")
    e(f"s_max_i32 s{sT1}, s{sT1}, 0")
    e(f"s_min_i32 s{sT1}, s{sT1}, 2000")
    e(f"s_mul_i32 s{sT1}, s{sT1}, 10")
    e(f"s_add_u32 s{sT1}, s{sT1}, 3500")
    lab("L_ampw")
    e("s_sleep 2")
    e(f"s_memrealtime s[{sST+2}:{sST+3}]")
    e("s_waitcnt lgkmcnt(0)")
    e(f"s_sub_u32 s{sT0}, s{sST+2}, s{sST}")
    e(f"s_cmp_lt_u32 s{sT0}, s{sT1}")
    e("s_cbranch_scc1 L_ampw")
if "prog2" in DBG or "prog3" in DBG:
    e(f"s_cmp_lg_u32 s{sW}, {5 if 'prog2' in DBG else 0}")
    e("s_cbranch_scc1 L_np2")
    e(f"s_lshl_b32 s{sT0}, s2, 8")
    e(f"s_add_u32 s{sT0}, s{sT0}, 0x400000")
    e(f"v_lshl_add_u32 v51, v{vLANE}, 2, s{sT0}")
    e(f"global_store_dword v51, v50, s[{sWS}:{sWS+1}]")
    lab("L_np2")
if a.stamps:
    e(f"s_cmp_gt_u32 s{sW}, 2")
    e("s_cbranch_scc1 L_end")
    e("s_mov_b64 exec, -1")
    e("s_waitcnt vmcnt(0) lgkmcnt(0)")
    stamp(3)
    e(f"s_getreg_b32 s{sT0}, hwreg(HW_REG_XCC_ID)")
    e("s_waitcnt lgkmcnt(0)")
    for i in range(8):
        e(f"v_mov_b32 v{64+i}, s{sST+i}")
    e(f"v_mov_b32 v72, s{sT0}")
    e(f"s_sub_u32 s{sT1}, {SPIN}, s{sSPIN}")
    e(f"v_mov_b32 v73, s{sT1}")
    e(f"v_mov_b32 v74, s{sT}")
    e(f"v_mov_b32 v75, 0")
    e(f"s_mul_i32 s{sT0}, s2, {NW}")
    e(f"s_add_u32 s{sT0}, s{sT0}, s{sW}")
    e(f"s_lshl_b32 s{sT0}, s{sT0}, 6")
    e(f"v_mov_b32 v80, s{sT0}")
    e("s_mov_b64 exec, 1")
    e(f"global_store_dwordx4 v80, v[64:67], s[{sWS}:{sWS+1}]")
    e(f"global_store_dwordx4 v80, v[68:71], s[{sWS}:{sWS+1}] offset:16")
    e(f"global_store_dwordx4 v80, v[72:75], s[{sWS}:{sWS+1}] offset:32")
lab("L_end")
e("s_endpgm")
if a.wake:
    out.append(".p2align 8")
    lab("L_pad")
    out.append(f".fill {64 * a.wake}, 4, 0xbf810000")
out.append('.section .rodata,"a"')
out.append(".p2align 6")
out.append(f".amdhsa_kernel {NAME}_kernel")
out.append(f"  .amdhsa_next_free_vgpr {NV}")
out.append("  .amdhsa_next_free_sgpr 102")
out.append(f"  .amdhsa_accum_offset {NV}")
out.append("  .amdhsa_group_segment_fixed_size 0")
out.append("  .amdhsa_kernarg_size 64")
out.append("  .amdhsa_user_sgpr_count 2")
out.append("  .amdhsa_user_sgpr_kernarg_segment_ptr 1")
out.append("  .amdhsa_system_sgpr_workgroup_id_x 1")
out.append("  .amdhsa_float_denorm_mode_32 3")
out.append(".end_amdhsa_kernel")
open(a.o, "w").write("\n".join(out) + "\n")
```

```python
import sys, argparse
NAME = "standalone__paged_block_table_kv_pagedattention__sampling"
HEADER = open("cdna_kernels/" + NAME + ".s.ref").read().split("; Override")[0]

ap = argparse.ArgumentParser()
ap.add_argument("-o", default="/dev/stdout")
ap.add_argument("--map", default="plain")
ap.add_argument("--hrot", type=int, default=0)
ap.add_argument("--D", type=int, default=21)
ap.add_argument("--D0", type=int, default=26)
ap.add_argument("--NS", type=int, default=6)
ap.add_argument("--G", type=int, default=50)
ap.add_argument("--fnum", type=int, default=36)
ap.add_argument("--pollnum", type=int, default=53)
ap.add_argument("--psleep", type=int, default=12)
ap.add_argument("--UB", type=int, default=8)
ap.add_argument("--mfirst", type=int, default=1)
ap.add_argument("--cth", default="-2,2,5")
ap.add_argument("--cbias", type=int, default=7)
ap.add_argument("--cstart", type=int, default=8)
ap.add_argument("--cstop", type=int, default=4)
ap.add_argument("--cstep", type=int, default=3)
ap.add_argument("--xt", default="7,-8,7,-14,9,-2,8,-7")
ap.add_argument("--NUM", type=int, default=4)
ap.add_argument("--last", type=int, default=1)
ap.add_argument("--hold", default="")
ap.add_argument("--ost", default="")
ap.add_argument("--wb", type=int, default=0)
ap.add_argument("--skew", type=int, default=0)
ap.add_argument("--dv", default="-1,1,3")
ap.add_argument("--fpf", type=int, default=6)
ap.add_argument("--fld", default="sc1")
ap.add_argument("--opf", type=int, default=0)
ap.add_argument("--otouch", type=int, default=0)
ap.add_argument("--ospread", type=int, default=1)
ap.add_argument("--ofl", default="")
ap.add_argument("--DM", type=int, default=0)
ap.add_argument("--NE", type=int, default=3)
ap.add_argument("--amp", default="")
ap.add_argument("--ampwg", type=int, default=-1)
ap.add_argument("--tlb", default="")
ap.add_argument("--tlbs", type=int, default=21)
ap.add_argument("--wake", type=int, default=0)
ap.add_argument("--spec", type=int, default=1)
ap.add_argument("--nosort", action="store_true")
ap.add_argument("--nopair", action="store_true")
ap.add_argument("--limf", default="0x43800000")
ap.add_argument("--dbg", default="")
ap.add_argument("--stamps", action="store_true")
a = ap.parse_args()
NT = " nt"
OST = "" if not a.ost else " " + a.ost.replace("+", " ")
DBG = set(a.dbg.split(","))
D, D0, NS, G = a.D, a.D0, a.NS, a.G
assert 24 <= D0 <= 32 and (D - 2) // 8 == (D + 1) // 8 == 2 and 32 <= G < 64
CTH = [int(x) for x in a.cth.split(",")]
XT = [int(x) for x in a.xt.split(",")]
DV = [int(x) for x in a.dv.split(",")]
assert 17 <= D + DV[0] and D + DV[2] <= 24
DIVM = {5: (205, 10), 6: (43, 8), 7: (147, 10), 8: (1, 3), 10: (205, 11), 12: (171, 11)}[NS]
assert all((u * DIVM[0]) >> DIVM[1] == u // NS for u in range(129))
NW = 6
KBYTES = 4100 * 32768
SPIN = 1 << 22
NUM = a.NUM

RING = NS * 8192
PST = RING
MB = PST + G * 2048
MBS = 4224
CTRL = MB + 2 * MBS
FREE = CTRL + 512
REC0 = FREE + 128
DEPW = REC0 + 16
SL = FREE + 256
CNT = SL + 768
LA = CNT + 512
LB = LA + 512
KEYS = LB + 512
LDS = KEYS + 256
assert LDS <= 163840, LDS
WS0 = 0x100000 if a.stamps else 0
WSA = WS0 + 0x40000

out = []
def e(s): out.append("    " + s)
def lab(s): out.append(s + ":")
def c(s): out.append("    ; " + s)

sQ, sK, sV, sBT, sCL, sOUT, sDBG, sWS = 4, 6, 8, 10, 12, 14, 16, 18
sRD = 20
sB, sH, sW, sCLV = 28, 29, 30, 31
sT0, sT1, sT2, sT3 = 32, 33, 34, 35
sPC = 36
sSPIN = 38
sNB, sNTL, sNU, sT = 39, 40, 41, 42
sST = 64
sE = 72
sB0, sB1, sFL, sPM, sSLOT, sU, sTA0 = 46, 47, 48, 49, 52, 56, 57
sM = 46
sCI, sLND, sMBF, sNEED, sMRG, sMT, sROLE, sQO, sPLN, sSB = 48, 49, 50, 51, 52, 56, 57, 58, 59, 60
sV0 = 61
sCST = 62
sTN, sNK, sFWN, sFB, sPRE, sREDO, sLIMF, sPO = 96, 97, 98, 99, 100, 101, 53, 43
sMALL, sRS = 24, 26
sOFF, sTB0, sTB1, sTTC, sFIRST = 20, 21, 22, 23, 44
sZQ = 54
sRK, sPB, sNP, sX, sTA, sTB, sF, sWB = 80, 81, 82, 83, 84, 85, 86, 87
sMA, sMBK = 88, 90
sLO, sHI, sLBASE = 92, 93, 94
sBO = 56
vLANE = 1
vT0, vT1, vT2, vT3, vT4, vT5 = 2, 3, 4, 5, 6, 7
vL = 8
vKOFF, vVOFF = 10, 14
vCA, vCNT, vFA, vR = 18, 19, 20, 21
vF = 22
vCUR = 24
vTR = 28
vTRK, vTRV = 36, 52
vEN = 44
vDP, vDA, vOOB, vSA = 46, 47, 48, 49
vKA0, vVA0, vXA = 8, 12, 16
vPA0, vPW = 20, 21
vM, vLS, vMN, vAL, vPA, vFW = 24, 25, 26, 27, 28, 29
vPL = 30
vQ = 32
vS = 48
vP = 56
vG, vPF, vFV, vN = 60, 61, 62, 63
vKF = 64
vVF = 96
vO = 128
vE = 160
vPN = 160
NV = 168

def stamp(i):
    if a.amp and (i == 0 or (i == 1 and a.amp == "t0")): e(f"s_memrealtime s[{sST+2*i}:{sST+2*i+1}]")
    if a.hold and i == 0: e(f"{'s_memrealtime' if a.hold[:2] == 'rt' else 's_memtime'} s[{sST}:{sST+1}]")
    if a.stamps: e(f"s_memrealtime s[{sST+2*i}:{sST+2*i+1}]")
def clamp_cl(zq=None):
    c("context length: <=0 -> every key masked => uniform weights over 2048 keys (zero Q); >2048 -> 2048")
    e(f"s_cmp_lt_i32 s{sCLV}, 1")
    if zq is not None: e(f"s_cselect_b32 s{zq}, 1, 0")
    e(f"s_cselect_b32 s{sCLV}, 2048, s{sCLV}")
    e(f"s_min_i32 s{sCLV}, s{sCLV}, 2048")
def derive_nb():
    e(f"s_add_u32 s{sNTL}, s{sNB}, 1")
    e(f"s_lshr_b32 s{sNTL}, s{sNTL}, 1")
    e(f"s_sub_u32 s{sNU}, s{sNTL}, 1")
    e(f"s_min_u32 s{sNU}, s{sNU}, {NUM}")
def derive_cl():
    e(f"s_add_u32 s{sNB}, s{sCLV}, 15")
    e(f"s_lshr_b32 s{sNB}, s{sNB}, 4")
    derive_nb()
def spin_tail(label, sleep=1):
    e(f"s_sleep {sleep}")
    e(f"s_sub_u32 s{sSPIN}, s{sSPIN}, 1")
    e(f"s_cbranch_scc0 {label}")
    e("s_endpgm")
FIN = "s_branch L_fin" if (a.stamps or a.amp) else "s_endpgm"

out.append(HEADER.rstrip())
out.append(f"; @launch grid=(256,1,1) block=({64*NW},1,1) lds={LDS}")
out.append('.amdgcn_target "amdgcn-amd-amdhsa--gfx950"')
out.append(".text")
out.append(f".globl {NAME}_kernel")
out.append(".p2align 8")
out.append(f".type {NAME}_kernel,@function")
lab(f"{NAME}_kernel")
e("s_load_dwordx16 s[4:19], s[0:1], 0")
e(f"s_lshr_b32 s{sB}, s2, 3")
e(f"s_cmp_ge_u32 s{sB}, 32")
e("s_cbranch_scc1 L_end")
stamp(0)
e(f"v_lshrrev_b32 v{vT0}, 6, v0")
e(f"v_and_b32 v{vLANE}, 63, v0")
e(f"v_readfirstlane_b32 s{sW}, v{vT0}")
c("wave 1 pulls this kernel's code into L2")
e(f"s_getpc_b64 s[{sPC}:{sPC+1}]")
lab("L_pc")
e(f"v_lshlrev_b32 v{vT2}, 7, v{vLANE}")
e(f"v_min_u32 v{vT2}, L_end - L_pc - 256, v{vT2}")
e(f"s_cmp_lg_u32 s{sW}, 1")
e("s_cbranch_scc1 L_nopf")
e(f"global_load_dword v{vPF}, v{vT2}, s[{sPC}:{sPC+1}] offset:256")
if a.wake:
    e(f"s_mul_i32 s{sT3}, s2, {a.wake}")
    e(f"v_and_b32 v{vT2}, {a.wake - 256}, v{vT2}")
    e(f"v_add_u32 v{vT2}, s{sT3}, v{vT2}")
    e(f"v_add_u32 v{vT2}, L_pad - L_pc, v{vT2}")
    e(f"global_load_dword v{vFV}, v{vT2}, s[{sPC}:{sPC+1}] nt")
lab("L_nopf")
c("clear the control words and the sort counters")
e(f"v_mov_b64 v[{vT2}:{vT3}], 0")
e(f"v_lshlrev_b32 v{vT4}, 3, v0")
e(f"v_add_u32 v{vT4}, {CTRL}, v{vT4}")
e(f"ds_write_b64 v{vT4}, v[{vT2}:{vT3}]")
if a.map == "rot":
    e(f"s_add_u32 s{sH}, s2, s{sB}")
    e(f"s_and_b32 s{sH}, s{sH}, 7")
elif a.hrot:
    e(f"s_add_u32 s{sH}, s2, {a.hrot}")
    e(f"s_and_b32 s{sH}, s{sH}, 7")
else:
    e(f"s_and_b32 s{sH}, s2, 7")
e(f"s_lshl3_add_u32 s{sT2}, s{sB}, s{sH}")
e(f"s_lshl_b32 s{sT2}, s{sT2}, 13")
e(f"v_lshl_add_u32 v{vT5}, v{vLANE}, 7, s{sT2}")
e(f"s_lshl_b32 s{sT0}, s{sB}, 9")
e(f"v_lshl_add_u32 v{vT2}, v{vLANE}, 3, s{sT0}")
if not a.spec: e(f"s_lshl_b32 s{sT1}, s{sB}, 2")
e(f"v_and_b32 v{vT0}, 31, v{vLANE}")
e(f"v_lshlrev_b32 v{vT3}, 2, v{vT0}")
vTL = 22
if a.tlb:
    e(f"v_min_u32 v{vTL}, {(2 << (21 - a.tlbs)) - 1}, v{vLANE}")
    e(f"v_lshl_add_u32 v{vTL}, v{vTL}, 5, s{sB}")
    e(f"s_mul_i32 s{sT3}, s2, {8064 >> (21 - a.tlbs) & ~127}")
    e(f"v_lshl_add_u32 v{vTL}, v{vTL}, {a.tlbs}, s{sT3}")
e(f"s_cmp_lg_u32 s{sW}, 2")
e("s_waitcnt lgkmcnt(0)")
e(f"s_load_dwordx8 s[{sE}:{sE+7}], s[{sBT}:{sBT+1}], s{sT0}")
if not a.spec: e(f"s_load_dword s{sCLV}, s[{sCL}:{sCL+1}], s{sT1}")
c("wave 2 touches the 64 lines of this workgroup's queries while memory is still idle")
e("s_cbranch_scc1 L_noq")
if "k" in a.tlb: e(f"global_load_dword v{vFV}, v{vTL}, s[{sK}:{sK+1}] nt")
e(f"global_load_dword v{vPF}, v{vT5}, s[{sQ}:{sQ+1}]")
lab("L_noq")
if a.opf:
    e(f"s_cmp_lg_u32 s{sW}, 4")
    e("s_cbranch_scc1 L_noo")
    e(f"global_load_dword v{vPF}, v{vT5}, s[{sOUT}:{sOUT+1}]")
    lab("L_noo")
e(f"global_load_dwordx2 v[{vL}:{vL+1}], v{vT2}, s[{sBT}:{sBT+1}]")
e(f"global_load_dword v{vN}, v{vT3}, s[{sCL}:{sCL+1}]")
lab("L_loads_issued")
if a.amp == "t0k": e(f"s_memrealtime s[{sST+2}:{sST+3}]")
e(f"s_cmp_lg_u32 s{sW}, 0")
e(f"s_mov_b32 s{sSPIN}, {SPIN}")
e("s_cbranch_scc1 L_notloader")

e("s_setprio 3")
c("per-lane source offsets of the LDS-DMA pieces (bank swizzle applied on the source side)")
e(f"v_lshrrev_b32 v{vR}, 4, v{vLANE}")
e(f"v_and_b32 v{vT1}, 15, v{vLANE}")
e(f"s_lshl_b32 s{sT0}, s{sH}, 8")
e(f"v_lshl_add_u32 v{vT4}, v{vR}, 11, s{sT0}")
e(f"v_xor_b32 v{vT2}, v{vR}, v{vT1}")
e(f"v_lshl_add_u32 v{vKOFF}, v{vT2}, 4, v{vT4}")
for j in range(1, 4):
    e(f"v_xor_b32 v{vT3}, {64*j}, v{vKOFF}")
    e(f"v_add_u32 v{vKOFF+j}, {7168*j}, v{vT3}")
e(f"s_mov_b32 s{sRD}, s{sK}")
e(f"s_and_b32 s{sRD+1}, s{sK+1}, 0xffff")
e(f"s_mov_b32 s{sRD+2}, {KBYTES}")
e(f"s_mov_b32 s{sRD+3}, 0x20000")
if a.amp == "t0c": e(f"s_memrealtime s[{sST+2}:{sST+3}]")
e("s_waitcnt lgkmcnt(0)")
if not a.spec: clamp_cl()
c("the first stream tiles are the leading logical tiles; requested before the context length is known")
NE = a.NE
for t in range(NE):
    if not a.spec:
        e(f"s_cmp_le_u32 s{sCLV}, {32*(t+1)}")
        e(f"s_cbranch_scc1 {'L_ld_b' if t < 2 else 'L_ld_pre'}")
    if t == 0: stamp(1)
    for j in range(8):
        i = 8 * t + j
        if j % 4 == 0:
            e(f"s_movk_i32 m0, {1024*i}")
            e(f"s_lshl_b32 s{sB0}, s{sE+i//4}, 15")
        if i >= D0: e(f"s_waitcnt vmcnt({D0-1})")
        e(f"buffer_load_dwordx4 v{vKOFF+j%4}, s[{sRD}:{sRD+3}], s{sB0} offen offset:{1024*(j%4)}{NT} lds")
    if t == 1:
        lab("L_ld_b")
        e("s_barrier")
lab("L_ld_pre")
j0 = (D - 1) % 8
e(f"v_lshlrev_b32 v{vT3}, 2, v{vR}")
e(f"v_xor_b32 v{vT3}, v{vT3}, v{vT1}")
e(f"v_lshl_add_u32 v{vVOFF}, v{vT3}, 4, v{vT4}")
for j in range(1, 4):
    e(f"v_add_u32 v{vVOFF+j}, {7168*j}, v{vVOFF}")
e(f"v_lshlrev_b32 v{vCA}, 3, v{vLANE}")
e(f"v_add_u32 v{vT0}, {SL}, v{vCA}")
e(f"v_add_u32 v{vCA}, {CTRL}, v{vCA}")
e(f"v_mov_b32 v{vFA}, {FREE}")
e(f"v_mov_b64 v[{vF}:{vF+1}], 0")
e(f"v_mov_b32 v{vDP}, {2 if NE == 3 else 0}")
e(f"v_mov_b32 v{vDA}, {DEPW}")
e(f"v_bfrev_b32 v{vOOB}, 1")
def set_pass(off):
    for j in range(0, 4, 2): e(f"v_mov_b64 v[{vCUR+j}:{vCUR+j+1}], v[{off+j}:{off+j+1}]")
set_pass(vKOFF)
if "prog3" in DBG: e("v_mov_b32 v50, 0")
e(f"s_mov_b32 s{sPM}, 4")
e(f"s_mov_b32 s{sTA0}, 0")
if a.spec:
    e(f"s_waitcnt vmcnt({8*NE})")
    e(f"v_readlane_b32 s{sCLV}, v{vN}, s{sB}")
    clamp_cl()
derive_cl()
c("the leading tiles enter the stream list straight from the table row")
e(f"s_min_u32 s{sT}, s{sNU}, {NE}")
e(f"s_lshl3_add_u32 s{sT0}, s{sT}, {SL}")
e(f"v_mov_b32 v{vSA}, s{sT0}")
e(f"s_sub_u32 s{sT0}, s{sT}, 3")
e(f"v_mov_b32 v{vCNT}, s{sT0}")
e(f"s_bfm_b64 s[{sT2}:{sT2+1}], s{sNU}, 0")
e(f"s_cmp_ge_u32 s{sNU}, {NE}")
e("s_cbranch_scc1 L_ld_row")
e("s_waitcnt vmcnt(0)")
lab("L_ld_row")
if not (a.spec and NE == 3): e("s_waitcnt vmcnt(24)")
if NE == 4: e(f"ds_write_b32 v{vCA}, v{vCNT}")
e(f"v_lshl_or_b32 v{vEN}, v{vL}, 15, 1")
e(f"v_lshlrev_b32 v{vEN+1}, 15, v{vL+1}")
e(f"s_mov_b64 exec, s[{sT2}:{sT2+1}]")
e(f"ds_write_b64 v{vT0}, v[{vEN}:{vEN+1}]")
e("s_mov_b64 exec, -1")
e(f"ds_read_b64 v[{vEN}:{vEN+1}], v{vSA}")
e(f"s_lshl_b32 s{sSLOT}, s{sT}, 13")
e(f"s_mov_b32 s{sU}, s{sT}")
c("lanes of the last logical tile whose rows lie inside the context")
e(f"s_lshl_b32 s{sT0}, s{sNTL}, 5")
e(f"s_sub_u32 s{sT0}, s{sCLV}, s{sT0}")
e(f"s_add_u32 s{sT0}, s{sT0}, 32")
e(f"v_sub_u32 v{vT1}, s{sT0}, v{vR}")
for k in range(8):
    e(f"v_cmp_lt_i32 s[{80+2*k}:{81+2*k}], {4*k}, v{vT1}")
if a.amp == "t0r": e(f"s_memrealtime s[{sST+2}:{sST+3}]")
if a.amp[:3] == "t0l":
    e(f"s_waitcnt vmcnt({int(a.amp[3:])})")
    e(f"s_memrealtime s[{sST+2}:{sST+3}]")
stamp(2)
def unit_body(depth, trimmed=False):
    for j in range(8):
        if j % 4 == 0: e(f"s_add_u32 m0, s{sSLOT}, {1024*j}")
        e(f"s_waitcnt vmcnt({depth-1})")
        e(f"buffer_load_dwordx4 v{vTR+j if trimmed else vCUR+j%4}, s[{sRD}:{sRD+3}], s{sB0 + j//4} offen offset:{1024*(j%4)}{NT} lds")
        if j == (depth - 1) % 8:
            e(f"v_add_u32 v{vCNT}, 1, v{vCNT}")
            e(f"ds_write_b32 v{vCA}, v{vCNT}")
        if j == 0:
            e(f"s_add_u32 s{sT2}, s{sSLOT}, 8192")
            e(f"s_cmp_eq_u32 s{sT2}, {RING}")
            e(f"s_cselect_b32 s{sT2}, 0, s{sT2}")
            e(f"s_lshr_b32 s{sT0}, s{sT2}, 10")
            e(f"s_add_u32 s{sT0}, s{sT0}, {FREE}")
            e(f"v_mov_b32 v{vFA}, s{sT0}")
        if j == 1:
            e(f"s_add_u32 s{sT}, s{sT}, 1")
            e(f"s_and_b32 s{sT0}, s{sFL}, s{sPM}")
            e(f"s_cselect_b32 s{sT}, s{sTA0}, s{sT}")
            e(f"s_lshl3_add_u32 s{sT0}, s{sT}, {SL}")
            e(f"v_mov_b32 v{vSA}, s{sT0}")
            e(f"s_add_u32 s{sU}, s{sU}, 1")
        if j == a.fpf:
            c("prefetch the next list entry, the FREE words of the next slot and the depth code")
            e(f"ds_read_b64 v[{vEN}:{vEN+1}], v{vSA}")
            e(f"ds_read_b64 v[{vF}:{vF+1}], v{vFA}")
            e(f"ds_read_b32 v{vDP}, v{vDA}")
            e(f"s_mov_b32 s{sSLOT}, s{sT2}")
out.append(".p2align 3")
lab("L_ld")
if "prog3" in DBG:
    e(f"s_memrealtime s[{sST+4}:{sST+5}]")
    e(f"s_min_u32 m0, s{sU}, 63")
e("s_waitcnt lgkmcnt(0)")
if "prog3" in DBG: e(f"v_writelane_b32 v50, s{sST+4}, m0")
e(f"v_min_i32 v{vT0}, v{vF}, v{vF+1}")
e(f"v_readfirstlane_b32 s{sFL}, v{vEN}")
e(f"v_readfirstlane_b32 s{sB1}, v{vEN+1}")
e(f"v_readfirstlane_b32 s{sT0}, v{vT0}")
e(f"v_readfirstlane_b32 s{sT3}, v{vDP}")
e(f"s_sub_u32 s{sT1}, s{sU}, {NS-1}")
e(f"s_cmp_ge_i32 s{sT0}, s{sT1}")
e(f"s_cselect_b32 s{sT0}, s{sFL}, 0")
e(f"s_and_b32 s{sB0}, s{sFL}, -16")
e(f"s_and_b32 s{sT0}, s{sT0}, 3")
e(f"s_cmp_lg_u32 s{sT0}, 1")
e("s_cbranch_scc1 L_ld_odd")
e(f"s_cmp_lg_u32 s{sT3}, 0")
e("s_cbranch_scc1 L_ld_var")
unit_body(D)
lab("L_ld_next")
e(f"s_bitcmp1_b32 s{sFL}, 2")
e("s_cbranch_scc0 L_ld")
c("last tile of the batch: change pass")
e(f"s_xor_b32 s{sPM}, s{sPM}, 4")
e("s_cbranch_scc1 L_ld_tok")
e(f"s_mov_b32 s{sRD}, s{sV}")
e(f"s_and_b32 s{sRD+1}, s{sV+1}, 0xffff")
set_pass(vVOFF)
e("s_branch L_ld")
lab("L_ld_tok")
e(f"s_bitcmp1_b32 s{sFL}, 3")
e("s_cbranch_scc0 L_ld_more")
for r in (16, 8, 0):
    e(f"v_add_u32 v{vCNT}, 1, v{vCNT}")
    e(f"s_waitcnt vmcnt({r})")
    e(f"ds_write_b32 v{vCA}, v{vCNT}")
if a.hold:
    lab("L_hold")
    e(f"{'s_memrealtime' if a.hold[:2] == 'rt' else 's_memtime'} s[{sST+2}:{sST+3}]")
    e("s_waitcnt lgkmcnt(0)")
    e(f"s_sub_u32 s{sT0}, s{sST+2}, s{sST}")
    e(f"s_cmp_lt_u32 s{sT0}, {a.hold[3:]}")
    e("s_cbranch_scc1 L_hold")
e(FIN)
lab("L_ld_more")
e(f"s_mov_b32 s{sTA0}, s{sT}")
e(f"s_mov_b32 s{sRD}, s{sK}")
e(f"s_and_b32 s{sRD+1}, s{sK+1}, 0xffff")
set_pass(vKOFF)
e("s_branch L_ld")
lab("L_ld_odd")
e(f"s_cmp_eq_u32 s{sT0}, 3")
e("s_cbranch_scc1 L_ld_m")
c("slot not free yet or entry not written yet")
e(f"ds_read_b64 v[{vEN}:{vEN+1}], v{vSA}")
e(f"ds_read_b64 v[{vF}:{vF+1}], v{vFA}")
e(f"s_sub_u32 s{sSPIN}, s{sSPIN}, 1")
e("s_cbranch_scc0 L_ld")
e("s_endpgm")
lab("L_ld_m")
c("the last logical tile: rows past the context are not fetched (their lanes read zeros)")
for k in range(8):
    e(f"v_cndmask_b32 v{vTR+k}, v{vOOB}, v{vCUR+k%4}, s[{80+2*k}:{81+2*k}]")
unit_body(D + a.DM, True)
e("s_branch L_ld_next")
lab("L_ld_var")
e(f"s_cmp_eq_u32 s{sT3}, 1")
e("s_cbranch_scc1 L_ld_v2")
e(f"s_cmp_eq_u32 s{sT3}, 2")
e("s_cbranch_scc1 L_ld_v3")
unit_body(D + DV[0])
e("s_branch L_ld_next")
lab("L_ld_v2")
unit_body(D + DV[1])
e("s_branch L_ld_next")
lab("L_ld_v3")
unit_body(D + DV[2])
e("s_branch L_ld_next")

lab("L_notloader")
e(f"s_cmp_ge_u32 s{sW}, 3")
e("s_cbranch_scc1 L_planner")
e(f"s_sub_u32 s{sCI}, s{sW}, 1")
def rows_off(sb):
    e(f"s_lshl3_add_u32 s{sQO}, s{sb}, s{sH}")
    e(f"s_lshl1_add_u32 s{sQO}, s{sQO}, s{sCI}")
    e(f"s_lshl_b32 s{sQO}, s{sQO}, 12")
    e(f"v_and_b32 v{vT0}, 15, v{vLANE}")
    e(f"v_lshrrev_b32 v{vG}, 4, v{vLANE}")
def load_q(sb):
    rows_off(sb)
    e(f"v_lshl_add_u32 v{vT4}, v{vT0}, 8, s{sQO}")
    e(f"v_lshl_add_u32 v{vT4}, v{vG}, 4, v{vT4}")
    for s in range(4):
        e(f"global_load_dwordx4 v[{vQ+4*s}:{vQ+4*s+3}], v{vT4}, s[{sQ}:{sQ+1}] offset:{64*s}")
load_q(sB)
e("s_barrier")
e(f"s_mov_b32 s{sROLE}, 0")
e(f"s_mov_b32 s{sPLN}, 0")
e(f"s_mov_b32 s{sMRG}, 0")
if a.spec:
    e("s_waitcnt vmcnt(4) lgkmcnt(0)")
    e(f"v_readlane_b32 s{sCLV}, v{vN}, s{sB}")
else: e("s_waitcnt lgkmcnt(0)")
clamp_cl(zq=sT3)
derive_cl()
c("valid keys of the last logical tile")
e(f"s_lshl_b32 s{sV0}, s{sNTL}, 5")
e(f"s_sub_u32 s{sV0}, s{sCLV}, s{sV0}")
e(f"s_add_u32 s{sV0}, s{sV0}, 32")
e(f"s_bfm_b64 s[{sM}:{sM+1}], s{sNU}, 0")
lab("L_csetup")
e(f"s_mov_b32 s{sMT}, 0")
e(f"s_mov_b32 s{sOFF}, 0")
e(f"s_mov_b32 s{sTB0}, 0")
e(f"s_mov_b32 s{sFIRST}, 1")
e(f"s_mov_b64 s[{sRS}:{sRS+1}], 0")
e("s_waitcnt vmcnt(4)")
e(f"v_and_b32 v{vT0}, 15, v{vLANE}")
e(f"v_xor_b32 v{vT1}, v{vG}, v{vT0}")
e(f"v_lshlrev_b32 v{vT2}, 8, v{vT0}")
e(f"v_lshl_add_u32 v{vKA0}, v{vT1}, 4, v{vT2}")
for s in range(1, 4):
    e(f"v_xor_b32 v{vKA0+s}, {64*s}, v{vKA0}")
e(f"v_bfe_u32 v{vT0}, v{vLANE}, 2, 2")
e(f"v_lshl_add_u32 v{vT1}, v{vG}, 2, v{vT0}")
e(f"v_lshlrev_b32 v{vT1}, 8, v{vT1}")
e(f"v_and_b32 v{vT2}, 3, v{vLANE}")
e(f"v_lshl_add_u32 v{vT1}, v{vT2}, 4, v{vT1}")
e(f"v_lshl_add_u32 v{vVA0}, v{vT0}, 6, v{vT1}")
for j in range(1, 4):
    e(f"v_xor_b32 v{vVA0+j}, {64*j}, v{vVA0}")
e(f"s_lshl_b32 s{sT0}, s{sCI}, 10")
e(f"s_add_u32 s{sT0}, s{sT0}, {PST}")
e(f"v_lshl_add_u32 v{vPA0}, v{vLANE}, 4, s{sT0}")
e(f"s_lshl_b32 s{sT0}, s{sW}, 3")
e(f"s_add_u32 s{sT0}, s{sT0}, {CTRL-8}")
e(f"v_mov_b32 v{vPA}, s{sT0}")
e(f"v_mov_b32 v{vM}, 0xff800000")
e(f"v_mov_b32 v{vLS}, 0")
for r in range(0, 32, 2): e(f"v_mov_b64 v[{vO+r}:{vO+r+1}], 0")
e(f"s_mov_b32 s{sCST}, 0x3e0293ee")
e(f"s_mov_b32 s{sCST+1}, 0x3e0293ee")
e(f"s_mov_b32 s{sLIMF}, {a.limf}")
e(f"s_lshl2_add_u32 s{sFB}, s{sCI}, {FREE}")
e("s_waitcnt vmcnt(0)")
e(f"s_cmp_eq_u32 s{sT3}, 0")
e("s_cbranch_scc1 L_k_first")
for r in range(0, 16, 2): e(f"v_mov_b64 v[{vQ+r}:{vQ+r+1}], 0")

def poll(label):
    lab(label)
    e(f"ds_read_b64 v[{vPL}:{vPL+1}], v{vPA}")
    e(f"s_sub_u32 s{sSPIN}, s{sSPIN}, 1")
    e("s_cbranch_scc1 L_end")
    e("s_waitcnt lgkmcnt(0)")
    e(f"v_readfirstlane_b32 s{sLND}, v{vPL}")
    e(f"s_cmp_ge_i32 s{sLND}, s{sNK}")
    e(f"s_cbranch_scc0 {label}")
VR = []
for j in range(4):
    for ee in range(2):
        for blk in range(2):
            r = vVF + (2 * j + ee) * 4 + 2 * blk
            VR.append(f"ds_read_b64_tr_b16 v[{r}:{r+1}], v{vXA+j} offset:{8*ee + 4096*blk}")
KR, QK = [], []
for blk in range(2):
    for st in range(4):
        r = vKF + (blk * 4 + st) * 4
        KR.append(f"ds_read_b128 v[{r}:{r+3}], v{vXA+st} offset:{4096*blk}")
        cc = "0" if st == 0 else f"v[{vS+4*blk}:{vS+4*blk+3}]"
        QK.append(f"v_mfma_f32_16x16x32_bf16 v[{vS+4*blk}:{vS+4*blk+3}], v[{r}:{r+3}], v[{vQ+4*st}:{vQ+4*st+3}], {cc}")
PV = [f"v_mfma_f32_16x16x32_bf16 v[{vO+4*dt}:{vO+4*dt+3}], v[{vVF+4*dt}:{vVF+4*dt+3}], v[{vP}:{vP+3}], v[{vO+4*dt}:{vO+4*dt+3}]" for dt in range(8)]
NX = [f"s_ff1_i32_b64 s{sTN}, s[{sM}:{sM+1}]",
      f"s_bitset0_b64 s[{sM}:{sM+1}], s{sTN}",
      f"s_add_u32 s{sT1}, s{sTN}, s{sOFF}",
      f"s_mul_i32 s{sT0}, s{sT1}, {DIVM[0]}",
      f"s_lshr_b32 s{sT0}, s{sT0}, {DIVM[1]}",
      f"s_mul_i32 s{sT0}, s{sT0}, {NS}",
      f"s_sub_u32 s{sT0}, s{sT1}, s{sT0}",
      f"s_lshl_b32 s{sSB}, s{sT0}, 13",
      f"s_lshl3_add_u32 s{sFWN}, s{sT0}, s{sFB}",
      f"s_and_b32 s{sT0}, s{sTN}, 0x40000000",
      f"s_add_u32 s{sNK}, s{sT1}, 1",
      f"s_or_b32 s{sNK}, s{sNK}, s{sT0}",
      f"s_sub_u32 s{sPO}, s{sTN}, s{sTB0}",
      f"s_lshl_b32 s{sPO}, s{sPO}, 11"]
KA = [f"v_add_u32 v{vXA+i}, s{sSB}, v{vKA0+i}" for i in range(4)]
VA = [f"v_add_u32 v{vXA+i}, s{sSB}, v{vVA0+i}" for i in range(4)]
ADV = [f"v_mov_b32 v{vFW}, s{sFWN}",
       f"v_mov_b32 v{vFV}, s{sNK}",
       f"v_add_u32 v{vPW}, s{sPO}, v{vPA0}",
       f"s_add_u32 s{sT}, s{sTN}, 1"]
def scale_o(reg):
    for r in range(0, 32, 2):
        sel = "op_sel:[0,1] op_sel_hi:[1,1]" if reg & 1 else "op_sel_hi:[1,0]"
        p = reg & ~1
        e(f"v_pk_mul_f32 v[{vO+r}:{vO+r+1}], v[{vO+r}:{vO+r+1}], v[{p}:{p+1}] {sel}")

lab("L_k_first")
for x in NX + KA + ADV: e(x)
lab("L_k_next")
e(f"s_cmp_lt_i32 s{sTN}, 0")
e("s_cbranch_scc1 L_k_empty")
poll("L_k_poll")
for x in KR: e(x)
e("s_waitcnt lgkmcnt(0)")
out.append(".p2align 3")
lab("L_k_top")
e("s_waitcnt lgkmcnt(1)")
e(f"ds_write_b32 v{vFW}, v{vFV}")
e(f"ds_read_b64 v[{vPL}:{vPL+1}], v{vPA}")
fill = NX + KA
for i in range(8):
    e(QK[i])
    for x in fill[2*i:2*i+2]: e(x)
for x in fill[16:]: e(x)
e(f"s_mov_b32 s{sREDO}, 0")
e("s_waitcnt lgkmcnt(0)")
e(f"v_readfirstlane_b32 s{sLND}, v{vPL}")
e(f"s_cmp_ge_i32 s{sLND}, s{sNK}")
e(f"s_cselect_b32 s{sPRE}, 1, 0")
e("s_cbranch_scc0 L_k_nopre")
for x in KR: e(x)
lab("L_k_nopre")
e(f"s_cmp_eq_u32 s{sT}, s{sMT}")
e("s_cbranch_scc1 L_k_mask")
lab("L_k_exp")
for hb in range(2):
    for r in (4*hb, 4*hb+2):
        e(f"v_pk_fma_f32 v[{vE+r}:{vE+r+1}], v[{vS+r}:{vS+r+1}], s[{sCST}:{sCST+1}], v[{vM}:{vM+1}] op_sel_hi:[1,1,0] neg_lo:[0,0,1] neg_hi:[0,0,1]")
    for r in range(4*hb, 4*hb+4):
        e(f"v_exp_f32 v{vE+r}, v{vE+r}")
e(f"v_pk_add_f32 v[{vT0}:{vT1}], v[{vE}:{vE+1}], v[{vE+2}:{vE+3}]")
e(f"v_pk_add_f32 v[{vT2}:{vT3}], v[{vE+4}:{vE+5}], v[{vE+6}:{vE+7}]")
e(f"v_cvt_pk_bf16_f32 v{vP}, v{vE}, v{vE+1}")
e(f"v_pk_add_f32 v[{vT0}:{vT1}], v[{vT0}:{vT1}], v[{vT2}:{vT3}]")
e(f"v_cvt_pk_bf16_f32 v{vP+1}, v{vE+2}, v{vE+3}")
e(f"v_add_f32 v{vT0}, v{vT0}, v{vT1}")
c("the kept reference max is safe only while every weight stays <= 256; otherwise take the true max")
e(f"v_cmp_nge_f32 vcc, s{sLIMF}, v{vT0}")
e(f"v_cvt_pk_bf16_f32 v{vP+2}, v{vE+4}, v{vE+5}")
e(f"v_cvt_pk_bf16_f32 v{vP+3}, v{vE+6}, v{vE+7}")
e(ADV[0]); e(ADV[1])
e("s_nop 0")
e("s_cbranch_vccnz L_k_slow")
lab("L_k_done")
e(f"ds_write_b128 v{vPW}, v[{vP}:{vP+3}]")
e(f"v_add_f32 v{vLS}, v{vLS}, v{vT0}")
e(ADV[3])
e(f"s_cmp_lg_u32 s{sPRE}, 0")
e(ADV[2])
e("s_cbranch_scc1 L_k_top")
e("s_branch L_k_next")

lab("L_k_mask")
e(f"v_lshlrev_b32 v{vT0}, 2, v{vG}")
e(f"v_sub_u32 v{vT0}, s{sV0}, v{vT0}")
e(f"v_mov_b32 v{vT1}, 0xff800000")
for r in range(8):
    e(f"v_cmp_lt_i32 s[{80+2*r}:{81+2*r}], {16*(r//4)+r%4}, v{vT0}")
for r in range(8):
    e(f"v_cndmask_b32 v{vS+r}, v{vT1}, v{vS+r}, s[{80+2*r}:{81+2*r}]")
e("s_branch L_k_exp")

def alpha_addr():
    e(f"s_lshl_b32 s{sT0}, s2, 6")
    e(f"s_add_u32 s{sT0}, s{sT0}, s{sT}")
    e(f"s_lshl1_add_u32 s{sT0}, s{sT0}, s{sCI}")
    e(f"s_lshl_b32 s{sT0}, s{sT0}, 6")
    e(f"s_add_u32 s{sT0}, s{sT0}, {WSA}")
    e(f"v_and_b32 v{vT1}, 15, v{vLANE}")
    e(f"v_lshl_add_u32 v{vT1}, v{vT1}, 2, s{sT0}")
c("raise the reference to the true running max; the accumulator is rescaled when pass 2 reaches this tile")
lab("L_k_slow")
e(f"s_cmp_lg_u32 s{sREDO}, 0")
e("s_cbranch_scc1 L_k_done")
e(f"s_mov_b32 s{sREDO}, 1")
e(f"v_max3_f32 v{vT0}, v{vS}, v{vS+1}, v{vS+2}")
e(f"v_max3_f32 v{vT1}, v{vS+3}, v{vS+4}, v{vS+5}")
e(f"v_max3_f32 v{vT0}, v{vT0}, v{vS+6}, v{vS+7}")
e(f"v_max_f32 v{vT0}, v{vT0}, v{vT1}")
e(f"v_mov_b32 v{vT1}, v{vT0}")
e("s_nop 1")
e(f"v_permlane32_swap_b32 v{vT0}, v{vT1}")
e("s_nop 0")
e(f"v_max_f32 v{vT0}, v{vT0}, v{vT1}")
e(f"v_mov_b32 v{vT1}, v{vT0}")
e("s_nop 1")
e(f"v_permlane16_swap_b32 v{vT0}, v{vT1}")
e("s_nop 0")
e(f"v_max_f32 v{vT0}, v{vT0}, v{vT1}")
e(f"v_mul_f32 v{vT0}, s{sCST}, v{vT0}")
e(f"v_max_f32 v{vMN}, v{vM}, v{vT0}")
e(f"v_sub_f32 v{vAL}, v{vM}, v{vMN}")
e(f"v_exp_f32 v{vAL}, v{vAL}")
e(f"v_mov_b32 v{vM}, v{vMN}")
e(f"s_cmp_lg_u32 s{sFIRST}, 0")
e(f"s_mov_b32 s{sFIRST}, 0")
e(f"v_mul_f32 v{vLS}, v{vLS}, v{vAL}")
e("s_cbranch_scc1 L_k_exp")
alpha_addr()
e(f"global_store_dword v{vT1}, v{vAL}, s[{sWS}:{sWS+1}]")
e(f"s_sub_u32 s{sT0}, s{sT}, 1")
e(f"s_bitset1_b64 s[{sRS}:{sRS+1}], s{sT0}")
e("s_branch L_k_exp")

RLO, RHI = 0xffffffff, (1 << (G - 32)) - 1
lab("L_k_noplan")
e(f"s_mov_b32 s{sPLN}, 1")
e(f"v_mov_b32 v{vT1}, {REC0}")
lab("L_k_plan")
e(f"ds_read_b128 v[{vT2}:{vT5}], v{vT1}")
e("s_waitcnt lgkmcnt(0)")
e(f"v_readfirstlane_b32 s{sT0}, v{vT5}")
e(f"v_readfirstlane_b32 s{sM}, v{vT2}")
e(f"v_readfirstlane_b32 s{sM+1}, v{vT3}")
e(f"v_readfirstlane_b32 s{sTTC}, v{vT4}")
e(f"s_cmp_lg_u32 s{sT0}, 0")
e("s_cbranch_scc1 L_k_got")
spin_tail("L_k_plan")
lab("L_k_got")
e(f"s_lshr_b32 s{sMT}, s{sT0}, 8")
e(f"s_add_u32 s{sMT}, s{sMT}, 1")
e(f"s_and_b32 s{sMRG}, s{sTTC}, {0 if 'nomerge' in DBG else 1}")
e(f"s_lshr_b32 s{sTTC}, s{sTTC}, 8")
e(f"s_min_u32 s{sTB1}, s{sTTC}, {G}")
e(f"s_bfm_b64 s[{sMALL}:{sMALL+1}], s{sNU}, 0")
e(f"s_or_b64 s[{sMALL}:{sMALL+1}], s[{sMALL}:{sMALL+1}], s[{sM}:{sM+1}]")
e(f"s_and_b32 s{sM+1}, s{sM+1}, {RHI:#x}")
e("s_branch L_k_first")
lab("L_v_more")
c("second batch")
e(f"s_mov_b32 s{sTB0}, s{sTB1}")
e(f"s_mov_b32 s{sTB1}, s{sTTC}")
e(f"s_mov_b32 s{sOFF}, s{sTB0}")
e(f"s_mov_b32 s{sMALL}, 0")
e(f"s_andn2_b32 s{sMALL+1}, s{sMALL+1}, {RHI:#x}")
e(f"s_mov_b64 s[{sM}:{sM+1}], s[{sMALL}:{sMALL+1}]")
e("s_branch L_k_first")
lab("L_k_empty")
e(f"s_cmp_eq_u32 s{sPLN}, 0")
e("s_cbranch_scc1 L_k_noplan")
e(f"s_mov_b32 s{sOFF}, s{sTB1}")
e(f"s_mov_b32 s{sM}, s{sMALL}")
e(f"s_and_b32 s{sM+1}, s{sMALL+1}, {RHI:#x}")
e(f"s_cmp_eq_u32 s{sTB0}, 0")
e(f"s_cselect_b32 s{sM+1}, s{sM+1}, s{sMALL+1}")
for x in NX + VA: e(x)
e(f"ds_read_b64 v[{vPL}:{vPL+1}], v{vPA}")
e(f"s_cmp_lt_i32 s{sTN}, 0")
e("s_cbranch_scc1 L_v_empty")
lab("L_v_next")
for x in ADV: e(x)
if a.last:
    e(f"s_cmp_eq_u64 s[{sM}:{sM+1}], 0")
    e("s_cbranch_scc1 L_v_islast")
lab("L_v_next2")
e(f"ds_read_b128 v[{vPN}:{vPN+3}], v{vPW}")
e("s_waitcnt lgkmcnt(1)")
e(f"v_readfirstlane_b32 s{sLND}, v{vPL}")
e(f"s_cmp_ge_i32 s{sLND}, s{sNK}")
e("s_cbranch_scc1 L_v_rd")
poll("L_v_poll")
lab("L_v_rd")
for x in VR: e(x)
out.append(".p2align 3")
lab("L_v_top")
for x in NX + VA: e(x)
e(f"s_sub_u32 s{sT0}, s{sT}, 1")
e(f"s_bitcmp1_b64 s[{sRS}:{sRS+1}], s{sT0}")
e("s_cbranch_scc1 L_v_resc")
lab("L_v_top2")
e("s_waitcnt lgkmcnt(14)")
e(f"v_readfirstlane_b32 s{sMBF}, v{vPL+1}")
e(f"v_readfirstlane_b32 s{sLND}, v{vPL}")
e(f"v_mov_b64 v[{vP}:{vP+1}], v[{vPN}:{vPN+1}]")
e(f"v_mov_b64 v[{vP+2}:{vP+3}], v[{vPN+2}:{vPN+3}]")
e(f"s_and_b32 s{sT0}, s{sMBF}, s{sMRG}")
e("s_cbranch_scc1 L_v_merge")
lab("L_v_top3")
e(f"s_cmp_ge_i32 s{sLND}, s{sNK}")
e("s_cbranch_scc0 L_v_pv")
e(ADV[2])
e("s_waitcnt lgkmcnt(0)")
e(f"ds_write_b32 v{vFW}, v{vFV}")
e(f"ds_read_b64 v[{vPL}:{vPL+1}], v{vPA}")
e(f"ds_read_b128 v[{vPN}:{vPN+3}], v{vPW}")
for i in range(8):
    e(PV[i]); e(VR[2*i]); e(VR[2*i+1])
e(ADV[0]); e(ADV[1]); e(ADV[3])
e("s_branch L_v_top")
lab("L_v_pv")
for i in range(8):
    if i: e(f"s_waitcnt lgkmcnt({14-2*i})")
    if i == 7:
        e(f"ds_write_b32 v{vFW}, v{vFV}")
        e(f"ds_read_b64 v[{vPL}:{vPL+1}], v{vPA}")
    e(PV[i])
e(f"s_cmp_ge_i32 s{sTN}, 0")
e("s_cbranch_scc1 L_v_next")
lab("L_v_empty")
e(f"s_cmp_lt_u32 s{sTB1}, s{sTTC}")
e("s_cbranch_scc1 L_v_more")
stamp(2)
e(f"s_cmp_lg_u32 s{sMRG}, 0")
e("s_cbranch_scc1 L_c_mwait0")
lab("L_c_store")
e(f"v_mov_b32 v{vT0}, v{vLS}")
e(f"v_and_b32 v{vT2}, 15, v{vLANE}")
e(f"v_lshl_add_u32 v{vT2}, v{vT2}, 8, s{sQO}")
e(f"v_permlane32_swap_b32 v{vLS}, v{vT0}")
e("s_nop 0")
e(f"v_add_f32 v{vLS}, v{vLS}, v{vT0}")
e(f"v_mov_b32 v{vT0}, v{vLS}")
e(f"v_lshl_add_u32 v{vT2}, v{vG}, 4, v{vT2}")
e("s_nop 0")
e(f"v_permlane16_swap_b32 v{vLS}, v{vT0}")
e("s_nop 0")
e(f"v_add_f32 v{vLS}, v{vLS}, v{vT0}")
e(f"v_rcp_f32 v{vMN}, v{vLS}")
e(f"s_cmp_lg_u32 s{sROLE}, 0")
scale_o(vMN)
for r in range(16):
    e(f"v_cvt_pk_bf16_f32 v{vKF+r}, v{vO+2*r}, v{vO+2*r+1}")
e("s_cbranch_scc1 L_publish")
def out_stores(fl, step=64):
    for j in range(4):
        e(f"global_store_dwordx4 v{vT2}, v[{vKF+4*j}:{vKF+4*j+3}], s[{sOUT}:{sOUT+1}] offset:{step*j}{fl}")
out_stores(OST)
e(FIN)

def l_total():
    e(f"v_mov_b32 v{vT0}, v{vLS}")
    e(f"v_and_b32 v{vT2}, 15, v{vLANE}")
    e(f"v_lshl_add_u32 v{vT2}, v{vT2}, 8, s{sQO}")
    e(f"v_permlane32_swap_b32 v{vLS}, v{vT0}")
    e("s_nop 0")
    e(f"v_add_f32 v{vLS}, v{vLS}, v{vT0}")
    e(f"v_mov_b32 v{vT0}, v{vLS}")
    e(f"v_lshl_add_u32 v{vT2}, v{vG}, 4, v{vT2}")
    e("s_nop 0")
    e(f"v_permlane16_swap_b32 v{vLS}, v{vT0}")
    e("s_nop 0")
    e(f"v_add_f32 v{vLS}, v{vLS}, v{vT0}")
    e(f"v_rcp_f32 v{vMN}, v{vLS}")
if a.last:
    lab("L_v_islast")
    c("closing tile of an owner with nothing pending: take the short path")
    e(f"s_sub_u32 s{sT0}, s{sTTC}, s{sTB1}")
    e(f"s_or_b32 s{sT0}, s{sT0}, s{sMRG}")
    e(f"s_or_b32 s{sT0}, s{sT0}, s{sROLE}")
    e(f"s_or_b32 s{sT0}, s{sT0}, s{sRS}")
    e(f"s_or_b32 s{sT0}, s{sT0}, s{sRS+1}")
    e("s_cbranch_scc1 L_v_next2")
    e(f"ds_read_b128 v[{vP}:{vP+3}], v{vPW}")
    e(f"ds_read_b64 v[{vPL}:{vPL+1}], v{vPA}")
    l_total()
    e("s_waitcnt lgkmcnt(0)")
    e(f"v_readfirstlane_b32 s{sLND}, v{vPL}")
    e(f"s_cmp_ge_i32 s{sLND}, s{sNK}")
    e("s_cbranch_scc1 L_v_lrd")
    poll("L_v_lpoll")
    lab("L_v_lrd")
    for x in VR: e(x)
    def fin_j(j):
        r = []
        for k in range(4):
            q = vO + 8 * j + 2 * k
            r.append(f"v_pk_mul_f32 v[{q}:{q+1}], v[{q}:{q+1}], v[{vMN}:{vMN+1}] op_sel_hi:[1,0]")
        for k in range(4):
            r.append(f"v_cvt_pk_bf16_f32 v{vKF+4*j+k}, v{vO+8*j+2*k}, v{vO+8*j+2*k+1}")
        r.append(f"global_store_dwordx4 v{vT2}, v[{vKF+4*j}:{vKF+4*j+3}], s[{sOUT}:{sOUT+1}] offset:{64*j}{OST}")
        return r
    f0 = fin_j(0)
    for i in range(8):
        e(f"s_waitcnt lgkmcnt({14-2*i})")
        e(PV[i])
        if i == 5: e(f0[0]); e(f0[1])
        if i == 6: e(f0[2]); e(f0[3])
    stamp(2)
    for x in f0[4:] + fin_j(1) + fin_j(2) + fin_j(3): e(x)
    e(f"ds_write_b32 v{vFW}, v{vFV}")
    e(FIN)

lab("L_v_resc")
e(f"s_bitset0_b64 s[{sRS}:{sRS+1}], s{sT0}")
alpha_addr()
e("s_waitcnt vmcnt(0)")
e(f"global_load_dword v{vAL}, v{vT1}, s[{sWS}:{sWS+1}] sc1")
e("s_waitcnt vmcnt(0)")
scale_o(vAL)
e("s_branch L_v_top2")

lab("L_v_merge")
c("only once no rescale is pending; the reference max stays, so the partial's max must not be far above it")
e(f"s_cmp_eq_u64 s[{sRS}:{sRS+1}], 0")
e("s_cbranch_scc0 L_v_top3")
lab("L_c_merge")
e(f"s_mul_i32 s{sT0}, s{sCI}, {MBS}")
e(f"s_add_u32 s{sT0}, s{sT0}, {MB}")
e(f"v_and_b32 v{vT1}, 15, v{vLANE}")
e(f"v_lshl_add_u32 v{vT0}, v{vLANE}, 4, s{sT0}")
e(f"v_lshl_add_u32 v{vT1}, v{vT1}, 3, s{sT0}")
e("s_waitcnt lgkmcnt(0)")
e(f"ds_write_b32 v{vFW}, v{vFV}")
e(f"ds_read_b64 v[{vT4}:{vT5}], v{vT1} offset:4096")
for i in range(4):
    e(f"ds_read_b128 v[{vKF+4*i}:{vKF+4*i+3}], v{vT0} offset:{1024*i}")
e(f"s_cmp_eq_u32 s{sPLN}, 2")
e("s_waitcnt lgkmcnt(0)")
e("s_cbranch_scc1 L_c_mfin")
e(f"v_sub_f32 v{vT4}, v{vT4}, v{vM}")
e(f"v_cmp_nge_f32 vcc, 0x41800000, v{vT4}")
e(f"s_mov_b32 s{sMRG}, 2")
e("s_nop 3")
e("s_cbranch_vccnz L_v_top3")
e("s_branch L_c_madd")
lab("L_c_mfin")
e(f"v_max_f32 v{vMN}, v{vM}, v{vT4}")
e(f"v_sub_f32 v{vAL}, v{vM}, v{vMN}")
e(f"v_sub_f32 v{vT4}, v{vT4}, v{vMN}")
e(f"v_exp_f32 v{vAL}, v{vAL}")
e("s_nop 0")
e(f"v_mul_f32 v{vLS}, v{vLS}, v{vAL}")
scale_o(vAL)
lab("L_c_madd")
e(f"v_exp_f32 v{vT4}, v{vT4}")
e(f"s_mov_b32 s{sMRG}, 0")
e(f"v_mul_f32 v{vT4}, v{vT4}, v{vT5}")
e(f"v_fmac_f32 v{vLS}, 0x3e800000, v{vT4}")
for r in range(16):
    t = vKF + 16 + 2 * (r % 4)
    e(f"v_lshlrev_b32 v{t}, 16, v{vKF+r}")
    e(f"v_and_b32 v{t+1}, 0xffff0000, v{vKF+r}")
    e(f"v_pk_fma_f32 v[{vO+2*r}:{vO+2*r+1}], v[{t}:{t+1}], v[{vT4}:{vT4+1}], v[{vO+2*r}:{vO+2*r+1}] op_sel_hi:[1,0,1]")
e(f"s_cmp_eq_u32 s{sPLN}, 2")
e("s_cbranch_scc0 L_v_top3")
e("s_branch L_c_store")
lab("L_c_mwait0")
e(f"s_mov_b32 s{sPLN}, 2")
lab("L_c_mwait")
e(f"ds_read_b64 v[{vPL}:{vPL+1}], v{vPA}")
e("s_waitcnt lgkmcnt(0)")
e(f"v_readfirstlane_b32 s{sMBF}, v{vPL+1}")
e(f"s_cmp_lg_u32 s{sMBF}, 0")
e("s_cbranch_scc1 L_c_merge")
spin_tail("L_c_mwait")

def ws_base(sb):
    e(f"s_lshl3_add_u32 s{sT0}, s{sb}, s{sH}")
    e(f"s_lshl_b32 s{sT0}, s{sT0}, 9")
    if WS0: e(f"s_add_u32 s{sT0}, s{sT0}, {WS0}")

lab("L_publish")
if "nopub" in DBG: e("s_endpgm")
e(f"v_lshl_add_u32 v{vT2}, v{vLANE}, 4, s{sQO}")
e(f"s_lshl_b32 s{sT2}, s{sPB}, 2")
e(f"v_mov_b32 v{vT3}, s{sT2}")
e(f"v_lshlrev_b32 v{vT4}, 1, v{vT3}")
e(f"v_add_u32 v{vT4}, {CTRL+68}, v{vT4}")
e(f"ds_read_b32 v{vT4}, v{vT4}")
ws_base(sPB)
e(f"s_lshl2_add_u32 s{sT1}, s{sCI}, s{sT0}")
e(f"v_mov_b32 v{vT5}, s{sT1}")
e(f"s_lshl_b32 s{sT1}, s{sCI}, 7")
e(f"s_add_u32 s{sT0}, s{sT0}, s{sT1}")
e(f"v_lshl_add_u32 v{vT1}, v{vLANE}, 3, s{sT0}")
e(f"s_getreg_b32 s{sT2}, hwreg(HW_REG_XCC_ID, 0, 4)")
e(f"s_lshl_b32 s{sT2}, s{sT2}, 4")
e(f"s_or_b32 s{sT2}, s{sT2}, s{sH}")
e(f"s_or_b32 s{sT2}, s{sT2}, 0x100")
e("s_waitcnt lgkmcnt(0)")
e(f"v_readfirstlane_b32 s{sT1}, v{vT4}")
e(f"s_lshr_b32 s{sT1}, s{sT1}, 16")
e(f"s_cmp_eq_u32 s{sT1}, s{sT2}")
e("s_cbranch_scc1 L_pub_fast")
e(f"global_load_dword v{vT4}, v{vT3}, s[{sDBG}:{sDBG+1}] offset:128 sc1")
e("s_waitcnt vmcnt(0)")
e(f"v_readfirstlane_b32 s{sT1}, v{vT4}")
e(f"s_lshr_b32 s{sT1}, s{sT1}, 16")
e(f"s_cmp_eq_u32 s{sT1}, s{sT2}")
e("s_cbranch_scc0 L_pub_slow")
lab("L_pub_fast")
c("the receiver runs on this die and has cleared its flag words: hand over inside the shared L2")
out_stores("", 1024)
e("s_mov_b64 exec, 0xffff")
e(f"global_store_dwordx2 v{vT1}, v[{vM}:{vM+1}], s[{sWS}:{sWS+1}]")
e(f"v_mov_b32 v{vT4}, 1")
e("s_waitcnt vmcnt(0)")
e("s_mov_b64 exec, 1")
e(f"global_store_dword v{vT5}, v{vT4}, s[{sWS}:{sWS+1}] offset:256")
e(FIN)
lab("L_pub_slow")
c("any other placement: write through to memory, then set a bit with a device-wide atomic")
out_stores(" sc1", 1024)
e("s_mov_b64 exec, 0xffff")
e(f"global_store_dwordx2 v{vT1}, v[{vM}:{vM+1}], s[{sWS}:{sWS+1}] sc1")
e(f"s_lshl1_add_u32 s{sT1}, s{sH}, s{sCI}")
e(f"s_lshl_b32 s{sT1}, 1, s{sT1}")
e(f"v_mov_b32 v{vT4}, s{sT1}")
e("s_waitcnt vmcnt(0)")
e("s_mov_b64 exec, 1")
e(f"global_atomic_add v{vT3}, v{vT4}, s[{sDBG}:{sDBG+1}]")
e(FIN)

vRW = vL
vKEY, vRK = 19, 20
lab("L_ctl0")
if a.skew:
    c("dies are not started at the same instant: the first eight workgroups post when they started")
    e(f"s_memrealtime s[{sMA}:{sMA+1}]")
    e(f"s_lshl2_add_u32 s{sT0}, s{sH}, 2")
    e(f"v_mov_b32 v{vT4}, s{sT0}")
    e(f"s_cmp_lg_u32 s{sB}, 0")
    e("s_waitcnt lgkmcnt(0)")
    e("s_cbranch_scc1 L_ctl1")
    e(f"s_or_b32 s{sT0}, s{sMA}, 0x8000")
    e(f"v_mov_b32 v{vT5}, s{sT0}")
    e("s_mov_b64 exec, 1")
    e(f"global_store_short v{vT4}, v{vT5}, s[{sDBG}:{sDBG+1}] sc1")
    e("s_mov_b64 exec, -1")
    lab("L_ctl1")
e("s_barrier")
e("s_branch L_ctl")
lab("L_planner")
e(f"s_cmp_eq_u32 s{sW}, 5")
e("s_cbranch_scc1 L_ctl0")
e(f"s_sub_u32 s{sCI}, s{sW}, 3")
e(f"s_lshl_b32 s{sSB}, s{sCI}, 8")
e(f"s_add_u32 s{sSB}, s{sSB}, {CNT}")
e(f"v_lshl_add_u32 v{vPA}, v{vLANE}, 2, s{sSB}")
e(f"s_lshl_b32 s{sT2}, s{sCI}, 7")
e(f"s_add_u32 s{sT2}, s{sT2}, {KEYS}")
e(f"v_add_u32 v{vT3}, s{sT2}, v{vT3}")
e(f"v_lshrrev_b32 v{vT4}, 5, v{vLANE}")
e(f"v_lshl_add_u32 v{vT4}, v{vT4}, 6, s{sT2}")
e(f"v_mov_b32 v{vT5}, 2048")
e("s_barrier")
e("s_waitcnt vmcnt(0)")
e(f"v_cmp_gt_i32 s[{sZQ}:{sZQ+1}], 1, v{vN}")
e(f"v_min_i32 v{vN}, v{vN}, v{vT5}")
e("s_nop 0")
e(f"v_cndmask_b32 v{vN}, v{vN}, v{vT5}, s[{sZQ}:{sZQ+1}]")
e(f"v_add_u32 v{vN}, 15, v{vN}")
e(f"v_lshrrev_b32 v{vN}, 4, v{vN}")
e(f"v_lshl_or_b32 v{vKEY}, v{vN}, 5, v{vT0}")
e(f"ds_write_b32 v{vT3}, v{vKEY}")
for i in range(4):
    e(f"ds_read_b128 v[{vKF+4*i}:{vKF+4*i+3}], v{vT4} offset:{16*i}")
e(f"v_mov_b32 v{vRK}, 0")
e(f"v_readlane_b32 s{sNB}, v{vN}, s{sB}")
e("s_waitcnt lgkmcnt(0)")
c("rank of every batch by block count; the batch of rank 31-r is the partner")
for i in range(16):
    e(f"v_sub_u32 v{vKF+i}, v{vKF+i}, v{vKEY}")
for i in range(16):
    e(f"v_alignbit_b32 v{vRK}, v{vRK}, v{vKF+i}, 31")
e(f"v_bcnt_u32_b32 v{vRK}, v{vRK}, 0")
e(f"v_mov_b32 v{vT2}, v{vRK}")
derive_nb()
e(f"v_permlane32_swap_b32 v{vRK}, v{vT2}")
e("s_nop 0")
e(f"v_add_u32 v{vRK}, v{vRK}, v{vT2}")
e("s_nop 0")
e(f"v_readlane_b32 s{sRK}, v{vRK}, s{sB}")
e(f"s_sub_u32 s{sT0}, 31, s{sRK}")
e(f"v_cmp_eq_u32 vcc, s{sT0}, v{vRK}")
e(f"s_ff1_i32_b32 s{sPB}, vcc_lo")
e(f"v_readlane_b32 s{sNP}, v{vN}, s{sPB}")
e(f"s_max_u32 s{sT0}, s{sNB}, s{sNP}")
e(f"s_min_u32 s{sT1}, s{sNB}, s{sNP}")
e(f"s_sub_u32 s{sX}, s{sT0}, s{sT1}")
e(f"s_add_u32 s{sX}, s{sX}, 2")
e(f"s_lshr_b32 s{sX}, s{sX}, 2")
e(f"s_cmp_lt_u32 s{sT0}, {4*NUM+8}")
e(f"s_cselect_b32 s{sX}, 0, s{sX}")
if a.nopair: e(f"s_mov_b32 s{sX}, 0")
e(f"s_cmp_ge_u32 s{sRK}, 16")
e(f"s_cselect_b32 s{sLO}, s{sX}, 0")
e(f"s_cselect_b32 s{sTB}, 0, s{sX}")
e(f"s_cmp_eq_u32 s{sCI}, 0")
e("s_cbranch_scc1 L_pl_norow")
e(f"s_lshl_b32 s{sT0}, s{sPB}, 9")
e(f"v_lshl_add_u32 v{vT1}, v{vLANE}, 3, s{sT0}")
e(f"global_load_dwordx2 v[{vRW}:{vRW+1}], v{vT1}, s[{sBT}:{sBT+1}]")
lab("L_pl_norow")
e(f"s_sub_u32 s{sTA}, s{sNTL}, s{sLO}")
e(f"s_add_u32 s{sT}, s{sTA}, s{sTB}")
e(f"s_mul_i32 s{sF}, s{sT}, {a.fnum}")
e(f"s_lshr_b32 s{sF}, s{sF}, 6")
e(f"s_min_u32 s{sWB}, s{sTA}, {a.UB}")
e(f"s_sub_i32 s{sF}, s{sF}, s{sWB}")
e(f"s_max_i32 s{sF}, s{sF}, s{sTB}")
e(f"s_max_i32 s{sF}, s{sF}, 1")
e(f"v_cvt_f32_u32 v{vT2}, s{sF}")
e(f"v_subrev_u32 v{vT3}, s{sWB}, v{vLANE}")
e(f"v_rcp_f32 v{vT2}, v{vT2}")
e(f"v_mul_i32_i24 v{vT4}, s{sTB}, v{vT3}")
e(f"v_add_u32 v{vT5}, s{sTB}, v{vT4}")
e(f"v_cvt_f32_i32 v{vT4}, v{vT4}")
e(f"v_cvt_f32_i32 v{vT5}, v{vT5}")
e(f"v_add_f32 v{vT4}, 0.5, v{vT4}")
e(f"v_add_f32 v{vT5}, 0.5, v{vT5}")
e(f"v_mul_f32 v{vT4}, v{vT4}, v{vT2}")
e(f"v_mul_f32 v{vT5}, v{vT5}, v{vT2}")
e(f"v_floor_f32 v{vT4}, v{vT4}")
e(f"v_floor_f32 v{vT5}, v{vT5}")
e(f"v_cmp_gt_u32 vcc, s{sF}, v{vT3}")
e(f"v_cmp_gt_f32 s[{sMBK}:{sMBK+1}], v{vT5}, v{vT4}")
e(f"s_sub_u32 s{sT0}, s{sT}, s{sNU}")
e(f"v_subrev_u32 v{vT3}, s{sNU}, v{vLANE}")
e(f"v_cmp_gt_u32 s[{sMA}:{sMA+1}], s{sT0}, v{vT3}")
e(f"s_and_b64 s[{sMBK}:{sMBK+1}], s[{sMBK}:{sMBK+1}], vcc")
e(f"s_andn2_b64 s[{sMA}:{sMA+1}], s[{sMA}:{sMA+1}], s[{sMBK}:{sMBK+1}]")
c(f"own tiles to sort: logical [NU+given, ntile); donated: the partner's logical [{NUM}, {NUM}+TB)")
mfirst = a.mfirst and not a.nosort
if mfirst:
    e(f"s_ff1_i32_b64 s{sT2}, s[{sMA}:{sMA+1}]")
else:
    e(f"s_flbit_i32_b64 s{sT2}, s[{sMA}:{sMA+1}]")
    e(f"s_sub_u32 s{sT2}, 63, s{sT2}")
e(f"s_lshl_b32 s{sT2}, s{sT2}, 8")
e(f"s_or_b32 s{sWB}, s{sT2}, 1")
e(f"s_min_u32 s{sMRG}, s{sLO}, 1")
e(f"s_add_u32 s{sLO}, s{sLO}, s{sNU}")
e(f"s_sub_u32 s{sHI}, s{sNTL}, s{sLO}")
e(f"s_sub_u32 s{sT3}, s{sNTL}, 1")
e(f"s_mov_b32 s{sLBASE}, {LA}")
e(f"s_cmp_eq_u32 s{sCI}, 0")
e("s_cbranch_scc1 L_pl_a")
e(f"s_mov_b32 s{sLO}, {NUM}")
e(f"s_mov_b32 s{sHI}, s{sTB}")
e(f"s_mov_b32 s{sT3}, -1")
e(f"s_mov_b32 s{sLBASE}, {LB}")
e(f"s_mov_b64 s[{sMA}:{sMA+1}], s[{sMBK}:{sMBK+1}]")
e("s_branch L_pl_sort")
lab("L_pl_a")
e(f"s_lshl_b32 s{sT0}, s{sT}, 8")
e(f"s_or_b32 s{sT0}, s{sT0}, s{sMRG}")
e(f"v_mov_b32 v{vT2}, s{sMA}")
e(f"v_mov_b32 v{vT3}, s{sMA+1}")
e(f"v_mov_b32 v{vT4}, s{sT0}")
e(f"v_mov_b32 v{vT5}, s{sWB}")
e(f"v_mov_b32 v{vT1}, {REC0}")
e(f"ds_write_b128 v{vT1}, v[{vT2}:{vT5}]")
lab("L_pl_sort")
e(f"v_subrev_u32 v{vT0}, s{sLO}, v{vLANE}")
e(f"v_cmp_gt_u32 vcc, s{sHI}, v{vT0}")
e(f"v_mov_b32 v{vT5}, 1")
e("s_waitcnt vmcnt(0)")
if a.nosort:
    e(f"v_lshlrev_b32 v{vT2}, 1, v{vT0}")
    e(f"v_add_u32 v{vT3}, 1, v{vT2}")
else:
    c("counting sort of the block ids into 64 buckets of ascending physical address")
    e(f"v_lshrrev_b32 v{vT0}, 6, v{vRW}")
    e(f"v_lshrrev_b32 v{vT1}, 6, v{vRW+1}")
    e(f"v_cmp_eq_u32 s[{sRK+2}:{sRK+3}], s{sT3}, v{vLANE}")
    if mfirst:
        e(f"v_med3_u32 v{vT0}, v{vT0}, 1, 63")
        e(f"v_med3_u32 v{vT1}, v{vT1}, 1, 63")
    else:
        e(f"v_min_u32 v{vT0}, 62, v{vT0}")
        e(f"v_min_u32 v{vT1}, 62, v{vT1}")
    fb = 0 if mfirst else 63
    e(f"v_cndmask_b32 v{vT0}, v{vT0}, {fb}, s[{sRK+2}:{sRK+3}]")
    e(f"v_cndmask_b32 v{vT1}, v{vT1}, {fb}, s[{sRK+2}:{sRK+3}]")
    e(f"v_lshlrev_b32 v{vT0}, 2, v{vT0}")
    e(f"v_lshlrev_b32 v{vT1}, 2, v{vT1}")
    e(f"v_add_u32 v{vKF}, s{sSB}, v{vT0}")
    e(f"v_add_u32 v{vKF+1}, s{sSB}, v{vT1}")
    e("s_mov_b64 exec, vcc")
    e(f"ds_add_rtn_u32 v{vT2}, v{vKF}, v{vT5}")
    e(f"ds_add_rtn_u32 v{vT3}, v{vKF+1}, v{vT5}")
    e("s_mov_b64 exec, -1")
    e(f"ds_read_b32 v{vT4}, v{vPA}")
    e("s_waitcnt lgkmcnt(0)")
    e(f"v_mov_b32 v{vKF+2}, v{vT4}")
    for sh in (1, 2, 4, 8):
        e("s_nop 1")
        e(f"v_add_u32_dpp v{vT4}, v{vT4}, v{vT4} row_shr:{sh} row_mask:0xf bank_mask:0xf bound_ctrl:0")
    e("s_nop 1")
    e(f"v_add_u32_dpp v{vT4}, v{vT4}, v{vT4} row_bcast:15 row_mask:0xa bank_mask:0xf")
    e("s_nop 1")
    e(f"v_add_u32_dpp v{vT4}, v{vT4}, v{vT4} row_bcast:31 row_mask:0xc bank_mask:0xf")
    e(f"v_sub_u32 v{vT4}, v{vT4}, v{vKF+2}")
    e(f"ds_bpermute_b32 v{vT0}, v{vT0}, v{vT4}")
    e(f"ds_bpermute_b32 v{vT1}, v{vT1}, v{vT4}")
    e("s_waitcnt lgkmcnt(0)")
    e(f"v_add_u32 v{vT2}, v{vT2}, v{vT0}")
    e(f"v_add_u32 v{vT3}, v{vT3}, v{vT1}")
e(f"v_lshlrev_b32 v{vRW}, 15, v{vRW}")
e(f"v_lshlrev_b32 v{vRW+1}, 15, v{vRW+1}")
e(f"v_lshl_add_u32 v{vT2}, v{vT2}, 2, s{sLBASE}")
e(f"v_lshl_add_u32 v{vT3}, v{vT3}, 2, s{sLBASE}")
e("s_mov_b64 exec, vcc")
e(f"ds_write_b32 v{vT2}, v{vRW}")
e(f"ds_write_b32 v{vT3}, v{vRW+1}")
e("s_mov_b64 exec, -1")
c("place the sorted tiles at their stream positions; flags: 1 valid, 2 masked, 4 last of batch, 8 last of stream")
e(f"v_mbcnt_lo_u32_b32 v{vT0}, s{sMA}, 0")
e(f"v_mbcnt_hi_u32_b32 v{vT0}, s{sMA+1}, v{vT0}")
e(f"v_lshl_add_u32 v{vT0}, v{vT0}, 3, s{sLBASE}")
e(f"ds_read_b64 v[{vT2}:{vT3}], v{vT0}")
e(f"s_lshr_b32 s{sT0}, s{sWB}, 8")
e(f"s_sub_u32 s{sT1}, s{sT}, 1")
e(f"v_cmp_eq_u32 vcc, s{sT0}, v{vLANE}")
e(f"v_cmp_eq_u32 s[{sRK+2}:{sRK+3}], s{sT1}, v{vLANE}")
e(f"v_cmp_eq_u32 s[{sT2}:{sT2+1}], {G-1}, v{vLANE}")
e(f"v_cndmask_b32 v{vT4}, 1, 3, vcc")
e(f"v_cndmask_b32 v{vT5}, 0, 12, s[{sRK+2}:{sRK+3}]")
e(f"v_cndmask_b32 v{vT1}, 0, 4, s[{sT2}:{sT2+1}]")
e(f"v_or3_b32 v{vT4}, v{vT4}, v{vT5}, v{vT1}")
e(f"v_lshlrev_b32 v{vT0}, 3, v{vLANE}")
e(f"v_add_u32 v{vT0}, {SL}, v{vT0}")
e("s_waitcnt lgkmcnt(0)")
e(f"v_or_b32 v{vT2}, v{vT2}, v{vT4}")
e(f"s_mov_b64 exec, s[{sMA}:{sMA+1}]")
e(f"ds_write_b64 v{vT0}, v[{vT2}:{vT3}]")
e("s_mov_b64 exec, -1")
lab("L_pl_done")
e(f"s_cmp_lg_u32 s{sMRG}, 0")
e("s_cbranch_scc1 L_fetch")
e(f"s_cmp_eq_u32 s{sTB}, 0")
e("s_cbranch_scc1 L_fin")
c("become the consumer of the donated tiles")
load_q(sPB)
e(f"s_mov_b64 s[{sMALL}:{sMALL+1}], s[{sMBK}:{sMBK+1}]")
e(f"s_mov_b32 s{sM}, s{sMBK}")
e(f"s_and_b32 s{sM+1}, s{sMBK+1}, {RHI:#x}")
e(f"s_mov_b32 s{sTTC}, s{sT}")
e(f"s_min_u32 s{sTB1}, s{sT}, {G}")
e(f"s_mov_b32 s{sROLE}, 1")
e(f"s_mov_b32 s{sPLN}, 1")
e(f"s_lshr_b32 s{sT3}, s{sZQ}, s{sPB}")
e(f"s_and_b32 s{sT3}, s{sT3}, 1")
e("s_branch L_csetup")

lab("L_fetch")
e(f"s_cmp_lg_u32 s{sCI}, 0")
e("s_cbranch_scc1 L_fin")
rows_off(sB)
if a.otouch >= 0:
    c("make the lines that will carry the partial valid in L2 (a later read of write-only lines would go to memory)")
    e(f"v_lshl_add_u32 v{vT4}, v{vLANE}, 7, s{sQO}")
    e(f"global_load_dword v{vPF}, v{vT4}, s[{sOUT}:{sOUT+1}] {a.ofl.replace('+', ' ')}")
ws_base(sB)
e(f"v_lshl_add_u32 v{vT1}, v{vT0}, 3, s{sT0}")
e(f"v_mov_b32 v{vFW}, s{sT0}")
e(f"s_lshl_b32 s{sT2}, s{sB}, 2")
e(f"v_mov_b32 v{vT2}, s{sT2}")
e(f"v_mov_b32 v{vPA}, {CTRL+16}")
e("s_mov_b64 exec, 1")
e(f"s_mul_i32 s{sNEED}, s{sT}, {a.pollnum}")
e(f"s_lshr_b32 s{sNEED}, s{sNEED}, 5")
e(f"s_lshl_b32 s{sT3}, s{sH}, 1")
e(f"s_mov_b32 s{sMBF}, 0")
c("wait until wave 5 has cleared the flag words and the stream is far enough")
lab("L_f_wait")
e(f"ds_read_b64 v[{vPL}:{vPL+1}], v{vPA}")
e("s_waitcnt lgkmcnt(0)")
e(f"v_readfirstlane_b32 s{sLND}, v{vPL}")
e(f"v_readfirstlane_b32 s{sT0}, v{vPL+1}")
e(f"s_cmp_ge_i32 s{sLND}, s{sNEED}")
e(f"s_cselect_b32 s{sT0}, s{sT0}, 0")
e(f"s_cmp_lg_u32 s{sT0}, 0")
e("s_cbranch_scc1 L_f_poll")
spin_tail("L_f_wait", 8)
lab("L_f_poll")
if "nopoll" in DBG: e("s_branch L_f_got")
e(f"global_load_dwordx2 v[{vPL}:{vPL+1}], v{vFW}, s[{sWS}:{sWS+1}] offset:256 sc1")
e(f"s_add_u32 s{sMBF}, s{sMBF}, 1")
e(f"s_and_b32 s{sT0}, s{sMBF}, 3")
e(f"s_mov_b32 s{sT2}, 0")
e("s_cbranch_scc1 L_f_nodbg")
e(f"global_load_dword v{vT3}, v{vT2}, s[{sDBG}:{sDBG+1}] sc1")
e("s_waitcnt vmcnt(0)")
e(f"v_readfirstlane_b32 s{sT2}, v{vT3}")
e(f"s_lshr_b32 s{sT2}, s{sT2}, s{sT3}")
lab("L_f_nodbg")
e("s_waitcnt vmcnt(0)")
e(f"v_lshl_or_b32 v{vPL}, v{vPL+1}, 1, v{vPL}")
e("s_nop 0")
e(f"v_readfirstlane_b32 s{sT0}, v{vPL}")
e(f"s_or_b32 s{sT0}, s{sT0}, s{sT2}")
e(f"s_and_b32 s{sT0}, s{sT0}, 3")
e(f"s_cmp_eq_u32 s{sT0}, 3")
e("s_cbranch_scc1 L_f_got")
spin_tail("L_f_poll", a.psleep)
lab("L_f_got")
e("s_mov_b64 exec, -1")
e(f"v_lshl_add_u32 v{vT4}, v{vLANE}, 4, s{sQO}")
e(f"v_add_u32 v{vT5}, 4096, v{vT4}")
FLD = " " + a.fld if a.fld != "none" else ""
for cc in range(2):
    if "nofetch" in DBG:
        e(f"v_mov_b32 v{vM+2*cc}, 0"); e(f"v_mov_b32 v{vM+2*cc+1}, 0")
        continue
    e(f"global_load_dwordx2 v[{vM+2*cc}:{vM+2*cc+1}], v{vT1}, s[{sWS}:{sWS+1}] offset:{128*cc}{FLD}")
    for j in range(4):
        r = vKF + 16 * cc + 4 * j
        e(f"global_load_dwordx4 v[{r}:{r+3}], v{vT4+cc}, s[{sOUT}:{sOUT+1}] offset:{1024*j}{FLD}")
e(f"v_lshlrev_b32 v{vT2}, 4, v{vLANE}")
e(f"v_add_u32 v{vT2}, {MB}, v{vT2}")
e(f"v_lshlrev_b32 v{vT0}, 3, v{vT0}")
e(f"v_add_u32 v{vT0}, {MB}, v{vT0}")
e(f"v_mov_b32 v{vPL}, {CTRL+4}")
e(f"v_mov_b32 v{vT3}, 1")
for cc in range(2):
    e(f"s_waitcnt vmcnt({5-5*cc})")
    for j in range(4):
        r = vKF + 16 * cc + 4 * j
        e(f"ds_write_b128 v{vT2}, v[{r}:{r+3}] offset:{MBS*cc + 1024*j}")
    e(f"ds_write_b64 v{vT0}, v[{vM+2*cc}:{vM+2*cc+1}] offset:{MBS*cc + 4096}")
    e(f"ds_write_b32 v{vPL}, v{vT3} offset:{8*cc}")
e(FIN)

c("wave 5: workgroups that share an L2 post their remaining work; one that lags prefetches deeper")
lab("L_ctl")
e(f"v_mov_b32 v{vT1}, {REC0}")
e(f"v_mov_b32 v{vPA}, {CTRL+32}")
e(f"v_mov_b32 v{vFW}, {DEPW}")
e(f"s_lshl_b32 s{sT0}, s{sB}, 2")
e(f"v_mov_b32 v{vG}, s{sT0}")
e(f"v_mov_b32 v{vFV}, v{vT3}")
lo = sum((XT[i] & 255) << (8 * i) for i in range(4)); hi = sum((XT[4 + i] & 255) << (8 * i) for i in range(4))
e(f"s_getreg_b32 s{sT0}, hwreg(HW_REG_XCC_ID, 0, 3)")
e(f"s_mov_b32 s{sM}, {lo:#x}")
e(f"s_mov_b32 s{sM+1}, {hi:#x}")
e(f"s_lshl_b32 s{sT0}, s{sT0}, 3")
e(f"s_lshr_b64 s[{sM}:{sM+1}], s[{sM}:{sM+1}], s{sT0}")
e(f"s_sext_i32_i8 s{sBO}, s{sM}")
lab("L_g_plan")
e(f"ds_read_b128 v[{vT2}:{vT5}], v{vT1}")
e("s_waitcnt lgkmcnt(0)")
e(f"v_readfirstlane_b32 s{sT0}, v{vT5}")
e(f"v_readfirstlane_b32 s{sT}, v{vT4}")
e(f"s_cmp_lg_u32 s{sT0}, 0")
e("s_cbranch_scc1 L_g_go")
spin_tail("L_g_plan", 8)
lab("L_g_go")
e(f"s_and_b32 s{sMRG}, s{sT}, 1")
e("s_cbranch_scc0 L_g_nores")
c("a partial is expected: clear its flag words before anything is posted")
ws_base(sB)
e(f"v_mov_b32 v{vT0}, s{sT0}")
e(f"v_mov_b32 v{vT2}, 0")
e(f"v_mov_b32 v{vT3}, 0")
e(f"v_mov_b32 v{vT4}, {CTRL+20}")
e(f"v_mov_b32 v{vT5}, 1")
e("s_mov_b64 exec, 1")
e(f"global_store_dwordx2 v{vT0}, v[{vT2}:{vT3}], s[{sWS}:{sWS+1}] offset:256")
e("s_waitcnt vmcnt(0)")
e(f"ds_write_b32 v{vT4}, v{vT5}")
e("s_mov_b64 exec, -1")
lab("L_g_nores")
e(f"s_and_b32 s{sT0}, s{sDBG}, 127")
e("s_cbranch_scc1 L_fin")
c("posted word: remaining units + 1 | head << 16 | die << 20 | flags cleared << 24")
e(f"s_getreg_b32 s{sFB}, hwreg(HW_REG_XCC_ID, 0, 4)")
e(f"s_lshl4_add_u32 s{sFB}, s{sMRG}, s{sFB}")
e(f"s_lshl4_add_u32 s{sFB}, s{sFB}, s{sH}")
e(f"s_lshl_b32 s{sFB}, s{sFB}, 16")
e(f"s_lshr_b32 s{sT}, s{sT}, 8")
e(f"s_lshl1_add_u32 s{sTN}, s{sT}, 1")
e(f"v_lshlrev_b32 v{vT1}, 1, v{vFV}")
e(f"v_add_u32 v{vT1}, {CTRL+68}, v{vT1}")
e(f"v_mov_b32 v{vT2}, s{sFB}")
e("s_mov_b64 exec, 1")
e(f"global_store_dword v{vG}, v{vT2}, s[{sDBG}:{sDBG+1}] offset:128")
e("s_mov_b64 exec, -1")
if "v" in a.tlb: e(f"global_load_dword v{vPF}, v{vTL}, s[{sV}:{sV+1}] nt")
if "prog2" in DBG: e("v_mov_b32 v50, 0")
if a.skew:
    e(f"s_mov_b32 s{sNEED}, 3")
    e(f"s_cmp_lt_u32 s{sT}, 8")
    e("s_cbranch_scc1 L_fin")
    lab("L_g_sw")
    e(f"ds_read_b32 v{vPL}, v{vPA}")
    e("s_waitcnt lgkmcnt(0)")
    e(f"v_readfirstlane_b32 s{sLND}, v{vPL}")
    e(f"s_cmp_ge_i32 s{sLND}, s{sNEED}")
    e("s_cbranch_scc1 L_g_sa")
    spin_tail("L_g_sw", 1)
    lab("L_g_sa")
    e(f"global_load_dword v{vT0}, v{vFV}, s[{sDBG}:{sDBG+1}] sc1")
    e("s_waitcnt vmcnt(0)")
    e(f"v_cmp_gt_i32 vcc, 0, v{vT0}")
    e(f"v_lshrrev_b32 v{vT0}, 16, v{vT0}")
    e(f"v_sub_u32 v{vT0}, s{sMA}, v{vT0}")
    e(f"v_bfe_i32 v{vT0}, v{vT0}, 0, 15")
    e(f"v_cndmask_b32 v{vT0}, 0, v{vT0}, vcc")
    for sh in (1, 2, 4):
        e("s_nop 1")
        op = "v_max_i32_dpp" if "ampmax" in DBG else "v_add_u32_dpp"
        e(f"{op} v{vT0}, v{vT0}, v{vT0} row_shr:{sh} row_mask:0xf bank_mask:0xf bound_ctrl:0")
    e("s_nop 0")
    e(f"v_readlane_b32 s{sT0}, v{vT0}, 7")
    if "ampmax" in DBG or "ampmean" in DBG:
        e(f"s_mul_i32 s{sMBK}, s{sT0}, {20 if 'ampmax' in DBG else 3}")
        e(f"s_max_i32 s{sMBK}, s{sMBK}, 0")
        e(f"s_add_u32 s{sMBK}, s{sMBK}, 3500")
        lab("L_amp")
        e("s_sleep 4")
        e(f"s_memrealtime s[{sLO}:{sLO+1}]")
        e("s_waitcnt lgkmcnt(0)")
        e(f"s_sub_u32 s{sT0}, s{sLO}, s{sMA}")
        e(f"s_cmp_lt_u32 s{sT0}, s{sMBK}")
        e("s_cbranch_scc1 L_amp")
        e("s_endpgm")
    e(f"s_mul_i32 s{sT0}, s{sT0}, {a.skew}")
    e(f"s_ashr_i32 s{sT0}, s{sT0}, 9")
    e(f"s_add_u32 s{sBO}, s{sBO}, s{sT0}")
e(f"s_mov_b32 s{sNEED}, {a.cstart}")
lab("L_g_next")
e(f"s_sub_u32 s{sT0}, s{sTN}, s{sNEED}")
e(f"s_cmp_lt_i32 s{sT0}, {a.cstop}")
e("s_cbranch_scc1 L_fin")
lab("L_g_w")
e(f"ds_read_b32 v{vPL}, v{vPA}")
e("s_waitcnt lgkmcnt(0)")
e(f"v_readfirstlane_b32 s{sLND}, v{vPL}")
e(f"s_cmp_ge_i32 s{sLND}, s{sNEED}")
e("s_cbranch_scc1 L_g_a")
spin_tail("L_g_w", 1)
lab("L_g_a")
if "prog2" in DBG:
    e(f"s_memrealtime s[{sST+2}:{sST+3}]")
    e(f"s_lshr_b32 m0, s{sLND}, 1")
    e("s_waitcnt lgkmcnt(0)")
    e(f"v_writelane_b32 v50, s{sST+2}, m0")
e(f"s_sub_u32 s{sNK}, s{sTN}, s{sLND}")
e(f"s_or_b32 s{sT0}, s{sNK}, s{sFB}")
e(f"v_mov_b32 v{vT2}, s{sT0}")
e("s_mov_b64 exec, 1")
e(f"global_store_dword v{vG}, v{vT2}, s[{sDBG}:{sDBG+1}] offset:128")
e("s_mov_b64 exec, -1")
e(f"global_load_dword v{vT0}, v{vFV}, s[{sDBG}:{sDBG+1}] offset:128 sc1")
e(f"s_add_u32 s{sNEED}, s{sLND}, {a.cstep}")
e(f"s_min_i32 s{sT3}, s{sBO}, 1")
e(f"s_max_i32 s{sT3}, s{sT3}, -1")
e(f"s_sub_u32 s{sBO}, s{sBO}, s{sT3}")
e("s_waitcnt vmcnt(0)")
e(f"ds_write_b32 v{vT1}, v{vT0}")
e(f"v_and_b32 v{vT0}, 0xffff, v{vT0}")
e(f"v_cmp_ne_u32 vcc, 0, v{vT0}")
for sh in (1, 2, 4, 8):
    e("s_nop 1")
    e(f"v_add_u32_dpp v{vT0}, v{vT0}, v{vT0} row_shr:{sh} row_mask:0xf bank_mask:0xf bound_ctrl:0")
e("s_nop 1")
e(f"v_add_u32_dpp v{vT0}, v{vT0}, v{vT0} row_bcast:15 row_mask:0xa bank_mask:0xf")
e(f"s_bcnt1_i32_b32 s{sT1}, vcc_lo")
e(f"v_readlane_b32 s{sT0}, v{vT0}, 31")
e(f"s_mul_i32 s{sT2}, s{sNK}, s{sT1}")
e(f"s_sub_u32 s{sT2}, s{sT2}, s{sT0}")
e(f"s_lshl_b32 s{sT2}, s{sT2}, 2")
for th, inc, cmp in ((CTH[0], -1, "lt"), (CTH[1], 1, "gt"), (CTH[2], 1, "gt")):
    e(f"s_mul_i32 s{sT0}, s{sT1}, {th - a.cbias}")
    e(f"s_cmp_{cmp}_i32 s{sT2}, s{sT0}")
    e(f"s_cselect_b32 s{sT0}, {inc}, 0")
    e(f"s_add_u32 s{sT3}, s{sT3}, s{sT0}")
e(f"s_max_i32 s{sT3}, s{sT3}, -1")
e(f"s_min_i32 s{sT3}, s{sT3}, 2")
e(f"v_mov_b32 v{vT2}, s{sT3}")
e(f"ds_write_b32 v{vFW}, v{vT2}")
e("s_branch L_g_next")

lab("L_fin")
if a.amp:
    if a.amp == "end":
        e(f"s_sub_u32 s{sT0}, s{sW}, 1")
        e(f"s_cmp_gt_u32 s{sT0}, 1")
    else:
        e(f"s_cmp_lg_u32 s{sW}, 0")
    e("s_cbranch_scc1 L_end")
    if a.ampwg >= 0:
        e(f"s_cmp_lg_u32 s2, {a.ampwg}")
        e("s_cbranch_scc1 L_end")
    e("s_waitcnt vmcnt(0) lgkmcnt(0)")
    if a.amp[:2] != "t0":
        e(f"s_memrealtime s[{sST+2}:{sST+3}]")
        e("s_waitcnt lgkmcnt(0)")
    e(f"s_sub_u32 s{sT1}, s{sST+2}, s{sST}")
    if a.amp[:2] != "t0": e(f"s_sub_u32 s{sT1}, s{sT1}, 2700")
    e(f"s_max_i32 s{sT1}, s{sT1}, 0")
    e(f"s_min_i32 s{sT1}, s{sT1}, 2000")
    e(f"s_mul_i32 s{sT1}, s{sT1}, 10")
    e(f"s_add_u32 s{sT1}, s{sT1}, 3500")
    lab("L_ampw")
    e("s_sleep 2")
    e(f"s_memrealtime s[{sST+2}:{sST+3}]")
    e("s_waitcnt lgkmcnt(0)")
    e(f"s_sub_u32 s{sT0}, s{sST+2}, s{sST}")
    e(f"s_cmp_lt_u32 s{sT0}, s{sT1}")
    e("s_cbranch_scc1 L_ampw")
if "prog2" in DBG or "prog3" in DBG:
    e(f"s_cmp_lg_u32 s{sW}, {5 if 'prog2' in DBG else 0}")
    e("s_cbranch_scc1 L_np2")
    e(f"s_lshl_b32 s{sT0}, s2, 8")
    e(f"s_add_u32 s{sT0}, s{sT0}, 0x400000")
    e(f"v_lshl_add_u32 v51, v{vLANE}, 2, s{sT0}")
    e(f"global_store_dword v51, v50, s[{sWS}:{sWS+1}]")
    lab("L_np2")
if a.stamps:
    e(f"s_cmp_gt_u32 s{sW}, 2")
    e("s_cbranch_scc1 L_end")
    e("s_mov_b64 exec, -1")
    e("s_waitcnt vmcnt(0) lgkmcnt(0)")
    stamp(3)
    e(f"s_getreg_b32 s{sT0}, hwreg(HW_REG_XCC_ID)")
    e("s_waitcnt lgkmcnt(0)")
    for i in range(8):
        e(f"v_mov_b32 v{64+i}, s{sST+i}")
    e(f"v_mov_b32 v72, s{sT0}")
    e(f"s_sub_u32 s{sT1}, {SPIN}, s{sSPIN}")
    e(f"v_mov_b32 v73, s{sT1}")
    e(f"v_mov_b32 v74, s{sT}")
    e(f"v_mov_b32 v75, 0")
    e(f"s_mul_i32 s{sT0}, s2, {NW}")
    e(f"s_add_u32 s{sT0}, s{sT0}, s{sW}")
    e(f"s_lshl_b32 s{sT0}, s{sT0}, 6")
    e(f"v_mov_b32 v80, s{sT0}")
    e("s_mov_b64 exec, 1")
    e(f"global_store_dwordx4 v80, v[64:67], s[{sWS}:{sWS+1}]")
    e(f"global_store_dwordx4 v80, v[68:71], s[{sWS}:{sWS+1}] offset:16")
    e(f"global_store_dwordx4 v80, v[72:75], s[{sWS}:{sWS+1}] offset:32")
lab("L_end")
e("s_endpgm")
if a.wake:
    out.append(".p2align 8")
    lab("L_pad")
    out.append(f".fill {64 * a.wake}, 4, 0xbf810000")
out.append('.section .rodata,"a"')
out.append(".p2align 6")
out.append(f".amdhsa_kernel {NAME}_kernel")
out.append(f"  .amdhsa_next_free_vgpr {NV}")
out.append("  .amdhsa_next_free_sgpr 102")
out.append(f"  .amdhsa_accum_offset {NV}")
out.append("  .amdhsa_group_segment_fixed_size 0")
out.append("  .amdhsa_kernarg_size 64")
out.append("  .amdhsa_user_sgpr_count 2")
out.append("  .amdhsa_user_sgpr_kernarg_segment_ptr 1")
out.append("  .amdhsa_system_sgpr_workgroup_id_x 1")
out.append("  .amdhsa_float_denorm_mode_32 3")
out.append(".end_amdhsa_kernel")
open(a.o, "w").write("\n".join(out) + "\n")
```

```python
import sys, argparse
NAME = "standalone__paged_block_table_kv_pagedattention__sampling"
HEADER = open("cdna_kernels/" + NAME + ".s.ref").read().split("; Override")[0]

ap = argparse.ArgumentParser()
ap.add_argument("-o", default="/dev/stdout")
ap.add_argument("--map", default="plain")
ap.add_argument("--hrot", type=int, default=0)
ap.add_argument("--D", type=int, default=21)
ap.add_argument("--D0", type=int, default=26)
ap.add_argument("--NS", type=int, default=6)
ap.add_argument("--G", type=int, default=50)
ap.add_argument("--fnum", type=int, default=40)
ap.add_argument("--pollnum", type=int, default=55)
ap.add_argument("--psleep", type=int, default=6)
ap.add_argument("--UB", type=int, default=8)
ap.add_argument("--mfirst", type=int, default=1)
ap.add_argument("--cth", default="-2,2,5")
ap.add_argument("--cbias", type=int, default=7)
ap.add_argument("--cstart", type=int, default=8)
ap.add_argument("--cstop", type=int, default=4)
ap.add_argument("--cstep", type=int, default=3)
ap.add_argument("--xt", default="5,-4,5,-9,5,2,5,-5")
ap.add_argument("--NUM", type=int, default=4)
ap.add_argument("--last", type=int, default=1)
ap.add_argument("--hold", default="")
ap.add_argument("--ost", default="")
ap.add_argument("--wb", type=int, default=0)
ap.add_argument("--skew", type=int, default=0)
ap.add_argument("--dv", default="-1,1,3")
ap.add_argument("--fpf", type=int, default=6)
ap.add_argument("--fld", default="sc1")
ap.add_argument("--opf", type=int, default=0)
ap.add_argument("--otouch", type=int, default=0)
ap.add_argument("--ospread", type=int, default=1)
ap.add_argument("--ofl", default="")
ap.add_argument("--DM", type=int, default=0)
ap.add_argument("--NE", type=int, default=3)
ap.add_argument("--amp", default="")
ap.add_argument("--ampwg", type=int, default=-1)
ap.add_argument("--tlb", default="")
ap.add_argument("--tlbs", type=int, default=21)
ap.add_argument("--wake", type=int, default=0)
ap.add_argument("--spec", type=int, default=1)
ap.add_argument("--lat", type=int, default=1)
ap.add_argument("--nosort", action="store_true")
ap.add_argument("--nopair", action="store_true")
ap.add_argument("--limf", default="0x43800000")
ap.add_argument("--dbg", default="")
ap.add_argument("--stamps", action="store_true")
a = ap.parse_args()
NT = " nt"
OST = "" if not a.ost else " " + a.ost.replace("+", " ")
DBG = set(a.dbg.split(","))
D, D0, NS, G = a.D, a.D0, a.NS, a.G
assert 24 <= D0 <= 32 and (D - 2) // 8 == (D + 1) // 8 == 2 and 32 <= G < 64
CTH = [int(x) for x in a.cth.split(",")]
XT = [int(x) for x in a.xt.split(",")]
DV = [int(x) for x in a.dv.split(",")]
assert 17 <= D + DV[0] and D + DV[2] <= 24
DIVM = {5: (205, 10), 6: (43, 8), 7: (147, 10), 8: (1, 3), 10: (205, 11), 12: (171, 11)}[NS]
assert all((u * DIVM[0]) >> DIVM[1] == u // NS for u in range(129))
NW = 6
KBYTES = 4100 * 32768
SPIN = 1 << 22
NUM = a.NUM

RING = NS * 8192
PST = RING
MB = PST + G * 2048
MBS = 4224
CTRL = MB + 2 * MBS
FREE = CTRL + 512
REC0 = FREE + 128
DEPW = REC0 + 16
SL = FREE + 256
CNT = SL + 768
LA = CNT + 512
LB = LA + 512
KEYS = LB + 512
LDS = KEYS + 256
assert LDS <= 163840, LDS
WS0 = 0x100000 if a.stamps else 0
WSA = WS0 + 0x40000

out = []
def e(s): out.append("    " + s)
def lab(s): out.append(s + ":")
def c(s): out.append("    ; " + s)

sQ, sK, sV, sBT, sCL, sOUT, sDBG, sWS = 4, 6, 8, 10, 12, 14, 16, 18
sRD = 20
sB, sH, sW, sCLV = 28, 29, 30, 31
sT0, sT1, sT2, sT3 = 32, 33, 34, 35
sPC = 36
sSPIN = 38
sNB, sNTL, sNU, sT = 39, 40, 41, 42
sST = 64
sE = 72
sB0, sB1, sFL, sPM, sSLOT, sU, sTA0 = 46, 47, 48, 49, 52, 56, 57
sM = 46
sCI, sLND, sMBF, sNEED, sMRG, sMT, sROLE, sQO, sPLN, sSB = 48, 49, 50, 51, 52, 56, 57, 58, 59, 60
sV0 = 61
sCST = 62
sTN, sNK, sFWN, sFB, sPRE, sREDO, sLIMF, sPO = 96, 97, 98, 99, 100, 101, 53, 43
sMALL, sRS = 24, 26
sOFF, sTB0, sTB1, sTTC, sFIRST = 20, 21, 22, 23, 44
sZQ = 54
sRK, sPB, sNP, sX, sTA, sTB, sF, sWB = 80, 81, 82, 83, 84, 85, 86, 87
sMA, sMBK = 88, 90
sLO, sHI, sLBASE = 92, 93, 94
sBO = 56
vLANE = 1
vT0, vT1, vT2, vT3, vT4, vT5 = 2, 3, 4, 5, 6, 7
vL = 8
vKOFF, vVOFF = 10, 14
vCA, vCNT, vFA, vR = 18, 19, 20, 21
vF = 22
vCUR = 24
vTR = 28
vTRK, vTRV = 36, 52
vEN = 44
vDP, vDA, vOOB, vSA = 46, 47, 48, 49
vKA0, vVA0, vXA = 8, 12, 16
vPA0, vPW, vINV, vOA = 20, 21, 22, 23
vM, vLS, vMN, vAL, vPA, vFW = 24, 25, 26, 27, 28, 29
vPL = 30
vQ = 32
vS = 48
vP = 56
vG, vPF, vFV, vN = 60, 61, 62, 63
vKF = 64
vVF = 96
vO = 128
vE = 160
vPN = 160
NV = 168

def stamp(i):
    if a.amp and (i == 0 or (i == 1 and a.amp == "t0")): e(f"s_memrealtime s[{sST+2*i}:{sST+2*i+1}]")
    if a.hold and i == 0: e(f"{'s_memrealtime' if a.hold[:2] == 'rt' else 's_memtime'} s[{sST}:{sST+1}]")
    if a.stamps: e(f"s_memrealtime s[{sST+2*i}:{sST+2*i+1}]")
def clamp_cl(zq=None):
    c("context length: <=0 -> every key masked => uniform weights over 2048 keys (zero Q); >2048 -> 2048")
    e(f"s_cmp_lt_i32 s{sCLV}, 1")
    if zq is not None: e(f"s_cselect_b32 s{zq}, 1, 0")
    e(f"s_cselect_b32 s{sCLV}, 2048, s{sCLV}")
    e(f"s_min_i32 s{sCLV}, s{sCLV}, 2048")
def derive_nb():
    e(f"s_add_u32 s{sNTL}, s{sNB}, 1")
    e(f"s_lshr_b32 s{sNTL}, s{sNTL}, 1")
    e(f"s_sub_u32 s{sNU}, s{sNTL}, 1")
    e(f"s_min_u32 s{sNU}, s{sNU}, {NUM}")
def derive_cl():
    e(f"s_add_u32 s{sNB}, s{sCLV}, 15")
    e(f"s_lshr_b32 s{sNB}, s{sNB}, 4")
    derive_nb()
def spin_tail(label, sleep=1):
    e(f"s_sleep {sleep}")
    e(f"s_sub_u32 s{sSPIN}, s{sSPIN}, 1")
    e(f"s_cbranch_scc0 {label}")
    e("s_endpgm")
FIN = "s_branch L_fin" if (a.stamps or a.amp) else "s_endpgm"

out.append(HEADER.rstrip())
out.append(f"; @launch grid=(256,1,1) block=({64*NW},1,1) lds={LDS}")
out.append('.amdgcn_target "amdgcn-amd-amdhsa--gfx950"')
out.append(".text")
out.append(f".globl {NAME}_kernel")
out.append(".p2align 8")
out.append(f".type {NAME}_kernel,@function")
lab(f"{NAME}_kernel")
e("s_load_dwordx16 s[4:19], s[0:1], 0")
e(f"s_lshr_b32 s{sB}, s2, 3")
e(f"s_cmp_ge_u32 s{sB}, 32")
e("s_cbranch_scc1 L_end")
stamp(0)
e(f"v_lshrrev_b32 v{vT0}, 6, v0")
e(f"v_and_b32 v{vLANE}, 63, v0")
e(f"v_readfirstlane_b32 s{sW}, v{vT0}")
c("wave 1 pulls this kernel's code into L2")
e(f"s_getpc_b64 s[{sPC}:{sPC+1}]")
lab("L_pc")
e(f"v_lshlrev_b32 v{vT2}, 7, v{vLANE}")
e(f"v_min_u32 v{vT2}, L_end - L_pc - 256, v{vT2}")
e(f"s_cmp_lg_u32 s{sW}, 1")
e("s_cbranch_scc1 L_nopf")
e(f"global_load_dword v{vPF}, v{vT2}, s[{sPC}:{sPC+1}] offset:256")
if a.wake:
    e(f"s_mul_i32 s{sT3}, s2, {a.wake}")
    e(f"v_and_b32 v{vT2}, {a.wake - 256}, v{vT2}")
    e(f"v_add_u32 v{vT2}, s{sT3}, v{vT2}")
    e(f"v_add_u32 v{vT2}, L_pad - L_pc, v{vT2}")
    e(f"global_load_dword v{vFV}, v{vT2}, s[{sPC}:{sPC+1}] nt")
lab("L_nopf")
c("clear the control words and the sort counters")
e(f"v_mov_b64 v[{vT2}:{vT3}], 0")
e(f"v_lshlrev_b32 v{vT4}, 3, v0")
e(f"v_add_u32 v{vT4}, {CTRL}, v{vT4}")
e(f"ds_write_b64 v{vT4}, v[{vT2}:{vT3}]")
if a.map == "rot":
    e(f"s_add_u32 s{sH}, s2, s{sB}")
    e(f"s_and_b32 s{sH}, s{sH}, 7")
elif a.hrot:
    e(f"s_add_u32 s{sH}, s2, {a.hrot}")
    e(f"s_and_b32 s{sH}, s{sH}, 7")
else:
    e(f"s_and_b32 s{sH}, s2, 7")
e(f"s_lshl3_add_u32 s{sT2}, s{sB}, s{sH}")
e(f"s_lshl_b32 s{sT2}, s{sT2}, 13")
e(f"v_lshl_add_u32 v{vT5}, v{vLANE}, 7, s{sT2}")
e(f"s_lshl_b32 s{sT0}, s{sB}, 9")
e(f"v_lshl_add_u32 v{vT2}, v{vLANE}, 3, s{sT0}")
if not a.spec: e(f"s_lshl_b32 s{sT1}, s{sB}, 2")
e(f"v_and_b32 v{vT0}, 31, v{vLANE}")
e(f"v_lshlrev_b32 v{vT3}, 2, v{vT0}")
vTL = 22
if a.tlb:
    e(f"v_min_u32 v{vTL}, {(2 << (21 - a.tlbs)) - 1}, v{vLANE}")
    e(f"v_lshl_add_u32 v{vTL}, v{vTL}, 5, s{sB}")
    e(f"s_mul_i32 s{sT3}, s2, {8064 >> (21 - a.tlbs) & ~127}")
    e(f"v_lshl_add_u32 v{vTL}, v{vTL}, {a.tlbs}, s{sT3}")
e(f"s_cmp_lg_u32 s{sW}, 2")
e("s_waitcnt lgkmcnt(0)")
e(f"s_load_dwordx8 s[{sE}:{sE+7}], s[{sBT}:{sBT+1}], s{sT0}")
if not a.spec: e(f"s_load_dword s{sCLV}, s[{sCL}:{sCL+1}], s{sT1}")
c("wave 2 touches the 64 lines of this workgroup's queries while memory is still idle")
e("s_cbranch_scc1 L_noq")
if "k" in a.tlb: e(f"global_load_dword v{vFV}, v{vTL}, s[{sK}:{sK+1}] nt")
e(f"global_load_dword v{vPF}, v{vT5}, s[{sQ}:{sQ+1}]")
lab("L_noq")
if a.opf:
    e(f"s_cmp_lg_u32 s{sW}, 4")
    e("s_cbranch_scc1 L_noo")
    e(f"global_load_dword v{vPF}, v{vT5}, s[{sOUT}:{sOUT+1}]")
    lab("L_noo")
e(f"global_load_dwordx2 v[{vL}:{vL+1}], v{vT2}, s[{sBT}:{sBT+1}]")
e(f"global_load_dword v{vN}, v{vT3}, s[{sCL}:{sCL+1}]")
lab("L_loads_issued")
if a.amp == "t0k": e(f"s_memrealtime s[{sST+2}:{sST+3}]")
e(f"s_cmp_lg_u32 s{sW}, 0")
e(f"s_mov_b32 s{sSPIN}, {SPIN}")
e("s_cbranch_scc1 L_notloader")

e("s_setprio 3")
c("per-lane source offsets of the LDS-DMA pieces (bank swizzle applied on the source side)")
e(f"v_lshrrev_b32 v{vR}, 4, v{vLANE}")
e(f"v_and_b32 v{vT1}, 15, v{vLANE}")
e(f"s_lshl_b32 s{sT0}, s{sH}, 8")
e(f"v_lshl_add_u32 v{vT4}, v{vR}, 11, s{sT0}")
e(f"v_xor_b32 v{vT2}, v{vR}, v{vT1}")
e(f"v_lshl_add_u32 v{vKOFF}, v{vT2}, 4, v{vT4}")
for j in range(1, 4):
    e(f"v_xor_b32 v{vT3}, {64*j}, v{vKOFF}")
    e(f"v_add_u32 v{vKOFF+j}, {7168*j}, v{vT3}")
e(f"s_mov_b32 s{sRD}, s{sK}")
e(f"s_and_b32 s{sRD+1}, s{sK+1}, 0xffff")
e(f"s_mov_b32 s{sRD+2}, {KBYTES}")
e(f"s_mov_b32 s{sRD+3}, 0x20000")
if a.amp == "t0c": e(f"s_memrealtime s[{sST+2}:{sST+3}]")
e("s_waitcnt lgkmcnt(0)")
if not a.spec: clamp_cl()
c("the first stream tiles are the leading logical tiles; requested before the context length is known")
NE = a.NE
for t in range(NE):
    if not a.spec:
        e(f"s_cmp_le_u32 s{sCLV}, {32*(t+1)}")
        e(f"s_cbranch_scc1 {'L_ld_b' if t < 2 else 'L_ld_pre'}")
    if t == 0: stamp(1)
    for j in range(8):
        i = 8 * t + j
        if j % 4 == 0:
            e(f"s_movk_i32 m0, {1024*i}")
            e(f"s_lshl_b32 s{sB0}, s{sE+i//4}, 15")
        if i >= D0: e(f"s_waitcnt vmcnt({D0-1})")
        e(f"buffer_load_dwordx4 v{vKOFF+j%4}, s[{sRD}:{sRD+3}], s{sB0} offen offset:{1024*(j%4)}{NT} lds")
    if t == 1:
        lab("L_ld_b")
        e("s_barrier")
lab("L_ld_pre")
j0 = (D - 1) % 8
e(f"v_lshlrev_b32 v{vT3}, 2, v{vR}")
e(f"v_xor_b32 v{vT3}, v{vT3}, v{vT1}")
e(f"v_lshl_add_u32 v{vVOFF}, v{vT3}, 4, v{vT4}")
for j in range(1, 4):
    e(f"v_add_u32 v{vVOFF+j}, {7168*j}, v{vVOFF}")
e(f"v_lshlrev_b32 v{vCA}, 3, v{vLANE}")
e(f"v_add_u32 v{vT0}, {SL}, v{vCA}")
e(f"v_add_u32 v{vCA}, {CTRL}, v{vCA}")
e(f"v_mov_b32 v{vFA}, {FREE}")
e(f"v_mov_b64 v[{vF}:{vF+1}], 0")
e(f"v_mov_b32 v{vDP}, {2 if NE == 3 else 0}")
e(f"v_mov_b32 v{vDA}, {DEPW}")
e(f"v_bfrev_b32 v{vOOB}, 1")
def set_pass(off):
    for j in range(0, 4, 2): e(f"v_mov_b64 v[{vCUR+j}:{vCUR+j+1}], v[{off+j}:{off+j+1}]")
set_pass(vKOFF)
if "prog3" in DBG: e("v_mov_b32 v50, 0")
e(f"s_mov_b32 s{sPM}, 4")
e(f"s_mov_b32 s{sTA0}, 0")
if a.spec:
    e(f"s_waitcnt vmcnt({8*NE})")
    e(f"v_readlane_b32 s{sCLV}, v{vN}, s{sB}")
    clamp_cl()
derive_cl()
c("the leading tiles enter the stream list straight from the table row")
e(f"s_min_u32 s{sT}, s{sNU}, {NE}")
e(f"s_lshl3_add_u32 s{sT0}, s{sT}, {SL}")
e(f"v_mov_b32 v{vSA}, s{sT0}")
e(f"s_sub_u32 s{sT0}, s{sT}, 3")
e(f"v_mov_b32 v{vCNT}, s{sT0}")
e(f"s_bfm_b64 s[{sT2}:{sT2+1}], s{sNU}, 0")
e(f"s_cmp_ge_u32 s{sNU}, {NE}")
e("s_cbranch_scc1 L_ld_row")
e("s_waitcnt vmcnt(0)")
lab("L_ld_row")
if not (a.spec and NE == 3): e("s_waitcnt vmcnt(24)")
if NE == 4: e(f"ds_write_b32 v{vCA}, v{vCNT}")
e(f"v_lshl_or_b32 v{vEN}, v{vL}, 15, 1")
e(f"v_lshlrev_b32 v{vEN+1}, 15, v{vL+1}")
e(f"s_mov_b64 exec, s[{sT2}:{sT2+1}]")
e(f"ds_write_b64 v{vT0}, v[{vEN}:{vEN+1}]")
e("s_mov_b64 exec, -1")
e(f"ds_read_b64 v[{vEN}:{vEN+1}], v{vSA}")
e(f"s_lshl_b32 s{sSLOT}, s{sT}, 13")
e(f"s_mov_b32 s{sU}, s{sT}")
c("lanes of the last logical tile whose rows lie inside the context")
e(f"s_lshl_b32 s{sT0}, s{sNTL}, 5")
e(f"s_sub_u32 s{sT0}, s{sCLV}, s{sT0}")
e(f"s_add_u32 s{sT0}, s{sT0}, 32")
e(f"v_sub_u32 v{vT1}, s{sT0}, v{vR}")
for k in range(8):
    e(f"v_cmp_lt_i32 s[{80+2*k}:{81+2*k}], {4*k}, v{vT1}")
if a.amp == "t0r": e(f"s_memrealtime s[{sST+2}:{sST+3}]")
if a.amp[:3] == "t0l":
    e(f"s_waitcnt vmcnt({int(a.amp[3:])})")
    e(f"s_memrealtime s[{sST+2}:{sST+3}]")
stamp(2)
def unit_body(depth, trimmed=False):
    for j in range(8):
        if j % 4 == 0: e(f"s_add_u32 m0, s{sSLOT}, {1024*j}")
        e(f"s_waitcnt vmcnt({depth-1})")
        e(f"buffer_load_dwordx4 v{vTR+j if trimmed else vCUR+j%4}, s[{sRD}:{sRD+3}], s{sB0 + j//4} offen offset:{1024*(j%4)}{NT} lds")
        if j == (depth - 1) % 8:
            e(f"v_add_u32 v{vCNT}, 1, v{vCNT}")
            e(f"ds_write_b32 v{vCA}, v{vCNT}")
        if j == 0:
            e(f"s_add_u32 s{sT2}, s{sSLOT}, 8192")
            e(f"s_cmp_eq_u32 s{sT2}, {RING}")
            e(f"s_cselect_b32 s{sT2}, 0, s{sT2}")
            e(f"s_lshr_b32 s{sT0}, s{sT2}, 10")
            e(f"s_add_u32 s{sT0}, s{sT0}, {FREE}")
            e(f"v_mov_b32 v{vFA}, s{sT0}")
        if j == 1:
            e(f"s_add_u32 s{sT}, s{sT}, 1")
            e(f"s_and_b32 s{sT0}, s{sFL}, s{sPM}")
            e(f"s_cselect_b32 s{sT}, s{sTA0}, s{sT}")
            e(f"s_lshl3_add_u32 s{sT0}, s{sT}, {SL}")
            e(f"v_mov_b32 v{vSA}, s{sT0}")
            e(f"s_add_u32 s{sU}, s{sU}, 1")
        if j == a.fpf:
            c("prefetch the next list entry, the FREE words of the next slot and the depth code")
            e(f"ds_read_b64 v[{vEN}:{vEN+1}], v{vSA}")
            e(f"ds_read_b64 v[{vF}:{vF+1}], v{vFA}")
            e(f"ds_read_b32 v{vDP}, v{vDA}")
            e(f"s_mov_b32 s{sSLOT}, s{sT2}")
out.append(".p2align 3")
lab("L_ld")
if "prog3" in DBG:
    e(f"s_memrealtime s[{sST+4}:{sST+5}]")
    e(f"s_min_u32 m0, s{sU}, 63")
e("s_waitcnt lgkmcnt(0)")
if "prog3" in DBG: e(f"v_writelane_b32 v50, s{sST+4}, m0")
e(f"v_min_i32 v{vT0}, v{vF}, v{vF+1}")
e(f"v_readfirstlane_b32 s{sFL}, v{vEN}")
e(f"v_readfirstlane_b32 s{sB1}, v{vEN+1}")
e(f"v_readfirstlane_b32 s{sT0}, v{vT0}")
e(f"v_readfirstlane_b32 s{sT3}, v{vDP}")
e(f"s_sub_u32 s{sT1}, s{sU}, {NS-1}")
e(f"s_cmp_ge_i32 s{sT0}, s{sT1}")
e(f"s_cselect_b32 s{sT0}, s{sFL}, 0")
e(f"s_and_b32 s{sB0}, s{sFL}, -16")
e(f"s_and_b32 s{sT0}, s{sT0}, 3")
e(f"s_cmp_lg_u32 s{sT0}, 1")
e("s_cbranch_scc1 L_ld_odd")
e(f"s_cmp_lg_u32 s{sT3}, 0")
e("s_cbranch_scc1 L_ld_var")
unit_body(D)
lab("L_ld_next")
e(f"s_bitcmp1_b32 s{sFL}, 2")
e("s_cbranch_scc0 L_ld")
c("last tile of the batch: change pass")
e(f"s_xor_b32 s{sPM}, s{sPM}, 4")
e("s_cbranch_scc1 L_ld_tok")
e(f"s_mov_b32 s{sRD}, s{sV}")
e(f"s_and_b32 s{sRD+1}, s{sV+1}, 0xffff")
set_pass(vVOFF)
e("s_branch L_ld")
lab("L_ld_tok")
e(f"s_bitcmp1_b32 s{sFL}, 3")
e("s_cbranch_scc0 L_ld_more")
for r in (16, 8, 0):
    e(f"v_add_u32 v{vCNT}, 1, v{vCNT}")
    e(f"s_waitcnt vmcnt({r})")
    e(f"ds_write_b32 v{vCA}, v{vCNT}")
if a.hold:
    lab("L_hold")
    e(f"{'s_memrealtime' if a.hold[:2] == 'rt' else 's_memtime'} s[{sST+2}:{sST+3}]")
    e("s_waitcnt lgkmcnt(0)")
    e(f"s_sub_u32 s{sT0}, s{sST+2}, s{sST}")
    e(f"s_cmp_lt_u32 s{sT0}, {a.hold[3:]}")
    e("s_cbranch_scc1 L_hold")
e(FIN)
lab("L_ld_more")
e(f"s_mov_b32 s{sTA0}, s{sT}")
e(f"s_mov_b32 s{sRD}, s{sK}")
e(f"s_and_b32 s{sRD+1}, s{sK+1}, 0xffff")
set_pass(vKOFF)
e("s_branch L_ld")
lab("L_ld_odd")
e(f"s_cmp_eq_u32 s{sT0}, 3")
e("s_cbranch_scc1 L_ld_m")
c("slot not free yet or entry not written yet")
e(f"ds_read_b64 v[{vEN}:{vEN+1}], v{vSA}")
e(f"ds_read_b64 v[{vF}:{vF+1}], v{vFA}")
e(f"s_sub_u32 s{sSPIN}, s{sSPIN}, 1")
e("s_cbranch_scc0 L_ld")
e("s_endpgm")
lab("L_ld_m")
c("the last logical tile: rows past the context are not fetched (their lanes read zeros)")
for k in range(8):
    e(f"v_cndmask_b32 v{vTR+k}, v{vOOB}, v{vCUR+k%4}, s[{80+2*k}:{81+2*k}]")
unit_body(D + a.DM, True)
e("s_branch L_ld_next")
lab("L_ld_var")
e(f"s_cmp_eq_u32 s{sT3}, 1")
e("s_cbranch_scc1 L_ld_v2")
e(f"s_cmp_eq_u32 s{sT3}, 2")
e("s_cbranch_scc1 L_ld_v3")
unit_body(D + DV[0])
e("s_branch L_ld_next")
lab("L_ld_v2")
unit_body(D + DV[1])
e("s_branch L_ld_next")
lab("L_ld_v3")
unit_body(D + DV[2])
e("s_branch L_ld_next")

lab("L_notloader")
e(f"s_cmp_ge_u32 s{sW}, 3")
e("s_cbranch_scc1 L_planner")
e(f"s_sub_u32 s{sCI}, s{sW}, 1")
def rows_off(sb):
    e(f"s_lshl3_add_u32 s{sQO}, s{sb}, s{sH}")
    e(f"s_lshl1_add_u32 s{sQO}, s{sQO}, s{sCI}")
    e(f"s_lshl_b32 s{sQO}, s{sQO}, 12")
    e(f"v_and_b32 v{vT0}, 15, v{vLANE}")
    e(f"v_lshrrev_b32 v{vG}, 4, v{vLANE}")
def load_q(sb):
    rows_off(sb)
    e(f"v_lshl_add_u32 v{vT4}, v{vT0}, 8, s{sQO}")
    e(f"v_lshl_add_u32 v{vT4}, v{vG}, 4, v{vT4}")
    for s in range(4):
        e(f"global_load_dwordx4 v[{vQ+4*s}:{vQ+4*s+3}], v{vT4}, s[{sQ}:{sQ+1}] offset:{64*s}")
load_q(sB)
e("s_barrier")
e(f"s_mov_b32 s{sROLE}, 0")
e(f"s_mov_b32 s{sPLN}, 0")
e(f"s_mov_b32 s{sMRG}, 0")
if a.spec:
    e("s_waitcnt vmcnt(4) lgkmcnt(0)")
    e(f"v_readlane_b32 s{sCLV}, v{vN}, s{sB}")
else: e("s_waitcnt lgkmcnt(0)")
clamp_cl(zq=sT3)
derive_cl()
c("valid keys of the last logical tile")
e(f"s_lshl_b32 s{sV0}, s{sNTL}, 5")
e(f"s_sub_u32 s{sV0}, s{sCLV}, s{sV0}")
e(f"s_add_u32 s{sV0}, s{sV0}, 32")
e(f"s_bfm_b64 s[{sM}:{sM+1}], s{sNU}, 0")
lab("L_csetup")
e(f"s_mov_b32 s{sMT}, 0")
e(f"s_mov_b32 s{sOFF}, 0")
e(f"s_mov_b32 s{sTB0}, 0")
e(f"s_mov_b32 s{sFIRST}, 1")
e(f"s_mov_b64 s[{sRS}:{sRS+1}], 0")
e("s_waitcnt vmcnt(4)")
e(f"v_and_b32 v{vT0}, 15, v{vLANE}")
e(f"v_xor_b32 v{vT1}, v{vG}, v{vT0}")
e(f"v_lshlrev_b32 v{vT2}, 8, v{vT0}")
e(f"v_lshl_add_u32 v{vKA0}, v{vT1}, 4, v{vT2}")
for s in range(1, 4):
    e(f"v_xor_b32 v{vKA0+s}, {64*s}, v{vKA0}")
e(f"v_bfe_u32 v{vT0}, v{vLANE}, 2, 2")
e(f"v_lshl_add_u32 v{vT1}, v{vG}, 2, v{vT0}")
e(f"v_lshlrev_b32 v{vT1}, 8, v{vT1}")
e(f"v_and_b32 v{vT2}, 3, v{vLANE}")
e(f"v_lshl_add_u32 v{vT1}, v{vT2}, 4, v{vT1}")
e(f"v_lshl_add_u32 v{vVA0}, v{vT0}, 6, v{vT1}")
for j in range(1, 4):
    e(f"v_xor_b32 v{vVA0+j}, {64*j}, v{vVA0}")
e(f"s_lshl_b32 s{sT0}, s{sCI}, 10")
e(f"s_add_u32 s{sT0}, s{sT0}, {PST}")
e(f"v_lshl_add_u32 v{vPA0}, v{vLANE}, 4, s{sT0}")
e(f"v_mov_b32 v{vOA}, v{vT4}")
e(f"s_lshl_b32 s{sT0}, s{sW}, 3")
e(f"s_add_u32 s{sT0}, s{sT0}, {CTRL-8}")
e(f"v_mov_b32 v{vPA}, s{sT0}")
e(f"v_mov_b32 v{vM}, 0xff800000")
e(f"v_mov_b32 v{vLS}, 0")
for r in range(0, 32, 2): e(f"v_mov_b64 v[{vO+r}:{vO+r+1}], 0")
e(f"s_mov_b32 s{sCST}, 0x3e0293ee")
e(f"s_mov_b32 s{sCST+1}, 0x3e0293ee")
e(f"s_mov_b32 s{sLIMF}, {a.limf}")
e(f"s_lshl2_add_u32 s{sFB}, s{sCI}, {FREE}")
e("s_waitcnt vmcnt(0)")
e(f"s_cmp_eq_u32 s{sT3}, 0")
e("s_cbranch_scc1 L_k_first")
for r in range(0, 16, 2): e(f"v_mov_b64 v[{vQ+r}:{vQ+r+1}], 0")

def poll(label):
    lab(label)
    e(f"ds_read_b64 v[{vPL}:{vPL+1}], v{vPA}")
    e(f"s_sub_u32 s{sSPIN}, s{sSPIN}, 1")
    e("s_cbranch_scc1 L_end")
    e("s_waitcnt lgkmcnt(0)")
    e(f"v_readfirstlane_b32 s{sLND}, v{vPL}")
    e(f"s_cmp_ge_i32 s{sLND}, s{sNK}")
    e(f"s_cbranch_scc0 {label}")
VR = []
for j in range(4):
    for ee in range(2):
        for blk in range(2):
            r = vVF + (2 * j + ee) * 4 + 2 * blk
            VR.append(f"ds_read_b64_tr_b16 v[{r}:{r+1}], v{vXA+j} offset:{8*ee + 4096*blk}")
KR, QK = [], []
for blk in range(2):
    for st in range(4):
        r = vKF + (blk * 4 + st) * 4
        KR.append(f"ds_read_b128 v[{r}:{r+3}], v{vXA+st} offset:{4096*blk}")
        cc = "0" if st == 0 else f"v[{vS+4*blk}:{vS+4*blk+3}]"
        QK.append(f"v_mfma_f32_16x16x32_bf16 v[{vS+4*blk}:{vS+4*blk+3}], v[{r}:{r+3}], v[{vQ+4*st}:{vQ+4*st+3}], {cc}")
PV = [f"v_mfma_f32_16x16x32_bf16 v[{vO+4*dt}:{vO+4*dt+3}], v[{vVF+4*dt}:{vVF+4*dt+3}], v[{vP}:{vP+3}], v[{vO+4*dt}:{vO+4*dt+3}]" for dt in range(8)]
NX = [f"s_ff1_i32_b64 s{sTN}, s[{sM}:{sM+1}]",
      f"s_bitset0_b64 s[{sM}:{sM+1}], s{sTN}",
      f"s_add_u32 s{sT1}, s{sTN}, s{sOFF}",
      f"s_mul_i32 s{sT0}, s{sT1}, {DIVM[0]}",
      f"s_lshr_b32 s{sT0}, s{sT0}, {DIVM[1]}",
      f"s_mul_i32 s{sT0}, s{sT0}, {NS}",
      f"s_sub_u32 s{sT0}, s{sT1}, s{sT0}",
      f"s_lshl_b32 s{sSB}, s{sT0}, 13",
      f"s_lshl3_add_u32 s{sFWN}, s{sT0}, s{sFB}",
      f"s_and_b32 s{sT0}, s{sTN}, 0x40000000",
      f"s_add_u32 s{sNK}, s{sT1}, 1",
      f"s_or_b32 s{sNK}, s{sNK}, s{sT0}",
      f"s_sub_u32 s{sPO}, s{sTN}, s{sTB0}",
      f"s_lshl_b32 s{sPO}, s{sPO}, 11"]
KA = [f"v_add_u32 v{vXA+i}, s{sSB}, v{vKA0+i}" for i in range(4)]
VA = [f"v_add_u32 v{vXA+i}, s{sSB}, v{vVA0+i}" for i in range(4)]
ADV = [f"v_mov_b32 v{vFW}, s{sFWN}",
       f"v_mov_b32 v{vFV}, s{sNK}",
       f"v_add_u32 v{vPW}, s{sPO}, v{vPA0}",
       f"s_add_u32 s{sT}, s{sTN}, 1"]
def scale_o(reg):
    for r in range(0, 32, 2):
        sel = "op_sel:[0,1] op_sel_hi:[1,1]" if reg & 1 else "op_sel_hi:[1,0]"
        p = reg & ~1
        e(f"v_pk_mul_f32 v[{vO+r}:{vO+r+1}], v[{vO+r}:{vO+r+1}], v[{p}:{p+1}] {sel}")

def inv_pre():
    e(f"v_mov_b32 v{vT0}, v{vLS}")
    e(f"v_mov_b32 v{vT1}, v{vLS}")
    e("s_nop 1")
    e(f"v_permlane32_swap_b32 v{vT0}, v{vT1}")
    e("s_nop 0")
    e(f"v_add_f32 v{vT0}, v{vT0}, v{vT1}")
    e(f"v_mov_b32 v{vT1}, v{vT0}")
    e("s_nop 1")
    e(f"v_permlane16_swap_b32 v{vT0}, v{vT1}")
    e("s_nop 0")
    e(f"v_add_f32 v{vT0}, v{vT0}, v{vT1}")
    e(f"v_rcp_f32 v{vINV}, v{vT0}")

lab("L_k_first")
for x in NX + KA + ADV: e(x)
lab("L_k_next")
e(f"s_cmp_lt_i32 s{sTN}, 0")
e("s_cbranch_scc1 L_k_empty")
poll("L_k_poll")
for x in KR: e(x)
e("s_waitcnt lgkmcnt(0)")
out.append(".p2align 3")
lab("L_k_top")
e("s_waitcnt lgkmcnt(1)")
e(f"ds_write_b32 v{vFW}, v{vFV}")
e(f"ds_read_b64 v[{vPL}:{vPL+1}], v{vPA}")
fill = NX + KA
for i in range(8):
    e(QK[i])
    for x in fill[2*i:2*i+2]: e(x)
for x in fill[16:]: e(x)
e(f"s_mov_b32 s{sREDO}, 0")
e("s_waitcnt lgkmcnt(0)")
e(f"v_readfirstlane_b32 s{sLND}, v{vPL}")
e(f"s_cmp_ge_i32 s{sLND}, s{sNK}")
e(f"s_cselect_b32 s{sPRE}, 1, 0")
e("s_cbranch_scc0 L_k_nopre")
for x in KR: e(x)
lab("L_k_nopre")
e(f"s_cmp_eq_u32 s{sT}, s{sMT}")
e("s_cbranch_scc1 L_k_mask")
lab("L_k_exp")
for hb in range(2):
    for r in (4*hb, 4*hb+2):
        e(f"v_pk_fma_f32 v[{vE+r}:{vE+r+1}], v[{vS+r}:{vS+r+1}], s[{sCST}:{sCST+1}], v[{vM}:{vM+1}] op_sel_hi:[1,1,0] neg_lo:[0,0,1] neg_hi:[0,0,1]")
    for r in range(4*hb, 4*hb+4):
        e(f"v_exp_f32 v{vE+r}, v{vE+r}")
e(f"v_pk_add_f32 v[{vT0}:{vT1}], v[{vE}:{vE+1}], v[{vE+2}:{vE+3}]")
e(f"v_pk_add_f32 v[{vT2}:{vT3}], v[{vE+4}:{vE+5}], v[{vE+6}:{vE+7}]")
e(f"v_cvt_pk_bf16_f32 v{vP}, v{vE}, v{vE+1}")
e(f"v_pk_add_f32 v[{vT0}:{vT1}], v[{vT0}:{vT1}], v[{vT2}:{vT3}]")
e(f"v_cvt_pk_bf16_f32 v{vP+1}, v{vE+2}, v{vE+3}")
e(f"v_add_f32 v{vT0}, v{vT0}, v{vT1}")
c("the kept reference max is safe only while every weight stays <= 256; otherwise take the true max")
e(f"v_cmp_nge_f32 vcc, s{sLIMF}, v{vT0}")
e(f"v_cvt_pk_bf16_f32 v{vP+2}, v{vE+4}, v{vE+5}")
e(f"v_cvt_pk_bf16_f32 v{vP+3}, v{vE+6}, v{vE+7}")
e(ADV[0]); e(ADV[1])
e("s_nop 0")
e("s_cbranch_vccnz L_k_slow")
lab("L_k_done")
e(f"ds_write_b128 v{vPW}, v[{vP}:{vP+3}]")
e(f"v_add_f32 v{vLS}, v{vLS}, v{vT0}")
e(ADV[3])
e(f"s_cmp_lg_u32 s{sPRE}, 0")
e(ADV[2])
e("s_cbranch_scc1 L_k_top")
e("s_branch L_k_next")

lab("L_k_mask")
e(f"v_lshlrev_b32 v{vT0}, 2, v{vG}")
e(f"v_sub_u32 v{vT0}, s{sV0}, v{vT0}")
e(f"v_mov_b32 v{vT1}, 0xff800000")
for r in range(8):
    e(f"v_cmp_lt_i32 s[{80+2*r}:{81+2*r}], {16*(r//4)+r%4}, v{vT0}")
for r in range(8):
    e(f"v_cndmask_b32 v{vS+r}, v{vT1}, v{vS+r}, s[{80+2*r}:{81+2*r}]")
e("s_branch L_k_exp")

def alpha_addr():
    e(f"s_lshl_b32 s{sT0}, s2, 6")
    e(f"s_add_u32 s{sT0}, s{sT0}, s{sT}")
    e(f"s_lshl1_add_u32 s{sT0}, s{sT0}, s{sCI}")
    e(f"s_lshl_b32 s{sT0}, s{sT0}, 6")
    e(f"s_add_u32 s{sT0}, s{sT0}, {WSA}")
    e(f"v_and_b32 v{vT1}, 15, v{vLANE}")
    e(f"v_lshl_add_u32 v{vT1}, v{vT1}, 2, s{sT0}")
c("raise the reference to the true running max; the accumulator is rescaled when pass 2 reaches this tile")
lab("L_k_slow")
e(f"s_cmp_lg_u32 s{sREDO}, 0")
e("s_cbranch_scc1 L_k_done")
e(f"s_mov_b32 s{sREDO}, 1")
e(f"v_max3_f32 v{vT0}, v{vS}, v{vS+1}, v{vS+2}")
e(f"v_max3_f32 v{vT1}, v{vS+3}, v{vS+4}, v{vS+5}")
e(f"v_max3_f32 v{vT0}, v{vT0}, v{vS+6}, v{vS+7}")
e(f"v_max_f32 v{vT0}, v{vT0}, v{vT1}")
e(f"v_mov_b32 v{vT1}, v{vT0}")
e("s_nop 1")
e(f"v_permlane32_swap_b32 v{vT0}, v{vT1}")
e("s_nop 0")
e(f"v_max_f32 v{vT0}, v{vT0}, v{vT1}")
e(f"v_mov_b32 v{vT1}, v{vT0}")
e("s_nop 1")
e(f"v_permlane16_swap_b32 v{vT0}, v{vT1}")
e("s_nop 0")
e(f"v_max_f32 v{vT0}, v{vT0}, v{vT1}")
e(f"v_mul_f32 v{vT0}, s{sCST}, v{vT0}")
e(f"v_max_f32 v{vMN}, v{vM}, v{vT0}")
e(f"v_sub_f32 v{vAL}, v{vM}, v{vMN}")
e(f"v_exp_f32 v{vAL}, v{vAL}")
e(f"v_mov_b32 v{vM}, v{vMN}")
e(f"s_cmp_lg_u32 s{sFIRST}, 0")
e(f"s_mov_b32 s{sFIRST}, 0")
e(f"v_mul_f32 v{vLS}, v{vLS}, v{vAL}")
e("s_cbranch_scc1 L_k_exp")
alpha_addr()
e(f"global_store_dword v{vT1}, v{vAL}, s[{sWS}:{sWS+1}]")
e(f"s_sub_u32 s{sT0}, s{sT}, 1")
e(f"s_bitset1_b64 s[{sRS}:{sRS+1}], s{sT0}")
e("s_branch L_k_exp")

RLO, RHI = 0xffffffff, (1 << (G - 32)) - 1
lab("L_k_noplan")
e(f"s_mov_b32 s{sPLN}, 1")
e(f"v_mov_b32 v{vT1}, {REC0}")
lab("L_k_plan")
e(f"ds_read_b128 v[{vT2}:{vT5}], v{vT1}")
e("s_waitcnt lgkmcnt(0)")
e(f"v_readfirstlane_b32 s{sT0}, v{vT5}")
e(f"v_readfirstlane_b32 s{sM}, v{vT2}")
e(f"v_readfirstlane_b32 s{sM+1}, v{vT3}")
e(f"v_readfirstlane_b32 s{sTTC}, v{vT4}")
e(f"s_cmp_lg_u32 s{sT0}, 0")
e("s_cbranch_scc1 L_k_got")
spin_tail("L_k_plan")
lab("L_k_got")
e(f"s_lshr_b32 s{sMT}, s{sT0}, 8")
e(f"s_add_u32 s{sMT}, s{sMT}, 1")
e(f"s_and_b32 s{sMRG}, s{sTTC}, {0 if 'nomerge' in DBG else 1}")
e(f"s_lshr_b32 s{sTTC}, s{sTTC}, 8")
e(f"s_min_u32 s{sTB1}, s{sTTC}, {G}")
e(f"s_bfm_b64 s[{sMALL}:{sMALL+1}], s{sNU}, 0")
e(f"s_or_b64 s[{sMALL}:{sMALL+1}], s[{sMALL}:{sMALL+1}], s[{sM}:{sM+1}]")
e(f"s_and_b32 s{sM+1}, s{sM+1}, {RHI:#x}")
e("s_branch L_k_first")
lab("L_v_more")
c("second batch")
e(f"s_mov_b32 s{sTB0}, s{sTB1}")
e(f"s_mov_b32 s{sTB1}, s{sTTC}")
e(f"s_mov_b32 s{sOFF}, s{sTB0}")
e(f"s_mov_b32 s{sMALL}, 0")
e(f"s_andn2_b32 s{sMALL+1}, s{sMALL+1}, {RHI:#x}")
e(f"s_mov_b64 s[{sM}:{sM+1}], s[{sMALL}:{sMALL+1}]")
e("s_branch L_k_first")
lab("L_k_empty")
e(f"s_cmp_eq_u32 s{sPLN}, 0")
e("s_cbranch_scc1 L_k_noplan")
if a.last: inv_pre()
e(f"s_mov_b32 s{sOFF}, s{sTB1}")
e(f"s_mov_b32 s{sM}, s{sMALL}")
e(f"s_and_b32 s{sM+1}, s{sMALL+1}, {RHI:#x}")
e(f"s_cmp_eq_u32 s{sTB0}, 0")
e(f"s_cselect_b32 s{sM+1}, s{sM+1}, s{sMALL+1}")
for x in NX + VA: e(x)
e(f"ds_read_b64 v[{vPL}:{vPL+1}], v{vPA}")
e(f"s_cmp_lt_i32 s{sTN}, 0")
e("s_cbranch_scc1 L_v_empty")
lab("L_v_next")
for x in ADV: e(x)
if a.last:
    e(f"s_cmp_eq_u64 s[{sM}:{sM+1}], 0")
    e("s_cbranch_scc1 L_v_islast")
lab("L_v_next2")
e(f"ds_read_b128 v[{vPN}:{vPN+3}], v{vPW}")
e("s_waitcnt lgkmcnt(1)")
e(f"v_readfirstlane_b32 s{sLND}, v{vPL}")
e(f"s_cmp_ge_i32 s{sLND}, s{sNK}")
e("s_cbranch_scc1 L_v_rd")
poll("L_v_poll")
lab("L_v_rd")
for x in VR: e(x)
if a.lat:
    e(f"v_readfirstlane_b32 s{sMBF}, v{vPL+1}")
    e(f"s_cmp_gt_i32 s{sLND}, s{sNK}")
    e(f"s_cselect_b32 s{sT0}, 1, s{sRS}")
    e(f"s_or_b32 s{sT0}, s{sT0}, s{sRS+1}")
    e(f"s_and_b32 s{sT1}, s{sMBF}, s{sMRG}")
    e(f"s_or_b32 s{sT0}, s{sT0}, s{sT1}")
    e("s_cbranch_scc0 L_v_lat")
out.append(".p2align 3")
lab("L_v_top")
for x in NX + VA: e(x)
e(f"s_sub_u32 s{sT0}, s{sT}, 1")
e(f"s_bitcmp1_b64 s[{sRS}:{sRS+1}], s{sT0}")
e("s_cbranch_scc1 L_v_resc")
lab("L_v_top2")
e("s_waitcnt lgkmcnt(14)")
e(f"v_readfirstlane_b32 s{sMBF}, v{vPL+1}")
e(f"v_readfirstlane_b32 s{sLND}, v{vPL}")
e(f"v_mov_b64 v[{vP}:{vP+1}], v[{vPN}:{vPN+1}]")
e(f"v_mov_b64 v[{vP+2}:{vP+3}], v[{vPN+2}:{vPN+3}]")
e(f"s_and_b32 s{sT0}, s{sMBF}, s{sMRG}")
e("s_cbranch_scc1 L_v_merge")
lab("L_v_top3")
e(f"s_cmp_ge_i32 s{sLND}, s{sNK}")
e("s_cbranch_scc0 L_v_pv")
e(ADV[2])
e("s_waitcnt lgkmcnt(0)")
e(f"ds_write_b32 v{vFW}, v{vFV}")
e(f"ds_read_b64 v[{vPL}:{vPL+1}], v{vPA}")
e(f"ds_read_b128 v[{vPN}:{vPN+3}], v{vPW}")
for i in range(8):
    e(PV[i]); e(VR[2*i]); e(VR[2*i+1])
e(ADV[0]); e(ADV[1]); e(ADV[3])
e("s_branch L_v_top")
if a.lat:
    c("nothing further has landed and nothing is pending: shortest way through this tile")
    lab("L_v_lat")
    e("s_waitcnt lgkmcnt(14)")
    e(f"v_mov_b64 v[{vP}:{vP+1}], v[{vPN}:{vPN+1}]")
    e(f"v_mov_b64 v[{vP+2}:{vP+3}], v[{vPN+2}:{vPN+3}]")
    fl = NX + VA
    e(fl[0]); e(fl[1])
    for i in range(8):
        if i: e(f"s_waitcnt lgkmcnt({14-2*i})")
        if i == 7:
            e(f"ds_write_b32 v{vFW}, v{vFV}")
            e(f"ds_read_b64 v[{vPL}:{vPL+1}], v{vPA}")
        e(PV[i])
        e(fl[2+2*i]); e(fl[3+2*i])
    e(f"s_cmp_ge_i32 s{sTN}, 0")
    e("s_cbranch_scc1 L_v_next")
    e("s_branch L_v_empty")
lab("L_v_pv")
if a.last:
    e(f"s_cmp_lt_i32 s{sTN}, 0")
    e("s_cbranch_scc1 L_v_islast2")
    lab("L_v_pv2")
for i in range(8):
    if i: e(f"s_waitcnt lgkmcnt({14-2*i})")
    if i == 7:
        e(f"ds_write_b32 v{vFW}, v{vFV}")
        e(f"ds_read_b64 v[{vPL}:{vPL+1}], v{vPA}")
    e(PV[i])
e(f"s_cmp_ge_i32 s{sTN}, 0")
e("s_cbranch_scc1 L_v_next")
lab("L_v_empty")
e(f"s_cmp_lt_u32 s{sTB1}, s{sTTC}")
e("s_cbranch_scc1 L_v_more")
stamp(2)
e(f"s_cmp_lg_u32 s{sMRG}, 0")
e("s_cbranch_scc1 L_c_mwait0")
lab("L_c_store")
e(f"v_mov_b32 v{vT0}, v{vLS}")
e(f"v_and_b32 v{vT2}, 15, v{vLANE}")
e(f"v_lshl_add_u32 v{vT2}, v{vT2}, 8, s{sQO}")
e(f"v_permlane32_swap_b32 v{vLS}, v{vT0}")
e("s_nop 0")
e(f"v_add_f32 v{vLS}, v{vLS}, v{vT0}")
e(f"v_mov_b32 v{vT0}, v{vLS}")
e(f"v_lshl_add_u32 v{vT2}, v{vG}, 4, v{vT2}")
e("s_nop 0")
e(f"v_permlane16_swap_b32 v{vLS}, v{vT0}")
e("s_nop 0")
e(f"v_add_f32 v{vLS}, v{vLS}, v{vT0}")
e(f"v_rcp_f32 v{vMN}, v{vLS}")
e(f"s_cmp_lg_u32 s{sROLE}, 0")
scale_o(vMN)
for r in range(16):
    e(f"v_cvt_pk_bf16_f32 v{vKF+r}, v{vO+2*r}, v{vO+2*r+1}")
e("s_cbranch_scc1 L_publish")
def out_stores(fl, step=64):
    for j in range(4):
        e(f"global_store_dwordx4 v{vT2}, v[{vKF+4*j}:{vKF+4*j+3}], s[{sOUT}:{sOUT+1}] offset:{step*j}{fl}")
out_stores(OST)
e(FIN)

def l_total():
    e(f"v_mov_b32 v{vT0}, v{vLS}")
    e(f"v_and_b32 v{vT2}, 15, v{vLANE}")
    e(f"v_lshl_add_u32 v{vT2}, v{vT2}, 8, s{sQO}")
    e(f"v_permlane32_swap_b32 v{vLS}, v{vT0}")
    e("s_nop 0")
    e(f"v_add_f32 v{vLS}, v{vLS}, v{vT0}")
    e(f"v_mov_b32 v{vT0}, v{vLS}")
    e(f"v_lshl_add_u32 v{vT2}, v{vG}, 4, v{vT2}")
    e("s_nop 0")
    e(f"v_permlane16_swap_b32 v{vLS}, v{vT0}")
    e("s_nop 0")
    e(f"v_add_f32 v{vLS}, v{vLS}, v{vT0}")
    e(f"v_rcp_f32 v{vMN}, v{vLS}")
if a.last:
    lab("L_v_islast2")
    e(f"s_sub_u32 s{sT0}, s{sTTC}, s{sTB1}")
    e(f"s_or_b32 s{sT0}, s{sT0}, s{sMRG}")
    e(f"s_or_b32 s{sT0}, s{sT0}, s{sROLE}")
    e("s_cbranch_scc1 L_v_pv2")
    e("s_branch L_v_lpv")
    lab("L_v_islast")
    c("closing tile of an owner with nothing pending: take the short path")
    e(f"s_sub_u32 s{sT0}, s{sTTC}, s{sTB1}")
    e(f"s_or_b32 s{sT0}, s{sT0}, s{sMRG}")
    e(f"s_or_b32 s{sT0}, s{sT0}, s{sROLE}")
    e(f"s_or_b32 s{sT0}, s{sT0}, s{sRS}")
    e(f"s_or_b32 s{sT0}, s{sT0}, s{sRS+1}")
    e("s_cbranch_scc1 L_v_next2")
    e(f"ds_read_b128 v[{vP}:{vP+3}], v{vPW}")
    e("s_waitcnt lgkmcnt(1)")
    e(f"v_readfirstlane_b32 s{sLND}, v{vPL}")
    e(f"s_cmp_ge_i32 s{sLND}, s{sNK}")
    e("s_cbranch_scc1 L_v_lrd")
    poll("L_v_lpoll")
    lab("L_v_lrd")
    for x in VR: e(x)
    def fin_j(j):
        r = []
        for k in range(4):
            q = vO + 8 * j + 2 * k
            r.append(f"v_pk_mul_f32 v[{q}:{q+1}], v[{q}:{q+1}], v[{vINV}:{vINV+1}] op_sel_hi:[1,0]")
        for k in range(4):
            r.append(f"v_cvt_pk_bf16_f32 v{vKF+4*j+k}, v{vO+8*j+2*k}, v{vO+8*j+2*k+1}")
        r.append(f"global_store_dwordx4 v{vOA}, v[{vKF+4*j}:{vKF+4*j+3}], s[{sOUT}:{sOUT+1}] offset:{64*j}{OST}")
        return r
    lab("L_v_lpv")
    f0 = fin_j(0)
    for i in range(8):
        e(f"s_waitcnt lgkmcnt({14-2*i})")
        e(PV[i])
        if i == 5: e(f0[0]); e(f0[1])
        if i == 6: e(f0[2]); e(f0[3])
    stamp(2)
    for x in f0[4:] + fin_j(1) + fin_j(2) + fin_j(3): e(x)
    e(f"ds_write_b32 v{vFW}, v{vFV}")
    e(FIN)

lab("L_v_resc")
e(f"s_bitset0_b64 s[{sRS}:{sRS+1}], s{sT0}")
alpha_addr()
e("s_waitcnt vmcnt(0)")
e(f"global_load_dword v{vAL}, v{vT1}, s[{sWS}:{sWS+1}] sc1")
e("s_waitcnt vmcnt(0)")
scale_o(vAL)
e("s_branch L_v_top2")

lab("L_v_merge")
c("only once no rescale is pending; the reference max stays, so the partial's max must not be far above it")
e(f"s_cmp_eq_u64 s[{sRS}:{sRS+1}], 0")
e("s_cbranch_scc0 L_v_top3")
lab("L_c_merge")
e(f"s_mul_i32 s{sT0}, s{sCI}, {MBS}")
e(f"s_add_u32 s{sT0}, s{sT0}, {MB}")
e(f"v_and_b32 v{vT1}, 15, v{vLANE}")
e(f"v_lshl_add_u32 v{vT0}, v{vLANE}, 4, s{sT0}")
e(f"v_lshl_add_u32 v{vT1}, v{vT1}, 3, s{sT0}")
e("s_waitcnt lgkmcnt(0)")
e(f"ds_write_b32 v{vFW}, v{vFV}")
e(f"ds_read_b64 v[{vT4}:{vT5}], v{vT1} offset:4096")
for i in range(4):
    e(f"ds_read_b128 v[{vKF+4*i}:{vKF+4*i+3}], v{vT0} offset:{1024*i}")
e(f"s_cmp_eq_u32 s{sPLN}, 2")
e("s_waitcnt lgkmcnt(0)")
e("s_cbranch_scc1 L_c_mfin")
e(f"v_sub_f32 v{vT4}, v{vT4}, v{vM}")
e(f"v_cmp_nge_f32 vcc, 0x41800000, v{vT4}")
e(f"s_mov_b32 s{sMRG}, 2")
e("s_nop 3")
e("s_cbranch_vccnz L_v_top3")
e("s_branch L_c_madd")
lab("L_c_mfin")
e(f"v_max_f32 v{vMN}, v{vM}, v{vT4}")
e(f"v_sub_f32 v{vAL}, v{vM}, v{vMN}")
e(f"v_sub_f32 v{vT4}, v{vT4}, v{vMN}")
e(f"v_exp_f32 v{vAL}, v{vAL}")
e("s_nop 0")
e(f"v_mul_f32 v{vLS}, v{vLS}, v{vAL}")
scale_o(vAL)
lab("L_c_madd")
e(f"v_exp_f32 v{vT4}, v{vT4}")
e(f"s_mov_b32 s{sMRG}, 0")
e(f"v_mul_f32 v{vT4}, v{vT4}, v{vT5}")
e(f"v_fmac_f32 v{vLS}, 0x3e800000, v{vT4}")
for r in range(16):
    t = vKF + 16 + 2 * (r % 4)
    e(f"v_lshlrev_b32 v{t}, 16, v{vKF+r}")
    e(f"v_and_b32 v{t+1}, 0xffff0000, v{vKF+r}")
    e(f"v_pk_fma_f32 v[{vO+2*r}:{vO+2*r+1}], v[{t}:{t+1}], v[{vT4}:{vT4+1}], v[{vO+2*r}:{vO+2*r+1}] op_sel_hi:[1,0,1]")
e(f"s_cmp_eq_u32 s{sPLN}, 2")
e("s_cbranch_scc1 L_c_store")
if a.last: inv_pre()
e("s_branch L_v_top3")
lab("L_c_mwait0")
e(f"s_mov_b32 s{sPLN}, 2")
lab("L_c_mwait")
e(f"ds_read_b64 v[{vPL}:{vPL+1}], v{vPA}")
e("s_waitcnt lgkmcnt(0)")
e(f"v_readfirstlane_b32 s{sMBF}, v{vPL+1}")
e(f"s_cmp_lg_u32 s{sMBF}, 0")
e("s_cbranch_scc1 L_c_merge")
spin_tail("L_c_mwait")

def ws_base(sb):
    e(f"s_lshl3_add_u32 s{sT0}, s{sb}, s{sH}")
    e(f"s_lshl_b32 s{sT0}, s{sT0}, 9")
    if WS0: e(f"s_add_u32 s{sT0}, s{sT0}, {WS0}")

lab("L_publish")
if "nopub" in DBG: e("s_endpgm")
e(f"v_lshl_add_u32 v{vT2}, v{vLANE}, 4, s{sQO}")
e(f"s_lshl_b32 s{sT2}, s{sPB}, 2")
e(f"v_mov_b32 v{vT3}, s{sT2}")
e(f"v_lshlrev_b32 v{vT4}, 1, v{vT3}")
e(f"v_add_u32 v{vT4}, {CTRL+68}, v{vT4}")
e(f"ds_read_b32 v{vT4}, v{vT4}")
ws_base(sPB)
e(f"s_lshl2_add_u32 s{sT1}, s{sCI}, s{sT0}")
e(f"v_mov_b32 v{vT5}, s{sT1}")
e(f"s_lshl_b32 s{sT1}, s{sCI}, 7")
e(f"s_add_u32 s{sT0}, s{sT0}, s{sT1}")
e(f"v_lshl_add_u32 v{vT1}, v{vLANE}, 3, s{sT0}")
e(f"s_getreg_b32 s{sT2}, hwreg(HW_REG_XCC_ID, 0, 4)")
e(f"s_lshl_b32 s{sT2}, s{sT2}, 4")
e(f"s_or_b32 s{sT2}, s{sT2}, s{sH}")
e(f"s_or_b32 s{sT2}, s{sT2}, 0x100")
e("s_waitcnt lgkmcnt(0)")
e(f"v_readfirstlane_b32 s{sT1}, v{vT4}")
e(f"s_lshr_b32 s{sT1}, s{sT1}, 16")
e(f"s_cmp_eq_u32 s{sT1}, s{sT2}")
e("s_cbranch_scc1 L_pub_fast")
e(f"global_load_dword v{vT4}, v{vT3}, s[{sDBG}:{sDBG+1}] offset:128 sc1")
e("s_waitcnt vmcnt(0)")
e(f"v_readfirstlane_b32 s{sT1}, v{vT4}")
e(f"s_lshr_b32 s{sT1}, s{sT1}, 16")
e(f"s_cmp_eq_u32 s{sT1}, s{sT2}")
e("s_cbranch_scc0 L_pub_slow")
lab("L_pub_fast")
c("the receiver runs on this die and has cleared its flag words: hand over inside the shared L2")
out_stores("", 1024)
e("s_mov_b64 exec, 0xffff")
e(f"global_store_dwordx2 v{vT1}, v[{vM}:{vM+1}], s[{sWS}:{sWS+1}]")
e(f"v_mov_b32 v{vT4}, 1")
e("s_waitcnt vmcnt(0)")
e("s_mov_b64 exec, 1")
e(f"global_store_dword v{vT5}, v{vT4}, s[{sWS}:{sWS+1}] offset:256")
e(FIN)
lab("L_pub_slow")
c("any other placement: write through to memory, then set a bit with a device-wide atomic")
out_stores(" sc1", 1024)
e("s_mov_b64 exec, 0xffff")
e(f"global_store_dwordx2 v{vT1}, v[{vM}:{vM+1}], s[{sWS}:{sWS+1}] sc1")
e(f"s_lshl1_add_u32 s{sT1}, s{sH}, s{sCI}")
e(f"s_lshl_b32 s{sT1}, 1, s{sT1}")
e(f"v_mov_b32 v{vT4}, s{sT1}")
e("s_waitcnt vmcnt(0)")
e("s_mov_b64 exec, 1")
e(f"global_atomic_add v{vT3}, v{vT4}, s[{sDBG}:{sDBG+1}]")
e(FIN)

vRW = vL
vKEY, vRK = 19, 20
lab("L_ctl0")
if a.skew:
    c("dies are not started at the same instant: the first eight workgroups post when they started")
    e(f"s_memrealtime s[{sMA}:{sMA+1}]")
    e(f"s_lshl2_add_u32 s{sT0}, s{sH}, 2")
    e(f"v_mov_b32 v{vT4}, s{sT0}")
    e(f"s_cmp_lg_u32 s{sB}, 0")
    e("s_waitcnt lgkmcnt(0)")
    e("s_cbranch_scc1 L_ctl1")
    e(f"s_or_b32 s{sT0}, s{sMA}, 0x8000")
    e(f"v_mov_b32 v{vT5}, s{sT0}")
    e("s_mov_b64 exec, 1")
    e(f"global_store_short v{vT4}, v{vT5}, s[{sDBG}:{sDBG+1}] sc1")
    e("s_mov_b64 exec, -1")
    lab("L_ctl1")
e("s_barrier")
e("s_branch L_ctl")
lab("L_planner")
e(f"s_cmp_eq_u32 s{sW}, 5")
e("s_cbranch_scc1 L_ctl0")
e(f"s_sub_u32 s{sCI}, s{sW}, 3")
e(f"s_lshl_b32 s{sSB}, s{sCI}, 8")
e(f"s_add_u32 s{sSB}, s{sSB}, {CNT}")
e(f"v_lshl_add_u32 v{vPA}, v{vLANE}, 2, s{sSB}")
e(f"s_lshl_b32 s{sT2}, s{sCI}, 7")
e(f"s_add_u32 s{sT2}, s{sT2}, {KEYS}")
e(f"v_add_u32 v{vT3}, s{sT2}, v{vT3}")
e(f"v_lshrrev_b32 v{vT4}, 5, v{vLANE}")
e(f"v_lshl_add_u32 v{vT4}, v{vT4}, 6, s{sT2}")
e(f"v_mov_b32 v{vT5}, 2048")
e("s_barrier")
e("s_waitcnt vmcnt(0)")
e(f"v_cmp_gt_i32 s[{sZQ}:{sZQ+1}], 1, v{vN}")
e(f"v_min_i32 v{vN}, v{vN}, v{vT5}")
e("s_nop 0")
e(f"v_cndmask_b32 v{vN}, v{vN}, v{vT5}, s[{sZQ}:{sZQ+1}]")
e(f"v_add_u32 v{vN}, 15, v{vN}")
e(f"v_lshrrev_b32 v{vN}, 4, v{vN}")
e(f"v_lshl_or_b32 v{vKEY}, v{vN}, 5, v{vT0}")
e(f"ds_write_b32 v{vT3}, v{vKEY}")
for i in range(4):
    e(f"ds_read_b128 v[{vKF+4*i}:{vKF+4*i+3}], v{vT4} offset:{16*i}")
e(f"v_mov_b32 v{vRK}, 0")
e(f"v_readlane_b32 s{sNB}, v{vN}, s{sB}")
e("s_waitcnt lgkmcnt(0)")
c("rank of every batch by block count; the batch of rank 31-r is the partner")
for i in range(16):
    e(f"v_sub_u32 v{vKF+i}, v{vKF+i}, v{vKEY}")
for i in range(16):
    e(f"v_alignbit_b32 v{vRK}, v{vRK}, v{vKF+i}, 31")
e(f"v_bcnt_u32_b32 v{vRK}, v{vRK}, 0")
e(f"v_mov_b32 v{vT2}, v{vRK}")
derive_nb()
e(f"v_permlane32_swap_b32 v{vRK}, v{vT2}")
e("s_nop 0")
e(f"v_add_u32 v{vRK}, v{vRK}, v{vT2}")
e("s_nop 0")
e(f"v_readlane_b32 s{sRK}, v{vRK}, s{sB}")
e(f"s_sub_u32 s{sT0}, 31, s{sRK}")
e(f"v_cmp_eq_u32 vcc, s{sT0}, v{vRK}")
e(f"s_ff1_i32_b32 s{sPB}, vcc_lo")
e(f"v_readlane_b32 s{sNP}, v{vN}, s{sPB}")
e(f"s_max_u32 s{sT0}, s{sNB}, s{sNP}")
e(f"s_min_u32 s{sT1}, s{sNB}, s{sNP}")
e(f"s_sub_u32 s{sX}, s{sT0}, s{sT1}")
e(f"s_add_u32 s{sX}, s{sX}, 2")
e(f"s_lshr_b32 s{sX}, s{sX}, 2")
e(f"s_cmp_lt_u32 s{sT0}, {4*NUM+8}")
e(f"s_cselect_b32 s{sX}, 0, s{sX}")
if a.nopair: e(f"s_mov_b32 s{sX}, 0")
e(f"s_cmp_ge_u32 s{sRK}, 16")
e(f"s_cselect_b32 s{sLO}, s{sX}, 0")
e(f"s_cselect_b32 s{sTB}, 0, s{sX}")
e(f"s_cmp_eq_u32 s{sCI}, 0")
e("s_cbranch_scc1 L_pl_norow")
e(f"s_lshl_b32 s{sT0}, s{sPB}, 9")
e(f"v_lshl_add_u32 v{vT1}, v{vLANE}, 3, s{sT0}")
e(f"global_load_dwordx2 v[{vRW}:{vRW+1}], v{vT1}, s[{sBT}:{sBT+1}]")
lab("L_pl_norow")
e(f"s_sub_u32 s{sTA}, s{sNTL}, s{sLO}")
e(f"s_add_u32 s{sT}, s{sTA}, s{sTB}")
e(f"s_mul_i32 s{sF}, s{sT}, {a.fnum}")
e(f"s_lshr_b32 s{sF}, s{sF}, 6")
e(f"s_min_u32 s{sWB}, s{sTA}, {a.UB}")
e(f"s_sub_i32 s{sF}, s{sF}, s{sWB}")
e(f"s_max_i32 s{sF}, s{sF}, s{sTB}")
e(f"s_max_i32 s{sF}, s{sF}, 1")
e(f"v_cvt_f32_u32 v{vT2}, s{sF}")
e(f"v_subrev_u32 v{vT3}, s{sWB}, v{vLANE}")
e(f"v_rcp_f32 v{vT2}, v{vT2}")
e(f"v_mul_i32_i24 v{vT4}, s{sTB}, v{vT3}")
e(f"v_add_u32 v{vT5}, s{sTB}, v{vT4}")
e(f"v_cvt_f32_i32 v{vT4}, v{vT4}")
e(f"v_cvt_f32_i32 v{vT5}, v{vT5}")
e(f"v_add_f32 v{vT4}, 0.5, v{vT4}")
e(f"v_add_f32 v{vT5}, 0.5, v{vT5}")
e(f"v_mul_f32 v{vT4}, v{vT4}, v{vT2}")
e(f"v_mul_f32 v{vT5}, v{vT5}, v{vT2}")
e(f"v_floor_f32 v{vT4}, v{vT4}")
e(f"v_floor_f32 v{vT5}, v{vT5}")
e(f"v_cmp_gt_u32 vcc, s{sF}, v{vT3}")
e(f"v_cmp_gt_f32 s[{sMBK}:{sMBK+1}], v{vT5}, v{vT4}")
e(f"s_sub_u32 s{sT0}, s{sT}, s{sNU}")
e(f"v_subrev_u32 v{vT3}, s{sNU}, v{vLANE}")
e(f"v_cmp_gt_u32 s[{sMA}:{sMA+1}], s{sT0}, v{vT3}")
e(f"s_and_b64 s[{sMBK}:{sMBK+1}], s[{sMBK}:{sMBK+1}], vcc")
e(f"s_andn2_b64 s[{sMA}:{sMA+1}], s[{sMA}:{sMA+1}], s[{sMBK}:{sMBK+1}]")
c(f"own tiles to sort: logical [NU+given, ntile); donated: the partner's logical [{NUM}, {NUM}+TB)")
mfirst = a.mfirst and not a.nosort
if mfirst:
    e(f"s_ff1_i32_b64 s{sT2}, s[{sMA}:{sMA+1}]")
else:
    e(f"s_flbit_i32_b64 s{sT2}, s[{sMA}:{sMA+1}]")
    e(f"s_sub_u32 s{sT2}, 63, s{sT2}")
e(f"s_lshl_b32 s{sT2}, s{sT2}, 8")
e(f"s_or_b32 s{sWB}, s{sT2}, 1")
e(f"s_min_u32 s{sMRG}, s{sLO}, 1")
e(f"s_add_u32 s{sLO}, s{sLO}, s{sNU}")
e(f"s_sub_u32 s{sHI}, s{sNTL}, s{sLO}")
e(f"s_sub_u32 s{sT3}, s{sNTL}, 1")
e(f"s_mov_b32 s{sLBASE}, {LA}")
e(f"s_cmp_eq_u32 s{sCI}, 0")
e("s_cbranch_scc1 L_pl_a")
e(f"s_mov_b32 s{sLO}, {NUM}")
e(f"s_mov_b32 s{sHI}, s{sTB}")
e(f"s_mov_b32 s{sT3}, -1")
e(f"s_mov_b32 s{sLBASE}, {LB}")
e(f"s_mov_b64 s[{sMA}:{sMA+1}], s[{sMBK}:{sMBK+1}]")
e("s_branch L_pl_sort")
lab("L_pl_a")
e(f"s_lshl_b32 s{sT0}, s{sT}, 8")
e(f"s_or_b32 s{sT0}, s{sT0}, s{sMRG}")
e(f"v_mov_b32 v{vT2}, s{sMA}")
e(f"v_mov_b32 v{vT3}, s{sMA+1}")
e(f"v_mov_b32 v{vT4}, s{sT0}")
e(f"v_mov_b32 v{vT5}, s{sWB}")
e(f"v_mov_b32 v{vT1}, {REC0}")
e(f"ds_write_b128 v{vT1}, v[{vT2}:{vT5}]")
lab("L_pl_sort")
e(f"v_subrev_u32 v{vT0}, s{sLO}, v{vLANE}")
e(f"v_cmp_gt_u32 vcc, s{sHI}, v{vT0}")
e(f"v_mov_b32 v{vT5}, 1")
e("s_waitcnt vmcnt(0)")
if a.nosort:
    e(f"v_lshlrev_b32 v{vT2}, 1, v{vT0}")
    e(f"v_add_u32 v{vT3}, 1, v{vT2}")
else:
    c("counting sort of the block ids into 64 buckets of ascending physical address")
    e(f"v_lshrrev_b32 v{vT0}, 6, v{vRW}")
    e(f"v_lshrrev_b32 v{vT1}, 6, v{vRW+1}")
    e(f"v_cmp_eq_u32 s[{sRK+2}:{sRK+3}], s{sT3}, v{vLANE}")
    if mfirst:
        e(f"v_med3_u32 v{vT0}, v{vT0}, 1, 63")
        e(f"v_med3_u32 v{vT1}, v{vT1}, 1, 63")
    else:
        e(f"v_min_u32 v{vT0}, 62, v{vT0}")
        e(f"v_min_u32 v{vT1}, 62, v{vT1}")
    fb = 0 if mfirst else 63
    e(f"v_cndmask_b32 v{vT0}, v{vT0}, {fb}, s[{sRK+2}:{sRK+3}]")
    e(f"v_cndmask_b32 v{vT1}, v{vT1}, {fb}, s[{sRK+2}:{sRK+3}]")
    e(f"v_lshlrev_b32 v{vT0}, 2, v{vT0}")
    e(f"v_lshlrev_b32 v{vT1}, 2, v{vT1}")
    e(f"v_add_u32 v{vKF}, s{sSB}, v{vT0}")
    e(f"v_add_u32 v{vKF+1}, s{sSB}, v{vT1}")
    e("s_mov_b64 exec, vcc")
    e(f"ds_add_rtn_u32 v{vT2}, v{vKF}, v{vT5}")
    e(f"ds_add_rtn_u32 v{vT3}, v{vKF+1}, v{vT5}")
    e("s_mov_b64 exec, -1")
    e(f"ds_read_b32 v{vT4}, v{vPA}")
    e("s_waitcnt lgkmcnt(0)")
    e(f"v_mov_b32 v{vKF+2}, v{vT4}")
    for sh in (1, 2, 4, 8):
        e("s_nop 1")
        e(f"v_add_u32_dpp v{vT4}, v{vT4}, v{vT4} row_shr:{sh} row_mask:0xf bank_mask:0xf bound_ctrl:0")
    e("s_nop 1")
    e(f"v_add_u32_dpp v{vT4}, v{vT4}, v{vT4} row_bcast:15 row_mask:0xa bank_mask:0xf")
    e("s_nop 1")
    e(f"v_add_u32_dpp v{vT4}, v{vT4}, v{vT4} row_bcast:31 row_mask:0xc bank_mask:0xf")
    e(f"v_sub_u32 v{vT4}, v{vT4}, v{vKF+2}")
    e(f"ds_bpermute_b32 v{vT0}, v{vT0}, v{vT4}")
    e(f"ds_bpermute_b32 v{vT1}, v{vT1}, v{vT4}")
    e("s_waitcnt lgkmcnt(0)")
    e(f"v_add_u32 v{vT2}, v{vT2}, v{vT0}")
    e(f"v_add_u32 v{vT3}, v{vT3}, v{vT1}")
e(f"v_lshlrev_b32 v{vRW}, 15, v{vRW}")
e(f"v_lshlrev_b32 v{vRW+1}, 15, v{vRW+1}")
e(f"v_lshl_add_u32 v{vT2}, v{vT2}, 2, s{sLBASE}")
e(f"v_lshl_add_u32 v{vT3}, v{vT3}, 2, s{sLBASE}")
e("s_mov_b64 exec, vcc")
e(f"ds_write_b32 v{vT2}, v{vRW}")
e(f"ds_write_b32 v{vT3}, v{vRW+1}")
e("s_mov_b64 exec, -1")
c("place the sorted tiles at their stream positions; flags: 1 valid, 2 masked, 4 last of batch, 8 last of stream")
e(f"v_mbcnt_lo_u32_b32 v{vT0}, s{sMA}, 0")
e(f"v_mbcnt_hi_u32_b32 v{vT0}, s{sMA+1}, v{vT0}")
e(f"v_lshl_add_u32 v{vT0}, v{vT0}, 3, s{sLBASE}")
e(f"ds_read_b64 v[{vT2}:{vT3}], v{vT0}")
e(f"s_lshr_b32 s{sT0}, s{sWB}, 8")
e(f"s_sub_u32 s{sT1}, s{sT}, 1")
e(f"v_cmp_eq_u32 vcc, s{sT0}, v{vLANE}")
e(f"v_cmp_eq_u32 s[{sRK+2}:{sRK+3}], s{sT1}, v{vLANE}")
e(f"v_cmp_eq_u32 s[{sT2}:{sT2+1}], {G-1}, v{vLANE}")
e(f"v_cndmask_b32 v{vT4}, 1, 3, vcc")
e(f"v_cndmask_b32 v{vT5}, 0, 12, s[{sRK+2}:{sRK+3}]")
e(f"v_cndmask_b32 v{vT1}, 0, 4, s[{sT2}:{sT2+1}]")
e(f"v_or3_b32 v{vT4}, v{vT4}, v{vT5}, v{vT1}")
e(f"v_lshlrev_b32 v{vT0}, 3, v{vLANE}")
e(f"v_add_u32 v{vT0}, {SL}, v{vT0}")
e("s_waitcnt lgkmcnt(0)")
e(f"v_or_b32 v{vT2}, v{vT2}, v{vT4}")
e(f"s_mov_b64 exec, s[{sMA}:{sMA+1}]")
e(f"ds_write_b64 v{vT0}, v[{vT2}:{vT3}]")
e("s_mov_b64 exec, -1")
lab("L_pl_done")
e(f"s_cmp_lg_u32 s{sMRG}, 0")
e("s_cbranch_scc1 L_fetch")
e(f"s_cmp_eq_u32 s{sTB}, 0")
e("s_cbranch_scc1 L_fin")
c("become the consumer of the donated tiles")
load_q(sPB)
e(f"s_mov_b64 s[{sMALL}:{sMALL+1}], s[{sMBK}:{sMBK+1}]")
e(f"s_mov_b32 s{sM}, s{sMBK}")
e(f"s_and_b32 s{sM+1}, s{sMBK+1}, {RHI:#x}")
e(f"s_mov_b32 s{sTTC}, s{sT}")
e(f"s_min_u32 s{sTB1}, s{sT}, {G}")
e(f"s_mov_b32 s{sROLE}, 1")
e(f"s_mov_b32 s{sPLN}, 1")
e(f"s_lshr_b32 s{sT3}, s{sZQ}, s{sPB}")
e(f"s_and_b32 s{sT3}, s{sT3}, 1")
e("s_branch L_csetup")

lab("L_fetch")
e(f"s_cmp_lg_u32 s{sCI}, 0")
e("s_cbranch_scc1 L_fin")
rows_off(sB)
if a.otouch >= 0:
    c("make the lines that will carry the partial valid in L2 (a later read of write-only lines would go to memory)")
    e(f"v_lshl_add_u32 v{vT4}, v{vLANE}, 7, s{sQO}")
    e(f"global_load_dword v{vPF}, v{vT4}, s[{sOUT}:{sOUT+1}] {a.ofl.replace('+', ' ')}")
ws_base(sB)
e(f"v_lshl_add_u32 v{vT1}, v{vT0}, 3, s{sT0}")
e(f"v_mov_b32 v{vFW}, s{sT0}")
e(f"s_lshl_b32 s{sT2}, s{sB}, 2")
e(f"v_mov_b32 v{vT2}, s{sT2}")
e(f"v_mov_b32 v{vPA}, {CTRL+16}")
e("s_mov_b64 exec, 1")
e(f"s_mul_i32 s{sNEED}, s{sT}, {a.pollnum}")
e(f"s_lshr_b32 s{sNEED}, s{sNEED}, 5")
e(f"s_lshl_b32 s{sT3}, s{sH}, 1")
e(f"s_mov_b32 s{sMBF}, 0")
c("wait until wave 5 has cleared the flag words and the stream is far enough")
lab("L_f_wait")
e(f"ds_read_b64 v[{vPL}:{vPL+1}], v{vPA}")
e("s_waitcnt lgkmcnt(0)")
e(f"v_readfirstlane_b32 s{sLND}, v{vPL}")
e(f"v_readfirstlane_b32 s{sT0}, v{vPL+1}")
e(f"s_cmp_ge_i32 s{sLND}, s{sNEED}")
e(f"s_cselect_b32 s{sT0}, s{sT0}, 0")
e(f"s_cmp_lg_u32 s{sT0}, 0")
e("s_cbranch_scc1 L_f_poll")
spin_tail("L_f_wait", 8)
lab("L_f_poll")
if "nopoll" in DBG: e("s_branch L_f_got")
e(f"global_load_dwordx2 v[{vPL}:{vPL+1}], v{vFW}, s[{sWS}:{sWS+1}] offset:256 sc1")
e(f"s_add_u32 s{sMBF}, s{sMBF}, 1")
e(f"s_and_b32 s{sT0}, s{sMBF}, 3")
e(f"s_mov_b32 s{sT2}, 0")
e("s_cbranch_scc1 L_f_nodbg")
e(f"global_load_dword v{vT3}, v{vT2}, s[{sDBG}:{sDBG+1}] sc1")
e("s_waitcnt vmcnt(0)")
e(f"v_readfirstlane_b32 s{sT2}, v{vT3}")
e(f"s_lshr_b32 s{sT2}, s{sT2}, s{sT3}")
lab("L_f_nodbg")
e("s_waitcnt vmcnt(0)")
e(f"v_lshl_or_b32 v{vPL}, v{vPL+1}, 1, v{vPL}")
e("s_nop 0")
e(f"v_readfirstlane_b32 s{sT0}, v{vPL}")
e(f"s_or_b32 s{sT0}, s{sT0}, s{sT2}")
e(f"s_and_b32 s{sT0}, s{sT0}, 3")
e(f"s_cmp_eq_u32 s{sT0}, 3")
e("s_cbranch_scc1 L_f_got")
spin_tail("L_f_poll", a.psleep)
lab("L_f_got")
e("s_mov_b64 exec, -1")
e(f"v_lshl_add_u32 v{vT4}, v{vLANE}, 4, s{sQO}")
e(f"v_add_u32 v{vT5}, 4096, v{vT4}")
FLD = " " + a.fld if a.fld != "none" else ""
for cc in range(2):
    if "nofetch" in DBG:
        e(f"v_mov_b32 v{vM+2*cc}, 0"); e(f"v_mov_b32 v{vM+2*cc+1}, 0")
        continue
    e(f"global_load_dwordx2 v[{vM+2*cc}:{vM+2*cc+1}], v{vT1}, s[{sWS}:{sWS+1}] offset:{128*cc}{FLD}")
    for j in range(4):
        r = vKF + 16 * cc + 4 * j
        e(f"global_load_dwordx4 v[{r}:{r+3}], v{vT4+cc}, s[{sOUT}:{sOUT+1}] offset:{1024*j}{FLD}")
e(f"v_lshlrev_b32 v{vT2}, 4, v{vLANE}")
e(f"v_add_u32 v{vT2}, {MB}, v{vT2}")
e(f"v_lshlrev_b32 v{vT0}, 3, v{vT0}")
e(f"v_add_u32 v{vT0}, {MB}, v{vT0}")
e(f"v_mov_b32 v{vPL}, {CTRL+4}")
e(f"v_mov_b32 v{vT3}, 1")
for cc in range(2):
    e(f"s_waitcnt vmcnt({5-5*cc})")
    for j in range(4):
        r = vKF + 16 * cc + 4 * j
        e(f"ds_write_b128 v{vT2}, v[{r}:{r+3}] offset:{MBS*cc + 1024*j}")
    e(f"ds_write_b64 v{vT0}, v[{vM+2*cc}:{vM+2*cc+1}] offset:{MBS*cc + 4096}")
    e(f"ds_write_b32 v{vPL}, v{vT3} offset:{8*cc}")
e(FIN)

c("wave 5: workgroups that share an L2 post their remaining work; one that lags prefetches deeper")
lab("L_ctl")
e(f"v_mov_b32 v{vT1}, {REC0}")
e(f"v_mov_b32 v{vPA}, {CTRL+32}")
e(f"v_mov_b32 v{vFW}, {DEPW}")
e(f"s_lshl_b32 s{sT0}, s{sB}, 2")
e(f"v_mov_b32 v{vG}, s{sT0}")
e(f"v_mov_b32 v{vFV}, v{vT3}")
lo = sum((XT[i] & 255) << (8 * i) for i in range(4)); hi = sum((XT[4 + i] & 255) << (8 * i) for i in range(4))
e(f"s_getreg_b32 s{sT0}, hwreg(HW_REG_XCC_ID, 0, 3)")
e(f"s_mov_b32 s{sM}, {lo:#x}")
e(f"s_mov_b32 s{sM+1}, {hi:#x}")
e(f"s_lshl_b32 s{sT0}, s{sT0}, 3")
e(f"s_lshr_b64 s[{sM}:{sM+1}], s[{sM}:{sM+1}], s{sT0}")
e(f"s_sext_i32_i8 s{sBO}, s{sM}")
lab("L_g_plan")
e(f"ds_read_b128 v[{vT2}:{vT5}], v{vT1}")
e("s_waitcnt lgkmcnt(0)")
e(f"v_readfirstlane_b32 s{sT0}, v{vT5}")
e(f"v_readfirstlane_b32 s{sT}, v{vT4}")
e(f"s_cmp_lg_u32 s{sT0}, 0")
e("s_cbranch_scc1 L_g_go")
spin_tail("L_g_plan", 8)
lab("L_g_go")
e(f"s_and_b32 s{sMRG}, s{sT}, 1")
e("s_cbranch_scc0 L_g_nores")
c("a partial is expected: clear its flag words before anything is posted")
ws_base(sB)
e(f"v_mov_b32 v{vT0}, s{sT0}")
e(f"v_mov_b32 v{vT2}, 0")
e(f"v_mov_b32 v{vT3}, 0")
e(f"v_mov_b32 v{vT4}, {CTRL+20}")
e(f"v_mov_b32 v{vT5}, 1")
e("s_mov_b64 exec, 1")
e(f"global_store_dwordx2 v{vT0}, v[{vT2}:{vT3}], s[{sWS}:{sWS+1}] offset:256")
e("s_waitcnt vmcnt(0)")
e(f"ds_write_b32 v{vT4}, v{vT5}")
e("s_mov_b64 exec, -1")
lab("L_g_nores")
e(f"s_and_b32 s{sT0}, s{sDBG}, 127")
e("s_cbranch_scc1 L_fin")
c("posted word: remaining units + 1 | head << 16 | die << 20 | flags cleared << 24")
e(f"s_getreg_b32 s{sFB}, hwreg(HW_REG_XCC_ID, 0, 4)")
e(f"s_lshl4_add_u32 s{sFB}, s{sMRG}, s{sFB}")
e(f"s_lshl4_add_u32 s{sFB}, s{sFB}, s{sH}")
e(f"s_lshl_b32 s{sFB}, s{sFB}, 16")
e(f"s_lshr_b32 s{sT}, s{sT}, 8")
e(f"s_lshl1_add_u32 s{sTN}, s{sT}, 1")
e(f"v_lshlrev_b32 v{vT1}, 1, v{vFV}")
e(f"v_add_u32 v{vT1}, {CTRL+68}, v{vT1}")
e(f"v_mov_b32 v{vT2}, s{sFB}")
e("s_mov_b64 exec, 1")
e(f"global_store_dword v{vG}, v{vT2}, s[{sDBG}:{sDBG+1}] offset:128")
e("s_mov_b64 exec, -1")
if "v" in a.tlb: e(f"global_load_dword v{vPF}, v{vTL}, s[{sV}:{sV+1}] nt")
if "prog2" in DBG: e("v_mov_b32 v50, 0")
if a.skew:
    e(f"s_mov_b32 s{sNEED}, 3")
    e(f"s_cmp_lt_u32 s{sT}, 8")
    e("s_cbranch_scc1 L_fin")
    lab("L_g_sw")
    e(f"ds_read_b32 v{vPL}, v{vPA}")
    e("s_waitcnt lgkmcnt(0)")
    e(f"v_readfirstlane_b32 s{sLND}, v{vPL}")
    e(f"s_cmp_ge_i32 s{sLND}, s{sNEED}")
    e("s_cbranch_scc1 L_g_sa")
    spin_tail("L_g_sw", 1)
    lab("L_g_sa")
    e(f"global_load_dword v{vT0}, v{vFV}, s[{sDBG}:{sDBG+1}] sc1")
    e("s_waitcnt vmcnt(0)")
    e(f"v_cmp_gt_i32 vcc, 0, v{vT0}")
    e(f"v_lshrrev_b32 v{vT0}, 16, v{vT0}")
    e(f"v_sub_u32 v{vT0}, s{sMA}, v{vT0}")
    e(f"v_bfe_i32 v{vT0}, v{vT0}, 0, 15")
    e(f"v_cndmask_b32 v{vT0}, 0, v{vT0}, vcc")
    for sh in (1, 2, 4):
        e("s_nop 1")
        op = "v_max_i32_dpp" if "ampmax" in DBG else "v_add_u32_dpp"
        e(f"{op} v{vT0}, v{vT0}, v{vT0} row_shr:{sh} row_mask:0xf bank_mask:0xf bound_ctrl:0")
    e("s_nop 0")
    e(f"v_readlane_b32 s{sT0}, v{vT0}, 7")
    if "ampmax" in DBG or "ampmean" in DBG:
        e(f"s_mul_i32 s{sMBK}, s{sT0}, {20 if 'ampmax' in DBG else 3}")
        e(f"s_max_i32 s{sMBK}, s{sMBK}, 0")
        e(f"s_add_u32 s{sMBK}, s{sMBK}, 3500")
        lab("L_amp")
        e("s_sleep 4")
        e(f"s_memrealtime s[{sLO}:{sLO+1}]")
        e("s_waitcnt lgkmcnt(0)")
        e(f"s_sub_u32 s{sT0}, s{sLO}, s{sMA}")
        e(f"s_cmp_lt_u32 s{sT0}, s{sMBK}")
        e("s_cbranch_scc1 L_amp")
        e("s_endpgm")
    e(f"s_mul_i32 s{sT0}, s{sT0}, {a.skew}")
    e(f"s_ashr_i32 s{sT0}, s{sT0}, 9")
    e(f"s_add_u32 s{sBO}, s{sBO}, s{sT0}")
e(f"s_mov_b32 s{sNEED}, {a.cstart}")
lab("L_g_next")
e(f"s_sub_u32 s{sT0}, s{sTN}, s{sNEED}")
e(f"s_cmp_lt_i32 s{sT0}, {a.cstop}")
e("s_cbranch_scc1 L_fin")
lab("L_g_w")
e(f"ds_read_b32 v{vPL}, v{vPA}")
e("s_waitcnt lgkmcnt(0)")
e(f"v_readfirstlane_b32 s{sLND}, v{vPL}")
e(f"s_cmp_ge_i32 s{sLND}, s{sNEED}")
e("s_cbranch_scc1 L_g_a")
spin_tail("L_g_w", 1)
lab("L_g_a")
if "prog2" in DBG:
    e(f"s_memrealtime s[{sST+2}:{sST+3}]")
    e(f"s_lshr_b32 m0, s{sLND}, 1")
    e("s_waitcnt lgkmcnt(0)")
    e(f"v_writelane_b32 v50, s{sST+2}, m0")
e(f"s_sub_u32 s{sNK}, s{sTN}, s{sLND}")
e(f"s_or_b32 s{sT0}, s{sNK}, s{sFB}")
e(f"v_mov_b32 v{vT2}, s{sT0}")
e("s_mov_b64 exec, 1")
e(f"global_store_dword v{vG}, v{vT2}, s[{sDBG}:{sDBG+1}] offset:128")
e("s_mov_b64 exec, -1")
e(f"global_load_dword v{vT0}, v{vFV}, s[{sDBG}:{sDBG+1}] offset:128 sc1")
e(f"s_add_u32 s{sNEED}, s{sLND}, {a.cstep}")
e(f"s_min_i32 s{sT3}, s{sBO}, 1")
e(f"s_max_i32 s{sT3}, s{sT3}, -1")
e(f"s_sub_u32 s{sBO}, s{sBO}, s{sT3}")
e("s_waitcnt vmcnt(0)")
e(f"ds_write_b32 v{vT1}, v{vT0}")
e(f"v_and_b32 v{vT0}, 0xffff, v{vT0}")
e(f"v_cmp_ne_u32 vcc, 0, v{vT0}")
for sh in (1, 2, 4, 8):
    e("s_nop 1")
    e(f"v_add_u32_dpp v{vT0}, v{vT0}, v{vT0} row_shr:{sh} row_mask:0xf bank_mask:0xf bound_ctrl:0")
e("s_nop 1")
e(f"v_add_u32_dpp v{vT0}, v{vT0}, v{vT0} row_bcast:15 row_mask:0xa bank_mask:0xf")
e(f"s_bcnt1_i32_b32 s{sT1}, vcc_lo")
e(f"v_readlane_b32 s{sT0}, v{vT0}, 31")
e(f"s_mul_i32 s{sT2}, s{sNK}, s{sT1}")
e(f"s_sub_u32 s{sT2}, s{sT2}, s{sT0}")
e(f"s_lshl_b32 s{sT2}, s{sT2}, 2")
for th, inc, cmp in ((CTH[0], -1, "lt"), (CTH[1], 1, "gt"), (CTH[2], 1, "gt")):
    e(f"s_mul_i32 s{sT0}, s{sT1}, {th - a.cbias}")
    e(f"s_cmp_{cmp}_i32 s{sT2}, s{sT0}")
    e(f"s_cselect_b32 s{sT0}, {inc}, 0")
    e(f"s_add_u32 s{sT3}, s{sT3}, s{sT0}")
e(f"s_max_i32 s{sT3}, s{sT3}, -1")
e(f"s_min_i32 s{sT3}, s{sT3}, 2")
e(f"v_mov_b32 v{vT2}, s{sT3}")
e(f"ds_write_b32 v{vFW}, v{vT2}")
e("s_branch L_g_next")

lab("L_fin")
if a.amp:
    if a.amp == "end":
        e(f"s_sub_u32 s{sT0}, s{sW}, 1")
        e(f"s_cmp_gt_u32 s{sT0}, 1")
    else:
        e(f"s_cmp_lg_u32 s{sW}, 0")
    e("s_cbranch_scc1 L_end")
    if a.ampwg >= 0:
        e(f"s_cmp_lg_u32 s2, {a.ampwg}")
        e("s_cbranch_scc1 L_end")
    e("s_waitcnt vmcnt(0) lgkmcnt(0)")
    if a.amp[:2] != "t0":
        e(f"s_memrealtime s[{sST+2}:{sST+3}]")
        e("s_waitcnt lgkmcnt(0)")
    e(f"s_sub_u32 s{sT1}, s{sST+2}, s{sST}")
    if a.amp[:2] != "t0": e(f"s_sub_u32 s{sT1}, s{sT1}, 2700")
    e(f"s_max_i32 s{sT1}, s{sT1}, 0")
    e(f"s_min_i32 s{sT1}, s{sT1}, 2000")
    e(f"s_mul_i32 s{sT1}, s{sT1}, 10")
    e(f"s_add_u32 s{sT1}, s{sT1}, 3500")
    lab("L_ampw")
    e("s_sleep 2")
    e(f"s_memrealtime s[{sST+2}:{sST+3}]")
    e("s_waitcnt lgkmcnt(0)")
    e(f"s_sub_u32 s{sT0}, s{sST+2}, s{sST}")
    e(f"s_cmp_lt_u32 s{sT0}, s{sT1}")
    e("s_cbranch_scc1 L_ampw")
if "prog2" in DBG or "prog3" in DBG:
    e(f"s_cmp_lg_u32 s{sW}, {5 if 'prog2' in DBG else 0}")
    e("s_cbranch_scc1 L_np2")
    e(f"s_lshl_b32 s{sT0}, s2, 8")
    e(f"s_add_u32 s{sT0}, s{sT0}, 0x400000")
    e(f"v_lshl_add_u32 v51, v{vLANE}, 2, s{sT0}")
    e(f"global_store_dword v51, v50, s[{sWS}:{sWS+1}]")
    lab("L_np2")
if a.stamps:
    e(f"s_cmp_gt_u32 s{sW}, 2")
    e("s_cbranch_scc1 L_end")
    e("s_mov_b64 exec, -1")
    e("s_waitcnt vmcnt(0) lgkmcnt(0)")
    stamp(3)
    e(f"s_getreg_b32 s{sT0}, hwreg(HW_REG_XCC_ID)")
    e("s_waitcnt lgkmcnt(0)")
    for i in range(8):
        e(f"v_mov_b32 v{64+i}, s{sST+i}")
    e(f"v_mov_b32 v72, s{sT0}")
    e(f"s_sub_u32 s{sT1}, {SPIN}, s{sSPIN}")
    e(f"v_mov_b32 v73, s{sT1}")
    e(f"v_mov_b32 v74, s{sT}")
    e(f"v_mov_b32 v75, 0")
    e(f"s_mul_i32 s{sT0}, s2, {NW}")
    e(f"s_add_u32 s{sT0}, s{sT0}, s{sW}")
    e(f"s_lshl_b32 s{sT0}, s{sT0}, 6")
    e(f"v_mov_b32 v80, s{sT0}")
    e("s_mov_b64 exec, 1")
    e(f"global_store_dwordx4 v80, v[64:67], s[{sWS}:{sWS+1}]")
    e(f"global_store_dwordx4 v80, v[68:71], s[{sWS}:{sWS+1}] offset:16")
    e(f"global_store_dwordx4 v80, v[72:75], s[{sWS}:{sWS+1}] offset:32")
lab("L_end")
e("s_endpgm")
if a.wake:
    out.append(".p2align 8")
    lab("L_pad")
    out.append(f".fill {64 * a.wake}, 4, 0xbf810000")
out.append('.section .rodata,"a"')
out.append(".p2align 6")
out.append(f".amdhsa_kernel {NAME}_kernel")
out.append(f"  .amdhsa_next_free_vgpr {NV}")
out.append("  .amdhsa_next_free_sgpr 102")
out.append(f"  .amdhsa_accum_offset {NV}")
out.append("  .amdhsa_group_segment_fixed_size 0")
out.append("  .amdhsa_kernarg_size 64")
out.append("  .amdhsa_user_sgpr_count 2")
out.append("  .amdhsa_user_sgpr_kernarg_segment_ptr 1")
out.append("  .amdhsa_system_sgpr_workgroup_id_x 1")
out.append("  .amdhsa_float_denorm_mode_32 3")
out.append(".end_amdhsa_kernel")
open(a.o, "w").write("\n".join(out) + "\n")
```

```python
import sys, argparse
NAME = "standalone__paged_block_table_kv_pagedattention__sampling"
HEADER = open("cdna_kernels/" + NAME + ".s.ref").read().split("; Override")[0]

ap = argparse.ArgumentParser()
ap.add_argument("-o", default="/dev/stdout")
ap.add_argument("--map", default="plain")
ap.add_argument("--hrot", type=int, default=0)
ap.add_argument("--D", type=int, default=21)
ap.add_argument("--D0", type=int, default=26)
ap.add_argument("--NS", type=int, default=6)
ap.add_argument("--G", type=int, default=50)
ap.add_argument("--fnum", type=int, default=40)
ap.add_argument("--pollnum", type=int, default=55)
ap.add_argument("--psleep", type=int, default=6)
ap.add_argument("--UB", type=int, default=8)
ap.add_argument("--mfirst", type=int, default=1)
ap.add_argument("--cth", default="-2,2,5")
ap.add_argument("--cbias", type=int, default=7)
ap.add_argument("--cstart", type=int, default=8)
ap.add_argument("--cstop", type=int, default=4)
ap.add_argument("--cstep", type=int, default=3)
ap.add_argument("--xt", default="5,-4,5,-9,5,2,5,-5")
ap.add_argument("--NUM", type=int, default=4)
ap.add_argument("--last", type=int, default=1)
ap.add_argument("--hold", default="")
ap.add_argument("--ost", default="")
ap.add_argument("--wb", type=int, default=0)
ap.add_argument("--skew", type=int, default=0)
ap.add_argument("--dv", default="-1,1,3")
ap.add_argument("--fpf", type=int, default=6)
ap.add_argument("--fld", default="sc1")
ap.add_argument("--opf", type=int, default=0)
ap.add_argument("--otouch", type=int, default=0)
ap.add_argument("--ospread", type=int, default=1)
ap.add_argument("--ofl", default="")
ap.add_argument("--DM", type=int, default=0)
ap.add_argument("--NE", type=int, default=3)
ap.add_argument("--amp", default="")
ap.add_argument("--ampwg", type=int, default=-1)
ap.add_argument("--tlb", default="")
ap.add_argument("--tlbs", type=int, default=21)
ap.add_argument("--wake", type=int, default=0)
ap.add_argument("--spec", type=int, default=1)
ap.add_argument("--lat", type=int, default=1)
ap.add_argument("--smart", default="")
ap.add_argument("--nosort", action="store_true")
ap.add_argument("--nopair", action="store_true")
ap.add_argument("--limf", default="0x43800000")
ap.add_argument("--dbg", default="")
ap.add_argument("--stamps", action="store_true")
a = ap.parse_args()
NT = " nt"
OST = "" if not a.ost else " " + a.ost.replace("+", " ")
DBG = set(a.dbg.split(","))
D, D0, NS, G = a.D, a.D0, a.NS, a.G
assert 24 <= D0 <= 32 and (D - 2) // 8 == (D + 1) // 8 == 2 and 32 <= G < 64
CTH = [int(x) for x in a.cth.split(",")]
XT = [int(x) for x in a.xt.split(",")]
DV = [int(x) for x in a.dv.split(",")]
assert 17 <= D + DV[0] and D + DV[2] <= 24
DIVM = {5: (205, 10), 6: (43, 8), 7: (147, 10), 8: (1, 3), 10: (205, 11), 12: (171, 11)}[NS]
assert all((u * DIVM[0]) >> DIVM[1] == u // NS for u in range(129))
NW = 6
KBYTES = 4100 * 32768
SPIN = 1 << 22
NUM = a.NUM

RING = NS * 8192
PST = RING
MB = PST + G * 2048
MBS = 4224
CTRL = MB + 2 * MBS
FREE = CTRL + 512
REC0 = FREE + 128
DEPW = REC0 + 16
SL = FREE + 256
CNT = SL + 768
LA = CNT + 512
LB = LA + 512
KEYS = LB + 512
LDS = KEYS + 256
assert LDS <= 163840, LDS
WS0 = 0x100000 if a.stamps else 0
WSA = WS0 + 0x40000

out = []
def e(s): out.append("    " + s)
def lab(s): out.append(s + ":")
def c(s): out.append("    ; " + s)

sQ, sK, sV, sBT, sCL, sOUT, sDBG, sWS = 4, 6, 8, 10, 12, 14, 16, 18
sRD = 20
sB, sH, sW, sCLV = 28, 29, 30, 31
sT0, sT1, sT2, sT3 = 32, 33, 34, 35
sPC = 36
sSPIN = 38
sNB, sNTL, sNU, sT = 39, 40, 41, 42
sST = 64
sE = 72
sB0, sB1, sFL, sPM, sSLOT, sU, sTA0 = 46, 47, 48, 49, 52, 56, 57
sM = 46
sCI, sLND, sMBF, sNEED, sMRG, sMT, sROLE, sQO, sPLN, sSB = 48, 49, 50, 51, 52, 56, 57, 58, 59, 60
sV0 = 61
sCST = 62
sTN, sNK, sFWN, sFB, sPRE, sREDO, sLIMF, sPO = 96, 97, 98, 99, 100, 101, 53, 43
sMALL, sRS = 24, 26
sOFF, sTB0, sTB1, sTTC, sFIRST = 20, 21, 22, 23, 44
sZQ = 54
sRK, sPB, sNP, sX, sTA, sTB, sF, sWB = 80, 81, 82, 83, 84, 85, 86, 87
sMA, sMBK = 88, 90
sLO, sHI, sLBASE = 92, 93, 94
sBO = 56
vLANE = 1
vT0, vT1, vT2, vT3, vT4, vT5 = 2, 3, 4, 5, 6, 7
vL = 8
vKOFF, vVOFF = 10, 14
vCA, vCNT, vFA, vR = 18, 19, 20, 21
vF = 22
vCUR = 24
vTR = 28
vTRK, vTRV = 36, 52
vEN = 44
vDP, vDA, vOOB, vSA = 46, 47, 48, 49
vKA0, vVA0, vXA = 8, 12, 16
vPA0, vPW, vINV, vOA = 20, 21, 22, 23
vM, vLS, vMN, vAL, vPA, vFW = 24, 25, 26, 27, 28, 29
vPL = 30
vQ = 32
vS = 48
vP = 56
vG, vPF, vFV, vN = 60, 61, 62, 63
vKF = 64
vVF = 96
vO = 128
vE = 160
vPN = 160
NV = 168

def stamp(i):
    if a.amp and (i == 0 or (i == 1 and a.amp == "t0")): e(f"s_memrealtime s[{sST+2*i}:{sST+2*i+1}]")
    if a.hold and i == 0: e(f"{'s_memrealtime' if a.hold[:2] == 'rt' else 's_memtime'} s[{sST}:{sST+1}]")
    if a.stamps: e(f"s_memrealtime s[{sST+2*i}:{sST+2*i+1}]")
def clamp_cl(zq=None):
    c("context length: <=0 -> every key masked => uniform weights over 2048 keys (zero Q); >2048 -> 2048")
    e(f"s_cmp_lt_i32 s{sCLV}, 1")
    if zq is not None: e(f"s_cselect_b32 s{zq}, 1, 0")
    e(f"s_cselect_b32 s{sCLV}, 2048, s{sCLV}")
    e(f"s_min_i32 s{sCLV}, s{sCLV}, 2048")
def derive_nb():
    e(f"s_add_u32 s{sNTL}, s{sNB}, 1")
    e(f"s_lshr_b32 s{sNTL}, s{sNTL}, 1")
    e(f"s_sub_u32 s{sNU}, s{sNTL}, 1")
    e(f"s_min_u32 s{sNU}, s{sNU}, {NUM}")
def derive_cl():
    e(f"s_add_u32 s{sNB}, s{sCLV}, 15")
    e(f"s_lshr_b32 s{sNB}, s{sNB}, 4")
    derive_nb()
def spin_tail(label, sleep=1):
    e(f"s_sleep {sleep}")
    e(f"s_sub_u32 s{sSPIN}, s{sSPIN}, 1")
    e(f"s_cbranch_scc0 {label}")
    e("s_endpgm")
FIN = "s_branch L_fin" if (a.stamps or a.amp) else "s_endpgm"

out.append(HEADER.rstrip())
out.append(f"; @launch grid=(256,1,1) block=({64*NW},1,1) lds={LDS}")
out.append('.amdgcn_target "amdgcn-amd-amdhsa--gfx950"')
out.append(".text")
out.append(f".globl {NAME}_kernel")
out.append(".p2align 8")
out.append(f".type {NAME}_kernel,@function")
lab(f"{NAME}_kernel")
e("s_load_dwordx16 s[4:19], s[0:1], 0")
e(f"s_lshr_b32 s{sB}, s2, 3")
e(f"s_cmp_ge_u32 s{sB}, 32")
e("s_cbranch_scc1 L_end")
stamp(0)
e(f"v_lshrrev_b32 v{vT0}, 6, v0")
e(f"v_and_b32 v{vLANE}, 63, v0")
e(f"v_readfirstlane_b32 s{sW}, v{vT0}")
c("wave 1 pulls this kernel's code into L2")
e(f"s_getpc_b64 s[{sPC}:{sPC+1}]")
lab("L_pc")
e(f"v_lshlrev_b32 v{vT2}, 7, v{vLANE}")
e(f"v_min_u32 v{vT2}, L_end - L_pc - 256, v{vT2}")
e(f"s_cmp_lg_u32 s{sW}, 1")
e("s_cbranch_scc1 L_nopf")
e(f"global_load_dword v{vPF}, v{vT2}, s[{sPC}:{sPC+1}] offset:256")
if a.wake:
    e(f"s_mul_i32 s{sT3}, s2, {a.wake}")
    e(f"v_and_b32 v{vT2}, {a.wake - 256}, v{vT2}")
    e(f"v_add_u32 v{vT2}, s{sT3}, v{vT2}")
    e(f"v_add_u32 v{vT2}, L_pad - L_pc, v{vT2}")
    e(f"global_load_dword v{vFV}, v{vT2}, s[{sPC}:{sPC+1}] nt")
lab("L_nopf")
c("clear the control words and the sort counters")
e(f"v_mov_b64 v[{vT2}:{vT3}], 0")
e(f"v_lshlrev_b32 v{vT4}, 3, v0")
e(f"v_add_u32 v{vT4}, {CTRL}, v{vT4}")
e(f"ds_write_b64 v{vT4}, v[{vT2}:{vT3}]")
if a.map == "rot":
    e(f"s_add_u32 s{sH}, s2, s{sB}")
    e(f"s_and_b32 s{sH}, s{sH}, 7")
elif a.hrot:
    e(f"s_add_u32 s{sH}, s2, {a.hrot}")
    e(f"s_and_b32 s{sH}, s{sH}, 7")
else:
    e(f"s_and_b32 s{sH}, s2, 7")
e(f"s_lshl3_add_u32 s{sT2}, s{sB}, s{sH}")
e(f"s_lshl_b32 s{sT2}, s{sT2}, 13")
e(f"v_lshl_add_u32 v{vT5}, v{vLANE}, 7, s{sT2}")
e(f"s_lshl_b32 s{sT0}, s{sB}, 9")
e(f"v_lshl_add_u32 v{vT2}, v{vLANE}, 3, s{sT0}")
if not a.spec: e(f"s_lshl_b32 s{sT1}, s{sB}, 2")
e(f"v_and_b32 v{vT0}, 31, v{vLANE}")
e(f"v_lshlrev_b32 v{vT3}, 2, v{vT0}")
vTL = 22
if a.tlb:
    e(f"v_min_u32 v{vTL}, {(2 << (21 - a.tlbs)) - 1}, v{vLANE}")
    e(f"v_lshl_add_u32 v{vTL}, v{vTL}, 5, s{sB}")
    e(f"s_mul_i32 s{sT3}, s2, {8064 >> (21 - a.tlbs) & ~127}")
    e(f"v_lshl_add_u32 v{vTL}, v{vTL}, {a.tlbs}, s{sT3}")
e(f"s_cmp_lg_u32 s{sW}, 2")
e("s_waitcnt lgkmcnt(0)")
e(f"s_load_dwordx8 s[{sE}:{sE+7}], s[{sBT}:{sBT+1}], s{sT0}")
if not a.spec: e(f"s_load_dword s{sCLV}, s[{sCL}:{sCL+1}], s{sT1}")
c("wave 2 touches the 64 lines of this workgroup's queries while memory is still idle")
e("s_cbranch_scc1 L_noq")
if "k" in a.tlb: e(f"global_load_dword v{vFV}, v{vTL}, s[{sK}:{sK+1}] nt")
e(f"global_load_dword v{vPF}, v{vT5}, s[{sQ}:{sQ+1}]")
lab("L_noq")
if a.opf:
    e(f"s_cmp_lg_u32 s{sW}, 4")
    e("s_cbranch_scc1 L_noo")
    e(f"global_load_dword v{vPF}, v{vT5}, s[{sOUT}:{sOUT+1}]")
    lab("L_noo")
e(f"global_load_dwordx2 v[{vL}:{vL+1}], v{vT2}, s[{sBT}:{sBT+1}]")
e(f"global_load_dword v{vN}, v{vT3}, s[{sCL}:{sCL+1}]")
lab("L_loads_issued")
if a.amp == "t0k": e(f"s_memrealtime s[{sST+2}:{sST+3}]")
e(f"s_cmp_lg_u32 s{sW}, 0")
e(f"s_mov_b32 s{sSPIN}, {SPIN}")
e("s_cbranch_scc1 L_notloader")

e("s_setprio 3")
c("per-lane source offsets of the LDS-DMA pieces (bank swizzle applied on the source side)")
e(f"v_lshrrev_b32 v{vR}, 4, v{vLANE}")
e(f"v_and_b32 v{vT1}, 15, v{vLANE}")
e(f"s_lshl_b32 s{sT0}, s{sH}, 8")
e(f"v_lshl_add_u32 v{vT4}, v{vR}, 11, s{sT0}")
e(f"v_xor_b32 v{vT2}, v{vR}, v{vT1}")
e(f"v_lshl_add_u32 v{vKOFF}, v{vT2}, 4, v{vT4}")
for j in range(1, 4):
    e(f"v_xor_b32 v{vT3}, {64*j}, v{vKOFF}")
    e(f"v_add_u32 v{vKOFF+j}, {7168*j}, v{vT3}")
e(f"s_mov_b32 s{sRD}, s{sK}")
e(f"s_and_b32 s{sRD+1}, s{sK+1}, 0xffff")
e(f"s_mov_b32 s{sRD+2}, {KBYTES}")
e(f"s_mov_b32 s{sRD+3}, 0x20000")
if a.amp == "t0c": e(f"s_memrealtime s[{sST+2}:{sST+3}]")
e("s_waitcnt lgkmcnt(0)")
if not a.spec: clamp_cl()
c("the first stream tiles are the leading logical tiles; requested before the context length is known")
NE = a.NE
for t in range(NE):
    if not a.spec:
        e(f"s_cmp_le_u32 s{sCLV}, {32*(t+1)}")
        e(f"s_cbranch_scc1 {'L_ld_b' if t < 2 else 'L_ld_pre'}")
    if t == 0: stamp(1)
    for j in range(8):
        i = 8 * t + j
        if j % 4 == 0:
            e(f"s_movk_i32 m0, {1024*i}")
            e(f"s_lshl_b32 s{sB0}, s{sE+i//4}, 15")
        if i >= D0: e(f"s_waitcnt vmcnt({D0-1})")
        e(f"buffer_load_dwordx4 v{vKOFF+j%4}, s[{sRD}:{sRD+3}], s{sB0} offen offset:{1024*(j%4)}{NT} lds")
    if t == 1:
        lab("L_ld_b")
        e("s_barrier")
lab("L_ld_pre")
j0 = (D - 1) % 8
e(f"v_lshlrev_b32 v{vT3}, 2, v{vR}")
e(f"v_xor_b32 v{vT3}, v{vT3}, v{vT1}")
e(f"v_lshl_add_u32 v{vVOFF}, v{vT3}, 4, v{vT4}")
for j in range(1, 4):
    e(f"v_add_u32 v{vVOFF+j}, {7168*j}, v{vVOFF}")
e(f"v_lshlrev_b32 v{vCA}, 3, v{vLANE}")
e(f"v_add_u32 v{vT0}, {SL}, v{vCA}")
e(f"v_add_u32 v{vCA}, {CTRL}, v{vCA}")
e(f"v_mov_b32 v{vFA}, {FREE}")
e(f"v_mov_b64 v[{vF}:{vF+1}], 0")
e(f"v_mov_b32 v{vDP}, {2 if NE == 3 else 0}")
e(f"v_mov_b32 v{vDA}, {DEPW}")
e(f"v_bfrev_b32 v{vOOB}, 1")
def set_pass(off):
    for j in range(0, 4, 2): e(f"v_mov_b64 v[{vCUR+j}:{vCUR+j+1}], v[{off+j}:{off+j+1}]")
set_pass(vKOFF)
if "prog3" in DBG: e("v_mov_b32 v50, 0")
e(f"s_mov_b32 s{sPM}, 4")
e(f"s_mov_b32 s{sTA0}, 0")
if a.spec:
    e(f"s_waitcnt vmcnt({8*NE})")
    e(f"v_readlane_b32 s{sCLV}, v{vN}, s{sB}")
    clamp_cl()
derive_cl()
c("the leading tiles enter the stream list straight from the table row")
e(f"s_min_u32 s{sT}, s{sNU}, {NE}")
e(f"s_lshl3_add_u32 s{sT0}, s{sT}, {SL}")
e(f"v_mov_b32 v{vSA}, s{sT0}")
e(f"s_sub_u32 s{sT0}, s{sT}, 3")
e(f"v_mov_b32 v{vCNT}, s{sT0}")
e(f"s_bfm_b64 s[{sT2}:{sT2+1}], s{sNU}, 0")
e(f"s_cmp_ge_u32 s{sNU}, {NE}")
e("s_cbranch_scc1 L_ld_row")
e("s_waitcnt vmcnt(0)")
lab("L_ld_row")
if not (a.spec and NE == 3): e("s_waitcnt vmcnt(24)")
if NE == 4: e(f"ds_write_b32 v{vCA}, v{vCNT}")
e(f"v_lshl_or_b32 v{vEN}, v{vL}, 15, 1")
e(f"v_lshlrev_b32 v{vEN+1}, 15, v{vL+1}")
e(f"s_mov_b64 exec, s[{sT2}:{sT2+1}]")
e(f"ds_write_b64 v{vT0}, v[{vEN}:{vEN+1}]")
e("s_mov_b64 exec, -1")
e(f"ds_read_b64 v[{vEN}:{vEN+1}], v{vSA}")
e(f"s_lshl_b32 s{sSLOT}, s{sT}, 13")
e(f"s_mov_b32 s{sU}, s{sT}")
c("lanes of the last logical tile whose rows lie inside the context")
e(f"s_lshl_b32 s{sT0}, s{sNTL}, 5")
e(f"s_sub_u32 s{sT0}, s{sCLV}, s{sT0}")
e(f"s_add_u32 s{sT0}, s{sT0}, 32")
e(f"v_sub_u32 v{vT1}, s{sT0}, v{vR}")
for k in range(8):
    e(f"v_cmp_lt_i32 s[{80+2*k}:{81+2*k}], {4*k}, v{vT1}")
if a.amp == "t0r": e(f"s_memrealtime s[{sST+2}:{sST+3}]")
if a.amp[:3] == "t0l":
    e(f"s_waitcnt vmcnt({int(a.amp[3:])})")
    e(f"s_memrealtime s[{sST+2}:{sST+3}]")
stamp(2)
def unit_body(depth, trimmed=False):
    for j in range(8):
        if j % 4 == 0: e(f"s_add_u32 m0, s{sSLOT}, {1024*j}")
        e(f"s_waitcnt vmcnt({depth-1})")
        e(f"buffer_load_dwordx4 v{vTR+j if trimmed else vCUR+j%4}, s[{sRD}:{sRD+3}], s{sB0 + j//4} offen offset:{1024*(j%4)}{NT} lds")
        if j == (depth - 1) % 8:
            e(f"v_add_u32 v{vCNT}, 1, v{vCNT}")
            e(f"ds_write_b32 v{vCA}, v{vCNT}")
        if j == 0:
            e(f"s_add_u32 s{sT2}, s{sSLOT}, 8192")
            e(f"s_cmp_eq_u32 s{sT2}, {RING}")
            e(f"s_cselect_b32 s{sT2}, 0, s{sT2}")
            e(f"s_lshr_b32 s{sT0}, s{sT2}, 10")
            e(f"s_add_u32 s{sT0}, s{sT0}, {FREE}")
            e(f"v_mov_b32 v{vFA}, s{sT0}")
        if j == 1:
            e(f"s_add_u32 s{sT}, s{sT}, 1")
            e(f"s_and_b32 s{sT0}, s{sFL}, s{sPM}")
            e(f"s_cselect_b32 s{sT}, s{sTA0}, s{sT}")
            e(f"s_lshl3_add_u32 s{sT0}, s{sT}, {SL}")
            e(f"v_mov_b32 v{vSA}, s{sT0}")
            e(f"s_add_u32 s{sU}, s{sU}, 1")
        if j == a.fpf:
            c("prefetch the next list entry, the FREE words of the next slot and the depth code")
            e(f"ds_read_b64 v[{vEN}:{vEN+1}], v{vSA}")
            e(f"ds_read_b64 v[{vF}:{vF+1}], v{vFA}")
            e(f"ds_read_b32 v{vDP}, v{vDA}")
            e(f"s_mov_b32 s{sSLOT}, s{sT2}")
out.append(".p2align 3")
lab("L_ld")
if "prog3" in DBG:
    e(f"s_memrealtime s[{sST+4}:{sST+5}]")
    e(f"s_min_u32 m0, s{sU}, 63")
e("s_waitcnt lgkmcnt(0)")
if "prog3" in DBG: e(f"v_writelane_b32 v50, s{sST+4}, m0")
e(f"v_min_i32 v{vT0}, v{vF}, v{vF+1}")
e(f"v_readfirstlane_b32 s{sFL}, v{vEN}")
e(f"v_readfirstlane_b32 s{sB1}, v{vEN+1}")
e(f"v_readfirstlane_b32 s{sT0}, v{vT0}")
e(f"v_readfirstlane_b32 s{sT3}, v{vDP}")
e(f"s_sub_u32 s{sT1}, s{sU}, {NS-1}")
e(f"s_cmp_ge_i32 s{sT0}, s{sT1}")
e(f"s_cselect_b32 s{sT0}, s{sFL}, 0")
e(f"s_and_b32 s{sB0}, s{sFL}, -16")
e(f"s_and_b32 s{sT0}, s{sT0}, 3")
e(f"s_cmp_lg_u32 s{sT0}, 1")
e("s_cbranch_scc1 L_ld_odd")
e(f"s_cmp_lg_u32 s{sT3}, 0")
e("s_cbranch_scc1 L_ld_var")
unit_body(D)
lab("L_ld_next")
e(f"s_bitcmp1_b32 s{sFL}, 2")
e("s_cbranch_scc0 L_ld")
c("last tile of the batch: change pass")
e(f"s_xor_b32 s{sPM}, s{sPM}, 4")
e("s_cbranch_scc1 L_ld_tok")
e(f"s_mov_b32 s{sRD}, s{sV}")
e(f"s_and_b32 s{sRD+1}, s{sV+1}, 0xffff")
set_pass(vVOFF)
e("s_branch L_ld")
lab("L_ld_tok")
e(f"s_bitcmp1_b32 s{sFL}, 3")
e("s_cbranch_scc0 L_ld_more")
for r in (16, 8, 0):
    e(f"v_add_u32 v{vCNT}, 1, v{vCNT}")
    e(f"s_waitcnt vmcnt({r})")
    e(f"ds_write_b32 v{vCA}, v{vCNT}")
if a.hold:
    lab("L_hold")
    e(f"{'s_memrealtime' if a.hold[:2] == 'rt' else 's_memtime'} s[{sST+2}:{sST+3}]")
    e("s_waitcnt lgkmcnt(0)")
    e(f"s_sub_u32 s{sT0}, s{sST+2}, s{sST}")
    e(f"s_cmp_lt_u32 s{sT0}, {a.hold[3:]}")
    e("s_cbranch_scc1 L_hold")
e(FIN)
lab("L_ld_more")
e(f"s_mov_b32 s{sTA0}, s{sT}")
e(f"s_mov_b32 s{sRD}, s{sK}")
e(f"s_and_b32 s{sRD+1}, s{sK+1}, 0xffff")
set_pass(vKOFF)
e("s_branch L_ld")
lab("L_ld_odd")
e(f"s_cmp_eq_u32 s{sT0}, 3")
e("s_cbranch_scc1 L_ld_m")
c("slot not free yet or entry not written yet")
e(f"ds_read_b64 v[{vEN}:{vEN+1}], v{vSA}")
e(f"ds_read_b64 v[{vF}:{vF+1}], v{vFA}")
e(f"s_sub_u32 s{sSPIN}, s{sSPIN}, 1")
e("s_cbranch_scc0 L_ld")
e("s_endpgm")
lab("L_ld_m")
c("the last logical tile: rows past the context are not fetched (their lanes read zeros)")
for k in range(8):
    e(f"v_cndmask_b32 v{vTR+k}, v{vOOB}, v{vCUR+k%4}, s[{80+2*k}:{81+2*k}]")
unit_body(D + a.DM, True)
e("s_branch L_ld_next")
lab("L_ld_var")
e(f"s_cmp_eq_u32 s{sT3}, 1")
e("s_cbranch_scc1 L_ld_v2")
e(f"s_cmp_eq_u32 s{sT3}, 2")
e("s_cbranch_scc1 L_ld_v3")
unit_body(D + DV[0])
e("s_branch L_ld_next")
lab("L_ld_v2")
unit_body(D + DV[1])
e("s_branch L_ld_next")
lab("L_ld_v3")
unit_body(D + DV[2])
e("s_branch L_ld_next")

lab("L_notloader")
e(f"s_cmp_ge_u32 s{sW}, 3")
e("s_cbranch_scc1 L_planner")
e(f"s_sub_u32 s{sCI}, s{sW}, 1")
def rows_off(sb):
    e(f"s_lshl3_add_u32 s{sQO}, s{sb}, s{sH}")
    e(f"s_lshl1_add_u32 s{sQO}, s{sQO}, s{sCI}")
    e(f"s_lshl_b32 s{sQO}, s{sQO}, 12")
    e(f"v_and_b32 v{vT0}, 15, v{vLANE}")
    e(f"v_lshrrev_b32 v{vG}, 4, v{vLANE}")
def load_q(sb):
    rows_off(sb)
    e(f"v_lshl_add_u32 v{vT4}, v{vT0}, 8, s{sQO}")
    e(f"v_lshl_add_u32 v{vT4}, v{vG}, 4, v{vT4}")
    for s in range(4):
        e(f"global_load_dwordx4 v[{vQ+4*s}:{vQ+4*s+3}], v{vT4}, s[{sQ}:{sQ+1}] offset:{64*s}")
load_q(sB)
e("s_barrier")
e(f"s_mov_b32 s{sROLE}, 0")
e(f"s_mov_b32 s{sPLN}, 0")
e(f"s_mov_b32 s{sMRG}, 0")
if a.spec:
    e("s_waitcnt vmcnt(4) lgkmcnt(0)")
    e(f"v_readlane_b32 s{sCLV}, v{vN}, s{sB}")
else: e("s_waitcnt lgkmcnt(0)")
clamp_cl(zq=sT3)
derive_cl()
c("valid keys of the last logical tile")
e(f"s_lshl_b32 s{sV0}, s{sNTL}, 5")
e(f"s_sub_u32 s{sV0}, s{sCLV}, s{sV0}")
e(f"s_add_u32 s{sV0}, s{sV0}, 32")
e(f"s_bfm_b64 s[{sM}:{sM+1}], s{sNU}, 0")
lab("L_csetup")
e(f"s_mov_b32 s{sMT}, 0")
e(f"s_mov_b32 s{sOFF}, 0")
e(f"s_mov_b32 s{sTB0}, 0")
e(f"s_mov_b32 s{sFIRST}, 1")
e(f"s_mov_b64 s[{sRS}:{sRS+1}], 0")
e("s_waitcnt vmcnt(4)")
e(f"v_and_b32 v{vT0}, 15, v{vLANE}")
e(f"v_xor_b32 v{vT1}, v{vG}, v{vT0}")
e(f"v_lshlrev_b32 v{vT2}, 8, v{vT0}")
e(f"v_lshl_add_u32 v{vKA0}, v{vT1}, 4, v{vT2}")
for s in range(1, 4):
    e(f"v_xor_b32 v{vKA0+s}, {64*s}, v{vKA0}")
e(f"v_bfe_u32 v{vT0}, v{vLANE}, 2, 2")
e(f"v_lshl_add_u32 v{vT1}, v{vG}, 2, v{vT0}")
e(f"v_lshlrev_b32 v{vT1}, 8, v{vT1}")
e(f"v_and_b32 v{vT2}, 3, v{vLANE}")
e(f"v_lshl_add_u32 v{vT1}, v{vT2}, 4, v{vT1}")
e(f"v_lshl_add_u32 v{vVA0}, v{vT0}, 6, v{vT1}")
for j in range(1, 4):
    e(f"v_xor_b32 v{vVA0+j}, {64*j}, v{vVA0}")
e(f"s_lshl_b32 s{sT0}, s{sCI}, 10")
e(f"s_add_u32 s{sT0}, s{sT0}, {PST}")
e(f"v_lshl_add_u32 v{vPA0}, v{vLANE}, 4, s{sT0}")
e(f"v_mov_b32 v{vOA}, v{vT4}")
e(f"s_lshl_b32 s{sT0}, s{sW}, 3")
e(f"s_add_u32 s{sT0}, s{sT0}, {CTRL-8}")
e(f"v_mov_b32 v{vPA}, s{sT0}")
e(f"v_mov_b32 v{vM}, 0xff800000")
e(f"v_mov_b32 v{vLS}, 0")
for r in range(0, 32, 2): e(f"v_mov_b64 v[{vO+r}:{vO+r+1}], 0")
e(f"s_mov_b32 s{sCST}, 0x3e0293ee")
e(f"s_mov_b32 s{sCST+1}, 0x3e0293ee")
e(f"s_mov_b32 s{sLIMF}, {a.limf}")
e(f"s_lshl2_add_u32 s{sFB}, s{sCI}, {FREE}")
e("s_waitcnt vmcnt(0)")
e(f"s_cmp_eq_u32 s{sT3}, 0")
e("s_cbranch_scc1 L_k_first")
for r in range(0, 16, 2): e(f"v_mov_b64 v[{vQ+r}:{vQ+r+1}], 0")

def poll(label):
    lab(label)
    e(f"ds_read_b64 v[{vPL}:{vPL+1}], v{vPA}")
    e(f"s_sub_u32 s{sSPIN}, s{sSPIN}, 1")
    e("s_cbranch_scc1 L_end")
    e("s_waitcnt lgkmcnt(0)")
    e(f"v_readfirstlane_b32 s{sLND}, v{vPL}")
    e(f"s_cmp_ge_i32 s{sLND}, s{sNK}")
    e(f"s_cbranch_scc0 {label}")
VR = []
for j in range(4):
    for ee in range(2):
        for blk in range(2):
            r = vVF + (2 * j + ee) * 4 + 2 * blk
            VR.append(f"ds_read_b64_tr_b16 v[{r}:{r+1}], v{vXA+j} offset:{8*ee + 4096*blk}")
KR, QK = [], []
for blk in range(2):
    for st in range(4):
        r = vKF + (blk * 4 + st) * 4
        KR.append(f"ds_read_b128 v[{r}:{r+3}], v{vXA+st} offset:{4096*blk}")
        cc = "0" if st == 0 else f"v[{vS+4*blk}:{vS+4*blk+3}]"
        QK.append(f"v_mfma_f32_16x16x32_bf16 v[{vS+4*blk}:{vS+4*blk+3}], v[{r}:{r+3}], v[{vQ+4*st}:{vQ+4*st+3}], {cc}")
PV = [f"v_mfma_f32_16x16x32_bf16 v[{vO+4*dt}:{vO+4*dt+3}], v[{vVF+4*dt}:{vVF+4*dt+3}], v[{vP}:{vP+3}], v[{vO+4*dt}:{vO+4*dt+3}]" for dt in range(8)]
NX = [f"s_ff1_i32_b64 s{sTN}, s[{sM}:{sM+1}]",
      f"s_bitset0_b64 s[{sM}:{sM+1}], s{sTN}",
      f"s_add_u32 s{sT1}, s{sTN}, s{sOFF}",
      f"s_mul_i32 s{sT0}, s{sT1}, {DIVM[0]}",
      f"s_lshr_b32 s{sT0}, s{sT0}, {DIVM[1]}",
      f"s_mul_i32 s{sT0}, s{sT0}, {NS}",
      f"s_sub_u32 s{sT0}, s{sT1}, s{sT0}",
      f"s_lshl_b32 s{sSB}, s{sT0}, 13",
      f"s_lshl3_add_u32 s{sFWN}, s{sT0}, s{sFB}",
      f"s_and_b32 s{sT0}, s{sTN}, 0x40000000",
      f"s_add_u32 s{sNK}, s{sT1}, 1",
      f"s_or_b32 s{sNK}, s{sNK}, s{sT0}",
      f"s_sub_u32 s{sPO}, s{sTN}, s{sTB0}",
      f"s_lshl_b32 s{sPO}, s{sPO}, 11"]
KA = [f"v_add_u32 v{vXA+i}, s{sSB}, v{vKA0+i}" for i in range(4)]
VA = [f"v_add_u32 v{vXA+i}, s{sSB}, v{vVA0+i}" for i in range(4)]
ADV = [f"v_mov_b32 v{vFW}, s{sFWN}",
       f"v_mov_b32 v{vFV}, s{sNK}",
       f"v_add_u32 v{vPW}, s{sPO}, v{vPA0}",
       f"s_add_u32 s{sT}, s{sTN}, 1"]
def scale_o(reg):
    for r in range(0, 32, 2):
        sel = "op_sel:[0,1] op_sel_hi:[1,1]" if reg & 1 else "op_sel_hi:[1,0]"
        p = reg & ~1
        e(f"v_pk_mul_f32 v[{vO+r}:{vO+r+1}], v[{vO+r}:{vO+r+1}], v[{p}:{p+1}] {sel}")

def inv_pre():
    e(f"v_mov_b32 v{vT0}, v{vLS}")
    e(f"v_mov_b32 v{vT1}, v{vLS}")
    e("s_nop 1")
    e(f"v_permlane32_swap_b32 v{vT0}, v{vT1}")
    e("s_nop 0")
    e(f"v_add_f32 v{vT0}, v{vT0}, v{vT1}")
    e(f"v_mov_b32 v{vT1}, v{vT0}")
    e("s_nop 1")
    e(f"v_permlane16_swap_b32 v{vT0}, v{vT1}")
    e("s_nop 0")
    e(f"v_add_f32 v{vT0}, v{vT0}, v{vT1}")
    e(f"v_rcp_f32 v{vINV}, v{vT0}")

lab("L_k_first")
for x in NX + KA + ADV: e(x)
lab("L_k_next")
e(f"s_cmp_lt_i32 s{sTN}, 0")
e("s_cbranch_scc1 L_k_empty")
poll("L_k_poll")
for x in KR: e(x)
e("s_waitcnt lgkmcnt(0)")
out.append(".p2align 3")
lab("L_k_top")
e("s_waitcnt lgkmcnt(1)")
e(f"ds_write_b32 v{vFW}, v{vFV}")
e(f"ds_read_b64 v[{vPL}:{vPL+1}], v{vPA}")
fill = NX + KA
for i in range(8):
    e(QK[i])
    for x in fill[2*i:2*i+2]: e(x)
for x in fill[16:]: e(x)
e(f"s_mov_b32 s{sREDO}, 0")
e("s_waitcnt lgkmcnt(0)")
e(f"v_readfirstlane_b32 s{sLND}, v{vPL}")
e(f"s_cmp_ge_i32 s{sLND}, s{sNK}")
e(f"s_cselect_b32 s{sPRE}, 1, 0")
e("s_cbranch_scc0 L_k_nopre")
for x in KR: e(x)
lab("L_k_nopre")
e(f"s_cmp_eq_u32 s{sT}, s{sMT}")
e("s_cbranch_scc1 L_k_mask")
lab("L_k_exp")
for hb in range(2):
    for r in (4*hb, 4*hb+2):
        e(f"v_pk_fma_f32 v[{vE+r}:{vE+r+1}], v[{vS+r}:{vS+r+1}], s[{sCST}:{sCST+1}], v[{vM}:{vM+1}] op_sel_hi:[1,1,0] neg_lo:[0,0,1] neg_hi:[0,0,1]")
    for r in range(4*hb, 4*hb+4):
        e(f"v_exp_f32 v{vE+r}, v{vE+r}")
e(f"v_pk_add_f32 v[{vT0}:{vT1}], v[{vE}:{vE+1}], v[{vE+2}:{vE+3}]")
e(f"v_pk_add_f32 v[{vT2}:{vT3}], v[{vE+4}:{vE+5}], v[{vE+6}:{vE+7}]")
e(f"v_cvt_pk_bf16_f32 v{vP}, v{vE}, v{vE+1}")
e(f"v_pk_add_f32 v[{vT0}:{vT1}], v[{vT0}:{vT1}], v[{vT2}:{vT3}]")
e(f"v_cvt_pk_bf16_f32 v{vP+1}, v{vE+2}, v{vE+3}")
e(f"v_add_f32 v{vT0}, v{vT0}, v{vT1}")
c("the kept reference max is safe only while every weight stays <= 256; otherwise take the true max")
e(f"v_cmp_nge_f32 vcc, s{sLIMF}, v{vT0}")
e(f"v_cvt_pk_bf16_f32 v{vP+2}, v{vE+4}, v{vE+5}")
e(f"v_cvt_pk_bf16_f32 v{vP+3}, v{vE+6}, v{vE+7}")
e(ADV[0]); e(ADV[1])
e("s_nop 0")
e("s_cbranch_vccnz L_k_slow")
lab("L_k_done")
e(f"ds_write_b128 v{vPW}, v[{vP}:{vP+3}]")
e(f"v_add_f32 v{vLS}, v{vLS}, v{vT0}")
e(ADV[3])
e(f"s_cmp_lg_u32 s{sPRE}, 0")
e(ADV[2])
e("s_cbranch_scc1 L_k_top")
e("s_branch L_k_next")

lab("L_k_mask")
e(f"v_lshlrev_b32 v{vT0}, 2, v{vG}")
e(f"v_sub_u32 v{vT0}, s{sV0}, v{vT0}")
e(f"v_mov_b32 v{vT1}, 0xff800000")
for r in range(8):
    e(f"v_cmp_lt_i32 s[{80+2*r}:{81+2*r}], {16*(r//4)+r%4}, v{vT0}")
for r in range(8):
    e(f"v_cndmask_b32 v{vS+r}, v{vT1}, v{vS+r}, s[{80+2*r}:{81+2*r}]")
e("s_branch L_k_exp")

def alpha_addr():
    e(f"s_lshl_b32 s{sT0}, s2, 6")
    e(f"s_add_u32 s{sT0}, s{sT0}, s{sT}")
    e(f"s_lshl1_add_u32 s{sT0}, s{sT0}, s{sCI}")
    e(f"s_lshl_b32 s{sT0}, s{sT0}, 6")
    e(f"s_add_u32 s{sT0}, s{sT0}, {WSA}")
    e(f"v_and_b32 v{vT1}, 15, v{vLANE}")
    e(f"v_lshl_add_u32 v{vT1}, v{vT1}, 2, s{sT0}")
c("raise the reference to the true running max; the accumulator is rescaled when pass 2 reaches this tile")
lab("L_k_slow")
e(f"s_cmp_lg_u32 s{sREDO}, 0")
e("s_cbranch_scc1 L_k_done")
e(f"s_mov_b32 s{sREDO}, 1")
e(f"v_max3_f32 v{vT0}, v{vS}, v{vS+1}, v{vS+2}")
e(f"v_max3_f32 v{vT1}, v{vS+3}, v{vS+4}, v{vS+5}")
e(f"v_max3_f32 v{vT0}, v{vT0}, v{vS+6}, v{vS+7}")
e(f"v_max_f32 v{vT0}, v{vT0}, v{vT1}")
e(f"v_mov_b32 v{vT1}, v{vT0}")
e("s_nop 1")
e(f"v_permlane32_swap_b32 v{vT0}, v{vT1}")
e("s_nop 0")
e(f"v_max_f32 v{vT0}, v{vT0}, v{vT1}")
e(f"v_mov_b32 v{vT1}, v{vT0}")
e("s_nop 1")
e(f"v_permlane16_swap_b32 v{vT0}, v{vT1}")
e("s_nop 0")
e(f"v_max_f32 v{vT0}, v{vT0}, v{vT1}")
e(f"v_mul_f32 v{vT0}, s{sCST}, v{vT0}")
e(f"v_max_f32 v{vMN}, v{vM}, v{vT0}")
e(f"v_sub_f32 v{vAL}, v{vM}, v{vMN}")
e(f"v_exp_f32 v{vAL}, v{vAL}")
e(f"v_mov_b32 v{vM}, v{vMN}")
e(f"s_cmp_lg_u32 s{sFIRST}, 0")
e(f"s_mov_b32 s{sFIRST}, 0")
e(f"v_mul_f32 v{vLS}, v{vLS}, v{vAL}")
e("s_cbranch_scc1 L_k_exp")
alpha_addr()
e(f"global_store_dword v{vT1}, v{vAL}, s[{sWS}:{sWS+1}]")
e(f"s_sub_u32 s{sT0}, s{sT}, 1")
e(f"s_bitset1_b64 s[{sRS}:{sRS+1}], s{sT0}")
e("s_branch L_k_exp")

RLO, RHI = 0xffffffff, (1 << (G - 32)) - 1
lab("L_k_noplan")
e(f"s_mov_b32 s{sPLN}, 1")
e(f"v_mov_b32 v{vT1}, {REC0}")
lab("L_k_plan")
e(f"ds_read_b128 v[{vT2}:{vT5}], v{vT1}")
e("s_waitcnt lgkmcnt(0)")
e(f"v_readfirstlane_b32 s{sT0}, v{vT5}")
e(f"v_readfirstlane_b32 s{sM}, v{vT2}")
e(f"v_readfirstlane_b32 s{sM+1}, v{vT3}")
e(f"v_readfirstlane_b32 s{sTTC}, v{vT4}")
e(f"s_cmp_lg_u32 s{sT0}, 0")
e("s_cbranch_scc1 L_k_got")
spin_tail("L_k_plan")
lab("L_k_got")
e(f"s_lshr_b32 s{sMT}, s{sT0}, 8")
e(f"s_add_u32 s{sMT}, s{sMT}, 1")
e(f"s_and_b32 s{sMRG}, s{sTTC}, {0 if 'nomerge' in DBG else 1}")
e(f"s_lshr_b32 s{sTTC}, s{sTTC}, 8")
e(f"s_min_u32 s{sTB1}, s{sTTC}, {G}")
e(f"s_bfm_b64 s[{sMALL}:{sMALL+1}], s{sNU}, 0")
e(f"s_or_b64 s[{sMALL}:{sMALL+1}], s[{sMALL}:{sMALL+1}], s[{sM}:{sM+1}]")
e(f"s_and_b32 s{sM+1}, s{sM+1}, {RHI:#x}")
e("s_branch L_k_first")
lab("L_v_more")
c("second batch")
e(f"s_mov_b32 s{sTB0}, s{sTB1}")
e(f"s_mov_b32 s{sTB1}, s{sTTC}")
e(f"s_mov_b32 s{sOFF}, s{sTB0}")
e(f"s_mov_b32 s{sMALL}, 0")
e(f"s_andn2_b32 s{sMALL+1}, s{sMALL+1}, {RHI:#x}")
e(f"s_mov_b64 s[{sM}:{sM+1}], s[{sMALL}:{sMALL+1}]")
e("s_branch L_k_first")
lab("L_k_empty")
e(f"s_cmp_eq_u32 s{sPLN}, 0")
e("s_cbranch_scc1 L_k_noplan")
if a.last: inv_pre()
e(f"s_mov_b32 s{sOFF}, s{sTB1}")
e(f"s_mov_b32 s{sM}, s{sMALL}")
e(f"s_and_b32 s{sM+1}, s{sMALL+1}, {RHI:#x}")
e(f"s_cmp_eq_u32 s{sTB0}, 0")
e(f"s_cselect_b32 s{sM+1}, s{sM+1}, s{sMALL+1}")
for x in NX + VA: e(x)
e(f"ds_read_b64 v[{vPL}:{vPL+1}], v{vPA}")
e(f"s_cmp_lt_i32 s{sTN}, 0")
e("s_cbranch_scc1 L_v_empty")
lab("L_v_next")
for x in ADV: e(x)
if a.last:
    e(f"s_cmp_eq_u64 s[{sM}:{sM+1}], 0")
    e("s_cbranch_scc1 L_v_islast")
lab("L_v_next2")
e(f"ds_read_b128 v[{vPN}:{vPN+3}], v{vPW}")
e("s_waitcnt lgkmcnt(1)")
e(f"v_readfirstlane_b32 s{sLND}, v{vPL}")
e(f"s_cmp_ge_i32 s{sLND}, s{sNK}")
e("s_cbranch_scc1 L_v_rd")
poll("L_v_poll")
lab("L_v_rd")
for x in VR: e(x)
if a.lat:
    e(f"v_readfirstlane_b32 s{sMBF}, v{vPL+1}")
    e(f"s_cmp_gt_i32 s{sLND}, s{sNK}")
    e(f"s_cselect_b32 s{sT0}, 1, s{sRS}")
    e(f"s_or_b32 s{sT0}, s{sT0}, s{sRS+1}")
    e(f"s_and_b32 s{sT1}, s{sMBF}, s{sMRG}")
    e(f"s_or_b32 s{sT0}, s{sT0}, s{sT1}")
    e("s_cbranch_scc0 L_v_lat")
out.append(".p2align 3")
lab("L_v_top")
for x in NX + VA: e(x)
e(f"s_sub_u32 s{sT0}, s{sT}, 1")
e(f"s_bitcmp1_b64 s[{sRS}:{sRS+1}], s{sT0}")
e("s_cbranch_scc1 L_v_resc")
lab("L_v_top2")
e("s_waitcnt lgkmcnt(14)")
e(f"v_readfirstlane_b32 s{sMBF}, v{vPL+1}")
e(f"v_readfirstlane_b32 s{sLND}, v{vPL}")
e(f"v_mov_b64 v[{vP}:{vP+1}], v[{vPN}:{vPN+1}]")
e(f"v_mov_b64 v[{vP+2}:{vP+3}], v[{vPN+2}:{vPN+3}]")
e(f"s_and_b32 s{sT0}, s{sMBF}, s{sMRG}")
e("s_cbranch_scc1 L_v_merge")
lab("L_v_top3")
e(f"s_cmp_ge_i32 s{sLND}, s{sNK}")
e("s_cbranch_scc0 L_v_pv")
e(ADV[2])
e("s_waitcnt lgkmcnt(0)")
e(f"ds_write_b32 v{vFW}, v{vFV}")
e(f"ds_read_b64 v[{vPL}:{vPL+1}], v{vPA}")
e(f"ds_read_b128 v[{vPN}:{vPN+3}], v{vPW}")
for i in range(8):
    e(PV[i]); e(VR[2*i]); e(VR[2*i+1])
e(ADV[0]); e(ADV[1]); e(ADV[3])
e("s_branch L_v_top")
if a.lat:
    c("nothing further has landed and nothing is pending: shortest way through this tile")
    lab("L_v_lat")
    e("s_waitcnt lgkmcnt(14)")
    e(f"v_mov_b64 v[{vP}:{vP+1}], v[{vPN}:{vPN+1}]")
    e(f"v_mov_b64 v[{vP+2}:{vP+3}], v[{vPN+2}:{vPN+3}]")
    fl = NX + VA
    e(fl[0]); e(fl[1])
    for i in range(8):
        if i: e(f"s_waitcnt lgkmcnt({14-2*i})")
        if i == 7:
            e(f"ds_write_b32 v{vFW}, v{vFV}")
            e(f"ds_read_b64 v[{vPL}:{vPL+1}], v{vPA}")
        e(PV[i])
        e(fl[2+2*i]); e(fl[3+2*i])
    e(f"s_cmp_ge_i32 s{sTN}, 0")
    e("s_cbranch_scc1 L_v_next")
    e("s_branch L_v_empty")
lab("L_v_pv")
if a.last:
    e(f"s_cmp_lt_i32 s{sTN}, 0")
    e("s_cbranch_scc1 L_v_islast2")
    lab("L_v_pv2")
for i in range(8):
    if i: e(f"s_waitcnt lgkmcnt({14-2*i})")
    if i == 7:
        e(f"ds_write_b32 v{vFW}, v{vFV}")
        e(f"ds_read_b64 v[{vPL}:{vPL+1}], v{vPA}")
    e(PV[i])
e(f"s_cmp_ge_i32 s{sTN}, 0")
e("s_cbranch_scc1 L_v_next")
lab("L_v_empty")
e(f"s_cmp_lt_u32 s{sTB1}, s{sTTC}")
e("s_cbranch_scc1 L_v_more")
stamp(2)
e(f"s_cmp_lg_u32 s{sMRG}, 0")
e("s_cbranch_scc1 L_c_mwait0")
lab("L_c_store")
e(f"v_mov_b32 v{vT0}, v{vLS}")
e(f"v_and_b32 v{vT2}, 15, v{vLANE}")
e(f"v_lshl_add_u32 v{vT2}, v{vT2}, 8, s{sQO}")
e(f"v_permlane32_swap_b32 v{vLS}, v{vT0}")
e("s_nop 0")
e(f"v_add_f32 v{vLS}, v{vLS}, v{vT0}")
e(f"v_mov_b32 v{vT0}, v{vLS}")
e(f"v_lshl_add_u32 v{vT2}, v{vG}, 4, v{vT2}")
e("s_nop 0")
e(f"v_permlane16_swap_b32 v{vLS}, v{vT0}")
e("s_nop 0")
e(f"v_add_f32 v{vLS}, v{vLS}, v{vT0}")
e(f"v_rcp_f32 v{vMN}, v{vLS}")
e(f"s_cmp_lg_u32 s{sROLE}, 0")
scale_o(vMN)
for r in range(16):
    e(f"v_cvt_pk_bf16_f32 v{vKF+r}, v{vO+2*r}, v{vO+2*r+1}")
e("s_cbranch_scc1 L_publish")
def out_stores(fl, step=64):
    for j in range(4):
        e(f"global_store_dwordx4 v{vT2}, v[{vKF+4*j}:{vKF+4*j+3}], s[{sOUT}:{sOUT+1}] offset:{step*j}{fl}")
out_stores(OST)
e(FIN)

def l_total():
    e(f"v_mov_b32 v{vT0}, v{vLS}")
    e(f"v_and_b32 v{vT2}, 15, v{vLANE}")
    e(f"v_lshl_add_u32 v{vT2}, v{vT2}, 8, s{sQO}")
    e(f"v_permlane32_swap_b32 v{vLS}, v{vT0}")
    e("s_nop 0")
    e(f"v_add_f32 v{vLS}, v{vLS}, v{vT0}")
    e(f"v_mov_b32 v{vT0}, v{vLS}")
    e(f"v_lshl_add_u32 v{vT2}, v{vG}, 4, v{vT2}")
    e("s_nop 0")
    e(f"v_permlane16_swap_b32 v{vLS}, v{vT0}")
    e("s_nop 0")
    e(f"v_add_f32 v{vLS}, v{vLS}, v{vT0}")
    e(f"v_rcp_f32 v{vMN}, v{vLS}")
if a.last:
    lab("L_v_islast2")
    e(f"s_sub_u32 s{sT0}, s{sTTC}, s{sTB1}")
    e(f"s_or_b32 s{sT0}, s{sT0}, s{sMRG}")
    e(f"s_or_b32 s{sT0}, s{sT0}, s{sROLE}")
    e("s_cbranch_scc1 L_v_pv2")
    e("s_branch L_v_lpv")
    lab("L_v_islast")
    c("closing tile of an owner with nothing pending: take the short path")
    e(f"s_sub_u32 s{sT0}, s{sTTC}, s{sTB1}")
    e(f"s_or_b32 s{sT0}, s{sT0}, s{sMRG}")
    e(f"s_or_b32 s{sT0}, s{sT0}, s{sROLE}")
    e(f"s_or_b32 s{sT0}, s{sT0}, s{sRS}")
    e(f"s_or_b32 s{sT0}, s{sT0}, s{sRS+1}")
    e("s_cbranch_scc1 L_v_next2")
    e(f"ds_read_b128 v[{vP}:{vP+3}], v{vPW}")
    e("s_waitcnt lgkmcnt(1)")
    e(f"v_readfirstlane_b32 s{sLND}, v{vPL}")
    e(f"s_cmp_ge_i32 s{sLND}, s{sNK}")
    e("s_cbranch_scc1 L_v_lrd")
    poll("L_v_lpoll")
    lab("L_v_lrd")
    for x in VR: e(x)
    def fin_j(j):
        r = []
        for k in range(4):
            q = vO + 8 * j + 2 * k
            r.append(f"v_pk_mul_f32 v[{q}:{q+1}], v[{q}:{q+1}], v[{vINV}:{vINV+1}] op_sel_hi:[1,0]")
        for k in range(4):
            r.append(f"v_cvt_pk_bf16_f32 v{vKF+4*j+k}, v{vO+8*j+2*k}, v{vO+8*j+2*k+1}")
        r.append(f"global_store_dwordx4 v{vOA}, v[{vKF+4*j}:{vKF+4*j+3}], s[{sOUT}:{sOUT+1}] offset:{64*j}{OST}")
        return r
    lab("L_v_lpv")
    f0 = fin_j(0)
    for i in range(8):
        e(f"s_waitcnt lgkmcnt({14-2*i})")
        e(PV[i])
        if i == 5: e(f0[0]); e(f0[1])
        if i == 6: e(f0[2]); e(f0[3])
    stamp(2)
    for x in f0[4:] + fin_j(1) + fin_j(2) + fin_j(3): e(x)
    e(f"ds_write_b32 v{vFW}, v{vFV}")
    e(FIN)

lab("L_v_resc")
e(f"s_bitset0_b64 s[{sRS}:{sRS+1}], s{sT0}")
alpha_addr()
e("s_waitcnt vmcnt(0)")
e(f"global_load_dword v{vAL}, v{vT1}, s[{sWS}:{sWS+1}] sc1")
e("s_waitcnt vmcnt(0)")
scale_o(vAL)
e("s_branch L_v_top2")

lab("L_v_merge")
c("only once no rescale is pending; the reference max stays, so the partial's max must not be far above it")
e(f"s_cmp_eq_u64 s[{sRS}:{sRS+1}], 0")
e("s_cbranch_scc0 L_v_top3")
lab("L_c_merge")
e(f"s_mul_i32 s{sT0}, s{sCI}, {MBS}")
e(f"s_add_u32 s{sT0}, s{sT0}, {MB}")
e(f"v_and_b32 v{vT1}, 15, v{vLANE}")
e(f"v_lshl_add_u32 v{vT0}, v{vLANE}, 4, s{sT0}")
e(f"v_lshl_add_u32 v{vT1}, v{vT1}, 3, s{sT0}")
e("s_waitcnt lgkmcnt(0)")
e(f"ds_write_b32 v{vFW}, v{vFV}")
e(f"ds_read_b64 v[{vT4}:{vT5}], v{vT1} offset:4096")
for i in range(4):
    e(f"ds_read_b128 v[{vKF+4*i}:{vKF+4*i+3}], v{vT0} offset:{1024*i}")
e(f"s_cmp_eq_u32 s{sPLN}, 2")
e("s_waitcnt lgkmcnt(0)")
e("s_cbranch_scc1 L_c_mfin")
e(f"v_sub_f32 v{vT4}, v{vT4}, v{vM}")
e(f"v_cmp_nge_f32 vcc, 0x41800000, v{vT4}")
e(f"s_mov_b32 s{sMRG}, 2")
e("s_nop 3")
e("s_cbranch_vccnz L_v_top3")
e("s_branch L_c_madd")
lab("L_c_mfin")
e(f"v_max_f32 v{vMN}, v{vM}, v{vT4}")
e(f"v_sub_f32 v{vAL}, v{vM}, v{vMN}")
e(f"v_sub_f32 v{vT4}, v{vT4}, v{vMN}")
e(f"v_exp_f32 v{vAL}, v{vAL}")
e("s_nop 0")
e(f"v_mul_f32 v{vLS}, v{vLS}, v{vAL}")
scale_o(vAL)
lab("L_c_madd")
e(f"v_exp_f32 v{vT4}, v{vT4}")
e(f"s_mov_b32 s{sMRG}, 0")
e(f"v_mul_f32 v{vT4}, v{vT4}, v{vT5}")
e(f"v_fmac_f32 v{vLS}, 0x3e800000, v{vT4}")
for r in range(16):
    t = vKF + 16 + 2 * (r % 4)
    e(f"v_lshlrev_b32 v{t}, 16, v{vKF+r}")
    e(f"v_and_b32 v{t+1}, 0xffff0000, v{vKF+r}")
    e(f"v_pk_fma_f32 v[{vO+2*r}:{vO+2*r+1}], v[{t}:{t+1}], v[{vT4}:{vT4+1}], v[{vO+2*r}:{vO+2*r+1}] op_sel_hi:[1,0,1]")
e(f"s_cmp_eq_u32 s{sPLN}, 2")
e("s_cbranch_scc1 L_c_store")
if a.last: inv_pre()
e("s_branch L_v_top3")
lab("L_c_mwait0")
e(f"s_mov_b32 s{sPLN}, 2")
lab("L_c_mwait")
e(f"ds_read_b64 v[{vPL}:{vPL+1}], v{vPA}")
e("s_waitcnt lgkmcnt(0)")
e(f"v_readfirstlane_b32 s{sMBF}, v{vPL+1}")
e(f"s_cmp_lg_u32 s{sMBF}, 0")
e("s_cbranch_scc1 L_c_merge")
spin_tail("L_c_mwait")

def ws_base(sb):
    e(f"s_lshl3_add_u32 s{sT0}, s{sb}, s{sH}")
    e(f"s_lshl_b32 s{sT0}, s{sT0}, 9")
    if WS0: e(f"s_add_u32 s{sT0}, s{sT0}, {WS0}")

lab("L_publish")
if "nopub" in DBG: e("s_endpgm")
e(f"v_lshl_add_u32 v{vT2}, v{vLANE}, 4, s{sQO}")
e(f"s_lshl_b32 s{sT2}, s{sPB}, 2")
e(f"v_mov_b32 v{vT3}, s{sT2}")
e(f"v_lshlrev_b32 v{vT4}, 1, v{vT3}")
e(f"v_add_u32 v{vT4}, {CTRL+68}, v{vT4}")
e(f"ds_read_b32 v{vT4}, v{vT4}")
ws_base(sPB)
e(f"s_lshl2_add_u32 s{sT1}, s{sCI}, s{sT0}")
e(f"v_mov_b32 v{vT5}, s{sT1}")
e(f"s_lshl_b32 s{sT1}, s{sCI}, 7")
e(f"s_add_u32 s{sT0}, s{sT0}, s{sT1}")
e(f"v_lshl_add_u32 v{vT1}, v{vLANE}, 3, s{sT0}")
e(f"s_getreg_b32 s{sT2}, hwreg(HW_REG_XCC_ID, 0, 4)")
e(f"s_lshl_b32 s{sT2}, s{sT2}, 4")
e(f"s_or_b32 s{sT2}, s{sT2}, s{sH}")
e(f"s_or_b32 s{sT2}, s{sT2}, 0x100")
e("s_waitcnt lgkmcnt(0)")
e(f"v_readfirstlane_b32 s{sT1}, v{vT4}")
e(f"s_lshr_b32 s{sT1}, s{sT1}, 16")
e(f"s_cmp_eq_u32 s{sT1}, s{sT2}")
e("s_cbranch_scc1 L_pub_fast")
e(f"global_load_dword v{vT4}, v{vT3}, s[{sDBG}:{sDBG+1}] offset:128 sc1")
e("s_waitcnt vmcnt(0)")
e(f"v_readfirstlane_b32 s{sT1}, v{vT4}")
e(f"s_lshr_b32 s{sT1}, s{sT1}, 16")
e(f"s_cmp_eq_u32 s{sT1}, s{sT2}")
e("s_cbranch_scc0 L_pub_slow")
lab("L_pub_fast")
c("the receiver runs on this die and has cleared its flag words: hand over inside the shared L2")
out_stores("", 1024)
e("s_mov_b64 exec, 0xffff")
e(f"global_store_dwordx2 v{vT1}, v[{vM}:{vM+1}], s[{sWS}:{sWS+1}]")
e(f"v_mov_b32 v{vT4}, 1")
e("s_waitcnt vmcnt(0)")
e("s_mov_b64 exec, 1")
e(f"global_store_dword v{vT5}, v{vT4}, s[{sWS}:{sWS+1}] offset:256")
e(FIN)
lab("L_pub_slow")
c("any other placement: write through to memory, then set a bit with a device-wide atomic")
out_stores(" sc1", 1024)
e("s_mov_b64 exec, 0xffff")
e(f"global_store_dwordx2 v{vT1}, v[{vM}:{vM+1}], s[{sWS}:{sWS+1}] sc1")
e(f"s_lshl1_add_u32 s{sT1}, s{sH}, s{sCI}")
e(f"s_lshl_b32 s{sT1}, 1, s{sT1}")
e(f"v_mov_b32 v{vT4}, s{sT1}")
e("s_waitcnt vmcnt(0)")
e("s_mov_b64 exec, 1")
e(f"global_atomic_add v{vT3}, v{vT4}, s[{sDBG}:{sDBG+1}]")
e(FIN)

vRW = vL
vKEY, vRK = 19, 20
lab("L_ctl0")
if a.skew:
    c("dies are not started at the same instant: the first eight workgroups post when they started")
    e(f"s_memrealtime s[{sMA}:{sMA+1}]")
    e(f"s_lshl2_add_u32 s{sT0}, s{sH}, 2")
    e(f"v_mov_b32 v{vT4}, s{sT0}")
    e(f"s_cmp_lg_u32 s{sB}, 0")
    e("s_waitcnt lgkmcnt(0)")
    e("s_cbranch_scc1 L_ctl1")
    e(f"s_or_b32 s{sT0}, s{sMA}, 0x8000")
    e(f"v_mov_b32 v{vT5}, s{sT0}")
    e("s_mov_b64 exec, 1")
    e(f"global_store_short v{vT4}, v{vT5}, s[{sDBG}:{sDBG+1}] sc1")
    e("s_mov_b64 exec, -1")
    lab("L_ctl1")
e("s_barrier")
e("s_branch L_ctl")
lab("L_planner")
e(f"s_cmp_eq_u32 s{sW}, 5")
e("s_cbranch_scc1 L_ctl0")
e(f"s_sub_u32 s{sCI}, s{sW}, 3")
e(f"s_lshl_b32 s{sSB}, s{sCI}, 8")
e(f"s_add_u32 s{sSB}, s{sSB}, {CNT}")
e(f"v_lshl_add_u32 v{vPA}, v{vLANE}, 2, s{sSB}")
e(f"s_lshl_b32 s{sT2}, s{sCI}, 7")
e(f"s_add_u32 s{sT2}, s{sT2}, {KEYS}")
e(f"v_add_u32 v{vT3}, s{sT2}, v{vT3}")
e(f"v_lshrrev_b32 v{vT4}, 5, v{vLANE}")
e(f"v_lshl_add_u32 v{vT4}, v{vT4}, 6, s{sT2}")
e(f"v_mov_b32 v{vT5}, 2048")
e("s_barrier")
e("s_waitcnt vmcnt(0)")
e(f"v_cmp_gt_i32 s[{sZQ}:{sZQ+1}], 1, v{vN}")
e(f"v_min_i32 v{vN}, v{vN}, v{vT5}")
e("s_nop 0")
e(f"v_cndmask_b32 v{vN}, v{vN}, v{vT5}, s[{sZQ}:{sZQ+1}]")
e(f"v_add_u32 v{vN}, 15, v{vN}")
e(f"v_lshrrev_b32 v{vN}, 4, v{vN}")
e(f"v_lshl_or_b32 v{vKEY}, v{vN}, 5, v{vT0}")
e(f"ds_write_b32 v{vT3}, v{vKEY}")
for i in range(4):
    e(f"ds_read_b128 v[{vKF+4*i}:{vKF+4*i+3}], v{vT4} offset:{16*i}")
e(f"v_mov_b32 v{vRK}, 0")
e(f"v_readlane_b32 s{sNB}, v{vN}, s{sB}")
e("s_waitcnt lgkmcnt(0)")
c("rank of every batch by block count; the batch of rank 31-r is the partner")
for i in range(16):
    e(f"v_sub_u32 v{vKF+i}, v{vKF+i}, v{vKEY}")
for i in range(16):
    e(f"v_alignbit_b32 v{vRK}, v{vRK}, v{vKF+i}, 31")
e(f"v_bcnt_u32_b32 v{vRK}, v{vRK}, 0")
e(f"v_mov_b32 v{vT2}, v{vRK}")
derive_nb()
e(f"v_permlane32_swap_b32 v{vRK}, v{vT2}")
e("s_nop 0")
e(f"v_add_u32 v{vRK}, v{vRK}, v{vT2}")
e("s_nop 0")
e(f"v_readlane_b32 s{sRK}, v{vRK}, s{sB}")
e(f"s_sub_u32 s{sT0}, 31, s{sRK}")
e(f"v_cmp_eq_u32 vcc, s{sT0}, v{vRK}")
e(f"s_ff1_i32_b32 s{sPB}, vcc_lo")
e(f"v_readlane_b32 s{sNP}, v{vN}, s{sPB}")
e(f"s_max_u32 s{sT0}, s{sNB}, s{sNP}")
e(f"s_min_u32 s{sT1}, s{sNB}, s{sNP}")
e(f"s_sub_u32 s{sX}, s{sT0}, s{sT1}")
e(f"s_add_u32 s{sX}, s{sX}, 2")
e(f"s_lshr_b32 s{sX}, s{sX}, 2")
e(f"s_cmp_lt_u32 s{sT0}, {4*NUM+8}")
e(f"s_cselect_b32 s{sX}, 0, s{sX}")
if a.nopair: e(f"s_mov_b32 s{sX}, 0")
e(f"s_cmp_ge_u32 s{sRK}, 16")
e(f"s_cselect_b32 s{sLO}, s{sX}, 0")
e(f"s_cselect_b32 s{sTB}, 0, s{sX}")
e(f"s_cmp_eq_u32 s{sCI}, 0")
e("s_cbranch_scc1 L_pl_norow")
e(f"s_lshl_b32 s{sT0}, s{sPB}, 9")
e(f"v_lshl_add_u32 v{vT1}, v{vLANE}, 3, s{sT0}")
e(f"global_load_dwordx2 v[{vRW}:{vRW+1}], v{vT1}, s[{sBT}:{sBT+1}]")
lab("L_pl_norow")
e(f"s_sub_u32 s{sTA}, s{sNTL}, s{sLO}")
e(f"s_add_u32 s{sT}, s{sTA}, s{sTB}")
e(f"s_mul_i32 s{sF}, s{sT}, {a.fnum}")
e(f"s_lshr_b32 s{sF}, s{sF}, 6")
e(f"s_min_u32 s{sWB}, s{sTA}, {a.UB}")
e(f"s_sub_i32 s{sF}, s{sF}, s{sWB}")
e(f"s_max_i32 s{sF}, s{sF}, s{sTB}")
e(f"s_max_i32 s{sF}, s{sF}, 1")
e(f"v_cvt_f32_u32 v{vT2}, s{sF}")
e(f"v_subrev_u32 v{vT3}, s{sWB}, v{vLANE}")
e(f"v_rcp_f32 v{vT2}, v{vT2}")
e(f"v_mul_i32_i24 v{vT4}, s{sTB}, v{vT3}")
e(f"v_add_u32 v{vT5}, s{sTB}, v{vT4}")
e(f"v_cvt_f32_i32 v{vT4}, v{vT4}")
e(f"v_cvt_f32_i32 v{vT5}, v{vT5}")
e(f"v_add_f32 v{vT4}, 0.5, v{vT4}")
e(f"v_add_f32 v{vT5}, 0.5, v{vT5}")
e(f"v_mul_f32 v{vT4}, v{vT4}, v{vT2}")
e(f"v_mul_f32 v{vT5}, v{vT5}, v{vT2}")
e(f"v_floor_f32 v{vT4}, v{vT4}")
e(f"v_floor_f32 v{vT5}, v{vT5}")
e(f"v_cmp_gt_u32 vcc, s{sF}, v{vT3}")
e(f"v_cmp_gt_f32 s[{sMBK}:{sMBK+1}], v{vT5}, v{vT4}")
e(f"s_sub_u32 s{sT0}, s{sT}, s{sNU}")
e(f"v_subrev_u32 v{vT3}, s{sNU}, v{vLANE}")
e(f"v_cmp_gt_u32 s[{sMA}:{sMA+1}], s{sT0}, v{vT3}")
e(f"s_and_b64 s[{sMBK}:{sMBK+1}], s[{sMBK}:{sMBK+1}], vcc")
e(f"s_andn2_b64 s[{sMA}:{sMA+1}], s[{sMA}:{sMA+1}], s[{sMBK}:{sMBK+1}]")
c(f"own tiles to sort: logical [NU+given, ntile); donated: the partner's logical [{NUM}, {NUM}+TB)")
mfirst = a.mfirst and not a.nosort
if mfirst:
    e(f"s_ff1_i32_b64 s{sT2}, s[{sMA}:{sMA+1}]")
else:
    e(f"s_flbit_i32_b64 s{sT2}, s[{sMA}:{sMA+1}]")
    e(f"s_sub_u32 s{sT2}, 63, s{sT2}")
e(f"s_lshl_b32 s{sT2}, s{sT2}, 8")
e(f"s_or_b32 s{sWB}, s{sT2}, 1")
e(f"s_min_u32 s{sMRG}, s{sLO}, 1")
SM = [int(x) for x in a.smart.split(",")] if a.smart else None
sV0M, sV1M, sCM, sD2, sCN = 72, 74, 76, 78, 79
if SM:
    e(f"s_lshl_b32 s{sD2}, s{sLO}, 1")
    e(f"s_sub_u32 s{sCN}, s{sNTL}, {NUM+1}")
    e(f"s_mov_b32 s{sLO}, 0")
e(f"s_add_u32 s{sLO}, s{sLO}, s{sNU}")
e(f"s_sub_u32 s{sHI}, s{sNTL}, s{sLO}")
e(f"s_sub_u32 s{sT3}, s{sNTL}, 1")
e(f"s_mov_b32 s{sLBASE}, {LA}")
e(f"s_cmp_eq_u32 s{sCI}, 0")
e("s_cbranch_scc1 L_pl_a")
e(f"s_mov_b32 s{sLO}, {NUM}")
e(f"s_mov_b32 s{sHI}, s{sTB}")
e(f"s_mov_b32 s{sT3}, -1")
if SM:
    e(f"s_lshl_b32 s{sD2}, s{sTB}, 1")
    e(f"s_add_u32 s{sCN}, s{sNP}, 1")
    e(f"s_lshr_b32 s{sCN}, s{sCN}, 1")
    e(f"s_sub_u32 s{sCN}, s{sCN}, {NUM+1}")
e(f"s_mov_b32 s{sLBASE}, {LB}")
e(f"s_mov_b64 s[{sMA}:{sMA+1}], s[{sMBK}:{sMBK+1}]")
e("s_branch L_pl_sort")
lab("L_pl_a")
e(f"s_lshl_b32 s{sT0}, s{sT}, 8")
e(f"s_or_b32 s{sT0}, s{sT0}, s{sMRG}")
e(f"v_mov_b32 v{vT2}, s{sMA}")
e(f"v_mov_b32 v{vT3}, s{sMA+1}")
e(f"v_mov_b32 v{vT4}, s{sT0}")
e(f"v_mov_b32 v{vT5}, s{sWB}")
e(f"v_mov_b32 v{vT1}, {REC0}")
e(f"ds_write_b128 v{vT1}, v[{vT2}:{vT5}]")
lab("L_pl_sort")
e(f"v_subrev_u32 v{vT0}, s{sLO}, v{vLANE}")
e(f"v_cmp_gt_u32 vcc, s{sHI}, v{vT0}")
e(f"v_mov_b32 v{vT5}, 1")
e("s_waitcnt vmcnt(0)")
if SM:
    c("blocks to hand over: the first 2x candidates lying in the part of memory swept while the helper works on them")
    e(f"s_mov_b64 s[{sV0M}:{sV0M+1}], 0")
    e(f"s_mov_b64 s[{sV1M}:{sV1M+1}], 0")
    e(f"s_cmp_eq_u32 s{sD2}, 0")
    e("s_cbranch_scc1 L_pl_nod")
    e(f"s_movk_i32 s{sT0}, {SM[1]-SM[0]}")
    e(f"v_subrev_u32 v{vT2}, {SM[0]}, v{vRW}")
    e(f"v_subrev_u32 v{vT3}, {SM[0]}, v{vRW+1}")
    e(f"s_bfm_b64 s[{sCM}:{sCM+1}], s{sCN}, {NUM}")
    e(f"v_cmp_gt_u32 s[{sV0M}:{sV0M+1}], s{sT0}, v{vT2}")
    e(f"v_cmp_gt_u32 s[{sV1M}:{sV1M+1}], s{sT0}, v{vT3}")
    e(f"s_and_b64 s[{sV0M}:{sV0M+1}], s[{sV0M}:{sV0M+1}], s[{sCM}:{sCM+1}]")
    e(f"s_and_b64 s[{sV1M}:{sV1M+1}], s[{sV1M}:{sV1M+1}], s[{sCM}:{sCM+1}]")
    e(f"s_bcnt1_i32_b64 s{sT0}, s[{sV0M}:{sV0M+1}]")
    e(f"s_bcnt1_i32_b64 s{sT1}, s[{sV1M}:{sV1M+1}]")
    e(f"s_add_u32 s{sT1}, s{sT1}, s{sT0}")
    e(f"s_cmp_lt_u32 s{sT1}, s{sD2}")
    e(f"s_cselect_b64 s[{sV0M}:{sV0M+1}], s[{sCM}:{sCM+1}], s[{sV0M}:{sV0M+1}]")
    e(f"s_cselect_b64 s[{sV1M}:{sV1M+1}], s[{sCM}:{sCM+1}], s[{sV1M}:{sV1M+1}]")
    e(f"s_cselect_b32 s{sT0}, s{sCN}, s{sT0}")
    e(f"v_mbcnt_lo_u32_b32 v{vT2}, s{sV0M}, 0")
    e(f"v_mbcnt_lo_u32_b32 v{vT3}, s{sV1M}, 0")
    e(f"v_mbcnt_hi_u32_b32 v{vT2}, s{sV0M+1}, v{vT2}")
    e(f"v_mbcnt_hi_u32_b32 v{vT3}, s{sV1M+1}, v{vT3}")
    e(f"s_sub_u32 s{sT0}, s{sD2}, s{sT0}")
    e(f"v_cmp_gt_i32 s[{sCM}:{sCM+1}], s{sD2}, v{vT2}")
    e(f"s_and_b64 s[{sV0M}:{sV0M+1}], s[{sV0M}:{sV0M+1}], s[{sCM}:{sCM+1}]")
    e(f"v_cmp_gt_i32 s[{sCM}:{sCM+1}], s{sT0}, v{vT3}")
    e(f"s_and_b64 s[{sV1M}:{sV1M+1}], s[{sV1M}:{sV1M+1}], s[{sCM}:{sCM+1}]")
    lab("L_pl_nod")
    e(f"s_cmp_lg_u32 s{sCI}, 0")
    e("s_cbranch_scc1 L_pl_val")
    e(f"s_andn2_b64 s[{sV0M}:{sV0M+1}], vcc, s[{sV0M}:{sV0M+1}]")
    e(f"s_andn2_b64 s[{sV1M}:{sV1M+1}], vcc, s[{sV1M}:{sV1M+1}]")
    lab("L_pl_val")
X0 = f"s[{sV0M}:{sV0M+1}]" if SM else "vcc"
X1 = f"s[{sV1M}:{sV1M+1}]"
if a.nosort:
    e(f"v_lshlrev_b32 v{vT2}, 1, v{vT0}")
    e(f"v_add_u32 v{vT3}, 1, v{vT2}")
else:
    c("counting sort of the block ids into 64 buckets of ascending physical address")
    e(f"v_lshrrev_b32 v{vT0}, 6, v{vRW}")
    e(f"v_lshrrev_b32 v{vT1}, 6, v{vRW+1}")
    e(f"v_cmp_eq_u32 s[{sRK+2}:{sRK+3}], s{sT3}, v{vLANE}")
    if mfirst:
        e(f"v_med3_u32 v{vT0}, v{vT0}, 1, 63")
        e(f"v_med3_u32 v{vT1}, v{vT1}, 1, 63")
    else:
        e(f"v_min_u32 v{vT0}, 62, v{vT0}")
        e(f"v_min_u32 v{vT1}, 62, v{vT1}")
    fb = 0 if mfirst else 63
    e(f"v_cndmask_b32 v{vT0}, v{vT0}, {fb}, s[{sRK+2}:{sRK+3}]")
    e(f"v_cndmask_b32 v{vT1}, v{vT1}, {fb}, s[{sRK+2}:{sRK+3}]")
    e(f"v_lshlrev_b32 v{vT0}, 2, v{vT0}")
    e(f"v_lshlrev_b32 v{vT1}, 2, v{vT1}")
    e(f"v_add_u32 v{vKF}, s{sSB}, v{vT0}")
    e(f"v_add_u32 v{vKF+1}, s{sSB}, v{vT1}")
    e(f"s_mov_b64 exec, {X0}")
    e(f"ds_add_rtn_u32 v{vT2}, v{vKF}, v{vT5}")
    if SM: e(f"s_mov_b64 exec, {X1}")
    e(f"ds_add_rtn_u32 v{vT3}, v{vKF+1}, v{vT5}")
    e("s_mov_b64 exec, -1")
    e(f"ds_read_b32 v{vT4}, v{vPA}")
    e("s_waitcnt lgkmcnt(0)")
    e(f"v_mov_b32 v{vKF+2}, v{vT4}")
    for sh in (1, 2, 4, 8):
        e("s_nop 1")
        e(f"v_add_u32_dpp v{vT4}, v{vT4}, v{vT4} row_shr:{sh} row_mask:0xf bank_mask:0xf bound_ctrl:0")
    e("s_nop 1")
    e(f"v_add_u32_dpp v{vT4}, v{vT4}, v{vT4} row_bcast:15 row_mask:0xa bank_mask:0xf")
    e("s_nop 1")
    e(f"v_add_u32_dpp v{vT4}, v{vT4}, v{vT4} row_bcast:31 row_mask:0xc bank_mask:0xf")
    e(f"v_sub_u32 v{vT4}, v{vT4}, v{vKF+2}")
    e(f"ds_bpermute_b32 v{vT0}, v{vT0}, v{vT4}")
    e(f"ds_bpermute_b32 v{vT1}, v{vT1}, v{vT4}")
    e("s_waitcnt lgkmcnt(0)")
    e(f"v_add_u32 v{vT2}, v{vT2}, v{vT0}")
    e(f"v_add_u32 v{vT3}, v{vT3}, v{vT1}")
e(f"v_lshlrev_b32 v{vRW}, 15, v{vRW}")
e(f"v_lshlrev_b32 v{vRW+1}, 15, v{vRW+1}")
e(f"v_lshl_add_u32 v{vT2}, v{vT2}, 2, s{sLBASE}")
e(f"v_lshl_add_u32 v{vT3}, v{vT3}, 2, s{sLBASE}")
e(f"s_mov_b64 exec, {X0}")
e(f"ds_write_b32 v{vT2}, v{vRW}")
if SM: e(f"s_mov_b64 exec, {X1}")
e(f"ds_write_b32 v{vT3}, v{vRW+1}")
e("s_mov_b64 exec, -1")
c("place the sorted tiles at their stream positions; flags: 1 valid, 2 masked, 4 last of batch, 8 last of stream")
e(f"v_mbcnt_lo_u32_b32 v{vT0}, s{sMA}, 0")
e(f"v_mbcnt_hi_u32_b32 v{vT0}, s{sMA+1}, v{vT0}")
e(f"v_lshl_add_u32 v{vT0}, v{vT0}, 3, s{sLBASE}")
e(f"ds_read_b64 v[{vT2}:{vT3}], v{vT0}")
e(f"s_lshr_b32 s{sT0}, s{sWB}, 8")
e(f"s_sub_u32 s{sT1}, s{sT}, 1")
e(f"v_cmp_eq_u32 vcc, s{sT0}, v{vLANE}")
e(f"v_cmp_eq_u32 s[{sRK+2}:{sRK+3}], s{sT1}, v{vLANE}")
e(f"v_cmp_eq_u32 s[{sT2}:{sT2+1}], {G-1}, v{vLANE}")
e(f"v_cndmask_b32 v{vT4}, 1, 3, vcc")
e(f"v_cndmask_b32 v{vT5}, 0, 12, s[{sRK+2}:{sRK+3}]")
e(f"v_cndmask_b32 v{vT1}, 0, 4, s[{sT2}:{sT2+1}]")
e(f"v_or3_b32 v{vT4}, v{vT4}, v{vT5}, v{vT1}")
e(f"v_lshlrev_b32 v{vT0}, 3, v{vLANE}")
e(f"v_add_u32 v{vT0}, {SL}, v{vT0}")
e("s_waitcnt lgkmcnt(0)")
e(f"v_or_b32 v{vT2}, v{vT2}, v{vT4}")
e(f"s_mov_b64 exec, s[{sMA}:{sMA+1}]")
e(f"ds_write_b64 v{vT0}, v[{vT2}:{vT3}]")
e("s_mov_b64 exec, -1")
lab("L_pl_done")
e(f"s_cmp_lg_u32 s{sMRG}, 0")
e("s_cbranch_scc1 L_fetch")
e(f"s_cmp_eq_u32 s{sTB}, 0")
e("s_cbranch_scc1 L_fin")
c("become the consumer of the donated tiles")
load_q(sPB)
e(f"s_mov_b64 s[{sMALL}:{sMALL+1}], s[{sMBK}:{sMBK+1}]")
e(f"s_mov_b32 s{sM}, s{sMBK}")
e(f"s_and_b32 s{sM+1}, s{sMBK+1}, {RHI:#x}")
e(f"s_mov_b32 s{sTTC}, s{sT}")
e(f"s_min_u32 s{sTB1}, s{sT}, {G}")
e(f"s_mov_b32 s{sROLE}, 1")
e(f"s_mov_b32 s{sPLN}, 1")
e(f"s_lshr_b32 s{sT3}, s{sZQ}, s{sPB}")
e(f"s_and_b32 s{sT3}, s{sT3}, 1")
e("s_branch L_csetup")

lab("L_fetch")
e(f"s_cmp_lg_u32 s{sCI}, 0")
e("s_cbranch_scc1 L_fin")
rows_off(sB)
if a.otouch >= 0:
    c("make the lines that will carry the partial valid in L2 (a later read of write-only lines would go to memory)")
    e(f"v_lshl_add_u32 v{vT4}, v{vLANE}, 7, s{sQO}")
    e(f"global_load_dword v{vPF}, v{vT4}, s[{sOUT}:{sOUT+1}] {a.ofl.replace('+', ' ')}")
ws_base(sB)
e(f"v_lshl_add_u32 v{vT1}, v{vT0}, 3, s{sT0}")
e(f"v_mov_b32 v{vFW}, s{sT0}")
e(f"s_lshl_b32 s{sT2}, s{sB}, 2")
e(f"v_mov_b32 v{vT2}, s{sT2}")
e(f"v_mov_b32 v{vPA}, {CTRL+16}")
e("s_mov_b64 exec, 1")
e(f"s_mul_i32 s{sNEED}, s{sT}, {a.pollnum}")
e(f"s_lshr_b32 s{sNEED}, s{sNEED}, 5")
e(f"s_lshl_b32 s{sT3}, s{sH}, 1")
e(f"s_mov_b32 s{sMBF}, 0")
c("wait until wave 5 has cleared the flag words and the stream is far enough")
lab("L_f_wait")
e(f"ds_read_b64 v[{vPL}:{vPL+1}], v{vPA}")
e("s_waitcnt lgkmcnt(0)")
e(f"v_readfirstlane_b32 s{sLND}, v{vPL}")
e(f"v_readfirstlane_b32 s{sT0}, v{vPL+1}")
e(f"s_cmp_ge_i32 s{sLND}, s{sNEED}")
e(f"s_cselect_b32 s{sT0}, s{sT0}, 0")
e(f"s_cmp_lg_u32 s{sT0}, 0")
e("s_cbranch_scc1 L_f_poll")
spin_tail("L_f_wait", 8)
lab("L_f_poll")
if "nopoll" in DBG: e("s_branch L_f_got")
e(f"global_load_dwordx2 v[{vPL}:{vPL+1}], v{vFW}, s[{sWS}:{sWS+1}] offset:256 sc1")
e(f"s_add_u32 s{sMBF}, s{sMBF}, 1")
e(f"s_and_b32 s{sT0}, s{sMBF}, 3")
e(f"s_mov_b32 s{sT2}, 0")
e("s_cbranch_scc1 L_f_nodbg")
e(f"global_load_dword v{vT3}, v{vT2}, s[{sDBG}:{sDBG+1}] sc1")
e("s_waitcnt vmcnt(0)")
e(f"v_readfirstlane_b32 s{sT2}, v{vT3}")
e(f"s_lshr_b32 s{sT2}, s{sT2}, s{sT3}")
lab("L_f_nodbg")
e("s_waitcnt vmcnt(0)")
e(f"v_lshl_or_b32 v{vPL}, v{vPL+1}, 1, v{vPL}")
e("s_nop 0")
e(f"v_readfirstlane_b32 s{sT0}, v{vPL}")
e(f"s_or_b32 s{sT0}, s{sT0}, s{sT2}")
e(f"s_and_b32 s{sT0}, s{sT0}, 3")
e(f"s_cmp_eq_u32 s{sT0}, 3")
e("s_cbranch_scc1 L_f_got")
spin_tail("L_f_poll", a.psleep)
lab("L_f_got")
e("s_mov_b64 exec, -1")
c("a half that came through memory: acquire at device scope before reading it")
e(f"s_and_b32 s{sT2}, s{sT2}, 3")
e("s_cbranch_scc0 L_f_ld")
e("buffer_inv sc1")
e("s_waitcnt vmcnt(0)")
lab("L_f_ld")
e(f"v_lshl_add_u32 v{vT4}, v{vLANE}, 4, s{sQO}")
e(f"v_add_u32 v{vT5}, 4096, v{vT4}")
FLD = " " + a.fld if a.fld != "none" else ""
for cc in range(2):
    if "nofetch" in DBG:
        e(f"v_mov_b32 v{vM+2*cc}, 0"); e(f"v_mov_b32 v{vM+2*cc+1}, 0")
        continue
    e(f"global_load_dwordx2 v[{vM+2*cc}:{vM+2*cc+1}], v{vT1}, s[{sWS}:{sWS+1}] offset:{128*cc}{FLD}")
    for j in range(4):
        r = vKF + 16 * cc + 4 * j
        e(f"global_load_dwordx4 v[{r}:{r+3}], v{vT4+cc}, s[{sOUT}:{sOUT+1}] offset:{1024*j}{FLD}")
e(f"v_lshlrev_b32 v{vT2}, 4, v{vLANE}")
e(f"v_add_u32 v{vT2}, {MB}, v{vT2}")
e(f"v_lshlrev_b32 v{vT0}, 3, v{vT0}")
e(f"v_add_u32 v{vT0}, {MB}, v{vT0}")
e(f"v_mov_b32 v{vPL}, {CTRL+4}")
e(f"v_mov_b32 v{vT3}, 1")
for cc in range(2):
    e(f"s_waitcnt vmcnt({5-5*cc})")
    for j in range(4):
        r = vKF + 16 * cc + 4 * j
        e(f"ds_write_b128 v{vT2}, v[{r}:{r+3}] offset:{MBS*cc + 1024*j}")
    e(f"ds_write_b64 v{vT0}, v[{vM+2*cc}:{vM+2*cc+1}] offset:{MBS*cc + 4096}")
    e(f"ds_write_b32 v{vPL}, v{vT3} offset:{8*cc}")
e(FIN)

c("wave 5: workgroups that share an L2 post their remaining work; one that lags prefetches deeper")
lab("L_ctl")
e(f"v_mov_b32 v{vT1}, {REC0}")
e(f"v_mov_b32 v{vPA}, {CTRL+32}")
e(f"v_mov_b32 v{vFW}, {DEPW}")
e(f"s_lshl_b32 s{sT0}, s{sB}, 2")
e(f"v_mov_b32 v{vG}, s{sT0}")
e(f"v_mov_b32 v{vFV}, v{vT3}")
lo = sum((XT[i] & 255) << (8 * i) for i in range(4)); hi = sum((XT[4 + i] & 255) << (8 * i) for i in range(4))
e(f"s_getreg_b32 s{sT0}, hwreg(HW_REG_XCC_ID, 0, 3)")
e(f"s_mov_b32 s{sM}, {lo:#x}")
e(f"s_mov_b32 s{sM+1}, {hi:#x}")
e(f"s_lshl_b32 s{sT0}, s{sT0}, 3")
e(f"s_lshr_b64 s[{sM}:{sM+1}], s[{sM}:{sM+1}], s{sT0}")
e(f"s_sext_i32_i8 s{sBO}, s{sM}")
lab("L_g_plan")
e(f"ds_read_b128 v[{vT2}:{vT5}], v{vT1}")
e("s_waitcnt lgkmcnt(0)")
e(f"v_readfirstlane_b32 s{sT0}, v{vT5}")
e(f"v_readfirstlane_b32 s{sT}, v{vT4}")
e(f"s_cmp_lg_u32 s{sT0}, 0")
e("s_cbranch_scc1 L_g_go")
spin_tail("L_g_plan", 8)
lab("L_g_go")
e(f"s_and_b32 s{sMRG}, s{sT}, 1")
e("s_cbranch_scc0 L_g_nores")
c("a partial is expected: clear its flag words before anything is posted")
ws_base(sB)
e(f"v_mov_b32 v{vT0}, s{sT0}")
e(f"v_mov_b32 v{vT2}, 0")
e(f"v_mov_b32 v{vT3}, 0")
e(f"v_mov_b32 v{vT4}, {CTRL+20}")
e(f"v_mov_b32 v{vT5}, 1")
e("s_mov_b64 exec, 1")
e(f"global_store_dwordx2 v{vT0}, v[{vT2}:{vT3}], s[{sWS}:{sWS+1}] offset:256")
e("s_waitcnt vmcnt(0)")
e(f"ds_write_b32 v{vT4}, v{vT5}")
e("s_mov_b64 exec, -1")
lab("L_g_nores")
e(f"s_and_b32 s{sT0}, s{sDBG}, 127")
e("s_cbranch_scc1 L_fin")
c("posted word: remaining units + 1 | head << 16 | die << 20 | flags cleared << 24")
e(f"s_getreg_b32 s{sFB}, hwreg(HW_REG_XCC_ID, 0, 4)")
e(f"s_lshl4_add_u32 s{sFB}, s{sMRG}, s{sFB}")
e(f"s_lshl4_add_u32 s{sFB}, s{sFB}, s{sH}")
e(f"s_lshl_b32 s{sFB}, s{sFB}, 16")
e(f"s_lshr_b32 s{sT}, s{sT}, 8")
e(f"s_lshl1_add_u32 s{sTN}, s{sT}, 1")
e(f"v_lshlrev_b32 v{vT1}, 1, v{vFV}")
e(f"v_add_u32 v{vT1}, {CTRL+68}, v{vT1}")
e(f"v_mov_b32 v{vT2}, s{sFB}")
e("s_mov_b64 exec, 1")
e(f"global_store_dword v{vG}, v{vT2}, s[{sDBG}:{sDBG+1}] offset:128")
e("s_mov_b64 exec, -1")
if "v" in a.tlb: e(f"global_load_dword v{vPF}, v{vTL}, s[{sV}:{sV+1}] nt")
if "prog2" in DBG: e("v_mov_b32 v50, 0")
if a.skew:
    e(f"s_mov_b32 s{sNEED}, 3")
    e(f"s_cmp_lt_u32 s{sT}, 8")
    e("s_cbranch_scc1 L_fin")
    lab("L_g_sw")
    e(f"ds_read_b32 v{vPL}, v{vPA}")
    e("s_waitcnt lgkmcnt(0)")
    e(f"v_readfirstlane_b32 s{sLND}, v{vPL}")
    e(f"s_cmp_ge_i32 s{sLND}, s{sNEED}")
    e("s_cbranch_scc1 L_g_sa")
    spin_tail("L_g_sw", 1)
    lab("L_g_sa")
    e(f"global_load_dword v{vT0}, v{vFV}, s[{sDBG}:{sDBG+1}] sc1")
    e("s_waitcnt vmcnt(0)")
    e(f"v_cmp_gt_i32 vcc, 0, v{vT0}")
    e(f"v_lshrrev_b32 v{vT0}, 16, v{vT0}")
    e(f"v_sub_u32 v{vT0}, s{sMA}, v{vT0}")
    e(f"v_bfe_i32 v{vT0}, v{vT0}, 0, 15")
    e(f"v_cndmask_b32 v{vT0}, 0, v{vT0}, vcc")
    for sh in (1, 2, 4):
        e("s_nop 1")
        op = "v_max_i32_dpp" if "ampmax" in DBG else "v_add_u32_dpp"
        e(f"{op} v{vT0}, v{vT0}, v{vT0} row_shr:{sh} row_mask:0xf bank_mask:0xf bound_ctrl:0")
    e("s_nop 0")
    e(f"v_readlane_b32 s{sT0}, v{vT0}, 7")
    if "ampmax" in DBG or "ampmean" in DBG:
        e(f"s_mul_i32 s{sMBK}, s{sT0}, {20 if 'ampmax' in DBG else 3}")
        e(f"s_max_i32 s{sMBK}, s{sMBK}, 0")
        e(f"s_add_u32 s{sMBK}, s{sMBK}, 3500")
        lab("L_amp")
        e("s_sleep 4")
        e(f"s_memrealtime s[{sLO}:{sLO+1}]")
        e("s_waitcnt lgkmcnt(0)")
        e(f"s_sub_u32 s{sT0}, s{sLO}, s{sMA}")
        e(f"s_cmp_lt_u32 s{sT0}, s{sMBK}")
        e("s_cbranch_scc1 L_amp")
        e("s_endpgm")
    e(f"s_mul_i32 s{sT0}, s{sT0}, {a.skew}")
    e(f"s_ashr_i32 s{sT0}, s{sT0}, 9")
    e(f"s_add_u32 s{sBO}, s{sBO}, s{sT0}")
e(f"s_mov_b32 s{sNEED}, {a.cstart}")
lab("L_g_next")
e(f"s_sub_u32 s{sT0}, s{sTN}, s{sNEED}")
e(f"s_cmp_lt_i32 s{sT0}, {a.cstop}")
e("s_cbranch_scc1 L_fin")
lab("L_g_w")
e(f"ds_read_b32 v{vPL}, v{vPA}")
e("s_waitcnt lgkmcnt(0)")
e(f"v_readfirstlane_b32 s{sLND}, v{vPL}")
e(f"s_cmp_ge_i32 s{sLND}, s{sNEED}")
e("s_cbranch_scc1 L_g_a")
spin_tail("L_g_w", 1)
lab("L_g_a")
if "prog2" in DBG:
    e(f"s_memrealtime s[{sST+2}:{sST+3}]")
    e(f"s_lshr_b32 m0, s{sLND}, 1")
    e("s_waitcnt lgkmcnt(0)")
    e(f"v_writelane_b32 v50, s{sST+2}, m0")
e(f"s_sub_u32 s{sNK}, s{sTN}, s{sLND}")
e(f"s_or_b32 s{sT0}, s{sNK}, s{sFB}")
e(f"v_mov_b32 v{vT2}, s{sT0}")
e("s_mov_b64 exec, 1")
e(f"global_store_dword v{vG}, v{vT2}, s[{sDBG}:{sDBG+1}] offset:128")
e("s_mov_b64 exec, -1")
e(f"global_load_dword v{vT0}, v{vFV}, s[{sDBG}:{sDBG+1}] offset:128 sc1")
e(f"s_add_u32 s{sNEED}, s{sLND}, {a.cstep}")
e(f"s_min_i32 s{sT3}, s{sBO}, 1")
e(f"s_max_i32 s{sT3}, s{sT3}, -1")
e(f"s_sub_u32 s{sBO}, s{sBO}, s{sT3}")
e("s_waitcnt vmcnt(0)")
e(f"ds_write_b32 v{vT1}, v{vT0}")
e(f"v_and_b32 v{vT0}, 0xffff, v{vT0}")
e(f"v_cmp_ne_u32 vcc, 0, v{vT0}")
for sh in (1, 2, 4, 8):
    e("s_nop 1")
    e(f"v_add_u32_dpp v{vT0}, v{vT0}, v{vT0} row_shr:{sh} row_mask:0xf bank_mask:0xf bound_ctrl:0")
e("s_nop 1")
e(f"v_add_u32_dpp v{vT0}, v{vT0}, v{vT0} row_bcast:15 row_mask:0xa bank_mask:0xf")
e(f"s_bcnt1_i32_b32 s{sT1}, vcc_lo")
e(f"v_readlane_b32 s{sT0}, v{vT0}, 31")
e(f"s_mul_i32 s{sT2}, s{sNK}, s{sT1}")
e(f"s_sub_u32 s{sT2}, s{sT2}, s{sT0}")
e(f"s_lshl_b32 s{sT2}, s{sT2}, 2")
for th, inc, cmp in ((CTH[0], -1, "lt"), (CTH[1], 1, "gt"), (CTH[2], 1, "gt")):
    e(f"s_mul_i32 s{sT0}, s{sT1}, {th - a.cbias}")
    e(f"s_cmp_{cmp}_i32 s{sT2}, s{sT0}")
    e(f"s_cselect_b32 s{sT0}, {inc}, 0")
    e(f"s_add_u32 s{sT3}, s{sT3}, s{sT0}")
e(f"s_max_i32 s{sT3}, s{sT3}, -1")
e(f"s_min_i32 s{sT3}, s{sT3}, 2")
e(f"v_mov_b32 v{vT2}, s{sT3}")
e(f"ds_write_b32 v{vFW}, v{vT2}")
e("s_branch L_g_next")

lab("L_fin")
if a.amp:
    if a.amp == "end":
        e(f"s_sub_u32 s{sT0}, s{sW}, 1")
        e(f"s_cmp_gt_u32 s{sT0}, 1")
    else:
        e(f"s_cmp_lg_u32 s{sW}, 0")
    e("s_cbranch_scc1 L_end")
    if a.ampwg >= 0:
        e(f"s_cmp_lg_u32 s2, {a.ampwg}")
        e("s_cbranch_scc1 L_end")
    e("s_waitcnt vmcnt(0) lgkmcnt(0)")
    if a.amp[:2] != "t0":
        e(f"s_memrealtime s[{sST+2}:{sST+3}]")
        e("s_waitcnt lgkmcnt(0)")
    e(f"s_sub_u32 s{sT1}, s{sST+2}, s{sST}")
    if a.amp[:2] != "t0": e(f"s_sub_u32 s{sT1}, s{sT1}, 2700")
    e(f"s_max_i32 s{sT1}, s{sT1}, 0")
    e(f"s_min_i32 s{sT1}, s{sT1}, 2000")
    e(f"s_mul_i32 s{sT1}, s{sT1}, 10")
    e(f"s_add_u32 s{sT1}, s{sT1}, 3500")
    lab("L_ampw")
    e("s_sleep 2")
    e(f"s_memrealtime s[{sST+2}:{sST+3}]")
    e("s_waitcnt lgkmcnt(0)")
    e(f"s_sub_u32 s{sT0}, s{sST+2}, s{sST}")
    e(f"s_cmp_lt_u32 s{sT0}, s{sT1}")
    e("s_cbranch_scc1 L_ampw")
if "prog2" in DBG or "prog3" in DBG:
    e(f"s_cmp_lg_u32 s{sW}, {5 if 'prog2' in DBG else 0}")
    e("s_cbranch_scc1 L_np2")
    e(f"s_lshl_b32 s{sT0}, s2, 8")
    e(f"s_add_u32 s{sT0}, s{sT0}, 0x400000")
    e(f"v_lshl_add_u32 v51, v{vLANE}, 2, s{sT0}")
    e(f"global_store_dword v51, v50, s[{sWS}:{sWS+1}]")
    lab("L_np2")
if a.stamps:
    e(f"s_cmp_gt_u32 s{sW}, 2")
    e("s_cbranch_scc1 L_end")
    e("s_mov_b64 exec, -1")
    e("s_waitcnt vmcnt(0) lgkmcnt(0)")
    stamp(3)
    e(f"s_getreg_b32 s{sT0}, hwreg(HW_REG_XCC_ID)")
    e("s_waitcnt lgkmcnt(0)")
    for i in range(8):
        e(f"v_mov_b32 v{64+i}, s{sST+i}")
    e(f"v_mov_b32 v72, s{sT0}")
    e(f"s_sub_u32 s{sT1}, {SPIN}, s{sSPIN}")
    e(f"v_mov_b32 v73, s{sT1}")
    e(f"v_mov_b32 v74, s{sT}")
    e(f"v_mov_b32 v75, 0")
    e(f"s_mul_i32 s{sT0}, s2, {NW}")
    e(f"s_add_u32 s{sT0}, s{sT0}, s{sW}")
    e(f"s_lshl_b32 s{sT0}, s{sT0}, 6")
    e(f"v_mov_b32 v80, s{sT0}")
    e("s_mov_b64 exec, 1")
    e(f"global_store_dwordx4 v80, v[64:67], s[{sWS}:{sWS+1}]")
    e(f"global_store_dwordx4 v80, v[68:71], s[{sWS}:{sWS+1}] offset:16")
    e(f"global_store_dwordx4 v80, v[72:75], s[{sWS}:{sWS+1}] offset:32")
lab("L_end")
e("s_endpgm")
if a.wake:
    out.append(".p2align 8")
    lab("L_pad")
    out.append(f".fill {64 * a.wake}, 4, 0xbf810000")
out.append('.section .rodata,"a"')
out.append(".p2align 6")
out.append(f".amdhsa_kernel {NAME}_kernel")
out.append(f"  .amdhsa_next_free_vgpr {NV}")
out.append("  .amdhsa_next_free_sgpr 102")
out.append(f"  .amdhsa_accum_offset {NV}")
out.append("  .amdhsa_group_segment_fixed_size 0")
out.append("  .amdhsa_kernarg_size 64")
out.append("  .amdhsa_user_sgpr_count 2")
out.append("  .amdhsa_user_sgpr_kernarg_segment_ptr 1")
out.append("  .amdhsa_system_sgpr_workgroup_id_x 1")
out.append("  .amdhsa_float_denorm_mode_32 3")
out.append(".end_amdhsa_kernel")
open(a.o, "w").write("\n".join(out) + "\n")
```

```python
import sys, argparse
NAME = "standalone__paged_block_table_kv_pagedattention__sampling"
HEADER = open("cdna_kernels/" + NAME + ".s.ref").read().split("; Override")[0]

ap = argparse.ArgumentParser()
ap.add_argument("-o", default="/dev/stdout")
ap.add_argument("--map", default="plain")
ap.add_argument("--hrot", type=int, default=0)
ap.add_argument("--D", type=int, default=21)
ap.add_argument("--D0", type=int, default=26)
ap.add_argument("--NS", type=int, default=6)
ap.add_argument("--G", type=int, default=50)
ap.add_argument("--fnum", type=int, default=40)
ap.add_argument("--pollnum", type=int, default=55)
ap.add_argument("--psleep", type=int, default=6)
ap.add_argument("--UB", type=int, default=8)
ap.add_argument("--mfirst", type=int, default=1)
ap.add_argument("--cth", default="-2,2,5")
ap.add_argument("--cbias", type=int, default=7)
ap.add_argument("--cstart", type=int, default=8)
ap.add_argument("--cstop", type=int, default=4)
ap.add_argument("--cstep", type=int, default=3)
ap.add_argument("--xt", default="5,-4,5,-9,5,2,5,-5")
ap.add_argument("--NUM", type=int, default=4)
ap.add_argument("--last", type=int, default=1)
ap.add_argument("--hold", default="")
ap.add_argument("--ost", default="")
ap.add_argument("--wb", type=int, default=0)
ap.add_argument("--skew", type=int, default=0)
ap.add_argument("--dv", default="-1,1,3")
ap.add_argument("--fpf", type=int, default=6)
ap.add_argument("--fld", default="sc1")
ap.add_argument("--opf", type=int, default=0)
ap.add_argument("--otouch", type=int, default=0)
ap.add_argument("--ospread", type=int, default=1)
ap.add_argument("--ofl", default="")
ap.add_argument("--DM", type=int, default=0)
ap.add_argument("--NE", type=int, default=3)
ap.add_argument("--amp", default="")
ap.add_argument("--ampwg", type=int, default=-1)
ap.add_argument("--tlb", default="")
ap.add_argument("--tlbs", type=int, default=21)
ap.add_argument("--wake", type=int, default=0)
ap.add_argument("--spec", type=int, default=1)
ap.add_argument("--lat", type=int, default=1)
ap.add_argument("--smart", default="")
ap.add_argument("--bar", type=int, default=1)
ap.add_argument("--nosort", action="store_true")
ap.add_argument("--nopair", action="store_true")
ap.add_argument("--limf", default="0x43800000")
ap.add_argument("--dbg", default="")
ap.add_argument("--stamps", action="store_true")
a = ap.parse_args()
NT = " nt"
OST = "" if not a.ost else " " + a.ost.replace("+", " ")
DBG = set(a.dbg.split(","))
D, D0, NS, G = a.D, a.D0, a.NS, a.G
assert 24 <= D0 <= 32 and (D - 2) // 8 == (D + 1) // 8 == 2 and 32 <= G < 64
CTH = [int(x) for x in a.cth.split(",")]
XT = [int(x) for x in a.xt.split(",")]
DV = [int(x) for x in a.dv.split(",")]
assert 17 <= D + DV[0] and D + DV[2] <= 24
DIVM = {5: (205, 10), 6: (43, 8), 7: (147, 10), 8: (1, 3), 10: (205, 11), 12: (171, 11)}[NS]
assert all((u * DIVM[0]) >> DIVM[1] == u // NS for u in range(129))
NW = 6
KBYTES = 4100 * 32768
SPIN = 1 << 22
NUM = a.NUM

RING = NS * 8192
PST = RING
MB = PST + G * 2048
MBS = 4224
CTRL = MB + 2 * MBS
FREE = CTRL + 512
REC0 = FREE + 128
DEPW = REC0 + 16
SL = FREE + 256
CNT = SL + 768
LA = CNT + 512
LB = LA + 512
KEYS = LB + 512
LDS = KEYS + 256
assert LDS <= 163840, LDS
WS0 = 0x100000 if a.stamps else 0
WSA = WS0 + 0x40000

out = []
def e(s): out.append("    " + s)
def lab(s): out.append(s + ":")
def c(s): out.append("    ; " + s)

sQ, sK, sV, sBT, sCL, sOUT, sDBG, sWS = 4, 6, 8, 10, 12, 14, 16, 18
sRD = 20
sB, sH, sW, sCLV = 28, 29, 30, 31
sT0, sT1, sT2, sT3 = 32, 33, 34, 35
sPC = 36
sSPIN = 38
sNB, sNTL, sNU, sT = 39, 40, 41, 42
sST = 64
sE = 72
sB0, sB1, sFL, sPM, sSLOT, sU, sTA0 = 46, 47, 48, 49, 52, 56, 57
sM = 46
sCI, sLND, sMBF, sNEED, sMRG, sMT, sROLE, sQO, sPLN, sSB = 48, 49, 50, 51, 52, 56, 57, 58, 59, 60
sV0 = 61
sCST = 62
sTN, sNK, sFWN, sFB, sPRE, sREDO, sLIMF, sPO = 96, 97, 98, 99, 100, 101, 53, 43
sMALL, sRS = 24, 26
sOFF, sTB0, sTB1, sTTC, sFIRST = 20, 21, 22, 23, 44
sZQ = 54
sRK, sPB, sNP, sX, sTA, sTB, sF, sWB = 80, 81, 82, 83, 84, 85, 86, 87
sMA, sMBK = 88, 90
sLO, sHI, sLBASE = 92, 93, 94
sBO = 56
vLANE = 1
vT0, vT1, vT2, vT3, vT4, vT5 = 2, 3, 4, 5, 6, 7
vL = 8
vKOFF, vVOFF = 10, 14
vCA, vCNT, vFA, vR = 18, 19, 20, 21
vF = 22
vCUR = 24
vTR = 28
vTRK, vTRV = 36, 52
vEN = 44
vDP, vDA, vOOB, vSA = 46, 47, 48, 49
vKA0, vVA0, vXA = 8, 12, 16
vPA0, vPW, vINV, vOA = 20, 21, 22, 23
vM, vLS, vMN, vAL, vPA, vFW = 24, 25, 26, 27, 28, 29
vPL = 30
vQ = 32
vS = 48
vP = 56
vG, vPF, vFV, vN = 60, 61, 62, 63
vKF = 64
vVF = 96
vO = 128
vE = 160
vPN = 160
NV = 168

def stamp(i):
    if a.amp and (i == 0 or (i == 1 and a.amp == "t0")): e(f"s_memrealtime s[{sST+2*i}:{sST+2*i+1}]")
    if a.hold and i == 0: e(f"{'s_memrealtime' if a.hold[:2] == 'rt' else 's_memtime'} s[{sST}:{sST+1}]")
    if a.stamps: e(f"s_memrealtime s[{sST+2*i}:{sST+2*i+1}]")
def clamp_cl(zq=None):
    c("context length: <=0 -> every key masked => uniform weights over 2048 keys (zero Q); >2048 -> 2048")
    e(f"s_cmp_lt_i32 s{sCLV}, 1")
    if zq is not None: e(f"s_cselect_b32 s{zq}, 1, 0")
    e(f"s_cselect_b32 s{sCLV}, 2048, s{sCLV}")
    e(f"s_min_i32 s{sCLV}, s{sCLV}, 2048")
def derive_nb():
    e(f"s_add_u32 s{sNTL}, s{sNB}, 1")
    e(f"s_lshr_b32 s{sNTL}, s{sNTL}, 1")
    e(f"s_sub_u32 s{sNU}, s{sNTL}, 1")
    e(f"s_min_u32 s{sNU}, s{sNU}, {NUM}")
def derive_cl():
    e(f"s_add_u32 s{sNB}, s{sCLV}, 15")
    e(f"s_lshr_b32 s{sNB}, s{sNB}, 4")
    derive_nb()
def spin_tail(label, sleep=1):
    e(f"s_sleep {sleep}")
    e(f"s_sub_u32 s{sSPIN}, s{sSPIN}, 1")
    e(f"s_cbranch_scc0 {label}")
    e("s_endpgm")
FIN = "s_branch L_fin" if (a.stamps or a.amp) else "s_endpgm"

out.append(HEADER.rstrip())
out.append(f"; @launch grid=(256,1,1) block=({64*NW},1,1) lds={LDS}")
for line in """
Paged GQA attention, one workgroup per (batch b, kv head h); HBM-bound, so everything serves the K/V stream.
  wave 0     loader: LDS-DMA of 8 KB units (32 keys of K or V) into a ring, a counted number of requests in flight.
             Pass 1 streams every K tile, pass 2 every V tile, both in ascending physical-block order.
  waves 1,2  own task, 16 query rows each: pass 1 scores + softmax weights (kept in LDS), pass 2 weighted values.
  waves 3,4  rank the batches by length, pair long with short, sort the block ids. In a short workgroup they then
             process tiles donated by the long partner and hand the partial result over; in a long one wave 3 fetches it.
  wave 5     compares progress with the workgroups sharing its L2 and nudges the loader's request depth.
Hand-offs work under any placement: inside L2 only after a run-time check that both sides share a die.
""".strip("\n").split("\n"): out.append("; " + line)
out.append('.amdgcn_target "amdgcn-amd-amdhsa--gfx950"')
out.append(".text")
out.append(f".globl {NAME}_kernel")
out.append(".p2align 8")
out.append(f".type {NAME}_kernel,@function")
lab(f"{NAME}_kernel")
e("s_load_dwordx16 s[4:19], s[0:1], 0")
e(f"s_lshr_b32 s{sB}, s2, 3")
e(f"s_cmp_ge_u32 s{sB}, 32")
e("s_cbranch_scc1 L_end")
stamp(0)
e(f"v_lshrrev_b32 v{vT0}, 6, v0")
e(f"v_and_b32 v{vLANE}, 63, v0")
e(f"v_readfirstlane_b32 s{sW}, v{vT0}")
c("wave 1 pulls this kernel's code into L2")
e(f"s_getpc_b64 s[{sPC}:{sPC+1}]")
lab("L_pc")
e(f"v_lshlrev_b32 v{vT2}, 7, v{vLANE}")
e(f"v_min_u32 v{vT2}, L_end - L_pc - 256, v{vT2}")
e(f"s_cmp_lg_u32 s{sW}, 1")
e("s_cbranch_scc1 L_nopf")
e(f"global_load_dword v{vPF}, v{vT2}, s[{sPC}:{sPC+1}] offset:256")
if a.wake:
    e(f"s_mul_i32 s{sT3}, s2, {a.wake}")
    e(f"v_and_b32 v{vT2}, {a.wake - 256}, v{vT2}")
    e(f"v_add_u32 v{vT2}, s{sT3}, v{vT2}")
    e(f"v_add_u32 v{vT2}, L_pad - L_pc, v{vT2}")
    e(f"global_load_dword v{vFV}, v{vT2}, s[{sPC}:{sPC+1}] nt")
lab("L_nopf")
c("clear the control words and the sort counters")
e(f"v_mov_b64 v[{vT2}:{vT3}], 0")
e(f"v_lshlrev_b32 v{vT4}, 3, v0")
e(f"v_add_u32 v{vT4}, {CTRL}, v{vT4}")
e(f"ds_write_b64 v{vT4}, v[{vT2}:{vT3}]")
if a.map == "rot":
    e(f"s_add_u32 s{sH}, s2, s{sB}")
    e(f"s_and_b32 s{sH}, s{sH}, 7")
elif a.hrot:
    e(f"s_add_u32 s{sH}, s2, {a.hrot}")
    e(f"s_and_b32 s{sH}, s{sH}, 7")
else:
    e(f"s_and_b32 s{sH}, s2, 7")
e(f"s_lshl3_add_u32 s{sT2}, s{sB}, s{sH}")
e(f"s_lshl_b32 s{sT2}, s{sT2}, 13")
e(f"v_lshl_add_u32 v{vT5}, v{vLANE}, 7, s{sT2}")
e(f"s_lshl_b32 s{sT0}, s{sB}, 9")
e(f"v_lshl_add_u32 v{vT2}, v{vLANE}, 3, s{sT0}")
if not a.spec: e(f"s_lshl_b32 s{sT1}, s{sB}, 2")
e(f"v_and_b32 v{vT0}, 31, v{vLANE}")
e(f"v_lshlrev_b32 v{vT3}, 2, v{vT0}")
vTL = 22
if a.tlb:
    e(f"v_min_u32 v{vTL}, {(2 << (21 - a.tlbs)) - 1}, v{vLANE}")
    e(f"v_lshl_add_u32 v{vTL}, v{vTL}, 5, s{sB}")
    e(f"s_mul_i32 s{sT3}, s2, {8064 >> (21 - a.tlbs) & ~127}")
    e(f"v_lshl_add_u32 v{vTL}, v{vTL}, {a.tlbs}, s{sT3}")
e(f"s_cmp_lg_u32 s{sW}, 2")
e("s_waitcnt lgkmcnt(0)")
e(f"s_load_dwordx8 s[{sE}:{sE+7}], s[{sBT}:{sBT+1}], s{sT0}")
if not a.spec: e(f"s_load_dword s{sCLV}, s[{sCL}:{sCL+1}], s{sT1}")
c("wave 2 touches the 64 lines of this workgroup's queries while memory is still idle")
e("s_cbranch_scc1 L_noq")
if "k" in a.tlb: e(f"global_load_dword v{vFV}, v{vTL}, s[{sK}:{sK+1}] nt")
e(f"global_load_dword v{vPF}, v{vT5}, s[{sQ}:{sQ+1}]")
lab("L_noq")
if a.opf:
    e(f"s_cmp_lg_u32 s{sW}, 4")
    e("s_cbranch_scc1 L_noo")
    e(f"global_load_dword v{vPF}, v{vT5}, s[{sOUT}:{sOUT+1}]")
    lab("L_noo")
e(f"global_load_dwordx2 v[{vL}:{vL+1}], v{vT2}, s[{sBT}:{sBT+1}]")
e(f"global_load_dword v{vN}, v{vT3}, s[{sCL}:{sCL+1}]")
lab("L_loads_issued")
if a.amp == "t0k": e(f"s_memrealtime s[{sST+2}:{sST+3}]")
e(f"s_cmp_lg_u32 s{sW}, 0")
e(f"s_mov_b32 s{sSPIN}, {SPIN}")
e("s_cbranch_scc1 L_notloader")

e("s_setprio 3")
c("per-lane source offsets of the LDS-DMA pieces (bank swizzle applied on the source side)")
e(f"v_lshrrev_b32 v{vR}, 4, v{vLANE}")
e(f"v_and_b32 v{vT1}, 15, v{vLANE}")
e(f"s_lshl_b32 s{sT0}, s{sH}, 8")
e(f"v_lshl_add_u32 v{vT4}, v{vR}, 11, s{sT0}")
e(f"v_xor_b32 v{vT2}, v{vR}, v{vT1}")
e(f"v_lshl_add_u32 v{vKOFF}, v{vT2}, 4, v{vT4}")
for j in range(1, 4):
    e(f"v_xor_b32 v{vT3}, {64*j}, v{vKOFF}")
    e(f"v_add_u32 v{vKOFF+j}, {7168*j}, v{vT3}")
e(f"s_mov_b32 s{sRD}, s{sK}")
e(f"s_and_b32 s{sRD+1}, s{sK+1}, 0xffff")
e(f"s_mov_b32 s{sRD+2}, {KBYTES}")
e(f"s_mov_b32 s{sRD+3}, 0x20000")
if a.amp == "t0c": e(f"s_memrealtime s[{sST+2}:{sST+3}]")
if a.bar < 0: e("s_barrier")
e("s_waitcnt lgkmcnt(0)")
if not a.spec: clamp_cl()
c("the first stream tiles are the leading logical tiles; requested before the context length is known")
NE = a.NE
for t in range(NE):
    if not a.spec:
        e(f"s_cmp_le_u32 s{sCLV}, {32*(t+1)}")
        e(f"s_cbranch_scc1 {'L_ld_b' if t < 2 else 'L_ld_pre'}")
    if t == 0: stamp(1)
    for j in range(8):
        i = 8 * t + j
        if j % 4 == 0:
            e(f"s_movk_i32 m0, {1024*i}")
            e(f"s_lshl_b32 s{sB0}, s{sE+i//4}, 15")
        if i >= D0: e(f"s_waitcnt vmcnt({D0-1})")
        e(f"buffer_load_dwordx4 v{vKOFF+j%4}, s[{sRD}:{sRD+3}], s{sB0} offen offset:{1024*(j%4)}{NT} lds")
    if t == a.bar:
        lab("L_ld_b")
        e("s_barrier")
lab("L_ld_pre")
j0 = (D - 1) % 8
e(f"v_lshlrev_b32 v{vT3}, 2, v{vR}")
e(f"v_xor_b32 v{vT3}, v{vT3}, v{vT1}")
e(f"v_lshl_add_u32 v{vVOFF}, v{vT3}, 4, v{vT4}")
for j in range(1, 4):
    e(f"v_add_u32 v{vVOFF+j}, {7168*j}, v{vVOFF}")
e(f"v_lshlrev_b32 v{vCA}, 3, v{vLANE}")
e(f"v_add_u32 v{vT0}, {SL}, v{vCA}")
e(f"v_add_u32 v{vCA}, {CTRL}, v{vCA}")
e(f"v_mov_b32 v{vFA}, {FREE}")
e(f"v_mov_b64 v[{vF}:{vF+1}], 0")
e(f"v_mov_b32 v{vDP}, {2 if NE == 3 else 0}")
e(f"v_mov_b32 v{vDA}, {DEPW}")
e(f"v_bfrev_b32 v{vOOB}, 1")
def set_pass(off):
    for j in range(0, 4, 2): e(f"v_mov_b64 v[{vCUR+j}:{vCUR+j+1}], v[{off+j}:{off+j+1}]")
set_pass(vKOFF)
if "prog3" in DBG: e("v_mov_b32 v50, 0")
e(f"s_mov_b32 s{sPM}, 4")
e(f"s_mov_b32 s{sTA0}, 0")
if a.spec:
    e(f"s_waitcnt vmcnt({8*NE})")
    e(f"v_readlane_b32 s{sCLV}, v{vN}, s{sB}")
    clamp_cl()
derive_cl()
c("the leading tiles enter the stream list straight from the table row")
e(f"s_min_u32 s{sT}, s{sNU}, {NE}")
e(f"s_lshl3_add_u32 s{sT0}, s{sT}, {SL}")
e(f"v_mov_b32 v{vSA}, s{sT0}")
e(f"s_sub_u32 s{sT0}, s{sT}, 3")
e(f"v_mov_b32 v{vCNT}, s{sT0}")
e(f"s_bfm_b64 s[{sT2}:{sT2+1}], s{sNU}, 0")
e(f"s_cmp_ge_u32 s{sNU}, {NE}")
e("s_cbranch_scc1 L_ld_row")
e("s_waitcnt vmcnt(0)")
lab("L_ld_row")
if not (a.spec and NE == 3): e("s_waitcnt vmcnt(24)")
if NE == 4: e(f"ds_write_b32 v{vCA}, v{vCNT}")
e(f"v_lshl_or_b32 v{vEN}, v{vL}, 15, 1")
e(f"v_lshlrev_b32 v{vEN+1}, 15, v{vL+1}")
e(f"s_mov_b64 exec, s[{sT2}:{sT2+1}]")
e(f"ds_write_b64 v{vT0}, v[{vEN}:{vEN+1}]")
e("s_mov_b64 exec, -1")
e(f"ds_read_b64 v[{vEN}:{vEN+1}], v{vSA}")
e(f"s_lshl_b32 s{sSLOT}, s{sT}, 13")
e(f"s_mov_b32 s{sU}, s{sT}")
c("lanes of the last logical tile whose rows lie inside the context")
e(f"s_lshl_b32 s{sT0}, s{sNTL}, 5")
e(f"s_sub_u32 s{sT0}, s{sCLV}, s{sT0}")
e(f"s_add_u32 s{sT0}, s{sT0}, 32")
e(f"v_sub_u32 v{vT1}, s{sT0}, v{vR}")
for k in range(8):
    e(f"v_cmp_lt_i32 s[{80+2*k}:{81+2*k}], {4*k}, v{vT1}")
if a.amp == "t0r": e(f"s_memrealtime s[{sST+2}:{sST+3}]")
if a.amp[:3] == "t0l":
    e(f"s_waitcnt vmcnt({int(a.amp[3:])})")
    e(f"s_memrealtime s[{sST+2}:{sST+3}]")
stamp(2)
def unit_body(depth, trimmed=False):
    for j in range(8):
        if j % 4 == 0: e(f"s_add_u32 m0, s{sSLOT}, {1024*j}")
        e(f"s_waitcnt vmcnt({depth-1})")
        e(f"buffer_load_dwordx4 v{vTR+j if trimmed else vCUR+j%4}, s[{sRD}:{sRD+3}], s{sB0 + j//4} offen offset:{1024*(j%4)}{NT} lds")
        if j == (depth - 1) % 8:
            e(f"v_add_u32 v{vCNT}, 1, v{vCNT}")
            e(f"ds_write_b32 v{vCA}, v{vCNT}")
        if j == 0:
            e(f"s_add_u32 s{sT2}, s{sSLOT}, 8192")
            e(f"s_cmp_eq_u32 s{sT2}, {RING}")
            e(f"s_cselect_b32 s{sT2}, 0, s{sT2}")
            e(f"s_lshr_b32 s{sT0}, s{sT2}, 10")
            e(f"s_add_u32 s{sT0}, s{sT0}, {FREE}")
            e(f"v_mov_b32 v{vFA}, s{sT0}")
        if j == 1:
            e(f"s_add_u32 s{sT}, s{sT}, 1")
            e(f"s_and_b32 s{sT0}, s{sFL}, s{sPM}")
            e(f"s_cselect_b32 s{sT}, s{sTA0}, s{sT}")
            e(f"s_lshl3_add_u32 s{sT0}, s{sT}, {SL}")
            e(f"v_mov_b32 v{vSA}, s{sT0}")
            e(f"s_add_u32 s{sU}, s{sU}, 1")
        if j == a.fpf:
            c("prefetch the next list entry, the FREE words of the next slot and the depth code")
            e(f"ds_read_b64 v[{vEN}:{vEN+1}], v{vSA}")
            e(f"ds_read_b64 v[{vF}:{vF+1}], v{vFA}")
            e(f"ds_read_b32 v{vDP}, v{vDA}")
            e(f"s_mov_b32 s{sSLOT}, s{sT2}")
out.append(".p2align 3")
lab("L_ld")
if "prog3" in DBG:
    e(f"s_memrealtime s[{sST+4}:{sST+5}]")
    e(f"s_min_u32 m0, s{sU}, 63")
e("s_waitcnt lgkmcnt(0)")
if "prog3" in DBG: e(f"v_writelane_b32 v50, s{sST+4}, m0")
e(f"v_min_i32 v{vT0}, v{vF}, v{vF+1}")
e(f"v_readfirstlane_b32 s{sFL}, v{vEN}")
e(f"v_readfirstlane_b32 s{sB1}, v{vEN+1}")
e(f"v_readfirstlane_b32 s{sT0}, v{vT0}")
e(f"v_readfirstlane_b32 s{sT3}, v{vDP}")
e(f"s_sub_u32 s{sT1}, s{sU}, {NS-1}")
e(f"s_cmp_ge_i32 s{sT0}, s{sT1}")
e(f"s_cselect_b32 s{sT0}, s{sFL}, 0")
e(f"s_and_b32 s{sB0}, s{sFL}, -16")
e(f"s_and_b32 s{sT0}, s{sT0}, 3")
e(f"s_cmp_lg_u32 s{sT0}, 1")
e("s_cbranch_scc1 L_ld_odd")
e(f"s_cmp_lg_u32 s{sT3}, 0")
e("s_cbranch_scc1 L_ld_var")
unit_body(D)
lab("L_ld_next")
e(f"s_bitcmp1_b32 s{sFL}, 2")
e("s_cbranch_scc0 L_ld")
c("last tile of the batch: change pass")
e(f"s_xor_b32 s{sPM}, s{sPM}, 4")
e("s_cbranch_scc1 L_ld_tok")
e(f"s_mov_b32 s{sRD}, s{sV}")
e(f"s_and_b32 s{sRD+1}, s{sV+1}, 0xffff")
set_pass(vVOFF)
e("s_branch L_ld")
lab("L_ld_tok")
e(f"s_bitcmp1_b32 s{sFL}, 3")
e("s_cbranch_scc0 L_ld_more")
for r in (16, 8, 0):
    e(f"v_add_u32 v{vCNT}, 1, v{vCNT}")
    e(f"s_waitcnt vmcnt({r})")
    e(f"ds_write_b32 v{vCA}, v{vCNT}")
if a.hold:
    lab("L_hold")
    e(f"{'s_memrealtime' if a.hold[:2] == 'rt' else 's_memtime'} s[{sST+2}:{sST+3}]")
    e("s_waitcnt lgkmcnt(0)")
    e(f"s_sub_u32 s{sT0}, s{sST+2}, s{sST}")
    e(f"s_cmp_lt_u32 s{sT0}, {a.hold[3:]}")
    e("s_cbranch_scc1 L_hold")
e(FIN)
lab("L_ld_more")
e(f"s_mov_b32 s{sTA0}, s{sT}")
e(f"s_mov_b32 s{sRD}, s{sK}")
e(f"s_and_b32 s{sRD+1}, s{sK+1}, 0xffff")
set_pass(vKOFF)
e("s_branch L_ld")
lab("L_ld_odd")
e(f"s_cmp_eq_u32 s{sT0}, 3")
e("s_cbranch_scc1 L_ld_m")
c("slot not free yet or entry not written yet")
e(f"ds_read_b64 v[{vEN}:{vEN+1}], v{vSA}")
e(f"ds_read_b64 v[{vF}:{vF+1}], v{vFA}")
e(f"s_sub_u32 s{sSPIN}, s{sSPIN}, 1")
e("s_cbranch_scc0 L_ld")
e("s_endpgm")
lab("L_ld_m")
c("the last logical tile: rows past the context are not fetched (their lanes read zeros)")
for k in range(8):
    e(f"v_cndmask_b32 v{vTR+k}, v{vOOB}, v{vCUR+k%4}, s[{80+2*k}:{81+2*k}]")
unit_body(D + a.DM, True)
e("s_branch L_ld_next")
lab("L_ld_var")
e(f"s_cmp_eq_u32 s{sT3}, 1")
e("s_cbranch_scc1 L_ld_v2")
e(f"s_cmp_eq_u32 s{sT3}, 2")
e("s_cbranch_scc1 L_ld_v3")
unit_body(D + DV[0])
e("s_branch L_ld_next")
lab("L_ld_v2")
unit_body(D + DV[1])
e("s_branch L_ld_next")
lab("L_ld_v3")
unit_body(D + DV[2])
e("s_branch L_ld_next")

lab("L_notloader")
e(f"s_cmp_ge_u32 s{sW}, 3")
e("s_cbranch_scc1 L_planner")
e(f"s_sub_u32 s{sCI}, s{sW}, 1")
def rows_off(sb):
    e(f"s_lshl3_add_u32 s{sQO}, s{sb}, s{sH}")
    e(f"s_lshl1_add_u32 s{sQO}, s{sQO}, s{sCI}")
    e(f"s_lshl_b32 s{sQO}, s{sQO}, 12")
    e(f"v_and_b32 v{vT0}, 15, v{vLANE}")
    e(f"v_lshrrev_b32 v{vG}, 4, v{vLANE}")
def load_q(sb):
    rows_off(sb)
    e(f"v_lshl_add_u32 v{vT4}, v{vT0}, 8, s{sQO}")
    e(f"v_lshl_add_u32 v{vT4}, v{vG}, 4, v{vT4}")
    for s in range(4):
        e(f"global_load_dwordx4 v[{vQ+4*s}:{vQ+4*s+3}], v{vT4}, s[{sQ}:{sQ+1}] offset:{64*s}")
load_q(sB)
e("s_barrier")
e(f"s_mov_b32 s{sROLE}, 0")
e(f"s_mov_b32 s{sPLN}, 0")
e(f"s_mov_b32 s{sMRG}, 0")
if a.spec:
    e("s_waitcnt vmcnt(4) lgkmcnt(0)")
    e(f"v_readlane_b32 s{sCLV}, v{vN}, s{sB}")
else: e("s_waitcnt lgkmcnt(0)")
clamp_cl(zq=sT3)
derive_cl()
c("valid keys of the last logical tile")
e(f"s_lshl_b32 s{sV0}, s{sNTL}, 5")
e(f"s_sub_u32 s{sV0}, s{sCLV}, s{sV0}")
e(f"s_add_u32 s{sV0}, s{sV0}, 32")
e(f"s_bfm_b64 s[{sM}:{sM+1}], s{sNU}, 0")
lab("L_csetup")
e(f"s_mov_b32 s{sMT}, 0")
e(f"s_mov_b32 s{sOFF}, 0")
e(f"s_mov_b32 s{sTB0}, 0")
e(f"s_mov_b32 s{sFIRST}, 1")
e(f"s_mov_b64 s[{sRS}:{sRS+1}], 0")
e("s_waitcnt vmcnt(4)")
e(f"v_and_b32 v{vT0}, 15, v{vLANE}")
e(f"v_xor_b32 v{vT1}, v{vG}, v{vT0}")
e(f"v_lshlrev_b32 v{vT2}, 8, v{vT0}")
e(f"v_lshl_add_u32 v{vKA0}, v{vT1}, 4, v{vT2}")
for s in range(1, 4):
    e(f"v_xor_b32 v{vKA0+s}, {64*s}, v{vKA0}")
e(f"v_bfe_u32 v{vT0}, v{vLANE}, 2, 2")
e(f"v_lshl_add_u32 v{vT1}, v{vG}, 2, v{vT0}")
e(f"v_lshlrev_b32 v{vT1}, 8, v{vT1}")
e(f"v_and_b32 v{vT2}, 3, v{vLANE}")
e(f"v_lshl_add_u32 v{vT1}, v{vT2}, 4, v{vT1}")
e(f"v_lshl_add_u32 v{vVA0}, v{vT0}, 6, v{vT1}")
for j in range(1, 4):
    e(f"v_xor_b32 v{vVA0+j}, {64*j}, v{vVA0}")
e(f"s_lshl_b32 s{sT0}, s{sCI}, 10")
e(f"s_add_u32 s{sT0}, s{sT0}, {PST}")
e(f"v_lshl_add_u32 v{vPA0}, v{vLANE}, 4, s{sT0}")
e(f"v_mov_b32 v{vOA}, v{vT4}")
e(f"s_lshl_b32 s{sT0}, s{sW}, 3")
e(f"s_add_u32 s{sT0}, s{sT0}, {CTRL-8}")
e(f"v_mov_b32 v{vPA}, s{sT0}")
e(f"v_mov_b32 v{vM}, 0xff800000")
e(f"v_mov_b32 v{vLS}, 0")
for r in range(0, 32, 2): e(f"v_mov_b64 v[{vO+r}:{vO+r+1}], 0")
e(f"s_mov_b32 s{sCST}, 0x3e0293ee")
e(f"s_mov_b32 s{sCST+1}, 0x3e0293ee")
e(f"s_mov_b32 s{sLIMF}, {a.limf}")
e(f"s_lshl2_add_u32 s{sFB}, s{sCI}, {FREE}")
e("s_waitcnt vmcnt(0)")
e(f"s_cmp_eq_u32 s{sT3}, 0")
e("s_cbranch_scc1 L_k_first")
for r in range(0, 16, 2): e(f"v_mov_b64 v[{vQ+r}:{vQ+r+1}], 0")

def poll(label):
    lab(label)
    e(f"ds_read_b64 v[{vPL}:{vPL+1}], v{vPA}")
    e(f"s_sub_u32 s{sSPIN}, s{sSPIN}, 1")
    e("s_cbranch_scc1 L_end")
    e("s_waitcnt lgkmcnt(0)")
    e(f"v_readfirstlane_b32 s{sLND}, v{vPL}")
    e(f"s_cmp_ge_i32 s{sLND}, s{sNK}")
    e(f"s_cbranch_scc0 {label}")
VR = []
for j in range(4):
    for ee in range(2):
        for blk in range(2):
            r = vVF + (2 * j + ee) * 4 + 2 * blk
            VR.append(f"ds_read_b64_tr_b16 v[{r}:{r+1}], v{vXA+j} offset:{8*ee + 4096*blk}")
KR, QK = [], []
for blk in range(2):
    for st in range(4):
        r = vKF + (blk * 4 + st) * 4
        KR.append(f"ds_read_b128 v[{r}:{r+3}], v{vXA+st} offset:{4096*blk}")
        cc = "0" if st == 0 else f"v[{vS+4*blk}:{vS+4*blk+3}]"
        QK.append(f"v_mfma_f32_16x16x32_bf16 v[{vS+4*blk}:{vS+4*blk+3}], v[{r}:{r+3}], v[{vQ+4*st}:{vQ+4*st+3}], {cc}")
PV = [f"v_mfma_f32_16x16x32_bf16 v[{vO+4*dt}:{vO+4*dt+3}], v[{vVF+4*dt}:{vVF+4*dt+3}], v[{vP}:{vP+3}], v[{vO+4*dt}:{vO+4*dt+3}]" for dt in range(8)]
NX = [f"s_ff1_i32_b64 s{sTN}, s[{sM}:{sM+1}]",
      f"s_bitset0_b64 s[{sM}:{sM+1}], s{sTN}",
      f"s_add_u32 s{sT1}, s{sTN}, s{sOFF}",
      f"s_mul_i32 s{sT0}, s{sT1}, {DIVM[0]}",
      f"s_lshr_b32 s{sT0}, s{sT0}, {DIVM[1]}",
      f"s_mul_i32 s{sT0}, s{sT0}, {NS}",
      f"s_sub_u32 s{sT0}, s{sT1}, s{sT0}",
      f"s_lshl_b32 s{sSB}, s{sT0}, 13",
      f"s_lshl3_add_u32 s{sFWN}, s{sT0}, s{sFB}",
      f"s_and_b32 s{sT0}, s{sTN}, 0x40000000",
      f"s_add_u32 s{sNK}, s{sT1}, 1",
      f"s_or_b32 s{sNK}, s{sNK}, s{sT0}",
      f"s_sub_u32 s{sPO}, s{sTN}, s{sTB0}",
      f"s_lshl_b32 s{sPO}, s{sPO}, 11"]
KA = [f"v_add_u32 v{vXA+i}, s{sSB}, v{vKA0+i}" for i in range(4)]
VA = [f"v_add_u32 v{vXA+i}, s{sSB}, v{vVA0+i}" for i in range(4)]
ADV = [f"v_mov_b32 v{vFW}, s{sFWN}",
       f"v_mov_b32 v{vFV}, s{sNK}",
       f"v_add_u32 v{vPW}, s{sPO}, v{vPA0}",
       f"s_add_u32 s{sT}, s{sTN}, 1"]
def scale_o(reg):
    for r in range(0, 32, 2):
        sel = "op_sel:[0,1] op_sel_hi:[1,1]" if reg & 1 else "op_sel_hi:[1,0]"
        p = reg & ~1
        e(f"v_pk_mul_f32 v[{vO+r}:{vO+r+1}], v[{vO+r}:{vO+r+1}], v[{p}:{p+1}] {sel}")

def inv_pre():
    e(f"v_mov_b32 v{vT0}, v{vLS}")
    e(f"v_mov_b32 v{vT1}, v{vLS}")
    e("s_nop 1")
    e(f"v_permlane32_swap_b32 v{vT0}, v{vT1}")
    e("s_nop 0")
    e(f"v_add_f32 v{vT0}, v{vT0}, v{vT1}")
    e(f"v_mov_b32 v{vT1}, v{vT0}")
    e("s_nop 1")
    e(f"v_permlane16_swap_b32 v{vT0}, v{vT1}")
    e("s_nop 0")
    e(f"v_add_f32 v{vT0}, v{vT0}, v{vT1}")
    e(f"v_rcp_f32 v{vINV}, v{vT0}")

lab("L_k_first")
for x in NX + KA + ADV: e(x)
lab("L_k_next")
e(f"s_cmp_lt_i32 s{sTN}, 0")
e("s_cbranch_scc1 L_k_empty")
poll("L_k_poll")
for x in KR: e(x)
e("s_waitcnt lgkmcnt(0)")
out.append(".p2align 3")
lab("L_k_top")
e("s_waitcnt lgkmcnt(1)")
e(f"ds_write_b32 v{vFW}, v{vFV}")
e(f"ds_read_b64 v[{vPL}:{vPL+1}], v{vPA}")
fill = NX + KA
for i in range(8):
    e(QK[i])
    for x in fill[2*i:2*i+2]: e(x)
for x in fill[16:]: e(x)
e(f"s_mov_b32 s{sREDO}, 0")
e("s_waitcnt lgkmcnt(0)")
e(f"v_readfirstlane_b32 s{sLND}, v{vPL}")
e(f"s_cmp_ge_i32 s{sLND}, s{sNK}")
e(f"s_cselect_b32 s{sPRE}, 1, 0")
e("s_cbranch_scc0 L_k_nopre")
for x in KR: e(x)
lab("L_k_nopre")
e(f"s_cmp_eq_u32 s{sT}, s{sMT}")
e("s_cbranch_scc1 L_k_mask")
lab("L_k_exp")
for hb in range(2):
    for r in (4*hb, 4*hb+2):
        e(f"v_pk_fma_f32 v[{vE+r}:{vE+r+1}], v[{vS+r}:{vS+r+1}], s[{sCST}:{sCST+1}], v[{vM}:{vM+1}] op_sel_hi:[1,1,0] neg_lo:[0,0,1] neg_hi:[0,0,1]")
    for r in range(4*hb, 4*hb+4):
        e(f"v_exp_f32 v{vE+r}, v{vE+r}")
e(f"v_pk_add_f32 v[{vT0}:{vT1}], v[{vE}:{vE+1}], v[{vE+2}:{vE+3}]")
e(f"v_pk_add_f32 v[{vT2}:{vT3}], v[{vE+4}:{vE+5}], v[{vE+6}:{vE+7}]")
e(f"v_cvt_pk_bf16_f32 v{vP}, v{vE}, v{vE+1}")
e(f"v_pk_add_f32 v[{vT0}:{vT1}], v[{vT0}:{vT1}], v[{vT2}:{vT3}]")
e(f"v_cvt_pk_bf16_f32 v{vP+1}, v{vE+2}, v{vE+3}")
e(f"v_add_f32 v{vT0}, v{vT0}, v{vT1}")
c("the kept reference max is safe only while every weight stays <= 256; otherwise take the true max")
e(f"v_cmp_nge_f32 vcc, s{sLIMF}, v{vT0}")
e(f"v_cvt_pk_bf16_f32 v{vP+2}, v{vE+4}, v{vE+5}")
e(f"v_cvt_pk_bf16_f32 v{vP+3}, v{vE+6}, v{vE+7}")
e(ADV[0]); e(ADV[1])
e("s_nop 0")
e("s_cbranch_vccnz L_k_slow")
lab("L_k_done")
e(f"ds_write_b128 v{vPW}, v[{vP}:{vP+3}]")
e(f"v_add_f32 v{vLS}, v{vLS}, v{vT0}")
e(ADV[3])
e(f"s_cmp_lg_u32 s{sPRE}, 0")
e(ADV[2])
e("s_cbranch_scc1 L_k_top")
e("s_branch L_k_next")

lab("L_k_mask")
e(f"v_lshlrev_b32 v{vT0}, 2, v{vG}")
e(f"v_sub_u32 v{vT0}, s{sV0}, v{vT0}")
e(f"v_mov_b32 v{vT1}, 0xff800000")
for r in range(8):
    e(f"v_cmp_lt_i32 s[{80+2*r}:{81+2*r}], {16*(r//4)+r%4}, v{vT0}")
for r in range(8):
    e(f"v_cndmask_b32 v{vS+r}, v{vT1}, v{vS+r}, s[{80+2*r}:{81+2*r}]")
e("s_branch L_k_exp")

def alpha_addr():
    e(f"s_lshl_b32 s{sT0}, s2, 6")
    e(f"s_add_u32 s{sT0}, s{sT0}, s{sT}")
    e(f"s_lshl1_add_u32 s{sT0}, s{sT0}, s{sCI}")
    e(f"s_lshl_b32 s{sT0}, s{sT0}, 6")
    e(f"s_add_u32 s{sT0}, s{sT0}, {WSA}")
    e(f"v_and_b32 v{vT1}, 15, v{vLANE}")
    e(f"v_lshl_add_u32 v{vT1}, v{vT1}, 2, s{sT0}")
c("raise the reference to the true running max; the accumulator is rescaled when pass 2 reaches this tile")
lab("L_k_slow")
e(f"s_cmp_lg_u32 s{sREDO}, 0")
e("s_cbranch_scc1 L_k_done")
e(f"s_mov_b32 s{sREDO}, 1")
e(f"v_max3_f32 v{vT0}, v{vS}, v{vS+1}, v{vS+2}")
e(f"v_max3_f32 v{vT1}, v{vS+3}, v{vS+4}, v{vS+5}")
e(f"v_max3_f32 v{vT0}, v{vT0}, v{vS+6}, v{vS+7}")
e(f"v_max_f32 v{vT0}, v{vT0}, v{vT1}")
e(f"v_mov_b32 v{vT1}, v{vT0}")
e("s_nop 1")
e(f"v_permlane32_swap_b32 v{vT0}, v{vT1}")
e("s_nop 0")
e(f"v_max_f32 v{vT0}, v{vT0}, v{vT1}")
e(f"v_mov_b32 v{vT1}, v{vT0}")
e("s_nop 1")
e(f"v_permlane16_swap_b32 v{vT0}, v{vT1}")
e("s_nop 0")
e(f"v_max_f32 v{vT0}, v{vT0}, v{vT1}")
e(f"v_mul_f32 v{vT0}, s{sCST}, v{vT0}")
e(f"v_max_f32 v{vMN}, v{vM}, v{vT0}")
e(f"v_sub_f32 v{vAL}, v{vM}, v{vMN}")
e(f"v_exp_f32 v{vAL}, v{vAL}")
e(f"v_mov_b32 v{vM}, v{vMN}")
e(f"s_cmp_lg_u32 s{sFIRST}, 0")
e(f"s_mov_b32 s{sFIRST}, 0")
e(f"v_mul_f32 v{vLS}, v{vLS}, v{vAL}")
e("s_cbranch_scc1 L_k_exp")
alpha_addr()
e(f"global_store_dword v{vT1}, v{vAL}, s[{sWS}:{sWS+1}]")
e(f"s_sub_u32 s{sT0}, s{sT}, 1")
e(f"s_bitset1_b64 s[{sRS}:{sRS+1}], s{sT0}")
e("s_branch L_k_exp")

RLO, RHI = 0xffffffff, (1 << (G - 32)) - 1
lab("L_k_noplan")
e(f"s_mov_b32 s{sPLN}, 1")
e(f"v_mov_b32 v{vT1}, {REC0}")
lab("L_k_plan")
e(f"ds_read_b128 v[{vT2}:{vT5}], v{vT1}")
e("s_waitcnt lgkmcnt(0)")
e(f"v_readfirstlane_b32 s{sT0}, v{vT5}")
e(f"v_readfirstlane_b32 s{sM}, v{vT2}")
e(f"v_readfirstlane_b32 s{sM+1}, v{vT3}")
e(f"v_readfirstlane_b32 s{sTTC}, v{vT4}")
e(f"s_cmp_lg_u32 s{sT0}, 0")
e("s_cbranch_scc1 L_k_got")
spin_tail("L_k_plan")
lab("L_k_got")
e(f"s_lshr_b32 s{sMT}, s{sT0}, 8")
e(f"s_add_u32 s{sMT}, s{sMT}, 1")
e(f"s_and_b32 s{sMRG}, s{sTTC}, {0 if 'nomerge' in DBG else 1}")
e(f"s_lshr_b32 s{sTTC}, s{sTTC}, 8")
e(f"s_min_u32 s{sTB1}, s{sTTC}, {G}")
e(f"s_bfm_b64 s[{sMALL}:{sMALL+1}], s{sNU}, 0")
e(f"s_or_b64 s[{sMALL}:{sMALL+1}], s[{sMALL}:{sMALL+1}], s[{sM}:{sM+1}]")
e(f"s_and_b32 s{sM+1}, s{sM+1}, {RHI:#x}")
e("s_branch L_k_first")
lab("L_v_more")
c("second batch")
e(f"s_mov_b32 s{sTB0}, s{sTB1}")
e(f"s_mov_b32 s{sTB1}, s{sTTC}")
e(f"s_mov_b32 s{sOFF}, s{sTB0}")
e(f"s_mov_b32 s{sMALL}, 0")
e(f"s_andn2_b32 s{sMALL+1}, s{sMALL+1}, {RHI:#x}")
e(f"s_mov_b64 s[{sM}:{sM+1}], s[{sMALL}:{sMALL+1}]")
e("s_branch L_k_first")
lab("L_k_empty")
e(f"s_cmp_eq_u32 s{sPLN}, 0")
e("s_cbranch_scc1 L_k_noplan")
if a.last: inv_pre()
e(f"s_mov_b32 s{sOFF}, s{sTB1}")
e(f"s_mov_b32 s{sM}, s{sMALL}")
e(f"s_and_b32 s{sM+1}, s{sMALL+1}, {RHI:#x}")
e(f"s_cmp_eq_u32 s{sTB0}, 0")
e(f"s_cselect_b32 s{sM+1}, s{sM+1}, s{sMALL+1}")
for x in NX + VA: e(x)
e(f"ds_read_b64 v[{vPL}:{vPL+1}], v{vPA}")
e(f"s_cmp_lt_i32 s{sTN}, 0")
e("s_cbranch_scc1 L_v_empty")
lab("L_v_next")
for x in ADV: e(x)
if a.last:
    e(f"s_cmp_eq_u64 s[{sM}:{sM+1}], 0")
    e("s_cbranch_scc1 L_v_islast")
lab("L_v_next2")
e(f"ds_read_b128 v[{vPN}:{vPN+3}], v{vPW}")
e("s_waitcnt lgkmcnt(1)")
e(f"v_readfirstlane_b32 s{sLND}, v{vPL}")
e(f"s_cmp_ge_i32 s{sLND}, s{sNK}")
e("s_cbranch_scc1 L_v_rd")
poll("L_v_poll")
lab("L_v_rd")
for x in VR: e(x)
if a.lat:
    e(f"v_readfirstlane_b32 s{sMBF}, v{vPL+1}")
    e(f"s_cmp_gt_i32 s{sLND}, s{sNK}")
    e(f"s_cselect_b32 s{sT0}, 1, s{sRS}")
    e(f"s_or_b32 s{sT0}, s{sT0}, s{sRS+1}")
    e(f"s_and_b32 s{sT1}, s{sMBF}, s{sMRG}")
    e(f"s_or_b32 s{sT0}, s{sT0}, s{sT1}")
    e("s_cbranch_scc0 L_v_lat")
out.append(".p2align 3")
lab("L_v_top")
for x in NX + VA: e(x)
e(f"s_sub_u32 s{sT0}, s{sT}, 1")
e(f"s_bitcmp1_b64 s[{sRS}:{sRS+1}], s{sT0}")
e("s_cbranch_scc1 L_v_resc")
lab("L_v_top2")
e("s_waitcnt lgkmcnt(14)")
e(f"v_readfirstlane_b32 s{sMBF}, v{vPL+1}")
e(f"v_readfirstlane_b32 s{sLND}, v{vPL}")
e(f"v_mov_b64 v[{vP}:{vP+1}], v[{vPN}:{vPN+1}]")
e(f"v_mov_b64 v[{vP+2}:{vP+3}], v[{vPN+2}:{vPN+3}]")
e(f"s_and_b32 s{sT0}, s{sMBF}, s{sMRG}")
e("s_cbranch_scc1 L_v_merge")
lab("L_v_top3")
e(f"s_cmp_ge_i32 s{sLND}, s{sNK}")
e("s_cbranch_scc0 L_v_pv")
e(ADV[2])
e("s_waitcnt lgkmcnt(0)")
e(f"ds_write_b32 v{vFW}, v{vFV}")
e(f"ds_read_b64 v[{vPL}:{vPL+1}], v{vPA}")
e(f"ds_read_b128 v[{vPN}:{vPN+3}], v{vPW}")
for i in range(8):
    e(PV[i]); e(VR[2*i]); e(VR[2*i+1])
e(ADV[0]); e(ADV[1]); e(ADV[3])
e("s_branch L_v_top")
if a.lat:
    c("nothing further has landed and nothing is pending: shortest way through this tile")
    lab("L_v_lat")
    e("s_waitcnt lgkmcnt(14)")
    e(f"v_mov_b64 v[{vP}:{vP+1}], v[{vPN}:{vPN+1}]")
    e(f"v_mov_b64 v[{vP+2}:{vP+3}], v[{vPN+2}:{vPN+3}]")
    fl = NX + VA
    e(fl[0]); e(fl[1])
    for i in range(8):
        if i: e(f"s_waitcnt lgkmcnt({14-2*i})")
        if i == 7:
            e(f"ds_write_b32 v{vFW}, v{vFV}")
            e(f"ds_read_b64 v[{vPL}:{vPL+1}], v{vPA}")
        e(PV[i])
        e(fl[2+2*i]); e(fl[3+2*i])
    e(f"s_cmp_ge_i32 s{sTN}, 0")
    e("s_cbranch_scc1 L_v_next")
    e("s_branch L_v_empty")
lab("L_v_pv")
if a.last:
    e(f"s_cmp_lt_i32 s{sTN}, 0")
    e("s_cbranch_scc1 L_v_islast2")
    lab("L_v_pv2")
for i in range(8):
    if i: e(f"s_waitcnt lgkmcnt({14-2*i})")
    if i == 7:
        e(f"ds_write_b32 v{vFW}, v{vFV}")
        e(f"ds_read_b64 v[{vPL}:{vPL+1}], v{vPA}")
    e(PV[i])
e(f"s_cmp_ge_i32 s{sTN}, 0")
e("s_cbranch_scc1 L_v_next")
lab("L_v_empty")
e(f"s_cmp_lt_u32 s{sTB1}, s{sTTC}")
e("s_cbranch_scc1 L_v_more")
stamp(2)
e(f"s_cmp_lg_u32 s{sMRG}, 0")
e("s_cbranch_scc1 L_c_mwait0")
lab("L_c_store")
e(f"v_mov_b32 v{vT0}, v{vLS}")
e(f"v_and_b32 v{vT2}, 15, v{vLANE}")
e(f"v_lshl_add_u32 v{vT2}, v{vT2}, 8, s{sQO}")
e(f"v_permlane32_swap_b32 v{vLS}, v{vT0}")
e("s_nop 0")
e(f"v_add_f32 v{vLS}, v{vLS}, v{vT0}")
e(f"v_mov_b32 v{vT0}, v{vLS}")
e(f"v_lshl_add_u32 v{vT2}, v{vG}, 4, v{vT2}")
e("s_nop 0")
e(f"v_permlane16_swap_b32 v{vLS}, v{vT0}")
e("s_nop 0")
e(f"v_add_f32 v{vLS}, v{vLS}, v{vT0}")
e(f"v_rcp_f32 v{vMN}, v{vLS}")
e(f"s_cmp_lg_u32 s{sROLE}, 0")
scale_o(vMN)
for r in range(16):
    e(f"v_cvt_pk_bf16_f32 v{vKF+r}, v{vO+2*r}, v{vO+2*r+1}")
e("s_cbranch_scc1 L_publish")
def out_stores(fl, step=64):
    for j in range(4):
        e(f"global_store_dwordx4 v{vT2}, v[{vKF+4*j}:{vKF+4*j+3}], s[{sOUT}:{sOUT+1}] offset:{step*j}{fl}")
out_stores(OST)
e(FIN)

def l_total():
    e(f"v_mov_b32 v{vT0}, v{vLS}")
    e(f"v_and_b32 v{vT2}, 15, v{vLANE}")
    e(f"v_lshl_add_u32 v{vT2}, v{vT2}, 8, s{sQO}")
    e(f"v_permlane32_swap_b32 v{vLS}, v{vT0}")
    e("s_nop 0")
    e(f"v_add_f32 v{vLS}, v{vLS}, v{vT0}")
    e(f"v_mov_b32 v{vT0}, v{vLS}")
    e(f"v_lshl_add_u32 v{vT2}, v{vG}, 4, v{vT2}")
    e("s_nop 0")
    e(f"v_permlane16_swap_b32 v{vLS}, v{vT0}")
    e("s_nop 0")
    e(f"v_add_f32 v{vLS}, v{vLS}, v{vT0}")
    e(f"v_rcp_f32 v{vMN}, v{vLS}")
if a.last:
    lab("L_v_islast2")
    e(f"s_sub_u32 s{sT0}, s{sTTC}, s{sTB1}")
    e(f"s_or_b32 s{sT0}, s{sT0}, s{sMRG}")
    e(f"s_or_b32 s{sT0}, s{sT0}, s{sROLE}")
    e("s_cbranch_scc1 L_v_pv2")
    e("s_branch L_v_lpv")
    lab("L_v_islast")
    c("closing tile of an owner with nothing pending: take the short path")
    e(f"s_sub_u32 s{sT0}, s{sTTC}, s{sTB1}")
    e(f"s_or_b32 s{sT0}, s{sT0}, s{sMRG}")
    e(f"s_or_b32 s{sT0}, s{sT0}, s{sROLE}")
    e(f"s_or_b32 s{sT0}, s{sT0}, s{sRS}")
    e(f"s_or_b32 s{sT0}, s{sT0}, s{sRS+1}")
    e("s_cbranch_scc1 L_v_next2")
    e(f"ds_read_b128 v[{vP}:{vP+3}], v{vPW}")
    e("s_waitcnt lgkmcnt(1)")
    e(f"v_readfirstlane_b32 s{sLND}, v{vPL}")
    e(f"s_cmp_ge_i32 s{sLND}, s{sNK}")
    e("s_cbranch_scc1 L_v_lrd")
    poll("L_v_lpoll")
    lab("L_v_lrd")
    for x in VR: e(x)
    def fin_j(j):
        r = []
        for k in range(4):
            q = vO + 8 * j + 2 * k
            r.append(f"v_pk_mul_f32 v[{q}:{q+1}], v[{q}:{q+1}], v[{vINV}:{vINV+1}] op_sel_hi:[1,0]")
        for k in range(4):
            r.append(f"v_cvt_pk_bf16_f32 v{vKF+4*j+k}, v{vO+8*j+2*k}, v{vO+8*j+2*k+1}")
        r.append(f"global_store_dwordx4 v{vOA}, v[{vKF+4*j}:{vKF+4*j+3}], s[{sOUT}:{sOUT+1}] offset:{64*j}{OST}")
        return r
    lab("L_v_lpv")
    f0 = fin_j(0)
    for i in range(8):
        e(f"s_waitcnt lgkmcnt({14-2*i})")
        e(PV[i])
        if i == 5: e(f0[0]); e(f0[1])
        if i == 6: e(f0[2]); e(f0[3])
    stamp(2)
    for x in f0[4:] + fin_j(1) + fin_j(2) + fin_j(3): e(x)
    e(f"ds_write_b32 v{vFW}, v{vFV}")
    e(FIN)

lab("L_v_resc")
e(f"s_bitset0_b64 s[{sRS}:{sRS+1}], s{sT0}")
alpha_addr()
e("s_waitcnt vmcnt(0)")
e(f"global_load_dword v{vAL}, v{vT1}, s[{sWS}:{sWS+1}] sc1")
e("s_waitcnt vmcnt(0)")
scale_o(vAL)
e("s_branch L_v_top2")

lab("L_v_merge")
c("only once no rescale is pending; the reference max stays, so the partial's max must not be far above it")
e(f"s_cmp_eq_u64 s[{sRS}:{sRS+1}], 0")
e("s_cbranch_scc0 L_v_top3")
lab("L_c_merge")
e(f"s_mul_i32 s{sT0}, s{sCI}, {MBS}")
e(f"s_add_u32 s{sT0}, s{sT0}, {MB}")
e(f"v_and_b32 v{vT1}, 15, v{vLANE}")
e(f"v_lshl_add_u32 v{vT0}, v{vLANE}, 4, s{sT0}")
e(f"v_lshl_add_u32 v{vT1}, v{vT1}, 3, s{sT0}")
e("s_waitcnt lgkmcnt(0)")
e(f"ds_write_b32 v{vFW}, v{vFV}")
e(f"ds_read_b64 v[{vT4}:{vT5}], v{vT1} offset:4096")
for i in range(4):
    e(f"ds_read_b128 v[{vKF+4*i}:{vKF+4*i+3}], v{vT0} offset:{1024*i}")
e(f"s_cmp_eq_u32 s{sPLN}, 2")
e("s_waitcnt lgkmcnt(0)")
e("s_cbranch_scc1 L_c_mfin")
e(f"v_sub_f32 v{vT4}, v{vT4}, v{vM}")
e(f"v_cmp_nge_f32 vcc, 0x41800000, v{vT4}")
e(f"s_mov_b32 s{sMRG}, 2")
e("s_nop 3")
e("s_cbranch_vccnz L_v_top3")
e("s_branch L_c_madd")
lab("L_c_mfin")
e(f"v_max_f32 v{vMN}, v{vM}, v{vT4}")
e(f"v_sub_f32 v{vAL}, v{vM}, v{vMN}")
e(f"v_sub_f32 v{vT4}, v{vT4}, v{vMN}")
e(f"v_exp_f32 v{vAL}, v{vAL}")
e("s_nop 0")
e(f"v_mul_f32 v{vLS}, v{vLS}, v{vAL}")
scale_o(vAL)
lab("L_c_madd")
e(f"v_exp_f32 v{vT4}, v{vT4}")
e(f"s_mov_b32 s{sMRG}, 0")
e(f"v_mul_f32 v{vT4}, v{vT4}, v{vT5}")
e(f"v_fmac_f32 v{vLS}, 0x3e800000, v{vT4}")
for r in range(16):
    t = vKF + 16 + 2 * (r % 4)
    e(f"v_lshlrev_b32 v{t}, 16, v{vKF+r}")
    e(f"v_and_b32 v{t+1}, 0xffff0000, v{vKF+r}")
    e(f"v_pk_fma_f32 v[{vO+2*r}:{vO+2*r+1}], v[{t}:{t+1}], v[{vT4}:{vT4+1}], v[{vO+2*r}:{vO+2*r+1}] op_sel_hi:[1,0,1]")
e(f"s_cmp_eq_u32 s{sPLN}, 2")
e("s_cbranch_scc1 L_c_store")
if a.last: inv_pre()
e("s_branch L_v_top3")
lab("L_c_mwait0")
e(f"s_mov_b32 s{sPLN}, 2")
lab("L_c_mwait")
e(f"ds_read_b64 v[{vPL}:{vPL+1}], v{vPA}")
e("s_waitcnt lgkmcnt(0)")
e(f"v_readfirstlane_b32 s{sMBF}, v{vPL+1}")
e(f"s_cmp_lg_u32 s{sMBF}, 0")
e("s_cbranch_scc1 L_c_merge")
spin_tail("L_c_mwait")

def ws_base(sb):
    e(f"s_lshl3_add_u32 s{sT0}, s{sb}, s{sH}")
    e(f"s_lshl_b32 s{sT0}, s{sT0}, 9")
    if WS0: e(f"s_add_u32 s{sT0}, s{sT0}, {WS0}")

lab("L_publish")
if "nopub" in DBG: e("s_endpgm")
e(f"v_lshl_add_u32 v{vT2}, v{vLANE}, 4, s{sQO}")
e(f"s_lshl_b32 s{sT2}, s{sPB}, 2")
e(f"v_mov_b32 v{vT3}, s{sT2}")
e(f"v_lshlrev_b32 v{vT4}, 1, v{vT3}")
e(f"v_add_u32 v{vT4}, {CTRL+68}, v{vT4}")
e(f"ds_read_b32 v{vT4}, v{vT4}")
ws_base(sPB)
e(f"s_lshl2_add_u32 s{sT1}, s{sCI}, s{sT0}")
e(f"v_mov_b32 v{vT5}, s{sT1}")
e(f"s_lshl_b32 s{sT1}, s{sCI}, 7")
e(f"s_add_u32 s{sT0}, s{sT0}, s{sT1}")
e(f"v_lshl_add_u32 v{vT1}, v{vLANE}, 3, s{sT0}")
e(f"s_getreg_b32 s{sT2}, hwreg(HW_REG_XCC_ID, 0, 4)")
e(f"s_lshl_b32 s{sT2}, s{sT2}, 4")
e(f"s_or_b32 s{sT2}, s{sT2}, s{sH}")
e(f"s_or_b32 s{sT2}, s{sT2}, 0x100")
e("s_waitcnt lgkmcnt(0)")
e(f"v_readfirstlane_b32 s{sT1}, v{vT4}")
e(f"s_lshr_b32 s{sT1}, s{sT1}, 16")
e(f"s_cmp_eq_u32 s{sT1}, s{sT2}")
e("s_cbranch_scc1 L_pub_fast")
e(f"global_load_dword v{vT4}, v{vT3}, s[{sDBG}:{sDBG+1}] offset:128 sc1")
e("s_waitcnt vmcnt(0)")
e(f"v_readfirstlane_b32 s{sT1}, v{vT4}")
e(f"s_lshr_b32 s{sT1}, s{sT1}, 16")
e(f"s_cmp_eq_u32 s{sT1}, s{sT2}")
e("s_cbranch_scc0 L_pub_slow")
lab("L_pub_fast")
c("the receiver runs on this die and has cleared its flag words: hand over inside the shared L2")
out_stores("", 1024)
e("s_mov_b64 exec, 0xffff")
e(f"global_store_dwordx2 v{vT1}, v[{vM}:{vM+1}], s[{sWS}:{sWS+1}]")
e(f"v_mov_b32 v{vT4}, 1")
e("s_waitcnt vmcnt(0)")
e("s_mov_b64 exec, 1")
e(f"global_store_dword v{vT5}, v{vT4}, s[{sWS}:{sWS+1}] offset:256")
e(FIN)
lab("L_pub_slow")
c("any other placement: write through to memory, then set a bit with a device-wide atomic")
out_stores(" sc1", 1024)
e("s_mov_b64 exec, 0xffff")
e(f"global_store_dwordx2 v{vT1}, v[{vM}:{vM+1}], s[{sWS}:{sWS+1}] sc1")
e(f"s_lshl1_add_u32 s{sT1}, s{sH}, s{sCI}")
e(f"s_lshl_b32 s{sT1}, 1, s{sT1}")
e(f"v_mov_b32 v{vT4}, s{sT1}")
e("s_waitcnt vmcnt(0)")
e("s_mov_b64 exec, 1")
e(f"global_atomic_add v{vT3}, v{vT4}, s[{sDBG}:{sDBG+1}]")
e(FIN)

vRW = vL
vKEY, vRK = 19, 20
lab("L_ctl0")
if a.skew:
    c("dies are not started at the same instant: the first eight workgroups post when they started")
    e(f"s_memrealtime s[{sMA}:{sMA+1}]")
    e(f"s_lshl2_add_u32 s{sT0}, s{sH}, 2")
    e(f"v_mov_b32 v{vT4}, s{sT0}")
    e(f"s_cmp_lg_u32 s{sB}, 0")
    e("s_waitcnt lgkmcnt(0)")
    e("s_cbranch_scc1 L_ctl1")
    e(f"s_or_b32 s{sT0}, s{sMA}, 0x8000")
    e(f"v_mov_b32 v{vT5}, s{sT0}")
    e("s_mov_b64 exec, 1")
    e(f"global_store_short v{vT4}, v{vT5}, s[{sDBG}:{sDBG+1}] sc1")
    e("s_mov_b64 exec, -1")
    lab("L_ctl1")
e("s_barrier")
e("s_branch L_ctl")
lab("L_planner")
e(f"s_cmp_eq_u32 s{sW}, 5")
e("s_cbranch_scc1 L_ctl0")
e(f"s_sub_u32 s{sCI}, s{sW}, 3")
e(f"s_lshl_b32 s{sSB}, s{sCI}, 8")
e(f"s_add_u32 s{sSB}, s{sSB}, {CNT}")
e(f"v_lshl_add_u32 v{vPA}, v{vLANE}, 2, s{sSB}")
e(f"s_lshl_b32 s{sT2}, s{sCI}, 7")
e(f"s_add_u32 s{sT2}, s{sT2}, {KEYS}")
e(f"v_add_u32 v{vT3}, s{sT2}, v{vT3}")
e(f"v_lshrrev_b32 v{vT4}, 5, v{vLANE}")
e(f"v_lshl_add_u32 v{vT4}, v{vT4}, 6, s{sT2}")
e(f"v_mov_b32 v{vT5}, 2048")
e("s_barrier")
e("s_waitcnt vmcnt(0)")
e(f"v_cmp_gt_i32 s[{sZQ}:{sZQ+1}], 1, v{vN}")
e(f"v_min_i32 v{vN}, v{vN}, v{vT5}")
e("s_nop 0")
e(f"v_cndmask_b32 v{vN}, v{vN}, v{vT5}, s[{sZQ}:{sZQ+1}]")
e(f"v_add_u32 v{vN}, 15, v{vN}")
e(f"v_lshrrev_b32 v{vN}, 4, v{vN}")
e(f"v_lshl_or_b32 v{vKEY}, v{vN}, 5, v{vT0}")
e(f"ds_write_b32 v{vT3}, v{vKEY}")
for i in range(4):
    e(f"ds_read_b128 v[{vKF+4*i}:{vKF+4*i+3}], v{vT4} offset:{16*i}")
e(f"v_mov_b32 v{vRK}, 0")
e(f"v_readlane_b32 s{sNB}, v{vN}, s{sB}")
e("s_waitcnt lgkmcnt(0)")
c("rank of every batch by block count; the batch of rank 31-r is the partner")
for i in range(16):
    e(f"v_sub_u32 v{vKF+i}, v{vKF+i}, v{vKEY}")
for i in range(16):
    e(f"v_alignbit_b32 v{vRK}, v{vRK}, v{vKF+i}, 31")
e(f"v_bcnt_u32_b32 v{vRK}, v{vRK}, 0")
e(f"v_mov_b32 v{vT2}, v{vRK}")
derive_nb()
e(f"v_permlane32_swap_b32 v{vRK}, v{vT2}")
e("s_nop 0")
e(f"v_add_u32 v{vRK}, v{vRK}, v{vT2}")
e("s_nop 0")
e(f"v_readlane_b32 s{sRK}, v{vRK}, s{sB}")
e(f"s_sub_u32 s{sT0}, 31, s{sRK}")
e(f"v_cmp_eq_u32 vcc, s{sT0}, v{vRK}")
e(f"s_ff1_i32_b32 s{sPB}, vcc_lo")
e(f"v_readlane_b32 s{sNP}, v{vN}, s{sPB}")
e(f"s_max_u32 s{sT0}, s{sNB}, s{sNP}")
e(f"s_min_u32 s{sT1}, s{sNB}, s{sNP}")
e(f"s_sub_u32 s{sX}, s{sT0}, s{sT1}")
e(f"s_add_u32 s{sX}, s{sX}, 2")
e(f"s_lshr_b32 s{sX}, s{sX}, 2")
e(f"s_cmp_lt_u32 s{sT0}, {4*NUM+8}")
e(f"s_cselect_b32 s{sX}, 0, s{sX}")
if a.nopair: e(f"s_mov_b32 s{sX}, 0")
e(f"s_cmp_ge_u32 s{sRK}, 16")
e(f"s_cselect_b32 s{sLO}, s{sX}, 0")
e(f"s_cselect_b32 s{sTB}, 0, s{sX}")
e(f"s_cmp_eq_u32 s{sCI}, 0")
e("s_cbranch_scc1 L_pl_norow")
e(f"s_lshl_b32 s{sT0}, s{sPB}, 9")
e(f"v_lshl_add_u32 v{vT1}, v{vLANE}, 3, s{sT0}")
e(f"global_load_dwordx2 v[{vRW}:{vRW+1}], v{vT1}, s[{sBT}:{sBT+1}]")
lab("L_pl_norow")
e(f"s_sub_u32 s{sTA}, s{sNTL}, s{sLO}")
e(f"s_add_u32 s{sT}, s{sTA}, s{sTB}")
e(f"s_mul_i32 s{sF}, s{sT}, {a.fnum}")
e(f"s_lshr_b32 s{sF}, s{sF}, 6")
e(f"s_min_u32 s{sWB}, s{sTA}, {a.UB}")
e(f"s_sub_i32 s{sF}, s{sF}, s{sWB}")
e(f"s_max_i32 s{sF}, s{sF}, s{sTB}")
e(f"s_max_i32 s{sF}, s{sF}, 1")
e(f"v_cvt_f32_u32 v{vT2}, s{sF}")
e(f"v_subrev_u32 v{vT3}, s{sWB}, v{vLANE}")
e(f"v_rcp_f32 v{vT2}, v{vT2}")
e(f"v_mul_i32_i24 v{vT4}, s{sTB}, v{vT3}")
e(f"v_add_u32 v{vT5}, s{sTB}, v{vT4}")
e(f"v_cvt_f32_i32 v{vT4}, v{vT4}")
e(f"v_cvt_f32_i32 v{vT5}, v{vT5}")
e(f"v_add_f32 v{vT4}, 0.5, v{vT4}")
e(f"v_add_f32 v{vT5}, 0.5, v{vT5}")
e(f"v_mul_f32 v{vT4}, v{vT4}, v{vT2}")
e(f"v_mul_f32 v{vT5}, v{vT5}, v{vT2}")
e(f"v_floor_f32 v{vT4}, v{vT4}")
e(f"v_floor_f32 v{vT5}, v{vT5}")
e(f"v_cmp_gt_u32 vcc, s{sF}, v{vT3}")
e(f"v_cmp_gt_f32 s[{sMBK}:{sMBK+1}], v{vT5}, v{vT4}")
e(f"s_sub_u32 s{sT0}, s{sT}, s{sNU}")
e(f"v_subrev_u32 v{vT3}, s{sNU}, v{vLANE}")
e(f"v_cmp_gt_u32 s[{sMA}:{sMA+1}], s{sT0}, v{vT3}")
e(f"s_and_b64 s[{sMBK}:{sMBK+1}], s[{sMBK}:{sMBK+1}], vcc")
e(f"s_andn2_b64 s[{sMA}:{sMA+1}], s[{sMA}:{sMA+1}], s[{sMBK}:{sMBK+1}]")
c(f"own tiles to sort: logical [NU+given, ntile); donated: the partner's logical [{NUM}, {NUM}+TB)")
mfirst = a.mfirst and not a.nosort
if mfirst:
    e(f"s_ff1_i32_b64 s{sT2}, s[{sMA}:{sMA+1}]")
else:
    e(f"s_flbit_i32_b64 s{sT2}, s[{sMA}:{sMA+1}]")
    e(f"s_sub_u32 s{sT2}, 63, s{sT2}")
e(f"s_lshl_b32 s{sT2}, s{sT2}, 8")
e(f"s_or_b32 s{sWB}, s{sT2}, 1")
e(f"s_min_u32 s{sMRG}, s{sLO}, 1")
SM = [int(x) for x in a.smart.split(",")] if a.smart else None
sV0M, sV1M, sCM, sD2, sCN = 72, 74, 76, 78, 79
if SM:
    e(f"s_lshl_b32 s{sD2}, s{sLO}, 1")
    e(f"s_sub_u32 s{sCN}, s{sNTL}, {NUM+1}")
    e(f"s_mov_b32 s{sLO}, 0")
e(f"s_add_u32 s{sLO}, s{sLO}, s{sNU}")
e(f"s_sub_u32 s{sHI}, s{sNTL}, s{sLO}")
e(f"s_sub_u32 s{sT3}, s{sNTL}, 1")
e(f"s_mov_b32 s{sLBASE}, {LA}")
e(f"s_cmp_eq_u32 s{sCI}, 0")
e("s_cbranch_scc1 L_pl_a")
e(f"s_mov_b32 s{sLO}, {NUM}")
e(f"s_mov_b32 s{sHI}, s{sTB}")
e(f"s_mov_b32 s{sT3}, -1")
if SM:
    e(f"s_lshl_b32 s{sD2}, s{sTB}, 1")
    e(f"s_add_u32 s{sCN}, s{sNP}, 1")
    e(f"s_lshr_b32 s{sCN}, s{sCN}, 1")
    e(f"s_sub_u32 s{sCN}, s{sCN}, {NUM+1}")
e(f"s_mov_b32 s{sLBASE}, {LB}")
e(f"s_mov_b64 s[{sMA}:{sMA+1}], s[{sMBK}:{sMBK+1}]")
e("s_branch L_pl_sort")
lab("L_pl_a")
e(f"s_lshl_b32 s{sT0}, s{sT}, 8")
e(f"s_or_b32 s{sT0}, s{sT0}, s{sMRG}")
e(f"v_mov_b32 v{vT2}, s{sMA}")
e(f"v_mov_b32 v{vT3}, s{sMA+1}")
e(f"v_mov_b32 v{vT4}, s{sT0}")
e(f"v_mov_b32 v{vT5}, s{sWB}")
e(f"v_mov_b32 v{vT1}, {REC0}")
e(f"ds_write_b128 v{vT1}, v[{vT2}:{vT5}]")
lab("L_pl_sort")
e(f"v_subrev_u32 v{vT0}, s{sLO}, v{vLANE}")
e(f"v_cmp_gt_u32 vcc, s{sHI}, v{vT0}")
e(f"v_mov_b32 v{vT5}, 1")
e("s_waitcnt vmcnt(0)")
if SM:
    c("blocks to hand over: the first 2x candidates lying in the part of memory swept while the helper works on them")
    e(f"s_mov_b64 s[{sV0M}:{sV0M+1}], 0")
    e(f"s_mov_b64 s[{sV1M}:{sV1M+1}], 0")
    e(f"s_cmp_eq_u32 s{sD2}, 0")
    e("s_cbranch_scc1 L_pl_nod")
    e(f"s_movk_i32 s{sT0}, {SM[1]-SM[0]}")
    e(f"v_subrev_u32 v{vT2}, {SM[0]}, v{vRW}")
    e(f"v_subrev_u32 v{vT3}, {SM[0]}, v{vRW+1}")
    e(f"s_bfm_b64 s[{sCM}:{sCM+1}], s{sCN}, {NUM}")
    e(f"v_cmp_gt_u32 s[{sV0M}:{sV0M+1}], s{sT0}, v{vT2}")
    e(f"v_cmp_gt_u32 s[{sV1M}:{sV1M+1}], s{sT0}, v{vT3}")
    e(f"s_and_b64 s[{sV0M}:{sV0M+1}], s[{sV0M}:{sV0M+1}], s[{sCM}:{sCM+1}]")
    e(f"s_and_b64 s[{sV1M}:{sV1M+1}], s[{sV1M}:{sV1M+1}], s[{sCM}:{sCM+1}]")
    e(f"s_bcnt1_i32_b64 s{sT0}, s[{sV0M}:{sV0M+1}]")
    e(f"s_bcnt1_i32_b64 s{sT1}, s[{sV1M}:{sV1M+1}]")
    e(f"s_add_u32 s{sT1}, s{sT1}, s{sT0}")
    e(f"s_cmp_lt_u32 s{sT1}, s{sD2}")
    e(f"s_cselect_b64 s[{sV0M}:{sV0M+1}], s[{sCM}:{sCM+1}], s[{sV0M}:{sV0M+1}]")
    e(f"s_cselect_b64 s[{sV1M}:{sV1M+1}], s[{sCM}:{sCM+1}], s[{sV1M}:{sV1M+1}]")
    e(f"s_cselect_b32 s{sT0}, s{sCN}, s{sT0}")
    e(f"v_mbcnt_lo_u32_b32 v{vT2}, s{sV0M}, 0")
    e(f"v_mbcnt_lo_u32_b32 v{vT3}, s{sV1M}, 0")
    e(f"v_mbcnt_hi_u32_b32 v{vT2}, s{sV0M+1}, v{vT2}")
    e(f"v_mbcnt_hi_u32_b32 v{vT3}, s{sV1M+1}, v{vT3}")
    e(f"s_sub_u32 s{sT0}, s{sD2}, s{sT0}")
    e(f"v_cmp_gt_i32 s[{sCM}:{sCM+1}], s{sD2}, v{vT2}")
    e(f"s_and_b64 s[{sV0M}:{sV0M+1}], s[{sV0M}:{sV0M+1}], s[{sCM}:{sCM+1}]")
    e(f"v_cmp_gt_i32 s[{sCM}:{sCM+1}], s{sT0}, v{vT3}")
    e(f"s_and_b64 s[{sV1M}:{sV1M+1}], s[{sV1M}:{sV1M+1}], s[{sCM}:{sCM+1}]")
    lab("L_pl_nod")
    e(f"s_cmp_lg_u32 s{sCI}, 0")
    e("s_cbranch_scc1 L_pl_val")
    e(f"s_andn2_b64 s[{sV0M}:{sV0M+1}], vcc, s[{sV0M}:{sV0M+1}]")
    e(f"s_andn2_b64 s[{sV1M}:{sV1M+1}], vcc, s[{sV1M}:{sV1M+1}]")
    lab("L_pl_val")
X0 = f"s[{sV0M}:{sV0M+1}]" if SM else "vcc"
X1 = f"s[{sV1M}:{sV1M+1}]"
if a.nosort:
    e(f"v_lshlrev_b32 v{vT2}, 1, v{vT0}")
    e(f"v_add_u32 v{vT3}, 1, v{vT2}")
else:
    c("counting sort of the block ids into 64 buckets of ascending physical address")
    e(f"v_lshrrev_b32 v{vT0}, 6, v{vRW}")
    e(f"v_lshrrev_b32 v{vT1}, 6, v{vRW+1}")
    e(f"v_cmp_eq_u32 s[{sRK+2}:{sRK+3}], s{sT3}, v{vLANE}")
    if mfirst:
        e(f"v_med3_u32 v{vT0}, v{vT0}, 1, 63")
        e(f"v_med3_u32 v{vT1}, v{vT1}, 1, 63")
    else:
        e(f"v_min_u32 v{vT0}, 62, v{vT0}")
        e(f"v_min_u32 v{vT1}, 62, v{vT1}")
    fb = 0 if mfirst else 63
    e(f"v_cndmask_b32 v{vT0}, v{vT0}, {fb}, s[{sRK+2}:{sRK+3}]")
    e(f"v_cndmask_b32 v{vT1}, v{vT1}, {fb}, s[{sRK+2}:{sRK+3}]")
    e(f"v_lshlrev_b32 v{vT0}, 2, v{vT0}")
    e(f"v_lshlrev_b32 v{vT1}, 2, v{vT1}")
    e(f"v_add_u32 v{vKF}, s{sSB}, v{vT0}")
    e(f"v_add_u32 v{vKF+1}, s{sSB}, v{vT1}")
    e(f"s_mov_b64 exec, {X0}")
    e(f"ds_add_rtn_u32 v{vT2}, v{vKF}, v{vT5}")
    if SM: e(f"s_mov_b64 exec, {X1}")
    e(f"ds_add_rtn_u32 v{vT3}, v{vKF+1}, v{vT5}")
    e("s_mov_b64 exec, -1")
    e(f"ds_read_b32 v{vT4}, v{vPA}")
    e("s_waitcnt lgkmcnt(0)")
    e(f"v_mov_b32 v{vKF+2}, v{vT4}")
    for sh in (1, 2, 4, 8):
        e("s_nop 1")
        e(f"v_add_u32_dpp v{vT4}, v{vT4}, v{vT4} row_shr:{sh} row_mask:0xf bank_mask:0xf bound_ctrl:0")
    e("s_nop 1")
    e(f"v_add_u32_dpp v{vT4}, v{vT4}, v{vT4} row_bcast:15 row_mask:0xa bank_mask:0xf")
    e("s_nop 1")
    e(f"v_add_u32_dpp v{vT4}, v{vT4}, v{vT4} row_bcast:31 row_mask:0xc bank_mask:0xf")
    e(f"v_sub_u32 v{vT4}, v{vT4}, v{vKF+2}")
    e(f"ds_bpermute_b32 v{vT0}, v{vT0}, v{vT4}")
    e(f"ds_bpermute_b32 v{vT1}, v{vT1}, v{vT4}")
    e("s_waitcnt lgkmcnt(0)")
    e(f"v_add_u32 v{vT2}, v{vT2}, v{vT0}")
    e(f"v_add_u32 v{vT3}, v{vT3}, v{vT1}")
e(f"v_lshlrev_b32 v{vRW}, 15, v{vRW}")
e(f"v_lshlrev_b32 v{vRW+1}, 15, v{vRW+1}")
e(f"v_lshl_add_u32 v{vT2}, v{vT2}, 2, s{sLBASE}")
e(f"v_lshl_add_u32 v{vT3}, v{vT3}, 2, s{sLBASE}")
e(f"s_mov_b64 exec, {X0}")
e(f"ds_write_b32 v{vT2}, v{vRW}")
if SM: e(f"s_mov_b64 exec, {X1}")
e(f"ds_write_b32 v{vT3}, v{vRW+1}")
e("s_mov_b64 exec, -1")
c("place the sorted tiles at their stream positions; flags: 1 valid, 2 masked, 4 last of batch, 8 last of stream")
e(f"v_mbcnt_lo_u32_b32 v{vT0}, s{sMA}, 0")
e(f"v_mbcnt_hi_u32_b32 v{vT0}, s{sMA+1}, v{vT0}")
e(f"v_lshl_add_u32 v{vT0}, v{vT0}, 3, s{sLBASE}")
e(f"ds_read_b64 v[{vT2}:{vT3}], v{vT0}")
e(f"s_lshr_b32 s{sT0}, s{sWB}, 8")
e(f"s_sub_u32 s{sT1}, s{sT}, 1")
e(f"v_cmp_eq_u32 vcc, s{sT0}, v{vLANE}")
e(f"v_cmp_eq_u32 s[{sRK+2}:{sRK+3}], s{sT1}, v{vLANE}")
e(f"v_cmp_eq_u32 s[{sT2}:{sT2+1}], {G-1}, v{vLANE}")
e(f"v_cndmask_b32 v{vT4}, 1, 3, vcc")
e(f"v_cndmask_b32 v{vT5}, 0, 12, s[{sRK+2}:{sRK+3}]")
e(f"v_cndmask_b32 v{vT1}, 0, 4, s[{sT2}:{sT2+1}]")
e(f"v_or3_b32 v{vT4}, v{vT4}, v{vT5}, v{vT1}")
e(f"v_lshlrev_b32 v{vT0}, 3, v{vLANE}")
e(f"v_add_u32 v{vT0}, {SL}, v{vT0}")
e("s_waitcnt lgkmcnt(0)")
e(f"v_or_b32 v{vT2}, v{vT2}, v{vT4}")
e(f"s_mov_b64 exec, s[{sMA}:{sMA+1}]")
e(f"ds_write_b64 v{vT0}, v[{vT2}:{vT3}]")
e("s_mov_b64 exec, -1")
lab("L_pl_done")
e(f"s_cmp_lg_u32 s{sMRG}, 0")
e("s_cbranch_scc1 L_fetch")
e(f"s_cmp_eq_u32 s{sTB}, 0")
e("s_cbranch_scc1 L_fin")
c("become the consumer of the donated tiles")
load_q(sPB)
e(f"s_mov_b64 s[{sMALL}:{sMALL+1}], s[{sMBK}:{sMBK+1}]")
e(f"s_mov_b32 s{sM}, s{sMBK}")
e(f"s_and_b32 s{sM+1}, s{sMBK+1}, {RHI:#x}")
e(f"s_mov_b32 s{sTTC}, s{sT}")
e(f"s_min_u32 s{sTB1}, s{sT}, {G}")
e(f"s_mov_b32 s{sROLE}, 1")
e(f"s_mov_b32 s{sPLN}, 1")
e(f"s_lshr_b32 s{sT3}, s{sZQ}, s{sPB}")
e(f"s_and_b32 s{sT3}, s{sT3}, 1")
e("s_branch L_csetup")

lab("L_fetch")
e(f"s_cmp_lg_u32 s{sCI}, 0")
e("s_cbranch_scc1 L_fin")
rows_off(sB)
if a.otouch >= 0:
    c("make the lines that will carry the partial valid in L2 (a later read of write-only lines would go to memory)")
    e(f"v_lshl_add_u32 v{vT4}, v{vLANE}, 7, s{sQO}")
    e(f"global_load_dword v{vPF}, v{vT4}, s[{sOUT}:{sOUT+1}] {a.ofl.replace('+', ' ')}")
ws_base(sB)
e(f"v_lshl_add_u32 v{vT1}, v{vT0}, 3, s{sT0}")
e(f"v_mov_b32 v{vFW}, s{sT0}")
e(f"s_lshl_b32 s{sT2}, s{sB}, 2")
e(f"v_mov_b32 v{vT2}, s{sT2}")
e(f"v_mov_b32 v{vPA}, {CTRL+16}")
e("s_mov_b64 exec, 1")
e(f"s_mul_i32 s{sNEED}, s{sT}, {a.pollnum}")
e(f"s_lshr_b32 s{sNEED}, s{sNEED}, 5")
e(f"s_lshl_b32 s{sT3}, s{sH}, 1")
e(f"s_mov_b32 s{sMBF}, 0")
c("wait until wave 5 has cleared the flag words and the stream is far enough")
lab("L_f_wait")
e(f"ds_read_b64 v[{vPL}:{vPL+1}], v{vPA}")
e("s_waitcnt lgkmcnt(0)")
e(f"v_readfirstlane_b32 s{sLND}, v{vPL}")
e(f"v_readfirstlane_b32 s{sT0}, v{vPL+1}")
e(f"s_cmp_ge_i32 s{sLND}, s{sNEED}")
e(f"s_cselect_b32 s{sT0}, s{sT0}, 0")
e(f"s_cmp_lg_u32 s{sT0}, 0")
e("s_cbranch_scc1 L_f_poll")
spin_tail("L_f_wait", 8)
lab("L_f_poll")
if "nopoll" in DBG: e("s_branch L_f_got")
e(f"global_load_dwordx2 v[{vPL}:{vPL+1}], v{vFW}, s[{sWS}:{sWS+1}] offset:256 sc1")
e(f"s_add_u32 s{sMBF}, s{sMBF}, 1")
e(f"s_and_b32 s{sT0}, s{sMBF}, 3")
e(f"s_mov_b32 s{sT2}, 0")
e("s_cbranch_scc1 L_f_nodbg")
e(f"global_load_dword v{vT3}, v{vT2}, s[{sDBG}:{sDBG+1}] sc1")
e("s_waitcnt vmcnt(0)")
e(f"v_readfirstlane_b32 s{sT2}, v{vT3}")
e(f"s_lshr_b32 s{sT2}, s{sT2}, s{sT3}")
lab("L_f_nodbg")
e("s_waitcnt vmcnt(0)")
e(f"v_lshl_or_b32 v{vPL}, v{vPL+1}, 1, v{vPL}")
e("s_nop 0")
e(f"v_readfirstlane_b32 s{sT0}, v{vPL}")
e(f"s_or_b32 s{sT0}, s{sT0}, s{sT2}")
e(f"s_and_b32 s{sT0}, s{sT0}, 3")
e(f"s_cmp_eq_u32 s{sT0}, 3")
e("s_cbranch_scc1 L_f_got")
spin_tail("L_f_poll", a.psleep)
lab("L_f_got")
e("s_mov_b64 exec, -1")
c("a half that came through memory: acquire at device scope before reading it")
e(f"s_and_b32 s{sT2}, s{sT2}, 3")
e("s_cbranch_scc0 L_f_ld")
e("buffer_inv sc1")
e("s_waitcnt vmcnt(0)")
lab("L_f_ld")
e(f"v_lshl_add_u32 v{vT4}, v{vLANE}, 4, s{sQO}")
e(f"v_add_u32 v{vT5}, 4096, v{vT4}")
FLD = " " + a.fld if a.fld != "none" else ""
for cc in range(2):
    if "nofetch" in DBG:
        e(f"v_mov_b32 v{vM+2*cc}, 0"); e(f"v_mov_b32 v{vM+2*cc+1}, 0")
        continue
    e(f"global_load_dwordx2 v[{vM+2*cc}:{vM+2*cc+1}], v{vT1}, s[{sWS}:{sWS+1}] offset:{128*cc}{FLD}")
    for j in range(4):
        r = vKF + 16 * cc + 4 * j
        e(f"global_load_dwordx4 v[{r}:{r+3}], v{vT4+cc}, s[{sOUT}:{sOUT+1}] offset:{1024*j}{FLD}")
e(f"v_lshlrev_b32 v{vT2}, 4, v{vLANE}")
e(f"v_add_u32 v{vT2}, {MB}, v{vT2}")
e(f"v_lshlrev_b32 v{vT0}, 3, v{vT0}")
e(f"v_add_u32 v{vT0}, {MB}, v{vT0}")
e(f"v_mov_b32 v{vPL}, {CTRL+4}")
e(f"v_mov_b32 v{vT3}, 1")
for cc in range(2):
    e(f"s_waitcnt vmcnt({5-5*cc})")
    for j in range(4):
        r = vKF + 16 * cc + 4 * j
        e(f"ds_write_b128 v{vT2}, v[{r}:{r+3}] offset:{MBS*cc + 1024*j}")
    e(f"ds_write_b64 v{vT0}, v[{vM+2*cc}:{vM+2*cc+1}] offset:{MBS*cc + 4096}")
    e(f"ds_write_b32 v{vPL}, v{vT3} offset:{8*cc}")
e(FIN)

c("wave 5: workgroups that share an L2 post their remaining work; one that lags prefetches deeper")
lab("L_ctl")
e(f"v_mov_b32 v{vT1}, {REC0}")
e(f"v_mov_b32 v{vPA}, {CTRL+32}")
e(f"v_mov_b32 v{vFW}, {DEPW}")
e(f"s_lshl_b32 s{sT0}, s{sB}, 2")
e(f"v_mov_b32 v{vG}, s{sT0}")
e(f"v_mov_b32 v{vFV}, v{vT3}")
lo = sum((XT[i] & 255) << (8 * i) for i in range(4)); hi = sum((XT[4 + i] & 255) << (8 * i) for i in range(4))
e(f"s_getreg_b32 s{sT0}, hwreg(HW_REG_XCC_ID, 0, 3)")
e(f"s_mov_b32 s{sM}, {lo:#x}")
e(f"s_mov_b32 s{sM+1}, {hi:#x}")
e(f"s_lshl_b32 s{sT0}, s{sT0}, 3")
e(f"s_lshr_b64 s[{sM}:{sM+1}], s[{sM}:{sM+1}], s{sT0}")
e(f"s_sext_i32_i8 s{sBO}, s{sM}")
lab("L_g_plan")
e(f"ds_read_b128 v[{vT2}:{vT5}], v{vT1}")
e("s_waitcnt lgkmcnt(0)")
e(f"v_readfirstlane_b32 s{sT0}, v{vT5}")
e(f"v_readfirstlane_b32 s{sT}, v{vT4}")
e(f"s_cmp_lg_u32 s{sT0}, 0")
e("s_cbranch_scc1 L_g_go")
spin_tail("L_g_plan", 8)
lab("L_g_go")
e(f"s_and_b32 s{sMRG}, s{sT}, 1")
e("s_cbranch_scc0 L_g_nores")
c("a partial is expected: clear its flag words before anything is posted")
ws_base(sB)
e(f"v_mov_b32 v{vT0}, s{sT0}")
e(f"v_mov_b32 v{vT2}, 0")
e(f"v_mov_b32 v{vT3}, 0")
e(f"v_mov_b32 v{vT4}, {CTRL+20}")
e(f"v_mov_b32 v{vT5}, 1")
e("s_mov_b64 exec, 1")
e(f"global_store_dwordx2 v{vT0}, v[{vT2}:{vT3}], s[{sWS}:{sWS+1}] offset:256")
e("s_waitcnt vmcnt(0)")
e(f"ds_write_b32 v{vT4}, v{vT5}")
e("s_mov_b64 exec, -1")
lab("L_g_nores")
e(f"s_and_b32 s{sT0}, s{sDBG}, 127")
e("s_cbranch_scc1 L_fin")
c("posted word: remaining units + 1 | head << 16 | die << 20 | flags cleared << 24")
e(f"s_getreg_b32 s{sFB}, hwreg(HW_REG_XCC_ID, 0, 4)")
e(f"s_lshl4_add_u32 s{sFB}, s{sMRG}, s{sFB}")
e(f"s_lshl4_add_u32 s{sFB}, s{sFB}, s{sH}")
e(f"s_lshl_b32 s{sFB}, s{sFB}, 16")
e(f"s_lshr_b32 s{sT}, s{sT}, 8")
e(f"s_lshl1_add_u32 s{sTN}, s{sT}, 1")
e(f"v_lshlrev_b32 v{vT1}, 1, v{vFV}")
e(f"v_add_u32 v{vT1}, {CTRL+68}, v{vT1}")
e(f"v_mov_b32 v{vT2}, s{sFB}")
e("s_mov_b64 exec, 1")
e(f"global_store_dword v{vG}, v{vT2}, s[{sDBG}:{sDBG+1}] offset:128")
e("s_mov_b64 exec, -1")
if "v" in a.tlb: e(f"global_load_dword v{vPF}, v{vTL}, s[{sV}:{sV+1}] nt")
if "prog2" in DBG: e("v_mov_b32 v50, 0")
if a.skew:
    e(f"s_mov_b32 s{sNEED}, 3")
    e(f"s_cmp_lt_u32 s{sT}, 8")
    e("s_cbranch_scc1 L_fin")
    lab("L_g_sw")
    e(f"ds_read_b32 v{vPL}, v{vPA}")
    e("s_waitcnt lgkmcnt(0)")
    e(f"v_readfirstlane_b32 s{sLND}, v{vPL}")
    e(f"s_cmp_ge_i32 s{sLND}, s{sNEED}")
    e("s_cbranch_scc1 L_g_sa")
    spin_tail("L_g_sw", 1)
    lab("L_g_sa")
    e(f"global_load_dword v{vT0}, v{vFV}, s[{sDBG}:{sDBG+1}] sc1")
    e("s_waitcnt vmcnt(0)")
    e(f"v_cmp_gt_i32 vcc, 0, v{vT0}")
    e(f"v_lshrrev_b32 v{vT0}, 16, v{vT0}")
    e(f"v_sub_u32 v{vT0}, s{sMA}, v{vT0}")
    e(f"v_bfe_i32 v{vT0}, v{vT0}, 0, 15")
    e(f"v_cndmask_b32 v{vT0}, 0, v{vT0}, vcc")
    for sh in (1, 2, 4):
        e("s_nop 1")
        op = "v_max_i32_dpp" if "ampmax" in DBG else "v_add_u32_dpp"
        e(f"{op} v{vT0}, v{vT0}, v{vT0} row_shr:{sh} row_mask:0xf bank_mask:0xf bound_ctrl:0")
    e("s_nop 0")
    e(f"v_readlane_b32 s{sT0}, v{vT0}, 7")
    if "ampmax" in DBG or "ampmean" in DBG:
        e(f"s_mul_i32 s{sMBK}, s{sT0}, {20 if 'ampmax' in DBG else 3}")
        e(f"s_max_i32 s{sMBK}, s{sMBK}, 0")
        e(f"s_add_u32 s{sMBK}, s{sMBK}, 3500")
        lab("L_amp")
        e("s_sleep 4")
        e(f"s_memrealtime s[{sLO}:{sLO+1}]")
        e("s_waitcnt lgkmcnt(0)")
        e(f"s_sub_u32 s{sT0}, s{sLO}, s{sMA}")
        e(f"s_cmp_lt_u32 s{sT0}, s{sMBK}")
        e("s_cbranch_scc1 L_amp")
        e("s_endpgm")
    e(f"s_mul_i32 s{sT0}, s{sT0}, {a.skew}")
    e(f"s_ashr_i32 s{sT0}, s{sT0}, 9")
    e(f"s_add_u32 s{sBO}, s{sBO}, s{sT0}")
e(f"s_mov_b32 s{sNEED}, {a.cstart}")
lab("L_g_next")
e(f"s_sub_u32 s{sT0}, s{sTN}, s{sNEED}")
e(f"s_cmp_lt_i32 s{sT0}, {a.cstop}")
e("s_cbranch_scc1 L_fin")
lab("L_g_w")
e(f"ds_read_b32 v{vPL}, v{vPA}")
e("s_waitcnt lgkmcnt(0)")
e(f"v_readfirstlane_b32 s{sLND}, v{vPL}")
e(f"s_cmp_ge_i32 s{sLND}, s{sNEED}")
e("s_cbranch_scc1 L_g_a")
spin_tail("L_g_w", 1)
lab("L_g_a")
if "prog2" in DBG:
    e(f"s_memrealtime s[{sST+2}:{sST+3}]")
    e(f"s_lshr_b32 m0, s{sLND}, 1")
    e("s_waitcnt lgkmcnt(0)")
    e(f"v_writelane_b32 v50, s{sST+2}, m0")
e(f"s_sub_u32 s{sNK}, s{sTN}, s{sLND}")
e(f"s_or_b32 s{sT0}, s{sNK}, s{sFB}")
e(f"v_mov_b32 v{vT2}, s{sT0}")
e("s_mov_b64 exec, 1")
e(f"global_store_dword v{vG}, v{vT2}, s[{sDBG}:{sDBG+1}] offset:128")
e("s_mov_b64 exec, -1")
e(f"global_load_dword v{vT0}, v{vFV}, s[{sDBG}:{sDBG+1}] offset:128 sc1")
e(f"s_add_u32 s{sNEED}, s{sLND}, {a.cstep}")
e(f"s_min_i32 s{sT3}, s{sBO}, 1")
e(f"s_max_i32 s{sT3}, s{sT3}, -1")
e(f"s_sub_u32 s{sBO}, s{sBO}, s{sT3}")
e("s_waitcnt vmcnt(0)")
e(f"ds_write_b32 v{vT1}, v{vT0}")
e(f"v_and_b32 v{vT0}, 0xffff, v{vT0}")
e(f"v_cmp_ne_u32 vcc, 0, v{vT0}")
for sh in (1, 2, 4, 8):
    e("s_nop 1")
    e(f"v_add_u32_dpp v{vT0}, v{vT0}, v{vT0} row_shr:{sh} row_mask:0xf bank_mask:0xf bound_ctrl:0")
e("s_nop 1")
e(f"v_add_u32_dpp v{vT0}, v{vT0}, v{vT0} row_bcast:15 row_mask:0xa bank_mask:0xf")
e(f"s_bcnt1_i32_b32 s{sT1}, vcc_lo")
e(f"v_readlane_b32 s{sT0}, v{vT0}, 31")
e(f"s_mul_i32 s{sT2}, s{sNK}, s{sT1}")
e(f"s_sub_u32 s{sT2}, s{sT2}, s{sT0}")
e(f"s_lshl_b32 s{sT2}, s{sT2}, 2")
for th, inc, cmp in ((CTH[0], -1, "lt"), (CTH[1], 1, "gt"), (CTH[2], 1, "gt")):
    e(f"s_mul_i32 s{sT0}, s{sT1}, {th - a.cbias}")
    e(f"s_cmp_{cmp}_i32 s{sT2}, s{sT0}")
    e(f"s_cselect_b32 s{sT0}, {inc}, 0")
    e(f"s_add_u32 s{sT3}, s{sT3}, s{sT0}")
e(f"s_max_i32 s{sT3}, s{sT3}, -1")
e(f"s_min_i32 s{sT3}, s{sT3}, 2")
e(f"v_mov_b32 v{vT2}, s{sT3}")
e(f"ds_write_b32 v{vFW}, v{vT2}")
e("s_branch L_g_next")

lab("L_fin")
if a.amp:
    if a.amp == "end":
        e(f"s_sub_u32 s{sT0}, s{sW}, 1")
        e(f"s_cmp_gt_u32 s{sT0}, 1")
    else:
        e(f"s_cmp_lg_u32 s{sW}, 0")
    e("s_cbranch_scc1 L_end")
    if a.ampwg >= 0:
        e(f"s_cmp_lg_u32 s2, {a.ampwg}")
        e("s_cbranch_scc1 L_end")
    e("s_waitcnt vmcnt(0) lgkmcnt(0)")
    if a.amp[:2] != "t0":
        e(f"s_memrealtime s[{sST+2}:{sST+3}]")
        e("s_waitcnt lgkmcnt(0)")
    e(f"s_sub_u32 s{sT1}, s{sST+2}, s{sST}")
    if a.amp[:2] != "t0": e(f"s_sub_u32 s{sT1}, s{sT1}, 2700")
    e(f"s_max_i32 s{sT1}, s{sT1}, 0")
    e(f"s_min_i32 s{sT1}, s{sT1}, 2000")
    e(f"s_mul_i32 s{sT1}, s{sT1}, 10")
    e(f"s_add_u32 s{sT1}, s{sT1}, 3500")
    lab("L_ampw")
    e("s_sleep 2")
    e(f"s_memrealtime s[{sST+2}:{sST+3}]")
    e("s_waitcnt lgkmcnt(0)")
    e(f"s_sub_u32 s{sT0}, s{sST+2}, s{sST}")
    e(f"s_cmp_lt_u32 s{sT0}, s{sT1}")
    e("s_cbranch_scc1 L_ampw")
if "prog2" in DBG or "prog3" in DBG:
    e(f"s_cmp_lg_u32 s{sW}, {5 if 'prog2' in DBG else 0}")
    e("s_cbranch_scc1 L_np2")
    e(f"s_lshl_b32 s{sT0}, s2, 8")
    e(f"s_add_u32 s{sT0}, s{sT0}, 0x400000")
    e(f"v_lshl_add_u32 v51, v{vLANE}, 2, s{sT0}")
    e(f"global_store_dword v51, v50, s[{sWS}:{sWS+1}]")
    lab("L_np2")
if a.stamps:
    e(f"s_cmp_gt_u32 s{sW}, 2")
    e("s_cbranch_scc1 L_end")
    e("s_mov_b64 exec, -1")
    e("s_waitcnt vmcnt(0) lgkmcnt(0)")
    stamp(3)
    e(f"s_getreg_b32 s{sT0}, hwreg(HW_REG_XCC_ID)")
    e("s_waitcnt lgkmcnt(0)")
    for i in range(8):
        e(f"v_mov_b32 v{64+i}, s{sST+i}")
    e(f"v_mov_b32 v72, s{sT0}")
    e(f"s_sub_u32 s{sT1}, {SPIN}, s{sSPIN}")
    e(f"v_mov_b32 v73, s{sT1}")
    e(f"v_mov_b32 v74, s{sT}")
    e(f"v_mov_b32 v75, 0")
    e(f"s_mul_i32 s{sT0}, s2, {NW}")
    e(f"s_add_u32 s{sT0}, s{sT0}, s{sW}")
    e(f"s_lshl_b32 s{sT0}, s{sT0}, 6")
    e(f"v_mov_b32 v80, s{sT0}")
    e("s_mov_b64 exec, 1")
    e(f"global_store_dwordx4 v80, v[64:67], s[{sWS}:{sWS+1}]")
    e(f"global_store_dwordx4 v80, v[68:71], s[{sWS}:{sWS+1}] offset:16")
    e(f"global_store_dwordx4 v80, v[72:75], s[{sWS}:{sWS+1}] offset:32")
lab("L_end")
e("s_endpgm")
if a.wake:
    out.append(".p2align 8")
    lab("L_pad")
    out.append(f".fill {64 * a.wake}, 4, 0xbf810000")
out.append('.section .rodata,"a"')
out.append(".p2align 6")
out.append(f".amdhsa_kernel {NAME}_kernel")
out.append(f"  .amdhsa_next_free_vgpr {NV}")
out.append("  .amdhsa_next_free_sgpr 102")
out.append(f"  .amdhsa_accum_offset {NV}")
out.append("  .amdhsa_group_segment_fixed_size 0")
out.append("  .amdhsa_kernarg_size 64")
out.append("  .amdhsa_user_sgpr_count 2")
out.append("  .amdhsa_user_sgpr_kernarg_segment_ptr 1")
out.append("  .amdhsa_system_sgpr_workgroup_id_x 1")
out.append("  .amdhsa_float_denorm_mode_32 3")
out.append(".end_amdhsa_kernel")
open(a.o, "w").write("\n".join(out) + "\n")
```

```python
import sys, argparse
NAME = "standalone__paged_block_table_kv_pagedattention__sampling"
HEADER = open("cdna_kernels/" + NAME + ".s.ref").read().split("; Override")[0]

ap = argparse.ArgumentParser()
ap.add_argument("-o", default="/dev/stdout")
ap.add_argument("--map", default="plain")
ap.add_argument("--hrot", type=int, default=0)
ap.add_argument("--D", type=int, default=21)
ap.add_argument("--D0", type=int, default=26)
ap.add_argument("--NS", type=int, default=6)
ap.add_argument("--G", type=int, default=50)
ap.add_argument("--fnum", type=int, default=40)
ap.add_argument("--pollnum", type=int, default=55)
ap.add_argument("--psleep", type=int, default=6)
ap.add_argument("--UB", type=int, default=8)
ap.add_argument("--mfirst", type=int, default=1)
ap.add_argument("--cth", default="-2,2,5")
ap.add_argument("--cbias", type=int, default=7)
ap.add_argument("--cstart", type=int, default=8)
ap.add_argument("--cstop", type=int, default=4)
ap.add_argument("--cstep", type=int, default=3)
ap.add_argument("--xt", default="5,-4,5,-9,5,2,5,-5")
ap.add_argument("--NUM", type=int, default=4)
ap.add_argument("--last", type=int, default=1)
ap.add_argument("--hold", default="")
ap.add_argument("--ost", default="")
ap.add_argument("--wb", type=int, default=0)
ap.add_argument("--skew", type=int, default=0)
ap.add_argument("--dv", default="-1,1,3")
ap.add_argument("--fpf", type=int, default=6)
ap.add_argument("--fld", default="sc1")
ap.add_argument("--opf", type=int, default=0)
ap.add_argument("--otouch", type=int, default=0)
ap.add_argument("--ospread", type=int, default=1)
ap.add_argument("--ofl", default="")
ap.add_argument("--DM", type=int, default=0)
ap.add_argument("--NE", type=int, default=3)
ap.add_argument("--amp", default="")
ap.add_argument("--ampwg", type=int, default=-1)
ap.add_argument("--tlb", default="")
ap.add_argument("--tlbs", type=int, default=21)
ap.add_argument("--wake", type=int, default=0)
ap.add_argument("--spec", type=int, default=1)
ap.add_argument("--lat", type=int, default=1)
ap.add_argument("--smart", default="")
ap.add_argument("--bar", type=int, default=1)
ap.add_argument("--nosort", action="store_true")
ap.add_argument("--nopair", action="store_true")
ap.add_argument("--limf", default="0x43800000")
ap.add_argument("--dbg", default="")
ap.add_argument("--stamps", action="store_true")
a = ap.parse_args()
NT = " nt"
OST = "" if not a.ost else " " + a.ost.replace("+", " ")
DBG = set(a.dbg.split(","))
D, D0, NS, G = a.D, a.D0, a.NS, a.G
assert 24 <= D0 <= 32 and (D - 2) // 8 == (D + 1) // 8 == 2 and 32 <= G < 64
CTH = [int(x) for x in a.cth.split(",")]
XT = [int(x) for x in a.xt.split(",")]
DV = [int(x) for x in a.dv.split(",")]
assert 17 <= D + DV[0] and D + DV[2] <= 24
DIVM = {5: (205, 10), 6: (43, 8), 7: (147, 10), 8: (1, 3), 10: (205, 11), 12: (171, 11)}[NS]
assert all((u * DIVM[0]) >> DIVM[1] == u // NS for u in range(129))
NW = 6
KBYTES = 4100 * 32768
SPIN = 1 << 22
NUM = a.NUM

RING = NS * 8192
PST = RING
MB = PST + G * 2048
MBS = 4224
CTRL = MB + 2 * MBS
FREE = CTRL + 512
REC0 = FREE + 128
DEPW = REC0 + 16
SL = FREE + 256
CNT = SL + 768
LA = CNT + 512
LB = LA + 512
KEYS = LB + 512
LDS = KEYS + 256
assert LDS <= 163840, LDS
WS0 = 0x100000 if a.stamps else 0
WSA = WS0 + 0x40000

out = []
def e(s): out.append("    " + s)
def lab(s): out.append(s + ":")
def c(s): out.append("    ; " + s)

sQ, sK, sV, sBT, sCL, sOUT, sDBG, sWS = 4, 6, 8, 10, 12, 14, 16, 18
sRD = 20
sB, sH, sW, sCLV = 28, 29, 30, 31
sT0, sT1, sT2, sT3 = 32, 33, 34, 35
sPC = 36
sSPIN = 38
sNB, sNTL, sNU, sT = 39, 40, 41, 42
sST = 64
sE = 72
sB0, sB1, sFL, sPM, sSLOT, sU, sTA0 = 46, 47, 48, 49, 52, 56, 57
sM = 46
sCI, sLND, sMBF, sNEED, sMRG, sMT, sROLE, sQO, sPLN, sSB = 48, 49, 50, 51, 52, 56, 57, 58, 59, 60
sV0 = 61
sCST = 62
sTN, sNK, sFWN, sFB, sPRE, sREDO, sLIMF, sPO = 96, 97, 98, 99, 100, 101, 53, 43
sMALL, sRS = 24, 26
sOFF, sTB0, sTB1, sTTC, sFIRST = 20, 21, 22, 23, 44
sZQ = 54
sRK, sPB, sNP, sX, sTA, sTB, sF, sWB = 80, 81, 82, 83, 84, 85, 86, 87
sMA, sMBK = 88, 90
sLO, sHI, sLBASE = 92, 93, 94
sBO = 56
vLANE = 1
vT0, vT1, vT2, vT3, vT4, vT5 = 2, 3, 4, 5, 6, 7
vL = 8
vKOFF, vVOFF = 10, 14
vCA, vCNT, vFA, vR = 18, 19, 20, 21
vF = 22
vCUR = 24
vTR = 28
vTRK, vTRV = 36, 52
vEN = 44
vDP, vDA, vOOB, vSA = 46, 47, 48, 49
vKA0, vVA0, vXA = 8, 12, 16
vPA0, vPW, vINV, vOA = 20, 21, 22, 23
vM, vLS, vMN, vAL, vPA, vFW = 24, 25, 26, 27, 28, 29
vPL = 30
vQ = 32
vS = 48
vP = 56
vG, vPF, vFV, vN = 60, 61, 62, 63
vKF = 64
vVF = 96
vO = 128
vE = 160
vPN = 160
NV = 168

def stamp(i):
    if a.amp and (i == 0 or (i == 1 and a.amp == "t0")): e(f"s_memrealtime s[{sST+2*i}:{sST+2*i+1}]")
    if a.hold and i == 0: e(f"{'s_memrealtime' if a.hold[:2] == 'rt' else 's_memtime'} s[{sST}:{sST+1}]")
    if a.stamps: e(f"s_memrealtime s[{sST+2*i}:{sST+2*i+1}]")
def clamp_cl(zq=None):
    c("context length: <=0 -> every key masked => uniform weights over 2048 keys (zero Q); >2048 -> 2048")
    e(f"s_cmp_lt_i32 s{sCLV}, 1")
    if zq is not None: e(f"s_cselect_b32 s{zq}, 1, 0")
    e(f"s_cselect_b32 s{sCLV}, 2048, s{sCLV}")
    e(f"s_min_i32 s{sCLV}, s{sCLV}, 2048")
def derive_nb():
    e(f"s_add_u32 s{sNTL}, s{sNB}, 1")
    e(f"s_lshr_b32 s{sNTL}, s{sNTL}, 1")
    e(f"s_sub_u32 s{sNU}, s{sNTL}, 1")
    e(f"s_min_u32 s{sNU}, s{sNU}, {NUM}")
def derive_cl():
    e(f"s_add_u32 s{sNB}, s{sCLV}, 15")
    e(f"s_lshr_b32 s{sNB}, s{sNB}, 4")
    derive_nb()
def spin_tail(label, sleep=1):
    e(f"s_sleep {sleep}")
    e(f"s_sub_u32 s{sSPIN}, s{sSPIN}, 1")
    e(f"s_cbranch_scc0 {label}")
    e("s_endpgm")
FIN = "s_branch L_fin" if (a.stamps or a.amp) else "s_endpgm"

out.append(HEADER.rstrip())
out.append(f"; @launch grid=(256,1,1) block=({64*NW},1,1) lds={LDS}")
for line in """
Paged GQA attention, one workgroup per (batch b, kv head h); HBM-bound, so everything serves the K/V stream.
  wave 0     loader: LDS-DMA of 8 KB units (32 keys of K or V) into a ring, a counted number of requests in flight.
             Pass 1 streams every K tile, pass 2 every V tile, both in ascending physical-block order.
  waves 1,2  own task, 16 query rows each: pass 1 scores + softmax weights (kept in LDS), pass 2 weighted values.
  waves 3,4  rank the batches by length, pair long with short, sort the block ids. In a short workgroup they then
             process tiles donated by the long partner and hand the partial result over; in a long one wave 3 fetches it.
  wave 5     compares progress with the workgroups sharing its L2 and nudges the loader's request depth.
Hand-offs work under any placement: inside L2 only after a run-time check that both sides share a die.
""".strip("\n").split("\n"): out.append("; " + line)
out.append('.amdgcn_target "amdgcn-amd-amdhsa--gfx950"')
out.append(".text")
out.append(f".globl {NAME}_kernel")
out.append(".p2align 8")
out.append(f".type {NAME}_kernel,@function")
lab(f"{NAME}_kernel")
e("s_load_dwordx16 s[4:19], s[0:1], 0")
e(f"s_lshr_b32 s{sB}, s2, 3")
e(f"s_cmp_ge_u32 s{sB}, 32")
e("s_cbranch_scc1 L_end")
stamp(0)
e(f"v_lshrrev_b32 v{vT0}, 6, v0")
e(f"v_and_b32 v{vLANE}, 63, v0")
e(f"v_readfirstlane_b32 s{sW}, v{vT0}")
c("wave 1 pulls this kernel's code into L2")
e(f"s_getpc_b64 s[{sPC}:{sPC+1}]")
lab("L_pc")
e(f"v_lshlrev_b32 v{vT2}, 7, v{vLANE}")
e(f"v_min_u32 v{vT2}, L_end - L_pc - 256, v{vT2}")
e(f"s_cmp_lg_u32 s{sW}, 1")
e("s_cbranch_scc1 L_nopf")
e(f"global_load_dword v{vPF}, v{vT2}, s[{sPC}:{sPC+1}] offset:256")
if a.wake:
    e(f"s_mul_i32 s{sT3}, s2, {a.wake}")
    e(f"v_and_b32 v{vT2}, {a.wake - 256}, v{vT2}")
    e(f"v_add_u32 v{vT2}, s{sT3}, v{vT2}")
    e(f"v_add_u32 v{vT2}, L_pad - L_pc, v{vT2}")
    e(f"global_load_dword v{vFV}, v{vT2}, s[{sPC}:{sPC+1}] nt")
lab("L_nopf")
c("clear the control words and the sort counters")
e(f"v_mov_b64 v[{vT2}:{vT3}], 0")
e(f"v_lshlrev_b32 v{vT4}, 3, v0")
e(f"v_add_u32 v{vT4}, {CTRL}, v{vT4}")
e(f"ds_write_b64 v{vT4}, v[{vT2}:{vT3}]")
if a.map == "rot":
    e(f"s_add_u32 s{sH}, s2, s{sB}")
    e(f"s_and_b32 s{sH}, s{sH}, 7")
elif a.hrot:
    e(f"s_add_u32 s{sH}, s2, {a.hrot}")
    e(f"s_and_b32 s{sH}, s{sH}, 7")
else:
    e(f"s_and_b32 s{sH}, s2, 7")
e(f"s_lshl3_add_u32 s{sT2}, s{sB}, s{sH}")
e(f"s_lshl_b32 s{sT2}, s{sT2}, 13")
e(f"v_lshl_add_u32 v{vT5}, v{vLANE}, 7, s{sT2}")
e(f"s_lshl_b32 s{sT0}, s{sB}, 9")
e(f"v_lshl_add_u32 v{vT2}, v{vLANE}, 3, s{sT0}")
if not a.spec: e(f"s_lshl_b32 s{sT1}, s{sB}, 2")
e(f"v_and_b32 v{vT0}, 31, v{vLANE}")
e(f"v_lshlrev_b32 v{vT3}, 2, v{vT0}")
vTL = 22
if a.tlb:
    e(f"v_min_u32 v{vTL}, {(2 << (21 - a.tlbs)) - 1}, v{vLANE}")
    e(f"v_lshl_add_u32 v{vTL}, v{vTL}, 5, s{sB}")
    e(f"s_mul_i32 s{sT3}, s2, {8064 >> (21 - a.tlbs) & ~127}")
    e(f"v_lshl_add_u32 v{vTL}, v{vTL}, {a.tlbs}, s{sT3}")
e(f"s_cmp_lg_u32 s{sW}, 2")
e("s_waitcnt lgkmcnt(0)")
e(f"s_load_dwordx8 s[{sE}:{sE+7}], s[{sBT}:{sBT+1}], s{sT0}")
if not a.spec: e(f"s_load_dword s{sCLV}, s[{sCL}:{sCL+1}], s{sT1}")
c("wave 2 touches the 64 lines of this workgroup's queries while memory is still idle")
e("s_cbranch_scc1 L_noq")
if "k" in a.tlb: e(f"global_load_dword v{vFV}, v{vTL}, s[{sK}:{sK+1}] nt")
e(f"global_load_dword v{vPF}, v{vT5}, s[{sQ}:{sQ+1}]")
lab("L_noq")
if a.opf:
    e(f"s_cmp_lg_u32 s{sW}, 4")
    e("s_cbranch_scc1 L_noo")
    e(f"global_load_dword v{vPF}, v{vT5}, s[{sOUT}:{sOUT+1}]")
    lab("L_noo")
e(f"global_load_dwordx2 v[{vL}:{vL+1}], v{vT2}, s[{sBT}:{sBT+1}]")
e(f"global_load_dword v{vN}, v{vT3}, s[{sCL}:{sCL+1}]")
lab("L_loads_issued")
if a.amp == "t0k": e(f"s_memrealtime s[{sST+2}:{sST+3}]")
e(f"s_cmp_lg_u32 s{sW}, 0")
e(f"s_mov_b32 s{sSPIN}, {SPIN}")
e("s_cbranch_scc1 L_notloader")

e("s_setprio 3")
c("per-lane source offsets of the LDS-DMA pieces (bank swizzle applied on the source side)")
e(f"v_lshrrev_b32 v{vR}, 4, v{vLANE}")
e(f"v_and_b32 v{vT1}, 15, v{vLANE}")
e(f"s_lshl_b32 s{sT0}, s{sH}, 8")
e(f"v_lshl_add_u32 v{vT4}, v{vR}, 11, s{sT0}")
e(f"v_xor_b32 v{vT2}, v{vR}, v{vT1}")
e(f"v_lshl_add_u32 v{vKOFF}, v{vT2}, 4, v{vT4}")
for j in range(1, 4):
    e(f"v_xor_b32 v{vT3}, {64*j}, v{vKOFF}")
    e(f"v_add_u32 v{vKOFF+j}, {7168*j}, v{vT3}")
e(f"s_mov_b32 s{sRD}, s{sK}")
e(f"s_and_b32 s{sRD+1}, s{sK+1}, 0xffff")
e(f"s_mov_b32 s{sRD+2}, {KBYTES}")
e(f"s_mov_b32 s{sRD+3}, 0x20000")
if a.amp == "t0c": e(f"s_memrealtime s[{sST+2}:{sST+3}]")
if a.bar < 0: e("s_barrier")
e("s_waitcnt lgkmcnt(0)")
if not a.spec: clamp_cl()
c("the first stream tiles are the leading logical tiles; requested before the context length is known")
NE = a.NE
for t in range(NE):
    if not a.spec:
        e(f"s_cmp_le_u32 s{sCLV}, {32*(t+1)}")
        e(f"s_cbranch_scc1 {'L_ld_b' if t < 2 else 'L_ld_pre'}")
    if t == 0: stamp(1)
    for j in range(8):
        i = 8 * t + j
        if j % 4 == 0:
            e(f"s_movk_i32 m0, {1024*i}")
            e(f"s_lshl_b32 s{sB0}, s{sE+i//4}, 15")
        if i >= D0: e(f"s_waitcnt vmcnt({D0-1})")
        e(f"buffer_load_dwordx4 v{vKOFF+j%4}, s[{sRD}:{sRD+3}], s{sB0} offen offset:{1024*(j%4)}{NT} lds")
    if t == a.bar:
        lab("L_ld_b")
        e("s_barrier")
lab("L_ld_pre")
j0 = (D - 1) % 8
e(f"v_lshlrev_b32 v{vT3}, 2, v{vR}")
e(f"v_xor_b32 v{vT3}, v{vT3}, v{vT1}")
e(f"v_lshl_add_u32 v{vVOFF}, v{vT3}, 4, v{vT4}")
for j in range(1, 4):
    e(f"v_add_u32 v{vVOFF+j}, {7168*j}, v{vVOFF}")
e(f"v_lshlrev_b32 v{vCA}, 3, v{vLANE}")
e(f"v_add_u32 v{vT0}, {SL}, v{vCA}")
e(f"v_add_u32 v{vCA}, {CTRL}, v{vCA}")
e(f"v_mov_b32 v{vFA}, {FREE}")
e(f"v_mov_b64 v[{vF}:{vF+1}], 0")
e(f"v_mov_b32 v{vDP}, {2 if NE == 3 else 0}")
e(f"v_mov_b32 v{vDA}, {DEPW}")
e(f"v_bfrev_b32 v{vOOB}, 1")
def set_pass(off):
    for j in range(0, 4, 2): e(f"v_mov_b64 v[{vCUR+j}:{vCUR+j+1}], v[{off+j}:{off+j+1}]")
set_pass(vKOFF)
if "prog3" in DBG: e("v_mov_b32 v50, 0")
e(f"s_mov_b32 s{sPM}, 4")
e(f"s_mov_b32 s{sTA0}, 0")
if a.spec:
    e(f"s_waitcnt vmcnt({8*NE})")
    e(f"v_readlane_b32 s{sCLV}, v{vN}, s{sB}")
    clamp_cl()
derive_cl()
c("the leading tiles enter the stream list straight from the table row")
e(f"s_min_u32 s{sT}, s{sNU}, {NE}")
e(f"s_lshl3_add_u32 s{sT0}, s{sT}, {SL}")
e(f"v_mov_b32 v{vSA}, s{sT0}")
e(f"s_sub_u32 s{sT0}, s{sT}, 3")
e(f"v_mov_b32 v{vCNT}, s{sT0}")
e(f"s_bfm_b64 s[{sT2}:{sT2+1}], s{sNU}, 0")
e(f"s_cmp_ge_u32 s{sNU}, {NE}")
e("s_cbranch_scc1 L_ld_row")
e("s_waitcnt vmcnt(0)")
lab("L_ld_row")
if not (a.spec and NE == 3): e("s_waitcnt vmcnt(24)")
if NE == 4: e(f"ds_write_b32 v{vCA}, v{vCNT}")
e(f"v_lshl_or_b32 v{vEN}, v{vL}, 15, 1")
e(f"v_lshlrev_b32 v{vEN+1}, 15, v{vL+1}")
e(f"s_mov_b64 exec, s[{sT2}:{sT2+1}]")
e(f"ds_write_b64 v{vT0}, v[{vEN}:{vEN+1}]")
e("s_mov_b64 exec, -1")
e(f"ds_read_b64 v[{vEN}:{vEN+1}], v{vSA}")
e(f"s_lshl_b32 s{sSLOT}, s{sT}, 13")
e(f"s_mov_b32 s{sU}, s{sT}")
c("lanes of the last logical tile whose rows lie inside the context")
e(f"s_lshl_b32 s{sT0}, s{sNTL}, 5")
e(f"s_sub_u32 s{sT0}, s{sCLV}, s{sT0}")
e(f"s_add_u32 s{sT0}, s{sT0}, 32")
e(f"v_sub_u32 v{vT1}, s{sT0}, v{vR}")
for k in range(8):
    e(f"v_cmp_lt_i32 s[{80+2*k}:{81+2*k}], {4*k}, v{vT1}")
if a.amp == "t0r": e(f"s_memrealtime s[{sST+2}:{sST+3}]")
if a.amp[:3] == "t0l":
    e(f"s_waitcnt vmcnt({int(a.amp[3:])})")
    e(f"s_memrealtime s[{sST+2}:{sST+3}]")
stamp(2)
def unit_body(depth, trimmed=False):
    for j in range(8):
        if j % 4 == 0: e(f"s_add_u32 m0, s{sSLOT}, {1024*j}")
        e(f"s_waitcnt vmcnt({depth-1})")
        e(f"buffer_load_dwordx4 v{vTR+j if trimmed else vCUR+j%4}, s[{sRD}:{sRD+3}], s{sB0 + j//4} offen offset:{1024*(j%4)}{NT} lds")
        if j == (depth - 1) % 8:
            e(f"v_add_u32 v{vCNT}, 1, v{vCNT}")
            e(f"ds_write_b32 v{vCA}, v{vCNT}")
        if j == 0:
            e(f"s_add_u32 s{sT2}, s{sSLOT}, 8192")
            e(f"s_cmp_eq_u32 s{sT2}, {RING}")
            e(f"s_cselect_b32 s{sT2}, 0, s{sT2}")
            e(f"s_lshr_b32 s{sT0}, s{sT2}, 10")
            e(f"s_add_u32 s{sT0}, s{sT0}, {FREE}")
            e(f"v_mov_b32 v{vFA}, s{sT0}")
        if j == 1:
            e(f"s_add_u32 s{sT}, s{sT}, 1")
            e(f"s_and_b32 s{sT0}, s{sFL}, s{sPM}")
            e(f"s_cselect_b32 s{sT}, s{sTA0}, s{sT}")
            e(f"s_lshl3_add_u32 s{sT0}, s{sT}, {SL}")
            e(f"v_mov_b32 v{vSA}, s{sT0}")
            e(f"s_add_u32 s{sU}, s{sU}, 1")
        if j == a.fpf:
            c("prefetch the next list entry, the FREE words of the next slot and the depth code")
            e(f"ds_read_b64 v[{vEN}:{vEN+1}], v{vSA}")
            e(f"ds_read_b64 v[{vF}:{vF+1}], v{vFA}")
            e(f"ds_read_b32 v{vDP}, v{vDA}")
            e(f"s_mov_b32 s{sSLOT}, s{sT2}")
out.append(".p2align 3")
lab("L_ld")
if "prog3" in DBG:
    e(f"s_memrealtime s[{sST+4}:{sST+5}]")
    e(f"s_min_u32 m0, s{sU}, 63")
e("s_waitcnt lgkmcnt(0)")
if "prog3" in DBG: e(f"v_writelane_b32 v50, s{sST+4}, m0")
e(f"v_min_i32 v{vT0}, v{vF}, v{vF+1}")
e(f"v_readfirstlane_b32 s{sFL}, v{vEN}")
e(f"v_readfirstlane_b32 s{sB1}, v{vEN+1}")
e(f"v_readfirstlane_b32 s{sT0}, v{vT0}")
e(f"v_readfirstlane_b32 s{sT3}, v{vDP}")
e(f"s_sub_u32 s{sT1}, s{sU}, {NS-1}")
e(f"s_cmp_ge_i32 s{sT0}, s{sT1}")
e(f"s_cselect_b32 s{sT0}, s{sFL}, 0")
e(f"s_and_b32 s{sB0}, s{sFL}, -16")
e(f"s_and_b32 s{sT0}, s{sT0}, 3")
e(f"s_cmp_lg_u32 s{sT0}, 1")
e("s_cbranch_scc1 L_ld_odd")
e(f"s_cmp_lg_u32 s{sT3}, 0")
e("s_cbranch_scc1 L_ld_var")
unit_body(D)
lab("L_ld_next")
e(f"s_bitcmp1_b32 s{sFL}, 2")
e("s_cbranch_scc0 L_ld")
c("last tile of the batch: change pass")
e(f"s_xor_b32 s{sPM}, s{sPM}, 4")
e("s_cbranch_scc1 L_ld_tok")
e(f"s_mov_b32 s{sRD}, s{sV}")
e(f"s_and_b32 s{sRD+1}, s{sV+1}, 0xffff")
set_pass(vVOFF)
e("s_branch L_ld")
lab("L_ld_tok")
e(f"s_bitcmp1_b32 s{sFL}, 3")
e("s_cbranch_scc0 L_ld_more")
for r in (16, 8, 0):
    e(f"v_add_u32 v{vCNT}, 1, v{vCNT}")
    e(f"s_waitcnt vmcnt({r})")
    e(f"ds_write_b32 v{vCA}, v{vCNT}")
if a.hold:
    lab("L_hold")
    e(f"{'s_memrealtime' if a.hold[:2] == 'rt' else 's_memtime'} s[{sST+2}:{sST+3}]")
    e("s_waitcnt lgkmcnt(0)")
    e(f"s_sub_u32 s{sT0}, s{sST+2}, s{sST}")
    e(f"s_cmp_lt_u32 s{sT0}, {a.hold[3:]}")
    e("s_cbranch_scc1 L_hold")
e(FIN)
lab("L_ld_more")
e(f"s_mov_b32 s{sTA0}, s{sT}")
e(f"s_mov_b32 s{sRD}, s{sK}")
e(f"s_and_b32 s{sRD+1}, s{sK+1}, 0xffff")
set_pass(vKOFF)
e("s_branch L_ld")
lab("L_ld_odd")
e(f"s_cmp_eq_u32 s{sT0}, 3")
e("s_cbranch_scc1 L_ld_m")
c("slot not free yet or entry not written yet")
e(f"ds_read_b64 v[{vEN}:{vEN+1}], v{vSA}")
e(f"ds_read_b64 v[{vF}:{vF+1}], v{vFA}")
e(f"s_sub_u32 s{sSPIN}, s{sSPIN}, 1")
e("s_cbranch_scc0 L_ld")
e("s_endpgm")
lab("L_ld_m")
c("the last logical tile: rows past the context are not fetched (their lanes read zeros)")
for k in range(8):
    e(f"v_cndmask_b32 v{vTR+k}, v{vOOB}, v{vCUR+k%4}, s[{80+2*k}:{81+2*k}]")
unit_body(D + a.DM, True)
e("s_branch L_ld_next")
lab("L_ld_var")
e(f"s_cmp_eq_u32 s{sT3}, 1")
e("s_cbranch_scc1 L_ld_v2")
e(f"s_cmp_eq_u32 s{sT3}, 2")
e("s_cbranch_scc1 L_ld_v3")
unit_body(D + DV[0])
e("s_branch L_ld_next")
lab("L_ld_v2")
unit_body(D + DV[1])
e("s_branch L_ld_next")
lab("L_ld_v3")
unit_body(D + DV[2])
e("s_branch L_ld_next")

lab("L_notloader")
e(f"s_cmp_ge_u32 s{sW}, 3")
e("s_cbranch_scc1 L_planner")
e(f"s_sub_u32 s{sCI}, s{sW}, 1")
def rows_off(sb):
    e(f"s_lshl3_add_u32 s{sQO}, s{sb}, s{sH}")
    e(f"s_lshl1_add_u32 s{sQO}, s{sQO}, s{sCI}")
    e(f"s_lshl_b32 s{sQO}, s{sQO}, 12")
    e(f"v_and_b32 v{vT0}, 15, v{vLANE}")
    e(f"v_lshrrev_b32 v{vG}, 4, v{vLANE}")
def load_q(sb):
    rows_off(sb)
    e(f"v_lshl_add_u32 v{vT4}, v{vT0}, 8, s{sQO}")
    e(f"v_lshl_add_u32 v{vT4}, v{vG}, 4, v{vT4}")
    for s in range(4):
        e(f"global_load_dwordx4 v[{vQ+4*s}:{vQ+4*s+3}], v{vT4}, s[{sQ}:{sQ+1}] offset:{64*s}")
load_q(sB)
e("s_barrier")
e(f"s_mov_b32 s{sROLE}, 0")
e(f"s_mov_b32 s{sPLN}, 0")
e(f"s_mov_b32 s{sMRG}, 0")
if a.spec:
    e("s_waitcnt vmcnt(4) lgkmcnt(0)")
    e(f"v_readlane_b32 s{sCLV}, v{vN}, s{sB}")
else: e("s_waitcnt lgkmcnt(0)")
clamp_cl(zq=sT3)
derive_cl()
c("valid keys of the last logical tile")
e(f"s_lshl_b32 s{sV0}, s{sNTL}, 5")
e(f"s_sub_u32 s{sV0}, s{sCLV}, s{sV0}")
e(f"s_add_u32 s{sV0}, s{sV0}, 32")
e(f"s_bfm_b64 s[{sM}:{sM+1}], s{sNU}, 0")
lab("L_csetup")
e(f"s_mov_b32 s{sMT}, 0")
e(f"s_mov_b32 s{sOFF}, 0")
e(f"s_mov_b32 s{sTB0}, 0")
e(f"s_mov_b32 s{sFIRST}, 1")
e(f"s_mov_b64 s[{sRS}:{sRS+1}], 0")
e("s_waitcnt vmcnt(4)")
e(f"v_and_b32 v{vT0}, 15, v{vLANE}")
e(f"v_xor_b32 v{vT1}, v{vG}, v{vT0}")
e(f"v_lshlrev_b32 v{vT2}, 8, v{vT0}")
e(f"v_lshl_add_u32 v{vKA0}, v{vT1}, 4, v{vT2}")
for s in range(1, 4):
    e(f"v_xor_b32 v{vKA0+s}, {64*s}, v{vKA0}")
e(f"v_bfe_u32 v{vT0}, v{vLANE}, 2, 2")
e(f"v_lshl_add_u32 v{vT1}, v{vG}, 2, v{vT0}")
e(f"v_lshlrev_b32 v{vT1}, 8, v{vT1}")
e(f"v_and_b32 v{vT2}, 3, v{vLANE}")
e(f"v_lshl_add_u32 v{vT1}, v{vT2}, 4, v{vT1}")
e(f"v_lshl_add_u32 v{vVA0}, v{vT0}, 6, v{vT1}")
for j in range(1, 4):
    e(f"v_xor_b32 v{vVA0+j}, {64*j}, v{vVA0}")
e(f"s_lshl_b32 s{sT0}, s{sCI}, 10")
e(f"s_add_u32 s{sT0}, s{sT0}, {PST}")
e(f"v_lshl_add_u32 v{vPA0}, v{vLANE}, 4, s{sT0}")
e(f"v_mov_b32 v{vOA}, v{vT4}")
e(f"s_lshl_b32 s{sT0}, s{sW}, 3")
e(f"s_add_u32 s{sT0}, s{sT0}, {CTRL-8}")
e(f"v_mov_b32 v{vPA}, s{sT0}")
e(f"v_mov_b32 v{vM}, 0xff800000")
e(f"v_mov_b32 v{vLS}, 0")
for r in range(0, 32, 2): e(f"v_mov_b64 v[{vO+r}:{vO+r+1}], 0")
e(f"s_mov_b32 s{sCST}, 0x3e0293ee")
e(f"s_mov_b32 s{sCST+1}, 0x3e0293ee")
e(f"s_mov_b32 s{sLIMF}, {a.limf}")
e(f"s_lshl2_add_u32 s{sFB}, s{sCI}, {FREE}")
e("s_waitcnt vmcnt(0)")
e(f"s_cmp_eq_u32 s{sT3}, 0")
e("s_cbranch_scc1 L_k_first")
for r in range(0, 16, 2): e(f"v_mov_b64 v[{vQ+r}:{vQ+r+1}], 0")

def poll(label):
    lab(label)
    e(f"ds_read_b64 v[{vPL}:{vPL+1}], v{vPA}")
    e(f"s_sub_u32 s{sSPIN}, s{sSPIN}, 1")
    e("s_cbranch_scc1 L_end")
    e("s_waitcnt lgkmcnt(0)")
    e(f"v_readfirstlane_b32 s{sLND}, v{vPL}")
    e(f"s_cmp_ge_i32 s{sLND}, s{sNK}")
    e(f"s_cbranch_scc0 {label}")
VR = []
for j in range(4):
    for ee in range(2):
        for blk in range(2):
            r = vVF + (2 * j + ee) * 4 + 2 * blk
            VR.append(f"ds_read_b64_tr_b16 v[{r}:{r+1}], v{vXA+j} offset:{8*ee + 4096*blk}")
KR, QK = [], []
for blk in range(2):
    for st in range(4):
        r = vKF + (blk * 4 + st) * 4
        KR.append(f"ds_read_b128 v[{r}:{r+3}], v{vXA+st} offset:{4096*blk}")
        cc = "0" if st == 0 else f"v[{vS+4*blk}:{vS+4*blk+3}]"
        QK.append(f"v_mfma_f32_16x16x32_bf16 v[{vS+4*blk}:{vS+4*blk+3}], v[{r}:{r+3}], v[{vQ+4*st}:{vQ+4*st+3}], {cc}")
PV = [f"v_mfma_f32_16x16x32_bf16 v[{vO+4*dt}:{vO+4*dt+3}], v[{vVF+4*dt}:{vVF+4*dt+3}], v[{vP}:{vP+3}], v[{vO+4*dt}:{vO+4*dt+3}]" for dt in range(8)]
NX = [f"s_ff1_i32_b64 s{sTN}, s[{sM}:{sM+1}]",
      f"s_bitset0_b64 s[{sM}:{sM+1}], s{sTN}",
      f"s_add_u32 s{sT1}, s{sTN}, s{sOFF}",
      f"s_mul_i32 s{sT0}, s{sT1}, {DIVM[0]}",
      f"s_lshr_b32 s{sT0}, s{sT0}, {DIVM[1]}",
      f"s_mul_i32 s{sT0}, s{sT0}, {NS}",
      f"s_sub_u32 s{sT0}, s{sT1}, s{sT0}",
      f"s_lshl_b32 s{sSB}, s{sT0}, 13",
      f"s_lshl3_add_u32 s{sFWN}, s{sT0}, s{sFB}",
      f"s_and_b32 s{sT0}, s{sTN}, 0x40000000",
      f"s_add_u32 s{sNK}, s{sT1}, 1",
      f"s_or_b32 s{sNK}, s{sNK}, s{sT0}",
      f"s_sub_u32 s{sPO}, s{sTN}, s{sTB0}",
      f"s_lshl_b32 s{sPO}, s{sPO}, 11"]
KA = [f"v_add_u32 v{vXA+i}, s{sSB}, v{vKA0+i}" for i in range(4)]
VA = [f"v_add_u32 v{vXA+i}, s{sSB}, v{vVA0+i}" for i in range(4)]
ADV = [f"v_mov_b32 v{vFW}, s{sFWN}",
       f"v_mov_b32 v{vFV}, s{sNK}",
       f"v_add_u32 v{vPW}, s{sPO}, v{vPA0}",
       f"s_add_u32 s{sT}, s{sTN}, 1"]
def scale_o(reg):
    for r in range(0, 32, 2):
        sel = "op_sel:[0,1] op_sel_hi:[1,1]" if reg & 1 else "op_sel_hi:[1,0]"
        p = reg & ~1
        e(f"v_pk_mul_f32 v[{vO+r}:{vO+r+1}], v[{vO+r}:{vO+r+1}], v[{p}:{p+1}] {sel}")

def inv_pre():
    e(f"v_mov_b32 v{vT0}, v{vLS}")
    e(f"v_mov_b32 v{vT1}, v{vLS}")
    e("s_nop 1")
    e(f"v_permlane32_swap_b32 v{vT0}, v{vT1}")
    e("s_nop 0")
    e(f"v_add_f32 v{vT0}, v{vT0}, v{vT1}")
    e(f"v_mov_b32 v{vT1}, v{vT0}")
    e("s_nop 1")
    e(f"v_permlane16_swap_b32 v{vT0}, v{vT1}")
    e("s_nop 0")
    e(f"v_add_f32 v{vT0}, v{vT0}, v{vT1}")
    e(f"v_rcp_f32 v{vINV}, v{vT0}")

lab("L_k_first")
for x in NX + KA + ADV: e(x)
lab("L_k_next")
e(f"s_cmp_lt_i32 s{sTN}, 0")
e("s_cbranch_scc1 L_k_empty")
poll("L_k_poll")
for x in KR: e(x)
e("s_waitcnt lgkmcnt(0)")
out.append(".p2align 3")
lab("L_k_top")
e("s_waitcnt lgkmcnt(1)")
e(f"ds_write_b32 v{vFW}, v{vFV}")
e(f"ds_read_b64 v[{vPL}:{vPL+1}], v{vPA}")
fill = NX + KA
for i in range(8):
    e(QK[i])
    for x in fill[2*i:2*i+2]: e(x)
for x in fill[16:]: e(x)
e(f"s_mov_b32 s{sREDO}, 0")
e("s_waitcnt lgkmcnt(0)")
e(f"v_readfirstlane_b32 s{sLND}, v{vPL}")
e(f"s_cmp_ge_i32 s{sLND}, s{sNK}")
e(f"s_cselect_b32 s{sPRE}, 1, 0")
e("s_cbranch_scc0 L_k_nopre")
for x in KR: e(x)
lab("L_k_nopre")
e(f"s_cmp_eq_u32 s{sT}, s{sMT}")
e("s_cbranch_scc1 L_k_mask")
lab("L_k_exp")
for hb in range(2):
    for r in (4*hb, 4*hb+2):
        e(f"v_pk_fma_f32 v[{vE+r}:{vE+r+1}], v[{vS+r}:{vS+r+1}], s[{sCST}:{sCST+1}], v[{vM}:{vM+1}] op_sel_hi:[1,1,0] neg_lo:[0,0,1] neg_hi:[0,0,1]")
    for r in range(4*hb, 4*hb+4):
        e(f"v_exp_f32 v{vE+r}, v{vE+r}")
e(f"v_pk_add_f32 v[{vT0}:{vT1}], v[{vE}:{vE+1}], v[{vE+2}:{vE+3}]")
e(f"v_pk_add_f32 v[{vT2}:{vT3}], v[{vE+4}:{vE+5}], v[{vE+6}:{vE+7}]")
e(f"v_cvt_pk_bf16_f32 v{vP}, v{vE}, v{vE+1}")
e(f"v_pk_add_f32 v[{vT0}:{vT1}], v[{vT0}:{vT1}], v[{vT2}:{vT3}]")
e(f"v_cvt_pk_bf16_f32 v{vP+1}, v{vE+2}, v{vE+3}")
e(f"v_add_f32 v{vT0}, v{vT0}, v{vT1}")
c("the kept reference max is safe only while every weight stays <= 256; otherwise take the true max")
e(f"v_cmp_nge_f32 vcc, s{sLIMF}, v{vT0}")
e(f"v_cvt_pk_bf16_f32 v{vP+2}, v{vE+4}, v{vE+5}")
e(f"v_cvt_pk_bf16_f32 v{vP+3}, v{vE+6}, v{vE+7}")
e(ADV[0]); e(ADV[1])
e("s_nop 0")
e("s_cbranch_vccnz L_k_slow")
lab("L_k_done")
e(f"ds_write_b128 v{vPW}, v[{vP}:{vP+3}]")
e(f"v_add_f32 v{vLS}, v{vLS}, v{vT0}")
e(ADV[3])
e(f"s_cmp_lg_u32 s{sPRE}, 0")
e(ADV[2])
e("s_cbranch_scc1 L_k_top")
e("s_branch L_k_next")

lab("L_k_mask")
e(f"v_lshlrev_b32 v{vT0}, 2, v{vG}")
e(f"v_sub_u32 v{vT0}, s{sV0}, v{vT0}")
e(f"v_mov_b32 v{vT1}, 0xff800000")
for r in range(8):
    e(f"v_cmp_lt_i32 s[{80+2*r}:{81+2*r}], {16*(r//4)+r%4}, v{vT0}")
for r in range(8):
    e(f"v_cndmask_b32 v{vS+r}, v{vT1}, v{vS+r}, s[{80+2*r}:{81+2*r}]")
e("s_branch L_k_exp")

def alpha_addr():
    e(f"s_lshl_b32 s{sT0}, s2, 6")
    e(f"s_add_u32 s{sT0}, s{sT0}, s{sT}")
    e(f"s_lshl1_add_u32 s{sT0}, s{sT0}, s{sCI}")
    e(f"s_lshl_b32 s{sT0}, s{sT0}, 6")
    e(f"s_add_u32 s{sT0}, s{sT0}, {WSA}")
    e(f"v_and_b32 v{vT1}, 15, v{vLANE}")
    e(f"v_lshl_add_u32 v{vT1}, v{vT1}, 2, s{sT0}")
c("raise the reference to the true running max; the accumulator is rescaled when pass 2 reaches this tile")
lab("L_k_slow")
e(f"s_cmp_lg_u32 s{sREDO}, 0")
e("s_cbranch_scc1 L_k_done")
e(f"s_mov_b32 s{sREDO}, 1")
e(f"v_max3_f32 v{vT0}, v{vS}, v{vS+1}, v{vS+2}")
e(f"v_max3_f32 v{vT1}, v{vS+3}, v{vS+4}, v{vS+5}")
e(f"v_max3_f32 v{vT0}, v{vT0}, v{vS+6}, v{vS+7}")
e(f"v_max_f32 v{vT0}, v{vT0}, v{vT1}")
e(f"v_mov_b32 v{vT1}, v{vT0}")
e("s_nop 1")
e(f"v_permlane32_swap_b32 v{vT0}, v{vT1}")
e("s_nop 0")
e(f"v_max_f32 v{vT0}, v{vT0}, v{vT1}")
e(f"v_mov_b32 v{vT1}, v{vT0}")
e("s_nop 1")
e(f"v_permlane16_swap_b32 v{vT0}, v{vT1}")
e("s_nop 0")
e(f"v_max_f32 v{vT0}, v{vT0}, v{vT1}")
e(f"v_mul_f32 v{vT0}, s{sCST}, v{vT0}")
e(f"v_max_f32 v{vMN}, v{vM}, v{vT0}")
e(f"v_sub_f32 v{vAL}, v{vM}, v{vMN}")
e(f"v_exp_f32 v{vAL}, v{vAL}")
e(f"v_mov_b32 v{vM}, v{vMN}")
e(f"s_cmp_lg_u32 s{sFIRST}, 0")
e(f"s_mov_b32 s{sFIRST}, 0")
e(f"v_mul_f32 v{vLS}, v{vLS}, v{vAL}")
e("s_cbranch_scc1 L_k_exp")
alpha_addr()
e(f"global_store_dword v{vT1}, v{vAL}, s[{sWS}:{sWS+1}]")
e(f"s_sub_u32 s{sT0}, s{sT}, 1")
e(f"s_bitset1_b64 s[{sRS}:{sRS+1}], s{sT0}")
e("s_branch L_k_exp")

RLO, RHI = 0xffffffff, (1 << (G - 32)) - 1
lab("L_k_noplan")
e(f"s_mov_b32 s{sPLN}, 1")
e(f"v_mov_b32 v{vT1}, {REC0}")
lab("L_k_plan")
e(f"ds_read_b128 v[{vT2}:{vT5}], v{vT1}")
e("s_waitcnt lgkmcnt(0)")
e(f"v_readfirstlane_b32 s{sT0}, v{vT5}")
e(f"v_readfirstlane_b32 s{sM}, v{vT2}")
e(f"v_readfirstlane_b32 s{sM+1}, v{vT3}")
e(f"v_readfirstlane_b32 s{sTTC}, v{vT4}")
e(f"s_cmp_lg_u32 s{sT0}, 0")
e("s_cbranch_scc1 L_k_got")
spin_tail("L_k_plan")
lab("L_k_got")
e(f"s_lshr_b32 s{sMT}, s{sT0}, 8")
e(f"s_add_u32 s{sMT}, s{sMT}, 1")
e(f"s_and_b32 s{sMRG}, s{sTTC}, {0 if 'nomerge' in DBG else 1}")
e(f"s_lshr_b32 s{sTTC}, s{sTTC}, 8")
e(f"s_min_u32 s{sTB1}, s{sTTC}, {G}")
e(f"s_bfm_b64 s[{sMALL}:{sMALL+1}], s{sNU}, 0")
e(f"s_or_b64 s[{sMALL}:{sMALL+1}], s[{sMALL}:{sMALL+1}], s[{sM}:{sM+1}]")
e(f"s_and_b32 s{sM+1}, s{sM+1}, {RHI:#x}")
e("s_branch L_k_first")
lab("L_v_more")
c("second batch")
e(f"s_mov_b32 s{sTB0}, s{sTB1}")
e(f"s_mov_b32 s{sTB1}, s{sTTC}")
e(f"s_mov_b32 s{sOFF}, s{sTB0}")
e(f"s_mov_b32 s{sMALL}, 0")
e(f"s_andn2_b32 s{sMALL+1}, s{sMALL+1}, {RHI:#x}")
e(f"s_mov_b64 s[{sM}:{sM+1}], s[{sMALL}:{sMALL+1}]")
e("s_branch L_k_first")
lab("L_k_empty")
e(f"s_cmp_eq_u32 s{sPLN}, 0")
e("s_cbranch_scc1 L_k_noplan")
if a.last: inv_pre()
e(f"s_mov_b32 s{sOFF}, s{sTB1}")
e(f"s_mov_b32 s{sM}, s{sMALL}")
e(f"s_and_b32 s{sM+1}, s{sMALL+1}, {RHI:#x}")
e(f"s_cmp_eq_u32 s{sTB0}, 0")
e(f"s_cselect_b32 s{sM+1}, s{sM+1}, s{sMALL+1}")
for x in NX + VA: e(x)
e(f"ds_read_b64 v[{vPL}:{vPL+1}], v{vPA}")
e(f"s_cmp_lt_i32 s{sTN}, 0")
e("s_cbranch_scc1 L_v_empty")
lab("L_v_next")
for x in ADV: e(x)
if a.last:
    e(f"s_cmp_eq_u64 s[{sM}:{sM+1}], 0")
    e("s_cbranch_scc1 L_v_islast")
lab("L_v_next2")
e(f"ds_read_b128 v[{vPN}:{vPN+3}], v{vPW}")
e("s_waitcnt lgkmcnt(1)")
e(f"v_readfirstlane_b32 s{sLND}, v{vPL}")
e(f"s_cmp_ge_i32 s{sLND}, s{sNK}")
e("s_cbranch_scc1 L_v_rd")
poll("L_v_poll")
lab("L_v_rd")
for x in VR: e(x)
if a.lat:
    e(f"v_readfirstlane_b32 s{sMBF}, v{vPL+1}")
    e(f"s_cmp_gt_i32 s{sLND}, s{sNK}")
    e(f"s_cselect_b32 s{sT0}, 1, s{sRS}")
    e(f"s_or_b32 s{sT0}, s{sT0}, s{sRS+1}")
    e(f"s_and_b32 s{sT1}, s{sMBF}, s{sMRG}")
    e(f"s_or_b32 s{sT0}, s{sT0}, s{sT1}")
    e("s_cbranch_scc0 L_v_lat")
out.append(".p2align 3")
lab("L_v_top")
for x in NX + VA: e(x)
e(f"s_sub_u32 s{sT0}, s{sT}, 1")
e(f"s_bitcmp1_b64 s[{sRS}:{sRS+1}], s{sT0}")
e("s_cbranch_scc1 L_v_resc")
lab("L_v_top2")
e("s_waitcnt lgkmcnt(14)")
e(f"v_readfirstlane_b32 s{sMBF}, v{vPL+1}")
e(f"v_readfirstlane_b32 s{sLND}, v{vPL}")
e(f"v_mov_b64 v[{vP}:{vP+1}], v[{vPN}:{vPN+1}]")
e(f"v_mov_b64 v[{vP+2}:{vP+3}], v[{vPN+2}:{vPN+3}]")
e(f"s_and_b32 s{sT0}, s{sMBF}, s{sMRG}")
e("s_cbranch_scc1 L_v_merge")
lab("L_v_top3")
e(f"s_cmp_ge_i32 s{sLND}, s{sNK}")
e("s_cbranch_scc0 L_v_pv")
e(ADV[2])
e("s_waitcnt lgkmcnt(0)")
e(f"ds_write_b32 v{vFW}, v{vFV}")
e(f"ds_read_b64 v[{vPL}:{vPL+1}], v{vPA}")
e(f"ds_read_b128 v[{vPN}:{vPN+3}], v{vPW}")
for i in range(8):
    e(PV[i]); e(VR[2*i]); e(VR[2*i+1])
e(ADV[0]); e(ADV[1]); e(ADV[3])
e("s_branch L_v_top")
if a.lat:
    c("nothing further has landed and nothing is pending: shortest way through this tile")
    lab("L_v_lat")
    e("s_waitcnt lgkmcnt(14)")
    e(f"v_mov_b64 v[{vP}:{vP+1}], v[{vPN}:{vPN+1}]")
    e(f"v_mov_b64 v[{vP+2}:{vP+3}], v[{vPN+2}:{vPN+3}]")
    fl = NX + VA
    e(fl[0]); e(fl[1])
    for i in range(8):
        if i: e(f"s_waitcnt lgkmcnt({14-2*i})")
        if i == 7:
            e(f"ds_write_b32 v{vFW}, v{vFV}")
            e(f"ds_read_b64 v[{vPL}:{vPL+1}], v{vPA}")
        e(PV[i])
        e(fl[2+2*i]); e(fl[3+2*i])
    e(f"s_cmp_ge_i32 s{sTN}, 0")
    e("s_cbranch_scc1 L_v_next")
    e("s_branch L_v_empty")
lab("L_v_pv")
if a.last:
    e(f"s_cmp_lt_i32 s{sTN}, 0")
    e("s_cbranch_scc1 L_v_islast2")
    lab("L_v_pv2")
for i in range(8):
    if i: e(f"s_waitcnt lgkmcnt({14-2*i})")
    if i == 7:
        e(f"ds_write_b32 v{vFW}, v{vFV}")
        e(f"ds_read_b64 v[{vPL}:{vPL+1}], v{vPA}")
    e(PV[i])
e(f"s_cmp_ge_i32 s{sTN}, 0")
e("s_cbranch_scc1 L_v_next")
lab("L_v_empty")
e(f"s_cmp_lt_u32 s{sTB1}, s{sTTC}")
e("s_cbranch_scc1 L_v_more")
stamp(2)
e(f"s_cmp_lg_u32 s{sMRG}, 0")
e("s_cbranch_scc1 L_c_mwait0")
lab("L_c_store")
e(f"v_mov_b32 v{vT0}, v{vLS}")
e(f"v_and_b32 v{vT2}, 15, v{vLANE}")
e(f"v_lshl_add_u32 v{vT2}, v{vT2}, 8, s{sQO}")
e(f"v_permlane32_swap_b32 v{vLS}, v{vT0}")
e("s_nop 0")
e(f"v_add_f32 v{vLS}, v{vLS}, v{vT0}")
e(f"v_mov_b32 v{vT0}, v{vLS}")
e(f"v_lshl_add_u32 v{vT2}, v{vG}, 4, v{vT2}")
e("s_nop 0")
e(f"v_permlane16_swap_b32 v{vLS}, v{vT0}")
e("s_nop 0")
e(f"v_add_f32 v{vLS}, v{vLS}, v{vT0}")
e(f"v_rcp_f32 v{vMN}, v{vLS}")
e(f"s_cmp_lg_u32 s{sROLE}, 0")
scale_o(vMN)
for r in range(16):
    e(f"v_cvt_pk_bf16_f32 v{vKF+r}, v{vO+2*r}, v{vO+2*r+1}")
e("s_cbranch_scc1 L_publish")
def out_stores(fl, step=64):
    for j in range(4):
        e(f"global_store_dwordx4 v{vT2}, v[{vKF+4*j}:{vKF+4*j+3}], s[{sOUT}:{sOUT+1}] offset:{step*j}{fl}")
out_stores(OST)
e(FIN)

def l_total():
    e(f"v_mov_b32 v{vT0}, v{vLS}")
    e(f"v_and_b32 v{vT2}, 15, v{vLANE}")
    e(f"v_lshl_add_u32 v{vT2}, v{vT2}, 8, s{sQO}")
    e(f"v_permlane32_swap_b32 v{vLS}, v{vT0}")
    e("s_nop 0")
    e(f"v_add_f32 v{vLS}, v{vLS}, v{vT0}")
    e(f"v_mov_b32 v{vT0}, v{vLS}")
    e(f"v_lshl_add_u32 v{vT2}, v{vG}, 4, v{vT2}")
    e("s_nop 0")
    e(f"v_permlane16_swap_b32 v{vLS}, v{vT0}")
    e("s_nop 0")
    e(f"v_add_f32 v{vLS}, v{vLS}, v{vT0}")
    e(f"v_rcp_f32 v{vMN}, v{vLS}")
if a.last:
    lab("L_v_islast2")
    e(f"s_sub_u32 s{sT0}, s{sTTC}, s{sTB1}")
    e(f"s_or_b32 s{sT0}, s{sT0}, s{sMRG}")
    e(f"s_or_b32 s{sT0}, s{sT0}, s{sROLE}")
    e("s_cbranch_scc1 L_v_pv2")
    e("s_branch L_v_lpv")
    lab("L_v_islast")
    c("closing tile of an owner with nothing pending: take the short path")
    e(f"s_sub_u32 s{sT0}, s{sTTC}, s{sTB1}")
    e(f"s_or_b32 s{sT0}, s{sT0}, s{sMRG}")
    e(f"s_or_b32 s{sT0}, s{sT0}, s{sROLE}")
    e(f"s_or_b32 s{sT0}, s{sT0}, s{sRS}")
    e(f"s_or_b32 s{sT0}, s{sT0}, s{sRS+1}")
    e("s_cbranch_scc1 L_v_next2")
    e(f"ds_read_b128 v[{vP}:{vP+3}], v{vPW}")
    e("s_waitcnt lgkmcnt(1)")
    e(f"v_readfirstlane_b32 s{sLND}, v{vPL}")
    e(f"s_cmp_ge_i32 s{sLND}, s{sNK}")
    e("s_cbranch_scc1 L_v_lrd")
    poll("L_v_lpoll")
    lab("L_v_lrd")
    for x in VR: e(x)
    def fin_j(j):
        r = []
        for k in range(4):
            q = vO + 8 * j + 2 * k
            r.append(f"v_pk_mul_f32 v[{q}:{q+1}], v[{q}:{q+1}], v[{vINV}:{vINV+1}] op_sel_hi:[1,0]")
        for k in range(4):
            r.append(f"v_cvt_pk_bf16_f32 v{vKF+4*j+k}, v{vO+8*j+2*k}, v{vO+8*j+2*k+1}")
        r.append(f"global_store_dwordx4 v{vOA}, v[{vKF+4*j}:{vKF+4*j+3}], s[{sOUT}:{sOUT+1}] offset:{64*j}{OST}")
        return r
    lab("L_v_lpv")
    f0 = fin_j(0)
    for i in range(8):
        e(f"s_waitcnt lgkmcnt({14-2*i})")
        e(PV[i])
        if i == 5: e(f0[0]); e(f0[1])
        if i == 6: e(f0[2]); e(f0[3])
    stamp(2)
    for x in f0[4:] + fin_j(1) + fin_j(2) + fin_j(3): e(x)
    e(f"ds_write_b32 v{vFW}, v{vFV}")
    e(FIN)

lab("L_v_resc")
e(f"s_bitset0_b64 s[{sRS}:{sRS+1}], s{sT0}")
alpha_addr()
e("s_waitcnt vmcnt(0)")
e(f"global_load_dword v{vAL}, v{vT1}, s[{sWS}:{sWS+1}] sc1")
e("s_waitcnt vmcnt(0)")
scale_o(vAL)
e("s_branch L_v_top2")

lab("L_v_merge")
c("only once no rescale is pending; the reference max stays, so the partial's max must not be far above it")
e(f"s_cmp_eq_u64 s[{sRS}:{sRS+1}], 0")
e("s_cbranch_scc0 L_v_top3")
lab("L_c_merge")
e(f"s_mul_i32 s{sT0}, s{sCI}, {MBS}")
e(f"s_add_u32 s{sT0}, s{sT0}, {MB}")
e(f"v_and_b32 v{vT1}, 15, v{vLANE}")
e(f"v_lshl_add_u32 v{vT0}, v{vLANE}, 4, s{sT0}")
e(f"v_lshl_add_u32 v{vT1}, v{vT1}, 3, s{sT0}")
e("s_waitcnt lgkmcnt(0)")
e(f"ds_write_b32 v{vFW}, v{vFV}")
e(f"ds_read_b64 v[{vT4}:{vT5}], v{vT1} offset:4096")
for i in range(4):
    e(f"ds_read_b128 v[{vKF+4*i}:{vKF+4*i+3}], v{vT0} offset:{1024*i}")
e(f"s_cmp_eq_u32 s{sPLN}, 2")
e("s_waitcnt lgkmcnt(0)")
e("s_cbranch_scc1 L_c_mfin")
e(f"v_sub_f32 v{vT4}, v{vT4}, v{vM}")
e(f"v_cmp_nge_f32 vcc, 0x41800000, v{vT4}")
e(f"s_mov_b32 s{sMRG}, 2")
e("s_nop 3")
e("s_cbranch_vccnz L_v_top3")
e("s_branch L_c_madd")
lab("L_c_mfin")
e(f"v_max_f32 v{vMN}, v{vM}, v{vT4}")
e(f"v_sub_f32 v{vAL}, v{vM}, v{vMN}")
e(f"v_sub_f32 v{vT4}, v{vT4}, v{vMN}")
e(f"v_exp_f32 v{vAL}, v{vAL}")
e("s_nop 0")
e(f"v_mul_f32 v{vLS}, v{vLS}, v{vAL}")
scale_o(vAL)
lab("L_c_madd")
e(f"v_exp_f32 v{vT4}, v{vT4}")
e(f"s_mov_b32 s{sMRG}, 0")
e(f"v_mul_f32 v{vT4}, v{vT4}, v{vT5}")
e(f"v_fmac_f32 v{vLS}, 0x3e800000, v{vT4}")
for r in range(16):
    t = vKF + 16 + 2 * (r % 4)
    e(f"v_lshlrev_b32 v{t}, 16, v{vKF+r}")
    e(f"v_and_b32 v{t+1}, 0xffff0000, v{vKF+r}")
    e(f"v_pk_fma_f32 v[{vO+2*r}:{vO+2*r+1}], v[{t}:{t+1}], v[{vT4}:{vT4+1}], v[{vO+2*r}:{vO+2*r+1}] op_sel_hi:[1,0,1]")
e(f"s_cmp_eq_u32 s{sPLN}, 2")
e("s_cbranch_scc1 L_c_store")
if a.last: inv_pre()
e("s_branch L_v_top3")
lab("L_c_mwait0")
e(f"s_mov_b32 s{sPLN}, 2")
lab("L_c_mwait")
e(f"ds_read_b64 v[{vPL}:{vPL+1}], v{vPA}")
e("s_waitcnt lgkmcnt(0)")
e(f"v_readfirstlane_b32 s{sMBF}, v{vPL+1}")
e(f"s_cmp_lg_u32 s{sMBF}, 0")
e("s_cbranch_scc1 L_c_merge")
spin_tail("L_c_mwait")

def ws_base(sb):
    e(f"s_lshl3_add_u32 s{sT0}, s{sb}, s{sH}")
    e(f"s_lshl_b32 s{sT0}, s{sT0}, 9")
    if WS0: e(f"s_add_u32 s{sT0}, s{sT0}, {WS0}")

lab("L_publish")
if "nopub" in DBG: e("s_endpgm")
e(f"v_lshl_add_u32 v{vT2}, v{vLANE}, 4, s{sQO}")
e(f"s_lshl_b32 s{sT2}, s{sPB}, 2")
e(f"v_mov_b32 v{vT3}, s{sT2}")
e(f"v_lshlrev_b32 v{vT4}, 1, v{vT3}")
e(f"v_add_u32 v{vT4}, {CTRL+68}, v{vT4}")
e(f"ds_read_b32 v{vT4}, v{vT4}")
ws_base(sPB)
e(f"s_lshl2_add_u32 s{sT1}, s{sCI}, s{sT0}")
e(f"v_mov_b32 v{vT5}, s{sT1}")
e(f"s_lshl_b32 s{sT1}, s{sCI}, 7")
e(f"s_add_u32 s{sT0}, s{sT0}, s{sT1}")
e(f"v_lshl_add_u32 v{vT1}, v{vLANE}, 3, s{sT0}")
e(f"s_getreg_b32 s{sT2}, hwreg(HW_REG_XCC_ID, 0, 4)")
e(f"s_lshl_b32 s{sT2}, s{sT2}, 4")
e(f"s_or_b32 s{sT2}, s{sT2}, s{sH}")
e(f"s_or_b32 s{sT2}, s{sT2}, 0x100")
e("s_waitcnt lgkmcnt(0)")
e(f"v_readfirstlane_b32 s{sT1}, v{vT4}")
e(f"s_lshr_b32 s{sT1}, s{sT1}, 16")
e(f"s_cmp_eq_u32 s{sT1}, s{sT2}")
e("s_cbranch_scc1 L_pub_fast")
e(f"global_load_dword v{vT4}, v{vT3}, s[{sDBG}:{sDBG+1}] offset:128 sc1")
e("s_waitcnt vmcnt(0)")
e(f"v_readfirstlane_b32 s{sT1}, v{vT4}")
e(f"s_lshr_b32 s{sT1}, s{sT1}, 16")
e(f"s_cmp_eq_u32 s{sT1}, s{sT2}")
e("s_cbranch_scc0 L_pub_slow")
lab("L_pub_fast")
c("the receiver runs on this die and has cleared its flag words: hand over inside the shared L2")
out_stores("", 1024)
e("s_mov_b64 exec, 0xffff")
e(f"global_store_dwordx2 v{vT1}, v[{vM}:{vM+1}], s[{sWS}:{sWS+1}]")
e(f"v_mov_b32 v{vT4}, 1")
e("s_waitcnt vmcnt(0)")
e("s_mov_b64 exec, 1")
e(f"global_store_dword v{vT5}, v{vT4}, s[{sWS}:{sWS+1}] offset:256")
e(FIN)
lab("L_pub_slow")
c("any other placement: write through to memory, then set a bit with a device-wide atomic")
out_stores(" sc1", 1024)
e("s_mov_b64 exec, 0xffff")
e(f"global_store_dwordx2 v{vT1}, v[{vM}:{vM+1}], s[{sWS}:{sWS+1}] sc1")
e(f"s_lshl1_add_u32 s{sT1}, s{sH}, s{sCI}")
e(f"s_lshl_b32 s{sT1}, 1, s{sT1}")
e(f"v_mov_b32 v{vT4}, s{sT1}")
e("s_waitcnt vmcnt(0)")
e("s_mov_b64 exec, 1")
e(f"global_atomic_add v{vT3}, v{vT4}, s[{sDBG}:{sDBG+1}]")
e(FIN)

vRW = vL
vKEY, vRK = 19, 20
lab("L_ctl0")
if a.skew:
    c("dies are not started at the same instant: the first eight workgroups post when they started")
    e(f"s_memrealtime s[{sMA}:{sMA+1}]")
    e(f"s_lshl2_add_u32 s{sT0}, s{sH}, 2")
    e(f"v_mov_b32 v{vT4}, s{sT0}")
    e(f"s_cmp_lg_u32 s{sB}, 0")
    e("s_waitcnt lgkmcnt(0)")
    e("s_cbranch_scc1 L_ctl1")
    e(f"s_or_b32 s{sT0}, s{sMA}, 0x8000")
    e(f"v_mov_b32 v{vT5}, s{sT0}")
    e("s_mov_b64 exec, 1")
    e(f"global_store_short v{vT4}, v{vT5}, s[{sDBG}:{sDBG+1}] sc1")
    e("s_mov_b64 exec, -1")
    lab("L_ctl1")
e("s_barrier")
e("s_branch L_ctl")
lab("L_planner")
e(f"s_cmp_eq_u32 s{sW}, 5")
e("s_cbranch_scc1 L_ctl0")
e(f"s_sub_u32 s{sCI}, s{sW}, 3")
e(f"s_lshl_b32 s{sSB}, s{sCI}, 8")
e(f"s_add_u32 s{sSB}, s{sSB}, {CNT}")
e(f"v_lshl_add_u32 v{vPA}, v{vLANE}, 2, s{sSB}")
e(f"s_lshl_b32 s{sT2}, s{sCI}, 7")
e(f"s_add_u32 s{sT2}, s{sT2}, {KEYS}")
e(f"v_add_u32 v{vT3}, s{sT2}, v{vT3}")
e(f"v_lshrrev_b32 v{vT4}, 5, v{vLANE}")
e(f"v_lshl_add_u32 v{vT4}, v{vT4}, 6, s{sT2}")
e(f"v_mov_b32 v{vT5}, 2048")
e("s_barrier")
e("s_waitcnt vmcnt(0)")
e(f"v_cmp_gt_i32 s[{sZQ}:{sZQ+1}], 1, v{vN}")
e(f"v_min_i32 v{vN}, v{vN}, v{vT5}")
e("s_nop 0")
e(f"v_cndmask_b32 v{vN}, v{vN}, v{vT5}, s[{sZQ}:{sZQ+1}]")
e(f"v_add_u32 v{vN}, 15, v{vN}")
e(f"v_lshrrev_b32 v{vN}, 4, v{vN}")
e(f"v_lshl_or_b32 v{vKEY}, v{vN}, 5, v{vT0}")
e(f"ds_write_b32 v{vT3}, v{vKEY}")
for i in range(4):
    e(f"ds_read_b128 v[{vKF+4*i}:{vKF+4*i+3}], v{vT4} offset:{16*i}")
e(f"v_mov_b32 v{vRK}, 0")
e(f"v_readlane_b32 s{sNB}, v{vN}, s{sB}")
e("s_waitcnt lgkmcnt(0)")
c("rank of every batch by block count; the batch of rank 31-r is the partner")
for i in range(16):
    e(f"v_sub_u32 v{vKF+i}, v{vKF+i}, v{vKEY}")
for i in range(16):
    e(f"v_alignbit_b32 v{vRK}, v{vRK}, v{vKF+i}, 31")
e(f"v_bcnt_u32_b32 v{vRK}, v{vRK}, 0")
e(f"v_mov_b32 v{vT2}, v{vRK}")
derive_nb()
e(f"v_permlane32_swap_b32 v{vRK}, v{vT2}")
e("s_nop 0")
e(f"v_add_u32 v{vRK}, v{vRK}, v{vT2}")
e("s_nop 0")
e(f"v_readlane_b32 s{sRK}, v{vRK}, s{sB}")
e(f"s_sub_u32 s{sT0}, 31, s{sRK}")
e(f"v_cmp_eq_u32 vcc, s{sT0}, v{vRK}")
e(f"s_ff1_i32_b32 s{sPB}, vcc_lo")
e(f"v_readlane_b32 s{sNP}, v{vN}, s{sPB}")
e(f"s_max_u32 s{sT0}, s{sNB}, s{sNP}")
e(f"s_min_u32 s{sT1}, s{sNB}, s{sNP}")
e(f"s_sub_u32 s{sX}, s{sT0}, s{sT1}")
e(f"s_add_u32 s{sX}, s{sX}, 2")
e(f"s_lshr_b32 s{sX}, s{sX}, 2")
e(f"s_cmp_lt_u32 s{sT0}, {4*NUM+8}")
e(f"s_cselect_b32 s{sX}, 0, s{sX}")
if a.nopair: e(f"s_mov_b32 s{sX}, 0")
e(f"s_cmp_ge_u32 s{sRK}, 16")
e(f"s_cselect_b32 s{sLO}, s{sX}, 0")
e(f"s_cselect_b32 s{sTB}, 0, s{sX}")
e(f"s_cmp_eq_u32 s{sCI}, 0")
e("s_cbranch_scc1 L_pl_norow")
e(f"s_lshl_b32 s{sT0}, s{sPB}, 9")
e(f"v_lshl_add_u32 v{vT1}, v{vLANE}, 3, s{sT0}")
e(f"global_load_dwordx2 v[{vRW}:{vRW+1}], v{vT1}, s[{sBT}:{sBT+1}]")
lab("L_pl_norow")
e(f"s_sub_u32 s{sTA}, s{sNTL}, s{sLO}")
e(f"s_add_u32 s{sT}, s{sTA}, s{sTB}")
e(f"s_mul_i32 s{sF}, s{sT}, {a.fnum}")
e(f"s_lshr_b32 s{sF}, s{sF}, 6")
e(f"s_min_u32 s{sWB}, s{sTA}, {a.UB}")
e(f"s_sub_i32 s{sF}, s{sF}, s{sWB}")
e(f"s_max_i32 s{sF}, s{sF}, s{sTB}")
e(f"s_max_i32 s{sF}, s{sF}, 1")
e(f"v_cvt_f32_u32 v{vT2}, s{sF}")
e(f"v_subrev_u32 v{vT3}, s{sWB}, v{vLANE}")
e(f"v_rcp_f32 v{vT2}, v{vT2}")
e(f"v_mul_i32_i24 v{vT4}, s{sTB}, v{vT3}")
e(f"v_add_u32 v{vT5}, s{sTB}, v{vT4}")
e(f"v_cvt_f32_i32 v{vT4}, v{vT4}")
e(f"v_cvt_f32_i32 v{vT5}, v{vT5}")
e(f"v_add_f32 v{vT4}, 0.5, v{vT4}")
e(f"v_add_f32 v{vT5}, 0.5, v{vT5}")
e(f"v_mul_f32 v{vT4}, v{vT4}, v{vT2}")
e(f"v_mul_f32 v{vT5}, v{vT5}, v{vT2}")
e(f"v_floor_f32 v{vT4}, v{vT4}")
e(f"v_floor_f32 v{vT5}, v{vT5}")
e(f"v_cmp_gt_u32 vcc, s{sF}, v{vT3}")
e(f"v_cmp_gt_f32 s[{sMBK}:{sMBK+1}], v{vT5}, v{vT4}")
e(f"s_sub_u32 s{sT0}, s{sT}, s{sNU}")
e(f"v_subrev_u32 v{vT3}, s{sNU}, v{vLANE}")
e(f"v_cmp_gt_u32 s[{sMA}:{sMA+1}], s{sT0}, v{vT3}")
e(f"s_and_b64 s[{sMBK}:{sMBK+1}], s[{sMBK}:{sMBK+1}], vcc")
e(f"s_andn2_b64 s[{sMA}:{sMA+1}], s[{sMA}:{sMA+1}], s[{sMBK}:{sMBK+1}]")
c(f"own tiles to sort: logical [NU+given, ntile); donated: the partner's logical [{NUM}, {NUM}+TB)")
mfirst = a.mfirst and not a.nosort
if mfirst:
    e(f"s_ff1_i32_b64 s{sT2}, s[{sMA}:{sMA+1}]")
else:
    e(f"s_flbit_i32_b64 s{sT2}, s[{sMA}:{sMA+1}]")
    e(f"s_sub_u32 s{sT2}, 63, s{sT2}")
e(f"s_lshl_b32 s{sT2}, s{sT2}, 8")
e(f"s_or_b32 s{sWB}, s{sT2}, 1")
e(f"s_min_u32 s{sMRG}, s{sLO}, 1")
SM = [int(x) for x in a.smart.split(",")] if a.smart else None
sV0M, sV1M, sCM, sD2, sCN = 72, 74, 76, 78, 79
if SM:
    e(f"s_lshl_b32 s{sD2}, s{sLO}, 1")
    e(f"s_sub_u32 s{sCN}, s{sNTL}, {NUM+1}")
    e(f"s_mov_b32 s{sLO}, 0")
e(f"s_add_u32 s{sLO}, s{sLO}, s{sNU}")
e(f"s_sub_u32 s{sHI}, s{sNTL}, s{sLO}")
e(f"s_sub_u32 s{sT3}, s{sNTL}, 1")
e(f"s_mov_b32 s{sLBASE}, {LA}")
e(f"s_cmp_eq_u32 s{sCI}, 0")
e("s_cbranch_scc1 L_pl_a")
e(f"s_mov_b32 s{sLO}, {NUM}")
e(f"s_mov_b32 s{sHI}, s{sTB}")
e(f"s_mov_b32 s{sT3}, -1")
if SM:
    e(f"s_lshl_b32 s{sD2}, s{sTB}, 1")
    e(f"s_add_u32 s{sCN}, s{sNP}, 1")
    e(f"s_lshr_b32 s{sCN}, s{sCN}, 1")
    e(f"s_sub_u32 s{sCN}, s{sCN}, {NUM+1}")
e(f"s_mov_b32 s{sLBASE}, {LB}")
e(f"s_mov_b64 s[{sMA}:{sMA+1}], s[{sMBK}:{sMBK+1}]")
e("s_branch L_pl_sort")
lab("L_pl_a")
e(f"s_lshl_b32 s{sT0}, s{sT}, 8")
e(f"s_or_b32 s{sT0}, s{sT0}, s{sMRG}")
e(f"v_mov_b32 v{vT2}, s{sMA}")
e(f"v_mov_b32 v{vT3}, s{sMA+1}")
e(f"v_mov_b32 v{vT4}, s{sT0}")
e(f"v_mov_b32 v{vT5}, s{sWB}")
e(f"v_mov_b32 v{vT1}, {REC0}")
e(f"ds_write_b128 v{vT1}, v[{vT2}:{vT5}]")
lab("L_pl_sort")
e(f"v_subrev_u32 v{vT0}, s{sLO}, v{vLANE}")
e(f"v_cmp_gt_u32 vcc, s{sHI}, v{vT0}")
e(f"v_mov_b32 v{vT5}, 1")
e("s_waitcnt vmcnt(0)")
if SM:
    c("blocks to hand over: the first 2x candidates lying in the part of memory swept while the helper works on them")
    e(f"s_mov_b64 s[{sV0M}:{sV0M+1}], 0")
    e(f"s_mov_b64 s[{sV1M}:{sV1M+1}], 0")
    e(f"s_cmp_eq_u32 s{sD2}, 0")
    e("s_cbranch_scc1 L_pl_nod")
    e(f"s_movk_i32 s{sT0}, {SM[1]-SM[0]}")
    e(f"v_subrev_u32 v{vT2}, {SM[0]}, v{vRW}")
    e(f"v_subrev_u32 v{vT3}, {SM[0]}, v{vRW+1}")
    e(f"s_bfm_b64 s[{sCM}:{sCM+1}], s{sCN}, {NUM}")
    e(f"v_cmp_gt_u32 s[{sV0M}:{sV0M+1}], s{sT0}, v{vT2}")
    e(f"v_cmp_gt_u32 s[{sV1M}:{sV1M+1}], s{sT0}, v{vT3}")
    e(f"s_and_b64 s[{sV0M}:{sV0M+1}], s[{sV0M}:{sV0M+1}], s[{sCM}:{sCM+1}]")
    e(f"s_and_b64 s[{sV1M}:{sV1M+1}], s[{sV1M}:{sV1M+1}], s[{sCM}:{sCM+1}]")
    e(f"s_bcnt1_i32_b64 s{sT0}, s[{sV0M}:{sV0M+1}]")
    e(f"s_bcnt1_i32_b64 s{sT1}, s[{sV1M}:{sV1M+1}]")
    e(f"s_add_u32 s{sT1}, s{sT1}, s{sT0}")
    e(f"s_cmp_lt_u32 s{sT1}, s{sD2}")
    e(f"s_cselect_b64 s[{sV0M}:{sV0M+1}], s[{sCM}:{sCM+1}], s[{sV0M}:{sV0M+1}]")
    e(f"s_cselect_b64 s[{sV1M}:{sV1M+1}], s[{sCM}:{sCM+1}], s[{sV1M}:{sV1M+1}]")
    e(f"s_cselect_b32 s{sT0}, s{sCN}, s{sT0}")
    e(f"v_mbcnt_lo_u32_b32 v{vT2}, s{sV0M}, 0")
    e(f"v_mbcnt_lo_u32_b32 v{vT3}, s{sV1M}, 0")
    e(f"v_mbcnt_hi_u32_b32 v{vT2}, s{sV0M+1}, v{vT2}")
    e(f"v_mbcnt_hi_u32_b32 v{vT3}, s{sV1M+1}, v{vT3}")
    e(f"s_sub_u32 s{sT0}, s{sD2}, s{sT0}")
    e(f"v_cmp_gt_i32 s[{sCM}:{sCM+1}], s{sD2}, v{vT2}")
    e(f"s_and_b64 s[{sV0M}:{sV0M+1}], s[{sV0M}:{sV0M+1}], s[{sCM}:{sCM+1}]")
    e(f"v_cmp_gt_i32 s[{sCM}:{sCM+1}], s{sT0}, v{vT3}")
    e(f"s_and_b64 s[{sV1M}:{sV1M+1}], s[{sV1M}:{sV1M+1}], s[{sCM}:{sCM+1}]")
    lab("L_pl_nod")
    e(f"s_cmp_lg_u32 s{sCI}, 0")
    e("s_cbranch_scc1 L_pl_val")
    e(f"s_andn2_b64 s[{sV0M}:{sV0M+1}], vcc, s[{sV0M}:{sV0M+1}]")
    e(f"s_andn2_b64 s[{sV1M}:{sV1M+1}], vcc, s[{sV1M}:{sV1M+1}]")
    lab("L_pl_val")
X0 = f"s[{sV0M}:{sV0M+1}]" if SM else "vcc"
X1 = f"s[{sV1M}:{sV1M+1}]"
if a.nosort:
    e(f"v_lshlrev_b32 v{vT2}, 1, v{vT0}")
    e(f"v_add_u32 v{vT3}, 1, v{vT2}")
else:
    c("counting sort of the block ids into 64 buckets of ascending physical address")
    e(f"v_lshrrev_b32 v{vT0}, 6, v{vRW}")
    e(f"v_lshrrev_b32 v{vT1}, 6, v{vRW+1}")
    e(f"v_cmp_eq_u32 s[{sRK+2}:{sRK+3}], s{sT3}, v{vLANE}")
    if mfirst:
        e(f"v_med3_u32 v{vT0}, v{vT0}, 1, 63")
        e(f"v_med3_u32 v{vT1}, v{vT1}, 1, 63")
    else:
        e(f"v_min_u32 v{vT0}, 62, v{vT0}")
        e(f"v_min_u32 v{vT1}, 62, v{vT1}")
    fb = 0 if mfirst else 63
    e(f"v_cndmask_b32 v{vT0}, v{vT0}, {fb}, s[{sRK+2}:{sRK+3}]")
    e(f"v_cndmask_b32 v{vT1}, v{vT1}, {fb}, s[{sRK+2}:{sRK+3}]")
    e(f"v_lshlrev_b32 v{vT0}, 2, v{vT0}")
    e(f"v_lshlrev_b32 v{vT1}, 2, v{vT1}")
    e(f"v_add_u32 v{vKF}, s{sSB}, v{vT0}")
    e(f"v_add_u32 v{vKF+1}, s{sSB}, v{vT1}")
    e(f"s_mov_b64 exec, {X0}")
    e(f"ds_add_rtn_u32 v{vT2}, v{vKF}, v{vT5}")
    if SM: e(f"s_mov_b64 exec, {X1}")
    e(f"ds_add_rtn_u32 v{vT3}, v{vKF+1}, v{vT5}")
    e("s_mov_b64 exec, -1")
    e(f"ds_read_b32 v{vT4}, v{vPA}")
    e("s_waitcnt lgkmcnt(0)")
    e(f"v_mov_b32 v{vKF+2}, v{vT4}")
    for sh in (1, 2, 4, 8):
        e("s_nop 1")
        e(f"v_add_u32_dpp v{vT4}, v{vT4}, v{vT4} row_shr:{sh} row_mask:0xf bank_mask:0xf bound_ctrl:0")
    e("s_nop 1")
    e(f"v_add_u32_dpp v{vT4}, v{vT4}, v{vT4} row_bcast:15 row_mask:0xa bank_mask:0xf")
    e("s_nop 1")
    e(f"v_add_u32_dpp v{vT4}, v{vT4}, v{vT4} row_bcast:31 row_mask:0xc bank_mask:0xf")
    e(f"v_sub_u32 v{vT4}, v{vT4}, v{vKF+2}")
    e(f"ds_bpermute_b32 v{vT0}, v{vT0}, v{vT4}")
    e(f"ds_bpermute_b32 v{vT1}, v{vT1}, v{vT4}")
    e("s_waitcnt lgkmcnt(0)")
    e(f"v_add_u32 v{vT2}, v{vT2}, v{vT0}")
    e(f"v_add_u32 v{vT3}, v{vT3}, v{vT1}")
e(f"v_lshlrev_b32 v{vRW}, 15, v{vRW}")
e(f"v_lshlrev_b32 v{vRW+1}, 15, v{vRW+1}")
e(f"v_lshl_add_u32 v{vT2}, v{vT2}, 2, s{sLBASE}")
e(f"v_lshl_add_u32 v{vT3}, v{vT3}, 2, s{sLBASE}")
e(f"s_mov_b64 exec, {X0}")
e(f"ds_write_b32 v{vT2}, v{vRW}")
if SM: e(f"s_mov_b64 exec, {X1}")
e(f"ds_write_b32 v{vT3}, v{vRW+1}")
e("s_mov_b64 exec, -1")
c("place the sorted tiles at their stream positions; flags: 1 valid, 2 masked, 4 last of batch, 8 last of stream")
e(f"v_mbcnt_lo_u32_b32 v{vT0}, s{sMA}, 0")
e(f"v_mbcnt_hi_u32_b32 v{vT0}, s{sMA+1}, v{vT0}")
e(f"v_lshl_add_u32 v{vT0}, v{vT0}, 3, s{sLBASE}")
e(f"ds_read_b64 v[{vT2}:{vT3}], v{vT0}")
e(f"s_lshr_b32 s{sT0}, s{sWB}, 8")
e(f"s_sub_u32 s{sT1}, s{sT}, 1")
e(f"v_cmp_eq_u32 vcc, s{sT0}, v{vLANE}")
e(f"v_cmp_eq_u32 s[{sRK+2}:{sRK+3}], s{sT1}, v{vLANE}")
e(f"v_cmp_eq_u32 s[{sT2}:{sT2+1}], {G-1}, v{vLANE}")
e(f"v_cndmask_b32 v{vT4}, 1, 3, vcc")
e(f"v_cndmask_b32 v{vT5}, 0, 12, s[{sRK+2}:{sRK+3}]")
e(f"v_cndmask_b32 v{vT1}, 0, 4, s[{sT2}:{sT2+1}]")
e(f"v_or3_b32 v{vT4}, v{vT4}, v{vT5}, v{vT1}")
e(f"v_lshlrev_b32 v{vT0}, 3, v{vLANE}")
e(f"v_add_u32 v{vT0}, {SL}, v{vT0}")
e("s_waitcnt lgkmcnt(0)")
e(f"v_or_b32 v{vT2}, v{vT2}, v{vT4}")
e(f"s_mov_b64 exec, s[{sMA}:{sMA+1}]")
e(f"ds_write_b64 v{vT0}, v[{vT2}:{vT3}]")
e("s_mov_b64 exec, -1")
lab("L_pl_done")
e(f"s_cmp_lg_u32 s{sMRG}, 0")
e("s_cbranch_scc1 L_fetch")
e(f"s_cmp_eq_u32 s{sTB}, 0")
e("s_cbranch_scc1 L_fin")
c("become the consumer of the donated tiles")
load_q(sPB)
e(f"s_mov_b64 s[{sMALL}:{sMALL+1}], s[{sMBK}:{sMBK+1}]")
e(f"s_mov_b32 s{sM}, s{sMBK}")
e(f"s_and_b32 s{sM+1}, s{sMBK+1}, {RHI:#x}")
e(f"s_mov_b32 s{sTTC}, s{sT}")
e(f"s_min_u32 s{sTB1}, s{sT}, {G}")
e(f"s_mov_b32 s{sROLE}, 1")
e(f"s_mov_b32 s{sPLN}, 1")
e(f"s_lshr_b32 s{sT3}, s{sZQ}, s{sPB}")
e(f"s_and_b32 s{sT3}, s{sT3}, 1")
e("s_branch L_csetup")

lab("L_fetch")
e(f"s_cmp_lg_u32 s{sCI}, 0")
e("s_cbranch_scc1 L_fin")
rows_off(sB)
if a.otouch >= 0:
    c("make the lines that will carry the partial valid in L2 (a later read of write-only lines would go to memory)")
    e(f"v_lshl_add_u32 v{vT4}, v{vLANE}, 7, s{sQO}")
    e(f"global_load_dword v{vPF}, v{vT4}, s[{sOUT}:{sOUT+1}] {a.ofl.replace('+', ' ')}")
ws_base(sB)
e(f"v_lshl_add_u32 v{vT1}, v{vT0}, 3, s{sT0}")
e(f"v_mov_b32 v{vFW}, s{sT0}")
e(f"s_lshl_b32 s{sT2}, s{sB}, 2")
e(f"v_mov_b32 v{vT2}, s{sT2}")
e(f"v_mov_b32 v{vPA}, {CTRL+16}")
e("s_mov_b64 exec, 1")
e(f"s_mul_i32 s{sNEED}, s{sT}, {a.pollnum}")
e(f"s_lshr_b32 s{sNEED}, s{sNEED}, 5")
e(f"s_lshl_b32 s{sT3}, s{sH}, 1")
e(f"s_mov_b32 s{sMBF}, 0")
c("wait until wave 5 has cleared the flag words and the stream is far enough")
lab("L_f_wait")
e(f"ds_read_b64 v[{vPL}:{vPL+1}], v{vPA}")
e("s_waitcnt lgkmcnt(0)")
e(f"v_readfirstlane_b32 s{sLND}, v{vPL}")
e(f"v_readfirstlane_b32 s{sT0}, v{vPL+1}")
e(f"s_cmp_ge_i32 s{sLND}, s{sNEED}")
e(f"s_cselect_b32 s{sT0}, s{sT0}, 0")
e(f"s_cmp_lg_u32 s{sT0}, 0")
e("s_cbranch_scc1 L_f_poll")
spin_tail("L_f_wait", 8)
lab("L_f_poll")
if "nopoll" in DBG: e("s_branch L_f_got")
e(f"global_load_dwordx2 v[{vPL}:{vPL+1}], v{vFW}, s[{sWS}:{sWS+1}] offset:256 sc1")
e(f"s_add_u32 s{sMBF}, s{sMBF}, 1")
e(f"s_and_b32 s{sT0}, s{sMBF}, 3")
e(f"s_mov_b32 s{sT2}, 0")
e("s_cbranch_scc1 L_f_nodbg")
e(f"global_load_dword v{vT3}, v{vT2}, s[{sDBG}:{sDBG+1}] sc1")
e("s_waitcnt vmcnt(0)")
e(f"v_readfirstlane_b32 s{sT2}, v{vT3}")
e(f"s_lshr_b32 s{sT2}, s{sT2}, s{sT3}")
lab("L_f_nodbg")
e("s_waitcnt vmcnt(0)")
e(f"v_lshl_or_b32 v{vPL}, v{vPL+1}, 1, v{vPL}")
e("s_nop 0")
e(f"v_readfirstlane_b32 s{sT0}, v{vPL}")
e(f"s_or_b32 s{sT0}, s{sT0}, s{sT2}")
e(f"s_and_b32 s{sT0}, s{sT0}, 3")
e(f"s_cmp_eq_u32 s{sT0}, 3")
e("s_cbranch_scc1 L_f_got")
spin_tail("L_f_poll", a.psleep)
lab("L_f_got")
e("s_mov_b64 exec, -1")
c("a half that came through memory: acquire at device scope before reading it")
e(f"s_and_b32 s{sT2}, s{sT2}, 3")
e("s_cbranch_scc0 L_f_ld")
e("buffer_inv sc1")
e("s_waitcnt vmcnt(0)")
lab("L_f_ld")
e(f"v_lshl_add_u32 v{vT4}, v{vLANE}, 4, s{sQO}")
e(f"v_add_u32 v{vT5}, 4096, v{vT4}")
FLD = " " + a.fld if a.fld != "none" else ""
for cc in range(2):
    if "nofetch" in DBG:
        e(f"v_mov_b32 v{vM+2*cc}, 0"); e(f"v_mov_b32 v{vM+2*cc+1}, 0")
        continue
    e(f"global_load_dwordx2 v[{vM+2*cc}:{vM+2*cc+1}], v{vT1}, s[{sWS}:{sWS+1}] offset:{128*cc}{FLD}")
    for j in range(4):
        r = vKF + 16 * cc + 4 * j
        e(f"global_load_dwordx4 v[{r}:{r+3}], v{vT4+cc}, s[{sOUT}:{sOUT+1}] offset:{1024*j}{FLD}")
e(f"v_lshlrev_b32 v{vT2}, 4, v{vLANE}")
e(f"v_add_u32 v{vT2}, {MB}, v{vT2}")
e(f"v_lshlrev_b32 v{vT0}, 3, v{vT0}")
e(f"v_add_u32 v{vT0}, {MB}, v{vT0}")
e(f"v_mov_b32 v{vPL}, {CTRL+4}")
e(f"v_mov_b32 v{vT3}, 1")
for cc in range(2):
    e(f"s_waitcnt vmcnt({5-5*cc})")
    for j in range(4):
        r = vKF + 16 * cc + 4 * j
        e(f"ds_write_b128 v{vT2}, v[{r}:{r+3}] offset:{MBS*cc + 1024*j}")
    e(f"ds_write_b64 v{vT0}, v[{vM+2*cc}:{vM+2*cc+1}] offset:{MBS*cc + 4096}")
    e(f"ds_write_b32 v{vPL}, v{vT3} offset:{8*cc}")
e(FIN)

c("wave 5: workgroups that share an L2 post their remaining work; one that lags prefetches deeper")
lab("L_ctl")
e(f"v_mov_b32 v{vT1}, {REC0}")
e(f"v_mov_b32 v{vPA}, {CTRL+32}")
e(f"v_mov_b32 v{vFW}, {DEPW}")
e(f"s_lshl_b32 s{sT0}, s{sB}, 2")
e(f"v_mov_b32 v{vG}, s{sT0}")
e(f"v_mov_b32 v{vFV}, v{vT3}")
lo = sum((XT[i] & 255) << (8 * i) for i in range(4)); hi = sum((XT[4 + i] & 255) << (8 * i) for i in range(4))
e(f"s_getreg_b32 s{sT0}, hwreg(HW_REG_XCC_ID, 0, 3)")
e(f"s_mov_b32 s{sM}, {lo:#x}")
e(f"s_mov_b32 s{sM+1}, {hi:#x}")
e(f"s_lshl_b32 s{sT0}, s{sT0}, 3")
e(f"s_lshr_b64 s[{sM}:{sM+1}], s[{sM}:{sM+1}], s{sT0}")
e(f"s_sext_i32_i8 s{sBO}, s{sM}")
lab("L_g_plan")
e(f"ds_read_b128 v[{vT2}:{vT5}], v{vT1}")
e("s_waitcnt lgkmcnt(0)")
e(f"v_readfirstlane_b32 s{sT0}, v{vT5}")
e(f"v_readfirstlane_b32 s{sT}, v{vT4}")
e(f"s_cmp_lg_u32 s{sT0}, 0")
e("s_cbranch_scc1 L_g_go")
spin_tail("L_g_plan", 8)
lab("L_g_go")
e(f"s_and_b32 s{sMRG}, s{sT}, 1")
e("s_cbranch_scc0 L_g_nores")
c("a partial is expected: clear its flag words before anything is posted")
ws_base(sB)
e(f"v_mov_b32 v{vT0}, s{sT0}")
e(f"v_mov_b32 v{vT2}, 0")
e(f"v_mov_b32 v{vT3}, 0")
e(f"v_mov_b32 v{vT4}, {CTRL+20}")
e(f"v_mov_b32 v{vT5}, 1")
e("s_mov_b64 exec, 1")
e(f"global_store_dwordx2 v{vT0}, v[{vT2}:{vT3}], s[{sWS}:{sWS+1}] offset:256")
e("s_waitcnt vmcnt(0)")
e(f"ds_write_b32 v{vT4}, v{vT5}")
e("s_mov_b64 exec, -1")
lab("L_g_nores")
e(f"s_and_b32 s{sT0}, s{sDBG}, 127")
e("s_cbranch_scc1 L_fin")
c("posted word: remaining units + 1 | head << 16 | die << 20 | flags cleared << 24")
e(f"s_getreg_b32 s{sFB}, hwreg(HW_REG_XCC_ID, 0, 4)")
e(f"s_lshl4_add_u32 s{sFB}, s{sMRG}, s{sFB}")
e(f"s_lshl4_add_u32 s{sFB}, s{sFB}, s{sH}")
e(f"s_lshl_b32 s{sFB}, s{sFB}, 16")
e(f"s_lshr_b32 s{sT}, s{sT}, 8")
e(f"s_lshl1_add_u32 s{sTN}, s{sT}, 1")
e(f"v_lshlrev_b32 v{vT1}, 1, v{vFV}")
e(f"v_add_u32 v{vT1}, {CTRL+68}, v{vT1}")
e(f"v_mov_b32 v{vT2}, s{sFB}")
e("s_mov_b64 exec, 1")
e(f"global_store_dword v{vG}, v{vT2}, s[{sDBG}:{sDBG+1}] offset:128")
e("s_mov_b64 exec, -1")
if "v" in a.tlb: e(f"global_load_dword v{vPF}, v{vTL}, s[{sV}:{sV+1}] nt")
if "prog2" in DBG: e("v_mov_b32 v50, 0")
if a.skew:
    e(f"s_mov_b32 s{sNEED}, 3")
    e(f"s_cmp_lt_u32 s{sT}, 8")
    e("s_cbranch_scc1 L_fin")
    lab("L_g_sw")
    e(f"ds_read_b32 v{vPL}, v{vPA}")
    e("s_waitcnt lgkmcnt(0)")
    e(f"v_readfirstlane_b32 s{sLND}, v{vPL}")
    e(f"s_cmp_ge_i32 s{sLND}, s{sNEED}")
    e("s_cbranch_scc1 L_g_sa")
    spin_tail("L_g_sw", 1)
    lab("L_g_sa")
    e(f"global_load_dword v{vT0}, v{vFV}, s[{sDBG}:{sDBG+1}] sc1")
    e("s_waitcnt vmcnt(0)")
    e(f"v_cmp_gt_i32 vcc, 0, v{vT0}")
    e(f"v_lshrrev_b32 v{vT0}, 16, v{vT0}")
    e(f"v_sub_u32 v{vT0}, s{sMA}, v{vT0}")
    e(f"v_bfe_i32 v{vT0}, v{vT0}, 0, 15")
    e(f"v_cndmask_b32 v{vT0}, 0, v{vT0}, vcc")
    for sh in (1, 2, 4):
        e("s_nop 1")
        op = "v_max_i32_dpp" if "ampmax" in DBG else "v_add_u32_dpp"
        e(f"{op} v{vT0}, v{vT0}, v{vT0} row_shr:{sh} row_mask:0xf bank_mask:0xf bound_ctrl:0")
    e("s_nop 0")
    e(f"v_readlane_b32 s{sT0}, v{vT0}, 7")
    if "ampmax" in DBG or "ampmean" in DBG:
        e(f"s_mul_i32 s{sMBK}, s{sT0}, {20 if 'ampmax' in DBG else 3}")
        e(f"s_max_i32 s{sMBK}, s{sMBK}, 0")
        e(f"s_add_u32 s{sMBK}, s{sMBK}, 3500")
        lab("L_amp")
        e("s_sleep 4")
        e(f"s_memrealtime s[{sLO}:{sLO+1}]")
        e("s_waitcnt lgkmcnt(0)")
        e(f"s_sub_u32 s{sT0}, s{sLO}, s{sMA}")
        e(f"s_cmp_lt_u32 s{sT0}, s{sMBK}")
        e("s_cbranch_scc1 L_amp")
        e("s_endpgm")
    e(f"s_mul_i32 s{sT0}, s{sT0}, {a.skew}")
    e(f"s_ashr_i32 s{sT0}, s{sT0}, 9")
    e(f"s_add_u32 s{sBO}, s{sBO}, s{sT0}")
e(f"s_mov_b32 s{sNEED}, {a.cstart}")
lab("L_g_next")
e(f"s_sub_u32 s{sT0}, s{sTN}, s{sNEED}")
e(f"s_cmp_lt_i32 s{sT0}, {a.cstop}")
e("s_cbranch_scc1 L_fin")
lab("L_g_w")
e(f"ds_read_b32 v{vPL}, v{vPA}")
e("s_waitcnt lgkmcnt(0)")
e(f"v_readfirstlane_b32 s{sLND}, v{vPL}")
e(f"s_cmp_ge_i32 s{sLND}, s{sNEED}")
e("s_cbranch_scc1 L_g_a")
spin_tail("L_g_w", 1)
lab("L_g_a")
if "prog2" in DBG:
    e(f"s_memrealtime s[{sST+2}:{sST+3}]")
    e(f"s_lshr_b32 m0, s{sLND}, 1")
    e("s_waitcnt lgkmcnt(0)")
    e(f"v_writelane_b32 v50, s{sST+2}, m0")
e(f"s_sub_u32 s{sNK}, s{sTN}, s{sLND}")
e(f"s_or_b32 s{sT0}, s{sNK}, s{sFB}")
e(f"v_mov_b32 v{vT2}, s{sT0}")
e("s_mov_b64 exec, 1")
e(f"global_store_dword v{vG}, v{vT2}, s[{sDBG}:{sDBG+1}] offset:128")
e("s_mov_b64 exec, -1")
e(f"global_load_dword v{vT0}, v{vFV}, s[{sDBG}:{sDBG+1}] offset:128 sc1")
e(f"s_add_u32 s{sNEED}, s{sLND}, {a.cstep}")
e(f"s_min_i32 s{sT3}, s{sBO}, 1")
e(f"s_max_i32 s{sT3}, s{sT3}, -1")
e(f"s_sub_u32 s{sBO}, s{sBO}, s{sT3}")
e("s_waitcnt vmcnt(0)")
e(f"ds_write_b32 v{vT1}, v{vT0}")
e(f"v_and_b32 v{vT0}, 0xffff, v{vT0}")
e(f"v_cmp_ne_u32 vcc, 0, v{vT0}")
for sh in (1, 2, 4, 8):
    e("s_nop 1")
    e(f"v_add_u32_dpp v{vT0}, v{vT0}, v{vT0} row_shr:{sh} row_mask:0xf bank_mask:0xf bound_ctrl:0")
e("s_nop 1")
e(f"v_add_u32_dpp v{vT0}, v{vT0}, v{vT0} row_bcast:15 row_mask:0xa bank_mask:0xf")
e(f"s_bcnt1_i32_b32 s{sT1}, vcc_lo")
e(f"v_readlane_b32 s{sT0}, v{vT0}, 31")
e(f"s_mul_i32 s{sT2}, s{sNK}, s{sT1}")
e(f"s_sub_u32 s{sT2}, s{sT2}, s{sT0}")
e(f"s_lshl_b32 s{sT2}, s{sT2}, 2")
for th, inc, cmp in ((CTH[0], -1, "lt"), (CTH[1], 1, "gt"), (CTH[2], 1, "gt")):
    e(f"s_mul_i32 s{sT0}, s{sT1}, {th - a.cbias}")
    e(f"s_cmp_{cmp}_i32 s{sT2}, s{sT0}")
    e(f"s_cselect_b32 s{sT0}, {inc}, 0")
    e(f"s_add_u32 s{sT3}, s{sT3}, s{sT0}")
e(f"s_max_i32 s{sT3}, s{sT3}, -1")
e(f"s_min_i32 s{sT3}, s{sT3}, 2")
e(f"v_mov_b32 v{vT2}, s{sT3}")
e(f"ds_write_b32 v{vFW}, v{vT2}")
e("s_branch L_g_next")

lab("L_fin")
if a.amp:
    if a.amp == "end":
        e(f"s_sub_u32 s{sT0}, s{sW}, 1")
        e(f"s_cmp_gt_u32 s{sT0}, 1")
    else:
        e(f"s_cmp_lg_u32 s{sW}, 0")
    e("s_cbranch_scc1 L_end")
    if a.ampwg >= 0:
        e(f"s_cmp_lg_u32 s2, {a.ampwg}")
        e("s_cbranch_scc1 L_end")
    e("s_waitcnt vmcnt(0) lgkmcnt(0)")
    if a.amp[:2] != "t0":
        e(f"s_memrealtime s[{sST+2}:{sST+3}]")
        e("s_waitcnt lgkmcnt(0)")
    e(f"s_sub_u32 s{sT1}, s{sST+2}, s{sST}")
    if a.amp[:2] != "t0": e(f"s_sub_u32 s{sT1}, s{sT1}, 2700")
    if a.amp == "t0x":
        e(f"s_getreg_b32 s{sT1}, hwreg(HW_REG_XCC_ID, 0, 4)")
        e(f"s_mul_i32 s{sT1}, s{sT1}, 50")
    if a.amp == "t0p":
        e(f"s_getreg_b32 s{sT1}, hwreg(HW_REG_XCC_ID, 0, 1)")
        e(f"s_mul_i32 s{sT1}, s{sT1}, 200")
    e(f"s_max_i32 s{sT1}, s{sT1}, 0")
    e(f"s_min_i32 s{sT1}, s{sT1}, 2000")
    e(f"s_mul_i32 s{sT1}, s{sT1}, 10")
    e(f"s_add_u32 s{sT1}, s{sT1}, 3500")
    lab("L_ampw")
    e("s_sleep 2")
    e(f"s_memrealtime s[{sST+2}:{sST+3}]")
    e("s_waitcnt lgkmcnt(0)")
    e(f"s_sub_u32 s{sT0}, s{sST+2}, s{sST}")
    e(f"s_cmp_lt_u32 s{sT0}, s{sT1}")
    e("s_cbranch_scc1 L_ampw")
if "prog2" in DBG or "prog3" in DBG:
    e(f"s_cmp_lg_u32 s{sW}, {5 if 'prog2' in DBG else 0}")
    e("s_cbranch_scc1 L_np2")
    e(f"s_lshl_b32 s{sT0}, s2, 8")
    e(f"s_add_u32 s{sT0}, s{sT0}, 0x400000")
    e(f"v_lshl_add_u32 v51, v{vLANE}, 2, s{sT0}")
    e(f"global_store_dword v51, v50, s[{sWS}:{sWS+1}]")
    lab("L_np2")
if a.stamps:
    e(f"s_cmp_gt_u32 s{sW}, 2")
    e("s_cbranch_scc1 L_end")
    e("s_mov_b64 exec, -1")
    e("s_waitcnt vmcnt(0) lgkmcnt(0)")
    stamp(3)
    e(f"s_getreg_b32 s{sT0}, hwreg(HW_REG_XCC_ID)")
    e("s_waitcnt lgkmcnt(0)")
    for i in range(8):
        e(f"v_mov_b32 v{64+i}, s{sST+i}")
    e(f"v_mov_b32 v72, s{sT0}")
    e(f"s_sub_u32 s{sT1}, {SPIN}, s{sSPIN}")
    e(f"v_mov_b32 v73, s{sT1}")
    e(f"v_mov_b32 v74, s{sT}")
    e(f"v_mov_b32 v75, 0")
    e(f"s_mul_i32 s{sT0}, s2, {NW}")
    e(f"s_add_u32 s{sT0}, s{sT0}, s{sW}")
    e(f"s_lshl_b32 s{sT0}, s{sT0}, 6")
    e(f"v_mov_b32 v80, s{sT0}")
    e("s_mov_b64 exec, 1")
    e(f"global_store_dwordx4 v80, v[64:67], s[{sWS}:{sWS+1}]")
    e(f"global_store_dwordx4 v80, v[68:71], s[{sWS}:{sWS+1}] offset:16")
    e(f"global_store_dwordx4 v80, v[72:75], s[{sWS}:{sWS+1}] offset:32")
lab("L_end")
e("s_endpgm")
if a.wake:
    out.append(".p2align 8")
    lab("L_pad")
    out.append(f".fill {64 * a.wake}, 4, 0xbf810000")
out.append('.section .rodata,"a"')
out.append(".p2align 6")
out.append(f".amdhsa_kernel {NAME}_kernel")
out.append(f"  .amdhsa_next_free_vgpr {NV}")
out.append("  .amdhsa_next_free_sgpr 102")
out.append(f"  .amdhsa_accum_offset {NV}")
out.append("  .amdhsa_group_segment_fixed_size 0")
out.append("  .amdhsa_kernarg_size 64")
out.append("  .amdhsa_user_sgpr_count 2")
out.append("  .amdhsa_user_sgpr_kernarg_segment_ptr 1")
out.append("  .amdhsa_system_sgpr_workgroup_id_x 1")
out.append("  .amdhsa_float_denorm_mode_32 3")
out.append(".end_amdhsa_kernel")
open(a.o, "w").write("\n".join(out) + "\n")
```

```python
import sys, argparse
NAME = "standalone__paged_block_table_kv_pagedattention__sampling"
HEADER = open("cdna_kernels/" + NAME + ".s.ref").read().split("; Override")[0]

ap = argparse.ArgumentParser()
ap.add_argument("-o", default="/dev/stdout")
ap.add_argument("--map", default="plain")
ap.add_argument("--hrot", type=int, default=0)
ap.add_argument("--D", type=int, default=21)
ap.add_argument("--D0", type=int, default=26)
ap.add_argument("--NS", type=int, default=6)
ap.add_argument("--G", type=int, default=50)
ap.add_argument("--fnum", type=int, default=40)
ap.add_argument("--pollnum", type=int, default=55)
ap.add_argument("--psleep", type=int, default=6)
ap.add_argument("--UB", type=int, default=8)
ap.add_argument("--mfirst", type=int, default=1)
ap.add_argument("--cth", default="-2,2,5")
ap.add_argument("--cbias", type=int, default=7)
ap.add_argument("--cstart", type=int, default=8)
ap.add_argument("--cstop", type=int, default=4)
ap.add_argument("--cstep", type=int, default=3)
ap.add_argument("--xt", default="5,-4,5,-9,5,2,5,-5")
ap.add_argument("--NUM", type=int, default=4)
ap.add_argument("--last", type=int, default=1)
ap.add_argument("--hold", default="")
ap.add_argument("--ost", default="")
ap.add_argument("--wb", type=int, default=0)
ap.add_argument("--skew", type=int, default=0)
ap.add_argument("--dv", default="-1,1,3")
ap.add_argument("--fpf", type=int, default=6)
ap.add_argument("--fld", default="sc1")
ap.add_argument("--opf", type=int, default=0)
ap.add_argument("--otouch", type=int, default=0)
ap.add_argument("--ospread", type=int, default=1)
ap.add_argument("--ofl", default="")
ap.add_argument("--DM", type=int, default=0)
ap.add_argument("--NE", type=int, default=3)
ap.add_argument("--amp", default="")
ap.add_argument("--ampwg", type=int, default=-1)
ap.add_argument("--tlb", default="")
ap.add_argument("--tlbs", type=int, default=21)
ap.add_argument("--wake", type=int, default=0)
ap.add_argument("--spec", type=int, default=1)
ap.add_argument("--lat", type=int, default=1)
ap.add_argument("--smart", default="")
ap.add_argument("--bar", type=int, default=1)
ap.add_argument("--hmap", default="")
ap.add_argument("--pst", default="")
ap.add_argument("--pfm", type=int, default=0)
ap.add_argument("--nosort", action="store_true")
ap.add_argument("--nopair", action="store_true")
ap.add_argument("--limf", default="0x43800000")
ap.add_argument("--dbg", default="")
ap.add_argument("--stamps", action="store_true")
a = ap.parse_args()
NT = " nt"
OST = "" if not a.ost else " " + a.ost.replace("+", " ")
DBG = set(a.dbg.split(","))
D, D0, NS, G = a.D, a.D0, a.NS, a.G
assert 24 <= D0 <= 32 and (D - 2) // 8 == (D + 1) // 8 == 2 and 32 <= G < 64
CTH = [int(x) for x in a.cth.split(",")]
XT = [int(x) for x in a.xt.split(",")]
DV = [int(x) for x in a.dv.split(",")]
assert 17 <= D + DV[0] and D + DV[2] <= 24
DIVM = {5: (205, 10), 6: (43, 8), 7: (147, 10), 8: (1, 3), 10: (205, 11), 12: (171, 11)}[NS]
assert all((u * DIVM[0]) >> DIVM[1] == u // NS for u in range(129))
NW = 6
KBYTES = 4100 * 32768
SPIN = 1 << 22
NUM = a.NUM

RING = NS * 8192
PST = RING
MB = PST + G * 2048
MBS = 4224
CTRL = MB + 2 * MBS
FREE = CTRL + 512
REC0 = FREE + 128
DEPW = REC0 + 16
SL = FREE + 256
CNT = SL + 768
LA = CNT + 512
LB = LA + 512
KEYS = LB + 512
LDS = KEYS + 256
assert LDS <= 163840, LDS
WS0 = 0x100000 if a.stamps else 0
WSA = WS0 + 0x40000

out = []
def e(s): out.append("    " + s)
def lab(s): out.append(s + ":")
def c(s): out.append("    ; " + s)

sQ, sK, sV, sBT, sCL, sOUT, sDBG, sWS = 4, 6, 8, 10, 12, 14, 16, 18
sRD = 20
sB, sH, sW, sCLV = 28, 29, 30, 31
sT0, sT1, sT2, sT3 = 32, 33, 34, 35
sPC = 36
sSPIN = 38
sNB, sNTL, sNU, sT = 39, 40, 41, 42
sST = 64
sE = 72
sB0, sB1, sFL, sPM, sSLOT, sU, sTA0 = 46, 47, 48, 49, 52, 56, 57
sM = 46
sCI, sLND, sMBF, sNEED, sMRG, sMT, sROLE, sQO, sPLN, sSB = 48, 49, 50, 51, 52, 56, 57, 58, 59, 60
sV0 = 61
sCST = 62
sTN, sNK, sFWN, sFB, sPRE, sREDO, sLIMF, sPO = 96, 97, 98, 99, 100, 101, 53, 43
sMALL, sRS = 24, 26
sOFF, sTB0, sTB1, sTTC, sFIRST = 20, 21, 22, 23, 44
sZQ = 54
sRK, sPB, sNP, sX, sTA, sTB, sF, sWB = 80, 81, 82, 83, 84, 85, 86, 87
sMA, sMBK = 88, 90
sLO, sHI, sLBASE = 92, 93, 94
sBO = 56
vLANE = 1
vT0, vT1, vT2, vT3, vT4, vT5 = 2, 3, 4, 5, 6, 7
vL = 8
vKOFF, vVOFF = 10, 14
vCA, vCNT, vFA, vR = 18, 19, 20, 21
vF = 22
vCUR = 24
vTR = 28
vTRK, vTRV = 36, 52
vEN = 44
vDP, vDA, vOOB, vSA = 46, 47, 48, 49
vKA0, vVA0, vXA = 8, 12, 16
vPA0, vPW, vINV, vOA = 20, 21, 22, 23
vM, vLS, vMN, vAL, vPA, vFW = 24, 25, 26, 27, 28, 29
vPL = 30
vQ = 32
vS = 48
vP = 56
vG, vPF, vFV, vN = 60, 61, 62, 63
vKF = 64
vVF = 96
vO = 128
vE = 160
vPN = 160
NV = 168

def stamp(i):
    if a.amp and (i == 0 or (i == 1 and a.amp == "t0")): e(f"s_memrealtime s[{sST+2*i}:{sST+2*i+1}]")
    if a.hold and i == 0: e(f"{'s_memrealtime' if a.hold[:2] == 'rt' else 's_memtime'} s[{sST}:{sST+1}]")
    if a.stamps: e(f"s_memrealtime s[{sST+2*i}:{sST+2*i+1}]")
def clamp_cl(zq=None):
    c("context length: <=0 -> every key masked => uniform weights over 2048 keys (zero Q); >2048 -> 2048")
    e(f"s_cmp_lt_i32 s{sCLV}, 1")
    if zq is not None: e(f"s_cselect_b32 s{zq}, 1, 0")
    e(f"s_cselect_b32 s{sCLV}, 2048, s{sCLV}")
    e(f"s_min_i32 s{sCLV}, s{sCLV}, 2048")
def derive_nb():
    e(f"s_add_u32 s{sNTL}, s{sNB}, 1")
    e(f"s_lshr_b32 s{sNTL}, s{sNTL}, 1")
    e(f"s_sub_u32 s{sNU}, s{sNTL}, 1")
    e(f"s_min_u32 s{sNU}, s{sNU}, {NUM}")
def derive_cl():
    e(f"s_add_u32 s{sNB}, s{sCLV}, 15")
    e(f"s_lshr_b32 s{sNB}, s{sNB}, 4")
    derive_nb()
def spin_tail(label, sleep=1):
    e(f"s_sleep {sleep}")
    e(f"s_sub_u32 s{sSPIN}, s{sSPIN}, 1")
    e(f"s_cbranch_scc0 {label}")
    e("s_endpgm")
FIN = "s_branch L_fin" if (a.stamps or a.amp) else "s_endpgm"

out.append(HEADER.rstrip())
out.append(f"; @launch grid=(256,1,1) block=({64*NW},1,1) lds={LDS}")
for line in """
Paged GQA attention, one workgroup per (batch b, kv head h); HBM-bound, so everything serves the K/V stream.
  wave 0     loader: LDS-DMA of 8 KB units (32 keys of K or V) into a ring, a counted number of requests in flight.
             Pass 1 streams every K tile, pass 2 every V tile, both in ascending physical-block order.
  waves 1,2  own task, 16 query rows each: pass 1 scores + softmax weights (kept in LDS), pass 2 weighted values.
  waves 3,4  rank the batches by length, pair long with short, sort the block ids. In a short workgroup they then
             process tiles donated by the long partner and hand the partial result over; in a long one wave 3 fetches it.
  wave 5     compares progress with the workgroups sharing its L2 and nudges the loader's request depth.
Hand-offs work under any placement: inside L2 only after a run-time check that both sides share a die.
""".strip("\n").split("\n"): out.append("; " + line)
out.append('.amdgcn_target "amdgcn-amd-amdhsa--gfx950"')
out.append(".text")
out.append(f".globl {NAME}_kernel")
out.append(".p2align 8")
out.append(f".type {NAME}_kernel,@function")
lab(f"{NAME}_kernel")
e("s_load_dwordx16 s[4:19], s[0:1], 0")
e(f"s_lshr_b32 s{sB}, s2, 3")
e(f"s_cmp_ge_u32 s{sB}, 32")
e("s_cbranch_scc1 L_end")
stamp(0)
e(f"v_lshrrev_b32 v{vT0}, 6, v0")
e(f"v_and_b32 v{vLANE}, 63, v0")
e(f"v_readfirstlane_b32 s{sW}, v{vT0}")
c("wave 1 pulls this kernel's code into L2")
e(f"s_getpc_b64 s[{sPC}:{sPC+1}]")
lab("L_pc")
e(f"v_lshlrev_b32 v{vT2}, 7, v{vLANE}")
e(f"v_min_u32 v{vT2}, L_end - L_pc - 256, v{vT2}")
if a.pfm:
    e(f"s_and_b32 s{sT0}, s2, {a.pfm << 3}")
    e(f"s_add_u32 s{sT0}, s{sT0}, s{sW}")
    e(f"s_cmp_lg_u32 s{sT0}, 1")
else:
    e(f"s_cmp_lg_u32 s{sW}, 1")
e("s_cbranch_scc1 L_nopf")
e(f"global_load_dword v{vPF}, v{vT2}, s[{sPC}:{sPC+1}] offset:256")
if a.wake:
    e(f"s_mul_i32 s{sT3}, s2, {a.wake}")
    e(f"v_and_b32 v{vT2}, {a.wake - 256}, v{vT2}")
    e(f"v_add_u32 v{vT2}, s{sT3}, v{vT2}")
    e(f"v_add_u32 v{vT2}, L_pad - L_pc, v{vT2}")
    e(f"global_load_dword v{vFV}, v{vT2}, s[{sPC}:{sPC+1}] nt")
lab("L_nopf")
c("clear the control words and the sort counters")
e(f"v_mov_b64 v[{vT2}:{vT3}], 0")
e(f"v_lshlrev_b32 v{vT4}, 3, v0")
e(f"v_add_u32 v{vT4}, {CTRL}, v{vT4}")
e(f"ds_write_b64 v{vT4}, v[{vT2}:{vT3}]")
if a.map == "rot":
    e(f"s_add_u32 s{sH}, s2, s{sB}")
    e(f"s_and_b32 s{sH}, s{sH}, 7")
elif a.hmap:
    e(f"s_lshl_b32 s{sH}, s2, 2")
    e(f"s_lshr_b32 s{sH}, {a.hmap}, s{sH}")
    e(f"s_and_b32 s{sH}, s{sH}, 7")
elif a.hrot:
    e(f"s_add_u32 s{sH}, s2, {a.hrot}")
    e(f"s_and_b32 s{sH}, s{sH}, 7")
else:
    e(f"s_and_b32 s{sH}, s2, 7")
e(f"s_lshl3_add_u32 s{sT2}, s{sB}, s{sH}")
e(f"s_lshl_b32 s{sT2}, s{sT2}, 13")
e(f"v_lshl_add_u32 v{vT5}, v{vLANE}, 7, s{sT2}")
e(f"s_lshl_b32 s{sT0}, s{sB}, 9")
e(f"v_lshl_add_u32 v{vT2}, v{vLANE}, 3, s{sT0}")
if not a.spec: e(f"s_lshl_b32 s{sT1}, s{sB}, 2")
e(f"v_and_b32 v{vT0}, 31, v{vLANE}")
e(f"v_lshlrev_b32 v{vT3}, 2, v{vT0}")
vTL = 22
if a.tlb:
    e(f"v_min_u32 v{vTL}, {(2 << (21 - a.tlbs)) - 1}, v{vLANE}")
    e(f"v_lshl_add_u32 v{vTL}, v{vTL}, 5, s{sB}")
    e(f"s_mul_i32 s{sT3}, s2, {8064 >> (21 - a.tlbs) & ~127}")
    e(f"v_lshl_add_u32 v{vTL}, v{vTL}, {a.tlbs}, s{sT3}")
e(f"s_cmp_lg_u32 s{sW}, 2")
e("s_waitcnt lgkmcnt(0)")
e(f"s_load_dwordx8 s[{sE}:{sE+7}], s[{sBT}:{sBT+1}], s{sT0}")
if not a.spec: e(f"s_load_dword s{sCLV}, s[{sCL}:{sCL+1}], s{sT1}")
c("wave 2 touches the 64 lines of this workgroup's queries while memory is still idle")
e("s_cbranch_scc1 L_noq")
if "k" in a.tlb: e(f"global_load_dword v{vFV}, v{vTL}, s[{sK}:{sK+1}] nt")
e(f"global_load_dword v{vPF}, v{vT5}, s[{sQ}:{sQ+1}]")
lab("L_noq")
if a.opf:
    e(f"s_cmp_lg_u32 s{sW}, 4")
    e("s_cbranch_scc1 L_noo")
    e(f"global_load_dword v{vPF}, v{vT5}, s[{sOUT}:{sOUT+1}]")
    lab("L_noo")
e(f"global_load_dwordx2 v[{vL}:{vL+1}], v{vT2}, s[{sBT}:{sBT+1}]")
e(f"global_load_dword v{vN}, v{vT3}, s[{sCL}:{sCL+1}]")
lab("L_loads_issued")
if a.amp == "t0k": e(f"s_memrealtime s[{sST+2}:{sST+3}]")
e(f"s_cmp_lg_u32 s{sW}, 0")
e(f"s_mov_b32 s{sSPIN}, {SPIN}")
e("s_cbranch_scc1 L_notloader")

e("s_setprio 3")
c("per-lane source offsets of the LDS-DMA pieces (bank swizzle applied on the source side)")
e(f"v_lshrrev_b32 v{vR}, 4, v{vLANE}")
e(f"v_and_b32 v{vT1}, 15, v{vLANE}")
e(f"s_lshl_b32 s{sT0}, s{sH}, 8")
e(f"v_lshl_add_u32 v{vT4}, v{vR}, 11, s{sT0}")
e(f"v_xor_b32 v{vT2}, v{vR}, v{vT1}")
e(f"v_lshl_add_u32 v{vKOFF}, v{vT2}, 4, v{vT4}")
for j in range(1, 4):
    e(f"v_xor_b32 v{vT3}, {64*j}, v{vKOFF}")
    e(f"v_add_u32 v{vKOFF+j}, {7168*j}, v{vT3}")
e(f"s_mov_b32 s{sRD}, s{sK}")
e(f"s_and_b32 s{sRD+1}, s{sK+1}, 0xffff")
e(f"s_mov_b32 s{sRD+2}, {KBYTES}")
e(f"s_mov_b32 s{sRD+3}, 0x20000")
if a.amp == "t0c": e(f"s_memrealtime s[{sST+2}:{sST+3}]")
if a.bar < 0: e("s_barrier")
e("s_waitcnt lgkmcnt(0)")
if not a.spec: clamp_cl()
c("the first stream tiles are the leading logical tiles; requested before the context length is known")
NE = a.NE
for t in range(NE):
    if not a.spec:
        e(f"s_cmp_le_u32 s{sCLV}, {32*(t+1)}")
        e(f"s_cbranch_scc1 {'L_ld_b' if t < 2 else 'L_ld_pre'}")
    if t == 0: stamp(1)
    for j in range(8):
        i = 8 * t + j
        if j % 4 == 0:
            e(f"s_movk_i32 m0, {1024*i}")
            e(f"s_lshl_b32 s{sB0}, s{sE+i//4}, 15")
        if i >= D0: e(f"s_waitcnt vmcnt({D0-1})")
        e(f"buffer_load_dwordx4 v{vKOFF+j%4}, s[{sRD}:{sRD+3}], s{sB0} offen offset:{1024*(j%4)}{NT} lds")
    if t == a.bar:
        lab("L_ld_b")
        e("s_barrier")
lab("L_ld_pre")
j0 = (D - 1) % 8
e(f"v_lshlrev_b32 v{vT3}, 2, v{vR}")
e(f"v_xor_b32 v{vT3}, v{vT3}, v{vT1}")
e(f"v_lshl_add_u32 v{vVOFF}, v{vT3}, 4, v{vT4}")
for j in range(1, 4):
    e(f"v_add_u32 v{vVOFF+j}, {7168*j}, v{vVOFF}")
e(f"v_lshlrev_b32 v{vCA}, 3, v{vLANE}")
e(f"v_add_u32 v{vT0}, {SL}, v{vCA}")
e(f"v_add_u32 v{vCA}, {CTRL}, v{vCA}")
e(f"v_mov_b32 v{vFA}, {FREE}")
e(f"v_mov_b64 v[{vF}:{vF+1}], 0")
e(f"v_mov_b32 v{vDP}, {2 if NE == 3 else 0}")
e(f"v_mov_b32 v{vDA}, {DEPW}")
e(f"v_bfrev_b32 v{vOOB}, 1")
def set_pass(off):
    for j in range(0, 4, 2): e(f"v_mov_b64 v[{vCUR+j}:{vCUR+j+1}], v[{off+j}:{off+j+1}]")
set_pass(vKOFF)
if "prog3" in DBG: e("v_mov_b32 v50, 0")
e(f"s_mov_b32 s{sPM}, 4")
e(f"s_mov_b32 s{sTA0}, 0")
if a.spec:
    e(f"s_waitcnt vmcnt({8*NE})")
    e(f"v_readlane_b32 s{sCLV}, v{vN}, s{sB}")
    clamp_cl()
derive_cl()
c("the leading tiles enter the stream list straight from the table row")
e(f"s_min_u32 s{sT}, s{sNU}, {NE}")
e(f"s_lshl3_add_u32 s{sT0}, s{sT}, {SL}")
e(f"v_mov_b32 v{vSA}, s{sT0}")
e(f"s_sub_u32 s{sT0}, s{sT}, 3")
e(f"v_mov_b32 v{vCNT}, s{sT0}")
e(f"s_bfm_b64 s[{sT2}:{sT2+1}], s{sNU}, 0")
e(f"s_cmp_ge_u32 s{sNU}, {NE}")
e("s_cbranch_scc1 L_ld_row")
e("s_waitcnt vmcnt(0)")
lab("L_ld_row")
if not (a.spec and NE == 3): e("s_waitcnt vmcnt(24)")
if NE == 4: e(f"ds_write_b32 v{vCA}, v{vCNT}")
e(f"v_lshl_or_b32 v{vEN}, v{vL}, 15, 1")
e(f"v_lshlrev_b32 v{vEN+1}, 15, v{vL+1}")
e(f"s_mov_b64 exec, s[{sT2}:{sT2+1}]")
e(f"ds_write_b64 v{vT0}, v[{vEN}:{vEN+1}]")
e("s_mov_b64 exec, -1")
e(f"ds_read_b64 v[{vEN}:{vEN+1}], v{vSA}")
e(f"s_lshl_b32 s{sSLOT}, s{sT}, 13")
e(f"s_mov_b32 s{sU}, s{sT}")
c("lanes of the last logical tile whose rows lie inside the context")
e(f"s_lshl_b32 s{sT0}, s{sNTL}, 5")
e(f"s_sub_u32 s{sT0}, s{sCLV}, s{sT0}")
e(f"s_add_u32 s{sT0}, s{sT0}, 32")
e(f"v_sub_u32 v{vT1}, s{sT0}, v{vR}")
for k in range(8):
    e(f"v_cmp_lt_i32 s[{80+2*k}:{81+2*k}], {4*k}, v{vT1}")
if a.amp == "t0r": e(f"s_memrealtime s[{sST+2}:{sST+3}]")
if a.amp[:3] == "t0l":
    e(f"s_waitcnt vmcnt({int(a.amp[3:])})")
    e(f"s_memrealtime s[{sST+2}:{sST+3}]")
stamp(2)
def unit_body(depth, trimmed=False):
    for j in range(8):
        if j % 4 == 0: e(f"s_add_u32 m0, s{sSLOT}, {1024*j}")
        e(f"s_waitcnt vmcnt({depth-1})")
        e(f"buffer_load_dwordx4 v{vTR+j if trimmed else vCUR+j%4}, s[{sRD}:{sRD+3}], s{sB0 + j//4} offen offset:{1024*(j%4)}{NT} lds")
        if j == (depth - 1) % 8:
            e(f"v_add_u32 v{vCNT}, 1, v{vCNT}")
            e(f"ds_write_b32 v{vCA}, v{vCNT}")
        if j == 0:
            e(f"s_add_u32 s{sT2}, s{sSLOT}, 8192")
            e(f"s_cmp_eq_u32 s{sT2}, {RING}")
            e(f"s_cselect_b32 s{sT2}, 0, s{sT2}")
            e(f"s_lshr_b32 s{sT0}, s{sT2}, 10")
            e(f"s_add_u32 s{sT0}, s{sT0}, {FREE}")
            e(f"v_mov_b32 v{vFA}, s{sT0}")
        if j == 1:
            e(f"s_add_u32 s{sT}, s{sT}, 1")
            e(f"s_and_b32 s{sT0}, s{sFL}, s{sPM}")
            e(f"s_cselect_b32 s{sT}, s{sTA0}, s{sT}")
            e(f"s_lshl3_add_u32 s{sT0}, s{sT}, {SL}")
            e(f"v_mov_b32 v{vSA}, s{sT0}")
            e(f"s_add_u32 s{sU}, s{sU}, 1")
        if j == a.fpf:
            c("prefetch the next list entry, the FREE words of the next slot and the depth code")
            e(f"ds_read_b64 v[{vEN}:{vEN+1}], v{vSA}")
            e(f"ds_read_b64 v[{vF}:{vF+1}], v{vFA}")
            e(f"ds_read_b32 v{vDP}, v{vDA}")
            e(f"s_mov_b32 s{sSLOT}, s{sT2}")
out.append(".p2align 3")
lab("L_ld")
if "prog3" in DBG:
    e(f"s_memrealtime s[{sST+4}:{sST+5}]")
    e(f"s_min_u32 m0, s{sU}, 63")
e("s_waitcnt lgkmcnt(0)")
if "prog3" in DBG: e(f"v_writelane_b32 v50, s{sST+4}, m0")
e(f"v_min_i32 v{vT0}, v{vF}, v{vF+1}")
e(f"v_readfirstlane_b32 s{sFL}, v{vEN}")
e(f"v_readfirstlane_b32 s{sB1}, v{vEN+1}")
e(f"v_readfirstlane_b32 s{sT0}, v{vT0}")
e(f"v_readfirstlane_b32 s{sT3}, v{vDP}")
e(f"s_sub_u32 s{sT1}, s{sU}, {NS-1}")
e(f"s_cmp_ge_i32 s{sT0}, s{sT1}")
e(f"s_cselect_b32 s{sT0}, s{sFL}, 0")
e(f"s_and_b32 s{sB0}, s{sFL}, -16")
e(f"s_and_b32 s{sT0}, s{sT0}, 3")
e(f"s_cmp_lg_u32 s{sT0}, 1")
e("s_cbranch_scc1 L_ld_odd")
e(f"s_cmp_lg_u32 s{sT3}, 0")
e("s_cbranch_scc1 L_ld_var")
unit_body(D)
lab("L_ld_next")
e(f"s_bitcmp1_b32 s{sFL}, 2")
e("s_cbranch_scc0 L_ld")
c("last tile of the batch: change pass")
e(f"s_xor_b32 s{sPM}, s{sPM}, 4")
e("s_cbranch_scc1 L_ld_tok")
e(f"s_mov_b32 s{sRD}, s{sV}")
e(f"s_and_b32 s{sRD+1}, s{sV+1}, 0xffff")
set_pass(vVOFF)
e("s_branch L_ld")
lab("L_ld_tok")
e(f"s_bitcmp1_b32 s{sFL}, 3")
e("s_cbranch_scc0 L_ld_more")
for r in (16, 8, 0):
    e(f"v_add_u32 v{vCNT}, 1, v{vCNT}")
    e(f"s_waitcnt vmcnt({r})")
    e(f"ds_write_b32 v{vCA}, v{vCNT}")
if a.hold:
    lab("L_hold")
    e(f"{'s_memrealtime' if a.hold[:2] == 'rt' else 's_memtime'} s[{sST+2}:{sST+3}]")
    e("s_waitcnt lgkmcnt(0)")
    e(f"s_sub_u32 s{sT0}, s{sST+2}, s{sST}")
    e(f"s_cmp_lt_u32 s{sT0}, {a.hold[3:]}")
    e("s_cbranch_scc1 L_hold")
e(FIN)
lab("L_ld_more")
e(f"s_mov_b32 s{sTA0}, s{sT}")
e(f"s_mov_b32 s{sRD}, s{sK}")
e(f"s_and_b32 s{sRD+1}, s{sK+1}, 0xffff")
set_pass(vKOFF)
e("s_branch L_ld")
lab("L_ld_odd")
e(f"s_cmp_eq_u32 s{sT0}, 3")
e("s_cbranch_scc1 L_ld_m")
c("slot not free yet or entry not written yet")
e(f"ds_read_b64 v[{vEN}:{vEN+1}], v{vSA}")
e(f"ds_read_b64 v[{vF}:{vF+1}], v{vFA}")
e(f"s_sub_u32 s{sSPIN}, s{sSPIN}, 1")
e("s_cbranch_scc0 L_ld")
e("s_endpgm")
lab("L_ld_m")
c("the last logical tile: rows past the context are not fetched (their lanes read zeros)")
for k in range(8):
    e(f"v_cndmask_b32 v{vTR+k}, v{vOOB}, v{vCUR+k%4}, s[{80+2*k}:{81+2*k}]")
unit_body(D + a.DM, True)
e("s_branch L_ld_next")
lab("L_ld_var")
e(f"s_cmp_eq_u32 s{sT3}, 1")
e("s_cbranch_scc1 L_ld_v2")
e(f"s_cmp_eq_u32 s{sT3}, 2")
e("s_cbranch_scc1 L_ld_v3")
unit_body(D + DV[0])
e("s_branch L_ld_next")
lab("L_ld_v2")
unit_body(D + DV[1])
e("s_branch L_ld_next")
lab("L_ld_v3")
unit_body(D + DV[2])
e("s_branch L_ld_next")

lab("L_notloader")
e(f"s_cmp_ge_u32 s{sW}, 3")
e("s_cbranch_scc1 L_planner")
e(f"s_sub_u32 s{sCI}, s{sW}, 1")
def rows_off(sb):
    e(f"s_lshl3_add_u32 s{sQO}, s{sb}, s{sH}")
    e(f"s_lshl1_add_u32 s{sQO}, s{sQO}, s{sCI}")
    e(f"s_lshl_b32 s{sQO}, s{sQO}, 12")
    e(f"v_and_b32 v{vT0}, 15, v{vLANE}")
    e(f"v_lshrrev_b32 v{vG}, 4, v{vLANE}")
def load_q(sb):
    rows_off(sb)
    e(f"v_lshl_add_u32 v{vT4}, v{vT0}, 8, s{sQO}")
    e(f"v_lshl_add_u32 v{vT4}, v{vG}, 4, v{vT4}")
    for s in range(4):
        e(f"global_load_dwordx4 v[{vQ+4*s}:{vQ+4*s+3}], v{vT4}, s[{sQ}:{sQ+1}] offset:{64*s}")
load_q(sB)
e("s_barrier")
e(f"s_mov_b32 s{sROLE}, 0")
e(f"s_mov_b32 s{sPLN}, 0")
e(f"s_mov_b32 s{sMRG}, 0")
if a.spec:
    e("s_waitcnt vmcnt(4) lgkmcnt(0)")
    e(f"v_readlane_b32 s{sCLV}, v{vN}, s{sB}")
else: e("s_waitcnt lgkmcnt(0)")
clamp_cl(zq=sT3)
derive_cl()
c("valid keys of the last logical tile")
e(f"s_lshl_b32 s{sV0}, s{sNTL}, 5")
e(f"s_sub_u32 s{sV0}, s{sCLV}, s{sV0}")
e(f"s_add_u32 s{sV0}, s{sV0}, 32")
e(f"s_bfm_b64 s[{sM}:{sM+1}], s{sNU}, 0")
lab("L_csetup")
e(f"s_mov_b32 s{sMT}, 0")
e(f"s_mov_b32 s{sOFF}, 0")
e(f"s_mov_b32 s{sTB0}, 0")
e(f"s_mov_b32 s{sFIRST}, 1")
e(f"s_mov_b64 s[{sRS}:{sRS+1}], 0")
e("s_waitcnt vmcnt(4)")
e(f"v_and_b32 v{vT0}, 15, v{vLANE}")
e(f"v_xor_b32 v{vT1}, v{vG}, v{vT0}")
e(f"v_lshlrev_b32 v{vT2}, 8, v{vT0}")
e(f"v_lshl_add_u32 v{vKA0}, v{vT1}, 4, v{vT2}")
for s in range(1, 4):
    e(f"v_xor_b32 v{vKA0+s}, {64*s}, v{vKA0}")
e(f"v_bfe_u32 v{vT0}, v{vLANE}, 2, 2")
e(f"v_lshl_add_u32 v{vT1}, v{vG}, 2, v{vT0}")
e(f"v_lshlrev_b32 v{vT1}, 8, v{vT1}")
e(f"v_and_b32 v{vT2}, 3, v{vLANE}")
e(f"v_lshl_add_u32 v{vT1}, v{vT2}, 4, v{vT1}")
e(f"v_lshl_add_u32 v{vVA0}, v{vT0}, 6, v{vT1}")
for j in range(1, 4):
    e(f"v_xor_b32 v{vVA0+j}, {64*j}, v{vVA0}")
e(f"s_lshl_b32 s{sT0}, s{sCI}, 10")
e(f"s_add_u32 s{sT0}, s{sT0}, {PST}")
e(f"v_lshl_add_u32 v{vPA0}, v{vLANE}, 4, s{sT0}")
e(f"v_mov_b32 v{vOA}, v{vT4}")
e(f"s_lshl_b32 s{sT0}, s{sW}, 3")
e(f"s_add_u32 s{sT0}, s{sT0}, {CTRL-8}")
e(f"v_mov_b32 v{vPA}, s{sT0}")
e(f"v_mov_b32 v{vM}, 0xff800000")
e(f"v_mov_b32 v{vLS}, 0")
for r in range(0, 32, 2): e(f"v_mov_b64 v[{vO+r}:{vO+r+1}], 0")
e(f"s_mov_b32 s{sCST}, 0x3e0293ee")
e(f"s_mov_b32 s{sCST+1}, 0x3e0293ee")
e(f"s_mov_b32 s{sLIMF}, {a.limf}")
e(f"s_lshl2_add_u32 s{sFB}, s{sCI}, {FREE}")
e("s_waitcnt vmcnt(0)")
e(f"s_cmp_eq_u32 s{sT3}, 0")
e("s_cbranch_scc1 L_k_first")
for r in range(0, 16, 2): e(f"v_mov_b64 v[{vQ+r}:{vQ+r+1}], 0")

def poll(label):
    lab(label)
    e(f"ds_read_b64 v[{vPL}:{vPL+1}], v{vPA}")
    e(f"s_sub_u32 s{sSPIN}, s{sSPIN}, 1")
    e("s_cbranch_scc1 L_end")
    e("s_waitcnt lgkmcnt(0)")
    e(f"v_readfirstlane_b32 s{sLND}, v{vPL}")
    e(f"s_cmp_ge_i32 s{sLND}, s{sNK}")
    e(f"s_cbranch_scc0 {label}")
VR = []
for j in range(4):
    for ee in range(2):
        for blk in range(2):
            r = vVF + (2 * j + ee) * 4 + 2 * blk
            VR.append(f"ds_read_b64_tr_b16 v[{r}:{r+1}], v{vXA+j} offset:{8*ee + 4096*blk}")
KR, QK = [], []
for blk in range(2):
    for st in range(4):
        r = vKF + (blk * 4 + st) * 4
        KR.append(f"ds_read_b128 v[{r}:{r+3}], v{vXA+st} offset:{4096*blk}")
        cc = "0" if st == 0 else f"v[{vS+4*blk}:{vS+4*blk+3}]"
        QK.append(f"v_mfma_f32_16x16x32_bf16 v[{vS+4*blk}:{vS+4*blk+3}], v[{r}:{r+3}], v[{vQ+4*st}:{vQ+4*st+3}], {cc}")
PV = [f"v_mfma_f32_16x16x32_bf16 v[{vO+4*dt}:{vO+4*dt+3}], v[{vVF+4*dt}:{vVF+4*dt+3}], v[{vP}:{vP+3}], v[{vO+4*dt}:{vO+4*dt+3}]" for dt in range(8)]
NX = [f"s_ff1_i32_b64 s{sTN}, s[{sM}:{sM+1}]",
      f"s_bitset0_b64 s[{sM}:{sM+1}], s{sTN}",
      f"s_add_u32 s{sT1}, s{sTN}, s{sOFF}",
      f"s_mul_i32 s{sT0}, s{sT1}, {DIVM[0]}",
      f"s_lshr_b32 s{sT0}, s{sT0}, {DIVM[1]}",
      f"s_mul_i32 s{sT0}, s{sT0}, {NS}",
      f"s_sub_u32 s{sT0}, s{sT1}, s{sT0}",
      f"s_lshl_b32 s{sSB}, s{sT0}, 13",
      f"s_lshl3_add_u32 s{sFWN}, s{sT0}, s{sFB}",
      f"s_and_b32 s{sT0}, s{sTN}, 0x40000000",
      f"s_add_u32 s{sNK}, s{sT1}, 1",
      f"s_or_b32 s{sNK}, s{sNK}, s{sT0}",
      f"s_sub_u32 s{sPO}, s{sTN}, s{sTB0}",
      f"s_lshl_b32 s{sPO}, s{sPO}, 11"]
KA = [f"v_add_u32 v{vXA+i}, s{sSB}, v{vKA0+i}" for i in range(4)]
VA = [f"v_add_u32 v{vXA+i}, s{sSB}, v{vVA0+i}" for i in range(4)]
ADV = [f"v_mov_b32 v{vFW}, s{sFWN}",
       f"v_mov_b32 v{vFV}, s{sNK}",
       f"v_add_u32 v{vPW}, s{sPO}, v{vPA0}",
       f"s_add_u32 s{sT}, s{sTN}, 1"]
def scale_o(reg):
    for r in range(0, 32, 2):
        sel = "op_sel:[0,1] op_sel_hi:[1,1]" if reg & 1 else "op_sel_hi:[1,0]"
        p = reg & ~1
        e(f"v_pk_mul_f32 v[{vO+r}:{vO+r+1}], v[{vO+r}:{vO+r+1}], v[{p}:{p+1}] {sel}")

def inv_pre():
    e(f"v_mov_b32 v{vT0}, v{vLS}")
    e(f"v_mov_b32 v{vT1}, v{vLS}")
    e("s_nop 1")
    e(f"v_permlane32_swap_b32 v{vT0}, v{vT1}")
    e("s_nop 0")
    e(f"v_add_f32 v{vT0}, v{vT0}, v{vT1}")
    e(f"v_mov_b32 v{vT1}, v{vT0}")
    e("s_nop 1")
    e(f"v_permlane16_swap_b32 v{vT0}, v{vT1}")
    e("s_nop 0")
    e(f"v_add_f32 v{vT0}, v{vT0}, v{vT1}")
    e(f"v_rcp_f32 v{vINV}, v{vT0}")

lab("L_k_first")
for x in NX + KA + ADV: e(x)
lab("L_k_next")
e(f"s_cmp_lt_i32 s{sTN}, 0")
e("s_cbranch_scc1 L_k_empty")
poll("L_k_poll")
for x in KR: e(x)
e("s_waitcnt lgkmcnt(0)")
out.append(".p2align 3")
lab("L_k_top")
e("s_waitcnt lgkmcnt(1)")
e(f"ds_write_b32 v{vFW}, v{vFV}")
e(f"ds_read_b64 v[{vPL}:{vPL+1}], v{vPA}")
fill = NX + KA
for i in range(8):
    e(QK[i])
    for x in fill[2*i:2*i+2]: e(x)
for x in fill[16:]: e(x)
e(f"s_mov_b32 s{sREDO}, 0")
e("s_waitcnt lgkmcnt(0)")
e(f"v_readfirstlane_b32 s{sLND}, v{vPL}")
e(f"s_cmp_ge_i32 s{sLND}, s{sNK}")
e(f"s_cselect_b32 s{sPRE}, 1, 0")
e("s_cbranch_scc0 L_k_nopre")
for x in KR: e(x)
lab("L_k_nopre")
e(f"s_cmp_eq_u32 s{sT}, s{sMT}")
e("s_cbranch_scc1 L_k_mask")
lab("L_k_exp")
for hb in range(2):
    for r in (4*hb, 4*hb+2):
        e(f"v_pk_fma_f32 v[{vE+r}:{vE+r+1}], v[{vS+r}:{vS+r+1}], s[{sCST}:{sCST+1}], v[{vM}:{vM+1}] op_sel_hi:[1,1,0] neg_lo:[0,0,1] neg_hi:[0,0,1]")
    for r in range(4*hb, 4*hb+4):
        e(f"v_exp_f32 v{vE+r}, v{vE+r}")
e(f"v_pk_add_f32 v[{vT0}:{vT1}], v[{vE}:{vE+1}], v[{vE+2}:{vE+3}]")
e(f"v_pk_add_f32 v[{vT2}:{vT3}], v[{vE+4}:{vE+5}], v[{vE+6}:{vE+7}]")
e(f"v_cvt_pk_bf16_f32 v{vP}, v{vE}, v{vE+1}")
e(f"v_pk_add_f32 v[{vT0}:{vT1}], v[{vT0}:{vT1}], v[{vT2}:{vT3}]")
e(f"v_cvt_pk_bf16_f32 v{vP+1}, v{vE+2}, v{vE+3}")
e(f"v_add_f32 v{vT0}, v{vT0}, v{vT1}")
c("the kept reference max is safe only while every weight stays <= 256; otherwise take the true max")
e(f"v_cmp_nge_f32 vcc, s{sLIMF}, v{vT0}")
e(f"v_cvt_pk_bf16_f32 v{vP+2}, v{vE+4}, v{vE+5}")
e(f"v_cvt_pk_bf16_f32 v{vP+3}, v{vE+6}, v{vE+7}")
e(ADV[0]); e(ADV[1])
e("s_nop 0")
e("s_cbranch_vccnz L_k_slow")
lab("L_k_done")
e(f"ds_write_b128 v{vPW}, v[{vP}:{vP+3}]")
e(f"v_add_f32 v{vLS}, v{vLS}, v{vT0}")
e(ADV[3])
e(f"s_cmp_lg_u32 s{sPRE}, 0")
e(ADV[2])
e("s_cbranch_scc1 L_k_top")
e("s_branch L_k_next")

lab("L_k_mask")
e(f"v_lshlrev_b32 v{vT0}, 2, v{vG}")
e(f"v_sub_u32 v{vT0}, s{sV0}, v{vT0}")
e(f"v_mov_b32 v{vT1}, 0xff800000")
for r in range(8):
    e(f"v_cmp_lt_i32 s[{80+2*r}:{81+2*r}], {16*(r//4)+r%4}, v{vT0}")
for r in range(8):
    e(f"v_cndmask_b32 v{vS+r}, v{vT1}, v{vS+r}, s[{80+2*r}:{81+2*r}]")
e("s_branch L_k_exp")

def alpha_addr():
    e(f"s_lshl_b32 s{sT0}, s2, 6")
    e(f"s_add_u32 s{sT0}, s{sT0}, s{sT}")
    e(f"s_lshl1_add_u32 s{sT0}, s{sT0}, s{sCI}")
    e(f"s_lshl_b32 s{sT0}, s{sT0}, 6")
    e(f"s_add_u32 s{sT0}, s{sT0}, {WSA}")
    e(f"v_and_b32 v{vT1}, 15, v{vLANE}")
    e(f"v_lshl_add_u32 v{vT1}, v{vT1}, 2, s{sT0}")
c("raise the reference to the true running max; the accumulator is rescaled when pass 2 reaches this tile")
lab("L_k_slow")
e(f"s_cmp_lg_u32 s{sREDO}, 0")
e("s_cbranch_scc1 L_k_done")
e(f"s_mov_b32 s{sREDO}, 1")
e(f"v_max3_f32 v{vT0}, v{vS}, v{vS+1}, v{vS+2}")
e(f"v_max3_f32 v{vT1}, v{vS+3}, v{vS+4}, v{vS+5}")
e(f"v_max3_f32 v{vT0}, v{vT0}, v{vS+6}, v{vS+7}")
e(f"v_max_f32 v{vT0}, v{vT0}, v{vT1}")
e(f"v_mov_b32 v{vT1}, v{vT0}")
e("s_nop 1")
e(f"v_permlane32_swap_b32 v{vT0}, v{vT1}")
e("s_nop 0")
e(f"v_max_f32 v{vT0}, v{vT0}, v{vT1}")
e(f"v_mov_b32 v{vT1}, v{vT0}")
e("s_nop 1")
e(f"v_permlane16_swap_b32 v{vT0}, v{vT1}")
e("s_nop 0")
e(f"v_max_f32 v{vT0}, v{vT0}, v{vT1}")
e(f"v_mul_f32 v{vT0}, s{sCST}, v{vT0}")
e(f"v_max_f32 v{vMN}, v{vM}, v{vT0}")
e(f"v_sub_f32 v{vAL}, v{vM}, v{vMN}")
e(f"v_exp_f32 v{vAL}, v{vAL}")
e(f"v_mov_b32 v{vM}, v{vMN}")
e(f"s_cmp_lg_u32 s{sFIRST}, 0")
e(f"s_mov_b32 s{sFIRST}, 0")
e(f"v_mul_f32 v{vLS}, v{vLS}, v{vAL}")
e("s_cbranch_scc1 L_k_exp")
alpha_addr()
e(f"global_store_dword v{vT1}, v{vAL}, s[{sWS}:{sWS+1}]")
e(f"s_sub_u32 s{sT0}, s{sT}, 1")
e(f"s_bitset1_b64 s[{sRS}:{sRS+1}], s{sT0}")
e("s_branch L_k_exp")

RLO, RHI = 0xffffffff, (1 << (G - 32)) - 1
lab("L_k_noplan")
e(f"s_mov_b32 s{sPLN}, 1")
e(f"v_mov_b32 v{vT1}, {REC0}")
lab("L_k_plan")
e(f"ds_read_b128 v[{vT2}:{vT5}], v{vT1}")
e("s_waitcnt lgkmcnt(0)")
e(f"v_readfirstlane_b32 s{sT0}, v{vT5}")
e(f"v_readfirstlane_b32 s{sM}, v{vT2}")
e(f"v_readfirstlane_b32 s{sM+1}, v{vT3}")
e(f"v_readfirstlane_b32 s{sTTC}, v{vT4}")
e(f"s_cmp_lg_u32 s{sT0}, 0")
e("s_cbranch_scc1 L_k_got")
spin_tail("L_k_plan")
lab("L_k_got")
e(f"s_lshr_b32 s{sMT}, s{sT0}, 8")
e(f"s_add_u32 s{sMT}, s{sMT}, 1")
e(f"s_and_b32 s{sMRG}, s{sTTC}, {0 if 'nomerge' in DBG else 1}")
e(f"s_lshr_b32 s{sTTC}, s{sTTC}, 8")
e(f"s_min_u32 s{sTB1}, s{sTTC}, {G}")
e(f"s_bfm_b64 s[{sMALL}:{sMALL+1}], s{sNU}, 0")
e(f"s_or_b64 s[{sMALL}:{sMALL+1}], s[{sMALL}:{sMALL+1}], s[{sM}:{sM+1}]")
e(f"s_and_b32 s{sM+1}, s{sM+1}, {RHI:#x}")
e("s_branch L_k_first")
lab("L_v_more")
c("second batch")
e(f"s_mov_b32 s{sTB0}, s{sTB1}")
e(f"s_mov_b32 s{sTB1}, s{sTTC}")
e(f"s_mov_b32 s{sOFF}, s{sTB0}")
e(f"s_mov_b32 s{sMALL}, 0")
e(f"s_andn2_b32 s{sMALL+1}, s{sMALL+1}, {RHI:#x}")
e(f"s_mov_b64 s[{sM}:{sM+1}], s[{sMALL}:{sMALL+1}]")
e("s_branch L_k_first")
lab("L_k_empty")
e(f"s_cmp_eq_u32 s{sPLN}, 0")
e("s_cbranch_scc1 L_k_noplan")
if a.last: inv_pre()
e(f"s_mov_b32 s{sOFF}, s{sTB1}")
e(f"s_mov_b32 s{sM}, s{sMALL}")
e(f"s_and_b32 s{sM+1}, s{sMALL+1}, {RHI:#x}")
e(f"s_cmp_eq_u32 s{sTB0}, 0")
e(f"s_cselect_b32 s{sM+1}, s{sM+1}, s{sMALL+1}")
for x in NX + VA: e(x)
e(f"ds_read_b64 v[{vPL}:{vPL+1}], v{vPA}")
e(f"s_cmp_lt_i32 s{sTN}, 0")
e("s_cbranch_scc1 L_v_empty")
lab("L_v_next")
for x in ADV: e(x)
if a.last:
    e(f"s_cmp_eq_u64 s[{sM}:{sM+1}], 0")
    e("s_cbranch_scc1 L_v_islast")
lab("L_v_next2")
e(f"ds_read_b128 v[{vPN}:{vPN+3}], v{vPW}")
e("s_waitcnt lgkmcnt(1)")
e(f"v_readfirstlane_b32 s{sLND}, v{vPL}")
e(f"s_cmp_ge_i32 s{sLND}, s{sNK}")
e("s_cbranch_scc1 L_v_rd")
poll("L_v_poll")
lab("L_v_rd")
for x in VR: e(x)
if a.lat:
    e(f"v_readfirstlane_b32 s{sMBF}, v{vPL+1}")
    e(f"s_cmp_gt_i32 s{sLND}, s{sNK}")
    e(f"s_cselect_b32 s{sT0}, 1, s{sRS}")
    e(f"s_or_b32 s{sT0}, s{sT0}, s{sRS+1}")
    e(f"s_and_b32 s{sT1}, s{sMBF}, s{sMRG}")
    e(f"s_or_b32 s{sT0}, s{sT0}, s{sT1}")
    e("s_cbranch_scc0 L_v_lat")
out.append(".p2align 3")
lab("L_v_top")
for x in NX + VA: e(x)
e(f"s_sub_u32 s{sT0}, s{sT}, 1")
e(f"s_bitcmp1_b64 s[{sRS}:{sRS+1}], s{sT0}")
e("s_cbranch_scc1 L_v_resc")
lab("L_v_top2")
e("s_waitcnt lgkmcnt(14)")
e(f"v_readfirstlane_b32 s{sMBF}, v{vPL+1}")
e(f"v_readfirstlane_b32 s{sLND}, v{vPL}")
e(f"v_mov_b64 v[{vP}:{vP+1}], v[{vPN}:{vPN+1}]")
e(f"v_mov_b64 v[{vP+2}:{vP+3}], v[{vPN+2}:{vPN+3}]")
e(f"s_and_b32 s{sT0}, s{sMBF}, s{sMRG}")
e("s_cbranch_scc1 L_v_merge")
lab("L_v_top3")
e(f"s_cmp_ge_i32 s{sLND}, s{sNK}")
e("s_cbranch_scc0 L_v_pv")
e(ADV[2])
e("s_waitcnt lgkmcnt(0)")
e(f"ds_write_b32 v{vFW}, v{vFV}")
e(f"ds_read_b64 v[{vPL}:{vPL+1}], v{vPA}")
e(f"ds_read_b128 v[{vPN}:{vPN+3}], v{vPW}")
for i in range(8):
    e(PV[i]); e(VR[2*i]); e(VR[2*i+1])
e(ADV[0]); e(ADV[1]); e(ADV[3])
e("s_branch L_v_top")
if a.lat:
    c("nothing further has landed and nothing is pending: shortest way through this tile")
    lab("L_v_lat")
    e("s_waitcnt lgkmcnt(14)")
    e(f"v_mov_b64 v[{vP}:{vP+1}], v[{vPN}:{vPN+1}]")
    e(f"v_mov_b64 v[{vP+2}:{vP+3}], v[{vPN+2}:{vPN+3}]")
    fl = NX + VA
    e(fl[0]); e(fl[1])
    for i in range(8):
        if i: e(f"s_waitcnt lgkmcnt({14-2*i})")
        if i == 7:
            e(f"ds_write_b32 v{vFW}, v{vFV}")
            e(f"ds_read_b64 v[{vPL}:{vPL+1}], v{vPA}")
        e(PV[i])
        e(fl[2+2*i]); e(fl[3+2*i])
    e(f"s_cmp_ge_i32 s{sTN}, 0")
    e("s_cbranch_scc1 L_v_next")
    e("s_branch L_v_empty")
lab("L_v_pv")
if a.last:
    e(f"s_cmp_lt_i32 s{sTN}, 0")
    e("s_cbranch_scc1 L_v_islast2")
    lab("L_v_pv2")
for i in range(8):
    if i: e(f"s_waitcnt lgkmcnt({14-2*i})")
    if i == 7:
        e(f"ds_write_b32 v{vFW}, v{vFV}")
        e(f"ds_read_b64 v[{vPL}:{vPL+1}], v{vPA}")
    e(PV[i])
e(f"s_cmp_ge_i32 s{sTN}, 0")
e("s_cbranch_scc1 L_v_next")
lab("L_v_empty")
e(f"s_cmp_lt_u32 s{sTB1}, s{sTTC}")
e("s_cbranch_scc1 L_v_more")
stamp(2)
e(f"s_cmp_lg_u32 s{sMRG}, 0")
e("s_cbranch_scc1 L_c_mwait0")
lab("L_c_store")
e(f"v_mov_b32 v{vT0}, v{vLS}")
e(f"v_and_b32 v{vT2}, 15, v{vLANE}")
e(f"v_lshl_add_u32 v{vT2}, v{vT2}, 8, s{sQO}")
e(f"v_permlane32_swap_b32 v{vLS}, v{vT0}")
e("s_nop 0")
e(f"v_add_f32 v{vLS}, v{vLS}, v{vT0}")
e(f"v_mov_b32 v{vT0}, v{vLS}")
e(f"v_lshl_add_u32 v{vT2}, v{vG}, 4, v{vT2}")
e("s_nop 0")
e(f"v_permlane16_swap_b32 v{vLS}, v{vT0}")
e("s_nop 0")
e(f"v_add_f32 v{vLS}, v{vLS}, v{vT0}")
e(f"v_rcp_f32 v{vMN}, v{vLS}")
e(f"s_cmp_lg_u32 s{sROLE}, 0")
scale_o(vMN)
for r in range(16):
    e(f"v_cvt_pk_bf16_f32 v{vKF+r}, v{vO+2*r}, v{vO+2*r+1}")
e("s_cbranch_scc1 L_publish")
def out_stores(fl, step=64):
    for j in range(4):
        e(f"global_store_dwordx4 v{vT2}, v[{vKF+4*j}:{vKF+4*j+3}], s[{sOUT}:{sOUT+1}] offset:{step*j}{fl}")
out_stores(OST)
e(FIN)

def l_total():
    e(f"v_mov_b32 v{vT0}, v{vLS}")
    e(f"v_and_b32 v{vT2}, 15, v{vLANE}")
    e(f"v_lshl_add_u32 v{vT2}, v{vT2}, 8, s{sQO}")
    e(f"v_permlane32_swap_b32 v{vLS}, v{vT0}")
    e("s_nop 0")
    e(f"v_add_f32 v{vLS}, v{vLS}, v{vT0}")
    e(f"v_mov_b32 v{vT0}, v{vLS}")
    e(f"v_lshl_add_u32 v{vT2}, v{vG}, 4, v{vT2}")
    e("s_nop 0")
    e(f"v_permlane16_swap_b32 v{vLS}, v{vT0}")
    e("s_nop 0")
    e(f"v_add_f32 v{vLS}, v{vLS}, v{vT0}")
    e(f"v_rcp_f32 v{vMN}, v{vLS}")
if a.last:
    lab("L_v_islast2")
    e(f"s_sub_u32 s{sT0}, s{sTTC}, s{sTB1}")
    e(f"s_or_b32 s{sT0}, s{sT0}, s{sMRG}")
    e(f"s_or_b32 s{sT0}, s{sT0}, s{sROLE}")
    e("s_cbranch_scc1 L_v_pv2")
    e("s_branch L_v_lpv")
    lab("L_v_islast")
    c("closing tile of an owner with nothing pending: take the short path")
    e(f"s_sub_u32 s{sT0}, s{sTTC}, s{sTB1}")
    e(f"s_or_b32 s{sT0}, s{sT0}, s{sMRG}")
    e(f"s_or_b32 s{sT0}, s{sT0}, s{sROLE}")
    e(f"s_or_b32 s{sT0}, s{sT0}, s{sRS}")
    e(f"s_or_b32 s{sT0}, s{sT0}, s{sRS+1}")
    e("s_cbranch_scc1 L_v_next2")
    e(f"ds_read_b128 v[{vP}:{vP+3}], v{vPW}")
    e("s_waitcnt lgkmcnt(1)")
    e(f"v_readfirstlane_b32 s{sLND}, v{vPL}")
    e(f"s_cmp_ge_i32 s{sLND}, s{sNK}")
    e("s_cbranch_scc1 L_v_lrd")
    poll("L_v_lpoll")
    lab("L_v_lrd")
    for x in VR: e(x)
    def fin_j(j):
        r = []
        for k in range(4):
            q = vO + 8 * j + 2 * k
            r.append(f"v_pk_mul_f32 v[{q}:{q+1}], v[{q}:{q+1}], v[{vINV}:{vINV+1}] op_sel_hi:[1,0]")
        for k in range(4):
            r.append(f"v_cvt_pk_bf16_f32 v{vKF+4*j+k}, v{vO+8*j+2*k}, v{vO+8*j+2*k+1}")
        r.append(f"global_store_dwordx4 v{vOA}, v[{vKF+4*j}:{vKF+4*j+3}], s[{sOUT}:{sOUT+1}] offset:{64*j}{OST}")
        return r
    lab("L_v_lpv")
    f0 = fin_j(0)
    for i in range(8):
        e(f"s_waitcnt lgkmcnt({14-2*i})")
        e(PV[i])
        if i == 5: e(f0[0]); e(f0[1])
        if i == 6: e(f0[2]); e(f0[3])
    stamp(2)
    for x in f0[4:] + fin_j(1) + fin_j(2) + fin_j(3): e(x)
    e(f"ds_write_b32 v{vFW}, v{vFV}")
    e(FIN)

lab("L_v_resc")
e(f"s_bitset0_b64 s[{sRS}:{sRS+1}], s{sT0}")
alpha_addr()
e("s_waitcnt vmcnt(0)")
e(f"global_load_dword v{vAL}, v{vT1}, s[{sWS}:{sWS+1}] sc1")
e("s_waitcnt vmcnt(0)")
scale_o(vAL)
e("s_branch L_v_top2")

lab("L_v_merge")
c("only once no rescale is pending; the reference max stays, so the partial's max must not be far above it")
e(f"s_cmp_eq_u64 s[{sRS}:{sRS+1}], 0")
e("s_cbranch_scc0 L_v_top3")
lab("L_c_merge")
e(f"s_mul_i32 s{sT0}, s{sCI}, {MBS}")
e(f"s_add_u32 s{sT0}, s{sT0}, {MB}")
e(f"v_and_b32 v{vT1}, 15, v{vLANE}")
e(f"v_lshl_add_u32 v{vT0}, v{vLANE}, 4, s{sT0}")
e(f"v_lshl_add_u32 v{vT1}, v{vT1}, 3, s{sT0}")
e("s_waitcnt lgkmcnt(0)")
e(f"ds_write_b32 v{vFW}, v{vFV}")
e(f"ds_read_b64 v[{vT4}:{vT5}], v{vT1} offset:4096")
for i in range(4):
    e(f"ds_read_b128 v[{vKF+4*i}:{vKF+4*i+3}], v{vT0} offset:{1024*i}")
e(f"s_cmp_eq_u32 s{sPLN}, 2")
e("s_waitcnt lgkmcnt(0)")
e("s_cbranch_scc1 L_c_mfin")
e(f"v_sub_f32 v{vT4}, v{vT4}, v{vM}")
e(f"v_cmp_nge_f32 vcc, 0x41800000, v{vT4}")
e(f"s_mov_b32 s{sMRG}, 2")
e("s_nop 3")
e("s_cbranch_vccnz L_v_top3")
e("s_branch L_c_madd")
lab("L_c_mfin")
e(f"v_max_f32 v{vMN}, v{vM}, v{vT4}")
e(f"v_sub_f32 v{vAL}, v{vM}, v{vMN}")
e(f"v_sub_f32 v{vT4}, v{vT4}, v{vMN}")
e(f"v_exp_f32 v{vAL}, v{vAL}")
e("s_nop 0")
e(f"v_mul_f32 v{vLS}, v{vLS}, v{vAL}")
scale_o(vAL)
lab("L_c_madd")
e(f"v_exp_f32 v{vT4}, v{vT4}")
e(f"s_mov_b32 s{sMRG}, 0")
e(f"v_mul_f32 v{vT4}, v{vT4}, v{vT5}")
e(f"v_fmac_f32 v{vLS}, 0x3e800000, v{vT4}")
for r in range(16):
    t = vKF + 16 + 2 * (r % 4)
    e(f"v_lshlrev_b32 v{t}, 16, v{vKF+r}")
    e(f"v_and_b32 v{t+1}, 0xffff0000, v{vKF+r}")
    e(f"v_pk_fma_f32 v[{vO+2*r}:{vO+2*r+1}], v[{t}:{t+1}], v[{vT4}:{vT4+1}], v[{vO+2*r}:{vO+2*r+1}] op_sel_hi:[1,0,1]")
e(f"s_cmp_eq_u32 s{sPLN}, 2")
e("s_cbranch_scc1 L_c_store")
if a.last: inv_pre()
e("s_branch L_v_top3")
lab("L_c_mwait0")
e(f"s_mov_b32 s{sPLN}, 2")
lab("L_c_mwait")
e(f"ds_read_b64 v[{vPL}:{vPL+1}], v{vPA}")
e("s_waitcnt lgkmcnt(0)")
e(f"v_readfirstlane_b32 s{sMBF}, v{vPL+1}")
e(f"s_cmp_lg_u32 s{sMBF}, 0")
e("s_cbranch_scc1 L_c_merge")
spin_tail("L_c_mwait")

def ws_base(sb):
    e(f"s_lshl3_add_u32 s{sT0}, s{sb}, s{sH}")
    e(f"s_lshl_b32 s{sT0}, s{sT0}, 9")
    if WS0: e(f"s_add_u32 s{sT0}, s{sT0}, {WS0}")

lab("L_publish")
if "nopub" in DBG: e("s_endpgm")
e(f"v_lshl_add_u32 v{vT2}, v{vLANE}, 4, s{sQO}")
e(f"s_lshl_b32 s{sT2}, s{sPB}, 2")
e(f"v_mov_b32 v{vT3}, s{sT2}")
e(f"v_lshlrev_b32 v{vT4}, 1, v{vT3}")
e(f"v_add_u32 v{vT4}, {CTRL+68}, v{vT4}")
e(f"ds_read_b32 v{vT4}, v{vT4}")
ws_base(sPB)
e(f"s_lshl2_add_u32 s{sT1}, s{sCI}, s{sT0}")
e(f"v_mov_b32 v{vT5}, s{sT1}")
e(f"s_lshl_b32 s{sT1}, s{sCI}, 7")
e(f"s_add_u32 s{sT0}, s{sT0}, s{sT1}")
e(f"v_lshl_add_u32 v{vT1}, v{vLANE}, 3, s{sT0}")
e(f"s_getreg_b32 s{sT2}, hwreg(HW_REG_XCC_ID, 0, 4)")
e(f"s_lshl_b32 s{sT2}, s{sT2}, 4")
e(f"s_or_b32 s{sT2}, s{sT2}, s{sH}")
e(f"s_or_b32 s{sT2}, s{sT2}, 0x100")
e("s_waitcnt lgkmcnt(0)")
e(f"v_readfirstlane_b32 s{sT1}, v{vT4}")
e(f"s_lshr_b32 s{sT1}, s{sT1}, 16")
e(f"s_cmp_eq_u32 s{sT1}, s{sT2}")
e("s_cbranch_scc1 L_pub_fast")
e(f"global_load_dword v{vT4}, v{vT3}, s[{sDBG}:{sDBG+1}] offset:128 sc1")
e("s_waitcnt vmcnt(0)")
e(f"v_readfirstlane_b32 s{sT1}, v{vT4}")
e(f"s_lshr_b32 s{sT1}, s{sT1}, 16")
e(f"s_cmp_eq_u32 s{sT1}, s{sT2}")
e("s_cbranch_scc0 L_pub_slow")
lab("L_pub_fast")
c("the receiver runs on this die and has cleared its flag words: hand over inside the shared L2")
out_stores(" " + a.pst if a.pst else "", 1024)
e("s_mov_b64 exec, 0xffff")
e(f"global_store_dwordx2 v{vT1}, v[{vM}:{vM+1}], s[{sWS}:{sWS+1}]")
e(f"v_mov_b32 v{vT4}, 1")
e("s_waitcnt vmcnt(0)")
e("s_mov_b64 exec, 1")
e(f"global_store_dword v{vT5}, v{vT4}, s[{sWS}:{sWS+1}] offset:256")
e(FIN)
lab("L_pub_slow")
c("any other placement: write through to memory, then set a bit with a device-wide atomic")
out_stores(" sc1", 1024)
e("s_mov_b64 exec, 0xffff")
e(f"global_store_dwordx2 v{vT1}, v[{vM}:{vM+1}], s[{sWS}:{sWS+1}] sc1")
e(f"s_lshl1_add_u32 s{sT1}, s{sH}, s{sCI}")
e(f"s_lshl_b32 s{sT1}, 1, s{sT1}")
e(f"v_mov_b32 v{vT4}, s{sT1}")
e("s_waitcnt vmcnt(0)")
e("s_mov_b64 exec, 1")
e(f"global_atomic_add v{vT3}, v{vT4}, s[{sDBG}:{sDBG+1}]")
e(FIN)

vRW = vL
vKEY, vRK = 19, 20
lab("L_ctl0")
if a.skew:
    c("dies are not started at the same instant: the first eight workgroups post when they started")
    e(f"s_memrealtime s[{sMA}:{sMA+1}]")
    e(f"s_lshl2_add_u32 s{sT0}, s{sH}, 2")
    e(f"v_mov_b32 v{vT4}, s{sT0}")
    e(f"s_cmp_lg_u32 s{sB}, 0")
    e("s_waitcnt lgkmcnt(0)")
    e("s_cbranch_scc1 L_ctl1")
    e(f"s_or_b32 s{sT0}, s{sMA}, 0x8000")
    e(f"v_mov_b32 v{vT5}, s{sT0}")
    e("s_mov_b64 exec, 1")
    e(f"global_store_short v{vT4}, v{vT5}, s[{sDBG}:{sDBG+1}] sc1")
    e("s_mov_b64 exec, -1")
    lab("L_ctl1")
e("s_barrier")
e("s_branch L_ctl")
lab("L_planner")
e(f"s_cmp_eq_u32 s{sW}, 5")
e("s_cbranch_scc1 L_ctl0")
e(f"s_sub_u32 s{sCI}, s{sW}, 3")
e(f"s_lshl_b32 s{sSB}, s{sCI}, 8")
e(f"s_add_u32 s{sSB}, s{sSB}, {CNT}")
e(f"v_lshl_add_u32 v{vPA}, v{vLANE}, 2, s{sSB}")
e(f"s_lshl_b32 s{sT2}, s{sCI}, 7")
e(f"s_add_u32 s{sT2}, s{sT2}, {KEYS}")
e(f"v_add_u32 v{vT3}, s{sT2}, v{vT3}")
e(f"v_lshrrev_b32 v{vT4}, 5, v{vLANE}")
e(f"v_lshl_add_u32 v{vT4}, v{vT4}, 6, s{sT2}")
e(f"v_mov_b32 v{vT5}, 2048")
e("s_barrier")
e("s_waitcnt vmcnt(0)")
e(f"v_cmp_gt_i32 s[{sZQ}:{sZQ+1}], 1, v{vN}")
e(f"v_min_i32 v{vN}, v{vN}, v{vT5}")
e("s_nop 0")
e(f"v_cndmask_b32 v{vN}, v{vN}, v{vT5}, s[{sZQ}:{sZQ+1}]")
e(f"v_add_u32 v{vN}, 15, v{vN}")
e(f"v_lshrrev_b32 v{vN}, 4, v{vN}")
e(f"v_lshl_or_b32 v{vKEY}, v{vN}, 5, v{vT0}")
e(f"ds_write_b32 v{vT3}, v{vKEY}")
for i in range(4):
    e(f"ds_read_b128 v[{vKF+4*i}:{vKF+4*i+3}], v{vT4} offset:{16*i}")
e(f"v_mov_b32 v{vRK}, 0")
e(f"v_readlane_b32 s{sNB}, v{vN}, s{sB}")
e("s_waitcnt lgkmcnt(0)")
c("rank of every batch by block count; the batch of rank 31-r is the partner")
for i in range(16):
    e(f"v_sub_u32 v{vKF+i}, v{vKF+i}, v{vKEY}")
for i in range(16):
    e(f"v_alignbit_b32 v{vRK}, v{vRK}, v{vKF+i}, 31")
e(f"v_bcnt_u32_b32 v{vRK}, v{vRK}, 0")
e(f"v_mov_b32 v{vT2}, v{vRK}")
derive_nb()
e(f"v_permlane32_swap_b32 v{vRK}, v{vT2}")
e("s_nop 0")
e(f"v_add_u32 v{vRK}, v{vRK}, v{vT2}")
e("s_nop 0")
e(f"v_readlane_b32 s{sRK}, v{vRK}, s{sB}")
e(f"s_sub_u32 s{sT0}, 31, s{sRK}")
e(f"v_cmp_eq_u32 vcc, s{sT0}, v{vRK}")
e(f"s_ff1_i32_b32 s{sPB}, vcc_lo")
e(f"v_readlane_b32 s{sNP}, v{vN}, s{sPB}")
e(f"s_max_u32 s{sT0}, s{sNB}, s{sNP}")
e(f"s_min_u32 s{sT1}, s{sNB}, s{sNP}")
e(f"s_sub_u32 s{sX}, s{sT0}, s{sT1}")
e(f"s_add_u32 s{sX}, s{sX}, 2")
e(f"s_lshr_b32 s{sX}, s{sX}, 2")
e(f"s_cmp_lt_u32 s{sT0}, {4*NUM+8}")
e(f"s_cselect_b32 s{sX}, 0, s{sX}")
if a.nopair: e(f"s_mov_b32 s{sX}, 0")
e(f"s_cmp_ge_u32 s{sRK}, 16")
e(f"s_cselect_b32 s{sLO}, s{sX}, 0")
e(f"s_cselect_b32 s{sTB}, 0, s{sX}")
e(f"s_cmp_eq_u32 s{sCI}, 0")
e("s_cbranch_scc1 L_pl_norow")
e(f"s_lshl_b32 s{sT0}, s{sPB}, 9")
e(f"v_lshl_add_u32 v{vT1}, v{vLANE}, 3, s{sT0}")
e(f"global_load_dwordx2 v[{vRW}:{vRW+1}], v{vT1}, s[{sBT}:{sBT+1}]")
lab("L_pl_norow")
e(f"s_sub_u32 s{sTA}, s{sNTL}, s{sLO}")
e(f"s_add_u32 s{sT}, s{sTA}, s{sTB}")
e(f"s_mul_i32 s{sF}, s{sT}, {a.fnum}")
e(f"s_lshr_b32 s{sF}, s{sF}, 6")
e(f"s_min_u32 s{sWB}, s{sTA}, {a.UB}")
e(f"s_sub_i32 s{sF}, s{sF}, s{sWB}")
e(f"s_max_i32 s{sF}, s{sF}, s{sTB}")
e(f"s_max_i32 s{sF}, s{sF}, 1")
e(f"v_cvt_f32_u32 v{vT2}, s{sF}")
e(f"v_subrev_u32 v{vT3}, s{sWB}, v{vLANE}")
e(f"v_rcp_f32 v{vT2}, v{vT2}")
e(f"v_mul_i32_i24 v{vT4}, s{sTB}, v{vT3}")
e(f"v_add_u32 v{vT5}, s{sTB}, v{vT4}")
e(f"v_cvt_f32_i32 v{vT4}, v{vT4}")
e(f"v_cvt_f32_i32 v{vT5}, v{vT5}")
e(f"v_add_f32 v{vT4}, 0.5, v{vT4}")
e(f"v_add_f32 v{vT5}, 0.5, v{vT5}")
e(f"v_mul_f32 v{vT4}, v{vT4}, v{vT2}")
e(f"v_mul_f32 v{vT5}, v{vT5}, v{vT2}")
e(f"v_floor_f32 v{vT4}, v{vT4}")
e(f"v_floor_f32 v{vT5}, v{vT5}")
e(f"v_cmp_gt_u32 vcc, s{sF}, v{vT3}")
e(f"v_cmp_gt_f32 s[{sMBK}:{sMBK+1}], v{vT5}, v{vT4}")
e(f"s_sub_u32 s{sT0}, s{sT}, s{sNU}")
e(f"v_subrev_u32 v{vT3}, s{sNU}, v{vLANE}")
e(f"v_cmp_gt_u32 s[{sMA}:{sMA+1}], s{sT0}, v{vT3}")
e(f"s_and_b64 s[{sMBK}:{sMBK+1}], s[{sMBK}:{sMBK+1}], vcc")
e(f"s_andn2_b64 s[{sMA}:{sMA+1}], s[{sMA}:{sMA+1}], s[{sMBK}:{sMBK+1}]")
c(f"own tiles to sort: logical [NU+given, ntile); donated: the partner's logical [{NUM}, {NUM}+TB)")
mfirst = a.mfirst and not a.nosort
if mfirst:
    e(f"s_ff1_i32_b64 s{sT2}, s[{sMA}:{sMA+1}]")
else:
    e(f"s_flbit_i32_b64 s{sT2}, s[{sMA}:{sMA+1}]")
    e(f"s_sub_u32 s{sT2}, 63, s{sT2}")
e(f"s_lshl_b32 s{sT2}, s{sT2}, 8")
e(f"s_or_b32 s{sWB}, s{sT2}, 1")
e(f"s_min_u32 s{sMRG}, s{sLO}, 1")
SM = [int(x) for x in a.smart.split(",")] if a.smart else None
sV0M, sV1M, sCM, sD2, sCN = 72, 74, 76, 78, 79
if SM:
    e(f"s_lshl_b32 s{sD2}, s{sLO}, 1")
    e(f"s_sub_u32 s{sCN}, s{sNTL}, {NUM+1}")
    e(f"s_mov_b32 s{sLO}, 0")
e(f"s_add_u32 s{sLO}, s{sLO}, s{sNU}")
e(f"s_sub_u32 s{sHI}, s{sNTL}, s{sLO}")
e(f"s_sub_u32 s{sT3}, s{sNTL}, 1")
e(f"s_mov_b32 s{sLBASE}, {LA}")
e(f"s_cmp_eq_u32 s{sCI}, 0")
e("s_cbranch_scc1 L_pl_a")
e(f"s_mov_b32 s{sLO}, {NUM}")
e(f"s_mov_b32 s{sHI}, s{sTB}")
e(f"s_mov_b32 s{sT3}, -1")
if SM:
    e(f"s_lshl_b32 s{sD2}, s{sTB}, 1")
    e(f"s_add_u32 s{sCN}, s{sNP}, 1")
    e(f"s_lshr_b32 s{sCN}, s{sCN}, 1")
    e(f"s_sub_u32 s{sCN}, s{sCN}, {NUM+1}")
e(f"s_mov_b32 s{sLBASE}, {LB}")
e(f"s_mov_b64 s[{sMA}:{sMA+1}], s[{sMBK}:{sMBK+1}]")
e("s_branch L_pl_sort")
lab("L_pl_a")
e(f"s_lshl_b32 s{sT0}, s{sT}, 8")
e(f"s_or_b32 s{sT0}, s{sT0}, s{sMRG}")
e(f"v_mov_b32 v{vT2}, s{sMA}")
e(f"v_mov_b32 v{vT3}, s{sMA+1}")
e(f"v_mov_b32 v{vT4}, s{sT0}")
e(f"v_mov_b32 v{vT5}, s{sWB}")
e(f"v_mov_b32 v{vT1}, {REC0}")
e(f"ds_write_b128 v{vT1}, v[{vT2}:{vT5}]")
lab("L_pl_sort")
e(f"v_subrev_u32 v{vT0}, s{sLO}, v{vLANE}")
e(f"v_cmp_gt_u32 vcc, s{sHI}, v{vT0}")
e(f"v_mov_b32 v{vT5}, 1")
e("s_waitcnt vmcnt(0)")
if SM:
    c("blocks to hand over: the first 2x candidates lying in the part of memory swept while the helper works on them")
    e(f"s_mov_b64 s[{sV0M}:{sV0M+1}], 0")
    e(f"s_mov_b64 s[{sV1M}:{sV1M+1}], 0")
    e(f"s_cmp_eq_u32 s{sD2}, 0")
    e("s_cbranch_scc1 L_pl_nod")
    e(f"s_movk_i32 s{sT0}, {SM[1]-SM[0]}")
    e(f"v_subrev_u32 v{vT2}, {SM[0]}, v{vRW}")
    e(f"v_subrev_u32 v{vT3}, {SM[0]}, v{vRW+1}")
    e(f"s_bfm_b64 s[{sCM}:{sCM+1}], s{sCN}, {NUM}")
    e(f"v_cmp_gt_u32 s[{sV0M}:{sV0M+1}], s{sT0}, v{vT2}")
    e(f"v_cmp_gt_u32 s[{sV1M}:{sV1M+1}], s{sT0}, v{vT3}")
    e(f"s_and_b64 s[{sV0M}:{sV0M+1}], s[{sV0M}:{sV0M+1}], s[{sCM}:{sCM+1}]")
    e(f"s_and_b64 s[{sV1M}:{sV1M+1}], s[{sV1M}:{sV1M+1}], s[{sCM}:{sCM+1}]")
    e(f"s_bcnt1_i32_b64 s{sT0}, s[{sV0M}:{sV0M+1}]")
    e(f"s_bcnt1_i32_b64 s{sT1}, s[{sV1M}:{sV1M+1}]")
    e(f"s_add_u32 s{sT1}, s{sT1}, s{sT0}")
    e(f"s_cmp_lt_u32 s{sT1}, s{sD2}")
    e(f"s_cselect_b64 s[{sV0M}:{sV0M+1}], s[{sCM}:{sCM+1}], s[{sV0M}:{sV0M+1}]")
    e(f"s_cselect_b64 s[{sV1M}:{sV1M+1}], s[{sCM}:{sCM+1}], s[{sV1M}:{sV1M+1}]")
    e(f"s_cselect_b32 s{sT0}, s{sCN}, s{sT0}")
    e(f"v_mbcnt_lo_u32_b32 v{vT2}, s{sV0M}, 0")
    e(f"v_mbcnt_lo_u32_b32 v{vT3}, s{sV1M}, 0")
    e(f"v_mbcnt_hi_u32_b32 v{vT2}, s{sV0M+1}, v{vT2}")
    e(f"v_mbcnt_hi_u32_b32 v{vT3}, s{sV1M+1}, v{vT3}")
    e(f"s_sub_u32 s{sT0}, s{sD2}, s{sT0}")
    e(f"v_cmp_gt_i32 s[{sCM}:{sCM+1}], s{sD2}, v{vT2}")
    e(f"s_and_b64 s[{sV0M}:{sV0M+1}], s[{sV0M}:{sV0M+1}], s[{sCM}:{sCM+1}]")
    e(f"v_cmp_gt_i32 s[{sCM}:{sCM+1}], s{sT0}, v{vT3}")
    e(f"s_and_b64 s[{sV1M}:{sV1M+1}], s[{sV1M}:{sV1M+1}], s[{sCM}:{sCM+1}]")
    lab("L_pl_nod")
    e(f"s_cmp_lg_u32 s{sCI}, 0")
    e("s_cbranch_scc1 L_pl_val")
    e(f"s_andn2_b64 s[{sV0M}:{sV0M+1}], vcc, s[{sV0M}:{sV0M+1}]")
    e(f"s_andn2_b64 s[{sV1M}:{sV1M+1}], vcc, s[{sV1M}:{sV1M+1}]")
    lab("L_pl_val")
X0 = f"s[{sV0M}:{sV0M+1}]" if SM else "vcc"
X1 = f"s[{sV1M}:{sV1M+1}]"
if a.nosort:
    e(f"v_lshlrev_b32 v{vT2}, 1, v{vT0}")
    e(f"v_add_u32 v{vT3}, 1, v{vT2}")
else:
    c("counting sort of the block ids into 64 buckets of ascending physical address")
    e(f"v_lshrrev_b32 v{vT0}, 6, v{vRW}")
    e(f"v_lshrrev_b32 v{vT1}, 6, v{vRW+1}")
    e(f"v_cmp_eq_u32 s[{sRK+2}:{sRK+3}], s{sT3}, v{vLANE}")
    if mfirst:
        e(f"v_med3_u32 v{vT0}, v{vT0}, 1, 63")
        e(f"v_med3_u32 v{vT1}, v{vT1}, 1, 63")
    else:
        e(f"v_min_u32 v{vT0}, 62, v{vT0}")
        e(f"v_min_u32 v{vT1}, 62, v{vT1}")
    fb = 0 if mfirst else 63
    e(f"v_cndmask_b32 v{vT0}, v{vT0}, {fb}, s[{sRK+2}:{sRK+3}]")
    e(f"v_cndmask_b32 v{vT1}, v{vT1}, {fb}, s[{sRK+2}:{sRK+3}]")
    e(f"v_lshlrev_b32 v{vT0}, 2, v{vT0}")
    e(f"v_lshlrev_b32 v{vT1}, 2, v{vT1}")
    e(f"v_add_u32 v{vKF}, s{sSB}, v{vT0}")
    e(f"v_add_u32 v{vKF+1}, s{sSB}, v{vT1}")
    e(f"s_mov_b64 exec, {X0}")
    e(f"ds_add_rtn_u32 v{vT2}, v{vKF}, v{vT5}")
    if SM: e(f"s_mov_b64 exec, {X1}")
    e(f"ds_add_rtn_u32 v{vT3}, v{vKF+1}, v{vT5}")
    e("s_mov_b64 exec, -1")
    e(f"ds_read_b32 v{vT4}, v{vPA}")
    e("s_waitcnt lgkmcnt(0)")
    e(f"v_mov_b32 v{vKF+2}, v{vT4}")
    for sh in (1, 2, 4, 8):
        e("s_nop 1")
        e(f"v_add_u32_dpp v{vT4}, v{vT4}, v{vT4} row_shr:{sh} row_mask:0xf bank_mask:0xf bound_ctrl:0")
    e("s_nop 1")
    e(f"v_add_u32_dpp v{vT4}, v{vT4}, v{vT4} row_bcast:15 row_mask:0xa bank_mask:0xf")
    e("s_nop 1")
    e(f"v_add_u32_dpp v{vT4}, v{vT4}, v{vT4} row_bcast:31 row_mask:0xc bank_mask:0xf")
    e(f"v_sub_u32 v{vT4}, v{vT4}, v{vKF+2}")
    e(f"ds_bpermute_b32 v{vT0}, v{vT0}, v{vT4}")
    e(f"ds_bpermute_b32 v{vT1}, v{vT1}, v{vT4}")
    e("s_waitcnt lgkmcnt(0)")
    e(f"v_add_u32 v{vT2}, v{vT2}, v{vT0}")
    e(f"v_add_u32 v{vT3}, v{vT3}, v{vT1}")
e(f"v_lshlrev_b32 v{vRW}, 15, v{vRW}")
e(f"v_lshlrev_b32 v{vRW+1}, 15, v{vRW+1}")
e(f"v_lshl_add_u32 v{vT2}, v{vT2}, 2, s{sLBASE}")
e(f"v_lshl_add_u32 v{vT3}, v{vT3}, 2, s{sLBASE}")
e(f"s_mov_b64 exec, {X0}")
e(f"ds_write_b32 v{vT2}, v{vRW}")
if SM: e(f"s_mov_b64 exec, {X1}")
e(f"ds_write_b32 v{vT3}, v{vRW+1}")
e("s_mov_b64 exec, -1")
c("place the sorted tiles at their stream positions; flags: 1 valid, 2 masked, 4 last of batch, 8 last of stream")
e(f"v_mbcnt_lo_u32_b32 v{vT0}, s{sMA}, 0")
e(f"v_mbcnt_hi_u32_b32 v{vT0}, s{sMA+1}, v{vT0}")
e(f"v_lshl_add_u32 v{vT0}, v{vT0}, 3, s{sLBASE}")
e(f"ds_read_b64 v[{vT2}:{vT3}], v{vT0}")
e(f"s_lshr_b32 s{sT0}, s{sWB}, 8")
e(f"s_sub_u32 s{sT1}, s{sT}, 1")
e(f"v_cmp_eq_u32 vcc, s{sT0}, v{vLANE}")
e(f"v_cmp_eq_u32 s[{sRK+2}:{sRK+3}], s{sT1}, v{vLANE}")
e(f"v_cmp_eq_u32 s[{sT2}:{sT2+1}], {G-1}, v{vLANE}")
e(f"v_cndmask_b32 v{vT4}, 1, 3, vcc")
e(f"v_cndmask_b32 v{vT5}, 0, 12, s[{sRK+2}:{sRK+3}]")
e(f"v_cndmask_b32 v{vT1}, 0, 4, s[{sT2}:{sT2+1}]")
e(f"v_or3_b32 v{vT4}, v{vT4}, v{vT5}, v{vT1}")
e(f"v_lshlrev_b32 v{vT0}, 3, v{vLANE}")
e(f"v_add_u32 v{vT0}, {SL}, v{vT0}")
e("s_waitcnt lgkmcnt(0)")
e(f"v_or_b32 v{vT2}, v{vT2}, v{vT4}")
e(f"s_mov_b64 exec, s[{sMA}:{sMA+1}]")
e(f"ds_write_b64 v{vT0}, v[{vT2}:{vT3}]")
e("s_mov_b64 exec, -1")
lab("L_pl_done")
e(f"s_cmp_lg_u32 s{sMRG}, 0")
e("s_cbranch_scc1 L_fetch")
e(f"s_cmp_eq_u32 s{sTB}, 0")
e("s_cbranch_scc1 L_fin")
c("become the consumer of the donated tiles")
load_q(sPB)
e(f"s_mov_b64 s[{sMALL}:{sMALL+1}], s[{sMBK}:{sMBK+1}]")
e(f"s_mov_b32 s{sM}, s{sMBK}")
e(f"s_and_b32 s{sM+1}, s{sMBK+1}, {RHI:#x}")
e(f"s_mov_b32 s{sTTC}, s{sT}")
e(f"s_min_u32 s{sTB1}, s{sT}, {G}")
e(f"s_mov_b32 s{sROLE}, 1")
e(f"s_mov_b32 s{sPLN}, 1")
e(f"s_lshr_b32 s{sT3}, s{sZQ}, s{sPB}")
e(f"s_and_b32 s{sT3}, s{sT3}, 1")
e("s_branch L_csetup")

lab("L_fetch")
e(f"s_cmp_lg_u32 s{sCI}, 0")
e("s_cbranch_scc1 L_fin")
rows_off(sB)
if a.otouch >= 0:
    c("make the lines that will carry the partial valid in L2 (a later read of write-only lines would go to memory)")
    e(f"v_lshl_add_u32 v{vT4}, v{vLANE}, 7, s{sQO}")
    e(f"global_load_dword v{vPF}, v{vT4}, s[{sOUT}:{sOUT+1}] {a.ofl.replace('+', ' ')}")
ws_base(sB)
e(f"v_lshl_add_u32 v{vT1}, v{vT0}, 3, s{sT0}")
e(f"v_mov_b32 v{vFW}, s{sT0}")
e(f"s_lshl_b32 s{sT2}, s{sB}, 2")
e(f"v_mov_b32 v{vT2}, s{sT2}")
e(f"v_mov_b32 v{vPA}, {CTRL+16}")
e("s_mov_b64 exec, 1")
e(f"s_mul_i32 s{sNEED}, s{sT}, {a.pollnum}")
e(f"s_lshr_b32 s{sNEED}, s{sNEED}, 5")
e(f"s_lshl_b32 s{sT3}, s{sH}, 1")
e(f"s_mov_b32 s{sMBF}, 0")
c("wait until wave 5 has cleared the flag words and the stream is far enough")
lab("L_f_wait")
e(f"ds_read_b64 v[{vPL}:{vPL+1}], v{vPA}")
e("s_waitcnt lgkmcnt(0)")
e(f"v_readfirstlane_b32 s{sLND}, v{vPL}")
e(f"v_readfirstlane_b32 s{sT0}, v{vPL+1}")
e(f"s_cmp_ge_i32 s{sLND}, s{sNEED}")
e(f"s_cselect_b32 s{sT0}, s{sT0}, 0")
e(f"s_cmp_lg_u32 s{sT0}, 0")
e("s_cbranch_scc1 L_f_poll")
spin_tail("L_f_wait", 8)
lab("L_f_poll")
if "nopoll" in DBG: e("s_branch L_f_got")
e(f"global_load_dwordx2 v[{vPL}:{vPL+1}], v{vFW}, s[{sWS}:{sWS+1}] offset:256 sc1")
e(f"s_add_u32 s{sMBF}, s{sMBF}, 1")
e(f"s_and_b32 s{sT0}, s{sMBF}, 3")
e(f"s_mov_b32 s{sT2}, 0")
e("s_cbranch_scc1 L_f_nodbg")
e(f"global_load_dword v{vT3}, v{vT2}, s[{sDBG}:{sDBG+1}] sc1")
e("s_waitcnt vmcnt(0)")
e(f"v_readfirstlane_b32 s{sT2}, v{vT3}")
e(f"s_lshr_b32 s{sT2}, s{sT2}, s{sT3}")
lab("L_f_nodbg")
e("s_waitcnt vmcnt(0)")
e(f"v_lshl_or_b32 v{vPL}, v{vPL+1}, 1, v{vPL}")
e("s_nop 0")
e(f"v_readfirstlane_b32 s{sT0}, v{vPL}")
e(f"s_or_b32 s{sT0}, s{sT0}, s{sT2}")
e(f"s_and_b32 s{sT0}, s{sT0}, 3")
e(f"s_cmp_eq_u32 s{sT0}, 3")
e("s_cbranch_scc1 L_f_got")
spin_tail("L_f_poll", a.psleep)
lab("L_f_got")
e("s_mov_b64 exec, -1")
c("a half that came through memory: acquire at device scope before reading it")
e(f"s_and_b32 s{sT2}, s{sT2}, 3")
e("s_cbranch_scc0 L_f_ld")
e("buffer_inv sc1")
e("s_waitcnt vmcnt(0)")
lab("L_f_ld")
e(f"v_lshl_add_u32 v{vT4}, v{vLANE}, 4, s{sQO}")
e(f"v_add_u32 v{vT5}, 4096, v{vT4}")
FLD = " " + a.fld if a.fld != "none" else ""
for cc in range(2):
    if "nofetch" in DBG:
        e(f"v_mov_b32 v{vM+2*cc}, 0"); e(f"v_mov_b32 v{vM+2*cc+1}, 0")
        continue
    e(f"global_load_dwordx2 v[{vM+2*cc}:{vM+2*cc+1}], v{vT1}, s[{sWS}:{sWS+1}] offset:{128*cc}{FLD}")
    for j in range(4):
        r = vKF + 16 * cc + 4 * j
        e(f"global_load_dwordx4 v[{r}:{r+3}], v{vT4+cc}, s[{sOUT}:{sOUT+1}] offset:{1024*j}{FLD}")
e(f"v_lshlrev_b32 v{vT2}, 4, v{vLANE}")
e(f"v_add_u32 v{vT2}, {MB}, v{vT2}")
e(f"v_lshlrev_b32 v{vT0}, 3, v{vT0}")
e(f"v_add_u32 v{vT0}, {MB}, v{vT0}")
e(f"v_mov_b32 v{vPL}, {CTRL+4}")
e(f"v_mov_b32 v{vT3}, 1")
for cc in range(2):
    e(f"s_waitcnt vmcnt({5-5*cc})")
    for j in range(4):
        r = vKF + 16 * cc + 4 * j
        e(f"ds_write_b128 v{vT2}, v[{r}:{r+3}] offset:{MBS*cc + 1024*j}")
    e(f"ds_write_b64 v{vT0}, v[{vM+2*cc}:{vM+2*cc+1}] offset:{MBS*cc + 4096}")
    e(f"ds_write_b32 v{vPL}, v{vT3} offset:{8*cc}")
e(FIN)

c("wave 5: workgroups that share an L2 post their remaining work; one that lags prefetches deeper")
lab("L_ctl")
e(f"v_mov_b32 v{vT1}, {REC0}")
e(f"v_mov_b32 v{vPA}, {CTRL+32}")
e(f"v_mov_b32 v{vFW}, {DEPW}")
e(f"s_lshl_b32 s{sT0}, s{sB}, 2")
e(f"v_mov_b32 v{vG}, s{sT0}")
e(f"v_mov_b32 v{vFV}, v{vT3}")
lo = sum((XT[i] & 255) << (8 * i) for i in range(4)); hi = sum((XT[4 + i] & 255) << (8 * i) for i in range(4))
e(f"s_getreg_b32 s{sT0}, hwreg(HW_REG_XCC_ID, 0, 3)")
e(f"s_mov_b32 s{sM}, {lo:#x}")
e(f"s_mov_b32 s{sM+1}, {hi:#x}")
e(f"s_lshl_b32 s{sT0}, s{sT0}, 3")
e(f"s_lshr_b64 s[{sM}:{sM+1}], s[{sM}:{sM+1}], s{sT0}")
e(f"s_sext_i32_i8 s{sBO}, s{sM}")
lab("L_g_plan")
e(f"ds_read_b128 v[{vT2}:{vT5}], v{vT1}")
e("s_waitcnt lgkmcnt(0)")
e(f"v_readfirstlane_b32 s{sT0}, v{vT5}")
e(f"v_readfirstlane_b32 s{sT}, v{vT4}")
e(f"s_cmp_lg_u32 s{sT0}, 0")
e("s_cbranch_scc1 L_g_go")
spin_tail("L_g_plan", 8)
lab("L_g_go")
e(f"s_and_b32 s{sMRG}, s{sT}, 1")
e("s_cbranch_scc0 L_g_nores")
c("a partial is expected: clear its flag words before anything is posted")
ws_base(sB)
e(f"v_mov_b32 v{vT0}, s{sT0}")
e(f"v_mov_b32 v{vT2}, 0")
e(f"v_mov_b32 v{vT3}, 0")
e(f"v_mov_b32 v{vT4}, {CTRL+20}")
e(f"v_mov_b32 v{vT5}, 1")
e("s_mov_b64 exec, 1")
e(f"global_store_dwordx2 v{vT0}, v[{vT2}:{vT3}], s[{sWS}:{sWS+1}] offset:256")
e("s_waitcnt vmcnt(0)")
e(f"ds_write_b32 v{vT4}, v{vT5}")
e("s_mov_b64 exec, -1")
lab("L_g_nores")
e(f"s_and_b32 s{sT0}, s{sDBG}, 127")
e("s_cbranch_scc1 L_fin")
c("posted word: remaining units + 1 | head << 16 | die << 20 | flags cleared << 24")
e(f"s_getreg_b32 s{sFB}, hwreg(HW_REG_XCC_ID, 0, 4)")
e(f"s_lshl4_add_u32 s{sFB}, s{sMRG}, s{sFB}")
e(f"s_lshl4_add_u32 s{sFB}, s{sFB}, s{sH}")
e(f"s_lshl_b32 s{sFB}, s{sFB}, 16")
e(f"s_lshr_b32 s{sT}, s{sT}, 8")
e(f"s_lshl1_add_u32 s{sTN}, s{sT}, 1")
e(f"v_lshlrev_b32 v{vT1}, 1, v{vFV}")
e(f"v_add_u32 v{vT1}, {CTRL+68}, v{vT1}")
e(f"v_mov_b32 v{vT2}, s{sFB}")
e("s_mov_b64 exec, 1")
e(f"global_store_dword v{vG}, v{vT2}, s[{sDBG}:{sDBG+1}] offset:128")
e("s_mov_b64 exec, -1")
if "v" in a.tlb: e(f"global_load_dword v{vPF}, v{vTL}, s[{sV}:{sV+1}] nt")
if "prog2" in DBG: e("v_mov_b32 v50, 0")
if a.skew:
    e(f"s_mov_b32 s{sNEED}, 3")
    e(f"s_cmp_lt_u32 s{sT}, 8")
    e("s_cbranch_scc1 L_fin")
    lab("L_g_sw")
    e(f"ds_read_b32 v{vPL}, v{vPA}")
    e("s_waitcnt lgkmcnt(0)")
    e(f"v_readfirstlane_b32 s{sLND}, v{vPL}")
    e(f"s_cmp_ge_i32 s{sLND}, s{sNEED}")
    e("s_cbranch_scc1 L_g_sa")
    spin_tail("L_g_sw", 1)
    lab("L_g_sa")
    e(f"global_load_dword v{vT0}, v{vFV}, s[{sDBG}:{sDBG+1}] sc1")
    e("s_waitcnt vmcnt(0)")
    e(f"v_cmp_gt_i32 vcc, 0, v{vT0}")
    e(f"v_lshrrev_b32 v{vT0}, 16, v{vT0}")
    e(f"v_sub_u32 v{vT0}, s{sMA}, v{vT0}")
    e(f"v_bfe_i32 v{vT0}, v{vT0}, 0, 15")
    e(f"v_cndmask_b32 v{vT0}, 0, v{vT0}, vcc")
    for sh in (1, 2, 4):
        e("s_nop 1")
        op = "v_max_i32_dpp" if "ampmax" in DBG else "v_add_u32_dpp"
        e(f"{op} v{vT0}, v{vT0}, v{vT0} row_shr:{sh} row_mask:0xf bank_mask:0xf bound_ctrl:0")
    e("s_nop 0")
    e(f"v_readlane_b32 s{sT0}, v{vT0}, 7")
    if "ampmax" in DBG or "ampmean" in DBG:
        e(f"s_mul_i32 s{sMBK}, s{sT0}, {20 if 'ampmax' in DBG else 3}")
        e(f"s_max_i32 s{sMBK}, s{sMBK}, 0")
        e(f"s_add_u32 s{sMBK}, s{sMBK}, 3500")
        lab("L_amp")
        e("s_sleep 4")
        e(f"s_memrealtime s[{sLO}:{sLO+1}]")
        e("s_waitcnt lgkmcnt(0)")
        e(f"s_sub_u32 s{sT0}, s{sLO}, s{sMA}")
        e(f"s_cmp_lt_u32 s{sT0}, s{sMBK}")
        e("s_cbranch_scc1 L_amp")
        e("s_endpgm")
    e(f"s_mul_i32 s{sT0}, s{sT0}, {a.skew}")
    e(f"s_ashr_i32 s{sT0}, s{sT0}, 9")
    e(f"s_add_u32 s{sBO}, s{sBO}, s{sT0}")
e(f"s_mov_b32 s{sNEED}, {a.cstart}")
lab("L_g_next")
e(f"s_sub_u32 s{sT0}, s{sTN}, s{sNEED}")
e(f"s_cmp_lt_i32 s{sT0}, {a.cstop}")
e("s_cbranch_scc1 L_fin")
lab("L_g_w")
e(f"ds_read_b32 v{vPL}, v{vPA}")
e("s_waitcnt lgkmcnt(0)")
e(f"v_readfirstlane_b32 s{sLND}, v{vPL}")
e(f"s_cmp_ge_i32 s{sLND}, s{sNEED}")
e("s_cbranch_scc1 L_g_a")
spin_tail("L_g_w", 1)
lab("L_g_a")
if "prog2" in DBG:
    e(f"s_memrealtime s[{sST+2}:{sST+3}]")
    e(f"s_lshr_b32 m0, s{sLND}, 1")
    e("s_waitcnt lgkmcnt(0)")
    e(f"v_writelane_b32 v50, s{sST+2}, m0")
e(f"s_sub_u32 s{sNK}, s{sTN}, s{sLND}")
e(f"s_or_b32 s{sT0}, s{sNK}, s{sFB}")
e(f"v_mov_b32 v{vT2}, s{sT0}")
e("s_mov_b64 exec, 1")
e(f"global_store_dword v{vG}, v{vT2}, s[{sDBG}:{sDBG+1}] offset:128")
e("s_mov_b64 exec, -1")
e(f"global_load_dword v{vT0}, v{vFV}, s[{sDBG}:{sDBG+1}] offset:128 sc1")
e(f"s_add_u32 s{sNEED}, s{sLND}, {a.cstep}")
e(f"s_min_i32 s{sT3}, s{sBO}, 1")
e(f"s_max_i32 s{sT3}, s{sT3}, -1")
e(f"s_sub_u32 s{sBO}, s{sBO}, s{sT3}")
e("s_waitcnt vmcnt(0)")
e(f"ds_write_b32 v{vT1}, v{vT0}")
e(f"v_and_b32 v{vT0}, 0xffff, v{vT0}")
e(f"v_cmp_ne_u32 vcc, 0, v{vT0}")
for sh in (1, 2, 4, 8):
    e("s_nop 1")
    e(f"v_add_u32_dpp v{vT0}, v{vT0}, v{vT0} row_shr:{sh} row_mask:0xf bank_mask:0xf bound_ctrl:0")
e("s_nop 1")
e(f"v_add_u32_dpp v{vT0}, v{vT0}, v{vT0} row_bcast:15 row_mask:0xa bank_mask:0xf")
e(f"s_bcnt1_i32_b32 s{sT1}, vcc_lo")
e(f"v_readlane_b32 s{sT0}, v{vT0}, 31")
e(f"s_mul_i32 s{sT2}, s{sNK}, s{sT1}")
e(f"s_sub_u32 s{sT2}, s{sT2}, s{sT0}")
e(f"s_lshl_b32 s{sT2}, s{sT2}, 2")
for th, inc, cmp in ((CTH[0], -1, "lt"), (CTH[1], 1, "gt"), (CTH[2], 1, "gt")):
    e(f"s_mul_i32 s{sT0}, s{sT1}, {th - a.cbias}")
    e(f"s_cmp_{cmp}_i32 s{sT2}, s{sT0}")
    e(f"s_cselect_b32 s{sT0}, {inc}, 0")
    e(f"s_add_u32 s{sT3}, s{sT3}, s{sT0}")
e(f"s_max_i32 s{sT3}, s{sT3}, -1")
e(f"s_min_i32 s{sT3}, s{sT3}, 2")
e(f"v_mov_b32 v{vT2}, s{sT3}")
e(f"ds_write_b32 v{vFW}, v{vT2}")
e("s_branch L_g_next")

lab("L_fin")
if a.amp:
    if a.amp == "end":
        e(f"s_sub_u32 s{sT0}, s{sW}, 1")
        e(f"s_cmp_gt_u32 s{sT0}, 1")
    else:
        e(f"s_cmp_lg_u32 s{sW}, 0")
    e("s_cbranch_scc1 L_end")
    if a.ampwg >= 0:
        e(f"s_cmp_lg_u32 s2, {a.ampwg}")
        e("s_cbranch_scc1 L_end")
    e("s_waitcnt vmcnt(0) lgkmcnt(0)")
    if a.amp[:2] != "t0":
        e(f"s_memrealtime s[{sST+2}:{sST+3}]")
        e("s_waitcnt lgkmcnt(0)")
    e(f"s_sub_u32 s{sT1}, s{sST+2}, s{sST}")
    if a.amp[:2] != "t0": e(f"s_sub_u32 s{sT1}, s{sT1}, 2700")
    if a.amp == "t0x":
        e(f"s_getreg_b32 s{sT1}, hwreg(HW_REG_XCC_ID, 0, 4)")
        e(f"s_mul_i32 s{sT1}, s{sT1}, 50")
    if a.amp == "t0p":
        e(f"s_getreg_b32 s{sT1}, hwreg(HW_REG_XCC_ID, 0, 1)")
        e(f"s_mul_i32 s{sT1}, s{sT1}, 200")
    e(f"s_max_i32 s{sT1}, s{sT1}, 0")
    e(f"s_min_i32 s{sT1}, s{sT1}, 2000")
    e(f"s_mul_i32 s{sT1}, s{sT1}, 10")
    e(f"s_add_u32 s{sT1}, s{sT1}, 3500")
    lab("L_ampw")
    e("s_sleep 2")
    e(f"s_memrealtime s[{sST+2}:{sST+3}]")
    e("s_waitcnt lgkmcnt(0)")
    e(f"s_sub_u32 s{sT0}, s{sST+2}, s{sST}")
    e(f"s_cmp_lt_u32 s{sT0}, s{sT1}")
    e("s_cbranch_scc1 L_ampw")
if "prog2" in DBG or "prog3" in DBG:
    e(f"s_cmp_lg_u32 s{sW}, {5 if 'prog2' in DBG else 0}")
    e("s_cbranch_scc1 L_np2")
    e(f"s_lshl_b32 s{sT0}, s2, 8")
    e(f"s_add_u32 s{sT0}, s{sT0}, 0x400000")
    e(f"v_lshl_add_u32 v51, v{vLANE}, 2, s{sT0}")
    e(f"global_store_dword v51, v50, s[{sWS}:{sWS+1}]")
    lab("L_np2")
if a.stamps:
    e(f"s_cmp_gt_u32 s{sW}, 2")
    e("s_cbranch_scc1 L_end")
    e("s_mov_b64 exec, -1")
    e("s_waitcnt vmcnt(0) lgkmcnt(0)")
    stamp(3)
    e(f"s_getreg_b32 s{sT0}, hwreg(HW_REG_XCC_ID)")
    e("s_waitcnt lgkmcnt(0)")
    for i in range(8):
        e(f"v_mov_b32 v{64+i}, s{sST+i}")
    e(f"v_mov_b32 v72, s{sT0}")
    e(f"s_sub_u32 s{sT1}, {SPIN}, s{sSPIN}")
    e(f"v_mov_b32 v73, s{sT1}")
    e(f"v_mov_b32 v74, s{sT}")
    e(f"v_mov_b32 v75, 0")
    e(f"s_mul_i32 s{sT0}, s2, {NW}")
    e(f"s_add_u32 s{sT0}, s{sT0}, s{sW}")
    e(f"s_lshl_b32 s{sT0}, s{sT0}, 6")
    e(f"v_mov_b32 v80, s{sT0}")
    e("s_mov_b64 exec, 1")
    e(f"global_store_dwordx4 v80, v[64:67], s[{sWS}:{sWS+1}]")
    e(f"global_store_dwordx4 v80, v[68:71], s[{sWS}:{sWS+1}] offset:16")
    e(f"global_store_dwordx4 v80, v[72:75], s[{sWS}:{sWS+1}] offset:32")
lab("L_end")
e("s_endpgm")
if a.wake:
    out.append(".p2align 8")
    lab("L_pad")
    out.append(f".fill {64 * a.wake}, 4, 0xbf810000")
out.append('.section .rodata,"a"')
out.append(".p2align 6")
out.append(f".amdhsa_kernel {NAME}_kernel")
out.append(f"  .amdhsa_next_free_vgpr {NV}")
out.append("  .amdhsa_next_free_sgpr 102")
out.append(f"  .amdhsa_accum_offset {NV}")
out.append("  .amdhsa_group_segment_fixed_size 0")
out.append("  .amdhsa_kernarg_size 64")
out.append("  .amdhsa_user_sgpr_count 2")
out.append("  .amdhsa_user_sgpr_kernarg_segment_ptr 1")
out.append("  .amdhsa_system_sgpr_workgroup_id_x 1")
out.append("  .amdhsa_float_denorm_mode_32 3")
out.append(".end_amdhsa_kernel")
open(a.o, "w").write("\n".join(out) + "\n")
```

```python
import sys, argparse
NAME = "standalone__paged_block_table_kv_pagedattention__sampling"
HEADER = open("cdna_kernels/" + NAME + ".s.ref").read().split("; Override")[0]

ap = argparse.ArgumentParser()
ap.add_argument("-o", default="/dev/stdout")
ap.add_argument("--map", default="plain")
ap.add_argument("--hrot", type=int, default=0)
ap.add_argument("--D", type=int, default=21)
ap.add_argument("--D0", type=int, default=26)
ap.add_argument("--NS", type=int, default=6)
ap.add_argument("--G", type=int, default=50)
ap.add_argument("--fnum", type=int, default=40)
ap.add_argument("--pollnum", type=int, default=55)
ap.add_argument("--psleep", type=int, default=6)
ap.add_argument("--UB", type=int, default=8)
ap.add_argument("--mfirst", type=int, default=1)
ap.add_argument("--cth", default="-2,2,5")
ap.add_argument("--cbias", type=int, default=7)
ap.add_argument("--cstart", type=int, default=8)
ap.add_argument("--cstop", type=int, default=4)
ap.add_argument("--cstep", type=int, default=3)
ap.add_argument("--xt", default="7,-4,6,-8,5,2,4,-7")
ap.add_argument("--NUM", type=int, default=4)
ap.add_argument("--last", type=int, default=1)
ap.add_argument("--hold", default="")
ap.add_argument("--ost", default="")
ap.add_argument("--wb", type=int, default=0)
ap.add_argument("--skew", type=int, default=0)
ap.add_argument("--dv", default="-1,1,3")
ap.add_argument("--fpf", type=int, default=6)
ap.add_argument("--fld", default="sc1")
ap.add_argument("--opf", type=int, default=0)
ap.add_argument("--otouch", type=int, default=0)
ap.add_argument("--ospread", type=int, default=1)
ap.add_argument("--ofl", default="")
ap.add_argument("--DM", type=int, default=3)
ap.add_argument("--NE", type=int, default=3)
ap.add_argument("--amp", default="")
ap.add_argument("--ampwg", type=int, default=-1)
ap.add_argument("--tlb", default="")
ap.add_argument("--tlbs", type=int, default=21)
ap.add_argument("--wake", type=int, default=0)
ap.add_argument("--spec", type=int, default=1)
ap.add_argument("--lat", type=int, default=1)
ap.add_argument("--smart", default="")
ap.add_argument("--bar", type=int, default=1)
ap.add_argument("--hmap", default="")
ap.add_argument("--pst", default="")
ap.add_argument("--pfm", type=int, default=0)
ap.add_argument("--tr", default="")
ap.add_argument("--nosort", action="store_true")
ap.add_argument("--nopair", action="store_true")
ap.add_argument("--limf", default="0x43800000")
ap.add_argument("--dbg", default="")
ap.add_argument("--stamps", action="store_true")
a = ap.parse_args()
NT = " nt"
OST = "" if not a.ost else " " + a.ost.replace("+", " ")
DBG = set(a.dbg.split(","))
D, D0, NS, G = a.D, a.D0, a.NS, a.G
assert 24 <= D0 <= 32 and (D - 2) // 8 == (D + 1) // 8 == 2 and 32 <= G < 64
CTH = [int(x) for x in a.cth.split(",")]
XT = [int(x) for x in a.xt.split(",")]
DV = [int(x) for x in a.dv.split(",")]
TR = [int(x) for x in a.tr.split(",")] if a.tr else None
assert 17 <= D + DV[0] and D + DV[2] <= 24
DIVM = {5: (205, 10), 6: (43, 8), 7: (147, 10), 8: (1, 3), 10: (205, 11), 12: (171, 11)}[NS]
assert all((u * DIVM[0]) >> DIVM[1] == u // NS for u in range(129))
NW = 6
KBYTES = 4100 * 32768
SPIN = 1 << 22
NUM = a.NUM

RING = NS * 8192
PST = RING
MB = PST + G * 2048
MBS = 4224
CTRL = MB + 2 * MBS
FREE = CTRL + 512
REC0 = FREE + 128
DEPW = REC0 + 16
SL = FREE + 256
CNT = SL + 768
LA = CNT + 512
LB = LA + 512
KEYS = LB + 512
LDS = KEYS + 256
assert LDS <= 163840, LDS
WS0 = 0x100000 if a.stamps else 0
WSA = WS0 + 0x40000

out = []
def e(s): out.append("    " + s)
def lab(s): out.append(s + ":")
def c(s): out.append("    ; " + s)

sQ, sK, sV, sBT, sCL, sOUT, sDBG, sWS = 4, 6, 8, 10, 12, 14, 16, 18
sRD = 20
sB, sH, sW, sCLV = 28, 29, 30, 31
sT0, sT1, sT2, sT3 = 32, 33, 34, 35
sPC = 36
sSPIN = 38
sNB, sNTL, sNU, sT = 39, 40, 41, 42
sST = 64
sE = 72
sB0, sB1, sFL, sPM, sSLOT, sU, sTA0 = 46, 47, 48, 49, 52, 56, 57
sTRM, sTRC = 50, 51
sM = 46
sCI, sLND, sMBF, sNEED, sMRG, sMT, sROLE, sQO, sPLN, sSB = 48, 49, 50, 51, 52, 56, 57, 58, 59, 60
sV0 = 61
sCST = 62
sTN, sNK, sFWN, sFB, sPRE, sREDO, sLIMF, sPO = 96, 97, 98, 99, 100, 101, 53, 43
sMALL, sRS = 24, 26
sOFF, sTB0, sTB1, sTTC, sFIRST = 20, 21, 22, 23, 44
sZQ = 54
sRK, sPB, sNP, sX, sTA, sTB, sF, sWB = 80, 81, 82, 83, 84, 85, 86, 87
sMA, sMBK = 88, 90
sLO, sHI, sLBASE = 92, 93, 94
sBO = 56
vLANE = 1
vT0, vT1, vT2, vT3, vT4, vT5 = 2, 3, 4, 5, 6, 7
vL = 8
vKOFF, vVOFF = 10, 14
vCA, vCNT, vFA, vR = 18, 19, 20, 21
vF = 22
vCUR = 24
vTR = 28
vTRK, vTRV = 36, 52
vEN = 44
vDP, vDA, vOOB, vSA = 46, 47, 48, 49
vKA0, vVA0, vXA = 8, 12, 16
vPA0, vPW, vINV, vOA = 20, 21, 22, 23
vM, vLS, vMN, vAL, vPA, vFW = 24, 25, 26, 27, 28, 29
vPL = 30
vQ = 32
vS = 48
vP = 56
vG, vPF, vFV, vN = 60, 61, 62, 63
vKF = 64
vVF = 96
vO = 128
vE = 160
vPN = 160
NV = 168

def stamp(i):
    if a.amp and (i == 0 or (i == 1 and a.amp == "t0")): e(f"s_memrealtime s[{sST+2*i}:{sST+2*i+1}]")
    if a.hold and i == 0: e(f"{'s_memrealtime' if a.hold[:2] == 'rt' else 's_memtime'} s[{sST}:{sST+1}]")
    if a.stamps: e(f"s_memrealtime s[{sST+2*i}:{sST+2*i+1}]")
def clamp_cl(zq=None):
    c("context length: <=0 -> every key masked => uniform weights over 2048 keys (zero Q); >2048 -> 2048")
    e(f"s_cmp_lt_i32 s{sCLV}, 1")
    if zq is not None: e(f"s_cselect_b32 s{zq}, 1, 0")
    e(f"s_cselect_b32 s{sCLV}, 2048, s{sCLV}")
    e(f"s_min_i32 s{sCLV}, s{sCLV}, 2048")
def derive_nb():
    e(f"s_add_u32 s{sNTL}, s{sNB}, 1")
    e(f"s_lshr_b32 s{sNTL}, s{sNTL}, 1")
    e(f"s_sub_u32 s{sNU}, s{sNTL}, 1")
    e(f"s_min_u32 s{sNU}, s{sNU}, {NUM}")
def derive_cl():
    e(f"s_add_u32 s{sNB}, s{sCLV}, 15")
    e(f"s_lshr_b32 s{sNB}, s{sNB}, 4")
    derive_nb()
def spin_tail(label, sleep=1):
    e(f"s_sleep {sleep}")
    e(f"s_sub_u32 s{sSPIN}, s{sSPIN}, 1")
    e(f"s_cbranch_scc0 {label}")
    e("s_endpgm")
FIN = "s_branch L_fin" if (a.stamps or a.amp) else "s_endpgm"

out.append(HEADER.rstrip())
out.append(f"; @launch grid=(256,1,1) block=({64*NW},1,1) lds={LDS}")
for line in """
Paged GQA attention, one workgroup per (batch b, kv head h); HBM-bound, so everything serves the K/V stream.
  wave 0     loader: LDS-DMA of 8 KB units (32 keys of K or V) into a ring, a counted number of requests in flight.
             Pass 1 streams every K tile, pass 2 every V tile, both in ascending physical-block order.
  waves 1,2  own task, 16 query rows each: pass 1 scores + softmax weights (kept in LDS), pass 2 weighted values.
  waves 3,4  rank the batches by length, pair long with short, sort the block ids. In a short workgroup they then
             process tiles donated by the long partner and hand the partial result over; in a long one wave 3 fetches it.
  wave 5     compares progress with the workgroups sharing its L2 and nudges the loader's request depth.
Hand-offs work under any placement: inside L2 only after a run-time check that both sides share a die.
""".strip("\n").split("\n"): out.append("; " + line)
out.append('.amdgcn_target "amdgcn-amd-amdhsa--gfx950"')
out.append(".text")
out.append(f".globl {NAME}_kernel")
out.append(".p2align 8")
out.append(f".type {NAME}_kernel,@function")
lab(f"{NAME}_kernel")
e("s_load_dwordx16 s[4:19], s[0:1], 0")
e(f"s_lshr_b32 s{sB}, s2, 3")
e(f"s_cmp_ge_u32 s{sB}, 32")
e("s_cbranch_scc1 L_end")
stamp(0)
e(f"v_lshrrev_b32 v{vT0}, 6, v0")
e(f"v_and_b32 v{vLANE}, 63, v0")
e(f"v_readfirstlane_b32 s{sW}, v{vT0}")
c("wave 1 pulls this kernel's code into L2")
e(f"s_getpc_b64 s[{sPC}:{sPC+1}]")
lab("L_pc")
e(f"v_lshlrev_b32 v{vT2}, 7, v{vLANE}")
e(f"v_min_u32 v{vT2}, L_end - L_pc - 256, v{vT2}")
if a.pfm:
    e(f"s_and_b32 s{sT0}, s2, {a.pfm << 3}")
    e(f"s_add_u32 s{sT0}, s{sT0}, s{sW}")
    e(f"s_cmp_lg_u32 s{sT0}, 1")
else:
    e(f"s_cmp_lg_u32 s{sW}, 1")
e("s_cbranch_scc1 L_nopf")
e(f"global_load_dword v{vPF}, v{vT2}, s[{sPC}:{sPC+1}] offset:256")
if a.wake:
    e(f"s_mul_i32 s{sT3}, s2, {a.wake}")
    e(f"v_and_b32 v{vT2}, {a.wake - 256}, v{vT2}")
    e(f"v_add_u32 v{vT2}, s{sT3}, v{vT2}")
    e(f"v_add_u32 v{vT2}, L_pad - L_pc, v{vT2}")
    e(f"global_load_dword v{vFV}, v{vT2}, s[{sPC}:{sPC+1}] nt")
lab("L_nopf")
c("clear the control words and the sort counters")
e(f"v_mov_b64 v[{vT2}:{vT3}], 0")
e(f"v_lshlrev_b32 v{vT4}, 3, v0")
e(f"v_add_u32 v{vT4}, {CTRL}, v{vT4}")
e(f"ds_write_b64 v{vT4}, v[{vT2}:{vT3}]")
if a.map == "rot":
    e(f"s_add_u32 s{sH}, s2, s{sB}")
    e(f"s_and_b32 s{sH}, s{sH}, 7")
elif a.hmap:
    e(f"s_lshl_b32 s{sH}, s2, 2")
    e(f"s_lshr_b32 s{sH}, {a.hmap}, s{sH}")
    e(f"s_and_b32 s{sH}, s{sH}, 7")
elif a.hrot:
    e(f"s_add_u32 s{sH}, s2, {a.hrot}")
    e(f"s_and_b32 s{sH}, s{sH}, 7")
else:
    e(f"s_and_b32 s{sH}, s2, 7")
e(f"s_lshl3_add_u32 s{sT2}, s{sB}, s{sH}")
e(f"s_lshl_b32 s{sT2}, s{sT2}, 13")
e(f"v_lshl_add_u32 v{vT5}, v{vLANE}, 7, s{sT2}")
e(f"s_lshl_b32 s{sT0}, s{sB}, 9")
e(f"v_lshl_add_u32 v{vT2}, v{vLANE}, 3, s{sT0}")
if not a.spec: e(f"s_lshl_b32 s{sT1}, s{sB}, 2")
e(f"v_and_b32 v{vT0}, 31, v{vLANE}")
e(f"v_lshlrev_b32 v{vT3}, 2, v{vT0}")
vTL = 22
if a.tlb:
    e(f"v_min_u32 v{vTL}, {(2 << (21 - a.tlbs)) - 1}, v{vLANE}")
    e(f"v_lshl_add_u32 v{vTL}, v{vTL}, 5, s{sB}")
    e(f"s_mul_i32 s{sT3}, s2, {8064 >> (21 - a.tlbs) & ~127}")
    e(f"v_lshl_add_u32 v{vTL}, v{vTL}, {a.tlbs}, s{sT3}")
e(f"s_cmp_lg_u32 s{sW}, 2")
e("s_waitcnt lgkmcnt(0)")
e(f"s_load_dwordx8 s[{sE}:{sE+7}], s[{sBT}:{sBT+1}], s{sT0}")
if not a.spec: e(f"s_load_dword s{sCLV}, s[{sCL}:{sCL+1}], s{sT1}")
c("wave 2 touches the 64 lines of this workgroup's queries while memory is still idle")
e("s_cbranch_scc1 L_noq")
if "k" in a.tlb: e(f"global_load_dword v{vFV}, v{vTL}, s[{sK}:{sK+1}] nt")
e(f"global_load_dword v{vPF}, v{vT5}, s[{sQ}:{sQ+1}]")
lab("L_noq")
if a.opf:
    e(f"s_cmp_lg_u32 s{sW}, 4")
    e("s_cbranch_scc1 L_noo")
    e(f"global_load_dword v{vPF}, v{vT5}, s[{sOUT}:{sOUT+1}]")
    lab("L_noo")
e(f"global_load_dwordx2 v[{vL}:{vL+1}], v{vT2}, s[{sBT}:{sBT+1}]")
e(f"global_load_dword v{vN}, v{vT3}, s[{sCL}:{sCL+1}]")
lab("L_loads_issued")
if a.amp == "t0k": e(f"s_memrealtime s[{sST+2}:{sST+3}]")
e(f"s_cmp_lg_u32 s{sW}, 0")
e(f"s_mov_b32 s{sSPIN}, {SPIN}")
e("s_cbranch_scc1 L_notloader")

e("s_setprio 3")
c("per-lane source offsets of the LDS-DMA pieces (bank swizzle applied on the source side)")
e(f"v_lshrrev_b32 v{vR}, 4, v{vLANE}")
e(f"v_and_b32 v{vT1}, 15, v{vLANE}")
e(f"s_lshl_b32 s{sT0}, s{sH}, 8")
e(f"v_lshl_add_u32 v{vT4}, v{vR}, 11, s{sT0}")
e(f"v_xor_b32 v{vT2}, v{vR}, v{vT1}")
e(f"v_lshl_add_u32 v{vKOFF}, v{vT2}, 4, v{vT4}")
for j in range(1, 4):
    e(f"v_xor_b32 v{vT3}, {64*j}, v{vKOFF}")
    e(f"v_add_u32 v{vKOFF+j}, {7168*j}, v{vT3}")
e(f"s_mov_b32 s{sRD}, s{sK}")
e(f"s_and_b32 s{sRD+1}, s{sK+1}, 0xffff")
e(f"s_mov_b32 s{sRD+2}, {KBYTES}")
e(f"s_mov_b32 s{sRD+3}, 0x20000")
if a.amp == "t0c": e(f"s_memrealtime s[{sST+2}:{sST+3}]")
if a.bar < 0: e("s_barrier")
e("s_waitcnt lgkmcnt(0)")
if not a.spec: clamp_cl()
c("the first stream tiles are the leading logical tiles; requested before the context length is known")
NE = a.NE
for t in range(NE):
    if not a.spec:
        e(f"s_cmp_le_u32 s{sCLV}, {32*(t+1)}")
        e(f"s_cbranch_scc1 {'L_ld_b' if t < 2 else 'L_ld_pre'}")
    if t == 0: stamp(1)
    for j in range(8):
        i = 8 * t + j
        if j % 4 == 0:
            e(f"s_movk_i32 m0, {1024*i}")
            e(f"s_lshl_b32 s{sB0}, s{sE+i//4}, 15")
        if i >= D0: e(f"s_waitcnt vmcnt({D0-1})")
        e(f"buffer_load_dwordx4 v{vKOFF+j%4}, s[{sRD}:{sRD+3}], s{sB0} offen offset:{1024*(j%4)}{NT} lds")
    if t == a.bar:
        lab("L_ld_b")
        e("s_barrier")
lab("L_ld_pre")
j0 = (D - 1) % 8
e(f"v_lshlrev_b32 v{vT3}, 2, v{vR}")
e(f"v_xor_b32 v{vT3}, v{vT3}, v{vT1}")
e(f"v_lshl_add_u32 v{vVOFF}, v{vT3}, 4, v{vT4}")
for j in range(1, 4):
    e(f"v_add_u32 v{vVOFF+j}, {7168*j}, v{vVOFF}")
e(f"v_lshlrev_b32 v{vCA}, 3, v{vLANE}")
e(f"v_add_u32 v{vT0}, {SL}, v{vCA}")
e(f"v_add_u32 v{vCA}, {CTRL}, v{vCA}")
e(f"v_mov_b32 v{vFA}, {FREE}")
e(f"v_mov_b64 v[{vF}:{vF+1}], 0")
e(f"v_mov_b32 v{vDP}, {2 if NE == 3 else 0}")
e(f"v_mov_b32 v{vDA}, {DEPW}")
e(f"v_bfrev_b32 v{vOOB}, 1")
def set_pass(off):
    for j in range(0, 4, 2): e(f"v_mov_b64 v[{vCUR+j}:{vCUR+j+1}], v[{off+j}:{off+j+1}]")
set_pass(vKOFF)
if "prog3" in DBG: e("v_mov_b32 v50, 0")
e(f"s_mov_b32 s{sPM}, 4")
if TR:
    e(f"s_mov_b32 s{sTRM}, 16")
    e(f"s_mov_b32 s{sTRC}, 2")
    e(f"v_cmp_gt_u32 vcc, {TR[1]}, v{vLANE}")
    e("s_nop 1")
    e(f"v_cndmask_b32 v{vT2}, 1, 33, vcc")
e(f"s_mov_b32 s{sTA0}, 0")
if a.spec:
    e(f"s_waitcnt vmcnt({8*NE})")
    e(f"v_readlane_b32 s{sCLV}, v{vN}, s{sB}")
    clamp_cl()
derive_cl()
c("the leading tiles enter the stream list straight from the table row")
e(f"s_min_u32 s{sT}, s{sNU}, {NE}")
e(f"s_lshl3_add_u32 s{sT0}, s{sT}, {SL}")
e(f"v_mov_b32 v{vSA}, s{sT0}")
e(f"s_sub_u32 s{sT0}, s{sT}, 3")
e(f"v_mov_b32 v{vCNT}, s{sT0}")
e(f"s_bfm_b64 s[{sT2}:{sT2+1}], s{sNU}, 0")
e(f"s_cmp_ge_u32 s{sNU}, {NE}")
e("s_cbranch_scc1 L_ld_row")
e("s_waitcnt vmcnt(0)")
lab("L_ld_row")
if not (a.spec and NE == 3): e("s_waitcnt vmcnt(24)")
if NE == 4: e(f"ds_write_b32 v{vCA}, v{vCNT}")
e(f"v_lshl_or_b32 v{vEN}, v{vL}, 15, {'v%d' % vT2 if TR else 1}")
e(f"v_lshlrev_b32 v{vEN+1}, 15, v{vL+1}")
e(f"s_mov_b64 exec, s[{sT2}:{sT2+1}]")
e(f"ds_write_b64 v{vT0}, v[{vEN}:{vEN+1}]")
e("s_mov_b64 exec, -1")
e(f"ds_read_b64 v[{vEN}:{vEN+1}], v{vSA}")
e(f"s_lshl_b32 s{sSLOT}, s{sT}, 13")
e(f"s_mov_b32 s{sU}, s{sT}")
c("lanes of the last logical tile whose rows lie inside the context")
e(f"s_lshl_b32 s{sT0}, s{sNTL}, 5")
e(f"s_sub_u32 s{sT0}, s{sCLV}, s{sT0}")
e(f"s_add_u32 s{sT0}, s{sT0}, 32")
e(f"v_sub_u32 v{vT1}, s{sT0}, v{vR}")
for k in range(8):
    e(f"v_cmp_lt_i32 s[{80+2*k}:{81+2*k}], {4*k}, v{vT1}")
if a.amp == "t0r": e(f"s_memrealtime s[{sST+2}:{sST+3}]")
if a.amp[:3] == "t0l":
    e(f"s_waitcnt vmcnt({int(a.amp[3:])})")
    e(f"s_memrealtime s[{sST+2}:{sST+3}]")
stamp(2)
def unit_body(depth, trimmed=False):
    for j in range(8):
        if j % 4 == 0: e(f"s_add_u32 m0, s{sSLOT}, {1024*j}")
        e(f"s_waitcnt vmcnt({depth-1})")
        e(f"buffer_load_dwordx4 v{vTR+j if trimmed else vCUR+j%4}, s[{sRD}:{sRD+3}], s{sB0 + j//4} offen offset:{1024*(j%4)}{NT} lds")
        if j == (depth - 1) % 8:
            e(f"v_add_u32 v{vCNT}, 1, v{vCNT}")
            e(f"ds_write_b32 v{vCA}, v{vCNT}")
        if j == 0:
            e(f"s_add_u32 s{sT2}, s{sSLOT}, 8192")
            e(f"s_cmp_eq_u32 s{sT2}, {RING}")
            e(f"s_cselect_b32 s{sT2}, 0, s{sT2}")
            e(f"s_lshr_b32 s{sT0}, s{sT2}, 10")
            e(f"s_add_u32 s{sT0}, s{sT0}, {FREE}")
            e(f"v_mov_b32 v{vFA}, s{sT0}")
        if j == 1:
            e(f"s_add_u32 s{sT}, s{sT}, 1")
            e(f"s_and_b32 s{sT0}, s{sFL}, s{sPM}")
            e(f"s_cselect_b32 s{sT}, s{sTA0}, s{sT}")
            e(f"s_lshl3_add_u32 s{sT0}, s{sT}, {SL}")
            e(f"v_mov_b32 v{vSA}, s{sT0}")
            e(f"s_add_u32 s{sU}, s{sU}, 1")
        if j == a.fpf:
            c("prefetch the next list entry, the FREE words of the next slot and the depth code")
            e(f"ds_read_b64 v[{vEN}:{vEN+1}], v{vSA}")
            e(f"ds_read_b64 v[{vF}:{vF+1}], v{vFA}")
            e(f"ds_read_b32 v{vDP}, v{vDA}")
            e(f"s_mov_b32 s{sSLOT}, s{sT2}")
out.append(".p2align 3")
lab("L_ld")
if "prog3" in DBG:
    e(f"s_memrealtime s[{sST+4}:{sST+5}]")
    e(f"s_min_u32 m0, s{sU}, 63")
e("s_waitcnt lgkmcnt(0)")
if "prog3" in DBG: e(f"v_writelane_b32 v50, s{sST+4}, m0")
e(f"v_min_i32 v{vT0}, v{vF}, v{vF+1}")
e(f"v_readfirstlane_b32 s{sFL}, v{vEN}")
e(f"v_readfirstlane_b32 s{sB1}, v{vEN+1}")
e(f"v_readfirstlane_b32 s{sT0}, v{vT0}")
e(f"v_readfirstlane_b32 s{sT3}, v{vDP}")
e(f"s_sub_u32 s{sT1}, s{sU}, {NS-1}")
e(f"s_cmp_ge_i32 s{sT0}, s{sT1}")
e(f"s_cselect_b32 s{sT0}, s{sFL}, 0")
e(f"s_and_b32 s{sB0}, s{sFL}, {'0xffffffc0' if TR else '-16'}")
e(f"s_and_b32 s{sT0}, s{sT0}, 3")
e(f"s_cmp_lg_u32 s{sT0}, 1")
e("s_cbranch_scc1 L_ld_odd")
if TR:
    e(f"s_and_b32 s{sT0}, s{sFL}, s{sTRM}")
    e(f"s_cselect_b32 s{sT3}, s{sTRC}, s{sT3}")
e(f"s_cmp_lg_u32 s{sT3}, 0")
e("s_cbranch_scc1 L_ld_var")
unit_body(D)
lab("L_ld_next")
e(f"s_bitcmp1_b32 s{sFL}, 2")
e("s_cbranch_scc0 L_ld")
c("last tile of the batch: change pass")
if TR:
    e(f"s_xor_b32 s{sTRM}, s{sTRM}, 48")
    e(f"s_xor_b32 s{sTRC}, s{sTRC}, 1")
e(f"s_xor_b32 s{sPM}, s{sPM}, 4")
e("s_cbranch_scc1 L_ld_tok")
e(f"s_mov_b32 s{sRD}, s{sV}")
e(f"s_and_b32 s{sRD+1}, s{sV+1}, 0xffff")
set_pass(vVOFF)
e("s_branch L_ld")
lab("L_ld_tok")
e(f"s_bitcmp1_b32 s{sFL}, 3")
e("s_cbranch_scc0 L_ld_more")
for r in (16, 8, 0):
    e(f"v_add_u32 v{vCNT}, 1, v{vCNT}")
    e(f"s_waitcnt vmcnt({r})")
    e(f"ds_write_b32 v{vCA}, v{vCNT}")
if a.hold:
    lab("L_hold")
    e(f"{'s_memrealtime' if a.hold[:2] == 'rt' else 's_memtime'} s[{sST+2}:{sST+3}]")
    e("s_waitcnt lgkmcnt(0)")
    e(f"s_sub_u32 s{sT0}, s{sST+2}, s{sST}")
    e(f"s_cmp_lt_u32 s{sT0}, {a.hold[3:]}")
    e("s_cbranch_scc1 L_hold")
e(FIN)
lab("L_ld_more")
e(f"s_mov_b32 s{sTA0}, s{sT}")
e(f"s_mov_b32 s{sRD}, s{sK}")
e(f"s_and_b32 s{sRD+1}, s{sK+1}, 0xffff")
set_pass(vKOFF)
e("s_branch L_ld")
lab("L_ld_odd")
e(f"s_cmp_eq_u32 s{sT0}, 3")
e("s_cbranch_scc1 L_ld_m")
c("slot not free yet or entry not written yet")
e(f"ds_read_b64 v[{vEN}:{vEN+1}], v{vSA}")
e(f"ds_read_b64 v[{vF}:{vF+1}], v{vFA}")
e(f"s_sub_u32 s{sSPIN}, s{sSPIN}, 1")
e("s_cbranch_scc0 L_ld")
e("s_endpgm")
lab("L_ld_m")
c("the last logical tile: rows past the context are not fetched (their lanes read zeros)")
for k in range(8):
    e(f"v_cndmask_b32 v{vTR+k}, v{vOOB}, v{vCUR+k%4}, s[{80+2*k}:{81+2*k}]")
unit_body(D + a.DM, True)
e("s_branch L_ld_next")
lab("L_ld_var")
e(f"s_cmp_eq_u32 s{sT3}, 1")
e("s_cbranch_scc1 L_ld_v2")
e(f"s_cmp_eq_u32 s{sT3}, 2")
e("s_cbranch_scc1 L_ld_v3")
if TR:
    e(f"s_cmp_eq_u32 s{sT3}, 3")
    e("s_cbranch_scc1 L_ld_v4")
unit_body(D + DV[0])
e("s_branch L_ld_next")
lab("L_ld_v2")
unit_body(D + DV[1])
e("s_branch L_ld_next")
lab("L_ld_v3")
unit_body(D + DV[2])
e("s_branch L_ld_next")
if TR:
    lab("L_ld_v4")
    unit_body(D + TR[2])
    e("s_branch L_ld_next")

lab("L_notloader")
e(f"s_cmp_ge_u32 s{sW}, 3")
e("s_cbranch_scc1 L_planner")
e(f"s_sub_u32 s{sCI}, s{sW}, 1")
def rows_off(sb):
    e(f"s_lshl3_add_u32 s{sQO}, s{sb}, s{sH}")
    e(f"s_lshl1_add_u32 s{sQO}, s{sQO}, s{sCI}")
    e(f"s_lshl_b32 s{sQO}, s{sQO}, 12")
    e(f"v_and_b32 v{vT0}, 15, v{vLANE}")
    e(f"v_lshrrev_b32 v{vG}, 4, v{vLANE}")
def load_q(sb):
    rows_off(sb)
    e(f"v_lshl_add_u32 v{vT4}, v{vT0}, 8, s{sQO}")
    e(f"v_lshl_add_u32 v{vT4}, v{vG}, 4, v{vT4}")
    for s in range(4):
        e(f"global_load_dwordx4 v[{vQ+4*s}:{vQ+4*s+3}], v{vT4}, s[{sQ}:{sQ+1}] offset:{64*s}")
load_q(sB)
e("s_barrier")
e(f"s_mov_b32 s{sROLE}, 0")
e(f"s_mov_b32 s{sPLN}, 0")
e(f"s_mov_b32 s{sMRG}, 0")
if a.spec:
    e("s_waitcnt vmcnt(4) lgkmcnt(0)")
    e(f"v_readlane_b32 s{sCLV}, v{vN}, s{sB}")
else: e("s_waitcnt lgkmcnt(0)")
clamp_cl(zq=sT3)
derive_cl()
c("valid keys of the last logical tile")
e(f"s_lshl_b32 s{sV0}, s{sNTL}, 5")
e(f"s_sub_u32 s{sV0}, s{sCLV}, s{sV0}")
e(f"s_add_u32 s{sV0}, s{sV0}, 32")
e(f"s_bfm_b64 s[{sM}:{sM+1}], s{sNU}, 0")
lab("L_csetup")
e(f"s_mov_b32 s{sMT}, 0")
e(f"s_mov_b32 s{sOFF}, 0")
e(f"s_mov_b32 s{sTB0}, 0")
e(f"s_mov_b32 s{sFIRST}, 1")
e(f"s_mov_b64 s[{sRS}:{sRS+1}], 0")
e("s_waitcnt vmcnt(4)")
e(f"v_and_b32 v{vT0}, 15, v{vLANE}")
e(f"v_xor_b32 v{vT1}, v{vG}, v{vT0}")
e(f"v_lshlrev_b32 v{vT2}, 8, v{vT0}")
e(f"v_lshl_add_u32 v{vKA0}, v{vT1}, 4, v{vT2}")
for s in range(1, 4):
    e(f"v_xor_b32 v{vKA0+s}, {64*s}, v{vKA0}")
e(f"v_bfe_u32 v{vT0}, v{vLANE}, 2, 2")
e(f"v_lshl_add_u32 v{vT1}, v{vG}, 2, v{vT0}")
e(f"v_lshlrev_b32 v{vT1}, 8, v{vT1}")
e(f"v_and_b32 v{vT2}, 3, v{vLANE}")
e(f"v_lshl_add_u32 v{vT1}, v{vT2}, 4, v{vT1}")
e(f"v_lshl_add_u32 v{vVA0}, v{vT0}, 6, v{vT1}")
for j in range(1, 4):
    e(f"v_xor_b32 v{vVA0+j}, {64*j}, v{vVA0}")
e(f"s_lshl_b32 s{sT0}, s{sCI}, 10")
e(f"s_add_u32 s{sT0}, s{sT0}, {PST}")
e(f"v_lshl_add_u32 v{vPA0}, v{vLANE}, 4, s{sT0}")
e(f"v_mov_b32 v{vOA}, v{vT4}")
e(f"s_lshl_b32 s{sT0}, s{sW}, 3")
e(f"s_add_u32 s{sT0}, s{sT0}, {CTRL-8}")
e(f"v_mov_b32 v{vPA}, s{sT0}")
e(f"v_mov_b32 v{vM}, 0xff800000")
e(f"v_mov_b32 v{vLS}, 0")
for r in range(0, 32, 2): e(f"v_mov_b64 v[{vO+r}:{vO+r+1}], 0")
e(f"s_mov_b32 s{sCST}, 0x3e0293ee")
e(f"s_mov_b32 s{sCST+1}, 0x3e0293ee")
e(f"s_mov_b32 s{sLIMF}, {a.limf}")
e(f"s_lshl2_add_u32 s{sFB}, s{sCI}, {FREE}")
e("s_waitcnt vmcnt(0)")
e(f"s_cmp_eq_u32 s{sT3}, 0")
e("s_cbranch_scc1 L_k_first")
for r in range(0, 16, 2): e(f"v_mov_b64 v[{vQ+r}:{vQ+r+1}], 0")

def poll(label):
    lab(label)
    e(f"ds_read_b64 v[{vPL}:{vPL+1}], v{vPA}")
    e(f"s_sub_u32 s{sSPIN}, s{sSPIN}, 1")
    e("s_cbranch_scc1 L_end")
    e("s_waitcnt lgkmcnt(0)")
    e(f"v_readfirstlane_b32 s{sLND}, v{vPL}")
    e(f"s_cmp_ge_i32 s{sLND}, s{sNK}")
    e(f"s_cbranch_scc0 {label}")
VR = []
for j in range(4):
    for ee in range(2):
        for blk in range(2):
            r = vVF + (2 * j + ee) * 4 + 2 * blk
            VR.append(f"ds_read_b64_tr_b16 v[{r}:{r+1}], v{vXA+j} offset:{8*ee + 4096*blk}")
KR, QK = [], []
for blk in range(2):
    for st in range(4):
        r = vKF + (blk * 4 + st) * 4
        KR.append(f"ds_read_b128 v[{r}:{r+3}], v{vXA+st} offset:{4096*blk}")
        cc = "0" if st == 0 else f"v[{vS+4*blk}:{vS+4*blk+3}]"
        QK.append(f"v_mfma_f32_16x16x32_bf16 v[{vS+4*blk}:{vS+4*blk+3}], v[{r}:{r+3}], v[{vQ+4*st}:{vQ+4*st+3}], {cc}")
PV = [f"v_mfma_f32_16x16x32_bf16 v[{vO+4*dt}:{vO+4*dt+3}], v[{vVF+4*dt}:{vVF+4*dt+3}], v[{vP}:{vP+3}], v[{vO+4*dt}:{vO+4*dt+3}]" for dt in range(8)]
NX = [f"s_ff1_i32_b64 s{sTN}, s[{sM}:{sM+1}]",
      f"s_bitset0_b64 s[{sM}:{sM+1}], s{sTN}",
      f"s_add_u32 s{sT1}, s{sTN}, s{sOFF}",
      f"s_mul_i32 s{sT0}, s{sT1}, {DIVM[0]}",
      f"s_lshr_b32 s{sT0}, s{sT0}, {DIVM[1]}",
      f"s_mul_i32 s{sT0}, s{sT0}, {NS}",
      f"s_sub_u32 s{sT0}, s{sT1}, s{sT0}",
      f"s_lshl_b32 s{sSB}, s{sT0}, 13",
      f"s_lshl3_add_u32 s{sFWN}, s{sT0}, s{sFB}",
      f"s_and_b32 s{sT0}, s{sTN}, 0x40000000",
      f"s_add_u32 s{sNK}, s{sT1}, 1",
      f"s_or_b32 s{sNK}, s{sNK}, s{sT0}",
      f"s_sub_u32 s{sPO}, s{sTN}, s{sTB0}",
      f"s_lshl_b32 s{sPO}, s{sPO}, 11"]
KA = [f"v_add_u32 v{vXA+i}, s{sSB}, v{vKA0+i}" for i in range(4)]
VA = [f"v_add_u32 v{vXA+i}, s{sSB}, v{vVA0+i}" for i in range(4)]
ADV = [f"v_mov_b32 v{vFW}, s{sFWN}",
       f"v_mov_b32 v{vFV}, s{sNK}",
       f"v_add_u32 v{vPW}, s{sPO}, v{vPA0}",
       f"s_add_u32 s{sT}, s{sTN}, 1"]
def scale_o(reg):
    for r in range(0, 32, 2):
        sel = "op_sel:[0,1] op_sel_hi:[1,1]" if reg & 1 else "op_sel_hi:[1,0]"
        p = reg & ~1
        e(f"v_pk_mul_f32 v[{vO+r}:{vO+r+1}], v[{vO+r}:{vO+r+1}], v[{p}:{p+1}] {sel}")

def inv_pre():
    e(f"v_mov_b32 v{vT0}, v{vLS}")
    e(f"v_mov_b32 v{vT1}, v{vLS}")
    e("s_nop 1")
    e(f"v_permlane32_swap_b32 v{vT0}, v{vT1}")
    e("s_nop 0")
    e(f"v_add_f32 v{vT0}, v{vT0}, v{vT1}")
    e(f"v_mov_b32 v{vT1}, v{vT0}")
    e("s_nop 1")
    e(f"v_permlane16_swap_b32 v{vT0}, v{vT1}")
    e("s_nop 0")
    e(f"v_add_f32 v{vT0}, v{vT0}, v{vT1}")
    e(f"v_rcp_f32 v{vINV}, v{vT0}")

lab("L_k_first")
for x in NX + KA + ADV: e(x)
lab("L_k_next")
e(f"s_cmp_lt_i32 s{sTN}, 0")
e("s_cbranch_scc1 L_k_empty")
poll("L_k_poll")
for x in KR: e(x)
e("s_waitcnt lgkmcnt(0)")
out.append(".p2align 3")
lab("L_k_top")
e("s_waitcnt lgkmcnt(1)")
e(f"ds_write_b32 v{vFW}, v{vFV}")
e(f"ds_read_b64 v[{vPL}:{vPL+1}], v{vPA}")
fill = NX + KA
for i in range(8):
    e(QK[i])
    for x in fill[2*i:2*i+2]: e(x)
for x in fill[16:]: e(x)
e(f"s_mov_b32 s{sREDO}, 0")
e("s_waitcnt lgkmcnt(0)")
e(f"v_readfirstlane_b32 s{sLND}, v{vPL}")
e(f"s_cmp_ge_i32 s{sLND}, s{sNK}")
e(f"s_cselect_b32 s{sPRE}, 1, 0")
e("s_cbranch_scc0 L_k_nopre")
for x in KR: e(x)
lab("L_k_nopre")
e(f"s_cmp_eq_u32 s{sT}, s{sMT}")
e("s_cbranch_scc1 L_k_mask")
lab("L_k_exp")
for hb in range(2):
    for r in (4*hb, 4*hb+2):
        e(f"v_pk_fma_f32 v[{vE+r}:{vE+r+1}], v[{vS+r}:{vS+r+1}], s[{sCST}:{sCST+1}], v[{vM}:{vM+1}] op_sel_hi:[1,1,0] neg_lo:[0,0,1] neg_hi:[0,0,1]")
    for r in range(4*hb, 4*hb+4):
        e(f"v_exp_f32 v{vE+r}, v{vE+r}")
e(f"v_pk_add_f32 v[{vT0}:{vT1}], v[{vE}:{vE+1}], v[{vE+2}:{vE+3}]")
e(f"v_pk_add_f32 v[{vT2}:{vT3}], v[{vE+4}:{vE+5}], v[{vE+6}:{vE+7}]")
e(f"v_cvt_pk_bf16_f32 v{vP}, v{vE}, v{vE+1}")
e(f"v_pk_add_f32 v[{vT0}:{vT1}], v[{vT0}:{vT1}], v[{vT2}:{vT3}]")
e(f"v_cvt_pk_bf16_f32 v{vP+1}, v{vE+2}, v{vE+3}")
e(f"v_add_f32 v{vT0}, v{vT0}, v{vT1}")
c("the kept reference max is safe only while every weight stays <= 256; otherwise take the true max")
e(f"v_cmp_nge_f32 vcc, s{sLIMF}, v{vT0}")
e(f"v_cvt_pk_bf16_f32 v{vP+2}, v{vE+4}, v{vE+5}")
e(f"v_cvt_pk_bf16_f32 v{vP+3}, v{vE+6}, v{vE+7}")
e(ADV[0]); e(ADV[1])
e("s_nop 0")
e("s_cbranch_vccnz L_k_slow")
lab("L_k_done")
e(f"ds_write_b128 v{vPW}, v[{vP}:{vP+3}]")
e(f"v_add_f32 v{vLS}, v{vLS}, v{vT0}")
e(ADV[3])
e(f"s_cmp_lg_u32 s{sPRE}, 0")
e(ADV[2])
e("s_cbranch_scc1 L_k_top")
e("s_branch L_k_next")

lab("L_k_mask")
e(f"v_lshlrev_b32 v{vT0}, 2, v{vG}")
e(f"v_sub_u32 v{vT0}, s{sV0}, v{vT0}")
e(f"v_mov_b32 v{vT1}, 0xff800000")
for r in range(8):
    e(f"v_cmp_lt_i32 s[{80+2*r}:{81+2*r}], {16*(r//4)+r%4}, v{vT0}")
for r in range(8):
    e(f"v_cndmask_b32 v{vS+r}, v{vT1}, v{vS+r}, s[{80+2*r}:{81+2*r}]")
e("s_branch L_k_exp")

def alpha_addr():
    e(f"s_lshl_b32 s{sT0}, s2, 6")
    e(f"s_add_u32 s{sT0}, s{sT0}, s{sT}")
    e(f"s_lshl1_add_u32 s{sT0}, s{sT0}, s{sCI}")
    e(f"s_lshl_b32 s{sT0}, s{sT0}, 6")
    e(f"s_add_u32 s{sT0}, s{sT0}, {WSA}")
    e(f"v_and_b32 v{vT1}, 15, v{vLANE}")
    e(f"v_lshl_add_u32 v{vT1}, v{vT1}, 2, s{sT0}")
c("raise the reference to the true running max; the accumulator is rescaled when pass 2 reaches this tile")
lab("L_k_slow")
e(f"s_cmp_lg_u32 s{sREDO}, 0")
e("s_cbranch_scc1 L_k_done")
e(f"s_mov_b32 s{sREDO}, 1")
e(f"v_max3_f32 v{vT0}, v{vS}, v{vS+1}, v{vS+2}")
e(f"v_max3_f32 v{vT1}, v{vS+3}, v{vS+4}, v{vS+5}")
e(f"v_max3_f32 v{vT0}, v{vT0}, v{vS+6}, v{vS+7}")
e(f"v_max_f32 v{vT0}, v{vT0}, v{vT1}")
e(f"v_mov_b32 v{vT1}, v{vT0}")
e("s_nop 1")
e(f"v_permlane32_swap_b32 v{vT0}, v{vT1}")
e("s_nop 0")
e(f"v_max_f32 v{vT0}, v{vT0}, v{vT1}")
e(f"v_mov_b32 v{vT1}, v{vT0}")
e("s_nop 1")
e(f"v_permlane16_swap_b32 v{vT0}, v{vT1}")
e("s_nop 0")
e(f"v_max_f32 v{vT0}, v{vT0}, v{vT1}")
e(f"v_mul_f32 v{vT0}, s{sCST}, v{vT0}")
e(f"v_max_f32 v{vMN}, v{vM}, v{vT0}")
e(f"v_sub_f32 v{vAL}, v{vM}, v{vMN}")
e(f"v_exp_f32 v{vAL}, v{vAL}")
e(f"v_mov_b32 v{vM}, v{vMN}")
e(f"s_cmp_lg_u32 s{sFIRST}, 0")
e(f"s_mov_b32 s{sFIRST}, 0")
e(f"v_mul_f32 v{vLS}, v{vLS}, v{vAL}")
e("s_cbranch_scc1 L_k_exp")
alpha_addr()
e(f"global_store_dword v{vT1}, v{vAL}, s[{sWS}:{sWS+1}]")
e(f"s_sub_u32 s{sT0}, s{sT}, 1")
e(f"s_bitset1_b64 s[{sRS}:{sRS+1}], s{sT0}")
e("s_branch L_k_exp")

RLO, RHI = 0xffffffff, (1 << (G - 32)) - 1
lab("L_k_noplan")
e(f"s_mov_b32 s{sPLN}, 1")
e(f"v_mov_b32 v{vT1}, {REC0}")
lab("L_k_plan")
e(f"ds_read_b128 v[{vT2}:{vT5}], v{vT1}")
e("s_waitcnt lgkmcnt(0)")
e(f"v_readfirstlane_b32 s{sT0}, v{vT5}")
e(f"v_readfirstlane_b32 s{sM}, v{vT2}")
e(f"v_readfirstlane_b32 s{sM+1}, v{vT3}")
e(f"v_readfirstlane_b32 s{sTTC}, v{vT4}")
e(f"s_cmp_lg_u32 s{sT0}, 0")
e("s_cbranch_scc1 L_k_got")
spin_tail("L_k_plan")
lab("L_k_got")
e(f"s_lshr_b32 s{sMT}, s{sT0}, 8")
e(f"s_add_u32 s{sMT}, s{sMT}, 1")
e(f"s_and_b32 s{sMRG}, s{sTTC}, {0 if 'nomerge' in DBG else 1}")
e(f"s_lshr_b32 s{sTTC}, s{sTTC}, 8")
e(f"s_min_u32 s{sTB1}, s{sTTC}, {G}")
e(f"s_bfm_b64 s[{sMALL}:{sMALL+1}], s{sNU}, 0")
e(f"s_or_b64 s[{sMALL}:{sMALL+1}], s[{sMALL}:{sMALL+1}], s[{sM}:{sM+1}]")
e(f"s_and_b32 s{sM+1}, s{sM+1}, {RHI:#x}")
e("s_branch L_k_first")
lab("L_v_more")
c("second batch")
e(f"s_mov_b32 s{sTB0}, s{sTB1}")
e(f"s_mov_b32 s{sTB1}, s{sTTC}")
e(f"s_mov_b32 s{sOFF}, s{sTB0}")
e(f"s_mov_b32 s{sMALL}, 0")
e(f"s_andn2_b32 s{sMALL+1}, s{sMALL+1}, {RHI:#x}")
e(f"s_mov_b64 s[{sM}:{sM+1}], s[{sMALL}:{sMALL+1}]")
e("s_branch L_k_first")
lab("L_k_empty")
e(f"s_cmp_eq_u32 s{sPLN}, 0")
e("s_cbranch_scc1 L_k_noplan")
if a.last: inv_pre()
e(f"s_mov_b32 s{sOFF}, s{sTB1}")
e(f"s_mov_b32 s{sM}, s{sMALL}")
e(f"s_and_b32 s{sM+1}, s{sMALL+1}, {RHI:#x}")
e(f"s_cmp_eq_u32 s{sTB0}, 0")
e(f"s_cselect_b32 s{sM+1}, s{sM+1}, s{sMALL+1}")
for x in NX + VA: e(x)
e(f"ds_read_b64 v[{vPL}:{vPL+1}], v{vPA}")
e(f"s_cmp_lt_i32 s{sTN}, 0")
e("s_cbranch_scc1 L_v_empty")
lab("L_v_next")
for x in ADV: e(x)
if a.last:
    e(f"s_cmp_eq_u64 s[{sM}:{sM+1}], 0")
    e("s_cbranch_scc1 L_v_islast")
lab("L_v_next2")
e(f"ds_read_b128 v[{vPN}:{vPN+3}], v{vPW}")
e("s_waitcnt lgkmcnt(1)")
e(f"v_readfirstlane_b32 s{sLND}, v{vPL}")
e(f"s_cmp_ge_i32 s{sLND}, s{sNK}")
e("s_cbranch_scc1 L_v_rd")
poll("L_v_poll")
lab("L_v_rd")
for x in VR: e(x)
if a.lat:
    e(f"v_readfirstlane_b32 s{sMBF}, v{vPL+1}")
    e(f"s_cmp_gt_i32 s{sLND}, s{sNK}")
    e(f"s_cselect_b32 s{sT0}, 1, s{sRS}")
    e(f"s_or_b32 s{sT0}, s{sT0}, s{sRS+1}")
    e(f"s_and_b32 s{sT1}, s{sMBF}, s{sMRG}")
    e(f"s_or_b32 s{sT0}, s{sT0}, s{sT1}")
    e("s_cbranch_scc0 L_v_lat")
out.append(".p2align 3")
lab("L_v_top")
for x in NX + VA: e(x)
e(f"s_sub_u32 s{sT0}, s{sT}, 1")
e(f"s_bitcmp1_b64 s[{sRS}:{sRS+1}], s{sT0}")
e("s_cbranch_scc1 L_v_resc")
lab("L_v_top2")
e("s_waitcnt lgkmcnt(14)")
e(f"v_readfirstlane_b32 s{sMBF}, v{vPL+1}")
e(f"v_readfirstlane_b32 s{sLND}, v{vPL}")
e(f"v_mov_b64 v[{vP}:{vP+1}], v[{vPN}:{vPN+1}]")
e(f"v_mov_b64 v[{vP+2}:{vP+3}], v[{vPN+2}:{vPN+3}]")
e(f"s_and_b32 s{sT0}, s{sMBF}, s{sMRG}")
e("s_cbranch_scc1 L_v_merge")
lab("L_v_top3")
e(f"s_cmp_ge_i32 s{sLND}, s{sNK}")
e("s_cbranch_scc0 L_v_pv")
e(ADV[2])
e("s_waitcnt lgkmcnt(0)")
e(f"ds_write_b32 v{vFW}, v{vFV}")
e(f"ds_read_b64 v[{vPL}:{vPL+1}], v{vPA}")
e(f"ds_read_b128 v[{vPN}:{vPN+3}], v{vPW}")
for i in range(8):
    e(PV[i]); e(VR[2*i]); e(VR[2*i+1])
e(ADV[0]); e(ADV[1]); e(ADV[3])
e("s_branch L_v_top")
if a.lat:
    c("nothing further has landed and nothing is pending: shortest way through this tile")
    lab("L_v_lat")
    e("s_waitcnt lgkmcnt(14)")
    e(f"v_mov_b64 v[{vP}:{vP+1}], v[{vPN}:{vPN+1}]")
    e(f"v_mov_b64 v[{vP+2}:{vP+3}], v[{vPN+2}:{vPN+3}]")
    fl = NX + VA
    e(fl[0]); e(fl[1])
    for i in range(8):
        if i: e(f"s_waitcnt lgkmcnt({14-2*i})")
        if i == 7:
            e(f"ds_write_b32 v{vFW}, v{vFV}")
            e(f"ds_read_b64 v[{vPL}:{vPL+1}], v{vPA}")
        e(PV[i])
        e(fl[2+2*i]); e(fl[3+2*i])
    e(f"s_cmp_ge_i32 s{sTN}, 0")
    e("s_cbranch_scc1 L_v_next")
    e("s_branch L_v_empty")
lab("L_v_pv")
if a.last:
    e(f"s_cmp_lt_i32 s{sTN}, 0")
    e("s_cbranch_scc1 L_v_islast2")
    lab("L_v_pv2")
for i in range(8):
    if i: e(f"s_waitcnt lgkmcnt({14-2*i})")
    if i == 7:
        e(f"ds_write_b32 v{vFW}, v{vFV}")
        e(f"ds_read_b64 v[{vPL}:{vPL+1}], v{vPA}")
    e(PV[i])
e(f"s_cmp_ge_i32 s{sTN}, 0")
e("s_cbranch_scc1 L_v_next")
lab("L_v_empty")
e(f"s_cmp_lt_u32 s{sTB1}, s{sTTC}")
e("s_cbranch_scc1 L_v_more")
stamp(2)
e(f"s_cmp_lg_u32 s{sMRG}, 0")
e("s_cbranch_scc1 L_c_mwait0")
lab("L_c_store")
e(f"v_mov_b32 v{vT0}, v{vLS}")
e(f"v_and_b32 v{vT2}, 15, v{vLANE}")
e(f"v_lshl_add_u32 v{vT2}, v{vT2}, 8, s{sQO}")
e(f"v_permlane32_swap_b32 v{vLS}, v{vT0}")
e("s_nop 0")
e(f"v_add_f32 v{vLS}, v{vLS}, v{vT0}")
e(f"v_mov_b32 v{vT0}, v{vLS}")
e(f"v_lshl_add_u32 v{vT2}, v{vG}, 4, v{vT2}")
e("s_nop 0")
e(f"v_permlane16_swap_b32 v{vLS}, v{vT0}")
e("s_nop 0")
e(f"v_add_f32 v{vLS}, v{vLS}, v{vT0}")
e(f"v_rcp_f32 v{vMN}, v{vLS}")
e(f"s_cmp_lg_u32 s{sROLE}, 0")
scale_o(vMN)
for r in range(16):
    e(f"v_cvt_pk_bf16_f32 v{vKF+r}, v{vO+2*r}, v{vO+2*r+1}")
e("s_cbranch_scc1 L_publish")
def out_stores(fl, step=64):
    for j in range(4):
        e(f"global_store_dwordx4 v{vT2}, v[{vKF+4*j}:{vKF+4*j+3}], s[{sOUT}:{sOUT+1}] offset:{step*j}{fl}")
out_stores(OST)
e(FIN)

def l_total():
    e(f"v_mov_b32 v{vT0}, v{vLS}")
    e(f"v_and_b32 v{vT2}, 15, v{vLANE}")
    e(f"v_lshl_add_u32 v{vT2}, v{vT2}, 8, s{sQO}")
    e(f"v_permlane32_swap_b32 v{vLS}, v{vT0}")
    e("s_nop 0")
    e(f"v_add_f32 v{vLS}, v{vLS}, v{vT0}")
    e(f"v_mov_b32 v{vT0}, v{vLS}")
    e(f"v_lshl_add_u32 v{vT2}, v{vG}, 4, v{vT2}")
    e("s_nop 0")
    e(f"v_permlane16_swap_b32 v{vLS}, v{vT0}")
    e("s_nop 0")
    e(f"v_add_f32 v{vLS}, v{vLS}, v{vT0}")
    e(f"v_rcp_f32 v{vMN}, v{vLS}")
if a.last:
    lab("L_v_islast2")
    e(f"s_sub_u32 s{sT0}, s{sTTC}, s{sTB1}")
    e(f"s_or_b32 s{sT0}, s{sT0}, s{sMRG}")
    e(f"s_or_b32 s{sT0}, s{sT0}, s{sROLE}")
    e("s_cbranch_scc1 L_v_pv2")
    e("s_branch L_v_lpv")
    lab("L_v_islast")
    c("closing tile of an owner with nothing pending: take the short path")
    e(f"s_sub_u32 s{sT0}, s{sTTC}, s{sTB1}")
    e(f"s_or_b32 s{sT0}, s{sT0}, s{sMRG}")
    e(f"s_or_b32 s{sT0}, s{sT0}, s{sROLE}")
    e(f"s_or_b32 s{sT0}, s{sT0}, s{sRS}")
    e(f"s_or_b32 s{sT0}, s{sT0}, s{sRS+1}")
    e("s_cbranch_scc1 L_v_next2")
    e(f"ds_read_b128 v[{vP}:{vP+3}], v{vPW}")
    e("s_waitcnt lgkmcnt(1)")
    e(f"v_readfirstlane_b32 s{sLND}, v{vPL}")
    e(f"s_cmp_ge_i32 s{sLND}, s{sNK}")
    e("s_cbranch_scc1 L_v_lrd")
    poll("L_v_lpoll")
    lab("L_v_lrd")
    for x in VR: e(x)
    def fin_j(j):
        r = []
        for k in range(4):
            q = vO + 8 * j + 2 * k
            r.append(f"v_pk_mul_f32 v[{q}:{q+1}], v[{q}:{q+1}], v[{vINV}:{vINV+1}] op_sel_hi:[1,0]")
        for k in range(4):
            r.append(f"v_cvt_pk_bf16_f32 v{vKF+4*j+k}, v{vO+8*j+2*k}, v{vO+8*j+2*k+1}")
        r.append(f"global_store_dwordx4 v{vOA}, v[{vKF+4*j}:{vKF+4*j+3}], s[{sOUT}:{sOUT+1}] offset:{64*j}{OST}")
        return r
    lab("L_v_lpv")
    f0 = fin_j(0)
    for i in range(8):
        e(f"s_waitcnt lgkmcnt({14-2*i})")
        e(PV[i])
        if i == 5: e(f0[0]); e(f0[1])
        if i == 6: e(f0[2]); e(f0[3])
    stamp(2)
    for x in f0[4:] + fin_j(1) + fin_j(2) + fin_j(3): e(x)
    e(f"ds_write_b32 v{vFW}, v{vFV}")
    e(FIN)

lab("L_v_resc")
e(f"s_bitset0_b64 s[{sRS}:{sRS+1}], s{sT0}")
alpha_addr()
e("s_waitcnt vmcnt(0)")
e(f"global_load_dword v{vAL}, v{vT1}, s[{sWS}:{sWS+1}] sc1")
e("s_waitcnt vmcnt(0)")
scale_o(vAL)
e("s_branch L_v_top2")

lab("L_v_merge")
c("only once no rescale is pending; the reference max stays, so the partial's max must not be far above it")
e(f"s_cmp_eq_u64 s[{sRS}:{sRS+1}], 0")
e("s_cbranch_scc0 L_v_top3")
lab("L_c_merge")
e(f"s_mul_i32 s{sT0}, s{sCI}, {MBS}")
e(f"s_add_u32 s{sT0}, s{sT0}, {MB}")
e(f"v_and_b32 v{vT1}, 15, v{vLANE}")
e(f"v_lshl_add_u32 v{vT0}, v{vLANE}, 4, s{sT0}")
e(f"v_lshl_add_u32 v{vT1}, v{vT1}, 3, s{sT0}")
e("s_waitcnt lgkmcnt(0)")
e(f"ds_write_b32 v{vFW}, v{vFV}")
e(f"ds_read_b64 v[{vT4}:{vT5}], v{vT1} offset:4096")
for i in range(4):
    e(f"ds_read_b128 v[{vKF+4*i}:{vKF+4*i+3}], v{vT0} offset:{1024*i}")
e(f"s_cmp_eq_u32 s{sPLN}, 2")
e("s_waitcnt lgkmcnt(0)")
e("s_cbranch_scc1 L_c_mfin")
e(f"v_sub_f32 v{vT4}, v{vT4}, v{vM}")
e(f"v_cmp_nge_f32 vcc, 0x41800000, v{vT4}")
e(f"s_mov_b32 s{sMRG}, 2")
e("s_nop 3")
e("s_cbranch_vccnz L_v_top3")
e("s_branch L_c_madd")
lab("L_c_mfin")
e(f"v_max_f32 v{vMN}, v{vM}, v{vT4}")
e(f"v_sub_f32 v{vAL}, v{vM}, v{vMN}")
e(f"v_sub_f32 v{vT4}, v{vT4}, v{vMN}")
e(f"v_exp_f32 v{vAL}, v{vAL}")
e("s_nop 0")
e(f"v_mul_f32 v{vLS}, v{vLS}, v{vAL}")
scale_o(vAL)
lab("L_c_madd")
e(f"v_exp_f32 v{vT4}, v{vT4}")
e(f"s_mov_b32 s{sMRG}, 0")
e(f"v_mul_f32 v{vT4}, v{vT4}, v{vT5}")
e(f"v_fmac_f32 v{vLS}, 0x3e800000, v{vT4}")
for r in range(16):
    t = vKF + 16 + 2 * (r % 4)
    e(f"v_lshlrev_b32 v{t}, 16, v{vKF+r}")
    e(f"v_and_b32 v{t+1}, 0xffff0000, v{vKF+r}")
    e(f"v_pk_fma_f32 v[{vO+2*r}:{vO+2*r+1}], v[{t}:{t+1}], v[{vT4}:{vT4+1}], v[{vO+2*r}:{vO+2*r+1}] op_sel_hi:[1,0,1]")
e(f"s_cmp_eq_u32 s{sPLN}, 2")
e("s_cbranch_scc1 L_c_store")
if a.last: inv_pre()
e("s_branch L_v_top3")
lab("L_c_mwait0")
e(f"s_mov_b32 s{sPLN}, 2")
lab("L_c_mwait")
e(f"ds_read_b64 v[{vPL}:{vPL+1}], v{vPA}")
e("s_waitcnt lgkmcnt(0)")
e(f"v_readfirstlane_b32 s{sMBF}, v{vPL+1}")
e(f"s_cmp_lg_u32 s{sMBF}, 0")
e("s_cbranch_scc1 L_c_merge")
spin_tail("L_c_mwait")

def ws_base(sb):
    e(f"s_lshl3_add_u32 s{sT0}, s{sb}, s{sH}")
    e(f"s_lshl_b32 s{sT0}, s{sT0}, 9")
    if WS0: e(f"s_add_u32 s{sT0}, s{sT0}, {WS0}")

lab("L_publish")
if "nopub" in DBG: e("s_endpgm")
e(f"v_lshl_add_u32 v{vT2}, v{vLANE}, 4, s{sQO}")
e(f"s_lshl_b32 s{sT2}, s{sPB}, 2")
e(f"v_mov_b32 v{vT3}, s{sT2}")
e(f"v_lshlrev_b32 v{vT4}, 1, v{vT3}")
e(f"v_add_u32 v{vT4}, {CTRL+68}, v{vT4}")
e(f"ds_read_b32 v{vT4}, v{vT4}")
ws_base(sPB)
e(f"s_lshl2_add_u32 s{sT1}, s{sCI}, s{sT0}")
e(f"v_mov_b32 v{vT5}, s{sT1}")
e(f"s_lshl_b32 s{sT1}, s{sCI}, 7")
e(f"s_add_u32 s{sT0}, s{sT0}, s{sT1}")
e(f"v_lshl_add_u32 v{vT1}, v{vLANE}, 3, s{sT0}")
e(f"s_getreg_b32 s{sT2}, hwreg(HW_REG_XCC_ID, 0, 4)")
e(f"s_lshl_b32 s{sT2}, s{sT2}, 4")
e(f"s_or_b32 s{sT2}, s{sT2}, s{sH}")
e(f"s_or_b32 s{sT2}, s{sT2}, 0x100")
e("s_waitcnt lgkmcnt(0)")
e(f"v_readfirstlane_b32 s{sT1}, v{vT4}")
e(f"s_lshr_b32 s{sT1}, s{sT1}, 16")
e(f"s_cmp_eq_u32 s{sT1}, s{sT2}")
e("s_cbranch_scc1 L_pub_fast")
e(f"global_load_dword v{vT4}, v{vT3}, s[{sDBG}:{sDBG+1}] offset:128 sc1")
e("s_waitcnt vmcnt(0)")
e(f"v_readfirstlane_b32 s{sT1}, v{vT4}")
e(f"s_lshr_b32 s{sT1}, s{sT1}, 16")
e(f"s_cmp_eq_u32 s{sT1}, s{sT2}")
e("s_cbranch_scc0 L_pub_slow")
lab("L_pub_fast")
c("the receiver runs on this die and has cleared its flag words: hand over inside the shared L2")
out_stores(" " + a.pst if a.pst else "", 1024)
e("s_mov_b64 exec, 0xffff")
e(f"global_store_dwordx2 v{vT1}, v[{vM}:{vM+1}], s[{sWS}:{sWS+1}]")
e(f"v_mov_b32 v{vT4}, 1")
e("s_waitcnt vmcnt(0)")
e("s_mov_b64 exec, 1")
e(f"global_store_dword v{vT5}, v{vT4}, s[{sWS}:{sWS+1}] offset:256")
e(FIN)
lab("L_pub_slow")
c("any other placement: write through to memory, then set a bit with a device-wide atomic")
out_stores(" sc1", 1024)
e("s_mov_b64 exec, 0xffff")
e(f"global_store_dwordx2 v{vT1}, v[{vM}:{vM+1}], s[{sWS}:{sWS+1}] sc1")
e(f"s_lshl1_add_u32 s{sT1}, s{sH}, s{sCI}")
e(f"s_lshl_b32 s{sT1}, 1, s{sT1}")
e(f"v_mov_b32 v{vT4}, s{sT1}")
e("s_waitcnt vmcnt(0)")
e("s_mov_b64 exec, 1")
e(f"global_atomic_add v{vT3}, v{vT4}, s[{sDBG}:{sDBG+1}]")
e(FIN)

vRW = vL
vKEY, vRK = 19, 20
lab("L_ctl0")
if a.skew:
    c("dies are not started at the same instant: the first eight workgroups post when they started")
    e(f"s_memrealtime s[{sMA}:{sMA+1}]")
    e(f"s_lshl2_add_u32 s{sT0}, s{sH}, 2")
    e(f"v_mov_b32 v{vT4}, s{sT0}")
    e(f"s_cmp_lg_u32 s{sB}, 0")
    e("s_waitcnt lgkmcnt(0)")
    e("s_cbranch_scc1 L_ctl1")
    e(f"s_or_b32 s{sT0}, s{sMA}, 0x8000")
    e(f"v_mov_b32 v{vT5}, s{sT0}")
    e("s_mov_b64 exec, 1")
    e(f"global_store_short v{vT4}, v{vT5}, s[{sDBG}:{sDBG+1}] sc1")
    e("s_mov_b64 exec, -1")
    lab("L_ctl1")
e("s_barrier")
e("s_branch L_ctl")
lab("L_planner")
e(f"s_cmp_eq_u32 s{sW}, 5")
e("s_cbranch_scc1 L_ctl0")
e(f"s_sub_u32 s{sCI}, s{sW}, 3")
e(f"s_lshl_b32 s{sSB}, s{sCI}, 8")
e(f"s_add_u32 s{sSB}, s{sSB}, {CNT}")
e(f"v_lshl_add_u32 v{vPA}, v{vLANE}, 2, s{sSB}")
e(f"s_lshl_b32 s{sT2}, s{sCI}, 7")
e(f"s_add_u32 s{sT2}, s{sT2}, {KEYS}")
e(f"v_add_u32 v{vT3}, s{sT2}, v{vT3}")
e(f"v_lshrrev_b32 v{vT4}, 5, v{vLANE}")
e(f"v_lshl_add_u32 v{vT4}, v{vT4}, 6, s{sT2}")
e(f"v_mov_b32 v{vT5}, 2048")
e("s_barrier")
e("s_waitcnt vmcnt(0)")
e(f"v_cmp_gt_i32 s[{sZQ}:{sZQ+1}], 1, v{vN}")
e(f"v_min_i32 v{vN}, v{vN}, v{vT5}")
e("s_nop 0")
e(f"v_cndmask_b32 v{vN}, v{vN}, v{vT5}, s[{sZQ}:{sZQ+1}]")
e(f"v_add_u32 v{vN}, 15, v{vN}")
e(f"v_lshrrev_b32 v{vN}, 4, v{vN}")
e(f"v_lshl_or_b32 v{vKEY}, v{vN}, 5, v{vT0}")
e(f"ds_write_b32 v{vT3}, v{vKEY}")
for i in range(4):
    e(f"ds_read_b128 v[{vKF+4*i}:{vKF+4*i+3}], v{vT4} offset:{16*i}")
e(f"v_mov_b32 v{vRK}, 0")
e(f"v_readlane_b32 s{sNB}, v{vN}, s{sB}")
e("s_waitcnt lgkmcnt(0)")
c("rank of every batch by block count; the batch of rank 31-r is the partner")
for i in range(16):
    e(f"v_sub_u32 v{vKF+i}, v{vKF+i}, v{vKEY}")
for i in range(16):
    e(f"v_alignbit_b32 v{vRK}, v{vRK}, v{vKF+i}, 31")
e(f"v_bcnt_u32_b32 v{vRK}, v{vRK}, 0")
e(f"v_mov_b32 v{vT2}, v{vRK}")
derive_nb()
e(f"v_permlane32_swap_b32 v{vRK}, v{vT2}")
e("s_nop 0")
e(f"v_add_u32 v{vRK}, v{vRK}, v{vT2}")
e("s_nop 0")
e(f"v_readlane_b32 s{sRK}, v{vRK}, s{sB}")
e(f"s_sub_u32 s{sT0}, 31, s{sRK}")
e(f"v_cmp_eq_u32 vcc, s{sT0}, v{vRK}")
e(f"s_ff1_i32_b32 s{sPB}, vcc_lo")
e(f"v_readlane_b32 s{sNP}, v{vN}, s{sPB}")
e(f"s_max_u32 s{sT0}, s{sNB}, s{sNP}")
e(f"s_min_u32 s{sT1}, s{sNB}, s{sNP}")
e(f"s_sub_u32 s{sX}, s{sT0}, s{sT1}")
e(f"s_add_u32 s{sX}, s{sX}, 2")
e(f"s_lshr_b32 s{sX}, s{sX}, 2")
e(f"s_cmp_lt_u32 s{sT0}, {4*NUM+8}")
e(f"s_cselect_b32 s{sX}, 0, s{sX}")
if a.nopair: e(f"s_mov_b32 s{sX}, 0")
e(f"s_cmp_ge_u32 s{sRK}, 16")
e(f"s_cselect_b32 s{sLO}, s{sX}, 0")
e(f"s_cselect_b32 s{sTB}, 0, s{sX}")
e(f"s_cmp_eq_u32 s{sCI}, 0")
e("s_cbranch_scc1 L_pl_norow")
e(f"s_lshl_b32 s{sT0}, s{sPB}, 9")
e(f"v_lshl_add_u32 v{vT1}, v{vLANE}, 3, s{sT0}")
e(f"global_load_dwordx2 v[{vRW}:{vRW+1}], v{vT1}, s[{sBT}:{sBT+1}]")
lab("L_pl_norow")
e(f"s_sub_u32 s{sTA}, s{sNTL}, s{sLO}")
e(f"s_add_u32 s{sT}, s{sTA}, s{sTB}")
e(f"s_mul_i32 s{sF}, s{sT}, {a.fnum}")
e(f"s_lshr_b32 s{sF}, s{sF}, 6")
e(f"s_min_u32 s{sWB}, s{sTA}, {a.UB}")
e(f"s_sub_i32 s{sF}, s{sF}, s{sWB}")
e(f"s_max_i32 s{sF}, s{sF}, s{sTB}")
e(f"s_max_i32 s{sF}, s{sF}, 1")
e(f"v_cvt_f32_u32 v{vT2}, s{sF}")
e(f"v_subrev_u32 v{vT3}, s{sWB}, v{vLANE}")
e(f"v_rcp_f32 v{vT2}, v{vT2}")
e(f"v_mul_i32_i24 v{vT4}, s{sTB}, v{vT3}")
e(f"v_add_u32 v{vT5}, s{sTB}, v{vT4}")
e(f"v_cvt_f32_i32 v{vT4}, v{vT4}")
e(f"v_cvt_f32_i32 v{vT5}, v{vT5}")
e(f"v_add_f32 v{vT4}, 0.5, v{vT4}")
e(f"v_add_f32 v{vT5}, 0.5, v{vT5}")
e(f"v_mul_f32 v{vT4}, v{vT4}, v{vT2}")
e(f"v_mul_f32 v{vT5}, v{vT5}, v{vT2}")
e(f"v_floor_f32 v{vT4}, v{vT4}")
e(f"v_floor_f32 v{vT5}, v{vT5}")
e(f"v_cmp_gt_u32 vcc, s{sF}, v{vT3}")
e(f"v_cmp_gt_f32 s[{sMBK}:{sMBK+1}], v{vT5}, v{vT4}")
e(f"s_sub_u32 s{sT0}, s{sT}, s{sNU}")
e(f"v_subrev_u32 v{vT3}, s{sNU}, v{vLANE}")
e(f"v_cmp_gt_u32 s[{sMA}:{sMA+1}], s{sT0}, v{vT3}")
e(f"s_and_b64 s[{sMBK}:{sMBK+1}], s[{sMBK}:{sMBK+1}], vcc")
e(f"s_andn2_b64 s[{sMA}:{sMA+1}], s[{sMA}:{sMA+1}], s[{sMBK}:{sMBK+1}]")
c(f"own tiles to sort: logical [NU+given, ntile); donated: the partner's logical [{NUM}, {NUM}+TB)")
mfirst = a.mfirst and not a.nosort
if mfirst:
    e(f"s_ff1_i32_b64 s{sT2}, s[{sMA}:{sMA+1}]")
else:
    e(f"s_flbit_i32_b64 s{sT2}, s[{sMA}:{sMA+1}]")
    e(f"s_sub_u32 s{sT2}, 63, s{sT2}")
e(f"s_lshl_b32 s{sT2}, s{sT2}, 8")
e(f"s_or_b32 s{sWB}, s{sT2}, 1")
e(f"s_min_u32 s{sMRG}, s{sLO}, 1")
SM = [int(x) for x in a.smart.split(",")] if a.smart else None
sV0M, sV1M, sCM, sD2, sCN = 72, 74, 76, 78, 79
if SM:
    e(f"s_lshl_b32 s{sD2}, s{sLO}, 1")
    e(f"s_sub_u32 s{sCN}, s{sNTL}, {NUM+1}")
    e(f"s_mov_b32 s{sLO}, 0")
e(f"s_add_u32 s{sLO}, s{sLO}, s{sNU}")
e(f"s_sub_u32 s{sHI}, s{sNTL}, s{sLO}")
e(f"s_sub_u32 s{sT3}, s{sNTL}, 1")
e(f"s_mov_b32 s{sLBASE}, {LA}")
e(f"s_cmp_eq_u32 s{sCI}, 0")
e("s_cbranch_scc1 L_pl_a")
e(f"s_mov_b32 s{sLO}, {NUM}")
e(f"s_mov_b32 s{sHI}, s{sTB}")
e(f"s_mov_b32 s{sT3}, -1")
if SM:
    e(f"s_lshl_b32 s{sD2}, s{sTB}, 1")
    e(f"s_add_u32 s{sCN}, s{sNP}, 1")
    e(f"s_lshr_b32 s{sCN}, s{sCN}, 1")
    e(f"s_sub_u32 s{sCN}, s{sCN}, {NUM+1}")
e(f"s_mov_b32 s{sLBASE}, {LB}")
e(f"s_mov_b64 s[{sMA}:{sMA+1}], s[{sMBK}:{sMBK+1}]")
e("s_branch L_pl_sort")
lab("L_pl_a")
e(f"s_lshl_b32 s{sT0}, s{sT}, 8")
e(f"s_or_b32 s{sT0}, s{sT0}, s{sMRG}")
e(f"v_mov_b32 v{vT2}, s{sMA}")
e(f"v_mov_b32 v{vT3}, s{sMA+1}")
e(f"v_mov_b32 v{vT4}, s{sT0}")
e(f"v_mov_b32 v{vT5}, s{sWB}")
e(f"v_mov_b32 v{vT1}, {REC0}")
e(f"ds_write_b128 v{vT1}, v[{vT2}:{vT5}]")
lab("L_pl_sort")
e(f"v_subrev_u32 v{vT0}, s{sLO}, v{vLANE}")
e(f"v_cmp_gt_u32 vcc, s{sHI}, v{vT0}")
e(f"v_mov_b32 v{vT5}, 1")
e("s_waitcnt vmcnt(0)")
if SM:
    c("blocks to hand over: the first 2x candidates lying in the part of memory swept while the helper works on them")
    e(f"s_mov_b64 s[{sV0M}:{sV0M+1}], 0")
    e(f"s_mov_b64 s[{sV1M}:{sV1M+1}], 0")
    e(f"s_cmp_eq_u32 s{sD2}, 0")
    e("s_cbranch_scc1 L_pl_nod")
    e(f"s_movk_i32 s{sT0}, {SM[1]-SM[0]}")
    e(f"v_subrev_u32 v{vT2}, {SM[0]}, v{vRW}")
    e(f"v_subrev_u32 v{vT3}, {SM[0]}, v{vRW+1}")
    e(f"s_bfm_b64 s[{sCM}:{sCM+1}], s{sCN}, {NUM}")
    e(f"v_cmp_gt_u32 s[{sV0M}:{sV0M+1}], s{sT0}, v{vT2}")
    e(f"v_cmp_gt_u32 s[{sV1M}:{sV1M+1}], s{sT0}, v{vT3}")
    e(f"s_and_b64 s[{sV0M}:{sV0M+1}], s[{sV0M}:{sV0M+1}], s[{sCM}:{sCM+1}]")
    e(f"s_and_b64 s[{sV1M}:{sV1M+1}], s[{sV1M}:{sV1M+1}], s[{sCM}:{sCM+1}]")
    e(f"s_bcnt1_i32_b64 s{sT0}, s[{sV0M}:{sV0M+1}]")
    e(f"s_bcnt1_i32_b64 s{sT1}, s[{sV1M}:{sV1M+1}]")
    e(f"s_add_u32 s{sT1}, s{sT1}, s{sT0}")
    e(f"s_cmp_lt_u32 s{sT1}, s{sD2}")
    e(f"s_cselect_b64 s[{sV0M}:{sV0M+1}], s[{sCM}:{sCM+1}], s[{sV0M}:{sV0M+1}]")
    e(f"s_cselect_b64 s[{sV1M}:{sV1M+1}], s[{sCM}:{sCM+1}], s[{sV1M}:{sV1M+1}]")
    e(f"s_cselect_b32 s{sT0}, s{sCN}, s{sT0}")
    e(f"v_mbcnt_lo_u32_b32 v{vT2}, s{sV0M}, 0")
    e(f"v_mbcnt_lo_u32_b32 v{vT3}, s{sV1M}, 0")
    e(f"v_mbcnt_hi_u32_b32 v{vT2}, s{sV0M+1}, v{vT2}")
    e(f"v_mbcnt_hi_u32_b32 v{vT3}, s{sV1M+1}, v{vT3}")
    e(f"s_sub_u32 s{sT0}, s{sD2}, s{sT0}")
    e(f"v_cmp_gt_i32 s[{sCM}:{sCM+1}], s{sD2}, v{vT2}")
    e(f"s_and_b64 s[{sV0M}:{sV0M+1}], s[{sV0M}:{sV0M+1}], s[{sCM}:{sCM+1}]")
    e(f"v_cmp_gt_i32 s[{sCM}:{sCM+1}], s{sT0}, v{vT3}")
    e(f"s_and_b64 s[{sV1M}:{sV1M+1}], s[{sV1M}:{sV1M+1}], s[{sCM}:{sCM+1}]")
    lab("L_pl_nod")
    e(f"s_cmp_lg_u32 s{sCI}, 0")
    e("s_cbranch_scc1 L_pl_val")
    e(f"s_andn2_b64 s[{sV0M}:{sV0M+1}], vcc, s[{sV0M}:{sV0M+1}]")
    e(f"s_andn2_b64 s[{sV1M}:{sV1M+1}], vcc, s[{sV1M}:{sV1M+1}]")
    lab("L_pl_val")
X0 = f"s[{sV0M}:{sV0M+1}]" if SM else "vcc"
X1 = f"s[{sV1M}:{sV1M+1}]"
if a.nosort:
    e(f"v_lshlrev_b32 v{vT2}, 1, v{vT0}")
    e(f"v_add_u32 v{vT3}, 1, v{vT2}")
else:
    c("counting sort of the block ids into 64 buckets of ascending physical address")
    e(f"v_lshrrev_b32 v{vT0}, 6, v{vRW}")
    e(f"v_lshrrev_b32 v{vT1}, 6, v{vRW+1}")
    e(f"v_cmp_eq_u32 s[{sRK+2}:{sRK+3}], s{sT3}, v{vLANE}")
    if mfirst:
        e(f"v_med3_u32 v{vT0}, v{vT0}, 1, 63")
        e(f"v_med3_u32 v{vT1}, v{vT1}, 1, 63")
    else:
        e(f"v_min_u32 v{vT0}, 62, v{vT0}")
        e(f"v_min_u32 v{vT1}, 62, v{vT1}")
    fb = 0 if mfirst else 63
    e(f"v_cndmask_b32 v{vT0}, v{vT0}, {fb}, s[{sRK+2}:{sRK+3}]")
    e(f"v_cndmask_b32 v{vT1}, v{vT1}, {fb}, s[{sRK+2}:{sRK+3}]")
    e(f"v_lshlrev_b32 v{vT0}, 2, v{vT0}")
    e(f"v_lshlrev_b32 v{vT1}, 2, v{vT1}")
    e(f"v_add_u32 v{vKF}, s{sSB}, v{vT0}")
    e(f"v_add_u32 v{vKF+1}, s{sSB}, v{vT1}")
    e(f"s_mov_b64 exec, {X0}")
    e(f"ds_add_rtn_u32 v{vT2}, v{vKF}, v{vT5}")
    if SM: e(f"s_mov_b64 exec, {X1}")
    e(f"ds_add_rtn_u32 v{vT3}, v{vKF+1}, v{vT5}")
    e("s_mov_b64 exec, -1")
    e(f"ds_read_b32 v{vT4}, v{vPA}")
    e("s_waitcnt lgkmcnt(0)")
    e(f"v_mov_b32 v{vKF+2}, v{vT4}")
    for sh in (1, 2, 4, 8):
        e("s_nop 1")
        e(f"v_add_u32_dpp v{vT4}, v{vT4}, v{vT4} row_shr:{sh} row_mask:0xf bank_mask:0xf bound_ctrl:0")
    e("s_nop 1")
    e(f"v_add_u32_dpp v{vT4}, v{vT4}, v{vT4} row_bcast:15 row_mask:0xa bank_mask:0xf")
    e("s_nop 1")
    e(f"v_add_u32_dpp v{vT4}, v{vT4}, v{vT4} row_bcast:31 row_mask:0xc bank_mask:0xf")
    e(f"v_sub_u32 v{vT4}, v{vT4}, v{vKF+2}")
    e(f"ds_bpermute_b32 v{vT0}, v{vT0}, v{vT4}")
    e(f"ds_bpermute_b32 v{vT1}, v{vT1}, v{vT4}")
    e("s_waitcnt lgkmcnt(0)")
    e(f"v_add_u32 v{vT2}, v{vT2}, v{vT0}")
    e(f"v_add_u32 v{vT3}, v{vT3}, v{vT1}")
e(f"v_lshlrev_b32 v{vRW}, 15, v{vRW}")
e(f"v_lshlrev_b32 v{vRW+1}, 15, v{vRW+1}")
e(f"v_lshl_add_u32 v{vT2}, v{vT2}, 2, s{sLBASE}")
e(f"v_lshl_add_u32 v{vT3}, v{vT3}, 2, s{sLBASE}")
e(f"s_mov_b64 exec, {X0}")
e(f"ds_write_b32 v{vT2}, v{vRW}")
if SM: e(f"s_mov_b64 exec, {X1}")
e(f"ds_write_b32 v{vT3}, v{vRW+1}")
e("s_mov_b64 exec, -1")
c("place the sorted tiles at their stream positions; flags: 1 valid, 2 masked, 4 last of batch, 8 last of stream")
e(f"v_mbcnt_lo_u32_b32 v{vT0}, s{sMA}, 0")
e(f"v_mbcnt_hi_u32_b32 v{vT0}, s{sMA+1}, v{vT0}")
e(f"v_lshl_add_u32 v{vT0}, v{vT0}, 3, s{sLBASE}")
e(f"ds_read_b64 v[{vT2}:{vT3}], v{vT0}")
e(f"s_lshr_b32 s{sT0}, s{sWB}, 8")
e(f"s_sub_u32 s{sT1}, s{sT}, 1")
e(f"v_cmp_eq_u32 vcc, s{sT0}, v{vLANE}")
e(f"v_cmp_eq_u32 s[{sRK+2}:{sRK+3}], s{sT1}, v{vLANE}")
e(f"v_cmp_eq_u32 s[{sT2}:{sT2+1}], {G-1}, v{vLANE}")
e(f"v_cndmask_b32 v{vT4}, 1, 3, vcc")
e(f"v_cndmask_b32 v{vT5}, 0, 12, s[{sRK+2}:{sRK+3}]")
e(f"v_cndmask_b32 v{vT1}, 0, 4, s[{sT2}:{sT2+1}]")
e(f"v_or3_b32 v{vT4}, v{vT4}, v{vT5}, v{vT1}")
if TR:
    e(f"s_sub_u32 s{sT1}, s{sT}, {TR[0]}")
    e(f"v_cmp_le_i32 vcc, s{sT1}, v{vLANE}")
    e("s_nop 1")
    e(f"v_cndmask_b32 v{vT5}, 0, 16, vcc")
    e(f"v_or_b32 v{vT4}, v{vT4}, v{vT5}")
e(f"v_lshlrev_b32 v{vT0}, 3, v{vLANE}")
e(f"v_add_u32 v{vT0}, {SL}, v{vT0}")
e("s_waitcnt lgkmcnt(0)")
e(f"v_or_b32 v{vT2}, v{vT2}, v{vT4}")
e(f"s_mov_b64 exec, s[{sMA}:{sMA+1}]")
e(f"ds_write_b64 v{vT0}, v[{vT2}:{vT3}]")
e("s_mov_b64 exec, -1")
lab("L_pl_done")
e(f"s_cmp_lg_u32 s{sMRG}, 0")
e("s_cbranch_scc1 L_fetch")
e(f"s_cmp_eq_u32 s{sTB}, 0")
e("s_cbranch_scc1 L_fin")
c("become the consumer of the donated tiles")
load_q(sPB)
e(f"s_mov_b64 s[{sMALL}:{sMALL+1}], s[{sMBK}:{sMBK+1}]")
e(f"s_mov_b32 s{sM}, s{sMBK}")
e(f"s_and_b32 s{sM+1}, s{sMBK+1}, {RHI:#x}")
e(f"s_mov_b32 s{sTTC}, s{sT}")
e(f"s_min_u32 s{sTB1}, s{sT}, {G}")
e(f"s_mov_b32 s{sROLE}, 1")
e(f"s_mov_b32 s{sPLN}, 1")
e(f"s_lshr_b32 s{sT3}, s{sZQ}, s{sPB}")
e(f"s_and_b32 s{sT3}, s{sT3}, 1")
e("s_branch L_csetup")

lab("L_fetch")
e(f"s_cmp_lg_u32 s{sCI}, 0")
e("s_cbranch_scc1 L_fin")
rows_off(sB)
if a.otouch >= 0:
    c("make the lines that will carry the partial valid in L2 (a later read of write-only lines would go to memory)")
    e(f"v_lshl_add_u32 v{vT4}, v{vLANE}, 7, s{sQO}")
    e(f"global_load_dword v{vPF}, v{vT4}, s[{sOUT}:{sOUT+1}] {a.ofl.replace('+', ' ')}")
ws_base(sB)
e(f"v_lshl_add_u32 v{vT1}, v{vT0}, 3, s{sT0}")
e(f"v_mov_b32 v{vFW}, s{sT0}")
e(f"s_lshl_b32 s{sT2}, s{sB}, 2")
e(f"v_mov_b32 v{vT2}, s{sT2}")
e(f"v_mov_b32 v{vPA}, {CTRL+16}")
e("s_mov_b64 exec, 1")
e(f"s_mul_i32 s{sNEED}, s{sT}, {a.pollnum}")
e(f"s_lshr_b32 s{sNEED}, s{sNEED}, 5")
e(f"s_lshl_b32 s{sT3}, s{sH}, 1")
e(f"s_mov_b32 s{sMBF}, 0")
c("wait until wave 5 has cleared the flag words and the stream is far enough")
lab("L_f_wait")
e(f"ds_read_b64 v[{vPL}:{vPL+1}], v{vPA}")
e("s_waitcnt lgkmcnt(0)")
e(f"v_readfirstlane_b32 s{sLND}, v{vPL}")
e(f"v_readfirstlane_b32 s{sT0}, v{vPL+1}")
e(f"s_cmp_ge_i32 s{sLND}, s{sNEED}")
e(f"s_cselect_b32 s{sT0}, s{sT0}, 0")
e(f"s_cmp_lg_u32 s{sT0}, 0")
e("s_cbranch_scc1 L_f_poll")
spin_tail("L_f_wait", 8)
lab("L_f_poll")
if "nopoll" in DBG: e("s_branch L_f_got")
e(f"global_load_dwordx2 v[{vPL}:{vPL+1}], v{vFW}, s[{sWS}:{sWS+1}] offset:256 sc1")
e(f"s_add_u32 s{sMBF}, s{sMBF}, 1")
e(f"s_and_b32 s{sT0}, s{sMBF}, 3")
e(f"s_mov_b32 s{sT2}, 0")
e("s_cbranch_scc1 L_f_nodbg")
e(f"global_load_dword v{vT3}, v{vT2}, s[{sDBG}:{sDBG+1}] sc1")
e("s_waitcnt vmcnt(0)")
e(f"v_readfirstlane_b32 s{sT2}, v{vT3}")
e(f"s_lshr_b32 s{sT2}, s{sT2}, s{sT3}")
lab("L_f_nodbg")
e("s_waitcnt vmcnt(0)")
e(f"v_lshl_or_b32 v{vPL}, v{vPL+1}, 1, v{vPL}")
e("s_nop 0")
e(f"v_readfirstlane_b32 s{sT0}, v{vPL}")
e(f"s_or_b32 s{sT0}, s{sT0}, s{sT2}")
e(f"s_and_b32 s{sT0}, s{sT0}, 3")
e(f"s_cmp_eq_u32 s{sT0}, 3")
e("s_cbranch_scc1 L_f_got")
spin_tail("L_f_poll", a.psleep)
lab("L_f_got")
e("s_mov_b64 exec, -1")
c("a half that came through memory: acquire at device scope before reading it")
e(f"s_and_b32 s{sT2}, s{sT2}, 3")
e("s_cbranch_scc0 L_f_ld")
e("buffer_inv sc1")
e("s_waitcnt vmcnt(0)")
lab("L_f_ld")
e(f"v_lshl_add_u32 v{vT4}, v{vLANE}, 4, s{sQO}")
e(f"v_add_u32 v{vT5}, 4096, v{vT4}")
FLD = " " + a.fld if a.fld != "none" else ""
for cc in range(2):
    if "nofetch" in DBG:
        e(f"v_mov_b32 v{vM+2*cc}, 0"); e(f"v_mov_b32 v{vM+2*cc+1}, 0")
        continue
    e(f"global_load_dwordx2 v[{vM+2*cc}:{vM+2*cc+1}], v{vT1}, s[{sWS}:{sWS+1}] offset:{128*cc}{FLD}")
    for j in range(4):
        r = vKF + 16 * cc + 4 * j
        e(f"global_load_dwordx4 v[{r}:{r+3}], v{vT4+cc}, s[{sOUT}:{sOUT+1}] offset:{1024*j}{FLD}")
e(f"v_lshlrev_b32 v{vT2}, 4, v{vLANE}")
e(f"v_add_u32 v{vT2}, {MB}, v{vT2}")
e(f"v_lshlrev_b32 v{vT0}, 3, v{vT0}")
e(f"v_add_u32 v{vT0}, {MB}, v{vT0}")
e(f"v_mov_b32 v{vPL}, {CTRL+4}")
e(f"v_mov_b32 v{vT3}, 1")
for cc in range(2):
    e(f"s_waitcnt vmcnt({5-5*cc})")
    for j in range(4):
        r = vKF + 16 * cc + 4 * j
        e(f"ds_write_b128 v{vT2}, v[{r}:{r+3}] offset:{MBS*cc + 1024*j}")
    e(f"ds_write_b64 v{vT0}, v[{vM+2*cc}:{vM+2*cc+1}] offset:{MBS*cc + 4096}")
    e(f"ds_write_b32 v{vPL}, v{vT3} offset:{8*cc}")
e(FIN)

c("wave 5: workgroups that share an L2 post their remaining work; one that lags prefetches deeper")
lab("L_ctl")
e(f"v_mov_b32 v{vT1}, {REC0}")
e(f"v_mov_b32 v{vPA}, {CTRL+32}")
e(f"v_mov_b32 v{vFW}, {DEPW}")
e(f"s_lshl_b32 s{sT0}, s{sB}, 2")
e(f"v_mov_b32 v{vG}, s{sT0}")
e(f"v_mov_b32 v{vFV}, v{vT3}")
lo = sum((XT[i] & 255) << (8 * i) for i in range(4)); hi = sum((XT[4 + i] & 255) << (8 * i) for i in range(4))
e(f"s_getreg_b32 s{sT0}, hwreg(HW_REG_XCC_ID, 0, 3)")
e(f"s_mov_b32 s{sM}, {lo:#x}")
e(f"s_mov_b32 s{sM+1}, {hi:#x}")
e(f"s_lshl_b32 s{sT0}, s{sT0}, 3")
e(f"s_lshr_b64 s[{sM}:{sM+1}], s[{sM}:{sM+1}], s{sT0}")
e(f"s_sext_i32_i8 s{sBO}, s{sM}")
lab("L_g_plan")
e(f"ds_read_b128 v[{vT2}:{vT5}], v{vT1}")
e("s_waitcnt lgkmcnt(0)")
e(f"v_readfirstlane_b32 s{sT0}, v{vT5}")
e(f"v_readfirstlane_b32 s{sT}, v{vT4}")
e(f"s_cmp_lg_u32 s{sT0}, 0")
e("s_cbranch_scc1 L_g_go")
spin_tail("L_g_plan", 8)
lab("L_g_go")
e(f"s_and_b32 s{sMRG}, s{sT}, 1")
e("s_cbranch_scc0 L_g_nores")
c("a partial is expected: clear its flag words before anything is posted")
ws_base(sB)
e(f"v_mov_b32 v{vT0}, s{sT0}")
e(f"v_mov_b32 v{vT2}, 0")
e(f"v_mov_b32 v{vT3}, 0")
e(f"v_mov_b32 v{vT4}, {CTRL+20}")
e(f"v_mov_b32 v{vT5}, 1")
e("s_mov_b64 exec, 1")
e(f"global_store_dwordx2 v{vT0}, v[{vT2}:{vT3}], s[{sWS}:{sWS+1}] offset:256")
e("s_waitcnt vmcnt(0)")
e(f"ds_write_b32 v{vT4}, v{vT5}")
e("s_mov_b64 exec, -1")
lab("L_g_nores")
e(f"s_and_b32 s{sT0}, s{sDBG}, 127")
e("s_cbranch_scc1 L_fin")
c("posted word: remaining units + 1 | head << 16 | die << 20 | flags cleared << 24")
e(f"s_getreg_b32 s{sFB}, hwreg(HW_REG_XCC_ID, 0, 4)")
e(f"s_lshl4_add_u32 s{sFB}, s{sMRG}, s{sFB}")
e(f"s_lshl4_add_u32 s{sFB}, s{sFB}, s{sH}")
e(f"s_lshl_b32 s{sFB}, s{sFB}, 16")
e(f"s_lshr_b32 s{sT}, s{sT}, 8")
e(f"s_lshl1_add_u32 s{sTN}, s{sT}, 1")
e(f"v_lshlrev_b32 v{vT1}, 1, v{vFV}")
e(f"v_add_u32 v{vT1}, {CTRL+68}, v{vT1}")
e(f"v_mov_b32 v{vT2}, s{sFB}")
e("s_mov_b64 exec, 1")
e(f"global_store_dword v{vG}, v{vT2}, s[{sDBG}:{sDBG+1}] offset:128")
e("s_mov_b64 exec, -1")
if "v" in a.tlb: e(f"global_load_dword v{vPF}, v{vTL}, s[{sV}:{sV+1}] nt")
if "prog2" in DBG: e("v_mov_b32 v50, 0")
if a.skew:
    e(f"s_mov_b32 s{sNEED}, 3")
    e(f"s_cmp_lt_u32 s{sT}, 8")
    e("s_cbranch_scc1 L_fin")
    lab("L_g_sw")
    e(f"ds_read_b32 v{vPL}, v{vPA}")
    e("s_waitcnt lgkmcnt(0)")
    e(f"v_readfirstlane_b32 s{sLND}, v{vPL}")
    e(f"s_cmp_ge_i32 s{sLND}, s{sNEED}")
    e("s_cbranch_scc1 L_g_sa")
    spin_tail("L_g_sw", 1)
    lab("L_g_sa")
    e(f"global_load_dword v{vT0}, v{vFV}, s[{sDBG}:{sDBG+1}] sc1")
    e("s_waitcnt vmcnt(0)")
    e(f"v_cmp_gt_i32 vcc, 0, v{vT0}")
    e(f"v_lshrrev_b32 v{vT0}, 16, v{vT0}")
    e(f"v_sub_u32 v{vT0}, s{sMA}, v{vT0}")
    e(f"v_bfe_i32 v{vT0}, v{vT0}, 0, 15")
    e(f"v_cndmask_b32 v{vT0}, 0, v{vT0}, vcc")
    for sh in (1, 2, 4):
        e("s_nop 1")
        op = "v_max_i32_dpp" if "ampmax" in DBG else "v_add_u32_dpp"
        e(f"{op} v{vT0}, v{vT0}, v{vT0} row_shr:{sh} row_mask:0xf bank_mask:0xf bound_ctrl:0")
    e("s_nop 0")
    e(f"v_readlane_b32 s{sT0}, v{vT0}, 7")
    if "ampmax" in DBG or "ampmean" in DBG:
        e(f"s_mul_i32 s{sMBK}, s{sT0}, {20 if 'ampmax' in DBG else 3}")
        e(f"s_max_i32 s{sMBK}, s{sMBK}, 0")
        e(f"s_add_u32 s{sMBK}, s{sMBK}, 3500")
        lab("L_amp")
        e("s_sleep 4")
        e(f"s_memrealtime s[{sLO}:{sLO+1}]")
        e("s_waitcnt lgkmcnt(0)")
        e(f"s_sub_u32 s{sT0}, s{sLO}, s{sMA}")
        e(f"s_cmp_lt_u32 s{sT0}, s{sMBK}")
        e("s_cbranch_scc1 L_amp")
        e("s_endpgm")
    e(f"s_mul_i32 s{sT0}, s{sT0}, {a.skew}")
    e(f"s_ashr_i32 s{sT0}, s{sT0}, 9")
    e(f"s_add_u32 s{sBO}, s{sBO}, s{sT0}")
e(f"s_mov_b32 s{sNEED}, {a.cstart}")
lab("L_g_next")
e(f"s_sub_u32 s{sT0}, s{sTN}, s{sNEED}")
e(f"s_cmp_lt_i32 s{sT0}, {a.cstop}")
e("s_cbranch_scc1 L_fin")
lab("L_g_w")
e(f"ds_read_b32 v{vPL}, v{vPA}")
e("s_waitcnt lgkmcnt(0)")
e(f"v_readfirstlane_b32 s{sLND}, v{vPL}")
e(f"s_cmp_ge_i32 s{sLND}, s{sNEED}")
e("s_cbranch_scc1 L_g_a")
spin_tail("L_g_w", 1)
lab("L_g_a")
if "prog2" in DBG:
    e(f"s_memrealtime s[{sST+2}:{sST+3}]")
    e(f"s_lshr_b32 m0, s{sLND}, 1")
    e("s_waitcnt lgkmcnt(0)")
    e(f"v_writelane_b32 v50, s{sST+2}, m0")
e(f"s_sub_u32 s{sNK}, s{sTN}, s{sLND}")
e(f"s_or_b32 s{sT0}, s{sNK}, s{sFB}")
e(f"v_mov_b32 v{vT2}, s{sT0}")
e("s_mov_b64 exec, 1")
e(f"global_store_dword v{vG}, v{vT2}, s[{sDBG}:{sDBG+1}] offset:128")
e("s_mov_b64 exec, -1")
e(f"global_load_dword v{vT0}, v{vFV}, s[{sDBG}:{sDBG+1}] offset:128 sc1")
e(f"s_add_u32 s{sNEED}, s{sLND}, {a.cstep}")
e(f"s_min_i32 s{sT3}, s{sBO}, 1")
e(f"s_max_i32 s{sT3}, s{sT3}, -1")
e(f"s_sub_u32 s{sBO}, s{sBO}, s{sT3}")
e("s_waitcnt vmcnt(0)")
e(f"ds_write_b32 v{vT1}, v{vT0}")
e(f"v_and_b32 v{vT0}, 0xffff, v{vT0}")
e(f"v_cmp_ne_u32 vcc, 0, v{vT0}")
for sh in (1, 2, 4, 8):
    e("s_nop 1")
    e(f"v_add_u32_dpp v{vT0}, v{vT0}, v{vT0} row_shr:{sh} row_mask:0xf bank_mask:0xf bound_ctrl:0")
e("s_nop 1")
e(f"v_add_u32_dpp v{vT0}, v{vT0}, v{vT0} row_bcast:15 row_mask:0xa bank_mask:0xf")
e(f"s_bcnt1_i32_b32 s{sT1}, vcc_lo")
e(f"v_readlane_b32 s{sT0}, v{vT0}, 31")
e(f"s_mul_i32 s{sT2}, s{sNK}, s{sT1}")
e(f"s_sub_u32 s{sT2}, s{sT2}, s{sT0}")
e(f"s_lshl_b32 s{sT2}, s{sT2}, 2")
for th, inc, cmp in ((CTH[0], -1, "lt"), (CTH[1], 1, "gt"), (CTH[2], 1, "gt")):
    e(f"s_mul_i32 s{sT0}, s{sT1}, {th - a.cbias}")
    e(f"s_cmp_{cmp}_i32 s{sT2}, s{sT0}")
    e(f"s_cselect_b32 s{sT0}, {inc}, 0")
    e(f"s_add_u32 s{sT3}, s{sT3}, s{sT0}")
e(f"s_max_i32 s{sT3}, s{sT3}, -1")
e(f"s_min_i32 s{sT3}, s{sT3}, 2")
e(f"v_mov_b32 v{vT2}, s{sT3}")
e(f"ds_write_b32 v{vFW}, v{vT2}")
e("s_branch L_g_next")

lab("L_fin")
if a.amp:
    if a.amp == "end":
        e(f"s_sub_u32 s{sT0}, s{sW}, 1")
        e(f"s_cmp_gt_u32 s{sT0}, 1")
    else:
        e(f"s_cmp_lg_u32 s{sW}, 0")
    e("s_cbranch_scc1 L_end")
    if a.ampwg >= 0:
        e(f"s_cmp_lg_u32 s2, {a.ampwg}")
        e("s_cbranch_scc1 L_end")
    e("s_waitcnt vmcnt(0) lgkmcnt(0)")
    if a.amp[:2] != "t0":
        e(f"s_memrealtime s[{sST+2}:{sST+3}]")
        e("s_waitcnt lgkmcnt(0)")
    e(f"s_sub_u32 s{sT1}, s{sST+2}, s{sST}")
    if a.amp[:2] != "t0": e(f"s_sub_u32 s{sT1}, s{sT1}, 2700")
    if a.amp == "t0x":
        e(f"s_getreg_b32 s{sT1}, hwreg(HW_REG_XCC_ID, 0, 4)")
        e(f"s_mul_i32 s{sT1}, s{sT1}, 50")
    if a.amp == "t0p":
        e(f"s_getreg_b32 s{sT1}, hwreg(HW_REG_XCC_ID, 0, 1)")
        e(f"s_mul_i32 s{sT1}, s{sT1}, 200")
    e(f"s_max_i32 s{sT1}, s{sT1}, 0")
    e(f"s_min_i32 s{sT1}, s{sT1}, 2000")
    e(f"s_mul_i32 s{sT1}, s{sT1}, 10")
    e(f"s_add_u32 s{sT1}, s{sT1}, 3500")
    lab("L_ampw")
    e("s_sleep 2")
    e(f"s_memrealtime s[{sST+2}:{sST+3}]")
    e("s_waitcnt lgkmcnt(0)")
    e(f"s_sub_u32 s{sT0}, s{sST+2}, s{sST}")
    e(f"s_cmp_lt_u32 s{sT0}, s{sT1}")
    e("s_cbranch_scc1 L_ampw")
if "prog2" in DBG or "prog3" in DBG:
    e(f"s_cmp_lg_u32 s{sW}, {5 if 'prog2' in DBG else 0}")
    e("s_cbranch_scc1 L_np2")
    e(f"s_lshl_b32 s{sT0}, s2, 8")
    e(f"s_add_u32 s{sT0}, s{sT0}, 0x400000")
    e(f"v_lshl_add_u32 v51, v{vLANE}, 2, s{sT0}")
    e(f"global_store_dword v51, v50, s[{sWS}:{sWS+1}]")
    lab("L_np2")
if a.stamps:
    e(f"s_cmp_gt_u32 s{sW}, 2")
    e("s_cbranch_scc1 L_end")
    e("s_mov_b64 exec, -1")
    e("s_waitcnt vmcnt(0) lgkmcnt(0)")
    stamp(3)
    e(f"s_getreg_b32 s{sT0}, hwreg(HW_REG_XCC_ID)")
    e("s_waitcnt lgkmcnt(0)")
    for i in range(8):
        e(f"v_mov_b32 v{64+i}, s{sST+i}")
    e(f"v_mov_b32 v72, s{sT0}")
    e(f"s_sub_u32 s{sT1}, {SPIN}, s{sSPIN}")
    e(f"v_mov_b32 v73, s{sT1}")
    e(f"v_mov_b32 v74, s{sT}")
    e(f"v_mov_b32 v75, 0")
    e(f"s_mul_i32 s{sT0}, s2, {NW}")
    e(f"s_add_u32 s{sT0}, s{sT0}, s{sW}")
    e(f"s_lshl_b32 s{sT0}, s{sT0}, 6")
    e(f"v_mov_b32 v80, s{sT0}")
    e("s_mov_b64 exec, 1")
    e(f"global_store_dwordx4 v80, v[64:67], s[{sWS}:{sWS+1}]")
    e(f"global_store_dwordx4 v80, v[68:71], s[{sWS}:{sWS+1}] offset:16")
    e(f"global_store_dwordx4 v80, v[72:75], s[{sWS}:{sWS+1}] offset:32")
lab("L_end")
e("s_endpgm")
if a.wake:
    out.append(".p2align 8")
    lab("L_pad")
    out.append(f".fill {64 * a.wake}, 4, 0xbf810000")
out.append('.section .rodata,"a"')
out.append(".p2align 6")
out.append(f".amdhsa_kernel {NAME}_kernel")
out.append(f"  .amdhsa_next_free_vgpr {NV}")
out.append("  .amdhsa_next_free_sgpr 102")
out.append(f"  .amdhsa_accum_offset {NV}")
out.append("  .amdhsa_group_segment_fixed_size 0")
out.append("  .amdhsa_kernarg_size 64")
out.append("  .amdhsa_user_sgpr_count 2")
out.append("  .amdhsa_user_sgpr_kernarg_segment_ptr 1")
out.append("  .amdhsa_system_sgpr_workgroup_id_x 1")
out.append("  .amdhsa_float_denorm_mode_32 3")
out.append(".end_amdhsa_kernel")
open(a.o, "w").write("\n".join(out) + "\n")
```

```python
import sys, argparse
NAME = "standalone__paged_block_table_kv_pagedattention__sampling"
HEADER = open("cdna_kernels/" + NAME + ".s.ref").read().split("; Override")[0]

ap = argparse.ArgumentParser()
ap.add_argument("-o", default="/dev/stdout")
ap.add_argument("--map", default="plain")
ap.add_argument("--hrot", type=int, default=0)
ap.add_argument("--D", type=int, default=21)
ap.add_argument("--D0", type=int, default=26)
ap.add_argument("--NS", type=int, default=6)
ap.add_argument("--G", type=int, default=50)
ap.add_argument("--fnum", type=int, default=40)
ap.add_argument("--pollnum", type=int, default=55)
ap.add_argument("--psleep", type=int, default=6)
ap.add_argument("--UB", type=int, default=8)
ap.add_argument("--mfirst", type=int, default=1)
ap.add_argument("--cth", default="-2,2,5")
ap.add_argument("--cbias", type=int, default=7)
ap.add_argument("--cstart", type=int, default=8)
ap.add_argument("--cstop", type=int, default=4)
ap.add_argument("--cstep", type=int, default=3)
ap.add_argument("--xt", default="7,-4,6,-8,5,2,4,-7")
ap.add_argument("--NUM", type=int, default=4)
ap.add_argument("--last", type=int, default=1)
ap.add_argument("--hold", default="")
ap.add_argument("--ost", default="")
ap.add_argument("--wb", type=int, default=0)
ap.add_argument("--skew", type=int, default=0)
ap.add_argument("--dv", default="-1,1,3")
ap.add_argument("--fpf", type=int, default=6)
ap.add_argument("--fld", default="sc1")
ap.add_argument("--opf", type=int, default=0)
ap.add_argument("--otouch", type=int, default=0)
ap.add_argument("--ospread", type=int, default=1)
ap.add_argument("--ofl", default="")
ap.add_argument("--DM", type=int, default=3)
ap.add_argument("--NE", type=int, default=3)
ap.add_argument("--amp", default="")
ap.add_argument("--ampwg", type=int, default=-1)
ap.add_argument("--tlb", default="")
ap.add_argument("--tlbs", type=int, default=21)
ap.add_argument("--wake", type=int, default=0)
ap.add_argument("--spec", type=int, default=1)
ap.add_argument("--lat", type=int, default=1)
ap.add_argument("--smart", default="")
ap.add_argument("--bar", type=int, default=1)
ap.add_argument("--hmap", default="")
ap.add_argument("--pst", default="")
ap.add_argument("--pfm", type=int, default=0)
ap.add_argument("--tr", default="")
ap.add_argument("--nosort", action="store_true")
ap.add_argument("--nopair", action="store_true")
ap.add_argument("--limf", default="0x43800000")
ap.add_argument("--dbg", default="")
ap.add_argument("--stamps", action="store_true")
a = ap.parse_args()
NT = " nt"
OST = "" if not a.ost else " " + a.ost.replace("+", " ")
DBG = set(a.dbg.split(","))
D, D0, NS, G = a.D, a.D0, a.NS, a.G
assert 24 <= D0 <= 32 and (D - 2) // 8 == (D + 1) // 8 == 2 and 32 <= G < 64
CTH = [int(x) for x in a.cth.split(",")]
XT = [int(x) for x in a.xt.split(",")]
DV = [int(x) for x in a.dv.split(",")]
TR = [int(x) for x in a.tr.split(",")] if a.tr else None
assert 17 <= D + DV[0] and D + DV[2] <= 24
DIVM = {5: (205, 10), 6: (43, 8), 7: (147, 10), 8: (1, 3), 10: (205, 11), 12: (171, 11)}[NS]
assert all((u * DIVM[0]) >> DIVM[1] == u // NS for u in range(129))
NW = 6
KBYTES = 4100 * 32768
SPIN = 1 << 22
NUM = a.NUM

RING = NS * 8192
PST = RING
MB = PST + G * 2048
MBS = 4224
CTRL = MB + 2 * MBS
FREE = CTRL + 512
REC0 = FREE + 128
DEPW = REC0 + 16
SL = FREE + 256
CNT = SL + 768
LA = CNT + 512
LB = LA + 512
KEYS = LB + 512
LDS = KEYS + 256
assert LDS <= 163840, LDS
WS0 = 0x100000 if a.stamps else 0
WSA = WS0 + 0x40000

out = []
def e(s): out.append("    " + s)
def lab(s): out.append(s + ":")
def c(s): out.append("    ; " + s)

sQ, sK, sV, sBT, sCL, sOUT, sDBG, sWS = 4, 6, 8, 10, 12, 14, 16, 18
sRD = 20
sB, sH, sW, sCLV = 28, 29, 30, 31
sT0, sT1, sT2, sT3 = 32, 33, 34, 35
sPC = 36
sSPIN = 38
sNB, sNTL, sNU, sT = 39, 40, 41, 42
sST = 64
sE = 72
sB0, sB1, sFL, sPM, sSLOT, sU, sTA0 = 46, 47, 48, 49, 52, 56, 57
sTRM, sTRC = 50, 51
sM = 46
sCI, sLND, sMBF, sNEED, sMRG, sMT, sROLE, sQO, sPLN, sSB = 48, 49, 50, 51, 52, 56, 57, 58, 59, 60
sV0 = 61
sCST = 62
sTN, sNK, sFWN, sFB, sPRE, sREDO, sLIMF, sPO = 96, 97, 98, 99, 100, 101, 53, 43
sMALL, sRS = 24, 26
sOFF, sTB0, sTB1, sTTC, sFIRST = 20, 21, 22, 23, 44
sZQ = 54
sRK, sPB, sNP, sX, sTA, sTB, sF, sWB = 80, 81, 82, 83, 84, 85, 86, 87
sMA, sMBK = 88, 90
sLO, sHI, sLBASE = 92, 93, 94
sBO = 56
vLANE = 1
vT0, vT1, vT2, vT3, vT4, vT5 = 2, 3, 4, 5, 6, 7
vL = 8
vKOFF, vVOFF = 10, 14
vCA, vCNT, vFA, vR = 18, 19, 20, 21
vF = 22
vCUR = 24
vTR = 28
vTRK, vTRV = 36, 52
vEN = 44
vDP, vDA, vOOB, vSA = 46, 47, 48, 49
vKA0, vVA0, vXA = 8, 12, 16
vPA0, vPW, vINV, vOA = 20, 21, 22, 23
vM, vLS, vMN, vAL, vPA, vFW = 24, 25, 26, 27, 28, 29
vPL = 30
vQ = 32
vS = 48
vP = 56
vG, vPF, vFV, vN = 60, 61, 62, 63
vKF = 64
vVF = 96
vO = 128
vE = 160
vPN = 160
NV = 168

def stamp(i):
    if a.amp and (i == 0 or (i == 1 and a.amp == "t0")): e(f"s_memrealtime s[{sST+2*i}:{sST+2*i+1}]")
    if a.hold and i == 0: e(f"{'s_memrealtime' if a.hold[:2] == 'rt' else 's_memtime'} s[{sST}:{sST+1}]")
    if a.stamps: e(f"s_memrealtime s[{sST+2*i}:{sST+2*i+1}]")
def clamp_cl(zq=None):
    c("context length: <=0 -> every key masked => uniform weights over 2048 keys (zero Q); >2048 -> 2048")
    e(f"s_cmp_lt_i32 s{sCLV}, 1")
    if zq is not None: e(f"s_cselect_b32 s{zq}, 1, 0")
    e(f"s_cselect_b32 s{sCLV}, 2048, s{sCLV}")
    e(f"s_min_i32 s{sCLV}, s{sCLV}, 2048")
def derive_nb():
    e(f"s_add_u32 s{sNTL}, s{sNB}, 1")
    e(f"s_lshr_b32 s{sNTL}, s{sNTL}, 1")
    e(f"s_sub_u32 s{sNU}, s{sNTL}, 1")
    e(f"s_min_u32 s{sNU}, s{sNU}, {NUM}")
def derive_cl():
    e(f"s_add_u32 s{sNB}, s{sCLV}, 15")
    e(f"s_lshr_b32 s{sNB}, s{sNB}, 4")
    derive_nb()
def spin_tail(label, sleep=1):
    e(f"s_sleep {sleep}")
    e(f"s_sub_u32 s{sSPIN}, s{sSPIN}, 1")
    e(f"s_cbranch_scc0 {label}")
    e("s_endpgm")
FIN = "s_branch L_fin" if (a.stamps or a.amp) else "s_endpgm"

out.append(HEADER.rstrip())
out.append(f"; @launch grid=(256,1,1) block=({64*NW},1,1) lds={LDS}")
for line in """
Paged GQA attention, one workgroup per (batch b, kv head h); HBM-bound, so everything serves the K/V stream.
  wave 0     loader: LDS-DMA of 8 KB units (32 keys of K or V) into a ring, a counted number of requests in flight.
             Pass 1 streams every K tile, pass 2 every V tile, both in ascending physical-block order.
  waves 1,2  own task, 16 query rows each: pass 1 scores + softmax weights (kept in LDS), pass 2 weighted values.
  waves 3,4  rank the batches by length, pair long with short, sort the block ids. In a short workgroup they then
             process tiles donated by the long partner and hand the partial result over; in a long one wave 3 fetches it.
  wave 5     compares progress with the workgroups sharing its L2 and nudges the loader's request depth.
Hand-offs work under any placement: inside L2 only after a run-time check that both sides share a die.
""".strip("\n").split("\n"): out.append("; " + line)
out.append('.amdgcn_target "amdgcn-amd-amdhsa--gfx950"')
out.append(".text")
out.append(f".globl {NAME}_kernel")
out.append(".p2align 8")
out.append(f".type {NAME}_kernel,@function")
lab(f"{NAME}_kernel")
e("s_load_dwordx16 s[4:19], s[0:1], 0")
e(f"s_lshr_b32 s{sB}, s2, 3")
e(f"s_cmp_ge_u32 s{sB}, 32")
e("s_cbranch_scc1 L_end")
stamp(0)
e(f"v_lshrrev_b32 v{vT0}, 6, v0")
e(f"v_and_b32 v{vLANE}, 63, v0")
e(f"v_readfirstlane_b32 s{sW}, v{vT0}")
c("wave 1 pulls this kernel's code into L2")
e(f"s_getpc_b64 s[{sPC}:{sPC+1}]")
lab("L_pc")
e(f"v_lshlrev_b32 v{vT2}, 7, v{vLANE}")
e(f"v_min_u32 v{vT2}, L_end - L_pc - 256, v{vT2}")
if a.pfm:
    e(f"s_and_b32 s{sT0}, s2, {a.pfm << 3}")
    e(f"s_add_u32 s{sT0}, s{sT0}, s{sW}")
    e(f"s_cmp_lg_u32 s{sT0}, 1")
else:
    e(f"s_cmp_lg_u32 s{sW}, 1")
e("s_cbranch_scc1 L_nopf")
e(f"global_load_dword v{vPF}, v{vT2}, s[{sPC}:{sPC+1}] offset:256")
if a.wake:
    e(f"s_mul_i32 s{sT3}, s2, {a.wake}")
    e(f"v_and_b32 v{vT2}, {a.wake - 256}, v{vT2}")
    e(f"v_add_u32 v{vT2}, s{sT3}, v{vT2}")
    e(f"v_add_u32 v{vT2}, L_pad - L_pc, v{vT2}")
    e(f"global_load_dword v{vFV}, v{vT2}, s[{sPC}:{sPC+1}] nt")
lab("L_nopf")
c("clear the control words and the sort counters")
e(f"v_mov_b64 v[{vT2}:{vT3}], 0")
e(f"v_lshlrev_b32 v{vT4}, 3, v0")
e(f"v_add_u32 v{vT4}, {CTRL}, v{vT4}")
e(f"ds_write_b64 v{vT4}, v[{vT2}:{vT3}]")
if a.map == "rot":
    e(f"s_add_u32 s{sH}, s2, s{sB}")
    e(f"s_and_b32 s{sH}, s{sH}, 7")
elif a.hmap:
    e(f"s_lshl_b32 s{sH}, s2, 2")
    e(f"s_lshr_b32 s{sH}, {a.hmap}, s{sH}")
    e(f"s_and_b32 s{sH}, s{sH}, 7")
elif a.hrot:
    e(f"s_add_u32 s{sH}, s2, {a.hrot}")
    e(f"s_and_b32 s{sH}, s{sH}, 7")
else:
    e(f"s_and_b32 s{sH}, s2, 7")
e(f"s_lshl3_add_u32 s{sT2}, s{sB}, s{sH}")
e(f"s_lshl_b32 s{sT2}, s{sT2}, 13")
e(f"v_lshl_add_u32 v{vT5}, v{vLANE}, 7, s{sT2}")
e(f"s_lshl_b32 s{sT0}, s{sB}, 9")
e(f"v_lshl_add_u32 v{vT2}, v{vLANE}, 3, s{sT0}")
if not a.spec: e(f"s_lshl_b32 s{sT1}, s{sB}, 2")
e(f"v_and_b32 v{vT0}, 31, v{vLANE}")
e(f"v_lshlrev_b32 v{vT3}, 2, v{vT0}")
vTL = 22
if a.tlb:
    e(f"v_min_u32 v{vTL}, {(2 << (21 - a.tlbs)) - 1}, v{vLANE}")
    e(f"v_lshl_add_u32 v{vTL}, v{vTL}, 5, s{sB}")
    e(f"s_mul_i32 s{sT3}, s2, {8064 >> (21 - a.tlbs) & ~127}")
    e(f"v_lshl_add_u32 v{vTL}, v{vTL}, {a.tlbs}, s{sT3}")
e(f"s_cmp_lg_u32 s{sW}, 2")
e("s_waitcnt lgkmcnt(0)")
e(f"s_load_dwordx8 s[{sE}:{sE+7}], s[{sBT}:{sBT+1}], s{sT0}")
if not a.spec: e(f"s_load_dword s{sCLV}, s[{sCL}:{sCL+1}], s{sT1}")
c("wave 2 touches the 64 lines of this workgroup's queries while memory is still idle")
e("s_cbranch_scc1 L_noq")
if "k" in a.tlb: e(f"global_load_dword v{vFV}, v{vTL}, s[{sK}:{sK+1}] nt")
e(f"global_load_dword v{vPF}, v{vT5}, s[{sQ}:{sQ+1}]")
lab("L_noq")
if a.opf:
    e(f"s_cmp_lg_u32 s{sW}, 4")
    e("s_cbranch_scc1 L_noo")
    e(f"global_load_dword v{vPF}, v{vT5}, s[{sOUT}:{sOUT+1}]")
    lab("L_noo")
e(f"global_load_dwordx2 v[{vL}:{vL+1}], v{vT2}, s[{sBT}:{sBT+1}]")
e(f"global_load_dword v{vN}, v{vT3}, s[{sCL}:{sCL+1}]")
lab("L_loads_issued")
if a.amp == "t0k": e(f"s_memrealtime s[{sST+2}:{sST+3}]")
e(f"s_cmp_lg_u32 s{sW}, 0")
e(f"s_mov_b32 s{sSPIN}, {SPIN}")
e("s_cbranch_scc1 L_notloader")

e("s_setprio 3")
c("per-lane source offsets of the LDS-DMA pieces (bank swizzle applied on the source side)")
e(f"v_lshrrev_b32 v{vR}, 4, v{vLANE}")
e(f"v_and_b32 v{vT1}, 15, v{vLANE}")
e(f"s_lshl_b32 s{sT0}, s{sH}, 8")
e(f"v_lshl_add_u32 v{vT4}, v{vR}, 11, s{sT0}")
e(f"v_xor_b32 v{vT2}, v{vR}, v{vT1}")
e(f"v_lshl_add_u32 v{vKOFF}, v{vT2}, 4, v{vT4}")
for j in range(1, 4):
    e(f"v_xor_b32 v{vT3}, {64*j}, v{vKOFF}")
    e(f"v_add_u32 v{vKOFF+j}, {7168*j}, v{vT3}")
e(f"s_mov_b32 s{sRD}, s{sK}")
e(f"s_and_b32 s{sRD+1}, s{sK+1}, 0xffff")
e(f"s_mov_b32 s{sRD+2}, {KBYTES}")
e(f"s_mov_b32 s{sRD+3}, 0x20000")
if a.amp == "t0c": e(f"s_memrealtime s[{sST+2}:{sST+3}]")
if a.bar < 0: e("s_barrier")
e("s_waitcnt lgkmcnt(0)")
if not a.spec: clamp_cl()
c("the first stream tiles are the leading logical tiles; requested before the context length is known")
NE = a.NE
for t in range(NE):
    if not a.spec:
        e(f"s_cmp_le_u32 s{sCLV}, {32*(t+1)}")
        e(f"s_cbranch_scc1 {'L_ld_b' if t < 2 else 'L_ld_pre'}")
    if t == 0: stamp(1)
    for j in range(8):
        i = 8 * t + j
        if j % 4 == 0:
            e(f"s_movk_i32 m0, {1024*i}")
            e(f"s_lshl_b32 s{sB0}, s{sE+i//4}, 15")
        if i >= D0: e(f"s_waitcnt vmcnt({D0-1})")
        e(f"buffer_load_dwordx4 v{vKOFF+j%4}, s[{sRD}:{sRD+3}], s{sB0} offen offset:{1024*(j%4)}{NT} lds")
    if t == a.bar:
        lab("L_ld_b")
        e("s_barrier")
lab("L_ld_pre")
j0 = (D - 1) % 8
e(f"v_lshlrev_b32 v{vT3}, 2, v{vR}")
e(f"v_xor_b32 v{vT3}, v{vT3}, v{vT1}")
e(f"v_lshl_add_u32 v{vVOFF}, v{vT3}, 4, v{vT4}")
for j in range(1, 4):
    e(f"v_add_u32 v{vVOFF+j}, {7168*j}, v{vVOFF}")
e(f"v_lshlrev_b32 v{vCA}, 3, v{vLANE}")
e(f"v_add_u32 v{vT0}, {SL}, v{vCA}")
e(f"v_add_u32 v{vCA}, {CTRL}, v{vCA}")
e(f"v_mov_b32 v{vFA}, {FREE}")
e(f"v_mov_b64 v[{vF}:{vF+1}], 0")
e(f"v_mov_b32 v{vDP}, {2 if NE == 3 else 0}")
e(f"v_mov_b32 v{vDA}, {DEPW}")
e(f"v_bfrev_b32 v{vOOB}, 1")
def set_pass(off):
    for j in range(0, 4, 2): e(f"v_mov_b64 v[{vCUR+j}:{vCUR+j+1}], v[{off+j}:{off+j+1}]")
set_pass(vKOFF)
if "prog3" in DBG: e("v_mov_b32 v50, 0")
e(f"s_mov_b32 s{sPM}, 4")
if TR:
    e(f"s_mov_b32 s{sTRM}, 16")
    e(f"s_mov_b32 s{sTRC}, 2")
    e(f"v_cmp_gt_u32 vcc, {TR[1]}, v{vLANE}")
    e("s_nop 1")
    e(f"v_cndmask_b32 v{vT2}, 1, 33, vcc")
e(f"s_mov_b32 s{sTA0}, 0")
if a.spec:
    e(f"s_waitcnt vmcnt({8*NE})")
    e(f"v_readlane_b32 s{sCLV}, v{vN}, s{sB}")
    clamp_cl()
derive_cl()
c("the leading tiles enter the stream list straight from the table row")
e(f"s_min_u32 s{sT}, s{sNU}, {NE}")
e(f"s_lshl3_add_u32 s{sT0}, s{sT}, {SL}")
e(f"v_mov_b32 v{vSA}, s{sT0}")
e(f"s_sub_u32 s{sT0}, s{sT}, 3")
e(f"v_mov_b32 v{vCNT}, s{sT0}")
e(f"s_bfm_b64 s[{sT2}:{sT2+1}], s{sNU}, 0")
e(f"s_cmp_ge_u32 s{sNU}, {NE}")
e("s_cbranch_scc1 L_ld_row")
e("s_waitcnt vmcnt(0)")
lab("L_ld_row")
if not (a.spec and NE == 3): e("s_waitcnt vmcnt(24)")
if NE == 4: e(f"ds_write_b32 v{vCA}, v{vCNT}")
e(f"v_lshl_or_b32 v{vEN}, v{vL}, 15, {'v%d' % vT2 if TR else 1}")
e(f"v_lshlrev_b32 v{vEN+1}, 15, v{vL+1}")
e(f"s_mov_b64 exec, s[{sT2}:{sT2+1}]")
e(f"ds_write_b64 v{vT0}, v[{vEN}:{vEN+1}]")
e("s_mov_b64 exec, -1")
e(f"ds_read_b64 v[{vEN}:{vEN+1}], v{vSA}")
e(f"s_lshl_b32 s{sSLOT}, s{sT}, 13")
e(f"s_mov_b32 s{sU}, s{sT}")
c("lanes of the last logical tile whose rows lie inside the context")
e(f"s_lshl_b32 s{sT0}, s{sNTL}, 5")
e(f"s_sub_u32 s{sT0}, s{sCLV}, s{sT0}")
e(f"s_add_u32 s{sT0}, s{sT0}, 32")
e(f"v_sub_u32 v{vT1}, s{sT0}, v{vR}")
for k in range(8):
    e(f"v_cmp_lt_i32 s[{80+2*k}:{81+2*k}], {4*k}, v{vT1}")
if a.amp == "t0r": e(f"s_memrealtime s[{sST+2}:{sST+3}]")
if a.amp[:3] == "t0l":
    e(f"s_waitcnt vmcnt({int(a.amp[3:])})")
    e(f"s_memrealtime s[{sST+2}:{sST+3}]")
stamp(2)
def unit_body(depth, trimmed=False):
    for j in range(8):
        if j % 4 == 0: e(f"s_add_u32 m0, s{sSLOT}, {1024*j}")
        e(f"s_waitcnt vmcnt({depth-1})")
        e(f"buffer_load_dwordx4 v{vTR+j if trimmed else vCUR+j%4}, s[{sRD}:{sRD+3}], s{sB0 + j//4} offen offset:{1024*(j%4)}{NT} lds")
        if j == (depth - 1) % 8:
            e(f"v_add_u32 v{vCNT}, 1, v{vCNT}")
            e(f"ds_write_b32 v{vCA}, v{vCNT}")
        if j == 0:
            e(f"s_add_u32 s{sT2}, s{sSLOT}, 8192")
            e(f"s_cmp_eq_u32 s{sT2}, {RING}")
            e(f"s_cselect_b32 s{sT2}, 0, s{sT2}")
            e(f"s_lshr_b32 s{sT0}, s{sT2}, 10")
            e(f"s_add_u32 s{sT0}, s{sT0}, {FREE}")
            e(f"v_mov_b32 v{vFA}, s{sT0}")
        if j == 1:
            e(f"s_add_u32 s{sT}, s{sT}, 1")
            e(f"s_and_b32 s{sT0}, s{sFL}, s{sPM}")
            e(f"s_cselect_b32 s{sT}, s{sTA0}, s{sT}")
            e(f"s_lshl3_add_u32 s{sT0}, s{sT}, {SL}")
            e(f"v_mov_b32 v{vSA}, s{sT0}")
            e(f"s_add_u32 s{sU}, s{sU}, 1")
        if j == a.fpf:
            c("prefetch the next list entry, the FREE words of the next slot and the depth code")
            e(f"ds_read_b64 v[{vEN}:{vEN+1}], v{vSA}")
            e(f"ds_read_b64 v[{vF}:{vF+1}], v{vFA}")
            e(f"ds_read_b32 v{vDP}, v{vDA}")
            e(f"s_mov_b32 s{sSLOT}, s{sT2}")
out.append(".p2align 3")
lab("L_ld")
if "prog3" in DBG:
    e(f"s_memrealtime s[{sST+4}:{sST+5}]")
    e(f"s_min_u32 m0, s{sU}, 63")
e("s_waitcnt lgkmcnt(0)")
if "prog3" in DBG: e(f"v_writelane_b32 v50, s{sST+4}, m0")
e(f"v_min_i32 v{vT0}, v{vF}, v{vF+1}")
e(f"v_readfirstlane_b32 s{sFL}, v{vEN}")
e(f"v_readfirstlane_b32 s{sB1}, v{vEN+1}")
e(f"v_readfirstlane_b32 s{sT0}, v{vT0}")
e(f"v_readfirstlane_b32 s{sT3}, v{vDP}")
e(f"s_sub_u32 s{sT1}, s{sU}, {NS-1}")
e(f"s_cmp_ge_i32 s{sT0}, s{sT1}")
e(f"s_cselect_b32 s{sT0}, s{sFL}, 0")
e(f"s_and_b32 s{sB0}, s{sFL}, {'0xffffffc0' if TR else '-16'}")
e(f"s_and_b32 s{sT0}, s{sT0}, 3")
e(f"s_cmp_lg_u32 s{sT0}, 1")
e("s_cbranch_scc1 L_ld_odd")
if TR:
    e(f"s_and_b32 s{sT0}, s{sFL}, s{sTRM}")
    e(f"s_cselect_b32 s{sT3}, s{sTRC}, s{sT3}")
e(f"s_cmp_lg_u32 s{sT3}, 0")
e("s_cbranch_scc1 L_ld_var")
unit_body(D)
lab("L_ld_next")
e(f"s_bitcmp1_b32 s{sFL}, 2")
e("s_cbranch_scc0 L_ld")
c("last tile of the batch: change pass")
if TR:
    e(f"s_xor_b32 s{sTRM}, s{sTRM}, 48")
    e(f"s_xor_b32 s{sTRC}, s{sTRC}, 1")
e(f"s_xor_b32 s{sPM}, s{sPM}, 4")
e("s_cbranch_scc1 L_ld_tok")
e(f"s_mov_b32 s{sRD}, s{sV}")
e(f"s_and_b32 s{sRD+1}, s{sV+1}, 0xffff")
set_pass(vVOFF)
e("s_branch L_ld")
lab("L_ld_tok")
e(f"s_bitcmp1_b32 s{sFL}, 3")
e("s_cbranch_scc0 L_ld_more")
for r in (16, 8, 0):
    e(f"v_add_u32 v{vCNT}, 1, v{vCNT}")
    e(f"s_waitcnt vmcnt({r})")
    e(f"ds_write_b32 v{vCA}, v{vCNT}")
if a.hold:
    lab("L_hold")
    e(f"{'s_memrealtime' if a.hold[:2] == 'rt' else 's_memtime'} s[{sST+2}:{sST+3}]")
    e("s_waitcnt lgkmcnt(0)")
    e(f"s_sub_u32 s{sT0}, s{sST+2}, s{sST}")
    e(f"s_cmp_lt_u32 s{sT0}, {a.hold[3:]}")
    e("s_cbranch_scc1 L_hold")
e(FIN)
lab("L_ld_more")
e(f"s_mov_b32 s{sTA0}, s{sT}")
e(f"s_mov_b32 s{sRD}, s{sK}")
e(f"s_and_b32 s{sRD+1}, s{sK+1}, 0xffff")
set_pass(vKOFF)
e("s_branch L_ld")
lab("L_ld_odd")
e(f"s_cmp_eq_u32 s{sT0}, 3")
e("s_cbranch_scc1 L_ld_m")
c("slot not free yet or entry not written yet")
e(f"ds_read_b64 v[{vEN}:{vEN+1}], v{vSA}")
e(f"ds_read_b64 v[{vF}:{vF+1}], v{vFA}")
e(f"s_sub_u32 s{sSPIN}, s{sSPIN}, 1")
e("s_cbranch_scc0 L_ld")
e("s_endpgm")
lab("L_ld_m")
c("the last logical tile: rows past the context are not fetched (their lanes read zeros)")
for k in range(8):
    e(f"v_cndmask_b32 v{vTR+k}, v{vOOB}, v{vCUR+k%4}, s[{80+2*k}:{81+2*k}]")
unit_body(D + a.DM, True)
e("s_branch L_ld_next")
lab("L_ld_var")
e(f"s_cmp_eq_u32 s{sT3}, 1")
e("s_cbranch_scc1 L_ld_v2")
e(f"s_cmp_eq_u32 s{sT3}, 2")
e("s_cbranch_scc1 L_ld_v3")
if TR:
    e(f"s_cmp_eq_u32 s{sT3}, 3")
    e("s_cbranch_scc1 L_ld_v4")
unit_body(D + DV[0])
e("s_branch L_ld_next")
lab("L_ld_v2")
unit_body(D + DV[1])
e("s_branch L_ld_next")
lab("L_ld_v3")
unit_body(D + DV[2])
e("s_branch L_ld_next")
if TR:
    lab("L_ld_v4")
    unit_body(D + TR[2])
    e("s_branch L_ld_next")

lab("L_notloader")
e(f"s_cmp_ge_u32 s{sW}, 3")
e("s_cbranch_scc1 L_planner")
e(f"s_sub_u32 s{sCI}, s{sW}, 1")
def rows_off(sb):
    e(f"s_lshl3_add_u32 s{sQO}, s{sb}, s{sH}")
    e(f"s_lshl1_add_u32 s{sQO}, s{sQO}, s{sCI}")
    e(f"s_lshl_b32 s{sQO}, s{sQO}, 12")
    e(f"v_and_b32 v{vT0}, 15, v{vLANE}")
    e(f"v_lshrrev_b32 v{vG}, 4, v{vLANE}")
def load_q(sb):
    rows_off(sb)
    e(f"v_lshl_add_u32 v{vT4}, v{vT0}, 8, s{sQO}")
    e(f"v_lshl_add_u32 v{vT4}, v{vG}, 4, v{vT4}")
    for s in range(4):
        e(f"global_load_dwordx4 v[{vQ+4*s}:{vQ+4*s+3}], v{vT4}, s[{sQ}:{sQ+1}] offset:{64*s}")
load_q(sB)
e("s_barrier")
e(f"s_mov_b32 s{sROLE}, 0")
e(f"s_mov_b32 s{sPLN}, 0")
e(f"s_mov_b32 s{sMRG}, 0")
if a.spec:
    e("s_waitcnt vmcnt(4) lgkmcnt(0)")
    e(f"v_readlane_b32 s{sCLV}, v{vN}, s{sB}")
else: e("s_waitcnt lgkmcnt(0)")
clamp_cl(zq=sT3)
derive_cl()
c("valid keys of the last logical tile")
e(f"s_lshl_b32 s{sV0}, s{sNTL}, 5")
e(f"s_sub_u32 s{sV0}, s{sCLV}, s{sV0}")
e(f"s_add_u32 s{sV0}, s{sV0}, 32")
e(f"s_bfm_b64 s[{sM}:{sM+1}], s{sNU}, 0")
lab("L_csetup")
e(f"s_mov_b32 s{sMT}, 0")
e(f"s_mov_b32 s{sOFF}, 0")
e(f"s_mov_b32 s{sTB0}, 0")
e(f"s_mov_b32 s{sFIRST}, 1")
e(f"s_mov_b64 s[{sRS}:{sRS+1}], 0")
e("s_waitcnt vmcnt(4)")
e(f"v_and_b32 v{vT0}, 15, v{vLANE}")
e(f"v_xor_b32 v{vT1}, v{vG}, v{vT0}")
e(f"v_lshlrev_b32 v{vT2}, 8, v{vT0}")
e(f"v_lshl_add_u32 v{vKA0}, v{vT1}, 4, v{vT2}")
for s in range(1, 4):
    e(f"v_xor_b32 v{vKA0+s}, {64*s}, v{vKA0}")
e(f"v_bfe_u32 v{vT0}, v{vLANE}, 2, 2")
e(f"v_lshl_add_u32 v{vT1}, v{vG}, 2, v{vT0}")
e(f"v_lshlrev_b32 v{vT1}, 8, v{vT1}")
e(f"v_and_b32 v{vT2}, 3, v{vLANE}")
e(f"v_lshl_add_u32 v{vT1}, v{vT2}, 4, v{vT1}")
e(f"v_lshl_add_u32 v{vVA0}, v{vT0}, 6, v{vT1}")
for j in range(1, 4):
    e(f"v_xor_b32 v{vVA0+j}, {64*j}, v{vVA0}")
e(f"s_lshl_b32 s{sT0}, s{sCI}, 10")
e(f"s_add_u32 s{sT0}, s{sT0}, {PST}")
e(f"v_lshl_add_u32 v{vPA0}, v{vLANE}, 4, s{sT0}")
e(f"v_mov_b32 v{vOA}, v{vT4}")
e(f"s_lshl_b32 s{sT0}, s{sW}, 3")
e(f"s_add_u32 s{sT0}, s{sT0}, {CTRL-8}")
e(f"v_mov_b32 v{vPA}, s{sT0}")
e(f"v_mov_b32 v{vM}, 0xff800000")
e(f"v_mov_b32 v{vLS}, 0")
for r in range(0, 32, 2): e(f"v_mov_b64 v[{vO+r}:{vO+r+1}], 0")
e(f"s_mov_b32 s{sCST}, 0x3e0293ee")
e(f"s_mov_b32 s{sCST+1}, 0x3e0293ee")
e(f"s_mov_b32 s{sLIMF}, {a.limf}")
e(f"s_lshl2_add_u32 s{sFB}, s{sCI}, {FREE}")
e("s_waitcnt vmcnt(0)")
e(f"s_cmp_eq_u32 s{sT3}, 0")
e("s_cbranch_scc1 L_k_first")
for r in range(0, 16, 2): e(f"v_mov_b64 v[{vQ+r}:{vQ+r+1}], 0")

def poll(label):
    lab(label)
    e(f"ds_read_b64 v[{vPL}:{vPL+1}], v{vPA}")
    e(f"s_sub_u32 s{sSPIN}, s{sSPIN}, 1")
    e("s_cbranch_scc1 L_end")
    e("s_waitcnt lgkmcnt(0)")
    e(f"v_readfirstlane_b32 s{sLND}, v{vPL}")
    e(f"s_cmp_ge_i32 s{sLND}, s{sNK}")
    e(f"s_cbranch_scc0 {label}")
VR = []
for j in range(4):
    for ee in range(2):
        for blk in range(2):
            r = vVF + (2 * j + ee) * 4 + 2 * blk
            VR.append(f"ds_read_b64_tr_b16 v[{r}:{r+1}], v{vXA+j} offset:{8*ee + 4096*blk}")
KR, QK = [], []
for blk in range(2):
    for st in range(4):
        r = vKF + (blk * 4 + st) * 4
        KR.append(f"ds_read_b128 v[{r}:{r+3}], v{vXA+st} offset:{4096*blk}")
        cc = "0" if st == 0 else f"v[{vS+4*blk}:{vS+4*blk+3}]"
        QK.append(f"v_mfma_f32_16x16x32_bf16 v[{vS+4*blk}:{vS+4*blk+3}], v[{r}:{r+3}], v[{vQ+4*st}:{vQ+4*st+3}], {cc}")
PV = [f"v_mfma_f32_16x16x32_bf16 v[{vO+4*dt}:{vO+4*dt+3}], v[{vVF+4*dt}:{vVF+4*dt+3}], v[{vP}:{vP+3}], v[{vO+4*dt}:{vO+4*dt+3}]" for dt in range(8)]
NX = [f"s_ff1_i32_b64 s{sTN}, s[{sM}:{sM+1}]",
      f"s_bitset0_b64 s[{sM}:{sM+1}], s{sTN}",
      f"s_add_u32 s{sT1}, s{sTN}, s{sOFF}",
      f"s_mul_i32 s{sT0}, s{sT1}, {DIVM[0]}",
      f"s_lshr_b32 s{sT0}, s{sT0}, {DIVM[1]}",
      f"s_mul_i32 s{sT0}, s{sT0}, {NS}",
      f"s_sub_u32 s{sT0}, s{sT1}, s{sT0}",
      f"s_lshl_b32 s{sSB}, s{sT0}, 13",
      f"s_lshl3_add_u32 s{sFWN}, s{sT0}, s{sFB}",
      f"s_and_b32 s{sT0}, s{sTN}, 0x40000000",
      f"s_add_u32 s{sNK}, s{sT1}, 1",
      f"s_or_b32 s{sNK}, s{sNK}, s{sT0}",
      f"s_sub_u32 s{sPO}, s{sTN}, s{sTB0}",
      f"s_lshl_b32 s{sPO}, s{sPO}, 11"]
KA = [f"v_add_u32 v{vXA+i}, s{sSB}, v{vKA0+i}" for i in range(4)]
VA = [f"v_add_u32 v{vXA+i}, s{sSB}, v{vVA0+i}" for i in range(4)]
ADV = [f"v_mov_b32 v{vFW}, s{sFWN}",
       f"v_mov_b32 v{vFV}, s{sNK}",
       f"v_add_u32 v{vPW}, s{sPO}, v{vPA0}",
       f"s_add_u32 s{sT}, s{sTN}, 1"]
def scale_o(reg):
    for r in range(0, 32, 2):
        sel = "op_sel:[0,1] op_sel_hi:[1,1]" if reg & 1 else "op_sel_hi:[1,0]"
        p = reg & ~1
        e(f"v_pk_mul_f32 v[{vO+r}:{vO+r+1}], v[{vO+r}:{vO+r+1}], v[{p}:{p+1}] {sel}")

def inv_pre():
    e(f"v_mov_b32 v{vT0}, v{vLS}")
    e(f"v_mov_b32 v{vT1}, v{vLS}")
    e("s_nop 1")
    e(f"v_permlane32_swap_b32 v{vT0}, v{vT1}")
    e("s_nop 0")
    e(f"v_add_f32 v{vT0}, v{vT0}, v{vT1}")
    e(f"v_mov_b32 v{vT1}, v{vT0}")
    e("s_nop 1")
    e(f"v_permlane16_swap_b32 v{vT0}, v{vT1}")
    e("s_nop 0")
    e(f"v_add_f32 v{vT0}, v{vT0}, v{vT1}")
    e(f"v_rcp_f32 v{vINV}, v{vT0}")

lab("L_k_first")
for x in NX + KA + ADV: e(x)
lab("L_k_next")
e(f"s_cmp_lt_i32 s{sTN}, 0")
e("s_cbranch_scc1 L_k_empty")
poll("L_k_poll")
for x in KR: e(x)
e("s_waitcnt lgkmcnt(0)")
out.append(".p2align 3")
lab("L_k_top")
e("s_waitcnt lgkmcnt(1)")
e(f"ds_write_b32 v{vFW}, v{vFV}")
e(f"ds_read_b64 v[{vPL}:{vPL+1}], v{vPA}")
fill = NX + KA
for i in range(8):
    e(QK[i])
    for x in fill[2*i:2*i+2]: e(x)
for x in fill[16:]: e(x)
e(f"s_mov_b32 s{sREDO}, 0")
e("s_waitcnt lgkmcnt(0)")
e(f"v_readfirstlane_b32 s{sLND}, v{vPL}")
e(f"s_cmp_ge_i32 s{sLND}, s{sNK}")
e(f"s_cselect_b32 s{sPRE}, 1, 0")
e("s_cbranch_scc0 L_k_nopre")
for x in KR: e(x)
lab("L_k_nopre")
e(f"s_cmp_eq_u32 s{sT}, s{sMT}")
e("s_cbranch_scc1 L_k_mask")
lab("L_k_exp")
for hb in range(2):
    for r in (4*hb, 4*hb+2):
        e(f"v_pk_fma_f32 v[{vE+r}:{vE+r+1}], v[{vS+r}:{vS+r+1}], s[{sCST}:{sCST+1}], v[{vM}:{vM+1}] op_sel_hi:[1,1,0] neg_lo:[0,0,1] neg_hi:[0,0,1]")
    for r in range(4*hb, 4*hb+4):
        e(f"v_exp_f32 v{vE+r}, v{vE+r}")
e(f"v_pk_add_f32 v[{vT0}:{vT1}], v[{vE}:{vE+1}], v[{vE+2}:{vE+3}]")
e(f"v_pk_add_f32 v[{vT2}:{vT3}], v[{vE+4}:{vE+5}], v[{vE+6}:{vE+7}]")
e(f"v_cvt_pk_bf16_f32 v{vP}, v{vE}, v{vE+1}")
e(f"v_pk_add_f32 v[{vT0}:{vT1}], v[{vT0}:{vT1}], v[{vT2}:{vT3}]")
e(f"v_cvt_pk_bf16_f32 v{vP+1}, v{vE+2}, v{vE+3}")
e(f"v_add_f32 v{vT0}, v{vT0}, v{vT1}")
c("the kept reference max is safe only while every weight stays <= 256; otherwise take the true max")
e(f"v_cmp_nge_f32 vcc, s{sLIMF}, v{vT0}")
e(f"v_cvt_pk_bf16_f32 v{vP+2}, v{vE+4}, v{vE+5}")
e(f"v_cvt_pk_bf16_f32 v{vP+3}, v{vE+6}, v{vE+7}")
e(ADV[0]); e(ADV[1])
e("s_nop 0")
e("s_cbranch_vccnz L_k_slow")
lab("L_k_done")
e(f"ds_write_b128 v{vPW}, v[{vP}:{vP+3}]")
e(f"v_add_f32 v{vLS}, v{vLS}, v{vT0}")
e(ADV[3])
e(f"s_cmp_lg_u32 s{sPRE}, 0")
e(ADV[2])
e("s_cbranch_scc1 L_k_top")
e("s_branch L_k_next")

lab("L_k_mask")
e(f"v_lshlrev_b32 v{vT0}, 2, v{vG}")
e(f"v_sub_u32 v{vT0}, s{sV0}, v{vT0}")
e(f"v_mov_b32 v{vT1}, 0xff800000")
for r in range(8):
    e(f"v_cmp_lt_i32 s[{80+2*r}:{81+2*r}], {16*(r//4)+r%4}, v{vT0}")
for r in range(8):
    e(f"v_cndmask_b32 v{vS+r}, v{vT1}, v{vS+r}, s[{80+2*r}:{81+2*r}]")
e("s_branch L_k_exp")

def alpha_addr():
    e(f"s_lshl_b32 s{sT0}, s2, 6")
    e(f"s_add_u32 s{sT0}, s{sT0}, s{sT}")
    e(f"s_lshl1_add_u32 s{sT0}, s{sT0}, s{sCI}")
    e(f"s_lshl_b32 s{sT0}, s{sT0}, 6")
    e(f"s_add_u32 s{sT0}, s{sT0}, {WSA}")
    e(f"v_and_b32 v{vT1}, 15, v{vLANE}")
    e(f"v_lshl_add_u32 v{vT1}, v{vT1}, 2, s{sT0}")
c("raise the reference to the true running max; the accumulator is rescaled when pass 2 reaches this tile")
lab("L_k_slow")
e(f"s_cmp_lg_u32 s{sREDO}, 0")
e("s_cbranch_scc1 L_k_done")
e(f"s_mov_b32 s{sREDO}, 1")
e(f"v_max3_f32 v{vT0}, v{vS}, v{vS+1}, v{vS+2}")
e(f"v_max3_f32 v{vT1}, v{vS+3}, v{vS+4}, v{vS+5}")
e(f"v_max3_f32 v{vT0}, v{vT0}, v{vS+6}, v{vS+7}")
e(f"v_max_f32 v{vT0}, v{vT0}, v{vT1}")
e(f"v_mov_b32 v{vT1}, v{vT0}")
e("s_nop 1")
e(f"v_permlane32_swap_b32 v{vT0}, v{vT1}")
e("s_nop 0")
e(f"v_max_f32 v{vT0}, v{vT0}, v{vT1}")
e(f"v_mov_b32 v{vT1}, v{vT0}")
e("s_nop 1")
e(f"v_permlane16_swap_b32 v{vT0}, v{vT1}")
e("s_nop 0")
e(f"v_max_f32 v{vT0}, v{vT0}, v{vT1}")
e(f"v_mul_f32 v{vT0}, s{sCST}, v{vT0}")
e(f"v_max_f32 v{vMN}, v{vM}, v{vT0}")
e(f"v_sub_f32 v{vAL}, v{vM}, v{vMN}")
e(f"v_exp_f32 v{vAL}, v{vAL}")
e(f"v_mov_b32 v{vM}, v{vMN}")
e(f"s_cmp_lg_u32 s{sFIRST}, 0")
e(f"s_mov_b32 s{sFIRST}, 0")
e(f"v_mul_f32 v{vLS}, v{vLS}, v{vAL}")
e("s_cbranch_scc1 L_k_exp")
alpha_addr()
e(f"global_store_dword v{vT1}, v{vAL}, s[{sWS}:{sWS+1}]")
e(f"s_sub_u32 s{sT0}, s{sT}, 1")
e(f"s_bitset1_b64 s[{sRS}:{sRS+1}], s{sT0}")
e("s_branch L_k_exp")

RLO, RHI = 0xffffffff, (1 << (G - 32)) - 1
lab("L_k_noplan")
e(f"s_mov_b32 s{sPLN}, 1")
e(f"v_mov_b32 v{vT1}, {REC0}")
lab("L_k_plan")
e(f"ds_read_b128 v[{vT2}:{vT5}], v{vT1}")
e("s_waitcnt lgkmcnt(0)")
e(f"v_readfirstlane_b32 s{sT0}, v{vT5}")
e(f"v_readfirstlane_b32 s{sM}, v{vT2}")
e(f"v_readfirstlane_b32 s{sM+1}, v{vT3}")
e(f"v_readfirstlane_b32 s{sTTC}, v{vT4}")
e(f"s_cmp_lg_u32 s{sT0}, 0")
e("s_cbranch_scc1 L_k_got")
spin_tail("L_k_plan")
lab("L_k_got")
e(f"s_lshr_b32 s{sMT}, s{sT0}, 8")
e(f"s_add_u32 s{sMT}, s{sMT}, 1")
e(f"s_and_b32 s{sMRG}, s{sTTC}, {0 if 'nomerge' in DBG else 1}")
e(f"s_lshr_b32 s{sTTC}, s{sTTC}, 8")
e(f"s_min_u32 s{sTB1}, s{sTTC}, {G}")
e(f"s_bfm_b64 s[{sMALL}:{sMALL+1}], s{sNU}, 0")
e(f"s_or_b64 s[{sMALL}:{sMALL+1}], s[{sMALL}:{sMALL+1}], s[{sM}:{sM+1}]")
e(f"s_and_b32 s{sM+1}, s{sM+1}, {RHI:#x}")
e("s_branch L_k_first")
lab("L_v_more")
c("second batch")
e(f"s_mov_b32 s{sTB0}, s{sTB1}")
e(f"s_mov_b32 s{sTB1}, s{sTTC}")
e(f"s_mov_b32 s{sOFF}, s{sTB0}")
e(f"s_mov_b32 s{sMALL}, 0")
e(f"s_andn2_b32 s{sMALL+1}, s{sMALL+1}, {RHI:#x}")
e(f"s_mov_b64 s[{sM}:{sM+1}], s[{sMALL}:{sMALL+1}]")
e("s_branch L_k_first")
lab("L_k_empty")
e(f"s_cmp_eq_u32 s{sPLN}, 0")
e("s_cbranch_scc1 L_k_noplan")
if a.last: inv_pre()
e(f"s_mov_b32 s{sOFF}, s{sTB1}")
e(f"s_mov_b32 s{sM}, s{sMALL}")
e(f"s_and_b32 s{sM+1}, s{sMALL+1}, {RHI:#x}")
e(f"s_cmp_eq_u32 s{sTB0}, 0")
e(f"s_cselect_b32 s{sM+1}, s{sM+1}, s{sMALL+1}")
for x in NX + VA: e(x)
e(f"ds_read_b64 v[{vPL}:{vPL+1}], v{vPA}")
e(f"s_cmp_lt_i32 s{sTN}, 0")
e("s_cbranch_scc1 L_v_empty")
lab("L_v_next")
for x in ADV: e(x)
if a.last:
    e(f"s_cmp_eq_u64 s[{sM}:{sM+1}], 0")
    e("s_cbranch_scc1 L_v_islast")
lab("L_v_next2")
e(f"ds_read_b128 v[{vPN}:{vPN+3}], v{vPW}")
e("s_waitcnt lgkmcnt(1)")
e(f"v_readfirstlane_b32 s{sLND}, v{vPL}")
e(f"s_cmp_ge_i32 s{sLND}, s{sNK}")
e("s_cbranch_scc1 L_v_rd")
poll("L_v_poll")
lab("L_v_rd")
for x in VR: e(x)
if a.lat:
    e(f"v_readfirstlane_b32 s{sMBF}, v{vPL+1}")
    e(f"s_cmp_gt_i32 s{sLND}, s{sNK}")
    e(f"s_cselect_b32 s{sT0}, 1, s{sRS}")
    e(f"s_or_b32 s{sT0}, s{sT0}, s{sRS+1}")
    e(f"s_and_b32 s{sT1}, s{sMBF}, s{sMRG}")
    e(f"s_or_b32 s{sT0}, s{sT0}, s{sT1}")
    e("s_cbranch_scc0 L_v_lat")
out.append(".p2align 3")
lab("L_v_top")
for x in NX + VA: e(x)
e(f"s_sub_u32 s{sT0}, s{sT}, 1")
e(f"s_bitcmp1_b64 s[{sRS}:{sRS+1}], s{sT0}")
e("s_cbranch_scc1 L_v_resc")
lab("L_v_top2")
e("s_waitcnt lgkmcnt(14)")
e(f"v_readfirstlane_b32 s{sMBF}, v{vPL+1}")
e(f"v_readfirstlane_b32 s{sLND}, v{vPL}")
e(f"v_mov_b64 v[{vP}:{vP+1}], v[{vPN}:{vPN+1}]")
e(f"v_mov_b64 v[{vP+2}:{vP+3}], v[{vPN+2}:{vPN+3}]")
e(f"s_and_b32 s{sT0}, s{sMBF}, s{sMRG}")
e("s_cbranch_scc1 L_v_merge")
lab("L_v_top3")
e(f"s_cmp_ge_i32 s{sLND}, s{sNK}")
e("s_cbranch_scc0 L_v_pv")
e(ADV[2])
e("s_waitcnt lgkmcnt(0)")
e(f"ds_write_b32 v{vFW}, v{vFV}")
e(f"ds_read_b64 v[{vPL}:{vPL+1}], v{vPA}")
e(f"ds_read_b128 v[{vPN}:{vPN+3}], v{vPW}")
for i in range(8):
    e(PV[i]); e(VR[2*i]); e(VR[2*i+1])
e(ADV[0]); e(ADV[1]); e(ADV[3])
e("s_branch L_v_top")
if a.lat:
    c("nothing further has landed and nothing is pending: shortest way through this tile")
    lab("L_v_lat")
    e("s_waitcnt lgkmcnt(14)")
    e(f"v_mov_b64 v[{vP}:{vP+1}], v[{vPN}:{vPN+1}]")
    e(f"v_mov_b64 v[{vP+2}:{vP+3}], v[{vPN+2}:{vPN+3}]")
    fl = NX + VA
    e(fl[0]); e(fl[1])
    for i in range(8):
        if i: e(f"s_waitcnt lgkmcnt({14-2*i})")
        if i == 7:
            e(f"ds_write_b32 v{vFW}, v{vFV}")
            e(f"ds_read_b64 v[{vPL}:{vPL+1}], v{vPA}")
        e(PV[i])
        e(fl[2+2*i]); e(fl[3+2*i])
    e(f"s_cmp_ge_i32 s{sTN}, 0")
    e("s_cbranch_scc1 L_v_next")
    e("s_branch L_v_empty")
lab("L_v_pv")
if a.last:
    e(f"s_cmp_lt_i32 s{sTN}, 0")
    e("s_cbranch_scc1 L_v_islast2")
    lab("L_v_pv2")
for i in range(8):
    if i: e(f"s_waitcnt lgkmcnt({14-2*i})")
    if i == 7:
        e(f"ds_write_b32 v{vFW}, v{vFV}")
        e(f"ds_read_b64 v[{vPL}:{vPL+1}], v{vPA}")
    e(PV[i])
e(f"s_cmp_ge_i32 s{sTN}, 0")
e("s_cbranch_scc1 L_v_next")
lab("L_v_empty")
e(f"s_cmp_lt_u32 s{sTB1}, s{sTTC}")
e("s_cbranch_scc1 L_v_more")
stamp(2)
e(f"s_cmp_lg_u32 s{sMRG}, 0")
e("s_cbranch_scc1 L_c_mwait0")
lab("L_c_store")
e(f"v_mov_b32 v{vT0}, v{vLS}")
e(f"v_and_b32 v{vT2}, 15, v{vLANE}")
e(f"v_lshl_add_u32 v{vT2}, v{vT2}, 8, s{sQO}")
e(f"v_permlane32_swap_b32 v{vLS}, v{vT0}")
e("s_nop 0")
e(f"v_add_f32 v{vLS}, v{vLS}, v{vT0}")
e(f"v_mov_b32 v{vT0}, v{vLS}")
e(f"v_lshl_add_u32 v{vT2}, v{vG}, 4, v{vT2}")
e("s_nop 0")
e(f"v_permlane16_swap_b32 v{vLS}, v{vT0}")
e("s_nop 0")
e(f"v_add_f32 v{vLS}, v{vLS}, v{vT0}")
e(f"v_rcp_f32 v{vMN}, v{vLS}")
e(f"s_cmp_lg_u32 s{sROLE}, 0")
scale_o(vMN)
for r in range(16):
    e(f"v_cvt_pk_bf16_f32 v{vKF+r}, v{vO+2*r}, v{vO+2*r+1}")
e("s_cbranch_scc1 L_publish")
def out_stores(fl, step=64):
    for j in range(4):
        e(f"global_store_dwordx4 v{vT2}, v[{vKF+4*j}:{vKF+4*j+3}], s[{sOUT}:{sOUT+1}] offset:{step*j}{fl}")
out_stores(OST)
e(FIN)

def l_total():
    e(f"v_mov_b32 v{vT0}, v{vLS}")
    e(f"v_and_b32 v{vT2}, 15, v{vLANE}")
    e(f"v_lshl_add_u32 v{vT2}, v{vT2}, 8, s{sQO}")
    e(f"v_permlane32_swap_b32 v{vLS}, v{vT0}")
    e("s_nop 0")
    e(f"v_add_f32 v{vLS}, v{vLS}, v{vT0}")
    e(f"v_mov_b32 v{vT0}, v{vLS}")
    e(f"v_lshl_add_u32 v{vT2}, v{vG}, 4, v{vT2}")
    e("s_nop 0")
    e(f"v_permlane16_swap_b32 v{vLS}, v{vT0}")
    e("s_nop 0")
    e(f"v_add_f32 v{vLS}, v{vLS}, v{vT0}")
    e(f"v_rcp_f32 v{vMN}, v{vLS}")
if a.last:
    lab("L_v_islast2")
    e(f"s_sub_u32 s{sT0}, s{sTTC}, s{sTB1}")
    e(f"s_or_b32 s{sT0}, s{sT0}, s{sMRG}")
    e(f"s_or_b32 s{sT0}, s{sT0}, s{sROLE}")
    e("s_cbranch_scc1 L_v_pv2")
    e("s_branch L_v_lpv")
    lab("L_v_islast")
    c("closing tile of an owner with nothing pending: take the short path")
    e(f"s_sub_u32 s{sT0}, s{sTTC}, s{sTB1}")
    e(f"s_or_b32 s{sT0}, s{sT0}, s{sMRG}")
    e(f"s_or_b32 s{sT0}, s{sT0}, s{sROLE}")
    e(f"s_or_b32 s{sT0}, s{sT0}, s{sRS}")
    e(f"s_or_b32 s{sT0}, s{sT0}, s{sRS+1}")
    e("s_cbranch_scc1 L_v_next2")
    e(f"ds_read_b128 v[{vP}:{vP+3}], v{vPW}")
    e("s_waitcnt lgkmcnt(1)")
    e(f"v_readfirstlane_b32 s{sLND}, v{vPL}")
    e(f"s_cmp_ge_i32 s{sLND}, s{sNK}")
    e("s_cbranch_scc1 L_v_lrd")
    poll("L_v_lpoll")
    lab("L_v_lrd")
    for x in VR: e(x)
    def fin_j(j):
        r = []
        for k in range(4):
            q = vO + 8 * j + 2 * k
            r.append(f"v_pk_mul_f32 v[{q}:{q+1}], v[{q}:{q+1}], v[{vINV}:{vINV+1}] op_sel_hi:[1,0]")
        for k in range(4):
            r.append(f"v_cvt_pk_bf16_f32 v{vKF+4*j+k}, v{vO+8*j+2*k}, v{vO+8*j+2*k+1}")
        r.append(f"global_store_dwordx4 v{vOA}, v[{vKF+4*j}:{vKF+4*j+3}], s[{sOUT}:{sOUT+1}] offset:{64*j}{OST}")
        return r
    lab("L_v_lpv")
    f0 = fin_j(0)
    for i in range(8):
        e(f"s_waitcnt lgkmcnt({14-2*i})")
        e(PV[i])
        if i == 5: e(f0[0]); e(f0[1])
        if i == 6: e(f0[2]); e(f0[3])
    stamp(2)
    for x in f0[4:] + fin_j(1) + fin_j(2) + fin_j(3): e(x)
    e(f"ds_write_b32 v{vFW}, v{vFV}")
    e(FIN)

lab("L_v_resc")
e(f"s_bitset0_b64 s[{sRS}:{sRS+1}], s{sT0}")
alpha_addr()
e("s_waitcnt vmcnt(0)")
e(f"global_load_dword v{vAL}, v{vT1}, s[{sWS}:{sWS+1}] sc1")
e("s_waitcnt vmcnt(0)")
scale_o(vAL)
e("s_branch L_v_top2")

lab("L_v_merge")
c("only once no rescale is pending; the reference max stays, so the partial's max must not be far above it")
e(f"s_cmp_eq_u64 s[{sRS}:{sRS+1}], 0")
e("s_cbranch_scc0 L_v_top3")
lab("L_c_merge")
e(f"s_mul_i32 s{sT0}, s{sCI}, {MBS}")
e(f"s_add_u32 s{sT0}, s{sT0}, {MB}")
e(f"v_and_b32 v{vT1}, 15, v{vLANE}")
e(f"v_lshl_add_u32 v{vT0}, v{vLANE}, 4, s{sT0}")
e(f"v_lshl_add_u32 v{vT1}, v{vT1}, 3, s{sT0}")
e("s_waitcnt lgkmcnt(0)")
e(f"ds_write_b32 v{vFW}, v{vFV}")
e(f"ds_read_b64 v[{vT4}:{vT5}], v{vT1} offset:4096")
for i in range(4):
    e(f"ds_read_b128 v[{vKF+4*i}:{vKF+4*i+3}], v{vT0} offset:{1024*i}")
e(f"s_cmp_eq_u32 s{sPLN}, 2")
e("s_waitcnt lgkmcnt(0)")
e("s_cbranch_scc1 L_c_mfin")
e(f"v_sub_f32 v{vT4}, v{vT4}, v{vM}")
e(f"v_cmp_nge_f32 vcc, 0x41800000, v{vT4}")
e(f"s_mov_b32 s{sMRG}, 2")
e("s_nop 3")
e("s_cbranch_vccnz L_v_top3")
e("s_branch L_c_madd")
lab("L_c_mfin")
e(f"v_max_f32 v{vMN}, v{vM}, v{vT4}")
e(f"v_sub_f32 v{vAL}, v{vM}, v{vMN}")
e(f"v_sub_f32 v{vT4}, v{vT4}, v{vMN}")
e(f"v_exp_f32 v{vAL}, v{vAL}")
e("s_nop 0")
e(f"v_mul_f32 v{vLS}, v{vLS}, v{vAL}")
scale_o(vAL)
lab("L_c_madd")
e(f"v_exp_f32 v{vT4}, v{vT4}")
e(f"s_mov_b32 s{sMRG}, 0")
e(f"v_mul_f32 v{vT4}, v{vT4}, v{vT5}")
e(f"v_fmac_f32 v{vLS}, 0x3e800000, v{vT4}")
for r in range(16):
    t = vKF + 16 + 2 * (r % 4)
    e(f"v_lshlrev_b32 v{t}, 16, v{vKF+r}")
    e(f"v_and_b32 v{t+1}, 0xffff0000, v{vKF+r}")
    e(f"v_pk_fma_f32 v[{vO+2*r}:{vO+2*r+1}], v[{t}:{t+1}], v[{vT4}:{vT4+1}], v[{vO+2*r}:{vO+2*r+1}] op_sel_hi:[1,0,1]")
e(f"s_cmp_eq_u32 s{sPLN}, 2")
e("s_cbranch_scc1 L_c_store")
if a.last: inv_pre()
e("s_branch L_v_top3")
lab("L_c_mwait0")
e(f"s_mov_b32 s{sPLN}, 2")
lab("L_c_mwait")
e(f"ds_read_b64 v[{vPL}:{vPL+1}], v{vPA}")
e("s_waitcnt lgkmcnt(0)")
e(f"v_readfirstlane_b32 s{sMBF}, v{vPL+1}")
e(f"s_cmp_lg_u32 s{sMBF}, 0")
e("s_cbranch_scc1 L_c_merge")
spin_tail("L_c_mwait")

def ws_base(sb):
    e(f"s_lshl3_add_u32 s{sT0}, s{sb}, s{sH}")
    e(f"s_lshl_b32 s{sT0}, s{sT0}, 9")
    if WS0: e(f"s_add_u32 s{sT0}, s{sT0}, {WS0}")

lab("L_publish")
if "nopub" in DBG: e("s_endpgm")
e(f"v_lshl_add_u32 v{vT2}, v{vLANE}, 4, s{sQO}")
e(f"s_lshl_b32 s{sT2}, s{sPB}, 2")
e(f"v_mov_b32 v{vT3}, s{sT2}")
e(f"v_lshlrev_b32 v{vT4}, 1, v{vT3}")
e(f"v_add_u32 v{vT4}, {CTRL+68}, v{vT4}")
e(f"ds_read_b32 v{vT4}, v{vT4}")
ws_base(sPB)
e(f"s_lshl2_add_u32 s{sT1}, s{sCI}, s{sT0}")
e(f"v_mov_b32 v{vT5}, s{sT1}")
e(f"s_lshl_b32 s{sT1}, s{sCI}, 7")
e(f"s_add_u32 s{sT0}, s{sT0}, s{sT1}")
e(f"v_lshl_add_u32 v{vT1}, v{vLANE}, 3, s{sT0}")
e(f"s_getreg_b32 s{sT2}, hwreg(HW_REG_XCC_ID, 0, 4)")
e(f"s_lshl_b32 s{sT2}, s{sT2}, 4")
e(f"s_or_b32 s{sT2}, s{sT2}, s{sH}")
e(f"s_or_b32 s{sT2}, s{sT2}, 0x100")
e("s_waitcnt lgkmcnt(0)")
e(f"v_readfirstlane_b32 s{sT1}, v{vT4}")
e(f"s_lshr_b32 s{sT1}, s{sT1}, 16")
e(f"s_cmp_eq_u32 s{sT1}, s{sT2}")
e("s_cbranch_scc1 L_pub_fast")
e(f"global_load_dword v{vT4}, v{vT3}, s[{sDBG}:{sDBG+1}] offset:128 sc1")
e("s_waitcnt vmcnt(0)")
e(f"v_readfirstlane_b32 s{sT1}, v{vT4}")
e(f"s_lshr_b32 s{sT1}, s{sT1}, 16")
e(f"s_cmp_eq_u32 s{sT1}, s{sT2}")
e("s_cbranch_scc0 L_pub_slow")
lab("L_pub_fast")
c("the receiver runs on this die and has cleared its flag words: hand over inside the shared L2")
out_stores(" " + a.pst if a.pst else "", 1024)
e("s_mov_b64 exec, 0xffff")
e(f"global_store_dwordx2 v{vT1}, v[{vM}:{vM+1}], s[{sWS}:{sWS+1}]")
e(f"v_mov_b32 v{vT4}, 1")
e("s_waitcnt vmcnt(0)")
e("s_mov_b64 exec, 1")
e(f"global_store_dword v{vT5}, v{vT4}, s[{sWS}:{sWS+1}] offset:256")
e(FIN)
lab("L_pub_slow")
c("any other placement: write through to memory, then set a bit with a device-wide atomic")
out_stores(" sc1", 1024)
e("s_mov_b64 exec, 0xffff")
e(f"global_store_dwordx2 v{vT1}, v[{vM}:{vM+1}], s[{sWS}:{sWS+1}] sc1")
e(f"s_lshl1_add_u32 s{sT1}, s{sH}, s{sCI}")
e(f"s_lshl_b32 s{sT1}, 1, s{sT1}")
e(f"v_mov_b32 v{vT4}, s{sT1}")
e("s_waitcnt vmcnt(0)")
e("s_mov_b64 exec, 1")
e(f"global_atomic_add v{vT3}, v{vT4}, s[{sDBG}:{sDBG+1}]")
e(FIN)

vRW = vL
vKEY, vRK = 19, 20
lab("L_ctl0")
if a.skew:
    c("dies are not started at the same instant: the first eight workgroups post when they started")
    e(f"s_memrealtime s[{sMA}:{sMA+1}]")
    e(f"s_lshl2_add_u32 s{sT0}, s{sH}, 2")
    e(f"v_mov_b32 v{vT4}, s{sT0}")
    e(f"s_cmp_lg_u32 s{sB}, 0")
    e("s_waitcnt lgkmcnt(0)")
    e("s_cbranch_scc1 L_ctl1")
    e(f"s_or_b32 s{sT0}, s{sMA}, 0x8000")
    e(f"v_mov_b32 v{vT5}, s{sT0}")
    e("s_mov_b64 exec, 1")
    e(f"global_store_short v{vT4}, v{vT5}, s[{sDBG}:{sDBG+1}] sc1")
    e("s_mov_b64 exec, -1")
    lab("L_ctl1")
e("s_barrier")
e("s_branch L_ctl")
lab("L_planner")
e(f"s_cmp_eq_u32 s{sW}, 5")
e("s_cbranch_scc1 L_ctl0")
e(f"s_sub_u32 s{sCI}, s{sW}, 3")
e(f"s_lshl_b32 s{sSB}, s{sCI}, 8")
e(f"s_add_u32 s{sSB}, s{sSB}, {CNT}")
e(f"v_lshl_add_u32 v{vPA}, v{vLANE}, 2, s{sSB}")
e(f"s_lshl_b32 s{sT2}, s{sCI}, 7")
e(f"s_add_u32 s{sT2}, s{sT2}, {KEYS}")
e(f"v_add_u32 v{vT3}, s{sT2}, v{vT3}")
e(f"v_lshrrev_b32 v{vT4}, 5, v{vLANE}")
e(f"v_lshl_add_u32 v{vT4}, v{vT4}, 6, s{sT2}")
e(f"v_mov_b32 v{vT5}, 2048")
e("s_barrier")
e("s_waitcnt vmcnt(0)")
e(f"v_cmp_gt_i32 s[{sZQ}:{sZQ+1}], 1, v{vN}")
e(f"v_min_i32 v{vN}, v{vN}, v{vT5}")
e("s_nop 0")
e(f"v_cndmask_b32 v{vN}, v{vN}, v{vT5}, s[{sZQ}:{sZQ+1}]")
e(f"v_add_u32 v{vN}, 15, v{vN}")
e(f"v_lshrrev_b32 v{vN}, 4, v{vN}")
e(f"v_lshl_or_b32 v{vKEY}, v{vN}, 5, v{vT0}")
e(f"ds_write_b32 v{vT3}, v{vKEY}")
for i in range(4):
    e(f"ds_read_b128 v[{vKF+4*i}:{vKF+4*i+3}], v{vT4} offset:{16*i}")
e(f"v_mov_b32 v{vRK}, 0")
e(f"v_readlane_b32 s{sNB}, v{vN}, s{sB}")
e("s_waitcnt lgkmcnt(0)")
c("rank of every batch by block count; the batch of rank 31-r is the partner")
for i in range(16):
    e(f"v_sub_u32 v{vKF+i}, v{vKF+i}, v{vKEY}")
for i in range(16):
    e(f"v_alignbit_b32 v{vRK}, v{vRK}, v{vKF+i}, 31")
e(f"v_bcnt_u32_b32 v{vRK}, v{vRK}, 0")
e(f"v_mov_b32 v{vT2}, v{vRK}")
derive_nb()
e(f"v_permlane32_swap_b32 v{vRK}, v{vT2}")
e("s_nop 0")
e(f"v_add_u32 v{vRK}, v{vRK}, v{vT2}")
e("s_nop 0")
e(f"v_readlane_b32 s{sRK}, v{vRK}, s{sB}")
e(f"s_sub_u32 s{sT0}, 31, s{sRK}")
e(f"v_cmp_eq_u32 vcc, s{sT0}, v{vRK}")
e(f"s_ff1_i32_b32 s{sPB}, vcc_lo")
e(f"v_readlane_b32 s{sNP}, v{vN}, s{sPB}")
e(f"s_max_u32 s{sT0}, s{sNB}, s{sNP}")
e(f"s_min_u32 s{sT1}, s{sNB}, s{sNP}")
e(f"s_sub_u32 s{sX}, s{sT0}, s{sT1}")
e(f"s_add_u32 s{sX}, s{sX}, 2")
e(f"s_lshr_b32 s{sX}, s{sX}, 2")
e(f"s_cmp_lt_u32 s{sT0}, {4*NUM+8}")
e(f"s_cselect_b32 s{sX}, 0, s{sX}")
if a.nopair: e(f"s_mov_b32 s{sX}, 0")
e(f"s_cmp_ge_u32 s{sRK}, 16")
e(f"s_cselect_b32 s{sLO}, s{sX}, 0")
e(f"s_cselect_b32 s{sTB}, 0, s{sX}")
e(f"s_cmp_eq_u32 s{sCI}, 0")
e("s_cbranch_scc1 L_pl_norow")
e(f"s_lshl_b32 s{sT0}, s{sPB}, 9")
e(f"v_lshl_add_u32 v{vT1}, v{vLANE}, 3, s{sT0}")
e(f"global_load_dwordx2 v[{vRW}:{vRW+1}], v{vT1}, s[{sBT}:{sBT+1}]")
lab("L_pl_norow")
e(f"s_sub_u32 s{sTA}, s{sNTL}, s{sLO}")
e(f"s_add_u32 s{sT}, s{sTA}, s{sTB}")
e(f"s_mul_i32 s{sF}, s{sT}, {a.fnum}")
e(f"s_lshr_b32 s{sF}, s{sF}, 6")
e(f"s_min_u32 s{sWB}, s{sTA}, {a.UB}")
e(f"s_sub_i32 s{sF}, s{sF}, s{sWB}")
e(f"s_max_i32 s{sF}, s{sF}, s{sTB}")
e(f"s_max_i32 s{sF}, s{sF}, 1")
e(f"v_cvt_f32_u32 v{vT2}, s{sF}")
e(f"v_subrev_u32 v{vT3}, s{sWB}, v{vLANE}")
e(f"v_rcp_f32 v{vT2}, v{vT2}")
e(f"v_mul_i32_i24 v{vT4}, s{sTB}, v{vT3}")
e(f"v_add_u32 v{vT5}, s{sTB}, v{vT4}")
e(f"v_cvt_f32_i32 v{vT4}, v{vT4}")
e(f"v_cvt_f32_i32 v{vT5}, v{vT5}")
e(f"v_add_f32 v{vT4}, 0.5, v{vT4}")
e(f"v_add_f32 v{vT5}, 0.5, v{vT5}")
e(f"v_mul_f32 v{vT4}, v{vT4}, v{vT2}")
e(f"v_mul_f32 v{vT5}, v{vT5}, v{vT2}")
e(f"v_floor_f32 v{vT4}, v{vT4}")
e(f"v_floor_f32 v{vT5}, v{vT5}")
e(f"v_cmp_gt_u32 vcc, s{sF}, v{vT3}")
e(f"v_cmp_gt_f32 s[{sMBK}:{sMBK+1}], v{vT5}, v{vT4}")
e(f"s_sub_u32 s{sT0}, s{sT}, s{sNU}")
e(f"v_subrev_u32 v{vT3}, s{sNU}, v{vLANE}")
e(f"v_cmp_gt_u32 s[{sMA}:{sMA+1}], s{sT0}, v{vT3}")
e(f"s_and_b64 s[{sMBK}:{sMBK+1}], s[{sMBK}:{sMBK+1}], vcc")
e(f"s_andn2_b64 s[{sMA}:{sMA+1}], s[{sMA}:{sMA+1}], s[{sMBK}:{sMBK+1}]")
c(f"own tiles to sort: logical [NU+given, ntile); donated: the partner's logical [{NUM}, {NUM}+TB)")
mfirst = a.mfirst and not a.nosort
if mfirst:
    e(f"s_ff1_i32_b64 s{sT2}, s[{sMA}:{sMA+1}]")
else:
    e(f"s_flbit_i32_b64 s{sT2}, s[{sMA}:{sMA+1}]")
    e(f"s_sub_u32 s{sT2}, 63, s{sT2}")
e(f"s_lshl_b32 s{sT2}, s{sT2}, 8")
e(f"s_or_b32 s{sWB}, s{sT2}, 1")
e(f"s_min_u32 s{sMRG}, s{sLO}, 1")
SM = [int(x) for x in a.smart.split(",")] if a.smart else None
sV0M, sV1M, sCM, sD2, sCN = 72, 74, 76, 78, 79
if SM:
    e(f"s_lshl_b32 s{sD2}, s{sLO}, 1")
    e(f"s_sub_u32 s{sCN}, s{sNTL}, {NUM+1}")
    e(f"s_mov_b32 s{sLO}, 0")
e(f"s_add_u32 s{sLO}, s{sLO}, s{sNU}")
e(f"s_sub_u32 s{sHI}, s{sNTL}, s{sLO}")
e(f"s_sub_u32 s{sT3}, s{sNTL}, 1")
e(f"s_mov_b32 s{sLBASE}, {LA}")
e(f"s_cmp_eq_u32 s{sCI}, 0")
e("s_cbranch_scc1 L_pl_a")
e(f"s_mov_b32 s{sLO}, {NUM}")
e(f"s_mov_b32 s{sHI}, s{sTB}")
e(f"s_mov_b32 s{sT3}, -1")
if SM:
    e(f"s_lshl_b32 s{sD2}, s{sTB}, 1")
    e(f"s_add_u32 s{sCN}, s{sNP}, 1")
    e(f"s_lshr_b32 s{sCN}, s{sCN}, 1")
    e(f"s_sub_u32 s{sCN}, s{sCN}, {NUM+1}")
e(f"s_mov_b32 s{sLBASE}, {LB}")
e(f"s_mov_b64 s[{sMA}:{sMA+1}], s[{sMBK}:{sMBK+1}]")
e("s_branch L_pl_sort")
lab("L_pl_a")
e(f"s_lshl_b32 s{sT0}, s{sT}, 8")
e(f"s_or_b32 s{sT0}, s{sT0}, s{sMRG}")
e(f"v_mov_b32 v{vT2}, s{sMA}")
e(f"v_mov_b32 v{vT3}, s{sMA+1}")
e(f"v_mov_b32 v{vT4}, s{sT0}")
e(f"v_mov_b32 v{vT5}, s{sWB}")
e(f"v_mov_b32 v{vT1}, {REC0}")
e(f"ds_write_b128 v{vT1}, v[{vT2}:{vT5}]")
lab("L_pl_sort")
e(f"v_subrev_u32 v{vT0}, s{sLO}, v{vLANE}")
e(f"v_cmp_gt_u32 vcc, s{sHI}, v{vT0}")
e(f"v_mov_b32 v{vT5}, 1")
e("s_waitcnt vmcnt(0)")
if SM:
    c("blocks to hand over: the first 2x candidates lying in the part of memory swept while the helper works on them")
    e(f"s_mov_b64 s[{sV0M}:{sV0M+1}], 0")
    e(f"s_mov_b64 s[{sV1M}:{sV1M+1}], 0")
    e(f"s_cmp_eq_u32 s{sD2}, 0")
    e("s_cbranch_scc1 L_pl_nod")
    e(f"s_movk_i32 s{sT0}, {SM[1]-SM[0]}")
    e(f"v_subrev_u32 v{vT2}, {SM[0]}, v{vRW}")
    e(f"v_subrev_u32 v{vT3}, {SM[0]}, v{vRW+1}")
    e(f"s_bfm_b64 s[{sCM}:{sCM+1}], s{sCN}, {NUM}")
    e(f"v_cmp_gt_u32 s[{sV0M}:{sV0M+1}], s{sT0}, v{vT2}")
    e(f"v_cmp_gt_u32 s[{sV1M}:{sV1M+1}], s{sT0}, v{vT3}")
    e(f"s_and_b64 s[{sV0M}:{sV0M+1}], s[{sV0M}:{sV0M+1}], s[{sCM}:{sCM+1}]")
    e(f"s_and_b64 s[{sV1M}:{sV1M+1}], s[{sV1M}:{sV1M+1}], s[{sCM}:{sCM+1}]")
    e(f"s_bcnt1_i32_b64 s{sT0}, s[{sV0M}:{sV0M+1}]")
    e(f"s_bcnt1_i32_b64 s{sT1}, s[{sV1M}:{sV1M+1}]")
    e(f"s_add_u32 s{sT1}, s{sT1}, s{sT0}")
    e(f"s_cmp_lt_u32 s{sT1}, s{sD2}")
    e(f"s_cselect_b64 s[{sV0M}:{sV0M+1}], s[{sCM}:{sCM+1}], s[{sV0M}:{sV0M+1}]")
    e(f"s_cselect_b64 s[{sV1M}:{sV1M+1}], s[{sCM}:{sCM+1}], s[{sV1M}:{sV1M+1}]")
    e(f"s_cselect_b32 s{sT0}, s{sCN}, s{sT0}")
    e(f"v_mbcnt_lo_u32_b32 v{vT2}, s{sV0M}, 0")
    e(f"v_mbcnt_lo_u32_b32 v{vT3}, s{sV1M}, 0")
    e(f"v_mbcnt_hi_u32_b32 v{vT2}, s{sV0M+1}, v{vT2}")
    e(f"v_mbcnt_hi_u32_b32 v{vT3}, s{sV1M+1}, v{vT3}")
    e(f"s_sub_u32 s{sT0}, s{sD2}, s{sT0}")
    e(f"v_cmp_gt_i32 s[{sCM}:{sCM+1}], s{sD2}, v{vT2}")
    e(f"s_and_b64 s[{sV0M}:{sV0M+1}], s[{sV0M}:{sV0M+1}], s[{sCM}:{sCM+1}]")
    e(f"v_cmp_gt_i32 s[{sCM}:{sCM+1}], s{sT0}, v{vT3}")
    e(f"s_and_b64 s[{sV1M}:{sV1M+1}], s[{sV1M}:{sV1M+1}], s[{sCM}:{sCM+1}]")
    lab("L_pl_nod")
    e(f"s_cmp_lg_u32 s{sCI}, 0")
    e("s_cbranch_scc1 L_pl_val")
    e(f"s_andn2_b64 s[{sV0M}:{sV0M+1}], vcc, s[{sV0M}:{sV0M+1}]")
    e(f"s_andn2_b64 s[{sV1M}:{sV1M+1}], vcc, s[{sV1M}:{sV1M+1}]")
    lab("L_pl_val")
X0 = f"s[{sV0M}:{sV0M+1}]" if SM else "vcc"
X1 = f"s[{sV1M}:{sV1M+1}]"
if a.nosort:
    e(f"v_lshlrev_b32 v{vT2}, 1, v{vT0}")
    e(f"v_add_u32 v{vT3}, 1, v{vT2}")
else:
    c("counting sort of the block ids into 64 buckets of ascending physical address")
    e(f"v_lshrrev_b32 v{vT0}, 6, v{vRW}")
    e(f"v_lshrrev_b32 v{vT1}, 6, v{vRW+1}")
    e(f"v_cmp_eq_u32 s[{sRK+2}:{sRK+3}], s{sT3}, v{vLANE}")
    if mfirst:
        e(f"v_med3_u32 v{vT0}, v{vT0}, 1, 63")
        e(f"v_med3_u32 v{vT1}, v{vT1}, 1, 63")
    else:
        e(f"v_min_u32 v{vT0}, 62, v{vT0}")
        e(f"v_min_u32 v{vT1}, 62, v{vT1}")
    fb = 0 if mfirst else 63
    e(f"v_cndmask_b32 v{vT0}, v{vT0}, {fb}, s[{sRK+2}:{sRK+3}]")
    e(f"v_cndmask_b32 v{vT1}, v{vT1}, {fb}, s[{sRK+2}:{sRK+3}]")
    e(f"v_lshlrev_b32 v{vT0}, 2, v{vT0}")
    e(f"v_lshlrev_b32 v{vT1}, 2, v{vT1}")
    e(f"v_add_u32 v{vKF}, s{sSB}, v{vT0}")
    e(f"v_add_u32 v{vKF+1}, s{sSB}, v{vT1}")
    e(f"s_mov_b64 exec, {X0}")
    e(f"ds_add_rtn_u32 v{vT2}, v{vKF}, v{vT5}")
    if SM: e(f"s_mov_b64 exec, {X1}")
    e(f"ds_add_rtn_u32 v{vT3}, v{vKF+1}, v{vT5}")
    e("s_mov_b64 exec, -1")
    e(f"ds_read_b32 v{vT4}, v{vPA}")
    e("s_waitcnt lgkmcnt(0)")
    e(f"v_mov_b32 v{vKF+2}, v{vT4}")
    for sh in (1, 2, 4, 8):
        e("s_nop 1")
        e(f"v_add_u32_dpp v{vT4}, v{vT4}, v{vT4} row_shr:{sh} row_mask:0xf bank_mask:0xf bound_ctrl:0")
    e("s_nop 1")
    e(f"v_add_u32_dpp v{vT4}, v{vT4}, v{vT4} row_bcast:15 row_mask:0xa bank_mask:0xf")
    e("s_nop 1")
    e(f"v_add_u32_dpp v{vT4}, v{vT4}, v{vT4} row_bcast:31 row_mask:0xc bank_mask:0xf")
    e(f"v_sub_u32 v{vT4}, v{vT4}, v{vKF+2}")
    e(f"ds_bpermute_b32 v{vT0}, v{vT0}, v{vT4}")
    e(f"ds_bpermute_b32 v{vT1}, v{vT1}, v{vT4}")
    e("s_waitcnt lgkmcnt(0)")
    e(f"v_add_u32 v{vT2}, v{vT2}, v{vT0}")
    e(f"v_add_u32 v{vT3}, v{vT3}, v{vT1}")
e(f"v_lshlrev_b32 v{vRW}, 15, v{vRW}")
e(f"v_lshlrev_b32 v{vRW+1}, 15, v{vRW+1}")
e(f"v_lshl_add_u32 v{vT2}, v{vT2}, 2, s{sLBASE}")
e(f"v_lshl_add_u32 v{vT3}, v{vT3}, 2, s{sLBASE}")
e(f"s_mov_b64 exec, {X0}")
e(f"ds_write_b32 v{vT2}, v{vRW}")
if SM: e(f"s_mov_b64 exec, {X1}")
e(f"ds_write_b32 v{vT3}, v{vRW+1}")
e("s_mov_b64 exec, -1")
c("place the sorted tiles at their stream positions; flags: 1 valid, 2 masked, 4 last of batch, 8 last of stream")
e(f"v_mbcnt_lo_u32_b32 v{vT0}, s{sMA}, 0")
e(f"v_mbcnt_hi_u32_b32 v{vT0}, s{sMA+1}, v{vT0}")
e(f"v_lshl_add_u32 v{vT0}, v{vT0}, 3, s{sLBASE}")
e(f"ds_read_b64 v[{vT2}:{vT3}], v{vT0}")
e(f"s_lshr_b32 s{sT0}, s{sWB}, 8")
e(f"s_sub_u32 s{sT1}, s{sT}, 1")
e(f"v_cmp_eq_u32 vcc, s{sT0}, v{vLANE}")
e(f"v_cmp_eq_u32 s[{sRK+2}:{sRK+3}], s{sT1}, v{vLANE}")
e(f"v_cmp_eq_u32 s[{sT2}:{sT2+1}], {G-1}, v{vLANE}")
e(f"v_cndmask_b32 v{vT4}, 1, 3, vcc")
e(f"v_cndmask_b32 v{vT5}, 0, 12, s[{sRK+2}:{sRK+3}]")
e(f"v_cndmask_b32 v{vT1}, 0, 4, s[{sT2}:{sT2+1}]")
e(f"v_or3_b32 v{vT4}, v{vT4}, v{vT5}, v{vT1}")
if TR:
    e(f"s_sub_u32 s{sT1}, s{sT}, {TR[0]}")
    e(f"v_cmp_le_i32 vcc, s{sT1}, v{vLANE}")
    e("s_nop 1")
    e(f"v_cndmask_b32 v{vT5}, 0, 16, vcc")
    e(f"v_or_b32 v{vT4}, v{vT4}, v{vT5}")
e(f"v_lshlrev_b32 v{vT0}, 3, v{vLANE}")
e(f"v_add_u32 v{vT0}, {SL}, v{vT0}")
e("s_waitcnt lgkmcnt(0)")
e(f"v_or_b32 v{vT2}, v{vT2}, v{vT4}")
e(f"s_mov_b64 exec, s[{sMA}:{sMA+1}]")
e(f"ds_write_b64 v{vT0}, v[{vT2}:{vT3}]")
e("s_mov_b64 exec, -1")
lab("L_pl_done")
e(f"s_cmp_lg_u32 s{sMRG}, 0")
e("s_cbranch_scc1 L_fetch")
e(f"s_cmp_eq_u32 s{sTB}, 0")
e("s_cbranch_scc1 L_fin")
c("become the consumer of the donated tiles")
load_q(sPB)
e(f"s_mov_b64 s[{sMALL}:{sMALL+1}], s[{sMBK}:{sMBK+1}]")
e(f"s_mov_b32 s{sM}, s{sMBK}")
e(f"s_and_b32 s{sM+1}, s{sMBK+1}, {RHI:#x}")
e(f"s_mov_b32 s{sTTC}, s{sT}")
e(f"s_min_u32 s{sTB1}, s{sT}, {G}")
e(f"s_mov_b32 s{sROLE}, 1")
e(f"s_mov_b32 s{sPLN}, 1")
e(f"s_lshr_b32 s{sT3}, s{sZQ}, s{sPB}")
e(f"s_and_b32 s{sT3}, s{sT3}, 1")
e("s_branch L_csetup")

lab("L_fetch")
e(f"s_cmp_lg_u32 s{sCI}, 0")
e("s_cbranch_scc1 L_fin")
rows_off(sB)
if a.otouch >= 0:
    c("make the lines that will carry the partial valid in L2 (a later read of write-only lines would go to memory)")
    e(f"v_lshl_add_u32 v{vT4}, v{vLANE}, 7, s{sQO}")
    e(f"global_load_dword v{vPF}, v{vT4}, s[{sOUT}:{sOUT+1}] {a.ofl.replace('+', ' ')}")
ws_base(sB)
e(f"v_lshl_add_u32 v{vT1}, v{vT0}, 3, s{sT0}")
e(f"v_mov_b32 v{vFW}, s{sT0}")
e(f"s_lshl_b32 s{sT2}, s{sB}, 2")
e(f"v_mov_b32 v{vT2}, s{sT2}")
e(f"v_mov_b32 v{vPA}, {CTRL+16}")
e("s_mov_b64 exec, 1")
e(f"s_mul_i32 s{sNEED}, s{sT}, {a.pollnum}")
e(f"s_lshr_b32 s{sNEED}, s{sNEED}, 5")
e(f"s_lshl_b32 s{sT3}, s{sH}, 1")
e(f"s_mov_b32 s{sMBF}, 0")
c("wait until wave 5 has cleared the flag words and the stream is far enough")
lab("L_f_wait")
e(f"ds_read_b64 v[{vPL}:{vPL+1}], v{vPA}")
e("s_waitcnt lgkmcnt(0)")
e(f"v_readfirstlane_b32 s{sLND}, v{vPL}")
e(f"v_readfirstlane_b32 s{sT0}, v{vPL+1}")
e(f"s_cmp_ge_i32 s{sLND}, s{sNEED}")
e(f"s_cselect_b32 s{sT0}, s{sT0}, 0")
e(f"s_cmp_lg_u32 s{sT0}, 0")
e("s_cbranch_scc1 L_f_poll")
spin_tail("L_f_wait", 8)
lab("L_f_poll")
if "nopoll" in DBG: e("s_branch L_f_got")
e(f"global_load_dwordx2 v[{vPL}:{vPL+1}], v{vFW}, s[{sWS}:{sWS+1}] offset:256 sc1")
e(f"s_add_u32 s{sMBF}, s{sMBF}, 1")
e(f"s_and_b32 s{sT0}, s{sMBF}, 3")
e(f"s_mov_b32 s{sT2}, 0")
e("s_cbranch_scc1 L_f_nodbg")
e(f"global_load_dword v{vT3}, v{vT2}, s[{sDBG}:{sDBG+1}] sc1")
e("s_waitcnt vmcnt(0)")
e(f"v_readfirstlane_b32 s{sT2}, v{vT3}")
e(f"s_lshr_b32 s{sT2}, s{sT2}, s{sT3}")
lab("L_f_nodbg")
e("s_waitcnt vmcnt(0)")
e(f"v_lshl_or_b32 v{vPL}, v{vPL+1}, 1, v{vPL}")
e("s_nop 0")
e(f"v_readfirstlane_b32 s{sT0}, v{vPL}")
e(f"s_or_b32 s{sT0}, s{sT0}, s{sT2}")
e(f"s_and_b32 s{sT0}, s{sT0}, 3")
e(f"s_cmp_eq_u32 s{sT0}, 3")
e("s_cbranch_scc1 L_f_got")
spin_tail("L_f_poll", a.psleep)
lab("L_f_got")
e("s_mov_b64 exec, -1")
c("a half that came through memory: acquire at device scope before reading it")
e(f"s_and_b32 s{sT2}, s{sT2}, 3")
e("s_cbranch_scc0 L_f_ld")
e("buffer_inv sc1")
e("s_waitcnt vmcnt(0)")
lab("L_f_ld")
e(f"v_lshl_add_u32 v{vT4}, v{vLANE}, 4, s{sQO}")
e(f"v_add_u32 v{vT5}, 4096, v{vT4}")
FLD = " " + a.fld if a.fld != "none" else ""
for cc in range(2):
    if "nofetch" in DBG:
        e(f"v_mov_b32 v{vM+2*cc}, 0"); e(f"v_mov_b32 v{vM+2*cc+1}, 0")
        continue
    e(f"global_load_dwordx2 v[{vM+2*cc}:{vM+2*cc+1}], v{vT1}, s[{sWS}:{sWS+1}] offset:{128*cc}{FLD}")
    for j in range(4):
        r = vKF + 16 * cc + 4 * j
        e(f"global_load_dwordx4 v[{r}:{r+3}], v{vT4+cc}, s[{sOUT}:{sOUT+1}] offset:{1024*j}{FLD}")
e(f"v_lshlrev_b32 v{vT2}, 4, v{vLANE}")
e(f"v_add_u32 v{vT2}, {MB}, v{vT2}")
e(f"v_lshlrev_b32 v{vT0}, 3, v{vT0}")
e(f"v_add_u32 v{vT0}, {MB}, v{vT0}")
e(f"v_mov_b32 v{vPL}, {CTRL+4}")
e(f"v_mov_b32 v{vT3}, 1")
for cc in range(2):
    e(f"s_waitcnt vmcnt({5-5*cc})")
    for j in range(4):
        r = vKF + 16 * cc + 4 * j
        e(f"ds_write_b128 v{vT2}, v[{r}:{r+3}] offset:{MBS*cc + 1024*j}")
    e(f"ds_write_b64 v{vT0}, v[{vM+2*cc}:{vM+2*cc+1}] offset:{MBS*cc + 4096}")
    e(f"ds_write_b32 v{vPL}, v{vT3} offset:{8*cc}")
e(FIN)

c("wave 5: workgroups that share an L2 post their remaining work; one that lags prefetches deeper")
lab("L_ctl")
e(f"v_mov_b32 v{vT1}, {REC0}")
e(f"v_mov_b32 v{vPA}, {CTRL+32}")
e(f"v_mov_b32 v{vFW}, {DEPW}")
e(f"s_lshl_b32 s{sT0}, s{sB}, 2")
e(f"v_mov_b32 v{vG}, s{sT0}")
e(f"v_mov_b32 v{vFV}, v{vT3}")
lo = sum((XT[i] & 255) << (8 * i) for i in range(4)); hi = sum((XT[4 + i] & 255) << (8 * i) for i in range(4))
e(f"s_getreg_b32 s{sT0}, hwreg(HW_REG_XCC_ID, 0, 3)")
e(f"s_mov_b32 s{sM}, {lo:#x}")
e(f"s_mov_b32 s{sM+1}, {hi:#x}")
e(f"s_lshl_b32 s{sT0}, s{sT0}, 3")
e(f"s_lshr_b64 s[{sM}:{sM+1}], s[{sM}:{sM+1}], s{sT0}")
e(f"s_sext_i32_i8 s{sBO}, s{sM}")
lab("L_g_plan")
e(f"ds_read_b128 v[{vT2}:{vT5}], v{vT1}")
e("s_waitcnt lgkmcnt(0)")
e(f"v_readfirstlane_b32 s{sT0}, v{vT5}")
e(f"v_readfirstlane_b32 s{sT}, v{vT4}")
e(f"s_cmp_lg_u32 s{sT0}, 0")
e("s_cbranch_scc1 L_g_go")
spin_tail("L_g_plan", 8)
lab("L_g_go")
e(f"s_and_b32 s{sMRG}, s{sT}, 1")
e("s_cbranch_scc0 L_g_nores")
c("a partial is expected: clear its flag words before anything is posted")
ws_base(sB)
e(f"v_mov_b32 v{vT0}, s{sT0}")
e(f"v_mov_b32 v{vT2}, 0")
e(f"v_mov_b32 v{vT3}, 0")
e(f"v_mov_b32 v{vT4}, {CTRL+20}")
e(f"v_mov_b32 v{vT5}, 1")
e("s_mov_b64 exec, 1")
e(f"global_store_dwordx2 v{vT0}, v[{vT2}:{vT3}], s[{sWS}:{sWS+1}] offset:256")
e("s_waitcnt vmcnt(0)")
e(f"ds_write_b32 v{vT4}, v{vT5}")
e("s_mov_b64 exec, -1")
lab("L_g_nores")
e(f"s_and_b32 s{sT0}, s{sDBG}, 127")
e("s_cbranch_scc1 L_fin")
c("posted word: remaining units + 1 | head << 16 | die << 20 | flags cleared << 24")
e(f"s_getreg_b32 s{sFB}, hwreg(HW_REG_XCC_ID, 0, 4)")
e(f"s_lshl4_add_u32 s{sFB}, s{sMRG}, s{sFB}")
e(f"s_lshl4_add_u32 s{sFB}, s{sFB}, s{sH}")
e(f"s_lshl_b32 s{sFB}, s{sFB}, 16")
e(f"s_lshr_b32 s{sT}, s{sT}, 8")
e(f"s_lshl1_add_u32 s{sTN}, s{sT}, 1")
e(f"v_lshlrev_b32 v{vT1}, 1, v{vFV}")
e(f"v_add_u32 v{vT1}, {CTRL+68}, v{vT1}")
e(f"v_mov_b32 v{vT2}, s{sFB}")
e("s_mov_b64 exec, 1")
e(f"global_store_dword v{vG}, v{vT2}, s[{sDBG}:{sDBG+1}] offset:128")
e("s_mov_b64 exec, -1")
if "v" in a.tlb: e(f"global_load_dword v{vPF}, v{vTL}, s[{sV}:{sV+1}] nt")
if "prog2" in DBG: e("v_mov_b32 v50, 0")
if a.skew:
    e(f"s_mov_b32 s{sNEED}, 3")
    e(f"s_cmp_lt_u32 s{sT}, 8")
    e("s_cbranch_scc1 L_fin")
    lab("L_g_sw")
    e(f"ds_read_b32 v{vPL}, v{vPA}")
    e("s_waitcnt lgkmcnt(0)")
    e(f"v_readfirstlane_b32 s{sLND}, v{vPL}")
    e(f"s_cmp_ge_i32 s{sLND}, s{sNEED}")
    e("s_cbranch_scc1 L_g_sa")
    spin_tail("L_g_sw", 1)
    lab("L_g_sa")
    e(f"global_load_dword v{vT0}, v{vFV}, s[{sDBG}:{sDBG+1}] sc1")
    e("s_waitcnt vmcnt(0)")
    e(f"v_cmp_gt_i32 vcc, 0, v{vT0}")
    e(f"v_lshrrev_b32 v{vT0}, 16, v{vT0}")
    e(f"v_sub_u32 v{vT0}, s{sMA}, v{vT0}")
    e(f"v_bfe_i32 v{vT0}, v{vT0}, 0, 15")
    e(f"v_cndmask_b32 v{vT0}, 0, v{vT0}, vcc")
    for sh in (1, 2, 4):
        e("s_nop 1")
        op = "v_max_i32_dpp" if "ampmax" in DBG else "v_add_u32_dpp"
        e(f"{op} v{vT0}, v{vT0}, v{vT0} row_shr:{sh} row_mask:0xf bank_mask:0xf bound_ctrl:0")
    e("s_nop 0")
    e(f"v_readlane_b32 s{sT0}, v{vT0}, 7")
    if "ampmax" in DBG or "ampmean" in DBG:
        e(f"s_mul_i32 s{sMBK}, s{sT0}, {20 if 'ampmax' in DBG else 3}")
        e(f"s_max_i32 s{sMBK}, s{sMBK}, 0")
        e(f"s_add_u32 s{sMBK}, s{sMBK}, 3500")
        lab("L_amp")
        e("s_sleep 4")
        e(f"s_memrealtime s[{sLO}:{sLO+1}]")
        e("s_waitcnt lgkmcnt(0)")
        e(f"s_sub_u32 s{sT0}, s{sLO}, s{sMA}")
        e(f"s_cmp_lt_u32 s{sT0}, s{sMBK}")
        e("s_cbranch_scc1 L_amp")
        e("s_endpgm")
    e(f"s_mul_i32 s{sT0}, s{sT0}, {a.skew}")
    e(f"s_ashr_i32 s{sT0}, s{sT0}, 9")
    e(f"s_add_u32 s{sBO}, s{sBO}, s{sT0}")
e(f"s_mov_b32 s{sNEED}, {a.cstart}")
lab("L_g_next")
e(f"s_sub_u32 s{sT0}, s{sTN}, s{sNEED}")
e(f"s_cmp_lt_i32 s{sT0}, {a.cstop}")
e("s_cbranch_scc1 L_fin")
lab("L_g_w")
e(f"ds_read_b32 v{vPL}, v{vPA}")
e("s_waitcnt lgkmcnt(0)")
e(f"v_readfirstlane_b32 s{sLND}, v{vPL}")
e(f"s_cmp_ge_i32 s{sLND}, s{sNEED}")
e("s_cbranch_scc1 L_g_a")
spin_tail("L_g_w", 1)
lab("L_g_a")
if "prog2" in DBG:
    e(f"s_memrealtime s[{sST+2}:{sST+3}]")
    e(f"s_lshr_b32 m0, s{sLND}, 1")
    e("s_waitcnt lgkmcnt(0)")
    e(f"v_writelane_b32 v50, s{sST+2}, m0")
e(f"s_sub_u32 s{sNK}, s{sTN}, s{sLND}")
e(f"s_or_b32 s{sT0}, s{sNK}, s{sFB}")
e(f"v_mov_b32 v{vT2}, s{sT0}")
e("s_mov_b64 exec, 1")
e(f"global_store_dword v{vG}, v{vT2}, s[{sDBG}:{sDBG+1}] offset:128")
e("s_mov_b64 exec, -1")
e(f"global_load_dword v{vT0}, v{vFV}, s[{sDBG}:{sDBG+1}] offset:128 sc1")
e(f"s_add_u32 s{sNEED}, s{sLND}, {a.cstep}")
e(f"s_min_i32 s{sT3}, s{sBO}, 1")
e(f"s_max_i32 s{sT3}, s{sT3}, -1")
e(f"s_sub_u32 s{sBO}, s{sBO}, s{sT3}")
e("s_waitcnt vmcnt(0)")
e(f"ds_write_b32 v{vT1}, v{vT0}")
e(f"v_and_b32 v{vT0}, 0xffff, v{vT0}")
e(f"v_cmp_ne_u32 vcc, 0, v{vT0}")
for sh in (1, 2, 4, 8):
    e("s_nop 1")
    e(f"v_add_u32_dpp v{vT0}, v{vT0}, v{vT0} row_shr:{sh} row_mask:0xf bank_mask:0xf bound_ctrl:0")
e("s_nop 1")
e(f"v_add_u32_dpp v{vT0}, v{vT0}, v{vT0} row_bcast:15 row_mask:0xa bank_mask:0xf")
e(f"s_bcnt1_i32_b32 s{sT1}, vcc_lo")
e(f"v_readlane_b32 s{sT0}, v{vT0}, 31")
e(f"s_mul_i32 s{sT2}, s{sNK}, s{sT1}")
e(f"s_sub_u32 s{sT2}, s{sT2}, s{sT0}")
e(f"s_lshl_b32 s{sT2}, s{sT2}, 2")
for th, inc, cmp in ((CTH[0], -1, "lt"), (CTH[1], 1, "gt"), (CTH[2], 1, "gt")):
    e(f"s_mul_i32 s{sT0}, s{sT1}, {th - a.cbias}")
    e(f"s_cmp_{cmp}_i32 s{sT2}, s{sT0}")
    e(f"s_cselect_b32 s{sT0}, {inc}, 0")
    e(f"s_add_u32 s{sT3}, s{sT3}, s{sT0}")
e(f"s_max_i32 s{sT3}, s{sT3}, -1")
e(f"s_min_i32 s{sT3}, s{sT3}, 2")
e(f"v_mov_b32 v{vT2}, s{sT3}")
e(f"ds_write_b32 v{vFW}, v{vT2}")
e("s_branch L_g_next")

lab("L_fin")
if a.amp[:2] == "xd":
    xx = int(a.amp[2:])
    def wait_until(lbl, reg_or_imm):
        lab(lbl)
        e("s_sleep 2")
        e(f"s_memrealtime s[{sST+4}:{sST+5}]")
        e("s_waitcnt lgkmcnt(0)")
        e(f"s_sub_u32 s{sT0}, s{sST+4}, s{sST}")
        e(f"s_cmp_lt_u32 s{sT0}, {reg_or_imm}")
        e(f"s_cbranch_scc1 {lbl}")
    e(f"s_cmp_lg_u32 s{sW}, 1")
    e("s_cbranch_scc1 L_end")
    e("s_waitcnt vmcnt(0) lgkmcnt(0)")
    e(f"s_memrealtime s[{sST+2}:{sST+3}]")
    wait_until("L_xw1", 3400)
    e(f"s_and_b32 s{sT1}, s{sST+2}, 0xffff")
    e(f"s_and_b32 s{sT2}, s2, 7")
    e(f"s_lshl_b32 s{sT2}, s{sT2}, 2")
    e(f"v_mov_b32 v2, s{sT2}")
    e(f"v_mov_b32 v3, s{sT1}")
    e("s_mov_b64 exec, 1")
    e(f"global_atomic_add v2, v3, s[{sDBG}:{sDBG+1}]")
    e("s_cmp_lg_u32 s2, 0")
    e("s_cbranch_scc1 L_end")
    wait_until("L_xw2", 4200)
    e(f"s_load_dwordx8 s[72:79], s[{sDBG}:{sDBG+1}], 0 glc")
    e("s_waitcnt lgkmcnt(0)")
    e(f"s_lshl_b32 s{sT1}, s{72+xx}, 3")
    for i in range(8): e(f"s_sub_u32 s{sT1}, s{sT1}, s{72+i}")
    e(f"s_mul_i32 s{sT1}, s{sT1}, 30")
    e(f"s_ashr_i32 s{sT1}, s{sT1}, 8")
    e(f"s_max_i32 s{sT1}, s{sT1}, -1700")
    e(f"s_min_i32 s{sT1}, s{sT1}, 3000")
    e(f"s_add_u32 s{sT1}, s{sT1}, 6000")
    wait_until("L_xw3", f"s{sT1}")
elif a.amp:
    if a.amp == "end":
        e(f"s_sub_u32 s{sT0}, s{sW}, 1")
        e(f"s_cmp_gt_u32 s{sT0}, 1")
    else:
        e(f"s_cmp_lg_u32 s{sW}, 0")
    e("s_cbranch_scc1 L_end")
    if a.ampwg >= 0:
        e(f"s_cmp_lg_u32 s2, {a.ampwg}")
        e("s_cbranch_scc1 L_end")
    e("s_waitcnt vmcnt(0) lgkmcnt(0)")
    if a.amp[:2] != "t0":
        e(f"s_memrealtime s[{sST+2}:{sST+3}]")
        e("s_waitcnt lgkmcnt(0)")
    e(f"s_sub_u32 s{sT1}, s{sST+2}, s{sST}")
    if a.amp[:2] != "t0": e(f"s_sub_u32 s{sT1}, s{sT1}, 2700")
    if a.amp == "t0x":
        e(f"s_getreg_b32 s{sT1}, hwreg(HW_REG_XCC_ID, 0, 4)")
        e(f"s_mul_i32 s{sT1}, s{sT1}, 50")
    if a.amp == "t0p":
        e(f"s_getreg_b32 s{sT1}, hwreg(HW_REG_XCC_ID, 0, 1)")
        e(f"s_mul_i32 s{sT1}, s{sT1}, 200")
    e(f"s_max_i32 s{sT1}, s{sT1}, 0")
    e(f"s_min_i32 s{sT1}, s{sT1}, 2000")
    e(f"s_mul_i32 s{sT1}, s{sT1}, 10")
    e(f"s_add_u32 s{sT1}, s{sT1}, 3500")
    lab("L_ampw")
    e("s_sleep 2")
    e(f"s_memrealtime s[{sST+2}:{sST+3}]")
    e("s_waitcnt lgkmcnt(0)")
    e(f"s_sub_u32 s{sT0}, s{sST+2}, s{sST}")
    e(f"s_cmp_lt_u32 s{sT0}, s{sT1}")
    e("s_cbranch_scc1 L_ampw")
if "prog2" in DBG or "prog3" in DBG:
    e(f"s_cmp_lg_u32 s{sW}, {5 if 'prog2' in DBG else 0}")
    e("s_cbranch_scc1 L_np2")
    e(f"s_lshl_b32 s{sT0}, s2, 8")
    e(f"s_add_u32 s{sT0}, s{sT0}, 0x400000")
    e(f"v_lshl_add_u32 v51, v{vLANE}, 2, s{sT0}")
    e(f"global_store_dword v51, v50, s[{sWS}:{sWS+1}]")
    lab("L_np2")
if a.stamps:
    e(f"s_cmp_gt_u32 s{sW}, 2")
    e("s_cbranch_scc1 L_end")
    e("s_mov_b64 exec, -1")
    e("s_waitcnt vmcnt(0) lgkmcnt(0)")
    stamp(3)
    e(f"s_getreg_b32 s{sT0}, hwreg(HW_REG_XCC_ID)")
    e("s_waitcnt lgkmcnt(0)")
    for i in range(8):
        e(f"v_mov_b32 v{64+i}, s{sST+i}")
    e(f"v_mov_b32 v72, s{sT0}")
    e(f"s_sub_u32 s{sT1}, {SPIN}, s{sSPIN}")
    e(f"v_mov_b32 v73, s{sT1}")
    e(f"v_mov_b32 v74, s{sT}")
    e(f"v_mov_b32 v75, 0")
    e(f"s_mul_i32 s{sT0}, s2, {NW}")
    e(f"s_add_u32 s{sT0}, s{sT0}, s{sW}")
    e(f"s_lshl_b32 s{sT0}, s{sT0}, 6")
    e(f"v_mov_b32 v80, s{sT0}")
    e("s_mov_b64 exec, 1")
    e(f"global_store_dwordx4 v80, v[64:67], s[{sWS}:{sWS+1}]")
    e(f"global_store_dwordx4 v80, v[68:71], s[{sWS}:{sWS+1}] offset:16")
    e(f"global_store_dwordx4 v80, v[72:75], s[{sWS}:{sWS+1}] offset:32")
lab("L_end")
e("s_endpgm")
if a.wake:
    out.append(".p2align 8")
    lab("L_pad")
    out.append(f".fill {64 * a.wake}, 4, 0xbf810000")
out.append('.section .rodata,"a"')
out.append(".p2align 6")
out.append(f".amdhsa_kernel {NAME}_kernel")
out.append(f"  .amdhsa_next_free_vgpr {NV}")
out.append("  .amdhsa_next_free_sgpr 102")
out.append(f"  .amdhsa_accum_offset {NV}")
out.append("  .amdhsa_group_segment_fixed_size 0")
out.append("  .amdhsa_kernarg_size 64")
out.append("  .amdhsa_user_sgpr_count 2")
out.append("  .amdhsa_user_sgpr_kernarg_segment_ptr 1")
out.append("  .amdhsa_system_sgpr_workgroup_id_x 1")
out.append("  .amdhsa_float_denorm_mode_32 3")
out.append(".end_amdhsa_kernel")
open(a.o, "w").write("\n".join(out) + "\n")
```

```python
import sys, argparse
NAME = "standalone__paged_block_table_kv_pagedattention__sampling"
HEADER = open("cdna_kernels/" + NAME + ".s.ref").read().split("; Override")[0]

ap = argparse.ArgumentParser()
ap.add_argument("-o", default="/dev/stdout")
ap.add_argument("--map", default="plain")
ap.add_argument("--hrot", type=int, default=0)
ap.add_argument("--D", type=int, default=21)
ap.add_argument("--D0", type=int, default=26)
ap.add_argument("--NS", type=int, default=6)
ap.add_argument("--G", type=int, default=50)
ap.add_argument("--fnum", type=int, default=40)
ap.add_argument("--pollnum", type=int, default=55)
ap.add_argument("--psleep", type=int, default=6)
ap.add_argument("--UB", type=int, default=8)
ap.add_argument("--mfirst", type=int, default=1)
ap.add_argument("--cth", default="-2,2,5")
ap.add_argument("--cbias", type=int, default=7)
ap.add_argument("--cstart", type=int, default=8)
ap.add_argument("--cstop", type=int, default=4)
ap.add_argument("--cstep", type=int, default=3)
ap.add_argument("--xt", default="14,-12,4,-11,6,-10,7,-10")
ap.add_argument("--NUM", type=int, default=4)
ap.add_argument("--last", type=int, default=1)
ap.add_argument("--hold", default="")
ap.add_argument("--ost", default="")
ap.add_argument("--wb", type=int, default=0)
ap.add_argument("--skew", type=int, default=0)
ap.add_argument("--dv", default="-1,1,3")
ap.add_argument("--fpf", type=int, default=6)
ap.add_argument("--fld", default="sc1")
ap.add_argument("--opf", type=int, default=0)
ap.add_argument("--otouch", type=int, default=0)
ap.add_argument("--ospread", type=int, default=1)
ap.add_argument("--ofl", default="")
ap.add_argument("--DM", type=int, default=3)
ap.add_argument("--NE", type=int, default=3)
ap.add_argument("--amp", default="")
ap.add_argument("--ampwg", type=int, default=-1)
ap.add_argument("--tlb", default="")
ap.add_argument("--tlbs", type=int, default=21)
ap.add_argument("--wake", type=int, default=0)
ap.add_argument("--spec", type=int, default=1)
ap.add_argument("--lat", type=int, default=1)
ap.add_argument("--smart", default="")
ap.add_argument("--bar", type=int, default=1)
ap.add_argument("--hmap", default="")
ap.add_argument("--pst", default="")
ap.add_argument("--pfm", type=int, default=0)
ap.add_argument("--tr", default="")
ap.add_argument("--hcap", type=int, default=13)
ap.add_argument("--nosort", action="store_true")
ap.add_argument("--nopair", action="store_true")
ap.add_argument("--limf", default="0x43800000")
ap.add_argument("--dbg", default="")
ap.add_argument("--stamps", action="store_true")
a = ap.parse_args()
NT = " nt"
OST = "" if not a.ost else " " + a.ost.replace("+", " ")
DBG = set(a.dbg.split(","))
D, D0, NS, G = a.D, a.D0, a.NS, a.G
assert 24 <= D0 <= 32 and (D - 2) // 8 == (D + 1) // 8 == 2 and 32 <= G < 64
CTH = [int(x) for x in a.cth.split(",")]
XT = [int(x) for x in a.xt.split(",")]
DV = [int(x) for x in a.dv.split(",")]
TR = [int(x) for x in a.tr.split(",")] if a.tr else None
assert 17 <= D + DV[0] and D + DV[2] <= 24
DIVM = {5: (205, 10), 6: (43, 8), 7: (147, 10), 8: (1, 3), 10: (205, 11), 12: (171, 11)}[NS]
assert all((u * DIVM[0]) >> DIVM[1] == u // NS for u in range(129))
NW = 6
KBYTES = 4100 * 32768
SPIN = 1 << 22
NUM = a.NUM

RING = NS * 8192
PST = RING
MB = PST + G * 2048
MBS = 4224
CTRL = MB + 2 * MBS
FREE = CTRL + 512
REC0 = FREE + 128
DEPW = REC0 + 16
SL = FREE + 256
CNT = SL + 768
LA = CNT + 512
LB = LA + 512
KEYS = LB + 512
LDS = KEYS + 256
assert LDS <= 163840, LDS
WS0 = 0x100000 if a.stamps else 0
WSA = WS0 + 0x40000

out = []
def e(s): out.append("    " + s)
def lab(s): out.append(s + ":")
def c(s): out.append("    ; " + s)

sQ, sK, sV, sBT, sCL, sOUT, sDBG, sWS = 4, 6, 8, 10, 12, 14, 16, 18
sRD = 20
sB, sH, sW, sCLV = 28, 29, 30, 31
sT0, sT1, sT2, sT3 = 32, 33, 34, 35
sPC = 36
sSPIN = 38
sNB, sNTL, sNU, sT = 39, 40, 41, 42
sST = 64
sE = 72
sB0, sB1, sFL, sPM, sSLOT, sU, sTA0 = 46, 47, 48, 49, 52, 56, 57
sTRM, sTRC = 50, 51
sM = 46
sCI, sLND, sMBF, sNEED, sMRG, sMT, sROLE, sQO, sPLN, sSB = 48, 49, 50, 51, 52, 56, 57, 58, 59, 60
sV0 = 61
sCST = 62
sTN, sNK, sFWN, sFB, sPRE, sREDO, sLIMF, sPO = 96, 97, 98, 99, 100, 101, 53, 43
sMALL, sRS = 24, 26
sOFF, sTB0, sTB1, sTTC, sFIRST = 20, 21, 22, 23, 44
sZQ = 54
sRK, sPB, sNP, sX, sTA, sTB, sF, sWB = 80, 81, 82, 83, 84, 85, 86, 87
sMA, sMBK = 88, 90
sLO, sHI, sLBASE = 92, 93, 94
sBO = 56
vLANE = 1
vT0, vT1, vT2, vT3, vT4, vT5 = 2, 3, 4, 5, 6, 7
vL = 8
vKOFF, vVOFF = 10, 14
vCA, vCNT, vFA, vR = 18, 19, 20, 21
vF = 22
vCUR = 24
vTR = 28
vTRK, vTRV = 36, 52
vEN = 44
vDP, vDA, vOOB, vSA = 46, 47, 48, 49
vKA0, vVA0, vXA = 8, 12, 16
vPA0, vPW, vINV, vOA = 20, 21, 22, 23
vM, vLS, vMN, vAL, vPA, vFW = 24, 25, 26, 27, 28, 29
vPL = 30
vQ = 32
vS = 48
vP = 56
vG, vPF, vFV, vN = 60, 61, 62, 63
vKF = 64
vVF = 96
vO = 128
vE = 160
vPN = 160
NV = 168

def stamp(i):
    if a.amp and (i == 0 or (i == 1 and a.amp == "t0")): e(f"s_memrealtime s[{sST+2*i}:{sST+2*i+1}]")
    if a.hold and i == 0: e(f"{'s_memrealtime' if a.hold[:2] == 'rt' else 's_memtime'} s[{sST}:{sST+1}]")
    if a.stamps: e(f"s_memrealtime s[{sST+2*i}:{sST+2*i+1}]")
def clamp_cl(zq=None):
    c("context length: <=0 -> every key masked => uniform weights over 2048 keys (zero Q); >2048 -> 2048")
    e(f"s_cmp_lt_i32 s{sCLV}, 1")
    if zq is not None: e(f"s_cselect_b32 s{zq}, 1, 0")
    e(f"s_cselect_b32 s{sCLV}, 2048, s{sCLV}")
    e(f"s_min_i32 s{sCLV}, s{sCLV}, 2048")
def derive_nb():
    e(f"s_add_u32 s{sNTL}, s{sNB}, 1")
    e(f"s_lshr_b32 s{sNTL}, s{sNTL}, 1")
    e(f"s_sub_u32 s{sNU}, s{sNTL}, 1")
    e(f"s_min_u32 s{sNU}, s{sNU}, {NUM}")
def derive_cl():
    e(f"s_add_u32 s{sNB}, s{sCLV}, 15")
    e(f"s_lshr_b32 s{sNB}, s{sNB}, 4")
    derive_nb()
def spin_tail(label, sleep=1):
    e(f"s_sleep {sleep}")
    e(f"s_sub_u32 s{sSPIN}, s{sSPIN}, 1")
    e(f"s_cbranch_scc0 {label}")
    e("s_endpgm")
FIN = "s_branch L_fin" if (a.stamps or a.amp) else "s_endpgm"

out.append(HEADER.rstrip())
out.append(f"; @launch grid=(256,1,1) block=({64*NW},1,1) lds={LDS}")
for line in """
Paged GQA attention, one workgroup per (batch b, kv head h); HBM-bound, so everything serves the K/V stream.
  wave 0     loader: LDS-DMA of 8 KB units (32 keys of K or V) into a ring, a counted number of requests in flight.
             Pass 1 streams every K tile, pass 2 every V tile, both in ascending physical-block order.
  waves 1,2  own task, 16 query rows each: pass 1 scores + softmax weights (kept in LDS), pass 2 weighted values.
  waves 3,4  rank the batches by length, pair long with short, sort the block ids. In a short workgroup they then
             process tiles donated by the long partner and hand the partial result over; in a long one wave 3 fetches it.
  wave 5     compares progress with the workgroups sharing its L2 and nudges the loader's request depth.
Hand-offs work under any placement: inside L2 only after a run-time check that both sides share a die.
""".strip("\n").split("\n"): out.append("; " + line)
out.append('.amdgcn_target "amdgcn-amd-amdhsa--gfx950"')
out.append(".text")
out.append(f".globl {NAME}_kernel")
out.append(".p2align 8")
out.append(f".type {NAME}_kernel,@function")
lab(f"{NAME}_kernel")
e("s_load_dwordx16 s[4:19], s[0:1], 0")
e(f"s_lshr_b32 s{sB}, s2, 3")
e(f"s_cmp_ge_u32 s{sB}, 32")
e("s_cbranch_scc1 L_end")
stamp(0)
e(f"v_lshrrev_b32 v{vT0}, 6, v0")
e(f"v_and_b32 v{vLANE}, 63, v0")
e(f"v_readfirstlane_b32 s{sW}, v{vT0}")
c("wave 1 pulls this kernel's code into L2")
e(f"s_getpc_b64 s[{sPC}:{sPC+1}]")
lab("L_pc")
e(f"v_lshlrev_b32 v{vT2}, 7, v{vLANE}")
e(f"v_min_u32 v{vT2}, L_end - L_pc - 256, v{vT2}")
if a.pfm:
    e(f"s_and_b32 s{sT0}, s2, {a.pfm << 3}")
    e(f"s_add_u32 s{sT0}, s{sT0}, s{sW}")
    e(f"s_cmp_lg_u32 s{sT0}, 1")
else:
    e(f"s_cmp_lg_u32 s{sW}, 1")
e("s_cbranch_scc1 L_nopf")
e(f"global_load_dword v{vPF}, v{vT2}, s[{sPC}:{sPC+1}] offset:256")
if a.wake:
    e(f"s_mul_i32 s{sT3}, s2, {a.wake}")
    e(f"v_and_b32 v{vT2}, {a.wake - 256}, v{vT2}")
    e(f"v_add_u32 v{vT2}, s{sT3}, v{vT2}")
    e(f"v_add_u32 v{vT2}, L_pad - L_pc, v{vT2}")
    e(f"global_load_dword v{vFV}, v{vT2}, s[{sPC}:{sPC+1}] nt")
lab("L_nopf")
c("clear the control words and the sort counters")
e(f"v_mov_b64 v[{vT2}:{vT3}], 0")
e(f"v_lshlrev_b32 v{vT4}, 3, v0")
e(f"v_add_u32 v{vT4}, {CTRL}, v{vT4}")
e(f"ds_write_b64 v{vT4}, v[{vT2}:{vT3}]")
if a.map == "rot":
    e(f"s_add_u32 s{sH}, s2, s{sB}")
    e(f"s_and_b32 s{sH}, s{sH}, 7")
elif a.hmap:
    e(f"s_lshl_b32 s{sH}, s2, 2")
    e(f"s_lshr_b32 s{sH}, {a.hmap}, s{sH}")
    e(f"s_and_b32 s{sH}, s{sH}, 7")
elif a.hrot:
    e(f"s_add_u32 s{sH}, s2, {a.hrot}")
    e(f"s_and_b32 s{sH}, s{sH}, 7")
else:
    e(f"s_and_b32 s{sH}, s2, 7")
e(f"s_lshl3_add_u32 s{sT2}, s{sB}, s{sH}")
e(f"s_lshl_b32 s{sT2}, s{sT2}, 13")
e(f"v_lshl_add_u32 v{vT5}, v{vLANE}, 7, s{sT2}")
e(f"s_lshl_b32 s{sT0}, s{sB}, 9")
e(f"v_lshl_add_u32 v{vT2}, v{vLANE}, 3, s{sT0}")
if not a.spec: e(f"s_lshl_b32 s{sT1}, s{sB}, 2")
e(f"v_and_b32 v{vT0}, 31, v{vLANE}")
e(f"v_lshlrev_b32 v{vT3}, 2, v{vT0}")
vTL = 22
if a.tlb:
    e(f"v_min_u32 v{vTL}, {(2 << (21 - a.tlbs)) - 1}, v{vLANE}")
    e(f"v_lshl_add_u32 v{vTL}, v{vTL}, 5, s{sB}")
    e(f"s_mul_i32 s{sT3}, s2, {8064 >> (21 - a.tlbs) & ~127}")
    e(f"v_lshl_add_u32 v{vTL}, v{vTL}, {a.tlbs}, s{sT3}")
e(f"s_cmp_lg_u32 s{sW}, 2")
e("s_waitcnt lgkmcnt(0)")
e(f"s_load_dwordx8 s[{sE}:{sE+7}], s[{sBT}:{sBT+1}], s{sT0}")
if not a.spec: e(f"s_load_dword s{sCLV}, s[{sCL}:{sCL+1}], s{sT1}")
c("wave 2 touches the 64 lines of this workgroup's queries while memory is still idle")
e("s_cbranch_scc1 L_noq")
if "k" in a.tlb: e(f"global_load_dword v{vFV}, v{vTL}, s[{sK}:{sK+1}] nt")
e(f"global_load_dword v{vPF}, v{vT5}, s[{sQ}:{sQ+1}]")
lab("L_noq")
if a.opf:
    e(f"s_cmp_lg_u32 s{sW}, 4")
    e("s_cbranch_scc1 L_noo")
    e(f"global_load_dword v{vPF}, v{vT5}, s[{sOUT}:{sOUT+1}]")
    lab("L_noo")
e(f"global_load_dwordx2 v[{vL}:{vL+1}], v{vT2}, s[{sBT}:{sBT+1}]")
e(f"global_load_dword v{vN}, v{vT3}, s[{sCL}:{sCL+1}]")
lab("L_loads_issued")
if a.amp == "t0k": e(f"s_memrealtime s[{sST+2}:{sST+3}]")
e(f"s_cmp_lg_u32 s{sW}, 0")
e(f"s_mov_b32 s{sSPIN}, {SPIN}")
e("s_cbranch_scc1 L_notloader")

e("s_setprio 3")
c("per-lane source offsets of the LDS-DMA pieces (bank swizzle applied on the source side)")
e(f"v_lshrrev_b32 v{vR}, 4, v{vLANE}")
e(f"v_and_b32 v{vT1}, 15, v{vLANE}")
e(f"s_lshl_b32 s{sT0}, s{sH}, 8")
e(f"v_lshl_add_u32 v{vT4}, v{vR}, 11, s{sT0}")
e(f"v_xor_b32 v{vT2}, v{vR}, v{vT1}")
e(f"v_lshl_add_u32 v{vKOFF}, v{vT2}, 4, v{vT4}")
for j in range(1, 4):
    e(f"v_xor_b32 v{vT3}, {64*j}, v{vKOFF}")
    e(f"v_add_u32 v{vKOFF+j}, {7168*j}, v{vT3}")
e(f"s_mov_b32 s{sRD}, s{sK}")
e(f"s_and_b32 s{sRD+1}, s{sK+1}, 0xffff")
e(f"s_mov_b32 s{sRD+2}, {KBYTES}")
e(f"s_mov_b32 s{sRD+3}, 0x20000")
if a.amp == "t0c": e(f"s_memrealtime s[{sST+2}:{sST+3}]")
if a.bar < 0: e("s_barrier")
e("s_waitcnt lgkmcnt(0)")
if not a.spec: clamp_cl()
c("the first stream tiles are the leading logical tiles; requested before the context length is known")
NE = a.NE
for t in range(NE):
    if not a.spec:
        e(f"s_cmp_le_u32 s{sCLV}, {32*(t+1)}")
        e(f"s_cbranch_scc1 {'L_ld_b' if t < 2 else 'L_ld_pre'}")
    if t == 0: stamp(1)
    for j in range(8):
        i = 8 * t + j
        if j % 4 == 0:
            e(f"s_movk_i32 m0, {1024*i}")
            e(f"s_lshl_b32 s{sB0}, s{sE+i//4}, 15")
        if i >= D0: e(f"s_waitcnt vmcnt({D0-1})")
        e(f"buffer_load_dwordx4 v{vKOFF+j%4}, s[{sRD}:{sRD+3}], s{sB0} offen offset:{1024*(j%4)}{NT} lds")
    if t == a.bar:
        lab("L_ld_b")
        e("s_barrier")
lab("L_ld_pre")
j0 = (D - 1) % 8
e(f"v_lshlrev_b32 v{vT3}, 2, v{vR}")
e(f"v_xor_b32 v{vT3}, v{vT3}, v{vT1}")
e(f"v_lshl_add_u32 v{vVOFF}, v{vT3}, 4, v{vT4}")
for j in range(1, 4):
    e(f"v_add_u32 v{vVOFF+j}, {7168*j}, v{vVOFF}")
e(f"v_lshlrev_b32 v{vCA}, 3, v{vLANE}")
e(f"v_add_u32 v{vT0}, {SL}, v{vCA}")
e(f"v_add_u32 v{vCA}, {CTRL}, v{vCA}")
e(f"v_mov_b32 v{vFA}, {FREE}")
e(f"v_mov_b64 v[{vF}:{vF+1}], 0")
e(f"v_mov_b32 v{vDP}, {2 if NE == 3 else 0}")
e(f"v_mov_b32 v{vDA}, {DEPW}")
e(f"v_bfrev_b32 v{vOOB}, 1")
def set_pass(off):
    for j in range(0, 4, 2): e(f"v_mov_b64 v[{vCUR+j}:{vCUR+j+1}], v[{off+j}:{off+j+1}]")
set_pass(vKOFF)
if "prog3" in DBG: e("v_mov_b32 v50, 0")
e(f"s_mov_b32 s{sPM}, 4")
if TR:
    e(f"s_mov_b32 s{sTRM}, 16")
    e(f"s_mov_b32 s{sTRC}, 2")
    e(f"v_cmp_gt_u32 vcc, {TR[1]}, v{vLANE}")
    e("s_nop 1")
    e(f"v_cndmask_b32 v{vT2}, 1, 33, vcc")
e(f"s_mov_b32 s{sTA0}, 0")
if a.spec:
    e(f"s_waitcnt vmcnt({8*NE})")
    e(f"v_readlane_b32 s{sCLV}, v{vN}, s{sB}")
    clamp_cl()
derive_cl()
c("the leading tiles enter the stream list straight from the table row")
e(f"s_min_u32 s{sT}, s{sNU}, {NE}")
e(f"s_lshl3_add_u32 s{sT0}, s{sT}, {SL}")
e(f"v_mov_b32 v{vSA}, s{sT0}")
e(f"s_sub_u32 s{sT0}, s{sT}, 3")
e(f"v_mov_b32 v{vCNT}, s{sT0}")
e(f"s_bfm_b64 s[{sT2}:{sT2+1}], s{sNU}, 0")
e(f"s_cmp_ge_u32 s{sNU}, {NE}")
e("s_cbranch_scc1 L_ld_row")
e("s_waitcnt vmcnt(0)")
lab("L_ld_row")
if not (a.spec and NE == 3): e("s_waitcnt vmcnt(24)")
if NE == 4: e(f"ds_write_b32 v{vCA}, v{vCNT}")
e(f"v_lshl_or_b32 v{vEN}, v{vL}, 15, {'v%d' % vT2 if TR else 1}")
e(f"v_lshlrev_b32 v{vEN+1}, 15, v{vL+1}")
e(f"s_mov_b64 exec, s[{sT2}:{sT2+1}]")
e(f"ds_write_b64 v{vT0}, v[{vEN}:{vEN+1}]")
e("s_mov_b64 exec, -1")
e(f"ds_read_b64 v[{vEN}:{vEN+1}], v{vSA}")
e(f"s_lshl_b32 s{sSLOT}, s{sT}, 13")
e(f"s_mov_b32 s{sU}, s{sT}")
c("lanes of the last logical tile whose rows lie inside the context")
e(f"s_lshl_b32 s{sT0}, s{sNTL}, 5")
e(f"s_sub_u32 s{sT0}, s{sCLV}, s{sT0}")
e(f"s_add_u32 s{sT0}, s{sT0}, 32")
e(f"v_sub_u32 v{vT1}, s{sT0}, v{vR}")
for k in range(8):
    e(f"v_cmp_lt_i32 s[{80+2*k}:{81+2*k}], {4*k}, v{vT1}")
if a.amp == "t0r": e(f"s_memrealtime s[{sST+2}:{sST+3}]")
if a.amp[:3] == "t0l":
    e(f"s_waitcnt vmcnt({int(a.amp[3:])})")
    e(f"s_memrealtime s[{sST+2}:{sST+3}]")
stamp(2)
def unit_body(depth, trimmed=False):
    for j in range(8):
        if j % 4 == 0: e(f"s_add_u32 m0, s{sSLOT}, {1024*j}")
        e(f"s_waitcnt vmcnt({depth-1})")
        e(f"buffer_load_dwordx4 v{vTR+j if trimmed else vCUR+j%4}, s[{sRD}:{sRD+3}], s{sB0 + j//4} offen offset:{1024*(j%4)}{NT} lds")
        if j == (depth - 1) % 8:
            e(f"v_add_u32 v{vCNT}, 1, v{vCNT}")
            e(f"ds_write_b32 v{vCA}, v{vCNT}")
        if j == 0:
            e(f"s_add_u32 s{sT2}, s{sSLOT}, 8192")
            e(f"s_cmp_eq_u32 s{sT2}, {RING}")
            e(f"s_cselect_b32 s{sT2}, 0, s{sT2}")
            e(f"s_lshr_b32 s{sT0}, s{sT2}, 10")
            e(f"s_add_u32 s{sT0}, s{sT0}, {FREE}")
            e(f"v_mov_b32 v{vFA}, s{sT0}")
        if j == 1:
            e(f"s_add_u32 s{sT}, s{sT}, 1")
            e(f"s_and_b32 s{sT0}, s{sFL}, s{sPM}")
            e(f"s_cselect_b32 s{sT}, s{sTA0}, s{sT}")
            e(f"s_lshl3_add_u32 s{sT0}, s{sT}, {SL}")
            e(f"v_mov_b32 v{vSA}, s{sT0}")
            e(f"s_add_u32 s{sU}, s{sU}, 1")
        if j == a.fpf:
            c("prefetch the next list entry, the FREE words of the next slot and the depth code")
            e(f"ds_read_b64 v[{vEN}:{vEN+1}], v{vSA}")
            e(f"ds_read_b64 v[{vF}:{vF+1}], v{vFA}")
            e(f"ds_read_b32 v{vDP}, v{vDA}")
            e(f"s_mov_b32 s{sSLOT}, s{sT2}")
out.append(".p2align 3")
lab("L_ld")
if "prog3" in DBG:
    e(f"s_memrealtime s[{sST+4}:{sST+5}]")
    e(f"s_min_u32 m0, s{sU}, 63")
e("s_waitcnt lgkmcnt(0)")
if "prog3" in DBG: e(f"v_writelane_b32 v50, s{sST+4}, m0")
e(f"v_min_i32 v{vT0}, v{vF}, v{vF+1}")
e(f"v_readfirstlane_b32 s{sFL}, v{vEN}")
e(f"v_readfirstlane_b32 s{sB1}, v{vEN+1}")
e(f"v_readfirstlane_b32 s{sT0}, v{vT0}")
e(f"v_readfirstlane_b32 s{sT3}, v{vDP}")
e(f"s_sub_u32 s{sT1}, s{sU}, {NS-1}")
e(f"s_cmp_ge_i32 s{sT0}, s{sT1}")
e(f"s_cselect_b32 s{sT0}, s{sFL}, 0")
e(f"s_and_b32 s{sB0}, s{sFL}, {'0xffffffc0' if TR else '-16'}")
e(f"s_and_b32 s{sT0}, s{sT0}, 3")
e(f"s_cmp_lg_u32 s{sT0}, 1")
e("s_cbranch_scc1 L_ld_odd")
if TR:
    e(f"s_and_b32 s{sT0}, s{sFL}, s{sTRM}")
    e(f"s_cselect_b32 s{sT3}, s{sTRC}, s{sT3}")
e(f"s_cmp_lg_u32 s{sT3}, 0")
e("s_cbranch_scc1 L_ld_var")
unit_body(D)
lab("L_ld_next")
e(f"s_bitcmp1_b32 s{sFL}, 2")
e("s_cbranch_scc0 L_ld")
c("last tile of the batch: change pass")
if TR:
    e(f"s_xor_b32 s{sTRM}, s{sTRM}, 48")
    e(f"s_xor_b32 s{sTRC}, s{sTRC}, 1")
e(f"s_xor_b32 s{sPM}, s{sPM}, 4")
e("s_cbranch_scc1 L_ld_tok")
e(f"s_mov_b32 s{sRD}, s{sV}")
e(f"s_and_b32 s{sRD+1}, s{sV+1}, 0xffff")
set_pass(vVOFF)
e("s_branch L_ld")
lab("L_ld_tok")
e(f"s_bitcmp1_b32 s{sFL}, 3")
e("s_cbranch_scc0 L_ld_more")
for r in (16, 8, 0):
    e(f"v_add_u32 v{vCNT}, 1, v{vCNT}")
    e(f"s_waitcnt vmcnt({r})")
    e(f"ds_write_b32 v{vCA}, v{vCNT}")
if a.hold:
    lab("L_hold")
    e(f"{'s_memrealtime' if a.hold[:2] == 'rt' else 's_memtime'} s[{sST+2}:{sST+3}]")
    e("s_waitcnt lgkmcnt(0)")
    e(f"s_sub_u32 s{sT0}, s{sST+2}, s{sST}")
    e(f"s_cmp_lt_u32 s{sT0}, {a.hold[3:]}")
    e("s_cbranch_scc1 L_hold")
e(FIN)
lab("L_ld_more")
e(f"s_mov_b32 s{sTA0}, s{sT}")
e(f"s_mov_b32 s{sRD}, s{sK}")
e(f"s_and_b32 s{sRD+1}, s{sK+1}, 0xffff")
set_pass(vKOFF)
e("s_branch L_ld")
lab("L_ld_odd")
e(f"s_cmp_eq_u32 s{sT0}, 3")
e("s_cbranch_scc1 L_ld_m")
c("slot not free yet or entry not written yet")
e(f"ds_read_b64 v[{vEN}:{vEN+1}], v{vSA}")
e(f"ds_read_b64 v[{vF}:{vF+1}], v{vFA}")
e(f"s_sub_u32 s{sSPIN}, s{sSPIN}, 1")
e("s_cbranch_scc0 L_ld")
e("s_endpgm")
lab("L_ld_m")
c("the last logical tile: rows past the context are not fetched (their lanes read zeros)")
for k in range(8):
    e(f"v_cndmask_b32 v{vTR+k}, v{vOOB}, v{vCUR+k%4}, s[{80+2*k}:{81+2*k}]")
unit_body(D + a.DM, True)
e("s_branch L_ld_next")
lab("L_ld_var")
e(f"s_cmp_eq_u32 s{sT3}, 1")
e("s_cbranch_scc1 L_ld_v2")
e(f"s_cmp_eq_u32 s{sT3}, 2")
e("s_cbranch_scc1 L_ld_v3")
if TR:
    e(f"s_cmp_eq_u32 s{sT3}, 3")
    e("s_cbranch_scc1 L_ld_v4")
unit_body(D + DV[0])
e("s_branch L_ld_next")
lab("L_ld_v2")
unit_body(D + DV[1])
e("s_branch L_ld_next")
lab("L_ld_v3")
unit_body(D + DV[2])
e("s_branch L_ld_next")
if TR:
    lab("L_ld_v4")
    unit_body(D + TR[2])
    e("s_branch L_ld_next")

lab("L_notloader")
e(f"s_cmp_ge_u32 s{sW}, 3")
e("s_cbranch_scc1 L_planner")
e(f"s_sub_u32 s{sCI}, s{sW}, 1")
def rows_off(sb):
    e(f"s_lshl3_add_u32 s{sQO}, s{sb}, s{sH}")
    e(f"s_lshl1_add_u32 s{sQO}, s{sQO}, s{sCI}")
    e(f"s_lshl_b32 s{sQO}, s{sQO}, 12")
    e(f"v_and_b32 v{vT0}, 15, v{vLANE}")
    e(f"v_lshrrev_b32 v{vG}, 4, v{vLANE}")
def load_q(sb):
    rows_off(sb)
    e(f"v_lshl_add_u32 v{vT4}, v{vT0}, 8, s{sQO}")
    e(f"v_lshl_add_u32 v{vT4}, v{vG}, 4, v{vT4}")
    for s in range(4):
        e(f"global_load_dwordx4 v[{vQ+4*s}:{vQ+4*s+3}], v{vT4}, s[{sQ}:{sQ+1}] offset:{64*s}")
load_q(sB)
e("s_barrier")
e(f"s_mov_b32 s{sROLE}, 0")
e(f"s_mov_b32 s{sPLN}, 0")
e(f"s_mov_b32 s{sMRG}, 0")
if a.spec:
    e("s_waitcnt vmcnt(4) lgkmcnt(0)")
    e(f"v_readlane_b32 s{sCLV}, v{vN}, s{sB}")
else: e("s_waitcnt lgkmcnt(0)")
clamp_cl(zq=sT3)
derive_cl()
c("valid keys of the last logical tile")
e(f"s_lshl_b32 s{sV0}, s{sNTL}, 5")
e(f"s_sub_u32 s{sV0}, s{sCLV}, s{sV0}")
e(f"s_add_u32 s{sV0}, s{sV0}, 32")
e(f"s_bfm_b64 s[{sM}:{sM+1}], s{sNU}, 0")
lab("L_csetup")
e(f"s_mov_b32 s{sMT}, 0")
e(f"s_mov_b32 s{sOFF}, 0")
e(f"s_mov_b32 s{sTB0}, 0")
e(f"s_mov_b32 s{sFIRST}, 1")
e(f"s_mov_b64 s[{sRS}:{sRS+1}], 0")
e("s_waitcnt vmcnt(4)")
e(f"v_and_b32 v{vT0}, 15, v{vLANE}")
e(f"v_xor_b32 v{vT1}, v{vG}, v{vT0}")
e(f"v_lshlrev_b32 v{vT2}, 8, v{vT0}")
e(f"v_lshl_add_u32 v{vKA0}, v{vT1}, 4, v{vT2}")
for s in range(1, 4):
    e(f"v_xor_b32 v{vKA0+s}, {64*s}, v{vKA0}")
e(f"v_bfe_u32 v{vT0}, v{vLANE}, 2, 2")
e(f"v_lshl_add_u32 v{vT1}, v{vG}, 2, v{vT0}")
e(f"v_lshlrev_b32 v{vT1}, 8, v{vT1}")
e(f"v_and_b32 v{vT2}, 3, v{vLANE}")
e(f"v_lshl_add_u32 v{vT1}, v{vT2}, 4, v{vT1}")
e(f"v_lshl_add_u32 v{vVA0}, v{vT0}, 6, v{vT1}")
for j in range(1, 4):
    e(f"v_xor_b32 v{vVA0+j}, {64*j}, v{vVA0}")
e(f"s_lshl_b32 s{sT0}, s{sCI}, 10")
e(f"s_add_u32 s{sT0}, s{sT0}, {PST}")
e(f"v_lshl_add_u32 v{vPA0}, v{vLANE}, 4, s{sT0}")
e(f"v_mov_b32 v{vOA}, v{vT4}")
e(f"s_lshl_b32 s{sT0}, s{sW}, 3")
e(f"s_add_u32 s{sT0}, s{sT0}, {CTRL-8}")
e(f"v_mov_b32 v{vPA}, s{sT0}")
e(f"v_mov_b32 v{vM}, 0xff800000")
e(f"v_mov_b32 v{vLS}, 0")
for r in range(0, 32, 2): e(f"v_mov_b64 v[{vO+r}:{vO+r+1}], 0")
e(f"s_mov_b32 s{sCST}, 0x3e0293ee")
e(f"s_mov_b32 s{sCST+1}, 0x3e0293ee")
e(f"s_mov_b32 s{sLIMF}, {a.limf}")
e(f"s_lshl2_add_u32 s{sFB}, s{sCI}, {FREE}")
e("s_waitcnt vmcnt(0)")
e(f"s_cmp_eq_u32 s{sT3}, 0")
e("s_cbranch_scc1 L_k_first")
for r in range(0, 16, 2): e(f"v_mov_b64 v[{vQ+r}:{vQ+r+1}], 0")

def poll(label):
    lab(label)
    e(f"ds_read_b64 v[{vPL}:{vPL+1}], v{vPA}")
    e(f"s_sub_u32 s{sSPIN}, s{sSPIN}, 1")
    e("s_cbranch_scc1 L_end")
    e("s_waitcnt lgkmcnt(0)")
    e(f"v_readfirstlane_b32 s{sLND}, v{vPL}")
    e(f"s_cmp_ge_i32 s{sLND}, s{sNK}")
    e(f"s_cbranch_scc0 {label}")
VR = []
for j in range(4):
    for ee in range(2):
        for blk in range(2):
            r = vVF + (2 * j + ee) * 4 + 2 * blk
            VR.append(f"ds_read_b64_tr_b16 v[{r}:{r+1}], v{vXA+j} offset:{8*ee + 4096*blk}")
KR, QK = [], []
for blk in range(2):
    for st in range(4):
        r = vKF + (blk * 4 + st) * 4
        KR.append(f"ds_read_b128 v[{r}:{r+3}], v{vXA+st} offset:{4096*blk}")
        cc = "0" if st == 0 else f"v[{vS+4*blk}:{vS+4*blk+3}]"
        QK.append(f"v_mfma_f32_16x16x32_bf16 v[{vS+4*blk}:{vS+4*blk+3}], v[{r}:{r+3}], v[{vQ+4*st}:{vQ+4*st+3}], {cc}")
PV = [f"v_mfma_f32_16x16x32_bf16 v[{vO+4*dt}:{vO+4*dt+3}], v[{vVF+4*dt}:{vVF+4*dt+3}], v[{vP}:{vP+3}], v[{vO+4*dt}:{vO+4*dt+3}]" for dt in range(8)]
NX = [f"s_ff1_i32_b64 s{sTN}, s[{sM}:{sM+1}]",
      f"s_bitset0_b64 s[{sM}:{sM+1}], s{sTN}",
      f"s_add_u32 s{sT1}, s{sTN}, s{sOFF}",
      f"s_mul_i32 s{sT0}, s{sT1}, {DIVM[0]}",
      f"s_lshr_b32 s{sT0}, s{sT0}, {DIVM[1]}",
      f"s_mul_i32 s{sT0}, s{sT0}, {NS}",
      f"s_sub_u32 s{sT0}, s{sT1}, s{sT0}",
      f"s_lshl_b32 s{sSB}, s{sT0}, 13",
      f"s_lshl3_add_u32 s{sFWN}, s{sT0}, s{sFB}",
      f"s_and_b32 s{sT0}, s{sTN}, 0x40000000",
      f"s_add_u32 s{sNK}, s{sT1}, 1",
      f"s_or_b32 s{sNK}, s{sNK}, s{sT0}",
      f"s_sub_u32 s{sPO}, s{sTN}, s{sTB0}",
      f"s_lshl_b32 s{sPO}, s{sPO}, 11"]
KA = [f"v_add_u32 v{vXA+i}, s{sSB}, v{vKA0+i}" for i in range(4)]
VA = [f"v_add_u32 v{vXA+i}, s{sSB}, v{vVA0+i}" for i in range(4)]
ADV = [f"v_mov_b32 v{vFW}, s{sFWN}",
       f"v_mov_b32 v{vFV}, s{sNK}",
       f"v_add_u32 v{vPW}, s{sPO}, v{vPA0}",
       f"s_add_u32 s{sT}, s{sTN}, 1"]
def scale_o(reg):
    for r in range(0, 32, 2):
        sel = "op_sel:[0,1] op_sel_hi:[1,1]" if reg & 1 else "op_sel_hi:[1,0]"
        p = reg & ~1
        e(f"v_pk_mul_f32 v[{vO+r}:{vO+r+1}], v[{vO+r}:{vO+r+1}], v[{p}:{p+1}] {sel}")

def inv_pre():
    e(f"v_mov_b32 v{vT0}, v{vLS}")
    e(f"v_mov_b32 v{vT1}, v{vLS}")
    e("s_nop 1")
    e(f"v_permlane32_swap_b32 v{vT0}, v{vT1}")
    e("s_nop 0")
    e(f"v_add_f32 v{vT0}, v{vT0}, v{vT1}")
    e(f"v_mov_b32 v{vT1}, v{vT0}")
    e("s_nop 1")
    e(f"v_permlane16_swap_b32 v{vT0}, v{vT1}")
    e("s_nop 0")
    e(f"v_add_f32 v{vT0}, v{vT0}, v{vT1}")
    e(f"v_rcp_f32 v{vINV}, v{vT0}")

lab("L_k_first")
for x in NX + KA + ADV: e(x)
lab("L_k_next")
e(f"s_cmp_lt_i32 s{sTN}, 0")
e("s_cbranch_scc1 L_k_empty")
poll("L_k_poll")
for x in KR: e(x)
e("s_waitcnt lgkmcnt(0)")
out.append(".p2align 3")
lab("L_k_top")
e("s_waitcnt lgkmcnt(1)")
e(f"ds_write_b32 v{vFW}, v{vFV}")
e(f"ds_read_b64 v[{vPL}:{vPL+1}], v{vPA}")
fill = NX + KA
for i in range(8):
    e(QK[i])
    for x in fill[2*i:2*i+2]: e(x)
for x in fill[16:]: e(x)
e(f"s_mov_b32 s{sREDO}, 0")
e("s_waitcnt lgkmcnt(0)")
e(f"v_readfirstlane_b32 s{sLND}, v{vPL}")
e(f"s_cmp_ge_i32 s{sLND}, s{sNK}")
e(f"s_cselect_b32 s{sPRE}, 1, 0")
e("s_cbranch_scc0 L_k_nopre")
for x in KR: e(x)
lab("L_k_nopre")
e(f"s_cmp_eq_u32 s{sT}, s{sMT}")
e("s_cbranch_scc1 L_k_mask")
lab("L_k_exp")
for hb in range(2):
    for r in (4*hb, 4*hb+2):
        e(f"v_pk_fma_f32 v[{vE+r}:{vE+r+1}], v[{vS+r}:{vS+r+1}], s[{sCST}:{sCST+1}], v[{vM}:{vM+1}] op_sel_hi:[1,1,0] neg_lo:[0,0,1] neg_hi:[0,0,1]")
    for r in range(4*hb, 4*hb+4):
        e(f"v_exp_f32 v{vE+r}, v{vE+r}")
e(f"v_pk_add_f32 v[{vT0}:{vT1}], v[{vE}:{vE+1}], v[{vE+2}:{vE+3}]")
e(f"v_pk_add_f32 v[{vT2}:{vT3}], v[{vE+4}:{vE+5}], v[{vE+6}:{vE+7}]")
e(f"v_cvt_pk_bf16_f32 v{vP}, v{vE}, v{vE+1}")
e(f"v_pk_add_f32 v[{vT0}:{vT1}], v[{vT0}:{vT1}], v[{vT2}:{vT3}]")
e(f"v_cvt_pk_bf16_f32 v{vP+1}, v{vE+2}, v{vE+3}")
e(f"v_add_f32 v{vT0}, v{vT0}, v{vT1}")
c("the kept reference max is safe only while every weight stays <= 256; otherwise take the true max")
e(f"v_cmp_nge_f32 vcc, s{sLIMF}, v{vT0}")
e(f"v_cvt_pk_bf16_f32 v{vP+2}, v{vE+4}, v{vE+5}")
e(f"v_cvt_pk_bf16_f32 v{vP+3}, v{vE+6}, v{vE+7}")
e(ADV[0]); e(ADV[1])
e("s_nop 0")
e("s_cbranch_vccnz L_k_slow")
lab("L_k_done")
e(f"ds_write_b128 v{vPW}, v[{vP}:{vP+3}]")
e(f"v_add_f32 v{vLS}, v{vLS}, v{vT0}")
e(ADV[3])
e(f"s_cmp_lg_u32 s{sPRE}, 0")
e(ADV[2])
e("s_cbranch_scc1 L_k_top")
e("s_branch L_k_next")

lab("L_k_mask")
e(f"v_lshlrev_b32 v{vT0}, 2, v{vG}")
e(f"v_sub_u32 v{vT0}, s{sV0}, v{vT0}")
e(f"v_mov_b32 v{vT1}, 0xff800000")
for r in range(8):
    e(f"v_cmp_lt_i32 s[{80+2*r}:{81+2*r}], {16*(r//4)+r%4}, v{vT0}")
for r in range(8):
    e(f"v_cndmask_b32 v{vS+r}, v{vT1}, v{vS+r}, s[{80+2*r}:{81+2*r}]")
e("s_branch L_k_exp")

def alpha_addr():
    e(f"s_lshl_b32 s{sT0}, s2, 6")
    e(f"s_add_u32 s{sT0}, s{sT0}, s{sT}")
    e(f"s_lshl1_add_u32 s{sT0}, s{sT0}, s{sCI}")
    e(f"s_lshl_b32 s{sT0}, s{sT0}, 6")
    e(f"s_add_u32 s{sT0}, s{sT0}, {WSA}")
    e(f"v_and_b32 v{vT1}, 15, v{vLANE}")
    e(f"v_lshl_add_u32 v{vT1}, v{vT1}, 2, s{sT0}")
c("raise the reference to the true running max; the accumulator is rescaled when pass 2 reaches this tile")
lab("L_k_slow")
e(f"s_cmp_lg_u32 s{sREDO}, 0")
e("s_cbranch_scc1 L_k_done")
e(f"s_mov_b32 s{sREDO}, 1")
e(f"v_max3_f32 v{vT0}, v{vS}, v{vS+1}, v{vS+2}")
e(f"v_max3_f32 v{vT1}, v{vS+3}, v{vS+4}, v{vS+5}")
e(f"v_max3_f32 v{vT0}, v{vT0}, v{vS+6}, v{vS+7}")
e(f"v_max_f32 v{vT0}, v{vT0}, v{vT1}")
e(f"v_mov_b32 v{vT1}, v{vT0}")
e("s_nop 1")
e(f"v_permlane32_swap_b32 v{vT0}, v{vT1}")
e("s_nop 0")
e(f"v_max_f32 v{vT0}, v{vT0}, v{vT1}")
e(f"v_mov_b32 v{vT1}, v{vT0}")
e("s_nop 1")
e(f"v_permlane16_swap_b32 v{vT0}, v{vT1}")
e("s_nop 0")
e(f"v_max_f32 v{vT0}, v{vT0}, v{vT1}")
e(f"v_mul_f32 v{vT0}, s{sCST}, v{vT0}")
e(f"v_max_f32 v{vMN}, v{vM}, v{vT0}")
e(f"v_sub_f32 v{vAL}, v{vM}, v{vMN}")
e(f"v_exp_f32 v{vAL}, v{vAL}")
e(f"v_mov_b32 v{vM}, v{vMN}")
e(f"s_cmp_lg_u32 s{sFIRST}, 0")
e(f"s_mov_b32 s{sFIRST}, 0")
e(f"v_mul_f32 v{vLS}, v{vLS}, v{vAL}")
e("s_cbranch_scc1 L_k_exp")
alpha_addr()
e(f"global_store_dword v{vT1}, v{vAL}, s[{sWS}:{sWS+1}]")
e(f"s_sub_u32 s{sT0}, s{sT}, 1")
e(f"s_bitset1_b64 s[{sRS}:{sRS+1}], s{sT0}")
e("s_branch L_k_exp")

RLO, RHI = 0xffffffff, (1 << (G - 32)) - 1
lab("L_k_noplan")
e(f"s_mov_b32 s{sPLN}, 1")
e(f"v_mov_b32 v{vT1}, {REC0}")
lab("L_k_plan")
e(f"ds_read_b128 v[{vT2}:{vT5}], v{vT1}")
e("s_waitcnt lgkmcnt(0)")
e(f"v_readfirstlane_b32 s{sT0}, v{vT5}")
e(f"v_readfirstlane_b32 s{sM}, v{vT2}")
e(f"v_readfirstlane_b32 s{sM+1}, v{vT3}")
e(f"v_readfirstlane_b32 s{sTTC}, v{vT4}")
e(f"s_cmp_lg_u32 s{sT0}, 0")
e("s_cbranch_scc1 L_k_got")
spin_tail("L_k_plan")
lab("L_k_got")
e(f"s_lshr_b32 s{sMT}, s{sT0}, 8")
e(f"s_add_u32 s{sMT}, s{sMT}, 1")
e(f"s_and_b32 s{sMRG}, s{sTTC}, {0 if 'nomerge' in DBG else 1}")
e(f"s_lshr_b32 s{sTTC}, s{sTTC}, 8")
e(f"s_min_u32 s{sTB1}, s{sTTC}, {G}")
e(f"s_bfm_b64 s[{sMALL}:{sMALL+1}], s{sNU}, 0")
e(f"s_or_b64 s[{sMALL}:{sMALL+1}], s[{sMALL}:{sMALL+1}], s[{sM}:{sM+1}]")
e(f"s_and_b32 s{sM+1}, s{sM+1}, {RHI:#x}")
e("s_branch L_k_first")
lab("L_v_more")
c("second batch")
e(f"s_mov_b32 s{sTB0}, s{sTB1}")
e(f"s_mov_b32 s{sTB1}, s{sTTC}")
e(f"s_mov_b32 s{sOFF}, s{sTB0}")
e(f"s_mov_b32 s{sMALL}, 0")
e(f"s_andn2_b32 s{sMALL+1}, s{sMALL+1}, {RHI:#x}")
e(f"s_mov_b64 s[{sM}:{sM+1}], s[{sMALL}:{sMALL+1}]")
e("s_branch L_k_first")
lab("L_k_empty")
e(f"s_cmp_eq_u32 s{sPLN}, 0")
e("s_cbranch_scc1 L_k_noplan")
if a.last: inv_pre()
e(f"s_mov_b32 s{sOFF}, s{sTB1}")
e(f"s_mov_b32 s{sM}, s{sMALL}")
e(f"s_and_b32 s{sM+1}, s{sMALL+1}, {RHI:#x}")
e(f"s_cmp_eq_u32 s{sTB0}, 0")
e(f"s_cselect_b32 s{sM+1}, s{sM+1}, s{sMALL+1}")
for x in NX + VA: e(x)
e(f"ds_read_b64 v[{vPL}:{vPL+1}], v{vPA}")
e(f"s_cmp_lt_i32 s{sTN}, 0")
e("s_cbranch_scc1 L_v_empty")
lab("L_v_next")
for x in ADV: e(x)
if a.last:
    e(f"s_cmp_eq_u64 s[{sM}:{sM+1}], 0")
    e("s_cbranch_scc1 L_v_islast")
lab("L_v_next2")
e(f"ds_read_b128 v[{vPN}:{vPN+3}], v{vPW}")
e("s_waitcnt lgkmcnt(1)")
e(f"v_readfirstlane_b32 s{sLND}, v{vPL}")
e(f"s_cmp_ge_i32 s{sLND}, s{sNK}")
e("s_cbranch_scc1 L_v_rd")
poll("L_v_poll")
lab("L_v_rd")
for x in VR: e(x)
if a.lat:
    e(f"v_readfirstlane_b32 s{sMBF}, v{vPL+1}")
    e(f"s_cmp_gt_i32 s{sLND}, s{sNK}")
    e(f"s_cselect_b32 s{sT0}, 1, s{sRS}")
    e(f"s_or_b32 s{sT0}, s{sT0}, s{sRS+1}")
    e(f"s_and_b32 s{sT1}, s{sMBF}, s{sMRG}")
    e(f"s_or_b32 s{sT0}, s{sT0}, s{sT1}")
    e("s_cbranch_scc0 L_v_lat")
out.append(".p2align 3")
lab("L_v_top")
for x in NX + VA: e(x)
e(f"s_sub_u32 s{sT0}, s{sT}, 1")
e(f"s_bitcmp1_b64 s[{sRS}:{sRS+1}], s{sT0}")
e("s_cbranch_scc1 L_v_resc")
lab("L_v_top2")
e("s_waitcnt lgkmcnt(14)")
e(f"v_readfirstlane_b32 s{sMBF}, v{vPL+1}")
e(f"v_readfirstlane_b32 s{sLND}, v{vPL}")
e(f"v_mov_b64 v[{vP}:{vP+1}], v[{vPN}:{vPN+1}]")
e(f"v_mov_b64 v[{vP+2}:{vP+3}], v[{vPN+2}:{vPN+3}]")
e(f"s_and_b32 s{sT0}, s{sMBF}, s{sMRG}")
e("s_cbranch_scc1 L_v_merge")
lab("L_v_top3")
e(f"s_cmp_ge_i32 s{sLND}, s{sNK}")
e("s_cbranch_scc0 L_v_pv")
e(ADV[2])
e("s_waitcnt lgkmcnt(0)")
e(f"ds_write_b32 v{vFW}, v{vFV}")
e(f"ds_read_b64 v[{vPL}:{vPL+1}], v{vPA}")
e(f"ds_read_b128 v[{vPN}:{vPN+3}], v{vPW}")
for i in range(8):
    e(PV[i]); e(VR[2*i]); e(VR[2*i+1])
e(ADV[0]); e(ADV[1]); e(ADV[3])
e("s_branch L_v_top")
if a.lat:
    c("nothing further has landed and nothing is pending: shortest way through this tile")
    lab("L_v_lat")
    e("s_waitcnt lgkmcnt(14)")
    e(f"v_mov_b64 v[{vP}:{vP+1}], v[{vPN}:{vPN+1}]")
    e(f"v_mov_b64 v[{vP+2}:{vP+3}], v[{vPN+2}:{vPN+3}]")
    fl = NX + VA
    e(fl[0]); e(fl[1])
    for i in range(8):
        if i: e(f"s_waitcnt lgkmcnt({14-2*i})")
        if i == 7:
            e(f"ds_write_b32 v{vFW}, v{vFV}")
            e(f"ds_read_b64 v[{vPL}:{vPL+1}], v{vPA}")
        e(PV[i])
        e(fl[2+2*i]); e(fl[3+2*i])
    e(f"s_cmp_ge_i32 s{sTN}, 0")
    e("s_cbranch_scc1 L_v_next")
    e("s_branch L_v_empty")
lab("L_v_pv")
if a.last:
    e(f"s_cmp_lt_i32 s{sTN}, 0")
    e("s_cbranch_scc1 L_v_islast2")
    lab("L_v_pv2")
for i in range(8):
    if i: e(f"s_waitcnt lgkmcnt({14-2*i})")
    if i == 7:
        e(f"ds_write_b32 v{vFW}, v{vFV}")
        e(f"ds_read_b64 v[{vPL}:{vPL+1}], v{vPA}")
    e(PV[i])
e(f"s_cmp_ge_i32 s{sTN}, 0")
e("s_cbranch_scc1 L_v_next")
lab("L_v_empty")
e(f"s_cmp_lt_u32 s{sTB1}, s{sTTC}")
e("s_cbranch_scc1 L_v_more")
stamp(2)
e(f"s_cmp_lg_u32 s{sMRG}, 0")
e("s_cbranch_scc1 L_c_mwait0")
lab("L_c_store")
e(f"v_mov_b32 v{vT0}, v{vLS}")
e(f"v_and_b32 v{vT2}, 15, v{vLANE}")
e(f"v_lshl_add_u32 v{vT2}, v{vT2}, 8, s{sQO}")
e(f"v_permlane32_swap_b32 v{vLS}, v{vT0}")
e("s_nop 0")
e(f"v_add_f32 v{vLS}, v{vLS}, v{vT0}")
e(f"v_mov_b32 v{vT0}, v{vLS}")
e(f"v_lshl_add_u32 v{vT2}, v{vG}, 4, v{vT2}")
e("s_nop 0")
e(f"v_permlane16_swap_b32 v{vLS}, v{vT0}")
e("s_nop 0")
e(f"v_add_f32 v{vLS}, v{vLS}, v{vT0}")
e(f"v_rcp_f32 v{vMN}, v{vLS}")
e(f"s_cmp_lg_u32 s{sROLE}, 0")
scale_o(vMN)
for r in range(16):
    e(f"v_cvt_pk_bf16_f32 v{vKF+r}, v{vO+2*r}, v{vO+2*r+1}")
e("s_cbranch_scc1 L_publish")
def out_stores(fl, step=64):
    for j in range(4):
        e(f"global_store_dwordx4 v{vT2}, v[{vKF+4*j}:{vKF+4*j+3}], s[{sOUT}:{sOUT+1}] offset:{step*j}{fl}")
out_stores(OST)
e(FIN)

def l_total():
    e(f"v_mov_b32 v{vT0}, v{vLS}")
    e(f"v_and_b32 v{vT2}, 15, v{vLANE}")
    e(f"v_lshl_add_u32 v{vT2}, v{vT2}, 8, s{sQO}")
    e(f"v_permlane32_swap_b32 v{vLS}, v{vT0}")
    e("s_nop 0")
    e(f"v_add_f32 v{vLS}, v{vLS}, v{vT0}")
    e(f"v_mov_b32 v{vT0}, v{vLS}")
    e(f"v_lshl_add_u32 v{vT2}, v{vG}, 4, v{vT2}")
    e("s_nop 0")
    e(f"v_permlane16_swap_b32 v{vLS}, v{vT0}")
    e("s_nop 0")
    e(f"v_add_f32 v{vLS}, v{vLS}, v{vT0}")
    e(f"v_rcp_f32 v{vMN}, v{vLS}")
if a.last:
    lab("L_v_islast2")
    e(f"s_sub_u32 s{sT0}, s{sTTC}, s{sTB1}")
    e(f"s_or_b32 s{sT0}, s{sT0}, s{sMRG}")
    e(f"s_or_b32 s{sT0}, s{sT0}, s{sROLE}")
    e("s_cbranch_scc1 L_v_pv2")
    e("s_branch L_v_lpv")
    lab("L_v_islast")
    c("closing tile of an owner with nothing pending: take the short path")
    e(f"s_sub_u32 s{sT0}, s{sTTC}, s{sTB1}")
    e(f"s_or_b32 s{sT0}, s{sT0}, s{sMRG}")
    e(f"s_or_b32 s{sT0}, s{sT0}, s{sROLE}")
    e(f"s_or_b32 s{sT0}, s{sT0}, s{sRS}")
    e(f"s_or_b32 s{sT0}, s{sT0}, s{sRS+1}")
    e("s_cbranch_scc1 L_v_next2")
    e(f"ds_read_b128 v[{vP}:{vP+3}], v{vPW}")
    e("s_waitcnt lgkmcnt(1)")
    e(f"v_readfirstlane_b32 s{sLND}, v{vPL}")
    e(f"s_cmp_ge_i32 s{sLND}, s{sNK}")
    e("s_cbranch_scc1 L_v_lrd")
    poll("L_v_lpoll")
    lab("L_v_lrd")
    for x in VR: e(x)
    def fin_j(j):
        r = []
        for k in range(4):
            q = vO + 8 * j + 2 * k
            r.append(f"v_pk_mul_f32 v[{q}:{q+1}], v[{q}:{q+1}], v[{vINV}:{vINV+1}] op_sel_hi:[1,0]")
        for k in range(4):
            r.append(f"v_cvt_pk_bf16_f32 v{vKF+4*j+k}, v{vO+8*j+2*k}, v{vO+8*j+2*k+1}")
        r.append(f"global_store_dwordx4 v{vOA}, v[{vKF+4*j}:{vKF+4*j+3}], s[{sOUT}:{sOUT+1}] offset:{64*j}{OST}")
        return r
    lab("L_v_lpv")
    f0 = fin_j(0)
    for i in range(8):
        e(f"s_waitcnt lgkmcnt({14-2*i})")
        e(PV[i])
        if i == 5: e(f0[0]); e(f0[1])
        if i == 6: e(f0[2]); e(f0[3])
    stamp(2)
    for x in f0[4:] + fin_j(1) + fin_j(2) + fin_j(3): e(x)
    e(f"ds_write_b32 v{vFW}, v{vFV}")
    e(FIN)

lab("L_v_resc")
e(f"s_bitset0_b64 s[{sRS}:{sRS+1}], s{sT0}")
alpha_addr()
e("s_waitcnt vmcnt(0)")
e(f"global_load_dword v{vAL}, v{vT1}, s[{sWS}:{sWS+1}] sc1")
e("s_waitcnt vmcnt(0)")
scale_o(vAL)
e("s_branch L_v_top2")

lab("L_v_merge")
c("only once no rescale is pending; the reference max stays, so the partial's max must not be far above it")
e(f"s_cmp_eq_u64 s[{sRS}:{sRS+1}], 0")
e("s_cbranch_scc0 L_v_top3")
lab("L_c_merge")
e(f"s_mul_i32 s{sT0}, s{sCI}, {MBS}")
e(f"s_add_u32 s{sT0}, s{sT0}, {MB}")
e(f"v_and_b32 v{vT1}, 15, v{vLANE}")
e(f"v_lshl_add_u32 v{vT0}, v{vLANE}, 4, s{sT0}")
e(f"v_lshl_add_u32 v{vT1}, v{vT1}, 3, s{sT0}")
e("s_waitcnt lgkmcnt(0)")
e(f"ds_write_b32 v{vFW}, v{vFV}")
e(f"ds_read_b64 v[{vT4}:{vT5}], v{vT1} offset:4096")
for i in range(4):
    e(f"ds_read_b128 v[{vKF+4*i}:{vKF+4*i+3}], v{vT0} offset:{1024*i}")
e(f"s_cmp_eq_u32 s{sPLN}, 2")
e("s_waitcnt lgkmcnt(0)")
e("s_cbranch_scc1 L_c_mfin")
e(f"v_sub_f32 v{vT4}, v{vT4}, v{vM}")
e(f"v_cmp_nge_f32 vcc, 0x41800000, v{vT4}")
e(f"s_mov_b32 s{sMRG}, 2")
e("s_nop 3")
e("s_cbranch_vccnz L_v_top3")
e("s_branch L_c_madd")
lab("L_c_mfin")
e(f"v_max_f32 v{vMN}, v{vM}, v{vT4}")
e(f"v_sub_f32 v{vAL}, v{vM}, v{vMN}")
e(f"v_sub_f32 v{vT4}, v{vT4}, v{vMN}")
e(f"v_exp_f32 v{vAL}, v{vAL}")
e("s_nop 0")
e(f"v_mul_f32 v{vLS}, v{vLS}, v{vAL}")
scale_o(vAL)
lab("L_c_madd")
e(f"v_exp_f32 v{vT4}, v{vT4}")
e(f"s_mov_b32 s{sMRG}, 0")
e(f"v_mul_f32 v{vT4}, v{vT4}, v{vT5}")
e(f"v_fmac_f32 v{vLS}, 0x3e800000, v{vT4}")
for r in range(16):
    t = vKF + 16 + 2 * (r % 4)
    e(f"v_lshlrev_b32 v{t}, 16, v{vKF+r}")
    e(f"v_and_b32 v{t+1}, 0xffff0000, v{vKF+r}")
    e(f"v_pk_fma_f32 v[{vO+2*r}:{vO+2*r+1}], v[{t}:{t+1}], v[{vT4}:{vT4+1}], v[{vO+2*r}:{vO+2*r+1}] op_sel_hi:[1,0,1]")
e(f"s_cmp_eq_u32 s{sPLN}, 2")
e("s_cbranch_scc1 L_c_store")
if a.last: inv_pre()
e("s_branch L_v_top3")
lab("L_c_mwait0")
e(f"s_mov_b32 s{sPLN}, 2")
lab("L_c_mwait")
e(f"ds_read_b64 v[{vPL}:{vPL+1}], v{vPA}")
e("s_waitcnt lgkmcnt(0)")
e(f"v_readfirstlane_b32 s{sMBF}, v{vPL+1}")
e(f"s_cmp_lg_u32 s{sMBF}, 0")
e("s_cbranch_scc1 L_c_merge")
spin_tail("L_c_mwait")

def ws_base(sb):
    e(f"s_lshl3_add_u32 s{sT0}, s{sb}, s{sH}")
    e(f"s_lshl_b32 s{sT0}, s{sT0}, 9")
    if WS0: e(f"s_add_u32 s{sT0}, s{sT0}, {WS0}")

lab("L_publish")
if "nopub" in DBG: e("s_endpgm")
e(f"v_lshl_add_u32 v{vT2}, v{vLANE}, 4, s{sQO}")
e(f"s_lshl_b32 s{sT2}, s{sPB}, 2")
e(f"v_mov_b32 v{vT3}, s{sT2}")
e(f"v_lshlrev_b32 v{vT4}, 1, v{vT3}")
e(f"v_add_u32 v{vT4}, {CTRL+68}, v{vT4}")
e(f"ds_read_b32 v{vT4}, v{vT4}")
ws_base(sPB)
e(f"s_lshl2_add_u32 s{sT1}, s{sCI}, s{sT0}")
e(f"v_mov_b32 v{vT5}, s{sT1}")
e(f"s_lshl_b32 s{sT1}, s{sCI}, 7")
e(f"s_add_u32 s{sT0}, s{sT0}, s{sT1}")
e(f"v_lshl_add_u32 v{vT1}, v{vLANE}, 3, s{sT0}")
e(f"s_getreg_b32 s{sT2}, hwreg(HW_REG_XCC_ID, 0, 4)")
e(f"s_lshl_b32 s{sT2}, s{sT2}, 4")
e(f"s_or_b32 s{sT2}, s{sT2}, s{sH}")
e(f"s_or_b32 s{sT2}, s{sT2}, 0x100")
e("s_waitcnt lgkmcnt(0)")
e(f"v_readfirstlane_b32 s{sT1}, v{vT4}")
e(f"s_lshr_b32 s{sT1}, s{sT1}, 16")
e(f"s_cmp_eq_u32 s{sT1}, s{sT2}")
e("s_cbranch_scc1 L_pub_fast")
e(f"global_load_dword v{vT4}, v{vT3}, s[{sDBG}:{sDBG+1}] offset:128 sc1")
e("s_waitcnt vmcnt(0)")
e(f"v_readfirstlane_b32 s{sT1}, v{vT4}")
e(f"s_lshr_b32 s{sT1}, s{sT1}, 16")
e(f"s_cmp_eq_u32 s{sT1}, s{sT2}")
e("s_cbranch_scc0 L_pub_slow")
lab("L_pub_fast")
c("the receiver runs on this die and has cleared its flag words: hand over inside the shared L2")
out_stores(" " + a.pst if a.pst else "", 1024)
e("s_mov_b64 exec, 0xffff")
e(f"global_store_dwordx2 v{vT1}, v[{vM}:{vM+1}], s[{sWS}:{sWS+1}]")
e(f"v_mov_b32 v{vT4}, 1")
e("s_waitcnt vmcnt(0)")
e("s_mov_b64 exec, 1")
e(f"global_store_dword v{vT5}, v{vT4}, s[{sWS}:{sWS+1}] offset:256")
e(FIN)
lab("L_pub_slow")
c("any other placement: write through to memory, then set a bit with a device-wide atomic")
out_stores(" sc1", 1024)
e("s_mov_b64 exec, 0xffff")
e(f"global_store_dwordx2 v{vT1}, v[{vM}:{vM+1}], s[{sWS}:{sWS+1}] sc1")
e(f"s_lshl1_add_u32 s{sT1}, s{sH}, s{sCI}")
e(f"s_lshl_b32 s{sT1}, 1, s{sT1}")
e(f"v_mov_b32 v{vT4}, s{sT1}")
e("s_waitcnt vmcnt(0)")
e("s_mov_b64 exec, 1")
e(f"global_atomic_add v{vT3}, v{vT4}, s[{sDBG}:{sDBG+1}]")
e(FIN)

vRW = vL
vKEY, vRK = 19, 20
lab("L_ctl0")
if a.skew:
    c("dies are not started at the same instant: the first eight workgroups post when they started")
    e(f"s_memrealtime s[{sMA}:{sMA+1}]")
    e(f"s_lshl2_add_u32 s{sT0}, s{sH}, 2")
    e(f"v_mov_b32 v{vT4}, s{sT0}")
    e(f"s_cmp_lg_u32 s{sB}, 0")
    e("s_waitcnt lgkmcnt(0)")
    e("s_cbranch_scc1 L_ctl1")
    e(f"s_or_b32 s{sT0}, s{sMA}, 0x8000")
    e(f"v_mov_b32 v{vT5}, s{sT0}")
    e("s_mov_b64 exec, 1")
    e(f"global_store_short v{vT4}, v{vT5}, s[{sDBG}:{sDBG+1}] sc1")
    e("s_mov_b64 exec, -1")
    lab("L_ctl1")
e("s_barrier")
e("s_branch L_ctl")
lab("L_planner")
e(f"s_cmp_eq_u32 s{sW}, 5")
e("s_cbranch_scc1 L_ctl0")
e(f"s_sub_u32 s{sCI}, s{sW}, 3")
e(f"s_lshl_b32 s{sSB}, s{sCI}, 8")
e(f"s_add_u32 s{sSB}, s{sSB}, {CNT}")
e(f"v_lshl_add_u32 v{vPA}, v{vLANE}, 2, s{sSB}")
e(f"s_lshl_b32 s{sT2}, s{sCI}, 7")
e(f"s_add_u32 s{sT2}, s{sT2}, {KEYS}")
e(f"v_add_u32 v{vT3}, s{sT2}, v{vT3}")
e(f"v_lshrrev_b32 v{vT4}, 5, v{vLANE}")
e(f"v_lshl_add_u32 v{vT4}, v{vT4}, 6, s{sT2}")
e(f"v_mov_b32 v{vT5}, 2048")
e("s_barrier")
e("s_waitcnt vmcnt(0)")
e(f"v_cmp_gt_i32 s[{sZQ}:{sZQ+1}], 1, v{vN}")
e(f"v_min_i32 v{vN}, v{vN}, v{vT5}")
e("s_nop 0")
e(f"v_cndmask_b32 v{vN}, v{vN}, v{vT5}, s[{sZQ}:{sZQ+1}]")
e(f"v_add_u32 v{vN}, 15, v{vN}")
e(f"v_lshrrev_b32 v{vN}, 4, v{vN}")
e(f"v_lshl_or_b32 v{vKEY}, v{vN}, 5, v{vT0}")
e(f"ds_write_b32 v{vT3}, v{vKEY}")
for i in range(4):
    e(f"ds_read_b128 v[{vKF+4*i}:{vKF+4*i+3}], v{vT4} offset:{16*i}")
e(f"v_mov_b32 v{vRK}, 0")
e(f"v_readlane_b32 s{sNB}, v{vN}, s{sB}")
e("s_waitcnt lgkmcnt(0)")
c("rank of every batch by block count; the batch of rank 31-r is the partner")
for i in range(16):
    e(f"v_sub_u32 v{vKF+i}, v{vKF+i}, v{vKEY}")
for i in range(16):
    e(f"v_alignbit_b32 v{vRK}, v{vRK}, v{vKF+i}, 31")
e(f"v_bcnt_u32_b32 v{vRK}, v{vRK}, 0")
e(f"v_mov_b32 v{vT2}, v{vRK}")
derive_nb()
e(f"v_permlane32_swap_b32 v{vRK}, v{vT2}")
e("s_nop 0")
e(f"v_add_u32 v{vRK}, v{vRK}, v{vT2}")
e("s_nop 0")
e(f"v_readlane_b32 s{sRK}, v{vRK}, s{sB}")
e(f"s_sub_u32 s{sT0}, 31, s{sRK}")
e(f"v_cmp_eq_u32 vcc, s{sT0}, v{vRK}")
e(f"s_ff1_i32_b32 s{sPB}, vcc_lo")
e(f"v_readlane_b32 s{sNP}, v{vN}, s{sPB}")
e(f"s_max_u32 s{sT0}, s{sNB}, s{sNP}")
e(f"s_min_u32 s{sT1}, s{sNB}, s{sNP}")
e(f"s_sub_u32 s{sX}, s{sT0}, s{sT1}")
e(f"s_add_u32 s{sX}, s{sX}, 2")
e(f"s_lshr_b32 s{sX}, s{sX}, 2")
e(f"s_cmp_lt_u32 s{sT0}, {4*NUM+8}")
e(f"s_cselect_b32 s{sX}, 0, s{sX}")
if a.nopair: e(f"s_mov_b32 s{sX}, 0")
e(f"s_cmp_ge_u32 s{sRK}, 16")
e(f"s_cselect_b32 s{sLO}, s{sX}, 0")
e(f"s_cselect_b32 s{sTB}, 0, s{sX}")
e(f"s_cmp_eq_u32 s{sCI}, 0")
e("s_cbranch_scc1 L_pl_norow")
e(f"s_lshl_b32 s{sT0}, s{sPB}, 9")
e(f"v_lshl_add_u32 v{vT1}, v{vLANE}, 3, s{sT0}")
e(f"global_load_dwordx2 v[{vRW}:{vRW+1}], v{vT1}, s[{sBT}:{sBT+1}]")
lab("L_pl_norow")
e(f"s_sub_u32 s{sTA}, s{sNTL}, s{sLO}")
e(f"s_add_u32 s{sT}, s{sTA}, s{sTB}")
e(f"s_mul_i32 s{sF}, s{sT}, {a.fnum}")
e(f"s_lshr_b32 s{sF}, s{sF}, 6")
e(f"s_min_u32 s{sWB}, s{sTA}, {a.UB}")
e(f"s_sub_i32 s{sF}, s{sF}, s{sWB}")
e(f"s_max_i32 s{sF}, s{sF}, s{sTB}")
e(f"s_max_i32 s{sF}, s{sF}, 1")
e(f"v_cvt_f32_u32 v{vT2}, s{sF}")
e(f"v_subrev_u32 v{vT3}, s{sWB}, v{vLANE}")
e(f"v_rcp_f32 v{vT2}, v{vT2}")
e(f"v_mul_i32_i24 v{vT4}, s{sTB}, v{vT3}")
e(f"v_add_u32 v{vT5}, s{sTB}, v{vT4}")
e(f"v_cvt_f32_i32 v{vT4}, v{vT4}")
e(f"v_cvt_f32_i32 v{vT5}, v{vT5}")
e(f"v_add_f32 v{vT4}, 0.5, v{vT4}")
e(f"v_add_f32 v{vT5}, 0.5, v{vT5}")
e(f"v_mul_f32 v{vT4}, v{vT4}, v{vT2}")
e(f"v_mul_f32 v{vT5}, v{vT5}, v{vT2}")
e(f"v_floor_f32 v{vT4}, v{vT4}")
e(f"v_floor_f32 v{vT5}, v{vT5}")
e(f"v_cmp_gt_u32 vcc, s{sF}, v{vT3}")
e(f"v_cmp_gt_f32 s[{sMBK}:{sMBK+1}], v{vT5}, v{vT4}")
e(f"s_sub_u32 s{sT0}, s{sT}, s{sNU}")
e(f"v_subrev_u32 v{vT3}, s{sNU}, v{vLANE}")
e(f"v_cmp_gt_u32 s[{sMA}:{sMA+1}], s{sT0}, v{vT3}")
e(f"s_and_b64 s[{sMBK}:{sMBK+1}], s[{sMBK}:{sMBK+1}], vcc")
e(f"s_andn2_b64 s[{sMA}:{sMA+1}], s[{sMA}:{sMA+1}], s[{sMBK}:{sMBK+1}]")
c(f"own tiles to sort: logical [NU+given, ntile); donated: the partner's logical [{NUM}, {NUM}+TB)")
mfirst = a.mfirst and not a.nosort
if mfirst:
    e(f"s_ff1_i32_b64 s{sT2}, s[{sMA}:{sMA+1}]")
else:
    e(f"s_flbit_i32_b64 s{sT2}, s[{sMA}:{sMA+1}]")
    e(f"s_sub_u32 s{sT2}, 63, s{sT2}")
e(f"s_lshl_b32 s{sT2}, s{sT2}, 8")
e(f"s_or_b32 s{sWB}, s{sT2}, 1")
e(f"s_min_u32 s{sMRG}, s{sLO}, 1")
SM = [int(x) for x in a.smart.split(",")] if a.smart else None
sV0M, sV1M, sCM, sD2, sCN = 72, 74, 76, 78, 79
if SM:
    e(f"s_lshl_b32 s{sD2}, s{sLO}, 1")
    e(f"s_sub_u32 s{sCN}, s{sNTL}, {NUM+1}")
    e(f"s_mov_b32 s{sLO}, 0")
e(f"s_add_u32 s{sLO}, s{sLO}, s{sNU}")
e(f"s_sub_u32 s{sHI}, s{sNTL}, s{sLO}")
e(f"s_sub_u32 s{sT3}, s{sNTL}, 1")
e(f"s_mov_b32 s{sLBASE}, {LA}")
e(f"s_cmp_eq_u32 s{sCI}, 0")
e("s_cbranch_scc1 L_pl_a")
e(f"s_mov_b32 s{sLO}, {NUM}")
e(f"s_mov_b32 s{sHI}, s{sTB}")
e(f"s_mov_b32 s{sT3}, -1")
if SM:
    e(f"s_lshl_b32 s{sD2}, s{sTB}, 1")
    e(f"s_add_u32 s{sCN}, s{sNP}, 1")
    e(f"s_lshr_b32 s{sCN}, s{sCN}, 1")
    e(f"s_sub_u32 s{sCN}, s{sCN}, {NUM+1}")
e(f"s_mov_b32 s{sLBASE}, {LB}")
e(f"s_mov_b64 s[{sMA}:{sMA+1}], s[{sMBK}:{sMBK+1}]")
e("s_branch L_pl_sort")
lab("L_pl_a")
e(f"s_lshl_b32 s{sT0}, s{sT}, 8")
e(f"s_or_b32 s{sT0}, s{sT0}, s{sMRG}")
e(f"v_mov_b32 v{vT2}, s{sMA}")
e(f"v_mov_b32 v{vT3}, s{sMA+1}")
e(f"v_mov_b32 v{vT4}, s{sT0}")
e(f"v_mov_b32 v{vT5}, s{sWB}")
e(f"v_mov_b32 v{vT1}, {REC0}")
e(f"ds_write_b128 v{vT1}, v[{vT2}:{vT5}]")
lab("L_pl_sort")
e(f"v_subrev_u32 v{vT0}, s{sLO}, v{vLANE}")
e(f"v_cmp_gt_u32 vcc, s{sHI}, v{vT0}")
e(f"v_mov_b32 v{vT5}, 1")
e("s_waitcnt vmcnt(0)")
if SM:
    c("blocks to hand over: the first 2x candidates lying in the part of memory swept while the helper works on them")
    e(f"s_mov_b64 s[{sV0M}:{sV0M+1}], 0")
    e(f"s_mov_b64 s[{sV1M}:{sV1M+1}], 0")
    e(f"s_cmp_eq_u32 s{sD2}, 0")
    e("s_cbranch_scc1 L_pl_nod")
    e(f"s_movk_i32 s{sT0}, {SM[1]-SM[0]}")
    e(f"v_subrev_u32 v{vT2}, {SM[0]}, v{vRW}")
    e(f"v_subrev_u32 v{vT3}, {SM[0]}, v{vRW+1}")
    e(f"s_bfm_b64 s[{sCM}:{sCM+1}], s{sCN}, {NUM}")
    e(f"v_cmp_gt_u32 s[{sV0M}:{sV0M+1}], s{sT0}, v{vT2}")
    e(f"v_cmp_gt_u32 s[{sV1M}:{sV1M+1}], s{sT0}, v{vT3}")
    e(f"s_and_b64 s[{sV0M}:{sV0M+1}], s[{sV0M}:{sV0M+1}], s[{sCM}:{sCM+1}]")
    e(f"s_and_b64 s[{sV1M}:{sV1M+1}], s[{sV1M}:{sV1M+1}], s[{sCM}:{sCM+1}]")
    e(f"s_bcnt1_i32_b64 s{sT0}, s[{sV0M}:{sV0M+1}]")
    e(f"s_bcnt1_i32_b64 s{sT1}, s[{sV1M}:{sV1M+1}]")
    e(f"s_add_u32 s{sT1}, s{sT1}, s{sT0}")
    e(f"s_cmp_lt_u32 s{sT1}, s{sD2}")
    e(f"s_cselect_b64 s[{sV0M}:{sV0M+1}], s[{sCM}:{sCM+1}], s[{sV0M}:{sV0M+1}]")
    e(f"s_cselect_b64 s[{sV1M}:{sV1M+1}], s[{sCM}:{sCM+1}], s[{sV1M}:{sV1M+1}]")
    e(f"s_cselect_b32 s{sT0}, s{sCN}, s{sT0}")
    e(f"v_mbcnt_lo_u32_b32 v{vT2}, s{sV0M}, 0")
    e(f"v_mbcnt_lo_u32_b32 v{vT3}, s{sV1M}, 0")
    e(f"v_mbcnt_hi_u32_b32 v{vT2}, s{sV0M+1}, v{vT2}")
    e(f"v_mbcnt_hi_u32_b32 v{vT3}, s{sV1M+1}, v{vT3}")
    e(f"s_sub_u32 s{sT0}, s{sD2}, s{sT0}")
    e(f"v_cmp_gt_i32 s[{sCM}:{sCM+1}], s{sD2}, v{vT2}")
    e(f"s_and_b64 s[{sV0M}:{sV0M+1}], s[{sV0M}:{sV0M+1}], s[{sCM}:{sCM+1}]")
    e(f"v_cmp_gt_i32 s[{sCM}:{sCM+1}], s{sT0}, v{vT3}")
    e(f"s_and_b64 s[{sV1M}:{sV1M+1}], s[{sV1M}:{sV1M+1}], s[{sCM}:{sCM+1}]")
    lab("L_pl_nod")
    e(f"s_cmp_lg_u32 s{sCI}, 0")
    e("s_cbranch_scc1 L_pl_val")
    e(f"s_andn2_b64 s[{sV0M}:{sV0M+1}], vcc, s[{sV0M}:{sV0M+1}]")
    e(f"s_andn2_b64 s[{sV1M}:{sV1M+1}], vcc, s[{sV1M}:{sV1M+1}]")
    lab("L_pl_val")
X0 = f"s[{sV0M}:{sV0M+1}]" if SM else "vcc"
X1 = f"s[{sV1M}:{sV1M+1}]"
if a.nosort:
    e(f"v_lshlrev_b32 v{vT2}, 1, v{vT0}")
    e(f"v_add_u32 v{vT3}, 1, v{vT2}")
else:
    c("counting sort of the block ids into 64 buckets of ascending physical address")
    e(f"v_lshrrev_b32 v{vT0}, 6, v{vRW}")
    e(f"v_lshrrev_b32 v{vT1}, 6, v{vRW+1}")
    e(f"v_cmp_eq_u32 s[{sRK+2}:{sRK+3}], s{sT3}, v{vLANE}")
    if mfirst:
        e(f"v_med3_u32 v{vT0}, v{vT0}, 1, 63")
        e(f"v_med3_u32 v{vT1}, v{vT1}, 1, 63")
    else:
        e(f"v_min_u32 v{vT0}, 62, v{vT0}")
        e(f"v_min_u32 v{vT1}, 62, v{vT1}")
    fb = 0 if mfirst else 63
    e(f"v_cndmask_b32 v{vT0}, v{vT0}, {fb}, s[{sRK+2}:{sRK+3}]")
    e(f"v_cndmask_b32 v{vT1}, v{vT1}, {fb}, s[{sRK+2}:{sRK+3}]")
    e(f"v_lshlrev_b32 v{vT0}, 2, v{vT0}")
    e(f"v_lshlrev_b32 v{vT1}, 2, v{vT1}")
    e(f"v_add_u32 v{vKF}, s{sSB}, v{vT0}")
    e(f"v_add_u32 v{vKF+1}, s{sSB}, v{vT1}")
    e(f"s_mov_b64 exec, {X0}")
    e(f"ds_add_rtn_u32 v{vT2}, v{vKF}, v{vT5}")
    if SM: e(f"s_mov_b64 exec, {X1}")
    e(f"ds_add_rtn_u32 v{vT3}, v{vKF+1}, v{vT5}")
    e("s_mov_b64 exec, -1")
    e(f"ds_read_b32 v{vT4}, v{vPA}")
    e("s_waitcnt lgkmcnt(0)")
    e(f"v_mov_b32 v{vKF+2}, v{vT4}")
    for sh in (1, 2, 4, 8):
        e("s_nop 1")
        e(f"v_add_u32_dpp v{vT4}, v{vT4}, v{vT4} row_shr:{sh} row_mask:0xf bank_mask:0xf bound_ctrl:0")
    e("s_nop 1")
    e(f"v_add_u32_dpp v{vT4}, v{vT4}, v{vT4} row_bcast:15 row_mask:0xa bank_mask:0xf")
    e("s_nop 1")
    e(f"v_add_u32_dpp v{vT4}, v{vT4}, v{vT4} row_bcast:31 row_mask:0xc bank_mask:0xf")
    e(f"v_sub_u32 v{vT4}, v{vT4}, v{vKF+2}")
    e(f"ds_bpermute_b32 v{vT0}, v{vT0}, v{vT4}")
    e(f"ds_bpermute_b32 v{vT1}, v{vT1}, v{vT4}")
    e("s_waitcnt lgkmcnt(0)")
    e(f"v_add_u32 v{vT2}, v{vT2}, v{vT0}")
    e(f"v_add_u32 v{vT3}, v{vT3}, v{vT1}")
e(f"v_lshlrev_b32 v{vRW}, 15, v{vRW}")
e(f"v_lshlrev_b32 v{vRW+1}, 15, v{vRW+1}")
e(f"v_lshl_add_u32 v{vT2}, v{vT2}, 2, s{sLBASE}")
e(f"v_lshl_add_u32 v{vT3}, v{vT3}, 2, s{sLBASE}")
e(f"s_mov_b64 exec, {X0}")
e(f"ds_write_b32 v{vT2}, v{vRW}")
if SM: e(f"s_mov_b64 exec, {X1}")
e(f"ds_write_b32 v{vT3}, v{vRW+1}")
e("s_mov_b64 exec, -1")
c("place the sorted tiles at their stream positions; flags: 1 valid, 2 masked, 4 last of batch, 8 last of stream")
e(f"v_mbcnt_lo_u32_b32 v{vT0}, s{sMA}, 0")
e(f"v_mbcnt_hi_u32_b32 v{vT0}, s{sMA+1}, v{vT0}")
e(f"v_lshl_add_u32 v{vT0}, v{vT0}, 3, s{sLBASE}")
e(f"ds_read_b64 v[{vT2}:{vT3}], v{vT0}")
e(f"s_lshr_b32 s{sT0}, s{sWB}, 8")
e(f"s_sub_u32 s{sT1}, s{sT}, 1")
e(f"v_cmp_eq_u32 vcc, s{sT0}, v{vLANE}")
e(f"v_cmp_eq_u32 s[{sRK+2}:{sRK+3}], s{sT1}, v{vLANE}")
e(f"v_cmp_eq_u32 s[{sT2}:{sT2+1}], {G-1}, v{vLANE}")
e(f"v_cndmask_b32 v{vT4}, 1, 3, vcc")
e(f"v_cndmask_b32 v{vT5}, 0, 12, s[{sRK+2}:{sRK+3}]")
e(f"v_cndmask_b32 v{vT1}, 0, 4, s[{sT2}:{sT2+1}]")
e(f"v_or3_b32 v{vT4}, v{vT4}, v{vT5}, v{vT1}")
if TR:
    e(f"s_sub_u32 s{sT1}, s{sT}, {TR[0]}")
    e(f"v_cmp_le_i32 vcc, s{sT1}, v{vLANE}")
    e("s_nop 1")
    e(f"v_cndmask_b32 v{vT5}, 0, 16, vcc")
    e(f"v_or_b32 v{vT4}, v{vT4}, v{vT5}")
e(f"v_lshlrev_b32 v{vT0}, 3, v{vLANE}")
e(f"v_add_u32 v{vT0}, {SL}, v{vT0}")
e("s_waitcnt lgkmcnt(0)")
e(f"v_or_b32 v{vT2}, v{vT2}, v{vT4}")
e(f"s_mov_b64 exec, s[{sMA}:{sMA+1}]")
e(f"ds_write_b64 v{vT0}, v[{vT2}:{vT3}]")
e("s_mov_b64 exec, -1")
lab("L_pl_done")
e(f"s_cmp_lg_u32 s{sMRG}, 0")
e("s_cbranch_scc1 L_fetch")
e(f"s_cmp_eq_u32 s{sTB}, 0")
e("s_cbranch_scc1 L_fin")
c("become the consumer of the donated tiles")
load_q(sPB)
e(f"s_mov_b64 s[{sMALL}:{sMALL+1}], s[{sMBK}:{sMBK+1}]")
e(f"s_mov_b32 s{sM}, s{sMBK}")
e(f"s_and_b32 s{sM+1}, s{sMBK+1}, {RHI:#x}")
e(f"s_mov_b32 s{sTTC}, s{sT}")
e(f"s_min_u32 s{sTB1}, s{sT}, {G}")
e(f"s_mov_b32 s{sROLE}, 1")
e(f"s_mov_b32 s{sPLN}, 1")
e(f"s_lshr_b32 s{sT3}, s{sZQ}, s{sPB}")
e(f"s_and_b32 s{sT3}, s{sT3}, 1")
e("s_branch L_csetup")

lab("L_fetch")
e(f"s_cmp_lg_u32 s{sCI}, 0")
e("s_cbranch_scc1 L_fin")
rows_off(sB)
if a.otouch >= 0:
    c("make the lines that will carry the partial valid in L2 (a later read of write-only lines would go to memory)")
    e(f"v_lshl_add_u32 v{vT4}, v{vLANE}, 7, s{sQO}")
    e(f"global_load_dword v{vPF}, v{vT4}, s[{sOUT}:{sOUT+1}] {a.ofl.replace('+', ' ')}")
ws_base(sB)
e(f"v_lshl_add_u32 v{vT1}, v{vT0}, 3, s{sT0}")
e(f"v_mov_b32 v{vFW}, s{sT0}")
e(f"s_lshl_b32 s{sT2}, s{sB}, 2")
e(f"v_mov_b32 v{vT2}, s{sT2}")
e(f"v_mov_b32 v{vPA}, {CTRL+16}")
e("s_mov_b64 exec, 1")
e(f"s_mul_i32 s{sNEED}, s{sT}, {a.pollnum}")
e(f"s_lshr_b32 s{sNEED}, s{sNEED}, 5")
e(f"s_lshl_b32 s{sT3}, s{sH}, 1")
e(f"s_mov_b32 s{sMBF}, 0")
c("wait until wave 5 has cleared the flag words and the stream is far enough")
lab("L_f_wait")
e(f"ds_read_b64 v[{vPL}:{vPL+1}], v{vPA}")
e("s_waitcnt lgkmcnt(0)")
e(f"v_readfirstlane_b32 s{sLND}, v{vPL}")
e(f"v_readfirstlane_b32 s{sT0}, v{vPL+1}")
e(f"s_cmp_ge_i32 s{sLND}, s{sNEED}")
e(f"s_cselect_b32 s{sT0}, s{sT0}, 0")
e(f"s_cmp_lg_u32 s{sT0}, 0")
e("s_cbranch_scc1 L_f_poll")
spin_tail("L_f_wait", 8)
lab("L_f_poll")
if "nopoll" in DBG: e("s_branch L_f_got")
e(f"global_load_dwordx2 v[{vPL}:{vPL+1}], v{vFW}, s[{sWS}:{sWS+1}] offset:256 sc1")
e(f"s_add_u32 s{sMBF}, s{sMBF}, 1")
e(f"s_and_b32 s{sT0}, s{sMBF}, 3")
e(f"s_mov_b32 s{sT2}, 0")
e("s_cbranch_scc1 L_f_nodbg")
e(f"global_load_dword v{vT3}, v{vT2}, s[{sDBG}:{sDBG+1}] sc1")
e("s_waitcnt vmcnt(0)")
e(f"v_readfirstlane_b32 s{sT2}, v{vT3}")
e(f"s_lshr_b32 s{sT2}, s{sT2}, s{sT3}")
lab("L_f_nodbg")
e("s_waitcnt vmcnt(0)")
e(f"v_lshl_or_b32 v{vPL}, v{vPL+1}, 1, v{vPL}")
e("s_nop 0")
e(f"v_readfirstlane_b32 s{sT0}, v{vPL}")
e(f"s_or_b32 s{sT0}, s{sT0}, s{sT2}")
e(f"s_and_b32 s{sT0}, s{sT0}, 3")
e(f"s_cmp_eq_u32 s{sT0}, 3")
e("s_cbranch_scc1 L_f_got")
spin_tail("L_f_poll", a.psleep)
lab("L_f_got")
e("s_mov_b64 exec, -1")
c("a half that came through memory: acquire at device scope before reading it")
e(f"s_and_b32 s{sT2}, s{sT2}, 3")
e("s_cbranch_scc0 L_f_ld")
e("buffer_inv sc1")
e("s_waitcnt vmcnt(0)")
lab("L_f_ld")
e(f"v_lshl_add_u32 v{vT4}, v{vLANE}, 4, s{sQO}")
e(f"v_add_u32 v{vT5}, 4096, v{vT4}")
FLD = " " + a.fld if a.fld != "none" else ""
for cc in range(2):
    if "nofetch" in DBG:
        e(f"v_mov_b32 v{vM+2*cc}, 0"); e(f"v_mov_b32 v{vM+2*cc+1}, 0")
        continue
    e(f"global_load_dwordx2 v[{vM+2*cc}:{vM+2*cc+1}], v{vT1}, s[{sWS}:{sWS+1}] offset:{128*cc}{FLD}")
    for j in range(4):
        r = vKF + 16 * cc + 4 * j
        e(f"global_load_dwordx4 v[{r}:{r+3}], v{vT4+cc}, s[{sOUT}:{sOUT+1}] offset:{1024*j}{FLD}")
e(f"v_lshlrev_b32 v{vT2}, 4, v{vLANE}")
e(f"v_add_u32 v{vT2}, {MB}, v{vT2}")
e(f"v_lshlrev_b32 v{vT0}, 3, v{vT0}")
e(f"v_add_u32 v{vT0}, {MB}, v{vT0}")
e(f"v_mov_b32 v{vPL}, {CTRL+4}")
e(f"v_mov_b32 v{vT3}, 1")
for cc in range(2):
    e(f"s_waitcnt vmcnt({5-5*cc})")
    for j in range(4):
        r = vKF + 16 * cc + 4 * j
        e(f"ds_write_b128 v{vT2}, v[{r}:{r+3}] offset:{MBS*cc + 1024*j}")
    e(f"ds_write_b64 v{vT0}, v[{vM+2*cc}:{vM+2*cc+1}] offset:{MBS*cc + 4096}")
    e(f"ds_write_b32 v{vPL}, v{vT3} offset:{8*cc}")
e(FIN)

c("wave 5: workgroups that share an L2 post their remaining work; one that lags prefetches deeper")
lab("L_ctl")
e(f"v_mov_b32 v{vT1}, {REC0}")
e(f"v_mov_b32 v{vPA}, {CTRL+32}")
e(f"v_mov_b32 v{vFW}, {DEPW}")
e(f"s_lshl_b32 s{sT0}, s{sB}, 2")
e(f"v_mov_b32 v{vG}, s{sT0}")
e(f"v_mov_b32 v{vFV}, v{vT3}")
lo = sum((XT[i] & 255) << (8 * i) for i in range(4)); hi = sum((XT[4 + i] & 255) << (8 * i) for i in range(4))
e(f"s_getreg_b32 s{sT0}, hwreg(HW_REG_XCC_ID, 0, 3)")
e(f"s_mov_b32 s{sM}, {lo:#x}")
e(f"s_mov_b32 s{sM+1}, {hi:#x}")
e(f"s_lshl_b32 s{sT0}, s{sT0}, 3")
e(f"s_lshr_b64 s[{sM}:{sM+1}], s[{sM}:{sM+1}], s{sT0}")
e(f"s_sext_i32_i8 s{sBO}, s{sM}")
if a.hcap:
    c("heads 1 and 5 keep fewer bytes in flight per request (L1 set mapping)")
    e(f"s_and_b32 s{sT0}, s{sH}, 3")
    e(f"s_cmp_eq_u32 s{sT0}, 1")
    e(f"s_cselect_b32 s{sT0}, {a.hcap}, 0")
    e(f"s_add_u32 s{sBO}, s{sBO}, s{sT0}")
lab("L_g_plan")
e(f"ds_read_b128 v[{vT2}:{vT5}], v{vT1}")
e("s_waitcnt lgkmcnt(0)")
e(f"v_readfirstlane_b32 s{sT0}, v{vT5}")
e(f"v_readfirstlane_b32 s{sT}, v{vT4}")
e(f"s_cmp_lg_u32 s{sT0}, 0")
e("s_cbranch_scc1 L_g_go")
spin_tail("L_g_plan", 8)
lab("L_g_go")
e(f"s_and_b32 s{sMRG}, s{sT}, 1")
e("s_cbranch_scc0 L_g_nores")
c("a partial is expected: clear its flag words before anything is posted")
ws_base(sB)
e(f"v_mov_b32 v{vT0}, s{sT0}")
e(f"v_mov_b32 v{vT2}, 0")
e(f"v_mov_b32 v{vT3}, 0")
e(f"v_mov_b32 v{vT4}, {CTRL+20}")
e(f"v_mov_b32 v{vT5}, 1")
e("s_mov_b64 exec, 1")
e(f"global_store_dwordx2 v{vT0}, v[{vT2}:{vT3}], s[{sWS}:{sWS+1}] offset:256")
e("s_waitcnt vmcnt(0)")
e(f"ds_write_b32 v{vT4}, v{vT5}")
e("s_mov_b64 exec, -1")
lab("L_g_nores")
e(f"s_and_b32 s{sT0}, s{sDBG}, 127")
e("s_cbranch_scc1 L_fin")
c("posted word: remaining units + 1 | head << 16 | die << 20 | flags cleared << 24")
e(f"s_getreg_b32 s{sFB}, hwreg(HW_REG_XCC_ID, 0, 4)")
e(f"s_lshl4_add_u32 s{sFB}, s{sMRG}, s{sFB}")
e(f"s_lshl4_add_u32 s{sFB}, s{sFB}, s{sH}")
e(f"s_lshl_b32 s{sFB}, s{sFB}, 16")
e(f"s_lshr_b32 s{sT}, s{sT}, 8")
e(f"s_lshl1_add_u32 s{sTN}, s{sT}, 1")
e(f"v_lshlrev_b32 v{vT1}, 1, v{vFV}")
e(f"v_add_u32 v{vT1}, {CTRL+68}, v{vT1}")
e(f"v_mov_b32 v{vT2}, s{sFB}")
e("s_mov_b64 exec, 1")
e(f"global_store_dword v{vG}, v{vT2}, s[{sDBG}:{sDBG+1}] offset:128")
e("s_mov_b64 exec, -1")
if "v" in a.tlb: e(f"global_load_dword v{vPF}, v{vTL}, s[{sV}:{sV+1}] nt")
if "prog2" in DBG: e("v_mov_b32 v50, 0")
if a.skew:
    e(f"s_mov_b32 s{sNEED}, 3")
    e(f"s_cmp_lt_u32 s{sT}, 8")
    e("s_cbranch_scc1 L_fin")
    lab("L_g_sw")
    e(f"ds_read_b32 v{vPL}, v{vPA}")
    e("s_waitcnt lgkmcnt(0)")
    e(f"v_readfirstlane_b32 s{sLND}, v{vPL}")
    e(f"s_cmp_ge_i32 s{sLND}, s{sNEED}")
    e("s_cbranch_scc1 L_g_sa")
    spin_tail("L_g_sw", 1)
    lab("L_g_sa")
    e(f"global_load_dword v{vT0}, v{vFV}, s[{sDBG}:{sDBG+1}] sc1")
    e("s_waitcnt vmcnt(0)")
    e(f"v_cmp_gt_i32 vcc, 0, v{vT0}")
    e(f"v_lshrrev_b32 v{vT0}, 16, v{vT0}")
    e(f"v_sub_u32 v{vT0}, s{sMA}, v{vT0}")
    e(f"v_bfe_i32 v{vT0}, v{vT0}, 0, 15")
    e(f"v_cndmask_b32 v{vT0}, 0, v{vT0}, vcc")
    for sh in (1, 2, 4):
        e("s_nop 1")
        op = "v_max_i32_dpp" if "ampmax" in DBG else "v_add_u32_dpp"
        e(f"{op} v{vT0}, v{vT0}, v{vT0} row_shr:{sh} row_mask:0xf bank_mask:0xf bound_ctrl:0")
    e("s_nop 0")
    e(f"v_readlane_b32 s{sT0}, v{vT0}, 7")
    if "ampmax" in DBG or "ampmean" in DBG:
        e(f"s_mul_i32 s{sMBK}, s{sT0}, {20 if 'ampmax' in DBG else 3}")
        e(f"s_max_i32 s{sMBK}, s{sMBK}, 0")
        e(f"s_add_u32 s{sMBK}, s{sMBK}, 3500")
        lab("L_amp")
        e("s_sleep 4")
        e(f"s_memrealtime s[{sLO}:{sLO+1}]")
        e("s_waitcnt lgkmcnt(0)")
        e(f"s_sub_u32 s{sT0}, s{sLO}, s{sMA}")
        e(f"s_cmp_lt_u32 s{sT0}, s{sMBK}")
        e("s_cbranch_scc1 L_amp")
        e("s_endpgm")
    e(f"s_mul_i32 s{sT0}, s{sT0}, {a.skew}")
    e(f"s_ashr_i32 s{sT0}, s{sT0}, 9")
    e(f"s_add_u32 s{sBO}, s{sBO}, s{sT0}")
e(f"s_mov_b32 s{sNEED}, {a.cstart}")
lab("L_g_next")
e(f"s_sub_u32 s{sT0}, s{sTN}, s{sNEED}")
e(f"s_cmp_lt_i32 s{sT0}, {a.cstop}")
e("s_cbranch_scc1 L_fin")
lab("L_g_w")
e(f"ds_read_b32 v{vPL}, v{vPA}")
e("s_waitcnt lgkmcnt(0)")
e(f"v_readfirstlane_b32 s{sLND}, v{vPL}")
e(f"s_cmp_ge_i32 s{sLND}, s{sNEED}")
e("s_cbranch_scc1 L_g_a")
spin_tail("L_g_w", 1)
lab("L_g_a")
if "prog2" in DBG:
    e(f"s_memrealtime s[{sST+2}:{sST+3}]")
    e(f"s_lshr_b32 m0, s{sLND}, 1")
    e("s_waitcnt lgkmcnt(0)")
    e(f"v_writelane_b32 v50, s{sST+2}, m0")
e(f"s_sub_u32 s{sNK}, s{sTN}, s{sLND}")
e(f"s_or_b32 s{sT0}, s{sNK}, s{sFB}")
e(f"v_mov_b32 v{vT2}, s{sT0}")
e("s_mov_b64 exec, 1")
e(f"global_store_dword v{vG}, v{vT2}, s[{sDBG}:{sDBG+1}] offset:128")
e("s_mov_b64 exec, -1")
e(f"global_load_dword v{vT0}, v{vFV}, s[{sDBG}:{sDBG+1}] offset:128 sc1")
e(f"s_add_u32 s{sNEED}, s{sLND}, {a.cstep}")
e(f"s_min_i32 s{sT3}, s{sBO}, 1")
e(f"s_max_i32 s{sT3}, s{sT3}, -1")
e(f"s_sub_u32 s{sBO}, s{sBO}, s{sT3}")
e("s_waitcnt vmcnt(0)")
e(f"ds_write_b32 v{vT1}, v{vT0}")
e(f"v_and_b32 v{vT0}, 0xffff, v{vT0}")
e(f"v_cmp_ne_u32 vcc, 0, v{vT0}")
for sh in (1, 2, 4, 8):
    e("s_nop 1")
    e(f"v_add_u32_dpp v{vT0}, v{vT0}, v{vT0} row_shr:{sh} row_mask:0xf bank_mask:0xf bound_ctrl:0")
e("s_nop 1")
e(f"v_add_u32_dpp v{vT0}, v{vT0}, v{vT0} row_bcast:15 row_mask:0xa bank_mask:0xf")
e(f"s_bcnt1_i32_b32 s{sT1}, vcc_lo")
e(f"v_readlane_b32 s{sT0}, v{vT0}, 31")
e(f"s_mul_i32 s{sT2}, s{sNK}, s{sT1}")
e(f"s_sub_u32 s{sT2}, s{sT2}, s{sT0}")
e(f"s_lshl_b32 s{sT2}, s{sT2}, 2")
for th, inc, cmp in ((CTH[0], -1, "lt"), (CTH[1], 1, "gt"), (CTH[2], 1, "gt")):
    e(f"s_mul_i32 s{sT0}, s{sT1}, {th - a.cbias}")
    e(f"s_cmp_{cmp}_i32 s{sT2}, s{sT0}")
    e(f"s_cselect_b32 s{sT0}, {inc}, 0")
    e(f"s_add_u32 s{sT3}, s{sT3}, s{sT0}")
e(f"s_max_i32 s{sT3}, s{sT3}, -1")
e(f"s_min_i32 s{sT3}, s{sT3}, 2")
e(f"v_mov_b32 v{vT2}, s{sT3}")
e(f"ds_write_b32 v{vFW}, v{vT2}")
e("s_branch L_g_next")

lab("L_fin")
if a.amp[:2] == "xd":
    xx = int(a.amp[2:])
    def wait_until(lbl, reg_or_imm):
        lab(lbl)
        e("s_sleep 2")
        e(f"s_memrealtime s[{sST+4}:{sST+5}]")
        e("s_waitcnt lgkmcnt(0)")
        e(f"s_sub_u32 s{sT0}, s{sST+4}, s{sST}")
        e(f"s_cmp_lt_u32 s{sT0}, {reg_or_imm}")
        e(f"s_cbranch_scc1 {lbl}")
    e(f"s_cmp_lg_u32 s{sW}, 1")
    e("s_cbranch_scc1 L_end")
    e("s_waitcnt vmcnt(0) lgkmcnt(0)")
    e(f"s_memrealtime s[{sST+2}:{sST+3}]")
    wait_until("L_xw1", 3400)
    e(f"s_and_b32 s{sT1}, s{sST+2}, 0xffff")
    e(f"s_and_b32 s{sT2}, s2, 7")
    e(f"s_lshl_b32 s{sT2}, s{sT2}, 2")
    e(f"v_mov_b32 v2, s{sT2}")
    e(f"v_mov_b32 v3, s{sT1}")
    e("s_mov_b64 exec, 1")
    e(f"global_atomic_add v2, v3, s[{sDBG}:{sDBG+1}]")
    e("s_cmp_lg_u32 s2, 0")
    e("s_cbranch_scc1 L_end")
    wait_until("L_xw2", 4200)
    e(f"s_load_dwordx8 s[72:79], s[{sDBG}:{sDBG+1}], 0 glc")
    e("s_waitcnt lgkmcnt(0)")
    e(f"s_lshl_b32 s{sT1}, s{72+xx}, 3")
    for i in range(8): e(f"s_sub_u32 s{sT1}, s{sT1}, s{72+i}")
    e(f"s_mul_i32 s{sT1}, s{sT1}, 30")
    e(f"s_ashr_i32 s{sT1}, s{sT1}, 8")
    e(f"s_max_i32 s{sT1}, s{sT1}, -1700")
    e(f"s_min_i32 s{sT1}, s{sT1}, 3000")
    e(f"s_add_u32 s{sT1}, s{sT1}, 6000")
    wait_until("L_xw3", f"s{sT1}")
elif a.amp:
    if a.amp == "end":
        e(f"s_sub_u32 s{sT0}, s{sW}, 1")
        e(f"s_cmp_gt_u32 s{sT0}, 1")
    else:
        e(f"s_cmp_lg_u32 s{sW}, 0")
    e("s_cbranch_scc1 L_end")
    if a.ampwg >= 0:
        e(f"s_cmp_lg_u32 s2, {a.ampwg}")
        e("s_cbranch_scc1 L_end")
    e("s_waitcnt vmcnt(0) lgkmcnt(0)")
    if a.amp[:2] != "t0":
        e(f"s_memrealtime s[{sST+2}:{sST+3}]")
        e("s_waitcnt lgkmcnt(0)")
    e(f"s_sub_u32 s{sT1}, s{sST+2}, s{sST}")
    if a.amp[:2] != "t0": e(f"s_sub_u32 s{sT1}, s{sT1}, 2700")
    if a.amp == "t0x":
        e(f"s_getreg_b32 s{sT1}, hwreg(HW_REG_XCC_ID, 0, 4)")
        e(f"s_mul_i32 s{sT1}, s{sT1}, 50")
    if a.amp == "t0p":
        e(f"s_getreg_b32 s{sT1}, hwreg(HW_REG_XCC_ID, 0, 1)")
        e(f"s_mul_i32 s{sT1}, s{sT1}, 200")
    e(f"s_max_i32 s{sT1}, s{sT1}, 0")
    e(f"s_min_i32 s{sT1}, s{sT1}, 2000")
    e(f"s_mul_i32 s{sT1}, s{sT1}, 10")
    e(f"s_add_u32 s{sT1}, s{sT1}, 3500")
    lab("L_ampw")
    e("s_sleep 2")
    e(f"s_memrealtime s[{sST+2}:{sST+3}]")
    e("s_waitcnt lgkmcnt(0)")
    e(f"s_sub_u32 s{sT0}, s{sST+2}, s{sST}")
    e(f"s_cmp_lt_u32 s{sT0}, s{sT1}")
    e("s_cbranch_scc1 L_ampw")
if "prog2" in DBG or "prog3" in DBG:
    e(f"s_cmp_lg_u32 s{sW}, {5 if 'prog2' in DBG else 0}")
    e("s_cbranch_scc1 L_np2")
    e(f"s_lshl_b32 s{sT0}, s2, 8")
    e(f"s_add_u32 s{sT0}, s{sT0}, 0x400000")
    e(f"v_lshl_add_u32 v51, v{vLANE}, 2, s{sT0}")
    e(f"global_store_dword v51, v50, s[{sWS}:{sWS+1}]")
    lab("L_np2")
if a.stamps:
    e(f"s_cmp_gt_u32 s{sW}, 2")
    e("s_cbranch_scc1 L_end")
    e("s_mov_b64 exec, -1")
    e("s_waitcnt vmcnt(0) lgkmcnt(0)")
    stamp(3)
    e(f"s_getreg_b32 s{sT0}, hwreg(HW_REG_XCC_ID)")
    e("s_waitcnt lgkmcnt(0)")
    for i in range(8):
        e(f"v_mov_b32 v{64+i}, s{sST+i}")
    e(f"v_mov_b32 v72, s{sT0}")
    e(f"s_sub_u32 s{sT1}, {SPIN}, s{sSPIN}")
    e(f"v_mov_b32 v73, s{sT1}")
    e(f"v_mov_b32 v74, s{sT}")
    e(f"v_mov_b32 v75, 0")
    e(f"s_mul_i32 s{sT0}, s2, {NW}")
    e(f"s_add_u32 s{sT0}, s{sT0}, s{sW}")
    e(f"s_lshl_b32 s{sT0}, s{sT0}, 6")
    e(f"v_mov_b32 v80, s{sT0}")
    e("s_mov_b64 exec, 1")
    e(f"global_store_dwordx4 v80, v[64:67], s[{sWS}:{sWS+1}]")
    e(f"global_store_dwordx4 v80, v[68:71], s[{sWS}:{sWS+1}] offset:16")
    e(f"global_store_dwordx4 v80, v[72:75], s[{sWS}:{sWS+1}] offset:32")
lab("L_end")
e("s_endpgm")
if a.wake:
    out.append(".p2align 8")
    lab("L_pad")
    out.append(f".fill {64 * a.wake}, 4, 0xbf810000")
out.append('.section .rodata,"a"')
out.append(".p2align 6")
out.append(f".amdhsa_kernel {NAME}_kernel")
out.append(f"  .amdhsa_next_free_vgpr {NV}")
out.append("  .amdhsa_next_free_sgpr 102")
out.append(f"  .amdhsa_accum_offset {NV}")
out.append("  .amdhsa_group_segment_fixed_size 0")
out.append("  .amdhsa_kernarg_size 64")
out.append("  .amdhsa_user_sgpr_count 2")
out.append("  .amdhsa_user_sgpr_kernarg_segment_ptr 1")
out.append("  .amdhsa_system_sgpr_workgroup_id_x 1")
out.append("  .amdhsa_float_denorm_mode_32 3")
out.append(".end_amdhsa_kernel")
open(a.o, "w").write("\n".join(out) + "\n")
```

```python
import sys, argparse
NAME = "standalone__paged_block_table_kv_pagedattention__sampling"
HEADER = open("cdna_kernels/" + NAME + ".s.ref").read().split("; Override")[0]

ap = argparse.ArgumentParser()
ap.add_argument("-o", default="/dev/stdout")
ap.add_argument("--map", default="plain")
ap.add_argument("--hrot", type=int, default=0)
ap.add_argument("--D", type=int, default=21)
ap.add_argument("--D0", type=int, default=26)
ap.add_argument("--NS", type=int, default=6)
ap.add_argument("--G", type=int, default=50)
ap.add_argument("--fnum", type=int, default=40)
ap.add_argument("--pollnum", type=int, default=55)
ap.add_argument("--psleep", type=int, default=6)
ap.add_argument("--UB", type=int, default=8)
ap.add_argument("--mfirst", type=int, default=1)
ap.add_argument("--cth", default="-2,2,5")
ap.add_argument("--cbias", type=int, default=7)
ap.add_argument("--cstart", type=int, default=8)
ap.add_argument("--cstop", type=int, default=4)
ap.add_argument("--cstep", type=int, default=3)
ap.add_argument("--xt", default="14,-12,4,-11,6,-10,7,-10")
ap.add_argument("--NUM", type=int, default=4)
ap.add_argument("--last", type=int, default=1)
ap.add_argument("--hold", default="")
ap.add_argument("--ost", default="")
ap.add_argument("--wb", type=int, default=0)
ap.add_argument("--skew", type=int, default=0)
ap.add_argument("--dv", default="-1,1,3")
ap.add_argument("--fpf", type=int, default=6)
ap.add_argument("--fld", default="sc1")
ap.add_argument("--opf", type=int, default=0)
ap.add_argument("--otouch", type=int, default=0)
ap.add_argument("--ospread", type=int, default=1)
ap.add_argument("--ofl", default="")
ap.add_argument("--DM", type=int, default=3)
ap.add_argument("--NE", type=int, default=3)
ap.add_argument("--amp", default="")
ap.add_argument("--ampwg", type=int, default=-1)
ap.add_argument("--tlb", default="")
ap.add_argument("--tlbs", type=int, default=21)
ap.add_argument("--wake", type=int, default=0)
ap.add_argument("--spec", type=int, default=1)
ap.add_argument("--lat", type=int, default=1)
ap.add_argument("--smart", default="")
ap.add_argument("--bar", type=int, default=1)
ap.add_argument("--hmap", default="")
ap.add_argument("--pst", default="")
ap.add_argument("--pfm", type=int, default=0)
ap.add_argument("--tr", default="")
ap.add_argument("--hcap", type=int, default=13)
ap.add_argument("--nosort", action="store_true")
ap.add_argument("--nopair", action="store_true")
ap.add_argument("--limf", default="0x43800000")
ap.add_argument("--dbg", default="")
ap.add_argument("--stamps", action="store_true")
a = ap.parse_args()
NT = " nt"
OST = "" if not a.ost else " " + a.ost.replace("+", " ")
DBG = set(a.dbg.split(","))
D, D0, NS, G = a.D, a.D0, a.NS, a.G
assert 24 <= D0 <= 32 and (D - 2) // 8 == (D + 1) // 8 == 2 and 32 <= G < 64
CTH = [int(x) for x in a.cth.split(",")]
XT = [int(x) for x in a.xt.split(",")]
DV = [int(x) for x in a.dv.split(",")]
TR = [int(x) for x in a.tr.split(",")] if a.tr else None
assert 17 <= D + DV[0] and D + DV[2] <= 24
DIVM = {5: (205, 10), 6: (43, 8), 7: (147, 10), 8: (1, 3), 10: (205, 11), 12: (171, 11)}[NS]
assert all((u * DIVM[0]) >> DIVM[1] == u // NS for u in range(129))
NW = 6
KBYTES = 4100 * 32768
SPIN = 1 << 22
NUM = a.NUM

RING = NS * 8192
PST = RING
MB = PST + G * 2048
MBS = 4224
CTRL = MB + 2 * MBS
FREE = CTRL + 512
REC0 = FREE + 128
DEPW = REC0 + 16
SL = FREE + 256
CNT = SL + 768
LA = CNT + 512
LB = LA + 512
KEYS = LB + 512
LDS = KEYS + 256
assert LDS <= 163840, LDS
WS0 = 0x100000 if a.stamps else 0
WSA = WS0 + 0x40000

out = []
def e(s): out.append("    " + s)
def lab(s): out.append(s + ":")
def c(s): out.append("    ; " + s)

sQ, sK, sV, sBT, sCL, sOUT, sDBG, sWS = 4, 6, 8, 10, 12, 14, 16, 18
sRD = 20
sB, sH, sW, sCLV = 28, 29, 30, 31
sT0, sT1, sT2, sT3 = 32, 33, 34, 35
sPC = 36
sSPIN = 38
sNB, sNTL, sNU, sT = 39, 40, 41, 42
sST = 64
sE = 72
sB0, sB1, sFL, sPM, sSLOT, sU, sTA0 = 46, 47, 48, 49, 52, 56, 57
sTRM, sTRC = 50, 51
sM = 46
sCI, sLND, sMBF, sNEED, sMRG, sMT, sROLE, sQO, sPLN, sSB = 48, 49, 50, 51, 52, 56, 57, 58, 59, 60
sV0 = 61
sCST = 62
sTN, sNK, sFWN, sFB, sPRE, sREDO, sLIMF, sPO = 96, 97, 98, 99, 100, 101, 53, 43
sMALL, sRS = 24, 26
sOFF, sTB0, sTB1, sTTC, sFIRST = 20, 21, 22, 23, 44
sZQ = 54
sRK, sPB, sNP, sX, sTA, sTB, sF, sWB = 80, 81, 82, 83, 84, 85, 86, 87
sMA, sMBK = 88, 90
sLO, sHI, sLBASE = 92, 93, 94
sBO = 56
vLANE = 1
vT0, vT1, vT2, vT3, vT4, vT5 = 2, 3, 4, 5, 6, 7
vL = 8
vKOFF, vVOFF = 10, 14
vCA, vCNT, vFA, vR = 18, 19, 20, 21
vF = 22
vCUR = 24
vTR = 28
vTRK, vTRV = 36, 52
vEN = 44
vDP, vDA, vOOB, vSA = 46, 47, 48, 49
vKA0, vVA0, vXA = 8, 12, 16
vPA0, vPW, vINV, vOA = 20, 21, 22, 23
vM, vLS, vMN, vAL, vPA, vFW = 24, 25, 26, 27, 28, 29
vPL = 30
vQ = 32
vS = 48
vP = 56
vG, vPF, vFV, vN = 60, 61, 62, 63
vKF = 64
vVF = 96
vO = 128
vE = 160
vPN = 160
NV = 168

def stamp(i):
    if a.amp and (i == 0 or (i == 1 and a.amp == "t0")): e(f"s_memrealtime s[{sST+2*i}:{sST+2*i+1}]")
    if a.hold and i == 0: e(f"{'s_memrealtime' if a.hold[:2] == 'rt' else 's_memtime'} s[{sST}:{sST+1}]")
    if a.stamps: e(f"s_memrealtime s[{sST+2*i}:{sST+2*i+1}]")
def clamp_cl(zq=None):
    c("context length: <=0 -> every key masked => uniform weights over 2048 keys (zero Q); >2048 -> 2048")
    e(f"s_cmp_lt_i32 s{sCLV}, 1")
    if zq is not None: e(f"s_cselect_b32 s{zq}, 1, 0")
    e(f"s_cselect_b32 s{sCLV}, 2048, s{sCLV}")
    e(f"s_min_i32 s{sCLV}, s{sCLV}, 2048")
def derive_nb():
    e(f"s_add_u32 s{sNTL}, s{sNB}, 1")
    e(f"s_lshr_b32 s{sNTL}, s{sNTL}, 1")
    e(f"s_sub_u32 s{sNU}, s{sNTL}, 1")
    e(f"s_min_u32 s{sNU}, s{sNU}, {NUM}")
def derive_cl():
    e(f"s_add_u32 s{sNB}, s{sCLV}, 15")
    e(f"s_lshr_b32 s{sNB}, s{sNB}, 4")
    derive_nb()
def spin_tail(label, sleep=1):
    e(f"s_sleep {sleep}")
    e(f"s_sub_u32 s{sSPIN}, s{sSPIN}, 1")
    e(f"s_cbranch_scc0 {label}")
    e("s_endpgm")
FIN = "s_branch L_fin" if (a.stamps or a.amp) else "s_endpgm"

out.append(HEADER.rstrip())
out.append(f"; @launch grid=(256,1,1) block=({64*NW},1,1) lds={LDS}")
for line in """
Paged GQA attention, one workgroup per (batch b, kv head h); HBM-bound, so everything serves the K/V stream.
  wave 0     loader: LDS-DMA of 8 KB units (32 keys of K or V) into a ring, a counted number of requests in flight.
             Pass 1 streams every K tile, pass 2 every V tile, both in ascending physical-block order.
  waves 1,2  own task, 16 query rows each: pass 1 scores + softmax weights (kept in LDS), pass 2 weighted values.
  waves 3,4  rank the batches by length, pair long with short, sort the block ids. In a short workgroup they then
             process tiles donated by the long partner and hand the partial result over; in a long one wave 3 fetches it.
  wave 5     compares progress with the workgroups sharing its L2 and nudges the loader's request depth.
Hand-offs work under any placement: inside L2 only after a run-time check that both sides share a die.
""".strip("\n").split("\n"): out.append("; " + line)
out.append('.amdgcn_target "amdgcn-amd-amdhsa--gfx950"')
out.append(".text")
out.append(f".globl {NAME}_kernel")
out.append(".p2align 8")
out.append(f".type {NAME}_kernel,@function")
lab(f"{NAME}_kernel")
e("s_load_dwordx16 s[4:19], s[0:1], 0")
e(f"s_lshr_b32 s{sB}, s2, 3")
e(f"s_cmp_ge_u32 s{sB}, 32")
e("s_cbranch_scc1 L_end")
stamp(0)
e(f"v_lshrrev_b32 v{vT0}, 6, v0")
e(f"v_and_b32 v{vLANE}, 63, v0")
e(f"v_readfirstlane_b32 s{sW}, v{vT0}")
c("wave 1 pulls this kernel's code into L2")
e(f"s_getpc_b64 s[{sPC}:{sPC+1}]")
lab("L_pc")
e(f"v_lshlrev_b32 v{vT2}, 7, v{vLANE}")
e(f"v_min_u32 v{vT2}, L_end - L_pc - 256, v{vT2}")
if a.pfm:
    e(f"s_and_b32 s{sT0}, s2, {a.pfm << 3}")
    e(f"s_add_u32 s{sT0}, s{sT0}, s{sW}")
    e(f"s_cmp_lg_u32 s{sT0}, 1")
else:
    e(f"s_cmp_lg_u32 s{sW}, 1")
e("s_cbranch_scc1 L_nopf")
e(f"global_load_dword v{vPF}, v{vT2}, s[{sPC}:{sPC+1}] offset:256")
if a.wake:
    e(f"s_mul_i32 s{sT3}, s2, {a.wake}")
    e(f"v_and_b32 v{vT2}, {a.wake - 256}, v{vT2}")
    e(f"v_add_u32 v{vT2}, s{sT3}, v{vT2}")
    e(f"v_add_u32 v{vT2}, L_pad - L_pc, v{vT2}")
    e(f"global_load_dword v{vFV}, v{vT2}, s[{sPC}:{sPC+1}] nt")
lab("L_nopf")
c("clear the control words and the sort counters")
e(f"v_mov_b64 v[{vT2}:{vT3}], 0")
e(f"v_lshlrev_b32 v{vT4}, 3, v0")
e(f"v_add_u32 v{vT4}, {CTRL}, v{vT4}")
e(f"ds_write_b64 v{vT4}, v[{vT2}:{vT3}]")
if a.map == "rot":
    e(f"s_add_u32 s{sH}, s2, s{sB}")
    e(f"s_and_b32 s{sH}, s{sH}, 7")
elif a.hmap:
    e(f"s_lshl_b32 s{sH}, s2, 2")
    e(f"s_lshr_b32 s{sH}, {a.hmap}, s{sH}")
    e(f"s_and_b32 s{sH}, s{sH}, 7")
elif a.hrot:
    e(f"s_add_u32 s{sH}, s2, {a.hrot}")
    e(f"s_and_b32 s{sH}, s{sH}, 7")
else:
    e(f"s_and_b32 s{sH}, s2, 7")
e(f"s_lshl3_add_u32 s{sT2}, s{sB}, s{sH}")
e(f"s_lshl_b32 s{sT2}, s{sT2}, 13")
e(f"v_lshl_add_u32 v{vT5}, v{vLANE}, 7, s{sT2}")
e(f"s_lshl_b32 s{sT0}, s{sB}, 9")
e(f"v_lshl_add_u32 v{vT2}, v{vLANE}, 3, s{sT0}")
if not a.spec: e(f"s_lshl_b32 s{sT1}, s{sB}, 2")
e(f"v_and_b32 v{vT0}, 31, v{vLANE}")
e(f"v_lshlrev_b32 v{vT3}, 2, v{vT0}")
vTL = 22
if a.tlb:
    e(f"v_min_u32 v{vTL}, {(2 << (21 - a.tlbs)) - 1}, v{vLANE}")
    e(f"v_lshl_add_u32 v{vTL}, v{vTL}, 5, s{sB}")
    e(f"s_mul_i32 s{sT3}, s2, {8064 >> (21 - a.tlbs) & ~127}")
    e(f"v_lshl_add_u32 v{vTL}, v{vTL}, {a.tlbs}, s{sT3}")
e(f"s_cmp_lg_u32 s{sW}, 2")
e("s_waitcnt lgkmcnt(0)")
e(f"s_load_dwordx8 s[{sE}:{sE+7}], s[{sBT}:{sBT+1}], s{sT0}")
if not a.spec: e(f"s_load_dword s{sCLV}, s[{sCL}:{sCL+1}], s{sT1}")
c("wave 2 touches the 64 lines of this workgroup's queries while memory is still idle")
e("s_cbranch_scc1 L_noq")
if "k" in a.tlb: e(f"global_load_dword v{vFV}, v{vTL}, s[{sK}:{sK+1}] nt")
e(f"global_load_dword v{vPF}, v{vT5}, s[{sQ}:{sQ+1}]")
lab("L_noq")
if a.opf:
    e(f"s_cmp_lg_u32 s{sW}, 4")
    e("s_cbranch_scc1 L_noo")
    e(f"global_load_dword v{vPF}, v{vT5}, s[{sOUT}:{sOUT+1}]")
    lab("L_noo")
e(f"global_load_dwordx2 v[{vL}:{vL+1}], v{vT2}, s[{sBT}:{sBT+1}]")
e(f"global_load_dword v{vN}, v{vT3}, s[{sCL}:{sCL+1}]")
lab("L_loads_issued")
if a.amp == "t0k": e(f"s_memrealtime s[{sST+2}:{sST+3}]")
e(f"s_cmp_lg_u32 s{sW}, 0")
e(f"s_mov_b32 s{sSPIN}, {SPIN}")
e("s_cbranch_scc1 L_notloader")

e("s_setprio 3")
c("per-lane source offsets of the LDS-DMA pieces (bank swizzle applied on the source side)")
e(f"v_lshrrev_b32 v{vR}, 4, v{vLANE}")
e(f"v_and_b32 v{vT1}, 15, v{vLANE}")
e(f"s_lshl_b32 s{sT0}, s{sH}, 8")
e(f"v_lshl_add_u32 v{vT4}, v{vR}, 11, s{sT0}")
e(f"v_xor_b32 v{vT2}, v{vR}, v{vT1}")
e(f"v_lshl_add_u32 v{vKOFF}, v{vT2}, 4, v{vT4}")
for j in range(1, 4):
    e(f"v_xor_b32 v{vT3}, {64*j}, v{vKOFF}")
    e(f"v_add_u32 v{vKOFF+j}, {7168*j}, v{vT3}")
e(f"s_mov_b32 s{sRD}, s{sK}")
e(f"s_and_b32 s{sRD+1}, s{sK+1}, 0xffff")
e(f"s_mov_b32 s{sRD+2}, {KBYTES}")
e(f"s_mov_b32 s{sRD+3}, 0x20000")
if a.amp == "t0c": e(f"s_memrealtime s[{sST+2}:{sST+3}]")
if a.bar < 0: e("s_barrier")
e("s_waitcnt lgkmcnt(0)")
if not a.spec: clamp_cl()
c("the first stream tiles are the leading logical tiles; requested before the context length is known")
NE = a.NE
for t in range(NE):
    if not a.spec:
        e(f"s_cmp_le_u32 s{sCLV}, {32*(t+1)}")
        e(f"s_cbranch_scc1 {'L_ld_b' if t < 2 else 'L_ld_pre'}")
    if t == 0: stamp(1)
    for j in range(8):
        i = 8 * t + j
        if j % 4 == 0:
            e(f"s_movk_i32 m0, {1024*i}")
            e(f"s_lshl_b32 s{sB0}, s{sE+i//4}, 15")
        if i >= D0: e(f"s_waitcnt vmcnt({D0-1})")
        e(f"buffer_load_dwordx4 v{vKOFF+j%4}, s[{sRD}:{sRD+3}], s{sB0} offen offset:{1024*(j%4)}{NT} lds")
    if t == a.bar:
        lab("L_ld_b")
        e("s_barrier")
lab("L_ld_pre")
j0 = (D - 1) % 8
e(f"v_lshlrev_b32 v{vT3}, 2, v{vR}")
e(f"v_xor_b32 v{vT3}, v{vT3}, v{vT1}")
e(f"v_lshl_add_u32 v{vVOFF}, v{vT3}, 4, v{vT4}")
for j in range(1, 4):
    e(f"v_add_u32 v{vVOFF+j}, {7168*j}, v{vVOFF}")
e(f"v_lshlrev_b32 v{vCA}, 3, v{vLANE}")
e(f"v_add_u32 v{vT0}, {SL}, v{vCA}")
e(f"v_add_u32 v{vCA}, {CTRL}, v{vCA}")
e(f"v_mov_b32 v{vFA}, {FREE}")
e(f"v_mov_b64 v[{vF}:{vF+1}], 0")
e(f"v_mov_b32 v{vDP}, {2 if NE == 3 else 0}")
e(f"v_mov_b32 v{vDA}, {DEPW}")
e(f"v_bfrev_b32 v{vOOB}, 1")
def set_pass(off):
    for j in range(0, 4, 2): e(f"v_mov_b64 v[{vCUR+j}:{vCUR+j+1}], v[{off+j}:{off+j+1}]")
set_pass(vKOFF)
if "prog3" in DBG: e("v_mov_b32 v50, 0")
e(f"s_mov_b32 s{sPM}, 4")
if TR:
    e(f"s_mov_b32 s{sTRM}, 16")
    e(f"s_mov_b32 s{sTRC}, 2")
    e(f"v_cmp_gt_u32 vcc, {TR[1]}, v{vLANE}")
    e("s_nop 1")
    e(f"v_cndmask_b32 v{vT2}, 1, 33, vcc")
e(f"s_mov_b32 s{sTA0}, 0")
if a.spec:
    e(f"s_waitcnt vmcnt({8*NE})")
    e(f"v_readlane_b32 s{sCLV}, v{vN}, s{sB}")
    clamp_cl()
derive_cl()
c("the leading tiles enter the stream list straight from the table row")
e(f"s_min_u32 s{sT}, s{sNU}, {NE}")
e(f"s_lshl3_add_u32 s{sT0}, s{sT}, {SL}")
e(f"v_mov_b32 v{vSA}, s{sT0}")
e(f"s_sub_u32 s{sT0}, s{sT}, 3")
e(f"v_mov_b32 v{vCNT}, s{sT0}")
e(f"s_bfm_b64 s[{sT2}:{sT2+1}], s{sNU}, 0")
e(f"s_cmp_ge_u32 s{sNU}, {NE}")
e("s_cbranch_scc1 L_ld_row")
e("s_waitcnt vmcnt(0)")
lab("L_ld_row")
if not (a.spec and NE == 3): e("s_waitcnt vmcnt(24)")
if NE == 4: e(f"ds_write_b32 v{vCA}, v{vCNT}")
e(f"v_lshl_or_b32 v{vEN}, v{vL}, 15, {'v%d' % vT2 if TR else 1}")
e(f"v_lshlrev_b32 v{vEN+1}, 15, v{vL+1}")
e(f"s_mov_b64 exec, s[{sT2}:{sT2+1}]")
e(f"ds_write_b64 v{vT0}, v[{vEN}:{vEN+1}]")
e("s_mov_b64 exec, -1")
e(f"ds_read_b64 v[{vEN}:{vEN+1}], v{vSA}")
e(f"s_lshl_b32 s{sSLOT}, s{sT}, 13")
e(f"s_mov_b32 s{sU}, s{sT}")
c("lanes of the last logical tile whose rows lie inside the context")
e(f"s_lshl_b32 s{sT0}, s{sNTL}, 5")
e(f"s_sub_u32 s{sT0}, s{sCLV}, s{sT0}")
e(f"s_add_u32 s{sT0}, s{sT0}, 32")
e(f"v_sub_u32 v{vT1}, s{sT0}, v{vR}")
for k in range(8):
    e(f"v_cmp_lt_i32 s[{80+2*k}:{81+2*k}], {4*k}, v{vT1}")
if a.amp == "t0r": e(f"s_memrealtime s[{sST+2}:{sST+3}]")
if a.amp[:3] == "t0l":
    e(f"s_waitcnt vmcnt({int(a.amp[3:])})")
    e(f"s_memrealtime s[{sST+2}:{sST+3}]")
stamp(2)
def unit_body(depth, trimmed=False):
    for j in range(8):
        if j % 4 == 0: e(f"s_add_u32 m0, s{sSLOT}, {1024*j}")
        e(f"s_waitcnt vmcnt({depth-1})")
        e(f"buffer_load_dwordx4 v{vTR+j if trimmed else vCUR+j%4}, s[{sRD}:{sRD+3}], s{sB0 + j//4} offen offset:{1024*(j%4)}{NT} lds")
        if j == (depth - 1) % 8:
            e(f"v_add_u32 v{vCNT}, 1, v{vCNT}")
            e(f"ds_write_b32 v{vCA}, v{vCNT}")
        if j == 0:
            e(f"s_add_u32 s{sT2}, s{sSLOT}, 8192")
            e(f"s_cmp_eq_u32 s{sT2}, {RING}")
            e(f"s_cselect_b32 s{sT2}, 0, s{sT2}")
            e(f"s_lshr_b32 s{sT0}, s{sT2}, 10")
            e(f"s_add_u32 s{sT0}, s{sT0}, {FREE}")
            e(f"v_mov_b32 v{vFA}, s{sT0}")
        if j == 1:
            e(f"s_add_u32 s{sT}, s{sT}, 1")
            e(f"s_and_b32 s{sT0}, s{sFL}, s{sPM}")
            e(f"s_cselect_b32 s{sT}, s{sTA0}, s{sT}")
            e(f"s_lshl3_add_u32 s{sT0}, s{sT}, {SL}")
            e(f"v_mov_b32 v{vSA}, s{sT0}")
            e(f"s_add_u32 s{sU}, s{sU}, 1")
        if j == a.fpf:
            c("prefetch the next list entry, the FREE words of the next slot and the depth code")
            e(f"ds_read_b64 v[{vEN}:{vEN+1}], v{vSA}")
            e(f"ds_read_b64 v[{vF}:{vF+1}], v{vFA}")
            e(f"ds_read_b32 v{vDP}, v{vDA}")
            e(f"s_mov_b32 s{sSLOT}, s{sT2}")
out.append(".p2align 3")
lab("L_ld")
if "prog3" in DBG:
    e(f"s_memrealtime s[{sST+4}:{sST+5}]")
    e(f"s_min_u32 m0, s{sU}, 63")
e("s_waitcnt lgkmcnt(0)")
if "prog3" in DBG: e(f"v_writelane_b32 v50, s{sST+4}, m0")
e(f"v_min_i32 v{vT0}, v{vF}, v{vF+1}")
e(f"v_readfirstlane_b32 s{sFL}, v{vEN}")
e(f"v_readfirstlane_b32 s{sB1}, v{vEN+1}")
e(f"v_readfirstlane_b32 s{sT0}, v{vT0}")
e(f"v_readfirstlane_b32 s{sT3}, v{vDP}")
e(f"s_sub_u32 s{sT1}, s{sU}, {NS-1}")
e(f"s_cmp_ge_i32 s{sT0}, s{sT1}")
e(f"s_cselect_b32 s{sT0}, s{sFL}, 0")
e(f"s_and_b32 s{sB0}, s{sFL}, {'0xffffffc0' if TR else '-16'}")
e(f"s_and_b32 s{sT0}, s{sT0}, 3")
e(f"s_cmp_lg_u32 s{sT0}, 1")
e("s_cbranch_scc1 L_ld_odd")
if TR:
    e(f"s_and_b32 s{sT0}, s{sFL}, s{sTRM}")
    e(f"s_cselect_b32 s{sT3}, s{sTRC}, s{sT3}")
e(f"s_cmp_lg_u32 s{sT3}, 0")
e("s_cbranch_scc1 L_ld_var")
unit_body(D)
lab("L_ld_next")
e(f"s_bitcmp1_b32 s{sFL}, 2")
e("s_cbranch_scc0 L_ld")
c("last tile of the batch: change pass")
if TR:
    e(f"s_xor_b32 s{sTRM}, s{sTRM}, 48")
    e(f"s_xor_b32 s{sTRC}, s{sTRC}, 1")
e(f"s_xor_b32 s{sPM}, s{sPM}, 4")
e("s_cbranch_scc1 L_ld_tok")
e(f"s_mov_b32 s{sRD}, s{sV}")
e(f"s_and_b32 s{sRD+1}, s{sV+1}, 0xffff")
set_pass(vVOFF)
e("s_branch L_ld")
lab("L_ld_tok")
e(f"s_bitcmp1_b32 s{sFL}, 3")
e("s_cbranch_scc0 L_ld_more")
for r in (16, 8, 0):
    e(f"v_add_u32 v{vCNT}, 1, v{vCNT}")
    e(f"s_waitcnt vmcnt({r})")
    e(f"ds_write_b32 v{vCA}, v{vCNT}")
if a.hold:
    lab("L_hold")
    e(f"{'s_memrealtime' if a.hold[:2] == 'rt' else 's_memtime'} s[{sST+2}:{sST+3}]")
    e("s_waitcnt lgkmcnt(0)")
    e(f"s_sub_u32 s{sT0}, s{sST+2}, s{sST}")
    e(f"s_cmp_lt_u32 s{sT0}, {a.hold[3:]}")
    e("s_cbranch_scc1 L_hold")
e(FIN)
lab("L_ld_more")
e(f"s_mov_b32 s{sTA0}, s{sT}")
e(f"s_mov_b32 s{sRD}, s{sK}")
e(f"s_and_b32 s{sRD+1}, s{sK+1}, 0xffff")
set_pass(vKOFF)
e("s_branch L_ld")
lab("L_ld_odd")
e(f"s_cmp_eq_u32 s{sT0}, 3")
e("s_cbranch_scc1 L_ld_m")
c("slot not free yet or entry not written yet")
e(f"ds_read_b64 v[{vEN}:{vEN+1}], v{vSA}")
e(f"ds_read_b64 v[{vF}:{vF+1}], v{vFA}")
e(f"s_sub_u32 s{sSPIN}, s{sSPIN}, 1")
e("s_cbranch_scc0 L_ld")
e("s_endpgm")
lab("L_ld_m")
c("the last logical tile: rows past the context are not fetched (their lanes read zeros)")
for k in range(8):
    e(f"v_cndmask_b32 v{vTR+k}, v{vOOB}, v{vCUR+k%4}, s[{80+2*k}:{81+2*k}]")
unit_body(D + a.DM, True)
e("s_branch L_ld_next")
lab("L_ld_var")
e(f"s_cmp_eq_u32 s{sT3}, 1")
e("s_cbranch_scc1 L_ld_v2")
e(f"s_cmp_eq_u32 s{sT3}, 2")
e("s_cbranch_scc1 L_ld_v3")
if TR:
    e(f"s_cmp_eq_u32 s{sT3}, 3")
    e("s_cbranch_scc1 L_ld_v4")
unit_body(D + DV[0])
e("s_branch L_ld_next")
lab("L_ld_v2")
unit_body(D + DV[1])
e("s_branch L_ld_next")
lab("L_ld_v3")
unit_body(D + DV[2])
e("s_branch L_ld_next")
if TR:
    lab("L_ld_v4")
    unit_body(D + TR[2])
    e("s_branch L_ld_next")

lab("L_notloader")
e(f"s_cmp_ge_u32 s{sW}, 3")
e("s_cbranch_scc1 L_planner")
e(f"s_sub_u32 s{sCI}, s{sW}, 1")
def rows_off(sb):
    e(f"s_lshl3_add_u32 s{sQO}, s{sb}, s{sH}")
    e(f"s_lshl1_add_u32 s{sQO}, s{sQO}, s{sCI}")
    e(f"s_lshl_b32 s{sQO}, s{sQO}, 12")
    e(f"v_and_b32 v{vT0}, 15, v{vLANE}")
    e(f"v_lshrrev_b32 v{vG}, 4, v{vLANE}")
def load_q(sb):
    rows_off(sb)
    e(f"v_lshl_add_u32 v{vT4}, v{vT0}, 8, s{sQO}")
    e(f"v_lshl_add_u32 v{vT4}, v{vG}, 4, v{vT4}")
    for s in range(4):
        e(f"global_load_dwordx4 v[{vQ+4*s}:{vQ+4*s+3}], v{vT4}, s[{sQ}:{sQ+1}] offset:{64*s}")
load_q(sB)
e("s_barrier")
e(f"s_mov_b32 s{sROLE}, 0")
e(f"s_mov_b32 s{sPLN}, 0")
e(f"s_mov_b32 s{sMRG}, 0")
if a.spec:
    e("s_waitcnt vmcnt(4) lgkmcnt(0)")
    e(f"v_readlane_b32 s{sCLV}, v{vN}, s{sB}")
else: e("s_waitcnt lgkmcnt(0)")
clamp_cl(zq=sT3)
derive_cl()
c("valid keys of the last logical tile")
e(f"s_lshl_b32 s{sV0}, s{sNTL}, 5")
e(f"s_sub_u32 s{sV0}, s{sCLV}, s{sV0}")
e(f"s_add_u32 s{sV0}, s{sV0}, 32")
e(f"s_bfm_b64 s[{sM}:{sM+1}], s{sNU}, 0")
lab("L_csetup")
e(f"s_mov_b32 s{sMT}, 0")
e(f"s_mov_b32 s{sOFF}, 0")
e(f"s_mov_b32 s{sTB0}, 0")
e(f"s_mov_b32 s{sFIRST}, 1")
e(f"s_mov_b64 s[{sRS}:{sRS+1}], 0")
e("s_waitcnt vmcnt(4)")
e(f"v_and_b32 v{vT0}, 15, v{vLANE}")
e(f"v_xor_b32 v{vT1}, v{vG}, v{vT0}")
e(f"v_lshlrev_b32 v{vT2}, 8, v{vT0}")
e(f"v_lshl_add_u32 v{vKA0}, v{vT1}, 4, v{vT2}")
for s in range(1, 4):
    e(f"v_xor_b32 v{vKA0+s}, {64*s}, v{vKA0}")
e(f"v_bfe_u32 v{vT0}, v{vLANE}, 2, 2")
e(f"v_lshl_add_u32 v{vT1}, v{vG}, 2, v{vT0}")
e(f"v_lshlrev_b32 v{vT1}, 8, v{vT1}")
e(f"v_and_b32 v{vT2}, 3, v{vLANE}")
e(f"v_lshl_add_u32 v{vT1}, v{vT2}, 4, v{vT1}")
e(f"v_lshl_add_u32 v{vVA0}, v{vT0}, 6, v{vT1}")
for j in range(1, 4):
    e(f"v_xor_b32 v{vVA0+j}, {64*j}, v{vVA0}")
e(f"s_lshl_b32 s{sT0}, s{sCI}, 10")
e(f"s_add_u32 s{sT0}, s{sT0}, {PST}")
e(f"v_lshl_add_u32 v{vPA0}, v{vLANE}, 4, s{sT0}")
e(f"v_mov_b32 v{vOA}, v{vT4}")
e(f"s_lshl_b32 s{sT0}, s{sW}, 3")
e(f"s_add_u32 s{sT0}, s{sT0}, {CTRL-8}")
e(f"v_mov_b32 v{vPA}, s{sT0}")
e(f"v_mov_b32 v{vM}, 0xff800000")
e(f"v_mov_b32 v{vLS}, 0")
for r in range(0, 32, 2): e(f"v_mov_b64 v[{vO+r}:{vO+r+1}], 0")
e(f"s_mov_b32 s{sCST}, 0x3e0293ee")
e(f"s_mov_b32 s{sCST+1}, 0x3e0293ee")
e(f"s_mov_b32 s{sLIMF}, {a.limf}")
e(f"s_lshl2_add_u32 s{sFB}, s{sCI}, {FREE}")
e("s_waitcnt vmcnt(0)")
e(f"s_cmp_eq_u32 s{sT3}, 0")
e("s_cbranch_scc1 L_k_first")
for r in range(0, 16, 2): e(f"v_mov_b64 v[{vQ+r}:{vQ+r+1}], 0")

def poll(label):
    lab(label)
    e(f"ds_read_b64 v[{vPL}:{vPL+1}], v{vPA}")
    e(f"s_sub_u32 s{sSPIN}, s{sSPIN}, 1")
    e("s_cbranch_scc1 L_end")
    e("s_waitcnt lgkmcnt(0)")
    e(f"v_readfirstlane_b32 s{sLND}, v{vPL}")
    e(f"s_cmp_ge_i32 s{sLND}, s{sNK}")
    e(f"s_cbranch_scc0 {label}")
VR = []
for j in range(4):
    for ee in range(2):
        for blk in range(2):
            r = vVF + (2 * j + ee) * 4 + 2 * blk
            VR.append(f"ds_read_b64_tr_b16 v[{r}:{r+1}], v{vXA+j} offset:{8*ee + 4096*blk}")
KR, QK = [], []
for blk in range(2):
    for st in range(4):
        r = vKF + (blk * 4 + st) * 4
        KR.append(f"ds_read_b128 v[{r}:{r+3}], v{vXA+st} offset:{4096*blk}")
        cc = "0" if st == 0 else f"v[{vS+4*blk}:{vS+4*blk+3}]"
        QK.append(f"v_mfma_f32_16x16x32_bf16 v[{vS+4*blk}:{vS+4*blk+3}], v[{r}:{r+3}], v[{vQ+4*st}:{vQ+4*st+3}], {cc}")
PV = [f"v_mfma_f32_16x16x32_bf16 v[{vO+4*dt}:{vO+4*dt+3}], v[{vVF+4*dt}:{vVF+4*dt+3}], v[{vP}:{vP+3}], v[{vO+4*dt}:{vO+4*dt+3}]" for dt in range(8)]
NX = [f"s_ff1_i32_b64 s{sTN}, s[{sM}:{sM+1}]",
      f"s_bitset0_b64 s[{sM}:{sM+1}], s{sTN}",
      f"s_add_u32 s{sT1}, s{sTN}, s{sOFF}",
      f"s_mul_i32 s{sT0}, s{sT1}, {DIVM[0]}",
      f"s_lshr_b32 s{sT0}, s{sT0}, {DIVM[1]}",
      f"s_mul_i32 s{sT0}, s{sT0}, {NS}",
      f"s_sub_u32 s{sT0}, s{sT1}, s{sT0}",
      f"s_lshl_b32 s{sSB}, s{sT0}, 13",
      f"s_lshl3_add_u32 s{sFWN}, s{sT0}, s{sFB}",
      f"s_and_b32 s{sT0}, s{sTN}, 0x40000000",
      f"s_add_u32 s{sNK}, s{sT1}, 1",
      f"s_or_b32 s{sNK}, s{sNK}, s{sT0}",
      f"s_sub_u32 s{sPO}, s{sTN}, s{sTB0}",
      f"s_lshl_b32 s{sPO}, s{sPO}, 11"]
KA = [f"v_add_u32 v{vXA+i}, s{sSB}, v{vKA0+i}" for i in range(4)]
VA = [f"v_add_u32 v{vXA+i}, s{sSB}, v{vVA0+i}" for i in range(4)]
ADV = [f"v_mov_b32 v{vFW}, s{sFWN}",
       f"v_mov_b32 v{vFV}, s{sNK}",
       f"v_add_u32 v{vPW}, s{sPO}, v{vPA0}",
       f"s_add_u32 s{sT}, s{sTN}, 1"]
def scale_o(reg):
    for r in range(0, 32, 2):
        sel = "op_sel:[0,1] op_sel_hi:[1,1]" if reg & 1 else "op_sel_hi:[1,0]"
        p = reg & ~1
        e(f"v_pk_mul_f32 v[{vO+r}:{vO+r+1}], v[{vO+r}:{vO+r+1}], v[{p}:{p+1}] {sel}")

def inv_pre():
    e(f"v_mov_b32 v{vT0}, v{vLS}")
    e(f"v_mov_b32 v{vT1}, v{vLS}")
    e("s_nop 1")
    e(f"v_permlane32_swap_b32 v{vT0}, v{vT1}")
    e("s_nop 0")
    e(f"v_add_f32 v{vT0}, v{vT0}, v{vT1}")
    e(f"v_mov_b32 v{vT1}, v{vT0}")
    e("s_nop 1")
    e(f"v_permlane16_swap_b32 v{vT0}, v{vT1}")
    e("s_nop 0")
    e(f"v_add_f32 v{vT0}, v{vT0}, v{vT1}")
    e(f"v_rcp_f32 v{vINV}, v{vT0}")

lab("L_k_first")
for x in NX + KA + ADV: e(x)
lab("L_k_next")
e(f"s_cmp_lt_i32 s{sTN}, 0")
e("s_cbranch_scc1 L_k_empty")
poll("L_k_poll")
for x in KR: e(x)
e("s_waitcnt lgkmcnt(0)")
out.append(".p2align 3")
lab("L_k_top")
e("s_waitcnt lgkmcnt(1)")
e(f"ds_write_b32 v{vFW}, v{vFV}")
e(f"ds_read_b64 v[{vPL}:{vPL+1}], v{vPA}")
fill = NX + KA
for i in range(8):
    e(QK[i])
    for x in fill[2*i:2*i+2]: e(x)
for x in fill[16:]: e(x)
e(f"s_mov_b32 s{sREDO}, 0")
e("s_waitcnt lgkmcnt(0)")
e(f"v_readfirstlane_b32 s{sLND}, v{vPL}")
e(f"s_cmp_ge_i32 s{sLND}, s{sNK}")
e(f"s_cselect_b32 s{sPRE}, 1, 0")
e("s_cbranch_scc0 L_k_nopre")
for x in KR: e(x)
lab("L_k_nopre")
e(f"s_cmp_eq_u32 s{sT}, s{sMT}")
e("s_cbranch_scc1 L_k_mask")
lab("L_k_exp")
for hb in range(2):
    for r in (4*hb, 4*hb+2):
        e(f"v_pk_fma_f32 v[{vE+r}:{vE+r+1}], v[{vS+r}:{vS+r+1}], s[{sCST}:{sCST+1}], v[{vM}:{vM+1}] op_sel_hi:[1,1,0] neg_lo:[0,0,1] neg_hi:[0,0,1]")
    for r in range(4*hb, 4*hb+4):
        e(f"v_exp_f32 v{vE+r}, v{vE+r}")
e(f"v_pk_add_f32 v[{vT0}:{vT1}], v[{vE}:{vE+1}], v[{vE+2}:{vE+3}]")
e(f"v_pk_add_f32 v[{vT2}:{vT3}], v[{vE+4}:{vE+5}], v[{vE+6}:{vE+7}]")
e(f"v_cvt_pk_bf16_f32 v{vP}, v{vE}, v{vE+1}")
e(f"v_pk_add_f32 v[{vT0}:{vT1}], v[{vT0}:{vT1}], v[{vT2}:{vT3}]")
e(f"v_cvt_pk_bf16_f32 v{vP+1}, v{vE+2}, v{vE+3}")
e(f"v_add_f32 v{vT0}, v{vT0}, v{vT1}")
c("the kept reference max is safe only while every weight stays <= 256; otherwise take the true max")
e(f"v_cmp_nge_f32 vcc, s{sLIMF}, v{vT0}")
e(f"v_cvt_pk_bf16_f32 v{vP+2}, v{vE+4}, v{vE+5}")
e(f"v_cvt_pk_bf16_f32 v{vP+3}, v{vE+6}, v{vE+7}")
e(ADV[0]); e(ADV[1])
e("s_nop 0")
e("s_cbranch_vccnz L_k_slow")
lab("L_k_done")
e(f"ds_write_b128 v{vPW}, v[{vP}:{vP+3}]")
e(f"v_add_f32 v{vLS}, v{vLS}, v{vT0}")
e(ADV[3])
e(f"s_cmp_lg_u32 s{sPRE}, 0")
e(ADV[2])
e("s_cbranch_scc1 L_k_top")
e("s_branch L_k_next")

lab("L_k_mask")
e(f"v_lshlrev_b32 v{vT0}, 2, v{vG}")
e(f"v_sub_u32 v{vT0}, s{sV0}, v{vT0}")
e(f"v_mov_b32 v{vT1}, 0xff800000")
for r in range(8):
    e(f"v_cmp_lt_i32 s[{80+2*r}:{81+2*r}], {16*(r//4)+r%4}, v{vT0}")
for r in range(8):
    e(f"v_cndmask_b32 v{vS+r}, v{vT1}, v{vS+r}, s[{80+2*r}:{81+2*r}]")
e("s_branch L_k_exp")

def alpha_addr():
    e(f"s_lshl_b32 s{sT0}, s2, 6")
    e(f"s_add_u32 s{sT0}, s{sT0}, s{sT}")
    e(f"s_lshl1_add_u32 s{sT0}, s{sT0}, s{sCI}")
    e(f"s_lshl_b32 s{sT0}, s{sT0}, 6")
    e(f"s_add_u32 s{sT0}, s{sT0}, {WSA}")
    e(f"v_and_b32 v{vT1}, 15, v{vLANE}")
    e(f"v_lshl_add_u32 v{vT1}, v{vT1}, 2, s{sT0}")
c("raise the reference to the true running max; the accumulator is rescaled when pass 2 reaches this tile")
lab("L_k_slow")
e(f"s_cmp_lg_u32 s{sREDO}, 0")
e("s_cbranch_scc1 L_k_done")
e(f"s_mov_b32 s{sREDO}, 1")
e(f"v_max3_f32 v{vT0}, v{vS}, v{vS+1}, v{vS+2}")
e(f"v_max3_f32 v{vT1}, v{vS+3}, v{vS+4}, v{vS+5}")
e(f"v_max3_f32 v{vT0}, v{vT0}, v{vS+6}, v{vS+7}")
e(f"v_max_f32 v{vT0}, v{vT0}, v{vT1}")
e(f"v_mov_b32 v{vT1}, v{vT0}")
e("s_nop 1")
e(f"v_permlane32_swap_b32 v{vT0}, v{vT1}")
e("s_nop 0")
e(f"v_max_f32 v{vT0}, v{vT0}, v{vT1}")
e(f"v_mov_b32 v{vT1}, v{vT0}")
e("s_nop 1")
e(f"v_permlane16_swap_b32 v{vT0}, v{vT1}")
e("s_nop 0")
e(f"v_max_f32 v{vT0}, v{vT0}, v{vT1}")
e(f"v_mul_f32 v{vT0}, s{sCST}, v{vT0}")
e(f"v_max_f32 v{vMN}, v{vM}, v{vT0}")
e(f"v_sub_f32 v{vAL}, v{vM}, v{vMN}")
e(f"v_exp_f32 v{vAL}, v{vAL}")
e(f"v_mov_b32 v{vM}, v{vMN}")
e(f"s_cmp_lg_u32 s{sFIRST}, 0")
e(f"s_mov_b32 s{sFIRST}, 0")
e(f"v_mul_f32 v{vLS}, v{vLS}, v{vAL}")
e("s_cbranch_scc1 L_k_exp")
alpha_addr()
e(f"global_store_dword v{vT1}, v{vAL}, s[{sWS}:{sWS+1}]")
e(f"s_sub_u32 s{sT0}, s{sT}, 1")
e(f"s_bitset1_b64 s[{sRS}:{sRS+1}], s{sT0}")
e("s_branch L_k_exp")

RLO, RHI = 0xffffffff, (1 << (G - 32)) - 1
lab("L_k_noplan")
e(f"s_mov_b32 s{sPLN}, 1")
e(f"v_mov_b32 v{vT1}, {REC0}")
lab("L_k_plan")
e(f"ds_read_b128 v[{vT2}:{vT5}], v{vT1}")
e("s_waitcnt lgkmcnt(0)")
e(f"v_readfirstlane_b32 s{sT0}, v{vT5}")
e(f"v_readfirstlane_b32 s{sM}, v{vT2}")
e(f"v_readfirstlane_b32 s{sM+1}, v{vT3}")
e(f"v_readfirstlane_b32 s{sTTC}, v{vT4}")
e(f"s_cmp_lg_u32 s{sT0}, 0")
e("s_cbranch_scc1 L_k_got")
spin_tail("L_k_plan")
lab("L_k_got")
e(f"s_lshr_b32 s{sMT}, s{sT0}, 8")
e(f"s_add_u32 s{sMT}, s{sMT}, 1")
e(f"s_and_b32 s{sMRG}, s{sTTC}, {0 if 'nomerge' in DBG else 1}")
e(f"s_lshr_b32 s{sTTC}, s{sTTC}, 8")
e(f"s_min_u32 s{sTB1}, s{sTTC}, {G}")
e(f"s_bfm_b64 s[{sMALL}:{sMALL+1}], s{sNU}, 0")
e(f"s_or_b64 s[{sMALL}:{sMALL+1}], s[{sMALL}:{sMALL+1}], s[{sM}:{sM+1}]")
e(f"s_and_b32 s{sM+1}, s{sM+1}, {RHI:#x}")
e("s_branch L_k_first")
lab("L_v_more")
c("second batch")
e(f"s_mov_b32 s{sTB0}, s{sTB1}")
e(f"s_mov_b32 s{sTB1}, s{sTTC}")
e(f"s_mov_b32 s{sOFF}, s{sTB0}")
e(f"s_mov_b32 s{sMALL}, 0")
e(f"s_andn2_b32 s{sMALL+1}, s{sMALL+1}, {RHI:#x}")
e(f"s_mov_b64 s[{sM}:{sM+1}], s[{sMALL}:{sMALL+1}]")
e("s_branch L_k_first")
lab("L_k_empty")
e(f"s_cmp_eq_u32 s{sPLN}, 0")
e("s_cbranch_scc1 L_k_noplan")
if a.last: inv_pre()
e(f"s_mov_b32 s{sOFF}, s{sTB1}")
e(f"s_mov_b32 s{sM}, s{sMALL}")
e(f"s_and_b32 s{sM+1}, s{sMALL+1}, {RHI:#x}")
e(f"s_cmp_eq_u32 s{sTB0}, 0")
e(f"s_cselect_b32 s{sM+1}, s{sM+1}, s{sMALL+1}")
for x in NX + VA: e(x)
e(f"ds_read_b64 v[{vPL}:{vPL+1}], v{vPA}")
e(f"s_cmp_lt_i32 s{sTN}, 0")
e("s_cbranch_scc1 L_v_empty")
lab("L_v_next")
for x in ADV: e(x)
if a.last:
    e(f"s_cmp_eq_u64 s[{sM}:{sM+1}], 0")
    e("s_cbranch_scc1 L_v_islast")
lab("L_v_next2")
e(f"ds_read_b128 v[{vPN}:{vPN+3}], v{vPW}")
e("s_waitcnt lgkmcnt(1)")
e(f"v_readfirstlane_b32 s{sLND}, v{vPL}")
e(f"s_cmp_ge_i32 s{sLND}, s{sNK}")
e("s_cbranch_scc1 L_v_rd")
poll("L_v_poll")
lab("L_v_rd")
for x in VR: e(x)
if a.lat:
    e(f"v_readfirstlane_b32 s{sMBF}, v{vPL+1}")
    e(f"s_cmp_gt_i32 s{sLND}, s{sNK}")
    e(f"s_cselect_b32 s{sT0}, 1, s{sRS}")
    e(f"s_or_b32 s{sT0}, s{sT0}, s{sRS+1}")
    e(f"s_and_b32 s{sT1}, s{sMBF}, s{sMRG}")
    e(f"s_or_b32 s{sT0}, s{sT0}, s{sT1}")
    e("s_cbranch_scc0 L_v_lat")
out.append(".p2align 3")
lab("L_v_top")
for x in NX + VA: e(x)
e(f"s_sub_u32 s{sT0}, s{sT}, 1")
e(f"s_bitcmp1_b64 s[{sRS}:{sRS+1}], s{sT0}")
e("s_cbranch_scc1 L_v_resc")
lab("L_v_top2")
e("s_waitcnt lgkmcnt(14)")
e(f"v_readfirstlane_b32 s{sMBF}, v{vPL+1}")
e(f"v_readfirstlane_b32 s{sLND}, v{vPL}")
e(f"v_mov_b64 v[{vP}:{vP+1}], v[{vPN}:{vPN+1}]")
e(f"v_mov_b64 v[{vP+2}:{vP+3}], v[{vPN+2}:{vPN+3}]")
e(f"s_and_b32 s{sT0}, s{sMBF}, s{sMRG}")
e("s_cbranch_scc1 L_v_merge")
lab("L_v_top3")
e(f"s_cmp_ge_i32 s{sLND}, s{sNK}")
e("s_cbranch_scc0 L_v_pv")
e(ADV[2])
e("s_waitcnt lgkmcnt(0)")
e(f"ds_write_b32 v{vFW}, v{vFV}")
e(f"ds_read_b64 v[{vPL}:{vPL+1}], v{vPA}")
e(f"ds_read_b128 v[{vPN}:{vPN+3}], v{vPW}")
for i in range(8):
    e(PV[i]); e(VR[2*i]); e(VR[2*i+1])
e(ADV[0]); e(ADV[1]); e(ADV[3])
e("s_branch L_v_top")
if a.lat:
    c("nothing further has landed and nothing is pending: shortest way through this tile")
    lab("L_v_lat")
    e("s_waitcnt lgkmcnt(14)")
    e(f"v_mov_b64 v[{vP}:{vP+1}], v[{vPN}:{vPN+1}]")
    e(f"v_mov_b64 v[{vP+2}:{vP+3}], v[{vPN+2}:{vPN+3}]")
    fl = NX + VA
    e(fl[0]); e(fl[1])
    for i in range(8):
        if i: e(f"s_waitcnt lgkmcnt({14-2*i})")
        if i == 7:
            e(f"ds_write_b32 v{vFW}, v{vFV}")
            e(f"ds_read_b64 v[{vPL}:{vPL+1}], v{vPA}")
        e(PV[i])
        e(fl[2+2*i]); e(fl[3+2*i])
    e(f"s_cmp_ge_i32 s{sTN}, 0")
    e("s_cbranch_scc1 L_v_next")
    e("s_branch L_v_empty")
lab("L_v_pv")
if a.last:
    e(f"s_cmp_lt_i32 s{sTN}, 0")
    e("s_cbranch_scc1 L_v_islast2")
    lab("L_v_pv2")
for i in range(8):
    if i: e(f"s_waitcnt lgkmcnt({14-2*i})")
    if i == 7:
        e(f"ds_write_b32 v{vFW}, v{vFV}")
        e(f"ds_read_b64 v[{vPL}:{vPL+1}], v{vPA}")
    e(PV[i])
e(f"s_cmp_ge_i32 s{sTN}, 0")
e("s_cbranch_scc1 L_v_next")
lab("L_v_empty")
e(f"s_cmp_lt_u32 s{sTB1}, s{sTTC}")
e("s_cbranch_scc1 L_v_more")
stamp(2)
e(f"s_cmp_lg_u32 s{sMRG}, 0")
e("s_cbranch_scc1 L_c_mwait0")
lab("L_c_store")
e(f"v_mov_b32 v{vT0}, v{vLS}")
e(f"v_and_b32 v{vT2}, 15, v{vLANE}")
e(f"v_lshl_add_u32 v{vT2}, v{vT2}, 8, s{sQO}")
e(f"v_permlane32_swap_b32 v{vLS}, v{vT0}")
e("s_nop 0")
e(f"v_add_f32 v{vLS}, v{vLS}, v{vT0}")
e(f"v_mov_b32 v{vT0}, v{vLS}")
e(f"v_lshl_add_u32 v{vT2}, v{vG}, 4, v{vT2}")
e("s_nop 0")
e(f"v_permlane16_swap_b32 v{vLS}, v{vT0}")
e("s_nop 0")
e(f"v_add_f32 v{vLS}, v{vLS}, v{vT0}")
e(f"v_rcp_f32 v{vMN}, v{vLS}")
e(f"s_cmp_lg_u32 s{sROLE}, 0")
scale_o(vMN)
for r in range(16):
    e(f"v_cvt_pk_bf16_f32 v{vKF+r}, v{vO+2*r}, v{vO+2*r+1}")
e("s_cbranch_scc1 L_publish")
def out_stores(fl, step=64):
    for j in range(4):
        e(f"global_store_dwordx4 v{vT2}, v[{vKF+4*j}:{vKF+4*j+3}], s[{sOUT}:{sOUT+1}] offset:{step*j}{fl}")
out_stores(OST)
e(FIN)

def l_total():
    e(f"v_mov_b32 v{vT0}, v{vLS}")
    e(f"v_and_b32 v{vT2}, 15, v{vLANE}")
    e(f"v_lshl_add_u32 v{vT2}, v{vT2}, 8, s{sQO}")
    e(f"v_permlane32_swap_b32 v{vLS}, v{vT0}")
    e("s_nop 0")
    e(f"v_add_f32 v{vLS}, v{vLS}, v{vT0}")
    e(f"v_mov_b32 v{vT0}, v{vLS}")
    e(f"v_lshl_add_u32 v{vT2}, v{vG}, 4, v{vT2}")
    e("s_nop 0")
    e(f"v_permlane16_swap_b32 v{vLS}, v{vT0}")
    e("s_nop 0")
    e(f"v_add_f32 v{vLS}, v{vLS}, v{vT0}")
    e(f"v_rcp_f32 v{vMN}, v{vLS}")
if a.last:
    lab("L_v_islast2")
    e(f"s_sub_u32 s{sT0}, s{sTTC}, s{sTB1}")
    e(f"s_or_b32 s{sT0}, s{sT0}, s{sMRG}")
    e(f"s_or_b32 s{sT0}, s{sT0}, s{sROLE}")
    e("s_cbranch_scc1 L_v_pv2")
    e("s_branch L_v_lpv")
    lab("L_v_islast")
    c("closing tile of an owner with nothing pending: take the short path")
    e(f"s_sub_u32 s{sT0}, s{sTTC}, s{sTB1}")
    e(f"s_or_b32 s{sT0}, s{sT0}, s{sMRG}")
    e(f"s_or_b32 s{sT0}, s{sT0}, s{sROLE}")
    e(f"s_or_b32 s{sT0}, s{sT0}, s{sRS}")
    e(f"s_or_b32 s{sT0}, s{sT0}, s{sRS+1}")
    e("s_cbranch_scc1 L_v_next2")
    e(f"ds_read_b128 v[{vP}:{vP+3}], v{vPW}")
    e("s_waitcnt lgkmcnt(1)")
    e(f"v_readfirstlane_b32 s{sLND}, v{vPL}")
    e(f"s_cmp_ge_i32 s{sLND}, s{sNK}")
    e("s_cbranch_scc1 L_v_lrd")
    poll("L_v_lpoll")
    lab("L_v_lrd")
    for x in VR: e(x)
    def fin_j(j):
        r = []
        for k in range(4):
            q = vO + 8 * j + 2 * k
            r.append(f"v_pk_mul_f32 v[{q}:{q+1}], v[{q}:{q+1}], v[{vINV}:{vINV+1}] op_sel_hi:[1,0]")
        for k in range(4):
            r.append(f"v_cvt_pk_bf16_f32 v{vKF+4*j+k}, v{vO+8*j+2*k}, v{vO+8*j+2*k+1}")
        r.append(f"global_store_dwordx4 v{vOA}, v[{vKF+4*j}:{vKF+4*j+3}], s[{sOUT}:{sOUT+1}] offset:{64*j}{OST}")
        return r
    lab("L_v_lpv")
    f0 = fin_j(0)
    for i in range(8):
        e(f"s_waitcnt lgkmcnt({14-2*i})")
        e(PV[i])
        if i == 5: e(f0[0]); e(f0[1])
        if i == 6: e(f0[2]); e(f0[3])
    stamp(2)
    for x in f0[4:] + fin_j(1) + fin_j(2) + fin_j(3): e(x)
    e(f"ds_write_b32 v{vFW}, v{vFV}")
    e(FIN)

lab("L_v_resc")
e(f"s_bitset0_b64 s[{sRS}:{sRS+1}], s{sT0}")
alpha_addr()
e("s_waitcnt vmcnt(0)")
e(f"global_load_dword v{vAL}, v{vT1}, s[{sWS}:{sWS+1}] sc1")
e("s_waitcnt vmcnt(0)")
scale_o(vAL)
e("s_branch L_v_top2")

lab("L_v_merge")
c("only once no rescale is pending; the reference max stays, so the partial's max must not be far above it")
e(f"s_cmp_eq_u64 s[{sRS}:{sRS+1}], 0")
e("s_cbranch_scc0 L_v_top3")
lab("L_c_merge")
e(f"s_mul_i32 s{sT0}, s{sCI}, {MBS}")
e(f"s_add_u32 s{sT0}, s{sT0}, {MB}")
e(f"v_and_b32 v{vT1}, 15, v{vLANE}")
e(f"v_lshl_add_u32 v{vT0}, v{vLANE}, 4, s{sT0}")
e(f"v_lshl_add_u32 v{vT1}, v{vT1}, 3, s{sT0}")
e("s_waitcnt lgkmcnt(0)")
e(f"ds_write_b32 v{vFW}, v{vFV}")
e(f"ds_read_b64 v[{vT4}:{vT5}], v{vT1} offset:4096")
for i in range(4):
    e(f"ds_read_b128 v[{vKF+4*i}:{vKF+4*i+3}], v{vT0} offset:{1024*i}")
e(f"s_cmp_eq_u32 s{sPLN}, 2")
e("s_waitcnt lgkmcnt(0)")
e("s_cbranch_scc1 L_c_mfin")
e(f"v_sub_f32 v{vT4}, v{vT4}, v{vM}")
e(f"v_cmp_nge_f32 vcc, 0x41800000, v{vT4}")
e(f"s_mov_b32 s{sMRG}, 2")
e("s_nop 3")
e("s_cbranch_vccnz L_v_top3")
e("s_branch L_c_madd")
lab("L_c_mfin")
e(f"v_max_f32 v{vMN}, v{vM}, v{vT4}")
e(f"v_sub_f32 v{vAL}, v{vM}, v{vMN}")
e(f"v_sub_f32 v{vT4}, v{vT4}, v{vMN}")
e(f"v_exp_f32 v{vAL}, v{vAL}")
e("s_nop 0")
e(f"v_mul_f32 v{vLS}, v{vLS}, v{vAL}")
scale_o(vAL)
lab("L_c_madd")
e(f"v_exp_f32 v{vT4}, v{vT4}")
e(f"s_mov_b32 s{sMRG}, 0")
e(f"v_mul_f32 v{vT4}, v{vT4}, v{vT5}")
e(f"v_fmac_f32 v{vLS}, 0x3e800000, v{vT4}")
for r in range(16):
    t = vKF + 16 + 2 * (r % 4)
    e(f"v_lshlrev_b32 v{t}, 16, v{vKF+r}")
    e(f"v_and_b32 v{t+1}, 0xffff0000, v{vKF+r}")
    e(f"v_pk_fma_f32 v[{vO+2*r}:{vO+2*r+1}], v[{t}:{t+1}], v[{vT4}:{vT4+1}], v[{vO+2*r}:{vO+2*r+1}] op_sel_hi:[1,0,1]")
e(f"s_cmp_eq_u32 s{sPLN}, 2")
e("s_cbranch_scc1 L_c_store")
if a.last: inv_pre()
e("s_branch L_v_top3")
lab("L_c_mwait0")
e(f"s_mov_b32 s{sPLN}, 2")
lab("L_c_mwait")
e(f"ds_read_b64 v[{vPL}:{vPL+1}], v{vPA}")
e("s_waitcnt lgkmcnt(0)")
e(f"v_readfirstlane_b32 s{sMBF}, v{vPL+1}")
e(f"s_cmp_lg_u32 s{sMBF}, 0")
e("s_cbranch_scc1 L_c_merge")
spin_tail("L_c_mwait")

def ws_base(sb):
    e(f"s_lshl3_add_u32 s{sT0}, s{sb}, s{sH}")
    e(f"s_lshl_b32 s{sT0}, s{sT0}, 9")
    if WS0: e(f"s_add_u32 s{sT0}, s{sT0}, {WS0}")

lab("L_publish")
if "nopub" in DBG: e("s_endpgm")
e(f"v_lshl_add_u32 v{vT2}, v{vLANE}, 4, s{sQO}")
e(f"s_lshl_b32 s{sT2}, s{sPB}, 2")
e(f"v_mov_b32 v{vT3}, s{sT2}")
e(f"v_lshlrev_b32 v{vT4}, 1, v{vT3}")
e(f"v_add_u32 v{vT4}, {CTRL+68}, v{vT4}")
e(f"ds_read_b32 v{vT4}, v{vT4}")
ws_base(sPB)
e(f"s_lshl2_add_u32 s{sT1}, s{sCI}, s{sT0}")
e(f"v_mov_b32 v{vT5}, s{sT1}")
e(f"s_lshl_b32 s{sT1}, s{sCI}, 7")
e(f"s_add_u32 s{sT0}, s{sT0}, s{sT1}")
e(f"v_lshl_add_u32 v{vT1}, v{vLANE}, 3, s{sT0}")
e(f"s_getreg_b32 s{sT2}, hwreg(HW_REG_XCC_ID, 0, 4)")
e(f"s_lshl_b32 s{sT2}, s{sT2}, 4")
e(f"s_or_b32 s{sT2}, s{sT2}, s{sH}")
e(f"s_or_b32 s{sT2}, s{sT2}, 0x100")
e("s_waitcnt lgkmcnt(0)")
e(f"v_readfirstlane_b32 s{sT1}, v{vT4}")
e(f"s_lshr_b32 s{sT1}, s{sT1}, 16")
e(f"s_cmp_eq_u32 s{sT1}, s{sT2}")
e("s_cbranch_scc1 L_pub_fast")
e(f"global_load_dword v{vT4}, v{vT3}, s[{sDBG}:{sDBG+1}] offset:128 sc1")
e("s_waitcnt vmcnt(0)")
e(f"v_readfirstlane_b32 s{sT1}, v{vT4}")
e(f"s_lshr_b32 s{sT1}, s{sT1}, 16")
e(f"s_cmp_eq_u32 s{sT1}, s{sT2}")
e("s_cbranch_scc0 L_pub_slow")
lab("L_pub_fast")
c("the receiver runs on this die and has cleared its flag words: hand over inside the shared L2")
out_stores(" " + a.pst if a.pst else "", 1024)
e("s_mov_b64 exec, 0xffff")
e(f"global_store_dwordx2 v{vT1}, v[{vM}:{vM+1}], s[{sWS}:{sWS+1}]")
e(f"v_mov_b32 v{vT4}, 1")
e("s_waitcnt vmcnt(0)")
e("s_mov_b64 exec, 1")
e(f"global_store_dword v{vT5}, v{vT4}, s[{sWS}:{sWS+1}] offset:256")
e(FIN)
lab("L_pub_slow")
c("any other placement: write through to memory, then set a bit with a device-wide atomic")
out_stores(" sc1", 1024)
e("s_mov_b64 exec, 0xffff")
e(f"global_store_dwordx2 v{vT1}, v[{vM}:{vM+1}], s[{sWS}:{sWS+1}] sc1")
e(f"s_lshl1_add_u32 s{sT1}, s{sH}, s{sCI}")
e(f"s_lshl_b32 s{sT1}, 1, s{sT1}")
e(f"v_mov_b32 v{vT4}, s{sT1}")
e("s_waitcnt vmcnt(0)")
e("s_mov_b64 exec, 1")
e(f"global_atomic_add v{vT3}, v{vT4}, s[{sDBG}:{sDBG+1}]")
e(FIN)

vRW = vL
vKEY, vRK = 19, 20
lab("L_ctl0")
if a.skew:
    c("dies are not started at the same instant: the first eight workgroups post when they started")
    e(f"s_memrealtime s[{sMA}:{sMA+1}]")
    e(f"s_lshl2_add_u32 s{sT0}, s{sH}, 2")
    e(f"v_mov_b32 v{vT4}, s{sT0}")
    e(f"s_cmp_lg_u32 s{sB}, 0")
    e("s_waitcnt lgkmcnt(0)")
    e("s_cbranch_scc1 L_ctl1")
    e(f"s_or_b32 s{sT0}, s{sMA}, 0x8000")
    e(f"v_mov_b32 v{vT5}, s{sT0}")
    e("s_mov_b64 exec, 1")
    e(f"global_store_short v{vT4}, v{vT5}, s[{sDBG}:{sDBG+1}] sc1")
    e("s_mov_b64 exec, -1")
    lab("L_ctl1")
e("s_barrier")
e("s_branch L_ctl")
lab("L_planner")
e(f"s_cmp_eq_u32 s{sW}, 5")
e("s_cbranch_scc1 L_ctl0")
e(f"s_sub_u32 s{sCI}, s{sW}, 3")
e(f"s_lshl_b32 s{sSB}, s{sCI}, 8")
e(f"s_add_u32 s{sSB}, s{sSB}, {CNT}")
e(f"v_lshl_add_u32 v{vPA}, v{vLANE}, 2, s{sSB}")
e(f"s_lshl_b32 s{sT2}, s{sCI}, 7")
e(f"s_add_u32 s{sT2}, s{sT2}, {KEYS}")
e(f"v_add_u32 v{vT3}, s{sT2}, v{vT3}")
e(f"v_lshrrev_b32 v{vT4}, 5, v{vLANE}")
e(f"v_lshl_add_u32 v{vT4}, v{vT4}, 6, s{sT2}")
e(f"v_mov_b32 v{vT5}, 2048")
e("s_barrier")
e("s_waitcnt vmcnt(0)")
e(f"v_cmp_gt_i32 s[{sZQ}:{sZQ+1}], 1, v{vN}")
e(f"v_min_i32 v{vN}, v{vN}, v{vT5}")
e("s_nop 0")
e(f"v_cndmask_b32 v{vN}, v{vN}, v{vT5}, s[{sZQ}:{sZQ+1}]")
e(f"v_add_u32 v{vN}, 15, v{vN}")
e(f"v_lshrrev_b32 v{vN}, 4, v{vN}")
e(f"v_lshl_or_b32 v{vKEY}, v{vN}, 5, v{vT0}")
e(f"ds_write_b32 v{vT3}, v{vKEY}")
for i in range(4):
    e(f"ds_read_b128 v[{vKF+4*i}:{vKF+4*i+3}], v{vT4} offset:{16*i}")
e(f"v_mov_b32 v{vRK}, 0")
e(f"v_readlane_b32 s{sNB}, v{vN}, s{sB}")
e("s_waitcnt lgkmcnt(0)")
c("rank of every batch by block count; the batch of rank 31-r is the partner")
for i in range(16):
    e(f"v_sub_u32 v{vKF+i}, v{vKF+i}, v{vKEY}")
for i in range(16):
    e(f"v_alignbit_b32 v{vRK}, v{vRK}, v{vKF+i}, 31")
e(f"v_bcnt_u32_b32 v{vRK}, v{vRK}, 0")
e(f"v_mov_b32 v{vT2}, v{vRK}")
derive_nb()
e(f"v_permlane32_swap_b32 v{vRK}, v{vT2}")
e("s_nop 0")
e(f"v_add_u32 v{vRK}, v{vRK}, v{vT2}")
e("s_nop 0")
e(f"v_readlane_b32 s{sRK}, v{vRK}, s{sB}")
e(f"s_sub_u32 s{sT0}, 31, s{sRK}")
e(f"v_cmp_eq_u32 vcc, s{sT0}, v{vRK}")
e(f"s_ff1_i32_b32 s{sPB}, vcc_lo")
e(f"v_readlane_b32 s{sNP}, v{vN}, s{sPB}")
e(f"s_max_u32 s{sT0}, s{sNB}, s{sNP}")
e(f"s_min_u32 s{sT1}, s{sNB}, s{sNP}")
e(f"s_sub_u32 s{sX}, s{sT0}, s{sT1}")
e(f"s_add_u32 s{sX}, s{sX}, 2")
e(f"s_lshr_b32 s{sX}, s{sX}, 2")
e(f"s_cmp_lt_u32 s{sT0}, {4*NUM+8}")
e(f"s_cselect_b32 s{sX}, 0, s{sX}")
if a.nopair: e(f"s_mov_b32 s{sX}, 0")
e(f"s_cmp_ge_u32 s{sRK}, 16")
e(f"s_cselect_b32 s{sLO}, s{sX}, 0")
e(f"s_cselect_b32 s{sTB}, 0, s{sX}")
e(f"s_cmp_eq_u32 s{sCI}, 0")
e("s_cbranch_scc1 L_pl_norow")
e(f"s_lshl_b32 s{sT0}, s{sPB}, 9")
e(f"v_lshl_add_u32 v{vT1}, v{vLANE}, 3, s{sT0}")
e(f"global_load_dwordx2 v[{vRW}:{vRW+1}], v{vT1}, s[{sBT}:{sBT+1}]")
lab("L_pl_norow")
e(f"s_sub_u32 s{sTA}, s{sNTL}, s{sLO}")
e(f"s_add_u32 s{sT}, s{sTA}, s{sTB}")
e(f"s_mul_i32 s{sF}, s{sT}, {a.fnum}")
e(f"s_lshr_b32 s{sF}, s{sF}, 6")
e(f"s_min_u32 s{sWB}, s{sTA}, {a.UB}")
e(f"s_sub_i32 s{sF}, s{sF}, s{sWB}")
e(f"s_max_i32 s{sF}, s{sF}, s{sTB}")
e(f"s_max_i32 s{sF}, s{sF}, 1")
e(f"v_cvt_f32_u32 v{vT2}, s{sF}")
e(f"v_subrev_u32 v{vT3}, s{sWB}, v{vLANE}")
e(f"v_rcp_f32 v{vT2}, v{vT2}")
e(f"v_mul_i32_i24 v{vT4}, s{sTB}, v{vT3}")
e(f"v_add_u32 v{vT5}, s{sTB}, v{vT4}")
e(f"v_cvt_f32_i32 v{vT4}, v{vT4}")
e(f"v_cvt_f32_i32 v{vT5}, v{vT5}")
e(f"v_add_f32 v{vT4}, 0.5, v{vT4}")
e(f"v_add_f32 v{vT5}, 0.5, v{vT5}")
e(f"v_mul_f32 v{vT4}, v{vT4}, v{vT2}")
e(f"v_mul_f32 v{vT5}, v{vT5}, v{vT2}")
e(f"v_floor_f32 v{vT4}, v{vT4}")
e(f"v_floor_f32 v{vT5}, v{vT5}")
e(f"v_cmp_gt_u32 vcc, s{sF}, v{vT3}")
e(f"v_cmp_gt_f32 s[{sMBK}:{sMBK+1}], v{vT5}, v{vT4}")
e(f"s_sub_u32 s{sT0}, s{sT}, s{sNU}")
e(f"v_subrev_u32 v{vT3}, s{sNU}, v{vLANE}")
e(f"v_cmp_gt_u32 s[{sMA}:{sMA+1}], s{sT0}, v{vT3}")
e(f"s_and_b64 s[{sMBK}:{sMBK+1}], s[{sMBK}:{sMBK+1}], vcc")
e(f"s_andn2_b64 s[{sMA}:{sMA+1}], s[{sMA}:{sMA+1}], s[{sMBK}:{sMBK+1}]")
c(f"own tiles to sort: logical [NU+given, ntile); donated: the partner's logical [{NUM}, {NUM}+TB)")
mfirst = a.mfirst and not a.nosort
if mfirst:
    e(f"s_ff1_i32_b64 s{sT2}, s[{sMA}:{sMA+1}]")
else:
    e(f"s_flbit_i32_b64 s{sT2}, s[{sMA}:{sMA+1}]")
    e(f"s_sub_u32 s{sT2}, 63, s{sT2}")
e(f"s_lshl_b32 s{sT2}, s{sT2}, 8")
e(f"s_or_b32 s{sWB}, s{sT2}, 1")
e(f"s_min_u32 s{sMRG}, s{sLO}, 1")
SM = [int(x) for x in a.smart.split(",")] if a.smart else None
sV0M, sV1M, sCM, sD2, sCN = 72, 74, 76, 78, 79
if SM:
    e(f"s_lshl_b32 s{sD2}, s{sLO}, 1")
    e(f"s_sub_u32 s{sCN}, s{sNTL}, {NUM+1}")
    e(f"s_mov_b32 s{sLO}, 0")
e(f"s_add_u32 s{sLO}, s{sLO}, s{sNU}")
e(f"s_sub_u32 s{sHI}, s{sNTL}, s{sLO}")
e(f"s_sub_u32 s{sT3}, s{sNTL}, 1")
e(f"s_mov_b32 s{sLBASE}, {LA}")
e(f"s_cmp_eq_u32 s{sCI}, 0")
e("s_cbranch_scc1 L_pl_a")
e(f"s_mov_b32 s{sLO}, {NUM}")
e(f"s_mov_b32 s{sHI}, s{sTB}")
e(f"s_mov_b32 s{sT3}, -1")
if SM:
    e(f"s_lshl_b32 s{sD2}, s{sTB}, 1")
    e(f"s_add_u32 s{sCN}, s{sNP}, 1")
    e(f"s_lshr_b32 s{sCN}, s{sCN}, 1")
    e(f"s_sub_u32 s{sCN}, s{sCN}, {NUM+1}")
e(f"s_mov_b32 s{sLBASE}, {LB}")
e(f"s_mov_b64 s[{sMA}:{sMA+1}], s[{sMBK}:{sMBK+1}]")
e("s_branch L_pl_sort")
lab("L_pl_a")
e(f"s_lshl_b32 s{sT0}, s{sT}, 8")
e(f"s_or_b32 s{sT0}, s{sT0}, s{sMRG}")
e(f"v_mov_b32 v{vT2}, s{sMA}")
e(f"v_mov_b32 v{vT3}, s{sMA+1}")
e(f"v_mov_b32 v{vT4}, s{sT0}")
e(f"v_mov_b32 v{vT5}, s{sWB}")
e(f"v_mov_b32 v{vT1}, {REC0}")
e(f"ds_write_b128 v{vT1}, v[{vT2}:{vT5}]")
lab("L_pl_sort")
e(f"v_subrev_u32 v{vT0}, s{sLO}, v{vLANE}")
e(f"v_cmp_gt_u32 vcc, s{sHI}, v{vT0}")
e(f"v_mov_b32 v{vT5}, 1")
e("s_waitcnt vmcnt(0)")
if SM:
    c("blocks to hand over: the first 2x candidates lying in the part of memory swept while the helper works on them")
    e(f"s_mov_b64 s[{sV0M}:{sV0M+1}], 0")
    e(f"s_mov_b64 s[{sV1M}:{sV1M+1}], 0")
    e(f"s_cmp_eq_u32 s{sD2}, 0")
    e("s_cbranch_scc1 L_pl_nod")
    e(f"s_movk_i32 s{sT0}, {SM[1]-SM[0]}")
    e(f"v_subrev_u32 v{vT2}, {SM[0]}, v{vRW}")
    e(f"v_subrev_u32 v{vT3}, {SM[0]}, v{vRW+1}")
    e(f"s_bfm_b64 s[{sCM}:{sCM+1}], s{sCN}, {NUM}")
    e(f"v_cmp_gt_u32 s[{sV0M}:{sV0M+1}], s{sT0}, v{vT2}")
    e(f"v_cmp_gt_u32 s[{sV1M}:{sV1M+1}], s{sT0}, v{vT3}")
    e(f"s_and_b64 s[{sV0M}:{sV0M+1}], s[{sV0M}:{sV0M+1}], s[{sCM}:{sCM+1}]")
    e(f"s_and_b64 s[{sV1M}:{sV1M+1}], s[{sV1M}:{sV1M+1}], s[{sCM}:{sCM+1}]")
    e(f"s_bcnt1_i32_b64 s{sT0}, s[{sV0M}:{sV0M+1}]")
    e(f"s_bcnt1_i32_b64 s{sT1}, s[{sV1M}:{sV1M+1}]")
    e(f"s_add_u32 s{sT1}, s{sT1}, s{sT0}")
    e(f"s_cmp_lt_u32 s{sT1}, s{sD2}")
    e(f"s_cselect_b64 s[{sV0M}:{sV0M+1}], s[{sCM}:{sCM+1}], s[{sV0M}:{sV0M+1}]")
    e(f"s_cselect_b64 s[{sV1M}:{sV1M+1}], s[{sCM}:{sCM+1}], s[{sV1M}:{sV1M+1}]")
    e(f"s_cselect_b32 s{sT0}, s{sCN}, s{sT0}")
    e(f"v_mbcnt_lo_u32_b32 v{vT2}, s{sV0M}, 0")
    e(f"v_mbcnt_lo_u32_b32 v{vT3}, s{sV1M}, 0")
    e(f"v_mbcnt_hi_u32_b32 v{vT2}, s{sV0M+1}, v{vT2}")
    e(f"v_mbcnt_hi_u32_b32 v{vT3}, s{sV1M+1}, v{vT3}")
    e(f"s_sub_u32 s{sT0}, s{sD2}, s{sT0}")
    e(f"v_cmp_gt_i32 s[{sCM}:{sCM+1}], s{sD2}, v{vT2}")
    e(f"s_and_b64 s[{sV0M}:{sV0M+1}], s[{sV0M}:{sV0M+1}], s[{sCM}:{sCM+1}]")
    e(f"v_cmp_gt_i32 s[{sCM}:{sCM+1}], s{sT0}, v{vT3}")
    e(f"s_and_b64 s[{sV1M}:{sV1M+1}], s[{sV1M}:{sV1M+1}], s[{sCM}:{sCM+1}]")
    lab("L_pl_nod")
    e(f"s_cmp_lg_u32 s{sCI}, 0")
    e("s_cbranch_scc1 L_pl_val")
    e(f"s_andn2_b64 s[{sV0M}:{sV0M+1}], vcc, s[{sV0M}:{sV0M+1}]")
    e(f"s_andn2_b64 s[{sV1M}:{sV1M+1}], vcc, s[{sV1M}:{sV1M+1}]")
    lab("L_pl_val")
X0 = f"s[{sV0M}:{sV0M+1}]" if SM else "vcc"
X1 = f"s[{sV1M}:{sV1M+1}]"
if a.nosort:
    e(f"v_lshlrev_b32 v{vT2}, 1, v{vT0}")
    e(f"v_add_u32 v{vT3}, 1, v{vT2}")
else:
    c("counting sort of the block ids into 64 buckets of ascending physical address")
    e(f"v_lshrrev_b32 v{vT0}, 6, v{vRW}")
    e(f"v_lshrrev_b32 v{vT1}, 6, v{vRW+1}")
    e(f"v_cmp_eq_u32 s[{sRK+2}:{sRK+3}], s{sT3}, v{vLANE}")
    if mfirst:
        e(f"v_med3_u32 v{vT0}, v{vT0}, 1, 63")
        e(f"v_med3_u32 v{vT1}, v{vT1}, 1, 63")
    else:
        e(f"v_min_u32 v{vT0}, 62, v{vT0}")
        e(f"v_min_u32 v{vT1}, 62, v{vT1}")
    fb = 0 if mfirst else 63
    e(f"v_cndmask_b32 v{vT0}, v{vT0}, {fb}, s[{sRK+2}:{sRK+3}]")
    e(f"v_cndmask_b32 v{vT1}, v{vT1}, {fb}, s[{sRK+2}:{sRK+3}]")
    e(f"v_lshlrev_b32 v{vT0}, 2, v{vT0}")
    e(f"v_lshlrev_b32 v{vT1}, 2, v{vT1}")
    e(f"v_add_u32 v{vKF}, s{sSB}, v{vT0}")
    e(f"v_add_u32 v{vKF+1}, s{sSB}, v{vT1}")
    e(f"s_mov_b64 exec, {X0}")
    e(f"ds_add_rtn_u32 v{vT2}, v{vKF}, v{vT5}")
    if SM: e(f"s_mov_b64 exec, {X1}")
    e(f"ds_add_rtn_u32 v{vT3}, v{vKF+1}, v{vT5}")
    e("s_mov_b64 exec, -1")
    e(f"ds_read_b32 v{vT4}, v{vPA}")
    e("s_waitcnt lgkmcnt(0)")
    e(f"v_mov_b32 v{vKF+2}, v{vT4}")
    for sh in (1, 2, 4, 8):
        e("s_nop 1")
        e(f"v_add_u32_dpp v{vT4}, v{vT4}, v{vT4} row_shr:{sh} row_mask:0xf bank_mask:0xf bound_ctrl:0")
    e("s_nop 1")
    e(f"v_add_u32_dpp v{vT4}, v{vT4}, v{vT4} row_bcast:15 row_mask:0xa bank_mask:0xf")
    e("s_nop 1")
    e(f"v_add_u32_dpp v{vT4}, v{vT4}, v{vT4} row_bcast:31 row_mask:0xc bank_mask:0xf")
    e(f"v_sub_u32 v{vT4}, v{vT4}, v{vKF+2}")
    e(f"ds_bpermute_b32 v{vT0}, v{vT0}, v{vT4}")
    e(f"ds_bpermute_b32 v{vT1}, v{vT1}, v{vT4}")
    e("s_waitcnt lgkmcnt(0)")
    e(f"v_add_u32 v{vT2}, v{vT2}, v{vT0}")
    e(f"v_add_u32 v{vT3}, v{vT3}, v{vT1}")
e(f"v_lshlrev_b32 v{vRW}, 15, v{vRW}")
e(f"v_lshlrev_b32 v{vRW+1}, 15, v{vRW+1}")
e(f"v_lshl_add_u32 v{vT2}, v{vT2}, 2, s{sLBASE}")
e(f"v_lshl_add_u32 v{vT3}, v{vT3}, 2, s{sLBASE}")
e(f"s_mov_b64 exec, {X0}")
e(f"ds_write_b32 v{vT2}, v{vRW}")
if SM: e(f"s_mov_b64 exec, {X1}")
e(f"ds_write_b32 v{vT3}, v{vRW+1}")
e("s_mov_b64 exec, -1")
c("place the sorted tiles at their stream positions; flags: 1 valid, 2 masked, 4 last of batch, 8 last of stream")
e(f"v_mbcnt_lo_u32_b32 v{vT0}, s{sMA}, 0")
e(f"v_mbcnt_hi_u32_b32 v{vT0}, s{sMA+1}, v{vT0}")
e(f"v_lshl_add_u32 v{vT0}, v{vT0}, 3, s{sLBASE}")
e(f"ds_read_b64 v[{vT2}:{vT3}], v{vT0}")
e(f"s_lshr_b32 s{sT0}, s{sWB}, 8")
e(f"s_sub_u32 s{sT1}, s{sT}, 1")
e(f"v_cmp_eq_u32 vcc, s{sT0}, v{vLANE}")
e(f"v_cmp_eq_u32 s[{sRK+2}:{sRK+3}], s{sT1}, v{vLANE}")
e(f"v_cmp_eq_u32 s[{sT2}:{sT2+1}], {G-1}, v{vLANE}")
e(f"v_cndmask_b32 v{vT4}, 1, 3, vcc")
e(f"v_cndmask_b32 v{vT5}, 0, 12, s[{sRK+2}:{sRK+3}]")
e(f"v_cndmask_b32 v{vT1}, 0, 4, s[{sT2}:{sT2+1}]")
e(f"v_or3_b32 v{vT4}, v{vT4}, v{vT5}, v{vT1}")
if TR:
    e(f"s_sub_u32 s{sT1}, s{sT}, {TR[0]}")
    e(f"v_cmp_le_i32 vcc, s{sT1}, v{vLANE}")
    e("s_nop 1")
    e(f"v_cndmask_b32 v{vT5}, 0, 16, vcc")
    e(f"v_or_b32 v{vT4}, v{vT4}, v{vT5}")
e(f"v_lshlrev_b32 v{vT0}, 3, v{vLANE}")
e(f"v_add_u32 v{vT0}, {SL}, v{vT0}")
e("s_waitcnt lgkmcnt(0)")
e(f"v_or_b32 v{vT2}, v{vT2}, v{vT4}")
e(f"s_mov_b64 exec, s[{sMA}:{sMA+1}]")
e(f"ds_write_b64 v{vT0}, v[{vT2}:{vT3}]")
e("s_mov_b64 exec, -1")
lab("L_pl_done")
e(f"s_cmp_lg_u32 s{sMRG}, 0")
e("s_cbranch_scc1 L_fetch")
e(f"s_cmp_eq_u32 s{sTB}, 0")
e("s_cbranch_scc1 L_fin")
c("become the consumer of the donated tiles")
load_q(sPB)
e(f"s_mov_b64 s[{sMALL}:{sMALL+1}], s[{sMBK}:{sMBK+1}]")
e(f"s_mov_b32 s{sM}, s{sMBK}")
e(f"s_and_b32 s{sM+1}, s{sMBK+1}, {RHI:#x}")
e(f"s_mov_b32 s{sTTC}, s{sT}")
e(f"s_min_u32 s{sTB1}, s{sT}, {G}")
e(f"s_mov_b32 s{sROLE}, 1")
e(f"s_mov_b32 s{sPLN}, 1")
e(f"s_lshr_b32 s{sT3}, s{sZQ}, s{sPB}")
e(f"s_and_b32 s{sT3}, s{sT3}, 1")
e("s_branch L_csetup")

lab("L_fetch")
e(f"s_cmp_lg_u32 s{sCI}, 0")
e("s_cbranch_scc1 L_fin")
rows_off(sB)
if a.otouch >= 0:
    c("make the lines that will carry the partial valid in L2 (a later read of write-only lines would go to memory)")
    e(f"v_lshl_add_u32 v{vT4}, v{vLANE}, 7, s{sQO}")
    e(f"global_load_dword v{vPF}, v{vT4}, s[{sOUT}:{sOUT+1}] {a.ofl.replace('+', ' ')}")
ws_base(sB)
e(f"v_lshl_add_u32 v{vT1}, v{vT0}, 3, s{sT0}")
e(f"v_mov_b32 v{vFW}, s{sT0}")
e(f"s_lshl_b32 s{sT2}, s{sB}, 2")
e(f"v_mov_b32 v{vT2}, s{sT2}")
e(f"v_mov_b32 v{vPA}, {CTRL+16}")
e("s_mov_b64 exec, 1")
e(f"s_mul_i32 s{sNEED}, s{sT}, {a.pollnum}")
e(f"s_lshr_b32 s{sNEED}, s{sNEED}, 5")
e(f"s_lshl_b32 s{sT3}, s{sH}, 1")
e(f"s_mov_b32 s{sMBF}, 0")
c("wait until wave 5 has cleared the flag words and the stream is far enough")
lab("L_f_wait")
e(f"ds_read_b64 v[{vPL}:{vPL+1}], v{vPA}")
e("s_waitcnt lgkmcnt(0)")
e(f"v_readfirstlane_b32 s{sLND}, v{vPL}")
e(f"v_readfirstlane_b32 s{sT0}, v{vPL+1}")
e(f"s_cmp_ge_i32 s{sLND}, s{sNEED}")
e(f"s_cselect_b32 s{sT0}, s{sT0}, 0")
e(f"s_cmp_lg_u32 s{sT0}, 0")
e("s_cbranch_scc1 L_f_poll")
spin_tail("L_f_wait", 8)
lab("L_f_poll")
if "nopoll" in DBG: e("s_branch L_f_got")
e(f"global_load_dwordx2 v[{vPL}:{vPL+1}], v{vFW}, s[{sWS}:{sWS+1}] offset:256 sc1")
e(f"s_add_u32 s{sMBF}, s{sMBF}, 1")
e(f"s_and_b32 s{sT0}, s{sMBF}, 3")
e(f"s_mov_b32 s{sT2}, 0")
e("s_cbranch_scc1 L_f_nodbg")
e(f"global_load_dword v{vT3}, v{vT2}, s[{sDBG}:{sDBG+1}] sc1")
e("s_waitcnt vmcnt(0)")
e(f"v_readfirstlane_b32 s{sT2}, v{vT3}")
e(f"s_lshr_b32 s{sT2}, s{sT2}, s{sT3}")
lab("L_f_nodbg")
e("s_waitcnt vmcnt(0)")
e(f"v_lshl_or_b32 v{vPL}, v{vPL+1}, 1, v{vPL}")
e("s_nop 0")
e(f"v_readfirstlane_b32 s{sT0}, v{vPL}")
e(f"s_or_b32 s{sT0}, s{sT0}, s{sT2}")
e(f"s_and_b32 s{sT0}, s{sT0}, 3")
e(f"s_cmp_eq_u32 s{sT0}, 3")
e("s_cbranch_scc1 L_f_got")
spin_tail("L_f_poll", a.psleep)
lab("L_f_got")
e("s_mov_b64 exec, -1")
c("a half that came through memory: acquire at device scope before reading it")
e(f"s_and_b32 s{sT2}, s{sT2}, 3")
e("s_cbranch_scc0 L_f_ld")
e("buffer_inv sc1")
e("s_waitcnt vmcnt(0)")
lab("L_f_ld")
e(f"v_lshl_add_u32 v{vT4}, v{vLANE}, 4, s{sQO}")
e(f"v_add_u32 v{vT5}, 4096, v{vT4}")
FLD = " " + a.fld if a.fld != "none" else ""
for cc in range(2):
    if "nofetch" in DBG:
        e(f"v_mov_b32 v{vM+2*cc}, 0"); e(f"v_mov_b32 v{vM+2*cc+1}, 0")
        continue
    e(f"global_load_dwordx2 v[{vM+2*cc}:{vM+2*cc+1}], v{vT1}, s[{sWS}:{sWS+1}] offset:{128*cc}{FLD}")
    for j in range(4):
        r = vKF + 16 * cc + 4 * j
        e(f"global_load_dwordx4 v[{r}:{r+3}], v{vT4+cc}, s[{sOUT}:{sOUT+1}] offset:{1024*j}{FLD}")
e(f"v_lshlrev_b32 v{vT2}, 4, v{vLANE}")
e(f"v_add_u32 v{vT2}, {MB}, v{vT2}")
e(f"v_lshlrev_b32 v{vT0}, 3, v{vT0}")
e(f"v_add_u32 v{vT0}, {MB}, v{vT0}")
e(f"v_mov_b32 v{vPL}, {CTRL+4}")
e(f"v_mov_b32 v{vT3}, 1")
for cc in range(2):
    e(f"s_waitcnt vmcnt({5-5*cc})")
    for j in range(4):
        r = vKF + 16 * cc + 4 * j
        e(f"ds_write_b128 v{vT2}, v[{r}:{r+3}] offset:{MBS*cc + 1024*j}")
    e(f"ds_write_b64 v{vT0}, v[{vM+2*cc}:{vM+2*cc+1}] offset:{MBS*cc + 4096}")
    e(f"ds_write_b32 v{vPL}, v{vT3} offset:{8*cc}")
e(FIN)

c("wave 5: workgroups that share an L2 post their remaining work; one that lags prefetches deeper")
lab("L_ctl")
e(f"v_mov_b32 v{vT1}, {REC0}")
e(f"v_mov_b32 v{vPA}, {CTRL+32}")
e(f"v_mov_b32 v{vFW}, {DEPW}")
e(f"s_lshl_b32 s{sT0}, s{sB}, 2")
e(f"v_mov_b32 v{vG}, s{sT0}")
e(f"v_mov_b32 v{vFV}, v{vT3}")
lo = sum((XT[i] & 255) << (8 * i) for i in range(4)); hi = sum((XT[4 + i] & 255) << (8 * i) for i in range(4))
e(f"s_getreg_b32 s{sT0}, hwreg(HW_REG_XCC_ID, 0, 3)")
e(f"s_mov_b32 s{sM}, {lo:#x}")
e(f"s_mov_b32 s{sM+1}, {hi:#x}")
e(f"s_lshl_b32 s{sT0}, s{sT0}, 3")
e(f"s_lshr_b64 s[{sM}:{sM+1}], s[{sM}:{sM+1}], s{sT0}")
e(f"s_sext_i32_i8 s{sBO}, s{sM}")
if a.hcap:
    c("heads 1 and 5 keep fewer bytes in flight per request (L1 set mapping)")
    e(f"s_and_b32 s{sT0}, s{sH}, 3")
    e(f"s_cmp_eq_u32 s{sT0}, 1")
    e(f"s_cselect_b32 s{sT0}, {a.hcap}, 0")
    e(f"s_add_u32 s{sBO}, s{sBO}, s{sT0}")
lab("L_g_plan")
e(f"ds_read_b128 v[{vT2}:{vT5}], v{vT1}")
e("s_waitcnt lgkmcnt(0)")
e(f"v_readfirstlane_b32 s{sT0}, v{vT5}")
e(f"v_readfirstlane_b32 s{sT}, v{vT4}")
e(f"s_cmp_lg_u32 s{sT0}, 0")
e("s_cbranch_scc1 L_g_go")
spin_tail("L_g_plan", 8)
lab("L_g_go")
e(f"s_and_b32 s{sMRG}, s{sT}, 1")
e("s_cbranch_scc0 L_g_nores")
c("a partial is expected: clear its flag words before anything is posted")
ws_base(sB)
e(f"v_mov_b32 v{vT0}, s{sT0}")
e(f"v_mov_b32 v{vT2}, 0")
e(f"v_mov_b32 v{vT3}, 0")
e(f"v_mov_b32 v{vT4}, {CTRL+20}")
e(f"v_mov_b32 v{vT5}, 1")
e("s_mov_b64 exec, 1")
e(f"global_store_dwordx2 v{vT0}, v[{vT2}:{vT3}], s[{sWS}:{sWS+1}] offset:256")
e("s_waitcnt vmcnt(0)")
e(f"ds_write_b32 v{vT4}, v{vT5}")
e("s_mov_b64 exec, -1")
lab("L_g_nores")
e(f"s_and_b32 s{sT0}, s{sDBG}, 127")
e("s_cbranch_scc1 L_fin")
c("posted word: remaining units + 1 | head << 16 | die << 20 | flags cleared << 24")
e(f"s_getreg_b32 s{sFB}, hwreg(HW_REG_XCC_ID, 0, 4)")
e(f"s_lshl4_add_u32 s{sFB}, s{sMRG}, s{sFB}")
e(f"s_lshl4_add_u32 s{sFB}, s{sFB}, s{sH}")
e(f"s_lshl_b32 s{sFB}, s{sFB}, 16")
e(f"s_lshr_b32 s{sT}, s{sT}, 8")
e(f"s_lshl1_add_u32 s{sTN}, s{sT}, 1")
e(f"v_lshlrev_b32 v{vT1}, 1, v{vFV}")
e(f"v_add_u32 v{vT1}, {CTRL+68}, v{vT1}")
e(f"v_mov_b32 v{vT2}, s{sFB}")
e("s_mov_b64 exec, 1")
e(f"global_store_dword v{vG}, v{vT2}, s[{sDBG}:{sDBG+1}] offset:128")
e("s_mov_b64 exec, -1")
if "v" in a.tlb: e(f"global_load_dword v{vPF}, v{vTL}, s[{sV}:{sV+1}] nt")
if "prog2" in DBG: e("v_mov_b32 v50, 0")
if a.skew:
    e(f"s_mov_b32 s{sNEED}, 3")
    e(f"s_cmp_lt_u32 s{sT}, 8")
    e("s_cbranch_scc1 L_fin")
    lab("L_g_sw")
    e(f"ds_read_b32 v{vPL}, v{vPA}")
    e("s_waitcnt lgkmcnt(0)")
    e(f"v_readfirstlane_b32 s{sLND}, v{vPL}")
    e(f"s_cmp_ge_i32 s{sLND}, s{sNEED}")
    e("s_cbranch_scc1 L_g_sa")
    spin_tail("L_g_sw", 1)
    lab("L_g_sa")
    e(f"global_load_dword v{vT0}, v{vFV}, s[{sDBG}:{sDBG+1}] sc1")
    e("s_waitcnt vmcnt(0)")
    e(f"v_cmp_gt_i32 vcc, 0, v{vT0}")
    e(f"v_lshrrev_b32 v{vT0}, 16, v{vT0}")
    e(f"v_sub_u32 v{vT0}, s{sMA}, v{vT0}")
    e(f"v_bfe_i32 v{vT0}, v{vT0}, 0, 15")
    e(f"v_cndmask_b32 v{vT0}, 0, v{vT0}, vcc")
    for sh in (1, 2, 4):
        e("s_nop 1")
        op = "v_max_i32_dpp" if "ampmax" in DBG else "v_add_u32_dpp"
        e(f"{op} v{vT0}, v{vT0}, v{vT0} row_shr:{sh} row_mask:0xf bank_mask:0xf bound_ctrl:0")
    e("s_nop 0")
    e(f"v_readlane_b32 s{sT0}, v{vT0}, 7")
    hx = [d for d in DBG if d.startswith("holdx")]
    if hx:
        e(f"s_ashr_i32 s{sMBK}, s{sT0}, 3")
        e(f"s_sub_u32 s{sMBK}, 3500, s{sMBK}")
        e(f"s_getreg_b32 s{sT1}, hwreg(HW_REG_XCC_ID, 0, 4)")
        e(f"s_cmp_lg_u32 s{sT1}, {hx[0][5:]}")
        e("s_cbranch_scc1 L_end")
        lab("L_hx")
        e(f"s_memrealtime s[{sLO}:{sLO+1}]")
        e("s_waitcnt lgkmcnt(0)")
        e(f"s_sub_u32 s{sT0}, s{sLO}, s{sMA}")
        e(f"s_cmp_lt_u32 s{sT0}, s{sMBK}")
        e("s_cbranch_scc1 L_hx")
        e("s_endpgm")
    if "ampmax" in DBG or "ampmean" in DBG:
        e(f"s_mul_i32 s{sMBK}, s{sT0}, {20 if 'ampmax' in DBG else 3}")
        e(f"s_max_i32 s{sMBK}, s{sMBK}, 0")
        e(f"s_add_u32 s{sMBK}, s{sMBK}, 3500")
        lab("L_amp")
        e("s_sleep 4")
        e(f"s_memrealtime s[{sLO}:{sLO+1}]")
        e("s_waitcnt lgkmcnt(0)")
        e(f"s_sub_u32 s{sT0}, s{sLO}, s{sMA}")
        e(f"s_cmp_lt_u32 s{sT0}, s{sMBK}")
        e("s_cbranch_scc1 L_amp")
        e("s_endpgm")
    e(f"s_mul_i32 s{sT0}, s{sT0}, {a.skew}")
    e(f"s_ashr_i32 s{sT0}, s{sT0}, 9")
    e(f"s_add_u32 s{sBO}, s{sBO}, s{sT0}")
e(f"s_mov_b32 s{sNEED}, {a.cstart}")
lab("L_g_next")
e(f"s_sub_u32 s{sT0}, s{sTN}, s{sNEED}")
e(f"s_cmp_lt_i32 s{sT0}, {a.cstop}")
e("s_cbranch_scc1 L_fin")
lab("L_g_w")
e(f"ds_read_b32 v{vPL}, v{vPA}")
e("s_waitcnt lgkmcnt(0)")
e(f"v_readfirstlane_b32 s{sLND}, v{vPL}")
e(f"s_cmp_ge_i32 s{sLND}, s{sNEED}")
e("s_cbranch_scc1 L_g_a")
spin_tail("L_g_w", 1)
lab("L_g_a")
if "prog2" in DBG:
    e(f"s_memrealtime s[{sST+2}:{sST+3}]")
    e(f"s_lshr_b32 m0, s{sLND}, 1")
    e("s_waitcnt lgkmcnt(0)")
    e(f"v_writelane_b32 v50, s{sST+2}, m0")
e(f"s_sub_u32 s{sNK}, s{sTN}, s{sLND}")
e(f"s_or_b32 s{sT0}, s{sNK}, s{sFB}")
e(f"v_mov_b32 v{vT2}, s{sT0}")
e("s_mov_b64 exec, 1")
e(f"global_store_dword v{vG}, v{vT2}, s[{sDBG}:{sDBG+1}] offset:128")
e("s_mov_b64 exec, -1")
e(f"global_load_dword v{vT0}, v{vFV}, s[{sDBG}:{sDBG+1}] offset:128 sc1")
e(f"s_add_u32 s{sNEED}, s{sLND}, {a.cstep}")
e(f"s_min_i32 s{sT3}, s{sBO}, 1")
e(f"s_max_i32 s{sT3}, s{sT3}, -1")
e(f"s_sub_u32 s{sBO}, s{sBO}, s{sT3}")
e("s_waitcnt vmcnt(0)")
e(f"ds_write_b32 v{vT1}, v{vT0}")
e(f"v_and_b32 v{vT0}, 0xffff, v{vT0}")
e(f"v_cmp_ne_u32 vcc, 0, v{vT0}")
for sh in (1, 2, 4, 8):
    e("s_nop 1")
    e(f"v_add_u32_dpp v{vT0}, v{vT0}, v{vT0} row_shr:{sh} row_mask:0xf bank_mask:0xf bound_ctrl:0")
e("s_nop 1")
e(f"v_add_u32_dpp v{vT0}, v{vT0}, v{vT0} row_bcast:15 row_mask:0xa bank_mask:0xf")
e(f"s_bcnt1_i32_b32 s{sT1}, vcc_lo")
e(f"v_readlane_b32 s{sT0}, v{vT0}, 31")
e(f"s_mul_i32 s{sT2}, s{sNK}, s{sT1}")
e(f"s_sub_u32 s{sT2}, s{sT2}, s{sT0}")
e(f"s_lshl_b32 s{sT2}, s{sT2}, 2")
for th, inc, cmp in ((CTH[0], -1, "lt"), (CTH[1], 1, "gt"), (CTH[2], 1, "gt")):
    e(f"s_mul_i32 s{sT0}, s{sT1}, {th - a.cbias}")
    e(f"s_cmp_{cmp}_i32 s{sT2}, s{sT0}")
    e(f"s_cselect_b32 s{sT0}, {inc}, 0")
    e(f"s_add_u32 s{sT3}, s{sT3}, s{sT0}")
e(f"s_max_i32 s{sT3}, s{sT3}, -1")
e(f"s_min_i32 s{sT3}, s{sT3}, 2")
e(f"v_mov_b32 v{vT2}, s{sT3}")
e(f"ds_write_b32 v{vFW}, v{vT2}")
e("s_branch L_g_next")

lab("L_fin")
if a.amp[:2] == "xd":
    xx = int(a.amp[2:])
    def wait_until(lbl, reg_or_imm):
        lab(lbl)
        e("s_sleep 2")
        e(f"s_memrealtime s[{sST+4}:{sST+5}]")
        e("s_waitcnt lgkmcnt(0)")
        e(f"s_sub_u32 s{sT0}, s{sST+4}, s{sST}")
        e(f"s_cmp_lt_u32 s{sT0}, {reg_or_imm}")
        e(f"s_cbranch_scc1 {lbl}")
    e(f"s_cmp_lg_u32 s{sW}, 1")
    e("s_cbranch_scc1 L_end")
    e("s_waitcnt vmcnt(0) lgkmcnt(0)")
    e(f"s_memrealtime s[{sST+2}:{sST+3}]")
    wait_until("L_xw1", 3400)
    e(f"s_and_b32 s{sT1}, s{sST+2}, 0xffff")
    e(f"s_and_b32 s{sT2}, s2, 7")
    e(f"s_lshl_b32 s{sT2}, s{sT2}, 2")
    e(f"v_mov_b32 v2, s{sT2}")
    e(f"v_mov_b32 v3, s{sT1}")
    e("s_mov_b64 exec, 1")
    e(f"global_atomic_add v2, v3, s[{sDBG}:{sDBG+1}]")
    e("s_cmp_lg_u32 s2, 0")
    e("s_cbranch_scc1 L_end")
    wait_until("L_xw2", 4200)
    e(f"s_load_dwordx8 s[72:79], s[{sDBG}:{sDBG+1}], 0 glc")
    e("s_waitcnt lgkmcnt(0)")
    e(f"s_lshl_b32 s{sT1}, s{72+xx}, 3")
    for i in range(8): e(f"s_sub_u32 s{sT1}, s{sT1}, s{72+i}")
    e(f"s_mul_i32 s{sT1}, s{sT1}, 30")
    e(f"s_ashr_i32 s{sT1}, s{sT1}, 8")
    e(f"s_max_i32 s{sT1}, s{sT1}, -1700")
    e(f"s_min_i32 s{sT1}, s{sT1}, 3000")
    e(f"s_add_u32 s{sT1}, s{sT1}, 6000")
    wait_until("L_xw3", f"s{sT1}")
elif a.amp:
    if a.amp == "end":
        e(f"s_sub_u32 s{sT0}, s{sW}, 1")
        e(f"s_cmp_gt_u32 s{sT0}, 1")
    else:
        e(f"s_cmp_lg_u32 s{sW}, 0")
    e("s_cbranch_scc1 L_end")
    if a.ampwg >= 0:
        e(f"s_cmp_lg_u32 s2, {a.ampwg}")
        e("s_cbranch_scc1 L_end")
    e("s_waitcnt vmcnt(0) lgkmcnt(0)")
    if a.amp[:2] != "t0":
        e(f"s_memrealtime s[{sST+2}:{sST+3}]")
        e("s_waitcnt lgkmcnt(0)")
    e(f"s_sub_u32 s{sT1}, s{sST+2}, s{sST}")
    if a.amp[:2] != "t0": e(f"s_sub_u32 s{sT1}, s{sT1}, 2700")
    if a.amp == "t0x":
        e(f"s_getreg_b32 s{sT1}, hwreg(HW_REG_XCC_ID, 0, 4)")
        e(f"s_mul_i32 s{sT1}, s{sT1}, 50")
    if a.amp == "t0p":
        e(f"s_getreg_b32 s{sT1}, hwreg(HW_REG_XCC_ID, 0, 1)")
        e(f"s_mul_i32 s{sT1}, s{sT1}, 200")
    e(f"s_max_i32 s{sT1}, s{sT1}, 0")
    e(f"s_min_i32 s{sT1}, s{sT1}, 2000")
    e(f"s_mul_i32 s{sT1}, s{sT1}, 10")
    e(f"s_add_u32 s{sT1}, s{sT1}, 3500")
    lab("L_ampw")
    e("s_sleep 2")
    e(f"s_memrealtime s[{sST+2}:{sST+3}]")
    e("s_waitcnt lgkmcnt(0)")
    e(f"s_sub_u32 s{sT0}, s{sST+2}, s{sST}")
    e(f"s_cmp_lt_u32 s{sT0}, s{sT1}")
    e("s_cbranch_scc1 L_ampw")
if "prog2" in DBG or "prog3" in DBG:
    e(f"s_cmp_lg_u32 s{sW}, {5 if 'prog2' in DBG else 0}")
    e("s_cbranch_scc1 L_np2")
    e(f"s_lshl_b32 s{sT0}, s2, 8")
    e(f"s_add_u32 s{sT0}, s{sT0}, 0x400000")
    e(f"v_lshl_add_u32 v51, v{vLANE}, 2, s{sT0}")
    e(f"global_store_dword v51, v50, s[{sWS}:{sWS+1}]")
    lab("L_np2")
if a.stamps:
    e(f"s_cmp_gt_u32 s{sW}, 2")
    e("s_cbranch_scc1 L_end")
    e("s_mov_b64 exec, -1")
    e("s_waitcnt vmcnt(0) lgkmcnt(0)")
    stamp(3)
    e(f"s_getreg_b32 s{sT0}, hwreg(HW_REG_XCC_ID)")
    e("s_waitcnt lgkmcnt(0)")
    for i in range(8):
        e(f"v_mov_b32 v{64+i}, s{sST+i}")
    e(f"v_mov_b32 v72, s{sT0}")
    e(f"s_sub_u32 s{sT1}, {SPIN}, s{sSPIN}")
    e(f"v_mov_b32 v73, s{sT1}")
    e(f"v_mov_b32 v74, s{sT}")
    e(f"v_mov_b32 v75, 0")
    e(f"s_mul_i32 s{sT0}, s2, {NW}")
    e(f"s_add_u32 s{sT0}, s{sT0}, s{sW}")
    e(f"s_lshl_b32 s{sT0}, s{sT0}, 6")
    e(f"v_mov_b32 v80, s{sT0}")
    e("s_mov_b64 exec, 1")
    e(f"global_store_dwordx4 v80, v[64:67], s[{sWS}:{sWS+1}]")
    e(f"global_store_dwordx4 v80, v[68:71], s[{sWS}:{sWS+1}] offset:16")
    e(f"global_store_dwordx4 v80, v[72:75], s[{sWS}:{sWS+1}] offset:32")
lab("L_end")
e("s_endpgm")
if a.wake:
    out.append(".p2align 8")
    lab("L_pad")
    out.append(f".fill {64 * a.wake}, 4, 0xbf810000")
out.append('.section .rodata,"a"')
out.append(".p2align 6")
out.append(f".amdhsa_kernel {NAME}_kernel")
out.append(f"  .amdhsa_next_free_vgpr {NV}")
out.append("  .amdhsa_next_free_sgpr 102")
out.append(f"  .amdhsa_accum_offset {NV}")
out.append("  .amdhsa_group_segment_fixed_size 0")
out.append("  .amdhsa_kernarg_size 64")
out.append("  .amdhsa_user_sgpr_count 2")
out.append("  .amdhsa_user_sgpr_kernarg_segment_ptr 1")
out.append("  .amdhsa_system_sgpr_workgroup_id_x 1")
out.append("  .amdhsa_float_denorm_mode_32 3")
out.append(".end_amdhsa_kernel")
open(a.o, "w").write("\n".join(out) + "\n")
```

```python
import sys, argparse
NAME = "standalone__paged_block_table_kv_pagedattention__sampling"
HEADER = open("cdna_kernels/" + NAME + ".s.ref").read().split("; Override")[0]

ap = argparse.ArgumentParser()
ap.add_argument("-o", default="/dev/stdout")
ap.add_argument("--map", default="plain")
ap.add_argument("--hrot", type=int, default=0)
ap.add_argument("--D", type=int, default=21)
ap.add_argument("--D0", type=int, default=26)
ap.add_argument("--NS", type=int, default=6)
ap.add_argument("--G", type=int, default=50)
ap.add_argument("--fnum", type=int, default=40)
ap.add_argument("--pollnum", type=int, default=55)
ap.add_argument("--psleep", type=int, default=6)
ap.add_argument("--UB", type=int, default=8)
ap.add_argument("--mfirst", type=int, default=1)
ap.add_argument("--cth", default="-2,2,5")
ap.add_argument("--cbias", type=int, default=7)
ap.add_argument("--cstart", type=int, default=8)
ap.add_argument("--cstop", type=int, default=4)
ap.add_argument("--cstep", type=int, default=3)
ap.add_argument("--xt", default="7,-11,1,-11,6,-9,8,-10")
ap.add_argument("--NUM", type=int, default=4)
ap.add_argument("--last", type=int, default=1)
ap.add_argument("--hold", default="")
ap.add_argument("--ost", default="")
ap.add_argument("--wb", type=int, default=0)
ap.add_argument("--skew", type=int, default=0)
ap.add_argument("--dv", default="-1,1,3")
ap.add_argument("--fpf", type=int, default=6)
ap.add_argument("--fld", default="sc1")
ap.add_argument("--opf", type=int, default=0)
ap.add_argument("--otouch", type=int, default=0)
ap.add_argument("--ospread", type=int, default=1)
ap.add_argument("--ofl", default="")
ap.add_argument("--DM", type=int, default=3)
ap.add_argument("--NE", type=int, default=3)
ap.add_argument("--amp", default="")
ap.add_argument("--ampwg", type=int, default=-1)
ap.add_argument("--tlb", default="")
ap.add_argument("--tlbs", type=int, default=21)
ap.add_argument("--wake", type=int, default=0)
ap.add_argument("--spec", type=int, default=1)
ap.add_argument("--lat", type=int, default=1)
ap.add_argument("--smart", default="")
ap.add_argument("--bar", type=int, default=2)
ap.add_argument("--hmap", default="")
ap.add_argument("--pst", default="")
ap.add_argument("--pfm", type=int, default=0)
ap.add_argument("--tr", default="")
ap.add_argument("--hcap", type=int, default=13)
ap.add_argument("--dwait", type=int, default=0)
ap.add_argument("--kpf", type=int, default=0)
ap.add_argument("--nosort", action="store_true")
ap.add_argument("--nopair", action="store_true")
ap.add_argument("--limf", default="0x43800000")
ap.add_argument("--dbg", default="")
ap.add_argument("--stamps", action="store_true")
a = ap.parse_args()
NT = " nt"
OST = "" if not a.ost else " " + a.ost.replace("+", " ")
DBG = set(a.dbg.split(","))
D, D0, NS, G = a.D, a.D0, a.NS, a.G
assert 24 <= D0 <= 32 and (D - 2) // 8 == (D + 1) // 8 == 2 and 32 <= G < 64
CTH = [int(x) for x in a.cth.split(",")]
XT = [int(x) for x in a.xt.split(",")]
DV = [int(x) for x in a.dv.split(",")]
TR = [int(x) for x in a.tr.split(",")] if a.tr else None
assert 17 <= D + DV[0] and D + DV[2] <= 24
DIVM = {5: (205, 10), 6: (43, 8), 7: (147, 10), 8: (1, 3), 10: (205, 11), 12: (171, 11)}[NS]
assert all((u * DIVM[0]) >> DIVM[1] == u // NS for u in range(129))
NW = 6
KBYTES = 4100 * 32768
SPIN = 1 << 22
NUM = a.NUM

RING = NS * 8192
PST = RING
MB = PST + G * 2048
MBS = 4224
CTRL = MB + 2 * MBS
FREE = CTRL + 512
REC0 = FREE + 128
DEPW = REC0 + 16
SL = FREE + 256
CNT = SL + 768
LA = CNT + 512
LB = LA + 512
KEYS = LB + 512
LDS = KEYS + 256
assert LDS <= 163840, LDS
WS0 = 0x100000 if a.stamps else 0
WSA = WS0 + 0x40000

out = []
def e(s): out.append("    " + s)
def lab(s): out.append(s + ":")
def c(s): out.append("    ; " + s)

sQ, sK, sV, sBT, sCL, sOUT, sDBG, sWS = 4, 6, 8, 10, 12, 14, 16, 18
sRD = 20
sB, sH, sW, sCLV = 28, 29, 30, 31
sT0, sT1, sT2, sT3 = 32, 33, 34, 35
sPC = 36
sSPIN = 38
sNB, sNTL, sNU, sT = 39, 40, 41, 42
sST = 64
sE = 72
sB0, sB1, sFL, sPM, sSLOT, sU, sTA0 = 46, 47, 48, 49, 52, 56, 57
sTRM, sTRC = 50, 51
sM = 46
sCI, sLND, sMBF, sNEED, sMRG, sMT, sROLE, sQO, sPLN, sSB = 48, 49, 50, 51, 52, 56, 57, 58, 59, 60
sV0 = 61
sCST = 62
sTN, sNK, sFWN, sFB, sPRE, sREDO, sLIMF, sPO = 96, 97, 98, 99, 100, 101, 53, 43
sMALL, sRS = 24, 26
sOFF, sTB0, sTB1, sTTC, sFIRST = 20, 21, 22, 23, 44
sZQ = 54
sRK, sPB, sNP, sX, sTA, sTB, sF, sWB = 80, 81, 82, 83, 84, 85, 86, 87
sMA, sMBK = 88, 90
sLO, sHI, sLBASE = 92, 93, 94
sBO = 56
vLANE = 1
vT0, vT1, vT2, vT3, vT4, vT5 = 2, 3, 4, 5, 6, 7
vL = 8
vKOFF, vVOFF = 10, 14
vCA, vCNT, vFA, vR = 18, 19, 20, 21
vF = 22
vCUR = 24
vTR = 28
vTRK, vTRV = 36, 52
vEN = 44
vDP, vDA, vOOB, vSA = 46, 47, 48, 49
vKA0, vVA0, vXA = 8, 12, 16
vPA0, vPW, vINV, vOA = 20, 21, 22, 23
vM, vLS, vMN, vAL, vPA, vFW = 24, 25, 26, 27, 28, 29
vPL = 30
vQ = 32
vS = 48
vP = 56
vG, vPF, vFV, vN = 60, 61, 62, 63
vKF = 64
vVF = 96
vO = 128
vE = 160
vPN = 160
NV = 168

def stamp(i):
    if a.dwait and i == 0: e(f"s_memrealtime s[{sST}:{sST+1}]")
    if a.amp and (i == 0 or (i == 1 and a.amp == "t0")): e(f"s_memrealtime s[{sST+2*i}:{sST+2*i+1}]")
    if a.hold and i == 0: e(f"{'s_memrealtime' if a.hold[:2] == 'rt' else 's_memtime'} s[{sST}:{sST+1}]")
    if a.stamps: e(f"s_memrealtime s[{sST+2*i}:{sST+2*i+1}]")
def clamp_cl(zq=None):
    c("context length: <=0 -> every key masked => uniform weights over 2048 keys (zero Q); >2048 -> 2048")
    e(f"s_cmp_lt_i32 s{sCLV}, 1")
    if zq is not None: e(f"s_cselect_b32 s{zq}, 1, 0")
    e(f"s_cselect_b32 s{sCLV}, 2048, s{sCLV}")
    e(f"s_min_i32 s{sCLV}, s{sCLV}, 2048")
def derive_nb():
    e(f"s_add_u32 s{sNTL}, s{sNB}, 1")
    e(f"s_lshr_b32 s{sNTL}, s{sNTL}, 1")
    e(f"s_sub_u32 s{sNU}, s{sNTL}, 1")
    e(f"s_min_u32 s{sNU}, s{sNU}, {NUM}")
def derive_cl():
    e(f"s_add_u32 s{sNB}, s{sCLV}, 15")
    e(f"s_lshr_b32 s{sNB}, s{sNB}, 4")
    derive_nb()
def spin_tail(label, sleep=1):
    e(f"s_sleep {sleep}")
    e(f"s_sub_u32 s{sSPIN}, s{sSPIN}, 1")
    e(f"s_cbranch_scc0 {label}")
    e("s_endpgm")
FIN = "s_branch L_fin" if (a.stamps or a.amp) else "s_endpgm"

out.append(HEADER.rstrip())
out.append(f"; @launch grid=(256,1,1) block=({64*NW},1,1) lds={LDS}")
for line in """
Paged GQA attention, one workgroup per (batch b, kv head h); HBM-bound, so everything serves the K/V stream.
  wave 0     loader: LDS-DMA of 8 KB units (32 keys of K or V) into a ring, a counted number of requests in flight.
             Pass 1 streams every K tile, pass 2 every V tile, both in ascending physical-block order.
  waves 1,2  own task, 16 query rows each: pass 1 scores + softmax weights (kept in LDS), pass 2 weighted values.
  waves 3,4  rank the batches by length, pair long with short, sort the block ids. In a short workgroup they then
             process tiles donated by the long partner and hand the partial result over; in a long one wave 3 fetches it.
  wave 5     compares progress with the workgroups sharing its L2 and nudges the loader's request depth.
Hand-offs work under any placement: inside L2 only after a run-time check that both sides share a die.
""".strip("\n").split("\n"): out.append("; " + line)
out.append('.amdgcn_target "amdgcn-amd-amdhsa--gfx950"')
out.append(".text")
out.append(f".globl {NAME}_kernel")
out.append(".p2align 8")
out.append(f".type {NAME}_kernel,@function")
lab(f"{NAME}_kernel")
e("s_load_dwordx16 s[4:19], s[0:1], 0")
e(f"s_lshr_b32 s{sB}, s2, 3")
e(f"s_cmp_ge_u32 s{sB}, 32")
e("s_cbranch_scc1 L_end")
stamp(0)
e(f"v_lshrrev_b32 v{vT0}, 6, v0")
e(f"v_and_b32 v{vLANE}, 63, v0")
e(f"v_readfirstlane_b32 s{sW}, v{vT0}")
c("wave 1 pulls this kernel's code into L2")
e(f"s_getpc_b64 s[{sPC}:{sPC+1}]")
lab("L_pc")
e(f"v_lshlrev_b32 v{vT2}, 7, v{vLANE}")
e(f"v_min_u32 v{vT2}, L_end - L_pc - 256, v{vT2}")
if a.pfm:
    e(f"s_and_b32 s{sT0}, s2, {a.pfm << 3}")
    e(f"s_add_u32 s{sT0}, s{sT0}, s{sW}")
    e(f"s_cmp_lg_u32 s{sT0}, 1")
else:
    e(f"s_cmp_lg_u32 s{sW}, 1")
e("s_cbranch_scc1 L_nopf")
e(f"global_load_dword v{vPF}, v{vT2}, s[{sPC}:{sPC+1}] offset:256")
if a.wake:
    e(f"s_mul_i32 s{sT3}, s2, {a.wake}")
    e(f"v_and_b32 v{vT2}, {a.wake - 256}, v{vT2}")
    e(f"v_add_u32 v{vT2}, s{sT3}, v{vT2}")
    e(f"v_add_u32 v{vT2}, L_pad - L_pc, v{vT2}")
    e(f"global_load_dword v{vFV}, v{vT2}, s[{sPC}:{sPC+1}] nt")
lab("L_nopf")
c("clear the control words and the sort counters")
e(f"v_mov_b64 v[{vT2}:{vT3}], 0")
e(f"v_lshlrev_b32 v{vT4}, 3, v0")
e(f"v_add_u32 v{vT4}, {CTRL}, v{vT4}")
e(f"ds_write_b64 v{vT4}, v[{vT2}:{vT3}]")
if a.map == "rot":
    e(f"s_add_u32 s{sH}, s2, s{sB}")
    e(f"s_and_b32 s{sH}, s{sH}, 7")
elif a.hmap:
    e(f"s_lshl_b32 s{sH}, s2, 2")
    e(f"s_lshr_b32 s{sH}, {a.hmap}, s{sH}")
    e(f"s_and_b32 s{sH}, s{sH}, 7")
elif a.hrot:
    e(f"s_add_u32 s{sH}, s2, {a.hrot}")
    e(f"s_and_b32 s{sH}, s{sH}, 7")
else:
    e(f"s_and_b32 s{sH}, s2, 7")
e(f"s_lshl3_add_u32 s{sT2}, s{sB}, s{sH}")
e(f"s_lshl_b32 s{sT2}, s{sT2}, 13")
e(f"v_lshl_add_u32 v{vT5}, v{vLANE}, 7, s{sT2}")
e(f"s_lshl_b32 s{sT0}, s{sB}, 9")
e(f"v_lshl_add_u32 v{vT2}, v{vLANE}, 3, s{sT0}")
if not a.spec: e(f"s_lshl_b32 s{sT1}, s{sB}, 2")
e(f"v_and_b32 v{vT0}, 31, v{vLANE}")
e(f"v_lshlrev_b32 v{vT3}, 2, v{vT0}")
vTL = 22
if a.kpf:
    e(f"v_lshrrev_b32 v{vTL}, 1, v{vLANE if a.kpf == 2 else vT0}")
    e(f"v_and_b32 v{vTL+1}, 1, v{vLANE}")
    e(f"s_lshl_b32 s{sT3}, s{sB}, {14 + a.kpf}")
    e(f"v_lshl_add_u32 v{vTL}, v{vTL}, 4, v{vTL+1}")
    e(f"s_lshl_b32 s{sT1}, s{sH}, 8")
    e(f"s_add_u32 s{sT3}, s{sT3}, s{sT1}")
    e(f"v_lshl_add_u32 v{vTL}, v{vTL}, 7, s{sT3}")
if a.tlb:
    e(f"v_min_u32 v{vTL}, {(2 << (21 - a.tlbs)) - 1}, v{vLANE}")
    e(f"v_lshl_add_u32 v{vTL}, v{vTL}, 5, s{sB}")
    e(f"s_mul_i32 s{sT3}, s2, {8064 >> (21 - a.tlbs) & ~127}")
    e(f"v_lshl_add_u32 v{vTL}, v{vTL}, {a.tlbs}, s{sT3}")
e(f"s_cmp_lg_u32 s{sW}, 2")
e("s_waitcnt lgkmcnt(0)")
e(f"s_load_dwordx8 s[{sE}:{sE+7}], s[{sBT}:{sBT+1}], s{sT0}")
if not a.spec: e(f"s_load_dword s{sCLV}, s[{sCL}:{sCL+1}], s{sT1}")
c("wave 2 touches the 64 lines of this workgroup's queries while memory is still idle")
e("s_cbranch_scc1 L_noq")
if "k" in a.tlb: e(f"global_load_dword v{vFV}, v{vTL}, s[{sK}:{sK+1}] nt")
e(f"global_load_dword v{vPF}, v{vT5}, s[{sQ}:{sQ+1}]")
if a.kpf: e(f"global_load_dword v{vFV}, v{vTL}, s[{sK}:{sK+1}]")
lab("L_noq")
if a.opf:
    e(f"s_cmp_lg_u32 s{sW}, 4")
    e("s_cbranch_scc1 L_noo")
    e(f"global_load_dword v{vPF}, v{vT5}, s[{sOUT}:{sOUT+1}]")
    lab("L_noo")
e(f"global_load_dwordx2 v[{vL}:{vL+1}], v{vT2}, s[{sBT}:{sBT+1}]")
e(f"global_load_dword v{vN}, v{vT3}, s[{sCL}:{sCL+1}]")
lab("L_loads_issued")
if a.amp == "t0k": e(f"s_memrealtime s[{sST+2}:{sST+3}]")
e(f"s_cmp_lg_u32 s{sW}, 0")
e(f"s_mov_b32 s{sSPIN}, {SPIN}")
e("s_cbranch_scc1 L_notloader")

e("s_setprio 3")
c("per-lane source offsets of the LDS-DMA pieces (bank swizzle applied on the source side)")
e(f"v_lshrrev_b32 v{vR}, 4, v{vLANE}")
e(f"v_and_b32 v{vT1}, 15, v{vLANE}")
e(f"s_lshl_b32 s{sT0}, s{sH}, 8")
e(f"v_lshl_add_u32 v{vT4}, v{vR}, 11, s{sT0}")
e(f"v_xor_b32 v{vT2}, v{vR}, v{vT1}")
e(f"v_lshl_add_u32 v{vKOFF}, v{vT2}, 4, v{vT4}")
for j in range(1, 4):
    e(f"v_xor_b32 v{vT3}, {64*j}, v{vKOFF}")
    e(f"v_add_u32 v{vKOFF+j}, {7168*j}, v{vT3}")
e(f"s_mov_b32 s{sRD}, s{sK}")
e(f"s_and_b32 s{sRD+1}, s{sK+1}, 0xffff")
e(f"s_mov_b32 s{sRD+2}, {KBYTES}")
e(f"s_mov_b32 s{sRD+3}, 0x20000")
if a.amp == "t0c": e(f"s_memrealtime s[{sST+2}:{sST+3}]")
if a.bar < 0: e("s_barrier")
e("s_waitcnt lgkmcnt(0)")
if not a.spec: clamp_cl()
c("the first stream tiles are the leading logical tiles; requested before the context length is known")
NE = a.NE
for t in range(NE):
    if not a.spec:
        e(f"s_cmp_le_u32 s{sCLV}, {32*(t+1)}")
        e(f"s_cbranch_scc1 {'L_ld_b' if t < 2 else 'L_ld_pre'}")
    if t == 0: stamp(1)
    for j in range(8):
        i = 8 * t + j
        if j % 4 == 0:
            e(f"s_movk_i32 m0, {1024*i}")
            e(f"s_lshl_b32 s{sB0}, s{sE+i//4}, 15")
        if i >= D0: e(f"s_waitcnt vmcnt({D0-1})")
        e(f"buffer_load_dwordx4 v{vKOFF+j%4}, s[{sRD}:{sRD+3}], s{sB0} offen offset:{1024*(j%4)}{NT} lds")
    if t == a.bar:
        lab("L_ld_b")
        e("s_barrier")
lab("L_ld_pre")
j0 = (D - 1) % 8
e(f"v_lshlrev_b32 v{vT3}, 2, v{vR}")
e(f"v_xor_b32 v{vT3}, v{vT3}, v{vT1}")
e(f"v_lshl_add_u32 v{vVOFF}, v{vT3}, 4, v{vT4}")
for j in range(1, 4):
    e(f"v_add_u32 v{vVOFF+j}, {7168*j}, v{vVOFF}")
e(f"v_lshlrev_b32 v{vCA}, 3, v{vLANE}")
e(f"v_add_u32 v{vT0}, {SL}, v{vCA}")
e(f"v_add_u32 v{vCA}, {CTRL}, v{vCA}")
e(f"v_mov_b32 v{vFA}, {FREE}")
e(f"v_mov_b64 v[{vF}:{vF+1}], 0")
e(f"v_mov_b32 v{vDP}, {2 if NE == 3 else 0}")
e(f"v_mov_b32 v{vDA}, {DEPW}")
e(f"v_bfrev_b32 v{vOOB}, 1")
def set_pass(off):
    for j in range(0, 4, 2): e(f"v_mov_b64 v[{vCUR+j}:{vCUR+j+1}], v[{off+j}:{off+j+1}]")
set_pass(vKOFF)
if "prog3" in DBG: e("v_mov_b32 v50, 0")
e(f"s_mov_b32 s{sPM}, 4")
if TR:
    e(f"s_mov_b32 s{sTRM}, 16")
    e(f"s_mov_b32 s{sTRC}, 2")
    e(f"v_cmp_gt_u32 vcc, {TR[1]}, v{vLANE}")
    e("s_nop 1")
    e(f"v_cndmask_b32 v{vT2}, 1, 33, vcc")
e(f"s_mov_b32 s{sTA0}, 0")
if a.spec:
    e(f"s_waitcnt vmcnt({8*NE})")
    e(f"v_readlane_b32 s{sCLV}, v{vN}, s{sB}")
    clamp_cl()
derive_cl()
c("the leading tiles enter the stream list straight from the table row")
e(f"s_min_u32 s{sT}, s{sNU}, {NE}")
e(f"s_lshl3_add_u32 s{sT0}, s{sT}, {SL}")
e(f"v_mov_b32 v{vSA}, s{sT0}")
e(f"s_sub_u32 s{sT0}, s{sT}, 3")
e(f"v_mov_b32 v{vCNT}, s{sT0}")
e(f"s_bfm_b64 s[{sT2}:{sT2+1}], s{sNU}, 0")
e(f"s_cmp_ge_u32 s{sNU}, {NE}")
e("s_cbranch_scc1 L_ld_row")
e("s_waitcnt vmcnt(0)")
lab("L_ld_row")
if not (a.spec and NE == 3): e("s_waitcnt vmcnt(24)")
if NE == 4: e(f"ds_write_b32 v{vCA}, v{vCNT}")
e(f"v_lshl_or_b32 v{vEN}, v{vL}, 15, {'v%d' % vT2 if TR else 1}")
e(f"v_lshlrev_b32 v{vEN+1}, 15, v{vL+1}")
e(f"s_mov_b64 exec, s[{sT2}:{sT2+1}]")
e(f"ds_write_b64 v{vT0}, v[{vEN}:{vEN+1}]")
e("s_mov_b64 exec, -1")
e(f"ds_read_b64 v[{vEN}:{vEN+1}], v{vSA}")
e(f"s_lshl_b32 s{sSLOT}, s{sT}, 13")
e(f"s_mov_b32 s{sU}, s{sT}")
c("lanes of the last logical tile whose rows lie inside the context")
e(f"s_lshl_b32 s{sT0}, s{sNTL}, 5")
e(f"s_sub_u32 s{sT0}, s{sCLV}, s{sT0}")
e(f"s_add_u32 s{sT0}, s{sT0}, 32")
e(f"v_sub_u32 v{vT1}, s{sT0}, v{vR}")
for k in range(8):
    e(f"v_cmp_lt_i32 s[{80+2*k}:{81+2*k}], {4*k}, v{vT1}")
if a.amp == "t0r": e(f"s_memrealtime s[{sST+2}:{sST+3}]")
if a.amp[:3] == "t0l":
    e(f"s_waitcnt vmcnt({int(a.amp[3:])})")
    e(f"s_memrealtime s[{sST+2}:{sST+3}]")
stamp(2)
def unit_body(depth, trimmed=False):
    for j in range(8):
        if j % 4 == 0: e(f"s_add_u32 m0, s{sSLOT}, {1024*j}")
        e(f"s_waitcnt vmcnt({depth-1})")
        e(f"buffer_load_dwordx4 v{vTR+j if trimmed else vCUR+j%4}, s[{sRD}:{sRD+3}], s{sB0 + j//4} offen offset:{1024*(j%4)}{NT} lds")
        if j == (depth - 1) % 8:
            e(f"v_add_u32 v{vCNT}, 1, v{vCNT}")
            e(f"ds_write_b32 v{vCA}, v{vCNT}")
        if j == 0:
            e(f"s_add_u32 s{sT2}, s{sSLOT}, 8192")
            e(f"s_cmp_eq_u32 s{sT2}, {RING}")
            e(f"s_cselect_b32 s{sT2}, 0, s{sT2}")
            e(f"s_lshr_b32 s{sT0}, s{sT2}, 10")
            e(f"s_add_u32 s{sT0}, s{sT0}, {FREE}")
            e(f"v_mov_b32 v{vFA}, s{sT0}")
        if j == 1:
            e(f"s_add_u32 s{sT}, s{sT}, 1")
            e(f"s_and_b32 s{sT0}, s{sFL}, s{sPM}")
            e(f"s_cselect_b32 s{sT}, s{sTA0}, s{sT}")
            e(f"s_lshl3_add_u32 s{sT0}, s{sT}, {SL}")
            e(f"v_mov_b32 v{vSA}, s{sT0}")
            e(f"s_add_u32 s{sU}, s{sU}, 1")
        if j == a.fpf:
            c("prefetch the next list entry, the FREE words of the next slot and the depth code")
            e(f"ds_read_b64 v[{vEN}:{vEN+1}], v{vSA}")
            e(f"ds_read_b64 v[{vF}:{vF+1}], v{vFA}")
            e(f"ds_read_b32 v{vDP}, v{vDA}")
            e(f"s_mov_b32 s{sSLOT}, s{sT2}")
out.append(".p2align 3")
lab("L_ld")
if "prog3" in DBG:
    e(f"s_memrealtime s[{sST+4}:{sST+5}]")
    e(f"s_min_u32 m0, s{sU}, 63")
e("s_waitcnt lgkmcnt(0)")
if "prog3" in DBG: e(f"v_writelane_b32 v50, s{sST+4}, m0")
e(f"v_min_i32 v{vT0}, v{vF}, v{vF+1}")
e(f"v_readfirstlane_b32 s{sFL}, v{vEN}")
e(f"v_readfirstlane_b32 s{sB1}, v{vEN+1}")
e(f"v_readfirstlane_b32 s{sT0}, v{vT0}")
e(f"v_readfirstlane_b32 s{sT3}, v{vDP}")
e(f"s_sub_u32 s{sT1}, s{sU}, {NS-1}")
e(f"s_cmp_ge_i32 s{sT0}, s{sT1}")
e(f"s_cselect_b32 s{sT0}, s{sFL}, 0")
e(f"s_and_b32 s{sB0}, s{sFL}, {'0xffffffc0' if TR else '-16'}")
e(f"s_and_b32 s{sT0}, s{sT0}, 3")
e(f"s_cmp_lg_u32 s{sT0}, 1")
e("s_cbranch_scc1 L_ld_odd")
if TR:
    e(f"s_and_b32 s{sT0}, s{sFL}, s{sTRM}")
    e(f"s_cselect_b32 s{sT3}, s{sTRC}, s{sT3}")
e(f"s_cmp_lg_u32 s{sT3}, 0")
e("s_cbranch_scc1 L_ld_var")
unit_body(D)
lab("L_ld_next")
e(f"s_bitcmp1_b32 s{sFL}, 2")
e("s_cbranch_scc0 L_ld")
c("last tile of the batch: change pass")
if TR:
    e(f"s_xor_b32 s{sTRM}, s{sTRM}, 48")
    e(f"s_xor_b32 s{sTRC}, s{sTRC}, 1")
e(f"s_xor_b32 s{sPM}, s{sPM}, 4")
e("s_cbranch_scc1 L_ld_tok")
e(f"s_mov_b32 s{sRD}, s{sV}")
e(f"s_and_b32 s{sRD+1}, s{sV+1}, 0xffff")
set_pass(vVOFF)
e("s_branch L_ld")
lab("L_ld_tok")
e(f"s_bitcmp1_b32 s{sFL}, 3")
e("s_cbranch_scc0 L_ld_more")
for r in (16, 8, 0):
    e(f"v_add_u32 v{vCNT}, 1, v{vCNT}")
    e(f"s_waitcnt vmcnt({r})")
    e(f"ds_write_b32 v{vCA}, v{vCNT}")
if a.hold:
    lab("L_hold")
    e(f"{'s_memrealtime' if a.hold[:2] == 'rt' else 's_memtime'} s[{sST+2}:{sST+3}]")
    e("s_waitcnt lgkmcnt(0)")
    e(f"s_sub_u32 s{sT0}, s{sST+2}, s{sST}")
    e(f"s_cmp_lt_u32 s{sT0}, {a.hold[3:]}")
    e("s_cbranch_scc1 L_hold")
e(FIN)
lab("L_ld_more")
e(f"s_mov_b32 s{sTA0}, s{sT}")
e(f"s_mov_b32 s{sRD}, s{sK}")
e(f"s_and_b32 s{sRD+1}, s{sK+1}, 0xffff")
set_pass(vKOFF)
e("s_branch L_ld")
lab("L_ld_odd")
e(f"s_cmp_eq_u32 s{sT0}, 3")
e("s_cbranch_scc1 L_ld_m")
c("slot not free yet or entry not written yet")
e(f"ds_read_b64 v[{vEN}:{vEN+1}], v{vSA}")
e(f"ds_read_b64 v[{vF}:{vF+1}], v{vFA}")
e(f"s_sub_u32 s{sSPIN}, s{sSPIN}, 1")
e("s_cbranch_scc0 L_ld")
e("s_endpgm")
lab("L_ld_m")
c("the last logical tile: rows past the context are not fetched (their lanes read zeros)")
for k in range(8):
    e(f"v_cndmask_b32 v{vTR+k}, v{vOOB}, v{vCUR+k%4}, s[{80+2*k}:{81+2*k}]")
unit_body(D + a.DM, True)
e("s_branch L_ld_next")
lab("L_ld_var")
e(f"s_cmp_eq_u32 s{sT3}, 1")
e("s_cbranch_scc1 L_ld_v2")
e(f"s_cmp_eq_u32 s{sT3}, 2")
e("s_cbranch_scc1 L_ld_v3")
if TR:
    e(f"s_cmp_eq_u32 s{sT3}, 3")
    e("s_cbranch_scc1 L_ld_v4")
unit_body(D + DV[0])
e("s_branch L_ld_next")
lab("L_ld_v2")
unit_body(D + DV[1])
e("s_branch L_ld_next")
lab("L_ld_v3")
unit_body(D + DV[2])
e("s_branch L_ld_next")
if TR:
    lab("L_ld_v4")
    unit_body(D + TR[2])
    e("s_branch L_ld_next")

lab("L_notloader")
e(f"s_cmp_ge_u32 s{sW}, 3")
e("s_cbranch_scc1 L_planner")
e(f"s_sub_u32 s{sCI}, s{sW}, 1")
def rows_off(sb):
    e(f"s_lshl3_add_u32 s{sQO}, s{sb}, s{sH}")
    e(f"s_lshl1_add_u32 s{sQO}, s{sQO}, s{sCI}")
    e(f"s_lshl_b32 s{sQO}, s{sQO}, 12")
    e(f"v_and_b32 v{vT0}, 15, v{vLANE}")
    e(f"v_lshrrev_b32 v{vG}, 4, v{vLANE}")
def load_q(sb):
    rows_off(sb)
    e(f"v_lshl_add_u32 v{vT4}, v{vT0}, 8, s{sQO}")
    e(f"v_lshl_add_u32 v{vT4}, v{vG}, 4, v{vT4}")
    for s in range(4):
        e(f"global_load_dwordx4 v[{vQ+4*s}:{vQ+4*s+3}], v{vT4}, s[{sQ}:{sQ+1}] offset:{64*s}")
load_q(sB)
e("s_barrier")
e(f"s_mov_b32 s{sROLE}, 0")
e(f"s_mov_b32 s{sPLN}, 0")
e(f"s_mov_b32 s{sMRG}, 0")
if a.spec:
    e("s_waitcnt vmcnt(4) lgkmcnt(0)")
    e(f"v_readlane_b32 s{sCLV}, v{vN}, s{sB}")
else: e("s_waitcnt lgkmcnt(0)")
clamp_cl(zq=sT3)
derive_cl()
c("valid keys of the last logical tile")
e(f"s_lshl_b32 s{sV0}, s{sNTL}, 5")
e(f"s_sub_u32 s{sV0}, s{sCLV}, s{sV0}")
e(f"s_add_u32 s{sV0}, s{sV0}, 32")
e(f"s_bfm_b64 s[{sM}:{sM+1}], s{sNU}, 0")
lab("L_csetup")
e(f"s_mov_b32 s{sMT}, 0")
e(f"s_mov_b32 s{sOFF}, 0")
e(f"s_mov_b32 s{sTB0}, 0")
e(f"s_mov_b32 s{sFIRST}, 1")
e(f"s_mov_b64 s[{sRS}:{sRS+1}], 0")
e("s_waitcnt vmcnt(4)")
e(f"v_and_b32 v{vT0}, 15, v{vLANE}")
e(f"v_xor_b32 v{vT1}, v{vG}, v{vT0}")
e(f"v_lshlrev_b32 v{vT2}, 8, v{vT0}")
e(f"v_lshl_add_u32 v{vKA0}, v{vT1}, 4, v{vT2}")
for s in range(1, 4):
    e(f"v_xor_b32 v{vKA0+s}, {64*s}, v{vKA0}")
e(f"v_bfe_u32 v{vT0}, v{vLANE}, 2, 2")
e(f"v_lshl_add_u32 v{vT1}, v{vG}, 2, v{vT0}")
e(f"v_lshlrev_b32 v{vT1}, 8, v{vT1}")
e(f"v_and_b32 v{vT2}, 3, v{vLANE}")
e(f"v_lshl_add_u32 v{vT1}, v{vT2}, 4, v{vT1}")
e(f"v_lshl_add_u32 v{vVA0}, v{vT0}, 6, v{vT1}")
for j in range(1, 4):
    e(f"v_xor_b32 v{vVA0+j}, {64*j}, v{vVA0}")
e(f"s_lshl_b32 s{sT0}, s{sCI}, 10")
e(f"s_add_u32 s{sT0}, s{sT0}, {PST}")
e(f"v_lshl_add_u32 v{vPA0}, v{vLANE}, 4, s{sT0}")
e(f"v_mov_b32 v{vOA}, v{vT4}")
e(f"s_lshl_b32 s{sT0}, s{sW}, 3")
e(f"s_add_u32 s{sT0}, s{sT0}, {CTRL-8}")
e(f"v_mov_b32 v{vPA}, s{sT0}")
e(f"v_mov_b32 v{vM}, 0xff800000")
e(f"v_mov_b32 v{vLS}, 0")
for r in range(0, 32, 2): e(f"v_mov_b64 v[{vO+r}:{vO+r+1}], 0")
e(f"s_mov_b32 s{sCST}, 0x3e0293ee")
e(f"s_mov_b32 s{sCST+1}, 0x3e0293ee")
e(f"s_mov_b32 s{sLIMF}, {a.limf}")
e(f"s_lshl2_add_u32 s{sFB}, s{sCI}, {FREE}")
e("s_waitcnt vmcnt(0)")
e(f"s_cmp_eq_u32 s{sT3}, 0")
e("s_cbranch_scc1 L_k_first")
for r in range(0, 16, 2): e(f"v_mov_b64 v[{vQ+r}:{vQ+r+1}], 0")

def poll(label):
    lab(label)
    e(f"ds_read_b64 v[{vPL}:{vPL+1}], v{vPA}")
    e(f"s_sub_u32 s{sSPIN}, s{sSPIN}, 1")
    e("s_cbranch_scc1 L_end")
    e("s_waitcnt lgkmcnt(0)")
    e(f"v_readfirstlane_b32 s{sLND}, v{vPL}")
    e(f"s_cmp_ge_i32 s{sLND}, s{sNK}")
    e(f"s_cbranch_scc0 {label}")
VR = []
for j in range(4):
    for ee in range(2):
        for blk in range(2):
            r = vVF + (2 * j + ee) * 4 + 2 * blk
            VR.append(f"ds_read_b64_tr_b16 v[{r}:{r+1}], v{vXA+j} offset:{8*ee + 4096*blk}")
KR, QK = [], []
for blk in range(2):
    for st in range(4):
        r = vKF + (blk * 4 + st) * 4
        KR.append(f"ds_read_b128 v[{r}:{r+3}], v{vXA+st} offset:{4096*blk}")
        cc = "0" if st == 0 else f"v[{vS+4*blk}:{vS+4*blk+3}]"
        QK.append(f"v_mfma_f32_16x16x32_bf16 v[{vS+4*blk}:{vS+4*blk+3}], v[{r}:{r+3}], v[{vQ+4*st}:{vQ+4*st+3}], {cc}")
PV = [f"v_mfma_f32_16x16x32_bf16 v[{vO+4*dt}:{vO+4*dt+3}], v[{vVF+4*dt}:{vVF+4*dt+3}], v[{vP}:{vP+3}], v[{vO+4*dt}:{vO+4*dt+3}]" for dt in range(8)]
NX = [f"s_ff1_i32_b64 s{sTN}, s[{sM}:{sM+1}]",
      f"s_bitset0_b64 s[{sM}:{sM+1}], s{sTN}",
      f"s_add_u32 s{sT1}, s{sTN}, s{sOFF}",
      f"s_mul_i32 s{sT0}, s{sT1}, {DIVM[0]}",
      f"s_lshr_b32 s{sT0}, s{sT0}, {DIVM[1]}",
      f"s_mul_i32 s{sT0}, s{sT0}, {NS}",
      f"s_sub_u32 s{sT0}, s{sT1}, s{sT0}",
      f"s_lshl_b32 s{sSB}, s{sT0}, 13",
      f"s_lshl3_add_u32 s{sFWN}, s{sT0}, s{sFB}",
      f"s_and_b32 s{sT0}, s{sTN}, 0x40000000",
      f"s_add_u32 s{sNK}, s{sT1}, 1",
      f"s_or_b32 s{sNK}, s{sNK}, s{sT0}",
      f"s_sub_u32 s{sPO}, s{sTN}, s{sTB0}",
      f"s_lshl_b32 s{sPO}, s{sPO}, 11"]
KA = [f"v_add_u32 v{vXA+i}, s{sSB}, v{vKA0+i}" for i in range(4)]
VA = [f"v_add_u32 v{vXA+i}, s{sSB}, v{vVA0+i}" for i in range(4)]
ADV = [f"v_mov_b32 v{vFW}, s{sFWN}",
       f"v_mov_b32 v{vFV}, s{sNK}",
       f"v_add_u32 v{vPW}, s{sPO}, v{vPA0}",
       f"s_add_u32 s{sT}, s{sTN}, 1"]
def scale_o(reg):
    for r in range(0, 32, 2):
        sel = "op_sel:[0,1] op_sel_hi:[1,1]" if reg & 1 else "op_sel_hi:[1,0]"
        p = reg & ~1
        e(f"v_pk_mul_f32 v[{vO+r}:{vO+r+1}], v[{vO+r}:{vO+r+1}], v[{p}:{p+1}] {sel}")

def inv_pre():
    e(f"v_mov_b32 v{vT0}, v{vLS}")
    e(f"v_mov_b32 v{vT1}, v{vLS}")
    e("s_nop 1")
    e(f"v_permlane32_swap_b32 v{vT0}, v{vT1}")
    e("s_nop 0")
    e(f"v_add_f32 v{vT0}, v{vT0}, v{vT1}")
    e(f"v_mov_b32 v{vT1}, v{vT0}")
    e("s_nop 1")
    e(f"v_permlane16_swap_b32 v{vT0}, v{vT1}")
    e("s_nop 0")
    e(f"v_add_f32 v{vT0}, v{vT0}, v{vT1}")
    e(f"v_rcp_f32 v{vINV}, v{vT0}")

lab("L_k_first")
for x in NX + KA + ADV: e(x)
lab("L_k_next")
e(f"s_cmp_lt_i32 s{sTN}, 0")
e("s_cbranch_scc1 L_k_empty")
poll("L_k_poll")
for x in KR: e(x)
e("s_waitcnt lgkmcnt(0)")
out.append(".p2align 3")
lab("L_k_top")
e("s_waitcnt lgkmcnt(1)")
e(f"ds_write_b32 v{vFW}, v{vFV}")
e(f"ds_read_b64 v[{vPL}:{vPL+1}], v{vPA}")
fill = NX + KA
for i in range(8):
    e(QK[i])
    for x in fill[2*i:2*i+2]: e(x)
for x in fill[16:]: e(x)
e(f"s_mov_b32 s{sREDO}, 0")
e("s_waitcnt lgkmcnt(0)")
e(f"v_readfirstlane_b32 s{sLND}, v{vPL}")
e(f"s_cmp_ge_i32 s{sLND}, s{sNK}")
e(f"s_cselect_b32 s{sPRE}, 1, 0")
e("s_cbranch_scc0 L_k_nopre")
for x in KR: e(x)
lab("L_k_nopre")
e(f"s_cmp_eq_u32 s{sT}, s{sMT}")
e("s_cbranch_scc1 L_k_mask")
lab("L_k_exp")
for hb in range(2):
    for r in (4*hb, 4*hb+2):
        e(f"v_pk_fma_f32 v[{vE+r}:{vE+r+1}], v[{vS+r}:{vS+r+1}], s[{sCST}:{sCST+1}], v[{vM}:{vM+1}] op_sel_hi:[1,1,0] neg_lo:[0,0,1] neg_hi:[0,0,1]")
    for r in range(4*hb, 4*hb+4):
        e(f"v_exp_f32 v{vE+r}, v{vE+r}")
e(f"v_pk_add_f32 v[{vT0}:{vT1}], v[{vE}:{vE+1}], v[{vE+2}:{vE+3}]")
e(f"v_pk_add_f32 v[{vT2}:{vT3}], v[{vE+4}:{vE+5}], v[{vE+6}:{vE+7}]")
e(f"v_cvt_pk_bf16_f32 v{vP}, v{vE}, v{vE+1}")
e(f"v_pk_add_f32 v[{vT0}:{vT1}], v[{vT0}:{vT1}], v[{vT2}:{vT3}]")
e(f"v_cvt_pk_bf16_f32 v{vP+1}, v{vE+2}, v{vE+3}")
e(f"v_add_f32 v{vT0}, v{vT0}, v{vT1}")
c("the kept reference max is safe only while every weight stays <= 256; otherwise take the true max")
e(f"v_cmp_nge_f32 vcc, s{sLIMF}, v{vT0}")
e(f"v_cvt_pk_bf16_f32 v{vP+2}, v{vE+4}, v{vE+5}")
e(f"v_cvt_pk_bf16_f32 v{vP+3}, v{vE+6}, v{vE+7}")
e(ADV[0]); e(ADV[1])
e("s_nop 0")
e("s_cbranch_vccnz L_k_slow")
lab("L_k_done")
e(f"ds_write_b128 v{vPW}, v[{vP}:{vP+3}]")
e(f"v_add_f32 v{vLS}, v{vLS}, v{vT0}")
e(ADV[3])
e(f"s_cmp_lg_u32 s{sPRE}, 0")
e(ADV[2])
e("s_cbranch_scc1 L_k_top")
e("s_branch L_k_next")

lab("L_k_mask")
e(f"v_lshlrev_b32 v{vT0}, 2, v{vG}")
e(f"v_sub_u32 v{vT0}, s{sV0}, v{vT0}")
e(f"v_mov_b32 v{vT1}, 0xff800000")
for r in range(8):
    e(f"v_cmp_lt_i32 s[{80+2*r}:{81+2*r}], {16*(r//4)+r%4}, v{vT0}")
for r in range(8):
    e(f"v_cndmask_b32 v{vS+r}, v{vT1}, v{vS+r}, s[{80+2*r}:{81+2*r}]")
e("s_branch L_k_exp")

def alpha_addr():
    e(f"s_lshl_b32 s{sT0}, s2, 6")
    e(f"s_add_u32 s{sT0}, s{sT0}, s{sT}")
    e(f"s_lshl1_add_u32 s{sT0}, s{sT0}, s{sCI}")
    e(f"s_lshl_b32 s{sT0}, s{sT0}, 6")
    e(f"s_add_u32 s{sT0}, s{sT0}, {WSA}")
    e(f"v_and_b32 v{vT1}, 15, v{vLANE}")
    e(f"v_lshl_add_u32 v{vT1}, v{vT1}, 2, s{sT0}")
c("raise the reference to the true running max; the accumulator is rescaled when pass 2 reaches this tile")
lab("L_k_slow")
e(f"s_cmp_lg_u32 s{sREDO}, 0")
e("s_cbranch_scc1 L_k_done")
e(f"s_mov_b32 s{sREDO}, 1")
e(f"v_max3_f32 v{vT0}, v{vS}, v{vS+1}, v{vS+2}")
e(f"v_max3_f32 v{vT1}, v{vS+3}, v{vS+4}, v{vS+5}")
e(f"v_max3_f32 v{vT0}, v{vT0}, v{vS+6}, v{vS+7}")
e(f"v_max_f32 v{vT0}, v{vT0}, v{vT1}")
e(f"v_mov_b32 v{vT1}, v{vT0}")
e("s_nop 1")
e(f"v_permlane32_swap_b32 v{vT0}, v{vT1}")
e("s_nop 0")
e(f"v_max_f32 v{vT0}, v{vT0}, v{vT1}")
e(f"v_mov_b32 v{vT1}, v{vT0}")
e("s_nop 1")
e(f"v_permlane16_swap_b32 v{vT0}, v{vT1}")
e("s_nop 0")
e(f"v_max_f32 v{vT0}, v{vT0}, v{vT1}")
e(f"v_mul_f32 v{vT0}, s{sCST}, v{vT0}")
e(f"v_max_f32 v{vMN}, v{vM}, v{vT0}")
e(f"v_sub_f32 v{vAL}, v{vM}, v{vMN}")
e(f"v_exp_f32 v{vAL}, v{vAL}")
e(f"v_mov_b32 v{vM}, v{vMN}")
e(f"s_cmp_lg_u32 s{sFIRST}, 0")
e(f"s_mov_b32 s{sFIRST}, 0")
e(f"v_mul_f32 v{vLS}, v{vLS}, v{vAL}")
e("s_cbranch_scc1 L_k_exp")
alpha_addr()
e(f"global_store_dword v{vT1}, v{vAL}, s[{sWS}:{sWS+1}]")
e(f"s_sub_u32 s{sT0}, s{sT}, 1")
e(f"s_bitset1_b64 s[{sRS}:{sRS+1}], s{sT0}")
e("s_branch L_k_exp")

RLO, RHI = 0xffffffff, (1 << (G - 32)) - 1
lab("L_k_noplan")
e(f"s_mov_b32 s{sPLN}, 1")
e(f"v_mov_b32 v{vT1}, {REC0}")
lab("L_k_plan")
e(f"ds_read_b128 v[{vT2}:{vT5}], v{vT1}")
e("s_waitcnt lgkmcnt(0)")
e(f"v_readfirstlane_b32 s{sT0}, v{vT5}")
e(f"v_readfirstlane_b32 s{sM}, v{vT2}")
e(f"v_readfirstlane_b32 s{sM+1}, v{vT3}")
e(f"v_readfirstlane_b32 s{sTTC}, v{vT4}")
e(f"s_cmp_lg_u32 s{sT0}, 0")
e("s_cbranch_scc1 L_k_got")
spin_tail("L_k_plan")
lab("L_k_got")
e(f"s_lshr_b32 s{sMT}, s{sT0}, 8")
e(f"s_add_u32 s{sMT}, s{sMT}, 1")
e(f"s_and_b32 s{sMRG}, s{sTTC}, {0 if 'nomerge' in DBG else 1}")
e(f"s_lshr_b32 s{sTTC}, s{sTTC}, 8")
e(f"s_min_u32 s{sTB1}, s{sTTC}, {G}")
e(f"s_bfm_b64 s[{sMALL}:{sMALL+1}], s{sNU}, 0")
e(f"s_or_b64 s[{sMALL}:{sMALL+1}], s[{sMALL}:{sMALL+1}], s[{sM}:{sM+1}]")
e(f"s_and_b32 s{sM+1}, s{sM+1}, {RHI:#x}")
e("s_branch L_k_first")
lab("L_v_more")
c("second batch")
e(f"s_mov_b32 s{sTB0}, s{sTB1}")
e(f"s_mov_b32 s{sTB1}, s{sTTC}")
e(f"s_mov_b32 s{sOFF}, s{sTB0}")
e(f"s_mov_b32 s{sMALL}, 0")
e(f"s_andn2_b32 s{sMALL+1}, s{sMALL+1}, {RHI:#x}")
e(f"s_mov_b64 s[{sM}:{sM+1}], s[{sMALL}:{sMALL+1}]")
e("s_branch L_k_first")
lab("L_k_empty")
e(f"s_cmp_eq_u32 s{sPLN}, 0")
e("s_cbranch_scc1 L_k_noplan")
if a.last: inv_pre()
e(f"s_mov_b32 s{sOFF}, s{sTB1}")
e(f"s_mov_b32 s{sM}, s{sMALL}")
e(f"s_and_b32 s{sM+1}, s{sMALL+1}, {RHI:#x}")
e(f"s_cmp_eq_u32 s{sTB0}, 0")
e(f"s_cselect_b32 s{sM+1}, s{sM+1}, s{sMALL+1}")
for x in NX + VA: e(x)
e(f"ds_read_b64 v[{vPL}:{vPL+1}], v{vPA}")
e(f"s_cmp_lt_i32 s{sTN}, 0")
e("s_cbranch_scc1 L_v_empty")
lab("L_v_next")
for x in ADV: e(x)
if a.last:
    e(f"s_cmp_eq_u64 s[{sM}:{sM+1}], 0")
    e("s_cbranch_scc1 L_v_islast")
lab("L_v_next2")
e(f"ds_read_b128 v[{vPN}:{vPN+3}], v{vPW}")
e("s_waitcnt lgkmcnt(1)")
e(f"v_readfirstlane_b32 s{sLND}, v{vPL}")
e(f"s_cmp_ge_i32 s{sLND}, s{sNK}")
e("s_cbranch_scc1 L_v_rd")
poll("L_v_poll")
lab("L_v_rd")
for x in VR: e(x)
if a.lat:
    e(f"v_readfirstlane_b32 s{sMBF}, v{vPL+1}")
    e(f"s_cmp_gt_i32 s{sLND}, s{sNK}")
    e(f"s_cselect_b32 s{sT0}, 1, s{sRS}")
    e(f"s_or_b32 s{sT0}, s{sT0}, s{sRS+1}")
    e(f"s_and_b32 s{sT1}, s{sMBF}, s{sMRG}")
    e(f"s_or_b32 s{sT0}, s{sT0}, s{sT1}")
    e("s_cbranch_scc0 L_v_lat")
out.append(".p2align 3")
lab("L_v_top")
for x in NX + VA: e(x)
e(f"s_sub_u32 s{sT0}, s{sT}, 1")
e(f"s_bitcmp1_b64 s[{sRS}:{sRS+1}], s{sT0}")
e("s_cbranch_scc1 L_v_resc")
lab("L_v_top2")
e("s_waitcnt lgkmcnt(14)")
e(f"v_readfirstlane_b32 s{sMBF}, v{vPL+1}")
e(f"v_readfirstlane_b32 s{sLND}, v{vPL}")
e(f"v_mov_b64 v[{vP}:{vP+1}], v[{vPN}:{vPN+1}]")
e(f"v_mov_b64 v[{vP+2}:{vP+3}], v[{vPN+2}:{vPN+3}]")
e(f"s_and_b32 s{sT0}, s{sMBF}, s{sMRG}")
e("s_cbranch_scc1 L_v_merge")
lab("L_v_top3")
e(f"s_cmp_ge_i32 s{sLND}, s{sNK}")
e("s_cbranch_scc0 L_v_pv")
e(ADV[2])
e("s_waitcnt lgkmcnt(0)")
e(f"ds_write_b32 v{vFW}, v{vFV}")
e(f"ds_read_b64 v[{vPL}:{vPL+1}], v{vPA}")
e(f"ds_read_b128 v[{vPN}:{vPN+3}], v{vPW}")
for i in range(8):
    e(PV[i]); e(VR[2*i]); e(VR[2*i+1])
e(ADV[0]); e(ADV[1]); e(ADV[3])
e("s_branch L_v_top")
if a.lat:
    c("nothing further has landed and nothing is pending: shortest way through this tile")
    lab("L_v_lat")
    e("s_waitcnt lgkmcnt(14)")
    e(f"v_mov_b64 v[{vP}:{vP+1}], v[{vPN}:{vPN+1}]")
    e(f"v_mov_b64 v[{vP+2}:{vP+3}], v[{vPN+2}:{vPN+3}]")
    fl = NX + VA
    e(fl[0]); e(fl[1])
    for i in range(8):
        if i: e(f"s_waitcnt lgkmcnt({14-2*i})")
        if i == 7:
            e(f"ds_write_b32 v{vFW}, v{vFV}")
            e(f"ds_read_b64 v[{vPL}:{vPL+1}], v{vPA}")
        e(PV[i])
        e(fl[2+2*i]); e(fl[3+2*i])
    e(f"s_cmp_ge_i32 s{sTN}, 0")
    e("s_cbranch_scc1 L_v_next")
    e("s_branch L_v_empty")
lab("L_v_pv")
if a.last:
    e(f"s_cmp_lt_i32 s{sTN}, 0")
    e("s_cbranch_scc1 L_v_islast2")
    lab("L_v_pv2")
for i in range(8):
    if i: e(f"s_waitcnt lgkmcnt({14-2*i})")
    if i == 7:
        e(f"ds_write_b32 v{vFW}, v{vFV}")
        e(f"ds_read_b64 v[{vPL}:{vPL+1}], v{vPA}")
    e(PV[i])
e(f"s_cmp_ge_i32 s{sTN}, 0")
e("s_cbranch_scc1 L_v_next")
lab("L_v_empty")
e(f"s_cmp_lt_u32 s{sTB1}, s{sTTC}")
e("s_cbranch_scc1 L_v_more")
stamp(2)
e(f"s_cmp_lg_u32 s{sMRG}, 0")
e("s_cbranch_scc1 L_c_mwait0")
lab("L_c_store")
e(f"v_mov_b32 v{vT0}, v{vLS}")
e(f"v_and_b32 v{vT2}, 15, v{vLANE}")
e(f"v_lshl_add_u32 v{vT2}, v{vT2}, 8, s{sQO}")
e(f"v_permlane32_swap_b32 v{vLS}, v{vT0}")
e("s_nop 0")
e(f"v_add_f32 v{vLS}, v{vLS}, v{vT0}")
e(f"v_mov_b32 v{vT0}, v{vLS}")
e(f"v_lshl_add_u32 v{vT2}, v{vG}, 4, v{vT2}")
e("s_nop 0")
e(f"v_permlane16_swap_b32 v{vLS}, v{vT0}")
e("s_nop 0")
e(f"v_add_f32 v{vLS}, v{vLS}, v{vT0}")
e(f"v_rcp_f32 v{vMN}, v{vLS}")
e(f"s_cmp_lg_u32 s{sROLE}, 0")
scale_o(vMN)
for r in range(16):
    e(f"v_cvt_pk_bf16_f32 v{vKF+r}, v{vO+2*r}, v{vO+2*r+1}")
e("s_cbranch_scc1 L_publish")
def out_stores(fl, step=64):
    for j in range(4):
        e(f"global_store_dwordx4 v{vT2}, v[{vKF+4*j}:{vKF+4*j+3}], s[{sOUT}:{sOUT+1}] offset:{step*j}{fl}")
out_stores(OST)
e(FIN)

def l_total():
    e(f"v_mov_b32 v{vT0}, v{vLS}")
    e(f"v_and_b32 v{vT2}, 15, v{vLANE}")
    e(f"v_lshl_add_u32 v{vT2}, v{vT2}, 8, s{sQO}")
    e(f"v_permlane32_swap_b32 v{vLS}, v{vT0}")
    e("s_nop 0")
    e(f"v_add_f32 v{vLS}, v{vLS}, v{vT0}")
    e(f"v_mov_b32 v{vT0}, v{vLS}")
    e(f"v_lshl_add_u32 v{vT2}, v{vG}, 4, v{vT2}")
    e("s_nop 0")
    e(f"v_permlane16_swap_b32 v{vLS}, v{vT0}")
    e("s_nop 0")
    e(f"v_add_f32 v{vLS}, v{vLS}, v{vT0}")
    e(f"v_rcp_f32 v{vMN}, v{vLS}")
if a.last:
    lab("L_v_islast2")
    e(f"s_sub_u32 s{sT0}, s{sTTC}, s{sTB1}")
    e(f"s_or_b32 s{sT0}, s{sT0}, s{sMRG}")
    e(f"s_or_b32 s{sT0}, s{sT0}, s{sROLE}")
    e("s_cbranch_scc1 L_v_pv2")
    e("s_branch L_v_lpv")
    lab("L_v_islast")
    c("closing tile of an owner with nothing pending: take the short path")
    e(f"s_sub_u32 s{sT0}, s{sTTC}, s{sTB1}")
    e(f"s_or_b32 s{sT0}, s{sT0}, s{sMRG}")
    e(f"s_or_b32 s{sT0}, s{sT0}, s{sROLE}")
    e(f"s_or_b32 s{sT0}, s{sT0}, s{sRS}")
    e(f"s_or_b32 s{sT0}, s{sT0}, s{sRS+1}")
    e("s_cbranch_scc1 L_v_next2")
    e(f"ds_read_b128 v[{vP}:{vP+3}], v{vPW}")
    e("s_waitcnt lgkmcnt(1)")
    e(f"v_readfirstlane_b32 s{sLND}, v{vPL}")
    e(f"s_cmp_ge_i32 s{sLND}, s{sNK}")
    e("s_cbranch_scc1 L_v_lrd")
    poll("L_v_lpoll")
    lab("L_v_lrd")
    for x in VR: e(x)
    def fin_j(j):
        r = []
        for k in range(4):
            q = vO + 8 * j + 2 * k
            r.append(f"v_pk_mul_f32 v[{q}:{q+1}], v[{q}:{q+1}], v[{vINV}:{vINV+1}] op_sel_hi:[1,0]")
        for k in range(4):
            r.append(f"v_cvt_pk_bf16_f32 v{vKF+4*j+k}, v{vO+8*j+2*k}, v{vO+8*j+2*k+1}")
        r.append(f"global_store_dwordx4 v{vOA}, v[{vKF+4*j}:{vKF+4*j+3}], s[{sOUT}:{sOUT+1}] offset:{64*j}{OST}")
        return r
    lab("L_v_lpv")
    f0 = fin_j(0)
    for i in range(8):
        e(f"s_waitcnt lgkmcnt({14-2*i})")
        e(PV[i])
        if i == 5: e(f0[0]); e(f0[1])
        if i == 6: e(f0[2]); e(f0[3])
    stamp(2)
    seq = f0[4:] + fin_j(1) + fin_j(2) + fin_j(3)
    if a.dwait:
        for x in seq:
            if "store" not in x: e(x)
        lab("L_dw")
        e(f"s_memrealtime s[{sST+2}:{sST+3}]")
        e("s_waitcnt lgkmcnt(0)")
        e(f"s_sub_u32 s{sT0}, s{sST+2}, s{sST}")
        e(f"s_cmp_lt_u32 s{sT0}, {a.dwait}")
        e("s_cbranch_scc1 L_dw")
        for x in seq:
            if "store" in x: e(x)
        if a.wb:
            e(f"s_add_u32 s{sT0}, s{sB}, s{sCI}")
            e(f"s_cmp_lg_u32 s{sT0}, 0")
            e("s_cbranch_scc1 L_dw2")
            e("buffer_wbl2 sc1")
            lab("L_dw2")
    else:
        for x in seq: e(x)
    e(f"ds_write_b32 v{vFW}, v{vFV}")
    e(FIN)

lab("L_v_resc")
e(f"s_bitset0_b64 s[{sRS}:{sRS+1}], s{sT0}")
alpha_addr()
e("s_waitcnt vmcnt(0)")
e(f"global_load_dword v{vAL}, v{vT1}, s[{sWS}:{sWS+1}] sc1")
e("s_waitcnt vmcnt(0)")
scale_o(vAL)
e("s_branch L_v_top2")

lab("L_v_merge")
c("only once no rescale is pending; the reference max stays, so the partial's max must not be far above it")
e(f"s_cmp_eq_u64 s[{sRS}:{sRS+1}], 0")
e("s_cbranch_scc0 L_v_top3")
lab("L_c_merge")
e(f"s_mul_i32 s{sT0}, s{sCI}, {MBS}")
e(f"s_add_u32 s{sT0}, s{sT0}, {MB}")
e(f"v_and_b32 v{vT1}, 15, v{vLANE}")
e(f"v_lshl_add_u32 v{vT0}, v{vLANE}, 4, s{sT0}")
e(f"v_lshl_add_u32 v{vT1}, v{vT1}, 3, s{sT0}")
e("s_waitcnt lgkmcnt(0)")
e(f"ds_write_b32 v{vFW}, v{vFV}")
e(f"ds_read_b64 v[{vT4}:{vT5}], v{vT1} offset:4096")
for i in range(4):
    e(f"ds_read_b128 v[{vKF+4*i}:{vKF+4*i+3}], v{vT0} offset:{1024*i}")
e(f"s_cmp_eq_u32 s{sPLN}, 2")
e("s_waitcnt lgkmcnt(0)")
e("s_cbranch_scc1 L_c_mfin")
e(f"v_sub_f32 v{vT4}, v{vT4}, v{vM}")
e(f"v_cmp_nge_f32 vcc, 0x41800000, v{vT4}")
e(f"s_mov_b32 s{sMRG}, 2")
e("s_nop 3")
e("s_cbranch_vccnz L_v_top3")
e("s_branch L_c_madd")
lab("L_c_mfin")
e(f"v_max_f32 v{vMN}, v{vM}, v{vT4}")
e(f"v_sub_f32 v{vAL}, v{vM}, v{vMN}")
e(f"v_sub_f32 v{vT4}, v{vT4}, v{vMN}")
e(f"v_exp_f32 v{vAL}, v{vAL}")
e("s_nop 0")
e(f"v_mul_f32 v{vLS}, v{vLS}, v{vAL}")
scale_o(vAL)
lab("L_c_madd")
e(f"v_exp_f32 v{vT4}, v{vT4}")
e(f"s_mov_b32 s{sMRG}, 0")
e(f"v_mul_f32 v{vT4}, v{vT4}, v{vT5}")
e(f"v_fmac_f32 v{vLS}, 0x3e800000, v{vT4}")
for r in range(16):
    t = vKF + 16 + 2 * (r % 4)
    e(f"v_lshlrev_b32 v{t}, 16, v{vKF+r}")
    e(f"v_and_b32 v{t+1}, 0xffff0000, v{vKF+r}")
    e(f"v_pk_fma_f32 v[{vO+2*r}:{vO+2*r+1}], v[{t}:{t+1}], v[{vT4}:{vT4+1}], v[{vO+2*r}:{vO+2*r+1}] op_sel_hi:[1,0,1]")
e(f"s_cmp_eq_u32 s{sPLN}, 2")
e("s_cbranch_scc1 L_c_store")
if a.last: inv_pre()
e("s_branch L_v_top3")
lab("L_c_mwait0")
e(f"s_mov_b32 s{sPLN}, 2")
lab("L_c_mwait")
e(f"ds_read_b64 v[{vPL}:{vPL+1}], v{vPA}")
e("s_waitcnt lgkmcnt(0)")
e(f"v_readfirstlane_b32 s{sMBF}, v{vPL+1}")
e(f"s_cmp_lg_u32 s{sMBF}, 0")
e("s_cbranch_scc1 L_c_merge")
spin_tail("L_c_mwait")

def ws_base(sb):
    e(f"s_lshl3_add_u32 s{sT0}, s{sb}, s{sH}")
    e(f"s_lshl_b32 s{sT0}, s{sT0}, 9")
    if WS0: e(f"s_add_u32 s{sT0}, s{sT0}, {WS0}")

lab("L_publish")
if "nopub" in DBG: e("s_endpgm")
e(f"v_lshl_add_u32 v{vT2}, v{vLANE}, 4, s{sQO}")
e(f"s_lshl_b32 s{sT2}, s{sPB}, 2")
e(f"v_mov_b32 v{vT3}, s{sT2}")
e(f"v_lshlrev_b32 v{vT4}, 1, v{vT3}")
e(f"v_add_u32 v{vT4}, {CTRL+68}, v{vT4}")
e(f"ds_read_b32 v{vT4}, v{vT4}")
ws_base(sPB)
e(f"s_lshl2_add_u32 s{sT1}, s{sCI}, s{sT0}")
e(f"v_mov_b32 v{vT5}, s{sT1}")
e(f"s_lshl_b32 s{sT1}, s{sCI}, 7")
e(f"s_add_u32 s{sT0}, s{sT0}, s{sT1}")
e(f"v_lshl_add_u32 v{vT1}, v{vLANE}, 3, s{sT0}")
e(f"s_getreg_b32 s{sT2}, hwreg(HW_REG_XCC_ID, 0, 4)")
e(f"s_lshl_b32 s{sT2}, s{sT2}, 4")
e(f"s_or_b32 s{sT2}, s{sT2}, s{sH}")
e(f"s_or_b32 s{sT2}, s{sT2}, 0x100")
e("s_waitcnt lgkmcnt(0)")
e(f"v_readfirstlane_b32 s{sT1}, v{vT4}")
e(f"s_lshr_b32 s{sT1}, s{sT1}, 16")
e(f"s_cmp_eq_u32 s{sT1}, s{sT2}")
e("s_cbranch_scc1 L_pub_fast")
e(f"global_load_dword v{vT4}, v{vT3}, s[{sDBG}:{sDBG+1}] offset:128 sc1")
e("s_waitcnt vmcnt(0)")
e(f"v_readfirstlane_b32 s{sT1}, v{vT4}")
e(f"s_lshr_b32 s{sT1}, s{sT1}, 16")
e(f"s_cmp_eq_u32 s{sT1}, s{sT2}")
e("s_cbranch_scc0 L_pub_slow")
lab("L_pub_fast")
c("the receiver runs on this die and has cleared its flag words: hand over inside the shared L2")
out_stores(" " + a.pst if a.pst else "", 1024)
e("s_mov_b64 exec, 0xffff")
e(f"global_store_dwordx2 v{vT1}, v[{vM}:{vM+1}], s[{sWS}:{sWS+1}]")
e(f"v_mov_b32 v{vT4}, 1")
e("s_waitcnt vmcnt(0)")
e("s_mov_b64 exec, 1")
e(f"global_store_dword v{vT5}, v{vT4}, s[{sWS}:{sWS+1}] offset:256")
e(FIN)
lab("L_pub_slow")
c("any other placement: write through to memory, then set a bit with a device-wide atomic")
out_stores(" sc1", 1024)
e("s_mov_b64 exec, 0xffff")
e(f"global_store_dwordx2 v{vT1}, v[{vM}:{vM+1}], s[{sWS}:{sWS+1}] sc1")
e(f"s_lshl1_add_u32 s{sT1}, s{sH}, s{sCI}")
e(f"s_lshl_b32 s{sT1}, 1, s{sT1}")
e(f"v_mov_b32 v{vT4}, s{sT1}")
e("s_waitcnt vmcnt(0)")
e("s_mov_b64 exec, 1")
e(f"global_atomic_add v{vT3}, v{vT4}, s[{sDBG}:{sDBG+1}]")
e(FIN)

vRW = vL
vKEY, vRK = 19, 20
lab("L_ctl0")
if a.skew:
    c("dies are not started at the same instant: the first eight workgroups post when they started")
    e(f"s_memrealtime s[{sMA}:{sMA+1}]")
    e(f"s_lshl2_add_u32 s{sT0}, s{sH}, 2")
    e(f"v_mov_b32 v{vT4}, s{sT0}")
    e(f"s_cmp_lg_u32 s{sB}, 0")
    e("s_waitcnt lgkmcnt(0)")
    e("s_cbranch_scc1 L_ctl1")
    e(f"s_or_b32 s{sT0}, s{sMA}, 0x8000")
    e(f"v_mov_b32 v{vT5}, s{sT0}")
    e("s_mov_b64 exec, 1")
    e(f"global_store_short v{vT4}, v{vT5}, s[{sDBG}:{sDBG+1}] sc1")
    e("s_mov_b64 exec, -1")
    lab("L_ctl1")
e("s_barrier")
e("s_branch L_ctl")
lab("L_planner")
e(f"s_cmp_eq_u32 s{sW}, 5")
e("s_cbranch_scc1 L_ctl0")
e(f"s_sub_u32 s{sCI}, s{sW}, 3")
e(f"s_lshl_b32 s{sSB}, s{sCI}, 8")
e(f"s_add_u32 s{sSB}, s{sSB}, {CNT}")
e(f"v_lshl_add_u32 v{vPA}, v{vLANE}, 2, s{sSB}")
e(f"s_lshl_b32 s{sT2}, s{sCI}, 7")
e(f"s_add_u32 s{sT2}, s{sT2}, {KEYS}")
e(f"v_add_u32 v{vT3}, s{sT2}, v{vT3}")
e(f"v_lshrrev_b32 v{vT4}, 5, v{vLANE}")
e(f"v_lshl_add_u32 v{vT4}, v{vT4}, 6, s{sT2}")
e(f"v_mov_b32 v{vT5}, 2048")
e("s_barrier")
e("s_waitcnt vmcnt(0)")
e(f"v_cmp_gt_i32 s[{sZQ}:{sZQ+1}], 1, v{vN}")
e(f"v_min_i32 v{vN}, v{vN}, v{vT5}")
e("s_nop 0")
e(f"v_cndmask_b32 v{vN}, v{vN}, v{vT5}, s[{sZQ}:{sZQ+1}]")
e(f"v_add_u32 v{vN}, 15, v{vN}")
e(f"v_lshrrev_b32 v{vN}, 4, v{vN}")
e(f"v_lshl_or_b32 v{vKEY}, v{vN}, 5, v{vT0}")
e(f"ds_write_b32 v{vT3}, v{vKEY}")
for i in range(4):
    e(f"ds_read_b128 v[{vKF+4*i}:{vKF+4*i+3}], v{vT4} offset:{16*i}")
e(f"v_mov_b32 v{vRK}, 0")
e(f"v_readlane_b32 s{sNB}, v{vN}, s{sB}")
e("s_waitcnt lgkmcnt(0)")
c("rank of every batch by block count; the batch of rank 31-r is the partner")
for i in range(16):
    e(f"v_sub_u32 v{vKF+i}, v{vKF+i}, v{vKEY}")
for i in range(16):
    e(f"v_alignbit_b32 v{vRK}, v{vRK}, v{vKF+i}, 31")
e(f"v_bcnt_u32_b32 v{vRK}, v{vRK}, 0")
e(f"v_mov_b32 v{vT2}, v{vRK}")
derive_nb()
e(f"v_permlane32_swap_b32 v{vRK}, v{vT2}")
e("s_nop 0")
e(f"v_add_u32 v{vRK}, v{vRK}, v{vT2}")
e("s_nop 0")
e(f"v_readlane_b32 s{sRK}, v{vRK}, s{sB}")
e(f"s_sub_u32 s{sT0}, 31, s{sRK}")
e(f"v_cmp_eq_u32 vcc, s{sT0}, v{vRK}")
e(f"s_ff1_i32_b32 s{sPB}, vcc_lo")
e(f"v_readlane_b32 s{sNP}, v{vN}, s{sPB}")
e(f"s_max_u32 s{sT0}, s{sNB}, s{sNP}")
e(f"s_min_u32 s{sT1}, s{sNB}, s{sNP}")
e(f"s_sub_u32 s{sX}, s{sT0}, s{sT1}")
e(f"s_add_u32 s{sX}, s{sX}, 2")
e(f"s_lshr_b32 s{sX}, s{sX}, 2")
e(f"s_cmp_lt_u32 s{sT0}, {4*NUM+8}")
e(f"s_cselect_b32 s{sX}, 0, s{sX}")
if a.nopair: e(f"s_mov_b32 s{sX}, 0")
e(f"s_cmp_ge_u32 s{sRK}, 16")
e(f"s_cselect_b32 s{sLO}, s{sX}, 0")
e(f"s_cselect_b32 s{sTB}, 0, s{sX}")
e(f"s_cmp_eq_u32 s{sCI}, 0")
e("s_cbranch_scc1 L_pl_norow")
e(f"s_lshl_b32 s{sT0}, s{sPB}, 9")
e(f"v_lshl_add_u32 v{vT1}, v{vLANE}, 3, s{sT0}")
e(f"global_load_dwordx2 v[{vRW}:{vRW+1}], v{vT1}, s[{sBT}:{sBT+1}]")
lab("L_pl_norow")
e(f"s_sub_u32 s{sTA}, s{sNTL}, s{sLO}")
e(f"s_add_u32 s{sT}, s{sTA}, s{sTB}")
e(f"s_mul_i32 s{sF}, s{sT}, {a.fnum}")
e(f"s_lshr_b32 s{sF}, s{sF}, 6")
e(f"s_min_u32 s{sWB}, s{sTA}, {a.UB}")
e(f"s_sub_i32 s{sF}, s{sF}, s{sWB}")
e(f"s_max_i32 s{sF}, s{sF}, s{sTB}")
e(f"s_max_i32 s{sF}, s{sF}, 1")
e(f"v_cvt_f32_u32 v{vT2}, s{sF}")
e(f"v_subrev_u32 v{vT3}, s{sWB}, v{vLANE}")
e(f"v_rcp_f32 v{vT2}, v{vT2}")
e(f"v_mul_i32_i24 v{vT4}, s{sTB}, v{vT3}")
e(f"v_add_u32 v{vT5}, s{sTB}, v{vT4}")
e(f"v_cvt_f32_i32 v{vT4}, v{vT4}")
e(f"v_cvt_f32_i32 v{vT5}, v{vT5}")
e(f"v_add_f32 v{vT4}, 0.5, v{vT4}")
e(f"v_add_f32 v{vT5}, 0.5, v{vT5}")
e(f"v_mul_f32 v{vT4}, v{vT4}, v{vT2}")
e(f"v_mul_f32 v{vT5}, v{vT5}, v{vT2}")
e(f"v_floor_f32 v{vT4}, v{vT4}")
e(f"v_floor_f32 v{vT5}, v{vT5}")
e(f"v_cmp_gt_u32 vcc, s{sF}, v{vT3}")
e(f"v_cmp_gt_f32 s[{sMBK}:{sMBK+1}], v{vT5}, v{vT4}")
e(f"s_sub_u32 s{sT0}, s{sT}, s{sNU}")
e(f"v_subrev_u32 v{vT3}, s{sNU}, v{vLANE}")
e(f"v_cmp_gt_u32 s[{sMA}:{sMA+1}], s{sT0}, v{vT3}")
e(f"s_and_b64 s[{sMBK}:{sMBK+1}], s[{sMBK}:{sMBK+1}], vcc")
e(f"s_andn2_b64 s[{sMA}:{sMA+1}], s[{sMA}:{sMA+1}], s[{sMBK}:{sMBK+1}]")
c(f"own tiles to sort: logical [NU+given, ntile); donated: the partner's logical [{NUM}, {NUM}+TB)")
mfirst = a.mfirst and not a.nosort
if mfirst:
    e(f"s_ff1_i32_b64 s{sT2}, s[{sMA}:{sMA+1}]")
else:
    e(f"s_flbit_i32_b64 s{sT2}, s[{sMA}:{sMA+1}]")
    e(f"s_sub_u32 s{sT2}, 63, s{sT2}")
e(f"s_lshl_b32 s{sT2}, s{sT2}, 8")
e(f"s_or_b32 s{sWB}, s{sT2}, 1")
e(f"s_min_u32 s{sMRG}, s{sLO}, 1")
SM = [int(x) for x in a.smart.split(",")] if a.smart else None
sV0M, sV1M, sCM, sD2, sCN = 72, 74, 76, 78, 79
if SM:
    e(f"s_lshl_b32 s{sD2}, s{sLO}, 1")
    e(f"s_sub_u32 s{sCN}, s{sNTL}, {NUM+1}")
    e(f"s_mov_b32 s{sLO}, 0")
e(f"s_add_u32 s{sLO}, s{sLO}, s{sNU}")
e(f"s_sub_u32 s{sHI}, s{sNTL}, s{sLO}")
e(f"s_sub_u32 s{sT3}, s{sNTL}, 1")
e(f"s_mov_b32 s{sLBASE}, {LA}")
e(f"s_cmp_eq_u32 s{sCI}, 0")
e("s_cbranch_scc1 L_pl_a")
e(f"s_mov_b32 s{sLO}, {NUM}")
e(f"s_mov_b32 s{sHI}, s{sTB}")
e(f"s_mov_b32 s{sT3}, -1")
if SM:
    e(f"s_lshl_b32 s{sD2}, s{sTB}, 1")
    e(f"s_add_u32 s{sCN}, s{sNP}, 1")
    e(f"s_lshr_b32 s{sCN}, s{sCN}, 1")
    e(f"s_sub_u32 s{sCN}, s{sCN}, {NUM+1}")
e(f"s_mov_b32 s{sLBASE}, {LB}")
e(f"s_mov_b64 s[{sMA}:{sMA+1}], s[{sMBK}:{sMBK+1}]")
e("s_branch L_pl_sort")
lab("L_pl_a")
e(f"s_lshl_b32 s{sT0}, s{sT}, 8")
e(f"s_or_b32 s{sT0}, s{sT0}, s{sMRG}")
e(f"v_mov_b32 v{vT2}, s{sMA}")
e(f"v_mov_b32 v{vT3}, s{sMA+1}")
e(f"v_mov_b32 v{vT4}, s{sT0}")
e(f"v_mov_b32 v{vT5}, s{sWB}")
e(f"v_mov_b32 v{vT1}, {REC0}")
e(f"ds_write_b128 v{vT1}, v[{vT2}:{vT5}]")
lab("L_pl_sort")
e(f"v_subrev_u32 v{vT0}, s{sLO}, v{vLANE}")
e(f"v_cmp_gt_u32 vcc, s{sHI}, v{vT0}")
e(f"v_mov_b32 v{vT5}, 1")
e("s_waitcnt vmcnt(0)")
if SM:
    c("blocks to hand over: the first 2x candidates lying in the part of memory swept while the helper works on them")
    e(f"s_mov_b64 s[{sV0M}:{sV0M+1}], 0")
    e(f"s_mov_b64 s[{sV1M}:{sV1M+1}], 0")
    e(f"s_cmp_eq_u32 s{sD2}, 0")
    e("s_cbranch_scc1 L_pl_nod")
    e(f"s_movk_i32 s{sT0}, {SM[1]-SM[0]}")
    e(f"v_subrev_u32 v{vT2}, {SM[0]}, v{vRW}")
    e(f"v_subrev_u32 v{vT3}, {SM[0]}, v{vRW+1}")
    e(f"s_bfm_b64 s[{sCM}:{sCM+1}], s{sCN}, {NUM}")
    e(f"v_cmp_gt_u32 s[{sV0M}:{sV0M+1}], s{sT0}, v{vT2}")
    e(f"v_cmp_gt_u32 s[{sV1M}:{sV1M+1}], s{sT0}, v{vT3}")
    e(f"s_and_b64 s[{sV0M}:{sV0M+1}], s[{sV0M}:{sV0M+1}], s[{sCM}:{sCM+1}]")
    e(f"s_and_b64 s[{sV1M}:{sV1M+1}], s[{sV1M}:{sV1M+1}], s[{sCM}:{sCM+1}]")
    e(f"s_bcnt1_i32_b64 s{sT0}, s[{sV0M}:{sV0M+1}]")
    e(f"s_bcnt1_i32_b64 s{sT1}, s[{sV1M}:{sV1M+1}]")
    e(f"s_add_u32 s{sT1}, s{sT1}, s{sT0}")
    e(f"s_cmp_lt_u32 s{sT1}, s{sD2}")
    e(f"s_cselect_b64 s[{sV0M}:{sV0M+1}], s[{sCM}:{sCM+1}], s[{sV0M}:{sV0M+1}]")
    e(f"s_cselect_b64 s[{sV1M}:{sV1M+1}], s[{sCM}:{sCM+1}], s[{sV1M}:{sV1M+1}]")
    e(f"s_cselect_b32 s{sT0}, s{sCN}, s{sT0}")
    e(f"v_mbcnt_lo_u32_b32 v{vT2}, s{sV0M}, 0")
    e(f"v_mbcnt_lo_u32_b32 v{vT3}, s{sV1M}, 0")
    e(f"v_mbcnt_hi_u32_b32 v{vT2}, s{sV0M+1}, v{vT2}")
    e(f"v_mbcnt_hi_u32_b32 v{vT3}, s{sV1M+1}, v{vT3}")
    e(f"s_sub_u32 s{sT0}, s{sD2}, s{sT0}")
    e(f"v_cmp_gt_i32 s[{sCM}:{sCM+1}], s{sD2}, v{vT2}")
    e(f"s_and_b64 s[{sV0M}:{sV0M+1}], s[{sV0M}:{sV0M+1}], s[{sCM}:{sCM+1}]")
    e(f"v_cmp_gt_i32 s[{sCM}:{sCM+1}], s{sT0}, v{vT3}")
    e(f"s_and_b64 s[{sV1M}:{sV1M+1}], s[{sV1M}:{sV1M+1}], s[{sCM}:{sCM+1}]")
    lab("L_pl_nod")
    e(f"s_cmp_lg_u32 s{sCI}, 0")
    e("s_cbranch_scc1 L_pl_val")
    e(f"s_andn2_b64 s[{sV0M}:{sV0M+1}], vcc, s[{sV0M}:{sV0M+1}]")
    e(f"s_andn2_b64 s[{sV1M}:{sV1M+1}], vcc, s[{sV1M}:{sV1M+1}]")
    lab("L_pl_val")
X0 = f"s[{sV0M}:{sV0M+1}]" if SM else "vcc"
X1 = f"s[{sV1M}:{sV1M+1}]"
if a.nosort:
    e(f"v_lshlrev_b32 v{vT2}, 1, v{vT0}")
    e(f"v_add_u32 v{vT3}, 1, v{vT2}")
else:
    c("counting sort of the block ids into 64 buckets of ascending physical address")
    e(f"v_lshrrev_b32 v{vT0}, 6, v{vRW}")
    e(f"v_lshrrev_b32 v{vT1}, 6, v{vRW+1}")
    e(f"v_cmp_eq_u32 s[{sRK+2}:{sRK+3}], s{sT3}, v{vLANE}")
    if mfirst:
        e(f"v_med3_u32 v{vT0}, v{vT0}, 1, 63")
        e(f"v_med3_u32 v{vT1}, v{vT1}, 1, 63")
    else:
        e(f"v_min_u32 v{vT0}, 62, v{vT0}")
        e(f"v_min_u32 v{vT1}, 62, v{vT1}")
    fb = 0 if mfirst else 63
    e(f"v_cndmask_b32 v{vT0}, v{vT0}, {fb}, s[{sRK+2}:{sRK+3}]")
    e(f"v_cndmask_b32 v{vT1}, v{vT1}, {fb}, s[{sRK+2}:{sRK+3}]")
    e(f"v_lshlrev_b32 v{vT0}, 2, v{vT0}")
    e(f"v_lshlrev_b32 v{vT1}, 2, v{vT1}")
    e(f"v_add_u32 v{vKF}, s{sSB}, v{vT0}")
    e(f"v_add_u32 v{vKF+1}, s{sSB}, v{vT1}")
    e(f"s_mov_b64 exec, {X0}")
    e(f"ds_add_rtn_u32 v{vT2}, v{vKF}, v{vT5}")
    if SM: e(f"s_mov_b64 exec, {X1}")
    e(f"ds_add_rtn_u32 v{vT3}, v{vKF+1}, v{vT5}")
    e("s_mov_b64 exec, -1")
    e(f"ds_read_b32 v{vT4}, v{vPA}")
    e("s_waitcnt lgkmcnt(0)")
    e(f"v_mov_b32 v{vKF+2}, v{vT4}")
    for sh in (1, 2, 4, 8):
        e("s_nop 1")
        e(f"v_add_u32_dpp v{vT4}, v{vT4}, v{vT4} row_shr:{sh} row_mask:0xf bank_mask:0xf bound_ctrl:0")
    e("s_nop 1")
    e(f"v_add_u32_dpp v{vT4}, v{vT4}, v{vT4} row_bcast:15 row_mask:0xa bank_mask:0xf")
    e("s_nop 1")
    e(f"v_add_u32_dpp v{vT4}, v{vT4}, v{vT4} row_bcast:31 row_mask:0xc bank_mask:0xf")
    e(f"v_sub_u32 v{vT4}, v{vT4}, v{vKF+2}")
    e(f"ds_bpermute_b32 v{vT0}, v{vT0}, v{vT4}")
    e(f"ds_bpermute_b32 v{vT1}, v{vT1}, v{vT4}")
    e("s_waitcnt lgkmcnt(0)")
    e(f"v_add_u32 v{vT2}, v{vT2}, v{vT0}")
    e(f"v_add_u32 v{vT3}, v{vT3}, v{vT1}")
e(f"v_lshlrev_b32 v{vRW}, 15, v{vRW}")
e(f"v_lshlrev_b32 v{vRW+1}, 15, v{vRW+1}")
e(f"v_lshl_add_u32 v{vT2}, v{vT2}, 2, s{sLBASE}")
e(f"v_lshl_add_u32 v{vT3}, v{vT3}, 2, s{sLBASE}")
e(f"s_mov_b64 exec, {X0}")
e(f"ds_write_b32 v{vT2}, v{vRW}")
if SM: e(f"s_mov_b64 exec, {X1}")
e(f"ds_write_b32 v{vT3}, v{vRW+1}")
e("s_mov_b64 exec, -1")
c("place the sorted tiles at their stream positions; flags: 1 valid, 2 masked, 4 last of batch, 8 last of stream")
e(f"v_mbcnt_lo_u32_b32 v{vT0}, s{sMA}, 0")
e(f"v_mbcnt_hi_u32_b32 v{vT0}, s{sMA+1}, v{vT0}")
e(f"v_lshl_add_u32 v{vT0}, v{vT0}, 3, s{sLBASE}")
e(f"ds_read_b64 v[{vT2}:{vT3}], v{vT0}")
e(f"s_lshr_b32 s{sT0}, s{sWB}, 8")
e(f"s_sub_u32 s{sT1}, s{sT}, 1")
e(f"v_cmp_eq_u32 vcc, s{sT0}, v{vLANE}")
e(f"v_cmp_eq_u32 s[{sRK+2}:{sRK+3}], s{sT1}, v{vLANE}")
e(f"v_cmp_eq_u32 s[{sT2}:{sT2+1}], {G-1}, v{vLANE}")
e(f"v_cndmask_b32 v{vT4}, 1, 3, vcc")
e(f"v_cndmask_b32 v{vT5}, 0, 12, s[{sRK+2}:{sRK+3}]")
e(f"v_cndmask_b32 v{vT1}, 0, 4, s[{sT2}:{sT2+1}]")
e(f"v_or3_b32 v{vT4}, v{vT4}, v{vT5}, v{vT1}")
if TR:
    e(f"s_sub_u32 s{sT1}, s{sT}, {TR[0]}")
    e(f"v_cmp_le_i32 vcc, s{sT1}, v{vLANE}")
    e("s_nop 1")
    e(f"v_cndmask_b32 v{vT5}, 0, 16, vcc")
    e(f"v_or_b32 v{vT4}, v{vT4}, v{vT5}")
e(f"v_lshlrev_b32 v{vT0}, 3, v{vLANE}")
e(f"v_add_u32 v{vT0}, {SL}, v{vT0}")
e("s_waitcnt lgkmcnt(0)")
e(f"v_or_b32 v{vT2}, v{vT2}, v{vT4}")
e(f"s_mov_b64 exec, s[{sMA}:{sMA+1}]")
e(f"ds_write_b64 v{vT0}, v[{vT2}:{vT3}]")
e("s_mov_b64 exec, -1")
lab("L_pl_done")
e(f"s_cmp_lg_u32 s{sMRG}, 0")
e("s_cbranch_scc1 L_fetch")
e(f"s_cmp_eq_u32 s{sTB}, 0")
e("s_cbranch_scc1 L_fin")
c("become the consumer of the donated tiles")
load_q(sPB)
e(f"s_mov_b64 s[{sMALL}:{sMALL+1}], s[{sMBK}:{sMBK+1}]")
e(f"s_mov_b32 s{sM}, s{sMBK}")
e(f"s_and_b32 s{sM+1}, s{sMBK+1}, {RHI:#x}")
e(f"s_mov_b32 s{sTTC}, s{sT}")
e(f"s_min_u32 s{sTB1}, s{sT}, {G}")
e(f"s_mov_b32 s{sROLE}, 1")
e(f"s_mov_b32 s{sPLN}, 1")
e(f"s_lshr_b32 s{sT3}, s{sZQ}, s{sPB}")
e(f"s_and_b32 s{sT3}, s{sT3}, 1")
e("s_branch L_csetup")

lab("L_fetch")
e(f"s_cmp_lg_u32 s{sCI}, 0")
e("s_cbranch_scc1 L_fin")
rows_off(sB)
if a.otouch >= 0:
    c("make the lines that will carry the partial valid in L2 (a later read of write-only lines would go to memory)")
    e(f"v_lshl_add_u32 v{vT4}, v{vLANE}, 7, s{sQO}")
    e(f"global_load_dword v{vPF}, v{vT4}, s[{sOUT}:{sOUT+1}] {a.ofl.replace('+', ' ')}")
ws_base(sB)
e(f"v_lshl_add_u32 v{vT1}, v{vT0}, 3, s{sT0}")
e(f"v_mov_b32 v{vFW}, s{sT0}")
e(f"s_lshl_b32 s{sT2}, s{sB}, 2")
e(f"v_mov_b32 v{vT2}, s{sT2}")
e(f"v_mov_b32 v{vPA}, {CTRL+16}")
e("s_mov_b64 exec, 1")
e(f"s_mul_i32 s{sNEED}, s{sT}, {a.pollnum}")
e(f"s_lshr_b32 s{sNEED}, s{sNEED}, 5")
e(f"s_lshl_b32 s{sT3}, s{sH}, 1")
e(f"s_mov_b32 s{sMBF}, 0")
c("wait until wave 5 has cleared the flag words and the stream is far enough")
lab("L_f_wait")
e(f"ds_read_b64 v[{vPL}:{vPL+1}], v{vPA}")
e("s_waitcnt lgkmcnt(0)")
e(f"v_readfirstlane_b32 s{sLND}, v{vPL}")
e(f"v_readfirstlane_b32 s{sT0}, v{vPL+1}")
e(f"s_cmp_ge_i32 s{sLND}, s{sNEED}")
e(f"s_cselect_b32 s{sT0}, s{sT0}, 0")
e(f"s_cmp_lg_u32 s{sT0}, 0")
e("s_cbranch_scc1 L_f_poll")
spin_tail("L_f_wait", 8)
lab("L_f_poll")
if "nopoll" in DBG: e("s_branch L_f_got")
e(f"global_load_dwordx2 v[{vPL}:{vPL+1}], v{vFW}, s[{sWS}:{sWS+1}] offset:256 sc1")
e(f"s_add_u32 s{sMBF}, s{sMBF}, 1")
e(f"s_and_b32 s{sT0}, s{sMBF}, 3")
e(f"s_mov_b32 s{sT2}, 0")
e("s_cbranch_scc1 L_f_nodbg")
e(f"global_load_dword v{vT3}, v{vT2}, s[{sDBG}:{sDBG+1}] sc1")
e("s_waitcnt vmcnt(0)")
e(f"v_readfirstlane_b32 s{sT2}, v{vT3}")
e(f"s_lshr_b32 s{sT2}, s{sT2}, s{sT3}")
lab("L_f_nodbg")
e("s_waitcnt vmcnt(0)")
e(f"v_lshl_or_b32 v{vPL}, v{vPL+1}, 1, v{vPL}")
e("s_nop 0")
e(f"v_readfirstlane_b32 s{sT0}, v{vPL}")
e(f"s_or_b32 s{sT0}, s{sT0}, s{sT2}")
e(f"s_and_b32 s{sT0}, s{sT0}, 3")
e(f"s_cmp_eq_u32 s{sT0}, 3")
e("s_cbranch_scc1 L_f_got")
spin_tail("L_f_poll", a.psleep)
lab("L_f_got")
e("s_mov_b64 exec, -1")
c("a half that came through memory: acquire at device scope before reading it")
e(f"s_and_b32 s{sT2}, s{sT2}, 3")
e("s_cbranch_scc0 L_f_ld")
e("buffer_inv sc1")
e("s_waitcnt vmcnt(0)")
lab("L_f_ld")
e(f"v_lshl_add_u32 v{vT4}, v{vLANE}, 4, s{sQO}")
e(f"v_add_u32 v{vT5}, 4096, v{vT4}")
FLD = " " + a.fld if a.fld != "none" else ""
for cc in range(2):
    if "nofetch" in DBG:
        e(f"v_mov_b32 v{vM+2*cc}, 0"); e(f"v_mov_b32 v{vM+2*cc+1}, 0")
        continue
    e(f"global_load_dwordx2 v[{vM+2*cc}:{vM+2*cc+1}], v{vT1}, s[{sWS}:{sWS+1}] offset:{128*cc}{FLD}")
    for j in range(4):
        r = vKF + 16 * cc + 4 * j
        e(f"global_load_dwordx4 v[{r}:{r+3}], v{vT4+cc}, s[{sOUT}:{sOUT+1}] offset:{1024*j}{FLD}")
e(f"v_lshlrev_b32 v{vT2}, 4, v{vLANE}")
e(f"v_add_u32 v{vT2}, {MB}, v{vT2}")
e(f"v_lshlrev_b32 v{vT0}, 3, v{vT0}")
e(f"v_add_u32 v{vT0}, {MB}, v{vT0}")
e(f"v_mov_b32 v{vPL}, {CTRL+4}")
e(f"v_mov_b32 v{vT3}, 1")
for cc in range(2):
    e(f"s_waitcnt vmcnt({5-5*cc})")
    for j in range(4):
        r = vKF + 16 * cc + 4 * j
        e(f"ds_write_b128 v{vT2}, v[{r}:{r+3}] offset:{MBS*cc + 1024*j}")
    e(f"ds_write_b64 v{vT0}, v[{vM+2*cc}:{vM+2*cc+1}] offset:{MBS*cc + 4096}")
    e(f"ds_write_b32 v{vPL}, v{vT3} offset:{8*cc}")
e(FIN)

c("wave 5: workgroups that share an L2 post their remaining work; one that lags prefetches deeper")
lab("L_ctl")
e(f"v_mov_b32 v{vT1}, {REC0}")
e(f"v_mov_b32 v{vPA}, {CTRL+32}")
e(f"v_mov_b32 v{vFW}, {DEPW}")
e(f"s_lshl_b32 s{sT0}, s{sB}, 2")
e(f"v_mov_b32 v{vG}, s{sT0}")
e(f"v_mov_b32 v{vFV}, v{vT3}")
lo = sum((XT[i] & 255) << (8 * i) for i in range(4)); hi = sum((XT[4 + i] & 255) << (8 * i) for i in range(4))
e(f"s_getreg_b32 s{sT0}, hwreg(HW_REG_XCC_ID, 0, 3)")
e(f"s_mov_b32 s{sM}, {lo:#x}")
e(f"s_mov_b32 s{sM+1}, {hi:#x}")
e(f"s_lshl_b32 s{sT0}, s{sT0}, 3")
e(f"s_lshr_b64 s[{sM}:{sM+1}], s[{sM}:{sM+1}], s{sT0}")
e(f"s_sext_i32_i8 s{sBO}, s{sM}")
if a.hcap:
    c("heads 1 and 5 keep fewer bytes in flight per request (L1 set mapping)")
    e(f"s_and_b32 s{sT0}, s{sH}, 3")
    e(f"s_cmp_eq_u32 s{sT0}, 1")
    e(f"s_cselect_b32 s{sT0}, {a.hcap}, 0")
    e(f"s_add_u32 s{sBO}, s{sBO}, s{sT0}")
lab("L_g_plan")
e(f"ds_read_b128 v[{vT2}:{vT5}], v{vT1}")
e("s_waitcnt lgkmcnt(0)")
e(f"v_readfirstlane_b32 s{sT0}, v{vT5}")
e(f"v_readfirstlane_b32 s{sT}, v{vT4}")
e(f"s_cmp_lg_u32 s{sT0}, 0")
e("s_cbranch_scc1 L_g_go")
spin_tail("L_g_plan", 8)
lab("L_g_go")
e(f"s_and_b32 s{sMRG}, s{sT}, 1")
e("s_cbranch_scc0 L_g_nores")
c("a partial is expected: clear its flag words before anything is posted")
ws_base(sB)
e(f"v_mov_b32 v{vT0}, s{sT0}")
e(f"v_mov_b32 v{vT2}, 0")
e(f"v_mov_b32 v{vT3}, 0")
e(f"v_mov_b32 v{vT4}, {CTRL+20}")
e(f"v_mov_b32 v{vT5}, 1")
e("s_mov_b64 exec, 1")
e(f"global_store_dwordx2 v{vT0}, v[{vT2}:{vT3}], s[{sWS}:{sWS+1}] offset:256")
e("s_waitcnt vmcnt(0)")
e(f"ds_write_b32 v{vT4}, v{vT5}")
e("s_mov_b64 exec, -1")
lab("L_g_nores")
e(f"s_and_b32 s{sT0}, s{sDBG}, 127")
e("s_cbranch_scc1 L_fin")
c("posted word: remaining units + 1 | head << 16 | die << 20 | flags cleared << 24")
e(f"s_getreg_b32 s{sFB}, hwreg(HW_REG_XCC_ID, 0, 4)")
e(f"s_lshl4_add_u32 s{sFB}, s{sMRG}, s{sFB}")
e(f"s_lshl4_add_u32 s{sFB}, s{sFB}, s{sH}")
e(f"s_lshl_b32 s{sFB}, s{sFB}, 16")
e(f"s_lshr_b32 s{sT}, s{sT}, 8")
e(f"s_lshl1_add_u32 s{sTN}, s{sT}, 1")
e(f"v_lshlrev_b32 v{vT1}, 1, v{vFV}")
e(f"v_add_u32 v{vT1}, {CTRL+68}, v{vT1}")
e(f"v_mov_b32 v{vT2}, s{sFB}")
e("s_mov_b64 exec, 1")
e(f"global_store_dword v{vG}, v{vT2}, s[{sDBG}:{sDBG+1}] offset:128")
e("s_mov_b64 exec, -1")
if "v" in a.tlb: e(f"global_load_dword v{vPF}, v{vTL}, s[{sV}:{sV+1}] nt")
if "prog2" in DBG: e("v_mov_b32 v50, 0")
if a.skew:
    e(f"s_mov_b32 s{sNEED}, 3")
    e(f"s_cmp_lt_u32 s{sT}, 8")
    e("s_cbranch_scc1 L_fin")
    lab("L_g_sw")
    e(f"ds_read_b32 v{vPL}, v{vPA}")
    e("s_waitcnt lgkmcnt(0)")
    e(f"v_readfirstlane_b32 s{sLND}, v{vPL}")
    e(f"s_cmp_ge_i32 s{sLND}, s{sNEED}")
    e("s_cbranch_scc1 L_g_sa")
    spin_tail("L_g_sw", 1)
    lab("L_g_sa")
    e(f"global_load_dword v{vT0}, v{vFV}, s[{sDBG}:{sDBG+1}] sc1")
    e("s_waitcnt vmcnt(0)")
    e(f"v_cmp_gt_i32 vcc, 0, v{vT0}")
    e(f"v_lshrrev_b32 v{vT0}, 16, v{vT0}")
    e(f"v_sub_u32 v{vT0}, s{sMA}, v{vT0}")
    e(f"v_bfe_i32 v{vT0}, v{vT0}, 0, 15")
    e(f"v_cndmask_b32 v{vT0}, 0, v{vT0}, vcc")
    for sh in (1, 2, 4):
        e("s_nop 1")
        op = "v_max_i32_dpp" if "ampmax" in DBG else "v_add_u32_dpp"
        e(f"{op} v{vT0}, v{vT0}, v{vT0} row_shr:{sh} row_mask:0xf bank_mask:0xf bound_ctrl:0")
    e("s_nop 0")
    e(f"v_readlane_b32 s{sT0}, v{vT0}, 7")
    hx = [d for d in DBG if d.startswith("holdx")]
    if hx:
        e(f"s_ashr_i32 s{sMBK}, s{sT0}, 3")
        e(f"s_sub_u32 s{sMBK}, 3500, s{sMBK}")
        e(f"s_getreg_b32 s{sT1}, hwreg(HW_REG_XCC_ID, 0, 4)")
        e(f"s_cmp_lg_u32 s{sT1}, {hx[0][5:]}")
        e("s_cbranch_scc1 L_end")
        lab("L_hx")
        e(f"s_memrealtime s[{sLO}:{sLO+1}]")
        e("s_waitcnt lgkmcnt(0)")
        e(f"s_sub_u32 s{sT0}, s{sLO}, s{sMA}")
        e(f"s_cmp_lt_u32 s{sT0}, s{sMBK}")
        e("s_cbranch_scc1 L_hx")
        e("s_endpgm")
    if "ampmax" in DBG or "ampmean" in DBG:
        e(f"s_mul_i32 s{sMBK}, s{sT0}, {20 if 'ampmax' in DBG else 3}")
        e(f"s_max_i32 s{sMBK}, s{sMBK}, 0")
        e(f"s_add_u32 s{sMBK}, s{sMBK}, 3500")
        lab("L_amp")
        e("s_sleep 4")
        e(f"s_memrealtime s[{sLO}:{sLO+1}]")
        e("s_waitcnt lgkmcnt(0)")
        e(f"s_sub_u32 s{sT0}, s{sLO}, s{sMA}")
        e(f"s_cmp_lt_u32 s{sT0}, s{sMBK}")
        e("s_cbranch_scc1 L_amp")
        e("s_endpgm")
    e(f"s_mul_i32 s{sT0}, s{sT0}, {a.skew}")
    e(f"s_ashr_i32 s{sT0}, s{sT0}, 9")
    e(f"s_add_u32 s{sBO}, s{sBO}, s{sT0}")
e(f"s_mov_b32 s{sNEED}, {a.cstart}")
lab("L_g_next")
e(f"s_sub_u32 s{sT0}, s{sTN}, s{sNEED}")
e(f"s_cmp_lt_i32 s{sT0}, {a.cstop}")
e("s_cbranch_scc1 L_fin")
lab("L_g_w")
e(f"ds_read_b32 v{vPL}, v{vPA}")
e("s_waitcnt lgkmcnt(0)")
e(f"v_readfirstlane_b32 s{sLND}, v{vPL}")
e(f"s_cmp_ge_i32 s{sLND}, s{sNEED}")
e("s_cbranch_scc1 L_g_a")
spin_tail("L_g_w", 1)
lab("L_g_a")
if "prog2" in DBG:
    e(f"s_memrealtime s[{sST+2}:{sST+3}]")
    e(f"s_lshr_b32 m0, s{sLND}, 1")
    e("s_waitcnt lgkmcnt(0)")
    e(f"v_writelane_b32 v50, s{sST+2}, m0")
e(f"s_sub_u32 s{sNK}, s{sTN}, s{sLND}")
e(f"s_or_b32 s{sT0}, s{sNK}, s{sFB}")
e(f"v_mov_b32 v{vT2}, s{sT0}")
e("s_mov_b64 exec, 1")
e(f"global_store_dword v{vG}, v{vT2}, s[{sDBG}:{sDBG+1}] offset:128")
e("s_mov_b64 exec, -1")
e(f"global_load_dword v{vT0}, v{vFV}, s[{sDBG}:{sDBG+1}] offset:128 sc1")
e(f"s_add_u32 s{sNEED}, s{sLND}, {a.cstep}")
e(f"s_min_i32 s{sT3}, s{sBO}, 1")
e(f"s_max_i32 s{sT3}, s{sT3}, -1")
e(f"s_sub_u32 s{sBO}, s{sBO}, s{sT3}")
e("s_waitcnt vmcnt(0)")
e(f"ds_write_b32 v{vT1}, v{vT0}")
e(f"v_and_b32 v{vT0}, 0xffff, v{vT0}")
e(f"v_cmp_ne_u32 vcc, 0, v{vT0}")
for sh in (1, 2, 4, 8):
    e("s_nop 1")
    e(f"v_add_u32_dpp v{vT0}, v{vT0}, v{vT0} row_shr:{sh} row_mask:0xf bank_mask:0xf bound_ctrl:0")
e("s_nop 1")
e(f"v_add_u32_dpp v{vT0}, v{vT0}, v{vT0} row_bcast:15 row_mask:0xa bank_mask:0xf")
e(f"s_bcnt1_i32_b32 s{sT1}, vcc_lo")
e(f"v_readlane_b32 s{sT0}, v{vT0}, 31")
e(f"s_mul_i32 s{sT2}, s{sNK}, s{sT1}")
e(f"s_sub_u32 s{sT2}, s{sT2}, s{sT0}")
e(f"s_lshl_b32 s{sT2}, s{sT2}, 2")
for th, inc, cmp in ((CTH[0], -1, "lt"), (CTH[1], 1, "gt"), (CTH[2], 1, "gt")):
    e(f"s_mul_i32 s{sT0}, s{sT1}, {th - a.cbias}")
    e(f"s_cmp_{cmp}_i32 s{sT2}, s{sT0}")
    e(f"s_cselect_b32 s{sT0}, {inc}, 0")
    e(f"s_add_u32 s{sT3}, s{sT3}, s{sT0}")
e(f"s_max_i32 s{sT3}, s{sT3}, -1")
e(f"s_min_i32 s{sT3}, s{sT3}, 2")
e(f"v_mov_b32 v{vT2}, s{sT3}")
e(f"ds_write_b32 v{vFW}, v{vT2}")
e("s_branch L_g_next")

lab("L_fin")
if a.amp[:2] == "xd":
    xx = int(a.amp[2:])
    def wait_until(lbl, reg_or_imm):
        lab(lbl)
        e("s_sleep 2")
        e(f"s_memrealtime s[{sST+4}:{sST+5}]")
        e("s_waitcnt lgkmcnt(0)")
        e(f"s_sub_u32 s{sT0}, s{sST+4}, s{sST}")
        e(f"s_cmp_lt_u32 s{sT0}, {reg_or_imm}")
        e(f"s_cbranch_scc1 {lbl}")
    e(f"s_cmp_lg_u32 s{sW}, 1")
    e("s_cbranch_scc1 L_end")
    e("s_waitcnt vmcnt(0) lgkmcnt(0)")
    e(f"s_memrealtime s[{sST+2}:{sST+3}]")
    wait_until("L_xw1", 3400)
    e(f"s_and_b32 s{sT1}, s{sST+2}, 0xffff")
    e(f"s_and_b32 s{sT2}, s2, 7")
    e(f"s_lshl_b32 s{sT2}, s{sT2}, 2")
    e(f"v_mov_b32 v2, s{sT2}")
    e(f"v_mov_b32 v3, s{sT1}")
    e("s_mov_b64 exec, 1")
    e(f"global_atomic_add v2, v3, s[{sDBG}:{sDBG+1}]")
    e("s_cmp_lg_u32 s2, 0")
    e("s_cbranch_scc1 L_end")
    wait_until("L_xw2", 4200)
    e(f"s_load_dwordx8 s[72:79], s[{sDBG}:{sDBG+1}], 0 glc")
    e("s_waitcnt lgkmcnt(0)")
    e(f"s_lshl_b32 s{sT1}, s{72+xx}, 3")
    for i in range(8): e(f"s_sub_u32 s{sT1}, s{sT1}, s{72+i}")
    e(f"s_mul_i32 s{sT1}, s{sT1}, 30")
    e(f"s_ashr_i32 s{sT1}, s{sT1}, 8")
    e(f"s_max_i32 s{sT1}, s{sT1}, -1700")
    e(f"s_min_i32 s{sT1}, s{sT1}, 3000")
    e(f"s_add_u32 s{sT1}, s{sT1}, 6000")
    wait_until("L_xw3", f"s{sT1}")
elif a.amp:
    if a.amp == "end":
        e(f"s_sub_u32 s{sT0}, s{sW}, 1")
        e(f"s_cmp_gt_u32 s{sT0}, 1")
    else:
        e(f"s_cmp_lg_u32 s{sW}, 0")
    e("s_cbranch_scc1 L_end")
    if a.ampwg >= 0:
        e(f"s_cmp_lg_u32 s2, {a.ampwg}")
        e("s_cbranch_scc1 L_end")
    e("s_waitcnt vmcnt(0) lgkmcnt(0)")
    if a.amp[:2] != "t0":
        e(f"s_memrealtime s[{sST+2}:{sST+3}]")
        e("s_waitcnt lgkmcnt(0)")
    e(f"s_sub_u32 s{sT1}, s{sST+2}, s{sST}")
    if a.amp[:2] != "t0": e(f"s_sub_u32 s{sT1}, s{sT1}, 2700")
    if a.amp == "t0x":
        e(f"s_getreg_b32 s{sT1}, hwreg(HW_REG_XCC_ID, 0, 4)")
        e(f"s_mul_i32 s{sT1}, s{sT1}, 50")
    if a.amp == "t0p":
        e(f"s_getreg_b32 s{sT1}, hwreg(HW_REG_XCC_ID, 0, 1)")
        e(f"s_mul_i32 s{sT1}, s{sT1}, 200")
    e(f"s_max_i32 s{sT1}, s{sT1}, 0")
    e(f"s_min_i32 s{sT1}, s{sT1}, 2000")
    e(f"s_mul_i32 s{sT1}, s{sT1}, 10")
    e(f"s_add_u32 s{sT1}, s{sT1}, 3500")
    lab("L_ampw")
    e("s_sleep 2")
    e(f"s_memrealtime s[{sST+2}:{sST+3}]")
    e("s_waitcnt lgkmcnt(0)")
    e(f"s_sub_u32 s{sT0}, s{sST+2}, s{sST}")
    e(f"s_cmp_lt_u32 s{sT0}, s{sT1}")
    e("s_cbranch_scc1 L_ampw")
if "prog2" in DBG or "prog3" in DBG:
    e(f"s_cmp_lg_u32 s{sW}, {5 if 'prog2' in DBG else 0}")
    e("s_cbranch_scc1 L_np2")
    e(f"s_lshl_b32 s{sT0}, s2, 8")
    e(f"s_add_u32 s{sT0}, s{sT0}, 0x400000")
    e(f"v_lshl_add_u32 v51, v{vLANE}, 2, s{sT0}")
    e(f"global_store_dword v51, v50, s[{sWS}:{sWS+1}]")
    lab("L_np2")
if a.stamps:
    e(f"s_cmp_gt_u32 s{sW}, 2")
    e("s_cbranch_scc1 L_end")
    e("s_mov_b64 exec, -1")
    e("s_waitcnt vmcnt(0) lgkmcnt(0)")
    stamp(3)
    e(f"s_getreg_b32 s{sT0}, hwreg(HW_REG_XCC_ID)")
    e("s_waitcnt lgkmcnt(0)")
    for i in range(8):
        e(f"v_mov_b32 v{64+i}, s{sST+i}")
    e(f"v_mov_b32 v72, s{sT0}")
    e(f"s_sub_u32 s{sT1}, {SPIN}, s{sSPIN}")
    e(f"v_mov_b32 v73, s{sT1}")
    e(f"v_mov_b32 v74, s{sT}")
    e(f"v_mov_b32 v75, 0")
    e(f"s_mul_i32 s{sT0}, s2, {NW}")
    e(f"s_add_u32 s{sT0}, s{sT0}, s{sW}")
    e(f"s_lshl_b32 s{sT0}, s{sT0}, 6")
    e(f"v_mov_b32 v80, s{sT0}")
    e("s_mov_b64 exec, 1")
    e(f"global_store_dwordx4 v80, v[64:67], s[{sWS}:{sWS+1}]")
    e(f"global_store_dwordx4 v80, v[68:71], s[{sWS}:{sWS+1}] offset:16")
    e(f"global_store_dwordx4 v80, v[72:75], s[{sWS}:{sWS+1}] offset:32")
lab("L_end")
e("s_endpgm")
if a.wake:
    out.append(".p2align 8")
    lab("L_pad")
    out.append(f".fill {64 * a.wake}, 4, 0xbf810000")
out.append('.section .rodata,"a"')
out.append(".p2align 6")
out.append(f".amdhsa_kernel {NAME}_kernel")
out.append(f"  .amdhsa_next_free_vgpr {NV}")
out.append("  .amdhsa_next_free_sgpr 102")
out.append(f"  .amdhsa_accum_offset {NV}")
out.append("  .amdhsa_group_segment_fixed_size 0")
out.append("  .amdhsa_kernarg_size 64")
out.append("  .amdhsa_user_sgpr_count 2")
out.append("  .amdhsa_user_sgpr_kernarg_segment_ptr 1")
out.append("  .amdhsa_system_sgpr_workgroup_id_x 1")
out.append("  .amdhsa_float_denorm_mode_32 3")
out.append(".end_amdhsa_kernel")
open(a.o, "w").write("\n".join(out) + "\n")
```
